```python
import torch

def _softmax(x, axis=-1):
    return torch.softmax(x, dim=axis)
def _gelu(x):
    return torch.nn.functional.gelu(x, approximate="tanh")
def _silu(x):
    return torch.nn.functional.silu(x)
def _sigmoid(x):
    return torch.sigmoid(x)
def _layernorm(x, axis=-1, eps=1e-5):
    m = x.mean(dim=axis, keepdim=True)
    v = x.var(dim=axis, keepdim=True, unbiased=False)
    return (x - m) / torch.sqrt(v + eps)
def _scatter_add(tgt, idx, src, axis=0):
    return tgt.clone().index_add_(axis, idx, src)
def _segment_sum(src, seg, n):
    out = torch.zeros((n,) + src.shape[1:], dtype=src.dtype)
    return out.index_add_(0, seg, src)
def _pad(x, pw):
    flat = tuple(v for pair in reversed(pw) for v in pair)
    return torch.nn.functional.pad(x, flat)

kernel_name = 'interleave_layers__ssm_conv_s4__mixer_token_mlp__prompt'

def setup_inputs():

    _w = (lambda a: (lambda t: t.to(torch.bfloat16) if t.is_floating_point() else t)(torch.as_tensor(a)))
    def _A_setup():
        B, L, D, N = 1, 2048, 448, 256
        A_re = -(lambda _x: torch.exp(torch.as_tensor(_x)))((lambda *s: torch.randn(*s, dtype=torch.bfloat16) * 3.2)(D, N))
        A_im = torch.pi * (lambda *s: torch.randn(*s, dtype=torch.bfloat16) * 0.05)(D, N)
        B_re = (lambda *s: torch.randn(*s, dtype=torch.bfloat16) * 0.05)(D, N)
        B_im = (lambda *s: torch.randn(*s, dtype=torch.bfloat16) * 0.05)(D, N)
        C_re = (lambda *s: torch.randn(*s, dtype=torch.bfloat16) * 0.05)(D, N)
        C_im = (lambda *s: torch.randn(*s, dtype=torch.bfloat16) * 0.05)(D, N)
        log_dt = (lambda *s: torch.randn(*s, dtype=torch.bfloat16) * 0.05)(D) * 0.5 - 4.0
        Dskip = (lambda *s: torch.randn(*s, dtype=torch.bfloat16) * 0.05)(D)
        return {
            "u": _w((lambda *s: torch.randn(*s, dtype=torch.bfloat16) * 0.05)(B, L, D)),
            "A_re": _w(A_re),
            "A_im": _w(A_im),
            "B_re": _w(B_re),
            "B_im": _w(B_im),
            "C_re": _w(C_re),
            "C_im": _w(C_im),
            "log_dt": _w(log_dt),
            "Dskip": _w(Dskip),
        }
    _A_in = _A_setup()

    def _B_setup():
        B, S, D, F = 1, 2048, 448, 1792
        return {
            "x": _w((lambda *s: torch.randn(*s, dtype=torch.bfloat16) * 0.05)(B, S, D)),
            "w1": _w((lambda *s: torch.randn(*s, dtype=torch.bfloat16) * 0.4)(S, F) * (S ** -0.5)),
            "b1": _w((lambda *s: torch.randn(*s, dtype=torch.bfloat16) * 0.2)(F) * 0.02),
            "w2": _w((lambda *s: torch.randn(*s, dtype=torch.bfloat16) * 0.2)(F, S) * (F ** -0.5)),
            "b2": _w((lambda *s: torch.randn(*s, dtype=torch.bfloat16) * 0.2)(S) * 0.02),
        }
    _B_in = _B_setup()

    return {
        "A_u": _A_in["u"],
        "A_A_re": _A_in["A_re"],
        "A_A_im": _A_in["A_im"],
        "A_B_re": _A_in["B_re"],
        "A_B_im": _A_in["B_im"],
        "A_C_re": _A_in["C_re"],
        "A_C_im": _A_in["C_im"],
        "A_log_dt": _A_in["log_dt"],
        "A_Dskip": _A_in["Dskip"],
        "B_x": _B_in["x"],
        "B_w1": _B_in["w1"],
        "B_b1": _B_in["b1"],
        "B_w2": _B_in["w2"],
        "B_b2": _B_in["b2"],
    }

def reference(A_u, A_A_re, A_A_im, A_B_re, A_B_im, A_C_re, A_C_im, A_log_dt, A_Dskip, B_x, B_w1, B_b1, B_w2, B_b2):
    def _A_ref(u, A_re, A_im, B_re, B_im, C_re, C_im, log_dt, Dskip):
        Bsz, L, D = u.shape
        dt = torch.exp(log_dt)[:, None]
        A = A_re + 1j * A_im
        Bc = B_re + 1j * B_im
        Cc = C_re + 1j * C_im
        logdA = dt * A
        dB = dt * Bc
        l = (lambda x, dt: x.to(dt))(torch.arange(L), A_re.dtype)
        P = torch.exp(logdA[:, :, None] * l[None, None, :])
        K = torch.einsum("dn,dnl,dn->dl", Cc, P, dB).real
        L2 = 2 * L
        Kp = _pad(K, ((0, 0), (0, L)))
        up = (lambda x, *d: x.permute(*d))(u, 0, 2, 1)
        up = _pad(up, ((0, 0), (0, 0), (0, L)))
        Kf = (lambda x, axes=(-2,-1): torch.fft.rfft2(x.float(), dim=axes))(Kp[:, None, :], axes=(-2, -1))
        Uf = (lambda x, axes=(-2,-1): torch.fft.rfft2(x.float(), dim=axes))(up[:, :, None, :], axes=(-2, -1))
        Yf = Uf * Kf[None, :, :, :]
        y = (lambda x, s, axes=(-2,-1): torch.fft.irfft2(x, s=s, dim=axes).to(torch.bfloat16))(Yf, (1, L2), axes=(-2, -1))[:, :, 0, :L]
        y = (lambda x, *d: x.permute(*d))(y, 0, 2, 1) + u * Dskip[None, None, :]
        return y

    def _B_ref(x, w1, b1, w2, b2):
        B, S, D = x.shape
        h = _layernorm(x, axis=-1)
        u = torch.einsum("bsd,sf->bdf", h, w1) + b1
        u = _gelu(u)
        y = torch.einsum("bdf,fs->bds", u, w2) + b2
        return (lambda x, *d: x.permute(*d))(y, 0, 2, 1)

    x = A_u
    x = x + _A_ref(_layernorm(x, axis=-1), A_A_re, A_A_im, A_B_re, A_B_im, A_C_re, A_C_im, A_log_dt, A_Dskip)
    x = x + _B_ref(_layernorm(x, axis=-1), B_w1, B_b1, B_w2, B_b2)
    x = x + _A_ref(_layernorm(x, axis=-1), A_A_re, A_A_im, A_B_re, A_B_im, A_C_re, A_C_im, A_log_dt, A_Dskip)
    x = x + _B_ref(_layernorm(x, axis=-1), B_w1, B_b1, B_w2, B_b2)
    return x
```

```python
import re

TRANS = ("v_exp_f32", "v_log_f32", "v_rcp_f32", "v_rsq_f32", "v_sqrt_f32", "v_sin_f32", "v_cos_f32")


def split_ops(s):
    out, depth, cur = [], 0, ""
    for ch in s:
        if ch == "[":
            depth += 1
        elif ch == "]":
            depth -= 1
        if ch == "," and depth == 0:
            out.append(cur.strip())
            cur = ""
        else:
            cur += ch
    if cur.strip():
        out.append(cur.strip())
    return out


def regs_of(tok):
    tok = tok.strip()
    tok = tok.lstrip("-")
    if tok.startswith("abs(") and tok.endswith(")"):
        tok = tok[4:-1]
    if tok.startswith("|") and tok.endswith("|"):
        tok = tok[1:-1]
    m = re.fullmatch(r"([vas])\[(\d+):(\d+)\]", tok)
    if m:
        return [f"{m.group(1)}{i}" for i in range(int(m.group(2)), int(m.group(3)) + 1)]
    m = re.fullmatch(r"([vas])(\d+)", tok)
    if m:
        return [tok]
    if tok in ("vcc", "exec", "m0"):
        return [tok]
    if tok in ("vcc_lo", "vcc_hi"):
        return ["vcc"]
    if tok in ("exec_lo", "exec_hi"):
        return ["exec"]
    return []


class Ins:
    __slots__ = ("text", "op", "defs", "uses", "kind", "res_r", "res_w", "optional", "tag", "mf_c", "mf_ab", "passes", "wide", "dpp", "target")

    def __init__(self, text, res_r=(), res_w=(), tag=None, optional=False):
        self.text = text.strip()
        self.res_r = set(res_r)
        self.res_w = set(res_w)
        self.tag = tag
        self.optional = optional
        self.mf_c = set()
        self.mf_ab = set()
        self.passes = 0
        self.wide = False
        self.dpp = False
        self.target = None
        t = self.text
        if t.endswith(":"):
            self.op, self.kind, self.defs, self.uses = "label", "label", set(), set()
            self.target = t[:-1]
            return
        if t.startswith(";") or t.startswith("."):
            self.op, self.kind, self.defs, self.uses = "comment", "comment", set(), set()
            return
        parts = t.split(None, 1)
        op = parts[0]
        self.op = op
        rest = parts[1] if len(parts) > 1 else ""
        ops = split_ops(rest)
        mods = ""
        if ops:
            last = ops[-1].split(None, 1)
            ops[-1] = last[0]
            if len(last) > 1:
                mods = last[1]
        R = [regs_of(o) for o in ops]
        d, u = set(), set()
        base = re.sub(r"_(e32|e64|dpp|sdwa)$", "", op)
        if op.startswith("v_mfma"):
            self.kind = "mfma"
            d |= set(R[0])
            self.mf_ab = set(R[1]) | set(R[2])
            self.mf_c = set(R[3])
            u |= self.mf_ab | self.mf_c
            self.passes = 8 if "32x32x16" in op else 4
            assert "32x32x16" in op or "16x16x32" in op
        elif op.startswith("v_"):
            self.kind = "trans" if base in TRANS else ("dot" if base.startswith("v_dot") else "valu")
            self.dpp = op.endswith("_dpp")
            if base.startswith("v_permlane") and "swap" in base:
                d |= set(R[0]) | set(R[1])
                u |= set(R[0]) | set(R[1])
            elif base in ("v_add_co_u32", "v_sub_co_u32", "v_addc_co_u32", "v_subb_co_u32"):
                d |= set(R[0]) | set(R[1])
                for r in R[2:]:
                    u |= set(r)
            else:
                d |= set(R[0])
                for r in R[1:]:
                    u |= set(r)
                if base.startswith("v_fmac") or base.startswith("v_dot2c") or base == "v_writelane_b32" or self.dpp:
                    u |= set(R[0])
                if base == "v_cndmask_b32" and len(ops) == 3:
                    u.add("vcc")
        elif op.startswith("buffer_"):
            if "load" in op and re.search(r"\blds\b", mods):
                self.kind = "dma"
                for r in R:
                    u |= set(r)
                u.add("m0")
            elif "load" in op:
                self.kind = "vload"
                d |= set(R[0])
                for r in R[1:]:
                    u |= set(r)
            else:
                self.kind = "vstore"
                for r in R:
                    u |= set(r)
                self.wide = op.endswith("x4") or op.endswith("x3")
                self.mf_c = set(R[0])
                assert not ("atomic" in op and "sc0" in mods)
        elif op.startswith("global_"):
            if "load" in op:
                self.kind = "vload"
                d |= set(R[0])
                for r in R[1:]:
                    u |= set(r)
            else:
                self.kind = "vstore"
                for r in R:
                    u |= set(r)
                self.wide = op.endswith("x4") or op.endswith("x3")
                self.mf_c = set(R[1])
        elif op.startswith("ds_read") or op.startswith("ds_bpermute"):
            self.kind = "dsr"
            d |= set(R[0])
            for r in R[1:]:
                u |= set(r)
        elif op.startswith("ds_"):
            self.kind = "dsw"
            for r in R:
                u |= set(r)
        elif op.startswith("s_load") or op.startswith("s_memrealtime") or op.startswith("s_memtime"):
            self.kind = "smem"
            d |= set(R[0])
            for r in R[1:]:
                u |= set(r)
        elif op == "s_waitcnt":
            self.kind = "wait"
        elif op == "s_nop":
            self.kind = "nop"
        elif op == "s_barrier":
            self.kind = "barrier"
        elif op in ("s_endpgm", "s_sleep", "s_setprio"):
            self.kind = "other"
        elif op.startswith("s_cbranch") or op == "s_branch":
            self.kind = "branch"
            self.target = ops[0]
            if "vcc" in op:
                u.add("vcc")
        elif op.startswith("s_cmp") or op.startswith("s_bitcmp"):
            self.kind = "salu"
            for r in R:
                u |= set(r)
        elif op.startswith("s_"):
            self.kind = "salu"
            d |= set(R[0])
            for r in R[1:]:
                u |= set(r)
            if op.endswith("saveexec_b64"):
                d.add("exec")
        else:
            raise ValueError("cannot parse: " + text)
        self.defs, self.uses = d, u

    def states(self):
        if self.kind in ("label", "comment"):
            return 0
        if self.kind == "nop":
            return int(self.text.split()[1]) + 1
        return 1

    def cost(self):
        k = self.kind
        if k in ("label", "comment"):
            return 0
        if k == "mfma":
            return 4 * self.passes
        if k == "trans":
            return 9
        return 4.5


VALU_KINDS = ("valu", "trans", "dot")
VMEM_KINDS = ("vload", "vstore", "dma")


def is_vgpr(r):
    return r[0] in "va" and r[1:].isdigit()


def is_sgpr(r):
    return (r[0] == "s" and r[1:].isdigit()) or r == "vcc"


def need_states(p, c):
    n = 0
    pk, ck = p.kind, c.kind
    base_c = re.sub(r"_(e32|e64|dpp|sdwa)$", "", c.op)
    if pk in VALU_KINDS:
        vd = {r for r in p.defs if is_vgpr(r)}
        sd = {r for r in p.defs if is_sgpr(r)}
        if ck == "mfma" and vd & c.uses:
            n = max(n, 2)
        if ck in VALU_KINDS:
            if pk == "trans" and vd & c.uses:
                n = max(n, 1)
            if c.dpp and vd & c.uses:
                n = max(n, 2)
            if base_c.startswith("v_permlane") and vd & c.uses:
                n = max(n, 2)
            if base_c in ("v_readlane_b32", "v_readfirstlane_b32") and vd & c.uses:
                n = max(n, 1)
            if sd & c.uses:
                n = max(n, 4 if base_c in ("v_readlane_b32", "v_writelane_b32") else 2)
        if pk == "dot" and (vd & (c.uses | c.defs)):
            same_acc = (c.op == p.op and c.kind == "dot" and vd == {r for r in c.defs if is_vgpr(r)})
            if not same_acc:
                n = max(n, 3)
        if ck in VMEM_KINDS and sd & c.uses:
            n = max(n, 5)
        if ck in ("salu", "branch", "smem") and sd & c.uses:
            n = max(n, 1)
    if pk == "mfma":
        big = p.passes == 8
        if ck == "mfma":
            if p.defs & c.mf_ab:
                n = max(n, 12 if big else 8)
            if p.defs & c.mf_c and not (p.defs == c.mf_c and p.passes == c.passes):
                n = max(n, 10 if big else 6)
            if p.defs & c.defs and not (p.defs == c.mf_c and p.passes == c.passes):
                n = max(n, 10 if big else 6)
        elif ck not in ("wait", "nop", "barrier", "label", "comment"):
            if p.defs & (c.uses | c.defs):
                n = max(n, 12 if big else 8)
            if ck in VALU_KINDS and p.mf_c & c.defs:
                n = max(n, 7 if big else 3)
            if ck in ("vload", "dsr") and p.mf_c & c.defs:
                n = max(n, 7 if big else 3)
    if pk == "vstore" and p.wide and (p.mf_c & c.defs):
        n = max(n, 2)
    if pk == "salu" and "m0" in p.defs and ck == "dma":
        n = max(n, 1)
    return n


class Prog:
    def __init__(self):
        self.stack = [[]]

    def __call__(self, text, **kw):
        for line in text.split("\n"):
            line = line.strip()
            if not line:
                continue
            self.stack[-1].append(Ins(line, **kw))

    def put(self, lst):
        self.stack[-1].extend(lst)

    def pseudo(self, kind, arg=None):
        i = Ins("; " + kind)
        i.kind = "pseudo"
        i.op = kind
        i.tag = arg
        self.stack[-1].append(i)

    def begin(self):
        self.stack.append([])

    def end(self):
        return self.stack.pop()

    def capture(self, fn, *a, **kw):
        self.begin()
        fn(*a, **kw)
        return self.end()

    def wait_tag(self, tag):
        self.pseudo("wait_tag", tag)

    def wait_vm0(self):
        self.pseudo("wait_vm0")

    def wait_lgkm0(self):
        self.pseudo("wait_lgkm0")

    def assume_vm0(self):
        self.pseudo("assume_vm0")

    def barrier(self):
        self.wait_lgkm0()
        self("s_barrier")

    def finish(self):
        assert len(self.stack) == 1
        src = self.stack[0]
        out = []
        vm, lg = [], []
        saved = {}
        windows = [[]]

        def age(n):
            for w in windows:
                for e in w:
                    e[1] += n
                w[:] = [e for e in w if e[1] < 24]

        def emit(i):
            out.append(i)
            n = i.states()
            age(n)
            if n:
                for w in windows:
                    w.append([i, 0])
            if len(windows) > 1:
                seen, keep = set(), []
                for w in windows:
                    key = tuple((id(e[0]), e[1]) for e in w)
                    if key not in seen:
                        seen.add(key)
                        keep.append(w)
                windows[:] = keep

        def waitcnt(v=None, l=None):
            s = []
            if v is not None:
                s.append(f"vmcnt({min(v, 63)})")
            if l is not None:
                s.append(f"lgkmcnt({min(l, 15)})")
            emit(Ins("s_waitcnt " + " ".join(s)))

        def count_after(q, idx):
            return sum(1 for e in q[idx + 1:] if not e[1])

        linear_dead = False
        skipped = []
        pos = {id(x): k for k, x in enumerate(src)}
        for here, i in enumerate(src):
            if i.kind == "pseudo":
                if i.op == "wait_vm0":
                    if vm:
                        waitcnt(v=0)
                        vm = []
                elif i.op == "assume_vm0":
                    vm = []
                elif i.op == "wait_lgkm0":
                    if lg:
                        waitcnt(l=0)
                        lg = []
                elif i.op == "wait_tag":
                    idx = max((k for k, e in enumerate(vm) if e[0].tag == i.tag), default=-1)
                    if idx >= 0:
                        waitcnt(v=count_after(vm, idx))
                        vm = vm[idx + 1:]
                continue
            if i.kind == "comment":
                out.append(i)
                continue
            if i.kind == "label":
                for (svm, slg, swin, bpos, sskip) in saved.pop(i.target, []):
                    if linear_dead:
                        vm, lg = svm, slg
                        windows[:] = [[list(e) for e in w] for w in swin]
                        skipped = sskip + [(bpos, here)]
                        linear_dead = False
                        continue
                    rng = skipped + sskip + [(bpos, here)]

                    def join(sq, cq):
                        allq = {id(e[0]): [e[0], e[1]] for e in sq}
                        for e in cq:
                            if id(e[0]) in allq:
                                allq[id(e[0])][1] |= e[1]
                            else:
                                allq[id(e[0])] = [e[0], e[1]]
                        res = sorted(allq.values(), key=lambda e: pos[id(e[0])])
                        for e in res:
                            p = pos[id(e[0])]
                            if any(a < p < b for a, b in rng):
                                e[1] = True
                        return res
                    vm = join(svm, vm)
                    lg = join(slg, lg)
                    skipped = []
                    windows.extend([[list(e) for e in w] for w in swin])
                linear_dead = False
                out.append(i)
                continue
            if i.kind == "wait":
                m = re.search(r"vmcnt\((\d+)\)", i.text)
                if m and int(m.group(1)) == 0:
                    vm = []
                m = re.search(r"lgkmcnt\((\d+)\)", i.text)
                if m and int(m.group(1)) == 0:
                    lg = []
                emit(i)
                continue
            touch = i.uses | i.defs
            idx = -1
            for k, e in enumerate(vm):
                o = e[0]
                dep = False
                if o.defs & i.uses:
                    dep = True
                if o.defs & i.defs and i.kind != "vload":
                    dep = True
                if o.res_w & (i.res_r | i.res_w) and not (i.kind == "dma" and o.kind == "dma"):
                    dep = True
                if dep:
                    idx = k
            wv = None
            if idx >= 0:
                wv = count_after(vm, idx)
                vm = vm[idx + 1:] if wv else []
            idx = -1
            for k, e in enumerate(lg):
                o = e[0]
                dep = False
                if o.defs & i.uses:
                    dep = True
                if o.defs & i.defs and not (i.kind == "dsr" and o.kind == "dsr"):
                    dep = True
                if i.kind == "dma" and ((o.res_r | o.res_w) & i.res_w):
                    dep = True
                if dep:
                    idx = k
            wl = None
            if idx >= 0:
                if any(e[0].kind == "smem" for e in lg):
                    wl = 0
                    lg = []
                else:
                    wl = count_after(lg, idx)
                    lg = lg[idx + 1:] if wl else []
            if wv is not None or wl is not None:
                waitcnt(wv, wl)
            need = 0
            for w in windows:
                for p, a in w:
                    n = need_states(p, i)
                    if n - a > need:
                        need = n - a
            while need > 0:
                k = min(need, 16)
                emit(Ins(f"s_nop {k - 1}"))
                need -= k
            emit(i)
            if i.kind in VMEM_KINDS:
                vm.append([i, i.optional])
                if len(vm) > 63 + 64:
                    vm = vm[-(63 + 64):]
            if i.kind in ("dsr", "dsw", "smem"):
                lg.append([i, i.optional])
            if i.kind == "branch":
                saved.setdefault(i.target, []).append(([list(e) for e in vm], [list(e) for e in lg], [[list(e) for e in w] for w in windows], here, list(skipped)))
                if i.op == "s_branch":
                    linear_dead = True
            if i.op == "s_endpgm":
                linear_dead = True
        return out

    @staticmethod
    def render(ins):
        lines = []
        for i in ins:
            if i.kind == "label":
                lines.append(i.text)
            else:
                lines.append("    " + i.text)
        return "\n".join(lines) + "\n"


def merge(fg, bg, start=0.0, every=64.0):
    out, t, nxt, k = [], 0.0, start, 0
    for i in fg:
        out.append(i)
        t += i.cost() if i.kind != "pseudo" else 0
        while k < len(bg) and t >= nxt:
            out.extend(bg[k])
            t += sum(x.cost() for x in bg[k] if x.kind != "pseudo")
            k += 1
            nxt = max(nxt + every, t + every * 0.5)
    return out, bg[k:]
```

```python
import sys, math, struct
from asmlib import *

NAME = "interleave_layers__ssm_conv_s4__mixer_token_mlp__prompt"
OPT = dict(stamps=False, stop=99, upfront=True, dump=0)

EPOCH = 0
ST0 = 0x1000
ST1 = 0x8000
STAMPS = 0x20000
FL = 0x100000
BS = 448 * 128 + 128
X1, H1, G1, X2, X3, H3, G3 = 0x400000, 0x600000, 0x800000, 0xA00000, 0xC00000, 0xE00000, 0x1000000
WS_BYTES = 268435456
OOB = 0x40000000

KST = 4160
KSLOT = {0: [0, 5, 2, 3], 1: [1, 6, 7, 4]}
UB = 8 * KST
UST = 4608
ZB = UB + 2 * UST
EX = 2 * KST
RB = 2 * KST
GST = 15616
GROW = 272
TOFF = 12288
LNP = 57472
W2L = 65536
LDS_BYTES = 163840

sWAVE, sX, sJ, sPAIR, sDT1, sNT, sDT2, sST, sLN = 4, 5, 6, 7, 8, 9, 10, 11, 12
sNONCE = 14
P_U, P_ARE, P_AIM, P_BRE, P_BIM, P_CRE, P_CIM, P_LDT = 16, 18, 20, 22, 24, 26, 28, 30
P_DSK, P_W1, P_B1, P_W2, P_B2, P_OUT, P_DBG, P_WS = 32, 36, 38, 40, 42, 44, 46, 48
S_WS, S_W1, S_W2, S_X0, S_OUT = 52, 56, 60, 64, 68
sD0, sD1 = 72, 74
sLDT = 76
sEP = 78
sWOFF, sT0, sT1, sT2, sT3, sCNT = 80, 81, 82, 83, 84, 85
sRC, sR1, sR2, sRL = 86, 87, 88, 89
sM1, sM2 = 90, 92
sSTAMP = 94
sTAB = 96
sCA, sCB = 34, 100

vLANE, vL16, vT2a, vT2b, vT1a, vT1b, vD1, vD2 = 127, 126, 125, 124, 123, 122, 121, 120
vA0, vA1 = 123, 122


def srd(n):
    return f"s[{n}:{n + 3}]"


def sp(n):
    return f"s[{n}:{n + 1}]"


def vr(n, k):
    return f"v[{n}:{n + k - 1}]" if k > 1 else f"v{n}"


def f32(x):
    return "0x%08x" % struct.unpack("<I", struct.pack("<f", x))[0]


a = Prog()
_lab = [0]


def label(p):
    _lab[0] += 1
    return f"L_{p}_{_lab[0]}"


_stamp = [0]


def stamp(r=1):
    if not OPT["stamps"]:
        return
    k = _stamp[0]
    _stamp[0] += 1
    l = label("st")
    a(f"s_cmp_lg_u32 s{sWAVE}, 0")
    a(f"s_cbranch_scc1 {l}")
    a(f"s_memrealtime {sp(sSTAMP)}")
    a("s_waitcnt lgkmcnt(0)")
    a(f"s_lshl_b32 s3, s2, 8")
    a(f"s_add_u32 s3, s3, {STAMPS + 4 * k}")
    a(f"v_mov_b32 v{r}, s{sSTAMP}")
    a("s_mov_b64 exec, 1")
    a(f"buffer_store_dword v{r}, off, {srd(S_WS)}, s3", optional=True)
    a("s_mov_b64 exec, -1")
    a(f"{l}:")


DUMP = 0x2000000


def dump_lds(point, r=96):
    if OPT["dump"] != point:
        return
    a.barrier()
    a(f"s_lshl_b32 s3, s{sWAVE}, 10\nv_add_u32 v{r + 4}, s3, v{vL16}\ns_lshl_b32 s3, s2, 16\ns_add_u32 s3, s3, {DUMP}")
    for i in range(16):
        a(f"ds_read_b128 {vr(r, 4)}, v{r + 4} offset:{i * 4096}")
        a(f"buffer_store_dwordx4 {vr(r, 4)}, v{r + 4}, {srd(S_WS)}, s3 offen")
        a("s_add_u32 s3, s3, 4096")
        a.wait_vm0()
    a.barrier()


def cmul(d, x, y):
    return [f"v_pk_mul_f32 {vr(d, 2)}, {vr(x, 2)}, {vr(y, 2)} op_sel:[1,1] op_sel_hi:[1,0] neg_lo:[0,1]",
            f"v_pk_fma_f32 {vr(d, 2)}, {vr(x, 2)}, {vr(y, 2)}, {vr(d, 2)} op_sel_hi:[0,1,1]"]


def cmul2(p, q=None):
    x = cmul(*p)
    if q is None:
        a(x[0]); a(x[1])
        return
    y = cmul(*q)
    a(x[0]); a(y[0]); a(x[1]); a(y[1])


def unpack(dlo, dhi, s):
    a(f"v_lshlrev_b32 v{dlo}, 16, v{s}")
    a(f"v_and_b32 v{dhi}, 0xffff0000, v{s}")


def prologue():
    a("s_cmp_lt_u32 s2, 256")
    a("s_cbranch_scc1 L_start")
    a("s_endpgm")
    a("L_start:")
    a("s_load_dwordx16 s[16:31], s[0:1], 0")
    a("s_load_dwordx16 s[32:47], s[0:1], 64")
    a("s_load_dwordx2 s[48:49], s[0:1], 128")
    a(f"v_lshrrev_b32 v1, 6, v0")
    a(f"v_and_b32 v{vLANE}, 63, v0")
    a(f"v_readfirstlane_b32 s{sWAVE}, v1")
    a(f"v_lshlrev_b32 v{vL16}, 4, v{vLANE}")
    a(f"""s_and_b32 s{sX}, s2, 7
s_lshr_b32 s{sJ}, s2, 3
s_and_b32 s{sT0}, s{sX}, 1
s_lshr_b32 s{sT1}, s{sX}, 1
s_mul_i32 s{sPAIR}, s{sX}, 28
s_add_u32 s{sPAIR}, s{sPAIR}, s{sJ}
s_mul_i32 s{sT2}, s{sJ}, 37
s_lshr_b32 s{sT2}, s{sT2}, 8
s_mul_i32 s{sT3}, s{sT2}, 7
s_sub_u32 s{sT3}, s{sJ}, s{sT3}
s_mul_i32 s{sNT}, s{sT1}, 7
s_add_u32 s{sNT}, s{sNT}, s{sT3}
s_lshl_b32 s{sT3}, s{sT0}, 2
s_add_u32 s{sDT1}, s{sT2}, s{sT3}
s_lshr_b32 s{sDT2}, s{sJ}, 3
s_add_u32 s{sDT2}, s{sDT2}, s{sT3}
s_and_b32 s{sST}, s{sJ}, 7
s_lshl_b32 s{sT1}, s{sT1}, 3
s_add_u32 s{sST}, s{sST}, s{sT1}
s_lshl_b32 s{sLN}, s{sX}, 4
s_add_u32 s{sLN}, s{sLN}, s{sJ}
s_sub_u32 s{sLN}, s{sLN}, 16
s_cmp_lt_u32 s{sJ}, 28
s_cselect_b32 s{sRC}, 1, 0
s_mul_i32 s{sT2}, s{sT0}, 7
s_sub_u32 s{sT2}, 28, s{sT2}
s_cmp_lt_u32 s{sJ}, s{sT2}
s_cselect_b32 s{sR1}, 1, 0
s_lshl_b32 s{sT2}, s{sT0}, 3
s_sub_u32 s{sT2}, 32, s{sT2}
s_cmp_lt_u32 s{sJ}, s{sT2}
s_cselect_b32 s{sR2}, 1, 0
s_cmp_ge_u32 s{sJ}, 16
s_cselect_b32 s{sRL}, 1, 0
s_min_u32 s{sPAIR}, s{sPAIR}, 223
s_mov_b32 s{sM1}, 0xaaaaaaaa
s_mov_b32 s{sM1 + 1}, 0xaaaaaaaa
s_mov_b32 s{sM2}, 0xcccccccc
s_mov_b32 s{sM2 + 1}, 0xcccccccc""")
    a("s_waitcnt lgkmcnt(0)")
    a(f"""s_lshl_b32 s{sT0}, s{sPAIR}, 2
s_load_dword s{sLDT}, {sp(P_LDT)}, s{sT0}
s_load_dword s{sD0}, {sp(P_DSK)}, s{sT0}
s_load_dwordx2 {sp(sEP)}, {sp(P_WS)}, {EPOCH}""")
    for n, p, size in ((S_WS, P_WS, WS_BYTES), (S_X0, P_U, 1835008), (S_OUT, P_OUT, 1835008)):
        a(f"s_mov_b32 s{n}, s{p}\ns_mov_b32 s{n + 1}, s{p + 1}\ns_mov_b32 s{n + 2}, {size}\ns_mov_b32 s{n + 3}, 0x20000")
    for n, p, role in ((S_W1, P_W1, sR1), (S_W2, P_W2, sR2)):
        a(f"s_mov_b32 s{n}, s{p}\ns_mov_b32 s{n + 1}, s{p + 1}\ns_cmp_lg_u32 s{role}, 0\ns_cselect_b32 s{n + 2}, 7340032, 0\ns_mov_b32 s{n + 3}, 0x20000")


XR = 40


def stats0_loads():
    a(f"""s_lshl_b32 s{sT0}, s2, 3
s_lshl_b32 s{sT1}, s{sWAVE}, 1
s_add_u32 s{sT0}, s{sT0}, s{sT1}
s_mul_i32 s{sT0}, s{sT0}, 896
v_mov_b32 v2, {OOB}
v_cmp_gt_u32 vcc, 56, v{vLANE}
v_cndmask_b32 v2, v2, v{vL16}, vcc
buffer_load_dwordx4 {vr(XR, 4)}, v2, {srd(S_X0)}, s{sT0} offen
buffer_load_dwordx4 {vr(XR + 4, 4)}, v2, {srd(S_X0)}, s{sT0} offen offset:896""")


def stats0_compute():
    a("v_mov_b32 v52, 0x3f803f80")
    for k in range(4):
        for r in range(2):
            x = XR + 4 * r + k
            c0 = "0" if k == 0 else f"v{48 + r}"
            c1 = "0" if k == 0 else f"v{50 + r}"
            a(f"v_dot2_f32_bf16 v{48 + r}, v{x}, v52, {c0}")
            a(f"v_dot2_f32_bf16 v{50 + r}, v{x}, v{x}, {c1}")
    for m in ("row_shr:1 row_mask:0xf bank_mask:0xf bound_ctrl:0", "row_shr:2 row_mask:0xf bank_mask:0xf bound_ctrl:0",
              "row_shr:4 row_mask:0xf bank_mask:0xf bound_ctrl:0", "row_shr:8 row_mask:0xf bank_mask:0xf bound_ctrl:0",
              "row_bcast:15 row_mask:0xa bank_mask:0xf", "row_bcast:31 row_mask:0xc bank_mask:0xf"):
        for r in range(4):
            a(f"v_add_f32_dpp v{48 + r}, v{48 + r}, v{48 + r} {m}")
    a(f"""v_mov_b32 v52, 0
v_mov_b32 v53, 0
v_mov_b32 v54, 0
v_mov_b32 v55, 0
s_lshl_b32 s{sT0}, s2, 6
s_lshl_b32 s{sT1}, s{sWAVE}, 4
s_add_u32 s{sT0}, s{sT0}, s{sT1}
s_add_u32 s{sT1}, s{sT0}, {ST1}
s_add_u32 s{sT0}, s{sT0}, {ST0}
s_mov_b32 exec_lo, 0
s_mov_b32 exec_hi, 0x80000000""")
    a(f"buffer_store_dwordx4 v[48:51], off, {srd(S_WS)}, s{sT0} sc1", tag="st0")
    a(f"buffer_store_dwordx4 v[52:55], off, {srd(S_WS)}, s{sT1} sc1", tag="st0")
    a("s_mov_b64 exec, -1")


def nonce_publish():
    l = label("np")
    a(f"s_or_b32 s{sT0}, s2, s{sWAVE}")
    a(f"s_cmp_lg_u32 s{sT0}, 0")
    a(f"s_cbranch_scc1 {l}")
    a(f"""s_add_u32 s{sT0}, s{sEP}, 1
s_addc_u32 s{sT1}, s{sEP + 1}, 0
v_mov_b32 v4, s{sT0}
v_mov_b32 v5, s{sT1}
v_mov_b32 v6, 1
v_mov_b32 v7, 0
v_mov_b32 v8, 0
s_mov_b64 exec, 1""")
    a(f"global_store_dwordx4 v8, v[4:7], {sp(P_DBG)} sc1", optional=True)
    a(f"buffer_store_dwordx2 v[4:5], off, {srd(S_WS)}, 0 sc1", optional=True)
    a("s_mov_b64 exec, -1")
    a(f"{l}:")


def nonce_issue(r):
    a(f"v_mov_b32 v{r + 3}, 0")
    a(f"global_load_dwordx3 {vr(r, 3)}, v{r + 3}, {sp(P_DBG)} sc1")


def nonce_take(r):
    ok, lp = label("nok"), label("nlp")
    a(f"v_cmp_eq_u32 vcc, 0, v{r + 2}")
    a(f"s_cbranch_vccz {ok}")
    a(f"s_mov_b32 s{sCNT}, 0")
    a(f"{lp}:")
    a(f"global_load_dwordx3 {vr(r, 3)}, v{r + 3}, {sp(P_DBG)} sc1")
    a("s_waitcnt vmcnt(0)")
    a(f"v_cmp_eq_u32 vcc, 0, v{r + 2}")
    a(f"s_add_u32 s{sCNT}, s{sCNT}, 1")
    a(f"s_cbranch_vccz {ok}")
    a(f"s_cmp_lt_u32 s{sCNT}, 0x100000")
    a(f"s_cbranch_scc1 {lp}")
    a(f"{ok}:")
    a(f"v_readfirstlane_b32 s{sNONCE}, v{r}")
    a(f"v_readfirstlane_b32 s{sNONCE + 1}, v{r + 1}")


def flag_put(edge, sprod, r, tag):
    a(f"s_lshl_b32 s{sT0}, s{sprod}, 6" if isinstance(sprod, int) else sprod)
    a(f"""s_lshl_b32 s{sT1}, s{sWAVE}, 15
s_add_u32 s{sT0}, s{sT0}, s{sT1}
s_add_u32 s{sT0}, s{sT0}, {FL + edge * 0x20000}
v_lshlrev_b32 v{r + 2}, 14, v{vLANE}
v_mov_b32 v{r}, s{sNONCE}
v_mov_b32 v{r + 1}, s{sNONCE + 1}""")
    a.wait_tag(tag)
    a.barrier()
    a("s_mov_b64 exec, 3")
    a(f"buffer_store_dwordx2 {vr(r, 2)}, v{r + 2}, {srd(S_WS)}, s{sT0} offen sc1", tag="flag")
    a("s_mov_b64 exec, -1")


def poll_issue(edge, r):
    a(f"""s_lshl_b32 s{sT3}, s{sX}, 14
s_add_u32 s{sT3}, s{sT3}, {FL + edge * 0x20000}
v_lshlrev_b32 v{r + 2}, 6, v{r + 2}
v_add_u32 v{r + 2}, s{sT3}, v{r + 2}
buffer_load_dwordx2 {vr(r, 2)}, v{r + 2}, {srd(S_WS)}, 0 offen sc1""")


def poll_take(r):
    ok, lp = label("pok"), label("plp")
    a(f"v_cmp_ne_u64 vcc, {sp(sNONCE)}, {vr(r, 2)}")
    a(f"s_cbranch_vccz {ok}")
    a(f"s_mov_b32 s{sCNT}, 0")
    a(f"{lp}:")
    a(f"buffer_load_dwordx2 {vr(r, 2)}, v{r + 2}, {srd(S_WS)}, 0 offen sc1")
    a("s_waitcnt vmcnt(0)")
    a(f"v_cmp_ne_u64 vcc, {sp(sNONCE)}, {vr(r, 2)}")
    a(f"s_add_u32 s{sCNT}, s{sCNT}, 1")
    a(f"s_cbranch_vccz {ok}")
    a(f"s_cmp_lt_u32 s{sCNT}, 0x100000")
    a(f"s_cbranch_scc1 {lp}")
    a(f"{ok}:")


sW1O, sW2O = 98, 99


def w_setup():
    a(f"""v_lshrrev_b32 v2, 3, v{vLANE}
v_and_b32 v3, 7, v{vLANE}
v_bfe_u32 v4, v{vLANE}, 4, 1
v_lshlrev_b32 v4, 2, v4
v_xor_b32 v3, v3, v4
v_lshlrev_b32 v3, 4, v3
v_mul_u32_u24 v{vD1}, 3584, v2
v_add_u32 v{vD1}, v{vD1}, v3
v_lshl_add_u32 v{vD2}, v2, 12, v3
v_bfe_u32 v2, v{vLANE}, 2, 2
v_lshrrev_b32 v3, 5, v{vLANE}
v_bfe_u32 v4, v{vLANE}, 4, 1
v_and_b32 v5, 3, v{vLANE}
v_lshlrev_b32 v5, 3, v5
v_lshl_add_u32 v5, v4, 5, v5
v_lshrrev_b32 v4, 1, v2
v_lshl_add_u32 v5, v4, 6, v5
s_lshr_b32 s{sT0}, s{sWAVE}, 1
s_lshl_b32 s{sT0}, s{sT0}, 6
v_xor_b32 v5, s{sT0}, v5
v_lshl_add_u32 v5, v2, 7, v5
s_mul_i32 s{sT1}, s{sWAVE}, 24576
s_add_u32 s{sT1}, s{sT1}, {W2L}
v_add_u32 v5, s{sT1}, v5
v_lshl_add_u32 v{vT1a}, v3, 10, v5
v_xor_b32 v{vT1b}, 64, v{vT1a}
v_lshl_add_u32 v{vT2a}, v3, 9, v5
v_xor_b32 v{vT2b}, 64, v{vT2a}
s_mul_i32 s{sW1O}, s{sWAVE}, {512 * 3584}
s_lshl_b32 s{sT0}, s{sNT}, 7
s_add_u32 s{sW1O}, s{sW1O}, s{sT0}
s_mul_i32 s{sW2O}, s{sWAVE}, {448 * 4096}
s_lshl_b32 s{sT0}, s{sST}, 7
s_add_u32 s{sW2O}, s{sW2O}, s{sT0}
s_mov_b32 s{sWOFF}, s{sT1}""")


def w_dma(n, half):
    slot = n % 12
    g = [Ins(f"s_add_u32 m0, s{sWOFF}, {slot * 2048 + half * 1024}")]
    if n < 32:
        g.append(Ins(f"s_add_u32 s{sW1O}, s{sW1O}, {8 * 3584}") if (n or half) else Ins("s_nop 0"))
        g.append(Ins(f"buffer_load_dwordx4 v{vD1}, {srd(S_W1)}, s{sW1O} offen lds", res_w=[f"slot{slot}"]))
    else:
        g.append(Ins(f"s_add_u32 s{sW2O}, s{sW2O}, {8 * 4096}") if (n > 32 or half) else Ins("s_nop 0"))
        g.append(Ins(f"buffer_load_dwordx4 v{vD2}, {srd(S_W2)}, s{sW2O} offen lds", res_w=[f"slot{slot}"]))
    return g


def w_tr(n):
    slot = n % 12
    g = []
    for nb in range(2):
        for j in range(2):
            if n < 32:
                r = (n * 2 + nb) * 4 + 2 * j
                g.append(Ins(f"ds_read_b64_tr_b16 a[{r}:{r + 1}], v{(vT1a, vT1b)[nb]} offset:{slot * 2048 + j * 512}", res_r=[f"slot{slot}"]))
            else:
                r = 128 + ((n - 32) * 2 + nb) * 4 + 2 * j
                g.append(Ins(f"ds_read_b64_tr_b16 v[{r}:{r + 1}], v{(vT2a, vT2b)[nb]} offset:{slot * 2048 + j * 1024}", res_r=[f"slot{slot}"]))
    return g


def w_all_upfront():
    for n in range(12):
        a.put(w_dma(n, 0)); a.put(w_dma(n, 1))
    for n in range(48):
        a.put(w_tr(n))
        if n >= 1:
            a.put(w_dma(n + 11, 0)); a.put(w_dma(n + 11, 1))
    a.put(w_dma(59, 0)); a.put(w_dma(59, 1))
    a.wait_vm0()
    a.wait_lgkm0()


PR = 56
TAB = 104


def kgen_loads():
    a(f"""s_lshl_b32 s{sT0}, s{sPAIR}, 10
s_lshl_b32 s{sT1}, s{sWAVE}, 8
s_add_u32 s{sT0}, s{sT0}, s{sT1}
v_lshl_add_u32 v3, v{vLANE}, 2, s{sT0}""")
    for k, p in enumerate((P_ARE, P_AIM, P_BRE, P_BIM, P_CRE, P_CIM)):
        a(f"global_load_dword v{PR + k}, v3, {sp(p)}")


def kgen_table_load():
    a(f"s_getpc_b64 {sp(sTAB)}")
    a("L_pc:")
    a(f"s_add_u32 s{sTAB}, s{sTAB}, ktab-L_pc")
    a(f"s_addc_u32 s{sTAB + 1}, s{sTAB + 1}, 0")
    a(f"v_lshlrev_b32 v3, 5, v0")
    a(f"global_load_dwordx4 {vr(TAB, 4)}, v3, {sp(sTAB)}")
    a(f"global_load_dwordx4 {vr(TAB + 4, 4)}, v3, {sp(sTAB)} offset:16")


def kgen():
    F = {e: 2 * e for e in range(1, 8)}
    Qr = {1: 16, 2: 18, 3: 20, 4: 22}
    QN = [24, 26]
    Z1, Z2, C0, C1 = 28, 30, 32, 34
    CN = [36, 38]
    T0, T1 = 62, 64
    CV = [66, 67, 68, 69]
    A2, B2, DT = 70, 71, 72
    ACC = 76
    QF = 88
    PF = 40
    vG, vF = 73, 74
    a(f"""s_mul_i32 s{sT0}, s{sWAVE}, {GST}
v_lshl_add_u32 v{vG}, v{vLANE}, 2, s{sT0}
v_and_b32 v2, 15, v{vLANE}
v_mul_u32_u24 v2, {GROW}, v2
v_lshrrev_b32 v3, 4, v{vLANE}
v_lshl_add_u32 v2, v3, 4, v2
v_add_u32 v{vF}, s{sT0}, v2""")
    a(f"""s_lshr_b32 s{sT0}, s{sWAVE}, 1
s_lshl_b32 s{sT0}, s{sT0}, 4
s_lshr_b32 s{sT0}, s{sLDT}, s{sT0}
s_lshl_b32 s{sT0}, s{sT0}, 16
v_mov_b32 v2, {f32(math.log2(math.e))}
v_mul_f32 v2, s{sT0}, v2
v_exp_f32 v2, v2
v_cvt_pk_bf16_f32 v2, v2, v2
v_lshlrev_b32 v{DT}, 16, v2
s_and_b32 s{sD1}, s{sD0}, 0xffff0000
s_lshl_b32 s{sD0}, s{sD0}, 16""")
    cvi = [0]

    def row(r, src, neg=False):
        c = CV[cvi[0] % 4]
        cvi[0] += 1
        a(f"v_cvt_pk_bf16_f32 v{c}, v{src}, {'-' if neg else ''}v{src + 1}")
        a(f"ds_write_b32 v{vG}, v{c} offset:{r * GROW}")

    def reads(dst, tile):
        for ks in range(4):
            a(f"ds_read_b128 {vr(dst + 4 * ks, 4)}, v{vF} offset:{tile * 16 * GROW + ks * 64}")

    def mfmas(t, first):
        for ks in range(4):
            c = "0" if (first and ks == 0) else vr(ACC + 4 * t, 4)
            a(f"v_mfma_f32_16x16x32_bf16 {vr(ACC + 4 * t, 4)}, {vr(PF + 4 * ks, 4)}, {vr(QF + 4 * ks, 4)}, {c}")

    def direct(d, scale):
        if scale != 1:
            a(f"v_mul_f32 v{T0}, {f32(scale)}, v{A2}")
            a(f"v_mul_f32 v{T1}, {f32(scale)}, v{B2}")
            x, y = T0, T1
        else:
            x, y = A2, B2
        a(f"v_fract_f32 v{T1}, v{y}")
        a(f"v_exp_f32 v{T0}, v{x}")
        a(f"v_cos_f32 v{d}, v{T1}")
        a(f"v_sin_f32 v{d + 1}, v{T1}")
        a(f"v_pk_mul_f32 {vr(d, 2)}, {vr(d, 2)}, {vr(T0, 2)} op_sel_hi:[1,0]")

    for rd in range(2):
        def up(d, s):
            a(f"v_lshlrev_b32 v{d}, 16, v{s}" if rd == 0 else f"v_and_b32 v{d}, 0xffff0000, v{s}")
        up(A2, PR); up(B2, PR + 1)
        up(QN[0], PR + 2); up(QN[0] + 1, PR + 3)
        up(QN[1], PR + 4); up(QN[1] + 1, PR + 5)
        a(f"v_mul_f32 v{A2}, v{DT}, v{A2}")
        a(f"v_mul_f32 v{B2}, v{DT}, v{B2}")
        a(f"v_pk_mul_f32 {vr(QN[0], 2)}, {vr(QN[0], 2)}, {vr(DT, 2)} op_sel_hi:[1,0]")
        a(f"v_mul_f32 v{A2}, {f32(math.log2(math.e))}, v{A2}")
        a(f"v_mul_f32 v{B2}, {f32(1 / (2 * math.pi))}, v{B2}")
        cmul2((C0, QN[1], QN[0]))
        direct(F[1], 1)
        if rd == 1:
            mfmas(2, True)
        direct(Z1, 128)
        cmul2((F[2], F[1], F[1]), (Z2, Z1, Z1))
        cmul2((F[4], F[2], F[2]), (F[3], F[2], F[1]))
        cmul2((Qr[1], F[4], F[4]), (C1, C0, Z1))
        a(f"v_mov_b32 v{CV[3]}, 0x3f80")
        a(f"ds_write_b32 v{vG}, v{CV[3]}")
        cmul2((Qr[2], Qr[1], Qr[1]), (F[5], F[4], F[1]))
        row(1, Qr[1], True)
        cmul2((Qr[3], Qr[2], Qr[1]), (Qr[4], Qr[2], Qr[2]))
        row(2, Qr[2], True)
        cmul2((F[6], F[4], F[2]), (F[7], F[4], F[3]))
        row(3, Qr[3], True)
        row(4, Qr[4], True)
        cur = {1: Qr[1], 2: Qr[2], 3: Qr[3], 0: Qr[4]}
        free = list(QN) + [CN[0]]
        j = 5
        while j < 16:
            js = [j] + ([j + 1] if j + 1 < 16 else [])
            ps = []
            for jj in js:
                d = free.pop(0)
                ps.append((d, cur[jj % 4], Qr[4]))
            cmul2(*ps)
            for jj, p in zip(js, ps):
                if cur[jj % 4] != Qr[4]:
                    free.append(cur[jj % 4])
                cur[jj % 4] = p[0]
                row(jj, p[0], True)
            j += 2
        reads(QF, 0)
        TA, TB = QN
        row(16, C0); row(24, C1)
        for e in range(1, 8):
            cmul2((TA, C0, F[e]), (TB, C1, F[e]))
            row(16 + e, TA); row(24 + e, TB)
        reads(PF, 1)
        ca, cb = C0, C1
        na, nb_ = CN
        def adv():
            nonlocal ca, cb, na, nb_
            cmul2((na, ca, Z2), (nb_, cb, Z2))
            ca, cb, na, nb_ = na, nb_, ca, cb
        adv()
        row(32, ca); row(36, cb)
        for e in range(1, 4):
            cmul2((TA, ca, F[2 * e]), (TB, cb, F[2 * e]))
            row(32 + e, TA); row(36 + e, TB)
        mfmas(0, rd == 0)
        for k in range(2):
            adv()
            row(40 + 4 * k, ca); row(42 + 4 * k, cb)
            cmul2((TA, ca, F[4]), (TB, cb, F[4]))
            row(41 + 4 * k, TA); row(43 + 4 * k, TB)
        reads(PF, 2)
        for k in range(4):
            adv()
            row(48 + 2 * k, ca); row(49 + 2 * k, cb)
        cmul2((na, ca, Z2))
        row(56, na)
        mfmas(1, rd == 0)
        reads(PF, 3)
    mfmas(2, False)
    a(f"s_mul_i32 s{sT0}, s{sWAVE}, {GST}")
    a(f"v_add_u32 v2, s{sT0}, v{vL16}")
    for t in range(3):
        a(f"ds_write_b128 v2, {vr(ACC + 4 * t, 4)} offset:{TOFF + t * 1024}")


def kexpand():
    AD, VAL = 2, 18
    for k in range(8):
        a(f"v_and_b32 v{AD + 2 * k}, 0xffff, v{TAB + k}")
        a(f"v_lshrrev_b32 v{AD + 2 * k + 1}, 16, v{TAB + k}")
    a.barrier()
    for k in range(16):
        a(f"ds_read2st64_b32 {vr(VAL + 2 * k, 2)}, v{AD + k} offset0:{TOFF // 256} offset1:{TOFF // 256 + GST // 256}")
    a(f"""v_lshrrev_b32 v50, 7, v0
v_mul_u32_u24 v50, {KST}, v50
v_and_b32 v51, 127, v0
v_lshl_add_u32 v50, v51, 5, v50""")
    for k in range(16):
        a(f"v_add_f32 v{VAL + 2 * k}, v{VAL + 2 * k}, v{VAL + 2 * k + 1}")
        if k & 1:
            a(f"v_cvt_pk_bf16_f32 v{52 + k // 2}, v{VAL + 2 * k - 2}, v{VAL + 2 * k}")
    a("ds_write_b128 v50, v[52:55]")
    a("ds_write_b128 v50, v[56:59] offset:16")
    a(f"""v_mov_b32 v60, 0
v_mov_b32 v61, 0
v_mov_b32 v62, 0
v_mov_b32 v63, 0
v_bfe_u32 v51, v{vLANE}, 1, 1
v_mul_u32_u24 v51, {KST}, v51
v_and_b32 v2, 1, v{vLANE}
v_lshl_add_u32 v51, v2, 4, v51
ds_write_b128 v51, v[60:63] offset:4096""")


def kcopies():
    R, E, M = 2, 12, 22
    a(f"""s_lshr_b32 s{sT0}, s{sWAVE}, 1
s_and_b32 s{sT1}, s{sWAVE}, 1
s_lshl_b32 s{sT1}, s{sT1}, 11
v_lshl_add_u32 v40, v{vLANE}, 5, s{sT1}
s_mul_i32 s{sT1}, s{sT0}, {KST}
v_add_u32 v41, s{sT1}, v40
ds_read_b128 {vr(R, 4)}, v41
ds_read_b128 {vr(R + 4, 4)}, v41 offset:16
ds_read_b64 {vr(R + 8, 2)}, v41 offset:32""")
    for s in (1, 2, 3):
        a(f"s_cmp_lg_u32 s{sT0}, 0")
        a(f"s_cselect_b32 s{sT2}, {KSLOT[1][s]}, {KSLOT[0][s]}")
        a(f"s_mul_i32 s{sT2}, s{sT2}, {KST}")
        a(f"v_add_u32 v{41 + s}, s{sT2}, v40")
    a(f"""v_mov_b32 v36, 0
v_mov_b32 v37, 0
v_mov_b32 v38, 0
v_mov_b32 v39, 0
v_lshrrev_b32 v45, 1, v{vLANE}
v_min_u32 v45, 5, v45
v_mul_u32_u24 v45, {KST}, v45
v_and_b32 v46, 1, v{vLANE}
v_lshl_add_u32 v45, v46, 4, v45
ds_write_b128 v45, v[36:39] offset:{2 * KST + 4096}
v_lshrrev_b32 v45, 5, v{vLANE}
v_mul_u32_u24 v45, {UST}, v45
v_and_b32 v46, 31, v{vLANE}
v_lshl_add_u32 v45, v46, 4, v45
ds_write_b128 v45, v[36:39] offset:{UB}""")
    for i in range(9):
        a(f"v_alignbit_b32 v{E + i}, v{R + i + 1}, v{R + i}, 16")
    a(f"ds_write_b128 v42, {vr(E, 4)}")
    a(f"ds_write_b128 v42, {vr(E + 4, 4)} offset:16")
    for i in range(4):
        a(f"v_pk_mov_b32 {vr(M + 2 * i, 2)}, {vr(R + 2 * i, 2)}, {vr(R + 2 * i + 2, 2)} op_sel:[1,0]")
    a(f"ds_write_b128 v43, {vr(M, 4)}")
    a(f"ds_write_b128 v43, {vr(M + 4, 4)} offset:16")
    for i in range(4):
        a(f"v_pk_mov_b32 {vr(R + 2 * i, 2)}, {vr(E + 2 * i, 2)}, {vr(E + 2 * i + 2, 2)} op_sel:[1,0]")
    a(f"ds_write_b128 v44, {vr(R, 4)}")
    a(f"ds_write_b128 v44, {vr(R + 4, 4)} offset:16")


GX = 112
CS = 64


def conv_gather0():
    g = []
    a(f"""s_lshl_b32 s{sT0}, s{sWAVE}, 6
v_add_u32 v3, s{sT0}, v{vLANE}
v_mul_u32_u24 v3, 7168, v3
s_lshl_b32 s{sT0}, s{sPAIR}, 2
v_add_u32 v75, s{sT0}, v3
v_add_u32 v118, 3584, v75""")
    for e in range(8):
        base = 75 if e < 4 else 118
        if e == 6:
            continue
        g.append([Ins(f"buffer_load_dword v{GX + e}, v{base}, {srd(S_X0)}, 0 offen offset:{(e % 4) * 896}")])
    g.append([Ins(f"buffer_load_dword v{GX + 6}, v118, {srd(S_X0)}, 0 offen offset:{2 * 896}")])
    return g


def conv_poll_addr(layer, r):
    if layer == 0:
        a(f"s_lshl_b32 s{sT0}, s{sWAVE}, 6\nv_add_u32 v{r + 2}, s{sT0}, v{vLANE}")
    else:
        a(f"""v_lshrrev_b32 v{r}, 3, v{vLANE}
v_min_u32 v{r}, 6, v{r}
v_and_b32 v{r + 1}, 7, v{vLANE}
v_lshl_add_u32 v{r + 2}, v{r}, 5, v{r + 1}
s_lshl_b32 s{sT0}, s{sWAVE}, 3
v_add_u32 v{r + 2}, s{sT0}, v{r + 2}""")


def conv_loads(layer):
    if layer == 0:
        a(f"s_lshl_b32 s{sT0}, s{sWAVE}, 12\ns_add_u32 s{sT0}, s{sT0}, {ST0}\nv_lshlrev_b32 v62, 6, v{vLANE}")
        for p in range(4):
            a(f"buffer_load_dwordx4 {vr(CS + 4 * p, 4)}, v62, {srd(S_WS)}, s{sT0} offen offset:{16 * p} sc1")
    else:
        a(f"""s_lshl_b32 s{sT0}, s{sWAVE}, 10
s_add_u32 s{sT0}, s{sT0}, {ST1}
s_mul_i32 s{sT1}, s{sWAVE}, {64 * 7168}
s_lshl_b32 s{sT2}, s{sPAIR}, 5
s_add_u32 s{sT1}, s{sT1}, s{sT2}
s_add_u32 s{sT1}, s{sT1}, {X2}
v_mul_u32_u24 v62, 7168, v{vLANE}""")
        for p in range(4):
            if p:
                a(f"s_add_u32 s{sT0}, s{sT0}, 4096")
            a(f"buffer_load_dwordx4 {vr(CS + 4 * p, 4)}, v{vL16}, {srd(S_WS)}, s{sT0} offen sc1")
        a(f"buffer_load_dwordx4 {vr(GX, 4)}, v62, {srd(S_WS)}, s{sT1} offen sc1")
        a(f"buffer_load_dwordx4 {vr(GX + 4, 4)}, v62, {srd(S_WS)}, s{sT1} offen offset:16 sc1")


def conv(layer):
    XF, UF, AL, BE = 0, 16, 32, 40
    UP = 48
    inv = 1.0 / 448
    a(f"s_mov_b32 s{sCA}, {f32(inv)}\ns_mov_b32 s{sCB}, {f32(1e-5)}")
    for p in range(4):
        S, Q = CS + 4 * p, CS + 4 * p + 2
        a(f"v_pk_mul_f32 {vr(S, 2)}, {vr(S, 2)}, {sp(sCA)} op_sel_hi:[1,0]")
    for p in range(4):
        S, Q = CS + 4 * p, CS + 4 * p + 2
        a(f"v_pk_mul_f32 {vr(BE + 2 * p, 2)}, {vr(S, 2)}, {vr(S, 2)}")
    for p in range(4):
        S, Q = CS + 4 * p, CS + 4 * p + 2
        a(f"v_pk_fma_f32 {vr(Q, 2)}, {vr(Q, 2)}, {sp(sCA)}, {vr(BE + 2 * p, 2)} op_sel_hi:[1,0,1] neg_lo:[0,0,1] neg_hi:[0,0,1]")
    for p in range(4):
        Q = CS + 4 * p + 2
        a(f"v_max_f32 v{Q}, 0, v{Q}\nv_max_f32 v{Q + 1}, 0, v{Q + 1}")
        a(f"v_pk_add_f32 {vr(Q, 2)}, {vr(Q, 2)}, {sp(sCB)} op_sel_hi:[1,0]")
    for p in range(4):
        Q = CS + 4 * p + 2
        a(f"v_rsq_f32 v{AL + 2 * p}, v{Q}\nv_rsq_f32 v{AL + 2 * p + 1}, v{Q + 1}")
    for k in range(8):
        if layer == 0:
            unpack(XF + k, XF + 8 + k, GX + k)
        else:
            unpack(XF + 2 * k, XF + 2 * k + 1, GX + k)
    for p in range(4):
        S = CS + 4 * p
        a(f"v_pk_mul_f32 {vr(BE + 2 * p, 2)}, {vr(S, 2)}, {vr(AL + 2 * p, 2)} neg_lo:[1,0] neg_hi:[1,0]")
    a(f"s_lshl_b32 s{sT0}, s{sWAVE}, 10\nv_add_u32 v86, s{sT0}, v{vL16}")
    for c in range(2):
        for p in range(4):
            a(f"v_pk_fma_f32 {vr(UF + 8 * c + 2 * p, 2)}, {vr(XF + 8 * c + 2 * p, 2)}, {vr(AL + 2 * p, 2)}, {vr(BE + 2 * p, 2)}")
        for p in range(4):
            a(f"v_cvt_pk_bf16_f32 v{UP + 4 * c + p}, v{UF + 8 * c + 2 * p}, v{UF + 8 * c + 2 * p + 1}")
        a(f"ds_write_b128 v86, {vr(UP + 4 * c, 4)} offset:{UB + c * UST + 512}")
    for c in range(2):
        for p in range(4):
            a(f"v_pk_fma_f32 {vr(UF + 8 * c + 2 * p, 2)}, {vr(UF + 8 * c + 2 * p, 2)}, {sp((sD0, sD1)[c])}, {vr(XF + 8 * c + 2 * p, 2)} op_sel_hi:[1,0,1]")
        for p in range(4):
            a(f"v_cvt_pk_bf16_f32 v{UP + 8 + 4 * c + p}, v{UF + 8 * c + 2 * p}, v{UF + 8 * c + 2 * p + 1}")
        a(f"ds_write_b128 v86, {vr(UP + 8 + 4 * c, 4)} offset:{ZB + c * 4096}")
    vA, vB, vZ, vXW, vXR, vO = 112, 113, 114, 115, 116, 117
    a(f"""s_lshr_b32 s{sT0}, s{sWAVE}, 1
s_and_b32 s{sT1}, s{sWAVE}, 1
v_and_b32 v80, 15, v{vLANE}
v_lshrrev_b32 v81, 4, v{vLANE}
v_not_b32 v82, v80
v_and_b32 v82, 3, v82""")
    for s in range(4):
        a(f"s_cmp_lg_u32 s{sT0}, 0")
        a(f"s_cselect_b32 s{sT2}, {KSLOT[1][s]}, {KSLOT[0][s]}")
        a(f"s_mul_i32 s{sT2}, s{sT2}, {KST}")
        if s == 0:
            a(f"v_mov_b32 v83, s{sT2}")
        else:
            a(f"v_mov_b32 v84, s{sT2}\nv_cmp_eq_u32 vcc, {s}, v82\nv_cndmask_b32 v83, v83, v84, vcc")
    a(f"""v_add_u32 v82, v82, v80
v_lshlrev_b32 v84, 3, v81
v_sub_u32 v84, v84, v82
v_lshl_add_u32 v83, v84, 1, v83
s_lshl_b32 s{sT2}, s{sT1}, 8
s_sub_u32 s{sT2}, {2 * 2031 - 64 * 59}, s{sT2}
v_add_u32 v{vA}, s{sT2}, v83
s_mul_i32 s{sT2}, s{sT0}, {UST}
s_lshl_b32 s{sT3}, s{sT1}, 8
s_sub_u32 s{sT2}, s{sT2}, s{sT3}
s_add_u32 s{sT2}, s{sT2}, {UB + 2 * (240 - 96)}
v_lshlrev_b32 v84, 5, v80
v_lshl_add_u32 v85, v81, 4, v84
v_add_u32 v{vB}, s{sT2}, v85
s_lshl_b32 s{sT2}, s{sWAVE}, 11
v_lshl_add_u32 v85, v81, 3, v84
v_add_u32 v{vZ}, s{sT2}, v85
s_xor_b32 s{sT2}, s{sWAVE}, 1
s_lshl_b32 s{sT2}, s{sT2}, 12
v_add_u32 v{vXW}, s{sT2}, v{vL16}
s_lshl_b32 s{sT2}, s{sWAVE}, 12
v_add_u32 v{vXR}, s{sT2}, v{vL16}
v_and_b32 v82, 1, v81
v_lshlrev_b32 v82, 2, v82
v_lshrrev_b32 v83, 2, v80
v_add_u32 v82, v82, v83
s_mov_b32 s{sT2}, {BS}
v_mul_lo_u32 v82, v82, s{sT2}
v_and_b32 v83, 3, v80
v_lshl_add_u32 v82, v83, 5, v82
v_lshrrev_b32 v83, 1, v81
v_lshl_add_u32 v{vO}, v83, 4, v82
s_mul_i32 s{sT1}, s{sT1}, {16 * BS}
s_lshl_b32 s{sT2}, s{sPAIR}, 1
s_add_u32 s{sT0}, s{sT0}, s{sT2}
s_lshl_b32 s{sT0}, s{sT0}, 7
s_add_u32 s{sT0}, s{sT0}, s{sT1}
s_add_u32 s13, s{sT0}, {X1 if layer == 0 else X3}""")
    a.barrier()
    dump_lds(2 + layer)
    stamp()
    ACC, BF, AR = 0, 32, 64
    NA = 5
    seq = [(r, q) for r in range(4) for q in range(7, -1, -1)]

    def rdA(i):
        r, q = seq[i]
        d = AR + 4 * (i % NA)
        off = 64 * (59 - (8 * q + r))
        return [Ins(f"ds_read_b64 {vr(d, 2)}, v{vA} offset:{off}"), Ins(f"ds_read_b64 {vr(d + 2, 2)}, v{vA} offset:{off + 8}")]

    def rdB(r, p):
        return [Ins(f"ds_read_b128 {vr(BF + 4 * p, 4)}, v{vB} offset:{512 * p + 64 * (3 - r)}")]

    a.put(rdA(0)); a.put(rdB(0, 0)); a.put(rdA(1)); a.put(rdB(0, 1)); a.put(rdA(2)); a.put(rdB(0, 2)); a.put(rdA(3))
    for p in range(3, 8):
        a.put(rdB(0, p))
    started = set()
    for i, (r, q) in enumerate(seq):
        np_ = 8 - q
        for p in range(np_):
            b = q + p
            c = vr(ACC + 4 * b, 4) if b in started else "0"
            started.add(b)
            a(f"v_mfma_f32_16x16x32_bf16 {vr(ACC + 4 * b, 4)}, {vr(AR + 4 * (i % NA), 4)}, {vr(BF + 4 * p, 4)}, {c}")
            if p == 0 and i + 4 < len(seq):
                a.put(rdA(i + 4))
            if q == 0 and r < 3:
                a.put(rdB(r + 1, p))
    RR, ZR, ZF = 32, 48, 64
    a.barrier()
    for i in range(4):
        a(f"ds_read_b64 {vr(ZR + 2 * i, 2)}, v{vZ} offset:{ZB + i * 512}")
    l1, l2 = label("cx"), label("cy")
    a(f"s_bitcmp1_b32 s{sWAVE}, 0")
    a(f"s_cbranch_scc1 {l1}")
    for i in range(4):
        a(f"ds_write_b128 v{vXW}, {vr(ACC + 16 + 4 * i, 4)} offset:{EX + i * 1024}")
    a(f"s_branch {l2}")
    a(f"{l1}:")
    for i in range(4):
        a(f"ds_write_b128 v{vXW}, {vr(ACC + 4 * i, 4)} offset:{EX + i * 1024}")
    for i in range(8):
        a(f"v_pk_mov_b32 {vr(ACC + 2 * i, 2)}, {vr(ACC + 16 + 2 * i, 2)}, {vr(ACC + 16 + 2 * i, 2)} op_sel:[0,1]")
    a(f"{l2}:")
    for k in range(8):
        unpack(ZF + 2 * k, ZF + 2 * k + 1, ZR + k)
    for k in range(8):
        a(f"v_pk_add_f32 {vr(ACC + 2 * k, 2)}, {vr(ACC + 2 * k, 2)}, {vr(ZF + 2 * k, 2)}")
    a.barrier()
    for i in range(4):
        a(f"ds_read_b128 {vr(RR + 4 * i, 4)}, v{vXR} offset:{EX + i * 1024}")
    PK = 56
    for i in range(4):
        for k in range(2):
            a(f"v_pk_add_f32 {vr(ACC + 4 * i + 2 * k, 2)}, {vr(ACC + 4 * i + 2 * k, 2)}, {vr(RR + 4 * i + 2 * k, 2)}")
        for k in range(2):
            a(f"v_cvt_pk_bf16_f32 v{PK + 2 * i + k}, v{ACC + 4 * i + 2 * k}, v{ACC + 4 * i + 2 * k + 1}")
        if i & 1:
            b = PK + 2 * (i - 1)
            a(f"v_permlane16_swap_b32 v{b}, v{b + 2}")
            a(f"v_permlane16_swap_b32 v{b + 1}, v{b + 3}")
            if i == 3:
                a(f"s_add_u32 s13, s13, {8 * BS}")
            a(f"buffer_store_dwordx4 {vr(b, 4)}, v{vO}, {srd(S_WS)}, s13 offen sc1", tag="pub")


def reduce32(V, n, W):
    for i in range(n):
        a(f"v_permlane16_swap_b32 v{V[i]}, v{V[n + i]}")
    for i in range(n):
        a(f"v_add_f32 v{V[i]}, v{V[i]}, v{V[n + i]}")
    h = n // 2
    for i in range(h):
        a(f"v_add_f32_dpp v{W[i]}, v{V[i]}, v{V[i]} row_ror:8 row_mask:0xf bank_mask:0x3")
    for i in range(h):
        a(f"v_add_f32_dpp v{W[i]}, v{V[i + h]}, v{V[i + h]} row_ror:8 row_mask:0xf bank_mask:0xc")
    g = h // 2
    for i in range(g):
        a(f"v_add_f32_dpp v{V[i]}, v{W[i]}, v{W[i]} row_half_mirror row_mask:0xf bank_mask:0x5")
    for i in range(g):
        a(f"v_add_f32_dpp v{V[i]}, v{W[i + g]}, v{W[i + g]} row_half_mirror row_mask:0xf bank_mask:0xa")
    for m in ("[1,0,3,2]", "[2,3,0,1]"):
        for i in range(g):
            a(f"v_add_f32_dpp v{V[i]}, v{V[i]}, v{V[i]} quad_perm:{m} row_mask:0xf bank_mask:0xf")
    return V[:g]


def ln(layer):
    X = X1 if layer == 0 else X3
    H = H1 if layer == 0 else H3
    RAW, XF, S, Q, W = 0, 16, 48, 56, 64
    r = 80
    a(f"""v_lshrrev_b32 v{r}, 4, v{vLANE}
v_lshlrev_b32 v{r}, 2, v{r}
v_add_u32 v{r}, s{sWAVE}, v{r}
v_cmp_gt_u32 vcc, 14, v{r}
v_mov_b32 v{r + 1}, s{sWAVE}
v_cndmask_b32 v{r}, v{r + 1}, v{r}, vcc
v_and_b32 v{r + 1}, 15, v{vLANE}
v_lshl_add_u32 v{r + 2}, v{r}, 4, v{r + 1}""")
    a.wait_tag("flag")
    poll_issue(1 + 4 * layer, r)
    a(f"""s_lshr_b32 s{sT0}, s{sLN}, 2
s_mul_i32 s{sT0}, s{sT0}, {BS}
s_and_b32 s{sT1}, s{sLN}, 3
s_lshl_b32 s{sT1}, s{sT1}, 5
s_add_u32 s{sT0}, s{sT0}, s{sT1}
s_lshl_b32 s{sT1}, s{sWAVE}, 12
s_add_u32 s{sT0}, s{sT0}, s{sT1}
s_add_u32 s{sT0}, s{sT0}, {X}
s_cmp_lt_u32 s{sWAVE}, 2
s_cselect_b32 s13, 0, {OOB}
v_and_b32 v84, 31, v{vLANE}
v_lshlrev_b32 v84, 7, v84
v_lshrrev_b32 v85, 5, v{vLANE}
v_lshl_add_u32 v84, v85, 4, v84
v_add_u32 v83, s13, v84
v_add_u32 v90, s13, v{vL16}
v_bfe_u32 v86, v{vLANE}, 4, 1
v_lshlrev_b32 v86, 6, v86
v_lshl_add_u32 v86, v85, 5, v86
v_bfe_u32 v87, v{vLANE}, 2, 2
v_lshl_add_u32 v86, v87, 3, v86
s_lshl_b32 s{sT1}, s{sWAVE}, 7
v_add_u32 v86, s{sT1}, v86
v_and_b32 v87, 7, v{vLANE}
v_lshlrev_b32 v87, 2, v87
v_lshl_add_u32 v87, v85, 5, v87
s_lshr_b32 s{sT1}, s{sWAVE}, 1
s_lshl_b32 s{sT1}, s{sT1}, 18
s_lshl_b32 s{sT2}, s{sLN}, 11
s_add_u32 s{sT1}, s{sT1}, s{sT2}
s_and_b32 s{sT2}, s{sWAVE}, 1
s_lshl_b32 s{sT2}, s{sT2}, 10
s_add_u32 s{sT1}, s{sT1}, s{sT2}
s_add_u32 s{sT1}, s{sT1}, {H}""")
    poll_take(r)
    stamp()
    for i in range(4):
        if i:
            a(f"s_add_u32 s{sT0}, s{sT0}, 16384")
        a(f"buffer_load_dwordx4 {vr(RAW + 4 * i, 4)}, v{83 if i == 3 else 84}, {srd(S_WS)}, s{sT0} offen sc1")
    for i in range(4):
        for k in range(4):
            unpack(XF + 8 * i + 2 * k, XF + 8 * i + 2 * k + 1, RAW + 4 * i + k)
        for k in range(4):
            x = vr(XF + 8 * i + 2 * k, 2)
            if i == 0:
                a(f"v_pk_mul_f32 {vr(Q + 2 * k, 2)}, {x}, {x}")
            else:
                a(f"v_pk_fma_f32 {vr(Q + 2 * k, 2)}, {x}, {x}, {vr(Q + 2 * k, 2)}")
                a(f"v_pk_add_f32 {vr(S + 2 * k, 2)}, {vr(XF + 2 * k, 2) if i == 1 else vr(S + 2 * k, 2)}, {x}")
    res = reduce32(list(range(S, S + 16)), 8, list(range(W, W + 4)))
    assert res == [S, S + 1]
    a(f"ds_write_b64 v86, {vr(S, 2)} offset:{LNP}")
    a.barrier()
    a(f"v_add_u32 v87, {LNP}, v87")
    for w in range(4):
        a(f"ds_read2_b32 {vr(W + 2 * w, 2)}, v87 offset0:{w * 32} offset1:{w * 32 + 16}")
    a(f"""v_pk_add_f32 {vr(W, 2)}, {vr(W, 2)}, {vr(W + 2, 2)}
v_pk_add_f32 {vr(W + 4, 2)}, {vr(W + 4, 2)}, {vr(W + 6, 2)}
v_pk_add_f32 {vr(W, 2)}, {vr(W, 2)}, {vr(W + 4, 2)}
v_mul_f32 v{W}, {f32(1 / 448)}, v{W}
v_mul_f32 v{W + 1}, {f32(1 / 448)}, v{W + 1}
v_fma_f32 v{W + 1}, -v{W}, v{W}, v{W + 1}
v_max_f32 v{W + 1}, 0, v{W + 1}
v_add_f32 v{W + 2}, {f32(1e-5)}, v{W + 1}
v_rcp_f32 v{W + 3}, v{W + 2}
v_mov_b32 v{W + 4}, {f32(1e-5)}
v_fma_f32 v{W + 3}, v{W + 1}, v{W + 3}, v{W + 4}
v_mul_f32 v{W + 2}, v{W + 2}, v{W + 3}
v_rsq_f32 v{W + 2}, v{W + 2}
v_mul_f32 v{W + 3}, -v{W}, v{W + 2}""")
    AL, BE = S, Q
    for e in range(8):
        a(f"v_mov_b32_dpp v{AL + e}, v{W + 2} row_newbcast:{e} row_mask:0xf bank_mask:0xf")
    for e in range(8):
        a(f"v_mov_b32_dpp v{BE + e}, v{W + 3} row_newbcast:{e} row_mask:0xf bank_mask:0xf")
    for i in range(4):
        for k in range(4):
            x = vr(XF + 8 * i + 2 * k, 2)
            a(f"v_pk_fma_f32 {x}, {x}, {vr(AL + 2 * k, 2)}, {vr(BE + 2 * k, 2)}")
        for k in range(4):
            a(f"v_cvt_pk_bf16_f32 v{RAW + 4 * i + k}, v{XF + 8 * i + 2 * k}, v{XF + 8 * i + 2 * k + 1}")
        a(f"buffer_store_dwordx4 {vr(RAW + 4 * i, 4)}, v{90 if i == 3 else vL16}, {srd(S_WS)}, s{sT1} offen sc1", tag="pub")
        if i < 3:
            a(f"s_add_u32 s{sT1}, s{sT1}, {2 << 18}")
    flag_put(2 + 4 * layer, sLN, 80, "pub")


def gemm_addr():
    a(f"""s_and_b32 s{sT0}, s{sWAVE}, 1
s_lshl_b32 s{sT0}, s{sT0}, 10
v_add_u32 v{vA0}, s{sT0}, v{vL16}
v_xor_b32 v{vA1}, 0x400, v{vA0}""")


def gemm_loop(nks, ring, nring, wreg, swap, lds_from=99):
    WF = 104
    nfr = 2 * nks

    def load(f):
        ks, db = f // 2, f % 2
        g = []
        if db == 0 and ks and ks % 2 == 0:
            g.append(Ins("s_add_u32 s13, s13, 4096"))
        d = ring + 4 * (f % nring)
        g.append(Ins(f"buffer_load_dwordx4 {vr(d, 4)}, v{(vA0, vA1)[db]}, {srd(S_WS)}, s13 offen offset:{(ks % 2) * 2048} sc1"))
        return g

    def wread(ks):
        g = []
        slot = ks - lds_from
        for nb in range(2):
            for j in range(2):
                d = WF + 8 * (ks % 2) + 4 * nb + 2 * j
                g.append(Ins(f"ds_read_b64_tr_b16 {vr(d, 2)}, v{(vT2a, vT2b)[nb]} offset:{slot * 2048 + j * 1024}"))
        return g

    for f in range(min(nring, nfr)):
        a.put(load(f))
    nxt = nring
    for ks in range(nks):
        pend = wread(ks + 1) if lds_from <= ks + 1 < nks else []
        for nb in range(2):
            for db in range(2):
                acc = vr(16 * (2 * nb + db), 16)
                c = acc if (ks or (nb | db) == 0) else "0"
                w = wreg(ks, nb) if ks < lds_from else vr(WF + 8 * (ks % 2) + 4 * nb, 4)
                x = vr(ring + 4 * ((2 * ks + db) % nring), 4)
                a(f"v_mfma_f32_32x32x16_bf16 {acc}, {x if swap else w}, {w if swap else x}, {c}")
                if pend:
                    a.put([pend.pop(0)])
                if nb == 1 and nxt < nfr:
                    a.put(load(nxt))
                    nxt += 1


def gemm_reduce():
    for rel in (1, 2, 3):
        a(f"""s_xor_b32 s{sT0}, s{sWAVE}, {rel}
s_mul_i32 s{sT0}, s{sT0}, 12288
v_add_u32 v{64 + rel}, s{sT0}, v{vL16}""")
    a(f"s_mul_i32 s{sT0}, s{sWAVE}, 12288\nv_add_u32 v64, s{sT0}, v{vL16}")
    for rel in (1, 2, 3):
        for q in range(4):
            a(f"ds_write_b128 v{64 + rel}, {vr(16 * rel + 4 * q, 4)} offset:{RB + (rel - 1) * 4096 + q * 1024}")
    a.barrier()
    for q in range(4):
        for k in range(3):
            a(f"ds_read_b128 {vr(16 + 16 * k + 4 * q, 4)}, v64 offset:{RB + k * 4096 + q * 1024}")
    for q in range(4):
        for h in range(2):
            r = 4 * q + 2 * h
            a(f"v_pk_add_f32 {vr(16 + r, 2)}, {vr(16 + r, 2)}, {vr(32 + r, 2)}")
            a(f"v_pk_add_f32 {vr(r, 2)}, {vr(r, 2)}, {vr(48 + r, 2)}")
        for h in range(2):
            r = 4 * q + 2 * h
            a(f"v_pk_add_f32 {vr(r, 2)}, {vr(r, 2)}, {vr(16 + r, 2)}")


def gemm1(layer):
    H = H1 if layer == 0 else H3
    G = G1 if layer == 0 else G3
    gemm_addr()
    a(f"""s_lshr_b32 s{sT0}, s{sWAVE}, 1
s_lshl_b32 s{sT0}, s{sT0}, 6
s_lshl_b32 s{sT1}, s{sNT}, 7
s_add_u32 s{sT0}, s{sT0}, s{sT1}
v_lshrrev_b32 v16, 5, v{vLANE}
v_lshl_add_u32 v16, v16, 3, s{sT0}""")
    for q in range(4):
        a(f"global_load_dwordx2 {vr(20 + 2 * q, 2)}, v16, {sp(P_B1)} offset:{16 * q}")
    r = 32
    a(f"""s_lshl_b32 s{sT0}, s{sWAVE}, 5
v_and_b32 v{r + 2}, 31, v{vLANE}
v_add_u32 v{r + 2}, s{sT0}, v{r + 2}
s_lshl_b32 s13, s{sDT1}, 7
s_add_u32 s13, s13, s{sT0}
s_lshl_b32 s13, s13, 11
s_add_u32 s13, s13, {H}""")
    for k in range(8):
        unpack(2 * k, 2 * k + 1, 20 + k)
    a.wait_tag("flag")
    poll_issue(2 + 4 * layer, r)
    poll_take(r)
    stamp(63)
    gemm_loop(32, 64, 14, lambda ks, nb: f"a[{(ks * 2 + nb) * 4}:{(ks * 2 + nb) * 4 + 3}]", False)
    stamp(100)
    gemm_reduce()
    c0 = -2 * math.log2(math.e) * math.sqrt(2 / math.pi)
    a(f"s_mov_b32 s{sCA}, {f32(c0 * 0.044715)}")
    a(f"""s_mul_i32 s13, s{sDT1}, 112
s_lshl_b32 s{sT0}, s{sNT}, 2
s_add_u32 s13, s13, s{sT0}
s_and_b32 s{sT0}, s{sWAVE}, 2
s_add_u32 s13, s13, s{sT0}
s_lshl_b32 s13, s13, 11
s_add_u32 s13, s13, {G}
v_mov_b32 v48, {f32(c0)}""")
    for half in range(2):
        rs = range(8 * half, 8 * half + 8, 2)
        for r in rs:
            a(f"v_pk_mul_f32 {vr(16 + r, 2)}, {vr(r, 2)}, {vr(r, 2)}")
        for r in rs:
            a(f"v_pk_fma_f32 {vr(16 + r, 2)}, {vr(16 + r, 2)}, {sp(sCA)}, {vr(48, 2)} op_sel_hi:[1,0,0]")
        for r in rs:
            a(f"v_pk_mul_f32 {vr(16 + r, 2)}, {vr(16 + r, 2)}, {vr(r, 2)}")
        for r in rs:
            a(f"v_exp_f32 v{16 + r}, v{16 + r}\nv_exp_f32 v{17 + r}, v{17 + r}")
        for r in rs:
            a(f"v_pk_add_f32 {vr(16 + r, 2)}, {vr(16 + r, 2)}, 1.0 op_sel_hi:[1,0]")
        for r in rs:
            a(f"v_rcp_f32 v{16 + r}, v{16 + r}\nv_rcp_f32 v{17 + r}, v{17 + r}")
        for r in rs:
            a(f"v_pk_mul_f32 {vr(r, 2)}, {vr(r, 2)}, {vr(16 + r, 2)}")
        for r in rs:
            a(f"v_cvt_pk_bf16_f32 v{32 + r // 2}, v{r}, v{r + 1}")
        a(f"buffer_store_dwordx4 {vr(32 + 4 * half, 4)}, v{vA0}, {srd(S_WS)}, s13 offen offset:{2048 * half} sc1", tag="pub")
    flag_put(3 + 4 * layer, f"s_mul_i32 s{sT0}, s{sDT1}, 28\ns_add_u32 s{sT0}, s{sT0}, s{sNT}\ns_lshl_b32 s{sT0}, s{sT0}, 6", 40, "pub")


def gemm2(layer):
    G = G1 if layer == 0 else G3
    gemm_addr()
    a(f"""s_lshr_b32 s{sT0}, s{sWAVE}, 1
s_lshl_b32 s{sT0}, s{sT0}, 5
s_lshl_b32 s{sT1}, s{sST}, 6
s_add_u32 s50, s{sT0}, s{sT1}
s_and_b32 s{sT1}, s{sWAVE}, 1
s_lshl_b32 s{sT1}, s{sT1}, 5
s_lshl_b32 s{sT2}, s{sDT2}, 6
s_add_u32 s51, s{sT1}, s{sT2}
s_mul_i32 s{sT2}, s{sST}, {BS}
s_lshl_b32 s{sT1}, s51, 7
s_add_u32 s{sT2}, s{sT2}, s{sT1}
s_lshl_b32 s{sT0}, s{sT0}, 1
s_add_u32 s{sT2}, s{sT2}, s{sT0}
s_add_u32 s{sT2}, s{sT2}, {X1 if layer == 0 else X3}
v_and_b32 v16, 31, v{vLANE}
v_lshrrev_b32 v17, 5, v{vLANE}
s_lshl_b32 s{sT0}, s50, 1""")
    if layer == 0:
        a(f"v_lshlrev_b32 v18, 7, v16\nv_lshl_add_u32 v18, v17, 3, v18\nv_lshl_add_u32 v19, v17, 3, s{sT0}")
        for q in range(4):
            a(f"buffer_load_dwordx2 {vr(20 + 2 * q, 2)}, v18, {srd(S_WS)}, s{sT2} offen offset:{16 * q} sc1")
        for q in range(4):
            a(f"global_load_dwordx2 {vr(28 + 2 * q, 2)}, v19, {sp(P_B2)} offset:{16 * q}")
        for k in range(8):
            unpack(2 * k, 2 * k + 1, 20 + k)
        for k in range(8):
            unpack(40, 41, 28 + k)
            a(f"v_pk_add_f32 {vr(2 * k, 2)}, {vr(2 * k, 2)}, v[40:41]")
    else:
        a(f"""v_lshrrev_b32 v18, 2, v{vLANE}
v_lshlrev_b32 v18, 7, v18
v_and_b32 v19, 3, v{vLANE}
v_lshl_add_u32 v18, v19, 4, v18
s_lshl_b32 s{sT1}, s{sWAVE}, 11
s_mov_b32 m0, s{sT1}
v_lshl_add_u32 v28, v16, 1, s{sT0}""")
        a(f"buffer_load_dwordx4 v18, {srd(S_WS)}, s{sT2} offen sc1 lds", res_w=["x3"])
        a(f"s_add_u32 m0, m0, 1024\ns_add_u32 s{sT2}, s{sT2}, 2048")
        a(f"buffer_load_dwordx4 v18, {srd(S_WS)}, s{sT2} offen sc1 lds", res_w=["x3"])
        a(f"global_load_ushort v29, v28, {sp(P_B2)}")
        a(f"""v_bfe_u32 v18, v{vLANE}, 2, 2
v_lshl_add_u32 v18, v17, 2, v18
v_lshlrev_b32 v18, 6, v18
v_bfe_u32 v30, v{vLANE}, 4, 1
v_lshl_add_u32 v18, v30, 5, v18
v_lshl_add_u32 v18, v19, 3, v18
v_add_u32 v18, s{sT1}, v18""")
        for q in range(4):
            a(f"ds_read_b64_tr_b16 {vr(20 + 2 * q, 2)}, v18 offset:{512 * q}", res_r=["x3"])
        a("v_lshlrev_b32 v40, 16, v29")
        for k in range(8):
            unpack(2 * k, 2 * k + 1, 20 + k)
            a(f"v_pk_add_f32 {vr(2 * k, 2)}, {vr(2 * k, 2)}, v[40:41] op_sel_hi:[1,0]")
    r = 42
    a(f"""s_mul_i32 s{sT0}, s{sDT2}, 28
s_mul_i32 s{sT1}, s{sWAVE}, 7
s_add_u32 s{sT0}, s{sT0}, s{sT1}
v_min_u32 v{r + 2}, 6, v{vLANE}
v_add_u32 v{r + 2}, s{sT0}, v{r + 2}
s_lshl_b32 s13, s{sT0}, 13
s_add_u32 s13, s13, {G}""")
    a.wait_tag("flag")
    poll_issue(3 + 4 * layer, r)
    poll_take(r)
    stamp(63)
    gemm_loop(28, 64, 10, lambda ks, nb: vr(128 + (ks * 2 + nb) * 4, 4), layer == 1, lds_from=16)
    stamp(100)
    gemm_reduce()
    PK = 64
    if layer == 0:
        a(f"""v_and_b32 v16, 31, v{vLANE}
v_lshrrev_b32 v17, 5, v{vLANE}
v_mul_u32_u24 v18, 7168, v17
v_lshl_add_u32 v18, v16, 4, v18
s_lshr_b32 s{sT0}, s50, 3
s_mul_i32 s{sT0}, s{sT0}, 7168
s_lshl_b32 s{sT1}, s51, 4
s_add_u32 s{sT0}, s{sT0}, s{sT1}
s_add_u32 s13, s{sT0}, {X2}""")
    else:
        a(f"""v_and_b32 v16, 31, v{vLANE}
v_lshrrev_b32 v17, 5, v{vLANE}
v_mul_u32_u24 v18, 896, v16
v_lshl_add_u32 v18, v17, 4, v18
s_mul_i32 s{sT0}, s50, 896
s_lshl_b32 s{sT1}, s51, 1
s_add_u32 s13, s{sT0}, s{sT1}""")
    for half in range(2):
        b = PK + 4 * half
        for k in range(4):
            a(f"v_cvt_pk_bf16_f32 v{b + k}, v{8 * half + 2 * k}, v{8 * half + 2 * k + 1}")
        a(f"v_permlane32_swap_b32 v{b}, v{b + 2}")
        a(f"v_permlane32_swap_b32 v{b + 1}, v{b + 3}")
        if layer == 0:
            if half:
                a(f"s_add_u32 s13, s13, {2 * 7168}")
            a(f"buffer_store_dwordx4 {vr(b, 4)}, v18, {srd(S_WS)}, s13 offen sc1", tag="pub")
        else:
            a(f"buffer_store_dwordx4 {vr(b, 4)}, v18, {srd(S_OUT)}, s13 offen offset:{32 * half}")
    if layer == 1:
        return
    for k in range(8):
        a(f"v_pk_mul_f32 {vr(20 + 2 * k, 2)}, {vr(2 * k, 2)}, {vr(2 * k, 2)}")
    res = reduce32(list(range(16)) + list(range(20, 36)), 16, list(range(40, 48)))
    assert res == [0, 1, 2, 3]
    a(f"""v_cndmask_b32 v0, v0, v1, {sp(sM1)}
v_cndmask_b32 v2, v2, v3, {sp(sM1)}
v_bfe_u32 v4, v{vLANE}, 2, 2
v_lshlrev_b32 v4, 4, v4
v_bfe_u32 v5, v{vLANE}, 4, 1
v_lshl_add_u32 v4, v5, 3, v4
v_and_b32 v5, 1, v{vLANE}
v_lshl_add_u32 v4, v5, 2, v4
v_bfe_u32 v5, v{vLANE}, 1, 1
v_lshl_add_u32 v5, v17, 1, v5
v_lshl_add_u32 v4, v5, 12, v4
v_cndmask_b32 v0, v0, v2, {sp(sM2)}
s_lshl_b32 s{sT0}, s50, 1
s_add_u32 s{sT0}, s{sT0}, {ST1}""")
    a(f"buffer_atomic_add_f32 v0, v4, {srd(S_WS)}, s{sT0} offen sc1", tag="pub")
    flag_put(4, f"s_lshl_b32 s{sT0}, s{sDT2}, 5\ns_add_u32 s{sT0}, s{sT0}, s{sST}\ns_lshl_b32 s{sT0}, s{sT0}, 6", 40, "pub")


def skip_unless(role):
    l = label("skip")
    a(f"s_cmp_eq_u32 s{role}, 0")
    a(f"s_cbranch_scc1 {l}")
    return l


def build():
    stop = OPT["stop"]
    prologue()
    stats0_loads()
    kgen_loads()
    kgen_table_load()
    w_setup()
    nonce_publish()
    stamp()
    stats0_compute()
    nonce_issue(112)
    nonce_take(112)
    flag_put(0, 2, 8, "st0")
    stamp()
    if OPT["upfront"]:
        w_all_upfront()
    stamp()
    l = skip_unless(sRC)
    for g in conv_gather0():
        a.put(g)
    kgen()
    dump_lds(1)
    stamp()
    conv_poll_addr(0, 100)
    poll_issue(0, 100)
    kexpand()
    poll_take(100)
    conv_loads(0)
    a.barrier()
    kcopies()
    stamp()
    conv(0)
    flag_put(1, sPAIR, 40, "pub")
    a(f"{l}:")
    stamp()
    for layer in range(2):
        if layer == 1:
            l = skip_unless(sRC)
            a.barrier()
            kcopies()
            conv_poll_addr(1, 100)
            a.wait_tag("flag")
            poll_issue(4, 100)
            poll_take(100)
            stamp()
            conv_loads(1)
            conv(1)
            flag_put(5, sPAIR, 40, "pub")
            a(f"{l}:")
            stamp()
        if stop <= 3 * layer + 1:
            break
        l = skip_unless(sRL)
        ln(layer)
        a(f"{l}:")
        stamp()
        if stop <= 3 * layer + 2:
            break
        l = skip_unless(sR1)
        gemm1(layer)
        a(f"{l}:")
        stamp()
        l = skip_unless(sR2)
        gemm2(layer)
        a(f"{l}:")
        stamp()
        if stop <= 3 * layer + 3:
            break
    a("s_endpgm")


def bf16_round_int(l):
    b = struct.unpack("<I", struct.pack("<f", float(l)))[0]
    b = (b + 0x7FFF + ((b >> 16) & 1)) & 0xFFFF0000
    return int(struct.unpack("<f", struct.pack("<I", b))[0])


def ktab():
    vals = []
    for c in range(2):
        for x in range(2048):
            lr = bf16_round_int(2047 - x)
            aa, rem = lr >> 7, lr & 127
            j, e = rem >> 3, rem & 7
            if aa < 2:
                rho = 8 * aa + e
            elif aa < 4:
                rho = 4 * aa + 8 + (e >> 1)
            elif aa < 8:
                rho = 16 + 2 * aa + (e >> 2)
            else:
                rho = 24 + aa
            vals.append((rho >> 2) * 256 + j * 16 + (rho & 3) * 4 + c * 2 * GST)
    lines = []
    for i in range(0, len(vals), 16):
        lines.append("    .short " + ", ".join(str(v) for v in vals[i:i + 16]))
    return "\n".join(lines)


def main(path):
    build()
    ins = a.finish()
    ref = open(f"cdna_kernels/{NAME}.s.ref").read().split("\n")
    head = [l for l in ref if l.startswith(";") and "@launch" not in l and not l.startswith("; Override") and not l.startswith("; grid=ceil")]
    k = NAME + "_kernel"
    s = "\n".join(head) + f"\n; @launch grid=(256,1,1) block=(256,1,1) lds={LDS_BYTES}\n"
    s += f""".amdgcn_target "amdgcn-amd-amdhsa--gfx950"
.text
.globl {k}
.p2align 8
.type {k},@function
{k}:
"""
    s += Prog.render(ins)
    s += f""".p2align 6
.type ktab,@object
ktab:
{ktab()}
.size ktab, 8192
.section .rodata,"a"
.p2align 6
.amdhsa_kernel {k}
  .amdhsa_next_free_vgpr 512
  .amdhsa_next_free_sgpr 102
  .amdhsa_accum_offset 256
  .amdhsa_group_segment_fixed_size 0
  .amdhsa_kernarg_size 136
  .amdhsa_user_sgpr_count 2
  .amdhsa_user_sgpr_kernarg_segment_ptr 1
  .amdhsa_system_sgpr_workgroup_id_x 1
  .amdhsa_float_denorm_mode_32 3
.end_amdhsa_kernel
"""
    open(path, "w").write(s)
    n = sum(1 for i in ins if i.kind not in ("label", "comment"))
    print("instructions:", n, "nops:", sum(1 for i in ins if i.kind == "nop"), "waits:", sum(1 for i in ins if i.kind == "wait"))


if __name__ == "__main__":
    path = sys.argv[1]
    for kv in sys.argv[2:]:
        k, v = kv.split("=")
        OPT[k] = int(v)
    main(path)
```

```python
import re

TRANS = ("v_exp_f32", "v_log_f32", "v_rcp_f32", "v_rsq_f32", "v_sqrt_f32", "v_sin_f32", "v_cos_f32")


def split_ops(s):
    out, depth, cur = [], 0, ""
    for ch in s:
        if ch == "[":
            depth += 1
        elif ch == "]":
            depth -= 1
        if ch == "," and depth == 0:
            out.append(cur.strip())
            cur = ""
        else:
            cur += ch
    if cur.strip():
        out.append(cur.strip())
    return out


def regs_of(tok):
    tok = tok.strip()
    tok = tok.lstrip("-")
    if tok.startswith("abs(") and tok.endswith(")"):
        tok = tok[4:-1]
    if tok.startswith("|") and tok.endswith("|"):
        tok = tok[1:-1]
    m = re.fullmatch(r"([vas])\[(\d+):(\d+)\]", tok)
    if m:
        return [f"{m.group(1)}{i}" for i in range(int(m.group(2)), int(m.group(3)) + 1)]
    m = re.fullmatch(r"([vas])(\d+)", tok)
    if m:
        return [tok]
    if tok in ("vcc", "exec", "m0"):
        return [tok]
    if tok in ("vcc_lo", "vcc_hi"):
        return ["vcc"]
    if tok in ("exec_lo", "exec_hi"):
        return ["exec"]
    return []


class Ins:
    __slots__ = ("text", "op", "defs", "uses", "kind", "res_r", "res_w", "optional", "tag", "mf_c", "mf_ab", "passes", "wide", "dpp", "target")

    def __init__(self, text, res_r=(), res_w=(), tag=None, optional=False):
        self.text = text.strip()
        self.res_r = set(res_r)
        self.res_w = set(res_w)
        self.tag = tag
        self.optional = optional
        self.mf_c = set()
        self.mf_ab = set()
        self.passes = 0
        self.wide = False
        self.dpp = False
        self.target = None
        t = self.text
        if t.endswith(":"):
            self.op, self.kind, self.defs, self.uses = "label", "label", set(), set()
            self.target = t[:-1]
            return
        if t.startswith(";") or t.startswith("."):
            self.op, self.kind, self.defs, self.uses = "comment", "comment", set(), set()
            return
        parts = t.split(None, 1)
        op = parts[0]
        self.op = op
        rest = parts[1] if len(parts) > 1 else ""
        ops = split_ops(rest)
        mods = ""
        if ops:
            last = ops[-1].split(None, 1)
            ops[-1] = last[0]
            if len(last) > 1:
                mods = last[1]
        R = [regs_of(o) for o in ops]
        d, u = set(), set()
        base = re.sub(r"_(e32|e64|dpp|sdwa)$", "", op)
        if op.startswith("v_mfma"):
            self.kind = "mfma"
            d |= set(R[0])
            self.mf_ab = set(R[1]) | set(R[2])
            self.mf_c = set(R[3])
            u |= self.mf_ab | self.mf_c
            self.passes = 8 if "32x32x16" in op else 4
            assert "32x32x16" in op or "16x16x32" in op
        elif op.startswith("v_"):
            self.kind = "trans" if base in TRANS else ("dot" if base.startswith("v_dot") else "valu")
            self.dpp = op.endswith("_dpp")
            if base.startswith("v_permlane") and "swap" in base:
                d |= set(R[0]) | set(R[1])
                u |= set(R[0]) | set(R[1])
            elif base in ("v_add_co_u32", "v_sub_co_u32", "v_addc_co_u32", "v_subb_co_u32"):
                d |= set(R[0]) | set(R[1])
                for r in R[2:]:
                    u |= set(r)
            else:
                d |= set(R[0])
                for r in R[1:]:
                    u |= set(r)
                if base.startswith("v_fmac") or base.startswith("v_dot2c") or base == "v_writelane_b32" or self.dpp:
                    u |= set(R[0])
                if base == "v_cndmask_b32" and len(ops) == 3:
                    u.add("vcc")
        elif op.startswith("buffer_"):
            if "load" in op and re.search(r"\blds\b", mods):
                self.kind = "dma"
                for r in R:
                    u |= set(r)
                u.add("m0")
            elif "load" in op:
                self.kind = "vload"
                d |= set(R[0])
                for r in R[1:]:
                    u |= set(r)
            else:
                self.kind = "vstore"
                for r in R:
                    u |= set(r)
                self.wide = op.endswith("x4") or op.endswith("x3")
                self.mf_c = set(R[0])
                assert not ("atomic" in op and "sc0" in mods)
        elif op.startswith("global_"):
            if "load" in op:
                self.kind = "vload"
                d |= set(R[0])
                for r in R[1:]:
                    u |= set(r)
            else:
                self.kind = "vstore"
                for r in R:
                    u |= set(r)
                self.wide = op.endswith("x4") or op.endswith("x3")
                self.mf_c = set(R[1])
        elif op.startswith("ds_read") or op.startswith("ds_bpermute"):
            self.kind = "dsr"
            d |= set(R[0])
            for r in R[1:]:
                u |= set(r)
        elif op.startswith("ds_"):
            self.kind = "dsw"
            for r in R:
                u |= set(r)
        elif op.startswith("s_load") or op.startswith("s_memrealtime") or op.startswith("s_memtime"):
            self.kind = "smem"
            d |= set(R[0])
            for r in R[1:]:
                u |= set(r)
        elif op == "s_waitcnt":
            self.kind = "wait"
        elif op == "s_nop":
            self.kind = "nop"
        elif op == "s_barrier":
            self.kind = "barrier"
        elif op in ("s_endpgm", "s_sleep", "s_setprio"):
            self.kind = "other"
        elif op.startswith("s_cbranch") or op == "s_branch":
            self.kind = "branch"
            self.target = ops[0]
            if "vcc" in op:
                u.add("vcc")
        elif op.startswith("s_cmp") or op.startswith("s_bitcmp"):
            self.kind = "salu"
            for r in R:
                u |= set(r)
        elif op.startswith("s_"):
            self.kind = "salu"
            d |= set(R[0])
            for r in R[1:]:
                u |= set(r)
            if op.endswith("saveexec_b64"):
                d.add("exec")
        else:
            raise ValueError("cannot parse: " + text)
        self.defs, self.uses = d, u

    def states(self):
        if self.kind in ("label", "comment"):
            return 0
        if self.kind == "nop":
            return int(self.text.split()[1]) + 1
        return 1

    def cost(self):
        k = self.kind
        if k in ("label", "comment"):
            return 0
        if k == "mfma":
            return 4 * self.passes
        if k == "trans":
            return 9
        return 4.5


VALU_KINDS = ("valu", "trans", "dot")
VMEM_KINDS = ("vload", "vstore", "dma")


def is_vgpr(r):
    return r[0] in "va" and r[1:].isdigit()


def is_sgpr(r):
    return (r[0] == "s" and r[1:].isdigit()) or r == "vcc"


def need_states(p, c):
    n = 0
    pk, ck = p.kind, c.kind
    base_c = re.sub(r"_(e32|e64|dpp|sdwa)$", "", c.op)
    if pk in VALU_KINDS:
        vd = {r for r in p.defs if is_vgpr(r)}
        sd = {r for r in p.defs if is_sgpr(r)}
        if ck == "mfma" and vd & c.uses:
            n = max(n, 2)
        if ck in VALU_KINDS:
            if pk == "trans" and vd & c.uses:
                n = max(n, 1)
            if c.dpp and vd & c.uses:
                n = max(n, 2)
            if base_c.startswith("v_permlane") and vd & c.uses:
                n = max(n, 2)
            if base_c in ("v_readlane_b32", "v_readfirstlane_b32") and vd & c.uses:
                n = max(n, 1)
            if sd & c.uses:
                n = max(n, 4 if base_c in ("v_readlane_b32", "v_writelane_b32") else 2)
        if pk == "dot" and (vd & (c.uses | c.defs)):
            same_acc = (c.op == p.op and c.kind == "dot" and vd == {r for r in c.defs if is_vgpr(r)})
            if not same_acc:
                n = max(n, 3)
        if ck in VMEM_KINDS and sd & c.uses:
            n = max(n, 5)
        if ck in ("salu", "branch", "smem") and sd & c.uses:
            n = max(n, 1)
    if pk == "mfma":
        big = p.passes == 8
        if ck == "mfma":
            if p.defs & c.mf_ab:
                n = max(n, 12 if big else 8)
            if p.defs & c.mf_c and not (p.defs == c.mf_c and p.passes == c.passes):
                n = max(n, 10 if big else 6)
            if p.defs & c.defs and not (p.defs == c.mf_c and p.passes == c.passes):
                n = max(n, 10 if big else 6)
        elif ck not in ("wait", "nop", "barrier", "label", "comment"):
            if p.defs & (c.uses | c.defs):
                n = max(n, 12 if big else 8)
            if ck in VALU_KINDS and p.mf_c & c.defs:
                n = max(n, 7 if big else 3)
            if ck in ("vload", "dsr") and p.mf_c & c.defs:
                n = max(n, 7 if big else 3)
    if pk == "vstore" and p.wide and (p.mf_c & c.defs):
        n = max(n, 2)
    if pk == "salu" and "m0" in p.defs and ck == "dma":
        n = max(n, 1)
    return n


class Prog:
    def __init__(self):
        self.stack = [[]]

    def __call__(self, text, **kw):
        for line in text.split("\n"):
            line = line.strip()
            if not line:
                continue
            self.stack[-1].append(Ins(line, **kw))

    def put(self, lst):
        self.stack[-1].extend(lst)

    def pseudo(self, kind, arg=None):
        i = Ins("; " + kind)
        i.kind = "pseudo"
        i.op = kind
        i.tag = arg
        self.stack[-1].append(i)

    def begin(self):
        self.stack.append([])

    def end(self):
        return self.stack.pop()

    def capture(self, fn, *a, **kw):
        self.begin()
        fn(*a, **kw)
        return self.end()

    def wait_tag(self, tag):
        self.pseudo("wait_tag", tag)

    def wait_vm0(self):
        self.pseudo("wait_vm0")

    def wait_lgkm0(self):
        self.pseudo("wait_lgkm0")

    def assume_vm0(self):
        self.pseudo("assume_vm0")

    def barrier(self):
        self.wait_lgkm0()
        self("s_barrier")

    def finish(self):
        assert len(self.stack) == 1
        src = self.stack[0]
        out = []
        vm, lg = [], []
        saved = {}
        windows = [[]]

        def age(n):
            for w in windows:
                for e in w:
                    e[1] += n
                w[:] = [e for e in w if e[1] < 24]

        def emit(i):
            out.append(i)
            n = i.states()
            age(n)
            if n:
                for w in windows:
                    w.append([i, 0])
            if len(windows) > 1:
                seen, keep = set(), []
                for w in windows:
                    key = tuple((id(e[0]), e[1]) for e in w)
                    if key not in seen:
                        seen.add(key)
                        keep.append(w)
                windows[:] = keep

        def waitcnt(v=None, l=None):
            s = []
            if v is not None:
                s.append(f"vmcnt({min(v, 63)})")
            if l is not None:
                s.append(f"lgkmcnt({min(l, 15)})")
            emit(Ins("s_waitcnt " + " ".join(s)))

        def count_after(q, idx):
            return sum(1 for e in q[idx + 1:] if not e[1])

        linear_dead = False
        skipped = []
        pos = {id(x): k for k, x in enumerate(src)}
        for here, i in enumerate(src):
            if i.kind == "pseudo":
                if i.op == "wait_vm0":
                    if vm:
                        waitcnt(v=0)
                        vm = []
                elif i.op == "assume_vm0":
                    vm = []
                elif i.op == "wait_lgkm0":
                    if lg:
                        waitcnt(l=0)
                        lg = []
                elif i.op == "wait_tag":
                    idx = max((k for k, e in enumerate(vm) if e[0].tag == i.tag), default=-1)
                    if idx >= 0:
                        waitcnt(v=count_after(vm, idx))
                        vm = vm[idx + 1:]
                continue
            if i.kind == "comment":
                out.append(i)
                continue
            if i.kind == "label":
                for (svm, slg, swin, bpos, sskip) in saved.pop(i.target, []):
                    if linear_dead:
                        vm, lg = svm, slg
                        windows[:] = [[list(e) for e in w] for w in swin]
                        skipped = sskip + [(bpos, here)]
                        linear_dead = False
                        continue
                    rng = skipped + sskip + [(bpos, here)]

                    def join(sq, cq):
                        allq = {id(e[0]): [e[0], e[1]] for e in sq}
                        for e in cq:
                            if id(e[0]) in allq:
                                allq[id(e[0])][1] |= e[1]
                            else:
                                allq[id(e[0])] = [e[0], e[1]]
                        res = sorted(allq.values(), key=lambda e: pos[id(e[0])])
                        for e in res:
                            p = pos[id(e[0])]
                            if any(a < p < b for a, b in rng):
                                e[1] = True
                        return res
                    vm = join(svm, vm)
                    lg = join(slg, lg)
                    skipped = []
                    windows.extend([[list(e) for e in w] for w in swin])
                linear_dead = False
                out.append(i)
                continue
            if i.kind == "wait":
                m = re.search(r"vmcnt\((\d+)\)", i.text)
                if m and int(m.group(1)) == 0:
                    vm = []
                m = re.search(r"lgkmcnt\((\d+)\)", i.text)
                if m and int(m.group(1)) == 0:
                    lg = []
                emit(i)
                continue
            touch = i.uses | i.defs
            idx = -1
            for k, e in enumerate(vm):
                o = e[0]
                dep = False
                if o.defs & i.uses:
                    dep = True
                if o.defs & i.defs and i.kind != "vload":
                    dep = True
                if o.res_w & (i.res_r | i.res_w) and not (i.kind == "dma" and o.kind == "dma"):
                    dep = True
                if dep:
                    idx = k
            wv = None
            if idx >= 0:
                wv = count_after(vm, idx)
                vm = vm[idx + 1:] if wv else []
            idx = -1
            for k, e in enumerate(lg):
                o = e[0]
                dep = False
                if o.defs & i.uses:
                    dep = True
                if o.defs & i.defs and not (i.kind == "dsr" and o.kind == "dsr"):
                    dep = True
                if i.kind == "dma" and ((o.res_r | o.res_w) & i.res_w):
                    dep = True
                if dep:
                    idx = k
            wl = None
            if idx >= 0:
                if any(e[0].kind == "smem" for e in lg):
                    wl = 0
                    lg = []
                else:
                    wl = count_after(lg, idx)
                    lg = lg[idx + 1:] if wl else []
            if wv is not None or wl is not None:
                waitcnt(wv, wl)
            need = 0
            for w in windows:
                for p, a in w:
                    n = need_states(p, i)
                    if n - a > need:
                        need = n - a
            while need > 0:
                k = min(need, 16)
                emit(Ins(f"s_nop {k - 1}"))
                need -= k
            emit(i)
            if i.kind in VMEM_KINDS:
                vm.append([i, i.optional])
                if len(vm) > 63 + 64:
                    vm = vm[-(63 + 64):]
            if i.kind in ("dsr", "dsw", "smem"):
                lg.append([i, i.optional])
            if i.kind == "branch":
                saved.setdefault(i.target, []).append(([list(e) for e in vm], [list(e) for e in lg], [[list(e) for e in w] for w in windows], here, list(skipped)))
                if i.op == "s_branch":
                    linear_dead = True
            if i.op == "s_endpgm":
                linear_dead = True
        return out

    @staticmethod
    def render(ins):
        lines = []
        for i in ins:
            if i.kind == "label":
                lines.append(i.text)
            else:
                lines.append("    " + i.text)
        return "\n".join(lines) + "\n"


SCC_USERS = ("s_cselect", "s_cbranch_scc", "s_addc", "s_subb")
SCC_KEEPERS = ("s_mov", "s_mul_i32", "s_cselect", "s_nop", "s_waitcnt", "s_barrier", "s_load", "s_getpc")


def merge(fg, bg, start=0.0, every=64.0):
    live, blocked = False, [False] * len(fg)
    for k in range(len(fg) - 1, -1, -1):
        blocked[k] = live
        op = fg[k].op
        assert fg[k].kind not in ("label", "branch")
        if op.startswith(SCC_USERS):
            live = True
        elif op.startswith("s_") and not op.startswith(SCC_KEEPERS):
            live = False
    out, t, nxt, k, narrow = [], 0.0, start, 0, False
    for n, i in enumerate(fg):
        out.append(i)
        t += i.cost() if i.kind != "pseudo" else 0
        if "exec" in i.defs:
            narrow = i.text != "s_mov_b64 exec, -1"
        if k < len(bg) and t >= nxt and not narrow and not blocked[n]:
            out.extend(bg[k])
            k += 1
            nxt = t + every
    return out, bg[k:]


def space_ds(lst, lag=2, gap=3):
    out, pend = [], []
    last = -99

    def flush_one():
        nonlocal last
        i, _ = pend.pop(0)
        out.append(i)
        last = len(out)

    for i in lst:
        if i.kind == "dsw":
            pend.append([i, len(out) + lag])
            continue
        if i.kind in ("dsr", "barrier", "pseudo", "label", "branch"):
            while pend:
                flush_one()
        else:
            while any(p[0].uses & i.defs for p in pend):
                flush_one()
        out.append(i)
        if pend and len(out) >= pend[0][1] and len(out) - last >= gap:
            flush_one()
    while pend:
        flush_one()
    return out
```

```python
import sys, math, struct
from asmlib import *

NAME = "interleave_layers__ssm_conv_s4__mixer_token_mlp__prompt"
OPT = dict(stamps=False, stop=99, upfront=True, dump=0, dbgwg=-1, fixdur=0, sent=0, warm=1, st_kg=100, ev_kg=110, lag=2, gap=3, st_conv=100, ev_conv=48, ev_g1=40)
DBG_SEL = ['start', 'kgen', 'conv0 go', 'ln0 go', 'g1_0 go', 'g1_0 loop', 'g2_0 go', 'g2_0 loop', 'conv1 poll', 'ln1 go', 'g1_1 go', 'g2_1 go', 'end']
STAMP_NAMES = []

EPOCH = 0
ST0 = 0x1000
ST1 = 0x8000
STAMPS = 0x20000
FL = 0x100000
BS = 448 * 128 + 128
CH = 0x20000
X1 = 0x400000
H1 = X1 + 15 * CH
G1 = H1 + 14 * CH
X3 = G1 + 13 * CH
H3 = X3 + 15 * CH
G3 = H3 + 14 * CH
X2 = G3 + 13 * CH
X0 = X2 + 14 * CH
FILL1, FILL2, FILL3 = 29, 13, 42
WS_BYTES = 268435456
OOB = 0x40000000

KST = 4160
KSLOT = {0: [0, 5, 2, 3], 1: [1, 6, 7, 4]}
UB = 8 * KST
UST = 4608
ZB = UB + 2 * UST
EX = 2 * KST
RB = 2 * KST
GST = 15616
GROW = 272
TOFF = 12288
LNP = 57472
W2L = 65536
LDS_BYTES = 163840

sWAVE, sX, sJ, sPAIR, sDT1, sNT, sDT2, sST, sLN = 4, 5, 6, 7, 8, 9, 10, 11, 12
sNONCE = 14
P_U, P_ARE, P_AIM, P_BRE, P_BIM, P_CRE, P_CIM, P_LDT = 16, 18, 20, 22, 24, 26, 28, 30
P_DSK, P_W1, P_B1, P_W2, P_B2, P_OUT, P_DBG, P_WS = 32, 36, 38, 40, 42, 44, 46, 48
S_WS, S_W1, S_W2, S_X0, S_OUT = 52, 56, 60, 64, 68
sD0, sD1 = 72, 74
sLDT = 76
sEP = 78
sWOFF, sT0, sT1, sT2, sT3, sCNT = 80, 81, 82, 83, 84, 85
sRC, sR1, sR2, sRL = 86, 87, 88, 89
sM1, sM2 = 90, 92
sSTAMP = 94
sTAB = 96
sLN0, sRL0 = 77, 73
sCA, sCB = 34, 100

vLANE, vL16, vT2a, vT2b, vT1a, vT1b, vD1, vD2 = 127, 126, 125, 124, 123, 122, 121, 120
vA0, vA1 = 123, 122


def srd(n):
    return f"s[{n}:{n + 3}]"


def sp(n):
    return f"s[{n}:{n + 1}]"


def vr(n, k):
    return f"v[{n}:{n + k - 1}]" if k > 1 else f"v{n}"


def f32(x):
    return "0x%08x" % struct.unpack("<I", struct.pack("<f", x))[0]


a = Prog()
_lab = [0]


def label(p):
    _lab[0] += 1
    return f"L_{p}_{_lab[0]}"


_stamp = [0]


def stamp(name, r=1):
    k = _stamp[0]
    _stamp[0] += 1
    STAMP_NAMES.append(name)
    a("; MARK after " + name)
    if OPT["stamps"] != 1:
        return
    l = label("st")
    if OPT["dbgwg"] >= 0:
        if name not in DBG_SEL:
            return
        a(f"s_lshl_b32 s3, s{sWAVE}, 8\ns_add_u32 s3, s3, s2\ns_cmp_lg_u32 s3, {OPT['dbgwg']}\ns_cbranch_scc1 {l}")
        a(f"s_memrealtime {sp(sSTAMP)}")
        a("s_waitcnt lgkmcnt(0)")
        a(f"s_mov_b64 exec, 1\nv_mov_b32 v{r}, s{sSTAMP}\ns_mov_b32 s{sSTAMP}, s{P_DBG}\ns_mov_b32 s{sSTAMP + 1}, s{P_DBG + 1}\ns_mov_b32 s{sSTAMP + 2}, 256\ns_mov_b32 s{sSTAMP + 3}, 0x20000".replace(f"s{sSTAMP}, s{P_DBG}", f"s64, s{P_DBG}").replace(f"s{sSTAMP + 1}, s{P_DBG + 1}", f"s65, s{P_DBG + 1}").replace(f"s{sSTAMP + 2}, 256", "s66, 256").replace(f"s{sSTAMP + 3}, 0x20000", "s67, 0x20000"))
        a(f"buffer_store_dword v{r}, off, s[64:67], 0 offset:{12 + 4 * DBG_SEL.index(name)} sc1", optional=True)
        a("s_mov_b64 exec, -1")
        a(f"{l}:")
        return
    a(f"s_cmp_lg_u32 s{sWAVE}, 0")
    a(f"s_cbranch_scc1 {l}")
    a(f"s_memrealtime {sp(sSTAMP)}")
    a("s_waitcnt lgkmcnt(0)")
    a(f"s_lshl_b32 s3, s2, 8")
    a(f"s_add_u32 s3, s3, {STAMPS + 4 * k}")
    a(f"v_mov_b32 v{r}, s{sSTAMP}")
    a("s_mov_b64 exec, 1")
    a(f"buffer_store_dword v{r}, off, {srd(S_WS)}, s3", optional=True)
    a("s_mov_b64 exec, -1")
    a(f"{l}:")


DUMP = 0x2000000


def dump_lds(point, r=96):
    if OPT["dump"] != point:
        return
    a.barrier()
    a(f"s_lshl_b32 s3, s{sWAVE}, 10\nv_add_u32 v{r + 4}, s3, v{vL16}\ns_lshl_b32 s3, s2, 16\ns_add_u32 s3, s3, {DUMP}")
    for i in range(16):
        a(f"ds_read_b128 {vr(r, 4)}, v{r + 4} offset:{i * 4096}")
        a(f"buffer_store_dwordx4 {vr(r, 4)}, v{r + 4}, {srd(S_WS)}, s3 offen")
        a("s_add_u32 s3, s3, 4096")
        a.wait_vm0()
    a.barrier()


def cmul(d, x, y):
    return [f"v_pk_mul_f32 {vr(d, 2)}, {vr(x, 2)}, {vr(y, 2)} op_sel:[1,1] op_sel_hi:[1,0] neg_lo:[0,1]",
            f"v_pk_fma_f32 {vr(d, 2)}, {vr(x, 2)}, {vr(y, 2)}, {vr(d, 2)} op_sel_hi:[0,1,1]"]


def cmul2(p, q=None):
    x = cmul(*p)
    if q is None:
        a(x[0]); a(x[1])
        return
    y = cmul(*q)
    a(x[0]); a(y[0]); a(x[1]); a(y[1])


def unpack(dlo, dhi, s):
    a(f"v_lshlrev_b32 v{dlo}, 16, v{s}")
    a(f"v_and_b32 v{dhi}, 0xffff0000, v{s}")


def prologue():
    a("s_cmp_lt_u32 s2, 256")
    a("s_cbranch_scc1 L_start")
    a("s_endpgm")
    a("L_start:")
    if OPT["fixdur"] or OPT["stamps"]:
        a("s_memrealtime s[50:51]")
    a("s_load_dwordx16 s[16:31], s[0:1], 0")
    a("s_load_dwordx16 s[32:47], s[0:1], 64")
    a("s_load_dwordx2 s[48:49], s[0:1], 128")
    a(f"v_lshrrev_b32 v1, 6, v0")
    a(f"v_and_b32 v{vLANE}, 63, v0")
    a(f"v_readfirstlane_b32 s{sWAVE}, v1")
    a(f"v_lshlrev_b32 v{vL16}, 4, v{vLANE}")
    a(f"""s_and_b32 s{sX}, s2, 7
s_lshr_b32 s{sJ}, s2, 3
s_and_b32 s{sT0}, s{sX}, 1
s_lshr_b32 s{sT1}, s{sX}, 1
s_mul_i32 s{sPAIR}, s{sX}, 28
s_add_u32 s{sPAIR}, s{sPAIR}, s{sJ}
s_mul_i32 s{sT2}, s{sJ}, 37
s_lshr_b32 s{sT2}, s{sT2}, 8
s_mul_i32 s{sT3}, s{sT2}, 7
s_sub_u32 s{sT3}, s{sJ}, s{sT3}
s_mul_i32 s{sNT}, s{sT1}, 7
s_add_u32 s{sNT}, s{sNT}, s{sT3}
s_lshl_b32 s{sT3}, s{sT0}, 2
s_add_u32 s{sDT1}, s{sT2}, s{sT3}
s_lshl_b32 s{sST}, s{sT0}, 3
s_sub_u32 s{sST}, s{sJ}, s{sST}
s_cselect_b32 s{sR2}, 0, 1
s_lshr_b32 s{sDT2}, s{sST}, 3
s_and_b32 s{sDT2}, s{sDT2}, 3
s_add_u32 s{sDT2}, s{sDT2}, s{sT3}
s_and_b32 s{sST}, s{sST}, 7
s_lshl_b32 s{sLN0}, s{sT1}, 4
s_lshl_b32 s{sT1}, s{sT1}, 3
s_add_u32 s{sST}, s{sST}, s{sT1}
s_cmp_eq_u32 s{sJ}, 0
s_cselect_b32 s{sT1}, 32, s{sJ}
s_mul_i32 s{sT2}, s{sT0}, 11
s_add_u32 s{sT2}, s{sT2}, s{sT1}
s_cmp_lg_u32 s{sT0}, 0
s_cselect_b32 s{sT1}, s{sT1}, s{sJ}
s_cselect_b32 s{sT2}, s{sT2}, s{sJ}
s_cselect_b32 s{sRL0}, 21, 28
s_cmp_ge_u32 s{sT1}, s{sRL0}
s_cselect_b32 s{sRL0}, 1, 0
s_add_u32 s{sLN0}, s{sLN0}, s{sT2}
s_sub_u32 s{sLN0}, s{sLN0}, 28
s_lshl_b32 s{sLN}, s{sX}, 4
s_add_u32 s{sLN}, s{sLN}, s{sJ}
s_sub_u32 s{sLN}, s{sLN}, 16
s_cmp_lt_u32 s{sJ}, 28
s_cselect_b32 s{sRC}, 1, 0
s_mul_i32 s{sT2}, s{sT0}, 7
s_sub_u32 s{sT2}, 28, s{sT2}
s_cmp_lt_u32 s{sJ}, s{sT2}
s_cselect_b32 s{sR1}, 1, 0
s_cmp_ge_u32 s{sJ}, 16
s_cselect_b32 s{sRL}, 1, 0
s_min_u32 s{sPAIR}, s{sPAIR}, 223
s_mov_b32 s{sM1}, 0xaaaaaaaa
s_mov_b32 s{sM1 + 1}, 0xaaaaaaaa
s_mov_b32 s{sM2}, 0xcccccccc
s_mov_b32 s{sM2 + 1}, 0xcccccccc""")
    a("s_waitcnt lgkmcnt(0)")
    if OPT["fixdur"] or OPT["stamps"]:
        a("s_mov_b32 s101, s50")
    a(f"""s_lshl_b32 s{sT0}, s{sPAIR}, 2
s_load_dword s{sLDT}, {sp(P_LDT)}, s{sT0}
s_load_dword s{sD0}, {sp(P_DSK)}, s{sT0}
s_load_dwordx2 {sp(sEP)}, {sp(P_WS)}, {EPOCH}""")
    for n, p, size in ((S_WS, P_WS, WS_BYTES), (S_X0, P_U, 1835008), (S_OUT, P_OUT, 1835008)):
        a(f"s_mov_b32 s{n}, s{p}\ns_mov_b32 s{n + 1}, s{p + 1}\ns_mov_b32 s{n + 2}, {size}\ns_mov_b32 s{n + 3}, 0x20000")
    for n, p, role in ((S_W1, P_W1, sR1), (S_W2, P_W2, sR2)):
        a(f"s_mov_b32 s{n}, s{p}\ns_mov_b32 s{n + 1}, s{p + 1}\ns_cmp_lg_u32 s{role}, 0\ns_cselect_b32 s{n + 2}, 7340032, 0\ns_mov_b32 s{n + 3}, 0x20000")


sAUX = 75


def code_warm(r):
    if not OPT["warm"]:
        return
    a(f"""s_lshl_b32 s{sT0}, s{sJ}, 2
s_add_u32 s{sT0}, s{sT0}, s{sWAVE}
s_mul_i32 s{sT1}, s{sT0}, 65536/((ktab-L_entry+12351)/4096)+1
s_lshr_b32 s{sT1}, s{sT1}, 16
s_mul_i32 s{sT1}, s{sT1}, (ktab-L_entry+12351)/4096
s_sub_u32 s{sT0}, s{sT0}, s{sT1}
s_lshl_b32 s{sT0}, s{sT0}, 12
v_lshl_add_u32 v{r}, v{vLANE}, 6, s{sT0}
s_mov_b32 s{sT1}, ktab-L_entry+8192
v_sub_u32 v{r}, s{sT1}, v{r}
v_max_i32 v{r}, 0, v{r}
s_sub_u32 s28, s{sTAB}, ktab-L_entry
s_subb_u32 s29, s{sTAB + 1}, 0
global_load_dword v{r}, v{r}, s[28:29]""")


def fill(base, n, r, sidx=None):
    a(f"""s_lshl_b32 s{sT0}, s{sidx or sAUX}, 12
s_lshl_b32 s{sT1}, s{sWAVE}, 10
s_add_u32 s{sT0}, s{sT0}, s{sT1}
s_add_u32 s{sT0}, s{sT0}, {base}""")
    for k in range(4):
        a(f"v_mov_b32 v{r + k}, -1")
    for k in range(n):
        a(f"buffer_store_dwordx4 {vr(r, 4)}, v{vL16}, {srd(S_WS)}, s{sT0} offen sc1", tag="st0")
        if k + 1 < n:
            a(f"s_add_u32 s{sT0}, s{sT0}, {CH}")


def aux_path():
    XR = 8
    a(f"""s_sub_u32 s{sAUX}, s{sJ}, 28
s_lshl_b32 s{sAUX}, s{sAUX}, 3
s_add_u32 s{sAUX}, s{sAUX}, s{sX}
s_lshl_b32 s16, s{sAUX}, 2
s_add_u32 s16, s16, s{sWAVE}
s_mul_i32 s{sT1}, s16, {16 * 896}
v_and_b32 v2, 15, v{vLANE}
v_lshrrev_b32 v3, 4, v{vLANE}
v_mul_u32_u24 v4, 896, v2
v_lshl_add_u32 v4, v3, 4, v4
s_mul_i32 s17, s{sWAVE}, {16 * 896}
s_mov_b32 m0, s17""")
    for k in range(14):
        a(f"buffer_load_dwordx4 {vr(XR + 4 * k, 4)}, v4, {srd(S_X0)}, s{sT1} offen offset:{64 * k}")
    for k in range(14):
        if k and k % 4 == 0:
            a(f"s_add_u32 m0, m0, 4096\ns_add_u32 s{sT1}, s{sT1}, 4096")
        a(f"buffer_load_dwordx4 v{vL16}, {srd(S_X0)}, s{sT1} offen offset:{1024 * (k % 4)} lds", res_w=["x0"])
    kgen_table_addr()
    code_warm(1)
    w_setup()
    if OPT["sent"]:
        fill(X1, FILL1, 72)
    a(f"""v_mov_b32 v76, 0
v_mov_b32 v77, 0
v_mov_b32 v78, 0
v_mov_b32 v79, 0
s_lshl_b32 s{sT1}, s16, 7
s_add_u32 s{sT1}, s{sT1}, {ST1}
s_lshl_b32 s18, s16, 5
s_add_u32 s18, s18, {ST0}
s_mov_b64 exec, 0xff""")
    a(f"buffer_store_dwordx4 v[76:79], v{vL16}, {srd(S_WS)}, s{sT1} offen sc1", tag="st0")
    a(f"""s_mov_b64 exec, -1
v_and_b32 v2, 15, v{vLANE}
v_lshrrev_b32 v3, 4, v{vLANE}
v_lshrrev_b32 v6, 2, v2
v_cmp_eq_u32 vcc, v6, v3
v_bfe_u32 v6, v2, 1, 2
v_lshlrev_b32 v6, 12, v6
v_lshrrev_b32 v7, 3, v2
v_lshl_add_u32 v6, v7, 4, v6
v_and_b32 v7, 1, v2
v_lshl_add_u32 v6, v7, 2, v6
v_mov_b32 v7, {OOB}
v_cndmask_b32 v6, v7, v6, vcc
v_bfe_u32 v5, v{vLANE}, 2, 2
v_mul_u32_u24 v5, 896, v5
v_lshl_add_u32 v5, v3, 5, v5
v_and_b32 v7, 3, v{vLANE}
v_lshl_add_u32 v5, v7, 3, v5
v_add_u32 v5, s17, v5
s_mul_i32 s19, s16, {2 * 7168}
s_add_u32 s19, s19, {X0}
s_add_u32 s20, s19, 4096
s_add_u32 s21, s19, 7168
s_add_u32 s22, s20, 7168
v_mov_b32 v80, 0x3f803f80
v_mov_b32 v81, 0x3f803f80
v_mov_b32 v82, 0x3f803f80
v_mov_b32 v83, 0x3f803f80""")
    nonce_issue(84)
    for k in range(14):
        x = vr(XR + 4 * k, 4)
        a(f"v_mfma_f32_16x16x32_bf16 v[64:67], v[80:83], {x}, {'v[64:67]' if k else 0}")
        a(f"v_mfma_f32_16x16x32_bf16 v[68:71], {x}, {x}, {'v[68:71]' if k else 0}")
    for o in range(2):
        for cg in range(7):
            for j in range(2):
                a(f"ds_read_b64_tr_b16 {vr(XR + 28 * o + 4 * cg + 2 * j, 2)}, v5 offset:{(8 * o + 4 * j) * 896 + cg * 128}", res_r=["x0"])
    a(f"""v_cndmask_b32 v68, v68, v69, {sp(sM1)}
v_cndmask_b32 v70, v70, v71, {sp(sM1)}
v_cndmask_b32 v68, v68, v70, {sp(sM2)}""")
    a(f"buffer_store_dword v64, v6, {srd(S_WS)}, s18 offen sc1", tag="st0")
    a(f"buffer_store_dword v68, v6, {srd(S_WS)}, s18 offen offset:8 sc1", tag="st0")
    for o in range(2):
        for cg in range(7):
            a(f"buffer_store_dwordx4 {vr(XR + 28 * o + 4 * cg, 4)}, v{vL16}, {srd(S_WS)}, s{19 + 2 * o + cg // 4} offen offset:{1024 * (cg % 4)} sc1", tag="st0")
    nonce_take(84)
    flag_put(0, sAUX, 88, "st0")
    stamp("aux e1")
    if OPT["sent"]:
        fill(G1, FILL2, 72)
        flag_put(8, sAUX, 88, "st0")
        a(f"v_and_b32 v14, 31, v{vLANE}")
        poll_issue(0, 12)
        poll_take(12)
    stamp("aux e1b")


def nonce_publish():
    l = label("np")
    a(f"s_or_b32 s{sT0}, s2, s{sWAVE}")
    a(f"s_cmp_lg_u32 s{sT0}, 0")
    a(f"s_cbranch_scc1 {l}")
    a(f"""s_add_u32 s{sT0}, s{sEP}, 1
s_addc_u32 s{sT1}, s{sEP + 1}, 0
v_mov_b32 v4, s{sT0}
v_mov_b32 v5, s{sT1}
v_mov_b32 v6, 1
v_mov_b32 v7, 0
v_mov_b32 v8, 0
s_mov_b64 exec, 1""")
    a(f"global_store_dwordx3 v8, v[4:6], {sp(P_DBG)} sc1", optional=True)
    a(f"buffer_store_dwordx2 v[4:5], off, {srd(S_WS)}, 0 sc1", optional=True)
    a("s_mov_b64 exec, -1")
    a(f"{l}:")


def nonce_retire():
    l = label("nr")
    a(f"s_or_b32 s{sT0}, s2, s{sWAVE}")
    a(f"s_cmp_lg_u32 s{sT0}, 0")
    a(f"s_cbranch_scc1 {l}")
    a("v_mov_b32 v21, 0\ns_mov_b64 exec, 1")
    a(f"global_store_dword v21, v21, {sp(P_DBG)} offset:8 sc1", optional=True)
    a("s_mov_b64 exec, -1")
    a(f"{l}:")


def nonce_issue(r):
    a(f"v_mov_b32 v{r + 3}, 0")
    a(f"global_load_dwordx3 {vr(r, 3)}, v{r + 3}, {sp(P_DBG)} sc1")


def nonce_take(r):
    ok, lp = label("nok"), label("nlp")
    a(f"v_cmp_eq_u32 vcc, 0, v{r + 2}")
    a(f"s_cbranch_vccz {ok}")
    a(f"s_mov_b32 s{sCNT}, 0")
    a(f"{lp}:")
    a(f"global_load_dwordx3 {vr(r, 3)}, v{r + 3}, {sp(P_DBG)} sc1")
    a("s_waitcnt vmcnt(0)")
    a(f"v_cmp_eq_u32 vcc, 0, v{r + 2}")
    a(f"s_add_u32 s{sCNT}, s{sCNT}, 1")
    a(f"s_cbranch_vccz {ok}")
    a(f"s_cmp_lt_u32 s{sCNT}, 0x100000")
    a(f"s_cbranch_scc1 {lp}")
    a(f"{ok}:")
    a(f"v_readfirstlane_b32 s{sNONCE}, v{r}")
    a(f"v_readfirstlane_b32 s{sNONCE + 1}, v{r + 1}")


def flag_put(edge, sprod, r, tag):
    a(f"s_lshl_b32 s{sT0}, s{sprod}, 6" if isinstance(sprod, int) else sprod)
    a(f"""s_lshl_b32 s{sT1}, s{sWAVE}, 15
s_add_u32 s{sT0}, s{sT0}, s{sT1}
s_add_u32 s{sT0}, s{sT0}, {FL + edge * 0x20000}
v_lshlrev_b32 v{r + 2}, 14, v{vLANE}
v_mov_b32 v{r}, s{sNONCE}
v_mov_b32 v{r + 1}, s{sNONCE + 1}""")
    a.wait_tag(tag)
    a.barrier()
    a("s_mov_b64 exec, 3")
    a(f"buffer_store_dwordx2 {vr(r, 2)}, v{r + 2}, {srd(S_WS)}, s{sT0} offen sc1", tag="flag")
    a("s_mov_b64 exec, -1")


def hint_prep(edge, sprod, r):
    a(f"s_lshl_b32 s{sT0}, s{sprod}, 6" if isinstance(sprod, int) else sprod)
    a(f"""s_lshl_b32 s{sT1}, s{sWAVE}, 15
s_add_u32 s{sT0}, s{sT0}, s{sT1}
s_add_u32 s{sT0}, s{sT0}, {FL + edge * 0x20000}
v_lshl_add_u32 v{r + 2}, v{vLANE}, 14, s{sT0}
v_mov_b32 v{r}, s{sNONCE}
v_mov_b32 v{r + 1}, s{sNONCE + 1}""")


def hint_put(r):
    a("s_mov_b64 exec, 3")
    a(f"buffer_store_dwordx2 {vr(r, 2)}, v{r + 2}, {srd(S_WS)}, 0 offen sc1", tag="hint")
    a("s_mov_b64 exec, -1")


def poll_issue(edge, r):
    a(f"""s_lshl_b32 s{sT3}, s{sX}, 14
s_add_u32 s{sT3}, s{sT3}, {FL + edge * 0x20000}
v_lshlrev_b32 v{r + 2}, 6, v{r + 2}
v_add_u32 v{r + 2}, s{sT3}, v{r + 2}
buffer_load_dwordx2 {vr(r, 2)}, v{r + 2}, {srd(S_WS)}, 0 offen sc1""")


def poll_take(r):
    ok, lp = label("pok"), label("plp")
    a(f"v_cmp_ne_u64 vcc, {sp(sNONCE)}, {vr(r, 2)}")
    a(f"s_cbranch_vccz {ok}")
    a(f"s_mov_b32 s{sCNT}, 0")
    a(f"{lp}:")
    a(f"buffer_load_dwordx2 {vr(r, 2)}, v{r + 2}, {srd(S_WS)}, 0 offen sc1")
    a("s_waitcnt vmcnt(0)")
    a(f"v_cmp_ne_u64 vcc, {sp(sNONCE)}, {vr(r, 2)}")
    a(f"s_add_u32 s{sCNT}, s{sCNT}, 1")
    a(f"s_cbranch_vccz {ok}")
    a(f"s_cmp_lt_u32 s{sCNT}, 0x100000")
    a(f"s_cbranch_scc1 {lp}")
    a(f"{ok}:")


sW1O, sW2O = 98, 99


def w_setup():
    a(f"""v_lshrrev_b32 v2, 3, v{vLANE}
v_and_b32 v3, 7, v{vLANE}
v_bfe_u32 v4, v{vLANE}, 4, 1
v_lshlrev_b32 v4, 2, v4
v_xor_b32 v3, v3, v4
v_lshlrev_b32 v3, 4, v3
v_mul_u32_u24 v{vD1}, 3584, v2
v_add_u32 v{vD1}, v{vD1}, v3
v_lshl_add_u32 v{vD2}, v2, 12, v3
v_bfe_u32 v2, v{vLANE}, 2, 2
v_lshrrev_b32 v3, 5, v{vLANE}
v_bfe_u32 v4, v{vLANE}, 4, 1
v_and_b32 v5, 3, v{vLANE}
v_lshlrev_b32 v5, 3, v5
v_lshl_add_u32 v5, v4, 5, v5
v_lshrrev_b32 v4, 1, v2
v_lshl_add_u32 v5, v4, 6, v5
s_lshr_b32 s{sT0}, s{sWAVE}, 1
s_lshl_b32 s{sT0}, s{sT0}, 6
v_xor_b32 v5, s{sT0}, v5
v_lshl_add_u32 v5, v2, 7, v5
s_mul_i32 s{sT1}, s{sWAVE}, 24576
s_add_u32 s{sT1}, s{sT1}, {W2L}
v_add_u32 v5, s{sT1}, v5
v_lshl_add_u32 v{vT1a}, v3, 10, v5
v_xor_b32 v{vT1b}, 64, v{vT1a}
v_lshl_add_u32 v{vT2a}, v3, 9, v5
v_xor_b32 v{vT2b}, 64, v{vT2a}
s_mul_i32 s{sW1O}, s{sWAVE}, {512 * 3584}
s_lshl_b32 s{sT0}, s{sNT}, 7
s_add_u32 s{sW1O}, s{sW1O}, s{sT0}
s_mul_i32 s{sW2O}, s{sWAVE}, {448 * 4096}
s_lshl_b32 s{sT0}, s{sST}, 7
s_add_u32 s{sW2O}, s{sW2O}, s{sT0}
s_mov_b32 s{sWOFF}, s{sT1}""")


def w_dma(n, half):
    slot = n % 12
    g = [Ins(f"s_add_u32 m0, s{sWOFF}, {slot * 2048 + half * 1024}")]
    if n < 32:
        g.append(Ins(f"s_add_u32 s{sW1O}, s{sW1O}, {8 * 3584}") if (n or half) else Ins("s_nop 0"))
        g.append(Ins(f"buffer_load_dwordx4 v{vD1}, {srd(S_W1)}, s{sW1O} offen lds", res_w=[f"slot{slot}"]))
    else:
        g.append(Ins(f"s_add_u32 s{sW2O}, s{sW2O}, {8 * 4096}") if (n > 32 or half) else Ins("s_nop 0"))
        g.append(Ins(f"buffer_load_dwordx4 v{vD2}, {srd(S_W2)}, s{sW2O} offen lds", res_w=[f"slot{slot}"]))
    return g


def w_tr(n):
    slot = n % 12
    g = []
    for nb in range(2):
        for j in range(2):
            if n < 32:
                r = (n * 2 + nb) * 4 + 2 * j
                g.append(Ins(f"ds_read_b64_tr_b16 a[{r}:{r + 1}], v{(vT1a, vT1b)[nb]} offset:{slot * 2048 + j * 512}", res_r=[f"slot{slot}"]))
            else:
                r = 128 + ((n - 32) * 2 + nb) * 4 + 2 * j
                g.append(Ins(f"ds_read_b64_tr_b16 v[{r}:{r + 1}], v{(vT2a, vT2b)[nb]} offset:{slot * 2048 + j * 1024}", res_r=[f"slot{slot}"]))
    return g


def w_all_upfront():
    for n in range(12):
        a.put(w_dma(n, 0)); a.put(w_dma(n, 1))
    for n in range(48):
        a.put(w_tr(n))
        if n >= 1:
            a.put(w_dma(n + 11, 0)); a.put(w_dma(n + 11, 1))
    a.put(w_dma(59, 0)); a.put(w_dma(59, 1))
    a.wait_vm0()
    a.wait_lgkm0()


PR = 56
TAB = 104


def kgen_loads():
    a(f"""s_lshl_b32 s{sT0}, s{sPAIR}, 10
s_lshl_b32 s{sT1}, s{sWAVE}, 8
s_add_u32 s{sT0}, s{sT0}, s{sT1}
v_lshl_add_u32 v3, v{vLANE}, 2, s{sT0}""")
    for k, p in enumerate((P_ARE, P_AIM, P_BRE, P_BIM, P_CRE, P_CIM)):
        a(f"global_load_dword v{PR + k}, v3, {sp(p)}")


def kgen_table_addr():
    l = label("pc")
    a(f"s_getpc_b64 {sp(sTAB)}")
    a(f"{l}:")
    a(f"s_add_u32 s{sTAB}, s{sTAB}, ktab-{l}")
    a(f"s_addc_u32 s{sTAB + 1}, s{sTAB + 1}, 0")


def kgen_table_load():
    kgen_table_addr()
    a(f"s_lshr_b32 s{sT0}, s{sWAVE}, 1\ns_lshl_b32 s{sT0}, s{sT0}, 5\nv_lshl_add_u32 v75, v0, 5, s{sT0}")
    a(f"global_load_dwordx4 {vr(TAB, 4)}, v75, {sp(sTAB)}")
    a(f"global_load_dwordx4 {vr(TAB + 4, 4)}, v75, {sp(sTAB)} offset:16")


def kgen(bg=()):
    F = {e: 2 * e for e in range(1, 8)}
    Qr = {1: 16, 2: 18, 3: 20, 4: 22}
    QN = [24, 26]
    Z1, Z2, C0, C1 = 28, 30, 32, 34
    CN = [36, 38]
    T0, T1 = 62, 64
    CV = [66, 67, 68, 69]
    A2, B2, DT = 70, 71, 72
    ACC = 76
    QF = 88
    PF = 40
    vG, vF = 73, 74
    a(f"""s_mul_i32 s{sT0}, s{sWAVE}, {GST}
v_lshl_add_u32 v{vG}, v{vLANE}, 2, s{sT0}
v_and_b32 v2, 15, v{vLANE}
v_mul_u32_u24 v2, {GROW}, v2
v_lshrrev_b32 v3, 4, v{vLANE}
v_lshl_add_u32 v2, v3, 4, v2
v_add_u32 v{vF}, s{sT0}, v2""")
    a.begin()
    a(f"""s_lshr_b32 s{sT0}, s{sWAVE}, 1
s_lshl_b32 s{sT0}, s{sT0}, 4
s_lshr_b32 s{sT0}, s{sLDT}, s{sT0}
s_lshl_b32 s{sT0}, s{sT0}, 16
v_mov_b32 v2, {f32(math.log2(math.e))}
v_mul_f32 v2, s{sT0}, v2
v_exp_f32 v2, v2
v_cvt_pk_bf16_f32 v2, v2, v2
v_lshlrev_b32 v{DT}, 16, v2
s_and_b32 s{sD1}, s{sD0}, 0xffff0000
s_lshl_b32 s{sD0}, s{sD0}, 16""")
    cvi = [0]

    def row(r, src, neg=False):
        c = CV[cvi[0] % 4]
        cvi[0] += 1
        a(f"v_cvt_pk_bf16_f32 v{c}, v{src}, {'-' if neg else ''}v{src + 1}")
        a(f"ds_write_b32 v{vG}, v{c} offset:{r * GROW}")

    def reads(dst, tile):
        for ks in range(4):
            a(f"ds_read_b128 {vr(dst + 4 * ks, 4)}, v{vF} offset:{tile * 16 * GROW + ks * 64}")

    def mfmas(t, first):
        for ks in range(4):
            c = "0" if (first and ks == 0) else vr(ACC + 4 * t, 4)
            a(f"v_mfma_f32_16x16x32_bf16 {vr(ACC + 4 * t, 4)}, {vr(PF + 4 * ks, 4)}, {vr(QF + 4 * ks, 4)}, {c}")

    def direct(d, scale):
        if scale != 1:
            a(f"v_mul_f32 v{T0}, {f32(scale)}, v{A2}")
            a(f"v_mul_f32 v{T1}, {f32(scale)}, v{B2}")
            x, y = T0, T1
        else:
            x, y = A2, B2
        a(f"v_fract_f32 v{T1}, v{y}")
        a(f"v_exp_f32 v{T0}, v{x}")
        a(f"v_cos_f32 v{d}, v{T1}")
        a(f"v_sin_f32 v{d + 1}, v{T1}")
        a(f"v_pk_mul_f32 {vr(d, 2)}, {vr(d, 2)}, {vr(T0, 2)} op_sel_hi:[1,0]")

    for rd in range(2):
        def up(d, s):
            a(f"v_lshlrev_b32 v{d}, 16, v{s}" if rd == 0 else f"v_and_b32 v{d}, 0xffff0000, v{s}")
        up(A2, PR); up(B2, PR + 1)
        up(QN[0], PR + 2); up(QN[0] + 1, PR + 3)
        up(QN[1], PR + 4); up(QN[1] + 1, PR + 5)
        a(f"v_mul_f32 v{A2}, v{DT}, v{A2}")
        a(f"v_mul_f32 v{B2}, v{DT}, v{B2}")
        a(f"v_pk_mul_f32 {vr(QN[0], 2)}, {vr(QN[0], 2)}, {vr(DT, 2)} op_sel_hi:[1,0]")
        a(f"v_mul_f32 v{A2}, {f32(math.log2(math.e))}, v{A2}")
        a(f"v_mul_f32 v{B2}, {f32(1 / (2 * math.pi))}, v{B2}")
        cmul2((C0, QN[1], QN[0]))
        direct(F[1], 1)
        if rd == 1:
            mfmas(2, True)
        direct(Z1, 128)
        if rd == 1:
            nonce_issue(56)
            a(f"v_and_b32 v62, 31, v{vLANE}")
            poll_issue(0, 60)
            a(f"global_load_dwordx2 v[64:65], v75, {sp(sTAB)} offset:32")
        cmul2((F[2], F[1], F[1]), (Z2, Z1, Z1))
        cmul2((F[4], F[2], F[2]), (F[3], F[2], F[1]))
        cmul2((Qr[1], F[4], F[4]), (C1, C0, Z1))
        a(f"v_mov_b32 v{CV[3]}, 0x3f80")
        a(f"ds_write_b32 v{vG}, v{CV[3]}")
        cmul2((Qr[2], Qr[1], Qr[1]), (F[5], F[4], F[1]))
        row(1, Qr[1], True)
        cmul2((Qr[3], Qr[2], Qr[1]), (Qr[4], Qr[2], Qr[2]))
        row(2, Qr[2], True)
        cmul2((F[6], F[4], F[2]), (F[7], F[4], F[3]))
        row(3, Qr[3], True)
        row(4, Qr[4], True)
        cur = {1: Qr[1], 2: Qr[2], 3: Qr[3], 0: Qr[4]}
        free = list(QN) + [CN[0]]
        j = 5
        while j < 16:
            js = [j] + ([j + 1] if j + 1 < 16 else [])
            ps = []
            for jj in js:
                d = free.pop(0)
                ps.append((d, cur[jj % 4], Qr[4]))
            cmul2(*ps)
            for jj, p in zip(js, ps):
                if cur[jj % 4] != Qr[4]:
                    free.append(cur[jj % 4])
                cur[jj % 4] = p[0]
                row(jj, p[0], True)
            j += 2
        reads(QF, 0)
        TA, TB = QN
        row(16, C0); row(24, C1)
        for e in range(1, 8):
            cmul2((TA, C0, F[e]), (TB, C1, F[e]))
            row(16 + e, TA); row(24 + e, TB)
        reads(PF, 1)
        ca, cb = C0, C1
        na, nb_ = CN
        def adv():
            nonlocal ca, cb, na, nb_
            cmul2((na, ca, Z2), (nb_, cb, Z2))
            ca, cb, na, nb_ = na, nb_, ca, cb
        adv()
        row(32, ca); row(36, cb)
        for e in range(1, 4):
            cmul2((TA, ca, F[2 * e]), (TB, cb, F[2 * e]))
            row(32 + e, TA); row(36 + e, TB)
        mfmas(0, rd == 0)
        for k in range(2):
            adv()
            row(40 + 4 * k, ca); row(42 + 4 * k, cb)
            cmul2((TA, ca, F[4]), (TB, cb, F[4]))
            row(41 + 4 * k, TA); row(43 + 4 * k, TB)
        reads(PF, 2)
        for k in range(4):
            adv()
            row(48 + 2 * k, ca); row(49 + 2 * k, cb)
        cmul2((na, ca, Z2))
        row(56, na)
        mfmas(1, rd == 0)
        reads(PF, 3)
    body = space_ds(a.end(), OPT["lag"], OPT["gap"])
    m, rest = merge(body, list(bg), OPT["st_kg"], OPT["ev_kg"])
    a.put(m)
    for g in rest:
        a.put(g)
    a(f"s_mul_i32 s{sT0}, s{sWAVE}, {GST}")
    a(f"v_add_u32 v40, s{sT0}, v{vL16}") if False else None
    a(f"v_add_u32 v{vF}, s{sT0}, v{vL16}")
    a(f"v_mov_b32 v{CV[0]}, 0")
    for k in range(8):
        a(f"v_and_b32 v{2 + 2 * k}, 0xffff, v{TAB + k}")
        a(f"v_lshrrev_b32 v{3 + 2 * k}, 16, v{TAB + k}")
    for t in range(2):
        a(f"ds_write_b128 v{vF}, {vr(ACC + 4 * t, 4)} offset:{TOFF + t * 1024}")
    mfmas(2, False)
    a(f"ds_write_b32 v{vG}, v{CV[0]} offset:{TOFF + 3072}")
    a("v_and_b32 v18, 0xffff, v64\nv_lshrrev_b32 v19, 16, v64\nv_and_b32 v20, 0xffff, v65")
    a(f"ds_write_b128 v{vF}, {vr(ACC + 8, 4)} offset:{TOFF + 2048}")


def kzero(r):
    a(f"""v_mov_b32 v{r}, 0
v_mov_b32 v{r + 1}, 0
v_mov_b32 v{r + 2}, 0
v_mov_b32 v{r + 3}, 0
v_bfe_u32 v{r + 4}, v{vLANE}, 1, 3
v_mul_u32_u24 v{r + 4}, {KST}, v{r + 4}
v_and_b32 v{r + 5}, 1, v{vLANE}
v_lshl_add_u32 v{r + 4}, v{r + 5}, 4, v{r + 4}
v_lshrrev_b32 v{r + 5}, 5, v{vLANE}
v_mul_u32_u24 v{r + 5}, {UST - 512}, v{r + 5}
v_add_u32 v{r + 5}, v{r + 5}, v{vL16}""")
    return [f"ds_write_b128 v{r + 4}, {vr(r, 4)} offset:4096", f"ds_write_b128 v{r + 5}, {vr(r, 4)} offset:{UB}"]


def kaddr(r):
    a(f"""s_lshr_b32 s{sT0}, s{sWAVE}, 1
s_and_b32 s{sT1}, s{sWAVE}, 1
s_lshl_b32 s{sT1}, s{sT1}, 11
v_lshl_add_u32 v{r + 3}, v{vLANE}, 5, s{sT1}""")
    for c in range(4):
        a(f"s_cmp_lg_u32 s{sT0}, 0")
        a(f"s_cselect_b32 s{sT2}, {KSLOT[1][c]}, {KSLOT[0][c]}")
        a(f"s_mul_i32 s{sT2}, s{sT2}, {KST}")
        a(f"v_add_u32 v{r + c}, s{sT2}, v{r + 3}")


def kexpand(mid):
    AD, VAL = 2, 22
    P0, P1, P2, P3 = 2, 12, 88, 96
    a.barrier()
    for k in range(19):
        a(f"ds_read2st64_b32 {vr(VAL + 2 * k, 2)}, v{AD + k} offset0:{TOFF // 256} offset1:{TOFF // 256 + GST // 256}") if k < 17 else None
    mid()
    for k in range(17, 19):
        a(f"ds_read2st64_b32 {vr(VAL + 2 * k, 2)}, v{AD + k} offset0:{TOFF // 256} offset1:{TOFF // 256 + GST // 256}")
    kaddr(60)
    zw = kzero(104)
    for k in range(19):
        a(f"v_add_f32 v{VAL + 2 * k}, v{VAL + 2 * k}, v{VAL + 2 * k + 1}")
        if k:
            a(f"v_cvt_pk_bf16_f32 v{(P0 if k & 1 else P1) + (k - 1) // 2}, v{VAL + 2 * k - 2}, v{VAL + 2 * k}")
    a.barrier()
    for l in zw:
        a(l)
    for c, P in ((0, P0), (1, P1)):
        a(f"ds_write_b128 v{60 + c}, {vr(P, 4)}")
        a(f"ds_write_b128 v{60 + c}, {vr(P + 4, 4)} offset:16")
    for c, P, src in ((2, P2, P0), (3, P3, P1)):
        for i in range(4):
            a(f"v_pk_mov_b32 {vr(P + 2 * i, 2)}, {vr(src + 2 * i, 2)}, {vr(src + 2 * i + 2, 2)} op_sel:[1,0]")
        a(f"ds_write_b128 v{60 + c}, {vr(P, 4)}")
        a(f"ds_write_b128 v{60 + c}, {vr(P + 4, 4)} offset:16")


def kcopies():
    R, E, M = 2, 12, 22
    kaddr(40)
    a(f"""ds_read_b128 {vr(R, 4)}, v40
ds_read_b128 {vr(R + 4, 4)}, v40 offset:16
ds_read_b64 {vr(R + 8, 2)}, v40 offset:32""")
    for l in kzero(32):
        a(l)
    for i in range(9):
        a(f"v_alignbit_b32 v{E + i}, v{R + i + 1}, v{R + i}, 16")
    a(f"ds_write_b128 v41, {vr(E, 4)}")
    a(f"ds_write_b128 v41, {vr(E + 4, 4)} offset:16")
    for i in range(4):
        a(f"v_pk_mov_b32 {vr(M + 2 * i, 2)}, {vr(R + 2 * i, 2)}, {vr(R + 2 * i + 2, 2)} op_sel:[1,0]")
    a(f"ds_write_b128 v42, {vr(M, 4)}")
    a(f"ds_write_b128 v42, {vr(M + 4, 4)} offset:16")
    for i in range(4):
        a(f"v_pk_mov_b32 {vr(R + 2 * i, 2)}, {vr(E + 2 * i, 2)}, {vr(E + 2 * i + 2, 2)} op_sel:[1,0]")
    a(f"ds_write_b128 v43, {vr(R, 4)}")
    a(f"ds_write_b128 v43, {vr(R + 4, 4)} offset:16")


GX = 80
CS = 64
cvA, cvB, cvZ, cvXW, cvXR, cvO, cvU, cvX, cvH, cvP = 112, 113, 114, 115, 116, 117, 118, 119, 104, 108
STUBS = []


def conv_poll1():
    r = cvP
    a(f"""v_lshrrev_b32 v{r}, 3, v{vLANE}
v_min_u32 v{r}, 6, v{r}
v_and_b32 v{r + 1}, 7, v{vLANE}
v_lshl_add_u32 v{r + 2}, v{r}, 5, v{r + 1}
s_lshl_b32 s{sT0}, s{sWAVE}, 3
v_add_u32 v{r + 2}, s{sT0}, v{r + 2}""")


def conv_loads():
    for p in range(4):
        a(f"buffer_load_dwordx4 {vr(CS + 4 * p, 4)}, v{vL16}, {srd(S_WS)}, s{16 + p} offen sc1")
    a(f"buffer_load_dwordx4 {vr(GX, 4)}, v{cvX}, {srd(S_WS)}, s20 offen sc1")
    a(f"buffer_load_dwordx4 {vr(GX + 4, 4)}, v{cvX}, {srd(S_WS)}, s20 offen offset:16 sc1")


def conv_setup(layer):
    a(f"""s_mov_b32 s{sCA}, {f32(1.0 / 448)}
s_mov_b32 s{sCB}, {f32(1e-5)}
s_lshl_b32 s{sT0}, s{sWAVE}, 10
v_add_u32 v{cvU}, s{sT0}, v{vL16}
s_lshr_b32 s{sT0}, s{sWAVE}, 1
s_and_b32 s{sT1}, s{sWAVE}, 1
v_and_b32 v8, 15, v{vLANE}
v_lshrrev_b32 v9, 4, v{vLANE}
v_not_b32 v10, v8
v_and_b32 v10, 3, v10""")
    for s in range(4):
        a(f"s_cmp_lg_u32 s{sT0}, 0")
        a(f"s_cselect_b32 s{sT2}, {KSLOT[1][s]}, {KSLOT[0][s]}")
        a(f"s_mul_i32 s{sT2}, s{sT2}, {KST}")
        if s == 0:
            a(f"v_mov_b32 v11, s{sT2}")
        else:
            a(f"v_mov_b32 v12, s{sT2}\nv_cmp_eq_u32 vcc, {s}, v10\nv_cndmask_b32 v11, v11, v12, vcc")
    a(f"""v_add_u32 v10, v10, v8
v_lshlrev_b32 v12, 3, v9
v_sub_u32 v12, v12, v10
v_lshl_add_u32 v11, v12, 1, v11
s_lshl_b32 s{sT2}, s{sT1}, 8
s_sub_u32 s{sT2}, {2 * 2031 - 64 * 59}, s{sT2}
v_add_u32 v{cvA}, s{sT2}, v11
s_mul_i32 s{sT2}, s{sT0}, {UST}
s_lshl_b32 s{sT3}, s{sT1}, 8
s_sub_u32 s{sT2}, s{sT2}, s{sT3}
s_add_u32 s{sT2}, s{sT2}, {UB + 2 * (240 - 96)}
v_lshlrev_b32 v12, 5, v8
v_lshl_add_u32 v13, v9, 4, v12
v_add_u32 v{cvB}, s{sT2}, v13
s_lshl_b32 s{sT2}, s{sWAVE}, 11
v_lshl_add_u32 v13, v9, 3, v12
v_add_u32 v{cvZ}, s{sT2}, v13
s_xor_b32 s{sT2}, s{sWAVE}, 1
s_lshl_b32 s{sT2}, s{sT2}, 12
v_add_u32 v{cvXW}, s{sT2}, v{vL16}
s_lshl_b32 s{sT2}, s{sWAVE}, 12
v_add_u32 v{cvXR}, s{sT2}, v{vL16}
v_and_b32 v10, 1, v9
v_lshlrev_b32 v10, 2, v10
v_lshrrev_b32 v11, 2, v8
v_add_u32 v10, v10, v11
s_mov_b32 s{sT2}, {BS}
v_mul_lo_u32 v10, v10, s{sT2}
v_and_b32 v11, 3, v8
v_lshl_add_u32 v10, v11, 5, v10
v_lshrrev_b32 v11, 1, v9
v_lshl_add_u32 v{cvO}, v11, 4, v10
s_mul_i32 s{sT1}, s{sT1}, {16 * BS}
s_lshl_b32 s{sT2}, s{sPAIR}, 1
s_add_u32 s{sT0}, s{sT0}, s{sT2}
s_lshl_b32 s{sT0}, s{sT0}, 7
s_add_u32 s{sT0}, s{sT0}, s{sT1}
s_add_u32 s13, s{sT0}, {X1 if layer == 0 else X3}
s_add_u32 s21, s13, {8 * BS}
s_lshl_b32 s16, s{sWAVE}, 10
s_add_u32 s16, s16, {ST0 if layer == 0 else ST1}
s_add_u32 s17, s16, 4096
s_add_u32 s18, s16, 8192
s_add_u32 s19, s16, 12288
s_mul_i32 s20, s{sWAVE}, {64 * 7168}
s_lshl_b32 s{sT2}, s{sPAIR}, 5
s_add_u32 s20, s20, s{sT2}
s_add_u32 s20, s20, {X0 if layer == 0 else X2}
v_mul_u32_u24 v{cvX}, 7168, v{vLANE}""")


cXF, cUF, cAL, cBE, cUP = 0, 16, 32, 40, 48


def conv_pro(layer):
    XF, UF, AL, BE, UP = cXF, cUF, cAL, cBE, cUP
    for p in range(4):
        S = CS + 4 * p
        a(f"v_pk_mul_f32 {vr(S, 2)}, {vr(S, 2)}, {sp(sCA)} op_sel_hi:[1,0]")
    for p in range(4):
        S = CS + 4 * p
        a(f"v_pk_fma_f32 {vr(BE + 2 * p, 2)}, {vr(S, 2)}, {vr(S, 2)}, {sp(sCB)} op_sel_hi:[1,1,0] neg_lo:[1,0,0] neg_hi:[1,0,0]")
    for p in range(4):
        Q = CS + 4 * p + 2
        a(f"v_pk_fma_f32 {vr(Q, 2)}, {vr(Q, 2)}, {sp(sCA)}, {vr(BE + 2 * p, 2)} op_sel_hi:[1,0,1]")
    for p in range(4):
        Q = CS + 4 * p + 2
        a(f"v_max_f32 v{Q}, s{sCB}, v{Q}\nv_max_f32 v{Q + 1}, s{sCB}, v{Q + 1}")
    for p in range(4):
        Q = CS + 4 * p + 2
        a(f"v_rsq_f32 v{AL + 2 * p}, v{Q}\nv_rsq_f32 v{AL + 2 * p + 1}, v{Q + 1}")
    for k in range(8):
        unpack(XF + 2 * k, XF + 2 * k + 1, GX + k)
    for p in range(4):
        S = CS + 4 * p
        a(f"v_pk_mul_f32 {vr(BE + 2 * p, 2)}, {vr(S, 2)}, {vr(AL + 2 * p, 2)} neg_lo:[1,0] neg_hi:[1,0]")
    for c in range(2):
        for p in range(4):
            a(f"v_pk_fma_f32 {vr(UF + 8 * c + 2 * p, 2)}, {vr(XF + 8 * c + 2 * p, 2)}, {vr(AL + 2 * p, 2)}, {vr(BE + 2 * p, 2)}")
        for p in range(4):
            a(f"v_cvt_pk_bf16_f32 v{UP + 4 * c + p}, v{UF + 8 * c + 2 * p}, v{UF + 8 * c + 2 * p + 1}")
        a(f"ds_write_b128 v{cvU}, {vr(UP + 4 * c, 4)} offset:{UB + c * UST + 512}")


def conv_z():
    XF, UF, ZP = cXF, cUF, 88
    for c in range(2):
        for p in range(4):
            a(f"v_pk_fma_f32 {vr(UF + 8 * c + 2 * p, 2)}, {vr(UF + 8 * c + 2 * p, 2)}, {sp((sD0, sD1)[c])}, {vr(XF + 8 * c + 2 * p, 2)} op_sel_hi:[1,0,1]")
        for p in range(4):
            a(f"v_cvt_pk_bf16_f32 v{ZP + 4 * c + p}, v{UF + 8 * c + 2 * p}, v{UF + 8 * c + 2 * p + 1}")
        a(f"ds_write_b128 v{cvU}, {vr(ZP + 4 * c, 4)} offset:{ZB + c * 4096}")


def conv_main(layer, bg=(), bg_start=0, bg_every=64):
    ACC, BF, AR = 0, 32, 64
    NA = 5
    seq = [(r, q) for r in range(4) for q in range(7, -1, -1)]

    def rdA(i):
        r, q = seq[i]
        d = AR + 4 * (i % NA)
        off = 64 * (59 - (8 * q + r))
        return [Ins(f"ds_read_b64 {vr(d, 2)}, v{cvA} offset:{off}"), Ins(f"ds_read_b64 {vr(d + 2, 2)}, v{cvA} offset:{off + 8}")]

    def rdB(r, p):
        return [Ins(f"ds_read_b128 {vr(BF + 4 * p, 4)}, v{cvB} offset:{512 * p + 64 * (3 - r)}")]

    a.put(rdA(0)); a.put(rdB(0, 0)); a.put(rdA(1)); a.put(rdB(0, 1)); a.put(rdA(2)); a.put(rdB(0, 2)); a.put(rdA(3))
    for p in range(3, 8):
        a.put(rdB(0, p))
    conv_z()
    if OPT["sent"]:
        hint_prep(1 + 4 * layer, sPAIR, cvH)
    a.begin()
    started = set()
    for i, (r, q) in enumerate(seq):
        for p in range(8 - q):
            b = q + p
            c = vr(ACC + 4 * b, 4) if b in started else "0"
            started.add(b)
            a(f"v_mfma_f32_16x16x32_bf16 {vr(ACC + 4 * b, 4)}, {vr(AR + 4 * (i % NA), 4)}, {vr(BF + 4 * p, 4)}, {c}")
            if p == 0 and i + 4 < len(seq):
                a.put(rdA(i + 4))
            if q == 0 and r < 3:
                a.put(rdB(r + 1, p))
    m, rest = merge(a.end(), list(bg), bg_start, bg_every)
    a.put(m)
    stamp(f"conv{layer} loop", 111)
    RR, ZR, ZF = 32, 48, 64
    a.barrier()
    if OPT["sent"]:
        hint_put(cvH)
    for i in range(4):
        a(f"ds_read_b64 {vr(ZR + 2 * i, 2)}, v{cvZ} offset:{ZB + i * 512}")
    l1, l2 = label("cx"), label("cy")
    a(f"s_bitcmp1_b32 s{sWAVE}, 0")
    a(f"s_cbranch_scc1 {l1}")
    for i in range(4):
        a(f"ds_write_b128 v{cvXW}, {vr(ACC + 16 + 4 * i, 4)} offset:{EX + i * 1024}")
    a(f"s_branch {l2}")
    a(f"{l1}:")
    for i in range(4):
        a(f"ds_write_b128 v{cvXW}, {vr(ACC + 4 * i, 4)} offset:{EX + i * 1024}")
    for i in range(8):
        a(f"v_pk_mov_b32 {vr(ACC + 2 * i, 2)}, {vr(ACC + 16 + 2 * i, 2)}, {vr(ACC + 16 + 2 * i, 2)} op_sel:[0,1]")
    a(f"{l2}:")
    for k in range(8):
        unpack(ZF + 2 * k, ZF + 2 * k + 1, ZR + k)
    for k in range(8):
        a(f"v_pk_add_f32 {vr(ACC + 2 * k, 2)}, {vr(ACC + 2 * k, 2)}, {vr(ZF + 2 * k, 2)}")
    a.barrier()
    for i in range(4):
        a(f"ds_read_b128 {vr(RR + 4 * i, 4)}, v{cvXR} offset:{EX + i * 1024}")
    PK = 56
    for i in range(4):
        for k in range(2):
            a(f"v_pk_add_f32 {vr(ACC + 4 * i + 2 * k, 2)}, {vr(ACC + 4 * i + 2 * k, 2)}, {vr(RR + 4 * i + 2 * k, 2)}")
        for k in range(2):
            a(f"v_cvt_pk_bf16_f32 v{PK + 2 * i + k}, v{ACC + 4 * i + 2 * k}, v{ACC + 4 * i + 2 * k + 1}")
        if i & 1:
            b = PK + 2 * (i - 1)
            a(f"v_permlane16_swap_b32 v{b}, v{b + 2}")
            a(f"v_permlane16_swap_b32 v{b + 1}, v{b + 3}")
            a(f"buffer_store_dwordx4 {vr(b, 4)}, v{cvO}, {srd(S_WS)}, s{21 if i == 3 else 13} offen sc1", tag="pub")
    if OPT["sent"]:
        a.barrier()
    else:
        flag_put(1 + 4 * layer, sPAIR, 40, "pub")
    return rest


def reduce32(V, n, W):
    for i in range(n):
        a(f"v_permlane16_swap_b32 v{V[i]}, v{V[n + i]}")
    for i in range(n):
        a(f"v_add_f32 v{V[i]}, v{V[i]}, v{V[n + i]}")
    h = n // 2
    for i in range(h):
        a(f"v_add_f32_dpp v{W[i]}, v{V[i]}, v{V[i]} row_ror:8 row_mask:0xf bank_mask:0x3")
    for i in range(h):
        a(f"v_add_f32_dpp v{W[i]}, v{V[i + h]}, v{V[i + h]} row_ror:8 row_mask:0xf bank_mask:0xc")
    g = h // 2
    for i in range(g):
        a(f"v_add_f32_dpp v{V[i]}, v{W[i]}, v{W[i]} row_half_mirror row_mask:0xf bank_mask:0x5")
    for i in range(g):
        a(f"v_add_f32_dpp v{V[i]}, v{W[i + g]}, v{W[i + g]} row_half_mirror row_mask:0xf bank_mask:0xa")
    for m in ("[1,0,3,2]", "[2,3,0,1]"):
        for i in range(g):
            a(f"v_add_f32_dpp v{V[i]}, v{V[i]}, v{V[i]} quad_perm:{m} row_mask:0xf bank_mask:0xf")
    return V[:g]


def maxchain(t, regs):
    regs = list(regs)
    out = [f"v_max3_u32 v{t}, v{regs[0]}, v{regs[1]}, v{regs[2]}"]
    regs = regs[3:]
    while len(regs) >= 2:
        out.append(f"v_max3_u32 v{t}, v{t}, v{regs[0]}, v{regs[1]}")
        regs = regs[2:]
    if regs:
        out.append(f"v_max_u32 v{t}, v{t}, v{regs[0]}")
    return out


RETRY = 0x10000


def ln(layer, wide):
    X = X1 if layer == 0 else X3
    H = H1 if layer == 0 else H3
    nf = 7 if wide else 4
    sI = sLN0 if wide else sLN
    RAW, XF, S, Q, W = 0, 28, 84, 92, 100
    vX, vXo, vLo, vPW, vPR, r, r2, hr = 108, 109, 110, 111, 112, 114, 100, 104
    if wide:
        a(f"""s_and_b32 s{sT0}, s{sWAVE}, 1
s_mul_i32 s{sT0}, s{sT0}, 112
v_add_u32 v{r + 2}, s{sT0}, v{vLANE}
v_min_u32 v{r2 + 2}, 47, v{vLANE}
s_add_u32 s{sT0}, s{sT0}, 64
v_add_u32 v{r2 + 2}, s{sT0}, v{r2 + 2}""")
    else:
        a(f"""v_lshrrev_b32 v{r}, 4, v{vLANE}
v_lshlrev_b32 v{r}, 2, v{r}
v_add_u32 v{r}, s{sWAVE}, v{r}
v_cmp_gt_u32 vcc, 14, v{r}
v_mov_b32 v{r + 1}, s{sWAVE}
v_cndmask_b32 v{r}, v{r + 1}, v{r}, vcc
v_and_b32 v{r + 1}, 15, v{vLANE}
v_lshl_add_u32 v{r + 2}, v{r}, 4, v{r + 1}""")
    a.wait_tag("flag")
    poll_issue(1 + 4 * layer, r)
    if wide:
        poll_issue(1 + 4 * layer, r2)
    if wide:
        a(f"""s_lshl_b32 s31, s{sI}, 1
s_lshr_b32 s{sT0}, s{sWAVE}, 1
s_add_u32 s31, s31, s{sT0}
s_and_b32 s30, s{sWAVE}, 1
s_mul_i32 s30, s30, 7""")
    else:
        a(f"s_mov_b32 s31, s{sI}\ns_mov_b32 s30, s{sWAVE}")
    a(f"""s_lshr_b32 s{sT0}, s31, 2
s_mul_i32 s{sT0}, s{sT0}, {BS}
s_and_b32 s{sT1}, s31, 3
s_lshl_b32 s{sT1}, s{sT1}, 5
s_add_u32 s{sT0}, s{sT0}, s{sT1}
s_lshl_b32 s{sT1}, s30, 12
s_add_u32 s{sT0}, s{sT0}, s{sT1}
s_add_u32 s16, s{sT0}, {X}
s_lshl_b32 s{sT2}, s31, 11
s_add_u32 s{sT2}, s{sT2}, {H}""")
    step = 1 if wide else 4
    for i in range(nf):
        if i:
            a(f"s_add_u32 s{16 + i}, s16, {i * step * 4096}")
        a(f"""s_add_u32 s{sT0}, s30, {i * step}
s_lshr_b32 s{sT1}, s{sT0}, 1
s_lshl_b32 s{sT1}, s{sT1}, 18
s_and_b32 s{sT0}, s{sT0}, 1
s_lshl_b32 s{sT0}, s{sT0}, 10
s_add_u32 s{sT0}, s{sT0}, s{sT1}
s_add_u32 s{23 + i}, s{sT0}, s{sT2}""")
    a(f"""v_and_b32 v{vX}, 31, v{vLANE}
v_lshlrev_b32 v{vX}, 7, v{vX}
v_lshrrev_b32 v1, 5, v{vLANE}
v_lshl_add_u32 v{vX}, v1, 4, v{vX}
v_bfe_u32 v{vPW}, v{vLANE}, 4, 1
v_lshlrev_b32 v{vPW}, 6, v{vPW}
v_lshl_add_u32 v{vPW}, v1, 5, v{vPW}
v_bfe_u32 v{vPR}, v{vLANE}, 2, 2
v_lshl_add_u32 v{vPW}, v{vPR}, 3, v{vPW}
s_lshl_b32 s{sT1}, s{sWAVE}, 7
v_add_u32 v{vPW}, s{sT1}, v{vPW}
v_and_b32 v{vPR}, 7, v{vLANE}
v_lshlrev_b32 v{vPR}, 2, v{vPR}
v_lshl_add_u32 v{vPR}, v1, 5, v{vPR}""")
    if wide:
        a(f"s_and_b32 s{sT1}, s{sWAVE}, 2\ns_lshl_b32 s{sT1}, s{sT1}, 7\ns_add_u32 s{sT1}, s{sT1}, {LNP}\nv_add_u32 v{vPR}, s{sT1}, v{vPR}")
    else:
        a(f"""v_add_u32 v{vPR}, {LNP}, v{vPR}
s_cmp_lt_u32 s{sWAVE}, 2
s_cselect_b32 s13, 0, {OOB}
v_add_u32 v{vXo}, s13, v{vX}
v_add_u32 v{vLo}, s13, v{vL16}""")
    prod = f"s_lshl_b32 s{sT0}, s{sI}, 6"
    if OPT["sent"]:
        hint_prep(2 + 4 * layer, prod, hr)
    poll_take(r)
    if wide:
        poll_take(r2)
    stamp(f"ln{layer} go")

    def loads():
        return [f"buffer_load_dwordx4 {vr(RAW + 4 * i, 4)}, v{vXo if (i == 3 and not wide) else vX}, {srd(S_WS)}, s{16 + i} offen sc1" for i in range(nf)]
    for l in loads():
        a(l)
    if OPT["sent"]:
        back, stub = label("lnb"), label("lns")
        chk = maxchain(113, range(RAW, RAW + 4 * nf)) + ["v_cmp_eq_u32 vcc, -1, v113"]
        a(f"s_mov_b32 s{sCNT}, 0")
        for l in chk:
            a(l)
        a(f"s_cbranch_vccnz {stub}")
        a(f"{back}:")
        STUBS.extend([f"{stub}:"] + loads() + ["s_waitcnt vmcnt(0)"] + chk + [f"s_add_u32 s{sCNT}, s{sCNT}, 1", f"s_cbranch_vccz {back}",
                      f"s_cmp_lt_u32 s{sCNT}, {RETRY}", f"s_cbranch_scc1 {stub}", f"s_branch {back}"])
    for i in range(nf):
        for k in range(4):
            unpack(XF + 8 * i + 2 * k, XF + 8 * i + 2 * k + 1, RAW + 4 * i + k)
        for k in range(4):
            x = vr(XF + 8 * i + 2 * k, 2)
            if i == 0:
                a(f"v_pk_mul_f32 {vr(Q + 2 * k, 2)}, {x}, {x}")
            else:
                a(f"v_pk_fma_f32 {vr(Q + 2 * k, 2)}, {x}, {x}, {vr(Q + 2 * k, 2)}")
                a(f"v_pk_add_f32 {vr(S + 2 * k, 2)}, {vr(XF + 2 * k, 2) if i == 1 else vr(S + 2 * k, 2)}, {x}")
    res = reduce32(list(range(S, S + 16)), 8, list(range(W, W + 4)))
    assert res == [S, S + 1]
    a(f"ds_write_b64 v{vPW}, {vr(S, 2)} offset:{LNP}")
    a.barrier()
    if OPT["sent"]:
        hint_put(hr)
    T = 0
    for w in range(2 if wide else 4):
        a(f"ds_read2_b32 {vr(T + 2 * w, 2)}, v{vPR} offset0:{w * 32} offset1:{w * 32 + 16}")
    a(f"v_pk_add_f32 {vr(T, 2)}, {vr(T, 2)}, {vr(T + 2, 2)}")
    if not wide:
        a(f"v_pk_add_f32 {vr(T + 4, 2)}, {vr(T + 4, 2)}, {vr(T + 6, 2)}")
        a(f"v_pk_add_f32 {vr(T, 2)}, {vr(T, 2)}, {vr(T + 4, 2)}")
    a(f"""v_mul_f32 v{T}, {f32(1 / 448)}, v{T}
v_mul_f32 v{T + 1}, {f32(1 / 448)}, v{T + 1}
v_fma_f32 v{T + 1}, -v{T}, v{T}, v{T + 1}
v_max_f32 v{T + 1}, 0, v{T + 1}
v_add_f32 v{T + 2}, {f32(1e-5)}, v{T + 1}
v_fmamk_f32 v{T + 2}, v{T + 2}, {f32(1e-5)}, v{T + 1}
v_rsq_f32 v{T + 2}, v{T + 2}
v_mul_f32 v{T + 3}, -v{T}, v{T + 2}""")
    AL, BE = S, Q
    for e in range(8):
        a(f"v_mov_b32_dpp v{AL + e}, v{T + 2} row_newbcast:{e} row_mask:0xf bank_mask:0xf")
    for e in range(8):
        a(f"v_mov_b32_dpp v{BE + e}, v{T + 3} row_newbcast:{e} row_mask:0xf bank_mask:0xf")
    for i in range(nf):
        for k in range(4):
            x = vr(XF + 8 * i + 2 * k, 2)
            a(f"v_pk_fma_f32 {x}, {x}, {vr(AL + 2 * k, 2)}, {vr(BE + 2 * k, 2)}")
        for k in range(4):
            a(f"v_cvt_pk_bf16_f32 v{RAW + 4 * i + k}, v{XF + 8 * i + 2 * k}, v{XF + 8 * i + 2 * k + 1}")
        a(f"buffer_store_dwordx4 {vr(RAW + 4 * i, 4)}, v{vLo if (i == 3 and not wide) else vL16}, {srd(S_WS)}, s{23 + i} offen sc1", tag="pub")
    if not OPT["sent"]:
        flag_put(2 + 4 * layer, prod, 114, "pub")


def gemm_addr():
    a(f"""s_and_b32 s{sT0}, s{sWAVE}, 1
s_lshl_b32 s{sT0}, s{sT0}, 10
v_add_u32 v{vA0}, s{sT0}, v{vL16}
v_xor_b32 v{vA1}, 0x400, v{vA0}""")


vCHK = 121


def gemm_loop(nks, ring, nring, wreg, swap, lds_from=99):
    WF = 104
    nfr = 2 * nks
    sent = OPT["sent"]

    def load(f):
        ks, db = f // 2, f % 2
        g = []
        if db == 0 and ks and ks % 2 == 0:
            g.append(Ins("s_add_u32 s13, s13, 4096"))
        d = ring + 4 * (f % nring)
        g.append(Ins(f"buffer_load_dwordx4 {vr(d, 4)}, v{(vA0, vA1)[db]}, {srd(S_WS)}, s13 offen offset:{(ks % 2) * 2048} sc1"))
        return g

    def wread(ks):
        g = []
        slot = ks - lds_from
        for nb in range(2):
            for j in range(2):
                d = WF + 8 * (ks % 2) + 4 * nb + 2 * j
                g.append(Ins(f"ds_read_b64_tr_b16 {vr(d, 2)}, v{(vT2a, vT2b)[nb]} offset:{slot * 2048 + j * 1024}", res_r=[f"slot{slot}"]))
        return g

    def check(ks):
        regs = [ring + 4 * ((2 * ks + db) % nring) + k for db in range(2) for k in range(4)]
        chk = maxchain(vCHK, regs) + [f"v_cmp_eq_u32 vcc, -1, v{vCHK}"]
        back, stub = label("gb"), label("gs")
        STUBS.extend([f"{stub}:", f"s_add_u32 s3, s22, {ks * 2048}"] +
                     [f"buffer_load_dwordx4 {vr(ring + 4 * ((2 * ks + db) % nring), 4)}, v{(vA0, vA1)[db]}, {srd(S_WS)}, s3 offen sc1" for db in range(2)] +
                     ["s_waitcnt vmcnt(0)"] + chk + [f"s_add_u32 s{sCNT}, s{sCNT}, 1", f"s_cbranch_vccz {back}",
                                                     f"s_cmp_lt_u32 s{sCNT}, {RETRY}", f"s_cbranch_scc1 {stub}", f"s_branch {back}"])
        return [Ins(x) for x in chk], [Ins(f"s_cbranch_vccnz {stub}"), Ins(f"{back}:")]

    if sent:
        a(f"s_mov_b32 s22, s13\ns_mov_b32 s{sCNT}, 0")
    for f in range(min(nring, nfr)):
        a.put(load(f))
    nxt = nring
    if sent:
        c, b = check(0)
        a.put(c); a.put(b)
    for ks in range(nks):
        pend = wread(ks + 1) if lds_from <= ks + 1 < nks else []
        c, b = check(ks + 1) if (sent and ks + 1 < nks) else ([], [])
        for nb in range(2):
            for db in range(2):
                acc = vr(16 * (2 * nb + db), 16)
                cc = acc if (ks or (nb | db) == 0) else "0"
                w = wreg(ks, nb) if ks < lds_from else vr(WF + 8 * (ks % 2) + 4 * nb, 4)
                x = vr(ring + 4 * ((2 * ks + db) % nring), 4)
                a(f"v_mfma_f32_32x32x16_bf16 {acc}, {x if swap else w}, {w if swap else x}, {cc}")
                if pend:
                    a.put([pend.pop(0)])
                if nb == 1 and nxt < nfr:
                    a.put(load(nxt))
                    nxt += 1
                if nb == 1 and db == 0:
                    a.put(c)
                if nb == 1 and db == 1:
                    a.put(b)


def gemm_reduce_prep():
    for rel in (1, 2, 3):
        a(f"s_xor_b32 s{23 + rel}, s{sWAVE}, {rel}\ns_mul_i32 s{23 + rel}, s{23 + rel}, 12288")
    a(f"s_mul_i32 s23, s{sWAVE}, 12288")


def gemm_reduce(at_barrier=None):
    for rel in range(4):
        a(f"v_add_u32 v{64 + rel}, s{23 + rel}, v{vL16}")
    for rel in (1, 2, 3):
        for q in range(4):
            a(f"ds_write_b128 v{64 + rel}, {vr(16 * rel + 4 * q, 4)} offset:{RB + (rel - 1) * 4096 + q * 1024}")
    if at_barrier:
        at_barrier[0]()
    a.barrier()
    if at_barrier:
        at_barrier[1]()
    for q in range(4):
        for k in range(3):
            a(f"ds_read_b128 {vr(16 + 16 * k + 4 * q, 4)}, v64 offset:{RB + k * 4096 + q * 1024}")
    for q in range(4):
        for h in range(2):
            r = 4 * q + 2 * h
            a(f"v_pk_add_f32 {vr(16 + r, 2)}, {vr(16 + r, 2)}, {vr(32 + r, 2)}")
            a(f"v_pk_add_f32 {vr(r, 2)}, {vr(r, 2)}, {vr(48 + r, 2)}")
        for h in range(2):
            r = 4 * q + 2 * h
            a(f"v_pk_add_f32 {vr(r, 2)}, {vr(r, 2)}, {vr(16 + r, 2)}")


def gemm1(layer, wide, pre=None, bg=()):
    H = H1 if layer == 0 else H3
    G = G1 if layer == 0 else G3
    gemm_addr()
    a(f"""s_lshr_b32 s{sT0}, s{sWAVE}, 1
s_lshl_b32 s{sT0}, s{sT0}, 6
s_lshl_b32 s{sT1}, s{sNT}, 7
s_add_u32 s{sT0}, s{sT0}, s{sT1}
v_lshrrev_b32 v16, 5, v{vLANE}
v_lshl_add_u32 v16, v16, 3, s{sT0}""")
    for q in range(4):
        a(f"global_load_dwordx2 {vr(20 + 2 * q, 2)}, v16, {sp(P_B1)} offset:{16 * q}")
    r = 32
    a(f"""s_lshl_b32 s{sT0}, s{sWAVE}, 5
v_and_b32 v{r + 2}, 31, v{vLANE}
v_add_u32 v{r + 2}, s{sT0}, v{r + 2}
s_lshl_b32 s13, s{sDT1}, 7
s_add_u32 s13, s13, s{sT0}
s_lshl_b32 s13, s13, 11
s_add_u32 s13, s13, {H}""")
    if wide:
        a(f"v_lshrrev_b32 v{r + 2}, 1, v{r + 2}")
    c0 = -2 * math.log2(math.e) * math.sqrt(2 / math.pi)
    a(f"""s_mov_b32 s{sCA}, {f32(c0 * 0.044715)}
s_mul_i32 s21, s{sDT1}, 112
s_lshl_b32 s{sT0}, s{sNT}, 2
s_add_u32 s21, s21, s{sT0}
s_and_b32 s{sT0}, s{sWAVE}, 2
s_add_u32 s21, s21, s{sT0}
s_lshl_b32 s21, s21, 11
s_add_u32 s21, s21, {G}""")
    gemm_reduce_prep()
    if pre:
        pre()
    for k in range(8):
        unpack(2 * k, 2 * k + 1, 20 + k)
    a.wait_tag("flag")
    poll_issue(2 + 4 * layer, r)
    poll_take(r)
    stamp(f"g1_{layer} go", 63)
    gemm_loop(32, 64, 14, lambda ks, nb: f"a[{(ks * 2 + nb) * 4}:{(ks * 2 + nb) * 4 + 3}]", False)
    stamp(f"g1_{layer} loop", 100)
    prod = f"s_mul_i32 s{sT0}, s{sDT1}, 28\ns_add_u32 s{sT0}, s{sT0}, s{sNT}\ns_lshl_b32 s{sT0}, s{sT0}, 6"
    a.begin()
    gemm_reduce((lambda: hint_prep(3 + 4 * layer, prod, 72), lambda: hint_put(72)) if OPT["sent"] else None)
    a(f"v_mov_b32 v48, {f32(c0)}")
    for half in range(2):
        rs = range(8 * half, 8 * half + 8, 2)
        for r in rs:
            a(f"v_pk_mul_f32 {vr(16 + r, 2)}, {vr(r, 2)}, {vr(r, 2)}")
        for r in rs:
            a(f"v_pk_fma_f32 {vr(16 + r, 2)}, {vr(16 + r, 2)}, {sp(sCA)}, {vr(48, 2)} op_sel_hi:[1,0,0]")
        for r in rs:
            a(f"v_pk_mul_f32 {vr(16 + r, 2)}, {vr(16 + r, 2)}, {vr(r, 2)}")
        for r in rs:
            a(f"v_exp_f32 v{16 + r}, v{16 + r}\nv_exp_f32 v{17 + r}, v{17 + r}")
        for r in rs:
            a(f"v_pk_add_f32 {vr(16 + r, 2)}, {vr(16 + r, 2)}, 1.0 op_sel_hi:[1,0]")
        for r in rs:
            a(f"v_rcp_f32 v{16 + r}, v{16 + r}\nv_rcp_f32 v{17 + r}, v{17 + r}")
        for r in rs:
            a(f"v_pk_mul_f32 {vr(r, 2)}, {vr(r, 2)}, {vr(16 + r, 2)}")
        for r in rs:
            a(f"v_cvt_pk_bf16_f32 v{32 + r // 2}, v{r}, v{r + 1}")
        a(f"buffer_store_dwordx4 {vr(32 + 4 * half, 4)}, v{vA0}, {srd(S_WS)}, s21 offen offset:{2048 * half} sc1", tag="pub")
    m, rest = merge(a.end(), list(bg), 0, OPT["ev_g1"])
    a.put(m)
    if OPT["sent"]:
        a.barrier()
    else:
        flag_put(3 + 4 * layer, prod, 40, "pub")
    for g in rest:
        a.put(g)


def gemm2(layer):
    G = G1 if layer == 0 else G3
    gemm_addr()
    a(f"""s_lshr_b32 s{sT0}, s{sWAVE}, 1
s_lshl_b32 s{sT0}, s{sT0}, 5
s_lshl_b32 s{sT1}, s{sST}, 6
s_add_u32 s50, s{sT0}, s{sT1}
s_and_b32 s{sT1}, s{sWAVE}, 1
s_lshl_b32 s{sT1}, s{sT1}, 5
s_lshl_b32 s{sT2}, s{sDT2}, 6
s_add_u32 s51, s{sT1}, s{sT2}
s_mul_i32 s{sT2}, s{sST}, {BS}
s_lshl_b32 s{sT1}, s51, 7
s_add_u32 s{sT2}, s{sT2}, s{sT1}
s_lshl_b32 s{sT0}, s{sT0}, 1
s_add_u32 s30, s{sT2}, s{sT0}
s_add_u32 s30, s30, {X1 if layer == 0 else X3}
v_and_b32 v16, 31, v{vLANE}
v_lshrrev_b32 v17, 5, v{vLANE}
s_lshl_b32 s{sT0}, s50, 1""")
    r = 42

    def residual_issue():
        if layer == 0:
            for q in range(4):
                a(f"buffer_load_dwordx2 {vr(20 + 2 * q, 2)}, v18, {srd(S_WS)}, s30 offen offset:{16 * q} sc1")
        else:
            a(f"s_mov_b32 m0, s31")
            a(f"s_add_u32 s29, s30, 2048")
            a(f"buffer_load_dwordx4 v18, {srd(S_WS)}, s30 offen sc1 lds", res_w=["x3"])
            a(f"s_add_u32 m0, m0, 1024\ns_nop 0")
            a(f"buffer_load_dwordx4 v18, {srd(S_WS)}, s29 offen sc1 lds", res_w=["x3"])

    def residual_use():
        if layer == 0:
            for k in range(8):
                unpack(2 * k, 2 * k + 1, 20 + k)
            for k in range(8):
                unpack(40, 41, 28 + k)
                a(f"v_pk_add_f32 {vr(2 * k, 2)}, {vr(2 * k, 2)}, v[40:41]")
        else:
            for q in range(4):
                a(f"ds_read_b64_tr_b16 {vr(20 + 2 * q, 2)}, v31 offset:{512 * q}", res_r=["x3"])
            a("v_lshlrev_b32 v40, 16, v29")
            for k in range(8):
                unpack(2 * k, 2 * k + 1, 20 + k)
                a(f"v_pk_add_f32 {vr(2 * k, 2)}, {vr(2 * k, 2)}, v[40:41] op_sel_hi:[1,0]")

    if layer == 0:
        a(f"v_lshlrev_b32 v18, 7, v16\nv_lshl_add_u32 v18, v17, 3, v18\nv_lshl_add_u32 v19, v17, 3, s{sT0}")
        for q in range(4):
            a(f"global_load_dwordx2 {vr(28 + 2 * q, 2)}, v19, {sp(P_B2)} offset:{16 * q}")
    else:
        a(f"""v_lshrrev_b32 v18, 2, v{vLANE}
v_lshlrev_b32 v18, 7, v18
v_and_b32 v19, 3, v{vLANE}
v_lshl_add_u32 v18, v19, 4, v18
s_lshl_b32 s31, s{sWAVE}, 11
v_lshl_add_u32 v28, v16, 1, s{sT0}
global_load_ushort v29, v28, {sp(P_B2)}
v_bfe_u32 v31, v{vLANE}, 2, 2
v_lshl_add_u32 v31, v17, 2, v31
v_lshlrev_b32 v31, 6, v31
v_bfe_u32 v30, v{vLANE}, 4, 1
v_lshl_add_u32 v31, v30, 5, v31
v_lshl_add_u32 v31, v19, 3, v31
v_add_u32 v31, s31, v31""")
    a(f"""s_mul_i32 s{sT0}, s{sDT2}, 28
s_mul_i32 s{sT1}, s{sWAVE}, 7
s_add_u32 s{sT0}, s{sT0}, s{sT1}
v_min_u32 v{r + 2}, 6, v{vLANE}
v_add_u32 v{r + 2}, s{sT0}, v{r + 2}
s_lshl_b32 s13, s{sT0}, 13
s_add_u32 s13, s13, {G}""")
    if layer == 0:
        a(f"""s_lshr_b32 s{sT0}, s50, 3
s_mul_i32 s{sT0}, s{sT0}, 7168
s_lshl_b32 s{sT1}, s51, 4
s_add_u32 s{sT0}, s{sT0}, s{sT1}
s_add_u32 s21, s{sT0}, {X2}
s_add_u32 s20, s21, {2 * 7168}
s_lshl_b32 s19, s50, 1
s_add_u32 s19, s19, {ST1}""")
    else:
        a(f"s_mul_i32 s{sT0}, s50, 896\ns_lshl_b32 s{sT1}, s51, 1\ns_add_u32 s21, s{sT0}, s{sT1}")
    gemm_reduce_prep()
    lskip, ljoin = label("res"), label("resj")
    a(f"s_cmp_eq_u32 s{sR1}, 0")
    a(f"s_cbranch_scc1 {lskip}")
    residual_issue()
    residual_use()
    a.wait_tag("flag")
    poll_issue(3 + 4 * layer, r)
    poll_take(r)
    a(f"s_branch {ljoin}")
    a(f"{lskip}:")
    poll_issue(3 + 4 * layer, r)
    poll_take(r)
    residual_issue()
    residual_use()
    a(f"{ljoin}:")
    stamp(f"g2_{layer} go", 63)
    gemm_loop(28, 64, 10, lambda ks, nb: vr(128 + (ks * 2 + nb) * 4, 4), layer == 1, lds_from=16)
    stamp(f"g2_{layer} loop", 100)

    def addr():
        a(f"v_and_b32 v68, 31, v{vLANE}\nv_lshrrev_b32 v69, 5, v{vLANE}")
        if layer == 0:
            a(f"""v_mul_u32_u24 v70, 7168, v69
v_lshl_add_u32 v70, v68, 4, v70
v_bfe_u32 v71, v{vLANE}, 2, 2
v_lshlrev_b32 v71, 4, v71
v_bfe_u32 v68, v{vLANE}, 4, 1
v_lshl_add_u32 v71, v68, 3, v71
v_and_b32 v68, 1, v{vLANE}
v_lshl_add_u32 v71, v68, 2, v71
v_bfe_u32 v68, v{vLANE}, 1, 1
v_lshl_add_u32 v68, v69, 1, v68
v_lshl_add_u32 v71, v68, 12, v71""")
        else:
            a(f"v_mul_u32_u24 v70, 896, v68\nv_lshl_add_u32 v70, v69, 4, v70")
    gemm_reduce((addr, lambda: None))
    PK = 72
    for half in range(2):
        b = PK + 4 * half
        for k in range(4):
            a(f"v_cvt_pk_bf16_f32 v{b + k}, v{8 * half + 2 * k}, v{8 * half + 2 * k + 1}")
        a(f"v_permlane32_swap_b32 v{b}, v{b + 2}")
        a(f"v_permlane32_swap_b32 v{b + 1}, v{b + 3}")
        if layer == 0:
            a(f"buffer_store_dwordx4 {vr(b, 4)}, v70, {srd(S_WS)}, s{20 if half else 21} offen sc1", tag="pub")
        else:
            a(f"buffer_store_dwordx4 {vr(b, 4)}, v70, {srd(S_OUT)}, s21 offen offset:{32 * half}")
    if layer == 1:
        return
    for k in range(8):
        a(f"v_pk_mul_f32 {vr(20 + 2 * k, 2)}, {vr(2 * k, 2)}, {vr(2 * k, 2)}")
    res = reduce32(list(range(16)) + list(range(20, 36)), 16, list(range(40, 48)))
    assert res == [0, 1, 2, 3]
    a(f"""v_cndmask_b32 v0, v0, v1, {sp(sM1)}
v_cndmask_b32 v2, v2, v3, {sp(sM1)}
v_cndmask_b32 v0, v0, v2, {sp(sM2)}""")
    a(f"buffer_atomic_add_f32 v0, v71, {srd(S_WS)}, s19 offen sc1", tag="pub")
    flag_put(4, f"s_lshl_b32 s{sT0}, s{sDT2}, 5\ns_add_u32 s{sT0}, s{sT0}, s{sST}\ns_lshl_b32 s{sT0}, s{sT0}, 6", 40, "pub")


def skip_unless(role):
    l = label("skip")
    a(f"s_cmp_eq_u32 s{role}, 0")
    a(f"s_cbranch_scc1 {l}")
    return l


def dmas(n0, n1):
    return [w_dma(n, h) for n in range(n0, n1) for h in range(2)]


def tr_dma(n0, n1):
    g = []
    for n in range(n0, n1):
        g.append(w_tr(n))
        if n > n0:
            g += dmas(n + 11, n + 12)
    g += dmas(n1 + 11, n1 + 12)
    return g


def build():
    prologue()
    laux, ljoin = label("aux"), label("join")
    a(f"s_cmp_eq_u32 s{sRC}, 0")
    a(f"s_cbranch_scc1 {laux}")
    kgen_loads()
    kgen_table_load()
    nonce_publish()
    code_warm(1)
    w_setup()
    conv_setup(0)
    stamp("start", 2)
    kgen(dmas(0, 12))
    dump_lds(1)
    stamp("kgen", 21)

    def mid():
        nonce_take(56)
        poll_take(60)
        conv_loads()
    kexpand(mid)
    stamp("expand")
    nonce_retire()
    conv_pro(0)
    a.barrier()
    dump_lds(2)
    stamp("conv0 go", 111)
    rest = conv_main(0, tr_dma(0, 12), OPT["st_conv"], OPT["ev_conv"])
    for g in rest:
        a.put(g)
    stamp("conv0 done")
    a(f"s_branch {ljoin}")
    a(f"{laux}:")
    aux_path()
    a(f"{ljoin}:")
    for layer in range(2):
        if layer == 1:
            l = skip_unless(sRC)
            kcopies()
            conv_setup(1)
            conv_poll1()
            a.wait_tag("flag")
            poll_issue(4, cvP)
            poll_take(cvP)
            stamp("conv1 poll")
            conv_loads()
            conv_pro(1)
            a.barrier()
            dump_lds(3)
            stamp("conv1 go", 111)
            conv_main(1)
            stamp("conv1 done")
            a(f"{l}:")
        l = skip_unless(sRL0 if layer == 0 else sRL)
        ln(layer, layer == 0)
        stamp(f"ln{layer} done")
        a(f"{l}:")
        if layer == 0:
            for g in tr_dma(12, 36):
                a.put(g)
            if OPT["sent"]:
                a(f"v_and_b32 v38, 31, v{vLANE}")
                poll_issue(8, 36)
                poll_take(36)
            lelse, lj = label("ng1"), label("g1j")
            a(f"s_cmp_eq_u32 s{sR1}, 0")
            a(f"s_cbranch_scc1 {lelse}")
            gemm1(0, True, lambda: [a.put(w_tr(n)) for n in range(36, 48)], dmas(48, 60))
            stamp("g1_0 done")
            a(f"s_branch {lj}")
            a(f"{lelse}:")
            for g in tr_dma(36, 48):
                a.put(g)
            a(f"{lj}:")
        else:
            l = skip_unless(sR1)
            gemm1(1, False)
            stamp("g1_1 done")
            a(f"{l}:")
        l = skip_unless(sR2)
        gemm2(layer)
        if layer == 0 and OPT["sent"]:
            lj = label("g2j")
            a(f"s_branch {lj}")
            a(f"{l}:")
            a(f"s_lshr_b32 s16, s{sX}, 1\ns_lshl_b32 s16, s16, 3\ns_add_u32 s16, s16, s{sJ}")
            fill(X3, FILL3, 72, 16)
            flag_put(9, 16, 8, "st0")
            a(f"{lj}:")
            a(f"v_and_b32 v38, 31, v{vLANE}")
            poll_issue(9, 36)
            poll_take(36)
        else:
            a(f"{l}:")
        stamp("g2_0 done" if layer == 0 else "end")
    if OPT["stamps"] and OPT["dbgwg"] < 0:
        l = label("ls")
        a(f"s_cmp_lg_u32 s{sWAVE}, 0\ns_cbranch_scc1 {l}\ns_waitcnt vmcnt(0)\ns_memrealtime {sp(sSTAMP)}\ns_waitcnt lgkmcnt(0)")
        a(f"s_lshl_b32 s3, s2, 8\ns_add_u32 s3, s3, {STAMPS + 248}\nv_mov_b32 v0, s101\nv_mov_b32 v1, s{sSTAMP}\ns_mov_b64 exec, 1")
        a(f"buffer_store_dwordx2 v[0:1], off, {srd(S_WS)}, s3")
        a(f"{l}:")
    if OPT["fixdur"]:
        a(f"s_waitcnt vmcnt(0) lgkmcnt(0)\nL_fix:\ns_memrealtime s[28:29]\ns_waitcnt lgkmcnt(0)\ns_sub_u32 s28, s28, s101\ns_cmp_lt_u32 s28, {OPT['fixdur']}\ns_cbranch_scc1 L_fix")
    a("s_endpgm")


def bf16_round_int(l):
    b = struct.unpack("<I", struct.pack("<f", float(l)))[0]
    b = (b + 0x7FFF + ((b >> 16) & 1)) & 0xFFFF0000
    return int(struct.unpack("<f", struct.pack("<I", b))[0])


def ktab():
    vals = []
    for c in range(2):
        for x in range(2048):
            lr = bf16_round_int(2047 - x)
            aa, rem = lr >> 7, lr & 127
            j, e = rem >> 3, rem & 7
            if aa < 2:
                rho = 8 * aa + e
            elif aa < 4:
                rho = 4 * aa + 8 + (e >> 1)
            elif aa < 8:
                rho = 16 + 2 * aa + (e >> 2)
            else:
                rho = 24 + aa
            vals.append((rho >> 2) * 256 + j * 16 + (rho & 3) * 4 + c * 2 * GST)
        vals += [3072 + c * 2 * GST] * 16
    lines = []
    for i in range(0, len(vals), 16):
        lines.append("    .short " + ", ".join(str(v) for v in vals[i:i + 16]))
    return "\n".join(lines)


def main(path):
    build()
    ins = a.finish()
    ref = open(f"cdna_kernels/{NAME}.s.ref").read().split("\n")
    head = [l for l in ref if l.startswith(";") and "@launch" not in l and not l.startswith("; Override") and not l.startswith("; grid=ceil")]
    k = NAME + "_kernel"
    s = "\n".join(head) + f"\n; @launch grid=(256,1,1) block=(256,1,1) lds={LDS_BYTES}\n"
    s += f""".amdgcn_target "amdgcn-amd-amdhsa--gfx950"
.text
.globl {k}
.p2align 8
.type {k},@function
{k}:
L_entry:
"""
    s += Prog.render(ins)
    s += "".join((l if l.endswith(":") else "    " + l) + "\n" for l in STUBS)
    s += f""".p2align 6
.type ktab,@object
ktab:
{ktab()}
.size ktab, 8256
.section .rodata,"a"
.p2align 6
.amdhsa_kernel {k}
  .amdhsa_next_free_vgpr 512
  .amdhsa_next_free_sgpr 102
  .amdhsa_accum_offset 256
  .amdhsa_group_segment_fixed_size 0
  .amdhsa_kernarg_size 136
  .amdhsa_user_sgpr_count 2
  .amdhsa_user_sgpr_kernarg_segment_ptr 1
  .amdhsa_system_sgpr_workgroup_id_x 1
  .amdhsa_float_denorm_mode_32 3
.end_amdhsa_kernel
"""
    open(path, "w").write(s)
    n = sum(1 for i in ins if i.kind not in ("label", "comment"))
    open(path + ".names", "w").write("\n".join(STAMP_NAMES))
    print("instructions:", n, "nops:", sum(1 for i in ins if i.kind == "nop"), "waits:", sum(1 for i in ins if i.kind == "wait"))


if __name__ == "__main__":
    path = sys.argv[1]
    for kv in sys.argv[2:]:
        k, v = kv.split("=")
        OPT[k] = int(v)
    main(path)
```

```python
import re

TRANS = ("v_exp_f32", "v_log_f32", "v_rcp_f32", "v_rsq_f32", "v_sqrt_f32", "v_sin_f32", "v_cos_f32")


def split_ops(s):
    out, depth, cur = [], 0, ""
    for ch in s:
        if ch == "[":
            depth += 1
        elif ch == "]":
            depth -= 1
        if ch == "," and depth == 0:
            out.append(cur.strip())
            cur = ""
        else:
            cur += ch
    if cur.strip():
        out.append(cur.strip())
    return out


def regs_of(tok):
    tok = tok.strip()
    tok = tok.lstrip("-")
    if tok.startswith("abs(") and tok.endswith(")"):
        tok = tok[4:-1]
    if tok.startswith("|") and tok.endswith("|"):
        tok = tok[1:-1]
    m = re.fullmatch(r"([vas])\[(\d+):(\d+)\]", tok)
    if m:
        return [f"{m.group(1)}{i}" for i in range(int(m.group(2)), int(m.group(3)) + 1)]
    m = re.fullmatch(r"([vas])(\d+)", tok)
    if m:
        return [tok]
    if tok in ("vcc", "exec", "m0"):
        return [tok]
    if tok in ("vcc_lo", "vcc_hi"):
        return ["vcc"]
    if tok in ("exec_lo", "exec_hi"):
        return ["exec"]
    return []


class Ins:
    __slots__ = ("text", "op", "defs", "uses", "kind", "res_r", "res_w", "optional", "tag", "mf_c", "mf_ab", "passes", "wide", "dpp", "target")

    def __init__(self, text, res_r=(), res_w=(), tag=None, optional=False):
        self.text = text.strip()
        self.res_r = set(res_r)
        self.res_w = set(res_w)
        self.tag = tag
        self.optional = optional
        self.mf_c = set()
        self.mf_ab = set()
        self.passes = 0
        self.wide = False
        self.dpp = False
        self.target = None
        t = self.text
        if t.endswith(":"):
            self.op, self.kind, self.defs, self.uses = "label", "label", set(), set()
            self.target = t[:-1]
            return
        if t.startswith(";") or t.startswith("."):
            self.op, self.kind, self.defs, self.uses = "comment", "comment", set(), set()
            return
        parts = t.split(None, 1)
        op = parts[0]
        self.op = op
        rest = parts[1] if len(parts) > 1 else ""
        ops = split_ops(rest)
        mods = ""
        if ops:
            last = ops[-1].split(None, 1)
            ops[-1] = last[0]
            if len(last) > 1:
                mods = last[1]
        R = [regs_of(o) for o in ops]
        d, u = set(), set()
        base = re.sub(r"_(e32|e64|dpp|sdwa)$", "", op)
        if op.startswith("v_mfma"):
            self.kind = "mfma"
            d |= set(R[0])
            self.mf_ab = set(R[1]) | set(R[2])
            self.mf_c = set(R[3])
            u |= self.mf_ab | self.mf_c
            self.passes = 8 if "32x32x16" in op else 4
            assert "32x32x16" in op or "16x16x32" in op
        elif op.startswith("v_"):
            self.kind = "trans" if base in TRANS else ("dot" if base.startswith("v_dot") else "valu")
            self.dpp = op.endswith("_dpp")
            if base.startswith("v_permlane") and "swap" in base:
                d |= set(R[0]) | set(R[1])
                u |= set(R[0]) | set(R[1])
            elif base in ("v_add_co_u32", "v_sub_co_u32", "v_addc_co_u32", "v_subb_co_u32"):
                d |= set(R[0]) | set(R[1])
                for r in R[2:]:
                    u |= set(r)
            else:
                d |= set(R[0])
                for r in R[1:]:
                    u |= set(r)
                if base.startswith("v_fmac") or base.startswith("v_dot2c") or base == "v_writelane_b32" or self.dpp:
                    u |= set(R[0])
                if base == "v_cndmask_b32" and len(ops) == 3:
                    u.add("vcc")
        elif op.startswith("buffer_"):
            if "load" in op and re.search(r"\blds\b", mods):
                self.kind = "dma"
                for r in R:
                    u |= set(r)
                u.add("m0")
            elif "load" in op:
                self.kind = "vload"
                d |= set(R[0])
                for r in R[1:]:
                    u |= set(r)
            else:
                self.kind = "vstore"
                for r in R:
                    u |= set(r)
                self.wide = op.endswith("x4") or op.endswith("x3")
                self.mf_c = set(R[0])
                assert not ("atomic" in op and "sc0" in mods)
        elif op.startswith("global_"):
            if "load" in op:
                self.kind = "vload"
                d |= set(R[0])
                for r in R[1:]:
                    u |= set(r)
            else:
                self.kind = "vstore"
                for r in R:
                    u |= set(r)
                self.wide = op.endswith("x4") or op.endswith("x3")
                self.mf_c = set(R[1])
        elif op.startswith("ds_read") or op.startswith("ds_bpermute"):
            self.kind = "dsr"
            d |= set(R[0])
            for r in R[1:]:
                u |= set(r)
        elif op.startswith("ds_"):
            self.kind = "dsw"
            for r in R:
                u |= set(r)
            if "addtid" in op:
                u.add("m0")
        elif op.startswith("s_load") or op.startswith("s_memrealtime") or op.startswith("s_memtime"):
            self.kind = "smem"
            d |= set(R[0])
            for r in R[1:]:
                u |= set(r)
        elif op == "s_waitcnt":
            self.kind = "wait"
        elif op == "s_nop":
            self.kind = "nop"
        elif op == "s_barrier":
            self.kind = "barrier"
        elif op in ("s_endpgm", "s_sleep", "s_setprio"):
            self.kind = "other"
        elif op.startswith("s_cbranch") or op == "s_branch":
            self.kind = "branch"
            self.target = ops[0]
            if "vcc" in op:
                u.add("vcc")
        elif op.startswith("s_cmp") or op.startswith("s_bitcmp"):
            self.kind = "salu"
            for r in R:
                u |= set(r)
        elif op.startswith("s_"):
            self.kind = "salu"
            d |= set(R[0])
            for r in R[1:]:
                u |= set(r)
            if op.startswith("s_cmov"):
                u |= set(R[0])
            if op.endswith("saveexec_b64"):
                d.add("exec")
        else:
            raise ValueError("cannot parse: " + text)
        self.defs, self.uses = d, u

    def states(self):
        if self.kind in ("label", "comment"):
            return 0
        if self.kind == "nop":
            return int(self.text.split()[1]) + 1
        return 1

    def cost(self):
        k = self.kind
        if k in ("label", "comment"):
            return 0
        if k == "mfma":
            return 4 * self.passes
        if k == "trans":
            return 9
        return 4.5


LDS_AGE = 16
VALU_KINDS = ("valu", "trans", "dot")
VMEM_KINDS = ("vload", "vstore", "dma")


def is_vgpr(r):
    return r[0] in "va" and r[1:].isdigit()


def is_sgpr(r):
    return (r[0] == "s" and r[1:].isdigit()) or r == "vcc"


def need_states(p, c):
    n = 0
    pk, ck = p.kind, c.kind
    base_c = re.sub(r"_(e32|e64|dpp|sdwa)$", "", c.op)
    if pk in VALU_KINDS:
        vd = {r for r in p.defs if is_vgpr(r)}
        sd = {r for r in p.defs if is_sgpr(r)}
        if ck == "mfma" and vd & c.uses:
            n = max(n, 2)
        if ck in VALU_KINDS:
            if pk == "trans" and vd & c.uses:
                n = max(n, 1)
            if c.dpp and vd & c.uses:
                n = max(n, 2)
            if base_c.startswith("v_permlane") and vd & c.uses:
                n = max(n, 2)
            if base_c in ("v_readlane_b32", "v_readfirstlane_b32") and vd & c.uses:
                n = max(n, 1)
            if sd & c.uses:
                n = max(n, 4 if base_c in ("v_readlane_b32", "v_writelane_b32") else 2)
        if pk == "dot" and (vd & (c.uses | c.defs)):
            same_acc = (c.op == p.op and c.kind == "dot" and vd == {r for r in c.defs if is_vgpr(r)})
            if not same_acc:
                n = max(n, 3)
        if ck in VMEM_KINDS and sd & c.uses:
            n = max(n, 5)
        if ck in ("salu", "branch", "smem") and sd & c.uses:
            n = max(n, 1)
    if pk == "mfma":
        big = p.passes == 8
        if ck == "mfma":
            if p.defs & c.mf_ab:
                n = max(n, 12 if big else 8)
            if p.defs & c.mf_c and not (p.defs == c.mf_c and p.passes == c.passes):
                n = max(n, 10 if big else 6)
            if p.defs & c.defs and not (p.defs == c.mf_c and p.passes == c.passes):
                n = max(n, 10 if big else 6)
        elif ck not in ("wait", "nop", "barrier", "label", "comment"):
            if p.defs & (c.uses | c.defs):
                n = max(n, 12 if big else 8)
            if ck in VALU_KINDS and p.mf_c & c.defs:
                n = max(n, 7 if big else 3)
            if ck in ("vload", "dsr") and p.mf_c & c.defs:
                n = max(n, 7 if big else 3)
    if pk == "vstore" and p.wide and (p.mf_c & c.defs):
        n = max(n, 2)
    if pk == "salu" and "exec" in p.defs and ck == "mfma":
        n = max(n, 4)
    if pk == "salu" and "m0" in p.defs and (ck == "dma" or "addtid" in c.op):
        n = max(n, 1)
    return n


class Prog:
    def __init__(self):
        self.stack = [[]]

    def __call__(self, text, **kw):
        for line in text.split("\n"):
            line = line.strip()
            if not line:
                continue
            self.stack[-1].append(Ins(line, **kw))

    def put(self, lst):
        self.stack[-1].extend(lst)

    def pseudo(self, kind, arg=None):
        i = Ins("; " + kind)
        i.kind = "pseudo"
        i.op = kind
        i.tag = arg
        self.stack[-1].append(i)

    def begin(self):
        self.stack.append([])

    def end(self):
        return self.stack.pop()

    def capture(self, fn, *a, **kw):
        self.begin()
        fn(*a, **kw)
        return self.end()

    def wait_tag(self, tag):
        self.pseudo("wait_tag", tag)

    def wait_vm0(self):
        self.pseudo("wait_vm0")

    def wait_lgkm0(self):
        self.pseudo("wait_lgkm0")

    def assume_vm0(self):
        self.pseudo("assume_vm0")

    def barrier(self):
        self.wait_lgkm0()
        self("s_barrier")

    def finish(self):
        assert len(self.stack) == 1
        src = self.stack[0]
        out = []
        vm, lg = [], []
        saved = {}
        windows = [[]]

        def age(n):
            for w in windows:
                for e in w:
                    e[1] += n
                w[:] = [e for e in w if e[1] < 24]

        def emit(i):
            out.append(i)
            n = i.states()
            age(n)
            if n:
                for w in windows:
                    w.append([i, 0])
            if len(windows) > 1:
                seen, keep = set(), []
                for w in windows:
                    key = tuple((id(e[0]), e[1]) for e in w)
                    if key not in seen:
                        seen.add(key)
                        keep.append(w)
                windows[:] = keep

        def waitcnt(v=None, l=None):
            s = []
            if v is not None:
                s.append(f"vmcnt({min(v, 63)})")
            if l is not None:
                s.append(f"lgkmcnt({min(l, 15)})")
            emit(Ins("s_waitcnt " + " ".join(s)))

        def count_after(q, idx):
            return sum(1 for e in q[idx + 1:] if not e[1])

        linear_dead = False
        skipped = []
        pos = {id(x): k for k, x in enumerate(src)}
        for here, i in enumerate(src):
            if i.kind == "pseudo":
                if i.op == "wait_vm0":
                    if vm:
                        waitcnt(v=0)
                        vm = []
                elif i.op == "assume_vm0":
                    vm = []
                elif i.op == "wait_lgkm0":
                    if lg:
                        waitcnt(l=0)
                        lg = []
                elif i.op == "wait_tag":
                    idx = max((k for k, e in enumerate(vm) if e[0].tag == i.tag), default=-1)
                    if idx >= 0:
                        waitcnt(v=count_after(vm, idx))
                        vm = vm[idx + 1:]
                continue
            if i.kind == "comment":
                out.append(i)
                continue
            if i.kind == "label":
                for (svm, slg, swin, bpos, sskip) in saved.pop(i.target, []):
                    if linear_dead:
                        vm, lg = svm, slg
                        windows[:] = [[list(e) for e in w] for w in swin]
                        skipped = sskip + [(bpos, here)]
                        linear_dead = False
                        continue
                    rng = skipped + sskip + [(bpos, here)]

                    def join(sq, cq):
                        allq = {id(e[0]): [e[0], e[1]] for e in sq}
                        for e in cq:
                            if id(e[0]) in allq:
                                allq[id(e[0])][1] |= e[1]
                            else:
                                allq[id(e[0])] = [e[0], e[1]]
                        res = sorted(allq.values(), key=lambda e: pos[id(e[0])])
                        for e in res:
                            p = pos[id(e[0])]
                            if any(a < p < b for a, b in rng):
                                e[1] = True
                        return res
                    vm = join(svm, vm)
                    lg = join(slg, lg)
                    skipped = []
                    windows.extend([[list(e) for e in w] for w in swin])
                linear_dead = False
                out.append(i)
                continue
            if i.kind == "wait":
                m = re.search(r"vmcnt\((\d+)\)", i.text)
                if m and int(m.group(1)) == 0:
                    vm = []
                m = re.search(r"lgkmcnt\((\d+)\)", i.text)
                if m and int(m.group(1)) == 0:
                    lg = []
                emit(i)
                continue
            touch = i.uses | i.defs
            idx = -1
            for k, e in enumerate(vm):
                o = e[0]
                dep = False
                if o.defs & i.uses:
                    dep = True
                if o.defs & i.defs and i.kind != "vload":
                    dep = True
                if o.res_w & (i.res_r | i.res_w) and not (i.kind == "dma" and o.kind == "dma"):
                    dep = True
                if dep:
                    idx = k
            wv = None
            if idx >= 0:
                wv = count_after(vm, idx)
                vm = vm[idx + 1:] if wv else []
            idx = -1
            for k, e in enumerate(lg):
                o = e[0]
                dep = False
                if o.defs & i.uses:
                    dep = True
                if o.defs & i.defs and not (i.kind == "dsr" and o.kind == "dsr"):
                    dep = True
                if i.kind == "dma" and ((o.res_r | o.res_w) & i.res_w):
                    dep = True
                if dep:
                    idx = k
            wl = None
            if idx >= 0:
                if any(e[0].kind == "smem" for e in lg):
                    wl = 0
                    lg = []
                else:
                    while idx + 1 < len(lg) and lg[idx + 1][0].kind == "dsr" and here - pos[id(lg[idx + 1][0])] >= LDS_AGE:
                        idx += 1
                    wl = count_after(lg, idx)
                    lg = lg[idx + 1:] if wl else []
            if wv is not None or wl is not None:
                waitcnt(wv, wl)
            need = 0
            for w in windows:
                for p, a in w:
                    n = need_states(p, i)
                    if n - a > need:
                        need = n - a
            while need > 0:
                k = min(need, 16)
                emit(Ins(f"s_nop {k - 1}"))
                need -= k
            emit(i)
            if i.kind in VMEM_KINDS:
                vm.append([i, i.optional])
                if len(vm) > 63 + 64:
                    vm = vm[-(63 + 64):]
            if i.kind in ("dsr", "dsw", "smem"):
                lg.append([i, i.optional])
            if i.kind == "branch":
                saved.setdefault(i.target, []).append(([list(e) for e in vm], [list(e) for e in lg], [[list(e) for e in w] for w in windows], here, list(skipped)))
                if i.op == "s_branch":
                    linear_dead = True
            if i.op == "s_endpgm":
                linear_dead = True
        return out

    @staticmethod
    def render(ins):
        lines = []
        for i in ins:
            if i.kind == "label":
                lines.append(i.text)
            else:
                lines.append("    " + i.text)
        return "\n".join(lines) + "\n"


SCC_USERS = ("s_cselect", "s_cmov", "s_cbranch_scc", "s_addc", "s_subb")
SCC_KEEPERS = ("s_mov", "s_mul_i32", "s_cselect", "s_nop", "s_waitcnt", "s_barrier", "s_load", "s_getpc")


def merge(fg, bg, start=0.0, every=64.0):
    live, blocked = False, [False] * len(fg)
    for k in range(len(fg) - 1, -1, -1):
        blocked[k] = live
        op = fg[k].op
        assert fg[k].kind not in ("label", "branch")
        if op.startswith(SCC_USERS):
            live = True
        elif op.startswith("s_") and not op.startswith(SCC_KEEPERS):
            live = False
    out, t, nxt, k, narrow = [], 0.0, start, 0, False
    for n, i in enumerate(fg):
        out.append(i)
        t += i.cost() if i.kind != "pseudo" else 0
        if "exec" in i.defs:
            narrow = i.text != "s_mov_b64 exec, -1"
        if k < len(bg) and t >= nxt and not narrow and not blocked[n]:
            out.extend(bg[k])
            k += 1
            nxt = t + every
    return out, bg[k:]


def space_ds(lst, lag=2, gap=3):
    out, pend = [], []
    last = -99

    def flush_one():
        nonlocal last
        i, _ = pend.pop(0)
        out.append(i)
        last = len(out)

    for i in lst:
        if i.kind == "dsw":
            pend.append([i, len(out) + lag])
            continue
        if i.kind in ("dsr", "barrier", "pseudo", "label", "branch"):
            while pend:
                flush_one()
        else:
            while any(p[0].uses & i.defs for p in pend):
                flush_one()
        out.append(i)
        if pend and len(out) >= pend[0][1] and len(out) - last >= gap:
            flush_one()
    while pend:
        flush_one()
    return out
```

```python
import sys, math, struct
from asmlib import *

NAME = "interleave_layers__ssm_conv_s4__mixer_token_mlp__prompt"
OPT = dict(stamps=False, stop=99, upfront=True, dump=0, dbgwg=-1, fixdur=0, sent=0, warm=1, h_flag=2, h_w=2, h_poll=9, h_ln=6, h_cv=1, h_g1=2, rot=1, wA=0, wK=8, wP=8, wL=16, wB=96, wT=1, lag=2, gap=3, st_conv=100, ev_conv=150, ev_g1=100000, fill0=14, ln1w=0, ln0w=1)
DBG_SEL = ['start', 'kgen', 'conv0 go', 'ln0 go', 'g1_0 go', 'g1_0 loop', 'g2_0 go', 'g2_0 loop', 'conv1 poll', 'ln1 go', 'g1_1 go', 'g2_1 go', 'end']
STAMP_NAMES = []

EPOCH = 0
ST0 = 0x1000
ST1 = 0x8000
STAMPS = 0x20000
FL = 0x100000
BS = 448 * 64 + 128
CH = 0x20000
X1 = 0x400000
H1 = X1 + 15 * CH
G1 = H1 + 14 * CH
X3 = G1 + 13 * CH
H3 = X3 + 15 * CH
G3 = H3 + 14 * CH
X2 = G3 + 13 * CH
X0 = X2 + 15 * CH
FILL1, FILL3 = 6, 36
WS_BYTES = 268435456
OOB = 0x40000000

KST = 4160
KSLOT = {0: [0, 5, 2, 3], 1: [1, 6, 7, 4]}
UB = 8 * KST
UST = 4608
ZB = UB + 2 * UST
EX = 2 * KST
RB = 2 * KST
GST = 15616
GROW = 272
TOFF = 12288
LNP = 57472
W2L = 65536
LDS_BYTES = 163840

sWAVE, sX, sJ, sPAIR, sDT1, sNT, sDT2, sST, sLN = 4, 5, 6, 7, 8, 9, 10, 11, 12
sNONCE = 14
P_U, P_ARE, P_AIM, P_BRE, P_BIM, P_CRE, P_CIM, P_LDT = 16, 18, 20, 22, 24, 26, 28, 30
P_DSK, P_W1, P_B1, P_W2, P_B2, P_OUT, P_DBG, P_WS = 32, 36, 38, 40, 42, 44, 46, 48
S_WS, S_W1, S_W2, S_X0, S_OUT = 52, 56, 60, 64, 68
sD0, sD1 = 72, 74
sLDT = 76
sEP = 78
sWOFF, sT0, sT1, sT2, sT3, sCNT = 80, 81, 82, 83, 84, 85
sRC, sR1, sR2, sRL = 86, 87, 88, 89
sM1, sM2 = 90, 92
sSTAMP = 94
sTAB = 96
sLN0, sRL0 = 77, 73
sCA, sCB = 34, 100

vLANE, vL16, vT2a, vT2b, vT1a, vT1b, vD1, vD2 = 127, 126, 125, 124, 123, 122, 121, 120
vA0, vA1 = 123, 122


def srd(n):
    return f"s[{n}:{n + 3}]"


def sp(n):
    return f"s[{n}:{n + 1}]"


def vr(n, k):
    return f"v[{n}:{n + k - 1}]" if k > 1 else f"v{n}"


def f32(x):
    return "0x%08x" % struct.unpack("<I", struct.pack("<f", x))[0]


a = Prog()
_lab = [0]


def label(p):
    _lab[0] += 1
    return f"L_{p}_{_lab[0]}"


_stamp = [0]


def stamp(name, r=1):
    k = _stamp[0]
    _stamp[0] += 1
    STAMP_NAMES.append(name)
    a("; MARK after " + name)
    if OPT["stamps"] != 1:
        return
    l = label("st")
    if OPT["dbgwg"] >= 0:
        if name not in DBG_SEL:
            return
        a(f"s_lshl_b32 s3, s{sWAVE}, 8\ns_add_u32 s3, s3, s2\ns_cmp_lg_u32 s3, {OPT['dbgwg']}\ns_cbranch_scc1 {l}")
        a(f"s_memrealtime {sp(sSTAMP)}")
        a("s_waitcnt lgkmcnt(0)")
        a(f"s_mov_b64 exec, 1\nv_mov_b32 v{r}, s{sSTAMP}\ns_mov_b32 s{sSTAMP}, s{P_DBG}\ns_mov_b32 s{sSTAMP + 1}, s{P_DBG + 1}\ns_mov_b32 s{sSTAMP + 2}, 256\ns_mov_b32 s{sSTAMP + 3}, 0x20000".replace(f"s{sSTAMP}, s{P_DBG}", f"s64, s{P_DBG}").replace(f"s{sSTAMP + 1}, s{P_DBG + 1}", f"s65, s{P_DBG + 1}").replace(f"s{sSTAMP + 2}, 256", "s66, 256").replace(f"s{sSTAMP + 3}, 0x20000", "s67, 0x20000"))
        a(f"buffer_store_dword v{r}, off, s[64:67], 0 offset:{12 + 4 * DBG_SEL.index(name)} sc1", optional=True)
        a("s_mov_b64 exec, -1")
        a(f"{l}:")
        return
    a(f"s_cmp_lg_u32 s{sWAVE}, 0")
    a(f"s_cbranch_scc1 {l}")
    a(f"s_memrealtime {sp(sSTAMP)}")
    a("s_waitcnt lgkmcnt(0)")
    a(f"s_lshl_b32 s3, s2, 8")
    a(f"s_add_u32 s3, s3, {STAMPS + 4 * k}")
    a(f"v_mov_b32 v{r}, s{sSTAMP}")
    a("s_mov_b64 exec, 1")
    a(f"buffer_store_dword v{r}, off, {srd(S_WS)}, s3", optional=True)
    a("s_mov_b64 exec, -1")
    a(f"{l}:")


DUMP = 0x2000000


def dump_lds(point, r=96):
    if OPT["dump"] != point:
        return
    a.barrier()
    a(f"s_lshl_b32 s3, s{sWAVE}, 10\nv_add_u32 v{r + 4}, s3, v{vL16}\ns_lshl_b32 s3, s2, 16\ns_add_u32 s3, s3, {DUMP}")
    for i in range(16):
        a(f"ds_read_b128 {vr(r, 4)}, v{r + 4} offset:{i * 4096}")
        a(f"buffer_store_dwordx4 {vr(r, 4)}, v{r + 4}, {srd(S_WS)}, s3 offen")
        a("s_add_u32 s3, s3, 4096")
        a.wait_vm0()
    a.barrier()


def cmul(d, x, y):
    return [f"v_pk_mul_f32 {vr(d, 2)}, {vr(x, 2)}, {vr(y, 2)} op_sel:[1,1] op_sel_hi:[1,0] neg_lo:[0,1]",
            f"v_pk_fma_f32 {vr(d, 2)}, {vr(x, 2)}, {vr(y, 2)}, {vr(d, 2)} op_sel_hi:[0,1,1]"]


def cmul2(p, q=None):
    x = cmul(*p)
    if q is None:
        a(x[0]); a(x[1])
        return
    y = cmul(*q)
    a(x[0]); a(y[0]); a(x[1]); a(y[1])


def unpack(dlo, dhi, s):
    a(f"v_lshlrev_b32 v{dlo}, 16, v{s}")
    a(f"v_and_b32 v{dhi}, 0xffff0000, v{s}")


def prologue():
    a("s_cmp_lt_u32 s2, 256")
    a("s_cbranch_scc1 L_start")
    a("s_endpgm")
    a("L_start:")
    if OPT["fixdur"] or OPT["stamps"]:
        a("s_memrealtime s[50:51]")
    a("s_load_dwordx16 s[16:31], s[0:1], 0")
    a("s_load_dwordx16 s[32:47], s[0:1], 64")
    a("s_load_dwordx2 s[48:49], s[0:1], 128")
    a(f"v_lshrrev_b32 v1, 6, v0")
    a(f"v_and_b32 v{vLANE}, 63, v0")
    a(f"v_readfirstlane_b32 s{sWAVE}, v1")
    a(f"v_lshlrev_b32 v{vL16}, 4, v{vLANE}")
    a(f"""s_and_b32 s{sX}, s2, 7
s_lshr_b32 s{sJ}, s2, 3
s_add_u32 s{sJ}, s{sJ}, 28
s_and_b32 s{sJ}, s{sJ}, 31
s_and_b32 s{sT0}, s{sX}, 1
s_lshr_b32 s{sT1}, s{sX}, 1
s_mul_i32 s{sPAIR}, s{sX}, 28
s_sub_u32 s{sRC}, s{sJ}, s{sT0}
s_add_u32 s{sPAIR}, s{sPAIR}, s{sRC}
s_cmp_lt_u32 s{sRC}, 28
s_cselect_b32 s{sRC}, 1, 0
s_mul_i32 s{sT2}, s{sJ}, 37
s_lshr_b32 s{sT2}, s{sT2}, 8
s_mul_i32 s{sT3}, s{sT2}, 7
s_sub_u32 s{sT3}, s{sJ}, s{sT3}
s_mul_i32 s{sNT}, s{sT1}, 7
s_add_u32 s{sNT}, s{sNT}, s{sT3}
s_lshl_b32 s{sT3}, s{sT0}, 2
s_add_u32 s{sDT1}, s{sT2}, s{sT3}
s_lshl_b32 s{sST}, s{sT0}, 3
s_sub_u32 s{sST}, s{sJ}, s{sST}
s_cselect_b32 s{sR2}, 0, 1
s_lshr_b32 s{sDT2}, s{sST}, 3
s_and_b32 s{sDT2}, s{sDT2}, 3
s_add_u32 s{sDT2}, s{sDT2}, s{sT3}
s_and_b32 s{sST}, s{sST}, 7
s_lshl_b32 s{sLN0}, s{sT1}, 4
s_lshl_b32 s{sT1}, s{sT1}, 3
s_add_u32 s{sST}, s{sST}, s{sT1}
s_cmp_eq_u32 s{sJ}, 0
s_cselect_b32 s{sT1}, 32, s{sJ}
s_mul_i32 s{sT2}, s{sT0}, 11
s_add_u32 s{sT2}, s{sT2}, s{sT1}
s_cmp_lg_u32 s{sT0}, 0
s_cselect_b32 s{sT1}, s{sT1}, s{sJ}
s_cselect_b32 s{sT2}, s{sT2}, s{sJ}
s_cselect_b32 s{sRL0}, 21, 28
s_cmp_ge_u32 s{sT1}, s{sRL0}
s_cselect_b32 s{sRL0}, 1, 0
s_add_u32 s{sLN0}, s{sLN0}, s{sT2}
s_sub_u32 s{sLN0}, s{sLN0}, 28
s_lshl_b32 s{sLN}, s{sX}, 4
s_add_u32 s{sLN}, s{sLN}, s{sJ}
s_sub_u32 s{sLN}, s{sLN}, 16
s_mul_i32 s{sT2}, s{sT0}, 7
s_sub_u32 s{sT2}, 28, s{sT2}
s_cmp_lt_u32 s{sJ}, s{sT2}
s_cselect_b32 s{sR1}, 1, 0
s_cmp_ge_u32 s{sJ}, 16
s_cselect_b32 s{sRL}, 1, 0
s_min_u32 s{sPAIR}, s{sPAIR}, 223
s_mov_b32 s{sM1}, 0xaaaaaaaa
s_mov_b32 s{sM1 + 1}, 0xaaaaaaaa
s_mov_b32 s{sM2}, 0xcccccccc
s_mov_b32 s{sM2 + 1}, 0xcccccccc""")
    a("s_waitcnt lgkmcnt(0)")
    if OPT["fixdur"] or OPT["stamps"]:
        a("s_mov_b32 s101, s50")
    a(f"""s_lshl_b32 s{sT0}, s{sPAIR}, 2
s_load_dword s{sLDT}, {sp(P_LDT)}, s{sT0}
s_load_dword s{sD0}, {sp(P_DSK)}, s{sT0}
s_load_dwordx2 {sp(sNONCE)}, {sp(P_WS)}, {EPOCH}""")
    kgen_loads()
    for n, p, size in ((S_X0, P_U, 1835008), (S_WS, P_WS, WS_BYTES), (S_OUT, P_OUT, 1835008)):
        a(f"s_mov_b32 s{n}, s{p}\ns_mov_b32 s{n + 1}, s{p + 1}\ns_mov_b32 s{n + 2}, {size}\ns_mov_b32 s{n + 3}, 0x20000")
    for n, p, role in ((S_W1, P_W1, sR1), (S_W2, P_W2, sR2)):
        a(f"s_mov_b32 s{n}, s{p}\ns_mov_b32 s{n + 1}, s{p + 1}\ns_cmp_lg_u32 s{role}, 0\ns_cselect_b32 s{n + 2}, 7340032, 0\ns_mov_b32 s{n + 3}, 0x20000")


sAUX = 75


def code_warm(r):
    if not OPT["warm"]:
        return
    a(f"""s_lshl_b32 s{sT0}, s{sJ}, 2
s_add_u32 s{sT0}, s{sT0}, s{sWAVE}
s_mul_i32 s{sT0}, s{sT0}, 640
v_lshl_add_u32 v{r}, v{vLANE}, 7, s{sT0}
s_mov_b32 s{sT1}, ktab-L_entry+8192
v_min_u32 v{r}, s{sT1}, v{r}
s_sub_u32 s28, s{sTAB}, ktab-L_entry
s_subb_u32 s29, s{sTAB + 1}, 0
s_mov_b64 exec, 31
global_load_dword v{r}, v{r}, s[28:29]
s_mov_b64 exec, -1""")


def fill(base, n, r, sidx, stride, tag="st0"):
    a(f"""s_lshl_b32 s{sT0}, s{sidx}, 12
s_lshl_b32 s{sT1}, s{sWAVE}, 10
s_add_u32 s{sT0}, s{sT0}, s{sT1}
s_add_u32 s{sT0}, s{sT0}, {base}""")
    for k in range(4):
        a(f"v_mov_b32 v{r + k}, -1")
    for k in range(n):
        a(f"buffer_store_dwordx4 {vr(r, 4)}, v{vL16}, {srd(S_WS)}, s{sT0} offen sc1", tag=tag)
        if k + 1 < n:
            a(f"s_add_u32 s{sT0}, s{sT0}, {stride}")


def aux_loads():
    a(f"""s_and_b32 s{sAUX}, s{sJ}, 3
s_lshl_b32 s{sAUX}, s{sAUX}, 3
s_add_u32 s{sAUX}, s{sAUX}, s{sX}
s_lshl_b32 s16, s{sAUX}, 2
s_add_u32 s16, s16, s{sWAVE}
s_mul_i32 s{sT1}, s16, {16 * 896}
s_mul_i32 s17, s{sWAVE}, {16 * 912}
s_mov_b32 m0, s17
s_mov_b32 exec_hi, 0xffffff""")
    for k in range(16):
        if k:
            a(f"s_add_u32 m0, m0, 912\ns_add_u32 s{sT1}, s{sT1}, 896")
        a(f"buffer_load_dwordx4 v{vL16}, {srd(S_X0)}, s{sT1} offen lds", res_w=[f"x0"])
    a("s_mov_b64 exec, -1")


def aux_work():
    XR = 8
    a(f"""v_mov_b32 v76, 0
v_mov_b32 v77, 0
v_mov_b32 v78, 0
v_mov_b32 v79, 0
s_lshl_b32 s{sT1}, s16, 7
s_add_u32 s{sT1}, s{sT1}, {ST1}
s_lshl_b32 s18, s{sAUX}, 7
s_add_u32 s18, s18, {ST0}
s_mov_b64 exec, 0xff""")
    a(f"buffer_store_dwordx4 v[76:79], v{vL16}, {srd(S_WS)}, s{sT1} offen sc1", tag="st0")
    a(f"""s_mov_b64 exec, -1
v_and_b32 v2, 15, v{vLANE}
v_lshrrev_b32 v3, 4, v{vLANE}
v_mul_u32_u24 v4, 912, v2
v_lshl_add_u32 v4, v3, 4, v4
v_add_u32 v4, s17, v4
v_lshrrev_b32 v6, 2, v2
v_cmp_eq_u32 vcc, v6, v3
v_bfe_u32 v6, v2, 1, 2
v_lshlrev_b32 v6, 7, v6
v_lshrrev_b32 v7, 3, v2
v_lshl_add_u32 v6, v7, 4, v6
v_and_b32 v7, 1, v2
v_lshl_add_u32 v6, v7, 2, v6
s_lshl_b32 s{sT0}, s{sWAVE}, 5
s_add_u32 s{sT0}, s{sT0}, 60000
v_add_u32 v6, s{sT0}, v6
v_mov_b32 v7, 61024
v_cndmask_b32 v6, v7, v6, vcc
v_lshrrev_b32 v117, 3, v{vLANE}
v_cmp_eq_u32 vcc, s{sWAVE}, v117
v_lshlrev_b32 v117, 12, v117
v_and_b32 v7, 7, v{vLANE}
v_lshl_add_u32 v117, v7, 4, v117
v_mov_b32 v7, {OOB}
v_cndmask_b32 v117, v7, v117, vcc
v_mov_b32 v80, 0x3f803f80
v_mov_b32 v81, 0x3f803f80
v_mov_b32 v82, 0x3f803f80
v_mov_b32 v83, 0x3f803f80""")
    if OPT["stamps"] == 1:
        a.wait_vm0()
    stamp("aux data")
    for k in range(14):
        a(f"ds_read_b128 {vr(XR + 4 * k, 4)}, v4 offset:{64 * k}", res_r=["x0"])
    for k in range(14):
        x = vr(XR + 4 * k, 4)
        a(f"v_mfma_f32_16x16x32_bf16 v[64:67], v[80:83], {x}, {'v[64:67]' if k else 0}")
        a(f"v_mfma_f32_16x16x32_bf16 v[68:71], {x}, {x}, {'v[68:71]' if k else 0}")
    a(f"""v_cndmask_b32 v68, v68, v69, {sp(sM1)}
v_cndmask_b32 v70, v70, v71, {sp(sM1)}
v_cndmask_b32 v68, v68, v70, {sp(sM2)}""")
    a("ds_write2_b32 v6, v64, v68 offset0:0 offset1:2")
    a.barrier()
    a(f"ds_read_b128 v[64:67], v{vL16} offset:60000")
    a(f"buffer_store_dwordx4 v[64:67], v117, {srd(S_WS)}, s18 offen sc1", tag="st0")
    stamp("aux st")
    nonce_take()
    flag_put(0, f"s_add_u32 s{sT0}, s{sAUX}, 224\ns_lshl_b32 s{sT0}, s{sT0}, 6", 72, "st0")


def xt_loads():
    a(f"""s_lshl_b32 s{sT0}, s{sPAIR}, 1
s_lshr_b32 s{sT1}, s{sWAVE}, 1
s_add_u32 s{sT0}, s{sT0}, s{sT1}
s_mul_i32 s{sT1}, s{sT0}, 9363
s_lshr_b32 s{sT1}, s{sT1}, 16
s_mul_i32 s{sT2}, s{sT1}, 7
s_sub_u32 s{sT0}, s{sT0}, s{sT2}
s_lshl_b32 s{sT0}, s{sT0}, 1
s_and_b32 s{sT2}, s{sWAVE}, 1
s_add_u32 s{sT0}, s{sT0}, s{sT2}
s_mul_i32 s{sT2}, s{sT1}, {32 * 896}
s_lshl_b32 s{sT3}, s{sT0}, 6
s_add_u32 s{sT2}, s{sT2}, s{sT3}
v_lshrrev_b32 v2, 2, v{vLANE}
v_mul_u32_u24 v2, 896, v2
v_and_b32 v3, 3, v{vLANE}
v_lshl_add_u32 v2, v3, 4, v2
s_mul_i32 s22, s{sWAVE}, {GST}
s_mov_b32 m0, s22
s_mul_i32 s23, s{sT1}, {BS}""")
    a(f"buffer_load_dwordx4 v2, {srd(S_X0)}, s{sT2} offen lds", res_w=["x0"])
    a(f"s_add_u32 m0, m0, 1024\ns_add_u32 s{sT2}, s{sT2}, {16 * 896}")
    a(f"buffer_load_dwordx4 v2, {srd(S_X0)}, s{sT2} offen lds", res_w=["x0"])
    a(f"""s_lshl_b32 s{sT0}, s{sT0}, 11
s_add_u32 s23, s23, s{sT0}
s_add_u32 s23, s23, {X0}
v_lshrrev_b32 v2, 4, v{vLANE}
v_bfe_u32 v36, v{vLANE}, 2, 2
v_lshl_add_u32 v36, v2, 3, v36
v_lshlrev_b32 v36, 6, v36
v_lshl_add_u32 v36, v3, 3, v36
v_add_u32 v36, s22, v36
v_and_b32 v37, 15, v{vLANE}
v_lshlrev_b32 v37, 6, v37
v_lshl_add_u32 v37, v2, 4, v37""")


def xt_work():
    for u in range(2):
        for j in range(2):
            a(f"ds_read_b64_tr_b16 {vr(40 + 4 * u + 2 * j, 2)}, v36 offset:{j * 256 + u * 32}", res_r=["x0"])
    for u in range(2):
        a(f"buffer_store_dwordx4 {vr(40 + 4 * u, 4)}, v37, {srd(S_WS)}, s23 offen offset:{1024 * u} sc1", tag="st0")


def xt_poll_addr(ra, t):
    a(f"""s_lshl_b32 s{sT0}, s{sWAVE}, 4
v_and_b32 v{t}, 15, v{vLANE}
v_add_u32 v{t}, s{sT0}, v{t}
v_mul_u32_u24 v{t}, 7, v{t}
s_lshr_b32 s{sT0}, s{sPAIR}, 5
v_add_u32 v{t}, s{sT0}, v{t}
v_lshrrev_b32 v{t}, 1, v{t}
s_lshl_b32 s{sT0}, s{sWAVE}, 3
s_add_u32 s{sT0}, s{sT0}, 224
v_and_b32 v{ra}, 7, v{vLANE}
v_add_u32 v{ra}, s{sT0}, v{ra}
v_cmp_gt_u32 vcc, 16, v{vLANE}
v_cndmask_b32 v{ra}, v{ra}, v{t}, vcc""")


def e1_poll_addr(ra):
    a(f"s_lshl_b32 s{sT0}, s{sWAVE}, 6\nv_add_u32 v{ra}, s{sT0}, v{vLANE}")


def nonce_take():
    a(f"s_add_u32 s{sNONCE}, s{sNONCE}, 1")
    a(f"s_addc_u32 s{sNONCE + 1}, s{sNONCE + 1}, 0")


def nonce_retire():
    l = label("nr")
    a(f"s_or_b32 s{sT0}, s2, s{sWAVE}")
    a(f"s_cmp_lg_u32 s{sT0}, 32")
    a(f"s_cbranch_scc1 {l}")
    a(f"v_mov_b32 v110, s{sNONCE}\nv_mov_b32 v111, s{sNONCE + 1}\ns_mov_b64 exec, 1")
    a(f"buffer_store_dwordx2 v[110:111], off, {srd(S_WS)}, 0 offset:{EPOCH} sc1", optional=True)
    a("s_mov_b64 exec, -1")
    a(f"{l}:")


def flag_put(edge, sprod, r, tag):
    a(f"s_lshl_b32 s{sT0}, s{sprod}, 6" if isinstance(sprod, int) else sprod)
    a(f"""s_lshl_b32 s{sT1}, s{sWAVE}, 15
s_add_u32 s{sT0}, s{sT0}, s{sT1}
s_add_u32 s{sT0}, s{sT0}, {FL + edge * 0x20000}
v_lshlrev_b32 v{r + 4}, 12, v{vLANE}
v_and_b32 v{r + 4}, 0x4000, v{r + 4}
v_and_b32 v{r}, 3, v{vLANE}
v_lshl_add_u32 v{r + 4}, v{r}, 4, v{r + 4}
v_mov_b32 v{r}, s{sNONCE}
v_mov_b32 v{r + 1}, s{sNONCE + 1}
v_mov_b32 v{r + 2}, s{sNONCE}
v_mov_b32 v{r + 3}, s{sNONCE + 1}""")
    a.wait_tag(tag)
    a.barrier()
    a("s_mov_b64 exec, 0xff")
    a(f"buffer_store_dwordx4 {vr(r, 4)}, v{r + 4}, {srd(S_WS)}, s{sT0} offen sc1", tag="flag")
    a("s_mov_b64 exec, -1")


def hint_prep(edge, sprod, r):
    a(f"s_lshl_b32 s{sT0}, s{sprod}, 6" if isinstance(sprod, int) else sprod)
    a(f"""s_lshl_b32 s{sT1}, s{sWAVE}, 15
s_add_u32 s{sT0}, s{sT0}, s{sT1}
s_add_u32 s{sT0}, s{sT0}, {FL + edge * 0x20000}
v_lshlrev_b32 v{r + 4}, 12, v{vLANE}
v_and_b32 v{r + 4}, 0x4000, v{r + 4}
v_and_b32 v{r}, 3, v{vLANE}
v_lshl_add_u32 v{r + 4}, v{r}, 4, v{r + 4}
v_add_u32 v{r + 4}, s{sT0}, v{r + 4}
v_mov_b32 v{r}, s{sNONCE}
v_mov_b32 v{r + 1}, s{sNONCE + 1}
v_mov_b32 v{r + 2}, s{sNONCE}
v_mov_b32 v{r + 3}, s{sNONCE + 1}""")


def hint_put(r):
    a("s_mov_b64 exec, 0xff")
    a(f"buffer_store_dwordx4 {vr(r, 4)}, v{r + 4}, {srd(S_WS)}, 0 offen sc1", tag="hint")
    a("s_mov_b64 exec, -1")


def poll_issue(edge, r, ra=None):
    ra = r + 2 if ra is None else ra
    a(f"""s_lshl_b32 s{sT3}, s{sX}, 14
s_add_u32 s{sT3}, s{sT3}, {FL + edge * 0x20000}
v_lshl_add_u32 v{ra}, v{ra}, 6, s{sT3}
buffer_load_dwordx2 {vr(r, 2)}, v{ra}, {srd(S_WS)}, 0 offen sc1""")


def poll_take(r, ra=None):
    ra = r + 2 if ra is None else ra
    ok, lp = label("pok"), label("plp")
    a(f"v_cmp_ne_u64 vcc, {sp(sNONCE)}, {vr(r, 2)}")
    a(f"s_cbranch_vccz {ok}")
    a(f"s_mov_b32 s{sCNT}, 0")
    a(f"{lp}:")
    a(f"buffer_load_dwordx2 {vr(r, 2)}, v{ra}, {srd(S_WS)}, 0 offen sc1")
    a("s_waitcnt vmcnt(0)")
    a(f"v_cmp_ne_u64 vcc, {sp(sNONCE)}, {vr(r, 2)}")
    a(f"s_add_u32 s{sCNT}, s{sCNT}, 1")
    a(f"s_cbranch_vccz {ok}")
    a(f"s_cmp_lt_u32 s{sCNT}, 0x100000")
    a(f"s_cbranch_scc1 {lp}")
    a(f"{ok}:")


sW1O, sW2O = 98, 99
sROT1, sROT2 = 33, 35
sW1E, sW2E = 78, 79


def w_setup():
    a(f"""v_lshrrev_b32 v2, 3, v{vLANE}
v_and_b32 v3, 7, v{vLANE}
v_bfe_u32 v4, v{vLANE}, 4, 1
v_lshlrev_b32 v4, 2, v4
v_xor_b32 v3, v3, v4
v_lshlrev_b32 v3, 4, v3
v_mul_u32_u24 v{vD1}, 3584, v2
v_add_u32 v{vD1}, v{vD1}, v3
v_lshl_add_u32 v{vD2}, v2, 12, v3
v_bfe_u32 v2, v{vLANE}, 2, 2
v_lshrrev_b32 v3, 5, v{vLANE}
v_bfe_u32 v4, v{vLANE}, 4, 1
v_and_b32 v5, 3, v{vLANE}
v_lshlrev_b32 v5, 3, v5
v_lshl_add_u32 v5, v4, 5, v5
v_lshrrev_b32 v4, 1, v2
v_lshl_add_u32 v5, v4, 6, v5
s_lshr_b32 s{sT0}, s{sWAVE}, 1
s_lshl_b32 s{sT0}, s{sT0}, 6
v_xor_b32 v5, s{sT0}, v5
v_lshl_add_u32 v5, v2, 7, v5
s_mul_i32 s{sT1}, s{sWAVE}, 24576
s_add_u32 s{sT1}, s{sT1}, {W2L}
v_add_u32 v5, s{sT1}, v5
v_lshl_add_u32 v{vT1a}, v3, 10, v5
v_xor_b32 v{vT1b}, 64, v{vT1a}
v_lshl_add_u32 v{vT2a}, v3, 9, v5
v_xor_b32 v{vT2b}, 64, v{vT2a}
s_mul_i32 s{sW1O}, s{sWAVE}, {512 * 3584}
s_lshl_b32 s{sT0}, s{sNT}, 7
s_add_u32 s{sW1O}, s{sW1O}, s{sT0}
s_mul_i32 s{sW2O}, s{sWAVE}, {448 * 4096}
s_lshl_b32 s{sT0}, s{sST}, 7
s_add_u32 s{sW2O}, s{sW2O}, s{sT0}
s_mov_b32 s{sWOFF}, s{sT1}""")
    if OPT["rot"]:
        a(f"""s_and_b32 s{sT0}, s{sDT1}, 3
s_lshl_b32 s{sT0}, s{sT0}, 1
s_lshr_b32 s{sT1}, s{sDT1}, 2
s_add_u32 s{sT0}, s{sT0}, s{sT1}
s_and_b32 s{sROT1}, s{sT0}, 7
s_and_b32 s{sT0}, s{sDT2}, 3
s_lshl_b32 s{sT0}, s{sT0}, 1
s_lshr_b32 s{sT1}, s{sDT2}, 2
s_add_u32 s{sT0}, s{sT0}, s{sT1}
s_min_u32 s{sROT2}, s{sT0}, 6""")
    else:
        a(f"s_mov_b32 s{sROT1}, 0\ns_mov_b32 s{sROT2}, 0")
    a(f"""s_add_u32 s{sW1E}, s{sW1O}, {512 * 3584}
s_mul_i32 s{sT0}, s{sROT1}, {64 * 3584}
s_add_u32 s{sW1O}, s{sW1O}, s{sT0}
s_add_u32 s{sW2E}, s{sW2O}, {448 * 4096}
s_mul_i32 s{sT0}, s{sROT2}, {64 * 4096}
s_add_u32 s{sW2O}, s{sW2O}, s{sT0}""")


WORDER = list(range(0, 4)) + list(range(32, 36)) + list(range(4, 32)) + list(range(36, 60))


def w_dma(pos, half):
    slot = pos % 12
    n = WORDER[pos]
    g = [Ins(f"s_add_u32 m0, s{sWOFF}, {slot * 2048 + half * 1024}")]
    if n < 32:
        g.append(Ins(f"s_add_u32 s{sW1O}, s{sW1O}, {8 * 3584}") if (n or half) else Ins("s_nop 0"))
        if n and n % 4 == 0 and half == 0:
            g += [Ins(f"s_cmp_eq_u32 s{sW1O}, s{sW1E}"), Ins(f"s_cselect_b32 s3, {512 * 3584}, 0"), Ins(f"s_sub_u32 s{sW1O}, s{sW1O}, s3")]
        g.append(Ins(f"buffer_load_dwordx4 v{vD1}, {srd(S_W1)}, s{sW1O} offen lds", res_w=[f"slot{slot}"]))
    else:
        g.append(Ins(f"s_add_u32 s{sW2O}, s{sW2O}, {8 * 4096}") if (n > 32 or half) else Ins("s_nop 0"))
        if n > 32 and n % 4 == 0 and half == 0:
            g += [Ins(f"s_cmp_eq_u32 s{sW2O}, s{sW2E}"), Ins(f"s_cselect_b32 s3, {448 * 4096}, 0"), Ins(f"s_sub_u32 s{sW2O}, s{sW2O}, s3")]
        g.append(Ins(f"buffer_load_dwordx4 v{vD2}, {srd(S_W2)}, s{sW2O} offen lds", res_w=[f"slot{slot}"]))
    return g


def w_tr(pos):
    slot = pos % 12
    n = WORDER[pos]
    g = []
    for nb in range(2):
        for j in range(2):
            if n < 32:
                r = (n * 2 + nb) * 4 + 2 * j
                g.append(Ins(f"ds_read_b64_tr_b16 a[{r}:{r + 1}], v{(vT1a, vT1b)[nb]} offset:{slot * 2048 + j * 512}", res_r=[f"slot{slot}"]))
            else:
                r = 128 + ((n - 32) * 2 + nb) * 4 + 2 * j
                g.append(Ins(f"ds_read_b64_tr_b16 v[{r}:{r + 1}], v{(vT2a, vT2b)[nb]} offset:{slot * 2048 + j * 1024}", res_r=[f"slot{slot}"]))
    return g


def w_all_upfront():
    for n in range(12):
        a.put(w_dma(n, 0)); a.put(w_dma(n, 1))
    for n in range(48):
        a.put(w_tr(n))
        if n >= 1:
            a.put(w_dma(n + 11, 0)); a.put(w_dma(n + 11, 1))
    a.put(w_dma(59, 0)); a.put(w_dma(59, 1))
    a.wait_vm0()
    a.wait_lgkm0()


PR = 56
TAB = 104


def kgen_loads():
    a(f"""s_lshl_b32 s{sT0}, s{sPAIR}, 10
s_lshl_b32 s{sT1}, s{sWAVE}, 8
s_add_u32 s{sT0}, s{sT0}, s{sT1}
v_lshl_add_u32 v3, v{vLANE}, 2, s{sT0}""")
    for k, p in enumerate((P_ARE, P_AIM, P_BRE, P_BIM, P_CRE, P_CIM)):
        a(f"global_load_dword v{PR + k}, v3, {sp(p)}")


def kgen_table_addr():
    l = label("pc")
    a(f"s_getpc_b64 {sp(sTAB)}")
    a(f"{l}:")
    a(f"s_add_u32 s{sTAB}, s{sTAB}, ktab-{l}")
    a(f"s_addc_u32 s{sTAB + 1}, s{sTAB + 1}, 0")


def kgen_table_load():
    kgen_table_addr()
    a(f"s_lshr_b32 s{sT0}, s{sWAVE}, 1\ns_lshl_b32 s{sT0}, s{sT0}, 5\nv_lshl_add_u32 v75, v0, 5, s{sT0}")


def kgen(hooks):
    F = {e: 2 * e for e in range(1, 8)}
    Qr = {1: 16, 2: 18, 3: 20, 4: 22}
    QN = [24, 26]
    Z1, Z2, C0, C1 = 28, 30, 32, 34
    CN = [36, 38]
    T0, T1 = 62, 64
    CV = [66, 67, 68, 69]
    A2, B2, DT = 70, 71, 72
    ACC = 76
    QF = 88
    PF = 40
    vG, vF = 73, 74
    a(f"""s_mul_i32 s{sT0}, s{sWAVE}, {GST}
v_lshl_add_u32 v{vG}, v{vLANE}, 2, s{sT0}
v_and_b32 v2, 15, v{vLANE}
v_mul_u32_u24 v2, {GROW}, v2
v_lshrrev_b32 v3, 4, v{vLANE}
v_lshl_add_u32 v2, v3, 4, v2
v_add_u32 v{vF}, s{sT0}, v2""")
    a.begin()
    a(f"""s_lshr_b32 s{sT0}, s{sWAVE}, 1
s_lshl_b32 s{sT0}, s{sT0}, 4
s_lshr_b32 s{sT0}, s{sLDT}, s{sT0}
s_lshl_b32 s{sT0}, s{sT0}, 16
v_mov_b32 v2, {f32(math.log2(math.e))}
v_mul_f32 v2, s{sT0}, v2
v_exp_f32 v2, v2
v_cvt_pk_bf16_f32 v2, v2, v2
v_lshlrev_b32 v{DT}, 16, v2
s_and_b32 s{sD1}, s{sD0}, 0xffff0000
s_lshl_b32 s{sD0}, s{sD0}, 16""")
    cvi = [0]

    def hook(name):
        if name is not None and name not in hooks:
            return
        a_body = space_ds(a.end(), OPT["lag"], OPT["gap"])
        a.put(a_body)
        if name is not None:
            hooks[name]()
            a.begin()

    def row(r, src, neg=False):
        c = CV[cvi[0] % 4]
        cvi[0] += 1
        a(f"v_cvt_pk_bf16_f32 v{c}, v{src}, {'-' if neg else ''}v{src + 1}")
        a(f"ds_write_b32 v{vG}, v{c} offset:{r * GROW}")

    def reads(dst, tile):
        for ks in range(4):
            a(f"ds_read_b128 {vr(dst + 4 * ks, 4)}, v{vF} offset:{tile * 16 * GROW + ks * 64}")

    def mfmas(t, first):
        for ks in range(4):
            c = "0" if (first and ks == 0) else vr(ACC + 4 * t, 4)
            a(f"v_mfma_f32_16x16x32_bf16 {vr(ACC + 4 * t, 4)}, {vr(PF + 4 * ks, 4)}, {vr(QF + 4 * ks, 4)}, {c}")

    def direct(d, scale):
        if scale != 1:
            a(f"v_mul_f32 v{T0}, {f32(scale)}, v{A2}")
            a(f"v_mul_f32 v{T1}, {f32(scale)}, v{B2}")
            x, y = T0, T1
        else:
            x, y = A2, B2
        a(f"v_fract_f32 v{T1}, v{y}")
        a(f"v_exp_f32 v{T0}, v{x}")
        a(f"v_cos_f32 v{d}, v{T1}")
        a(f"v_sin_f32 v{d + 1}, v{T1}")
        a(f"v_pk_mul_f32 {vr(d, 2)}, {vr(d, 2)}, {vr(T0, 2)} op_sel_hi:[1,0]")

    for rd in range(2):
        def up(d, s):
            a(f"v_lshlrev_b32 v{d}, 16, v{s}" if rd == 0 else f"v_and_b32 v{d}, 0xffff0000, v{s}")
        up(A2, PR); up(B2, PR + 1)
        up(QN[0], PR + 2); up(QN[0] + 1, PR + 3)
        up(QN[1], PR + 4); up(QN[1] + 1, PR + 5)
        a(f"v_mul_f32 v{A2}, v{DT}, v{A2}")
        a(f"v_mul_f32 v{B2}, v{DT}, v{B2}")
        a(f"v_pk_mul_f32 {vr(QN[0], 2)}, {vr(QN[0], 2)}, {vr(DT, 2)} op_sel_hi:[1,0]")
        a(f"v_mul_f32 v{A2}, {f32(math.log2(math.e))}, v{A2}")
        a(f"v_mul_f32 v{B2}, {f32(1 / (2 * math.pi))}, v{B2}")
        cmul2((C0, QN[1], QN[0]))
        direct(F[1], 1)
        if rd == 1:
            mfmas(2, True)
        direct(Z1, 128)
        hook(5 * rd)
        if rd == 1:
            a(f"global_load_dwordx4 {vr(TAB, 4)}, v75, {sp(sTAB)}")
            a(f"global_load_dwordx4 {vr(TAB + 4, 4)}, v75, {sp(sTAB)} offset:16")
            a(f"global_load_dwordx2 v[64:65], v75, {sp(sTAB)} offset:32")
        cmul2((F[2], F[1], F[1]), (Z2, Z1, Z1))
        cmul2((F[4], F[2], F[2]), (F[3], F[2], F[1]))
        cmul2((Qr[1], F[4], F[4]), (C1, C0, Z1))
        a(f"v_mov_b32 v{CV[3]}, 0x3f80")
        a(f"ds_write_b32 v{vG}, v{CV[3]}")
        cmul2((Qr[2], Qr[1], Qr[1]), (F[5], F[4], F[1]))
        row(1, Qr[1], True)
        cmul2((Qr[3], Qr[2], Qr[1]), (Qr[4], Qr[2], Qr[2]))
        row(2, Qr[2], True)
        cmul2((F[6], F[4], F[2]), (F[7], F[4], F[3]))
        row(3, Qr[3], True)
        row(4, Qr[4], True)
        cur = {1: Qr[1], 2: Qr[2], 3: Qr[3], 0: Qr[4]}
        free = list(QN) + [CN[0]]
        j = 5
        while j < 16:
            js = [j] + ([j + 1] if j + 1 < 16 else [])
            ps = []
            for jj in js:
                d = free.pop(0)
                ps.append((d, cur[jj % 4], Qr[4]))
            cmul2(*ps)
            for jj, p in zip(js, ps):
                if cur[jj % 4] != Qr[4]:
                    free.append(cur[jj % 4])
                cur[jj % 4] = p[0]
                row(jj, p[0], True)
            j += 2
        reads(QF, 0)
        hook(5 * rd + 1)
        TA, TB = QN
        row(16, C0); row(24, C1)
        for e in range(1, 8):
            cmul2((TA, C0, F[e]), (TB, C1, F[e]))
            row(16 + e, TA); row(24 + e, TB)
        reads(PF, 1)
        hook(5 * rd + 2)
        ca, cb = C0, C1
        na, nb_ = CN
        def adv():
            nonlocal ca, cb, na, nb_
            cmul2((na, ca, Z2), (nb_, cb, Z2))
            ca, cb, na, nb_ = na, nb_, ca, cb
        adv()
        row(32, ca); row(36, cb)
        for e in range(1, 4):
            cmul2((TA, ca, F[2 * e]), (TB, cb, F[2 * e]))
            row(32 + e, TA); row(36 + e, TB)
        mfmas(0, rd == 0)
        for k in range(2):
            adv()
            row(40 + 4 * k, ca); row(42 + 4 * k, cb)
            cmul2((TA, ca, F[4]), (TB, cb, F[4]))
            row(41 + 4 * k, TA); row(43 + 4 * k, TB)
        reads(PF, 2)
        hook(5 * rd + 3)
        for k in range(4):
            adv()
            row(48 + 2 * k, ca); row(49 + 2 * k, cb)
        cmul2((na, ca, Z2))
        row(56, na)
        mfmas(1, rd == 0)
        reads(PF, 3)
        hook(5 * rd + 4)
    hook(None)
    a(f"s_mul_i32 s{sT0}, s{sWAVE}, {GST}")
    a(f"v_add_u32 v{vF}, s{sT0}, v{vL16}")
    a(f"v_mov_b32 v{CV[0]}, 0")
    for k in range(8):
        a(f"v_and_b32 v{2 + 2 * k}, 0xffff, v{TAB + k}")
        a(f"v_lshrrev_b32 v{3 + 2 * k}, 16, v{TAB + k}")
    for t in range(2):
        a(f"ds_write_b128 v{vF}, {vr(ACC + 4 * t, 4)} offset:{TOFF + t * 1024}")
    mfmas(2, False)
    a(f"ds_write_b32 v{vG}, v{CV[0]} offset:{TOFF + 3072}")
    a("v_and_b32 v18, 0xffff, v64\nv_lshrrev_b32 v19, 16, v64\nv_and_b32 v20, 0xffff, v65")
    a(f"ds_write_b128 v{vF}, {vr(ACC + 8, 4)} offset:{TOFF + 2048}")


def kzero(r):
    a(f"""v_mov_b32 v{r}, 0
v_mov_b32 v{r + 1}, 0
v_mov_b32 v{r + 2}, 0
v_mov_b32 v{r + 3}, 0
v_bfe_u32 v{r + 4}, v{vLANE}, 1, 3
v_mul_u32_u24 v{r + 4}, {KST}, v{r + 4}
v_and_b32 v{r + 5}, 1, v{vLANE}
v_lshl_add_u32 v{r + 4}, v{r + 5}, 4, v{r + 4}
v_lshrrev_b32 v{r + 5}, 5, v{vLANE}
v_mul_u32_u24 v{r + 5}, {UST - 512}, v{r + 5}
v_add_u32 v{r + 5}, v{r + 5}, v{vL16}""")
    return [f"ds_write_b128 v{r + 4}, {vr(r, 4)} offset:4096", f"ds_write_b128 v{r + 5}, {vr(r, 4)} offset:{UB}"]


def kaddr(r):
    a(f"""s_lshr_b32 s{sT0}, s{sWAVE}, 1
s_and_b32 s{sT1}, s{sWAVE}, 1
s_lshl_b32 s{sT1}, s{sT1}, 11
v_lshl_add_u32 v{r + 3}, v{vLANE}, 5, s{sT1}""")
    for c in range(4):
        a(f"s_cmp_lg_u32 s{sT0}, 0")
        a(f"s_cselect_b32 s{sT2}, {KSLOT[1][c]}, {KSLOT[0][c]}")
        a(f"s_mul_i32 s{sT2}, s{sT2}, {KST}")
        a(f"v_add_u32 v{r + c}, s{sT2}, v{r + 3}")


def kexpand(mid):
    AD, VAL = 2, 22
    P0, P1, P2, P3 = 2, 12, 88, 96
    a.barrier()
    for k in range(19):
        a(f"ds_read2st64_b32 {vr(VAL + 2 * k, 2)}, v{AD + k} offset0:{TOFF // 256} offset1:{TOFF // 256 + GST // 256}")
    mid()
    kaddr(60)
    zw = kzero(104)
    for k in range(19):
        a(f"v_add_f32 v{VAL + 2 * k}, v{VAL + 2 * k}, v{VAL + 2 * k + 1}")
        if k:
            a(f"v_cvt_pk_bf16_f32 v{(P0 if k & 1 else P1) + (k - 1) // 2}, v{VAL + 2 * k - 2}, v{VAL + 2 * k}")
    a.barrier()
    for l in zw:
        a(l)
    for c, P in ((0, P0), (1, P1)):
        a(f"ds_write_b128 v{60 + c}, {vr(P, 4)}")
        a(f"ds_write_b128 v{60 + c}, {vr(P + 4, 4)} offset:16")
    for c, P, src in ((2, P2, P0), (3, P3, P1)):
        for i in range(4):
            a(f"v_pk_mov_b32 {vr(P + 2 * i, 2)}, {vr(src + 2 * i, 2)}, {vr(src + 2 * i + 2, 2)} op_sel:[1,0]")
        a(f"ds_write_b128 v{60 + c}, {vr(P, 4)}")
        a(f"ds_write_b128 v{60 + c}, {vr(P + 4, 4)} offset:16")


def kcopies():
    R, E, M = 2, 12, 22
    kaddr(40)
    a(f"""ds_read_b128 {vr(R, 4)}, v40
ds_read_b128 {vr(R + 4, 4)}, v40 offset:16
ds_read_b64 {vr(R + 8, 2)}, v40 offset:32""")
    for l in kzero(32):
        a(l)
    for i in range(9):
        a(f"v_alignbit_b32 v{E + i}, v{R + i + 1}, v{R + i}, 16")
    a(f"ds_write_b128 v41, {vr(E, 4)}")
    a(f"ds_write_b128 v41, {vr(E + 4, 4)} offset:16")
    for i in range(4):
        a(f"v_pk_mov_b32 {vr(M + 2 * i, 2)}, {vr(R + 2 * i, 2)}, {vr(R + 2 * i + 2, 2)} op_sel:[1,0]")
    a(f"ds_write_b128 v42, {vr(M, 4)}")
    a(f"ds_write_b128 v42, {vr(M + 4, 4)} offset:16")
    for i in range(4):
        a(f"v_pk_mov_b32 {vr(R + 2 * i, 2)}, {vr(E + 2 * i, 2)}, {vr(E + 2 * i + 2, 2)} op_sel:[1,0]")
    a(f"ds_write_b128 v43, {vr(R, 4)}")
    a(f"ds_write_b128 v43, {vr(R + 4, 4)} offset:16")


GX = 80
CS = 64
cvA, cvB, cvZ, cvXW, cvXR, cvO, cvU, cvX, cvH, cvP = 112, 113, 114, 115, 116, 117, 118, 119, 100, 108
STUBS = []


def conv_poll1():
    r = cvP
    a(f"""v_lshrrev_b32 v{r}, 3, v{vLANE}
v_min_u32 v{r}, 6, v{r}
v_and_b32 v{r + 1}, 7, v{vLANE}
v_lshl_add_u32 v{r + 2}, v{r}, 5, v{r + 1}
s_lshl_b32 s{sT0}, s{sWAVE}, 3
v_add_u32 v{r + 2}, s{sT0}, v{r + 2}""")


def conv_loads():
    for p in range(4):
        a(f"buffer_load_dwordx4 {vr(CS + 4 * p, 4)}, v{vL16}, {srd(S_WS)}, s{16 + p} offen sc1")
    a(f"buffer_load_dwordx4 {vr(GX, 4)}, v{cvX}, {srd(S_WS)}, s20 offen sc1")
    a(f"buffer_load_dwordx4 {vr(GX + 4, 4)}, v{cvX}, {srd(S_WS)}, s20 offen offset:64 sc1")


def conv_setup(layer):
    a(f"""s_mov_b32 s{sCA}, {f32(1.0 / 448)}
s_mov_b32 s{sCB}, {f32(1e-5)}
s_lshl_b32 s{sT0}, s{sWAVE}, 10
v_add_u32 v{cvU}, s{sT0}, v{vL16}
s_lshr_b32 s{sT0}, s{sWAVE}, 1
s_and_b32 s{sT1}, s{sWAVE}, 1
v_and_b32 v8, 15, v{vLANE}
v_lshrrev_b32 v9, 4, v{vLANE}
v_not_b32 v10, v8
v_and_b32 v10, 3, v10""")
    for s in range(4):
        a(f"s_cmp_lg_u32 s{sT0}, 0")
        a(f"s_cselect_b32 s{sT2}, {KSLOT[1][s]}, {KSLOT[0][s]}")
        a(f"s_mul_i32 s{sT2}, s{sT2}, {KST}")
        if s == 0:
            a(f"v_mov_b32 v11, s{sT2}")
        else:
            a(f"v_mov_b32 v12, s{sT2}\nv_cmp_eq_u32 vcc, {s}, v10\nv_cndmask_b32 v11, v11, v12, vcc")
    a(f"""v_add_u32 v10, v10, v8
v_lshlrev_b32 v12, 3, v9
v_sub_u32 v12, v12, v10
v_lshl_add_u32 v11, v12, 1, v11
s_lshl_b32 s{sT2}, s{sT1}, 8
s_sub_u32 s{sT2}, {2 * 2031 - 64 * 59}, s{sT2}
v_add_u32 v{cvA}, s{sT2}, v11
s_mul_i32 s{sT2}, s{sT0}, {UST}
s_lshl_b32 s{sT3}, s{sT1}, 8
s_sub_u32 s{sT2}, s{sT2}, s{sT3}
s_add_u32 s{sT2}, s{sT2}, {UB + 2 * (240 - 96)}
v_lshlrev_b32 v12, 5, v8
v_lshl_add_u32 v13, v9, 4, v12
v_add_u32 v{cvB}, s{sT2}, v13
s_lshl_b32 s{sT2}, s{sWAVE}, 11
v_lshl_add_u32 v13, v9, 3, v12
v_add_u32 v{cvZ}, s{sT2}, v13
s_xor_b32 s{sT2}, s{sWAVE}, 1
s_lshl_b32 s{sT2}, s{sT2}, 12
v_add_u32 v{cvXW}, s{sT2}, v{vL16}
s_lshl_b32 s{sT2}, s{sWAVE}, 12
v_add_u32 v{cvXR}, s{sT2}, v{vL16}
v_and_b32 v10, 1, v9
v_lshlrev_b32 v10, 3, v10
v_lshrrev_b32 v11, 1, v8
v_add_u32 v10, v10, v11
v_mul_u32_u24 v10, {BS}, v10
v_and_b32 v11, 1, v8
v_lshl_add_u32 v10, v11, 5, v10
v_lshrrev_b32 v11, 1, v9
v_lshl_add_u32 v{cvO}, v11, 4, v10
s_mul_i32 s{sT1}, s{sT1}, {32 * BS}
s_lshl_b32 s{sT2}, s{sPAIR}, 1
s_add_u32 s{sT0}, s{sT0}, s{sT2}
s_lshl_b32 s{sT0}, s{sT0}, 6
s_add_u32 s{sT0}, s{sT0}, s{sT1}
s_add_u32 s13, s{sT0}, {X1 if layer == 0 else X3}
s_add_u32 s21, s13, {16 * BS}
s_lshl_b32 s16, s{sWAVE}, 10
s_add_u32 s16, s16, {ST0 if layer == 0 else ST1}
s_add_u32 s17, s16, 4096
s_add_u32 s18, s16, 8192
s_add_u32 s19, s16, 12288
s_mul_i32 s20, s{sWAVE}, {16 * BS}
s_lshl_b32 s{sT2}, s{sPAIR}, 7
s_add_u32 s20, s20, s{sT2}
s_add_u32 s20, s20, {X0 if layer == 0 else X2}
v_lshrrev_b32 v10, 2, v{vLANE}
v_mul_u32_u24 v10, {BS}, v10
v_and_b32 v11, 3, v{vLANE}
v_lshl_add_u32 v{cvX}, v11, 4, v10""")


cXF, cUF, cAL, cBE, cUP = 0, 16, 32, 40, 48


def conv_pro(layer):
    XF, UF, AL, BE, UP = cXF, cUF, cAL, cBE, cUP
    for p in range(4):
        S = CS + 4 * p
        a(f"v_pk_mul_f32 {vr(S, 2)}, {vr(S, 2)}, {sp(sCA)} op_sel_hi:[1,0]")
    for p in range(4):
        S = CS + 4 * p
        a(f"v_pk_fma_f32 {vr(BE + 2 * p, 2)}, {vr(S, 2)}, {vr(S, 2)}, {sp(sCB)} op_sel_hi:[1,1,0] neg_lo:[1,0,0] neg_hi:[1,0,0]")
    for p in range(4):
        Q = CS + 4 * p + 2
        a(f"v_pk_fma_f32 {vr(Q, 2)}, {vr(Q, 2)}, {sp(sCA)}, {vr(BE + 2 * p, 2)} op_sel_hi:[1,0,1]")
    for p in range(4):
        Q = CS + 4 * p + 2
        a(f"v_max_f32 v{Q}, s{sCB}, v{Q}\nv_max_f32 v{Q + 1}, s{sCB}, v{Q + 1}")
    for p in range(4):
        Q = CS + 4 * p + 2
        a(f"v_rsq_f32 v{AL + 2 * p}, v{Q}\nv_rsq_f32 v{AL + 2 * p + 1}, v{Q + 1}")
    for k in range(8):
        unpack(XF + 2 * k, XF + 2 * k + 1, GX + k)
    for p in range(4):
        S = CS + 4 * p
        a(f"v_pk_mul_f32 {vr(BE + 2 * p, 2)}, {vr(S, 2)}, {vr(AL + 2 * p, 2)} neg_lo:[1,0] neg_hi:[1,0]")
    for c in range(2):
        for p in range(4):
            a(f"v_pk_fma_f32 {vr(UF + 8 * c + 2 * p, 2)}, {vr(XF + 8 * c + 2 * p, 2)}, {vr(AL + 2 * p, 2)}, {vr(BE + 2 * p, 2)}")
        for p in range(4):
            a(f"v_cvt_pk_bf16_f32 v{UP + 4 * c + p}, v{UF + 8 * c + 2 * p}, v{UF + 8 * c + 2 * p + 1}")
        a(f"ds_write_b128 v{cvU}, {vr(UP + 4 * c, 4)} offset:{UB + c * UST + 512}")


def conv_z():
    XF, UF, ZP = cXF, cUF, 88
    for c in range(2):
        for p in range(4):
            a(f"v_pk_fma_f32 {vr(UF + 8 * c + 2 * p, 2)}, {vr(UF + 8 * c + 2 * p, 2)}, {sp((sD0, sD1)[c])}, {vr(XF + 8 * c + 2 * p, 2)} op_sel_hi:[1,0,1]")
        for p in range(4):
            a(f"v_cvt_pk_bf16_f32 v{ZP + 4 * c + p}, v{UF + 8 * c + 2 * p}, v{UF + 8 * c + 2 * p + 1}")
        a(f"ds_write_b128 v{cvU}, {vr(ZP + 4 * c, 4)} offset:{ZB + c * 4096}")


def conv_main(layer, bg=(), bg_start=0, bg_every=64):
    ACC, BF, AR = 0, 32, 64
    NA = 5
    seq = [(r, q) for r in range(4) for q in range(7, -1, -1)]

    def rdA(i):
        r, q = seq[i]
        d = AR + 4 * (i % NA)
        off = 64 * (59 - (8 * q + r))
        return [Ins(f"ds_read_b64 {vr(d, 2)}, v{cvA} offset:{off}"), Ins(f"ds_read_b64 {vr(d + 2, 2)}, v{cvA} offset:{off + 8}")]

    def rdB(r, p):
        return [Ins(f"ds_read_b128 {vr(BF + 4 * p, 4)}, v{cvB} offset:{512 * p + 64 * (3 - r)}")]

    a.put(rdA(0)); a.put(rdB(0, 0)); a.put(rdA(1)); a.put(rdB(0, 1)); a.put(rdA(2)); a.put(rdB(0, 2)); a.put(rdA(3))
    for p in range(3, 8):
        a.put(rdB(0, p))
    conv_z()
    if OPT["sent"]:
        hint_prep(1 + 4 * layer, sPAIR, cvH)
    a.begin()
    started = set()
    for i, (r, q) in enumerate(seq):
        for p in range(8 - q):
            b = q + p
            c = vr(ACC + 4 * b, 4) if b in started else "0"
            started.add(b)
            a(f"v_mfma_f32_16x16x32_bf16 {vr(ACC + 4 * b, 4)}, {vr(AR + 4 * (i % NA), 4)}, {vr(BF + 4 * p, 4)}, {c}")
            if p == 0 and i + 4 < len(seq):
                a.put(rdA(i + 4))
            if q == 0 and r < 3:
                a.put(rdB(r + 1, p))
    m, rest = merge(a.end(), list(bg), bg_start, bg_every)
    a.put(m)
    stamp(f"conv{layer} loop", 111)
    if OPT["sent"] and layer == 0:
        poll_take(cvP)
    RR, ZR, ZF = 32, 48, 64
    a.barrier()
    if OPT["sent"] and OPT["h_cv"] == 0:
        hint_put(cvH)
    for i in range(4):
        a(f"ds_read_b64 {vr(ZR + 2 * i, 2)}, v{cvZ} offset:{ZB + i * 512}")
    l1, l2 = label("cx"), label("cy")
    a(f"s_bitcmp1_b32 s{sWAVE}, 0")
    a(f"s_cbranch_scc1 {l1}")
    for i in range(4):
        a(f"ds_write_b128 v{cvXW}, {vr(ACC + 16 + 4 * i, 4)} offset:{EX + i * 1024}")
    a(f"s_branch {l2}")
    a(f"{l1}:")
    for i in range(4):
        a(f"ds_write_b128 v{cvXW}, {vr(ACC + 4 * i, 4)} offset:{EX + i * 1024}")
    for i in range(8):
        a(f"v_pk_mov_b32 {vr(ACC + 2 * i, 2)}, {vr(ACC + 16 + 2 * i, 2)}, {vr(ACC + 16 + 2 * i, 2)} op_sel:[0,1]")
    a(f"{l2}:")
    for k in range(8):
        unpack(ZF + 2 * k, ZF + 2 * k + 1, ZR + k)
    for k in range(8):
        a(f"v_pk_add_f32 {vr(ACC + 2 * k, 2)}, {vr(ACC + 2 * k, 2)}, {vr(ZF + 2 * k, 2)}")
    a.barrier()
    if OPT["sent"] and OPT["h_cv"] == 1:
        hint_put(cvH)
    for i in range(4):
        a(f"ds_read_b128 {vr(RR + 4 * i, 4)}, v{cvXR} offset:{EX + i * 1024}")
    PK = 56
    for i in range(4):
        for k in range(2):
            a(f"v_pk_add_f32 {vr(ACC + 4 * i + 2 * k, 2)}, {vr(ACC + 4 * i + 2 * k, 2)}, {vr(RR + 4 * i + 2 * k, 2)}")
        for k in range(2):
            a(f"v_cvt_pk_bf16_f32 v{PK + 2 * i + k}, v{ACC + 4 * i + 2 * k}, v{ACC + 4 * i + 2 * k + 1}")
        if i & 1:
            b = PK + 2 * (i - 1)
            a(f"v_permlane16_swap_b32 v{b}, v{b + 2}")
            a(f"v_permlane16_swap_b32 v{b + 1}, v{b + 3}")
            a(f"buffer_store_dwordx4 {vr(b, 4)}, v{cvO}, {srd(S_WS)}, s{21 if i == 3 else 13} offen sc1", tag="pub")
    if OPT["sent"]:
        if OPT["h_cv"] == 2:
            hint_put(cvH)
        a.barrier()
    else:
        flag_put(1 + 4 * layer, sPAIR, 40, "pub")
    return rest


def reduce32(V, n, W):
    for i in range(n):
        a(f"v_permlane16_swap_b32 v{V[i]}, v{V[n + i]}")
    for i in range(n):
        a(f"v_add_f32 v{V[i]}, v{V[i]}, v{V[n + i]}")
    h = n // 2
    for i in range(h):
        a(f"v_add_f32_dpp v{W[i]}, v{V[i]}, v{V[i]} row_ror:8 row_mask:0xf bank_mask:0x3")
    for i in range(h):
        a(f"v_add_f32_dpp v{W[i]}, v{V[i + h]}, v{V[i + h]} row_ror:8 row_mask:0xf bank_mask:0xc")
    g = h // 2
    for i in range(g):
        a(f"v_add_f32_dpp v{V[i]}, v{W[i]}, v{W[i]} row_half_mirror row_mask:0xf bank_mask:0x5")
    for i in range(g):
        a(f"v_add_f32_dpp v{V[i]}, v{W[i + g]}, v{W[i + g]} row_half_mirror row_mask:0xf bank_mask:0xa")
    for m in ("[1,0,3,2]", "[2,3,0,1]"):
        for i in range(g):
            a(f"v_add_f32_dpp v{V[i]}, v{V[i]}, v{V[i]} quad_perm:{m} row_mask:0xf bank_mask:0xf")
    return V[:g]


def maxchain(t, regs):
    regs = list(regs)
    out = [f"v_max3_u32 v{t}, v{regs[0]}, v{regs[1]}, v{regs[2]}"]
    regs = regs[3:]
    while len(regs) >= 2:
        out.append(f"v_max3_u32 v{t}, v{t}, v{regs[0]}, v{regs[1]}")
        regs = regs[2:]
    if regs:
        out.append(f"v_max_u32 v{t}, v{t}, v{regs[0]}")
    return out


RETRY = 0x10000


def ln(layer, wide):
    X = X1 if layer == 0 else X3
    H = H1 if layer == 0 else H3
    nf = 7 if wide else 4
    sI = sLN0 if wide else sLN
    RAW, XF, S, Q, W = 0, 28, 84, 92, 100
    vO, vPW, vPR, vAW, vAR, r, hr = 109, 110, 111, 112, 117, 114, 104
    vX, vS = 64, 68
    a(f"""s_mul_i32 s{sT0}, s{sWAVE}, 56
v_min_u32 v{r + 2}, 55, v{vLANE}
v_add_u32 v{r + 2}, s{sT0}, v{r + 2}""")
    a.wait_tag("flag")
    poll_issue(1 + 4 * layer, r)
    if wide:
        a(f"""s_mul_i32 s16, s{sI}, {BS}
s_lshl_b32 s{sT2}, s{sI}, 12""")
    else:
        a(f"""s_lshr_b32 s16, s{sI}, 1
s_mul_i32 s16, s16, {BS}
s_and_b32 s{sT0}, s{sI}, 1
s_lshl_b32 s{sT0}, s{sT0}, 5
s_add_u32 s16, s16, s{sT0}
s_lshl_b32 s{sT2}, s{sI}, 11""")
    a(f"""s_mul_i32 s{sT0}, s{sWAVE}, 7168
s_add_u32 s16, s16, s{sT0}
s_add_u32 s16, s16, {X}
s_add_u32 s17, s16, 4096
s_add_u32 s{sT2}, s{sT2}, {H}
s_mul_i32 s30, s{sWAVE}, 7""")
    if wide:
        for i in range(nf):
            a(f"""s_add_u32 s{sT0}, s30, {i}
s_lshr_b32 s{sT1}, s{sT0}, 2
s_lshl_b32 s{sT1}, s{sT1}, 18
s_add_u32 s{23 + i}, s{sT1}, s{sT2}
s_and_b32 s{sT1}, s{sT0}, 2
s_lshl_b32 s{sT1}, s{sT1}, 9
s_add_u32 s{23 + i}, s{23 + i}, s{sT1}
s_and_b32 s{sT1}, s{sT0}, 1
s_lshl_b32 s{sT1}, s{sT1}, 8
s_add_u32 s{23 + i}, s{23 + i}, s{sT1}""")
        a(f"""v_lshrrev_b32 v1, 2, v{vLANE}
v_lshlrev_b32 v{vO}, 4, v1
v_and_b32 v2, 1, v{vLANE}
v_lshl_add_u32 v{vO}, v2, 9, v{vO}
v_bfe_u32 v2, v{vLANE}, 1, 1
v_lshl_add_u32 v{vO}, v2, 11, v{vO}
v_and_b32 v1, 7, v1
v_and_b32 v2, 3, v{vLANE}
v_lshl_add_u32 v1, v2, 3, v1""")
    else:
        a(f"""v_lshrrev_b32 v1, 1, v{vLANE}
v_and_b32 v2, 1, v{vLANE}
v_lshlrev_b32 v{vX}, 6, v1
v_lshl_add_u32 v{vX}, v2, 4, v{vX}
v_mov_b32 v3, {OOB}
v_cmp_gt_u32 vcc, 32, v{vLANE}
v_cndmask_b32 v{vX + 1}, v3, v{vX}, vcc
s_lshl_b32 s30, s30, 4
s_mov_b32 s23, s{sT2}""")
        for i in range(nf):
            a(f"""v_add_u32 v4, s30, v1
v_lshrrev_b32 v5, 6, v4
v_lshlrev_b32 v5, 18, v5
v_bfe_u32 v6, v4, 5, 1
v_lshl_add_u32 v5, v6, 10, v5
v_and_b32 v6, 31, v4
v_lshl_add_u32 v5, v6, 4, v5
v_lshl_add_u32 v{vS + i}, v2, 9, v5""")
            if i < 3:
                a("s_add_u32 s30, s30, 32")
        a(f"""v_cndmask_b32 v{vS + 3}, v3, v{vS + 3}, vcc
v_bfe_u32 v1, v{vLANE}, 2, 3
v_lshl_add_u32 v1, v2, 3, v1""")
    a(f"""v_lshrrev_b32 v3, 5, v{vLANE}
v_lshl_add_u32 v1, v3, 5, v1
s_lshl_b32 s{sT1}, s{sWAVE}, 8
s_add_u32 s{sT1}, s{sT1}, {LNP}
v_lshl_add_u32 v{vPW}, v1, 2, s{sT1}
v_and_b32 v1, 31, v{vLANE}
v_lshlrev_b32 v{vPR}, 2, v1
v_add_u32 v{vPR}, {LNP}, v{vPR}
s_add_u32 s{sT1}, s{sT1}, 1024
v_lshl_add_u32 v{vAW}, v{vLANE}, 2, s{sT1}
v_lshl_add_u32 v{vAR}, v2, 5, s{sT1}
s_mov_b32 s18, 0
s_mov_b32 s19, -1""")
    prod = f"s_lshl_b32 s{sT0}, s{sI}, 6"
    if OPT["sent"]:
        hint_prep(2 + 4 * layer, prod, hr)
    poll_take(r)
    stamp(f"ln{layer} go")

    def loads():
        if not wide:
            return [f"buffer_load_dwordx4 {vr(RAW + 4 * i, 4)}, v{vX + (i == 3)}, {srd(S_WS)}, s{16 + i // 2} offen offset:{2048 * (i % 2)} sc1" for i in range(nf)]
        return [f"buffer_load_dwordx4 {vr(RAW + 4 * i, 4)}, v{vL16}, {srd(S_WS)}, s{16 + i // 4} offen offset:{1024 * (i % 4)} sc1" for i in range(nf)]
    for l in loads():
        a(l)
    if OPT["sent"]:
        back, stub = label("lnb"), label("lns")
        chk = maxchain(113, range(RAW, RAW + 4 * nf)) + ["v_cmp_eq_u32 vcc, -1, v113"]
        a(f"s_mov_b32 s{sCNT}, 0")
        for l in chk:
            a(l)
        a(f"s_cbranch_vccnz {stub}")
        a(f"{back}:")
        STUBS.extend([f"{stub}:"] + loads() + ["s_waitcnt vmcnt(0)"] + chk + [f"s_add_u32 s{sCNT}, s{sCNT}, 1", f"s_cbranch_vccz {back}",
                      f"s_cmp_lt_u32 s{sCNT}, {RETRY}", f"s_cbranch_scc1 {stub}", f"s_branch {back}"])
        if OPT["h_ln"] == 0:
            hint_put(hr)
    if OPT["stamps"] == 1:
        a.wait_vm0()
    stamp(f"ln{layer} data", 113)
    for i in range(nf):
        for k in range(4):
            unpack(XF + 8 * i + 2 * k, XF + 8 * i + 2 * k + 1, RAW + 4 * i + k)
        for k in range(4):
            x = vr(XF + 8 * i + 2 * k, 2)
            if i == 0:
                a(f"v_pk_mul_f32 {vr(Q + 2 * k, 2)}, {x}, {x}")
            else:
                a(f"v_pk_fma_f32 {vr(Q + 2 * k, 2)}, {x}, {x}, {vr(Q + 2 * k, 2)}")
                a(f"v_pk_add_f32 {vr(S + 2 * k, 2)}, {vr(XF + 2 * k, 2) if i == 1 else vr(S + 2 * k, 2)}, {x}")
    if OPT["sent"] and OPT["h_ln"] == 1:
        hint_put(hr)
    for i in range(8):
        a(f"v_permlane32_swap_b32 v{S + i}, v{Q + i}")
    for i in range(0, 8, 2):
        a(f"v_pk_add_f32 {vr(S + i, 2)}, {vr(S + i, 2)}, {vr(Q + i, 2)}")
    for i in range(4):
        a(f"v_permlane16_swap_b32 v{S + i}, v{S + 4 + i}")
    for i in range(0, 4, 2):
        a(f"v_pk_add_f32 {vr(S + i, 2)}, {vr(S + i, 2)}, {vr(S + 4 + i, 2)}")
    for i in range(2):
        a(f"v_add_f32_dpp v{W + i}, v{S + i}, v{S + i} row_ror:8 row_mask:0xf bank_mask:0x3")
    for i in range(2):
        a(f"v_add_f32_dpp v{W + i}, v{S + 2 + i}, v{S + 2 + i} row_ror:8 row_mask:0xf bank_mask:0xc")
    a(f"v_add_f32_dpp v{S}, v{W}, v{W} row_shl:4 row_mask:0xf bank_mask:0x5")
    a(f"v_add_f32_dpp v{S}, v{W + 1}, v{W + 1} row_shr:4 row_mask:0xf bank_mask:0xa")
    if not wide:
        a(f"v_add_f32_dpp v{S}, v{S}, v{S} quad_perm:[2,3,0,1] row_mask:0xf bank_mask:0xf")
    a(f"ds_write_b32 v{vPW}, v{S}")
    a.barrier()
    if OPT["sent"] and OPT["h_ln"] == 2:
        hint_put(hr)
    stamp(f"ln{layer} bar", 113)
    T = 0
    for w in range(4):
        a(f"ds_read2_b32 {vr(T + 2 * w, 2)}, v{vPR} offset0:{w * 64} offset1:{w * 64 + 32}")
    a(f"""v_pk_add_f32 {vr(T, 2)}, {vr(T, 2)}, {vr(T + 2, 2)}
v_pk_add_f32 {vr(T + 4, 2)}, {vr(T + 4, 2)}, {vr(T + 6, 2)}
v_pk_add_f32 {vr(T, 2)}, {vr(T, 2)}, {vr(T + 4, 2)}
v_mul_f32 v{T}, {f32(1 / 448)}, v{T}
v_mul_f32 v{T + 1}, {f32(1 / 448)}, v{T + 1}
v_fma_f32 v{T + 1}, -v{T}, v{T}, v{T + 1}
v_max_f32 v{T + 1}, 0, v{T + 1}
v_add_f32 v{T + 2}, {f32(1e-5)}, v{T + 1}
v_fmamk_f32 v{T + 2}, v{T + 2}, {f32(1e-5)}, v{T + 1}
v_rsq_f32 v{T + 2}, v{T + 2}
v_mul_f32 v{T + 3}, -v{T}, v{T + 2}
v_cndmask_b32 v{T + 2}, v{T + 2}, v{T + 3}, s[18:19]
ds_write_b32 v{vAW}, v{T + 2}""")
    AL, BE = S, Q
    done_hint = []
    a(f"""ds_read_b128 {vr(AL, 4)}, v{vAR}
ds_read_b128 {vr(BE, 4)}, v{vAR} offset:128
ds_read_b128 {vr(AL + 4, 4)}, v{vAR} offset:16
ds_read_b128 {vr(BE + 4, 4)}, v{vAR} offset:144""")
    for i in range(nf):
        for k in range(4):
            x = vr(XF + 8 * i + 2 * k, 2)
            a(f"v_pk_fma_f32 {x}, {x}, {vr(AL + 2 * k, 2)}, {vr(BE + 2 * k, 2)}")
        for k in range(4):
            a(f"v_cvt_pk_bf16_f32 v{RAW + 4 * i + k}, v{XF + 8 * i + 2 * k}, v{XF + 8 * i + 2 * k + 1}")
        a(f"buffer_store_dwordx4 {vr(RAW + 4 * i, 4)}, v{vO if wide else vS + i}, {srd(S_WS)}, s{23 + i if wide else 23} offen sc1", tag="pub")
        if OPT["sent"] and OPT["h_ln"] - 3 == min(i, 6) * (4 if nf == 7 else 4) // (nf + 1):
            if not done_hint:
                hint_put(hr)
                done_hint.append(1)
    stamp(f"ln{layer} st", 113)
    if not OPT["sent"]:
        flag_put(2 + 4 * layer, prod, 100, "pub")


def gemm_addr():
    a(f"""s_and_b32 s{sT0}, s{sWAVE}, 1
s_lshl_b32 s{sT0}, s{sT0}, 10
v_add_u32 v{vA0}, s{sT0}, v{vL16}
v_xor_b32 v{vA1}, 0x400, v{vA0}""")


vCHK = 121


def gemm_loop(nks, ring, nring, wreg, swap, srot, lds_from=99):
    WF = 104
    nfr = 2 * nks
    sent = OPT["sent"]

    def load(f):
        ks, db = f // 2, f % 2
        g = []
        if db == 0 and ks and ks % 2 == 0:
            g.append(Ins("s_add_u32 s13, s13, 4096"))
            if ks % 4 == 0:
                g += [Ins("s_cmp_eq_u32 s13, s28"), Ins("s_cmov_b32 s13, s27")]
        d = ring + 4 * (f % nring)
        g.append(Ins(f"buffer_load_dwordx4 {vr(d, 4)}, v{(vA0, vA1)[db]}, {srd(S_WS)}, s13 offen offset:{(ks % 2) * 2048} sc1"))
        return g

    def wread(ks):
        g = []
        slot = ks - lds_from
        for nb in range(2):
            for j in range(2):
                d = WF + 8 * (ks % 2) + 4 * nb + 2 * j
                g.append(Ins(f"ds_read_b64_tr_b16 {vr(d, 2)}, v{(vT2a, vT2b)[nb]} offset:{slot * 2048 + j * 1024}", res_r=[f"slot{slot}"]))
        return g

    def check(ks):
        regs = [ring + 4 * ((2 * ks + db) % nring) + k for db in range(2) for k in range(4)]
        chk = maxchain(vCHK, regs) + [f"v_cmp_eq_u32 vcc, -1, v{vCHK}"]
        back, stub = label("gb"), label("gs")
        STUBS.extend([f"{stub}:", f"s_add_u32 s3, s22, {ks * 2048}", "s_cmp_ge_u32 s3, s28", f"s_cselect_b32 s29, {nks * 2048}, 0", "s_sub_u32 s3, s3, s29"] +
                     [f"buffer_load_dwordx4 {vr(ring + 4 * ((2 * ks + db) % nring), 4)}, v{(vA0, vA1)[db]}, {srd(S_WS)}, s3 offen sc1" for db in range(2)] +
                     ["s_waitcnt vmcnt(0)"] + chk + [f"s_add_u32 s{sCNT}, s{sCNT}, 1", f"s_cbranch_vccz {back}",
                                                     f"s_cmp_lt_u32 s{sCNT}, {RETRY}", f"s_cbranch_scc1 {stub}", f"s_branch {back}"])
        return [Ins(x) for x in chk], [Ins(f"s_cbranch_vccnz {stub}"), Ins(f"{back}:")]

    if sent:
        a(f"s_mov_b32 s{sCNT}, 0")
    nxt = min(OPT["fill0"], nring)
    for f in range(nxt):
        a.put(load(f))
    if sent:
        c, b = check(0)
        a.put(c); a.put(b)
    for ks in range(nks):
        pend = wread(ks + 1) if lds_from <= ks + 1 < nks else []
        c, b = check(ks + 1) if (sent and ks + 1 < nks) else ([], [])
        for nb in range(2):
            for db in range(2):
                acc = vr(16 * (2 * nb + db), 16)
                cc = acc if (ks or (nb | db) == 0) else "0"
                w = wreg(ks, nb) if ks < lds_from else vr(WF + 8 * (ks % 2) + 4 * nb, 4)
                x = vr(ring + 4 * ((2 * ks + db) % nring), 4)
                a(f"v_mfma_f32_32x32x16_bf16 {acc}, {x if swap else w}, {w if swap else x}, {cc}")
                if pend:
                    a.put([pend.pop(0)])
                free = nring + 2 * ks + (db + 1 if nb == 1 else 0)
                if nxt < min(nfr, free) and (nb == 1 or db == 1):
                    a.put(load(nxt))
                    nxt += 1
                if nb == 1 and db == 0:
                    a.put(c)
                if nb == 1 and db == 1:
                    a.put(b)


def gemm_rot(nks, srot):
    a(f"s_mov_b32 s27, s13\ns_add_u32 s28, s13, {nks * 2048}\ns_lshl_b32 s{sT0}, s{srot}, 13\ns_add_u32 s13, s13, s{sT0}\ns_mov_b32 s22, s13")


def gemm_reduce_prep():
    for rel in (1, 2, 3):
        a(f"s_xor_b32 s{23 + rel}, s{sWAVE}, {rel}\ns_mul_i32 s{23 + rel}, s{23 + rel}, 12288")
    a(f"s_mul_i32 s23, s{sWAVE}, 12288")


def gemm_reduce(at_barrier=None):
    for rel in range(4):
        a(f"v_add_u32 v{64 + rel}, s{23 + rel}, v{vL16}")
    for rel in (1, 2, 3):
        for q in range(4):
            a(f"ds_write_b128 v{64 + rel}, {vr(16 * rel + 4 * q, 4)} offset:{RB + (rel - 1) * 4096 + q * 1024}")
    if at_barrier:
        at_barrier[0]()
    a.barrier()
    if at_barrier:
        at_barrier[1]()
    for q in range(4):
        for k in range(3):
            a(f"ds_read_b128 {vr(16 + 16 * k + 4 * q, 4)}, v64 offset:{RB + k * 4096 + q * 1024}")
    for q in range(4):
        for h in range(2):
            r = 4 * q + 2 * h
            a(f"v_pk_add_f32 {vr(16 + r, 2)}, {vr(16 + r, 2)}, {vr(32 + r, 2)}")
            a(f"v_pk_add_f32 {vr(r, 2)}, {vr(r, 2)}, {vr(48 + r, 2)}")
        for h in range(2):
            r = 4 * q + 2 * h
            a(f"v_pk_add_f32 {vr(r, 2)}, {vr(r, 2)}, {vr(16 + r, 2)}")


def gemm1(layer, wide, pre=None, bg=()):
    H = H1 if layer == 0 else H3
    G = G1 if layer == 0 else G3
    gemm_addr()
    a(f"""s_lshr_b32 s{sT0}, s{sWAVE}, 1
s_lshl_b32 s{sT0}, s{sT0}, 6
s_lshl_b32 s{sT1}, s{sNT}, 7
s_add_u32 s{sT0}, s{sT0}, s{sT1}
v_lshrrev_b32 v16, 5, v{vLANE}
v_lshl_add_u32 v16, v16, 3, s{sT0}""")
    for q in range(4):
        a(f"global_load_dwordx2 {vr(20 + 2 * q, 2)}, v16, {sp(P_B1)} offset:{16 * q}")
    r = 32
    a(f"""s_lshl_b32 s{sT0}, s{sWAVE}, 5
v_and_b32 v{r + 2}, 31, v{vLANE}
v_add_u32 v{r + 2}, s{sT0}, v{r + 2}
s_lshl_b32 s13, s{sDT1}, 7
s_add_u32 s13, s13, s{sT0}
s_lshl_b32 s13, s13, 11
s_add_u32 s13, s13, {H}""")
    if wide:
        a(f"v_lshrrev_b32 v{r + 2}, 1, v{r + 2}")
    c0 = -2 * math.log2(math.e) * math.sqrt(2 / math.pi)
    a(f"""s_mov_b32 s{sCA}, {f32(c0 * 0.044715)}
s_mul_i32 s21, s{sDT1}, 112
s_lshl_b32 s{sT0}, s{sNT}, 2
s_add_u32 s21, s21, s{sT0}
s_and_b32 s{sT0}, s{sWAVE}, 2
s_add_u32 s21, s21, s{sT0}
s_lshl_b32 s21, s21, 11
s_add_u32 s21, s21, {G}""")
    gemm_reduce_prep()
    gemm_rot(32, sROT1)
    if pre:
        pre()
    for k in range(8):
        unpack(2 * k, 2 * k + 1, 20 + k)
    a.wait_tag("flag")
    poll_issue(2 + 4 * layer, r)
    poll_take(r)
    stamp(f"g1_{layer} go", 63)
    gemm_loop(32, 64, 14, lambda ks, nb: f"a[{(ks * 2 + nb) * 4}:{(ks * 2 + nb) * 4 + 3}]", False, sROT1)
    stamp(f"g1_{layer} loop", 100)
    prod = f"s_mul_i32 s{sT0}, s{sDT1}, 28\ns_add_u32 s{sT0}, s{sT0}, s{sNT}\ns_lshl_b32 s{sT0}, s{sT0}, 6"
    a.begin()
    gemm_reduce((lambda: hint_prep(3 + 4 * layer, prod, 72), lambda: hint_put(72) if OPT["h_g1"] == 0 else None) if OPT["sent"] else None)
    if OPT["sent"] and OPT["h_g1"] == 1:
        hint_put(72)
    a(f"v_mov_b32 v48, {f32(c0)}")
    for half in range(2):
        rs = range(8 * half, 8 * half + 8, 2)
        for r in rs:
            a(f"v_pk_mul_f32 {vr(16 + r, 2)}, {vr(r, 2)}, {vr(r, 2)}")
        for r in rs:
            a(f"v_pk_fma_f32 {vr(16 + r, 2)}, {vr(16 + r, 2)}, {sp(sCA)}, {vr(48, 2)} op_sel_hi:[1,0,0]")
        for r in rs:
            a(f"v_pk_mul_f32 {vr(16 + r, 2)}, {vr(16 + r, 2)}, {vr(r, 2)}")
        for r in rs:
            a(f"v_exp_f32 v{16 + r}, v{16 + r}\nv_exp_f32 v{17 + r}, v{17 + r}")
        for r in rs:
            a(f"v_pk_add_f32 {vr(16 + r, 2)}, {vr(16 + r, 2)}, 1.0 op_sel_hi:[1,0]")
        for r in rs:
            a(f"v_rcp_f32 v{16 + r}, v{16 + r}\nv_rcp_f32 v{17 + r}, v{17 + r}")
        for r in rs:
            a(f"v_pk_mul_f32 {vr(r, 2)}, {vr(r, 2)}, {vr(16 + r, 2)}")
        for r in rs:
            a(f"v_cvt_pk_bf16_f32 v{32 + r // 2}, v{r}, v{r + 1}")
        a(f"buffer_store_dwordx4 {vr(32 + 4 * half, 4)}, v{vA0}, {srd(S_WS)}, s21 offen offset:{2048 * half} sc1", tag="pub")
        if OPT["sent"] and OPT["h_g1"] == 2 + half:
            hint_put(72)
    m, rest = merge(a.end(), list(bg), 0, OPT["ev_g1"])
    a.put(m)
    if OPT["sent"]:
        a.barrier()
    else:
        flag_put(3 + 4 * layer, prod, 40, "pub")
    for g in rest:
        a.put(g)


def gemm2(layer):
    G = G1 if layer == 0 else G3
    gemm_addr()
    a(f"""s_lshr_b32 s{sT0}, s{sWAVE}, 1
s_lshl_b32 s{sT0}, s{sT0}, 5
s_lshl_b32 s{sT1}, s{sST}, 6
s_add_u32 s50, s{sT0}, s{sT1}
s_and_b32 s{sT1}, s{sWAVE}, 1
s_lshl_b32 s{sT1}, s{sT1}, 5
s_lshl_b32 s{sT2}, s{sDT2}, 6
s_add_u32 s51, s{sT1}, s{sT2}
s_lshr_b32 s{sT2}, s50, 5
s_mul_i32 s{sT2}, s{sT2}, {BS}
s_lshl_b32 s{sT1}, s51, 6
s_add_u32 s20, s{sT2}, s{sT1}
s_add_u32 s30, s20, {X1 if layer == 0 else X3}
v_and_b32 v16, 31, v{vLANE}
v_lshrrev_b32 v17, 5, v{vLANE}
s_lshl_b32 s{sT0}, s50, 1""")
    r = 42

    def residual_issue():
        if layer == 0:
            for q in range(4):
                a(f"buffer_load_dwordx2 {vr(20 + 2 * q, 2)}, v18, {srd(S_WS)}, s30 offen offset:{16 * q} sc1")
        else:
            a(f"s_mov_b32 m0, s31")
            a(f"buffer_load_dwordx4 v{vL16}, {srd(S_WS)}, s30 offen sc1 lds", res_w=["x3"])
            a(f"buffer_load_dwordx4 v{vL16}, {srd(S_WS)}, s30 offen offset:1024 sc1 lds", res_w=["x3"])

    def residual_use():
        if layer == 0:
            for k in range(8):
                unpack(2 * k, 2 * k + 1, 20 + k)
            for k in range(8):
                unpack(40, 41, 28 + k)
                a(f"v_pk_add_f32 {vr(2 * k, 2)}, {vr(2 * k, 2)}, v[40:41]")
        else:
            for q in range(4):
                a(f"ds_read_b64_tr_b16 {vr(20 + 2 * q, 2)}, v31 offset:{512 * q}", res_r=["x3"])
            a("v_lshlrev_b32 v40, 16, v29")
            for k in range(8):
                unpack(2 * k, 2 * k + 1, 20 + k)
                a(f"v_pk_add_f32 {vr(2 * k, 2)}, {vr(2 * k, 2)}, v[40:41] op_sel_hi:[1,0]")

    if layer == 0:
        a(f"v_lshlrev_b32 v18, 6, v16\nv_lshl_add_u32 v18, v17, 3, v18\nv_lshl_add_u32 v19, v17, 3, s{sT0}")
        for q in range(4):
            a(f"global_load_dwordx2 {vr(28 + 2 * q, 2)}, v19, {sp(P_B2)} offset:{16 * q}")
    else:
        a(f"""v_and_b32 v19, 3, v{vLANE}
s_lshl_b32 s31, s{sWAVE}, 11
v_lshl_add_u32 v28, v16, 1, s{sT0}
global_load_ushort v29, v28, {sp(P_B2)}
v_bfe_u32 v31, v{vLANE}, 2, 2
v_lshl_add_u32 v31, v17, 2, v31
v_lshlrev_b32 v31, 6, v31
v_bfe_u32 v30, v{vLANE}, 4, 1
v_lshl_add_u32 v31, v30, 5, v31
v_lshl_add_u32 v31, v19, 3, v31
v_add_u32 v31, s31, v31""")
    a(f"""s_mul_i32 s{sT0}, s{sDT2}, 28
s_mul_i32 s{sT1}, s{sWAVE}, 7
s_add_u32 s{sT0}, s{sT0}, s{sT1}
v_min_u32 v{r + 2}, 6, v{vLANE}
v_add_u32 v{r + 2}, s{sT0}, v{r + 2}
s_lshl_b32 s13, s{sT0}, 13
s_add_u32 s13, s13, {G}""")
    if layer == 0:
        a(f"""s_add_u32 s21, s20, {X2}
s_lshl_b32 s19, s50, 1
s_add_u32 s19, s19, {ST1}""")
    else:
        a(f"s_mul_i32 s{sT0}, s50, 896\ns_lshl_b32 s{sT1}, s51, 1\ns_add_u32 s21, s{sT0}, s{sT1}")
    gemm_reduce_prep()
    gemm_rot(28, sROT2)
    lskip, ljoin = label("res"), label("resj")
    a(f"s_cmp_eq_u32 s{sR1}, 0")
    a(f"s_cbranch_scc1 {lskip}")
    residual_issue()
    residual_use()
    a.wait_tag("flag")
    poll_issue(3 + 4 * layer, r)
    poll_take(r)
    a(f"s_branch {ljoin}")
    a(f"{lskip}:")
    poll_issue(3 + 4 * layer, r)
    poll_take(r)
    residual_issue()
    residual_use()
    a(f"{ljoin}:")
    stamp(f"g2_{layer} go", 63)
    gemm_loop(28, 64, 10, lambda ks, nb: vr(128 + (ks * 2 + nb) * 4, 4), layer == 1, sROT2, lds_from=16)
    stamp(f"g2_{layer} loop", 100)

    def addr():
        a(f"v_and_b32 v68, 31, v{vLANE}\nv_lshrrev_b32 v69, 5, v{vLANE}")
        if layer == 0:
            a(f"""v_and_b32 v70, 15, v{vLANE}
v_lshlrev_b32 v70, 6, v70
v_lshl_add_u32 v70, v69, 4, v70
v_bfe_u32 v71, v{vLANE}, 4, 1
v_lshl_add_u32 v70, v71, 5, v70
v_bfe_u32 v71, v{vLANE}, 2, 2
v_lshlrev_b32 v71, 4, v71
v_bfe_u32 v68, v{vLANE}, 4, 1
v_lshl_add_u32 v71, v68, 3, v71
v_and_b32 v68, 1, v{vLANE}
v_lshl_add_u32 v71, v68, 2, v71
v_bfe_u32 v68, v{vLANE}, 1, 1
v_lshl_add_u32 v68, v69, 1, v68
v_lshl_add_u32 v71, v68, 12, v71""")
        else:
            a(f"v_mul_u32_u24 v70, 896, v68\nv_lshl_add_u32 v70, v69, 4, v70")
    gemm_reduce((addr, lambda: None))
    PK = 72
    for half in range(2):
        b = PK + 4 * half
        for k in range(4):
            a(f"v_cvt_pk_bf16_f32 v{b + k}, v{8 * half + 2 * k}, v{8 * half + 2 * k + 1}")
        a(f"v_permlane32_swap_b32 v{b}, v{b + 2}")
        a(f"v_permlane32_swap_b32 v{b + 1}, v{b + 3}")
        if layer == 1:
            a(f"buffer_store_dwordx4 {vr(b, 4)}, v70, {srd(S_OUT)}, s21 offen offset:{32 * half}")
    if layer == 1:
        return
    for k in range(4):
        a(f"v_permlane16_swap_b32 v{PK + k}, v{PK + 4 + k}")
    for half in range(2):
        a(f"buffer_store_dwordx4 {vr(PK + 4 * half, 4)}, v70, {srd(S_WS)}, s21 offen offset:{1024 * half} sc1", tag="pub")
    for k in range(8):
        a(f"v_pk_mul_f32 {vr(20 + 2 * k, 2)}, {vr(2 * k, 2)}, {vr(2 * k, 2)}")
    res = reduce32(list(range(16)) + list(range(20, 36)), 16, list(range(40, 48)))
    assert res == [0, 1, 2, 3]
    a(f"""v_cndmask_b32 v0, v0, v1, {sp(sM1)}
v_cndmask_b32 v2, v2, v3, {sp(sM1)}
v_cndmask_b32 v0, v0, v2, {sp(sM2)}""")
    a(f"buffer_atomic_add_f32 v0, v71, {srd(S_WS)}, s19 offen sc1", tag="pub")
    flag_put(4, f"s_lshl_b32 s{sT0}, s{sDT2}, 5\ns_add_u32 s{sT0}, s{sT0}, s{sST}\ns_lshl_b32 s{sT0}, s{sT0}, 6", 40, "pub")


def skip_unless(role):
    l = label("skip")
    a(f"s_cmp_eq_u32 s{role}, 0")
    a(f"s_cbranch_scc1 {l}")
    return l


def dmas(n0, n1):
    return [w_dma(n, h) for n in range(n0, n1) for h in range(2)]


def tr_dma(n0, n1):
    g = []
    for n in range(n0, n1):
        g.append(w_tr(n))
        if n > n0:
            g += dmas(n + 11, n + 12)
    g += dmas(n1 + 11, n1 + 12)
    return g


def wseq():
    nB = OPT["wB"] // 2
    assert 36 <= nB <= 60
    g = dmas(0, 12) + tr_dma(0, nB - 12)
    lastT = 48 if (nB >= 48 and OPT["wT"]) else 36
    g += [w_tr(n) for n in range(nB - 12, lastT)]
    g.append([])
    d = nB
    for n in range(max(lastT, nB - 12), 49):
        while d < min(n + 11, 60) or (n == 48 and d < 60):
            g += dmas(d, d + 1)
            d += 1
        if n < 48:
            g.append(w_tr(n))
    return g


def wcut(n_dma):
    k = 0
    for p, g in enumerate(wseq()):
        if k == n_dma:
            return p
        k += any(i.kind == "dma" for i in g)
    return len(wseq())


def put_all(gs):
    for g in gs:
        a.put(g)


def build():
    cA, cP, cL, cB = wcut(OPT["wA"]), wcut(OPT["wP"]), wcut(OPT["wL"]), wseq().index([])
    cK = wcut(OPT["wK"])
    prologue()
    laux, ljoin = label("aux"), label("join")
    a(f"s_cmp_eq_u32 s{sRC}, 0")
    a(f"s_cbranch_scc1 {laux}")
    xt_loads()
    kgen_table_load()
    code_warm(1)
    w_setup()
    if OPT["sent"]:
        fill(X1, FILL1, 66, 2, 0x100000, "fill")
    put_all(wseq()[:cA])
    conv_setup(0)
    stamp("start", 2)

    xt_poll_addr(63, 2)
    xt_work()

    def h_flag():
        nonce_take()
        flag_put(0, sPAIR, 104, "st0")
        stamp("flag", 0)

    hooks = {}
    for pos, fn in ((OPT["h_flag"], h_flag), (OPT["h_w"], lambda: put_all(wseq()[cA:cK])), (OPT["h_poll"], lambda: poll_issue(0, 0, 63))):
        hooks.setdefault(pos, []).append(fn)
    assert OPT["h_flag"] <= 5
    kgen({k: (lambda fs=fs: [f() for f in fs]) for k, fs in hooks.items()})
    dump_lds(1)
    stamp("kgen", 21)
    if OPT["sent"]:
        hint_prep(8, 2, 104)
        a.wait_tag("fill")

    def mid():
        if OPT["sent"]:
            hint_put(104)
        poll_take(0, 63)
        stamp("e1 seen", 0)
        conv_loads()
        put_all(wseq()[cK:cP])
    kexpand(mid)
    stamp("expand")
    conv_pro(0)
    if OPT["sent"]:
        e1_poll_addr(cvP + 2)
        poll_issue(8, cvP)
    a.barrier()
    dump_lds(2)
    stamp("conv0 go", 111)
    put_all(conv_main(0, wseq()[cP:cL], OPT["st_conv"], OPT["ev_conv"]))
    stamp("conv0 done")
    a(f"s_branch {ljoin}")
    a(f"{laux}:")
    aux_loads()
    kgen_table_addr()
    code_warm(1)
    w_setup()
    aux_work()
    stamp("aux e1")
    if OPT["sent"]:
        fill(X1, FILL1, 76, 2, 0x100000, "fill")
        flag_put(8, 2, 72, "fill")
    put_all(wseq()[:cB])
    if OPT["sent"]:
        e1_poll_addr(62)
        poll_issue(8, 60)
        poll_take(60)
        a.barrier()
    a.wait_vm0()
    stamp("aux w")
    a(f"{ljoin}:")
    for layer in range(2):
        if layer == 1:
            l = skip_unless(sRC)
            kcopies()
            conv_setup(1)
            conv_poll1()
            a.wait_tag("flag")
            poll_issue(4, cvP)
            poll_take(cvP)
            stamp("conv1 poll")
            conv_loads()
            conv_pro(1)
            a.barrier()
            dump_lds(3)
            stamp("conv1 go", 111)
            conv_main(1)
            stamp("conv1 done")
            a(f"{l}:")
        wide = OPT["ln1w"] if layer else OPT["ln0w"]
        l = skip_unless(sRL0 if wide else sRL)
        ln(layer, wide)
        stamp(f"ln{layer} done")
        a(f"{l}:")
        if layer == 0:
            l = skip_unless(sRC)
            put_all(wseq()[cL:cB])
            a(f"{l}:")
            stamp("w B")
            tail = wseq()[cB:]
            assert not any(i.kind == "dsr" and "a[" in i.text for g in tail for i in g)
            lelse, lj = label("ng1"), label("g1j")
            a(f"s_cmp_eq_u32 s{sR1}, 0")
            a(f"s_cbranch_scc1 {lelse}")
            gemm1(0, wide, None, tail)
            nonce_retire()
            stamp("g1_0 done")
            a(f"s_branch {lj}")
            a(f"{lelse}:")
            put_all(wseq()[cB:])
            a(f"{lj}:")
        else:
            l = skip_unless(sR1)
            gemm1(1, wide)
            stamp("g1_1 done")
            a(f"{l}:")
        l = skip_unless(sR2)
        gemm2(layer)
        if layer == 0 and OPT["sent"]:
            lj = label("g2j")
            a(f"s_branch {lj}")
            a(f"{l}:")
            a(f"s_lshr_b32 s16, s{sX}, 1\ns_lshl_b32 s16, s16, 3\ns_add_u32 s16, s16, s{sJ}")
            fill(X1 + FILL1 * 0x100000, FILL3, 72, 16, CH)
            flag_put(9, 16, 8, "st0")
            a(f"{lj}:")
            a(f"v_and_b32 v38, 31, v{vLANE}")
            poll_issue(9, 36)
            poll_take(36)
        else:
            a(f"{l}:")
        stamp("g2_0 done" if layer == 0 else "end")
    if OPT["stamps"] and OPT["dbgwg"] < 0:
        l = label("ls")
        a(f"s_cmp_lg_u32 s{sWAVE}, 0\ns_cbranch_scc1 {l}\ns_waitcnt vmcnt(0)\ns_memrealtime {sp(sSTAMP)}\ns_waitcnt lgkmcnt(0)")
        a(f"s_lshl_b32 s3, s2, 8\ns_add_u32 s3, s3, {STAMPS + 248}\nv_mov_b32 v0, s101\nv_mov_b32 v1, s{sSTAMP}\ns_mov_b64 exec, 1")
        a(f"buffer_store_dwordx2 v[0:1], off, {srd(S_WS)}, s3")
        a(f"{l}:")
    if OPT["fixdur"]:
        a(f"s_waitcnt vmcnt(0) lgkmcnt(0)\nL_fix:\ns_memrealtime s[28:29]\ns_waitcnt lgkmcnt(0)\ns_sub_u32 s28, s28, s101\ns_cmp_lt_u32 s28, {OPT['fixdur']}\ns_cbranch_scc1 L_fix")
    a("s_endpgm")


def bf16_round_int(l):
    b = struct.unpack("<I", struct.pack("<f", float(l)))[0]
    b = (b + 0x7FFF + ((b >> 16) & 1)) & 0xFFFF0000
    return int(struct.unpack("<f", struct.pack("<I", b))[0])


def ktab():
    vals = []
    for c in range(2):
        for x in range(2048):
            lr = bf16_round_int(2047 - x)
            aa, rem = lr >> 7, lr & 127
            j, e = rem >> 3, rem & 7
            if aa < 2:
                rho = 8 * aa + e
            elif aa < 4:
                rho = 4 * aa + 8 + (e >> 1)
            elif aa < 8:
                rho = 16 + 2 * aa + (e >> 2)
            else:
                rho = 24 + aa
            vals.append((rho >> 2) * 256 + j * 16 + (rho & 3) * 4 + c * 2 * GST)
        vals += [3072 + c * 2 * GST] * 16
    lines = []
    for i in range(0, len(vals), 16):
        lines.append("    .short " + ", ".join(str(v) for v in vals[i:i + 16]))
    return "\n".join(lines)


def main(path):
    build()
    ins = a.finish()
    ref = open(f"cdna_kernels/{NAME}.s.ref").read().split("\n")
    head = [l for l in ref if l.startswith(";") and "@launch" not in l and not l.startswith("; Override") and not l.startswith("; grid=ceil")]
    k = NAME + "_kernel"
    s = "\n".join(head) + f"\n; @launch grid=(256,1,1) block=(256,1,1) lds={LDS_BYTES}\n"
    s += f""".amdgcn_target "amdgcn-amd-amdhsa--gfx950"
.text
.globl {k}
.p2align 8
.type {k},@function
{k}:
L_entry:
"""
    s += Prog.render(ins)
    s += "".join((l if l.endswith(":") else "    " + l) + "\n" for l in STUBS)
    s += f""".p2align 6
.type ktab,@object
ktab:
{ktab()}
.size ktab, 8256
.section .rodata,"a"
.p2align 6
.amdhsa_kernel {k}
  .amdhsa_next_free_vgpr 512
  .amdhsa_next_free_sgpr 102
  .amdhsa_accum_offset 256
  .amdhsa_group_segment_fixed_size 0
  .amdhsa_kernarg_size 136
  .amdhsa_user_sgpr_count 2
  .amdhsa_user_sgpr_kernarg_segment_ptr 1
  .amdhsa_system_sgpr_workgroup_id_x 1
  .amdhsa_float_denorm_mode_32 3
.end_amdhsa_kernel
"""
    open(path, "w").write(s)
    n = sum(1 for i in ins if i.kind not in ("label", "comment"))
    open(path + ".names", "w").write("\n".join(STAMP_NAMES))
    print("instructions:", n, "nops:", sum(1 for i in ins if i.kind == "nop"), "waits:", sum(1 for i in ins if i.kind == "wait"))


if __name__ == "__main__":
    path = sys.argv[1]
    for kv in sys.argv[2:]:
        k, v = kv.split("=")
        OPT[k] = int(v)
    main(path)
```

```python
import sys, math, struct
from asmlib import *

NAME = "interleave_layers__ssm_conv_s4__mixer_token_mlp__prompt"
OPT = dict(stamps=False, stop=99, upfront=True, dump=0, dbgwg=-1, fixdur=0, em='FSSFSSS', warm=1, h_flag=2, h_w=2, h_poll=9, h_ln=2, h_cv=0, h_g1=0, h_g2=0, rot=1, wA=0, wK=8, wP=8, wL=16, wB=120, wT=1, lag=2, gap=3, st_conv=100, ev_conv=150, ev_g1=100000, fill0=14, ln1w=0, ln0w=1, chk=1, samp=8, map18=1, ofl=0, tailord=0, cv=1, clk=0, ev_kg=150, mixpro=1, now=0)
DBG_SEL = ['start', 'kgen', 'conv0 go', 'ln0 go', 'g1_0 go', 'g1_0 loop', 'g2_0 go', 'g2_0 loop', 'conv1 poll', 'ln1 go', 'g1_1 go', 'g2_1 go', 'end']
STAMP_NAMES = []

EPOCH = 0
ST0 = 0x1000
ST1 = 0x8000
STAMPS = 0x20000
FL = 0x100000
BS = 448 * 64 + 128
CH = 0x20000
X1 = 0x400000
H1 = X1 + 15 * CH
G1 = H1 + 14 * CH
X3 = G1 + 13 * CH
H3 = X3 + 15 * CH
G3 = H3 + 14 * CH
X2 = G3 + 13 * CH
X0 = X2 + 15 * CH
FILL1, FILL3 = 6, 36
WS_BYTES = 268435456
OOB = 0x40000000

KST = 4160
KSLOT = {0: [0, 5, 2, 3], 1: [1, 6, 7, 4]}
UB = 8 * KST
UPAD = 1024
UST = 4096 + UPAD
ZB = UB + 2 * UST
EX = 2 * KST
RB = 2 * KST
GST = 15616
GROW = 272
TOFF = 12288
LNP = 57472
W2L = 65536
LDS_BYTES = 163840

sWAVE, sX, sJ, sPAIR, sDT1, sNT, sDT2, sST, sLN = 4, 5, 6, 7, 8, 9, 10, 11, 12
sNONCE = 14
P_U, P_ARE, P_AIM, P_BRE, P_BIM, P_CRE, P_CIM, P_LDT = 16, 18, 20, 22, 24, 26, 28, 30
P_DSK, P_W1, P_B1, P_W2, P_B2, P_OUT, P_DBG, P_WS = 32, 36, 38, 40, 42, 44, 46, 48
S_WS, S_W1, S_W2, S_X0, S_OUT = 52, 56, 60, 64, 68
sD0, sD1 = 72, 74
sLDT = 76
sEP = 78
sWOFF, sT0, sT1, sT2, sT3, sCNT = 80, 81, 82, 83, 84, 85
sRC, sR1, sR2, sRL = 86, 87, 88, 89
sM1, sM2 = 90, 92
sSTAMP = 94
sTAB = 96
sLN0, sRL0 = 77, 73
sCA, sCB = 34, 100

vLANE, vL16, vT2a, vT2b, vT1a, vT1b, vD1, vD2 = 127, 126, 125, 124, 123, 122, 121, 120
vA0, vA1 = 123, 122


def srd(n):
    return f"s[{n}:{n + 3}]"


def sp(n):
    return f"s[{n}:{n + 1}]"


def vr(n, k):
    return f"v[{n}:{n + k - 1}]" if k > 1 else f"v{n}"


def f32(x):
    return "0x%08x" % struct.unpack("<I", struct.pack("<f", x))[0]


a = Prog()
_lab = [0]


def label(p):
    _lab[0] += 1
    return f"L_{p}_{_lab[0]}"


_stamp = [0]


def stamp(name, r=1):
    k = _stamp[0]
    _stamp[0] += 1
    STAMP_NAMES.append(name)
    a("; MARK after " + name)
    if OPT["stamps"] != 1:
        return
    l = label("st")
    if OPT["dbgwg"] >= 0:
        if name not in DBG_SEL:
            return
        a(f"s_lshl_b32 s3, s{sWAVE}, 8\ns_add_u32 s3, s3, s2\ns_cmp_lg_u32 s3, {OPT['dbgwg']}\ns_cbranch_scc1 {l}")
        a(f"s_memrealtime {sp(sSTAMP)}")
        a("s_waitcnt lgkmcnt(0)")
        a(f"s_mov_b64 exec, 1\nv_mov_b32 v{r}, s{sSTAMP}\ns_mov_b32 s{sSTAMP}, s{P_DBG}\ns_mov_b32 s{sSTAMP + 1}, s{P_DBG + 1}\ns_mov_b32 s{sSTAMP + 2}, 256\ns_mov_b32 s{sSTAMP + 3}, 0x20000".replace(f"s{sSTAMP}, s{P_DBG}", f"s64, s{P_DBG}").replace(f"s{sSTAMP + 1}, s{P_DBG + 1}", f"s65, s{P_DBG + 1}").replace(f"s{sSTAMP + 2}, 256", "s66, 256").replace(f"s{sSTAMP + 3}, 0x20000", "s67, 0x20000"))
        a(f"buffer_store_dword v{r}, off, s[64:67], 0 offset:{12 + 4 * DBG_SEL.index(name)} sc1", optional=True)
        a("s_mov_b64 exec, -1")
        a(f"{l}:")
        return
    a(f"s_cmp_lg_u32 s{sWAVE}, 0")
    a(f"s_cbranch_scc1 {l}")
    a(f"{'s_memtime' if OPT['clk'] else 's_memrealtime'} {sp(sSTAMP)}")
    a("s_waitcnt lgkmcnt(0)")
    a(f"s_lshl_b32 s3, s2, 8")
    a(f"s_add_u32 s3, s3, {STAMPS + 4 * k}")
    a(f"v_mov_b32 v{r}, s{sSTAMP}")
    a("s_mov_b64 exec, 1")
    a(f"buffer_store_dword v{r}, off, {srd(S_WS)}, s3", optional=True)
    a("s_mov_b64 exec, -1")
    a(f"{l}:")


_cnt = [0]


def count_out(r):
    if OPT["stamps"] != 1:
        return
    k = _cnt[0]
    _cnt[0] += 1
    a(f"s_lshl_b32 s3, s2, 2\ns_add_u32 s3, s3, s{sWAVE}\ns_lshl_b32 s3, s3, 5\ns_add_u32 s3, s3, {STAMPS + 0x10000 + 4 * k}")
    a(f"v_mov_b32 v{r}, s{sCNT}\ns_mov_b64 exec, 1")
    a(f"buffer_store_dword v{r}, off, {srd(S_WS)}, s3")
    a("s_mov_b64 exec, -1")


DUMP = 0x2000000


def dump_lds(point, r=96):
    if OPT["dump"] != point:
        return
    a.barrier()
    a(f"s_lshl_b32 s3, s{sWAVE}, 10\nv_add_u32 v{r + 4}, s3, v{vL16}\ns_lshl_b32 s3, s2, 16\ns_add_u32 s3, s3, {DUMP}")
    for i in range(16):
        a(f"ds_read_b128 {vr(r, 4)}, v{r + 4} offset:{i * 4096}")
        a(f"buffer_store_dwordx4 {vr(r, 4)}, v{r + 4}, {srd(S_WS)}, s3 offen")
        a("s_add_u32 s3, s3, 4096")
        a.wait_vm0()
    a.barrier()


def cmul(d, x, y):
    return [f"v_pk_mul_f32 {vr(d, 2)}, {vr(x, 2)}, {vr(y, 2)} op_sel:[1,1] op_sel_hi:[1,0] neg_lo:[0,1]",
            f"v_pk_fma_f32 {vr(d, 2)}, {vr(x, 2)}, {vr(y, 2)}, {vr(d, 2)} op_sel_hi:[0,1,1]"]


def cmul2(p, q=None):
    x = cmul(*p)
    if q is None:
        a(x[0]); a(x[1])
        return
    y = cmul(*q)
    a(x[0]); a(y[0]); a(x[1]); a(y[1])


def unpack(dlo, dhi, s):
    a(f"v_lshlrev_b32 v{dlo}, 16, v{s}")
    a(f"v_and_b32 v{dhi}, 0xffff0000, v{s}")


def prologue():
    a("s_cmp_lt_u32 s2, 256")
    a("s_cbranch_scc1 L_start")
    a("s_endpgm")
    a("L_start:")
    if OPT["fixdur"] or OPT["stamps"]:
        a("s_memrealtime s[50:51]")
    a("s_load_dwordx16 s[16:31], s[0:1], 0")
    a("s_load_dwordx16 s[32:47], s[0:1], 64")
    a("s_load_dwordx2 s[48:49], s[0:1], 128")
    a(f"v_lshrrev_b32 v1, 6, v0")
    a(f"v_and_b32 v{vLANE}, 63, v0")
    a(f"v_readfirstlane_b32 s{sWAVE}, v1")
    a(f"v_lshlrev_b32 v{vL16}, 4, v{vLANE}")
    a(f"""s_and_b32 s{sX}, s2, 7
s_lshr_b32 s{sJ}, s2, 3
s_add_u32 s{sJ}, s{sJ}, 28
s_and_b32 s{sJ}, s{sJ}, 31
""")
    a(f"""s_lshr_b32 s{sT0}, s{sX}, 2
s_mul_i32 s{sPAIR}, s{sX}, 28
s_sub_u32 s{sRC}, s{sJ}, s{sT0}
s_add_u32 s{sPAIR}, s{sPAIR}, s{sRC}
s_cmp_lt_u32 s{sRC}, 28
s_cselect_b32 s{sRC}, 1, 0
s_mul_i32 s{sT2}, s{sJ}, 37
s_lshr_b32 s{sT2}, s{sT2}, 8
s_mul_i32 s{sT3}, s{sT2}, 7
s_sub_u32 s{sDT1}, s{sJ}, s{sT3}
s_lshl_b32 s{sNT}, s{sT2}, 3
s_add_u32 s{sNT}, s{sNT}, s{sX}
s_sub_u32 s{sT1}, s{sJ}, 4
s_cselect_b32 s{sR2}, 0, 1
s_and_b32 s{sT1}, s{sT1}, 31
s_mul_i32 s{sT2}, s{sT1}, 37
s_lshr_b32 s{sT2}, s{sT2}, 8
s_mul_i32 s{sT3}, s{sT2}, 7
s_sub_u32 s{sDT2}, s{sT1}, s{sT3}
s_lshl_b32 s{sST}, s{sX}, 2
s_add_u32 s{sST}, s{sST}, s{sT2}
s_cmp_eq_u32 s{sJ}, 0
s_cselect_b32 s{sT1}, 32, s{sJ}
s_mul_i32 s{sT2}, s{sX}, 12
s_add_u32 s{sT2}, s{sT2}, s{sT1}
s_sub_u32 s{sT2}, s{sT2}, 53
s_lshl_b32 s{sT3}, s{sX}, 2
s_add_u32 s{sT3}, s{sT3}, s{sJ}
s_sub_u32 s{sT3}, s{sT3}, 28
s_cmp_lg_u32 s{sT0}, 0
s_cselect_b32 s{sT1}, s{sT1}, s{sJ}
s_cselect_b32 s{sLN0}, s{sT2}, s{sT3}
s_cselect_b32 s{sRL0}, 21, 28
s_cmp_ge_u32 s{sT1}, s{sRL0}
s_cselect_b32 s{sRL0}, 1, 0""" if OPT["map18"] == 1 else f"""s_and_b32 s{sT0}, s{sX}, 1
s_lshr_b32 s{sT1}, s{sX}, 1
s_mul_i32 s{sPAIR}, s{sX}, 28
s_sub_u32 s{sRC}, s{sJ}, s{sT0}
s_add_u32 s{sPAIR}, s{sPAIR}, s{sRC}
s_cmp_lt_u32 s{sRC}, 28
s_cselect_b32 s{sRC}, 1, 0
s_mul_i32 s{sT2}, s{sJ}, 37
s_lshr_b32 s{sT2}, s{sT2}, 8
s_mul_i32 s{sT3}, s{sT2}, 7
s_sub_u32 s{sT3}, s{sJ}, s{sT3}
s_mul_i32 s{sNT}, s{sT1}, 7
s_add_u32 s{sNT}, s{sNT}, s{sT3}
s_lshl_b32 s{sT3}, s{sT0}, 2
s_add_u32 s{sDT1}, s{sT2}, s{sT3}
s_lshl_b32 s{sST}, s{sT0}, 3
s_sub_u32 s{sST}, s{sJ}, s{sST}
s_cselect_b32 s{sR2}, 0, 1
s_lshr_b32 s{sDT2}, s{sST}, 3
s_and_b32 s{sDT2}, s{sDT2}, 3
s_add_u32 s{sDT2}, s{sDT2}, s{sT3}
s_and_b32 s{sST}, s{sST}, 7
s_lshl_b32 s{sLN0}, s{sT1}, 4
s_lshl_b32 s{sT1}, s{sT1}, 3
s_add_u32 s{sST}, s{sST}, s{sT1}
s_cmp_eq_u32 s{sJ}, 0
s_cselect_b32 s{sT1}, 32, s{sJ}
s_mul_i32 s{sT2}, s{sT0}, 11
s_add_u32 s{sT2}, s{sT2}, s{sT1}
s_cmp_lg_u32 s{sT0}, 0
s_cselect_b32 s{sT1}, s{sT1}, s{sJ}
s_cselect_b32 s{sT2}, s{sT2}, s{sJ}
s_cselect_b32 s{sRL0}, 21, 28
s_cmp_ge_u32 s{sT1}, s{sRL0}
s_cselect_b32 s{sRL0}, 1, 0
s_add_u32 s{sLN0}, s{sLN0}, s{sT2}
s_sub_u32 s{sLN0}, s{sLN0}, 28""")
    if OPT["map18"] == 2:
        a(f"""s_sub_u32 s{sT1}, s{sJ}, 4
s_cselect_b32 s{sR2}, 0, 1
s_and_b32 s{sT1}, s{sT1}, 31
s_mul_i32 s{sT2}, s{sT1}, 37
s_lshr_b32 s{sT2}, s{sT2}, 8
s_mul_i32 s{sT3}, s{sT2}, 7
s_sub_u32 s{sDT2}, s{sT1}, s{sT3}
s_lshl_b32 s{sST}, s{sX}, 2
s_add_u32 s{sST}, s{sST}, s{sT2}""")
    a(f"""s_lshl_b32 s{sLN}, s{sX}, 4
s_add_u32 s{sLN}, s{sLN}, s{sJ}
s_sub_u32 s{sLN}, s{sLN}, 16
s_mul_i32 s{sT2}, s{sT0}, 7
s_sub_u32 s{sT2}, 28, s{sT2}
s_cmp_lt_u32 s{sJ}, s{sT2}
s_cselect_b32 s{sR1}, 1, 0
s_cmp_ge_u32 s{sJ}, 16
s_cselect_b32 s{sRL}, 1, 0
s_min_u32 s{sPAIR}, s{sPAIR}, 223
s_mov_b32 s{sM1}, 0xaaaaaaaa
s_mov_b32 s{sM1 + 1}, 0xaaaaaaaa
s_mov_b32 s{sM2}, 0xcccccccc
s_mov_b32 s{sM2 + 1}, 0xcccccccc""")
    a("s_waitcnt lgkmcnt(0)")
    if OPT["fixdur"] or OPT["stamps"]:
        a("s_mov_b32 s101, s50")
    a(f"""s_lshl_b32 s{sT0}, s{sPAIR}, 2
s_load_dword s{sLDT}, {sp(P_LDT)}, s{sT0}
s_load_dword s{sD0}, {sp(P_DSK)}, s{sT0}
s_load_dwordx2 {sp(sNONCE)}, {sp(P_WS)}, {EPOCH}""")
    kgen_loads()
    for n, p, size in ((S_X0, P_U, 1835008), (S_WS, P_WS, WS_BYTES), (S_OUT, P_OUT, 1835008)):
        a(f"s_mov_b32 s{n}, s{p}\ns_mov_b32 s{n + 1}, s{p + 1}\ns_mov_b32 s{n + 2}, {size}\ns_mov_b32 s{n + 3}, 0x20000")
    for n, p, role in ((S_W1, P_W1, sR1), (S_W2, P_W2, sR2)):
        a(f"s_mov_b32 s{n}, s{p}\ns_mov_b32 s{n + 1}, s{p + 1}\ns_cmp_lg_u32 s{role}, 0\ns_cselect_b32 s{n + 2}, {0 if OPT['now'] & (1 if n == S_W1 else 2) else 7340032}, 0\ns_mov_b32 s{n + 3}, 0x20000")


sAUX = 75


def code_warm(r):
    if not OPT["warm"]:
        return
    a(f"""s_lshl_b32 s{sT0}, s{sJ}, 2
s_add_u32 s{sT0}, s{sT0}, s{sWAVE}
s_mul_i32 s{sT0}, s{sT0}, 640
v_lshl_add_u32 v{r}, v{vLANE}, 7, s{sT0}
s_mov_b32 s{sT1}, ktab-L_entry+8192
v_min_u32 v{r}, s{sT1}, v{r}
s_sub_u32 s28, s{sTAB}, ktab-L_entry
s_subb_u32 s29, s{sTAB + 1}, 0
s_mov_b64 exec, 31
global_load_dword v{r}, v{r}, s[28:29]
s_mov_b64 exec, -1""")


def fill(base, n, r, sidx, stride, tag="st0"):
    a(f"""s_lshl_b32 s{sT0}, s{sidx}, 12
s_lshl_b32 s{sT1}, s{sWAVE}, 10
s_add_u32 s{sT0}, s{sT0}, s{sT1}
s_add_u32 s{sT0}, s{sT0}, {base}""")
    for k in range(4):
        a(f"v_mov_b32 v{r + k}, -1")
    for k in range(n):
        a(f"buffer_store_dwordx4 {vr(r, 4)}, v{vL16}, {srd(S_WS)}, s{sT0} offen sc1", tag=tag)
        if k + 1 < n:
            a(f"s_add_u32 s{sT0}, s{sT0}, {stride}")


def aux_loads():
    a(f"""s_and_b32 s{sAUX}, s{sJ}, 3
s_lshl_b32 s{sAUX}, s{sAUX}, 3
s_add_u32 s{sAUX}, s{sAUX}, s{sX}
s_lshl_b32 s16, s{sAUX}, 2
s_add_u32 s16, s16, s{sWAVE}
s_mul_i32 s{sT1}, s16, {16 * 896}
s_mul_i32 s17, s{sWAVE}, {16 * 912}
s_mov_b32 m0, s17
s_mov_b32 exec_hi, 0xffffff""")
    for k in range(16):
        if k:
            a(f"s_add_u32 m0, m0, 912\ns_add_u32 s{sT1}, s{sT1}, 896")
        a(f"buffer_load_dwordx4 v{vL16}, {srd(S_X0)}, s{sT1} offen lds", res_w=[f"x0"])
    a("s_mov_b64 exec, -1")


def aux_work():
    XR = 8
    a(f"""v_mov_b32 v76, 0
v_mov_b32 v77, 0
v_mov_b32 v78, 0
v_mov_b32 v79, 0
s_lshl_b32 s{sT1}, s16, 7
s_add_u32 s{sT1}, s{sT1}, {ST1}
s_lshl_b32 s18, s{sAUX}, 7
s_add_u32 s18, s18, {ST0}
s_mov_b64 exec, 0xff""")
    a(f"buffer_store_dwordx4 v[76:79], v{vL16}, {srd(S_WS)}, s{sT1} offen sc1", tag="st0")
    a(f"""s_mov_b64 exec, -1
v_and_b32 v2, 15, v{vLANE}
v_lshrrev_b32 v3, 4, v{vLANE}
v_mul_u32_u24 v4, 912, v2
v_lshl_add_u32 v4, v3, 4, v4
v_add_u32 v4, s17, v4
v_lshrrev_b32 v6, 2, v2
v_cmp_eq_u32 vcc, v6, v3
v_bfe_u32 v6, v2, 1, 2
v_lshlrev_b32 v6, 7, v6
v_lshrrev_b32 v7, 3, v2
v_lshl_add_u32 v6, v7, 4, v6
v_and_b32 v7, 1, v2
v_lshl_add_u32 v6, v7, 2, v6
s_lshl_b32 s{sT0}, s{sWAVE}, 5
s_add_u32 s{sT0}, s{sT0}, 60000
v_add_u32 v6, s{sT0}, v6
v_mov_b32 v7, 61024
v_cndmask_b32 v6, v7, v6, vcc
v_lshrrev_b32 v117, 3, v{vLANE}
v_cmp_eq_u32 vcc, s{sWAVE}, v117
v_lshlrev_b32 v117, 12, v117
v_and_b32 v7, 7, v{vLANE}
v_lshl_add_u32 v117, v7, 4, v117
v_mov_b32 v7, {OOB}
v_cndmask_b32 v117, v7, v117, vcc
v_mov_b32 v80, 0x3f803f80
v_mov_b32 v81, 0x3f803f80
v_mov_b32 v82, 0x3f803f80
v_mov_b32 v83, 0x3f803f80""")
    if OPT["stamps"] == 1:
        a.wait_vm0()
    stamp("aux data")
    for k in range(14):
        a(f"ds_read_b128 {vr(XR + 4 * k, 4)}, v4 offset:{64 * k}", res_r=["x0"])
    for k in range(14):
        x = vr(XR + 4 * k, 4)
        a(f"v_mfma_f32_16x16x32_bf16 v[64:67], v[80:83], {x}, {'v[64:67]' if k else 0}")
        a(f"v_mfma_f32_16x16x32_bf16 v[68:71], {x}, {x}, {'v[68:71]' if k else 0}")
    a(f"""v_cndmask_b32 v68, v68, v69, {sp(sM1)}
v_cndmask_b32 v70, v70, v71, {sp(sM1)}
v_cndmask_b32 v68, v68, v70, {sp(sM2)}""")
    a("ds_write2_b32 v6, v64, v68 offset0:0 offset1:2")
    a.barrier()
    a(f"ds_read_b128 v[64:67], v{vL16} offset:60000")
    a(f"buffer_store_dwordx4 v[64:67], v117, {srd(S_WS)}, s18 offen sc1", tag="st0")
    stamp("aux st")
    nonce_take()
    flag_put(0, f"s_add_u32 s{sT0}, s{sAUX}, 224\ns_lshl_b32 s{sT0}, s{sT0}, 6", 72, "st0")


def xt_loads():
    a(f"""s_lshl_b32 s{sT0}, s{sPAIR}, 1
s_lshr_b32 s{sT1}, s{sWAVE}, 1
s_add_u32 s{sT0}, s{sT0}, s{sT1}
s_mul_i32 s{sT1}, s{sT0}, 9363
s_lshr_b32 s{sT1}, s{sT1}, 16
s_mul_i32 s{sT2}, s{sT1}, 7
s_sub_u32 s{sT0}, s{sT0}, s{sT2}
s_lshl_b32 s{sT0}, s{sT0}, 1
s_and_b32 s{sT2}, s{sWAVE}, 1
s_add_u32 s{sT0}, s{sT0}, s{sT2}
s_mul_i32 s{sT2}, s{sT1}, {32 * 896}
s_lshl_b32 s{sT3}, s{sT0}, 6
s_add_u32 s{sT2}, s{sT2}, s{sT3}
v_lshrrev_b32 v2, 2, v{vLANE}
v_mul_u32_u24 v2, 896, v2
v_and_b32 v3, 3, v{vLANE}
v_lshl_add_u32 v2, v3, 4, v2
s_mul_i32 s22, s{sWAVE}, {GST}
s_mov_b32 m0, s22
s_mul_i32 s23, s{sT1}, {BS}""")
    a(f"buffer_load_dwordx4 v2, {srd(S_X0)}, s{sT2} offen lds", res_w=["x0"])
    a(f"s_add_u32 m0, m0, 1024\ns_add_u32 s{sT2}, s{sT2}, {16 * 896}")
    a(f"buffer_load_dwordx4 v2, {srd(S_X0)}, s{sT2} offen lds", res_w=["x0"])
    a(f"""s_lshl_b32 s{sT0}, s{sT0}, 11
s_add_u32 s23, s23, s{sT0}
s_add_u32 s23, s23, {X0}
v_lshrrev_b32 v2, 4, v{vLANE}
v_bfe_u32 v36, v{vLANE}, 2, 2
v_lshl_add_u32 v36, v2, 3, v36
v_lshlrev_b32 v36, 6, v36
v_lshl_add_u32 v36, v3, 3, v36
v_add_u32 v36, s22, v36
v_and_b32 v37, 15, v{vLANE}
v_lshlrev_b32 v37, 6, v37
v_lshl_add_u32 v37, v2, 4, v37""")


def xt_work():
    for u in range(2):
        for j in range(2):
            a(f"ds_read_b64_tr_b16 {vr(40 + 4 * u + 2 * j, 2)}, v36 offset:{j * 256 + u * 32}", res_r=["x0"])
    for u in range(2):
        a(f"buffer_store_dwordx4 {vr(40 + 4 * u, 4)}, v37, {srd(S_WS)}, s23 offen offset:{1024 * u} sc1", tag="st0")


def xt_poll_addr(ra, t):
    a(f"""s_lshl_b32 s{sT0}, s{sWAVE}, 4
v_and_b32 v{t}, 15, v{vLANE}
v_add_u32 v{t}, s{sT0}, v{t}
v_mul_u32_u24 v{t}, 7, v{t}
s_lshr_b32 s{sT0}, s{sPAIR}, 5
v_add_u32 v{t}, s{sT0}, v{t}
v_lshrrev_b32 v{t}, 1, v{t}
s_lshl_b32 s{sT0}, s{sWAVE}, 3
s_add_u32 s{sT0}, s{sT0}, 224
v_and_b32 v{ra}, 7, v{vLANE}
v_add_u32 v{ra}, s{sT0}, v{ra}
v_cmp_gt_u32 vcc, 16, v{vLANE}
v_cndmask_b32 v{ra}, v{ra}, v{t}, vcc""")


def e1_poll_addr(ra):
    a(f"s_lshl_b32 s{sT0}, s{sWAVE}, 6\nv_add_u32 v{ra}, s{sT0}, v{vLANE}")


def nonce_take():
    a(f"s_add_u32 s{sNONCE}, s{sNONCE}, 1")
    a(f"s_addc_u32 s{sNONCE + 1}, s{sNONCE + 1}, 0")


def nonce_retire():
    l = label("nr")
    a(f"s_or_b32 s{sT0}, s2, s{sWAVE}")
    a(f"s_cmp_lg_u32 s{sT0}, 32")
    a(f"s_cbranch_scc1 {l}")
    a(f"v_mov_b32 v110, s{sNONCE}\nv_mov_b32 v111, s{sNONCE + 1}\ns_mov_b64 exec, 1")
    a(f"buffer_store_dwordx2 v[110:111], off, {srd(S_WS)}, 0 offset:{EPOCH} sc1", optional=True)
    a("s_mov_b64 exec, -1")
    a(f"{l}:")


def flag_put(edge, sprod, r, tag):
    a(f"s_lshl_b32 s{sT0}, s{sprod}, 6" if isinstance(sprod, int) else sprod)
    a(f"""s_lshl_b32 s{sT1}, s{sWAVE}, 15
s_add_u32 s{sT0}, s{sT0}, s{sT1}
s_add_u32 s{sT0}, s{sT0}, {FL + edge * 0x20000}
v_lshlrev_b32 v{r + 4}, 12, v{vLANE}
v_and_b32 v{r + 4}, 0x4000, v{r + 4}
v_and_b32 v{r}, 3, v{vLANE}
v_lshl_add_u32 v{r + 4}, v{r}, 4, v{r + 4}
v_mov_b32 v{r}, s{sNONCE}
v_mov_b32 v{r + 1}, s{sNONCE + 1}
v_mov_b32 v{r + 2}, s{sNONCE}
v_mov_b32 v{r + 3}, s{sNONCE + 1}""")
    a.wait_tag(tag)
    a.barrier()
    a("s_mov_b64 exec, 0xff")
    a(f"buffer_store_dwordx4 {vr(r, 4)}, v{r + 4}, {srd(S_WS)}, s{sT0} offen sc1", tag="flag")
    a("s_mov_b64 exec, -1")


def emode(e):
    return OPT["em"][e - 1]


def hinted(e):
    return emode(e) in "HS"


def sentinel(e):
    return emode(e) == "S"


def flagged(e):
    return emode(e) in "FH"


def armed(layer):
    return any(sentinel(e + 4 * layer) for e in (1, 2, 3))


def wait_edge(e, r, ra_full, ra_samp):
    if hinted(e):
        poll_issue(e + 10, r, ra_samp)
        poll_take(r, ra_samp)
    else:
        a.wait_tag("flag")
    if flagged(e):
        poll_issue(e, r, ra_full)
        poll_take(r, ra_full)


def hint_prep(edge, sprod, r):
    a(f"s_lshl_b32 s{sT0}, s{sprod}, 6" if isinstance(sprod, int) else sprod)
    a(f"""s_lshl_b32 s{sT1}, s{sWAVE}, 15
s_add_u32 s{sT0}, s{sT0}, s{sT1}
s_add_u32 s{sT0}, s{sT0}, {FL + edge * 0x20000}
v_lshlrev_b32 v{r + 4}, 12, v{vLANE}
v_and_b32 v{r + 4}, 0x4000, v{r + 4}
v_and_b32 v{r}, 3, v{vLANE}
v_lshl_add_u32 v{r + 4}, v{r}, 4, v{r + 4}
v_add_u32 v{r + 4}, s{sT0}, v{r + 4}
v_mov_b32 v{r}, s{sNONCE}
v_mov_b32 v{r + 1}, s{sNONCE + 1}
v_mov_b32 v{r + 2}, s{sNONCE}
v_mov_b32 v{r + 3}, s{sNONCE + 1}""")


def hint_put(r):
    a("s_mov_b64 exec, 0xff")
    a(f"buffer_store_dwordx4 {vr(r, 4)}, v{r + 4}, {srd(S_WS)}, 0 offen sc1", tag="hint")
    a("s_mov_b64 exec, -1")


def poll_issue(edge, r, ra=None):
    ra = r + 2 if ra is None else ra
    a(f"""s_lshl_b32 s{sT3}, s{sX}, 14
s_add_u32 s{sT3}, s{sT3}, {FL + edge * 0x20000}
v_lshl_add_u32 v{ra}, v{ra}, 6, s{sT3}
buffer_load_dwordx2 {vr(r, 2)}, v{ra}, {srd(S_WS)}, 0 offen sc1""")


def poll_take(r, ra=None):
    ra = r + 2 if ra is None else ra
    ok, lp = label("pok"), label("plp")
    a(f"v_cmp_ne_u64 vcc, {sp(sNONCE)}, {vr(r, 2)}")
    a(f"s_cbranch_vccz {ok}")
    a(f"s_mov_b32 s{sCNT}, 0")
    a(f"{lp}:")
    a(f"buffer_load_dwordx2 {vr(r, 2)}, v{ra}, {srd(S_WS)}, 0 offen sc1")
    a("s_waitcnt vmcnt(0)")
    a(f"v_cmp_ne_u64 vcc, {sp(sNONCE)}, {vr(r, 2)}")
    a(f"s_add_u32 s{sCNT}, s{sCNT}, 1")
    a(f"s_cbranch_vccz {ok}")
    a(f"s_cmp_lt_u32 s{sCNT}, 0x100000")
    a(f"s_cbranch_scc1 {lp}")
    a(f"{ok}:")


sW1O, sW2O = 98, 99
sROT1, sROT2 = 33, 35
sW1E, sW2E = 78, 79


def w_setup():
    a(f"""v_lshrrev_b32 v2, 3, v{vLANE}
v_and_b32 v3, 7, v{vLANE}
v_bfe_u32 v4, v{vLANE}, 4, 1
v_lshlrev_b32 v4, 2, v4
v_xor_b32 v3, v3, v4
v_lshlrev_b32 v3, 4, v3
v_mul_u32_u24 v{vD1}, 3584, v2
v_add_u32 v{vD1}, v{vD1}, v3
v_lshl_add_u32 v{vD2}, v2, 12, v3
v_bfe_u32 v2, v{vLANE}, 2, 2
v_lshrrev_b32 v3, 5, v{vLANE}
v_bfe_u32 v4, v{vLANE}, 4, 1
v_and_b32 v5, 3, v{vLANE}
v_lshlrev_b32 v5, 3, v5
v_lshl_add_u32 v5, v4, 5, v5
v_lshrrev_b32 v4, 1, v2
v_lshl_add_u32 v5, v4, 6, v5
s_lshr_b32 s{sT0}, s{sWAVE}, 1
s_lshl_b32 s{sT0}, s{sT0}, 6
v_xor_b32 v5, s{sT0}, v5
v_lshl_add_u32 v5, v2, 7, v5
s_mul_i32 s{sT1}, s{sWAVE}, 24576
s_add_u32 s{sT1}, s{sT1}, {W2L}
v_add_u32 v5, s{sT1}, v5
v_lshl_add_u32 v{vT1a}, v3, 10, v5
v_xor_b32 v{vT1b}, 64, v{vT1a}
v_lshl_add_u32 v{vT2a}, v3, 9, v5
v_xor_b32 v{vT2b}, 64, v{vT2a}
s_mul_i32 s{sW1O}, s{sWAVE}, {512 * 3584}
s_lshl_b32 s{sT0}, s{sNT}, 7
s_add_u32 s{sW1O}, s{sW1O}, s{sT0}
s_mul_i32 s{sW2O}, s{sWAVE}, {448 * 4096}
s_lshl_b32 s{sT0}, s{sST}, 7
s_add_u32 s{sW2O}, s{sW2O}, s{sT0}
s_mov_b32 s{sWOFF}, s{sT1}""")
    if OPT["rot"] and OPT["map18"] == 1:
        if OPT["rot"] == 2:
            a(f"""s_add_u32 s{sROT1}, s{sDT1}, s{sX}
s_and_b32 s{sROT1}, s{sROT1}, 7
s_add_u32 s{sROT2}, s{sDT2}, s{sX}
s_cmp_ge_u32 s{sROT2}, 7
s_cselect_b32 s{sT0}, 7, 0
s_sub_u32 s{sROT2}, s{sROT2}, s{sT0}""")
        else:
            a(f"s_mov_b32 s{sROT1}, s{sDT1}\ns_mov_b32 s{sROT2}, s{sDT2}")
    elif OPT["rot"]:
        a(f"""s_and_b32 s{sT0}, s{sDT1}, 3
s_lshl_b32 s{sT0}, s{sT0}, 1
s_lshr_b32 s{sT1}, s{sDT1}, 2
s_add_u32 s{sT0}, s{sT0}, s{sT1}
s_and_b32 s{sROT1}, s{sT0}, 7
s_and_b32 s{sT0}, s{sDT2}, 3
s_lshl_b32 s{sT0}, s{sT0}, 1
s_lshr_b32 s{sT1}, s{sDT2}, 2
s_add_u32 s{sT0}, s{sT0}, s{sT1}
s_min_u32 s{sROT2}, s{sT0}, 6""")
        if OPT["map18"] == 2:
            a(f"s_mov_b32 s{sROT2}, s{sDT2}")
    else:
        a(f"s_mov_b32 s{sROT1}, 0\ns_mov_b32 s{sROT2}, 0")
    a(f"""s_add_u32 s{sW1E}, s{sW1O}, {512 * 3584}
s_mul_i32 s{sT0}, s{sROT1}, {64 * 3584}
s_add_u32 s{sW1O}, s{sW1O}, s{sT0}
s_add_u32 s{sW2E}, s{sW2O}, {448 * 4096}
s_mul_i32 s{sT0}, s{sROT2}, {64 * 4096}
s_add_u32 s{sW2O}, s{sW2O}, s{sT0}""")


WORDER = list(range(0, 4)) + list(range(32, 36)) + list(range(4, 32)) + list(range(36, 60))


def w_dma(pos, half):
    slot = pos % 12
    n = WORDER[pos]
    g = [Ins(f"s_add_u32 m0, s{sWOFF}, {slot * 2048 + half * 1024}")]
    if n < 32:
        g.append(Ins(f"s_add_u32 s{sW1O}, s{sW1O}, {8 * 3584}") if (n or half) else Ins("s_nop 0"))
        if n and n % 4 == 0 and half == 0:
            g += [Ins(f"s_cmp_eq_u32 s{sW1O}, s{sW1E}"), Ins(f"s_cselect_b32 s3, {512 * 3584}, 0"), Ins(f"s_sub_u32 s{sW1O}, s{sW1O}, s3")]
        g.append(Ins(f"buffer_load_dwordx4 v{vD1}, {srd(S_W1)}, s{sW1O} offen lds", res_w=[f"slot{slot}"]))
    else:
        g.append(Ins(f"s_add_u32 s{sW2O}, s{sW2O}, {8 * 4096}") if (n > 32 or half) else Ins("s_nop 0"))
        if n > 32 and n % 4 == 0 and half == 0:
            g += [Ins(f"s_cmp_eq_u32 s{sW2O}, s{sW2E}"), Ins(f"s_cselect_b32 s3, {448 * 4096}, 0"), Ins(f"s_sub_u32 s{sW2O}, s{sW2O}, s3")]
        g.append(Ins(f"buffer_load_dwordx4 v{vD2}, {srd(S_W2)}, s{sW2O} offen lds", res_w=[f"slot{slot}"]))
    return g


def w_tr(pos):
    slot = pos % 12
    n = WORDER[pos]
    g = []
    for nb in range(2):
        for j in range(2):
            if n < 32:
                r = (n * 2 + nb) * 4 + 2 * j
                g.append(Ins(f"ds_read_b64_tr_b16 a[{r}:{r + 1}], v{(vT1a, vT1b)[nb]} offset:{slot * 2048 + j * 512}", res_r=[f"slot{slot}"]))
            else:
                r = 128 + ((n - 32) * 2 + nb) * 4 + 2 * j
                g.append(Ins(f"ds_read_b64_tr_b16 v[{r}:{r + 1}], v{(vT2a, vT2b)[nb]} offset:{slot * 2048 + j * 1024}", res_r=[f"slot{slot}"]))
    return g


def w_all_upfront():
    for n in range(12):
        a.put(w_dma(n, 0)); a.put(w_dma(n, 1))
    for n in range(48):
        a.put(w_tr(n))
        if n >= 1:
            a.put(w_dma(n + 11, 0)); a.put(w_dma(n + 11, 1))
    a.put(w_dma(59, 0)); a.put(w_dma(59, 1))
    a.wait_vm0()
    a.wait_lgkm0()


PR = 56
TAB = 104


def kgen_loads():
    a(f"""s_lshl_b32 s{sT0}, s{sPAIR}, 10
s_lshl_b32 s{sT1}, s{sWAVE}, 8
s_add_u32 s{sT0}, s{sT0}, s{sT1}
v_lshl_add_u32 v3, v{vLANE}, 2, s{sT0}""")
    for k, p in enumerate((P_ARE, P_AIM, P_BRE, P_BIM, P_CRE, P_CIM)):
        a(f"global_load_dword v{PR + k}, v3, {sp(p)}")


def kgen_table_addr():
    l = label("pc")
    a(f"s_getpc_b64 {sp(sTAB)}")
    a(f"{l}:")
    a(f"s_add_u32 s{sTAB}, s{sTAB}, ktab-{l}")
    a(f"s_addc_u32 s{sTAB + 1}, s{sTAB + 1}, 0")


def kgen_table_load():
    kgen_table_addr()
    a(f"s_lshr_b32 s{sT0}, s{sWAVE}, 1\ns_lshl_b32 s{sT0}, s{sT0}, 5\nv_lshl_add_u32 v75, v0, 5, s{sT0}")


KBG = []


def kgen(hooks):
    F = {e: 2 * e for e in range(1, 8)}
    Qr = {1: 16, 2: 18, 3: 20, 4: 22}
    QN = [24, 26]
    Z1, Z2, C0, C1 = 28, 30, 32, 34
    CN = [36, 38]
    T0, T1 = 62, 64
    CV = [66, 67, 68, 69]
    A2, B2, DT = 70, 71, 72
    ACC = 76
    QF = 88
    PF = 40
    vG, vF = 73, 74
    a(f"""s_mul_i32 s{sT0}, s{sWAVE}, {GST}
v_lshl_add_u32 v{vG}, v{vLANE}, 2, s{sT0}
v_and_b32 v2, 15, v{vLANE}
v_mul_u32_u24 v2, {GROW}, v2
v_lshrrev_b32 v3, 4, v{vLANE}
v_lshl_add_u32 v2, v3, 4, v2
v_add_u32 v{vF}, s{sT0}, v2""")
    a.begin()
    a(f"""s_lshr_b32 s{sT0}, s{sWAVE}, 1
s_lshl_b32 s{sT0}, s{sT0}, 4
s_lshr_b32 s{sT0}, s{sLDT}, s{sT0}
s_lshl_b32 s{sT0}, s{sT0}, 16
v_mov_b32 v2, {f32(math.log2(math.e))}
v_mul_f32 v2, s{sT0}, v2
v_exp_f32 v2, v2
v_cvt_pk_bf16_f32 v2, v2, v2
v_lshlrev_b32 v{DT}, 16, v2
s_and_b32 s{sD1}, s{sD0}, 0xffff0000
s_lshl_b32 s{sD0}, s{sD0}, 16""")
    cvi = [0]

    def hook(name):
        if name is not None and name not in hooks:
            return
        a_body = space_ds(a.end(), OPT["lag"], OPT["gap"])
        m, rest = merge(a_body, KBG[:], 20, OPT["ev_kg"])
        del KBG[:]
        a.put(m)
        put_all(rest)
        if name is not None:
            hooks[name]()
            a.begin()

    def row(r, src, neg=False):
        c = CV[cvi[0] % 4]
        cvi[0] += 1
        a(f"v_cvt_pk_bf16_f32 v{c}, v{src}, {'-' if neg else ''}v{src + 1}")
        a(f"ds_write_b32 v{vG}, v{c} offset:{r * GROW}")

    def reads(dst, tile):
        for ks in range(4):
            a(f"ds_read_b128 {vr(dst + 4 * ks, 4)}, v{vF} offset:{tile * 16 * GROW + ks * 64}")

    def mfmas(t, first):
        for ks in range(4):
            c = "0" if (first and ks == 0) else vr(ACC + 4 * t, 4)
            a(f"v_mfma_f32_16x16x32_bf16 {vr(ACC + 4 * t, 4)}, {vr(PF + 4 * ks, 4)}, {vr(QF + 4 * ks, 4)}, {c}")

    def direct(d, scale):
        if scale != 1:
            a(f"v_mul_f32 v{T0}, {f32(scale)}, v{A2}")
            a(f"v_mul_f32 v{T1}, {f32(scale)}, v{B2}")
            x, y = T0, T1
        else:
            x, y = A2, B2
        a(f"v_fract_f32 v{T1}, v{y}")
        a(f"v_exp_f32 v{T0}, v{x}")
        a(f"v_cos_f32 v{d}, v{T1}")
        a(f"v_sin_f32 v{d + 1}, v{T1}")
        a(f"v_pk_mul_f32 {vr(d, 2)}, {vr(d, 2)}, {vr(T0, 2)} op_sel_hi:[1,0]")

    for rd in range(2):
        def up(d, s):
            a(f"v_lshlrev_b32 v{d}, 16, v{s}" if rd == 0 else f"v_and_b32 v{d}, 0xffff0000, v{s}")
        up(A2, PR); up(B2, PR + 1)
        up(QN[0], PR + 2); up(QN[0] + 1, PR + 3)
        up(QN[1], PR + 4); up(QN[1] + 1, PR + 5)
        a(f"v_mul_f32 v{A2}, v{DT}, v{A2}")
        a(f"v_mul_f32 v{B2}, v{DT}, v{B2}")
        a(f"v_pk_mul_f32 {vr(QN[0], 2)}, {vr(QN[0], 2)}, {vr(DT, 2)} op_sel_hi:[1,0]")
        a(f"v_mul_f32 v{A2}, {f32(math.log2(math.e))}, v{A2}")
        a(f"v_mul_f32 v{B2}, {f32(1 / (2 * math.pi))}, v{B2}")
        cmul2((C0, QN[1], QN[0]))
        direct(F[1], 1)
        if rd == 1:
            mfmas(2, True)
        direct(Z1, 128)
        hook(5 * rd)
        cmul2((F[2], F[1], F[1]), (Z2, Z1, Z1))
        cmul2((F[4], F[2], F[2]), (F[3], F[2], F[1]))
        cmul2((Qr[1], F[4], F[4]), (C1, C0, Z1))
        a(f"v_mov_b32 v{CV[3]}, 0x3f80")
        a(f"ds_write_b32 v{vG}, v{CV[3]}")
        cmul2((Qr[2], Qr[1], Qr[1]), (F[5], F[4], F[1]))
        row(1, Qr[1], True)
        cmul2((Qr[3], Qr[2], Qr[1]), (Qr[4], Qr[2], Qr[2]))
        row(2, Qr[2], True)
        cmul2((F[6], F[4], F[2]), (F[7], F[4], F[3]))
        row(3, Qr[3], True)
        row(4, Qr[4], True)
        cur = {1: Qr[1], 2: Qr[2], 3: Qr[3], 0: Qr[4]}
        free = list(QN) + [CN[0]]
        j = 5
        while j < 16:
            js = [j] + ([j + 1] if j + 1 < 16 else [])
            ps = []
            for jj in js:
                d = free.pop(0)
                ps.append((d, cur[jj % 4], Qr[4]))
            cmul2(*ps)
            for jj, p in zip(js, ps):
                if cur[jj % 4] != Qr[4]:
                    free.append(cur[jj % 4])
                cur[jj % 4] = p[0]
                row(jj, p[0], True)
            j += 2
        reads(QF, 0)
        hook(5 * rd + 1)
        TA, TB = QN
        row(16, C0); row(24, C1)
        for e in range(1, 8):
            cmul2((TA, C0, F[e]), (TB, C1, F[e]))
            row(16 + e, TA); row(24 + e, TB)
        reads(PF, 1)
        hook(5 * rd + 2)
        ca, cb = C0, C1
        na, nb_ = CN
        def adv():
            nonlocal ca, cb, na, nb_
            cmul2((na, ca, Z2), (nb_, cb, Z2))
            ca, cb, na, nb_ = na, nb_, ca, cb
        adv()
        row(32, ca); row(36, cb)
        for e in range(1, 4):
            cmul2((TA, ca, F[2 * e]), (TB, cb, F[2 * e]))
            row(32 + e, TA); row(36 + e, TB)
        mfmas(0, rd == 0)
        for k in range(2):
            adv()
            row(40 + 4 * k, ca); row(42 + 4 * k, cb)
            cmul2((TA, ca, F[4]), (TB, cb, F[4]))
            row(41 + 4 * k, TA); row(43 + 4 * k, TB)
        reads(PF, 2)
        hook(5 * rd + 3)
        for k in range(4):
            adv()
            row(48 + 2 * k, ca); row(49 + 2 * k, cb)
        cmul2((na, ca, Z2))
        row(56, na)
        mfmas(1, rd == 0)
        reads(PF, 3)
        hook(5 * rd + 4)
    hook(None)
    a(f"s_mul_i32 s{sT0}, s{sWAVE}, {GST}")
    a(f"v_add_u32 v{vF}, s{sT0}, v{vL16}")
    a(f"v_mov_b32 v{CV[0]}, 0")
    for k in range(8):
        a(f"v_and_b32 v{2 + 2 * k}, 0xffff, v{TAB + k}")
        a(f"v_lshrrev_b32 v{3 + 2 * k}, 16, v{TAB + k}")
    for t in range(2):
        a(f"ds_write_b128 v{vF}, {vr(ACC + 4 * t, 4)} offset:{TOFF + t * 1024}")
    mfmas(2, False)
    a(f"ds_write_b32 v{vG}, v{CV[0]} offset:{TOFF + 3072}")
    a("v_and_b32 v18, 0xffff, v0\nv_lshrrev_b32 v19, 16, v0\nv_and_b32 v20, 0xffff, v1")
    a(f"ds_write_b128 v{vF}, {vr(ACC + 8, 4)} offset:{TOFF + 2048}")


def kzero(r):
    a(f"""v_mov_b32 v{r}, 0
v_mov_b32 v{r + 1}, 0
v_mov_b32 v{r + 2}, 0
v_mov_b32 v{r + 3}, 0
v_bfe_u32 v{r + 4}, v{vLANE}, 1, 3
v_mul_u32_u24 v{r + 4}, {KST}, v{r + 4}
v_and_b32 v{r + 5}, 1, v{vLANE}
v_lshl_add_u32 v{r + 4}, v{r + 5}, 4, v{r + 4}
s_and_b32 s{sT0}, s{sWAVE}, 1
s_mul_i32 s{sT0}, s{sT0}, {UST}
v_add_u32 v{r + 5}, s{sT0}, v{vL16}""")
    return [f"ds_write_b128 v{r + 4}, {vr(r, 4)} offset:4096", f"ds_write_b128 v{r + 5}, {vr(r, 4)} offset:{UB}"]


def kaddr(r):
    a(f"""s_lshr_b32 s{sT0}, s{sWAVE}, 1
s_and_b32 s{sT1}, s{sWAVE}, 1
s_lshl_b32 s{sT1}, s{sT1}, 11
v_lshl_add_u32 v{r + 3}, v{vLANE}, 5, s{sT1}""")
    for c in range(4):
        a(f"s_cmp_lg_u32 s{sT0}, 0")
        a(f"s_cselect_b32 s{sT2}, {KSLOT[1][c]}, {KSLOT[0][c]}")
        a(f"s_mul_i32 s{sT2}, s{sT2}, {KST}")
        a(f"v_add_u32 v{r + c}, s{sT2}, v{r + 3}")


def kexpand(mid):
    AD, VAL = 2, 22
    P0, P1, P2, P3 = 2, 12, 88, 96
    a.barrier()
    for k in range(19):
        a(f"ds_read2st64_b32 {vr(VAL + 2 * k, 2)}, v{AD + k} offset0:{TOFF // 256} offset1:{TOFF // 256 + GST // 256}")
    mid()
    kaddr(60)
    zw = kzero(104)
    for k in range(19):
        a(f"v_add_f32 v{VAL + 2 * k}, v{VAL + 2 * k}, v{VAL + 2 * k + 1}")
        if k:
            a(f"v_cvt_pk_bf16_f32 v{(P0 if k & 1 else P1) + (k - 1) // 2}, v{VAL + 2 * k - 2}, v{VAL + 2 * k}")
    a.barrier()
    a.begin()
    for l in zw:
        a(l)
    for c, P in ((0, P0), (1, P1)):
        a(f"ds_write_b128 v{60 + c}, {vr(P, 4)}")
        a(f"ds_write_b128 v{60 + c}, {vr(P + 4, 4)} offset:16")
    for c, P, src in ((2, P2, P0), (3, P3, P1)):
        for i in range(4):
            a(f"v_pk_mov_b32 {vr(P + 2 * i, 2)}, {vr(src + 2 * i, 2)}, {vr(src + 2 * i + 2, 2)} op_sel:[1,0]")
        a(f"ds_write_b128 v{60 + c}, {vr(P, 4)}")
        a(f"ds_write_b128 v{60 + c}, {vr(P + 4, 4)} offset:16")
    return a.end()


def kcopies():
    R, E, M = 2, 12, 22
    kaddr(40)
    a(f"""ds_read_b128 {vr(R, 4)}, v40
ds_read_b128 {vr(R + 4, 4)}, v40 offset:16
ds_read_b64 {vr(R + 8, 2)}, v40 offset:32""")
    for l in kzero(32):
        a(l)
    for i in range(9):
        a(f"v_alignbit_b32 v{E + i}, v{R + i + 1}, v{R + i}, 16")
    a(f"ds_write_b128 v41, {vr(E, 4)}")
    a(f"ds_write_b128 v41, {vr(E + 4, 4)} offset:16")
    for i in range(4):
        a(f"v_pk_mov_b32 {vr(M + 2 * i, 2)}, {vr(R + 2 * i, 2)}, {vr(R + 2 * i + 2, 2)} op_sel:[1,0]")
    a(f"ds_write_b128 v42, {vr(M, 4)}")
    a(f"ds_write_b128 v42, {vr(M + 4, 4)} offset:16")
    for i in range(4):
        a(f"v_pk_mov_b32 {vr(R + 2 * i, 2)}, {vr(E + 2 * i, 2)}, {vr(E + 2 * i + 2, 2)} op_sel:[1,0]")
    a(f"ds_write_b128 v43, {vr(R, 4)}")
    a(f"ds_write_b128 v43, {vr(R + 4, 4)} offset:16")


GX = 80
CS = 64
cvA, cvB, cvZ, cvXW, cvXR, cvO, cvU, cvX, cvH, cvP = 112, 113, 114, 115, 116, 117, 118, 119, 100, 108
STUBS = []


def conv_poll1():
    r = cvP
    a(f"""v_lshrrev_b32 v{r}, 3, v{vLANE}
v_min_u32 v{r}, 6, v{r}
v_and_b32 v{r + 1}, 7, v{vLANE}
v_lshl_add_u32 v{r + 2}, v{r}, 5, v{r + 1}
s_lshl_b32 s{sT0}, s{sWAVE}, 3
v_add_u32 v{r + 2}, s{sT0}, v{r + 2}
v_and_b32 v{r + 1}, 7, v{vLANE}
v_min_u32 v{r}, 6, v{r + 1}
v_lshl_add_u32 v{r + 3}, v{r}, 5, v{r + 1}
v_add_u32 v{r + 3}, s{sT0}, v{r + 3}""")


def conv_loads():
    for p in range(4):
        a(f"buffer_load_dwordx4 {vr(CS + 4 * p, 4)}, v{vL16}, {srd(S_WS)}, s{16 + p} offen sc1")
    a(f"buffer_load_dwordx4 {vr(GX, 4)}, v{cvX}, {srd(S_WS)}, s20 offen sc1")
    a(f"buffer_load_dwordx4 {vr(GX + 4, 4)}, v{cvX}, {srd(S_WS)}, s20 offen offset:64 sc1")


def conv_setup(layer):
    a(f"""s_mov_b32 s{sCA}, {f32(1.0 / 448)}
s_mov_b32 s{sCB}, {f32(1e-5)}
s_lshl_b32 s{sT0}, s{sWAVE}, 10
v_add_u32 v{cvU}, s{sT0}, v{vL16}
s_lshr_b32 s{sT0}, s{sWAVE}, 1
s_and_b32 s{sT1}, s{sWAVE}, 1
v_and_b32 v8, 15, v{vLANE}
v_lshrrev_b32 v9, 4, v{vLANE}
v_not_b32 v10, v8
v_and_b32 v10, 3, v10""")
    for s in range(4):
        a(f"s_cmp_lg_u32 s{sT0}, 0")
        a(f"s_cselect_b32 s{sT2}, {KSLOT[1][s]}, {KSLOT[0][s]}")
        a(f"s_mul_i32 s{sT2}, s{sT2}, {KST}")
        if s == 0:
            a(f"v_mov_b32 v11, s{sT2}")
        else:
            a(f"v_mov_b32 v12, s{sT2}\nv_cmp_eq_u32 vcc, {s}, v10\nv_cndmask_b32 v11, v11, v12, vcc")
    a(f"""v_add_u32 v10, v10, v8
v_lshlrev_b32 v12, 3, v9
v_sub_u32 v12, v12, v10
v_lshl_add_u32 v11, v12, 1, v11
""")
    a(f"""s_lshl_b32 s{sT3}, s{sT1}, 8
s_sub_u32 s{sT2}, {2 * 2031 - 64 * 59}, s{sT3}
v_add_u32 v{cvA}, s{sT2}, v11
s_mul_i32 s{sT2}, s{sT0}, {UST}
s_sub_u32 s{sT2}, s{sT2}, s{sT3}
s_add_u32 s{sT2}, s{sT2}, {UB + UPAD - 2 * 112}
v_lshlrev_b32 v12, 5, v8
v_lshl_add_u32 v13, v9, 4, v12
v_add_u32 v{cvB}, s{sT2}, v13
s_lshl_b32 s{sT2}, s{sWAVE}, 11
v_lshl_add_u32 v13, v9, 3, v12
v_add_u32 v{cvZ}, s{sT2}, v13
s_xor_b32 s{sT2}, s{sWAVE}, 1
s_lshl_b32 s{sT2}, s{sT2}, 12
v_add_u32 v{cvXW}, s{sT2}, v{vL16}
s_lshl_b32 s{sT2}, s{sWAVE}, 12
v_add_u32 v{cvXR}, s{sT2}, v{vL16}
v_and_b32 v10, 1, v9
v_lshlrev_b32 v10, 3, v10
v_lshrrev_b32 v11, 1, v8
v_add_u32 v10, v10, v11
v_mul_u32_u24 v10, {BS}, v10
v_and_b32 v11, 1, v8
v_lshl_add_u32 v10, v11, 5, v10
v_lshrrev_b32 v11, 1, v9
v_lshl_add_u32 v{cvO}, v11, 4, v10
s_mul_i32 s{sT1}, s{sT1}, {32 * BS}
s_lshl_b32 s{sT2}, s{sPAIR}, 1
s_add_u32 s{sT0}, s{sT0}, s{sT2}
s_lshl_b32 s{sT0}, s{sT0}, 6
s_add_u32 s{sT0}, s{sT0}, s{sT1}
s_add_u32 s13, s{sT0}, {X1 if layer == 0 else X3}
s_add_u32 s21, s13, {16 * BS}""" if OPT["cv"] else f"""v_add_u32 v{cvA}, {2 * 2031 - 64 * 63}, v11
s_mul_i32 s{sT2}, s{sT0}, {UST}
s_lshl_b32 s{sT3}, s{sT1}, 9
s_add_u32 s{sT2}, s{sT2}, s{sT3}
s_add_u32 s{sT2}, s{sT2}, {UB + UPAD - 2 * 496}
v_lshlrev_b32 v12, 5, v8
v_lshl_add_u32 v13, v9, 4, v12
v_add_u32 v{cvB}, s{sT2}, v13
s_lshl_b32 s{sT2}, s{sT0}, 12
s_add_u32 s{sT2}, s{sT2}, s{sT3}
v_lshl_add_u32 v13, v9, 3, v12
v_add_u32 v{cvZ}, s{sT2}, v13
v_and_b32 v10, 1, v9
v_lshlrev_b32 v10, 4, v10
v_lshrrev_b32 v11, 1, v8
v_add_u32 v10, v10, v11
v_mul_u32_u24 v10, {BS}, v10
v_and_b32 v11, 1, v8
v_lshl_add_u32 v10, v11, 5, v10
v_lshrrev_b32 v11, 1, v9
v_lshl_add_u32 v{cvO}, v11, 4, v10
s_mul_i32 s{sT1}, s{sT1}, {8 * BS}
s_lshl_b32 s{sT2}, s{sPAIR}, 1
s_add_u32 s{sT0}, s{sT0}, s{sT2}
s_lshl_b32 s{sT0}, s{sT0}, 6
s_add_u32 s{sT0}, s{sT0}, s{sT1}
s_add_u32 s13, s{sT0}, {X1 if layer == 0 else X3}
s_add_u32 s21, s13, {32 * BS}""")
    a(f"""s_lshl_b32 s16, s{sWAVE}, 10
s_add_u32 s16, s16, {ST0 if layer == 0 else ST1}
s_add_u32 s17, s16, 4096
s_add_u32 s18, s16, 8192
s_add_u32 s19, s16, 12288
s_mul_i32 s20, s{sWAVE}, {16 * BS}
s_lshl_b32 s{sT2}, s{sPAIR}, 7
s_add_u32 s20, s20, s{sT2}
s_add_u32 s20, s20, {X0 if layer == 0 else X2}
v_lshrrev_b32 v10, 2, v{vLANE}
v_mul_u32_u24 v10, {BS}, v10
v_and_b32 v11, 3, v{vLANE}
v_lshl_add_u32 v{cvX}, v11, 4, v10""")


cXF, cUF, cAL, cBE, cUP = 0, 16, 32, 40, 48


def conv_pro(layer):
    XF, UF, AL, BE, UP = cXF, cUF, cAL, cBE, cUP
    for p in range(4):
        S = CS + 4 * p
        a(f"v_pk_mul_f32 {vr(S, 2)}, {vr(S, 2)}, {sp(sCA)} op_sel_hi:[1,0]")
    for p in range(4):
        S = CS + 4 * p
        a(f"v_pk_fma_f32 {vr(BE + 2 * p, 2)}, {vr(S, 2)}, {vr(S, 2)}, {sp(sCB)} op_sel_hi:[1,1,0] neg_lo:[1,0,0] neg_hi:[1,0,0]")
    for p in range(4):
        Q = CS + 4 * p + 2
        a(f"v_pk_fma_f32 {vr(Q, 2)}, {vr(Q, 2)}, {sp(sCA)}, {vr(BE + 2 * p, 2)} op_sel_hi:[1,0,1]")
    for p in range(4):
        Q = CS + 4 * p + 2
        a(f"v_max_f32 v{Q}, s{sCB}, v{Q}\nv_max_f32 v{Q + 1}, s{sCB}, v{Q + 1}")
    for p in range(4):
        Q = CS + 4 * p + 2
        a(f"v_rsq_f32 v{AL + 2 * p}, v{Q}\nv_rsq_f32 v{AL + 2 * p + 1}, v{Q + 1}")
    for k in range(8):
        unpack(XF + 2 * k, XF + 2 * k + 1, GX + k)
    for p in range(4):
        S = CS + 4 * p
        a(f"v_pk_mul_f32 {vr(BE + 2 * p, 2)}, {vr(S, 2)}, {vr(AL + 2 * p, 2)} neg_lo:[1,0] neg_hi:[1,0]")
    for c in range(2):
        for p in range(4):
            a(f"v_pk_fma_f32 {vr(UF + 8 * c + 2 * p, 2)}, {vr(XF + 8 * c + 2 * p, 2)}, {vr(AL + 2 * p, 2)}, {vr(BE + 2 * p, 2)}")
        for p in range(4):
            a(f"v_cvt_pk_bf16_f32 v{UP + 4 * c + p}, v{UF + 8 * c + 2 * p}, v{UF + 8 * c + 2 * p + 1}")
        a(f"ds_write_b128 v{cvU}, {vr(UP + 4 * c, 4)} offset:{UB + c * UST + UPAD}")
    if OPT["cv"]:
        for i in a.capture(conv_z, 88):
            if i.kind != "dsw":
                a.put([i])


def conv_z(ZP=cXF):
    XF, UF = cXF, cUF
    for c in range(2):
        for p in range(4):
            a(f"v_pk_fma_f32 {vr(UF + 8 * c + 2 * p, 2)}, {vr(UF + 8 * c + 2 * p, 2)}, {sp((sD0, sD1)[c])}, {vr(XF + 8 * c + 2 * p, 2)} op_sel_hi:[1,0,1]")
        for p in range(4):
            a(f"v_cvt_pk_bf16_f32 v{ZP + 4 * c + p}, v{UF + 8 * c + 2 * p}, v{UF + 8 * c + 2 * p + 1}")
        a(f"ds_write_b128 v{cvU}, {vr(ZP + 4 * c, 4)} offset:{ZB + c * 4096}")


def conv_main(layer, bg=(), bg_start=0, bg_every=64):
    return (conv_main_r if OPT["cv"] else conv_main_t)(layer, bg, bg_start, bg_every)


def conv_main_r(layer, bg, bg_start, bg_every):
    ACC, BF, AR = 0, 32, 64
    NA = 6
    EX2 = ZB
    seq = [(r, q) for r in range(4) for q in range(7, -1, -1)]
    e = 1 + 4 * layer

    def rdA(i):
        r, q = seq[i]
        d = AR + 4 * (i % NA)
        off = 64 * (59 - (8 * q + r))
        return [Ins(f"ds_read_b64 {vr(d, 2)}, v{cvA} offset:{off}"), Ins(f"ds_read_b64 {vr(d + 2, 2)}, v{cvA} offset:{off + 8}")]

    def rdB(r, p):
        return [Ins(f"ds_read_b128 {vr(BF + 4 * p, 4)}, v{cvB} offset:{512 * p + 64 * (3 - r)}")]

    a.put(rdA(0)); a.put(rdB(0, 0)); a.put(rdA(1)); a.put(rdB(0, 1)); a.put(rdA(2)); a.put(rdB(0, 2)); a.put(rdA(3))
    a.put(rdB(0, 3)); a.put(rdA(4))
    for p in range(4, 8):
        a.put(rdB(0, p))
    ZR, ZF, RR = 88, 64, 32
    side = [[i] for i in a.capture(conv_z, 88) if i.kind == "dsw"]
    if hinted(e):
        side += [[i] for i in a.capture(hint_prep, e + 10, sPAIR, cvH)]
    late = [[Ins("s_barrier")]] + [[Ins(f"ds_read_b64 {vr(ZR + 2 * i, 2)}, v{cvZ} offset:{ZB + i * 512}")] for i in range(4)]
    late2 = [[Ins("s_barrier")]]
    a.begin()
    started = set()
    for i, (r, q) in enumerate(seq):
        if hinted(e) and OPT["h_cv"] < 0 and i == 32 + OPT["h_cv"]:
            hint_put(cvH)
        ps = list(range(8 - q))
        for p in ps:
            b = q + p
            c = vr(ACC + 4 * b, 4) if b in started else "0"
            started.add(b)
            a(f"v_mfma_f32_16x16x32_bf16 {vr(ACC + 4 * b, 4)}, {vr(AR + 4 * (i % NA), 4)}, {vr(BF + 4 * p, 4)}, {c}")
            if p == 0 and i + NA - 1 < len(seq):
                a.put(rdA(i + NA - 1))
            elif 1 <= q <= 4 and p >= 1:
                for lst, r0 in ((side, 0), (late, 2), (late2, 3)):
                    if lst and r >= r0:
                        a.put(lst.pop(0))
                        break
            if q == 0 and r < 3:
                a.put(rdB(r + 1, p))
    assert not side and not late and not late2
    m, rest = merge(a.end(), list(bg), bg_start, bg_every)
    a.put(m)
    stamp(f"conv{layer} loop", 111)
    if hinted(e) and OPT["h_cv"] == 0:
        hint_put(cvH)
    for k in range(8):
        unpack(ZF + 2 * k, ZF + 2 * k + 1, ZR + k)
    l1, l2 = label("cx"), label("cy")
    a(f"s_bitcmp1_b32 s{sWAVE}, 0")
    a(f"s_cbranch_scc1 {l1}")
    for h in range(2):
        for i in range(4):
            a(f"ds_write_b128 v{cvXW}, {vr(ACC + 16 * (1 - h) + 4 * i, 4)} offset:{EX2 + i * 1024}")
            for k in range(2):
                a(f"v_pk_add_f32 {vr(ZF + 4 * i + 2 * k, 2)}, {vr(ZF + 4 * i + 2 * k, 2)}, {vr(ACC + 16 * h + 4 * i + 2 * k, 2)}")
        if h == 0:
            a(f"s_branch {l2}")
            a(f"{l1}:")
    a(f"{l2}:")
    if sentinel(1) and layer == 0:
        poll_take(cvP)
    a.barrier()
    if hinted(e) and OPT["h_cv"] == 1:
        hint_put(cvH)
    for i in range(4):
        a(f"ds_read_b128 {vr(RR + 4 * i, 4)}, v{cvXR} offset:{EX2 + i * 1024}")
    PK = 56
    for i in range(4):
        for k in range(2):
            a(f"v_pk_add_f32 {vr(ZF + 4 * i + 2 * k, 2)}, {vr(ZF + 4 * i + 2 * k, 2)}, {vr(RR + 4 * i + 2 * k, 2)}")
        for k in range(2):
            a(f"v_cvt_pk_bf16_f32 v{PK + 2 * i + k}, v{ZF + 4 * i + 2 * k}, v{ZF + 4 * i + 2 * k + 1}")
        if i & 1:
            b = PK + 2 * (i - 1)
            a(f"v_permlane16_swap_b32 v{b}, v{b + 2}")
            a(f"v_permlane16_swap_b32 v{b + 1}, v{b + 3}")
            a(f"buffer_store_dwordx4 {vr(b, 4)}, v{cvO}, {srd(S_WS)}, s{21 if i == 3 else 13} offen sc1", tag="pub")
    if hinted(e) and OPT["h_cv"] == 2:
        hint_put(cvH)
    if not flagged(e):
        a.barrier()
    else:
        flag_put(1 + 4 * layer, sPAIR, 40, "pub")
    return rest


def conv_main_t(layer, bg, bg_start, bg_every):
    ACC, BF, AR = 84, 32, 64
    NA = 5
    QORD = (7, 5, 6, 3, 4, 2, 1, 0)
    seq = [(r, q) for r in range(8) for q in QORD]
    e = 1 + 4 * layer

    def rdA(i):
        r, q = seq[i]
        d = AR + 4 * (i % NA)
        off = 64 * (63 - (8 * q + r))
        return [Ins(f"ds_read_b64 {vr(d, 2)}, v{cvA} offset:{off}"), Ins(f"ds_read_b64 {vr(d + 2, 2)}, v{cvA} offset:{off + 8}")]

    def rdB(r, p):
        return [Ins(f"ds_read_b128 {vr(BF + 4 * (p + 1), 4)}, v{cvB} offset:{512 * (p + 1) + 64 * (7 - r)}")]

    a.put(rdA(0)); a.put(rdB(0, -1)); a.put(rdA(1)); a.put(rdB(0, 1)); a.put(rdA(2)); a.put(rdB(0, 0)); a.put(rdA(3))
    for p in (3, 2, 4, 5, 6):
        a.put(rdB(0, p))
    ZR, ZF = 16, 0
    side = [[i] for i in a.capture(conv_z)]
    if hinted(e):
        side += [[i] for i in a.capture(hint_prep, e + 10, sPAIR, cvH)]
    late = [[Ins("s_barrier")]] + [[Ins(f"ds_read_b64 {vr(ZR + 2 * i, 2)}, v{cvZ} offset:{ZB + i * 1024}")] for i in range(4)]
    late2 = [[i] for k in range(8) for i in a.capture(unpack, ZF + 2 * k, ZF + 2 * k + 1, ZR + k)]
    a.begin()
    started = set()
    n = 0
    for i, (r, q) in enumerate(seq):
        if hinted(e) and OPT["h_cv"] < 0 and i == 64 + OPT["h_cv"]:
            hint_put(cvH)
        first = True
        for t in range(q // 2, 4):
            p = 2 * t - q
            c = vr(ACC + 4 * t, 4) if t in started else "0"
            started.add(t)
            a(f"v_mfma_f32_16x16x32_bf16 {vr(ACC + 4 * t, 4)}, {vr(AR + 4 * (i % NA), 4)}, {vr(BF + 4 * (p + 1), 4)}, {c}")
            n += 1
            if first and i + 4 < len(seq):
                a.put(rdA(i + 4))
            elif q >= 2:
                for lst, r0 in ((side, 0), (late, 4), (late2, 5)):
                    if lst and r >= r0:
                        a.put(lst.pop(0))
                        if lst is side and lst:
                            a.put(lst.pop(0))
                        break
            first = False
            if q <= 1 and r < 7:
                a.put(rdB(r + 1, p))
    assert not side and not late and not late2
    m, rest = merge(a.end(), list(bg), bg_start, bg_every)
    a.put(m)
    stamp(f"conv{layer} loop", 111)
    if sentinel(1) and layer == 0:
        poll_take(cvP)
    if hinted(e) and OPT["h_cv"] == 0:
        hint_put(cvH)
    PK = 24
    for i in range(4):
        for k in range(2):
            a(f"v_pk_add_f32 {vr(ZF + 4 * i + 2 * k, 2)}, {vr(ZF + 4 * i + 2 * k, 2)}, {vr(ACC + 4 * i + 2 * k, 2)}")
        for k in range(2):
            a(f"v_cvt_pk_bf16_f32 v{PK + 2 * i + k}, v{ZF + 4 * i + 2 * k}, v{ZF + 4 * i + 2 * k + 1}")
        if i & 1:
            b = PK + 2 * (i - 1)
            a(f"v_permlane16_swap_b32 v{b}, v{b + 2}")
            a(f"v_permlane16_swap_b32 v{b + 1}, v{b + 3}")
            a(f"buffer_store_dwordx4 {vr(b, 4)}, v{cvO}, {srd(S_WS)}, s{21 if i == 3 else 13} offen sc1", tag="pub")
    if hinted(e) and OPT["h_cv"] > 0:
        hint_put(cvH)
    if not flagged(e):
        a.barrier()
    else:
        flag_put(1 + 4 * layer, sPAIR, 40, "pub")
    return rest


def reduce32(V, n, W):
    for i in range(n):
        a(f"v_permlane16_swap_b32 v{V[i]}, v{V[n + i]}")
    for i in range(n):
        a(f"v_add_f32 v{V[i]}, v{V[i]}, v{V[n + i]}")
    h = n // 2
    for i in range(h):
        a(f"v_add_f32_dpp v{W[i]}, v{V[i]}, v{V[i]} row_ror:8 row_mask:0xf bank_mask:0x3")
    for i in range(h):
        a(f"v_add_f32_dpp v{W[i]}, v{V[i + h]}, v{V[i + h]} row_ror:8 row_mask:0xf bank_mask:0xc")
    g = h // 2
    for i in range(g):
        a(f"v_add_f32_dpp v{V[i]}, v{W[i]}, v{W[i]} row_half_mirror row_mask:0xf bank_mask:0x5")
    for i in range(g):
        a(f"v_add_f32_dpp v{V[i]}, v{W[i + g]}, v{W[i + g]} row_half_mirror row_mask:0xf bank_mask:0xa")
    for m in ("[1,0,3,2]", "[2,3,0,1]"):
        for i in range(g):
            a(f"v_add_f32_dpp v{V[i]}, v{V[i]}, v{V[i]} quad_perm:{m} row_mask:0xf bank_mask:0xf")
    return V[:g]


def maxchain(t, regs):
    regs = list(regs)
    if OPT["chk"] == 1:
        regs = regs[3::4]
    if len(regs) == 2:
        return [f"v_max_u32 v{t}, v{regs[0]}, v{regs[1]}"]
    out = [f"v_max3_u32 v{t}, v{regs[0]}, v{regs[1]}, v{regs[2]}"]
    regs = regs[3:]
    while len(regs) >= 2:
        out.append(f"v_max3_u32 v{t}, v{t}, v{regs[0]}, v{regs[1]}")
        regs = regs[2:]
    if regs:
        out.append(f"v_max_u32 v{t}, v{t}, v{regs[0]}")
    return out


RETRY = 0x10000


def ln(layer, wide):
    X = X1 if layer == 0 else X3
    H = H1 if layer == 0 else H3
    nf = 7 if wide else 4
    sI = sLN0 if wide else sLN
    RAW, XF, S, Q, W = 0, 28, 84, 92, 100
    vO, vPW, vPR, vAW, vAR, r, hr = 109, 110, 111, 112, 117, 114, 104
    vX, vS = 64, 68
    a(f"""s_mul_i32 s{sT0}, s{sWAVE}, 56
v_min_u32 v{r + 2}, 55, v{vLANE}""")
    a(f"v_add_u32 v{r + 2}, s{sT0}, v{r + 2}")
    a(f"v_and_b32 v118, {OPT['samp'] - 1}, v{vLANE}\nv_mul_u32_u24 v118, {56 // OPT['samp']}, v118\nv_add_u32 v118, s{sT0}, v118")
    ein, eout = 1 + 4 * layer, 2 + 4 * layer
    if wide:
        a(f"""s_mul_i32 s16, s{sI}, {BS}
s_lshl_b32 s{sT2}, s{sI}, 12""")
    else:
        a(f"""s_lshr_b32 s16, s{sI}, 1
s_mul_i32 s16, s16, {BS}
s_and_b32 s{sT0}, s{sI}, 1
s_lshl_b32 s{sT0}, s{sT0}, 5
s_add_u32 s16, s16, s{sT0}
s_lshl_b32 s{sT2}, s{sI}, 11""")
    a(f"""s_mul_i32 s{sT0}, s{sWAVE}, 7168
s_add_u32 s16, s16, s{sT0}
s_add_u32 s16, s16, {X}
s_add_u32 s17, s16, 4096
s_add_u32 s{sT2}, s{sT2}, {H}
s_mul_i32 s30, s{sWAVE}, 7""")
    if wide:
        for i in range(nf):
            a(f"""s_add_u32 s{sT0}, s30, {i}
s_lshr_b32 s{sT1}, s{sT0}, 2
s_lshl_b32 s{sT1}, s{sT1}, 18
s_add_u32 s{23 + i}, s{sT1}, s{sT2}
s_and_b32 s{sT1}, s{sT0}, 2
s_lshl_b32 s{sT1}, s{sT1}, 9
s_add_u32 s{23 + i}, s{23 + i}, s{sT1}
s_and_b32 s{sT1}, s{sT0}, 1
s_lshl_b32 s{sT1}, s{sT1}, 8
s_add_u32 s{23 + i}, s{23 + i}, s{sT1}""")
        a(f"""v_lshrrev_b32 v1, 2, v{vLANE}
v_lshlrev_b32 v{vO}, 4, v1
v_and_b32 v2, 1, v{vLANE}
v_lshl_add_u32 v{vO}, v2, 9, v{vO}
v_bfe_u32 v2, v{vLANE}, 1, 1
v_lshl_add_u32 v{vO}, v2, 11, v{vO}
v_and_b32 v1, 7, v1
v_and_b32 v2, 3, v{vLANE}
v_lshl_add_u32 v1, v2, 3, v1""")
    else:
        a(f"""v_lshrrev_b32 v1, 1, v{vLANE}
v_and_b32 v2, 1, v{vLANE}
v_lshlrev_b32 v{vX}, 6, v1
v_lshl_add_u32 v{vX}, v2, 4, v{vX}
v_mov_b32 v3, {OOB}
v_cmp_gt_u32 vcc, 32, v{vLANE}
v_cndmask_b32 v{vX + 1}, v3, v{vX}, vcc
s_lshl_b32 s30, s30, 4
s_mov_b32 s23, s{sT2}""")
        for i in range(nf):
            a(f"""v_add_u32 v4, s30, v1
v_lshrrev_b32 v5, 6, v4
v_lshlrev_b32 v5, 18, v5
v_bfe_u32 v6, v4, 5, 1
v_lshl_add_u32 v5, v6, 10, v5
v_and_b32 v6, 31, v4
v_lshl_add_u32 v5, v6, 4, v5
v_lshl_add_u32 v{vS + i}, v2, 9, v5""")
            if i < 3:
                a("s_add_u32 s30, s30, 32")
        a(f"""v_cndmask_b32 v{vS + 3}, v3, v{vS + 3}, vcc
v_bfe_u32 v1, v{vLANE}, 2, 3
v_lshl_add_u32 v1, v2, 3, v1""")
    a(f"""v_lshrrev_b32 v3, 5, v{vLANE}
v_lshl_add_u32 v1, v3, 5, v1
s_lshl_b32 s{sT1}, s{sWAVE}, 8
s_add_u32 s{sT1}, s{sT1}, {LNP}
v_lshl_add_u32 v{vPW}, v1, 2, s{sT1}
v_and_b32 v1, 31, v{vLANE}
v_lshlrev_b32 v{vPR}, 2, v1
v_add_u32 v{vPR}, {LNP}, v{vPR}
s_add_u32 s{sT1}, s{sT1}, 1024
v_lshl_add_u32 v{vAW}, v{vLANE}, 2, s{sT1}
v_lshl_add_u32 v{vAR}, v2, 5, s{sT1}
s_mov_b32 s18, 0
s_mov_b32 s19, -1""")
    prod = f"s_lshl_b32 s{sT0}, s{sI}, 6"
    if hinted(eout):
        hint_prep(eout + 10, prod, hr)
    wait_edge(ein, r, r + 2, 118)
    stamp(f"ln{layer} go")

    def loads():
        if not wide:
            return [f"buffer_load_dwordx4 {vr(RAW + 4 * i, 4)}, v{vX + (i == 3)}, {srd(S_WS)}, s{16 + i // 2} offen offset:{2048 * (i % 2)} sc1" for i in range(nf)]
        return [f"buffer_load_dwordx4 {vr(RAW + 4 * i, 4)}, v{vL16}, {srd(S_WS)}, s{16 + i // 4} offen offset:{1024 * (i % 4)} sc1" for i in range(nf)]
    for l in loads():
        a(l)
    if sentinel(ein):
        back, stub = label("lnb"), label("lns")
        chk = maxchain(113, range(RAW, RAW + 4 * nf)) + ["v_cmp_eq_u32 vcc, -1, v113"]
        a(f"s_mov_b32 s{sCNT}, 0")
        for l in chk:
            a(l)
        a(f"s_cbranch_vccnz {stub}")
        a(f"{back}:")
        STUBS.extend([f"{stub}:"] + loads() + ["s_waitcnt vmcnt(0)"] + chk + [f"s_add_u32 s{sCNT}, s{sCNT}, 1", f"s_cbranch_vccz {back}",
                      f"s_cmp_lt_u32 s{sCNT}, {RETRY}", f"s_cbranch_scc1 {stub}", f"s_branch {back}"])
    if hinted(eout) and OPT["h_ln"] == 0:
        a.wait_vm0()
        hint_put(hr)
    if OPT["stamps"] == 1:
        a.wait_vm0()
    count_out(113)
    stamp(f"ln{layer} data", 113)
    for i in range(nf):
        for k in range(4):
            unpack(XF + 8 * i + 2 * k, XF + 8 * i + 2 * k + 1, RAW + 4 * i + k)
        for k in range(4):
            x = vr(XF + 8 * i + 2 * k, 2)
            if i == 0:
                a(f"v_pk_mul_f32 {vr(Q + 2 * k, 2)}, {x}, {x}")
            else:
                a(f"v_pk_fma_f32 {vr(Q + 2 * k, 2)}, {x}, {x}, {vr(Q + 2 * k, 2)}")
                a(f"v_pk_add_f32 {vr(S + 2 * k, 2)}, {vr(XF + 2 * k, 2) if i == 1 else vr(S + 2 * k, 2)}, {x}")
    if hinted(eout) and OPT["h_ln"] == 1:
        hint_put(hr)
    for i in range(8):
        a(f"v_permlane32_swap_b32 v{S + i}, v{Q + i}")
    for i in range(0, 8, 2):
        a(f"v_pk_add_f32 {vr(S + i, 2)}, {vr(S + i, 2)}, {vr(Q + i, 2)}")
    for i in range(4):
        a(f"v_permlane16_swap_b32 v{S + i}, v{S + 4 + i}")
    for i in range(0, 4, 2):
        a(f"v_pk_add_f32 {vr(S + i, 2)}, {vr(S + i, 2)}, {vr(S + 4 + i, 2)}")
    for i in range(2):
        a(f"v_add_f32_dpp v{W + i}, v{S + i}, v{S + i} row_ror:8 row_mask:0xf bank_mask:0x3")
    for i in range(2):
        a(f"v_add_f32_dpp v{W + i}, v{S + 2 + i}, v{S + 2 + i} row_ror:8 row_mask:0xf bank_mask:0xc")
    a(f"v_add_f32_dpp v{S}, v{W}, v{W} row_shl:4 row_mask:0xf bank_mask:0x5")
    a(f"v_add_f32_dpp v{S}, v{W + 1}, v{W + 1} row_shr:4 row_mask:0xf bank_mask:0xa")
    if not wide:
        a(f"v_add_f32_dpp v{S}, v{S}, v{S} quad_perm:[2,3,0,1] row_mask:0xf bank_mask:0xf")
    a(f"ds_write_b32 v{vPW}, v{S}")
    a.barrier()
    if hinted(eout) and OPT["h_ln"] == 2:
        hint_put(hr)
    stamp(f"ln{layer} bar", 113)
    T = 0
    for w in range(4):
        a(f"ds_read2_b32 {vr(T + 2 * w, 2)}, v{vPR} offset0:{w * 64} offset1:{w * 64 + 32}")
    a(f"""v_pk_add_f32 {vr(T, 2)}, {vr(T, 2)}, {vr(T + 2, 2)}
v_pk_add_f32 {vr(T + 4, 2)}, {vr(T + 4, 2)}, {vr(T + 6, 2)}
v_pk_add_f32 {vr(T, 2)}, {vr(T, 2)}, {vr(T + 4, 2)}
v_mul_f32 v{T}, {f32(1 / 448)}, v{T}
v_mul_f32 v{T + 1}, {f32(1 / 448)}, v{T + 1}
v_fma_f32 v{T + 1}, -v{T}, v{T}, v{T + 1}
v_max_f32 v{T + 1}, 0, v{T + 1}
v_add_f32 v{T + 2}, {f32(1e-5)}, v{T + 1}
v_fmamk_f32 v{T + 2}, v{T + 2}, {f32(1e-5)}, v{T + 1}
v_rsq_f32 v{T + 2}, v{T + 2}
v_mul_f32 v{T + 3}, -v{T}, v{T + 2}
v_cndmask_b32 v{T + 2}, v{T + 2}, v{T + 3}, s[18:19]
ds_write_b32 v{vAW}, v{T + 2}""")
    AL, BE = S, Q
    done_hint = []
    a(f"""ds_read_b128 {vr(AL, 4)}, v{vAR}
ds_read_b128 {vr(BE, 4)}, v{vAR} offset:128
ds_read_b128 {vr(AL + 4, 4)}, v{vAR} offset:16
ds_read_b128 {vr(BE + 4, 4)}, v{vAR} offset:144""")
    for i in range(nf):
        for k in range(4):
            x = vr(XF + 8 * i + 2 * k, 2)
            a(f"v_pk_fma_f32 {x}, {x}, {vr(AL + 2 * k, 2)}, {vr(BE + 2 * k, 2)}")
        for k in range(4):
            a(f"v_cvt_pk_bf16_f32 v{RAW + 4 * i + k}, v{XF + 8 * i + 2 * k}, v{XF + 8 * i + 2 * k + 1}")
        a(f"buffer_store_dwordx4 {vr(RAW + 4 * i, 4)}, v{vO if wide else vS + i}, {srd(S_WS)}, s{23 + i if wide else 23} offen sc1", tag="pub")
        if hinted(eout) and OPT["h_ln"] - 3 == min(i, 6) * (4 if nf == 7 else 4) // (nf + 1):
            if not done_hint:
                hint_put(hr)
                done_hint.append(1)
    stamp(f"ln{layer} st", 113)
    if flagged(eout):
        flag_put(eout, prod, 100, "pub")


def gemm_addr():
    a(f"""s_and_b32 s{sT0}, s{sWAVE}, 1
s_lshl_b32 s{sT0}, s{sT0}, 10
v_add_u32 v{vA0}, s{sT0}, v{vL16}
v_xor_b32 v{vA1}, 0x400, v{vA0}""")


vCHK = 121


def gemm_loop(nks, ring, nring, wreg, swap, sent, lds_from=99, at=None):
    WF = 104
    nfr = 2 * nks

    def load(f):
        ks, db = f // 2, f % 2
        g = []
        if db == 0 and ks and ks % 2 == 0:
            g.append(Ins("s_add_u32 s13, s13, 4096"))
            if ks % 4 == 0:
                g += [Ins("s_cmp_eq_u32 s13, s28"), Ins("s_cmov_b32 s13, s27")]
        d = ring + 4 * (f % nring)
        g.append(Ins(f"buffer_load_dwordx4 {vr(d, 4)}, v{(vA0, vA1)[db]}, {srd(S_WS)}, s13 offen offset:{(ks % 2) * 2048} sc1"))
        return g

    def wread(ks):
        g = []
        slot = ks - lds_from
        for nb in range(2):
            for j in range(2):
                d = WF + 8 * (ks % 2) + 4 * nb + 2 * j
                g.append(Ins(f"ds_read_b64_tr_b16 {vr(d, 2)}, v{(vT2a, vT2b)[nb]} offset:{slot * 2048 + j * 1024}", res_r=[f"slot{slot}"]))
        return g

    def check(ks):
        regs = [ring + 4 * ((2 * ks + db) % nring) + k for db in range(2) for k in range(4)]
        chk = maxchain(vCHK, regs) + [f"v_cmp_eq_u32 vcc, -1, v{vCHK}"]
        back, stub = label("gb"), label("gs")
        STUBS.extend([f"{stub}:", f"s_add_u32 s3, s22, {ks * 2048}", "s_cmp_ge_u32 s3, s28", f"s_cselect_b32 s29, {nks * 2048}, 0", "s_sub_u32 s3, s3, s29"] +
                     [f"buffer_load_dwordx4 {vr(ring + 4 * ((2 * ks + db) % nring), 4)}, v{(vA0, vA1)[db]}, {srd(S_WS)}, s3 offen sc1" for db in range(2)] +
                     ["s_waitcnt vmcnt(0)"] + chk + [f"s_add_u32 s{sCNT}, s{sCNT}, 1", f"s_cbranch_vccz {back}",
                                                     f"s_cmp_lt_u32 s{sCNT}, {RETRY}", f"s_cbranch_scc1 {stub}", f"s_branch {back}"])
        return [Ins(x) for x in chk], [Ins(f"s_cbranch_vccnz {stub}"), Ins(f"{back}:")]

    if sent:
        a(f"s_mov_b32 s{sCNT}, 0")
    nxt = min(OPT["fill0"], nring)
    for f in range(nxt):
        a.put(load(f))
    if sent:
        c, b = check(0)
        a.put(c); a.put(b)
    for ks in range(nks):
        if at and ks in at:
            at[ks]()
        pend = wread(ks + 1) if lds_from <= ks + 1 < nks else []
        c, b = check(ks + 1) if (sent and ks + 1 < nks) else ([], [])
        order = [(0, 0), (0, 1), (1, 0), (1, 1)]
        if ks == nks - 1 and OPT["tailord"]:
            order = [(0, 1), (1, 0), (1, 1), (0, 0)]
        if True:
            for nb, db in order:
                acc = vr(16 * (2 * nb + db), 16)
                cc = acc if (ks or (nb | db) == 0) else "0"
                w = wreg(ks, nb) if ks < lds_from else vr(WF + 8 * (ks % 2) + 4 * nb, 4)
                x = vr(ring + 4 * ((2 * ks + db) % nring), 4)
                a(f"v_mfma_f32_32x32x16_bf16 {acc}, {x if swap else w}, {w if swap else x}, {cc}")
                if pend:
                    a.put([pend.pop(0)])
                free = nring + 2 * ks + (db + 1 if nb == 1 else 0)
                if nxt < min(nfr, free) and (nb == 1 or db == 1):
                    a.put(load(nxt))
                    nxt += 1
                if nb == 1 and db == 0:
                    a.put(c)
                if nb == 1 and db == 1:
                    a.put(b)


def gemm_rot(nks, srot):
    a(f"s_mov_b32 s27, s13\ns_add_u32 s28, s13, {nks * 2048}\ns_lshl_b32 s{sT0}, s{srot}, 13\ns_add_u32 s13, s13, s{sT0}\ns_mov_b32 s22, s13")


def gemm_reduce_prep():
    for rel in (1, 2, 3):
        a(f"s_xor_b32 s{23 + rel}, s{sWAVE}, {rel}\ns_mul_i32 s{23 + rel}, s{23 + rel}, 12288")
    a(f"s_mul_i32 s23, s{sWAVE}, 12288")


def gemm_reduce(at_barrier=None):
    for rel in range(4):
        a(f"v_add_u32 v{64 + rel}, s{23 + rel}, v{vL16}")
    for rel in (1, 2, 3):
        for q in range(4):
            a(f"ds_write_b128 v{64 + rel}, {vr(16 * rel + 4 * q, 4)} offset:{RB + (rel - 1) * 4096 + q * 1024}")
    if at_barrier:
        at_barrier[0]()
    a.barrier()
    if at_barrier:
        at_barrier[1]()
    for q in range(4):
        for k in range(3):
            a(f"ds_read_b128 {vr(16 + 16 * k + 4 * q, 4)}, v64 offset:{RB + k * 4096 + q * 1024}")
    for q in range(4):
        for h in range(2):
            r = 4 * q + 2 * h
            a(f"v_pk_add_f32 {vr(16 + r, 2)}, {vr(16 + r, 2)}, {vr(32 + r, 2)}")
            a(f"v_pk_add_f32 {vr(r, 2)}, {vr(r, 2)}, {vr(48 + r, 2)}")
        for h in range(2):
            r = 4 * q + 2 * h
            a(f"v_pk_add_f32 {vr(r, 2)}, {vr(r, 2)}, {vr(16 + r, 2)}")


def gemm1(layer, wide, pre=None, bg=()):
    H = H1 if layer == 0 else H3
    G = G1 if layer == 0 else G3
    gemm_addr()
    a(f"""s_lshr_b32 s{sT0}, s{sWAVE}, 1
s_lshl_b32 s{sT0}, s{sT0}, 6
s_lshl_b32 s{sT1}, s{sNT}, 7
s_add_u32 s{sT0}, s{sT0}, s{sT1}
v_lshrrev_b32 v16, 5, v{vLANE}
v_lshl_add_u32 v16, v16, 3, s{sT0}""")
    for q in range(4):
        a(f"global_load_dwordx2 {vr(20 + 2 * q, 2)}, v16, {sp(P_B1)} offset:{16 * q}")
    r = 32
    a(f"""s_lshl_b32 s{sT0}, s{sWAVE}, 5
v_and_b32 v{r + 2}, 31, v{vLANE}
v_add_u32 v{r + 2}, s{sT0}, v{r + 2}
v_and_b32 v{r + 3}, {31 & ~(32 // OPT['samp'] - 1)}, v{vLANE}
v_add_u32 v{r + 3}, s{sT0}, v{r + 3}
s_lshl_b32 s13, s{sDT1}, 7
s_add_u32 s13, s13, s{sT0}
s_lshl_b32 s13, s13, 11
s_add_u32 s13, s13, {H}""")
    if wide:
        a(f"v_lshrrev_b32 v{r + 2}, 1, v{r + 2}\nv_lshrrev_b32 v{r + 3}, 1, v{r + 3}")
    c0 = -2 * math.log2(math.e) * math.sqrt(2 / math.pi)
    a(f"""s_mov_b32 s{sCA}, {f32(c0 * 0.044715)}
s_mul_i32 s21, s{sDT1}, 112
s_lshl_b32 s{sT0}, s{sNT}, 2
s_add_u32 s21, s21, s{sT0}
s_and_b32 s{sT0}, s{sWAVE}, 2
s_add_u32 s21, s21, s{sT0}
s_lshl_b32 s21, s21, 11
s_add_u32 s21, s21, {G}""")
    gemm_reduce_prep()
    gemm_rot(32, sROT1)
    if pre:
        pre()
    for k in range(8):
        unpack(2 * k, 2 * k + 1, 20 + k)
    ein, eout = 2 + 4 * layer, 3 + 4 * layer
    wait_edge(ein, r, r + 2, r + 3)
    stamp(f"g1_{layer} go", 63)
    prod = f"s_mul_i32 s{sT0}, s{sDT1}, 28\ns_add_u32 s{sT0}, s{sT0}, s{sNT}\ns_lshl_b32 s{sT0}, s{sT0}, 6"
    early = hinted(eout) and OPT["h_g1"] < 0
    at = {32 + OPT["h_g1"]: lambda: (hint_prep(eout + 10, prod, 96), hint_put(96))} if early else None
    assert not early or OPT["h_g1"] >= -6
    gemm_loop(32, 64, 14, lambda ks, nb: f"a[{(ks * 2 + nb) * 4}:{(ks * 2 + nb) * 4 + 3}]", False, sentinel(ein), at=at)
    count_out(100)
    stamp(f"g1_{layer} loop", 100)
    a.begin()
    gemm_reduce((lambda: hint_prep(eout + 10, prod, 72), lambda: hint_put(72) if OPT["h_g1"] == 0 else None) if (hinted(eout) and not early) else None)
    if hinted(eout) and OPT["h_g1"] == 1:
        hint_put(72)
    a(f"v_mov_b32 v48, {f32(c0)}")
    for half in range(2):
        rs = range(8 * half, 8 * half + 8, 2)
        for r in rs:
            a(f"v_pk_mul_f32 {vr(16 + r, 2)}, {vr(r, 2)}, {vr(r, 2)}")
        for r in rs:
            a(f"v_pk_fma_f32 {vr(16 + r, 2)}, {vr(16 + r, 2)}, {sp(sCA)}, {vr(48, 2)} op_sel_hi:[1,0,0]")
        for r in rs:
            a(f"v_pk_mul_f32 {vr(16 + r, 2)}, {vr(16 + r, 2)}, {vr(r, 2)}")
        for r in rs:
            a(f"v_exp_f32 v{16 + r}, v{16 + r}\nv_exp_f32 v{17 + r}, v{17 + r}")
        for r in rs:
            a(f"v_pk_add_f32 {vr(16 + r, 2)}, {vr(16 + r, 2)}, 1.0 op_sel_hi:[1,0]")
        for r in rs:
            a(f"v_rcp_f32 v{16 + r}, v{16 + r}\nv_rcp_f32 v{17 + r}, v{17 + r}")
        for r in rs:
            a(f"v_pk_mul_f32 {vr(r, 2)}, {vr(r, 2)}, {vr(16 + r, 2)}")
        for r in rs:
            a(f"v_cvt_pk_bf16_f32 v{32 + r // 2}, v{r}, v{r + 1}")
        a(f"buffer_store_dwordx4 {vr(32 + 4 * half, 4)}, v{vA0}, {srd(S_WS)}, s21 offen offset:{2048 * half} sc1", tag="pub")
        if hinted(eout) and OPT["h_g1"] == 2 + half:
            hint_put(72)
    m, rest = merge(a.end(), list(bg), 0, OPT["ev_g1"])
    a.put(m)
    if not flagged(eout):
        a.barrier()
    else:
        flag_put(eout, prod, 40, "pub")
    for g in rest:
        a.put(g)


def gemm2(layer):
    G = G1 if layer == 0 else G3
    gemm_addr()
    a(f"""s_lshr_b32 s{sT0}, s{sWAVE}, 1
s_lshl_b32 s{sT0}, s{sT0}, 5
s_lshl_b32 s{sT1}, s{sST}, 6
s_add_u32 s50, s{sT0}, s{sT1}
s_and_b32 s{sT1}, s{sWAVE}, 1
s_lshl_b32 s{sT1}, s{sT1}, 5
s_lshl_b32 s{sT2}, s{sDT2}, 6
s_add_u32 s51, s{sT1}, s{sT2}
s_lshr_b32 s{sT2}, s50, 5
s_mul_i32 s{sT2}, s{sT2}, {BS}
s_lshl_b32 s{sT1}, s51, 6
s_add_u32 s20, s{sT2}, s{sT1}
s_add_u32 s30, s20, {X1 if layer == 0 else X3}
v_and_b32 v16, 31, v{vLANE}
v_lshrrev_b32 v17, 5, v{vLANE}
s_lshl_b32 s{sT0}, s50, 1""")
    r = 42

    def residual_issue():
        if layer == 0:
            for q in range(4):
                a(f"buffer_load_dwordx2 {vr(20 + 2 * q, 2)}, v18, {srd(S_WS)}, s30 offen offset:{16 * q} sc1")
        else:
            a(f"s_mov_b32 m0, s31")
            a(f"buffer_load_dwordx4 v{vL16}, {srd(S_WS)}, s30 offen sc1 lds", res_w=["x3"])
            a(f"buffer_load_dwordx4 v{vL16}, {srd(S_WS)}, s30 offen offset:1024 sc1 lds", res_w=["x3"])

    def residual_use():
        if layer == 0:
            for k in range(8):
                unpack(2 * k, 2 * k + 1, 20 + k)
            for k in range(8):
                unpack(40, 41, 28 + k)
                a(f"v_pk_add_f32 {vr(2 * k, 2)}, {vr(2 * k, 2)}, v[40:41]")
        else:
            for q in range(4):
                a(f"ds_read_b64_tr_b16 {vr(20 + 2 * q, 2)}, v31 offset:{512 * q}", res_r=["x3"])
            a("v_lshlrev_b32 v40, 16, v29")
            for k in range(8):
                unpack(2 * k, 2 * k + 1, 20 + k)
                a(f"v_pk_add_f32 {vr(2 * k, 2)}, {vr(2 * k, 2)}, v[40:41] op_sel_hi:[1,0]")

    if layer == 0:
        a(f"v_lshlrev_b32 v18, 6, v16\nv_lshl_add_u32 v18, v17, 3, v18\nv_lshl_add_u32 v19, v17, 3, s{sT0}")
        for q in range(4):
            a(f"global_load_dwordx2 {vr(28 + 2 * q, 2)}, v19, {sp(P_B2)} offset:{16 * q}")
    else:
        a(f"""v_and_b32 v19, 3, v{vLANE}
s_lshl_b32 s31, s{sWAVE}, 11
v_lshl_add_u32 v28, v16, 1, s{sT0}
global_load_ushort v29, v28, {sp(P_B2)}
v_bfe_u32 v31, v{vLANE}, 2, 2
v_lshl_add_u32 v31, v17, 2, v31
v_lshlrev_b32 v31, 6, v31
v_bfe_u32 v30, v{vLANE}, 4, 1
v_lshl_add_u32 v31, v30, 5, v31
v_lshl_add_u32 v31, v19, 3, v31
v_add_u32 v31, s31, v31""")
    a(f"""s_mul_i32 s{sT0}, s{sDT2}, 28
s_mul_i32 s{sT1}, s{sWAVE}, 7
s_add_u32 s{sT0}, s{sT0}, s{sT1}
v_min_u32 v{r + 2}, 6, v{vLANE}
v_add_u32 v{r + 2}, s{sT0}, v{r + 2}
v_mov_b32 v{r + 3}, v{r + 2}
s_lshl_b32 s13, s{sT0}, 13
s_add_u32 s13, s13, {G}""")
    if layer == 0:
        a(f"""s_add_u32 s21, s20, {X2}
s_lshl_b32 s19, s50, 1
s_add_u32 s19, s19, {ST1}""")
    else:
        a(f"s_mul_i32 s{sT0}, s50, 896\ns_lshl_b32 s{sT1}, s51, 1\ns_add_u32 s21, s{sT0}, s{sT1}")
    gemm_reduce_prep()
    gemm_rot(28, sROT2)
    lskip, ljoin = label("res"), label("resj")
    a(f"s_cmp_eq_u32 s{sR1}, 0")
    a(f"s_cbranch_scc1 {lskip}")
    residual_issue()
    residual_use()
    wait_edge(3 + 4 * layer, r, r + 2, r + 3)
    a(f"s_branch {ljoin}")
    a(f"{lskip}:")
    wait_edge(3 + 4 * layer, r, r + 2, r + 3)
    residual_issue()
    residual_use()
    a(f"{ljoin}:")
    stamp(f"g2_{layer} go", 63)
    gemm_loop(28, 64, 10, lambda ks, nb: vr(128 + (ks * 2 + nb) * 4, 4), layer == 1, sentinel(3 + 4 * layer), lds_from=16)
    count_out(100)
    stamp(f"g2_{layer} loop", 100)

    def addr():
        a(f"v_and_b32 v68, 31, v{vLANE}\nv_lshrrev_b32 v69, 5, v{vLANE}")
        if layer == 0:
            a(f"""v_and_b32 v70, 15, v{vLANE}
v_lshlrev_b32 v70, 6, v70
v_lshl_add_u32 v70, v69, 4, v70
v_bfe_u32 v71, v{vLANE}, 4, 1
v_lshl_add_u32 v70, v71, 5, v70
v_bfe_u32 v71, v{vLANE}, 2, 2
v_lshlrev_b32 v71, 4, v71
v_bfe_u32 v68, v{vLANE}, 4, 1
v_lshl_add_u32 v71, v68, 3, v71
v_and_b32 v68, 1, v{vLANE}
v_lshl_add_u32 v71, v68, 2, v71
v_bfe_u32 v68, v{vLANE}, 1, 1
v_lshl_add_u32 v68, v69, 1, v68
v_lshl_add_u32 v71, v68, 12, v71""")
        else:
            a(f"v_mul_u32_u24 v70, 896, v68\nv_lshl_add_u32 v70, v69, 4, v70")
    prod = f"s_lshl_b32 s{sT0}, s{sDT2}, 5\ns_add_u32 s{sT0}, s{sT0}, s{sST}\ns_lshl_b32 s{sT0}, s{sT0}, 6"
    hn = layer == 0 and hinted(4)

    def pre():
        addr()
        if hn:
            hint_prep(14, prod, 80)
    gemm_reduce((pre, lambda: hint_put(80) if (hn and OPT["h_g2"] == 0) else None))
    if hn and OPT["h_g2"] == 1:
        hint_put(80)
    PK = 72
    if layer == 0 and armed(1):
        a(f"v_and_b32 v90, 31, v{vLANE}")
        poll_issue(9, 88)
    for half in range(2):
        b = PK + 4 * half
        for k in range(4):
            a(f"v_cvt_pk_bf16_f32 v{b + k}, v{8 * half + 2 * k}, v{8 * half + 2 * k + 1}")
        a(f"v_permlane32_swap_b32 v{b}, v{b + 2}")
        a(f"v_permlane32_swap_b32 v{b + 1}, v{b + 3}")
        if layer == 1:
            a(f"buffer_store_dwordx4 {vr(b, 4)}, v70, {srd(S_OUT)}, s21 offen offset:{32 * half} {('', 'nt', 'sc1')[OPT['ofl']]}")
    if layer == 1:
        return
    for k in range(4):
        a(f"v_permlane16_swap_b32 v{PK + k}, v{PK + 4 + k}")
    for half in range(2):
        a(f"buffer_store_dwordx4 {vr(PK + 4 * half, 4)}, v70, {srd(S_WS)}, s21 offen offset:{1024 * half} sc1", tag="pub")
    if hn and OPT["h_g2"] == 2:
        hint_put(80)
    for k in range(8):
        a(f"v_pk_mul_f32 {vr(20 + 2 * k, 2)}, {vr(2 * k, 2)}, {vr(2 * k, 2)}")
    res = reduce32(list(range(16)) + list(range(20, 36)), 16, list(range(40, 48)))
    assert res == [0, 1, 2, 3]
    a(f"""v_cndmask_b32 v0, v0, v1, {sp(sM1)}
v_cndmask_b32 v2, v2, v3, {sp(sM1)}
v_cndmask_b32 v0, v0, v2, {sp(sM2)}""")
    a(f"buffer_atomic_add_f32 v0, v71, {srd(S_WS)}, s19 offen sc1", tag="pub")
    if hn and OPT["h_g2"] == 3:
        hint_put(80)
    flag_put(4, prod, 40, "pub")


def skip_unless(role):
    l = label("skip")
    a(f"s_cmp_eq_u32 s{role}, 0")
    a(f"s_cbranch_scc1 {l}")
    return l


def dmas(n0, n1):
    return [w_dma(n, h) for n in range(n0, n1) for h in range(2)]


def tr_dma(n0, n1):
    g = []
    for n in range(n0, n1):
        g.append(w_tr(n))
        if n > n0:
            g += dmas(n + 11, n + 12)
    g += dmas(n1 + 11, n1 + 12)
    return g


def wseq():
    nB = OPT["wB"] // 2
    assert 36 <= nB <= 60
    g = dmas(0, 12) + tr_dma(0, nB - 12)
    lastT = 48 if (nB >= 48 and OPT["wT"]) else 36
    g += [w_tr(n) for n in range(nB - 12, lastT)]
    g.append([])
    d = nB
    for n in range(max(lastT, nB - 12), 49):
        while d < min(n + 11, 60) or (n == 48 and d < 60):
            g += dmas(d, d + 1)
            d += 1
        if n < 48:
            g.append(w_tr(n))
    return g


def wcut(n_dma):
    k = 0
    for p, g in enumerate(wseq()):
        if k == n_dma:
            return p
        k += any(i.kind == "dma" for i in g)
    return len(wseq())


def put_all(gs):
    for g in gs:
        a.put(g)


def build():
    cA, cP, cL, cB = wcut(OPT["wA"]), wcut(OPT["wP"]), wcut(OPT["wL"]), wseq().index([])
    cK = wcut(OPT["wK"])
    prologue()
    laux, ljoin = label("aux"), label("join")
    a(f"s_cmp_eq_u32 s{sRC}, 0")
    a(f"s_cbranch_scc1 {laux}")
    xt_loads()
    kgen_table_load()
    code_warm(1)
    w_setup()
    put_all(wseq()[:cA])
    conv_setup(0)
    stamp("start", 2)

    xt_poll_addr(63, 2)
    xt_work()

    def h_flag():
        nonce_take()
        flag_put(0, sPAIR, 104, "st0")
        stamp("flag", 0)
        a(f"global_load_dwordx4 {vr(TAB, 4)}, v75, {sp(sTAB)}")
        a(f"global_load_dwordx4 {vr(TAB + 4, 4)}, v75, {sp(sTAB)} offset:16")
        a(f"global_load_dwordx2 v[0:1], v75, {sp(sTAB)} offset:32")

    hooks = {}
    for pos, fn in ((OPT["h_flag"], h_flag), (OPT["h_w"], lambda: KBG.extend(wseq()[cA:cK])), (OPT["h_poll"], lambda: poll_issue(0, 64, 63))):
        hooks.setdefault(pos, []).append(fn)
    assert OPT["h_flag"] <= OPT["h_w"] and OPT["h_poll"] >= 6
    kgen({k: (lambda fs=fs: [f() for f in fs]) for k, fs in hooks.items()})
    dump_lds(1)
    stamp("kgen", 21)

    def mid():
        poll_take(64, 63)
        stamp("e1 seen", 0)
        conv_loads()
        put_all(wseq()[cK:cP])
    wr = kexpand(mid)
    if OPT["mixpro"]:
        mv = [i for i in wr if i.kind != "dsw"]
        st = [i for i in wr if i.kind == "dsw"]
        pro = a.capture(conv_pro, 0)
        k = next(n for n, i in enumerate(pro) if i.defs & {f"v{r}" for r in range(0, 22)})
        a.put(mv)
        a.put(st[2:4])
        head, rest = merge(pro[:k], [[i] for i in st[4:6] + st[:2] + st[6:]], 0, 14)
        a.put(head)
        early = [g for g in rest if g[0].uses & {f"v{r}" for r in range(0, 22)}]
        put_all(early)
        rest = [g for g in rest if g not in early]
        k2 = next(n for n, i in enumerate(pro) if i.kind == "dsw")
        mid2, rest = merge(pro[k:k2], rest, 0, 30)
        a.put(mid2)
        put_all(rest)
        a.put(pro[k2:])
        stamp("expand", 111)
    else:
        a.put(wr)
        stamp("expand")
        conv_pro(0)
    if sentinel(1):
        a(f"v_and_b32 v{cvP + 2}, 31, v{vLANE}")
        poll_issue(8, cvP)
    a.barrier()
    dump_lds(2)
    stamp("conv0 go", 111)
    put_all(conv_main(0, wseq()[cP:cL], OPT["st_conv"], OPT["ev_conv"]))
    stamp("conv0 done")
    a(f"s_branch {ljoin}")
    a(f"{laux}:")
    aux_loads()
    kgen_table_addr()
    code_warm(1)
    w_setup()
    aux_work()
    stamp("aux e1")
    if sentinel(1):
        fill(X1, 15, 80, sAUX, CH, "fill")
        flag_put(8, sAUX, 72, "fill")
    if sentinel(2) or sentinel(3):
        fill(H1 if sentinel(2) else G1, 14 * sentinel(2) + 13 * sentinel(3), 80, sAUX, CH, "fill")
        flag_put(18, sAUX, 72, "fill")
    stamp("aux fill")
    cX = min(wcut(72), cB)
    put_all(wseq()[:cX])
    if sentinel(1):
        a(f"v_and_b32 v62, 31, v{vLANE}")
        poll_issue(8, 60)
        poll_take(60)
    a.wait_vm0()
    stamp("aux w")
    a(f"{ljoin}:")
    if sentinel(2) or sentinel(3):
        a(f"v_and_b32 v62, 31, v{vLANE}")
        poll_issue(18, 60)
        poll_take(60)
    for layer in range(2):
        if layer == 1:
            l = skip_unless(sRC)
            kcopies()
            conv_setup(1)
            conv_poll1()
            wait_edge(4, cvP, cvP + 2, cvP + 3)
            stamp("conv1 poll")
            conv_loads()
            conv_pro(1)
            a.barrier()
            dump_lds(3)
            stamp("conv1 go", 111)
            conv_main(1)
            stamp("conv1 done")
            a(f"{l}:")
        wide = OPT["ln1w"] if layer else OPT["ln0w"]
        l = skip_unless(sRL0 if wide else sRL)
        ln(layer, wide)
        stamp(f"ln{layer} done")
        a(f"{l}:")
        if layer == 0:
            l = skip_unless(sRC)
            put_all(wseq()[cL:cX])
            a(f"{l}:")
            put_all(wseq()[cX:cB])
            stamp("w B")
            tail = wseq()[cB:]
            assert not any(i.kind == "dsr" and "a[" in i.text for g in tail for i in g)
            lelse, lj = label("ng1"), label("g1j")
            a(f"s_cmp_eq_u32 s{sR1}, 0")
            a(f"s_cbranch_scc1 {lelse}")
            gemm1(0, wide, None, tail)
            nonce_retire()
            stamp("g1_0 done")
            a(f"s_branch {lj}")
            a(f"{lelse}:")
            put_all(wseq()[cB:])
            a(f"{lj}:")
        else:
            l = skip_unless(sR1)
            gemm1(1, wide)
            stamp("g1_1 done")
            a(f"{l}:")
        l = skip_unless(sR2)
        gemm2(layer)
        if layer == 0 and armed(1):
            lj = label("g2j")
            a(f"s_branch {lj}")
            a(f"{l}:")
            if OPT["map18"]:
                a(f"s_lshl_b32 s16, s{sX}, 2\ns_add_u32 s16, s16, s{sJ}")
            else:
                a(f"s_lshr_b32 s16, s{sX}, 1\ns_lshl_b32 s16, s16, 3\ns_add_u32 s16, s16, s{sJ}")
            fill(X3, 42, 72, 16, CH)
            flag_put(9, 16, 8, "st0")
            a(f"v_and_b32 v90, 31, v{vLANE}")
            poll_issue(9, 88)
            a(f"{lj}:")
            poll_take(88)
        else:
            a(f"{l}:")
        stamp("g2_0 done" if layer == 0 else "end")
    if OPT["stamps"] and OPT["dbgwg"] < 0:
        l = label("ls")
        a(f"s_cmp_lg_u32 s{sWAVE}, 0\ns_cbranch_scc1 {l}\ns_waitcnt vmcnt(0)\ns_memrealtime {sp(sSTAMP)}\ns_waitcnt lgkmcnt(0)")
        a(f"s_lshl_b32 s3, s2, 8\ns_add_u32 s3, s3, {STAMPS + 248}\nv_mov_b32 v0, s101\nv_mov_b32 v1, s{sSTAMP}\ns_mov_b64 exec, 1")
        a(f"buffer_store_dwordx2 v[0:1], off, {srd(S_WS)}, s3")
        a(f"{l}:")
    if OPT["fixdur"]:
        a(f"s_waitcnt vmcnt(0) lgkmcnt(0)\nL_fix:\ns_memrealtime s[28:29]\ns_waitcnt lgkmcnt(0)\ns_sub_u32 s28, s28, s101\ns_cmp_lt_u32 s28, {OPT['fixdur']}\ns_cbranch_scc1 L_fix")
    a("s_endpgm")


def bf16_round_int(l):
    b = struct.unpack("<I", struct.pack("<f", float(l)))[0]
    b = (b + 0x7FFF + ((b >> 16) & 1)) & 0xFFFF0000
    return int(struct.unpack("<f", struct.pack("<I", b))[0])


def ktab():
    vals = []
    for c in range(2):
        for x in range(2048):
            lr = bf16_round_int(2047 - x)
            aa, rem = lr >> 7, lr & 127
            j, e = rem >> 3, rem & 7
            if aa < 2:
                rho = 8 * aa + e
            elif aa < 4:
                rho = 4 * aa + 8 + (e >> 1)
            elif aa < 8:
                rho = 16 + 2 * aa + (e >> 2)
            else:
                rho = 24 + aa
            vals.append((rho >> 2) * 256 + j * 16 + (rho & 3) * 4 + c * 2 * GST)
        vals += [3072 + c * 2 * GST] * 16
    lines = []
    for i in range(0, len(vals), 16):
        lines.append("    .short " + ", ".join(str(v) for v in vals[i:i + 16]))
    return "\n".join(lines)


def main(path):
    build()
    ins = a.finish()
    ref = open(f"cdna_kernels/{NAME}.s.ref").read().split("\n")
    head = [l for l in ref if l.startswith(";") and "@launch" not in l and not l.startswith("; Override") and not l.startswith("; grid=ceil")]
    k = NAME + "_kernel"
    s = "\n".join(head) + f"\n; @launch grid=(256,1,1) block=(256,1,1) lds={LDS_BYTES}\n"
    s += f""".amdgcn_target "amdgcn-amd-amdhsa--gfx950"
.text
.globl {k}
.p2align 8
.type {k},@function
{k}:
L_entry:
"""
    s += Prog.render(ins)
    s += "".join((l if l.endswith(":") else "    " + l) + "\n" for l in STUBS)
    s += f""".p2align 6
.type ktab,@object
ktab:
{ktab()}
.size ktab, 8256
.section .rodata,"a"
.p2align 6
.amdhsa_kernel {k}
  .amdhsa_next_free_vgpr 512
  .amdhsa_next_free_sgpr 102
  .amdhsa_accum_offset 256
  .amdhsa_group_segment_fixed_size 0
  .amdhsa_kernarg_size 136
  .amdhsa_user_sgpr_count 2
  .amdhsa_user_sgpr_kernarg_segment_ptr 1
  .amdhsa_system_sgpr_workgroup_id_x 1
  .amdhsa_float_denorm_mode_32 3
.end_amdhsa_kernel
"""
    open(path, "w").write(s)
    n = sum(1 for i in ins if i.kind not in ("label", "comment"))
    open(path + ".names", "w").write("\n".join(STAMP_NAMES))
    print("instructions:", n, "nops:", sum(1 for i in ins if i.kind == "nop"), "waits:", sum(1 for i in ins if i.kind == "wait"))


if __name__ == "__main__":
    path = sys.argv[1]
    for kv in sys.argv[2:]:
        k, v = kv.split("=")
        OPT[k] = v if k == 'em' else int(v)
    main(path)
```

```python
import sys, math, struct
from asmlib import *

NAME = "interleave_layers__ssm_conv_s4__mixer_token_mlp__prompt"
OPT = dict(stamps=False, stop=99, upfront=True, dump=0, dbgwg=-1, fixdur=0, em='FSSFSSS', warm=1, h_flag=2, h_w=2, h_poll=9, h_ln=2, h_cv=0, h_g1=0, h_g2=0, rot=1, wA=0, wK=8, wP=8, wL=16, wB=120, wT=1, lag=2, gap=3, st_conv=100, ev_conv=150, ev_g1=100000, fill0=14, ln1w=0, ln0w=1, chk=1, samp=8, map18=1, ofl=0, tailord=0, cv=1, clk=0, ev_kg=150, mixpro=1, now=0, probe='', kc_in=1)
DBG_SEL = ['start', 'kgen', 'conv0 go', 'ln0 go', 'g1_0 go', 'g1_0 loop', 'g2_0 go', 'g2_0 loop', 'conv1 poll', 'ln1 go', 'g1_1 go', 'g2_1 go', 'end']
STAMP_NAMES = []

EPOCH = 0
ST0 = 0x1000
ST1 = 0x8000
STAMPS = 0x20000
FL = 0x100000
BS = 448 * 64 + 128
CH = 0x20000
X1 = 0x400000
H1 = X1 + 15 * CH
G1 = H1 + 14 * CH
X3 = G1 + 13 * CH
H3 = X3 + 15 * CH
G3 = H3 + 14 * CH
X2 = G3 + 13 * CH
X0 = X2 + 15 * CH
FILL1, FILL3 = 6, 36
WS_BYTES = 268435456
OOB = 0x40000000

KST = 4160
KSLOT = {0: [0, 5, 2, 3], 1: [1, 6, 7, 4]}
UB = 8 * KST
UPAD = 1024
UST = 4096 + UPAD
ZB = UB + 2 * UST
EX = 2 * KST
RB = 2 * KST
GST = 15616
GROW = 272
TOFF = 12288
LNP = 57472
W2L = 65536
LDS_BYTES = 163840

sWAVE, sX, sJ, sPAIR, sDT1, sNT, sDT2, sST, sLN = 4, 5, 6, 7, 8, 9, 10, 11, 12
sNONCE = 14
P_U, P_ARE, P_AIM, P_BRE, P_BIM, P_CRE, P_CIM, P_LDT = 16, 18, 20, 22, 24, 26, 28, 30
P_DSK, P_W1, P_B1, P_W2, P_B2, P_OUT, P_DBG, P_WS = 32, 36, 38, 40, 42, 44, 46, 48
S_WS, S_W1, S_W2, S_X0, S_OUT = 52, 56, 60, 64, 68
sD0, sD1 = 72, 74
sLDT = 76
sEP = 78
sWOFF, sT0, sT1, sT2, sT3, sCNT = 80, 81, 82, 83, 84, 85
sRC, sR1, sR2, sRL = 86, 87, 88, 89
sM1, sM2 = 90, 92
sSTAMP = 94
sTAB = 96
sLN0, sRL0 = 77, 73
sCA, sCB = 34, 100

vLANE, vL16, vT2a, vT2b, vT1a, vT1b, vD1, vD2 = 127, 126, 125, 124, 123, 122, 121, 120
vA0, vA1 = 123, 122


def srd(n):
    return f"s[{n}:{n + 3}]"


def sp(n):
    return f"s[{n}:{n + 1}]"


def vr(n, k):
    return f"v[{n}:{n + k - 1}]" if k > 1 else f"v{n}"


def f32(x):
    return "0x%08x" % struct.unpack("<I", struct.pack("<f", x))[0]


a = Prog()
_lab = [0]


def label(p):
    _lab[0] += 1
    return f"L_{p}_{_lab[0]}"


_stamp = [0]


def stamp(name, r=1):
    k = _stamp[0]
    _stamp[0] += 1
    STAMP_NAMES.append(name)
    a("; MARK after " + name)
    if OPT["probe"] == name.replace(" ", "_"):
        a(f"s_memrealtime {sp(sSTAMP)}\ns_waitcnt lgkmcnt(0)\ns_mov_b32 s101, s{sSTAMP}")
    if OPT["stamps"] != 1:
        return
    l = label("st")
    if OPT["dbgwg"] >= 0:
        if name not in DBG_SEL:
            return
        a(f"s_lshl_b32 s3, s{sWAVE}, 8\ns_add_u32 s3, s3, s2\ns_cmp_lg_u32 s3, {OPT['dbgwg']}\ns_cbranch_scc1 {l}")
        a(f"s_memrealtime {sp(sSTAMP)}")
        a("s_waitcnt lgkmcnt(0)")
        a(f"s_mov_b64 exec, 1\nv_mov_b32 v{r}, s{sSTAMP}\ns_mov_b32 s{sSTAMP}, s{P_DBG}\ns_mov_b32 s{sSTAMP + 1}, s{P_DBG + 1}\ns_mov_b32 s{sSTAMP + 2}, 256\ns_mov_b32 s{sSTAMP + 3}, 0x20000".replace(f"s{sSTAMP}, s{P_DBG}", f"s64, s{P_DBG}").replace(f"s{sSTAMP + 1}, s{P_DBG + 1}", f"s65, s{P_DBG + 1}").replace(f"s{sSTAMP + 2}, 256", "s66, 256").replace(f"s{sSTAMP + 3}, 0x20000", "s67, 0x20000"))
        a(f"buffer_store_dword v{r}, off, s[64:67], 0 offset:{12 + 4 * DBG_SEL.index(name)} sc1", optional=True)
        a("s_mov_b64 exec, -1")
        a(f"{l}:")
        return
    a(f"s_cmp_lg_u32 s{sWAVE}, 0")
    a(f"s_cbranch_scc1 {l}")
    a(f"{'s_memtime' if OPT['clk'] else 's_memrealtime'} {sp(sSTAMP)}")
    a("s_waitcnt lgkmcnt(0)")
    a(f"s_lshl_b32 s3, s2, 8")
    a(f"s_add_u32 s3, s3, {STAMPS + 4 * k}")
    a(f"v_mov_b32 v{r}, s{sSTAMP}")
    a("s_mov_b64 exec, 1")
    a(f"buffer_store_dword v{r}, off, {srd(S_WS)}, s3", optional=True)
    a("s_mov_b64 exec, -1")
    a(f"{l}:")


_cnt = [0]


def count_out(r):
    if OPT["stamps"] != 1:
        return
    k = _cnt[0]
    _cnt[0] += 1
    a(f"s_lshl_b32 s3, s2, 2\ns_add_u32 s3, s3, s{sWAVE}\ns_lshl_b32 s3, s3, 5\ns_add_u32 s3, s3, {STAMPS + 0x10000 + 4 * k}")
    a(f"v_mov_b32 v{r}, s{sCNT}\ns_mov_b64 exec, 1")
    a(f"buffer_store_dword v{r}, off, {srd(S_WS)}, s3")
    a("s_mov_b64 exec, -1")


DUMP = 0x2000000


def dump_lds(point, r=96):
    if OPT["dump"] != point:
        return
    a.barrier()
    a(f"s_lshl_b32 s3, s{sWAVE}, 10\nv_add_u32 v{r + 4}, s3, v{vL16}\ns_lshl_b32 s3, s2, 16\ns_add_u32 s3, s3, {DUMP}")
    for i in range(16):
        a(f"ds_read_b128 {vr(r, 4)}, v{r + 4} offset:{i * 4096}")
        a(f"buffer_store_dwordx4 {vr(r, 4)}, v{r + 4}, {srd(S_WS)}, s3 offen")
        a("s_add_u32 s3, s3, 4096")
        a.wait_vm0()
    a.barrier()


def cmul(d, x, y):
    return [f"v_pk_mul_f32 {vr(d, 2)}, {vr(x, 2)}, {vr(y, 2)} op_sel:[1,1] op_sel_hi:[1,0] neg_lo:[0,1]",
            f"v_pk_fma_f32 {vr(d, 2)}, {vr(x, 2)}, {vr(y, 2)}, {vr(d, 2)} op_sel_hi:[0,1,1]"]


def cmul2(p, q=None):
    x = cmul(*p)
    if q is None:
        a(x[0]); a(x[1])
        return
    y = cmul(*q)
    a(x[0]); a(y[0]); a(x[1]); a(y[1])


def unpack(dlo, dhi, s):
    a(f"v_lshlrev_b32 v{dlo}, 16, v{s}")
    a(f"v_and_b32 v{dhi}, 0xffff0000, v{s}")


def prologue():
    a("s_cmp_lt_u32 s2, 256")
    a("s_cbranch_scc1 L_start")
    a("s_endpgm")
    a("L_start:")
    if OPT["fixdur"] or OPT["stamps"]:
        a("s_memrealtime s[50:51]")
    a("s_load_dwordx16 s[16:31], s[0:1], 0")
    a("s_load_dwordx16 s[32:47], s[0:1], 64")
    a("s_load_dwordx2 s[48:49], s[0:1], 128")
    a(f"v_lshrrev_b32 v1, 6, v0")
    a(f"v_and_b32 v{vLANE}, 63, v0")
    a(f"v_readfirstlane_b32 s{sWAVE}, v1")
    a(f"v_lshlrev_b32 v{vL16}, 4, v{vLANE}")
    a(f"""s_and_b32 s{sX}, s2, 7
s_lshr_b32 s{sJ}, s2, 3
s_add_u32 s{sJ}, s{sJ}, 28
s_and_b32 s{sJ}, s{sJ}, 31
""")
    a(f"""s_lshr_b32 s{sT0}, s{sX}, 2
s_mul_i32 s{sPAIR}, s{sX}, 28
s_sub_u32 s{sRC}, s{sJ}, s{sT0}
s_add_u32 s{sPAIR}, s{sPAIR}, s{sRC}
s_cmp_lt_u32 s{sRC}, 28
s_cselect_b32 s{sRC}, 1, 0
s_mul_i32 s{sT2}, s{sJ}, 37
s_lshr_b32 s{sT2}, s{sT2}, 8
s_mul_i32 s{sT3}, s{sT2}, 7
s_sub_u32 s{sDT1}, s{sJ}, s{sT3}
s_lshl_b32 s{sNT}, s{sT2}, 3
s_add_u32 s{sNT}, s{sNT}, s{sX}
s_sub_u32 s{sT1}, s{sJ}, 4
s_cselect_b32 s{sR2}, 0, 1
s_and_b32 s{sT1}, s{sT1}, 31
s_mul_i32 s{sT2}, s{sT1}, 37
s_lshr_b32 s{sT2}, s{sT2}, 8
s_mul_i32 s{sT3}, s{sT2}, 7
s_sub_u32 s{sDT2}, s{sT1}, s{sT3}
s_lshl_b32 s{sST}, s{sX}, 2
s_add_u32 s{sST}, s{sST}, s{sT2}
s_cmp_eq_u32 s{sJ}, 0
s_cselect_b32 s{sT1}, 32, s{sJ}
s_mul_i32 s{sT2}, s{sX}, 12
s_add_u32 s{sT2}, s{sT2}, s{sT1}
s_sub_u32 s{sT2}, s{sT2}, 53
s_lshl_b32 s{sT3}, s{sX}, 2
s_add_u32 s{sT3}, s{sT3}, s{sJ}
s_sub_u32 s{sT3}, s{sT3}, 28
s_cmp_lg_u32 s{sT0}, 0
s_cselect_b32 s{sT1}, s{sT1}, s{sJ}
s_cselect_b32 s{sLN0}, s{sT2}, s{sT3}
s_cselect_b32 s{sRL0}, 21, 28
s_cmp_ge_u32 s{sT1}, s{sRL0}
s_cselect_b32 s{sRL0}, 1, 0""" if OPT["map18"] == 1 else f"""s_and_b32 s{sT0}, s{sX}, 1
s_lshr_b32 s{sT1}, s{sX}, 1
s_mul_i32 s{sPAIR}, s{sX}, 28
s_sub_u32 s{sRC}, s{sJ}, s{sT0}
s_add_u32 s{sPAIR}, s{sPAIR}, s{sRC}
s_cmp_lt_u32 s{sRC}, 28
s_cselect_b32 s{sRC}, 1, 0
s_mul_i32 s{sT2}, s{sJ}, 37
s_lshr_b32 s{sT2}, s{sT2}, 8
s_mul_i32 s{sT3}, s{sT2}, 7
s_sub_u32 s{sT3}, s{sJ}, s{sT3}
s_mul_i32 s{sNT}, s{sT1}, 7
s_add_u32 s{sNT}, s{sNT}, s{sT3}
s_lshl_b32 s{sT3}, s{sT0}, 2
s_add_u32 s{sDT1}, s{sT2}, s{sT3}
s_lshl_b32 s{sST}, s{sT0}, 3
s_sub_u32 s{sST}, s{sJ}, s{sST}
s_cselect_b32 s{sR2}, 0, 1
s_lshr_b32 s{sDT2}, s{sST}, 3
s_and_b32 s{sDT2}, s{sDT2}, 3
s_add_u32 s{sDT2}, s{sDT2}, s{sT3}
s_and_b32 s{sST}, s{sST}, 7
s_lshl_b32 s{sLN0}, s{sT1}, 4
s_lshl_b32 s{sT1}, s{sT1}, 3
s_add_u32 s{sST}, s{sST}, s{sT1}
s_cmp_eq_u32 s{sJ}, 0
s_cselect_b32 s{sT1}, 32, s{sJ}
s_mul_i32 s{sT2}, s{sT0}, 11
s_add_u32 s{sT2}, s{sT2}, s{sT1}
s_cmp_lg_u32 s{sT0}, 0
s_cselect_b32 s{sT1}, s{sT1}, s{sJ}
s_cselect_b32 s{sT2}, s{sT2}, s{sJ}
s_cselect_b32 s{sRL0}, 21, 28
s_cmp_ge_u32 s{sT1}, s{sRL0}
s_cselect_b32 s{sRL0}, 1, 0
s_add_u32 s{sLN0}, s{sLN0}, s{sT2}
s_sub_u32 s{sLN0}, s{sLN0}, 28""")
    if OPT["map18"] == 2:
        a(f"""s_sub_u32 s{sT1}, s{sJ}, 4
s_cselect_b32 s{sR2}, 0, 1
s_and_b32 s{sT1}, s{sT1}, 31
s_mul_i32 s{sT2}, s{sT1}, 37
s_lshr_b32 s{sT2}, s{sT2}, 8
s_mul_i32 s{sT3}, s{sT2}, 7
s_sub_u32 s{sDT2}, s{sT1}, s{sT3}
s_lshl_b32 s{sST}, s{sX}, 2
s_add_u32 s{sST}, s{sST}, s{sT2}""")
    a(f"""s_lshl_b32 s{sLN}, s{sX}, 4
s_add_u32 s{sLN}, s{sLN}, s{sJ}
s_sub_u32 s{sLN}, s{sLN}, 16
s_mul_i32 s{sT2}, s{sT0}, 7
s_sub_u32 s{sT2}, 28, s{sT2}
s_cmp_lt_u32 s{sJ}, s{sT2}
s_cselect_b32 s{sR1}, 1, 0
s_cmp_ge_u32 s{sJ}, 16
s_cselect_b32 s{sRL}, 1, 0
s_min_u32 s{sPAIR}, s{sPAIR}, 223
s_mov_b32 s{sM1}, 0xaaaaaaaa
s_mov_b32 s{sM1 + 1}, 0xaaaaaaaa
s_mov_b32 s{sM2}, 0xcccccccc
s_mov_b32 s{sM2 + 1}, 0xcccccccc""")
    a("s_waitcnt lgkmcnt(0)")
    if OPT["fixdur"] or OPT["stamps"]:
        a("s_mov_b32 s101, s50")
    a(f"""s_lshl_b32 s{sT0}, s{sPAIR}, 2
s_load_dword s{sLDT}, {sp(P_LDT)}, s{sT0}
s_load_dword s{sD0}, {sp(P_DSK)}, s{sT0}
s_load_dwordx2 {sp(sNONCE)}, {sp(P_WS)}, {EPOCH}""")
    kgen_loads()
    for n, p, size in ((S_X0, P_U, 1835008), (S_WS, P_WS, WS_BYTES), (S_OUT, P_OUT, 1835008)):
        a(f"s_mov_b32 s{n}, s{p}\ns_mov_b32 s{n + 1}, s{p + 1}\ns_mov_b32 s{n + 2}, {size}\ns_mov_b32 s{n + 3}, 0x20000")
    for n, p, role in ((S_W1, P_W1, sR1), (S_W2, P_W2, sR2)):
        a(f"s_mov_b32 s{n}, s{p}\ns_mov_b32 s{n + 1}, s{p + 1}\ns_cmp_lg_u32 s{role}, 0\ns_cselect_b32 s{n + 2}, {0 if OPT['now'] & (1 if n == S_W1 else 2) else 7340032}, 0\ns_mov_b32 s{n + 3}, 0x20000")


sAUX = 75


def code_warm(r):
    if not OPT["warm"]:
        return
    a(f"""s_lshl_b32 s{sT0}, s{sJ}, 2
s_add_u32 s{sT0}, s{sT0}, s{sWAVE}
s_mul_i32 s{sT0}, s{sT0}, 640
v_lshl_add_u32 v{r}, v{vLANE}, 7, s{sT0}
s_mov_b32 s{sT1}, ktab-L_entry+8192
v_min_u32 v{r}, s{sT1}, v{r}
s_sub_u32 s28, s{sTAB}, ktab-L_entry
s_subb_u32 s29, s{sTAB + 1}, 0
s_mov_b64 exec, 31
global_load_dword v{r}, v{r}, s[28:29]
s_mov_b64 exec, -1""")


def fill(base, n, r, sidx, stride, tag="st0"):
    a(f"""s_lshl_b32 s{sT0}, s{sidx}, 12
s_lshl_b32 s{sT1}, s{sWAVE}, 10
s_add_u32 s{sT0}, s{sT0}, s{sT1}
s_add_u32 s{sT0}, s{sT0}, {base}""")
    for k in range(4):
        a(f"v_mov_b32 v{r + k}, -1")
    for k in range(n):
        a(f"buffer_store_dwordx4 {vr(r, 4)}, v{vL16}, {srd(S_WS)}, s{sT0} offen sc1", tag=tag)
        if k + 1 < n:
            a(f"s_add_u32 s{sT0}, s{sT0}, {stride}")


def aux_loads():
    a(f"""s_and_b32 s{sAUX}, s{sJ}, 3
s_lshl_b32 s{sAUX}, s{sAUX}, 3
s_add_u32 s{sAUX}, s{sAUX}, s{sX}
s_lshl_b32 s16, s{sAUX}, 2
s_add_u32 s16, s16, s{sWAVE}
s_mul_i32 s{sT1}, s16, {16 * 896}
s_mul_i32 s17, s{sWAVE}, {16 * 912}
s_mov_b32 m0, s17
s_mov_b32 exec_hi, 0xffffff""")
    for k in range(16):
        if k:
            a(f"s_add_u32 m0, m0, 912\ns_add_u32 s{sT1}, s{sT1}, 896")
        a(f"buffer_load_dwordx4 v{vL16}, {srd(S_X0)}, s{sT1} offen lds", res_w=[f"x0"])
    a("s_mov_b64 exec, -1")


def aux_work():
    XR = 8
    a(f"""v_mov_b32 v76, 0
v_mov_b32 v77, 0
v_mov_b32 v78, 0
v_mov_b32 v79, 0
s_lshl_b32 s{sT1}, s16, 7
s_add_u32 s{sT1}, s{sT1}, {ST1}
s_lshl_b32 s18, s{sAUX}, 7
s_add_u32 s18, s18, {ST0}
s_mov_b64 exec, 0xff""")
    a(f"buffer_store_dwordx4 v[76:79], v{vL16}, {srd(S_WS)}, s{sT1} offen sc1", tag="st0")
    a(f"""s_mov_b64 exec, -1
v_and_b32 v2, 15, v{vLANE}
v_lshrrev_b32 v3, 4, v{vLANE}
v_mul_u32_u24 v4, 912, v2
v_lshl_add_u32 v4, v3, 4, v4
v_add_u32 v4, s17, v4
v_lshrrev_b32 v6, 2, v2
v_cmp_eq_u32 vcc, v6, v3
v_bfe_u32 v6, v2, 1, 2
v_lshlrev_b32 v6, 7, v6
v_lshrrev_b32 v7, 3, v2
v_lshl_add_u32 v6, v7, 4, v6
v_and_b32 v7, 1, v2
v_lshl_add_u32 v6, v7, 2, v6
s_lshl_b32 s{sT0}, s{sWAVE}, 5
s_add_u32 s{sT0}, s{sT0}, 60000
v_add_u32 v6, s{sT0}, v6
v_mov_b32 v7, 61024
v_cndmask_b32 v6, v7, v6, vcc
v_lshrrev_b32 v117, 3, v{vLANE}
v_cmp_eq_u32 vcc, s{sWAVE}, v117
v_lshlrev_b32 v117, 12, v117
v_and_b32 v7, 7, v{vLANE}
v_lshl_add_u32 v117, v7, 4, v117
v_mov_b32 v7, {OOB}
v_cndmask_b32 v117, v7, v117, vcc
v_mov_b32 v80, 0x3f803f80
v_mov_b32 v81, 0x3f803f80
v_mov_b32 v82, 0x3f803f80
v_mov_b32 v83, 0x3f803f80""")
    if OPT["stamps"] == 1:
        a.wait_vm0()
    stamp("aux data")
    for k in range(14):
        a(f"ds_read_b128 {vr(XR + 4 * k, 4)}, v4 offset:{64 * k}", res_r=["x0"])
    for k in range(14):
        x = vr(XR + 4 * k, 4)
        a(f"v_mfma_f32_16x16x32_bf16 v[64:67], v[80:83], {x}, {'v[64:67]' if k else 0}")
        a(f"v_mfma_f32_16x16x32_bf16 v[68:71], {x}, {x}, {'v[68:71]' if k else 0}")
    a(f"""v_cndmask_b32 v68, v68, v69, {sp(sM1)}
v_cndmask_b32 v70, v70, v71, {sp(sM1)}
v_cndmask_b32 v68, v68, v70, {sp(sM2)}""")
    a("ds_write2_b32 v6, v64, v68 offset0:0 offset1:2")
    a.barrier()
    a(f"ds_read_b128 v[64:67], v{vL16} offset:60000")
    a(f"buffer_store_dwordx4 v[64:67], v117, {srd(S_WS)}, s18 offen sc1", tag="st0")
    stamp("aux st")
    nonce_take()
    flag_put(0, f"s_add_u32 s{sT0}, s{sAUX}, 224\ns_lshl_b32 s{sT0}, s{sT0}, 6", 72, "st0")


def xt_loads():
    a(f"""s_lshl_b32 s{sT0}, s{sPAIR}, 1
s_lshr_b32 s{sT1}, s{sWAVE}, 1
s_add_u32 s{sT0}, s{sT0}, s{sT1}
s_mul_i32 s{sT1}, s{sT0}, 9363
s_lshr_b32 s{sT1}, s{sT1}, 16
s_mul_i32 s{sT2}, s{sT1}, 7
s_sub_u32 s{sT0}, s{sT0}, s{sT2}
s_lshl_b32 s{sT0}, s{sT0}, 1
s_and_b32 s{sT2}, s{sWAVE}, 1
s_add_u32 s{sT0}, s{sT0}, s{sT2}
s_mul_i32 s{sT2}, s{sT1}, {32 * 896}
s_lshl_b32 s{sT3}, s{sT0}, 6
s_add_u32 s{sT2}, s{sT2}, s{sT3}
v_lshrrev_b32 v2, 2, v{vLANE}
v_mul_u32_u24 v2, 896, v2
v_and_b32 v3, 3, v{vLANE}
v_lshl_add_u32 v2, v3, 4, v2
s_mul_i32 s22, s{sWAVE}, {GST}
s_mov_b32 m0, s22
s_mul_i32 s23, s{sT1}, {BS}""")
    a(f"buffer_load_dwordx4 v2, {srd(S_X0)}, s{sT2} offen lds", res_w=["x0"])
    a(f"s_add_u32 m0, m0, 1024\ns_add_u32 s{sT2}, s{sT2}, {16 * 896}")
    a(f"buffer_load_dwordx4 v2, {srd(S_X0)}, s{sT2} offen lds", res_w=["x0"])
    a(f"""s_lshl_b32 s{sT0}, s{sT0}, 11
s_add_u32 s23, s23, s{sT0}
s_add_u32 s23, s23, {X0}
v_lshrrev_b32 v2, 4, v{vLANE}
v_bfe_u32 v36, v{vLANE}, 2, 2
v_lshl_add_u32 v36, v2, 3, v36
v_lshlrev_b32 v36, 6, v36
v_lshl_add_u32 v36, v3, 3, v36
v_add_u32 v36, s22, v36
v_and_b32 v37, 15, v{vLANE}
v_lshlrev_b32 v37, 6, v37
v_lshl_add_u32 v37, v2, 4, v37""")


def xt_work():
    for u in range(2):
        for j in range(2):
            a(f"ds_read_b64_tr_b16 {vr(40 + 4 * u + 2 * j, 2)}, v36 offset:{j * 256 + u * 32}", res_r=["x0"])
    for u in range(2):
        a(f"buffer_store_dwordx4 {vr(40 + 4 * u, 4)}, v37, {srd(S_WS)}, s23 offen offset:{1024 * u} sc1", tag="st0")


def xt_poll_addr(ra, t):
    a(f"""s_lshl_b32 s{sT0}, s{sWAVE}, 4
v_and_b32 v{t}, 15, v{vLANE}
v_add_u32 v{t}, s{sT0}, v{t}
v_mul_u32_u24 v{t}, 7, v{t}
s_lshr_b32 s{sT0}, s{sPAIR}, 5
v_add_u32 v{t}, s{sT0}, v{t}
v_lshrrev_b32 v{t}, 1, v{t}
s_lshl_b32 s{sT0}, s{sWAVE}, 3
s_add_u32 s{sT0}, s{sT0}, 224
v_and_b32 v{ra}, 7, v{vLANE}
v_add_u32 v{ra}, s{sT0}, v{ra}
v_cmp_gt_u32 vcc, 16, v{vLANE}
v_cndmask_b32 v{ra}, v{ra}, v{t}, vcc""")


def e1_poll_addr(ra):
    a(f"s_lshl_b32 s{sT0}, s{sWAVE}, 6\nv_add_u32 v{ra}, s{sT0}, v{vLANE}")


def nonce_take():
    a(f"s_add_u32 s{sNONCE}, s{sNONCE}, 1")
    a(f"s_addc_u32 s{sNONCE + 1}, s{sNONCE + 1}, 0")


def nonce_retire():
    l = label("nr")
    a(f"s_or_b32 s{sT0}, s2, s{sWAVE}")
    a(f"s_cmp_lg_u32 s{sT0}, 32")
    a(f"s_cbranch_scc1 {l}")
    a(f"v_mov_b32 v110, s{sNONCE}\nv_mov_b32 v111, s{sNONCE + 1}\ns_mov_b64 exec, 1")
    a(f"buffer_store_dwordx2 v[110:111], off, {srd(S_WS)}, 0 offset:{EPOCH} sc1", optional=True)
    a("s_mov_b64 exec, -1")
    a(f"{l}:")


def flag_put(edge, sprod, r, tag):
    a(f"s_lshl_b32 s{sT0}, s{sprod}, 6" if isinstance(sprod, int) else sprod)
    a(f"""s_lshl_b32 s{sT1}, s{sWAVE}, 15
s_add_u32 s{sT0}, s{sT0}, s{sT1}
s_add_u32 s{sT0}, s{sT0}, {FL + edge * 0x20000}
v_lshlrev_b32 v{r + 4}, 12, v{vLANE}
v_and_b32 v{r + 4}, 0x4000, v{r + 4}
v_and_b32 v{r}, 3, v{vLANE}
v_lshl_add_u32 v{r + 4}, v{r}, 4, v{r + 4}
v_mov_b32 v{r}, s{sNONCE}
v_mov_b32 v{r + 1}, s{sNONCE + 1}
v_mov_b32 v{r + 2}, s{sNONCE}
v_mov_b32 v{r + 3}, s{sNONCE + 1}""")
    a.wait_tag(tag)
    a.barrier()
    a("s_mov_b64 exec, 0xff")
    a(f"buffer_store_dwordx4 {vr(r, 4)}, v{r + 4}, {srd(S_WS)}, s{sT0} offen sc1", tag="flag")
    a("s_mov_b64 exec, -1")


def emode(e):
    return OPT["em"][e - 1]


def hinted(e):
    return emode(e) in "HS"


def sentinel(e):
    return emode(e) == "S"


def flagged(e):
    return emode(e) in "FH"


def armed(layer):
    return any(sentinel(e + 4 * layer) for e in (1, 2, 3))


def wait_edge(e, r, ra_full, ra_samp):
    if hinted(e):
        poll_issue(e + 10, r, ra_samp)
        poll_take(r, ra_samp)
    else:
        a.wait_tag("flag")
    if flagged(e):
        poll_issue(e, r, ra_full)
        poll_take(r, ra_full)


def hint_prep(edge, sprod, r):
    a(f"s_lshl_b32 s{sT0}, s{sprod}, 6" if isinstance(sprod, int) else sprod)
    a(f"""s_lshl_b32 s{sT1}, s{sWAVE}, 15
s_add_u32 s{sT0}, s{sT0}, s{sT1}
s_add_u32 s{sT0}, s{sT0}, {FL + edge * 0x20000}
v_lshlrev_b32 v{r + 4}, 12, v{vLANE}
v_and_b32 v{r + 4}, 0x4000, v{r + 4}
v_and_b32 v{r}, 3, v{vLANE}
v_lshl_add_u32 v{r + 4}, v{r}, 4, v{r + 4}
v_add_u32 v{r + 4}, s{sT0}, v{r + 4}
v_mov_b32 v{r}, s{sNONCE}
v_mov_b32 v{r + 1}, s{sNONCE + 1}
v_mov_b32 v{r + 2}, s{sNONCE}
v_mov_b32 v{r + 3}, s{sNONCE + 1}""")


def hint_put(r):
    a("s_mov_b64 exec, 0xff")
    a(f"buffer_store_dwordx4 {vr(r, 4)}, v{r + 4}, {srd(S_WS)}, 0 offen sc1", tag="hint")
    a("s_mov_b64 exec, -1")


def poll_issue(edge, r, ra=None):
    ra = r + 2 if ra is None else ra
    a(f"""s_lshl_b32 s{sT3}, s{sX}, 14
s_add_u32 s{sT3}, s{sT3}, {FL + edge * 0x20000}
v_lshl_add_u32 v{ra}, v{ra}, 6, s{sT3}
buffer_load_dwordx2 {vr(r, 2)}, v{ra}, {srd(S_WS)}, 0 offen sc1""")


def poll_take(r, ra=None):
    ra = r + 2 if ra is None else ra
    ok, lp = label("pok"), label("plp")
    a(f"v_cmp_ne_u64 vcc, {sp(sNONCE)}, {vr(r, 2)}")
    a(f"s_cbranch_vccz {ok}")
    a(f"s_mov_b32 s{sCNT}, 0")
    a(f"{lp}:")
    a(f"buffer_load_dwordx2 {vr(r, 2)}, v{ra}, {srd(S_WS)}, 0 offen sc1")
    a("s_waitcnt vmcnt(0)")
    a(f"v_cmp_ne_u64 vcc, {sp(sNONCE)}, {vr(r, 2)}")
    a(f"s_add_u32 s{sCNT}, s{sCNT}, 1")
    a(f"s_cbranch_vccz {ok}")
    a(f"s_cmp_lt_u32 s{sCNT}, 0x100000")
    a(f"s_cbranch_scc1 {lp}")
    a(f"{ok}:")


sW1O, sW2O = 98, 99
sROT1, sROT2 = 33, 35
sW1E, sW2E = 78, 79


def w_setup():
    a(f"""v_lshrrev_b32 v2, 3, v{vLANE}
v_and_b32 v3, 7, v{vLANE}
v_bfe_u32 v4, v{vLANE}, 4, 1
v_lshlrev_b32 v4, 2, v4
v_xor_b32 v3, v3, v4
v_lshlrev_b32 v3, 4, v3
v_mul_u32_u24 v{vD1}, 3584, v2
v_add_u32 v{vD1}, v{vD1}, v3
v_lshl_add_u32 v{vD2}, v2, 12, v3
v_bfe_u32 v2, v{vLANE}, 2, 2
v_lshrrev_b32 v3, 5, v{vLANE}
v_bfe_u32 v4, v{vLANE}, 4, 1
v_and_b32 v5, 3, v{vLANE}
v_lshlrev_b32 v5, 3, v5
v_lshl_add_u32 v5, v4, 5, v5
v_lshrrev_b32 v4, 1, v2
v_lshl_add_u32 v5, v4, 6, v5
s_lshr_b32 s{sT0}, s{sWAVE}, 1
s_lshl_b32 s{sT0}, s{sT0}, 6
v_xor_b32 v5, s{sT0}, v5
v_lshl_add_u32 v5, v2, 7, v5
s_mul_i32 s{sT1}, s{sWAVE}, 24576
s_add_u32 s{sT1}, s{sT1}, {W2L}
v_add_u32 v5, s{sT1}, v5
v_lshl_add_u32 v{vT1a}, v3, 10, v5
v_xor_b32 v{vT1b}, 64, v{vT1a}
v_lshl_add_u32 v{vT2a}, v3, 9, v5
v_xor_b32 v{vT2b}, 64, v{vT2a}
s_mul_i32 s{sW1O}, s{sWAVE}, {512 * 3584}
s_lshl_b32 s{sT0}, s{sNT}, 7
s_add_u32 s{sW1O}, s{sW1O}, s{sT0}
s_mul_i32 s{sW2O}, s{sWAVE}, {448 * 4096}
s_lshl_b32 s{sT0}, s{sST}, 7
s_add_u32 s{sW2O}, s{sW2O}, s{sT0}
s_mov_b32 s{sWOFF}, s{sT1}""")
    if OPT["rot"] and OPT["map18"] == 1:
        if OPT["rot"] == 2:
            a(f"""s_add_u32 s{sROT1}, s{sDT1}, s{sX}
s_and_b32 s{sROT1}, s{sROT1}, 7
s_add_u32 s{sROT2}, s{sDT2}, s{sX}
s_cmp_ge_u32 s{sROT2}, 7
s_cselect_b32 s{sT0}, 7, 0
s_sub_u32 s{sROT2}, s{sROT2}, s{sT0}""")
        else:
            a(f"s_mov_b32 s{sROT1}, s{sDT1}\ns_mov_b32 s{sROT2}, s{sDT2}")
    elif OPT["rot"]:
        a(f"""s_and_b32 s{sT0}, s{sDT1}, 3
s_lshl_b32 s{sT0}, s{sT0}, 1
s_lshr_b32 s{sT1}, s{sDT1}, 2
s_add_u32 s{sT0}, s{sT0}, s{sT1}
s_and_b32 s{sROT1}, s{sT0}, 7
s_and_b32 s{sT0}, s{sDT2}, 3
s_lshl_b32 s{sT0}, s{sT0}, 1
s_lshr_b32 s{sT1}, s{sDT2}, 2
s_add_u32 s{sT0}, s{sT0}, s{sT1}
s_min_u32 s{sROT2}, s{sT0}, 6""")
        if OPT["map18"] == 2:
            a(f"s_mov_b32 s{sROT2}, s{sDT2}")
    else:
        a(f"s_mov_b32 s{sROT1}, 0\ns_mov_b32 s{sROT2}, 0")
    a(f"""s_add_u32 s{sW1E}, s{sW1O}, {512 * 3584}
s_mul_i32 s{sT0}, s{sROT1}, {64 * 3584}
s_add_u32 s{sW1O}, s{sW1O}, s{sT0}
s_add_u32 s{sW2E}, s{sW2O}, {448 * 4096}
s_mul_i32 s{sT0}, s{sROT2}, {64 * 4096}
s_add_u32 s{sW2O}, s{sW2O}, s{sT0}""")


WORDER = list(range(0, 4)) + list(range(32, 36)) + list(range(4, 32)) + list(range(36, 60))


def w_dma(pos, half):
    slot = pos % 12
    n = WORDER[pos]
    g = [Ins(f"s_add_u32 m0, s{sWOFF}, {slot * 2048 + half * 1024}")]
    if n < 32:
        g.append(Ins(f"s_add_u32 s{sW1O}, s{sW1O}, {8 * 3584}") if (n or half) else Ins("s_nop 0"))
        if n and n % 4 == 0 and half == 0:
            g += [Ins(f"s_cmp_eq_u32 s{sW1O}, s{sW1E}"), Ins(f"s_cselect_b32 s3, {512 * 3584}, 0"), Ins(f"s_sub_u32 s{sW1O}, s{sW1O}, s3")]
        g.append(Ins(f"buffer_load_dwordx4 v{vD1}, {srd(S_W1)}, s{sW1O} offen lds", res_w=[f"slot{slot}"]))
    else:
        g.append(Ins(f"s_add_u32 s{sW2O}, s{sW2O}, {8 * 4096}") if (n > 32 or half) else Ins("s_nop 0"))
        if n > 32 and n % 4 == 0 and half == 0:
            g += [Ins(f"s_cmp_eq_u32 s{sW2O}, s{sW2E}"), Ins(f"s_cselect_b32 s3, {448 * 4096}, 0"), Ins(f"s_sub_u32 s{sW2O}, s{sW2O}, s3")]
        g.append(Ins(f"buffer_load_dwordx4 v{vD2}, {srd(S_W2)}, s{sW2O} offen lds", res_w=[f"slot{slot}"]))
    return g


def w_tr(pos):
    slot = pos % 12
    n = WORDER[pos]
    g = []
    for nb in range(2):
        for j in range(2):
            if n < 32:
                r = (n * 2 + nb) * 4 + 2 * j
                g.append(Ins(f"ds_read_b64_tr_b16 a[{r}:{r + 1}], v{(vT1a, vT1b)[nb]} offset:{slot * 2048 + j * 512}", res_r=[f"slot{slot}"]))
            else:
                r = 128 + ((n - 32) * 2 + nb) * 4 + 2 * j
                g.append(Ins(f"ds_read_b64_tr_b16 v[{r}:{r + 1}], v{(vT2a, vT2b)[nb]} offset:{slot * 2048 + j * 1024}", res_r=[f"slot{slot}"]))
    return g


def w_all_upfront():
    for n in range(12):
        a.put(w_dma(n, 0)); a.put(w_dma(n, 1))
    for n in range(48):
        a.put(w_tr(n))
        if n >= 1:
            a.put(w_dma(n + 11, 0)); a.put(w_dma(n + 11, 1))
    a.put(w_dma(59, 0)); a.put(w_dma(59, 1))
    a.wait_vm0()
    a.wait_lgkm0()


PR = 56
TAB = 104


def kgen_loads():
    a(f"""s_lshl_b32 s{sT0}, s{sPAIR}, 10
s_lshl_b32 s{sT1}, s{sWAVE}, 8
s_add_u32 s{sT0}, s{sT0}, s{sT1}
v_lshl_add_u32 v3, v{vLANE}, 2, s{sT0}""")
    for k, p in enumerate((P_ARE, P_AIM, P_BRE, P_BIM, P_CRE, P_CIM)):
        a(f"global_load_dword v{PR + k}, v3, {sp(p)}")


def kgen_table_addr():
    l = label("pc")
    a(f"s_getpc_b64 {sp(sTAB)}")
    a(f"{l}:")
    a(f"s_add_u32 s{sTAB}, s{sTAB}, ktab-{l}")
    a(f"s_addc_u32 s{sTAB + 1}, s{sTAB + 1}, 0")


def kgen_table_load():
    kgen_table_addr()
    a(f"s_lshr_b32 s{sT0}, s{sWAVE}, 1\ns_lshl_b32 s{sT0}, s{sT0}, 5\nv_lshl_add_u32 v75, v0, 5, s{sT0}")


KBG = []


def kgen(hooks):
    F = {e: 2 * e for e in range(1, 8)}
    Qr = {1: 16, 2: 18, 3: 20, 4: 22}
    QN = [24, 26]
    Z1, Z2, C0, C1 = 28, 30, 32, 34
    CN = [36, 38]
    T0, T1 = 62, 64
    CV = [66, 67, 68, 69]
    A2, B2, DT = 70, 71, 72
    ACC = 76
    QF = 88
    PF = 40
    vG, vF = 73, 74
    a(f"""s_mul_i32 s{sT0}, s{sWAVE}, {GST}
v_lshl_add_u32 v{vG}, v{vLANE}, 2, s{sT0}
v_and_b32 v2, 15, v{vLANE}
v_mul_u32_u24 v2, {GROW}, v2
v_lshrrev_b32 v3, 4, v{vLANE}
v_lshl_add_u32 v2, v3, 4, v2
v_add_u32 v{vF}, s{sT0}, v2""")
    a.begin()
    a(f"""s_lshr_b32 s{sT0}, s{sWAVE}, 1
s_lshl_b32 s{sT0}, s{sT0}, 4
s_lshr_b32 s{sT0}, s{sLDT}, s{sT0}
s_lshl_b32 s{sT0}, s{sT0}, 16
v_mov_b32 v2, {f32(math.log2(math.e))}
v_mul_f32 v2, s{sT0}, v2
v_exp_f32 v2, v2
v_cvt_pk_bf16_f32 v2, v2, v2
v_lshlrev_b32 v{DT}, 16, v2
s_and_b32 s{sD1}, s{sD0}, 0xffff0000
s_lshl_b32 s{sD0}, s{sD0}, 16""")
    cvi = [0]

    def hook(name):
        if name is not None and name not in hooks:
            return
        a_body = space_ds(a.end(), OPT["lag"], OPT["gap"])
        m, rest = merge(a_body, KBG[:], 20, OPT["ev_kg"])
        del KBG[:]
        a.put(m)
        put_all(rest)
        if name is not None:
            hooks[name]()
            a.begin()

    def row(r, src, neg=False):
        c = CV[cvi[0] % 4]
        cvi[0] += 1
        a(f"v_cvt_pk_bf16_f32 v{c}, v{src}, {'-' if neg else ''}v{src + 1}")
        a(f"ds_write_b32 v{vG}, v{c} offset:{r * GROW}")

    def reads(dst, tile):
        for ks in range(4):
            a(f"ds_read_b128 {vr(dst + 4 * ks, 4)}, v{vF} offset:{tile * 16 * GROW + ks * 64}")

    def mfmas(t, first):
        for ks in range(4):
            c = "0" if (first and ks == 0) else vr(ACC + 4 * t, 4)
            a(f"v_mfma_f32_16x16x32_bf16 {vr(ACC + 4 * t, 4)}, {vr(PF + 4 * ks, 4)}, {vr(QF + 4 * ks, 4)}, {c}")

    def direct(d, scale):
        if scale != 1:
            a(f"v_mul_f32 v{T0}, {f32(scale)}, v{A2}")
            a(f"v_mul_f32 v{T1}, {f32(scale)}, v{B2}")
            x, y = T0, T1
        else:
            x, y = A2, B2
        a(f"v_fract_f32 v{T1}, v{y}")
        a(f"v_exp_f32 v{T0}, v{x}")
        a(f"v_cos_f32 v{d}, v{T1}")
        a(f"v_sin_f32 v{d + 1}, v{T1}")
        a(f"v_pk_mul_f32 {vr(d, 2)}, {vr(d, 2)}, {vr(T0, 2)} op_sel_hi:[1,0]")

    for rd in range(2):
        def up(d, s):
            a(f"v_lshlrev_b32 v{d}, 16, v{s}" if rd == 0 else f"v_and_b32 v{d}, 0xffff0000, v{s}")
        up(A2, PR); up(B2, PR + 1)
        up(QN[0], PR + 2); up(QN[0] + 1, PR + 3)
        up(QN[1], PR + 4); up(QN[1] + 1, PR + 5)
        a(f"v_mul_f32 v{A2}, v{DT}, v{A2}")
        a(f"v_mul_f32 v{B2}, v{DT}, v{B2}")
        a(f"v_pk_mul_f32 {vr(QN[0], 2)}, {vr(QN[0], 2)}, {vr(DT, 2)} op_sel_hi:[1,0]")
        a(f"v_mul_f32 v{A2}, {f32(math.log2(math.e))}, v{A2}")
        a(f"v_mul_f32 v{B2}, {f32(1 / (2 * math.pi))}, v{B2}")
        cmul2((C0, QN[1], QN[0]))
        direct(F[1], 1)
        if rd == 1:
            mfmas(2, True)
        direct(Z1, 128)
        hook(5 * rd)
        cmul2((F[2], F[1], F[1]), (Z2, Z1, Z1))
        cmul2((F[4], F[2], F[2]), (F[3], F[2], F[1]))
        cmul2((Qr[1], F[4], F[4]), (C1, C0, Z1))
        a(f"v_mov_b32 v{CV[3]}, 0x3f80")
        a(f"ds_write_b32 v{vG}, v{CV[3]}")
        cmul2((Qr[2], Qr[1], Qr[1]), (F[5], F[4], F[1]))
        row(1, Qr[1], True)
        cmul2((Qr[3], Qr[2], Qr[1]), (Qr[4], Qr[2], Qr[2]))
        row(2, Qr[2], True)
        cmul2((F[6], F[4], F[2]), (F[7], F[4], F[3]))
        row(3, Qr[3], True)
        row(4, Qr[4], True)
        cur = {1: Qr[1], 2: Qr[2], 3: Qr[3], 0: Qr[4]}
        free = list(QN) + [CN[0]]
        j = 5
        while j < 16:
            js = [j] + ([j + 1] if j + 1 < 16 else [])
            ps = []
            for jj in js:
                d = free.pop(0)
                ps.append((d, cur[jj % 4], Qr[4]))
            cmul2(*ps)
            for jj, p in zip(js, ps):
                if cur[jj % 4] != Qr[4]:
                    free.append(cur[jj % 4])
                cur[jj % 4] = p[0]
                row(jj, p[0], True)
            j += 2
        reads(QF, 0)
        hook(5 * rd + 1)
        TA, TB = QN
        row(16, C0); row(24, C1)
        for e in range(1, 8):
            cmul2((TA, C0, F[e]), (TB, C1, F[e]))
            row(16 + e, TA); row(24 + e, TB)
        reads(PF, 1)
        hook(5 * rd + 2)
        ca, cb = C0, C1
        na, nb_ = CN
        def adv():
            nonlocal ca, cb, na, nb_
            cmul2((na, ca, Z2), (nb_, cb, Z2))
            ca, cb, na, nb_ = na, nb_, ca, cb
        adv()
        row(32, ca); row(36, cb)
        for e in range(1, 4):
            cmul2((TA, ca, F[2 * e]), (TB, cb, F[2 * e]))
            row(32 + e, TA); row(36 + e, TB)
        mfmas(0, rd == 0)
        for k in range(2):
            adv()
            row(40 + 4 * k, ca); row(42 + 4 * k, cb)
            cmul2((TA, ca, F[4]), (TB, cb, F[4]))
            row(41 + 4 * k, TA); row(43 + 4 * k, TB)
        reads(PF, 2)
        hook(5 * rd + 3)
        for k in range(4):
            adv()
            row(48 + 2 * k, ca); row(49 + 2 * k, cb)
        cmul2((na, ca, Z2))
        row(56, na)
        mfmas(1, rd == 0)
        reads(PF, 3)
        hook(5 * rd + 4)
    hook(None)
    a(f"s_mul_i32 s{sT0}, s{sWAVE}, {GST}")
    a(f"v_add_u32 v{vF}, s{sT0}, v{vL16}")
    a(f"v_mov_b32 v{CV[0]}, 0")
    for k in range(8):
        a(f"v_and_b32 v{2 + 2 * k}, 0xffff, v{TAB + k}")
        a(f"v_lshrrev_b32 v{3 + 2 * k}, 16, v{TAB + k}")
    for t in range(2):
        a(f"ds_write_b128 v{vF}, {vr(ACC + 4 * t, 4)} offset:{TOFF + t * 1024}")
    mfmas(2, False)
    a(f"ds_write_b32 v{vG}, v{CV[0]} offset:{TOFF + 3072}")
    a("v_and_b32 v18, 0xffff, v0\nv_lshrrev_b32 v19, 16, v0\nv_and_b32 v20, 0xffff, v1")
    a(f"ds_write_b128 v{vF}, {vr(ACC + 8, 4)} offset:{TOFF + 2048}")


def kzero(r):
    a(f"""v_mov_b32 v{r}, 0
v_mov_b32 v{r + 1}, 0
v_mov_b32 v{r + 2}, 0
v_mov_b32 v{r + 3}, 0
v_bfe_u32 v{r + 4}, v{vLANE}, 1, 3
v_mul_u32_u24 v{r + 4}, {KST}, v{r + 4}
v_and_b32 v{r + 5}, 1, v{vLANE}
v_lshl_add_u32 v{r + 4}, v{r + 5}, 4, v{r + 4}
s_and_b32 s{sT0}, s{sWAVE}, 1
s_mul_i32 s{sT0}, s{sT0}, {UST}
v_add_u32 v{r + 5}, s{sT0}, v{vL16}""")
    return [f"ds_write_b128 v{r + 4}, {vr(r, 4)} offset:4096", f"ds_write_b128 v{r + 5}, {vr(r, 4)} offset:{UB}"]


def kaddr(r):
    a(f"""s_lshr_b32 s{sT0}, s{sWAVE}, 1
s_and_b32 s{sT1}, s{sWAVE}, 1
s_lshl_b32 s{sT1}, s{sT1}, 11
v_lshl_add_u32 v{r + 3}, v{vLANE}, 5, s{sT1}""")
    for c in range(4):
        a(f"s_cmp_lg_u32 s{sT0}, 0")
        a(f"s_cselect_b32 s{sT2}, {KSLOT[1][c]}, {KSLOT[0][c]}")
        a(f"s_mul_i32 s{sT2}, s{sT2}, {KST}")
        a(f"v_add_u32 v{r + c}, s{sT2}, v{r + 3}")


def kexpand(mid):
    AD, VAL = 2, 22
    P0, P1, P2, P3 = 2, 12, 88, 96
    a.barrier()
    for k in range(19):
        a(f"ds_read2st64_b32 {vr(VAL + 2 * k, 2)}, v{AD + k} offset0:{TOFF // 256} offset1:{TOFF // 256 + GST // 256}")
    mid()
    kaddr(60)
    zw = kzero(104)
    for k in range(19):
        a(f"v_add_f32 v{VAL + 2 * k}, v{VAL + 2 * k}, v{VAL + 2 * k + 1}")
        if k:
            a(f"v_cvt_pk_bf16_f32 v{(P0 if k & 1 else P1) + (k - 1) // 2}, v{VAL + 2 * k - 2}, v{VAL + 2 * k}")
    a.barrier()
    a.begin()
    for l in zw:
        a(l)
    for c, P in ((0, P0), (1, P1)):
        a(f"ds_write_b128 v{60 + c}, {vr(P, 4)}")
        a(f"ds_write_b128 v{60 + c}, {vr(P + 4, 4)} offset:16")
    for c, P, src in ((2, P2, P0), (3, P3, P1)):
        for i in range(4):
            a(f"v_pk_mov_b32 {vr(P + 2 * i, 2)}, {vr(src + 2 * i, 2)}, {vr(src + 2 * i + 2, 2)} op_sel:[1,0]")
        a(f"ds_write_b128 v{60 + c}, {vr(P, 4)}")
        a(f"ds_write_b128 v{60 + c}, {vr(P + 4, 4)} offset:16")
    return a.end()


def kcopies():
    R, E, M = 2, 12, 22
    kaddr(40)
    a(f"""ds_read_b128 {vr(R, 4)}, v40
ds_read_b128 {vr(R + 4, 4)}, v40 offset:16
ds_read_b64 {vr(R + 8, 2)}, v40 offset:32""")
    for l in kzero(32):
        a(l)
    for i in range(9):
        a(f"v_alignbit_b32 v{E + i}, v{R + i + 1}, v{R + i}, 16")
    a(f"ds_write_b128 v41, {vr(E, 4)}")
    a(f"ds_write_b128 v41, {vr(E + 4, 4)} offset:16")
    for i in range(4):
        a(f"v_pk_mov_b32 {vr(M + 2 * i, 2)}, {vr(R + 2 * i, 2)}, {vr(R + 2 * i + 2, 2)} op_sel:[1,0]")
    a(f"ds_write_b128 v42, {vr(M, 4)}")
    a(f"ds_write_b128 v42, {vr(M + 4, 4)} offset:16")
    for i in range(4):
        a(f"v_pk_mov_b32 {vr(R + 2 * i, 2)}, {vr(E + 2 * i, 2)}, {vr(E + 2 * i + 2, 2)} op_sel:[1,0]")
    a(f"ds_write_b128 v43, {vr(R, 4)}")
    a(f"ds_write_b128 v43, {vr(R + 4, 4)} offset:16")


GX = 80
CS = 64
cvA, cvB, cvZ, cvXW, cvXR, cvO, cvU, cvX, cvH, cvP = 112, 113, 114, 115, 116, 117, 118, 119, 100, 108
STUBS = []


def conv_poll1():
    r = cvP
    a(f"""v_lshrrev_b32 v{r}, 3, v{vLANE}
v_min_u32 v{r}, 6, v{r}
v_and_b32 v{r + 1}, 7, v{vLANE}
v_lshl_add_u32 v{r + 2}, v{r}, 5, v{r + 1}
s_lshl_b32 s{sT0}, s{sWAVE}, 3
v_add_u32 v{r + 2}, s{sT0}, v{r + 2}
v_and_b32 v{r + 1}, 7, v{vLANE}
v_min_u32 v{r}, 6, v{r + 1}
v_lshl_add_u32 v{r + 3}, v{r}, 5, v{r + 1}
v_add_u32 v{r + 3}, s{sT0}, v{r + 3}""")


def conv_loads():
    for p in range(4):
        a(f"buffer_load_dwordx4 {vr(CS + 4 * p, 4)}, v{vL16}, {srd(S_WS)}, s{16 + p} offen sc1")
    a(f"buffer_load_dwordx4 {vr(GX, 4)}, v{cvX}, {srd(S_WS)}, s20 offen sc1")
    a(f"buffer_load_dwordx4 {vr(GX + 4, 4)}, v{cvX}, {srd(S_WS)}, s20 offen offset:64 sc1")


def conv_setup(layer):
    a(f"""s_mov_b32 s{sCA}, {f32(1.0 / 448)}
s_mov_b32 s{sCB}, {f32(1e-5)}
s_lshl_b32 s{sT0}, s{sWAVE}, 10
v_add_u32 v{cvU}, s{sT0}, v{vL16}
s_lshr_b32 s{sT0}, s{sWAVE}, 1
s_and_b32 s{sT1}, s{sWAVE}, 1
v_and_b32 v8, 15, v{vLANE}
v_lshrrev_b32 v9, 4, v{vLANE}
v_not_b32 v10, v8
v_and_b32 v10, 3, v10""")
    for s in range(4):
        a(f"s_cmp_lg_u32 s{sT0}, 0")
        a(f"s_cselect_b32 s{sT2}, {KSLOT[1][s]}, {KSLOT[0][s]}")
        a(f"s_mul_i32 s{sT2}, s{sT2}, {KST}")
        if s == 0:
            a(f"v_mov_b32 v11, s{sT2}")
        else:
            a(f"v_mov_b32 v12, s{sT2}\nv_cmp_eq_u32 vcc, {s}, v10\nv_cndmask_b32 v11, v11, v12, vcc")
    a(f"""v_add_u32 v10, v10, v8
v_lshlrev_b32 v12, 3, v9
v_sub_u32 v12, v12, v10
v_lshl_add_u32 v11, v12, 1, v11
""")
    a(f"""s_lshl_b32 s{sT3}, s{sT1}, 8
s_sub_u32 s{sT2}, {2 * 2031 - 64 * 59}, s{sT3}
v_add_u32 v{cvA}, s{sT2}, v11
s_mul_i32 s{sT2}, s{sT0}, {UST}
s_sub_u32 s{sT2}, s{sT2}, s{sT3}
s_add_u32 s{sT2}, s{sT2}, {UB + UPAD - 2 * 112}
v_lshlrev_b32 v12, 5, v8
v_lshl_add_u32 v13, v9, 4, v12
v_add_u32 v{cvB}, s{sT2}, v13
s_lshl_b32 s{sT2}, s{sWAVE}, 11
v_lshl_add_u32 v13, v9, 3, v12
v_add_u32 v{cvZ}, s{sT2}, v13
s_xor_b32 s{sT2}, s{sWAVE}, 1
s_lshl_b32 s{sT2}, s{sT2}, 12
v_add_u32 v{cvXW}, s{sT2}, v{vL16}
s_lshl_b32 s{sT2}, s{sWAVE}, 12
v_add_u32 v{cvXR}, s{sT2}, v{vL16}
v_and_b32 v10, 1, v9
v_lshlrev_b32 v10, 3, v10
v_lshrrev_b32 v11, 1, v8
v_add_u32 v10, v10, v11
v_mul_u32_u24 v10, {BS}, v10
v_and_b32 v11, 1, v8
v_lshl_add_u32 v10, v11, 5, v10
v_lshrrev_b32 v11, 1, v9
v_lshl_add_u32 v{cvO}, v11, 4, v10
s_mul_i32 s{sT1}, s{sT1}, {32 * BS}
s_lshl_b32 s{sT2}, s{sPAIR}, 1
s_add_u32 s{sT0}, s{sT0}, s{sT2}
s_lshl_b32 s{sT0}, s{sT0}, 6
s_add_u32 s{sT0}, s{sT0}, s{sT1}
s_add_u32 s13, s{sT0}, {X1 if layer == 0 else X3}
s_add_u32 s21, s13, {16 * BS}""" if OPT["cv"] else f"""v_add_u32 v{cvA}, {2 * 2031 - 64 * 63}, v11
s_mul_i32 s{sT2}, s{sT0}, {UST}
s_lshl_b32 s{sT3}, s{sT1}, 9
s_add_u32 s{sT2}, s{sT2}, s{sT3}
s_add_u32 s{sT2}, s{sT2}, {UB + UPAD - 2 * 496}
v_lshlrev_b32 v12, 5, v8
v_lshl_add_u32 v13, v9, 4, v12
v_add_u32 v{cvB}, s{sT2}, v13
s_lshl_b32 s{sT2}, s{sT0}, 12
s_add_u32 s{sT2}, s{sT2}, s{sT3}
v_lshl_add_u32 v13, v9, 3, v12
v_add_u32 v{cvZ}, s{sT2}, v13
v_and_b32 v10, 1, v9
v_lshlrev_b32 v10, 4, v10
v_lshrrev_b32 v11, 1, v8
v_add_u32 v10, v10, v11
v_mul_u32_u24 v10, {BS}, v10
v_and_b32 v11, 1, v8
v_lshl_add_u32 v10, v11, 5, v10
v_lshrrev_b32 v11, 1, v9
v_lshl_add_u32 v{cvO}, v11, 4, v10
s_mul_i32 s{sT1}, s{sT1}, {8 * BS}
s_lshl_b32 s{sT2}, s{sPAIR}, 1
s_add_u32 s{sT0}, s{sT0}, s{sT2}
s_lshl_b32 s{sT0}, s{sT0}, 6
s_add_u32 s{sT0}, s{sT0}, s{sT1}
s_add_u32 s13, s{sT0}, {X1 if layer == 0 else X3}
s_add_u32 s21, s13, {32 * BS}""")
    a(f"""s_lshl_b32 s16, s{sWAVE}, 10
s_add_u32 s16, s16, {ST0 if layer == 0 else ST1}
s_add_u32 s17, s16, 4096
s_add_u32 s18, s16, 8192
s_add_u32 s19, s16, 12288
s_mul_i32 s20, s{sWAVE}, {16 * BS}
s_lshl_b32 s{sT2}, s{sPAIR}, 7
s_add_u32 s20, s20, s{sT2}
s_add_u32 s20, s20, {X0 if layer == 0 else X2}
v_lshrrev_b32 v10, 2, v{vLANE}
v_mul_u32_u24 v10, {BS}, v10
v_and_b32 v11, 3, v{vLANE}
v_lshl_add_u32 v{cvX}, v11, 4, v10""")


cXF, cUF, cAL, cBE, cUP = 0, 16, 32, 40, 48


def conv_pro(layer):
    XF, UF, AL, BE, UP = cXF, cUF, cAL, cBE, cUP
    for p in range(4):
        S = CS + 4 * p
        a(f"v_pk_mul_f32 {vr(S, 2)}, {vr(S, 2)}, {sp(sCA)} op_sel_hi:[1,0]")
    for p in range(4):
        S = CS + 4 * p
        a(f"v_pk_fma_f32 {vr(BE + 2 * p, 2)}, {vr(S, 2)}, {vr(S, 2)}, {sp(sCB)} op_sel_hi:[1,1,0] neg_lo:[1,0,0] neg_hi:[1,0,0]")
    for p in range(4):
        Q = CS + 4 * p + 2
        a(f"v_pk_fma_f32 {vr(Q, 2)}, {vr(Q, 2)}, {sp(sCA)}, {vr(BE + 2 * p, 2)} op_sel_hi:[1,0,1]")
    for p in range(4):
        Q = CS + 4 * p + 2
        a(f"v_max_f32 v{Q}, s{sCB}, v{Q}\nv_max_f32 v{Q + 1}, s{sCB}, v{Q + 1}")
    for p in range(4):
        Q = CS + 4 * p + 2
        a(f"v_rsq_f32 v{AL + 2 * p}, v{Q}\nv_rsq_f32 v{AL + 2 * p + 1}, v{Q + 1}")
    for k in range(8):
        unpack(XF + 2 * k, XF + 2 * k + 1, GX + k)
    for p in range(4):
        S = CS + 4 * p
        a(f"v_pk_mul_f32 {vr(BE + 2 * p, 2)}, {vr(S, 2)}, {vr(AL + 2 * p, 2)} neg_lo:[1,0] neg_hi:[1,0]")
    for c in range(2):
        for p in range(4):
            a(f"v_pk_fma_f32 {vr(UF + 8 * c + 2 * p, 2)}, {vr(XF + 8 * c + 2 * p, 2)}, {vr(AL + 2 * p, 2)}, {vr(BE + 2 * p, 2)}")
        for p in range(4):
            a(f"v_cvt_pk_bf16_f32 v{UP + 4 * c + p}, v{UF + 8 * c + 2 * p}, v{UF + 8 * c + 2 * p + 1}")
        a(f"ds_write_b128 v{cvU}, {vr(UP + 4 * c, 4)} offset:{UB + c * UST + UPAD}")
    if OPT["cv"]:
        for i in a.capture(conv_z, 88):
            if i.kind != "dsw":
                a.put([i])


def conv_z(ZP=cXF):
    XF, UF = cXF, cUF
    for c in range(2):
        for p in range(4):
            a(f"v_pk_fma_f32 {vr(UF + 8 * c + 2 * p, 2)}, {vr(UF + 8 * c + 2 * p, 2)}, {sp((sD0, sD1)[c])}, {vr(XF + 8 * c + 2 * p, 2)} op_sel_hi:[1,0,1]")
        for p in range(4):
            a(f"v_cvt_pk_bf16_f32 v{ZP + 4 * c + p}, v{UF + 8 * c + 2 * p}, v{UF + 8 * c + 2 * p + 1}")
        a(f"ds_write_b128 v{cvU}, {vr(ZP + 4 * c, 4)} offset:{ZB + c * 4096}")


def conv_main(layer, bg=(), bg_start=0, bg_every=64):
    return (conv_main_r if OPT["cv"] else conv_main_t)(layer, bg, bg_start, bg_every)


def conv_main_r(layer, bg, bg_start, bg_every):
    ACC, BF, AR = 0, 32, 64
    NA = 6
    EX2 = ZB
    seq = [(r, q) for r in range(4) for q in range(7, -1, -1)]
    e = 1 + 4 * layer

    def rdA(i):
        r, q = seq[i]
        d = AR + 4 * (i % NA)
        off = 64 * (59 - (8 * q + r))
        return [Ins(f"ds_read_b64 {vr(d, 2)}, v{cvA} offset:{off}"), Ins(f"ds_read_b64 {vr(d + 2, 2)}, v{cvA} offset:{off + 8}")]

    def rdB(r, p):
        return [Ins(f"ds_read_b128 {vr(BF + 4 * p, 4)}, v{cvB} offset:{512 * p + 64 * (3 - r)}")]

    a.put(rdA(0)); a.put(rdB(0, 0)); a.put(rdA(1)); a.put(rdB(0, 1)); a.put(rdA(2)); a.put(rdB(0, 2)); a.put(rdA(3))
    a.put(rdB(0, 3)); a.put(rdA(4))
    for p in range(4, 8):
        a.put(rdB(0, p))
    ZR, ZF, RR = 88, 64, 32
    side = [[i] for i in a.capture(conv_z, 88) if i.kind == "dsw"]
    if hinted(e):
        side += [[i] for i in a.capture(hint_prep, e + 10, sPAIR, cvH)]
    late = [[Ins("s_barrier")]] + [[Ins(f"ds_read_b64 {vr(ZR + 2 * i, 2)}, v{cvZ} offset:{ZB + i * 512}")] for i in range(4)]
    late2 = [[Ins("s_barrier")]]
    a.begin()
    started = set()
    for i, (r, q) in enumerate(seq):
        if hinted(e) and OPT["h_cv"] < 0 and i == 32 + OPT["h_cv"]:
            hint_put(cvH)
        ps = list(range(8 - q))
        for p in ps:
            b = q + p
            c = vr(ACC + 4 * b, 4) if b in started else "0"
            started.add(b)
            a(f"v_mfma_f32_16x16x32_bf16 {vr(ACC + 4 * b, 4)}, {vr(AR + 4 * (i % NA), 4)}, {vr(BF + 4 * p, 4)}, {c}")
            if p == 0 and i + NA - 1 < len(seq):
                a.put(rdA(i + NA - 1))
            elif 1 <= q <= 4 and p >= 1:
                for lst, r0 in ((side, 0), (late, 2), (late2, 3)):
                    if lst and r >= r0:
                        a.put(lst.pop(0))
                        break
            if q == 0 and r < 3:
                a.put(rdB(r + 1, p))
    assert not side and not late and not late2
    m, rest = merge(a.end(), list(bg), bg_start, bg_every)
    a.put(m)
    stamp(f"conv{layer} loop", 111)
    if hinted(e) and OPT["h_cv"] == 0:
        hint_put(cvH)
    for k in range(8):
        unpack(ZF + 2 * k, ZF + 2 * k + 1, ZR + k)
    l1, l2 = label("cx"), label("cy")
    a(f"s_bitcmp1_b32 s{sWAVE}, 0")
    a(f"s_cbranch_scc1 {l1}")
    for h in range(2):
        for i in range(4):
            a(f"ds_write_b128 v{cvXW}, {vr(ACC + 16 * (1 - h) + 4 * i, 4)} offset:{EX2 + i * 1024}")
            for k in range(2):
                a(f"v_pk_add_f32 {vr(ZF + 4 * i + 2 * k, 2)}, {vr(ZF + 4 * i + 2 * k, 2)}, {vr(ACC + 16 * h + 4 * i + 2 * k, 2)}")
        if h == 0:
            a(f"s_branch {l2}")
            a(f"{l1}:")
    a(f"{l2}:")
    if (armed(1) if layer else sentinel(1)):
        poll_take(cvP)
    a.barrier()
    if hinted(e) and OPT["h_cv"] == 1:
        hint_put(cvH)
    for i in range(4):
        a(f"ds_read_b128 {vr(RR + 4 * i, 4)}, v{cvXR} offset:{EX2 + i * 1024}")
    PK = 56
    for i in range(4):
        for k in range(2):
            a(f"v_pk_add_f32 {vr(ZF + 4 * i + 2 * k, 2)}, {vr(ZF + 4 * i + 2 * k, 2)}, {vr(RR + 4 * i + 2 * k, 2)}")
        for k in range(2):
            a(f"v_cvt_pk_bf16_f32 v{PK + 2 * i + k}, v{ZF + 4 * i + 2 * k}, v{ZF + 4 * i + 2 * k + 1}")
        if i & 1:
            b = PK + 2 * (i - 1)
            a(f"v_permlane16_swap_b32 v{b}, v{b + 2}")
            a(f"v_permlane16_swap_b32 v{b + 1}, v{b + 3}")
            a(f"buffer_store_dwordx4 {vr(b, 4)}, v{cvO}, {srd(S_WS)}, s{21 if i == 3 else 13} offen sc1", tag="pub")
    if hinted(e) and OPT["h_cv"] == 2:
        hint_put(cvH)
    if not flagged(e):
        a.barrier()
    else:
        flag_put(1 + 4 * layer, sPAIR, 40, "pub")
    return rest


def conv_main_t(layer, bg, bg_start, bg_every):
    ACC, BF, AR = 84, 32, 64
    NA = 5
    QORD = (7, 5, 6, 3, 4, 2, 1, 0)
    seq = [(r, q) for r in range(8) for q in QORD]
    e = 1 + 4 * layer

    def rdA(i):
        r, q = seq[i]
        d = AR + 4 * (i % NA)
        off = 64 * (63 - (8 * q + r))
        return [Ins(f"ds_read_b64 {vr(d, 2)}, v{cvA} offset:{off}"), Ins(f"ds_read_b64 {vr(d + 2, 2)}, v{cvA} offset:{off + 8}")]

    def rdB(r, p):
        return [Ins(f"ds_read_b128 {vr(BF + 4 * (p + 1), 4)}, v{cvB} offset:{512 * (p + 1) + 64 * (7 - r)}")]

    a.put(rdA(0)); a.put(rdB(0, -1)); a.put(rdA(1)); a.put(rdB(0, 1)); a.put(rdA(2)); a.put(rdB(0, 0)); a.put(rdA(3))
    for p in (3, 2, 4, 5, 6):
        a.put(rdB(0, p))
    ZR, ZF = 16, 0
    side = [[i] for i in a.capture(conv_z)]
    if hinted(e):
        side += [[i] for i in a.capture(hint_prep, e + 10, sPAIR, cvH)]
    late = [[Ins("s_barrier")]] + [[Ins(f"ds_read_b64 {vr(ZR + 2 * i, 2)}, v{cvZ} offset:{ZB + i * 1024}")] for i in range(4)]
    late2 = [[i] for k in range(8) for i in a.capture(unpack, ZF + 2 * k, ZF + 2 * k + 1, ZR + k)]
    a.begin()
    started = set()
    n = 0
    for i, (r, q) in enumerate(seq):
        if hinted(e) and OPT["h_cv"] < 0 and i == 64 + OPT["h_cv"]:
            hint_put(cvH)
        first = True
        for t in range(q // 2, 4):
            p = 2 * t - q
            c = vr(ACC + 4 * t, 4) if t in started else "0"
            started.add(t)
            a(f"v_mfma_f32_16x16x32_bf16 {vr(ACC + 4 * t, 4)}, {vr(AR + 4 * (i % NA), 4)}, {vr(BF + 4 * (p + 1), 4)}, {c}")
            n += 1
            if first and i + 4 < len(seq):
                a.put(rdA(i + 4))
            elif q >= 2:
                for lst, r0 in ((side, 0), (late, 4), (late2, 5)):
                    if lst and r >= r0:
                        a.put(lst.pop(0))
                        if lst is side and lst:
                            a.put(lst.pop(0))
                        break
            first = False
            if q <= 1 and r < 7:
                a.put(rdB(r + 1, p))
    assert not side and not late and not late2
    m, rest = merge(a.end(), list(bg), bg_start, bg_every)
    a.put(m)
    stamp(f"conv{layer} loop", 111)
    if (armed(1) if layer else sentinel(1)):
        poll_take(cvP)
    if hinted(e) and OPT["h_cv"] == 0:
        hint_put(cvH)
    PK = 24
    for i in range(4):
        for k in range(2):
            a(f"v_pk_add_f32 {vr(ZF + 4 * i + 2 * k, 2)}, {vr(ZF + 4 * i + 2 * k, 2)}, {vr(ACC + 4 * i + 2 * k, 2)}")
        for k in range(2):
            a(f"v_cvt_pk_bf16_f32 v{PK + 2 * i + k}, v{ZF + 4 * i + 2 * k}, v{ZF + 4 * i + 2 * k + 1}")
        if i & 1:
            b = PK + 2 * (i - 1)
            a(f"v_permlane16_swap_b32 v{b}, v{b + 2}")
            a(f"v_permlane16_swap_b32 v{b + 1}, v{b + 3}")
            a(f"buffer_store_dwordx4 {vr(b, 4)}, v{cvO}, {srd(S_WS)}, s{21 if i == 3 else 13} offen sc1", tag="pub")
    if hinted(e) and OPT["h_cv"] > 0:
        hint_put(cvH)
    if not flagged(e):
        a.barrier()
    else:
        flag_put(1 + 4 * layer, sPAIR, 40, "pub")
    return rest


def reduce32(V, n, W):
    for i in range(n):
        a(f"v_permlane16_swap_b32 v{V[i]}, v{V[n + i]}")
    for i in range(n):
        a(f"v_add_f32 v{V[i]}, v{V[i]}, v{V[n + i]}")
    h = n // 2
    for i in range(h):
        a(f"v_add_f32_dpp v{W[i]}, v{V[i]}, v{V[i]} row_ror:8 row_mask:0xf bank_mask:0x3")
    for i in range(h):
        a(f"v_add_f32_dpp v{W[i]}, v{V[i + h]}, v{V[i + h]} row_ror:8 row_mask:0xf bank_mask:0xc")
    g = h // 2
    for i in range(g):
        a(f"v_add_f32_dpp v{V[i]}, v{W[i]}, v{W[i]} row_half_mirror row_mask:0xf bank_mask:0x5")
    for i in range(g):
        a(f"v_add_f32_dpp v{V[i]}, v{W[i + g]}, v{W[i + g]} row_half_mirror row_mask:0xf bank_mask:0xa")
    for m in ("[1,0,3,2]", "[2,3,0,1]"):
        for i in range(g):
            a(f"v_add_f32_dpp v{V[i]}, v{V[i]}, v{V[i]} quad_perm:{m} row_mask:0xf bank_mask:0xf")
    return V[:g]


def maxchain(t, regs):
    regs = list(regs)
    if OPT["chk"] == 1:
        regs = regs[3::4]
    if len(regs) == 2:
        return [f"v_max_u32 v{t}, v{regs[0]}, v{regs[1]}"]
    out = [f"v_max3_u32 v{t}, v{regs[0]}, v{regs[1]}, v{regs[2]}"]
    regs = regs[3:]
    while len(regs) >= 2:
        out.append(f"v_max3_u32 v{t}, v{t}, v{regs[0]}, v{regs[1]}")
        regs = regs[2:]
    if regs:
        out.append(f"v_max_u32 v{t}, v{t}, v{regs[0]}")
    return out


RETRY = 0x10000


def ln(layer, wide):
    X = X1 if layer == 0 else X3
    H = H1 if layer == 0 else H3
    nf = 7 if wide else 4
    sI = sLN0 if wide else sLN
    RAW, XF, S, Q, W = 0, 28, 84, 92, 100
    vO, vPW, vPR, vAW, vAR, r, hr = 109, 110, 111, 112, 117, 114, 104
    vX, vS = 64, 68
    a(f"""s_mul_i32 s{sT0}, s{sWAVE}, 56
v_min_u32 v{r + 2}, 55, v{vLANE}""")
    a(f"v_add_u32 v{r + 2}, s{sT0}, v{r + 2}")
    a(f"v_and_b32 v118, {OPT['samp'] - 1}, v{vLANE}\nv_mul_u32_u24 v118, {56 // OPT['samp']}, v118\nv_add_u32 v118, s{sT0}, v118")
    ein, eout = 1 + 4 * layer, 2 + 4 * layer
    if wide:
        a(f"""s_mul_i32 s16, s{sI}, {BS}
s_lshl_b32 s{sT2}, s{sI}, 12""")
    else:
        a(f"""s_lshr_b32 s16, s{sI}, 1
s_mul_i32 s16, s16, {BS}
s_and_b32 s{sT0}, s{sI}, 1
s_lshl_b32 s{sT0}, s{sT0}, 5
s_add_u32 s16, s16, s{sT0}
s_lshl_b32 s{sT2}, s{sI}, 11""")
    a(f"""s_mul_i32 s{sT0}, s{sWAVE}, 7168
s_add_u32 s16, s16, s{sT0}
s_add_u32 s16, s16, {X}
s_add_u32 s17, s16, 4096
s_add_u32 s{sT2}, s{sT2}, {H}
s_mul_i32 s30, s{sWAVE}, 7""")
    if wide:
        for i in range(nf):
            a(f"""s_add_u32 s{sT0}, s30, {i}
s_lshr_b32 s{sT1}, s{sT0}, 2
s_lshl_b32 s{sT1}, s{sT1}, 18
s_add_u32 s{23 + i}, s{sT1}, s{sT2}
s_and_b32 s{sT1}, s{sT0}, 2
s_lshl_b32 s{sT1}, s{sT1}, 9
s_add_u32 s{23 + i}, s{23 + i}, s{sT1}
s_and_b32 s{sT1}, s{sT0}, 1
s_lshl_b32 s{sT1}, s{sT1}, 8
s_add_u32 s{23 + i}, s{23 + i}, s{sT1}""")
        a(f"""v_lshrrev_b32 v1, 2, v{vLANE}
v_lshlrev_b32 v{vO}, 4, v1
v_and_b32 v2, 1, v{vLANE}
v_lshl_add_u32 v{vO}, v2, 9, v{vO}
v_bfe_u32 v2, v{vLANE}, 1, 1
v_lshl_add_u32 v{vO}, v2, 11, v{vO}
v_and_b32 v1, 7, v1
v_and_b32 v2, 3, v{vLANE}
v_lshl_add_u32 v1, v2, 3, v1""")
    else:
        a(f"""v_lshrrev_b32 v1, 1, v{vLANE}
v_and_b32 v2, 1, v{vLANE}
v_lshlrev_b32 v{vX}, 6, v1
v_lshl_add_u32 v{vX}, v2, 4, v{vX}
v_mov_b32 v3, {OOB}
v_cmp_gt_u32 vcc, 32, v{vLANE}
v_cndmask_b32 v{vX + 1}, v3, v{vX}, vcc
s_lshl_b32 s30, s30, 4
s_mov_b32 s23, s{sT2}""")
        for i in range(nf):
            a(f"""v_add_u32 v4, s30, v1
v_lshrrev_b32 v5, 6, v4
v_lshlrev_b32 v5, 18, v5
v_bfe_u32 v6, v4, 5, 1
v_lshl_add_u32 v5, v6, 10, v5
v_and_b32 v6, 31, v4
v_lshl_add_u32 v5, v6, 4, v5
v_lshl_add_u32 v{vS + i}, v2, 9, v5""")
            if i < 3:
                a("s_add_u32 s30, s30, 32")
        a(f"""v_cndmask_b32 v{vS + 3}, v3, v{vS + 3}, vcc
v_bfe_u32 v1, v{vLANE}, 2, 3
v_lshl_add_u32 v1, v2, 3, v1""")
    a(f"""v_lshrrev_b32 v3, 5, v{vLANE}
v_lshl_add_u32 v1, v3, 5, v1
s_lshl_b32 s{sT1}, s{sWAVE}, 8
s_add_u32 s{sT1}, s{sT1}, {LNP}
v_lshl_add_u32 v{vPW}, v1, 2, s{sT1}
v_and_b32 v1, 31, v{vLANE}
v_lshlrev_b32 v{vPR}, 2, v1
v_add_u32 v{vPR}, {LNP}, v{vPR}
s_add_u32 s{sT1}, s{sT1}, 1024
v_lshl_add_u32 v{vAW}, v{vLANE}, 2, s{sT1}
v_lshl_add_u32 v{vAR}, v2, 5, s{sT1}
s_mov_b32 s18, 0
s_mov_b32 s19, -1""")
    prod = f"s_lshl_b32 s{sT0}, s{sI}, 6"
    if hinted(eout):
        hint_prep(eout + 10, prod, hr)
    wait_edge(ein, r, r + 2, 118)
    stamp(f"ln{layer} go")

    def loads():
        if not wide:
            return [f"buffer_load_dwordx4 {vr(RAW + 4 * i, 4)}, v{vX + (i == 3)}, {srd(S_WS)}, s{16 + i // 2} offen offset:{2048 * (i % 2)} sc1" for i in range(nf)]
        return [f"buffer_load_dwordx4 {vr(RAW + 4 * i, 4)}, v{vL16}, {srd(S_WS)}, s{16 + i // 4} offen offset:{1024 * (i % 4)} sc1" for i in range(nf)]
    for l in loads():
        a(l)
    if sentinel(ein):
        back, stub = label("lnb"), label("lns")
        chk = maxchain(113, range(RAW, RAW + 4 * nf)) + ["v_cmp_eq_u32 vcc, -1, v113"]
        a(f"s_mov_b32 s{sCNT}, 0")
        for l in chk:
            a(l)
        a(f"s_cbranch_vccnz {stub}")
        a(f"{back}:")
        STUBS.extend([f"{stub}:"] + loads() + ["s_waitcnt vmcnt(0)"] + chk + [f"s_add_u32 s{sCNT}, s{sCNT}, 1", f"s_cbranch_vccz {back}",
                      f"s_cmp_lt_u32 s{sCNT}, {RETRY}", f"s_cbranch_scc1 {stub}", f"s_branch {back}"])
    if hinted(eout) and OPT["h_ln"] == 0:
        a.wait_vm0()
        hint_put(hr)
    if OPT["stamps"] == 1:
        a.wait_vm0()
    count_out(113)
    stamp(f"ln{layer} data", 113)
    for i in range(nf):
        for k in range(4):
            unpack(XF + 8 * i + 2 * k, XF + 8 * i + 2 * k + 1, RAW + 4 * i + k)
        for k in range(4):
            x = vr(XF + 8 * i + 2 * k, 2)
            if i == 0:
                a(f"v_pk_mul_f32 {vr(Q + 2 * k, 2)}, {x}, {x}")
            else:
                a(f"v_pk_fma_f32 {vr(Q + 2 * k, 2)}, {x}, {x}, {vr(Q + 2 * k, 2)}")
                a(f"v_pk_add_f32 {vr(S + 2 * k, 2)}, {vr(XF + 2 * k, 2) if i == 1 else vr(S + 2 * k, 2)}, {x}")
    if hinted(eout) and OPT["h_ln"] == 1:
        hint_put(hr)
    for i in range(8):
        a(f"v_permlane32_swap_b32 v{S + i}, v{Q + i}")
    for i in range(0, 8, 2):
        a(f"v_pk_add_f32 {vr(S + i, 2)}, {vr(S + i, 2)}, {vr(Q + i, 2)}")
    for i in range(4):
        a(f"v_permlane16_swap_b32 v{S + i}, v{S + 4 + i}")
    for i in range(0, 4, 2):
        a(f"v_pk_add_f32 {vr(S + i, 2)}, {vr(S + i, 2)}, {vr(S + 4 + i, 2)}")
    for i in range(2):
        a(f"v_add_f32_dpp v{W + i}, v{S + i}, v{S + i} row_ror:8 row_mask:0xf bank_mask:0x3")
    for i in range(2):
        a(f"v_add_f32_dpp v{W + i}, v{S + 2 + i}, v{S + 2 + i} row_ror:8 row_mask:0xf bank_mask:0xc")
    a(f"v_add_f32_dpp v{S}, v{W}, v{W} row_shl:4 row_mask:0xf bank_mask:0x5")
    a(f"v_add_f32_dpp v{S}, v{W + 1}, v{W + 1} row_shr:4 row_mask:0xf bank_mask:0xa")
    if not wide:
        a(f"v_add_f32_dpp v{S}, v{S}, v{S} quad_perm:[2,3,0,1] row_mask:0xf bank_mask:0xf")
    a(f"ds_write_b32 v{vPW}, v{S}")
    a.barrier()
    if hinted(eout) and OPT["h_ln"] == 2:
        hint_put(hr)
    stamp(f"ln{layer} bar", 113)
    T = 0
    for w in range(4):
        a(f"ds_read2_b32 {vr(T + 2 * w, 2)}, v{vPR} offset0:{w * 64} offset1:{w * 64 + 32}")
    a(f"""v_pk_add_f32 {vr(T, 2)}, {vr(T, 2)}, {vr(T + 2, 2)}
v_pk_add_f32 {vr(T + 4, 2)}, {vr(T + 4, 2)}, {vr(T + 6, 2)}
v_pk_add_f32 {vr(T, 2)}, {vr(T, 2)}, {vr(T + 4, 2)}
v_mul_f32 v{T}, {f32(1 / 448)}, v{T}
v_mul_f32 v{T + 1}, {f32(1 / 448)}, v{T + 1}
v_fma_f32 v{T + 1}, -v{T}, v{T}, v{T + 1}
v_max_f32 v{T + 1}, 0, v{T + 1}
v_add_f32 v{T + 2}, {f32(1e-5)}, v{T + 1}
v_fmamk_f32 v{T + 2}, v{T + 2}, {f32(1e-5)}, v{T + 1}
v_rsq_f32 v{T + 2}, v{T + 2}
v_mul_f32 v{T + 3}, -v{T}, v{T + 2}
v_cndmask_b32 v{T + 2}, v{T + 2}, v{T + 3}, s[18:19]
ds_write_b32 v{vAW}, v{T + 2}""")
    AL, BE = S, Q
    done_hint = []
    a(f"""ds_read_b128 {vr(AL, 4)}, v{vAR}
ds_read_b128 {vr(BE, 4)}, v{vAR} offset:128
ds_read_b128 {vr(AL + 4, 4)}, v{vAR} offset:16
ds_read_b128 {vr(BE + 4, 4)}, v{vAR} offset:144""")
    for i in range(nf):
        for k in range(4):
            x = vr(XF + 8 * i + 2 * k, 2)
            a(f"v_pk_fma_f32 {x}, {x}, {vr(AL + 2 * k, 2)}, {vr(BE + 2 * k, 2)}")
        for k in range(4):
            a(f"v_cvt_pk_bf16_f32 v{RAW + 4 * i + k}, v{XF + 8 * i + 2 * k}, v{XF + 8 * i + 2 * k + 1}")
        a(f"buffer_store_dwordx4 {vr(RAW + 4 * i, 4)}, v{vO if wide else vS + i}, {srd(S_WS)}, s{23 + i if wide else 23} offen sc1", tag="pub")
        if hinted(eout) and OPT["h_ln"] - 3 == min(i, 6) * (4 if nf == 7 else 4) // (nf + 1):
            if not done_hint:
                hint_put(hr)
                done_hint.append(1)
    stamp(f"ln{layer} st", 113)
    if flagged(eout):
        flag_put(eout, prod, 100, "pub")


def gemm_addr():
    a(f"""s_and_b32 s{sT0}, s{sWAVE}, 1
s_lshl_b32 s{sT0}, s{sT0}, 10
v_add_u32 v{vA0}, s{sT0}, v{vL16}
v_xor_b32 v{vA1}, 0x400, v{vA0}""")


vCHK = 121


def gemm_loop(nks, ring, nring, wreg, swap, sent, lds_from=99, at=None):
    WF = 104
    nfr = 2 * nks

    def load(f):
        ks, db = f // 2, f % 2
        g = []
        if db == 0 and ks and ks % 2 == 0:
            g.append(Ins("s_add_u32 s13, s13, 4096"))
            if ks % 4 == 0:
                g += [Ins("s_cmp_eq_u32 s13, s28"), Ins("s_cmov_b32 s13, s27")]
        d = ring + 4 * (f % nring)
        g.append(Ins(f"buffer_load_dwordx4 {vr(d, 4)}, v{(vA0, vA1)[db]}, {srd(S_WS)}, s13 offen offset:{(ks % 2) * 2048} sc1"))
        return g

    def wread(ks):
        g = []
        slot = ks - lds_from
        for nb in range(2):
            for j in range(2):
                d = WF + 8 * (ks % 2) + 4 * nb + 2 * j
                g.append(Ins(f"ds_read_b64_tr_b16 {vr(d, 2)}, v{(vT2a, vT2b)[nb]} offset:{slot * 2048 + j * 1024}", res_r=[f"slot{slot}"]))
        return g

    def check(ks):
        regs = [ring + 4 * ((2 * ks + db) % nring) + k for db in range(2) for k in range(4)]
        chk = maxchain(vCHK, regs) + [f"v_cmp_eq_u32 vcc, -1, v{vCHK}"]
        back, stub = label("gb"), label("gs")
        STUBS.extend([f"{stub}:", f"s_add_u32 s3, s22, {ks * 2048}", "s_cmp_ge_u32 s3, s28", f"s_cselect_b32 s29, {nks * 2048}, 0", "s_sub_u32 s3, s3, s29"] +
                     [f"buffer_load_dwordx4 {vr(ring + 4 * ((2 * ks + db) % nring), 4)}, v{(vA0, vA1)[db]}, {srd(S_WS)}, s3 offen sc1" for db in range(2)] +
                     ["s_waitcnt vmcnt(0)"] + chk + [f"s_add_u32 s{sCNT}, s{sCNT}, 1", f"s_cbranch_vccz {back}",
                                                     f"s_cmp_lt_u32 s{sCNT}, {RETRY}", f"s_cbranch_scc1 {stub}", f"s_branch {back}"])
        return [Ins(x) for x in chk], [Ins(f"s_cbranch_vccnz {stub}"), Ins(f"{back}:")]

    if sent:
        a(f"s_mov_b32 s{sCNT}, 0")
    nxt = min(OPT["fill0"], nring)
    for f in range(nxt):
        a.put(load(f))
    if sent:
        c, b = check(0)
        a.put(c); a.put(b)
    for ks in range(nks):
        if at and ks in at:
            at[ks]()
        pend = wread(ks + 1) if lds_from <= ks + 1 < nks else []
        c, b = check(ks + 1) if (sent and ks + 1 < nks) else ([], [])
        order = [(0, 0), (0, 1), (1, 0), (1, 1)]
        if ks == nks - 1 and OPT["tailord"]:
            order = [(0, 1), (1, 0), (1, 1), (0, 0)]
        if True:
            for nb, db in order:
                acc = vr(16 * (2 * nb + db), 16)
                cc = acc if (ks or (nb | db) == 0) else "0"
                w = wreg(ks, nb) if ks < lds_from else vr(WF + 8 * (ks % 2) + 4 * nb, 4)
                x = vr(ring + 4 * ((2 * ks + db) % nring), 4)
                a(f"v_mfma_f32_32x32x16_bf16 {acc}, {x if swap else w}, {w if swap else x}, {cc}")
                if pend:
                    a.put([pend.pop(0)])
                free = nring + 2 * ks + (db + 1 if nb == 1 else 0)
                if nxt < min(nfr, free) and (nb == 1 or db == 1):
                    a.put(load(nxt))
                    nxt += 1
                if nb == 1 and db == 0:
                    a.put(c)
                if nb == 1 and db == 1:
                    a.put(b)


def gemm_rot(nks, srot):
    a(f"s_mov_b32 s27, s13\ns_add_u32 s28, s13, {nks * 2048}\ns_lshl_b32 s{sT0}, s{srot}, 13\ns_add_u32 s13, s13, s{sT0}\ns_mov_b32 s22, s13")


def gemm_reduce_prep():
    for rel in (1, 2, 3):
        a(f"s_xor_b32 s{23 + rel}, s{sWAVE}, {rel}\ns_mul_i32 s{23 + rel}, s{23 + rel}, 12288")
    a(f"s_mul_i32 s23, s{sWAVE}, 12288")


def gemm_reduce(at_barrier=None):
    for rel in range(4):
        a(f"v_add_u32 v{64 + rel}, s{23 + rel}, v{vL16}")
    for rel in (1, 2, 3):
        for q in range(4):
            a(f"ds_write_b128 v{64 + rel}, {vr(16 * rel + 4 * q, 4)} offset:{RB + (rel - 1) * 4096 + q * 1024}")
    if at_barrier:
        at_barrier[0]()
    a.barrier()
    if at_barrier:
        at_barrier[1]()
    for q in range(4):
        for k in range(3):
            a(f"ds_read_b128 {vr(16 + 16 * k + 4 * q, 4)}, v64 offset:{RB + k * 4096 + q * 1024}")
    for q in range(4):
        for h in range(2):
            r = 4 * q + 2 * h
            a(f"v_pk_add_f32 {vr(16 + r, 2)}, {vr(16 + r, 2)}, {vr(32 + r, 2)}")
            a(f"v_pk_add_f32 {vr(r, 2)}, {vr(r, 2)}, {vr(48 + r, 2)}")
        for h in range(2):
            r = 4 * q + 2 * h
            a(f"v_pk_add_f32 {vr(r, 2)}, {vr(r, 2)}, {vr(16 + r, 2)}")


def gemm1(layer, wide, pre=None, bg=()):
    H = H1 if layer == 0 else H3
    G = G1 if layer == 0 else G3
    gemm_addr()
    a(f"""s_lshr_b32 s{sT0}, s{sWAVE}, 1
s_lshl_b32 s{sT0}, s{sT0}, 6
s_lshl_b32 s{sT1}, s{sNT}, 7
s_add_u32 s{sT0}, s{sT0}, s{sT1}
v_lshrrev_b32 v16, 5, v{vLANE}
v_lshl_add_u32 v16, v16, 3, s{sT0}""")
    for q in range(4):
        a(f"global_load_dwordx2 {vr(20 + 2 * q, 2)}, v16, {sp(P_B1)} offset:{16 * q}")
    r = 32
    a(f"""s_lshl_b32 s{sT0}, s{sWAVE}, 5
v_and_b32 v{r + 2}, 31, v{vLANE}
v_add_u32 v{r + 2}, s{sT0}, v{r + 2}
v_and_b32 v{r + 3}, {31 & ~(32 // OPT['samp'] - 1)}, v{vLANE}
v_add_u32 v{r + 3}, s{sT0}, v{r + 3}
s_lshl_b32 s13, s{sDT1}, 7
s_add_u32 s13, s13, s{sT0}
s_lshl_b32 s13, s13, 11
s_add_u32 s13, s13, {H}""")
    if wide:
        a(f"v_lshrrev_b32 v{r + 2}, 1, v{r + 2}\nv_lshrrev_b32 v{r + 3}, 1, v{r + 3}")
    c0 = -2 * math.log2(math.e) * math.sqrt(2 / math.pi)
    a(f"""s_mov_b32 s{sCA}, {f32(c0 * 0.044715)}
s_mul_i32 s21, s{sDT1}, 112
s_lshl_b32 s{sT0}, s{sNT}, 2
s_add_u32 s21, s21, s{sT0}
s_and_b32 s{sT0}, s{sWAVE}, 2
s_add_u32 s21, s21, s{sT0}
s_lshl_b32 s21, s21, 11
s_add_u32 s21, s21, {G}""")
    gemm_reduce_prep()
    gemm_rot(32, sROT1)
    if pre:
        pre()
    for k in range(8):
        unpack(2 * k, 2 * k + 1, 20 + k)
    ein, eout = 2 + 4 * layer, 3 + 4 * layer
    wait_edge(ein, r, r + 2, r + 3)
    stamp(f"g1_{layer} go", 63)
    prod = f"s_mul_i32 s{sT0}, s{sDT1}, 28\ns_add_u32 s{sT0}, s{sT0}, s{sNT}\ns_lshl_b32 s{sT0}, s{sT0}, 6"
    early = hinted(eout) and OPT["h_g1"] < 0
    at = {32 + OPT["h_g1"]: lambda: (hint_prep(eout + 10, prod, 96), hint_put(96))} if early else None
    assert not early or OPT["h_g1"] >= -6
    gemm_loop(32, 64, 14, lambda ks, nb: f"a[{(ks * 2 + nb) * 4}:{(ks * 2 + nb) * 4 + 3}]", False, sentinel(ein), at=at)
    count_out(100)
    stamp(f"g1_{layer} loop", 100)
    a.begin()
    gemm_reduce((lambda: hint_prep(eout + 10, prod, 72), lambda: hint_put(72) if OPT["h_g1"] == 0 else None) if (hinted(eout) and not early) else None)
    if hinted(eout) and OPT["h_g1"] == 1:
        hint_put(72)
    a(f"v_mov_b32 v48, {f32(c0)}")
    for half in range(2):
        rs = range(8 * half, 8 * half + 8, 2)
        for r in rs:
            a(f"v_pk_mul_f32 {vr(16 + r, 2)}, {vr(r, 2)}, {vr(r, 2)}")
        for r in rs:
            a(f"v_pk_fma_f32 {vr(16 + r, 2)}, {vr(16 + r, 2)}, {sp(sCA)}, {vr(48, 2)} op_sel_hi:[1,0,0]")
        for r in rs:
            a(f"v_pk_mul_f32 {vr(16 + r, 2)}, {vr(16 + r, 2)}, {vr(r, 2)}")
        for r in rs:
            a(f"v_exp_f32 v{16 + r}, v{16 + r}\nv_exp_f32 v{17 + r}, v{17 + r}")
        for r in rs:
            a(f"v_pk_add_f32 {vr(16 + r, 2)}, {vr(16 + r, 2)}, 1.0 op_sel_hi:[1,0]")
        for r in rs:
            a(f"v_rcp_f32 v{16 + r}, v{16 + r}\nv_rcp_f32 v{17 + r}, v{17 + r}")
        for r in rs:
            a(f"v_pk_mul_f32 {vr(r, 2)}, {vr(r, 2)}, {vr(16 + r, 2)}")
        for r in rs:
            a(f"v_cvt_pk_bf16_f32 v{32 + r // 2}, v{r}, v{r + 1}")
        a(f"buffer_store_dwordx4 {vr(32 + 4 * half, 4)}, v{vA0}, {srd(S_WS)}, s21 offen offset:{2048 * half} sc1", tag="pub")
        if hinted(eout) and OPT["h_g1"] == 2 + half:
            hint_put(72)
    m, rest = merge(a.end(), list(bg), 0, OPT["ev_g1"])
    a.put(m)
    if not flagged(eout):
        a.barrier()
    else:
        flag_put(eout, prod, 40, "pub")
    for g in rest:
        a.put(g)


def gemm2(layer):
    G = G1 if layer == 0 else G3
    gemm_addr()
    a(f"""s_lshr_b32 s{sT0}, s{sWAVE}, 1
s_lshl_b32 s{sT0}, s{sT0}, 5
s_lshl_b32 s{sT1}, s{sST}, 6
s_add_u32 s50, s{sT0}, s{sT1}
s_and_b32 s{sT1}, s{sWAVE}, 1
s_lshl_b32 s{sT1}, s{sT1}, 5
s_lshl_b32 s{sT2}, s{sDT2}, 6
s_add_u32 s51, s{sT1}, s{sT2}
s_lshr_b32 s{sT2}, s50, 5
s_mul_i32 s{sT2}, s{sT2}, {BS}
s_lshl_b32 s{sT1}, s51, 6
s_add_u32 s20, s{sT2}, s{sT1}
s_add_u32 s30, s20, {X1 if layer == 0 else X3}
v_and_b32 v16, 31, v{vLANE}
v_lshrrev_b32 v17, 5, v{vLANE}
s_lshl_b32 s{sT0}, s50, 1""")
    r = 42

    def residual_issue():
        if layer == 0:
            for q in range(4):
                a(f"buffer_load_dwordx2 {vr(20 + 2 * q, 2)}, v18, {srd(S_WS)}, s30 offen offset:{16 * q} sc1")
        else:
            a(f"s_mov_b32 m0, s31")
            a(f"buffer_load_dwordx4 v{vL16}, {srd(S_WS)}, s30 offen sc1 lds", res_w=["x3"])
            a(f"buffer_load_dwordx4 v{vL16}, {srd(S_WS)}, s30 offen offset:1024 sc1 lds", res_w=["x3"])

    def residual_use():
        if layer == 0:
            for k in range(8):
                unpack(2 * k, 2 * k + 1, 20 + k)
            for k in range(8):
                unpack(40, 41, 28 + k)
                a(f"v_pk_add_f32 {vr(2 * k, 2)}, {vr(2 * k, 2)}, v[40:41]")
        else:
            for q in range(4):
                a(f"ds_read_b64_tr_b16 {vr(20 + 2 * q, 2)}, v31 offset:{512 * q}", res_r=["x3"])
            a("v_lshlrev_b32 v40, 16, v29")
            for k in range(8):
                unpack(2 * k, 2 * k + 1, 20 + k)
                a(f"v_pk_add_f32 {vr(2 * k, 2)}, {vr(2 * k, 2)}, v[40:41] op_sel_hi:[1,0]")

    if layer == 0:
        a(f"v_lshlrev_b32 v18, 6, v16\nv_lshl_add_u32 v18, v17, 3, v18\nv_lshl_add_u32 v19, v17, 3, s{sT0}")
        for q in range(4):
            a(f"global_load_dwordx2 {vr(28 + 2 * q, 2)}, v19, {sp(P_B2)} offset:{16 * q}")
    else:
        a(f"""v_and_b32 v19, 3, v{vLANE}
s_lshl_b32 s31, s{sWAVE}, 11
v_lshl_add_u32 v28, v16, 1, s{sT0}
global_load_ushort v29, v28, {sp(P_B2)}
v_bfe_u32 v31, v{vLANE}, 2, 2
v_lshl_add_u32 v31, v17, 2, v31
v_lshlrev_b32 v31, 6, v31
v_bfe_u32 v30, v{vLANE}, 4, 1
v_lshl_add_u32 v31, v30, 5, v31
v_lshl_add_u32 v31, v19, 3, v31
v_add_u32 v31, s31, v31""")
    a(f"""s_mul_i32 s{sT0}, s{sDT2}, 28
s_mul_i32 s{sT1}, s{sWAVE}, 7
s_add_u32 s{sT0}, s{sT0}, s{sT1}
v_min_u32 v{r + 2}, 6, v{vLANE}
v_add_u32 v{r + 2}, s{sT0}, v{r + 2}
v_mov_b32 v{r + 3}, v{r + 2}
s_lshl_b32 s13, s{sT0}, 13
s_add_u32 s13, s13, {G}""")
    if layer == 0:
        a(f"""s_add_u32 s21, s20, {X2}
s_lshl_b32 s19, s50, 1
s_add_u32 s19, s19, {ST1}""")
    else:
        a(f"s_mul_i32 s{sT0}, s50, 896\ns_lshl_b32 s{sT1}, s51, 1\ns_add_u32 s21, s{sT0}, s{sT1}")
    gemm_reduce_prep()
    gemm_rot(28, sROT2)
    lskip, ljoin = label("res"), label("resj")
    a(f"s_cmp_eq_u32 s{sR1}, 0")
    a(f"s_cbranch_scc1 {lskip}")
    residual_issue()
    residual_use()
    wait_edge(3 + 4 * layer, r, r + 2, r + 3)
    a(f"s_branch {ljoin}")
    a(f"{lskip}:")
    wait_edge(3 + 4 * layer, r, r + 2, r + 3)
    residual_issue()
    residual_use()
    a(f"{ljoin}:")
    stamp(f"g2_{layer} go", 63)
    gemm_loop(28, 64, 10, lambda ks, nb: vr(128 + (ks * 2 + nb) * 4, 4), layer == 1, sentinel(3 + 4 * layer), lds_from=16)
    count_out(100)
    stamp(f"g2_{layer} loop", 100)

    def addr():
        a(f"v_and_b32 v68, 31, v{vLANE}\nv_lshrrev_b32 v69, 5, v{vLANE}")
        if layer == 0:
            a(f"""v_and_b32 v70, 15, v{vLANE}
v_lshlrev_b32 v70, 6, v70
v_lshl_add_u32 v70, v69, 4, v70
v_bfe_u32 v71, v{vLANE}, 4, 1
v_lshl_add_u32 v70, v71, 5, v70
v_bfe_u32 v71, v{vLANE}, 2, 2
v_lshlrev_b32 v71, 4, v71
v_bfe_u32 v68, v{vLANE}, 4, 1
v_lshl_add_u32 v71, v68, 3, v71
v_and_b32 v68, 1, v{vLANE}
v_lshl_add_u32 v71, v68, 2, v71
v_bfe_u32 v68, v{vLANE}, 1, 1
v_lshl_add_u32 v68, v69, 1, v68
v_lshl_add_u32 v71, v68, 12, v71""")
        else:
            a(f"v_mul_u32_u24 v70, 896, v68\nv_lshl_add_u32 v70, v69, 4, v70")
    prod = f"s_lshl_b32 s{sT0}, s{sDT2}, 5\ns_add_u32 s{sT0}, s{sT0}, s{sST}\ns_lshl_b32 s{sT0}, s{sT0}, 6"
    hn = layer == 0 and hinted(4)

    def pre():
        addr()
        if hn:
            hint_prep(14, prod, 80)
    gemm_reduce((pre, lambda: hint_put(80) if (hn and OPT["h_g2"] == 0) else None))
    if hn and OPT["h_g2"] == 1:
        hint_put(80)
    PK = 72
    stamp(f"g2_{layer} red", 100)
    for half in range(2):
        b = PK + 4 * half
        for k in range(4):
            a(f"v_cvt_pk_bf16_f32 v{b + k}, v{8 * half + 2 * k}, v{8 * half + 2 * k + 1}")
        a(f"v_permlane32_swap_b32 v{b}, v{b + 2}")
        a(f"v_permlane32_swap_b32 v{b + 1}, v{b + 3}")
        if layer == 1:
            a(f"buffer_store_dwordx4 {vr(b, 4)}, v70, {srd(S_OUT)}, s21 offen offset:{32 * half} {('', 'nt', 'sc1')[OPT['ofl']]}")
    if layer == 1:
        return
    for k in range(4):
        a(f"v_permlane16_swap_b32 v{PK + k}, v{PK + 4 + k}")
    for half in range(2):
        a(f"buffer_store_dwordx4 {vr(PK + 4 * half, 4)}, v70, {srd(S_WS)}, s21 offen offset:{1024 * half} sc1", tag="pub")
    if hn and OPT["h_g2"] == 2:
        hint_put(80)
    for k in range(8):
        a(f"v_pk_mul_f32 {vr(20 + 2 * k, 2)}, {vr(2 * k, 2)}, {vr(2 * k, 2)}")
    res = reduce32(list(range(16)) + list(range(20, 36)), 16, list(range(40, 48)))
    assert res == [0, 1, 2, 3]
    a(f"""v_cndmask_b32 v0, v0, v1, {sp(sM1)}
v_cndmask_b32 v2, v2, v3, {sp(sM1)}
v_cndmask_b32 v0, v0, v2, {sp(sM2)}""")
    a(f"buffer_atomic_add_f32 v0, v71, {srd(S_WS)}, s19 offen sc1", tag="pub")
    if hn and OPT["h_g2"] == 3:
        hint_put(80)
    stamp("g2_0 atom", 100)
    flag_put(4, prod, 40, "pub")
    stamp("g2_0 flag", 100)


def skip_unless(role):
    l = label("skip")
    a(f"s_cmp_eq_u32 s{role}, 0")
    a(f"s_cbranch_scc1 {l}")
    return l


def dmas(n0, n1):
    return [w_dma(n, h) for n in range(n0, n1) for h in range(2)]


def tr_dma(n0, n1):
    g = []
    for n in range(n0, n1):
        g.append(w_tr(n))
        if n > n0:
            g += dmas(n + 11, n + 12)
    g += dmas(n1 + 11, n1 + 12)
    return g


def wseq():
    nB = OPT["wB"] // 2
    assert 36 <= nB <= 60
    g = dmas(0, 12) + tr_dma(0, nB - 12)
    lastT = 48 if (nB >= 48 and OPT["wT"]) else 36
    g += [w_tr(n) for n in range(nB - 12, lastT)]
    g.append([])
    d = nB
    for n in range(max(lastT, nB - 12), 49):
        while d < min(n + 11, 60) or (n == 48 and d < 60):
            g += dmas(d, d + 1)
            d += 1
        if n < 48:
            g.append(w_tr(n))
    return g


def wcut(n_dma):
    k = 0
    for p, g in enumerate(wseq()):
        if k == n_dma:
            return p
        k += any(i.kind == "dma" for i in g)
    return len(wseq())


def put_all(gs):
    for g in gs:
        a.put(g)


def build():
    cA, cP, cL, cB = wcut(OPT["wA"]), wcut(OPT["wP"]), wcut(OPT["wL"]), wseq().index([])
    cK = wcut(OPT["wK"])
    prologue()
    laux, ljoin = label("aux"), label("join")
    a(f"s_cmp_eq_u32 s{sRC}, 0")
    a(f"s_cbranch_scc1 {laux}")
    xt_loads()
    kgen_table_load()
    code_warm(1)
    w_setup()
    put_all(wseq()[:cA])
    conv_setup(0)
    stamp("start", 2)

    xt_poll_addr(63, 2)
    xt_work()

    def h_flag():
        nonce_take()
        flag_put(0, sPAIR, 104, "st0")
        stamp("flag", 0)
        a(f"global_load_dwordx4 {vr(TAB, 4)}, v75, {sp(sTAB)}")
        a(f"global_load_dwordx4 {vr(TAB + 4, 4)}, v75, {sp(sTAB)} offset:16")
        a(f"global_load_dwordx2 v[0:1], v75, {sp(sTAB)} offset:32")

    hooks = {}
    for pos, fn in ((OPT["h_flag"], h_flag), (OPT["h_w"], lambda: KBG.extend(wseq()[cA:cK])), (OPT["h_poll"], lambda: poll_issue(0, 64, 63))):
        hooks.setdefault(pos, []).append(fn)
    assert OPT["h_flag"] <= OPT["h_w"] and OPT["h_poll"] >= 6
    kgen({k: (lambda fs=fs: [f() for f in fs]) for k, fs in hooks.items()})
    dump_lds(1)
    stamp("kgen", 21)

    def mid():
        poll_take(64, 63)
        stamp("e1 seen", 0)
        conv_loads()
        put_all(wseq()[cK:cP])
    wr = kexpand(mid)
    if OPT["mixpro"]:
        mv = [i for i in wr if i.kind != "dsw"]
        st = [i for i in wr if i.kind == "dsw"]
        pro = a.capture(conv_pro, 0)
        k = next(n for n, i in enumerate(pro) if i.defs & {f"v{r}" for r in range(0, 22)})
        a.put(mv)
        a.put(st[2:4])
        head, rest = merge(pro[:k], [[i] for i in st[4:6] + st[:2] + st[6:]], 0, 14)
        a.put(head)
        early = [g for g in rest if g[0].uses & {f"v{r}" for r in range(0, 22)}]
        put_all(early)
        rest = [g for g in rest if g not in early]
        k2 = next(n for n, i in enumerate(pro) if i.kind == "dsw")
        mid2, rest = merge(pro[k:k2], rest, 0, 30)
        a.put(mid2)
        put_all(rest)
        a.put(pro[k2:])
        stamp("expand", 111)
    else:
        a.put(wr)
        stamp("expand")
        conv_pro(0)
    if sentinel(1):
        a(f"v_min_u32 v{cvP + 2}, 27, v{vLANE}")
        poll_issue(8, cvP)
    a.barrier()
    dump_lds(2)
    stamp("conv0 go", 111)
    put_all(conv_main(0, wseq()[cP:cL], OPT["st_conv"], OPT["ev_conv"]))
    stamp("conv0 done")
    a(f"s_branch {ljoin}")
    a(f"{laux}:")
    aux_loads()
    kgen_table_addr()
    code_warm(1)
    w_setup()
    aux_work()
    stamp("aux e1")
    if armed(0):
        assert OPT["map18"] == 1
        lnf = label("nf")
        a(f"s_cmp_lg_u32 s{sR1}, 0\ns_cbranch_scc1 {lnf}")
        a(f"s_sub_u32 s16, s{sAUX}, 4\ns_cselect_b32 s16, s{sAUX}, s16")
        if sentinel(1):
            fill(X1, -(-15 * 32 // 28), 80, 16, 28 * 4096, "fill")
            flag_put(8, 16, 72, "fill")
        if sentinel(2) or sentinel(3):
            fill(H1 if sentinel(2) else G1, -(-(14 * sentinel(2) + 13 * sentinel(3)) * 32 // 28), 80, 16, 28 * 4096, "fill")
            flag_put(18, 16, 72, "fill")
        a(f"{lnf}:")
    stamp("aux fill")
    cX = min(wcut(72), cB)
    put_all(wseq()[:cX])
    if sentinel(1):
        a(f"v_min_u32 v62, 27, v{vLANE}")
        poll_issue(8, 60)
        poll_take(60)
    a.wait_vm0()
    stamp("aux w")
    a(f"{ljoin}:")
    if sentinel(2) or sentinel(3):
        a(f"v_min_u32 v62, 27, v{vLANE}")
        poll_issue(18, 60)
        poll_take(60)
    for layer in range(2):
        if layer == 1:
            l = skip_unless(sRC)
            conv_setup(1)
            conv_poll1()
            stamp("conv1 ready")
            if OPT["kc_in"] and not hinted(4):
                a.wait_tag("flag")
                poll_issue(4, cvP)
                kcopies()
                poll_take(cvP)
            else:
                kcopies()
                wait_edge(4, cvP, cvP + 2, cvP + 3)
            stamp("conv1 poll")
            conv_loads()
            conv_pro(1)
            if armed(1):
                a(f"v_and_b32 v{cvP + 2}, 31, v{vLANE}")
                poll_issue(9, cvP)
            a.barrier()
            dump_lds(3)
            stamp("conv1 go", 111)
            conv_main(1)
            stamp("conv1 done")
            if armed(1):
                lj = label("cvj")
                a(f"s_branch {lj}")
                a(f"{l}:")
                a(f"v_and_b32 v62, 31, v{vLANE}")
                poll_issue(9, 60)
                poll_take(60)
                a(f"{lj}:")
            else:
                a(f"{l}:")
        wide = OPT["ln1w"] if layer else OPT["ln0w"]
        l = skip_unless(sRL0 if wide else sRL)
        ln(layer, wide)
        stamp(f"ln{layer} done")
        a(f"{l}:")
        if layer == 0:
            l = skip_unless(sRC)
            put_all(wseq()[cL:cX])
            a(f"{l}:")
            put_all(wseq()[cX:cB])
            stamp("w B")
            tail = wseq()[cB:]
            assert not any(i.kind == "dsr" and "a[" in i.text for g in tail for i in g)
            lelse, lj = label("ng1"), label("g1j")
            a(f"s_cmp_eq_u32 s{sR1}, 0")
            a(f"s_cbranch_scc1 {lelse}")
            gemm1(0, wide, None, tail)
            nonce_retire()
            stamp("g1_0 done")
            a(f"s_branch {lj}")
            a(f"{lelse}:")
            put_all(wseq()[cB:])
            a(f"{lj}:")
        else:
            l = skip_unless(sR1)
            gemm1(1, wide)
            stamp("g1_1 done")
            a(f"{l}:")
        l = skip_unless(sR2)
        gemm2(layer)
        if layer == 0 and armed(1):
            lj = label("g2j")
            a(f"s_branch {lj}")
            a(f"{l}:")
            if OPT["map18"]:
                a(f"s_lshl_b32 s16, s{sX}, 2\ns_add_u32 s16, s16, s{sJ}")
            else:
                a(f"s_lshr_b32 s16, s{sX}, 1\ns_lshl_b32 s16, s16, 3\ns_add_u32 s16, s16, s{sJ}")
            fill(X3, 42, 72, 16, CH)
            flag_put(9, 16, 8, "st0")
            a(f"{lj}:")
        else:
            a(f"{l}:")
        stamp("g2_0 done" if layer == 0 else "end")
    if OPT["stamps"] and OPT["dbgwg"] < 0:
        l = label("ls")
        a(f"s_cmp_lg_u32 s{sWAVE}, 0\ns_cbranch_scc1 {l}\ns_waitcnt vmcnt(0)\ns_memrealtime {sp(sSTAMP)}\ns_waitcnt lgkmcnt(0)")
        a(f"s_lshl_b32 s3, s2, 8\ns_add_u32 s3, s3, {STAMPS + 248}\nv_mov_b32 v0, s101\nv_mov_b32 v1, s{sSTAMP}\ns_mov_b64 exec, 1")
        a(f"buffer_store_dwordx2 v[0:1], off, {srd(S_WS)}, s3")
        a(f"{l}:")
    if OPT["fixdur"]:
        a(f"s_waitcnt vmcnt(0) lgkmcnt(0)\nL_fix:\ns_memrealtime s[28:29]\ns_waitcnt lgkmcnt(0)\ns_sub_u32 s28, s28, s101\ns_cmp_lt_u32 s28, {OPT['fixdur']}\ns_cbranch_scc1 L_fix")
    a("s_endpgm")


def bf16_round_int(l):
    b = struct.unpack("<I", struct.pack("<f", float(l)))[0]
    b = (b + 0x7FFF + ((b >> 16) & 1)) & 0xFFFF0000
    return int(struct.unpack("<f", struct.pack("<I", b))[0])


def ktab():
    vals = []
    for c in range(2):
        for x in range(2048):
            lr = bf16_round_int(2047 - x)
            aa, rem = lr >> 7, lr & 127
            j, e = rem >> 3, rem & 7
            if aa < 2:
                rho = 8 * aa + e
            elif aa < 4:
                rho = 4 * aa + 8 + (e >> 1)
            elif aa < 8:
                rho = 16 + 2 * aa + (e >> 2)
            else:
                rho = 24 + aa
            vals.append((rho >> 2) * 256 + j * 16 + (rho & 3) * 4 + c * 2 * GST)
        vals += [3072 + c * 2 * GST] * 16
    lines = []
    for i in range(0, len(vals), 16):
        lines.append("    .short " + ", ".join(str(v) for v in vals[i:i + 16]))
    return "\n".join(lines)


def main(path):
    build()
    ins = a.finish()
    ref = open(f"cdna_kernels/{NAME}.s.ref").read().split("\n")
    head = [l for l in ref if l.startswith(";") and "@launch" not in l and not l.startswith("; Override") and not l.startswith("; grid=ceil")]
    k = NAME + "_kernel"
    s = "\n".join(head) + f"\n; @launch grid=(256,1,1) block=(256,1,1) lds={LDS_BYTES}\n"
    s += f""".amdgcn_target "amdgcn-amd-amdhsa--gfx950"
.text
.globl {k}
.p2align 8
.type {k},@function
{k}:
L_entry:
"""
    s += Prog.render(ins)
    s += "".join((l if l.endswith(":") else "    " + l) + "\n" for l in STUBS)
    s += f""".p2align 6
.type ktab,@object
ktab:
{ktab()}
.size ktab, 8256
.section .rodata,"a"
.p2align 6
.amdhsa_kernel {k}
  .amdhsa_next_free_vgpr 512
  .amdhsa_next_free_sgpr 102
  .amdhsa_accum_offset 256
  .amdhsa_group_segment_fixed_size 0
  .amdhsa_kernarg_size 136
  .amdhsa_user_sgpr_count 2
  .amdhsa_user_sgpr_kernarg_segment_ptr 1
  .amdhsa_system_sgpr_workgroup_id_x 1
  .amdhsa_float_denorm_mode_32 3
.end_amdhsa_kernel
"""
    open(path, "w").write(s)
    n = sum(1 for i in ins if i.kind not in ("label", "comment"))
    open(path + ".names", "w").write("\n".join(STAMP_NAMES))
    print("instructions:", n, "nops:", sum(1 for i in ins if i.kind == "nop"), "waits:", sum(1 for i in ins if i.kind == "wait"))


if __name__ == "__main__":
    path = sys.argv[1]
    for kv in sys.argv[2:]:
        k, v = kv.split("=")
        OPT[k] = v if k in ('em', 'probe') else int(v)
    main(path)
```

```python
import sys, math, struct
from asmlib import *

NAME = "interleave_layers__ssm_conv_s4__mixer_token_mlp__prompt"
OPT = dict(stamps=False, stop=99, upfront=True, dump=0, dbgwg=-1, fixdur=0, em='FSSFSSS', warm=1, h_flag=2, h_w=2, h_poll=9, h_ln=2, h_cv=0, h_g1=0, h_g2=0, rot=1, wA=0, wK=8, wP=8, wL=16, wB=120, wT=1, lag=2, gap=3, st_conv=100, ev_conv=150, ev_g1=100000, fill0=14, ln1w=0, ln0w=1, chk=1, samp=8, map18=1, ofl=0, tailord=0, cv=1, clk=0, ev_kg=150, mixpro=1, now=0, probe='', kc_in=0, w2t=0, g7=1)
DBG_SEL = ['start', 'kgen', 'conv0 go', 'ln0 go', 'g1_0 go', 'g1_0 loop', 'g2_0 go', 'g2_0 loop', 'conv1 poll', 'ln1 go', 'g1_1 go', 'g2_1 go', 'end']
STAMP_NAMES = []

EPOCH = 0
ST0 = 0x1000
ST1 = 0x8000
STAMPS = 0x20000
FL = 0x100000
BS = 448 * 64 + 128
CH = 0x20000
X1 = 0x400000
H1 = X1 + 15 * CH
G1 = H1 + 14 * CH
X3 = G1 + 13 * CH
H3 = X3 + 15 * CH
G3 = H3 + 14 * CH
X2 = G3 + 13 * CH
X0 = X2 + 15 * CH
FILL1, FILL3 = 6, 36
WS_BYTES = 268435456
OOB = 0x40000000

KST = 4160
KSLOT = {0: [0, 5, 2, 3], 1: [1, 6, 7, 4]}
UB = 8 * KST
UPAD = 1024
UST = 4096 + UPAD
ZB = UB + 2 * UST
EX = 2 * KST
RB = 2 * KST
GST = 15616
GROW = 272
TOFF = 12288
LNP = 57472
W2L = 65536
LDS_BYTES = 163840

sWAVE, sX, sJ, sPAIR, sDT1, sNT, sDT2, sST, sLN = 4, 5, 6, 7, 8, 9, 10, 11, 12
sNONCE = 14
P_U, P_ARE, P_AIM, P_BRE, P_BIM, P_CRE, P_CIM, P_LDT = 16, 18, 20, 22, 24, 26, 28, 30
P_DSK, P_W1, P_B1, P_W2, P_B2, P_OUT, P_DBG, P_WS = 32, 36, 38, 40, 42, 44, 46, 48
S_WS, S_W1, S_W2, S_X0, S_OUT = 52, 56, 60, 64, 68
sD0, sD1 = 72, 74
sLDT = 76
sEP = 78
sWOFF, sT0, sT1, sT2, sT3, sCNT = 80, 81, 82, 83, 84, 85
sRC, sR1, sR2, sRL = 86, 87, 88, 89
sM1, sM2 = 90, 92
sSTAMP = 94
sTAB = 96
sLN0, sRL0 = 77, 73
sCA, sCB = 34, 100

vLANE, vL16, vT2a, vT2b, vT1a, vT1b, vD1, vD2 = 127, 126, 125, 124, 123, 122, 121, 120
vA0, vA1 = 123, 122


def srd(n):
    return f"s[{n}:{n + 3}]"


def sp(n):
    return f"s[{n}:{n + 1}]"


def vr(n, k):
    return f"v[{n}:{n + k - 1}]" if k > 1 else f"v{n}"


def f32(x):
    return "0x%08x" % struct.unpack("<I", struct.pack("<f", x))[0]


a = Prog()
_lab = [0]


def label(p):
    _lab[0] += 1
    return f"L_{p}_{_lab[0]}"


_stamp = [0]


def stamp(name, r=1):
    k = _stamp[0]
    _stamp[0] += 1
    STAMP_NAMES.append(name)
    a("; MARK after " + name)
    if OPT["probe"] == name.replace(" ", "_"):
        a(f"s_memrealtime {sp(sSTAMP)}\ns_waitcnt lgkmcnt(0)\ns_mov_b32 s101, s{sSTAMP}")
    if OPT["stamps"] != 1:
        return
    l = label("st")
    if OPT["dbgwg"] >= 0:
        if name not in DBG_SEL:
            return
        a(f"s_lshl_b32 s3, s{sWAVE}, 8\ns_add_u32 s3, s3, s2\ns_cmp_lg_u32 s3, {OPT['dbgwg']}\ns_cbranch_scc1 {l}")
        a(f"s_memrealtime {sp(sSTAMP)}")
        a("s_waitcnt lgkmcnt(0)")
        a(f"s_mov_b64 exec, 1\nv_mov_b32 v{r}, s{sSTAMP}\ns_mov_b32 s{sSTAMP}, s{P_DBG}\ns_mov_b32 s{sSTAMP + 1}, s{P_DBG + 1}\ns_mov_b32 s{sSTAMP + 2}, 256\ns_mov_b32 s{sSTAMP + 3}, 0x20000".replace(f"s{sSTAMP}, s{P_DBG}", f"s64, s{P_DBG}").replace(f"s{sSTAMP + 1}, s{P_DBG + 1}", f"s65, s{P_DBG + 1}").replace(f"s{sSTAMP + 2}, 256", "s66, 256").replace(f"s{sSTAMP + 3}, 0x20000", "s67, 0x20000"))
        a(f"buffer_store_dword v{r}, off, s[64:67], 0 offset:{12 + 4 * DBG_SEL.index(name)} sc1", optional=True)
        a("s_mov_b64 exec, -1")
        a(f"{l}:")
        return
    a(f"s_cmp_lg_u32 s{sWAVE}, 0")
    a(f"s_cbranch_scc1 {l}")
    a(f"{'s_memtime' if OPT['clk'] else 's_memrealtime'} {sp(sSTAMP)}")
    a("s_waitcnt lgkmcnt(0)")
    a(f"s_lshl_b32 s3, s2, 8")
    a(f"s_add_u32 s3, s3, {STAMPS + 4 * k}")
    a(f"v_mov_b32 v{r}, s{sSTAMP}")
    a("s_mov_b64 exec, 1")
    a(f"buffer_store_dword v{r}, off, {srd(S_WS)}, s3", optional=True)
    a("s_mov_b64 exec, -1")
    a(f"{l}:")


_cnt = [0]


def count_out(r):
    if OPT["stamps"] != 1:
        return
    k = _cnt[0]
    _cnt[0] += 1
    a(f"s_lshl_b32 s3, s2, 2\ns_add_u32 s3, s3, s{sWAVE}\ns_lshl_b32 s3, s3, 5\ns_add_u32 s3, s3, {STAMPS + 0x10000 + 4 * k}")
    a(f"v_mov_b32 v{r}, s{sCNT}\ns_mov_b64 exec, 1")
    a(f"buffer_store_dword v{r}, off, {srd(S_WS)}, s3")
    a("s_mov_b64 exec, -1")


DUMP = 0x2000000


def dump_lds(point, r=96):
    if OPT["dump"] != point:
        return
    a.barrier()
    a(f"s_lshl_b32 s3, s{sWAVE}, 10\nv_add_u32 v{r + 4}, s3, v{vL16}\ns_lshl_b32 s3, s2, 16\ns_add_u32 s3, s3, {DUMP}")
    for i in range(16):
        a(f"ds_read_b128 {vr(r, 4)}, v{r + 4} offset:{i * 4096}")
        a(f"buffer_store_dwordx4 {vr(r, 4)}, v{r + 4}, {srd(S_WS)}, s3 offen")
        a("s_add_u32 s3, s3, 4096")
        a.wait_vm0()
    a.barrier()


def cmul(d, x, y):
    return [f"v_pk_mul_f32 {vr(d, 2)}, {vr(x, 2)}, {vr(y, 2)} op_sel:[1,1] op_sel_hi:[1,0] neg_lo:[0,1]",
            f"v_pk_fma_f32 {vr(d, 2)}, {vr(x, 2)}, {vr(y, 2)}, {vr(d, 2)} op_sel_hi:[0,1,1]"]


def cmul2(p, q=None):
    x = cmul(*p)
    if q is None:
        a(x[0]); a(x[1])
        return
    y = cmul(*q)
    a(x[0]); a(y[0]); a(x[1]); a(y[1])


def unpack(dlo, dhi, s):
    a(f"v_lshlrev_b32 v{dlo}, 16, v{s}")
    a(f"v_and_b32 v{dhi}, 0xffff0000, v{s}")


def prologue():
    a("s_cmp_lt_u32 s2, 256")
    a("s_cbranch_scc1 L_start")
    a("s_endpgm")
    a("L_start:")
    if OPT["fixdur"] or OPT["stamps"]:
        a("s_memrealtime s[50:51]")
    a("s_load_dwordx16 s[16:31], s[0:1], 0")
    a("s_load_dwordx16 s[32:47], s[0:1], 64")
    a("s_load_dwordx2 s[48:49], s[0:1], 128")
    a(f"v_lshrrev_b32 v1, 6, v0")
    a(f"v_and_b32 v{vLANE}, 63, v0")
    a(f"v_readfirstlane_b32 s{sWAVE}, v1")
    a(f"v_lshlrev_b32 v{vL16}, 4, v{vLANE}")
    a(f"""s_and_b32 s{sX}, s2, 7
s_lshr_b32 s{sJ}, s2, 3
s_add_u32 s{sJ}, s{sJ}, 28
s_and_b32 s{sJ}, s{sJ}, 31
""")
    a(f"""s_lshr_b32 s{sT0}, s{sX}, 2
s_mul_i32 s{sPAIR}, s{sX}, 28
s_sub_u32 s{sRC}, s{sJ}, s{sT0}
s_add_u32 s{sPAIR}, s{sPAIR}, s{sRC}
s_cmp_lt_u32 s{sRC}, 28
s_cselect_b32 s{sRC}, 1, 0
s_mul_i32 s{sT2}, s{sJ}, 37
s_lshr_b32 s{sT2}, s{sT2}, 8
s_mul_i32 s{sT3}, s{sT2}, 7
s_sub_u32 s{sDT1}, s{sJ}, s{sT3}
s_lshl_b32 s{sNT}, s{sT2}, 3
s_add_u32 s{sNT}, s{sNT}, s{sX}
s_sub_u32 s{sT1}, s{sJ}, 4
s_cselect_b32 s{sR2}, 0, 1
s_and_b32 s{sT1}, s{sT1}, 31
s_mul_i32 s{sT2}, s{sT1}, 37
s_lshr_b32 s{sT2}, s{sT2}, 8
s_mul_i32 s{sT3}, s{sT2}, 7
s_sub_u32 s{sDT2}, s{sT1}, s{sT3}
s_lshl_b32 s{sST}, s{sX}, 2
s_add_u32 s{sST}, s{sST}, s{sT2}
s_cmp_eq_u32 s{sJ}, 0
s_cselect_b32 s{sT1}, 32, s{sJ}
s_mul_i32 s{sT2}, s{sX}, 12
s_add_u32 s{sT2}, s{sT2}, s{sT1}
s_sub_u32 s{sT2}, s{sT2}, 53
s_lshl_b32 s{sT3}, s{sX}, 2
s_add_u32 s{sT3}, s{sT3}, s{sJ}
s_sub_u32 s{sT3}, s{sT3}, 28
s_cmp_lg_u32 s{sT0}, 0
s_cselect_b32 s{sT1}, s{sT1}, s{sJ}
s_cselect_b32 s{sLN0}, s{sT2}, s{sT3}
s_cselect_b32 s{sRL0}, 21, 28
s_cmp_ge_u32 s{sT1}, s{sRL0}
s_cselect_b32 s{sRL0}, 1, 0""" if OPT["map18"] == 1 else f"""s_and_b32 s{sT0}, s{sX}, 1
s_lshr_b32 s{sT1}, s{sX}, 1
s_mul_i32 s{sPAIR}, s{sX}, 28
s_sub_u32 s{sRC}, s{sJ}, s{sT0}
s_add_u32 s{sPAIR}, s{sPAIR}, s{sRC}
s_cmp_lt_u32 s{sRC}, 28
s_cselect_b32 s{sRC}, 1, 0
s_mul_i32 s{sT2}, s{sJ}, 37
s_lshr_b32 s{sT2}, s{sT2}, 8
s_mul_i32 s{sT3}, s{sT2}, 7
s_sub_u32 s{sT3}, s{sJ}, s{sT3}
s_mul_i32 s{sNT}, s{sT1}, 7
s_add_u32 s{sNT}, s{sNT}, s{sT3}
s_lshl_b32 s{sT3}, s{sT0}, 2
s_add_u32 s{sDT1}, s{sT2}, s{sT3}
s_lshl_b32 s{sST}, s{sT0}, 3
s_sub_u32 s{sST}, s{sJ}, s{sST}
s_cselect_b32 s{sR2}, 0, 1
s_lshr_b32 s{sDT2}, s{sST}, 3
s_and_b32 s{sDT2}, s{sDT2}, 3
s_add_u32 s{sDT2}, s{sDT2}, s{sT3}
s_and_b32 s{sST}, s{sST}, 7
s_lshl_b32 s{sLN0}, s{sT1}, 4
s_lshl_b32 s{sT1}, s{sT1}, 3
s_add_u32 s{sST}, s{sST}, s{sT1}
s_cmp_eq_u32 s{sJ}, 0
s_cselect_b32 s{sT1}, 32, s{sJ}
s_mul_i32 s{sT2}, s{sT0}, 11
s_add_u32 s{sT2}, s{sT2}, s{sT1}
s_cmp_lg_u32 s{sT0}, 0
s_cselect_b32 s{sT1}, s{sT1}, s{sJ}
s_cselect_b32 s{sT2}, s{sT2}, s{sJ}
s_cselect_b32 s{sRL0}, 21, 28
s_cmp_ge_u32 s{sT1}, s{sRL0}
s_cselect_b32 s{sRL0}, 1, 0
s_add_u32 s{sLN0}, s{sLN0}, s{sT2}
s_sub_u32 s{sLN0}, s{sLN0}, 28""")
    if OPT["map18"] == 2:
        a(f"""s_sub_u32 s{sT1}, s{sJ}, 4
s_cselect_b32 s{sR2}, 0, 1
s_and_b32 s{sT1}, s{sT1}, 31
s_mul_i32 s{sT2}, s{sT1}, 37
s_lshr_b32 s{sT2}, s{sT2}, 8
s_mul_i32 s{sT3}, s{sT2}, 7
s_sub_u32 s{sDT2}, s{sT1}, s{sT3}
s_lshl_b32 s{sST}, s{sX}, 2
s_add_u32 s{sST}, s{sST}, s{sT2}""")
    a(f"""s_lshl_b32 s{sLN}, s{sX}, 4
s_add_u32 s{sLN}, s{sLN}, s{sJ}
s_sub_u32 s{sLN}, s{sLN}, 16
s_mul_i32 s{sT2}, s{sT0}, 7
s_sub_u32 s{sT2}, 28, s{sT2}
s_cmp_lt_u32 s{sJ}, s{sT2}
s_cselect_b32 s{sR1}, 1, 0
s_cmp_ge_u32 s{sJ}, 16
s_cselect_b32 s{sRL}, 1, 0
s_min_u32 s{sPAIR}, s{sPAIR}, 223
s_mov_b32 s{sM1}, 0xaaaaaaaa
s_mov_b32 s{sM1 + 1}, 0xaaaaaaaa
s_mov_b32 s{sM2}, 0xcccccccc
s_mov_b32 s{sM2 + 1}, 0xcccccccc""")
    a("s_waitcnt lgkmcnt(0)")
    if OPT["fixdur"] or OPT["stamps"]:
        a("s_mov_b32 s101, s50")
    a(f"""s_lshl_b32 s{sT0}, s{sPAIR}, 2
s_load_dword s{sLDT}, {sp(P_LDT)}, s{sT0}
s_load_dword s{sD0}, {sp(P_DSK)}, s{sT0}
s_load_dwordx2 {sp(sNONCE)}, {sp(P_WS)}, {EPOCH}""")
    kgen_loads()
    for n, p, size in ((S_X0, P_U, 1835008), (S_WS, P_WS, WS_BYTES), (S_OUT, P_OUT, 1835008)):
        a(f"s_mov_b32 s{n}, s{p}\ns_mov_b32 s{n + 1}, s{p + 1}\ns_mov_b32 s{n + 2}, {size}\ns_mov_b32 s{n + 3}, 0x20000")
    for n, p, role in ((S_W1, P_W1, sR1), (S_W2, P_W2, sR2)):
        a(f"s_mov_b32 s{n}, s{p}\ns_mov_b32 s{n + 1}, s{p + 1}\ns_cmp_lg_u32 s{role}, 0\ns_cselect_b32 s{n + 2}, {0 if OPT['now'] & (1 if n == S_W1 else 2) else 7340032}, 0\ns_mov_b32 s{n + 3}, 0x20000")


sAUX = 75


def code_warm(r):
    if not OPT["warm"]:
        return
    a(f"""s_lshl_b32 s{sT0}, s{sJ}, 2
s_add_u32 s{sT0}, s{sT0}, s{sWAVE}
s_mul_i32 s{sT0}, s{sT0}, 640
v_lshl_add_u32 v{r}, v{vLANE}, 7, s{sT0}
s_mov_b32 s{sT1}, ktab-L_entry+8192
v_min_u32 v{r}, s{sT1}, v{r}
s_sub_u32 s28, s{sTAB}, ktab-L_entry
s_subb_u32 s29, s{sTAB + 1}, 0
s_mov_b64 exec, 31
global_load_dword v{r}, v{r}, s[28:29]
s_mov_b64 exec, -1""")


def fill(base, n, r, sidx, stride, tag="st0"):
    a(f"""s_lshl_b32 s{sT0}, s{sidx}, 12
s_lshl_b32 s{sT1}, s{sWAVE}, 10
s_add_u32 s{sT0}, s{sT0}, s{sT1}
s_add_u32 s{sT0}, s{sT0}, {base}""")
    for k in range(4):
        a(f"v_mov_b32 v{r + k}, -1")
    for k in range(n):
        a(f"buffer_store_dwordx4 {vr(r, 4)}, v{vL16}, {srd(S_WS)}, s{sT0} offen sc1", tag=tag)
        if k + 1 < n:
            a(f"s_add_u32 s{sT0}, s{sT0}, {stride}")


def aux_loads():
    a(f"""s_and_b32 s{sAUX}, s{sJ}, 3
s_lshl_b32 s{sAUX}, s{sAUX}, 3
s_add_u32 s{sAUX}, s{sAUX}, s{sX}
s_lshl_b32 s16, s{sAUX}, 2
s_add_u32 s16, s16, s{sWAVE}
s_mul_i32 s{sT1}, s16, {16 * 896}
s_mul_i32 s17, s{sWAVE}, {16 * 912}
s_mov_b32 m0, s17
s_mov_b32 exec_hi, 0xffffff""")
    for k in range(16):
        if k:
            a(f"s_add_u32 m0, m0, 912\ns_add_u32 s{sT1}, s{sT1}, 896")
        a(f"buffer_load_dwordx4 v{vL16}, {srd(S_X0)}, s{sT1} offen lds", res_w=[f"x0"])
    a("s_mov_b64 exec, -1")


def aux_work():
    XR = 8
    a(f"""v_mov_b32 v76, 0
v_mov_b32 v77, 0
v_mov_b32 v78, 0
v_mov_b32 v79, 0
s_lshl_b32 s{sT1}, s16, 7
s_add_u32 s{sT1}, s{sT1}, {ST1}
s_lshl_b32 s18, s{sAUX}, 7
s_add_u32 s18, s18, {ST0}
s_mov_b64 exec, 0xff""")
    a(f"buffer_store_dwordx4 v[76:79], v{vL16}, {srd(S_WS)}, s{sT1} offen sc1", tag="st0")
    a(f"""s_mov_b64 exec, -1
v_and_b32 v2, 15, v{vLANE}
v_lshrrev_b32 v3, 4, v{vLANE}
v_mul_u32_u24 v4, 912, v2
v_lshl_add_u32 v4, v3, 4, v4
v_add_u32 v4, s17, v4
v_lshrrev_b32 v6, 2, v2
v_cmp_eq_u32 vcc, v6, v3
v_bfe_u32 v6, v2, 1, 2
v_lshlrev_b32 v6, 7, v6
v_lshrrev_b32 v7, 3, v2
v_lshl_add_u32 v6, v7, 4, v6
v_and_b32 v7, 1, v2
v_lshl_add_u32 v6, v7, 2, v6
s_lshl_b32 s{sT0}, s{sWAVE}, 5
s_add_u32 s{sT0}, s{sT0}, 60000
v_add_u32 v6, s{sT0}, v6
v_mov_b32 v7, 61024
v_cndmask_b32 v6, v7, v6, vcc
v_lshrrev_b32 v117, 3, v{vLANE}
v_cmp_eq_u32 vcc, s{sWAVE}, v117
v_lshlrev_b32 v117, 12, v117
v_and_b32 v7, 7, v{vLANE}
v_lshl_add_u32 v117, v7, 4, v117
v_mov_b32 v7, {OOB}
v_cndmask_b32 v117, v7, v117, vcc
v_mov_b32 v80, 0x3f803f80
v_mov_b32 v81, 0x3f803f80
v_mov_b32 v82, 0x3f803f80
v_mov_b32 v83, 0x3f803f80""")
    if OPT["stamps"] == 1:
        a.wait_vm0()
    stamp("aux data")
    for k in range(14):
        a(f"ds_read_b128 {vr(XR + 4 * k, 4)}, v4 offset:{64 * k}", res_r=["x0"])
    for k in range(14):
        x = vr(XR + 4 * k, 4)
        a(f"v_mfma_f32_16x16x32_bf16 v[64:67], v[80:83], {x}, {'v[64:67]' if k else 0}")
        a(f"v_mfma_f32_16x16x32_bf16 v[68:71], {x}, {x}, {'v[68:71]' if k else 0}")
    a(f"""v_cndmask_b32 v68, v68, v69, {sp(sM1)}
v_cndmask_b32 v70, v70, v71, {sp(sM1)}
v_cndmask_b32 v68, v68, v70, {sp(sM2)}""")
    a("ds_write2_b32 v6, v64, v68 offset0:0 offset1:2")
    a.barrier()
    a(f"ds_read_b128 v[64:67], v{vL16} offset:60000")
    a(f"buffer_store_dwordx4 v[64:67], v117, {srd(S_WS)}, s18 offen sc1", tag="st0")
    stamp("aux st")
    nonce_take()
    flag_put(0, f"s_add_u32 s{sT0}, s{sAUX}, 224\ns_lshl_b32 s{sT0}, s{sT0}, 6", 72, "st0")


def xt_loads():
    a(f"""s_lshl_b32 s{sT0}, s{sPAIR}, 1
s_lshr_b32 s{sT1}, s{sWAVE}, 1
s_add_u32 s{sT0}, s{sT0}, s{sT1}
s_mul_i32 s{sT1}, s{sT0}, 9363
s_lshr_b32 s{sT1}, s{sT1}, 16
s_mul_i32 s{sT2}, s{sT1}, 7
s_sub_u32 s{sT0}, s{sT0}, s{sT2}
s_lshl_b32 s{sT0}, s{sT0}, 1
s_and_b32 s{sT2}, s{sWAVE}, 1
s_add_u32 s{sT0}, s{sT0}, s{sT2}
s_mul_i32 s{sT2}, s{sT1}, {32 * 896}
s_lshl_b32 s{sT3}, s{sT0}, 6
s_add_u32 s{sT2}, s{sT2}, s{sT3}
v_lshrrev_b32 v2, 2, v{vLANE}
v_mul_u32_u24 v2, 896, v2
v_and_b32 v3, 3, v{vLANE}
v_lshl_add_u32 v2, v3, 4, v2
s_mul_i32 s22, s{sWAVE}, {GST}
s_mov_b32 m0, s22
s_mul_i32 s23, s{sT1}, {BS}""")
    a(f"buffer_load_dwordx4 v2, {srd(S_X0)}, s{sT2} offen lds", res_w=["x0"])
    a(f"s_add_u32 m0, m0, 1024\ns_add_u32 s{sT2}, s{sT2}, {16 * 896}")
    a(f"buffer_load_dwordx4 v2, {srd(S_X0)}, s{sT2} offen lds", res_w=["x0"])
    a(f"""s_lshl_b32 s{sT0}, s{sT0}, 11
s_add_u32 s23, s23, s{sT0}
s_add_u32 s23, s23, {X0}
v_lshrrev_b32 v2, 4, v{vLANE}
v_bfe_u32 v36, v{vLANE}, 2, 2
v_lshl_add_u32 v36, v2, 3, v36
v_lshlrev_b32 v36, 6, v36
v_lshl_add_u32 v36, v3, 3, v36
v_add_u32 v36, s22, v36
v_and_b32 v37, 15, v{vLANE}
v_lshlrev_b32 v37, 6, v37
v_lshl_add_u32 v37, v2, 4, v37""")


def xt_work():
    for u in range(2):
        for j in range(2):
            a(f"ds_read_b64_tr_b16 {vr(40 + 4 * u + 2 * j, 2)}, v36 offset:{j * 256 + u * 32}", res_r=["x0"])
    for u in range(2):
        a(f"buffer_store_dwordx4 {vr(40 + 4 * u, 4)}, v37, {srd(S_WS)}, s23 offen offset:{1024 * u} sc1", tag="st0")


def xt_poll_addr(ra, t):
    a(f"""s_lshl_b32 s{sT0}, s{sWAVE}, 4
v_and_b32 v{t}, 15, v{vLANE}
v_add_u32 v{t}, s{sT0}, v{t}
v_mul_u32_u24 v{t}, 7, v{t}
s_lshr_b32 s{sT0}, s{sPAIR}, 5
v_add_u32 v{t}, s{sT0}, v{t}
v_lshrrev_b32 v{t}, 1, v{t}
s_lshl_b32 s{sT0}, s{sWAVE}, 3
s_add_u32 s{sT0}, s{sT0}, 224
v_and_b32 v{ra}, 7, v{vLANE}
v_add_u32 v{ra}, s{sT0}, v{ra}
v_cmp_gt_u32 vcc, 16, v{vLANE}
v_cndmask_b32 v{ra}, v{ra}, v{t}, vcc""")


def e1_poll_addr(ra):
    a(f"s_lshl_b32 s{sT0}, s{sWAVE}, 6\nv_add_u32 v{ra}, s{sT0}, v{vLANE}")


def nonce_take():
    a(f"s_add_u32 s{sNONCE}, s{sNONCE}, 1")
    a(f"s_addc_u32 s{sNONCE + 1}, s{sNONCE + 1}, 0")


def nonce_retire():
    l = label("nr")
    a(f"s_or_b32 s{sT0}, s2, s{sWAVE}")
    a(f"s_cmp_lg_u32 s{sT0}, 32")
    a(f"s_cbranch_scc1 {l}")
    a(f"v_mov_b32 v110, s{sNONCE}\nv_mov_b32 v111, s{sNONCE + 1}\ns_mov_b64 exec, 1")
    a(f"buffer_store_dwordx2 v[110:111], off, {srd(S_WS)}, 0 offset:{EPOCH} sc1", optional=True)
    a("s_mov_b64 exec, -1")
    a(f"{l}:")


def flag_put(edge, sprod, r, tag):
    a(f"s_lshl_b32 s{sT0}, s{sprod}, 6" if isinstance(sprod, int) else sprod)
    a(f"""s_lshl_b32 s{sT1}, s{sWAVE}, 15
s_add_u32 s{sT0}, s{sT0}, s{sT1}
s_add_u32 s{sT0}, s{sT0}, {FL + edge * 0x20000}
v_lshlrev_b32 v{r + 4}, 12, v{vLANE}
v_and_b32 v{r + 4}, 0x4000, v{r + 4}
v_and_b32 v{r}, 3, v{vLANE}
v_lshl_add_u32 v{r + 4}, v{r}, 4, v{r + 4}
v_mov_b32 v{r}, s{sNONCE}
v_mov_b32 v{r + 1}, s{sNONCE + 1}
v_mov_b32 v{r + 2}, s{sNONCE}
v_mov_b32 v{r + 3}, s{sNONCE + 1}""")
    a.wait_tag(tag)
    a.barrier()
    a("s_mov_b64 exec, 0xff")
    a(f"buffer_store_dwordx4 {vr(r, 4)}, v{r + 4}, {srd(S_WS)}, s{sT0} offen sc1", tag="flag")
    a("s_mov_b64 exec, -1")


def emode(e):
    return OPT["em"][e - 1]


def hinted(e):
    return emode(e) in "HS"


def sentinel(e):
    return emode(e) == "S"


def flagged(e):
    return emode(e) in "FH"


def armed(layer):
    return any(sentinel(e + 4 * layer) for e in (1, 2, 3))


def wait_edge(e, r, ra_full, ra_samp):
    if hinted(e):
        poll_issue(e + 10, r, ra_samp)
        poll_take(r, ra_samp)
    else:
        a.wait_tag("flag")
    if flagged(e):
        poll_issue(e, r, ra_full)
        poll_take(r, ra_full)


def hint_prep(edge, sprod, r):
    a(f"s_lshl_b32 s{sT0}, s{sprod}, 6" if isinstance(sprod, int) else sprod)
    a(f"""s_lshl_b32 s{sT1}, s{sWAVE}, 15
s_add_u32 s{sT0}, s{sT0}, s{sT1}
s_add_u32 s{sT0}, s{sT0}, {FL + edge * 0x20000}
v_lshlrev_b32 v{r + 4}, 12, v{vLANE}
v_and_b32 v{r + 4}, 0x4000, v{r + 4}
v_and_b32 v{r}, 3, v{vLANE}
v_lshl_add_u32 v{r + 4}, v{r}, 4, v{r + 4}
v_add_u32 v{r + 4}, s{sT0}, v{r + 4}
v_mov_b32 v{r}, s{sNONCE}
v_mov_b32 v{r + 1}, s{sNONCE + 1}
v_mov_b32 v{r + 2}, s{sNONCE}
v_mov_b32 v{r + 3}, s{sNONCE + 1}""")


def hint_put(r):
    a("s_mov_b64 exec, 0xff")
    a(f"buffer_store_dwordx4 {vr(r, 4)}, v{r + 4}, {srd(S_WS)}, 0 offen sc1", tag="hint")
    a("s_mov_b64 exec, -1")


def poll_issue(edge, r, ra=None):
    ra = r + 2 if ra is None else ra
    a(f"""s_lshl_b32 s{sT3}, s{sX}, 14
s_add_u32 s{sT3}, s{sT3}, {FL + edge * 0x20000}
v_lshl_add_u32 v{ra}, v{ra}, 6, s{sT3}
buffer_load_dwordx2 {vr(r, 2)}, v{ra}, {srd(S_WS)}, 0 offen sc1""")


def poll_take(r, ra=None):
    ra = r + 2 if ra is None else ra
    ok, lp = label("pok"), label("plp")
    a(f"v_cmp_ne_u64 vcc, {sp(sNONCE)}, {vr(r, 2)}")
    a(f"s_cbranch_vccz {ok}")
    a(f"s_mov_b32 s{sCNT}, 0")
    a(f"{lp}:")
    a(f"buffer_load_dwordx2 {vr(r, 2)}, v{ra}, {srd(S_WS)}, 0 offen sc1")
    a("s_waitcnt vmcnt(0)")
    a(f"v_cmp_ne_u64 vcc, {sp(sNONCE)}, {vr(r, 2)}")
    a(f"s_add_u32 s{sCNT}, s{sCNT}, 1")
    a(f"s_cbranch_vccz {ok}")
    a(f"s_cmp_lt_u32 s{sCNT}, 0x100000")
    a(f"s_cbranch_scc1 {lp}")
    a(f"{ok}:")


sW1O, sW2O = 98, 99
sROT1, sROT2 = 33, 35
sW1E, sW2E = 78, 79


def w_setup():
    a(f"""v_lshrrev_b32 v2, 3, v{vLANE}
v_and_b32 v3, 7, v{vLANE}
v_bfe_u32 v4, v{vLANE}, 4, 1
v_lshlrev_b32 v4, 2, v4
v_xor_b32 v3, v3, v4
v_lshlrev_b32 v3, 4, v3
v_mul_u32_u24 v{vD1}, 3584, v2
v_add_u32 v{vD1}, v{vD1}, v3
v_lshl_add_u32 v{vD2}, v2, 12, v3
v_bfe_u32 v2, v{vLANE}, 2, 2
v_lshrrev_b32 v3, 5, v{vLANE}
v_bfe_u32 v4, v{vLANE}, 4, 1
v_and_b32 v5, 3, v{vLANE}
v_lshlrev_b32 v5, 3, v5
v_lshl_add_u32 v5, v4, 5, v5
v_lshrrev_b32 v4, 1, v2
v_lshl_add_u32 v5, v4, 6, v5
s_lshr_b32 s{sT0}, s{sWAVE}, 1
s_lshl_b32 s{sT0}, s{sT0}, 6
v_xor_b32 v5, s{sT0}, v5
v_lshl_add_u32 v5, v2, 7, v5
s_mul_i32 s{sT1}, s{sWAVE}, 24576
s_add_u32 s{sT1}, s{sT1}, {W2L}
v_add_u32 v5, s{sT1}, v5
v_lshl_add_u32 v{vT1a}, v3, 10, v5
v_xor_b32 v{vT1b}, 64, v{vT1a}
v_lshl_add_u32 v{vT2a}, v3, 9, v5
v_xor_b32 v{vT2b}, 64, v{vT2a}
s_mul_i32 s{sW1O}, s{sWAVE}, {512 * 3584}
s_lshl_b32 s{sT0}, s{sNT}, 7
s_add_u32 s{sW1O}, s{sW1O}, s{sT0}
s_mul_i32 s{sW2O}, s{sWAVE}, {448 * 4096}
s_lshl_b32 s{sT0}, s{sST}, 7
s_add_u32 s{sW2O}, s{sW2O}, s{sT0}
s_mov_b32 s{sWOFF}, s{sT1}""")
    if OPT["rot"] and OPT["map18"] == 1:
        if OPT["rot"] == 2:
            a(f"""s_add_u32 s{sROT1}, s{sDT1}, s{sX}
s_and_b32 s{sROT1}, s{sROT1}, 7
s_add_u32 s{sROT2}, s{sDT2}, s{sX}
s_cmp_ge_u32 s{sROT2}, 7
s_cselect_b32 s{sT0}, 7, 0
s_sub_u32 s{sROT2}, s{sROT2}, s{sT0}""")
        else:
            a(f"s_mov_b32 s{sROT1}, s{sDT1}\ns_mov_b32 s{sROT2}, s{sDT2}")
    elif OPT["rot"]:
        a(f"""s_and_b32 s{sT0}, s{sDT1}, 3
s_lshl_b32 s{sT0}, s{sT0}, 1
s_lshr_b32 s{sT1}, s{sDT1}, 2
s_add_u32 s{sT0}, s{sT0}, s{sT1}
s_and_b32 s{sROT1}, s{sT0}, 7
s_and_b32 s{sT0}, s{sDT2}, 3
s_lshl_b32 s{sT0}, s{sT0}, 1
s_lshr_b32 s{sT1}, s{sDT2}, 2
s_add_u32 s{sT0}, s{sT0}, s{sT1}
s_min_u32 s{sROT2}, s{sT0}, 6""")
        if OPT["map18"] == 2:
            a(f"s_mov_b32 s{sROT2}, s{sDT2}")
    else:
        a(f"s_mov_b32 s{sROT1}, 0\ns_mov_b32 s{sROT2}, 0")
    a(f"""s_add_u32 s{sW1E}, s{sW1O}, {512 * 3584}
s_mul_i32 s{sT0}, s{sROT1}, {64 * 3584}
s_add_u32 s{sW1O}, s{sW1O}, s{sT0}
s_add_u32 s{sW2E}, s{sW2O}, {448 * 4096}
s_mul_i32 s{sT0}, s{sROT2}, {64 * 4096}
s_add_u32 s{sW2O}, s{sW2O}, s{sT0}""")


WORDER = list(range(0, 4)) + list(range(32, 36)) + list(range(4, 32)) + list(range(36, 60))


def w_dma(pos, half):
    slot = pos % 12
    n = WORDER[pos]
    g = [Ins(f"s_add_u32 m0, s{sWOFF}, {slot * 2048 + half * 1024}")]
    if n < 32:
        g.append(Ins(f"s_add_u32 s{sW1O}, s{sW1O}, {8 * 3584}") if (n or half) else Ins("s_nop 0"))
        if n and n % 4 == 0 and half == 0:
            g += [Ins(f"s_cmp_eq_u32 s{sW1O}, s{sW1E}"), Ins(f"s_cselect_b32 s3, {512 * 3584}, 0"), Ins(f"s_sub_u32 s{sW1O}, s{sW1O}, s3")]
        g.append(Ins(f"buffer_load_dwordx4 v{vD1}, {srd(S_W1)}, s{sW1O} offen lds", res_w=[f"slot{slot}"]))
    else:
        g.append(Ins(f"s_add_u32 s{sW2O}, s{sW2O}, {8 * 4096}") if (n > 32 or half) else Ins("s_nop 0"))
        if n > 32 and n % 4 == 0 and half == 0:
            g += [Ins(f"s_cmp_eq_u32 s{sW2O}, s{sW2E}"), Ins(f"s_cselect_b32 s3, {448 * 4096}, 0"), Ins(f"s_sub_u32 s{sW2O}, s{sW2O}, s3")]
        g.append(Ins(f"buffer_load_dwordx4 v{vD2}, {srd(S_W2)}, s{sW2O} offen lds", res_w=[f"slot{slot}"]))
    return g


def w_tr(pos):
    slot = pos % 12
    n = WORDER[pos]
    g = []
    for nb in range(2):
        for j in range(2):
            if n < 32:
                r = (n * 2 + nb) * 4 + 2 * j
                g.append(Ins(f"ds_read_b64_tr_b16 a[{r}:{r + 1}], v{(vT1a, vT1b)[nb]} offset:{slot * 2048 + j * 512}", res_r=[f"slot{slot}"]))
            else:
                r = 128 + ((n - 32) * 2 + nb) * 4 + 2 * j
                g.append(Ins(f"ds_read_b64_tr_b16 v[{r}:{r + 1}], v{(vT2a, vT2b)[nb]} offset:{slot * 2048 + j * 1024}", res_r=[f"slot{slot}"]))
    return g


def w_all_upfront():
    for n in range(12):
        a.put(w_dma(n, 0)); a.put(w_dma(n, 1))
    for n in range(48):
        a.put(w_tr(n))
        if n >= 1:
            a.put(w_dma(n + 11, 0)); a.put(w_dma(n + 11, 1))
    a.put(w_dma(59, 0)); a.put(w_dma(59, 1))
    a.wait_vm0()
    a.wait_lgkm0()


PR = 56
TAB = 104


def kgen_loads():
    a(f"""s_lshl_b32 s{sT0}, s{sPAIR}, 10
s_lshl_b32 s{sT1}, s{sWAVE}, 8
s_add_u32 s{sT0}, s{sT0}, s{sT1}
v_lshl_add_u32 v3, v{vLANE}, 2, s{sT0}""")
    for k, p in enumerate((P_ARE, P_AIM, P_BRE, P_BIM, P_CRE, P_CIM)):
        a(f"global_load_dword v{PR + k}, v3, {sp(p)}")


def kgen_table_addr():
    l = label("pc")
    a(f"s_getpc_b64 {sp(sTAB)}")
    a(f"{l}:")
    a(f"s_add_u32 s{sTAB}, s{sTAB}, ktab-{l}")
    a(f"s_addc_u32 s{sTAB + 1}, s{sTAB + 1}, 0")


def kgen_table_load():
    kgen_table_addr()
    a(f"s_lshr_b32 s{sT0}, s{sWAVE}, 1\ns_lshl_b32 s{sT0}, s{sT0}, 5\nv_lshl_add_u32 v75, v0, 5, s{sT0}")


KBG = []


def kgen(hooks):
    F = {e: 2 * e for e in range(1, 8)}
    Qr = {1: 16, 2: 18, 3: 20, 4: 22}
    QN = [24, 26]
    Z1, Z2, C0, C1 = 28, 30, 32, 34
    CN = [36, 38]
    T0, T1 = 62, 64
    CV = [66, 67, 68, 69]
    A2, B2, DT = 70, 71, 72
    ACC = 76
    QF = 88
    PF = 40
    vG, vF = 73, 74
    a(f"""s_mul_i32 s{sT0}, s{sWAVE}, {GST}
v_lshl_add_u32 v{vG}, v{vLANE}, 2, s{sT0}
v_and_b32 v2, 15, v{vLANE}
v_mul_u32_u24 v2, {GROW}, v2
v_lshrrev_b32 v3, 4, v{vLANE}
v_lshl_add_u32 v2, v3, 4, v2
v_add_u32 v{vF}, s{sT0}, v2""")
    a.begin()
    a(f"""s_lshr_b32 s{sT0}, s{sWAVE}, 1
s_lshl_b32 s{sT0}, s{sT0}, 4
s_lshr_b32 s{sT0}, s{sLDT}, s{sT0}
s_lshl_b32 s{sT0}, s{sT0}, 16
v_mov_b32 v2, {f32(math.log2(math.e))}
v_mul_f32 v2, s{sT0}, v2
v_exp_f32 v2, v2
v_cvt_pk_bf16_f32 v2, v2, v2
v_lshlrev_b32 v{DT}, 16, v2
s_and_b32 s{sD1}, s{sD0}, 0xffff0000
s_lshl_b32 s{sD0}, s{sD0}, 16""")
    cvi = [0]

    def hook(name):
        if name is not None and name not in hooks:
            return
        a_body = space_ds(a.end(), OPT["lag"], OPT["gap"])
        m, rest = merge(a_body, KBG[:], 20, OPT["ev_kg"])
        del KBG[:]
        a.put(m)
        put_all(rest)
        if name is not None:
            hooks[name]()
            a.begin()

    def row(r, src, neg=False):
        c = CV[cvi[0] % 4]
        cvi[0] += 1
        a(f"v_cvt_pk_bf16_f32 v{c}, v{src}, {'-' if neg else ''}v{src + 1}")
        a(f"ds_write_b32 v{vG}, v{c} offset:{r * GROW}")

    def reads(dst, tile):
        for ks in range(4):
            a(f"ds_read_b128 {vr(dst + 4 * ks, 4)}, v{vF} offset:{tile * 16 * GROW + ks * 64}")

    def mfmas(t, first):
        for ks in range(4):
            c = "0" if (first and ks == 0) else vr(ACC + 4 * t, 4)
            a(f"v_mfma_f32_16x16x32_bf16 {vr(ACC + 4 * t, 4)}, {vr(PF + 4 * ks, 4)}, {vr(QF + 4 * ks, 4)}, {c}")

    def direct(d, scale):
        if scale != 1:
            a(f"v_mul_f32 v{T0}, {f32(scale)}, v{A2}")
            a(f"v_mul_f32 v{T1}, {f32(scale)}, v{B2}")
            x, y = T0, T1
        else:
            x, y = A2, B2
        a(f"v_fract_f32 v{T1}, v{y}")
        a(f"v_exp_f32 v{T0}, v{x}")
        a(f"v_cos_f32 v{d}, v{T1}")
        a(f"v_sin_f32 v{d + 1}, v{T1}")
        a(f"v_pk_mul_f32 {vr(d, 2)}, {vr(d, 2)}, {vr(T0, 2)} op_sel_hi:[1,0]")

    for rd in range(2):
        def up(d, s):
            a(f"v_lshlrev_b32 v{d}, 16, v{s}" if rd == 0 else f"v_and_b32 v{d}, 0xffff0000, v{s}")
        up(A2, PR); up(B2, PR + 1)
        up(QN[0], PR + 2); up(QN[0] + 1, PR + 3)
        up(QN[1], PR + 4); up(QN[1] + 1, PR + 5)
        a(f"v_mul_f32 v{A2}, v{DT}, v{A2}")
        a(f"v_mul_f32 v{B2}, v{DT}, v{B2}")
        a(f"v_pk_mul_f32 {vr(QN[0], 2)}, {vr(QN[0], 2)}, {vr(DT, 2)} op_sel_hi:[1,0]")
        a(f"v_mul_f32 v{A2}, {f32(math.log2(math.e))}, v{A2}")
        a(f"v_mul_f32 v{B2}, {f32(1 / (2 * math.pi))}, v{B2}")
        cmul2((C0, QN[1], QN[0]))
        direct(F[1], 1)
        if rd == 1:
            mfmas(2, True)
        direct(Z1, 128)
        hook(5 * rd)
        cmul2((F[2], F[1], F[1]), (Z2, Z1, Z1))
        cmul2((F[4], F[2], F[2]), (F[3], F[2], F[1]))
        cmul2((Qr[1], F[4], F[4]), (C1, C0, Z1))
        a(f"v_mov_b32 v{CV[3]}, 0x3f80")
        a(f"ds_write_b32 v{vG}, v{CV[3]}")
        cmul2((Qr[2], Qr[1], Qr[1]), (F[5], F[4], F[1]))
        row(1, Qr[1], True)
        cmul2((Qr[3], Qr[2], Qr[1]), (Qr[4], Qr[2], Qr[2]))
        row(2, Qr[2], True)
        cmul2((F[6], F[4], F[2]), (F[7], F[4], F[3]))
        row(3, Qr[3], True)
        row(4, Qr[4], True)
        cur = {1: Qr[1], 2: Qr[2], 3: Qr[3], 0: Qr[4]}
        free = list(QN) + [CN[0]]
        j = 5
        while j < 16:
            js = [j] + ([j + 1] if j + 1 < 16 else [])
            ps = []
            for jj in js:
                d = free.pop(0)
                ps.append((d, cur[jj % 4], Qr[4]))
            cmul2(*ps)
            for jj, p in zip(js, ps):
                if cur[jj % 4] != Qr[4]:
                    free.append(cur[jj % 4])
                cur[jj % 4] = p[0]
                row(jj, p[0], True)
            j += 2
        reads(QF, 0)
        hook(5 * rd + 1)
        TA, TB = QN
        row(16, C0); row(24, C1)
        for e in range(1, 8):
            cmul2((TA, C0, F[e]), (TB, C1, F[e]))
            row(16 + e, TA); row(24 + e, TB)
        reads(PF, 1)
        hook(5 * rd + 2)
        ca, cb = C0, C1
        na, nb_ = CN
        def adv():
            nonlocal ca, cb, na, nb_
            cmul2((na, ca, Z2), (nb_, cb, Z2))
            ca, cb, na, nb_ = na, nb_, ca, cb
        adv()
        row(32, ca); row(36, cb)
        for e in range(1, 4):
            cmul2((TA, ca, F[2 * e]), (TB, cb, F[2 * e]))
            row(32 + e, TA); row(36 + e, TB)
        mfmas(0, rd == 0)
        for k in range(2):
            adv()
            row(40 + 4 * k, ca); row(42 + 4 * k, cb)
            cmul2((TA, ca, F[4]), (TB, cb, F[4]))
            row(41 + 4 * k, TA); row(43 + 4 * k, TB)
        reads(PF, 2)
        hook(5 * rd + 3)
        for k in range(4):
            adv()
            row(48 + 2 * k, ca); row(49 + 2 * k, cb)
        cmul2((na, ca, Z2))
        row(56, na)
        mfmas(1, rd == 0)
        reads(PF, 3)
        hook(5 * rd + 4)
    hook(None)
    a(f"s_mul_i32 s{sT0}, s{sWAVE}, {GST}")
    a(f"v_add_u32 v{vF}, s{sT0}, v{vL16}")
    a(f"v_mov_b32 v{CV[0]}, 0")
    for k in range(8):
        a(f"v_and_b32 v{2 + 2 * k}, 0xffff, v{TAB + k}")
        a(f"v_lshrrev_b32 v{3 + 2 * k}, 16, v{TAB + k}")
    for t in range(2):
        a(f"ds_write_b128 v{vF}, {vr(ACC + 4 * t, 4)} offset:{TOFF + t * 1024}")
    mfmas(2, False)
    a(f"ds_write_b32 v{vG}, v{CV[0]} offset:{TOFF + 3072}")
    a("v_and_b32 v18, 0xffff, v0\nv_lshrrev_b32 v19, 16, v0\nv_and_b32 v20, 0xffff, v1")
    a(f"ds_write_b128 v{vF}, {vr(ACC + 8, 4)} offset:{TOFF + 2048}")


def kzero(r):
    a(f"""v_mov_b32 v{r}, 0
v_mov_b32 v{r + 1}, 0
v_mov_b32 v{r + 2}, 0
v_mov_b32 v{r + 3}, 0
v_bfe_u32 v{r + 4}, v{vLANE}, 1, 3
v_mul_u32_u24 v{r + 4}, {KST}, v{r + 4}
v_and_b32 v{r + 5}, 1, v{vLANE}
v_lshl_add_u32 v{r + 4}, v{r + 5}, 4, v{r + 4}
s_and_b32 s{sT0}, s{sWAVE}, 1
s_mul_i32 s{sT0}, s{sT0}, {UST}
v_add_u32 v{r + 5}, s{sT0}, v{vL16}""")
    return [f"ds_write_b128 v{r + 4}, {vr(r, 4)} offset:4096", f"ds_write_b128 v{r + 5}, {vr(r, 4)} offset:{UB}"]


def kaddr(r):
    a(f"""s_lshr_b32 s{sT0}, s{sWAVE}, 1
s_and_b32 s{sT1}, s{sWAVE}, 1
s_lshl_b32 s{sT1}, s{sT1}, 11
v_lshl_add_u32 v{r + 3}, v{vLANE}, 5, s{sT1}""")
    for c in range(4):
        a(f"s_cmp_lg_u32 s{sT0}, 0")
        a(f"s_cselect_b32 s{sT2}, {KSLOT[1][c]}, {KSLOT[0][c]}")
        a(f"s_mul_i32 s{sT2}, s{sT2}, {KST}")
        a(f"v_add_u32 v{r + c}, s{sT2}, v{r + 3}")


def kexpand(mid):
    AD, VAL = 2, 22
    P0, P1, P2, P3 = 2, 12, 88, 96
    a.barrier()
    for k in range(19):
        a(f"ds_read2st64_b32 {vr(VAL + 2 * k, 2)}, v{AD + k} offset0:{TOFF // 256} offset1:{TOFF // 256 + GST // 256}")
    mid()
    kaddr(60)
    zw = kzero(104)
    for k in range(19):
        a(f"v_add_f32 v{VAL + 2 * k}, v{VAL + 2 * k}, v{VAL + 2 * k + 1}")
        if k:
            a(f"v_cvt_pk_bf16_f32 v{(P0 if k & 1 else P1) + (k - 1) // 2}, v{VAL + 2 * k - 2}, v{VAL + 2 * k}")
    a.barrier()
    a.begin()
    for l in zw:
        a(l)
    for c, P in ((0, P0), (1, P1)):
        a(f"ds_write_b128 v{60 + c}, {vr(P, 4)}")
        a(f"ds_write_b128 v{60 + c}, {vr(P + 4, 4)} offset:16")
    for c, P, src in ((2, P2, P0), (3, P3, P1)):
        for i in range(4):
            a(f"v_pk_mov_b32 {vr(P + 2 * i, 2)}, {vr(src + 2 * i, 2)}, {vr(src + 2 * i + 2, 2)} op_sel:[1,0]")
        a(f"ds_write_b128 v{60 + c}, {vr(P, 4)}")
        a(f"ds_write_b128 v{60 + c}, {vr(P + 4, 4)} offset:16")
    return a.end()


def kcopies():
    R, E, M = 2, 12, 22
    kaddr(40)
    a(f"""ds_read_b128 {vr(R, 4)}, v40
ds_read_b128 {vr(R + 4, 4)}, v40 offset:16
ds_read_b64 {vr(R + 8, 2)}, v40 offset:32""")
    for l in kzero(32):
        a(l)
    for i in range(9):
        a(f"v_alignbit_b32 v{E + i}, v{R + i + 1}, v{R + i}, 16")
    a(f"ds_write_b128 v41, {vr(E, 4)}")
    a(f"ds_write_b128 v41, {vr(E + 4, 4)} offset:16")
    for i in range(4):
        a(f"v_pk_mov_b32 {vr(M + 2 * i, 2)}, {vr(R + 2 * i, 2)}, {vr(R + 2 * i + 2, 2)} op_sel:[1,0]")
    a(f"ds_write_b128 v42, {vr(M, 4)}")
    a(f"ds_write_b128 v42, {vr(M + 4, 4)} offset:16")
    for i in range(4):
        a(f"v_pk_mov_b32 {vr(R + 2 * i, 2)}, {vr(E + 2 * i, 2)}, {vr(E + 2 * i + 2, 2)} op_sel:[1,0]")
    a(f"ds_write_b128 v43, {vr(R, 4)}")
    a(f"ds_write_b128 v43, {vr(R + 4, 4)} offset:16")


GX = 80
CS = 64
cvA, cvB, cvZ, cvXW, cvXR, cvO, cvU, cvX, cvH, cvP = 112, 113, 114, 115, 116, 117, 118, 119, 100, 108
STUBS = []


def conv_poll1():
    r = cvP
    a(f"""v_lshrrev_b32 v{r}, 3, v{vLANE}
v_min_u32 v{r}, 6, v{r}
v_and_b32 v{r + 1}, 7, v{vLANE}
v_lshl_add_u32 v{r + 2}, v{r}, 5, v{r + 1}
s_lshl_b32 s{sT0}, s{sWAVE}, 3
v_add_u32 v{r + 2}, s{sT0}, v{r + 2}
v_and_b32 v{r + 1}, 7, v{vLANE}
v_min_u32 v{r}, 6, v{r + 1}
v_lshl_add_u32 v{r + 3}, v{r}, 5, v{r + 1}
v_add_u32 v{r + 3}, s{sT0}, v{r + 3}""")


def conv_loads():
    for p in range(4):
        a(f"buffer_load_dwordx4 {vr(CS + 4 * p, 4)}, v{vL16}, {srd(S_WS)}, s{16 + p} offen sc1")
    a(f"buffer_load_dwordx4 {vr(GX, 4)}, v{cvX}, {srd(S_WS)}, s20 offen sc1")
    a(f"buffer_load_dwordx4 {vr(GX + 4, 4)}, v{cvX}, {srd(S_WS)}, s20 offen offset:64 sc1")


def conv_setup(layer):
    a(f"""s_mov_b32 s{sCA}, {f32(1.0 / 448)}
s_mov_b32 s{sCB}, {f32(1e-5)}
s_lshl_b32 s{sT0}, s{sWAVE}, 10
v_add_u32 v{cvU}, s{sT0}, v{vL16}
s_lshr_b32 s{sT0}, s{sWAVE}, 1
s_and_b32 s{sT1}, s{sWAVE}, 1
v_and_b32 v8, 15, v{vLANE}
v_lshrrev_b32 v9, 4, v{vLANE}
v_not_b32 v10, v8
v_and_b32 v10, 3, v10""")
    for s in range(4):
        a(f"s_cmp_lg_u32 s{sT0}, 0")
        a(f"s_cselect_b32 s{sT2}, {KSLOT[1][s]}, {KSLOT[0][s]}")
        a(f"s_mul_i32 s{sT2}, s{sT2}, {KST}")
        if s == 0:
            a(f"v_mov_b32 v11, s{sT2}")
        else:
            a(f"v_mov_b32 v12, s{sT2}\nv_cmp_eq_u32 vcc, {s}, v10\nv_cndmask_b32 v11, v11, v12, vcc")
    a(f"""v_add_u32 v10, v10, v8
v_lshlrev_b32 v12, 3, v9
v_sub_u32 v12, v12, v10
v_lshl_add_u32 v11, v12, 1, v11
""")
    a(f"""s_lshl_b32 s{sT3}, s{sT1}, 8
s_sub_u32 s{sT2}, {2 * 2031 - 64 * 59}, s{sT3}
v_add_u32 v{cvA}, s{sT2}, v11
s_mul_i32 s{sT2}, s{sT0}, {UST}
s_sub_u32 s{sT2}, s{sT2}, s{sT3}
s_add_u32 s{sT2}, s{sT2}, {UB + UPAD - 2 * 112}
v_lshlrev_b32 v12, 5, v8
v_lshl_add_u32 v13, v9, 4, v12
v_add_u32 v{cvB}, s{sT2}, v13
s_lshl_b32 s{sT2}, s{sWAVE}, 11
v_lshl_add_u32 v13, v9, 3, v12
v_add_u32 v{cvZ}, s{sT2}, v13
s_xor_b32 s{sT2}, s{sWAVE}, 1
s_lshl_b32 s{sT2}, s{sT2}, 12
v_add_u32 v{cvXW}, s{sT2}, v{vL16}
s_lshl_b32 s{sT2}, s{sWAVE}, 12
v_add_u32 v{cvXR}, s{sT2}, v{vL16}
v_and_b32 v10, 1, v9
v_lshlrev_b32 v10, 3, v10
v_lshrrev_b32 v11, 1, v8
v_add_u32 v10, v10, v11
v_mul_u32_u24 v10, {BS}, v10
v_and_b32 v11, 1, v8
v_lshl_add_u32 v10, v11, 5, v10
v_lshrrev_b32 v11, 1, v9
v_lshl_add_u32 v{cvO}, v11, 4, v10
s_mul_i32 s{sT1}, s{sT1}, {32 * BS}
s_lshl_b32 s{sT2}, s{sPAIR}, 1
s_add_u32 s{sT0}, s{sT0}, s{sT2}
s_lshl_b32 s{sT0}, s{sT0}, 6
s_add_u32 s{sT0}, s{sT0}, s{sT1}
s_add_u32 s13, s{sT0}, {X1 if layer == 0 else X3}
s_add_u32 s21, s13, {16 * BS}""" if OPT["cv"] else f"""v_add_u32 v{cvA}, {2 * 2031 - 64 * 63}, v11
s_mul_i32 s{sT2}, s{sT0}, {UST}
s_lshl_b32 s{sT3}, s{sT1}, 9
s_add_u32 s{sT2}, s{sT2}, s{sT3}
s_add_u32 s{sT2}, s{sT2}, {UB + UPAD - 2 * 496}
v_lshlrev_b32 v12, 5, v8
v_lshl_add_u32 v13, v9, 4, v12
v_add_u32 v{cvB}, s{sT2}, v13
s_lshl_b32 s{sT2}, s{sT0}, 12
s_add_u32 s{sT2}, s{sT2}, s{sT3}
v_lshl_add_u32 v13, v9, 3, v12
v_add_u32 v{cvZ}, s{sT2}, v13
v_and_b32 v10, 1, v9
v_lshlrev_b32 v10, 4, v10
v_lshrrev_b32 v11, 1, v8
v_add_u32 v10, v10, v11
v_mul_u32_u24 v10, {BS}, v10
v_and_b32 v11, 1, v8
v_lshl_add_u32 v10, v11, 5, v10
v_lshrrev_b32 v11, 1, v9
v_lshl_add_u32 v{cvO}, v11, 4, v10
s_mul_i32 s{sT1}, s{sT1}, {8 * BS}
s_lshl_b32 s{sT2}, s{sPAIR}, 1
s_add_u32 s{sT0}, s{sT0}, s{sT2}
s_lshl_b32 s{sT0}, s{sT0}, 6
s_add_u32 s{sT0}, s{sT0}, s{sT1}
s_add_u32 s13, s{sT0}, {X1 if layer == 0 else X3}
s_add_u32 s21, s13, {32 * BS}""")
    a(f"""s_lshl_b32 s16, s{sWAVE}, 10
s_add_u32 s16, s16, {ST0 if layer == 0 else ST1}
s_add_u32 s17, s16, 4096
s_add_u32 s18, s16, 8192
s_add_u32 s19, s16, 12288
s_mul_i32 s20, s{sWAVE}, {16 * BS}
s_lshl_b32 s{sT2}, s{sPAIR}, 7
s_add_u32 s20, s20, s{sT2}
s_add_u32 s20, s20, {X0 if layer == 0 else X2}
v_lshrrev_b32 v10, 2, v{vLANE}
v_mul_u32_u24 v10, {BS}, v10
v_and_b32 v11, 3, v{vLANE}
v_lshl_add_u32 v{cvX}, v11, 4, v10""")


cXF, cUF, cAL, cBE, cUP = 0, 16, 32, 40, 48


def conv_pro(layer):
    XF, UF, AL, BE, UP = cXF, cUF, cAL, cBE, cUP
    for p in range(4):
        S = CS + 4 * p
        a(f"v_pk_mul_f32 {vr(S, 2)}, {vr(S, 2)}, {sp(sCA)} op_sel_hi:[1,0]")
    for p in range(4):
        S = CS + 4 * p
        a(f"v_pk_fma_f32 {vr(BE + 2 * p, 2)}, {vr(S, 2)}, {vr(S, 2)}, {sp(sCB)} op_sel_hi:[1,1,0] neg_lo:[1,0,0] neg_hi:[1,0,0]")
    for p in range(4):
        Q = CS + 4 * p + 2
        a(f"v_pk_fma_f32 {vr(Q, 2)}, {vr(Q, 2)}, {sp(sCA)}, {vr(BE + 2 * p, 2)} op_sel_hi:[1,0,1]")
    for p in range(4):
        Q = CS + 4 * p + 2
        a(f"v_max_f32 v{Q}, s{sCB}, v{Q}\nv_max_f32 v{Q + 1}, s{sCB}, v{Q + 1}")
    for p in range(4):
        Q = CS + 4 * p + 2
        a(f"v_rsq_f32 v{AL + 2 * p}, v{Q}\nv_rsq_f32 v{AL + 2 * p + 1}, v{Q + 1}")
    for k in range(8):
        unpack(XF + 2 * k, XF + 2 * k + 1, GX + k)
    for p in range(4):
        S = CS + 4 * p
        a(f"v_pk_mul_f32 {vr(BE + 2 * p, 2)}, {vr(S, 2)}, {vr(AL + 2 * p, 2)} neg_lo:[1,0] neg_hi:[1,0]")
    for c in range(2):
        for p in range(4):
            a(f"v_pk_fma_f32 {vr(UF + 8 * c + 2 * p, 2)}, {vr(XF + 8 * c + 2 * p, 2)}, {vr(AL + 2 * p, 2)}, {vr(BE + 2 * p, 2)}")
        for p in range(4):
            a(f"v_cvt_pk_bf16_f32 v{UP + 4 * c + p}, v{UF + 8 * c + 2 * p}, v{UF + 8 * c + 2 * p + 1}")
        a(f"ds_write_b128 v{cvU}, {vr(UP + 4 * c, 4)} offset:{UB + c * UST + UPAD}")
    if OPT["cv"]:
        for i in a.capture(conv_z, 88):
            if i.kind != "dsw":
                a.put([i])


def conv_z(ZP=cXF):
    XF, UF = cXF, cUF
    for c in range(2):
        for p in range(4):
            a(f"v_pk_fma_f32 {vr(UF + 8 * c + 2 * p, 2)}, {vr(UF + 8 * c + 2 * p, 2)}, {sp((sD0, sD1)[c])}, {vr(XF + 8 * c + 2 * p, 2)} op_sel_hi:[1,0,1]")
        for p in range(4):
            a(f"v_cvt_pk_bf16_f32 v{ZP + 4 * c + p}, v{UF + 8 * c + 2 * p}, v{UF + 8 * c + 2 * p + 1}")
        a(f"ds_write_b128 v{cvU}, {vr(ZP + 4 * c, 4)} offset:{ZB + c * 4096}")


def conv_main(layer, bg=(), bg_start=0, bg_every=64):
    return (conv_main_r if OPT["cv"] else conv_main_t)(layer, bg, bg_start, bg_every)


def conv_main_r(layer, bg, bg_start, bg_every):
    ACC, BF, AR = 0, 32, 64
    NA = 6
    EX2 = ZB
    seq = [(r, q) for r in range(4) for q in range(7, -1, -1)]
    e = 1 + 4 * layer

    def rdA(i):
        r, q = seq[i]
        d = AR + 4 * (i % NA)
        off = 64 * (59 - (8 * q + r))
        return [Ins(f"ds_read_b64 {vr(d, 2)}, v{cvA} offset:{off}"), Ins(f"ds_read_b64 {vr(d + 2, 2)}, v{cvA} offset:{off + 8}")]

    def rdB(r, p):
        return [Ins(f"ds_read_b128 {vr(BF + 4 * p, 4)}, v{cvB} offset:{512 * p + 64 * (3 - r)}")]

    a.put(rdA(0)); a.put(rdB(0, 0)); a.put(rdA(1)); a.put(rdB(0, 1)); a.put(rdA(2)); a.put(rdB(0, 2)); a.put(rdA(3))
    a.put(rdB(0, 3)); a.put(rdA(4))
    for p in range(4, 8):
        a.put(rdB(0, p))
    ZR, ZF, RR = 88, 64, 32
    side = [[i] for i in a.capture(conv_z, 88) if i.kind == "dsw"]
    if hinted(e):
        side += [[i] for i in a.capture(hint_prep, e + 10, sPAIR, cvH)]
    late = [[Ins("s_barrier")]] + [[Ins(f"ds_read_b64 {vr(ZR + 2 * i, 2)}, v{cvZ} offset:{ZB + i * 512}")] for i in range(4)]
    late2 = [[Ins("s_barrier")]]
    a.begin()
    started = set()
    for i, (r, q) in enumerate(seq):
        if hinted(e) and OPT["h_cv"] < 0 and i == 32 + OPT["h_cv"]:
            hint_put(cvH)
        ps = list(range(8 - q))
        for p in ps:
            b = q + p
            c = vr(ACC + 4 * b, 4) if b in started else "0"
            started.add(b)
            a(f"v_mfma_f32_16x16x32_bf16 {vr(ACC + 4 * b, 4)}, {vr(AR + 4 * (i % NA), 4)}, {vr(BF + 4 * p, 4)}, {c}")
            if p == 0 and i + NA - 1 < len(seq):
                a.put(rdA(i + NA - 1))
            elif 1 <= q <= 4 and p >= 1:
                for lst, r0 in ((side, 0), (late, 2), (late2, 3)):
                    if lst and r >= r0:
                        a.put(lst.pop(0))
                        break
            if q == 0 and r < 3:
                a.put(rdB(r + 1, p))
    assert not side and not late and not late2
    m, rest = merge(a.end(), list(bg), bg_start, bg_every)
    a.put(m)
    stamp(f"conv{layer} loop", 111)
    if hinted(e) and OPT["h_cv"] == 0:
        hint_put(cvH)
    for k in range(8):
        unpack(ZF + 2 * k, ZF + 2 * k + 1, ZR + k)
    l1, l2 = label("cx"), label("cy")
    a(f"s_bitcmp1_b32 s{sWAVE}, 0")
    a(f"s_cbranch_scc1 {l1}")
    for h in range(2):
        for i in range(4):
            a(f"ds_write_b128 v{cvXW}, {vr(ACC + 16 * (1 - h) + 4 * i, 4)} offset:{EX2 + i * 1024}")
            for k in range(2):
                a(f"v_pk_add_f32 {vr(ZF + 4 * i + 2 * k, 2)}, {vr(ZF + 4 * i + 2 * k, 2)}, {vr(ACC + 16 * h + 4 * i + 2 * k, 2)}")
        if h == 0:
            a(f"s_branch {l2}")
            a(f"{l1}:")
    a(f"{l2}:")
    if (armed(1) if layer else sentinel(1)):
        poll_take(cvP)
    a.barrier()
    if hinted(e) and OPT["h_cv"] == 1:
        hint_put(cvH)
    for i in range(4):
        a(f"ds_read_b128 {vr(RR + 4 * i, 4)}, v{cvXR} offset:{EX2 + i * 1024}")
    PK = 56
    for i in range(4):
        for k in range(2):
            a(f"v_pk_add_f32 {vr(ZF + 4 * i + 2 * k, 2)}, {vr(ZF + 4 * i + 2 * k, 2)}, {vr(RR + 4 * i + 2 * k, 2)}")
        for k in range(2):
            a(f"v_cvt_pk_bf16_f32 v{PK + 2 * i + k}, v{ZF + 4 * i + 2 * k}, v{ZF + 4 * i + 2 * k + 1}")
        if i & 1:
            b = PK + 2 * (i - 1)
            a(f"v_permlane16_swap_b32 v{b}, v{b + 2}")
            a(f"v_permlane16_swap_b32 v{b + 1}, v{b + 3}")
            a(f"buffer_store_dwordx4 {vr(b, 4)}, v{cvO}, {srd(S_WS)}, s{21 if i == 3 else 13} offen sc1", tag="pub")
    if hinted(e) and OPT["h_cv"] == 2:
        hint_put(cvH)
    if not flagged(e):
        a.barrier()
    else:
        flag_put(1 + 4 * layer, sPAIR, 40, "pub")
    return rest


def conv_main_t(layer, bg, bg_start, bg_every):
    ACC, BF, AR = 84, 32, 64
    NA = 5
    QORD = (7, 5, 6, 3, 4, 2, 1, 0)
    seq = [(r, q) for r in range(8) for q in QORD]
    e = 1 + 4 * layer

    def rdA(i):
        r, q = seq[i]
        d = AR + 4 * (i % NA)
        off = 64 * (63 - (8 * q + r))
        return [Ins(f"ds_read_b64 {vr(d, 2)}, v{cvA} offset:{off}"), Ins(f"ds_read_b64 {vr(d + 2, 2)}, v{cvA} offset:{off + 8}")]

    def rdB(r, p):
        return [Ins(f"ds_read_b128 {vr(BF + 4 * (p + 1), 4)}, v{cvB} offset:{512 * (p + 1) + 64 * (7 - r)}")]

    a.put(rdA(0)); a.put(rdB(0, -1)); a.put(rdA(1)); a.put(rdB(0, 1)); a.put(rdA(2)); a.put(rdB(0, 0)); a.put(rdA(3))
    for p in (3, 2, 4, 5, 6):
        a.put(rdB(0, p))
    ZR, ZF = 16, 0
    side = [[i] for i in a.capture(conv_z)]
    if hinted(e):
        side += [[i] for i in a.capture(hint_prep, e + 10, sPAIR, cvH)]
    late = [[Ins("s_barrier")]] + [[Ins(f"ds_read_b64 {vr(ZR + 2 * i, 2)}, v{cvZ} offset:{ZB + i * 1024}")] for i in range(4)]
    late2 = [[i] for k in range(8) for i in a.capture(unpack, ZF + 2 * k, ZF + 2 * k + 1, ZR + k)]
    a.begin()
    started = set()
    n = 0
    for i, (r, q) in enumerate(seq):
        if hinted(e) and OPT["h_cv"] < 0 and i == 64 + OPT["h_cv"]:
            hint_put(cvH)
        first = True
        for t in range(q // 2, 4):
            p = 2 * t - q
            c = vr(ACC + 4 * t, 4) if t in started else "0"
            started.add(t)
            a(f"v_mfma_f32_16x16x32_bf16 {vr(ACC + 4 * t, 4)}, {vr(AR + 4 * (i % NA), 4)}, {vr(BF + 4 * (p + 1), 4)}, {c}")
            n += 1
            if first and i + 4 < len(seq):
                a.put(rdA(i + 4))
            elif q >= 2:
                for lst, r0 in ((side, 0), (late, 4), (late2, 5)):
                    if lst and r >= r0:
                        a.put(lst.pop(0))
                        if lst is side and lst:
                            a.put(lst.pop(0))
                        break
            first = False
            if q <= 1 and r < 7:
                a.put(rdB(r + 1, p))
    assert not side and not late and not late2
    m, rest = merge(a.end(), list(bg), bg_start, bg_every)
    a.put(m)
    stamp(f"conv{layer} loop", 111)
    if (armed(1) if layer else sentinel(1)):
        poll_take(cvP)
    if hinted(e) and OPT["h_cv"] == 0:
        hint_put(cvH)
    PK = 24
    for i in range(4):
        for k in range(2):
            a(f"v_pk_add_f32 {vr(ZF + 4 * i + 2 * k, 2)}, {vr(ZF + 4 * i + 2 * k, 2)}, {vr(ACC + 4 * i + 2 * k, 2)}")
        for k in range(2):
            a(f"v_cvt_pk_bf16_f32 v{PK + 2 * i + k}, v{ZF + 4 * i + 2 * k}, v{ZF + 4 * i + 2 * k + 1}")
        if i & 1:
            b = PK + 2 * (i - 1)
            a(f"v_permlane16_swap_b32 v{b}, v{b + 2}")
            a(f"v_permlane16_swap_b32 v{b + 1}, v{b + 3}")
            a(f"buffer_store_dwordx4 {vr(b, 4)}, v{cvO}, {srd(S_WS)}, s{21 if i == 3 else 13} offen sc1", tag="pub")
    if hinted(e) and OPT["h_cv"] > 0:
        hint_put(cvH)
    if not flagged(e):
        a.barrier()
    else:
        flag_put(1 + 4 * layer, sPAIR, 40, "pub")
    return rest


def reduce32(V, n, W):
    for i in range(n):
        a(f"v_permlane16_swap_b32 v{V[i]}, v{V[n + i]}")
    for i in range(n):
        a(f"v_add_f32 v{V[i]}, v{V[i]}, v{V[n + i]}")
    h = n // 2
    for i in range(h):
        a(f"v_add_f32_dpp v{W[i]}, v{V[i]}, v{V[i]} row_ror:8 row_mask:0xf bank_mask:0x3")
    for i in range(h):
        a(f"v_add_f32_dpp v{W[i]}, v{V[i + h]}, v{V[i + h]} row_ror:8 row_mask:0xf bank_mask:0xc")
    g = h // 2
    for i in range(g):
        a(f"v_add_f32_dpp v{V[i]}, v{W[i]}, v{W[i]} row_half_mirror row_mask:0xf bank_mask:0x5")
    for i in range(g):
        a(f"v_add_f32_dpp v{V[i]}, v{W[i + g]}, v{W[i + g]} row_half_mirror row_mask:0xf bank_mask:0xa")
    for m in ("[1,0,3,2]", "[2,3,0,1]"):
        for i in range(g):
            a(f"v_add_f32_dpp v{V[i]}, v{V[i]}, v{V[i]} quad_perm:{m} row_mask:0xf bank_mask:0xf")
    return V[:g]


def maxchain(t, regs):
    regs = list(regs)
    if OPT["chk"] == 1:
        regs = regs[3::4]
    if len(regs) == 2:
        return [f"v_max_u32 v{t}, v{regs[0]}, v{regs[1]}"]
    out = [f"v_max3_u32 v{t}, v{regs[0]}, v{regs[1]}, v{regs[2]}"]
    regs = regs[3:]
    while len(regs) >= 2:
        out.append(f"v_max3_u32 v{t}, v{t}, v{regs[0]}, v{regs[1]}")
        regs = regs[2:]
    if regs:
        out.append(f"v_max_u32 v{t}, v{t}, v{regs[0]}")
    return out


RETRY = 0x10000


def ln(layer, wide):
    X = X1 if layer == 0 else X3
    H = H1 if layer == 0 else H3
    nf = 7 if wide else 4
    sI = sLN0 if wide else sLN
    RAW, XF, S, Q, W = 0, 28, 84, 92, 100
    vO, vPW, vPR, vAW, vAR, r, hr = 109, 110, 111, 112, 117, 114, 104
    vX, vS = 64, 68
    a(f"""s_mul_i32 s{sT0}, s{sWAVE}, 56
v_min_u32 v{r + 2}, 55, v{vLANE}""")
    a(f"v_add_u32 v{r + 2}, s{sT0}, v{r + 2}")
    a(f"v_and_b32 v118, {OPT['samp'] - 1}, v{vLANE}\nv_mul_u32_u24 v118, {56 // OPT['samp']}, v118\nv_add_u32 v118, s{sT0}, v118")
    ein, eout = 1 + 4 * layer, 2 + 4 * layer
    if wide:
        a(f"""s_mul_i32 s16, s{sI}, {BS}
s_lshl_b32 s{sT2}, s{sI}, 12""")
    else:
        a(f"""s_lshr_b32 s16, s{sI}, 1
s_mul_i32 s16, s16, {BS}
s_and_b32 s{sT0}, s{sI}, 1
s_lshl_b32 s{sT0}, s{sT0}, 5
s_add_u32 s16, s16, s{sT0}
s_lshl_b32 s{sT2}, s{sI}, 11""")
    a(f"""s_mul_i32 s{sT0}, s{sWAVE}, 7168
s_add_u32 s16, s16, s{sT0}
s_add_u32 s16, s16, {X}
s_add_u32 s17, s16, 4096
s_add_u32 s{sT2}, s{sT2}, {H}
s_mul_i32 s30, s{sWAVE}, 7""")
    if wide:
        for i in range(nf):
            a(f"""s_add_u32 s{sT0}, s30, {i}
s_lshr_b32 s{sT1}, s{sT0}, 2
s_lshl_b32 s{sT1}, s{sT1}, 18
s_add_u32 s{23 + i}, s{sT1}, s{sT2}
s_and_b32 s{sT1}, s{sT0}, 2
s_lshl_b32 s{sT1}, s{sT1}, 9
s_add_u32 s{23 + i}, s{23 + i}, s{sT1}
s_and_b32 s{sT1}, s{sT0}, 1
s_lshl_b32 s{sT1}, s{sT1}, 8
s_add_u32 s{23 + i}, s{23 + i}, s{sT1}""")
        a(f"""v_lshrrev_b32 v1, 2, v{vLANE}
v_lshlrev_b32 v{vO}, 4, v1
v_and_b32 v2, 1, v{vLANE}
v_lshl_add_u32 v{vO}, v2, 9, v{vO}
v_bfe_u32 v2, v{vLANE}, 1, 1
v_lshl_add_u32 v{vO}, v2, 11, v{vO}
v_and_b32 v1, 7, v1
v_and_b32 v2, 3, v{vLANE}
v_lshl_add_u32 v1, v2, 3, v1""")
    else:
        a(f"""v_lshrrev_b32 v1, 1, v{vLANE}
v_and_b32 v2, 1, v{vLANE}
v_lshlrev_b32 v{vX}, 6, v1
v_lshl_add_u32 v{vX}, v2, 4, v{vX}
v_mov_b32 v3, {OOB}
v_cmp_gt_u32 vcc, 32, v{vLANE}
v_cndmask_b32 v{vX + 1}, v3, v{vX}, vcc
s_lshl_b32 s30, s30, 4
s_mov_b32 s23, s{sT2}""")
        for i in range(nf):
            a(f"""v_add_u32 v4, s30, v1
v_lshrrev_b32 v5, 6, v4
v_lshlrev_b32 v5, 18, v5
v_bfe_u32 v6, v4, 5, 1
v_lshl_add_u32 v5, v6, 10, v5
v_and_b32 v6, 31, v4
v_lshl_add_u32 v5, v6, 4, v5
v_lshl_add_u32 v{vS + i}, v2, 9, v5""")
            if i < 3:
                a("s_add_u32 s30, s30, 32")
        a(f"""v_cndmask_b32 v{vS + 3}, v3, v{vS + 3}, vcc
v_bfe_u32 v1, v{vLANE}, 2, 3
v_lshl_add_u32 v1, v2, 3, v1""")
    a(f"""v_lshrrev_b32 v3, 5, v{vLANE}
v_lshl_add_u32 v1, v3, 5, v1
s_lshl_b32 s{sT1}, s{sWAVE}, 8
s_add_u32 s{sT1}, s{sT1}, {LNP}
v_lshl_add_u32 v{vPW}, v1, 2, s{sT1}
v_and_b32 v1, 31, v{vLANE}
v_lshlrev_b32 v{vPR}, 2, v1
v_add_u32 v{vPR}, {LNP}, v{vPR}
s_add_u32 s{sT1}, s{sT1}, 1024
v_lshl_add_u32 v{vAW}, v{vLANE}, 2, s{sT1}
v_lshl_add_u32 v{vAR}, v2, 5, s{sT1}
s_mov_b32 s18, 0
s_mov_b32 s19, -1""")
    prod = f"s_lshl_b32 s{sT0}, s{sI}, 6"
    if hinted(eout):
        hint_prep(eout + 10, prod, hr)
    wait_edge(ein, r, r + 2, 118)
    stamp(f"ln{layer} go")

    def loads():
        if not wide:
            return [f"buffer_load_dwordx4 {vr(RAW + 4 * i, 4)}, v{vX + (i == 3)}, {srd(S_WS)}, s{16 + i // 2} offen offset:{2048 * (i % 2)} sc1" for i in range(nf)]
        return [f"buffer_load_dwordx4 {vr(RAW + 4 * i, 4)}, v{vL16}, {srd(S_WS)}, s{16 + i // 4} offen offset:{1024 * (i % 4)} sc1" for i in range(nf)]
    for l in loads():
        a(l)
    if sentinel(ein):
        back, stub = label("lnb"), label("lns")
        chk = maxchain(113, range(RAW, RAW + 4 * nf)) + ["v_cmp_eq_u32 vcc, -1, v113"]
        a(f"s_mov_b32 s{sCNT}, 0")
        for l in chk:
            a(l)
        a(f"s_cbranch_vccnz {stub}")
        a(f"{back}:")
        STUBS.extend([f"{stub}:"] + loads() + ["s_waitcnt vmcnt(0)"] + chk + [f"s_add_u32 s{sCNT}, s{sCNT}, 1", f"s_cbranch_vccz {back}",
                      f"s_cmp_lt_u32 s{sCNT}, {RETRY}", f"s_cbranch_scc1 {stub}", f"s_branch {back}"])
    if hinted(eout) and OPT["h_ln"] == 0:
        a.wait_vm0()
        hint_put(hr)
    if OPT["stamps"] == 1:
        a.wait_vm0()
    count_out(113)
    stamp(f"ln{layer} data", 113)
    for i in range(nf):
        for k in range(4):
            unpack(XF + 8 * i + 2 * k, XF + 8 * i + 2 * k + 1, RAW + 4 * i + k)
        for k in range(4):
            x = vr(XF + 8 * i + 2 * k, 2)
            if i == 0:
                a(f"v_pk_mul_f32 {vr(Q + 2 * k, 2)}, {x}, {x}")
            else:
                a(f"v_pk_fma_f32 {vr(Q + 2 * k, 2)}, {x}, {x}, {vr(Q + 2 * k, 2)}")
                a(f"v_pk_add_f32 {vr(S + 2 * k, 2)}, {vr(XF + 2 * k, 2) if i == 1 else vr(S + 2 * k, 2)}, {x}")
    if hinted(eout) and OPT["h_ln"] == 1:
        hint_put(hr)
    for i in range(8):
        a(f"v_permlane32_swap_b32 v{S + i}, v{Q + i}")
    for i in range(0, 8, 2):
        a(f"v_pk_add_f32 {vr(S + i, 2)}, {vr(S + i, 2)}, {vr(Q + i, 2)}")
    for i in range(4):
        a(f"v_permlane16_swap_b32 v{S + i}, v{S + 4 + i}")
    for i in range(0, 4, 2):
        a(f"v_pk_add_f32 {vr(S + i, 2)}, {vr(S + i, 2)}, {vr(S + 4 + i, 2)}")
    for i in range(2):
        a(f"v_add_f32_dpp v{W + i}, v{S + i}, v{S + i} row_ror:8 row_mask:0xf bank_mask:0x3")
    for i in range(2):
        a(f"v_add_f32_dpp v{W + i}, v{S + 2 + i}, v{S + 2 + i} row_ror:8 row_mask:0xf bank_mask:0xc")
    a(f"v_add_f32_dpp v{S}, v{W}, v{W} row_shl:4 row_mask:0xf bank_mask:0x5")
    a(f"v_add_f32_dpp v{S}, v{W + 1}, v{W + 1} row_shr:4 row_mask:0xf bank_mask:0xa")
    if not wide:
        a(f"v_add_f32_dpp v{S}, v{S}, v{S} quad_perm:[2,3,0,1] row_mask:0xf bank_mask:0xf")
    a(f"ds_write_b32 v{vPW}, v{S}")
    a.barrier()
    if hinted(eout) and OPT["h_ln"] == 2:
        hint_put(hr)
    stamp(f"ln{layer} bar", 113)
    T = 0
    for w in range(4):
        a(f"ds_read2_b32 {vr(T + 2 * w, 2)}, v{vPR} offset0:{w * 64} offset1:{w * 64 + 32}")
    a(f"""v_pk_add_f32 {vr(T, 2)}, {vr(T, 2)}, {vr(T + 2, 2)}
v_pk_add_f32 {vr(T + 4, 2)}, {vr(T + 4, 2)}, {vr(T + 6, 2)}
v_pk_add_f32 {vr(T, 2)}, {vr(T, 2)}, {vr(T + 4, 2)}
v_mul_f32 v{T}, {f32(1 / 448)}, v{T}
v_mul_f32 v{T + 1}, {f32(1 / 448)}, v{T + 1}
v_fma_f32 v{T + 1}, -v{T}, v{T}, v{T + 1}
v_max_f32 v{T + 1}, 0, v{T + 1}
v_add_f32 v{T + 2}, {f32(1e-5)}, v{T + 1}
v_fmamk_f32 v{T + 2}, v{T + 2}, {f32(1e-5)}, v{T + 1}
v_rsq_f32 v{T + 2}, v{T + 2}
v_mul_f32 v{T + 3}, -v{T}, v{T + 2}
v_cndmask_b32 v{T + 2}, v{T + 2}, v{T + 3}, s[18:19]
ds_write_b32 v{vAW}, v{T + 2}""")
    AL, BE = S, Q
    done_hint = []
    a(f"""ds_read_b128 {vr(AL, 4)}, v{vAR}
ds_read_b128 {vr(BE, 4)}, v{vAR} offset:128
ds_read_b128 {vr(AL + 4, 4)}, v{vAR} offset:16
ds_read_b128 {vr(BE + 4, 4)}, v{vAR} offset:144""")
    for i in range(nf):
        for k in range(4):
            x = vr(XF + 8 * i + 2 * k, 2)
            a(f"v_pk_fma_f32 {x}, {x}, {vr(AL + 2 * k, 2)}, {vr(BE + 2 * k, 2)}")
        for k in range(4):
            a(f"v_cvt_pk_bf16_f32 v{RAW + 4 * i + k}, v{XF + 8 * i + 2 * k}, v{XF + 8 * i + 2 * k + 1}")
        a(f"buffer_store_dwordx4 {vr(RAW + 4 * i, 4)}, v{vO if wide else vS + i}, {srd(S_WS)}, s{23 + i if wide else 23} offen sc1", tag="pub")
        if hinted(eout) and OPT["h_ln"] - 3 == min(i, 6) * (4 if nf == 7 else 4) // (nf + 1):
            if not done_hint:
                hint_put(hr)
                done_hint.append(1)
    stamp(f"ln{layer} st", 113)
    if flagged(eout):
        flag_put(eout, prod, 100, "pub")


def gemm_addr():
    a(f"""s_and_b32 s{sT0}, s{sWAVE}, 1
s_lshl_b32 s{sT0}, s{sT0}, 10
v_add_u32 v{vA0}, s{sT0}, v{vL16}
v_xor_b32 v{vA1}, 0x400, v{vA0}""")


vCHK = 121


def gemm_loop(nks, ring, nring, wreg, swap, sent, lds_from=99, at=None):
    WF = 104
    nfr = 2 * nks

    def load(f):
        ks, db = f // 2, f % 2
        g = []
        if db == 0 and ks and ks % 2 == 0:
            g.append(Ins("s_add_u32 s13, s13, 4096"))
            if ks % 4 == 0:
                g += [Ins("s_cmp_eq_u32 s13, s28"), Ins("s_cmov_b32 s13, s27")]
        d = ring + 4 * (f % nring)
        g.append(Ins(f"buffer_load_dwordx4 {vr(d, 4)}, v{(vA0, vA1)[db]}, {srd(S_WS)}, s13 offen offset:{(ks % 2) * 2048} sc1"))
        return g

    def wread(ks):
        g = []
        slot = ks - lds_from
        for nb in range(2):
            for j in range(2):
                d = WF + 8 * (ks % 2) + 4 * nb + 2 * j
                g.append(Ins(f"ds_read_b64_tr_b16 {vr(d, 2)}, v{(vT2a, vT2b)[nb]} offset:{slot * 2048 + j * 1024}", res_r=[f"slot{slot}"]))
        return g

    def check(ks):
        regs = [ring + 4 * ((2 * ks + db) % nring) + k for db in range(2) for k in range(4)]
        chk = maxchain(vCHK, regs) + [f"v_cmp_eq_u32 vcc, -1, v{vCHK}"]
        back, stub = label("gb"), label("gs")
        STUBS.extend([f"{stub}:", f"s_add_u32 s3, s22, {ks * 2048}", "s_cmp_ge_u32 s3, s28", f"s_cselect_b32 s29, {nks * 2048}, 0", "s_sub_u32 s3, s3, s29"] +
                     [f"buffer_load_dwordx4 {vr(ring + 4 * ((2 * ks + db) % nring), 4)}, v{(vA0, vA1)[db]}, {srd(S_WS)}, s3 offen sc1" for db in range(2)] +
                     ["s_waitcnt vmcnt(0)"] + chk + [f"s_add_u32 s{sCNT}, s{sCNT}, 1", f"s_cbranch_vccz {back}",
                                                     f"s_cmp_lt_u32 s{sCNT}, {RETRY}", f"s_cbranch_scc1 {stub}", f"s_branch {back}"])
        return [Ins(x) for x in chk], [Ins(f"s_cbranch_vccnz {stub}"), Ins(f"{back}:")]

    if sent:
        a(f"s_mov_b32 s{sCNT}, 0")
    nxt = min(OPT["fill0"], nring)
    for f in range(nxt):
        a.put(load(f))
    if sent:
        c, b = check(0)
        a.put(c); a.put(b)
    for ks in range(nks):
        if at and ks in at:
            at[ks]()
        pend = wread(ks + 1) if lds_from <= ks + 1 < nks else []
        c, b = check(ks + 1) if (sent and ks + 1 < nks) else ([], [])
        order = [(0, 0), (0, 1), (1, 0), (1, 1)]
        if ks == nks - 1 and OPT["tailord"]:
            order = [(0, 1), (1, 0), (1, 1), (0, 0)]
        if True:
            for nb, db in order:
                acc = vr(16 * (2 * nb + db), 16)
                cc = acc if (ks or (nb | db) == 0) else "0"
                w = wreg(ks, nb) if ks < lds_from else vr(WF + 8 * (ks % 2) + 4 * nb, 4)
                x = vr(ring + 4 * ((2 * ks + db) % nring), 4)
                a(f"v_mfma_f32_32x32x16_bf16 {acc}, {x if swap else w}, {w if swap else x}, {cc}")
                if pend:
                    a.put([pend.pop(0)])
                free = nring + 2 * ks + (db + 1 if nb == 1 else 0)
                if nxt < min(nfr, free) and (nb == 1 or db == 1):
                    a.put(load(nxt))
                    nxt += 1
                if nb == 1 and db == 0:
                    a.put(c)
                if nb == 1 and db == 1:
                    a.put(b)


def gemm_rot(nks, srot):
    a(f"s_mov_b32 s27, s13\ns_add_u32 s28, s13, {nks * 2048}\ns_lshl_b32 s{sT0}, s{srot}, 13\ns_add_u32 s13, s13, s{sT0}\ns_mov_b32 s22, s13")


def gemm_reduce_prep():
    for rel in (1, 2, 3):
        a(f"s_xor_b32 s{23 + rel}, s{sWAVE}, {rel}\ns_mul_i32 s{23 + rel}, s{23 + rel}, 12288")
    a(f"s_mul_i32 s23, s{sWAVE}, 12288")


def gemm_reduce(at_barrier=None):
    for rel in range(4):
        a(f"v_add_u32 v{64 + rel}, s{23 + rel}, v{vL16}")
    for rel in (1, 2, 3):
        for q in range(4):
            a(f"ds_write_b128 v{64 + rel}, {vr(16 * rel + 4 * q, 4)} offset:{RB + (rel - 1) * 4096 + q * 1024}")
    if at_barrier:
        at_barrier[0]()
    a.barrier()
    if at_barrier:
        at_barrier[1]()
    for q in range(4):
        for k in range(3):
            a(f"ds_read_b128 {vr(16 + 16 * k + 4 * q, 4)}, v64 offset:{RB + k * 4096 + q * 1024}")
    for q in range(4):
        for h in range(2):
            r = 4 * q + 2 * h
            a(f"v_pk_add_f32 {vr(16 + r, 2)}, {vr(16 + r, 2)}, {vr(32 + r, 2)}")
            a(f"v_pk_add_f32 {vr(r, 2)}, {vr(r, 2)}, {vr(48 + r, 2)}")
        for h in range(2):
            r = 4 * q + 2 * h
            a(f"v_pk_add_f32 {vr(r, 2)}, {vr(r, 2)}, {vr(16 + r, 2)}")


def gemm1(layer, wide, pre=None, bg=()):
    H = H1 if layer == 0 else H3
    G = G1 if layer == 0 else G3
    gemm_addr()
    a(f"""s_lshr_b32 s{sT0}, s{sWAVE}, 1
s_lshl_b32 s{sT0}, s{sT0}, 6
s_lshl_b32 s{sT1}, s{sNT}, 7
s_add_u32 s{sT0}, s{sT0}, s{sT1}
v_lshrrev_b32 v16, 5, v{vLANE}
v_lshl_add_u32 v16, v16, 3, s{sT0}""")
    for q in range(4):
        a(f"global_load_dwordx2 {vr(20 + 2 * q, 2)}, v16, {sp(P_B1)} offset:{16 * q}")
    r = 32
    a(f"""s_lshl_b32 s{sT0}, s{sWAVE}, 5
v_and_b32 v{r + 2}, 31, v{vLANE}
v_add_u32 v{r + 2}, s{sT0}, v{r + 2}
v_and_b32 v{r + 3}, {31 & ~(32 // OPT['samp'] - 1)}, v{vLANE}
v_add_u32 v{r + 3}, s{sT0}, v{r + 3}
s_lshl_b32 s13, s{sDT1}, 7
s_add_u32 s13, s13, s{sT0}
s_lshl_b32 s13, s13, 11
s_add_u32 s13, s13, {H}""")
    if wide:
        a(f"v_lshrrev_b32 v{r + 2}, 1, v{r + 2}\nv_lshrrev_b32 v{r + 3}, 1, v{r + 3}")
    c0 = -2 * math.log2(math.e) * math.sqrt(2 / math.pi)
    a(f"""s_mov_b32 s{sCA}, {f32(c0 * 0.044715)}
s_mul_i32 s21, s{sDT1}, 112
s_lshl_b32 s{sT0}, s{sNT}, 2
s_add_u32 s21, s21, s{sT0}
s_and_b32 s{sT0}, s{sWAVE}, 2
s_add_u32 s21, s21, s{sT0}
s_lshl_b32 s21, s21, 11
s_add_u32 s21, s21, {G}""")
    gemm_reduce_prep()
    gemm_rot(32, sROT1)
    if pre:
        pre()
    for k in range(8):
        unpack(2 * k, 2 * k + 1, 20 + k)
    ein, eout = 2 + 4 * layer, 3 + 4 * layer
    wait_edge(ein, r, r + 2, r + 3)
    stamp(f"g1_{layer} go", 63)
    prod = f"s_mul_i32 s{sT0}, s{sDT1}, 28\ns_add_u32 s{sT0}, s{sT0}, s{sNT}\ns_lshl_b32 s{sT0}, s{sT0}, 6"
    early = hinted(eout) and OPT["h_g1"] < 0
    at = {32 + OPT["h_g1"]: lambda: (hint_prep(eout + 10, prod, 96), hint_put(96))} if early else None
    assert not early or OPT["h_g1"] >= -6
    gemm_loop(32, 64, 14, lambda ks, nb: f"a[{(ks * 2 + nb) * 4}:{(ks * 2 + nb) * 4 + 3}]", False, sentinel(ein), at=at)
    count_out(100)
    stamp(f"g1_{layer} loop", 100)
    a.begin()
    gemm_reduce((lambda: hint_prep(eout + 10, prod, 72), lambda: hint_put(72) if OPT["h_g1"] == 0 else None) if (hinted(eout) and not early) else None)
    if hinted(eout) and OPT["h_g1"] == 1:
        hint_put(72)
    a(f"v_mov_b32 v48, {f32(c0)}")
    for half in range(2):
        rs = range(8 * half, 8 * half + 8, 2)
        for r in rs:
            a(f"v_pk_mul_f32 {vr(16 + r, 2)}, {vr(r, 2)}, {vr(r, 2)}")
        for r in rs:
            a(f"v_pk_fma_f32 {vr(16 + r, 2)}, {vr(16 + r, 2)}, {sp(sCA)}, {vr(48, 2)} op_sel_hi:[1,0,0]")
        for r in rs:
            a(f"v_pk_mul_f32 {vr(16 + r, 2)}, {vr(16 + r, 2)}, {vr(r, 2)}")
        for r in rs:
            a(f"v_exp_f32 v{16 + r}, v{16 + r}\nv_exp_f32 v{17 + r}, v{17 + r}")
        for r in rs:
            a(f"v_pk_add_f32 {vr(16 + r, 2)}, {vr(16 + r, 2)}, 1.0 op_sel_hi:[1,0]")
        for r in rs:
            a(f"v_rcp_f32 v{16 + r}, v{16 + r}\nv_rcp_f32 v{17 + r}, v{17 + r}")
        for r in rs:
            a(f"v_pk_mul_f32 {vr(r, 2)}, {vr(r, 2)}, {vr(16 + r, 2)}")
        for r in rs:
            a(f"v_cvt_pk_bf16_f32 v{32 + r // 2}, v{r}, v{r + 1}")
        a(f"buffer_store_dwordx4 {vr(32 + 4 * half, 4)}, v{vA0}, {srd(S_WS)}, s21 offen offset:{2048 * half} sc1", tag="pub")
        if hinted(eout) and OPT["h_g1"] == 2 + half:
            hint_put(72)
    m, rest = merge(a.end(), list(bg), 0, OPT["ev_g1"])
    a.put(m)
    if not flagged(eout):
        a.barrier()
    else:
        flag_put(eout, prod, 40, "pub")
    for g in rest:
        a.put(g)


def gemm2(layer):
    G = G1 if layer == 0 else G3
    gemm_addr()
    a(f"""s_lshr_b32 s{sT0}, s{sWAVE}, 1
s_lshl_b32 s{sT0}, s{sT0}, 5
s_lshl_b32 s{sT1}, s{sST}, 6
s_add_u32 s50, s{sT0}, s{sT1}
s_and_b32 s{sT1}, s{sWAVE}, 1
s_lshl_b32 s{sT1}, s{sT1}, 5
s_lshl_b32 s{sT2}, s{sDT2}, 6
s_add_u32 s51, s{sT1}, s{sT2}
s_lshr_b32 s{sT2}, s50, 5
s_mul_i32 s{sT2}, s{sT2}, {BS}
s_lshl_b32 s{sT1}, s51, 6
s_add_u32 s20, s{sT2}, s{sT1}
s_add_u32 s30, s20, {X1 if layer == 0 else X3}
v_and_b32 v16, 31, v{vLANE}
v_lshrrev_b32 v17, 5, v{vLANE}
s_lshl_b32 s{sT0}, s50, 1""")
    r = 42

    def residual_issue():
        if layer == 0:
            for q in range(4):
                a(f"buffer_load_dwordx2 {vr(20 + 2 * q, 2)}, v18, {srd(S_WS)}, s30 offen offset:{16 * q} sc1")
        else:
            a(f"s_mov_b32 m0, s31")
            a(f"buffer_load_dwordx4 v{vL16}, {srd(S_WS)}, s30 offen sc1 lds", res_w=["x3"])
            a(f"buffer_load_dwordx4 v{vL16}, {srd(S_WS)}, s30 offen offset:1024 sc1 lds", res_w=["x3"])

    def residual_use():
        if layer == 0:
            for k in range(8):
                unpack(2 * k, 2 * k + 1, 20 + k)
            for k in range(8):
                unpack(40, 41, 28 + k)
                a(f"v_pk_add_f32 {vr(2 * k, 2)}, {vr(2 * k, 2)}, v[40:41]")
        else:
            for q in range(4):
                a(f"ds_read_b64_tr_b16 {vr(20 + 2 * q, 2)}, v31 offset:{512 * q}", res_r=["x3"])
            a("v_lshlrev_b32 v40, 16, v29")
            for k in range(8):
                unpack(2 * k, 2 * k + 1, 20 + k)
                a(f"v_pk_add_f32 {vr(2 * k, 2)}, {vr(2 * k, 2)}, v[40:41] op_sel_hi:[1,0]")

    if layer == 0:
        a(f"v_lshlrev_b32 v18, 6, v16\nv_lshl_add_u32 v18, v17, 3, v18\nv_lshl_add_u32 v19, v17, 3, s{sT0}")
        for q in range(4):
            a(f"global_load_dwordx2 {vr(28 + 2 * q, 2)}, v19, {sp(P_B2)} offset:{16 * q}")
    else:
        a(f"""v_and_b32 v19, 3, v{vLANE}
s_lshl_b32 s31, s{sWAVE}, 11
v_lshl_add_u32 v28, v16, 1, s{sT0}
global_load_ushort v29, v28, {sp(P_B2)}
v_bfe_u32 v31, v{vLANE}, 2, 2
v_lshl_add_u32 v31, v17, 2, v31
v_lshlrev_b32 v31, 6, v31
v_bfe_u32 v30, v{vLANE}, 4, 1
v_lshl_add_u32 v31, v30, 5, v31
v_lshl_add_u32 v31, v19, 3, v31
v_add_u32 v31, s31, v31""")
    a(f"""s_mul_i32 s{sT0}, s{sDT2}, 28
s_mul_i32 s{sT1}, s{sWAVE}, 7
s_add_u32 s{sT0}, s{sT0}, s{sT1}
v_min_u32 v{r + 2}, 6, v{vLANE}
v_add_u32 v{r + 2}, s{sT0}, v{r + 2}
v_mov_b32 v{r + 3}, v{r + 2}
s_lshl_b32 s13, s{sT0}, 13
s_add_u32 s13, s13, {G}""")
    if layer == 0:
        a(f"""s_add_u32 s21, s20, {X2}
s_lshl_b32 s19, s50, 1
s_add_u32 s19, s19, {ST1}""")
    else:
        a(f"s_mul_i32 s{sT0}, s50, 896\ns_lshl_b32 s{sT1}, s51, 1\ns_add_u32 s21, s{sT0}, s{sT1}")
    gemm_reduce_prep()
    gemm_rot(28, sROT2)
    lskip, ljoin = label("res"), label("resj")
    a(f"s_cmp_eq_u32 s{sR1}, 0")
    a(f"s_cbranch_scc1 {lskip}")
    residual_issue()
    residual_use()
    wait_edge(3 + 4 * layer, r, r + 2, r + 3)
    a(f"s_branch {ljoin}")
    a(f"{lskip}:")
    wait_edge(3 + 4 * layer, r, r + 2, r + 3)
    residual_issue()
    residual_use()
    a(f"{ljoin}:")
    stamp(f"g2_{layer} go", 63)
    gemm_loop(28, 64, 10, lambda ks, nb: vr(128 + (ks * 2 + nb) * 4, 4), layer == 1, sentinel(3 + 4 * layer), lds_from=16)
    count_out(100)
    stamp(f"g2_{layer} loop", 100)

    def addr():
        a(f"v_and_b32 v68, 31, v{vLANE}\nv_lshrrev_b32 v69, 5, v{vLANE}")
        if layer == 0:
            a(f"""v_and_b32 v70, 15, v{vLANE}
v_lshlrev_b32 v70, 6, v70
v_lshl_add_u32 v70, v69, 4, v70
v_bfe_u32 v71, v{vLANE}, 4, 1
v_lshl_add_u32 v70, v71, 5, v70
v_bfe_u32 v71, v{vLANE}, 2, 2
v_lshlrev_b32 v71, 4, v71
v_bfe_u32 v68, v{vLANE}, 4, 1
v_lshl_add_u32 v71, v68, 3, v71
v_and_b32 v68, 1, v{vLANE}
v_lshl_add_u32 v71, v68, 2, v71
v_bfe_u32 v68, v{vLANE}, 1, 1
v_lshl_add_u32 v68, v69, 1, v68
v_lshl_add_u32 v71, v68, 12, v71""")
        else:
            a(f"v_mul_u32_u24 v70, 896, v68\nv_lshl_add_u32 v70, v69, 4, v70")
    prod = f"s_lshl_b32 s{sT0}, s{sDT2}, 5\ns_add_u32 s{sT0}, s{sT0}, s{sST}\ns_lshl_b32 s{sT0}, s{sT0}, 6"
    hn = layer == 0 and hinted(4)

    def pre():
        addr()
        if hn:
            hint_prep(14, prod, 80)
    gemm_reduce((pre, lambda: hint_put(80) if (hn and OPT["h_g2"] == 0) else None))
    if hn and OPT["h_g2"] == 1:
        hint_put(80)
    PK = 72
    stamp(f"g2_{layer} red", 100)
    for half in range(2):
        b = PK + 4 * half
        for k in range(4):
            a(f"v_cvt_pk_bf16_f32 v{b + k}, v{8 * half + 2 * k}, v{8 * half + 2 * k + 1}")
        a(f"v_permlane32_swap_b32 v{b}, v{b + 2}")
        a(f"v_permlane32_swap_b32 v{b + 1}, v{b + 3}")
        if layer == 1:
            a(f"buffer_store_dwordx4 {vr(b, 4)}, v70, {srd(S_OUT)}, s21 offen offset:{32 * half} {('', 'nt', 'sc1')[OPT['ofl']]}")
    if layer == 1:
        return
    for k in range(4):
        a(f"v_permlane16_swap_b32 v{PK + k}, v{PK + 4 + k}")
    for half in range(2):
        a(f"buffer_store_dwordx4 {vr(PK + 4 * half, 4)}, v70, {srd(S_WS)}, s21 offen offset:{1024 * half} sc1", tag="pub")
    if hn and OPT["h_g2"] == 2:
        hint_put(80)
    for k in range(8):
        a(f"v_pk_mul_f32 {vr(20 + 2 * k, 2)}, {vr(2 * k, 2)}, {vr(2 * k, 2)}")
    res = reduce32(list(range(16)) + list(range(20, 36)), 16, list(range(40, 48)))
    assert res == [0, 1, 2, 3]
    a(f"""v_cndmask_b32 v0, v0, v1, {sp(sM1)}
v_cndmask_b32 v2, v2, v3, {sp(sM1)}
v_cndmask_b32 v0, v0, v2, {sp(sM2)}""")
    a(f"buffer_atomic_add_f32 v0, v71, {srd(S_WS)}, s19 offen sc1", tag="pub")
    if hn and OPT["h_g2"] == 3:
        hint_put(80)
    stamp("g2_0 atom", 100)
    flag_put(4, prod, 40, "pub")
    stamp("g2_0 flag", 100)


def skip_unless(role):
    l = label("skip")
    a(f"s_cmp_eq_u32 s{role}, 0")
    a(f"s_cbranch_scc1 {l}")
    return l


def dmas(n0, n1):
    return [w_dma(n, h) for n in range(n0, n1) for h in range(2)]


def tr_dma(n0, n1):
    g = []
    for n in range(n0, n1):
        g.append(w_tr(n))
        if n > n0:
            g += dmas(n + 11, n + 12)
    g += dmas(n1 + 11, n1 + 12)
    return g


def wseq():
    nB = OPT["wB"] // 2
    assert 36 <= nB <= 60
    g = dmas(0, 12) + tr_dma(0, nB - 12)
    lastT = 48 if (nB >= 48 and OPT["wT"]) else 36
    g += [w_tr(n) for n in range(nB - 12, lastT)]
    g.append([])
    d = nB
    for n in range(max(lastT, nB - 12), 49):
        while d < min(n + 11, 60) or (n == 48 and d < 60):
            g += dmas(d, d + 1)
            d += 1
        if n < 48:
            g.append(w_tr(n))
    return g


def wcut(n_dma):
    k = 0
    for p, g in enumerate(wseq()):
        if k == n_dma:
            return p
        k += any(i.kind == "dma" for i in g)
    return len(wseq())


def put_all(gs):
    for g in gs:
        a.put(g)


def w2_touch(r):
    return [Ins(f"v_lshlrev_b32 v{r}, 12, v{vLANE}"), Ins(f"buffer_load_dword v{r}, v{r}, {srd(S_W2)}, s{sW2O} offen")]


def build():
    if OPT["w2t"]:
        WORDER[:] = list(range(60))
    cA, cP, cL, cB = wcut(OPT["wA"]), wcut(OPT["wP"]), wcut(OPT["wL"]), wseq().index([])
    cK = wcut(OPT["wK"])
    prologue()
    laux, ljoin = label("aux"), label("join")
    a(f"s_cmp_eq_u32 s{sRC}, 0")
    a(f"s_cbranch_scc1 {laux}")
    xt_loads()
    kgen_table_load()
    code_warm(1)
    w_setup()
    put_all(wseq()[:cA])
    conv_setup(0)
    stamp("start", 2)

    xt_poll_addr(63, 2)
    xt_work()

    def h_flag():
        nonce_take()
        flag_put(0, sPAIR, 104, "st0")
        stamp("flag", 0)
        a(f"global_load_dwordx4 {vr(TAB, 4)}, v75, {sp(sTAB)}")
        a(f"global_load_dwordx4 {vr(TAB + 4, 4)}, v75, {sp(sTAB)} offset:16")
        a(f"global_load_dwordx2 v[0:1], v75, {sp(sTAB)} offset:32")

    hooks = {}
    for pos, fn in ((OPT["h_flag"], h_flag), (OPT["h_w"], lambda: KBG.extend(wseq()[cA:cK] + ([w2_touch(75)] if OPT["w2t"] else []))), (OPT["h_poll"], lambda: poll_issue(0, 64, 63))):
        hooks.setdefault(pos, []).append(fn)
    assert OPT["h_flag"] <= OPT["h_w"] and OPT["h_poll"] >= 6
    kgen({k: (lambda fs=fs: [f() for f in fs]) for k, fs in hooks.items()})
    dump_lds(1)
    stamp("kgen", 21)

    def mid():
        poll_take(64, 63)
        stamp("e1 seen", 0)
        conv_loads()
        put_all(wseq()[cK:cP])
    wr = kexpand(mid)
    if OPT["mixpro"]:
        mv = [i for i in wr if i.kind != "dsw"]
        st = [i for i in wr if i.kind == "dsw"]
        pro = a.capture(conv_pro, 0)
        k = next(n for n, i in enumerate(pro) if i.defs & {f"v{r}" for r in range(0, 22)})
        a.put(mv)
        a.put(st[2:4])
        head, rest = merge(pro[:k], [[i] for i in st[4:6] + st[:2] + st[6:]], 0, 14)
        a.put(head)
        early = [g for g in rest if g[0].uses & {f"v{r}" for r in range(0, 22)}]
        put_all(early)
        rest = [g for g in rest if g not in early]
        k2 = next(n for n, i in enumerate(pro) if i.kind == "dsw")
        mid2, rest = merge(pro[k:k2], rest, 0, 30)
        a.put(mid2)
        put_all(rest)
        a.put(pro[k2:])
        stamp("expand", 111)
    else:
        a.put(wr)
        stamp("expand")
        conv_pro(0)
    if sentinel(1):
        a(f"v_min_u32 v{cvP + 2}, 27, v{vLANE}")
        poll_issue(8, cvP)
    a.barrier()
    dump_lds(2)
    stamp("conv0 go", 111)
    put_all(conv_main(0, wseq()[cP:cL], OPT["st_conv"], OPT["ev_conv"]))
    stamp("conv0 done")
    a(f"s_branch {ljoin}")
    a(f"{laux}:")
    aux_loads()
    kgen_table_addr()
    code_warm(1)
    w_setup()
    aux_work()
    stamp("aux e1")
    if OPT["g7"]:
        lg = label("g7")
        a(f"""s_cmp_lg_u32 s{sR1}, 0
s_cbranch_scc1 {lg}
s_lshr_b32 s{sT0}, s{sX}, 2
s_sub_u32 s{sT0}, s{sJ}, s{sT0}
s_sub_u32 s{sT0}, s{sT0}, 28
s_lshl_b32 s{sT0}, s{sT0}, 3
s_add_u32 s{sT0}, s{sT0}, s{sX}
s_lshl_b32 s{sT0}, s{sT0}, 7
s_mul_i32 s{sT1}, s{sWAVE}, {512 * 3584}
s_add_u32 s{sT0}, s{sT0}, s{sT1}
s_add_u32 s{sT0}, s{sT0}, {448 * 3584}
v_mul_u32_u24 v90, 3584, v{vLANE}
v_add_u32 v90, s{sT0}, v90""")
        a(f"global_load_dword v90, v90, {sp(P_W1)}")
        a(f"{lg}:")
    if armed(0):
        assert OPT["map18"] == 1
        lnf = label("nf")
        a(f"s_cmp_lg_u32 s{sR1}, 0\ns_cbranch_scc1 {lnf}")
        a(f"s_sub_u32 s16, s{sAUX}, 4\ns_cselect_b32 s16, s{sAUX}, s16")
        if sentinel(1):
            fill(X1, -(-15 * 32 // 28), 80, 16, 28 * 4096, "fill")
            flag_put(8, 16, 72, "fill")
        if sentinel(2) or sentinel(3):
            fill(H1 if sentinel(2) else G1, -(-(14 * sentinel(2) + 13 * sentinel(3)) * 32 // 28), 80, 16, 28 * 4096, "fill")
            flag_put(18, 16, 72, "fill")
        a(f"{lnf}:")
    stamp("aux fill")
    cX = min(wcut(72), cB)
    if OPT["w2t"]:
        a.put(w2_touch(75))
    put_all(wseq()[:cX])
    if sentinel(1):
        a(f"v_min_u32 v62, 27, v{vLANE}")
        poll_issue(8, 60)
        poll_take(60)
    a.wait_vm0()
    stamp("aux w")
    a(f"{ljoin}:")
    if sentinel(2) or sentinel(3):
        a(f"v_min_u32 v62, 27, v{vLANE}")
        poll_issue(18, 60)
        poll_take(60)
    for layer in range(2):
        if layer == 1:
            l = skip_unless(sRC)
            conv_setup(1)
            conv_poll1()
            stamp("conv1 ready")
            if OPT["kc_in"] and not hinted(4):
                a.wait_tag("flag")
                poll_issue(4, cvP)
                kcopies()
                poll_take(cvP)
            else:
                kcopies()
                wait_edge(4, cvP, cvP + 2, cvP + 3)
            stamp("conv1 poll")
            conv_loads()
            conv_pro(1)
            if armed(1):
                a(f"v_and_b32 v{cvP + 2}, 31, v{vLANE}")
                poll_issue(9, cvP)
            a.barrier()
            dump_lds(3)
            stamp("conv1 go", 111)
            conv_main(1)
            stamp("conv1 done")
            if armed(1):
                lj = label("cvj")
                a(f"s_branch {lj}")
                a(f"{l}:")
                a(f"v_and_b32 v62, 31, v{vLANE}")
                poll_issue(9, 60)
                poll_take(60)
                a(f"{lj}:")
            else:
                a(f"{l}:")
        wide = OPT["ln1w"] if layer else OPT["ln0w"]
        l = skip_unless(sRL0 if wide else sRL)
        ln(layer, wide)
        stamp(f"ln{layer} done")
        a(f"{l}:")
        if layer == 0:
            l = skip_unless(sRC)
            put_all(wseq()[cL:cX])
            a(f"{l}:")
            put_all(wseq()[cX:cB])
            stamp("w B")
            tail = wseq()[cB:]
            assert not any(i.kind == "dsr" and "a[" in i.text for g in tail for i in g)
            lelse, lj = label("ng1"), label("g1j")
            a(f"s_cmp_eq_u32 s{sR1}, 0")
            a(f"s_cbranch_scc1 {lelse}")
            gemm1(0, wide, None, tail)
            nonce_retire()
            stamp("g1_0 done")
            a(f"s_branch {lj}")
            a(f"{lelse}:")
            put_all(wseq()[cB:])
            a(f"{lj}:")
        else:
            l = skip_unless(sR1)
            gemm1(1, wide)
            stamp("g1_1 done")
            a(f"{l}:")
        l = skip_unless(sR2)
        gemm2(layer)
        if layer == 0 and armed(1):
            lj = label("g2j")
            a(f"s_branch {lj}")
            a(f"{l}:")
            if OPT["map18"]:
                a(f"s_lshl_b32 s16, s{sX}, 2\ns_add_u32 s16, s16, s{sJ}")
            else:
                a(f"s_lshr_b32 s16, s{sX}, 1\ns_lshl_b32 s16, s16, 3\ns_add_u32 s16, s16, s{sJ}")
            fill(X3, 42, 72, 16, CH)
            flag_put(9, 16, 8, "st0")
            a(f"{lj}:")
        else:
            a(f"{l}:")
        stamp("g2_0 done" if layer == 0 else "end")
    if OPT["stamps"] and OPT["dbgwg"] < 0:
        l = label("ls")
        a(f"s_cmp_lg_u32 s{sWAVE}, 0\ns_cbranch_scc1 {l}\ns_waitcnt vmcnt(0)\ns_memrealtime {sp(sSTAMP)}\ns_waitcnt lgkmcnt(0)")
        a(f"s_lshl_b32 s3, s2, 8\ns_add_u32 s3, s3, {STAMPS + 248}\nv_mov_b32 v0, s101\nv_mov_b32 v1, s{sSTAMP}\ns_mov_b64 exec, 1")
        a(f"buffer_store_dwordx2 v[0:1], off, {srd(S_WS)}, s3")
        a(f"{l}:")
    if OPT["fixdur"]:
        a(f"s_waitcnt vmcnt(0) lgkmcnt(0)\nL_fix:\ns_memrealtime s[28:29]\ns_waitcnt lgkmcnt(0)\ns_sub_u32 s28, s28, s101\ns_cmp_lt_u32 s28, {OPT['fixdur']}\ns_cbranch_scc1 L_fix")
    a("s_endpgm")


def bf16_round_int(l):
    b = struct.unpack("<I", struct.pack("<f", float(l)))[0]
    b = (b + 0x7FFF + ((b >> 16) & 1)) & 0xFFFF0000
    return int(struct.unpack("<f", struct.pack("<I", b))[0])


def ktab():
    vals = []
    for c in range(2):
        for x in range(2048):
            lr = bf16_round_int(2047 - x)
            aa, rem = lr >> 7, lr & 127
            j, e = rem >> 3, rem & 7
            if aa < 2:
                rho = 8 * aa + e
            elif aa < 4:
                rho = 4 * aa + 8 + (e >> 1)
            elif aa < 8:
                rho = 16 + 2 * aa + (e >> 2)
            else:
                rho = 24 + aa
            vals.append((rho >> 2) * 256 + j * 16 + (rho & 3) * 4 + c * 2 * GST)
        vals += [3072 + c * 2 * GST] * 16
    lines = []
    for i in range(0, len(vals), 16):
        lines.append("    .short " + ", ".join(str(v) for v in vals[i:i + 16]))
    return "\n".join(lines)


def main(path):
    build()
    ins = a.finish()
    ref = open(f"cdna_kernels/{NAME}.s.ref").read().split("\n")
    head = [l for l in ref if l.startswith(";") and "@launch" not in l and not l.startswith("; Override") and not l.startswith("; grid=ceil")]
    k = NAME + "_kernel"
    s = "\n".join(head) + f"\n; @launch grid=(256,1,1) block=(256,1,1) lds={LDS_BYTES}\n"
    s += f""".amdgcn_target "amdgcn-amd-amdhsa--gfx950"
.text
.globl {k}
.p2align 8
.type {k},@function
{k}:
L_entry:
"""
    s += Prog.render(ins)
    s += "".join((l if l.endswith(":") else "    " + l) + "\n" for l in STUBS)
    s += f""".p2align 6
.type ktab,@object
ktab:
{ktab()}
.size ktab, 8256
.section .rodata,"a"
.p2align 6
.amdhsa_kernel {k}
  .amdhsa_next_free_vgpr 512
  .amdhsa_next_free_sgpr 102
  .amdhsa_accum_offset 256
  .amdhsa_group_segment_fixed_size 0
  .amdhsa_kernarg_size 136
  .amdhsa_user_sgpr_count 2
  .amdhsa_user_sgpr_kernarg_segment_ptr 1
  .amdhsa_system_sgpr_workgroup_id_x 1
  .amdhsa_float_denorm_mode_32 3
.end_amdhsa_kernel
"""
    open(path, "w").write(s)
    n = sum(1 for i in ins if i.kind not in ("label", "comment"))
    open(path + ".names", "w").write("\n".join(STAMP_NAMES))
    print("instructions:", n, "nops:", sum(1 for i in ins if i.kind == "nop"), "waits:", sum(1 for i in ins if i.kind == "wait"))


if __name__ == "__main__":
    path = sys.argv[1]
    for kv in sys.argv[2:]:
        k, v = kv.split("=")
        OPT[k] = v if k in ('em', 'probe') else int(v)
    main(path)
```

```python
import sys, math, struct
from asmlib import *

NAME = "interleave_layers__ssm_conv_s4__mixer_token_mlp__prompt"
OPT = dict(stamps=False, stop=99, upfront=True, dump=0, dbgwg=-1, fixdur=0, em='FSSFDSS', warm=1, h_flag=2, h_w=2, h_poll=9, h_ln=2, h_cv=0, h_g1=0, h_g2=0, rot=1, wA=0, wK=8, wP=8, wL=16, wB=120, wT=1, lag=2, gap=3, st_conv=100, ev_conv=150, ev_g1=100000, fill0=14, ln1w=0, ln0w=1, chk=1, samp=8, map18=1, ofl=0, tailord=1, cv=1, clk=0, ev_kg=150, mixpro=1, now=0, probe='', kc_in=0, w2t=0, g7=0, rl=4, bfr=1)
DBG_SEL = ['start', 'kgen', 'conv0 go', 'ln0 go', 'g1_0 go', 'g1_0 loop', 'g2_0 go', 'g2_0 loop', 'conv1 poll', 'ln1 go', 'g1_1 go', 'g2_1 go', 'end']
STAMP_NAMES = []

EPOCH = 0
ST0 = 0x1000
ST1 = 0x8000
STAMPS = 0x20000
FL = 0x100000
BS = 448 * 64 + 128
CH = 0x20000
X1 = 0x400000
H1 = X1 + 15 * CH
G1 = H1 + 14 * CH
X3 = G1 + 13 * CH
H3 = X3 + 15 * CH
G3 = H3 + 14 * CH
X2 = G3 + 13 * CH
X0 = X2 + 15 * CH
FILL1, FILL3 = 6, 36
WS_BYTES = 268435456
OOB = 0x40000000

KST = 4160
KSLOT = {0: [0, 5, 2, 3], 1: [1, 6, 7, 4]}
UB = 8 * KST
UPAD = 1024
UST = 4096 + UPAD
ZB = UB + 2 * UST
EX = 2 * KST
RB = 2 * KST
GST = 15616
GROW = 272
TOFF = 12288
LNP = 57472
PERM = 61440
W2L = 65536
LDS_BYTES = 163840

sWAVE, sX, sJ, sPAIR, sDT1, sNT, sDT2, sST, sLN = 4, 5, 6, 7, 8, 9, 10, 11, 12
sNONCE = 14
P_U, P_ARE, P_AIM, P_BRE, P_BIM, P_CRE, P_CIM, P_LDT = 16, 18, 20, 22, 24, 26, 28, 30
P_DSK, P_W1, P_B1, P_W2, P_B2, P_OUT, P_DBG, P_WS = 32, 36, 38, 40, 42, 44, 46, 48
S_WS, S_W1, S_W2, S_X0, S_OUT = 52, 56, 60, 64, 68
sD0, sD1 = 72, 74
sLDT = 76
sEP = 78
sWOFF, sT0, sT1, sT2, sT3, sCNT = 80, 81, 82, 83, 84, 85
sRC, sR1, sR2, sRL = 86, 87, 88, 89
sM1, sM2 = 90, 92
sSTAMP = 94
sTAB = 96
sLN0, sRL0 = 77, 73
sCA, sCB = 34, 100

vLANE, vL16, vT2a, vT2b, vT1a, vT1b, vD1, vD2 = 127, 126, 125, 124, 123, 122, 121, 120
vA0, vA1 = 123, 122


def srd(n):
    return f"s[{n}:{n + 3}]"


def sp(n):
    return f"s[{n}:{n + 1}]"


def vr(n, k):
    return f"v[{n}:{n + k - 1}]" if k > 1 else f"v{n}"


def f32(x):
    return "0x%08x" % struct.unpack("<I", struct.pack("<f", x))[0]


a = Prog()
_lab = [0]


def label(p):
    _lab[0] += 1
    return f"L_{p}_{_lab[0]}"


_stamp = [0]


def stamp(name, r=1):
    k = _stamp[0]
    _stamp[0] += 1
    STAMP_NAMES.append(name)
    a("; MARK after " + name)
    if OPT["probe"] == name.replace(" ", "_"):
        a(f"s_memrealtime {sp(sSTAMP)}\ns_waitcnt lgkmcnt(0)\ns_mov_b32 s101, s{sSTAMP}")
    if OPT["stamps"] != 1:
        return
    l = label("st")
    if OPT["dbgwg"] >= 0:
        if name not in DBG_SEL:
            return
        a(f"s_lshl_b32 s3, s{sWAVE}, 8\ns_add_u32 s3, s3, s2\ns_cmp_lg_u32 s3, {OPT['dbgwg']}\ns_cbranch_scc1 {l}")
        a(f"s_memrealtime {sp(sSTAMP)}")
        a("s_waitcnt lgkmcnt(0)")
        a(f"s_mov_b64 exec, 1\nv_mov_b32 v{r}, s{sSTAMP}\ns_mov_b32 s{sSTAMP}, s{P_DBG}\ns_mov_b32 s{sSTAMP + 1}, s{P_DBG + 1}\ns_mov_b32 s{sSTAMP + 2}, 256\ns_mov_b32 s{sSTAMP + 3}, 0x20000".replace(f"s{sSTAMP}, s{P_DBG}", f"s64, s{P_DBG}").replace(f"s{sSTAMP + 1}, s{P_DBG + 1}", f"s65, s{P_DBG + 1}").replace(f"s{sSTAMP + 2}, 256", "s66, 256").replace(f"s{sSTAMP + 3}, 0x20000", "s67, 0x20000"))
        a(f"buffer_store_dword v{r}, off, s[64:67], 0 offset:{12 + 4 * DBG_SEL.index(name)} sc1", optional=True)
        a("s_mov_b64 exec, -1")
        a(f"{l}:")
        return
    a(f"s_cmp_lg_u32 s{sWAVE}, 0")
    a(f"s_cbranch_scc1 {l}")
    a(f"{'s_memtime' if OPT['clk'] else 's_memrealtime'} {sp(sSTAMP)}")
    a("s_waitcnt lgkmcnt(0)")
    a(f"s_lshl_b32 s3, s2, 8")
    a(f"s_add_u32 s3, s3, {STAMPS + 4 * k}")
    a(f"v_mov_b32 v{r}, s{sSTAMP}")
    a("s_mov_b64 exec, 1")
    a(f"buffer_store_dword v{r}, off, {srd(S_WS)}, s3", optional=True)
    a("s_mov_b64 exec, -1")
    a(f"{l}:")


_cnt = [0]


def count_out(r):
    if OPT["stamps"] != 1:
        return
    k = _cnt[0]
    _cnt[0] += 1
    a(f"s_lshl_b32 s3, s2, 2\ns_add_u32 s3, s3, s{sWAVE}\ns_lshl_b32 s3, s3, 5\ns_add_u32 s3, s3, {STAMPS + 0x10000 + 4 * k}")
    a(f"v_mov_b32 v{r}, s{sCNT}\ns_mov_b64 exec, 1")
    a(f"buffer_store_dword v{r}, off, {srd(S_WS)}, s3")
    a("s_mov_b64 exec, -1")


DUMP = 0x2000000


def dump_lds(point, r=96):
    if OPT["dump"] != point:
        return
    a.barrier()
    a(f"s_lshl_b32 s3, s{sWAVE}, 10\nv_add_u32 v{r + 4}, s3, v{vL16}\ns_lshl_b32 s3, s2, 16\ns_add_u32 s3, s3, {DUMP}")
    for i in range(16):
        a(f"ds_read_b128 {vr(r, 4)}, v{r + 4} offset:{i * 4096}")
        a(f"buffer_store_dwordx4 {vr(r, 4)}, v{r + 4}, {srd(S_WS)}, s3 offen")
        a("s_add_u32 s3, s3, 4096")
        a.wait_vm0()
    a.barrier()


def cmul(d, x, y):
    return [f"v_pk_mul_f32 {vr(d, 2)}, {vr(x, 2)}, {vr(y, 2)} op_sel:[1,1] op_sel_hi:[1,0] neg_lo:[0,1]",
            f"v_pk_fma_f32 {vr(d, 2)}, {vr(x, 2)}, {vr(y, 2)}, {vr(d, 2)} op_sel_hi:[0,1,1]"]


def cmul2(p, q=None):
    x = cmul(*p)
    if q is None:
        a(x[0]); a(x[1])
        return
    y = cmul(*q)
    a(x[0]); a(y[0]); a(x[1]); a(y[1])


def unpack(dlo, dhi, s):
    a(f"v_lshlrev_b32 v{dlo}, 16, v{s}")
    a(f"v_and_b32 v{dhi}, 0xffff0000, v{s}")


def prologue():
    a("s_cmp_lt_u32 s2, 256")
    a("s_cbranch_scc1 L_start")
    a("s_endpgm")
    a("L_start:")
    if OPT["fixdur"] or OPT["stamps"]:
        a("s_memrealtime s[50:51]")
    a("s_load_dwordx16 s[16:31], s[0:1], 0")
    a("s_load_dwordx16 s[32:47], s[0:1], 64")
    a("s_load_dwordx2 s[48:49], s[0:1], 128")
    a(f"v_lshrrev_b32 v1, 6, v0")
    a(f"v_and_b32 v{vLANE}, 63, v0")
    a(f"v_readfirstlane_b32 s{sWAVE}, v1")
    a(f"v_lshlrev_b32 v{vL16}, 4, v{vLANE}")
    a(f"""s_and_b32 s{sX}, s2, 7
s_lshr_b32 s{sJ}, s2, 3
s_add_u32 s{sJ}, s{sJ}, 28
s_and_b32 s{sJ}, s{sJ}, 31
""")
    a(f"""s_lshr_b32 s{sT0}, s{sX}, 2
s_mul_i32 s{sPAIR}, s{sX}, 28
s_sub_u32 s{sRC}, s{sJ}, s{sT0}
s_add_u32 s{sPAIR}, s{sPAIR}, s{sRC}
s_cmp_lt_u32 s{sRC}, 28
s_cselect_b32 s{sRC}, 1, 0
s_mul_i32 s{sT2}, s{sJ}, 37
s_lshr_b32 s{sT2}, s{sT2}, 8
s_mul_i32 s{sT3}, s{sT2}, 7
s_sub_u32 s{sDT1}, s{sJ}, s{sT3}
s_lshl_b32 s{sNT}, s{sT2}, 3
s_add_u32 s{sNT}, s{sNT}, s{sX}
s_sub_u32 s{sT1}, s{sJ}, 4
s_cselect_b32 s{sR2}, 0, 1
s_and_b32 s{sT1}, s{sT1}, 31
s_mul_i32 s{sT2}, s{sT1}, 37
s_lshr_b32 s{sT2}, s{sT2}, 8
s_mul_i32 s{sT3}, s{sT2}, 7
s_sub_u32 s{sDT2}, s{sT1}, s{sT3}
s_lshl_b32 s{sST}, s{sX}, 2
s_add_u32 s{sST}, s{sST}, s{sT2}
s_cmp_eq_u32 s{sJ}, 0
s_cselect_b32 s{sT1}, 32, s{sJ}
s_mul_i32 s{sT2}, s{sX}, 12
s_add_u32 s{sT2}, s{sT2}, s{sT1}
s_sub_u32 s{sT2}, s{sT2}, 53
s_lshl_b32 s{sT3}, s{sX}, 2
s_add_u32 s{sT3}, s{sT3}, s{sJ}
s_sub_u32 s{sT3}, s{sT3}, 28
s_cmp_lg_u32 s{sT0}, 0
s_cselect_b32 s{sT1}, s{sT1}, s{sJ}
s_cselect_b32 s{sLN0}, s{sT2}, s{sT3}
s_cselect_b32 s{sRL0}, 21, 28
s_cmp_ge_u32 s{sT1}, s{sRL0}
s_cselect_b32 s{sRL0}, 1, 0""" if OPT["map18"] == 1 else f"""s_and_b32 s{sT0}, s{sX}, 1
s_lshr_b32 s{sT1}, s{sX}, 1
s_mul_i32 s{sPAIR}, s{sX}, 28
s_sub_u32 s{sRC}, s{sJ}, s{sT0}
s_add_u32 s{sPAIR}, s{sPAIR}, s{sRC}
s_cmp_lt_u32 s{sRC}, 28
s_cselect_b32 s{sRC}, 1, 0
s_mul_i32 s{sT2}, s{sJ}, 37
s_lshr_b32 s{sT2}, s{sT2}, 8
s_mul_i32 s{sT3}, s{sT2}, 7
s_sub_u32 s{sT3}, s{sJ}, s{sT3}
s_mul_i32 s{sNT}, s{sT1}, 7
s_add_u32 s{sNT}, s{sNT}, s{sT3}
s_lshl_b32 s{sT3}, s{sT0}, 2
s_add_u32 s{sDT1}, s{sT2}, s{sT3}
s_lshl_b32 s{sST}, s{sT0}, 3
s_sub_u32 s{sST}, s{sJ}, s{sST}
s_cselect_b32 s{sR2}, 0, 1
s_lshr_b32 s{sDT2}, s{sST}, 3
s_and_b32 s{sDT2}, s{sDT2}, 3
s_add_u32 s{sDT2}, s{sDT2}, s{sT3}
s_and_b32 s{sST}, s{sST}, 7
s_lshl_b32 s{sLN0}, s{sT1}, 4
s_lshl_b32 s{sT1}, s{sT1}, 3
s_add_u32 s{sST}, s{sST}, s{sT1}
s_cmp_eq_u32 s{sJ}, 0
s_cselect_b32 s{sT1}, 32, s{sJ}
s_mul_i32 s{sT2}, s{sT0}, 11
s_add_u32 s{sT2}, s{sT2}, s{sT1}
s_cmp_lg_u32 s{sT0}, 0
s_cselect_b32 s{sT1}, s{sT1}, s{sJ}
s_cselect_b32 s{sT2}, s{sT2}, s{sJ}
s_cselect_b32 s{sRL0}, 21, 28
s_cmp_ge_u32 s{sT1}, s{sRL0}
s_cselect_b32 s{sRL0}, 1, 0
s_add_u32 s{sLN0}, s{sLN0}, s{sT2}
s_sub_u32 s{sLN0}, s{sLN0}, 28""")
    if OPT["map18"] == 2:
        a(f"""s_sub_u32 s{sT1}, s{sJ}, 4
s_cselect_b32 s{sR2}, 0, 1
s_and_b32 s{sT1}, s{sT1}, 31
s_mul_i32 s{sT2}, s{sT1}, 37
s_lshr_b32 s{sT2}, s{sT2}, 8
s_mul_i32 s{sT3}, s{sT2}, 7
s_sub_u32 s{sDT2}, s{sT1}, s{sT3}
s_lshl_b32 s{sST}, s{sX}, 2
s_add_u32 s{sST}, s{sST}, s{sT2}""")
    a(f"""s_lshl_b32 s{sLN}, s{sX}, 4
s_add_u32 s{sLN}, s{sLN}, s{sJ}
s_sub_u32 s{sLN}, s{sLN}, 8
s_mul_i32 s{sT2}, s{sT0}, 7
s_sub_u32 s{sT2}, 28, s{sT2}
s_cmp_lt_u32 s{sJ}, s{sT2}
s_cselect_b32 s{sR1}, 1, 0
s_sub_u32 s{sT2}, s{sJ}, 8
s_cmp_lt_u32 s{sT2}, 16
s_cselect_b32 s{sRL}, 1, 0
s_min_u32 s{sPAIR}, s{sPAIR}, 223
s_mov_b32 s{sM1}, 0xaaaaaaaa
s_mov_b32 s{sM1 + 1}, 0xaaaaaaaa
s_mov_b32 s{sM2}, 0xcccccccc
s_mov_b32 s{sM2 + 1}, 0xcccccccc""")
    a("s_waitcnt lgkmcnt(0)")
    if OPT["fixdur"] or OPT["stamps"]:
        a("s_mov_b32 s101, s50")
    a(f"""s_lshl_b32 s{sT0}, s{sPAIR}, 2
s_load_dword s{sLDT}, {sp(P_LDT)}, s{sT0}
s_load_dword s{sD0}, {sp(P_DSK)}, s{sT0}
s_load_dwordx2 {sp(sNONCE)}, {sp(P_WS)}, {EPOCH}""")
    kgen_loads()
    for n, p, size in ((S_X0, P_U, 1835008), (S_WS, P_WS, WS_BYTES), (S_OUT, P_OUT, 1835008)):
        a(f"s_mov_b32 s{n}, s{p}\ns_mov_b32 s{n + 1}, s{p + 1}\ns_mov_b32 s{n + 2}, {size}\ns_mov_b32 s{n + 3}, 0x20000")
    for n, p, role in ((S_W1, P_W1, sR1), (S_W2, P_W2, sR2)):
        a(f"s_mov_b32 s{n}, s{p}\ns_mov_b32 s{n + 1}, s{p + 1}\ns_cmp_lg_u32 s{role}, 0\ns_cselect_b32 s{n + 2}, {0 if OPT['now'] & (1 if n == S_W1 else 2) else 7340032}, 0\ns_mov_b32 s{n + 3}, 0x20000")


sAUX = 75


def code_warm(r):
    if not OPT["warm"]:
        return
    a(f"""s_lshl_b32 s{sT0}, s{sJ}, 2
s_add_u32 s{sT0}, s{sT0}, s{sWAVE}
s_mul_i32 s{sT0}, s{sT0}, 640
v_lshl_add_u32 v{r}, v{vLANE}, 7, s{sT0}
s_mov_b32 s{sT1}, ktab-L_entry+8192
v_min_u32 v{r}, s{sT1}, v{r}
s_sub_u32 s28, s{sTAB}, ktab-L_entry
s_subb_u32 s29, s{sTAB + 1}, 0
s_mov_b64 exec, 31
global_load_dword v{r}, v{r}, s[28:29]
s_mov_b64 exec, -1""")


def fill(base, n, r, sidx, stride, tag="st0"):
    a(f"""s_lshl_b32 s{sT0}, s{sidx}, 12
s_lshl_b32 s{sT1}, s{sWAVE}, 10
s_add_u32 s{sT0}, s{sT0}, s{sT1}
s_add_u32 s{sT0}, s{sT0}, {base}""")
    for k in range(4):
        a(f"v_mov_b32 v{r + k}, -1")
    for k in range(n):
        a(f"buffer_store_dwordx4 {vr(r, 4)}, v{vL16}, {srd(S_WS)}, s{sT0} offen sc1", tag=tag)
        if k + 1 < n:
            a(f"s_add_u32 s{sT0}, s{sT0}, {stride}")


def aux_loads():
    a(f"""s_and_b32 s{sAUX}, s{sJ}, 3
s_lshl_b32 s{sAUX}, s{sAUX}, 3
s_add_u32 s{sAUX}, s{sAUX}, s{sX}
s_lshl_b32 s16, s{sAUX}, 2
s_add_u32 s16, s16, s{sWAVE}
s_mul_i32 s{sT1}, s16, {16 * 896}
s_mul_i32 s17, s{sWAVE}, {16 * 912}
s_mov_b32 m0, s17
s_mov_b32 exec_hi, 0xffffff""")
    for k in range(16):
        if k:
            a(f"s_add_u32 m0, m0, 912\ns_add_u32 s{sT1}, s{sT1}, 896")
        a(f"buffer_load_dwordx4 v{vL16}, {srd(S_X0)}, s{sT1} offen lds", res_w=[f"x0"])
    a("s_mov_b64 exec, -1")


def aux_work():
    XR = 8
    a(f"""v_mov_b32 v76, 0
v_mov_b32 v77, 0
v_mov_b32 v78, 0
v_mov_b32 v79, 0
s_lshl_b32 s{sT1}, s16, 7
s_add_u32 s{sT1}, s{sT1}, {ST1}
s_lshl_b32 s18, s{sAUX}, 7
s_add_u32 s18, s18, {ST0}
s_mov_b64 exec, 0xff""")
    a(f"buffer_store_dwordx4 v[76:79], v{vL16}, {srd(S_WS)}, s{sT1} offen sc1", tag="st0")
    a(f"""s_mov_b64 exec, -1
v_and_b32 v2, 15, v{vLANE}
v_lshrrev_b32 v3, 4, v{vLANE}
v_mul_u32_u24 v4, 912, v2
v_lshl_add_u32 v4, v3, 4, v4
v_add_u32 v4, s17, v4
v_lshrrev_b32 v6, 2, v2
v_cmp_eq_u32 vcc, v6, v3
v_bfe_u32 v6, v2, 1, 2
v_lshlrev_b32 v6, 7, v6
v_lshrrev_b32 v7, 3, v2
v_lshl_add_u32 v6, v7, 4, v6
v_and_b32 v7, 1, v2
v_lshl_add_u32 v6, v7, 2, v6
s_lshl_b32 s{sT0}, s{sWAVE}, 5
s_add_u32 s{sT0}, s{sT0}, 60000
v_add_u32 v6, s{sT0}, v6
v_mov_b32 v7, 61024
v_cndmask_b32 v6, v7, v6, vcc
v_lshrrev_b32 v117, 3, v{vLANE}
v_cmp_eq_u32 vcc, s{sWAVE}, v117
v_lshlrev_b32 v117, 12, v117
v_and_b32 v7, 7, v{vLANE}
v_lshl_add_u32 v117, v7, 4, v117
v_mov_b32 v7, {OOB}
v_cndmask_b32 v117, v7, v117, vcc
v_mov_b32 v80, 0x3f803f80
v_mov_b32 v81, 0x3f803f80
v_mov_b32 v82, 0x3f803f80
v_mov_b32 v83, 0x3f803f80""")
    if OPT["stamps"] == 1:
        a.wait_vm0()
    stamp("aux data")
    for k in range(14):
        a(f"ds_read_b128 {vr(XR + 4 * k, 4)}, v4 offset:{64 * k}", res_r=["x0"])
    for k in range(14):
        x = vr(XR + 4 * k, 4)
        a(f"v_mfma_f32_16x16x32_bf16 v[64:67], v[80:83], {x}, {'v[64:67]' if k else 0}")
        a(f"v_mfma_f32_16x16x32_bf16 v[68:71], {x}, {x}, {'v[68:71]' if k else 0}")
    a(f"""v_cndmask_b32 v68, v68, v69, {sp(sM1)}
v_cndmask_b32 v70, v70, v71, {sp(sM1)}
v_cndmask_b32 v68, v68, v70, {sp(sM2)}""")
    a("ds_write2_b32 v6, v64, v68 offset0:0 offset1:2")
    a.barrier()
    a(f"ds_read_b128 v[64:67], v{vL16} offset:60000")
    a(f"buffer_store_dwordx4 v[64:67], v117, {srd(S_WS)}, s18 offen sc1", tag="st0")
    stamp("aux st")
    nonce_take()
    flag_put(0, f"s_add_u32 s{sT0}, s{sAUX}, 224\ns_lshl_b32 s{sT0}, s{sT0}, 6", 72, "st0")


def xt_loads():
    a(f"""s_lshl_b32 s{sT0}, s{sPAIR}, 1
s_lshr_b32 s{sT1}, s{sWAVE}, 1
s_add_u32 s{sT0}, s{sT0}, s{sT1}
s_mul_i32 s{sT1}, s{sT0}, 9363
s_lshr_b32 s{sT1}, s{sT1}, 16
s_mul_i32 s{sT2}, s{sT1}, 7
s_sub_u32 s{sT0}, s{sT0}, s{sT2}
s_lshl_b32 s{sT0}, s{sT0}, 1
s_and_b32 s{sT2}, s{sWAVE}, 1
s_add_u32 s{sT0}, s{sT0}, s{sT2}
s_mul_i32 s{sT2}, s{sT1}, {32 * 896}
s_lshl_b32 s{sT3}, s{sT0}, 6
s_add_u32 s{sT2}, s{sT2}, s{sT3}
v_lshrrev_b32 v2, 2, v{vLANE}
v_mul_u32_u24 v2, 896, v2
v_and_b32 v3, 3, v{vLANE}
v_lshl_add_u32 v2, v3, 4, v2
s_mul_i32 s22, s{sWAVE}, {GST}
s_mov_b32 m0, s22
s_mul_i32 s23, s{sT1}, {BS}""")
    a(f"buffer_load_dwordx4 v2, {srd(S_X0)}, s{sT2} offen lds", res_w=["x0"])
    a(f"s_add_u32 m0, m0, 1024\ns_add_u32 s{sT2}, s{sT2}, {16 * 896}")
    a(f"buffer_load_dwordx4 v2, {srd(S_X0)}, s{sT2} offen lds", res_w=["x0"])
    a(f"""s_lshl_b32 s{sT0}, s{sT0}, 11
s_add_u32 s23, s23, s{sT0}
s_add_u32 s23, s23, {X0}
v_lshrrev_b32 v2, 4, v{vLANE}
v_bfe_u32 v36, v{vLANE}, 2, 2
v_lshl_add_u32 v36, v2, 3, v36
v_lshlrev_b32 v36, 6, v36
v_lshl_add_u32 v36, v3, 3, v36
v_add_u32 v36, s22, v36
v_and_b32 v37, 15, v{vLANE}
v_lshlrev_b32 v37, 6, v37
v_lshl_add_u32 v37, v2, 4, v37""")


def xt_work():
    for u in range(2):
        for j in range(2):
            a(f"ds_read_b64_tr_b16 {vr(40 + 4 * u + 2 * j, 2)}, v36 offset:{j * 256 + u * 32}", res_r=["x0"])
    for u in range(2):
        a(f"buffer_store_dwordx4 {vr(40 + 4 * u, 4)}, v37, {srd(S_WS)}, s23 offen offset:{1024 * u} sc1", tag="st0")


def xt_poll_addr(ra, t):
    a(f"""s_lshl_b32 s{sT0}, s{sWAVE}, 4
v_and_b32 v{t}, 15, v{vLANE}
v_add_u32 v{t}, s{sT0}, v{t}
v_mul_u32_u24 v{t}, 7, v{t}
s_lshr_b32 s{sT0}, s{sPAIR}, 5
v_add_u32 v{t}, s{sT0}, v{t}
v_lshrrev_b32 v{t}, 1, v{t}
s_lshl_b32 s{sT0}, s{sWAVE}, 3
s_add_u32 s{sT0}, s{sT0}, 224
v_and_b32 v{ra}, 7, v{vLANE}
v_add_u32 v{ra}, s{sT0}, v{ra}
v_cmp_gt_u32 vcc, 16, v{vLANE}
v_cndmask_b32 v{ra}, v{ra}, v{t}, vcc""")


def e1_poll_addr(ra):
    a(f"s_lshl_b32 s{sT0}, s{sWAVE}, 6\nv_add_u32 v{ra}, s{sT0}, v{vLANE}")


def nonce_take():
    a(f"s_add_u32 s{sNONCE}, s{sNONCE}, 1")
    a(f"s_addc_u32 s{sNONCE + 1}, s{sNONCE + 1}, 0")


def nonce_retire():
    l = label("nr")
    a(f"s_or_b32 s{sT0}, s2, s{sWAVE}")
    a(f"s_cmp_lg_u32 s{sT0}, 32")
    a(f"s_cbranch_scc1 {l}")
    a(f"v_mov_b32 v110, s{sNONCE}\nv_mov_b32 v111, s{sNONCE + 1}\ns_mov_b64 exec, 1")
    a(f"buffer_store_dwordx2 v[110:111], off, {srd(S_WS)}, 0 offset:{EPOCH} sc1", optional=True)
    a("s_mov_b64 exec, -1")
    a(f"{l}:")


def flag_put(edge, sprod, r, tag):
    a(f"s_lshl_b32 s{sT0}, s{sprod}, 6" if isinstance(sprod, int) else sprod)
    a(f"""s_lshl_b32 s{sT1}, s{sWAVE}, 15
s_add_u32 s{sT0}, s{sT0}, s{sT1}
s_add_u32 s{sT0}, s{sT0}, {FL + edge * 0x20000}
v_lshlrev_b32 v{r + 4}, 12, v{vLANE}
v_and_b32 v{r + 4}, 0x4000, v{r + 4}
v_and_b32 v{r}, 3, v{vLANE}
v_lshl_add_u32 v{r + 4}, v{r}, 4, v{r + 4}
v_mov_b32 v{r}, s{sNONCE}
v_mov_b32 v{r + 1}, s{sNONCE + 1}
v_mov_b32 v{r + 2}, s{sNONCE}
v_mov_b32 v{r + 3}, s{sNONCE + 1}""")
    a.wait_tag(tag)
    a.barrier()
    a("s_mov_b64 exec, 0xff")
    a(f"buffer_store_dwordx4 {vr(r, 4)}, v{r + 4}, {srd(S_WS)}, s{sT0} offen sc1", tag="flag")
    a("s_mov_b64 exec, -1")


def emode(e):
    return OPT["em"][e - 1]


def hinted(e):
    return emode(e) in "HSM"


def sentinel(e):
    return emode(e) in "SDM"


def flagged(e):
    return emode(e) in "FH"


def armed(layer):
    return any(sentinel(e + 4 * layer) for e in (1, 2, 3))


def wait_edge(e, r, ra_full, ra_samp):
    if hinted(e):
        poll_issue(e + 10, r, ra_samp)
        poll_take(r, ra_samp)
    elif emode(e) == "D":
        a.wait_tag("pub")
    else:
        a.wait_tag("flag")
    if flagged(e):
        poll_issue(e, r, ra_full)
        poll_take(r, ra_full)


def hint_prep(edge, sprod, r):
    a(f"s_lshl_b32 s{sT0}, s{sprod}, 6" if isinstance(sprod, int) else sprod)
    a(f"""s_lshl_b32 s{sT1}, s{sWAVE}, 15
s_add_u32 s{sT0}, s{sT0}, s{sT1}
s_add_u32 s{sT0}, s{sT0}, {FL + edge * 0x20000}
v_lshlrev_b32 v{r + 4}, 12, v{vLANE}
v_and_b32 v{r + 4}, 0x4000, v{r + 4}
v_and_b32 v{r}, 3, v{vLANE}
v_lshl_add_u32 v{r + 4}, v{r}, 4, v{r + 4}
v_add_u32 v{r + 4}, s{sT0}, v{r + 4}
v_mov_b32 v{r}, s{sNONCE}
v_mov_b32 v{r + 1}, s{sNONCE + 1}
v_mov_b32 v{r + 2}, s{sNONCE}
v_mov_b32 v{r + 3}, s{sNONCE + 1}""")


def hint_put(r):
    a("s_mov_b64 exec, 0xff")
    a(f"buffer_store_dwordx4 {vr(r, 4)}, v{r + 4}, {srd(S_WS)}, 0 offen sc1", tag="hint")
    a("s_mov_b64 exec, -1")


def poll_issue(edge, r, ra=None):
    ra = r + 2 if ra is None else ra
    a(f"""s_lshl_b32 s{sT3}, s{sX}, 14
s_add_u32 s{sT3}, s{sT3}, {FL + edge * 0x20000}
v_lshl_add_u32 v{ra}, v{ra}, 6, s{sT3}
buffer_load_dwordx2 {vr(r, 2)}, v{ra}, {srd(S_WS)}, 0 offen sc1""")


def poll_take(r, ra=None):
    ra = r + 2 if ra is None else ra
    ok, lp = label("pok"), label("plp")
    a(f"v_cmp_ne_u64 vcc, {sp(sNONCE)}, {vr(r, 2)}")
    a(f"s_cbranch_vccz {ok}")
    a(f"s_mov_b32 s{sCNT}, 0")
    a(f"{lp}:")
    a(f"buffer_load_dwordx2 {vr(r, 2)}, v{ra}, {srd(S_WS)}, 0 offen sc1")
    a("s_waitcnt vmcnt(0)")
    a(f"v_cmp_ne_u64 vcc, {sp(sNONCE)}, {vr(r, 2)}")
    a(f"s_add_u32 s{sCNT}, s{sCNT}, 1")
    a(f"s_cbranch_vccz {ok}")
    a(f"s_cmp_lt_u32 s{sCNT}, 0x100000")
    a(f"s_cbranch_scc1 {lp}")
    a(f"{ok}:")


sW1O, sW2O = 98, 99
sROT1, sROT2 = 33, 35
sW1E, sW2E = 78, 79


def w_setup():
    a(f"""v_lshrrev_b32 v2, 3, v{vLANE}
v_and_b32 v3, 7, v{vLANE}
v_bfe_u32 v4, v{vLANE}, 4, 1
v_lshlrev_b32 v4, 2, v4
v_xor_b32 v3, v3, v4
v_lshlrev_b32 v3, 4, v3
v_mul_u32_u24 v{vD1}, 3584, v2
v_add_u32 v{vD1}, v{vD1}, v3
v_lshl_add_u32 v{vD2}, v2, 12, v3
v_bfe_u32 v2, v{vLANE}, 2, 2
v_lshrrev_b32 v3, 5, v{vLANE}
v_bfe_u32 v4, v{vLANE}, 4, 1
v_and_b32 v5, 3, v{vLANE}
v_lshlrev_b32 v5, 3, v5
v_lshl_add_u32 v5, v4, 5, v5
v_lshrrev_b32 v4, 1, v2
v_lshl_add_u32 v5, v4, 6, v5
s_lshr_b32 s{sT0}, s{sWAVE}, 1
s_lshl_b32 s{sT0}, s{sT0}, 6
v_xor_b32 v5, s{sT0}, v5
v_lshl_add_u32 v5, v2, 7, v5
s_mul_i32 s{sT1}, s{sWAVE}, 24576
s_add_u32 s{sT1}, s{sT1}, {W2L}
v_add_u32 v5, s{sT1}, v5
v_lshl_add_u32 v{vT1a}, v3, 10, v5
v_xor_b32 v{vT1b}, 64, v{vT1a}
v_lshl_add_u32 v{vT2a}, v3, 9, v5
v_xor_b32 v{vT2b}, 64, v{vT2a}
s_mul_i32 s{sW1O}, s{sWAVE}, {512 * 3584}
s_lshl_b32 s{sT0}, s{sNT}, 7
s_add_u32 s{sW1O}, s{sW1O}, s{sT0}
s_mul_i32 s{sW2O}, s{sWAVE}, {448 * 4096}
s_lshl_b32 s{sT0}, s{sST}, 7
s_add_u32 s{sW2O}, s{sW2O}, s{sT0}
s_mov_b32 s{sWOFF}, s{sT1}""")
    if OPT["rot"] and OPT["map18"] == 1:
        if OPT["rot"] == 2:
            a(f"""s_add_u32 s{sROT1}, s{sDT1}, s{sX}
s_and_b32 s{sROT1}, s{sROT1}, 7
s_add_u32 s{sROT2}, s{sDT2}, s{sX}
s_cmp_ge_u32 s{sROT2}, 7
s_cselect_b32 s{sT0}, 7, 0
s_sub_u32 s{sROT2}, s{sROT2}, s{sT0}""")
        else:
            a(f"s_mov_b32 s{sROT1}, s{sDT1}\ns_mov_b32 s{sROT2}, s{sDT2}")
    elif OPT["rot"]:
        a(f"""s_and_b32 s{sT0}, s{sDT1}, 3
s_lshl_b32 s{sT0}, s{sT0}, 1
s_lshr_b32 s{sT1}, s{sDT1}, 2
s_add_u32 s{sT0}, s{sT0}, s{sT1}
s_and_b32 s{sROT1}, s{sT0}, 7
s_and_b32 s{sT0}, s{sDT2}, 3
s_lshl_b32 s{sT0}, s{sT0}, 1
s_lshr_b32 s{sT1}, s{sDT2}, 2
s_add_u32 s{sT0}, s{sT0}, s{sT1}
s_min_u32 s{sROT2}, s{sT0}, 6""")
        if OPT["map18"] == 2:
            a(f"s_mov_b32 s{sROT2}, s{sDT2}")
    else:
        a(f"s_mov_b32 s{sROT1}, 0\ns_mov_b32 s{sROT2}, 0")
    a(f"""s_add_u32 s{sW1E}, s{sW1O}, {512 * 3584}
s_mul_i32 s{sT0}, s{sROT1}, {64 * 3584}
s_add_u32 s{sW1O}, s{sW1O}, s{sT0}
s_add_u32 s{sW2E}, s{sW2O}, {448 * 4096}
s_mul_i32 s{sT0}, s{sROT2}, {64 * 4096}
s_add_u32 s{sW2O}, s{sW2O}, s{sT0}""")


WORDER = list(range(0, 4)) + list(range(32, 36)) + list(range(4, 32)) + list(range(36, 60))


def w_dma(pos, half):
    slot = pos % 12
    n = WORDER[pos]
    g = [Ins(f"s_add_u32 m0, s{sWOFF}, {slot * 2048 + half * 1024}")]
    if n < 32:
        g.append(Ins(f"s_add_u32 s{sW1O}, s{sW1O}, {8 * 3584}") if (n or half) else Ins("s_nop 0"))
        if n and n % 4 == 0 and half == 0:
            g += [Ins(f"s_cmp_eq_u32 s{sW1O}, s{sW1E}"), Ins(f"s_cselect_b32 s3, {512 * 3584}, 0"), Ins(f"s_sub_u32 s{sW1O}, s{sW1O}, s3")]
        g.append(Ins(f"buffer_load_dwordx4 v{vD1}, {srd(S_W1)}, s{sW1O} offen lds", res_w=[f"slot{slot}"]))
    else:
        g.append(Ins(f"s_add_u32 s{sW2O}, s{sW2O}, {8 * 4096}") if (n > 32 or half) else Ins("s_nop 0"))
        if n > 32 and n % 4 == 0 and half == 0:
            g += [Ins(f"s_cmp_eq_u32 s{sW2O}, s{sW2E}"), Ins(f"s_cselect_b32 s3, {448 * 4096}, 0"), Ins(f"s_sub_u32 s{sW2O}, s{sW2O}, s3")]
        g.append(Ins(f"buffer_load_dwordx4 v{vD2}, {srd(S_W2)}, s{sW2O} offen lds", res_w=[f"slot{slot}"]))
    return g


def w_tr(pos):
    slot = pos % 12
    n = WORDER[pos]
    g = []
    for nb in range(2):
        for j in range(2):
            if n < 32:
                r = (n * 2 + nb) * 4 + 2 * j
                g.append(Ins(f"ds_read_b64_tr_b16 a[{r}:{r + 1}], v{(vT1a, vT1b)[nb]} offset:{slot * 2048 + j * 512}", res_r=[f"slot{slot}"]))
            else:
                r = 128 + ((n - 32) * 2 + nb) * 4 + 2 * j
                g.append(Ins(f"ds_read_b64_tr_b16 v[{r}:{r + 1}], v{(vT2a, vT2b)[nb]} offset:{slot * 2048 + j * 1024}", res_r=[f"slot{slot}"]))
    return g


def w_all_upfront():
    for n in range(12):
        a.put(w_dma(n, 0)); a.put(w_dma(n, 1))
    for n in range(48):
        a.put(w_tr(n))
        if n >= 1:
            a.put(w_dma(n + 11, 0)); a.put(w_dma(n + 11, 1))
    a.put(w_dma(59, 0)); a.put(w_dma(59, 1))
    a.wait_vm0()
    a.wait_lgkm0()


PR = 56
TAB = 104


def kgen_loads():
    a(f"""s_lshl_b32 s{sT0}, s{sPAIR}, 10
s_lshl_b32 s{sT1}, s{sWAVE}, 8
s_add_u32 s{sT0}, s{sT0}, s{sT1}
v_lshl_add_u32 v3, v{vLANE}, 2, s{sT0}""")
    for k, p in enumerate((P_ARE, P_AIM, P_BRE, P_BIM, P_CRE, P_CIM)):
        a(f"global_load_dword v{PR + k}, v3, {sp(p)}")


def kgen_table_addr():
    l = label("pc")
    a(f"s_getpc_b64 {sp(sTAB)}")
    a(f"{l}:")
    a(f"s_add_u32 s{sTAB}, s{sTAB}, ktab-{l}")
    a(f"s_addc_u32 s{sTAB + 1}, s{sTAB + 1}, 0")


def kgen_table_load():
    kgen_table_addr()
    a(f"s_lshr_b32 s{sT0}, s{sWAVE}, 1\ns_lshl_b32 s{sT0}, s{sT0}, 5\nv_lshl_add_u32 v75, v0, 5, s{sT0}")


KBG = []


def kgen(hooks):
    F = {e: 2 * e for e in range(1, 8)}
    Qr = {1: 16, 2: 18, 3: 20, 4: 22}
    QN = [24, 26]
    Z1, Z2, C0, C1 = 28, 30, 32, 34
    CN = [36, 38]
    T0, T1 = 62, 64
    CV = [66, 67, 68, 69]
    A2, B2, DT = 70, 71, 72
    ACC = 76
    QF = 88
    PF = 40
    vG, vF = 73, 74
    a(f"""s_mul_i32 s{sT0}, s{sWAVE}, {GST}
v_lshl_add_u32 v{vG}, v{vLANE}, 2, s{sT0}
v_and_b32 v2, 15, v{vLANE}
v_mul_u32_u24 v2, {GROW}, v2
v_lshrrev_b32 v3, 4, v{vLANE}
v_lshl_add_u32 v2, v3, 4, v2
v_add_u32 v{vF}, s{sT0}, v2""")
    a.begin()
    a(f"""s_lshr_b32 s{sT0}, s{sWAVE}, 1
s_lshl_b32 s{sT0}, s{sT0}, 4
s_lshr_b32 s{sT0}, s{sLDT}, s{sT0}
s_lshl_b32 s{sT0}, s{sT0}, 16
v_mov_b32 v2, {f32(math.log2(math.e))}
v_mul_f32 v2, s{sT0}, v2
v_exp_f32 v2, v2
v_cvt_pk_bf16_f32 v2, v2, v2
v_lshlrev_b32 v{DT}, 16, v2
s_and_b32 s{sD1}, s{sD0}, 0xffff0000
s_lshl_b32 s{sD0}, s{sD0}, 16""")
    cvi = [0]

    def hook(name):
        if name is not None and name not in hooks:
            return
        a_body = space_ds(a.end(), OPT["lag"], OPT["gap"])
        m, rest = merge(a_body, KBG[:], 20, OPT["ev_kg"])
        del KBG[:]
        a.put(m)
        put_all(rest)
        if name is not None:
            hooks[name]()
            a.begin()

    def row(r, src, neg=False):
        c = CV[cvi[0] % 4]
        cvi[0] += 1
        a(f"v_cvt_pk_bf16_f32 v{c}, v{src}, {'-' if neg else ''}v{src + 1}")
        a(f"ds_write_b32 v{vG}, v{c} offset:{r * GROW}")

    def reads(dst, tile):
        for ks in range(4):
            a(f"ds_read_b128 {vr(dst + 4 * ks, 4)}, v{vF} offset:{tile * 16 * GROW + ks * 64}")

    def mfmas(t, first):
        for ks in range(4):
            c = "0" if (first and ks == 0) else vr(ACC + 4 * t, 4)
            a(f"v_mfma_f32_16x16x32_bf16 {vr(ACC + 4 * t, 4)}, {vr(PF + 4 * ks, 4)}, {vr(QF + 4 * ks, 4)}, {c}")

    def direct(d, scale):
        if scale != 1:
            a(f"v_mul_f32 v{T0}, {f32(scale)}, v{A2}")
            a(f"v_mul_f32 v{T1}, {f32(scale)}, v{B2}")
            x, y = T0, T1
        else:
            x, y = A2, B2
        a(f"v_fract_f32 v{T1}, v{y}")
        a(f"v_exp_f32 v{T0}, v{x}")
        a(f"v_cos_f32 v{d}, v{T1}")
        a(f"v_sin_f32 v{d + 1}, v{T1}")
        a(f"v_pk_mul_f32 {vr(d, 2)}, {vr(d, 2)}, {vr(T0, 2)} op_sel_hi:[1,0]")

    for rd in range(2):
        def up(d, s):
            a(f"v_lshlrev_b32 v{d}, 16, v{s}" if rd == 0 else f"v_and_b32 v{d}, 0xffff0000, v{s}")
        up(A2, PR); up(B2, PR + 1)
        up(QN[0], PR + 2); up(QN[0] + 1, PR + 3)
        up(QN[1], PR + 4); up(QN[1] + 1, PR + 5)
        a(f"v_mul_f32 v{A2}, v{DT}, v{A2}")
        a(f"v_mul_f32 v{B2}, v{DT}, v{B2}")
        a(f"v_pk_mul_f32 {vr(QN[0], 2)}, {vr(QN[0], 2)}, {vr(DT, 2)} op_sel_hi:[1,0]")
        a(f"v_mul_f32 v{A2}, {f32(math.log2(math.e))}, v{A2}")
        a(f"v_mul_f32 v{B2}, {f32(1 / (2 * math.pi))}, v{B2}")
        cmul2((C0, QN[1], QN[0]))
        direct(F[1], 1)
        if rd == 1:
            mfmas(2, True)
        direct(Z1, 128)
        hook(5 * rd)
        cmul2((F[2], F[1], F[1]), (Z2, Z1, Z1))
        cmul2((F[4], F[2], F[2]), (F[3], F[2], F[1]))
        cmul2((Qr[1], F[4], F[4]), (C1, C0, Z1))
        a(f"v_mov_b32 v{CV[3]}, 0x3f80")
        a(f"ds_write_b32 v{vG}, v{CV[3]}")
        cmul2((Qr[2], Qr[1], Qr[1]), (F[5], F[4], F[1]))
        row(1, Qr[1], True)
        cmul2((Qr[3], Qr[2], Qr[1]), (Qr[4], Qr[2], Qr[2]))
        row(2, Qr[2], True)
        cmul2((F[6], F[4], F[2]), (F[7], F[4], F[3]))
        row(3, Qr[3], True)
        row(4, Qr[4], True)
        cur = {1: Qr[1], 2: Qr[2], 3: Qr[3], 0: Qr[4]}
        free = list(QN) + [CN[0]]
        j = 5
        while j < 16:
            js = [j] + ([j + 1] if j + 1 < 16 else [])
            ps = []
            for jj in js:
                d = free.pop(0)
                ps.append((d, cur[jj % 4], Qr[4]))
            cmul2(*ps)
            for jj, p in zip(js, ps):
                if cur[jj % 4] != Qr[4]:
                    free.append(cur[jj % 4])
                cur[jj % 4] = p[0]
                row(jj, p[0], True)
            j += 2
        reads(QF, 0)
        hook(5 * rd + 1)
        TA, TB = QN
        row(16, C0); row(24, C1)
        for e in range(1, 8):
            cmul2((TA, C0, F[e]), (TB, C1, F[e]))
            row(16 + e, TA); row(24 + e, TB)
        reads(PF, 1)
        hook(5 * rd + 2)
        ca, cb = C0, C1
        na, nb_ = CN
        def adv():
            nonlocal ca, cb, na, nb_
            cmul2((na, ca, Z2), (nb_, cb, Z2))
            ca, cb, na, nb_ = na, nb_, ca, cb
        adv()
        row(32, ca); row(36, cb)
        for e in range(1, 4):
            cmul2((TA, ca, F[2 * e]), (TB, cb, F[2 * e]))
            row(32 + e, TA); row(36 + e, TB)
        mfmas(0, rd == 0)
        for k in range(2):
            adv()
            row(40 + 4 * k, ca); row(42 + 4 * k, cb)
            cmul2((TA, ca, F[4]), (TB, cb, F[4]))
            row(41 + 4 * k, TA); row(43 + 4 * k, TB)
        reads(PF, 2)
        hook(5 * rd + 3)
        for k in range(4):
            adv()
            row(48 + 2 * k, ca); row(49 + 2 * k, cb)
        cmul2((na, ca, Z2))
        row(56, na)
        mfmas(1, rd == 0)
        reads(PF, 3)
        hook(5 * rd + 4)
    hook(None)
    a(f"s_mul_i32 s{sT0}, s{sWAVE}, {GST}")
    a(f"v_add_u32 v{vF}, s{sT0}, v{vL16}")
    a(f"v_mov_b32 v{CV[0]}, 0")
    for k in range(8):
        a(f"v_and_b32 v{2 + 2 * k}, 0xffff, v{TAB + k}")
        a(f"v_lshrrev_b32 v{3 + 2 * k}, 16, v{TAB + k}")
    for t in range(2):
        a(f"ds_write_b128 v{vF}, {vr(ACC + 4 * t, 4)} offset:{TOFF + t * 1024}")
    mfmas(2, False)
    a(f"ds_write_b32 v{vG}, v{CV[0]} offset:{TOFF + 3072}")
    a("v_and_b32 v18, 0xffff, v0\nv_lshrrev_b32 v19, 16, v0\nv_and_b32 v20, 0xffff, v1")
    a(f"ds_write_b128 v{vF}, {vr(ACC + 8, 4)} offset:{TOFF + 2048}")


def kzero(r):
    a(f"""v_mov_b32 v{r}, 0
v_mov_b32 v{r + 1}, 0
v_mov_b32 v{r + 2}, 0
v_mov_b32 v{r + 3}, 0
v_bfe_u32 v{r + 4}, v{vLANE}, 1, 3
v_mul_u32_u24 v{r + 4}, {KST}, v{r + 4}
v_and_b32 v{r + 5}, 1, v{vLANE}
v_lshl_add_u32 v{r + 4}, v{r + 5}, 4, v{r + 4}
s_and_b32 s{sT0}, s{sWAVE}, 1
s_mul_i32 s{sT0}, s{sT0}, {UST}
v_add_u32 v{r + 5}, s{sT0}, v{vL16}""")
    return [f"ds_write_b128 v{r + 4}, {vr(r, 4)} offset:4096", f"ds_write_b128 v{r + 5}, {vr(r, 4)} offset:{UB}"]


def kaddr(r):
    a(f"""s_lshr_b32 s{sT0}, s{sWAVE}, 1
s_and_b32 s{sT1}, s{sWAVE}, 1
s_lshl_b32 s{sT1}, s{sT1}, 11
v_lshl_add_u32 v{r + 3}, v{vLANE}, 5, s{sT1}""")
    for c in range(4):
        a(f"s_cmp_lg_u32 s{sT0}, 0")
        a(f"s_cselect_b32 s{sT2}, {KSLOT[1][c]}, {KSLOT[0][c]}")
        a(f"s_mul_i32 s{sT2}, s{sT2}, {KST}")
        a(f"v_add_u32 v{r + c}, s{sT2}, v{r + 3}")


def kexpand(mid):
    AD, VAL = 2, 22
    P0, P1, P2, P3 = 2, 12, 88, 96
    a.barrier()
    for k in range(19):
        a(f"ds_read2st64_b32 {vr(VAL + 2 * k, 2)}, v{AD + k} offset0:{TOFF // 256} offset1:{TOFF // 256 + GST // 256}")
    mid()
    kaddr(60)
    zw = kzero(104)
    for k in range(19):
        a(f"v_add_f32 v{VAL + 2 * k}, v{VAL + 2 * k}, v{VAL + 2 * k + 1}")
        if k:
            a(f"v_cvt_pk_bf16_f32 v{(P0 if k & 1 else P1) + (k - 1) // 2}, v{VAL + 2 * k - 2}, v{VAL + 2 * k}")
    a.barrier()
    a.begin()
    for l in zw:
        a(l)
    for c, P in ((0, P0), (1, P1)):
        a(f"ds_write_b128 v{60 + c}, {vr(P, 4)}")
        a(f"ds_write_b128 v{60 + c}, {vr(P + 4, 4)} offset:16")
    for c, P, src in ((2, P2, P0), (3, P3, P1)):
        for i in range(4):
            a(f"v_pk_mov_b32 {vr(P + 2 * i, 2)}, {vr(src + 2 * i, 2)}, {vr(src + 2 * i + 2, 2)} op_sel:[1,0]")
        a(f"ds_write_b128 v{60 + c}, {vr(P, 4)}")
        a(f"ds_write_b128 v{60 + c}, {vr(P + 4, 4)} offset:16")
    return a.end()


def kcopies():
    R, E, M = 2, 12, 22
    kaddr(40)
    a(f"""ds_read_b128 {vr(R, 4)}, v40
ds_read_b128 {vr(R + 4, 4)}, v40 offset:16
ds_read_b64 {vr(R + 8, 2)}, v40 offset:32""")
    for l in kzero(32):
        a(l)
    for i in range(9):
        a(f"v_alignbit_b32 v{E + i}, v{R + i + 1}, v{R + i}, 16")
    a(f"ds_write_b128 v41, {vr(E, 4)}")
    a(f"ds_write_b128 v41, {vr(E + 4, 4)} offset:16")
    for i in range(4):
        a(f"v_pk_mov_b32 {vr(M + 2 * i, 2)}, {vr(R + 2 * i, 2)}, {vr(R + 2 * i + 2, 2)} op_sel:[1,0]")
    a(f"ds_write_b128 v42, {vr(M, 4)}")
    a(f"ds_write_b128 v42, {vr(M + 4, 4)} offset:16")
    for i in range(4):
        a(f"v_pk_mov_b32 {vr(R + 2 * i, 2)}, {vr(E + 2 * i, 2)}, {vr(E + 2 * i + 2, 2)} op_sel:[1,0]")
    a(f"ds_write_b128 v43, {vr(R, 4)}")
    a(f"ds_write_b128 v43, {vr(R + 4, 4)} offset:16")


GX = 80
CS = 64
cvA, cvB, cvZ, cvXW, cvXR, cvO, cvU, cvX, cvH, cvP = 112, 113, 114, 115, 116, 117, 118, 119, 100, 108
STUBS = []


def conv_poll1():
    r = cvP
    a(f"""v_lshrrev_b32 v{r}, 3, v{vLANE}
v_min_u32 v{r}, 6, v{r}
v_and_b32 v{r + 1}, 7, v{vLANE}
v_lshl_add_u32 v{r + 2}, v{r}, 5, v{r + 1}
s_lshl_b32 s{sT0}, s{sWAVE}, 3
v_add_u32 v{r + 2}, s{sT0}, v{r + 2}
v_and_b32 v{r + 1}, 7, v{vLANE}
v_min_u32 v{r}, 6, v{r + 1}
v_lshl_add_u32 v{r + 3}, v{r}, 5, v{r + 1}
v_add_u32 v{r + 3}, s{sT0}, v{r + 3}""")


def conv_loads():
    for p in range(4):
        a(f"buffer_load_dwordx4 {vr(CS + 4 * p, 4)}, v{vL16}, {srd(S_WS)}, s{16 + p} offen sc1")
    a(f"buffer_load_dwordx4 {vr(GX, 4)}, v{cvX}, {srd(S_WS)}, s20 offen sc1")
    a(f"buffer_load_dwordx4 {vr(GX + 4, 4)}, v{cvX}, {srd(S_WS)}, s20 offen offset:64 sc1")


def conv_setup(layer):
    a(f"""s_mov_b32 s{sCA}, {f32(1.0 / 448)}
s_mov_b32 s{sCB}, {f32(1e-5)}
s_lshl_b32 s{sT0}, s{sWAVE}, 10
v_add_u32 v{cvU}, s{sT0}, v{vL16}
s_lshr_b32 s{sT0}, s{sWAVE}, 1
s_and_b32 s{sT1}, s{sWAVE}, 1
v_and_b32 v8, 15, v{vLANE}
v_lshrrev_b32 v9, 4, v{vLANE}
v_not_b32 v10, v8
v_and_b32 v10, 3, v10""")
    for s in range(4):
        a(f"s_cmp_lg_u32 s{sT0}, 0")
        a(f"s_cselect_b32 s{sT2}, {KSLOT[1][s]}, {KSLOT[0][s]}")
        a(f"s_mul_i32 s{sT2}, s{sT2}, {KST}")
        if s == 0:
            a(f"v_mov_b32 v11, s{sT2}")
        else:
            a(f"v_mov_b32 v12, s{sT2}\nv_cmp_eq_u32 vcc, {s}, v10\nv_cndmask_b32 v11, v11, v12, vcc")
    a(f"""v_add_u32 v10, v10, v8
v_lshlrev_b32 v12, 3, v9
v_sub_u32 v12, v12, v10
v_lshl_add_u32 v11, v12, 1, v11
""")
    a(f"""s_lshl_b32 s{sT3}, s{sT1}, 8
s_sub_u32 s{sT2}, {2 * 2031 - 64 * 59}, s{sT3}
v_add_u32 v{cvA}, s{sT2}, v11
s_mul_i32 s{sT2}, s{sT0}, {UST}
s_sub_u32 s{sT2}, s{sT2}, s{sT3}
s_add_u32 s{sT2}, s{sT2}, {UB + UPAD - 2 * 112}
v_lshlrev_b32 v12, 5, v8
v_lshl_add_u32 v13, v9, 4, v12
v_add_u32 v{cvB}, s{sT2}, v13
s_lshl_b32 s{sT2}, s{sWAVE}, 11
v_lshl_add_u32 v13, v9, 3, v12
v_add_u32 v{cvZ}, s{sT2}, v13
s_xor_b32 s{sT2}, s{sWAVE}, 1
s_lshl_b32 s{sT2}, s{sT2}, 12
v_add_u32 v{cvXW}, s{sT2}, v{vL16}
s_lshl_b32 s{sT2}, s{sWAVE}, 12
v_add_u32 v{cvXR}, s{sT2}, v{vL16}
v_and_b32 v10, 1, v9
v_lshlrev_b32 v10, 3, v10
v_lshrrev_b32 v11, 1, v8
v_add_u32 v10, v10, v11
v_mul_u32_u24 v10, {BS}, v10
v_and_b32 v11, 1, v8
v_lshl_add_u32 v10, v11, 5, v10
v_lshrrev_b32 v11, 1, v9
v_lshl_add_u32 v{cvO}, v11, 4, v10
s_mul_i32 s{sT1}, s{sT1}, {32 * BS}
s_lshl_b32 s{sT2}, s{sPAIR}, 1
s_add_u32 s{sT0}, s{sT0}, s{sT2}
s_lshl_b32 s{sT0}, s{sT0}, 6
s_add_u32 s{sT0}, s{sT0}, s{sT1}
s_add_u32 s13, s{sT0}, {X1 if layer == 0 else X3}
s_add_u32 s21, s13, {16 * BS}""" if OPT["cv"] else f"""v_add_u32 v{cvA}, {2 * 2031 - 64 * 63}, v11
s_mul_i32 s{sT2}, s{sT0}, {UST}
s_lshl_b32 s{sT3}, s{sT1}, 9
s_add_u32 s{sT2}, s{sT2}, s{sT3}
s_add_u32 s{sT2}, s{sT2}, {UB + UPAD - 2 * 496}
v_lshlrev_b32 v12, 5, v8
v_lshl_add_u32 v13, v9, 4, v12
v_add_u32 v{cvB}, s{sT2}, v13
s_lshl_b32 s{sT2}, s{sT0}, 12
s_add_u32 s{sT2}, s{sT2}, s{sT3}
v_lshl_add_u32 v13, v9, 3, v12
v_add_u32 v{cvZ}, s{sT2}, v13
v_and_b32 v10, 1, v9
v_lshlrev_b32 v10, 4, v10
v_lshrrev_b32 v11, 1, v8
v_add_u32 v10, v10, v11
v_mul_u32_u24 v10, {BS}, v10
v_and_b32 v11, 1, v8
v_lshl_add_u32 v10, v11, 5, v10
v_lshrrev_b32 v11, 1, v9
v_lshl_add_u32 v{cvO}, v11, 4, v10
s_mul_i32 s{sT1}, s{sT1}, {8 * BS}
s_lshl_b32 s{sT2}, s{sPAIR}, 1
s_add_u32 s{sT0}, s{sT0}, s{sT2}
s_lshl_b32 s{sT0}, s{sT0}, 6
s_add_u32 s{sT0}, s{sT0}, s{sT1}
s_add_u32 s13, s{sT0}, {X1 if layer == 0 else X3}
s_add_u32 s21, s13, {32 * BS}""")
    a(f"""s_lshl_b32 s16, s{sWAVE}, 10
s_add_u32 s16, s16, {ST0 if layer == 0 else ST1}
s_add_u32 s17, s16, 4096
s_add_u32 s18, s16, 8192
s_add_u32 s19, s16, 12288
s_mul_i32 s20, s{sWAVE}, {16 * BS}
s_lshl_b32 s{sT2}, s{sPAIR}, 7
s_add_u32 s20, s20, s{sT2}
s_add_u32 s20, s20, {X0 if layer == 0 else X2}
v_lshrrev_b32 v10, 2, v{vLANE}
v_mul_u32_u24 v10, {BS}, v10
v_and_b32 v11, 3, v{vLANE}
v_lshl_add_u32 v{cvX}, v11, 4, v10""")


cXF, cUF, cAL, cBE, cUP = 0, 16, 32, 40, 48


def conv_pro(layer):
    XF, UF, AL, BE, UP = cXF, cUF, cAL, cBE, cUP
    for p in range(4):
        S = CS + 4 * p
        a(f"v_pk_mul_f32 {vr(S, 2)}, {vr(S, 2)}, {sp(sCA)} op_sel_hi:[1,0]")
    for p in range(4):
        S = CS + 4 * p
        a(f"v_pk_fma_f32 {vr(BE + 2 * p, 2)}, {vr(S, 2)}, {vr(S, 2)}, {sp(sCB)} op_sel_hi:[1,1,0] neg_lo:[1,0,0] neg_hi:[1,0,0]")
    for p in range(4):
        Q = CS + 4 * p + 2
        a(f"v_pk_fma_f32 {vr(Q, 2)}, {vr(Q, 2)}, {sp(sCA)}, {vr(BE + 2 * p, 2)} op_sel_hi:[1,0,1]")
    for p in range(4):
        Q = CS + 4 * p + 2
        a(f"v_max_f32 v{Q}, s{sCB}, v{Q}\nv_max_f32 v{Q + 1}, s{sCB}, v{Q + 1}")
    for p in range(4):
        Q = CS + 4 * p + 2
        a(f"v_rsq_f32 v{AL + 2 * p}, v{Q}\nv_rsq_f32 v{AL + 2 * p + 1}, v{Q + 1}")
    for k in range(8):
        unpack(XF + 2 * k, XF + 2 * k + 1, GX + k)
    for p in range(4):
        S = CS + 4 * p
        a(f"v_pk_mul_f32 {vr(BE + 2 * p, 2)}, {vr(S, 2)}, {vr(AL + 2 * p, 2)} neg_lo:[1,0] neg_hi:[1,0]")
    for c in range(2):
        for p in range(4):
            a(f"v_pk_fma_f32 {vr(UF + 8 * c + 2 * p, 2)}, {vr(XF + 8 * c + 2 * p, 2)}, {vr(AL + 2 * p, 2)}, {vr(BE + 2 * p, 2)}")
        for p in range(4):
            a(f"v_cvt_pk_bf16_f32 v{UP + 4 * c + p}, v{UF + 8 * c + 2 * p}, v{UF + 8 * c + 2 * p + 1}")
        a(f"ds_write_b128 v{cvU}, {vr(UP + 4 * c, 4)} offset:{UB + c * UST + UPAD}")
    if OPT["cv"]:
        for i in a.capture(conv_z, 88):
            if i.kind != "dsw":
                a.put([i])


def conv_z(ZP=cXF):
    XF, UF = cXF, cUF
    for c in range(2):
        for p in range(4):
            a(f"v_pk_fma_f32 {vr(UF + 8 * c + 2 * p, 2)}, {vr(UF + 8 * c + 2 * p, 2)}, {sp((sD0, sD1)[c])}, {vr(XF + 8 * c + 2 * p, 2)} op_sel_hi:[1,0,1]")
        for p in range(4):
            a(f"v_cvt_pk_bf16_f32 v{ZP + 4 * c + p}, v{UF + 8 * c + 2 * p}, v{UF + 8 * c + 2 * p + 1}")
        a(f"ds_write_b128 v{cvU}, {vr(ZP + 4 * c, 4)} offset:{ZB + c * 4096}")


def conv_main(layer, bg=(), bg_start=0, bg_every=64):
    return (conv_main_r if OPT["cv"] else conv_main_t)(layer, bg, bg_start, bg_every)


def conv_main_r(layer, bg, bg_start, bg_every):
    ACC, BF, AR = 0, 32, 64
    NA = 6
    EX2 = ZB
    seq = [(r, q) for r in range(4) for q in range(7, -1, -1)]
    e = 1 + 4 * layer

    def rdA(i):
        r, q = seq[i]
        d = AR + 4 * (i % NA)
        off = 64 * (59 - (8 * q + r))
        return [Ins(f"ds_read_b64 {vr(d, 2)}, v{cvA} offset:{off}"), Ins(f"ds_read_b64 {vr(d + 2, 2)}, v{cvA} offset:{off + 8}")]

    def rdB(r, p):
        return [Ins(f"ds_read_b128 {vr(BF + 4 * p, 4)}, v{cvB} offset:{512 * p + 64 * (3 - r)}")]

    a.put(rdA(0)); a.put(rdB(0, 0)); a.put(rdA(1)); a.put(rdB(0, 1)); a.put(rdA(2)); a.put(rdB(0, 2)); a.put(rdA(3))
    a.put(rdB(0, 3)); a.put(rdA(4))
    for p in range(4, 8):
        a.put(rdB(0, p))
    ZR, ZF, RR = 88, 64, 32
    side = [[i] for i in a.capture(conv_z, 88) if i.kind == "dsw"]
    if hinted(e):
        side += [[i] for i in a.capture(hint_prep, e + 10, sPAIR, cvH)]
    late = [[Ins("s_barrier")]] + [[Ins(f"ds_read_b64 {vr(ZR + 2 * i, 2)}, v{cvZ} offset:{ZB + i * 512}")] for i in range(4)]
    late2 = [[Ins("s_barrier")]]
    a.begin()
    started = set()
    for i, (r, q) in enumerate(seq):
        if hinted(e) and OPT["h_cv"] < 0 and i == 32 + OPT["h_cv"]:
            hint_put(cvH)
        ps = list(range(8 - q))
        for p in ps:
            b = q + p
            c = vr(ACC + 4 * b, 4) if b in started else "0"
            started.add(b)
            a(f"v_mfma_f32_16x16x32_bf16 {vr(ACC + 4 * b, 4)}, {vr(AR + 4 * (i % NA), 4)}, {vr(BF + 4 * p, 4)}, {c}")
            if p == 0 and i + NA - 1 < len(seq):
                a.put(rdA(i + NA - 1))
            elif 1 <= q <= 4 and p >= 1:
                for lst, r0 in ((side, 0), (late, 2), (late2, 3)):
                    if lst and r >= r0:
                        a.put(lst.pop(0))
                        break
            if q == 0 and r < 3:
                a.put(rdB(r + 1, p))
    assert not side and not late and not late2
    m, rest = merge(a.end(), list(bg), bg_start, bg_every)
    a.put(m)
    stamp(f"conv{layer} loop", 111)
    if hinted(e) and OPT["h_cv"] == 0:
        hint_put(cvH)
    for k in range(8):
        unpack(ZF + 2 * k, ZF + 2 * k + 1, ZR + k)
    l1, l2 = label("cx"), label("cy")
    a(f"s_bitcmp1_b32 s{sWAVE}, 0")
    a(f"s_cbranch_scc1 {l1}")
    for h in range(2):
        for i in range(4):
            a(f"ds_write_b128 v{cvXW}, {vr(ACC + 16 * (1 - h) + 4 * i, 4)} offset:{EX2 + i * 1024}")
            for k in range(2):
                a(f"v_pk_add_f32 {vr(ZF + 4 * i + 2 * k, 2)}, {vr(ZF + 4 * i + 2 * k, 2)}, {vr(ACC + 16 * h + 4 * i + 2 * k, 2)}")
        if h == 0:
            a(f"s_branch {l2}")
            a(f"{l1}:")
    a(f"{l2}:")
    if (armed(1) if layer else sentinel(1)):
        poll_take(cvP)
    a.barrier()
    if hinted(e) and OPT["h_cv"] == 1:
        hint_put(cvH)
    for i in range(4):
        a(f"ds_read_b128 {vr(RR + 4 * i, 4)}, v{cvXR} offset:{EX2 + i * 1024}")
    PK = 56
    for i in range(4):
        for k in range(2):
            a(f"v_pk_add_f32 {vr(ZF + 4 * i + 2 * k, 2)}, {vr(ZF + 4 * i + 2 * k, 2)}, {vr(RR + 4 * i + 2 * k, 2)}")
        for k in range(2):
            a(f"v_cvt_pk_bf16_f32 v{PK + 2 * i + k}, v{ZF + 4 * i + 2 * k}, v{ZF + 4 * i + 2 * k + 1}")
        if i & 1:
            b = PK + 2 * (i - 1)
            a(f"v_permlane16_swap_b32 v{b}, v{b + 2}")
            a(f"v_permlane16_swap_b32 v{b + 1}, v{b + 3}")
            a(f"buffer_store_dwordx4 {vr(b, 4)}, v{cvO}, {srd(S_WS)}, s{21 if i == 3 else 13} offen sc1", tag="pub")
    if hinted(e) and OPT["h_cv"] == 2:
        hint_put(cvH)
    if not flagged(e):
        a.barrier()
    else:
        flag_put(1 + 4 * layer, sPAIR, 40, "pub")
    return rest


def conv_main_t(layer, bg, bg_start, bg_every):
    ACC, BF, AR = 84, 32, 64
    NA = 5
    QORD = (7, 5, 6, 3, 4, 2, 1, 0)
    seq = [(r, q) for r in range(8) for q in QORD]
    e = 1 + 4 * layer

    def rdA(i):
        r, q = seq[i]
        d = AR + 4 * (i % NA)
        off = 64 * (63 - (8 * q + r))
        return [Ins(f"ds_read_b64 {vr(d, 2)}, v{cvA} offset:{off}"), Ins(f"ds_read_b64 {vr(d + 2, 2)}, v{cvA} offset:{off + 8}")]

    def rdB(r, p):
        return [Ins(f"ds_read_b128 {vr(BF + 4 * (p + 1), 4)}, v{cvB} offset:{512 * (p + 1) + 64 * (7 - r)}")]

    a.put(rdA(0)); a.put(rdB(0, -1)); a.put(rdA(1)); a.put(rdB(0, 1)); a.put(rdA(2)); a.put(rdB(0, 0)); a.put(rdA(3))
    for p in (3, 2, 4, 5, 6):
        a.put(rdB(0, p))
    ZR, ZF = 16, 0
    side = [[i] for i in a.capture(conv_z)]
    if hinted(e):
        side += [[i] for i in a.capture(hint_prep, e + 10, sPAIR, cvH)]
    late = [[Ins("s_barrier")]] + [[Ins(f"ds_read_b64 {vr(ZR + 2 * i, 2)}, v{cvZ} offset:{ZB + i * 1024}")] for i in range(4)]
    late2 = [[i] for k in range(8) for i in a.capture(unpack, ZF + 2 * k, ZF + 2 * k + 1, ZR + k)]
    a.begin()
    started = set()
    n = 0
    for i, (r, q) in enumerate(seq):
        if hinted(e) and OPT["h_cv"] < 0 and i == 64 + OPT["h_cv"]:
            hint_put(cvH)
        first = True
        for t in range(q // 2, 4):
            p = 2 * t - q
            c = vr(ACC + 4 * t, 4) if t in started else "0"
            started.add(t)
            a(f"v_mfma_f32_16x16x32_bf16 {vr(ACC + 4 * t, 4)}, {vr(AR + 4 * (i % NA), 4)}, {vr(BF + 4 * (p + 1), 4)}, {c}")
            n += 1
            if first and i + 4 < len(seq):
                a.put(rdA(i + 4))
            elif q >= 2:
                for lst, r0 in ((side, 0), (late, 4), (late2, 5)):
                    if lst and r >= r0:
                        a.put(lst.pop(0))
                        if lst is side and lst:
                            a.put(lst.pop(0))
                        break
            first = False
            if q <= 1 and r < 7:
                a.put(rdB(r + 1, p))
    assert not side and not late and not late2
    m, rest = merge(a.end(), list(bg), bg_start, bg_every)
    a.put(m)
    stamp(f"conv{layer} loop", 111)
    if (armed(1) if layer else sentinel(1)):
        poll_take(cvP)
    if hinted(e) and OPT["h_cv"] == 0:
        hint_put(cvH)
    PK = 24
    for i in range(4):
        for k in range(2):
            a(f"v_pk_add_f32 {vr(ZF + 4 * i + 2 * k, 2)}, {vr(ZF + 4 * i + 2 * k, 2)}, {vr(ACC + 4 * i + 2 * k, 2)}")
        for k in range(2):
            a(f"v_cvt_pk_bf16_f32 v{PK + 2 * i + k}, v{ZF + 4 * i + 2 * k}, v{ZF + 4 * i + 2 * k + 1}")
        if i & 1:
            b = PK + 2 * (i - 1)
            a(f"v_permlane16_swap_b32 v{b}, v{b + 2}")
            a(f"v_permlane16_swap_b32 v{b + 1}, v{b + 3}")
            a(f"buffer_store_dwordx4 {vr(b, 4)}, v{cvO}, {srd(S_WS)}, s{21 if i == 3 else 13} offen sc1", tag="pub")
    if hinted(e) and OPT["h_cv"] > 0:
        hint_put(cvH)
    if not flagged(e):
        a.barrier()
    else:
        flag_put(1 + 4 * layer, sPAIR, 40, "pub")
    return rest


def reduce32(V, n, W):
    for i in range(n):
        a(f"v_permlane16_swap_b32 v{V[i]}, v{V[n + i]}")
    for i in range(n):
        a(f"v_add_f32 v{V[i]}, v{V[i]}, v{V[n + i]}")
    h = n // 2
    for i in range(h):
        a(f"v_add_f32_dpp v{W[i]}, v{V[i]}, v{V[i]} row_ror:8 row_mask:0xf bank_mask:0x3")
    for i in range(h):
        a(f"v_add_f32_dpp v{W[i]}, v{V[i + h]}, v{V[i + h]} row_ror:8 row_mask:0xf bank_mask:0xc")
    g = h // 2
    for i in range(g):
        a(f"v_add_f32_dpp v{V[i]}, v{W[i]}, v{W[i]} row_half_mirror row_mask:0xf bank_mask:0x5")
    for i in range(g):
        a(f"v_add_f32_dpp v{V[i]}, v{W[i + g]}, v{W[i + g]} row_half_mirror row_mask:0xf bank_mask:0xa")
    for m in ("[1,0,3,2]", "[2,3,0,1]"):
        for i in range(g):
            a(f"v_add_f32_dpp v{V[i]}, v{V[i]}, v{V[i]} quad_perm:{m} row_mask:0xf bank_mask:0xf")
    return V[:g]


def maxchain(t, regs):
    regs = list(regs)
    if OPT["chk"] == 1:
        regs = regs[3::4]
    if len(regs) == 2:
        return [f"v_max_u32 v{t}, v{regs[0]}, v{regs[1]}"]
    out = [f"v_max3_u32 v{t}, v{regs[0]}, v{regs[1]}, v{regs[2]}"]
    regs = regs[3:]
    while len(regs) >= 2:
        out.append(f"v_max3_u32 v{t}, v{t}, v{regs[0]}, v{regs[1]}")
        regs = regs[2:]
    if regs:
        out.append(f"v_max_u32 v{t}, v{t}, v{regs[0]}")
    return out


RETRY = 0x10000


def ln(layer, wide):
    X = X1 if layer == 0 else X3
    H = H1 if layer == 0 else H3
    nf = 7 if wide else 4
    sI = sLN0 if wide else sLN
    RAW, XF, S, Q, W = 0, 28, 84, 92, 100
    vO, vPW, vPR, vAW, vAR, r, hr = 109, 110, 111, 112, 117, 114, 104
    vX, vS = 64, 68
    a(f"""s_mul_i32 s{sT0}, s{sWAVE}, 56
v_min_u32 v{r + 2}, 55, v{vLANE}""")
    a(f"v_add_u32 v{r + 2}, s{sT0}, v{r + 2}")
    a(f"v_and_b32 v118, {OPT['samp'] - 1}, v{vLANE}\nv_mul_u32_u24 v118, {56 // OPT['samp']}, v118\nv_add_u32 v118, s{sT0}, v118")
    ein, eout = 1 + 4 * layer, 2 + 4 * layer
    if wide:
        a(f"""s_mul_i32 s16, s{sI}, {BS}
s_lshl_b32 s{sT2}, s{sI}, 12""")
    else:
        a(f"""s_lshr_b32 s16, s{sI}, 1
s_mul_i32 s16, s16, {BS}
s_and_b32 s{sT0}, s{sI}, 1
s_lshl_b32 s{sT0}, s{sT0}, 5
s_add_u32 s16, s16, s{sT0}
s_lshl_b32 s{sT2}, s{sI}, 11""")
    a(f"""s_mul_i32 s{sT0}, s{sWAVE}, 7168
s_add_u32 s16, s16, s{sT0}
s_add_u32 s16, s16, {X}
s_add_u32 s17, s16, 4096
s_add_u32 s{sT2}, s{sT2}, {H}
s_mul_i32 s30, s{sWAVE}, 7""")
    if wide:
        for i in range(nf):
            a(f"""s_add_u32 s{sT0}, s30, {i}
s_lshr_b32 s{sT1}, s{sT0}, 2
s_lshl_b32 s{sT1}, s{sT1}, 18
s_add_u32 s{23 + i}, s{sT1}, s{sT2}
s_and_b32 s{sT1}, s{sT0}, 2
s_lshl_b32 s{sT1}, s{sT1}, 9
s_add_u32 s{23 + i}, s{23 + i}, s{sT1}
s_and_b32 s{sT1}, s{sT0}, 1
s_lshl_b32 s{sT1}, s{sT1}, 8
s_add_u32 s{23 + i}, s{23 + i}, s{sT1}""")
        a(f"""v_lshrrev_b32 v1, 2, v{vLANE}
v_lshlrev_b32 v{vO}, 4, v1
v_and_b32 v2, 1, v{vLANE}
v_lshl_add_u32 v{vO}, v2, 9, v{vO}
v_bfe_u32 v2, v{vLANE}, 1, 1
v_lshl_add_u32 v{vO}, v2, 11, v{vO}
v_and_b32 v1, 7, v1
v_and_b32 v2, 3, v{vLANE}
v_lshl_add_u32 v1, v2, 3, v1""")
    else:
        a(f"""v_lshrrev_b32 v1, 1, v{vLANE}
v_and_b32 v2, 1, v{vLANE}
v_lshlrev_b32 v{vX}, 6, v1
v_lshl_add_u32 v{vX}, v2, 4, v{vX}
v_mov_b32 v3, {OOB}
v_cmp_gt_u32 vcc, 32, v{vLANE}
v_cndmask_b32 v{vX + 1}, v3, v{vX}, vcc
s_lshl_b32 s30, s30, 4
s_mov_b32 s23, s{sT2}""")
        for i in range(nf):
            a(f"""v_add_u32 v4, s30, v1
v_lshrrev_b32 v5, 6, v4
v_lshlrev_b32 v5, 18, v5
v_bfe_u32 v6, v4, 5, 1
v_lshl_add_u32 v5, v6, 10, v5
v_and_b32 v6, 31, v4
v_lshl_add_u32 v5, v6, 4, v5
v_lshl_add_u32 v{vS + i}, v2, 9, v5""")
            if i < 3:
                a("s_add_u32 s30, s30, 32")
        a(f"""v_cndmask_b32 v{vS + 3}, v3, v{vS + 3}, vcc
v_bfe_u32 v1, v{vLANE}, 2, 3
v_lshl_add_u32 v1, v2, 3, v1""")
    a(f"""v_lshrrev_b32 v3, 5, v{vLANE}
v_lshl_add_u32 v1, v3, 5, v1
s_lshl_b32 s{sT1}, s{sWAVE}, 8
s_add_u32 s{sT1}, s{sT1}, {LNP}
v_lshl_add_u32 v{vPW}, v1, 2, s{sT1}
v_and_b32 v1, 31, v{vLANE}
v_lshlrev_b32 v{vPR}, 2, v1
v_add_u32 v{vPR}, {LNP}, v{vPR}
s_add_u32 s{sT1}, s{sT1}, 1024
v_lshl_add_u32 v{vAW}, v{vLANE}, 2, s{sT1}
v_lshl_add_u32 v{vAR}, v2, 5, s{sT1}
s_mov_b32 s18, 0
s_mov_b32 s19, -1""")
    prod = f"s_lshl_b32 s{sT0}, s{sI}, 6"
    if hinted(eout):
        hint_prep(eout + 10, prod, hr)
    arm = layer == 0 and sentinel(2)
    if arm:
        a(f"v_min_u32 v102, 27, v{vLANE}")
        poll_issue(18, 100)
    wait_edge(ein, r, r + 2, 118)
    if arm:
        poll_take(100)
    stamp(f"ln{layer} go")

    def loads():
        if not wide:
            return [f"buffer_load_dwordx4 {vr(RAW + 4 * i, 4)}, v{vX + (i == 3)}, {srd(S_WS)}, s{16 + i // 2} offen offset:{2048 * (i % 2)} sc1" for i in range(nf)]
        return [f"buffer_load_dwordx4 {vr(RAW + 4 * i, 4)}, v{vL16}, {srd(S_WS)}, s{16 + i // 4} offen offset:{1024 * (i % 4)} sc1" for i in range(nf)]
    for l in loads():
        a(l)
    if sentinel(ein):
        back, stub = label("lnb"), label("lns")
        chk = maxchain(113, range(RAW, RAW + 4 * nf)) + ["v_cmp_eq_u32 vcc, -1, v113"]
        a(f"s_mov_b32 s{sCNT}, 0")
        for l in chk:
            a(l)
        a(f"s_cbranch_vccnz {stub}")
        a(f"{back}:")
        STUBS.extend([f"{stub}:"] + loads() + ["s_waitcnt vmcnt(0)"] + chk + [f"s_add_u32 s{sCNT}, s{sCNT}, 1", f"s_cbranch_vccz {back}",
                      f"s_cmp_lt_u32 s{sCNT}, {RETRY}", f"s_cbranch_scc1 {stub}", f"s_branch {back}"])
    if hinted(eout) and OPT["h_ln"] == 0:
        a.wait_vm0()
        hint_put(hr)
    if OPT["stamps"] == 1:
        a.wait_vm0()
    count_out(113)
    stamp(f"ln{layer} data", 113)
    for i in range(nf):
        for k in range(4):
            unpack(XF + 8 * i + 2 * k, XF + 8 * i + 2 * k + 1, RAW + 4 * i + k)
        for k in range(4):
            x = vr(XF + 8 * i + 2 * k, 2)
            if i == 0:
                a(f"v_pk_mul_f32 {vr(Q + 2 * k, 2)}, {x}, {x}")
            else:
                a(f"v_pk_fma_f32 {vr(Q + 2 * k, 2)}, {x}, {x}, {vr(Q + 2 * k, 2)}")
                a(f"v_pk_add_f32 {vr(S + 2 * k, 2)}, {vr(XF + 2 * k, 2) if i == 1 else vr(S + 2 * k, 2)}, {x}")
    if hinted(eout) and OPT["h_ln"] == 1:
        hint_put(hr)
    for i in range(8):
        a(f"v_permlane32_swap_b32 v{S + i}, v{Q + i}")
    for i in range(0, 8, 2):
        a(f"v_pk_add_f32 {vr(S + i, 2)}, {vr(S + i, 2)}, {vr(Q + i, 2)}")
    for i in range(4):
        a(f"v_permlane16_swap_b32 v{S + i}, v{S + 4 + i}")
    for i in range(0, 4, 2):
        a(f"v_pk_add_f32 {vr(S + i, 2)}, {vr(S + i, 2)}, {vr(S + 4 + i, 2)}")
    for i in range(2):
        a(f"v_add_f32_dpp v{W + i}, v{S + i}, v{S + i} row_ror:8 row_mask:0xf bank_mask:0x3")
    for i in range(2):
        a(f"v_add_f32_dpp v{W + i}, v{S + 2 + i}, v{S + 2 + i} row_ror:8 row_mask:0xf bank_mask:0xc")
    a(f"v_add_f32_dpp v{S}, v{W}, v{W} row_shl:4 row_mask:0xf bank_mask:0x5")
    a(f"v_add_f32_dpp v{S}, v{W + 1}, v{W + 1} row_shr:4 row_mask:0xf bank_mask:0xa")
    if not wide:
        a(f"v_add_f32_dpp v{S}, v{S}, v{S} quad_perm:[2,3,0,1] row_mask:0xf bank_mask:0xf")
    a(f"ds_write_b32 v{vPW}, v{S}")
    a.barrier()
    if hinted(eout) and OPT["h_ln"] == 2:
        hint_put(hr)
    stamp(f"ln{layer} bar", 113)
    T = 0
    for w in range(4):
        a(f"ds_read2_b32 {vr(T + 2 * w, 2)}, v{vPR} offset0:{w * 64} offset1:{w * 64 + 32}")
    a(f"""v_pk_add_f32 {vr(T, 2)}, {vr(T, 2)}, {vr(T + 2, 2)}
v_pk_add_f32 {vr(T + 4, 2)}, {vr(T + 4, 2)}, {vr(T + 6, 2)}
v_pk_add_f32 {vr(T, 2)}, {vr(T, 2)}, {vr(T + 4, 2)}
v_mul_f32 v{T}, {f32(1 / 448)}, v{T}
v_mul_f32 v{T + 1}, {f32(1 / 448)}, v{T + 1}
v_fma_f32 v{T + 1}, -v{T}, v{T}, v{T + 1}
v_max_f32 v{T + 1}, 0, v{T + 1}
v_add_f32 v{T + 2}, {f32(1e-5)}, v{T + 1}
v_fmamk_f32 v{T + 2}, v{T + 2}, {f32(1e-5)}, v{T + 1}
v_rsq_f32 v{T + 2}, v{T + 2}
v_mul_f32 v{T + 3}, -v{T}, v{T + 2}
v_cndmask_b32 v{T + 2}, v{T + 2}, v{T + 3}, s[18:19]
ds_write_b32 v{vAW}, v{T + 2}""")
    AL, BE = S, Q
    done_hint = []
    a(f"""ds_read_b128 {vr(AL, 4)}, v{vAR}
ds_read_b128 {vr(BE, 4)}, v{vAR} offset:128
ds_read_b128 {vr(AL + 4, 4)}, v{vAR} offset:16
ds_read_b128 {vr(BE + 4, 4)}, v{vAR} offset:144""")
    for i in range(nf):
        for k in range(4):
            x = vr(XF + 8 * i + 2 * k, 2)
            a(f"v_pk_fma_f32 {x}, {x}, {vr(AL + 2 * k, 2)}, {vr(BE + 2 * k, 2)}")
        for k in range(4):
            a(f"v_cvt_pk_bf16_f32 v{RAW + 4 * i + k}, v{XF + 8 * i + 2 * k}, v{XF + 8 * i + 2 * k + 1}")
        a(f"buffer_store_dwordx4 {vr(RAW + 4 * i, 4)}, v{vO if wide else vS + i}, {srd(S_WS)}, s{23 + i if wide else 23} offen sc1", tag="pub")
        if hinted(eout) and OPT["h_ln"] - 3 == min(i, 6) * (4 if nf == 7 else 4) // (nf + 1):
            if not done_hint:
                hint_put(hr)
                done_hint.append(1)
    stamp(f"ln{layer} st", 113)
    if flagged(eout):
        flag_put(eout, prod, 100, "pub")


def gemm_addr():
    a(f"""s_and_b32 s{sT0}, s{sWAVE}, 1
s_lshl_b32 s{sT0}, s{sT0}, 10
v_add_u32 v{vA0}, s{sT0}, v{vL16}
v_xor_b32 v{vA1}, 0x400, v{vA0}""")


vCHK = 121


def gemm_loop(nks, ring, nring, wreg, swap, sent, lds_from=99, at=None):
    WF = 104
    nfr = 2 * nks

    def load(f):
        ks, db = f // 2, f % 2
        g = []
        if db == 0 and ks and ks % 2 == 0:
            g.append(Ins("s_add_u32 s13, s13, 4096"))
            if ks % 4 == 0:
                g += [Ins("s_cmp_eq_u32 s13, s28"), Ins("s_cmov_b32 s13, s27")]
        d = ring + 4 * (f % nring)
        g.append(Ins(f"buffer_load_dwordx4 {vr(d, 4)}, v{(vA0, vA1)[db]}, {srd(S_WS)}, s13 offen offset:{(ks % 2) * 2048} sc1"))
        return g

    def wread(ks):
        g = []
        slot = ks - lds_from
        for nb in range(2):
            for j in range(2):
                d = WF + 8 * (ks % 2) + 4 * nb + 2 * j
                g.append(Ins(f"ds_read_b64_tr_b16 {vr(d, 2)}, v{(vT2a, vT2b)[nb]} offset:{slot * 2048 + j * 1024}", res_r=[f"slot{slot}"]))
        return g

    def check(ks, upto):
        regs = [ring + 4 * ((2 * ks + db) % nring) + k for db in range(2) for k in range(4)]
        chk = maxchain(vCHK, regs) + [f"v_cmp_eq_u32 vcc, -1, v{vCHK}"]
        back, stub = label("gb"), label("gs")
        rl, cnt = [], 0
        for f in range(2 * ks, max(2 * ks + 2, min(upto, 2 * ks + 2 * OPT["rl"]))):
            k2, db = f // 2, f % 2
            if db == 0:
                rl += [f"s_add_u32 s3, s22, {k2 * 2048}", "s_cmp_ge_u32 s3, s28", f"s_cselect_b32 s18, {nks * 2048}, 0", "s_sub_u32 s3, s3, s18"]
            rl.append(f"buffer_load_dwordx4 {vr(ring + 4 * (f % nring), 4)}, v{(vA0, vA1)[db]}, {srd(S_WS)}, s3 offen sc1")
        STUBS.extend([f"{stub}:"] + rl + ["s_waitcnt vmcnt(0)"] + chk + [f"s_add_u32 s{sCNT}, s{sCNT}, 1", f"s_cbranch_vccz {back}",
                                                     f"s_cmp_lt_u32 s{sCNT}, {RETRY}", f"s_cbranch_scc1 {stub}", f"s_branch {back}"])
        return [Ins(x) for x in chk], [Ins(f"s_cbranch_vccnz {stub}"), Ins(f"{back}:")]

    if sent:
        a(f"s_mov_b32 s{sCNT}, 0")
    nxt = min(OPT["fill0"], nring)
    for f in range(nxt):
        a.put(load(f))
    if sent:
        c, b = check(0, nxt)
        a.put(c); a.put(b)
    extra = []
    for ks in range(nks):
        if at and ks in at:
            extra += a.capture(at[ks])
        pend = wread(ks + 1) if lds_from <= ks + 1 < nks else []
        c, b = check(ks + 1, min(nfr, nxt + 2, nring + 2 * ks + 2)) if (sent and ks + 1 < nks) else ([], [])
        order = [(0, 0), (0, 1), (1, 0), (1, 1)]
        if ks == nks - 1 and OPT["tailord"]:
            order = [(0, 1), (1, 0), (1, 1), (0, 0)]
        if True:
            for nb, db in order:
                acc = vr(16 * (2 * nb + db), 16)
                cc = acc if (ks or (nb | db) == 0) else "0"
                w = wreg(ks, nb) if ks < lds_from else vr(WF + 8 * (ks % 2) + 4 * nb, 4)
                x = vr(ring + 4 * ((2 * ks + db) % nring), 4)
                a(f"v_mfma_f32_32x32x16_bf16 {acc}, {x if swap else w}, {w if swap else x}, {cc}")
                if pend:
                    a.put([pend.pop(0)])
                free = nring + 2 * ks + (db + 1 if nb == 1 else 0)
                if nxt < min(nfr, free) and (nb == 1 or db == 1):
                    a.put(load(nxt))
                    nxt += 1
                if extra and nb == 0:
                    k = 5
                    while k < len(extra) and ("exec" in extra[k - 1].defs and extra[k - 1].text != "s_mov_b64 exec, -1" or extra[k - 1].kind == "vstore"):
                        k += 1
                    a.put(extra[:k])
                    del extra[:k]
                if nb == 1 and db == 0:
                    a.put(c)
                if nb == 1 and db == 1:
                    a.put(b)
    a.put(extra)


def gemm_rot(nks, srot):
    a(f"s_mov_b32 s27, s13\ns_add_u32 s28, s13, {nks * 2048}\ns_lshl_b32 s{sT0}, s{srot}, 13\ns_add_u32 s13, s13, s{sT0}\ns_mov_b32 s22, s13")


def gemm_reduce_prep():
    slot = 6144 if OPT["bfr"] else 12288
    for rel in (1, 2, 3):
        a(f"s_xor_b32 s{23 + rel}, s{sWAVE}, {rel}\ns_mul_i32 s{23 + rel}, s{23 + rel}, {slot}")
    a(f"s_mul_i32 s23, s{sWAVE}, {slot}")


def gemm_reduce_addr():
    for rel in range(4):
        a(f"v_add_u32 v{64 + rel}, s{23 + rel}, v{vL16}")


def gemm_perm(P):
    if not OPT["bfr"]:
        return
    t, u = P + 8, P + 7
    a("s_mov_b32 s29, 0x3f80")
    a(f"""v_lshrrev_b32 v{u}, 5, v{vLANE}
v_and_b32 v{t}, 31, v{vLANE}
v_lshlrev_b32 v{u}, 2, v{u}
v_sub_u32 v{t}, v{t}, v{u}
v_and_b32 v{u}, 1, v{t}
v_lshlrev_b32 v{u}, 4, v{u}
v_lshlrev_b32 v{u}, v{u}, s29
v_ashrrev_i32 v{t}, 1, v{t}""")
    vals = (0, 1, 4, 5, 8, 9, 12, 13)
    pairs = ("s[16:17]", "s[30:31]", "s[50:51]")
    for d in range(10):
        if d < 8:
            a(f"v_cmp_eq_u32 {pairs[d % 3]}, {vals[d]}, v{t}")
        if d >= 2:
            a(f"v_cndmask_b32 v{P + d - 2}, 0, v{u}, {pairs[(d - 2) % 3]}")
    a(f"ds_write_b128 v{vL16}, {vr(P, 4)} offset:{PERM}")
    a(f"ds_write_b128 v{vL16}, {vr(P + 4, 4)} offset:{PERM + 1024}")


def gemm_perm_get(P):
    if OPT["bfr"]:
        a(f"ds_read_b128 {vr(P, 4)}, v{vL16} offset:{PERM}")
        a(f"ds_read_b128 {vr(P + 4, 4)}, v{vL16} offset:{PERM + 1024}")


def gemm_reduce_bf(P, pre, post, quarter):
    side = a.capture(pre) if pre else []
    a.put(side[:9])
    side = side[9:]
    T = [104, 108, 112, 116]
    n = 0
    for rel in (1, 2, 3):
        for j in range(2):
            t = T[n % 4]
            n += 1
            for k in range(4):
                r = 16 * rel + 8 * j + 2 * k
                a(f"v_cvt_pk_bf16_f32 v{t + k}, v{r}, v{r + 1}")
            a(f"ds_write_b128 v{64 + rel}, {vr(t, 4)} offset:{RB + (rel - 1) * 2048 + j * 1024}")
            a.put(side[:3])
            side = side[3:]
    a.put(side)
    a.barrier()
    for k in range(6):
        a(f"ds_read_b128 {vr(16 + 4 * k, 4)}, v64 offset:{RB + k * 1024}")
    if post:
        post()
    for k in range(6):
        a(f"v_mfma_f32_32x32x16_bf16 v[0:15], {vr(P + 4 * (k % 2), 4)}, {vr(16 + 4 * k, 4)}, v[0:15]")
    if quarter:
        for q in range(4):
            quarter(q)


def gemm_reduce(pre=None, post=None, quarter=None, P=None):
    if OPT["bfr"]:
        return gemm_reduce_bf(P, pre, post, quarter)
    side = a.capture(pre) if pre else []
    wr = [[Ins(f"ds_write_b128 v{64 + rel}, {vr(16 * rel + 4 * q, 4)} offset:{RB + (rel - 1) * 4096 + q * 1024}")] for rel in (1, 2, 3) for q in range(4)]
    a.put(side[:9])
    put_all(wr[:3])
    m, rest = merge(side[9:], wr[3:], 0, 12)
    a.put(m)
    put_all(rest)
    a.barrier()
    for q in range(4):
        for k in range(3):
            a(f"ds_read_b128 {vr(16 + 16 * k + 4 * q, 4)}, v64 offset:{RB + k * 4096 + q * 1024}")
        if q == 1 and post:
            post()
    for q in range(4):
        for h in range(2):
            r = 4 * q + 2 * h
            a(f"v_pk_add_f32 {vr(16 + r, 2)}, {vr(16 + r, 2)}, {vr(32 + r, 2)}")
            a(f"v_pk_add_f32 {vr(r, 2)}, {vr(r, 2)}, {vr(48 + r, 2)}")
        for h in range(2):
            r = 4 * q + 2 * h
            a(f"v_pk_add_f32 {vr(r, 2)}, {vr(r, 2)}, {vr(16 + r, 2)}")
        if quarter:
            quarter(q)


def gemm1(layer, wide, pre=None, bg=()):
    H = H1 if layer == 0 else H3
    G = G1 if layer == 0 else G3
    gemm_addr()
    a(f"""s_lshr_b32 s{sT0}, s{sWAVE}, 1
s_lshl_b32 s{sT0}, s{sT0}, 6
s_lshl_b32 s{sT1}, s{sNT}, 7
s_add_u32 s{sT0}, s{sT0}, s{sT1}
v_lshrrev_b32 v16, 5, v{vLANE}
v_lshl_add_u32 v16, v16, 3, s{sT0}""")
    for q in range(4):
        a(f"global_load_dwordx2 {vr(20 + 2 * q, 2)}, v16, {sp(P_B1)} offset:{16 * q}")
    r = 32
    a(f"""s_lshl_b32 s{sT0}, s{sWAVE}, 5
v_and_b32 v{r + 2}, 31, v{vLANE}
v_add_u32 v{r + 2}, s{sT0}, v{r + 2}
v_and_b32 v{r + 3}, {31 & ~(32 // OPT['samp'] - 1)}, v{vLANE}
v_add_u32 v{r + 3}, s{sT0}, v{r + 3}
s_lshl_b32 s13, s{sDT1}, 7
s_add_u32 s13, s13, s{sT0}
s_lshl_b32 s13, s13, 11
s_add_u32 s13, s13, {H}""")
    if wide:
        a(f"v_lshrrev_b32 v{r + 2}, 1, v{r + 2}\nv_lshrrev_b32 v{r + 3}, 1, v{r + 3}")
    c0 = -2 * math.log2(math.e) * math.sqrt(2 / math.pi)
    a(f"""s_mov_b32 s{sCA}, {f32(c0 * 0.044715)}
s_mul_i32 s21, s{sDT1}, 112
s_lshl_b32 s{sT0}, s{sNT}, 2
s_add_u32 s21, s21, s{sT0}
s_and_b32 s{sT0}, s{sWAVE}, 2
s_add_u32 s21, s21, s{sT0}
s_lshl_b32 s21, s21, 11
s_add_u32 s21, s21, {G}""")
    gemm_reduce_prep()
    gemm_rot(32, sROT1)
    if pre:
        pre()
    for k in range(8):
        unpack(2 * k, 2 * k + 1, 20 + k)
    ein, eout = 2 + 4 * layer, 3 + 4 * layer
    if emode(ein) == "M":
        l1, l2 = label("m1"), label("m2")
        a(f"s_cmp_eq_u32 s{sRL0 if wide else sRL}, 0\ns_cbranch_scc1 {l1}")
        a.wait_tag("pub")
        a(f"s_branch {l2}")
        a(f"{l1}:")
        wait_edge(ein, r, r + 2, r + 3)
        a(f"{l2}:")
    else:
        wait_edge(ein, r, r + 2, r + 3)
    stamp(f"g1_{layer} go", 63)
    prod = f"s_mul_i32 s{sT0}, s{sDT1}, 28\ns_add_u32 s{sT0}, s{sT0}, s{sNT}\ns_lshl_b32 s{sT0}, s{sT0}, 6"
    early = hinted(eout) and OPT["h_g1"] < 0
    at = {30: gemm_reduce_addr, 28: lambda: gemm_perm_get(96)}
    if early:
        assert OPT["h_g1"] in (-1, -3, -4)
        at[32 + OPT["h_g1"]] = lambda: (hint_prep(eout + 10, prod, 104), hint_put(104))
    gemm_loop(32, 64, 14, lambda ks, nb: f"a[{(ks * 2 + nb) * 4}:{(ks * 2 + nb) * 4 + 3}]", False, sentinel(ein), at=at)
    count_out(120)
    stamp(f"g1_{layer} loop", 120)
    a.begin()
    late = hinted(eout) and not early

    def pre():
        a(f"v_mov_b32 v80, {f32(c0)}")
        if late:
            hint_prep(eout + 10, prod, 72)

    def gelu(q):
        if q % 2 == 0:
            return
        half = q // 2
        if late and OPT["h_g1"] == 1 and half == 0:
            hint_put(72)
        rs = range(8 * half, 8 * half + 8, 2)
        for r in rs:
            a(f"v_pk_mul_f32 {vr(16 + r, 2)}, {vr(r, 2)}, {vr(r, 2)}")
        for r in rs:
            a(f"v_pk_fma_f32 {vr(16 + r, 2)}, {vr(16 + r, 2)}, {sp(sCA)}, {vr(80, 2)} op_sel_hi:[1,0,0]")
        for r in rs:
            a(f"v_pk_mul_f32 {vr(16 + r, 2)}, {vr(16 + r, 2)}, {vr(r, 2)}")
        for r in rs:
            a(f"v_exp_f32 v{16 + r}, v{16 + r}\nv_exp_f32 v{17 + r}, v{17 + r}")
        for r in rs:
            a(f"v_pk_add_f32 {vr(16 + r, 2)}, {vr(16 + r, 2)}, 1.0 op_sel_hi:[1,0]")
        for r in rs:
            a(f"v_rcp_f32 v{16 + r}, v{16 + r}\nv_rcp_f32 v{17 + r}, v{17 + r}")
        for r in rs:
            a(f"v_pk_mul_f32 {vr(r, 2)}, {vr(r, 2)}, {vr(16 + r, 2)}")
        for r in rs:
            a(f"v_cvt_pk_bf16_f32 v{84 + r // 2}, v{r}, v{r + 1}")
        a(f"buffer_store_dwordx4 {vr(84 + 4 * half, 4)}, v{vA0}, {srd(S_WS)}, s21 offen offset:{2048 * half} sc1", tag="pub")
        if late and OPT["h_g1"] == 2 + half:
            hint_put(72)
    gemm_reduce(pre, (lambda: hint_put(72)) if (late and OPT["h_g1"] == 0) else None, gelu, 96)
    m, rest = merge(a.end(), list(bg), 0, OPT["ev_g1"])
    a.put(m)
    if not flagged(eout):
        a.barrier()
    else:
        flag_put(eout, prod, 40, "pub")
    for g in rest:
        a.put(g)


def gemm2(layer):
    G = G1 if layer == 0 else G3
    gemm_addr()
    a(f"""s_lshr_b32 s{sT0}, s{sWAVE}, 1
s_lshl_b32 s{sT0}, s{sT0}, 5
s_lshl_b32 s{sT1}, s{sST}, 6
s_add_u32 s50, s{sT0}, s{sT1}
s_and_b32 s{sT1}, s{sWAVE}, 1
s_lshl_b32 s{sT1}, s{sT1}, 5
s_lshl_b32 s{sT2}, s{sDT2}, 6
s_add_u32 s51, s{sT1}, s{sT2}
s_lshr_b32 s{sT2}, s50, 5
s_mul_i32 s{sT2}, s{sT2}, {BS}
s_lshl_b32 s{sT1}, s51, 6
s_add_u32 s20, s{sT2}, s{sT1}
s_add_u32 s30, s20, {X1 if layer == 0 else X3}
v_and_b32 v16, 31, v{vLANE}
v_lshrrev_b32 v17, 5, v{vLANE}
s_lshl_b32 s{sT0}, s50, 1""")
    r = 42

    def residual_issue():
        if layer == 0:
            for q in range(4):
                a(f"buffer_load_dwordx2 {vr(20 + 2 * q, 2)}, v18, {srd(S_WS)}, s30 offen offset:{16 * q} sc1")
        else:
            a(f"s_mov_b32 m0, s31")
            a(f"buffer_load_dwordx4 v{vL16}, {srd(S_WS)}, s30 offen sc1 lds", res_w=["x3"])
            a(f"buffer_load_dwordx4 v{vL16}, {srd(S_WS)}, s30 offen offset:1024 sc1 lds", res_w=["x3"])

    def residual_use():
        if layer == 0:
            for k in range(8):
                unpack(2 * k, 2 * k + 1, 20 + k)
            for k in range(8):
                unpack(40, 41, 28 + k)
                a(f"v_pk_add_f32 {vr(2 * k, 2)}, {vr(2 * k, 2)}, v[40:41]")
        else:
            for q in range(4):
                a(f"ds_read_b64_tr_b16 {vr(20 + 2 * q, 2)}, v31 offset:{512 * q}", res_r=["x3"])
            a("v_lshlrev_b32 v40, 16, v29")
            for k in range(8):
                unpack(2 * k, 2 * k + 1, 20 + k)
                a(f"v_pk_add_f32 {vr(2 * k, 2)}, {vr(2 * k, 2)}, v[40:41] op_sel_hi:[1,0]")

    if layer == 0:
        a(f"v_lshlrev_b32 v18, 6, v16\nv_lshl_add_u32 v18, v17, 3, v18\nv_lshl_add_u32 v19, v17, 3, s{sT0}")
        for q in range(4):
            a(f"global_load_dwordx2 {vr(28 + 2 * q, 2)}, v19, {sp(P_B2)} offset:{16 * q}")
    else:
        a(f"""v_and_b32 v19, 3, v{vLANE}
s_lshl_b32 s31, s{sWAVE}, 11
v_lshl_add_u32 v28, v16, 1, s{sT0}
global_load_ushort v29, v28, {sp(P_B2)}
v_bfe_u32 v31, v{vLANE}, 2, 2
v_lshl_add_u32 v31, v17, 2, v31
v_lshlrev_b32 v31, 6, v31
v_bfe_u32 v30, v{vLANE}, 4, 1
v_lshl_add_u32 v31, v30, 5, v31
v_lshl_add_u32 v31, v19, 3, v31
v_add_u32 v31, s31, v31""")
    a(f"""s_mul_i32 s{sT0}, s{sDT2}, 28
s_mul_i32 s{sT1}, s{sWAVE}, 7
s_add_u32 s{sT0}, s{sT0}, s{sT1}
v_min_u32 v{r + 2}, 6, v{vLANE}
v_add_u32 v{r + 2}, s{sT0}, v{r + 2}
v_mov_b32 v{r + 3}, v{r + 2}
s_lshl_b32 s13, s{sT0}, 13
s_add_u32 s13, s13, {G}""")
    if layer == 0:
        a(f"""s_add_u32 s21, s20, {X2}
s_lshl_b32 s19, s50, 1
s_add_u32 s19, s19, {ST1}""")
    else:
        a(f"s_mul_i32 s{sT0}, s50, 896\ns_lshl_b32 s{sT1}, s51, 1\ns_add_u32 s21, s{sT0}, s{sT1}")
    gemm_reduce_prep()
    gemm_rot(28, sROT2)
    lskip, ljoin = label("res"), label("resj")
    a(f"s_cmp_eq_u32 s{sR1}, 0")
    a(f"s_cbranch_scc1 {lskip}")
    residual_issue()
    residual_use()
    if emode(3 + 4 * layer) == "M":
        a.wait_tag("pub")
    else:
        wait_edge(3 + 4 * layer, r, r + 2, r + 3)
    a(f"s_branch {ljoin}")
    a(f"{lskip}:")
    wait_edge(3 + 4 * layer, r, r + 2, r + 3)
    residual_issue()
    residual_use()
    a(f"{ljoin}:")
    stamp(f"g2_{layer} go", 63)
    gemm_loop(28, 64, 10, lambda ks, nb: vr(128 + (ks * 2 + nb) * 4, 4), layer == 1, sentinel(3 + 4 * layer), lds_from=16, at={26: gemm_reduce_addr, 25: lambda: gemm_perm_get(88)})
    count_out(120)
    stamp(f"g2_{layer} loop", 120)

    def addr():
        a(f"v_and_b32 v68, 31, v{vLANE}\nv_lshrrev_b32 v69, 5, v{vLANE}")
        if layer == 0:
            a(f"""v_and_b32 v70, 15, v{vLANE}
v_lshlrev_b32 v70, 6, v70
v_lshl_add_u32 v70, v69, 4, v70
v_bfe_u32 v71, v{vLANE}, 4, 1
v_lshl_add_u32 v70, v71, 5, v70
v_bfe_u32 v71, v{vLANE}, 2, 2
v_lshlrev_b32 v71, 4, v71
v_bfe_u32 v68, v{vLANE}, 4, 1
v_lshl_add_u32 v71, v68, 3, v71
v_and_b32 v68, 1, v{vLANE}
v_lshl_add_u32 v71, v68, 2, v71
v_bfe_u32 v68, v{vLANE}, 1, 1
v_lshl_add_u32 v68, v69, 1, v68
v_lshl_add_u32 v71, v68, 12, v71""")
        else:
            a(f"v_mul_u32_u24 v70, 896, v68\nv_lshl_add_u32 v70, v69, 4, v70")
    prod = f"s_lshl_b32 s{sT0}, s{sDT2}, 5\ns_add_u32 s{sT0}, s{sT0}, s{sST}\ns_lshl_b32 s{sT0}, s{sT0}, 6"
    hn = layer == 0 and hinted(4)

    def pre():
        addr()
        if hn:
            hint_prep(14, prod, 80)
    gemm_reduce(pre, (lambda: hint_put(80)) if (hn and OPT["h_g2"] == 0) else None, None, 88)
    if hn and OPT["h_g2"] == 1:
        hint_put(80)
    PK = 72
    stamp(f"g2_{layer} red", 120)
    for half in range(2):
        b = PK + 4 * half
        for k in range(4):
            a(f"v_cvt_pk_bf16_f32 v{b + k}, v{8 * half + 2 * k}, v{8 * half + 2 * k + 1}")
        a(f"v_permlane32_swap_b32 v{b}, v{b + 2}")
        a(f"v_permlane32_swap_b32 v{b + 1}, v{b + 3}")
        if layer == 1:
            a(f"buffer_store_dwordx4 {vr(b, 4)}, v70, {srd(S_OUT)}, s21 offen offset:{32 * half} {('', 'nt', 'sc1')[OPT['ofl']]}")
    if layer == 1:
        return
    for k in range(4):
        a(f"v_permlane16_swap_b32 v{PK + k}, v{PK + 4 + k}")
    for half in range(2):
        a(f"buffer_store_dwordx4 {vr(PK + 4 * half, 4)}, v70, {srd(S_WS)}, s21 offen offset:{1024 * half} sc1", tag="pub")
    if hn and OPT["h_g2"] == 2:
        hint_put(80)
    for k in range(8):
        a(f"v_pk_mul_f32 {vr(20 + 2 * k, 2)}, {vr(2 * k, 2)}, {vr(2 * k, 2)}")
    res = reduce32(list(range(16)) + list(range(20, 36)), 16, list(range(40, 48)))
    assert res == [0, 1, 2, 3]
    a(f"""v_cndmask_b32 v0, v0, v1, {sp(sM1)}
v_cndmask_b32 v2, v2, v3, {sp(sM1)}
v_cndmask_b32 v0, v0, v2, {sp(sM2)}""")
    a(f"buffer_atomic_add_f32 v0, v71, {srd(S_WS)}, s19 offen sc1", tag="pub")
    if hn and OPT["h_g2"] == 3:
        hint_put(80)
    stamp("g2_0 atom", 120)
    flag_put(4, prod, 40, "pub")
    stamp("g2_0 flag", 120)


def skip_unless(role):
    l = label("skip")
    a(f"s_cmp_eq_u32 s{role}, 0")
    a(f"s_cbranch_scc1 {l}")
    return l


def dmas(n0, n1):
    return [w_dma(n, h) for n in range(n0, n1) for h in range(2)]


def tr_dma(n0, n1):
    g = []
    for n in range(n0, n1):
        g.append(w_tr(n))
        if n > n0:
            g += dmas(n + 11, n + 12)
    g += dmas(n1 + 11, n1 + 12)
    return g


def wseq():
    nB = OPT["wB"] // 2
    assert 36 <= nB <= 60
    g = dmas(0, 12) + tr_dma(0, nB - 12)
    lastT = 48 if (nB >= 48 and OPT["wT"]) else 36
    g += [w_tr(n) for n in range(nB - 12, lastT)]
    g.append([])
    d = nB
    for n in range(max(lastT, nB - 12), 49):
        while d < min(n + 11, 60) or (n == 48 and d < 60):
            g += dmas(d, d + 1)
            d += 1
        if n < 48:
            g.append(w_tr(n))
    return g


def wcut(n_dma):
    k = 0
    for p, g in enumerate(wseq()):
        if k == n_dma:
            return p
        k += any(i.kind == "dma" for i in g)
    return len(wseq())


def put_all(gs):
    for g in gs:
        a.put(g)


def w2_touch(r):
    return [Ins(f"v_lshlrev_b32 v{r}, 12, v{vLANE}"), Ins(f"buffer_load_dword v{r}, v{r}, {srd(S_W2)}, s{sW2O} offen")]


def build():
    if OPT["w2t"]:
        WORDER[:] = list(range(60))
    cA, cP, cL, cB = wcut(OPT["wA"]), wcut(OPT["wP"]), wcut(OPT["wL"]), wseq().index([])
    cK = wcut(OPT["wK"])
    prologue()
    laux, ljoin = label("aux"), label("join")
    a(f"s_cmp_eq_u32 s{sRC}, 0")
    a(f"s_cbranch_scc1 {laux}")
    xt_loads()
    kgen_table_load()
    code_warm(1)
    w_setup()
    put_all(wseq()[:cA])
    conv_setup(0)
    stamp("start", 2)

    xt_poll_addr(63, 2)
    xt_work()

    def h_flag():
        nonce_take()
        flag_put(0, sPAIR, 104, "st0")
        stamp("flag", 0)
        a(f"global_load_dwordx4 {vr(TAB, 4)}, v75, {sp(sTAB)}")
        a(f"global_load_dwordx4 {vr(TAB + 4, 4)}, v75, {sp(sTAB)} offset:16")
        a(f"global_load_dwordx2 v[0:1], v75, {sp(sTAB)} offset:32")

    hooks = {}
    for pos, fn in ((OPT["h_flag"], h_flag), (OPT["h_w"], lambda: KBG.extend(wseq()[cA:cK] + ([w2_touch(75)] if OPT["w2t"] else []))), (OPT["h_poll"], lambda: poll_issue(0, 64, 63))):
        hooks.setdefault(pos, []).append(fn)
    assert OPT["h_flag"] <= OPT["h_w"] and OPT["h_poll"] >= 6
    kgen({k: (lambda fs=fs: [f() for f in fs]) for k, fs in hooks.items()})
    dump_lds(1)
    stamp("kgen", 21)

    def mid():
        poll_take(64, 63)
        stamp("e1 seen", 0)
        conv_loads()
        put_all(wseq()[cK:cP])
    wr = kexpand(mid)
    if OPT["mixpro"]:
        mv = [i for i in wr if i.kind != "dsw"]
        st = [i for i in wr if i.kind == "dsw"]
        pro = a.capture(conv_pro, 0)
        k = next(n for n, i in enumerate(pro) if i.defs & {f"v{r}" for r in range(0, 22)})
        a.put(mv)
        a.put(st[2:4])
        head, rest = merge(pro[:k], [[i] for i in st[4:6] + st[:2] + st[6:]], 0, 14)
        a.put(head)
        early = [g for g in rest if g[0].uses & {f"v{r}" for r in range(0, 22)}]
        put_all(early)
        rest = [g for g in rest if g not in early]
        k2 = next(n for n, i in enumerate(pro) if i.kind == "dsw")
        mid2, rest = merge(pro[k:k2], rest, 0, 30)
        a.put(mid2)
        put_all(rest)
        a.put(pro[k2:])
        stamp("expand", 111)
    else:
        a.put(wr)
        stamp("expand")
        conv_pro(0)
    if sentinel(1):
        a(f"v_min_u32 v{cvP + 2}, 27, v{vLANE}")
        poll_issue(8, cvP)
    a.barrier()
    dump_lds(2)
    stamp("conv0 go", 111)
    put_all(conv_main(0, wseq()[cP:cL], OPT["st_conv"], OPT["ev_conv"]))
    stamp("conv0 done")
    a(f"s_branch {ljoin}")
    a(f"{laux}:")
    aux_loads()
    kgen_table_addr()
    code_warm(1)
    w_setup()
    aux_work()
    stamp("aux e1")
    if OPT["g7"] == 1:
        lg = label("g7")
        a(f"""s_cmp_lg_u32 s{sR1}, 0
s_cbranch_scc1 {lg}
s_lshr_b32 s{sT0}, s{sX}, 2
s_sub_u32 s{sT0}, s{sJ}, s{sT0}
s_sub_u32 s{sT0}, s{sT0}, 28
s_lshl_b32 s{sT0}, s{sT0}, 3
s_add_u32 s{sT0}, s{sT0}, s{sX}
s_lshl_b32 s{sT0}, s{sT0}, 7
s_mul_i32 s{sT1}, s{sWAVE}, {512 * 3584}
s_add_u32 s{sT0}, s{sT0}, s{sT1}
s_add_u32 s{sT0}, s{sT0}, {448 * 3584}
v_mul_u32_u24 v90, 3584, v{vLANE}
v_add_u32 v90, s{sT0}, v90""")
        a(f"global_load_dword v90, v90, {sp(P_W1)}")
        a(f"{lg}:")
    if armed(0):
        assert OPT["map18"] == 1
        lnf = label("nf")
        a(f"s_cmp_lg_u32 s{sR1}, 0\ns_cbranch_scc1 {lnf}")
        a(f"s_sub_u32 s16, s{sAUX}, 4\ns_cselect_b32 s16, s{sAUX}, s16")
        if sentinel(1):
            fill(X1, -(-15 * 32 // 28), 80, 16, 28 * 4096, "fill")
            flag_put(8, 16, 72, "fill")
        if sentinel(2) or sentinel(3):
            fill(H1 if sentinel(2) else G1, -(-(14 * sentinel(2) + 13 * sentinel(3)) * 32 // 28), 80, 16, 28 * 4096, "fill")
            flag_put(18, 16, 72, "fill")
        a(f"{lnf}:")
    stamp("aux fill")
    if OPT["g7"] == 2:
        lg = label("g7")
        a(f"""s_cmp_lg_u32 s{sR1}, 0
s_cbranch_scc1 {lg}
s_lshr_b32 s{sT0}, s{sX}, 2
s_sub_u32 s{sT0}, s{sJ}, s{sT0}
s_sub_u32 s{sT0}, s{sT0}, 28
s_lshl_b32 s{sT0}, s{sT0}, 3
s_add_u32 s{sT0}, s{sT0}, s{sX}
s_lshl_b32 s{sT0}, s{sT0}, 7
s_mul_i32 s{sT1}, s{sWAVE}, {512 * 3584}
s_add_u32 s{sT0}, s{sT0}, s{sT1}
s_add_u32 s{sT0}, s{sT0}, {448 * 3584}
v_mul_u32_u24 v90, 3584, v{vLANE}
v_add_u32 v90, s{sT0}, v90""")
        a(f"global_load_dword v90, v90, {sp(P_W1)}")
        a(f"{lg}:")
    cX = min(wcut(72), cB)
    if OPT["w2t"]:
        a.put(w2_touch(75))
    put_all(wseq()[:cX])
    if sentinel(1):
        a(f"v_min_u32 v62, 27, v{vLANE}")
        poll_issue(8, 60)
        poll_take(60)
    a.wait_vm0()
    stamp("aux w")
    a(f"{ljoin}:")
    for layer in range(2):
        if layer == 1:
            l = skip_unless(sRC)
            conv_setup(1)
            conv_poll1()
            stamp("conv1 ready")
            if OPT["kc_in"] and not hinted(4):
                a.wait_tag("flag")
                poll_issue(4, cvP)
                kcopies()
                poll_take(cvP)
            else:
                kcopies()
                wait_edge(4, cvP, cvP + 2, cvP + 3)
            stamp("conv1 poll")
            conv_loads()
            conv_pro(1)
            if armed(1):
                a(f"v_and_b32 v{cvP + 2}, 31, v{vLANE}")
                poll_issue(9, cvP)
            a.barrier()
            dump_lds(3)
            stamp("conv1 go", 111)
            conv_main(1)
            stamp("conv1 done")
            if armed(1):
                lj = label("cvj")
                a(f"s_branch {lj}")
                a(f"{l}:")
                a(f"v_and_b32 v62, 31, v{vLANE}")
                poll_issue(9, 60)
                poll_take(60)
                a(f"{lj}:")
            else:
                a(f"{l}:")
        wide = OPT["ln1w"] if layer else OPT["ln0w"]
        l = skip_unless(sRL0 if wide else sRL)
        ln(layer, wide)
        stamp(f"ln{layer} done")
        a(f"{l}:")
        if layer == 0:
            gemm_perm(0)
            l = skip_unless(sRC)
            put_all(wseq()[cL:cX])
            a(f"{l}:")
            rest = wseq()[cX:cB]
            k = max(0, len(rest) - 12)
            put_all(rest[:k])
            if sentinel(2) or sentinel(3):
                a(f"v_min_u32 v62, 27, v{vLANE}")
                poll_issue(18, 60)
            put_all(rest[k:])
            if sentinel(2) or sentinel(3):
                poll_take(60)
            stamp("w B")
            tail = wseq()[cB:]
            assert not any(i.kind == "dsr" and "a[" in i.text for g in tail for i in g)
            lelse, lj = label("ng1"), label("g1j")
            a(f"s_cmp_eq_u32 s{sR1}, 0")
            a(f"s_cbranch_scc1 {lelse}")
            gemm1(0, wide, None, tail)
            nonce_retire()
            stamp("g1_0 done")
            a(f"s_branch {lj}")
            a(f"{lelse}:")
            put_all(wseq()[cB:])
            a(f"{lj}:")
        else:
            l = skip_unless(sR1)
            gemm1(1, wide)
            stamp("g1_1 done")
            a(f"{l}:")
        l = skip_unless(sR2)
        gemm2(layer)
        if layer == 0 and armed(1):
            lj = label("g2j")
            a(f"s_branch {lj}")
            a(f"{l}:")
            if OPT["map18"]:
                a(f"s_lshl_b32 s16, s{sX}, 2\ns_add_u32 s16, s16, s{sJ}")
            else:
                a(f"s_lshr_b32 s16, s{sX}, 1\ns_lshl_b32 s16, s16, 3\ns_add_u32 s16, s16, s{sJ}")
            fill(X3, 42, 72, 16, CH)
            flag_put(9, 16, 8, "st0")
            a(f"{lj}:")
        else:
            a(f"{l}:")
        stamp("g2_0 done" if layer == 0 else "end")
    if OPT["stamps"] and OPT["dbgwg"] < 0:
        l = label("ls")
        a(f"s_cmp_lg_u32 s{sWAVE}, 0\ns_cbranch_scc1 {l}\ns_waitcnt vmcnt(0)\ns_memrealtime {sp(sSTAMP)}\ns_waitcnt lgkmcnt(0)")
        a(f"s_lshl_b32 s3, s2, 8\ns_add_u32 s3, s3, {STAMPS + 248}\nv_mov_b32 v0, s101\nv_mov_b32 v1, s{sSTAMP}\ns_mov_b64 exec, 1")
        a(f"buffer_store_dwordx2 v[0:1], off, {srd(S_WS)}, s3")
        a(f"{l}:")
    if OPT["fixdur"]:
        a(f"s_waitcnt vmcnt(0) lgkmcnt(0)\nL_fix:\ns_memrealtime s[28:29]\ns_waitcnt lgkmcnt(0)\ns_sub_u32 s28, s28, s101\ns_cmp_lt_u32 s28, {OPT['fixdur']}\ns_cbranch_scc1 L_fix")
    a("s_endpgm")


def bf16_round_int(l):
    b = struct.unpack("<I", struct.pack("<f", float(l)))[0]
    b = (b + 0x7FFF + ((b >> 16) & 1)) & 0xFFFF0000
    return int(struct.unpack("<f", struct.pack("<I", b))[0])


def ktab():
    vals = []
    for c in range(2):
        for x in range(2048):
            lr = bf16_round_int(2047 - x)
            aa, rem = lr >> 7, lr & 127
            j, e = rem >> 3, rem & 7
            if aa < 2:
                rho = 8 * aa + e
            elif aa < 4:
                rho = 4 * aa + 8 + (e >> 1)
            elif aa < 8:
                rho = 16 + 2 * aa + (e >> 2)
            else:
                rho = 24 + aa
            vals.append((rho >> 2) * 256 + j * 16 + (rho & 3) * 4 + c * 2 * GST)
        vals += [3072 + c * 2 * GST] * 16
    lines = []
    for i in range(0, len(vals), 16):
        lines.append("    .short " + ", ".join(str(v) for v in vals[i:i + 16]))
    return "\n".join(lines)


def main(path):
    build()
    ins = a.finish()
    ref = open(f"cdna_kernels/{NAME}.s.ref").read().split("\n")
    head = [l for l in ref if l.startswith(";") and "@launch" not in l and not l.startswith("; Override") and not l.startswith("; grid=ceil")]
    k = NAME + "_kernel"
    s = "\n".join(head) + f"\n; @launch grid=(256,1,1) block=(256,1,1) lds={LDS_BYTES}\n"
    s += f""".amdgcn_target "amdgcn-amd-amdhsa--gfx950"
.text
.globl {k}
.p2align 8
.type {k},@function
{k}:
L_entry:
"""
    s += Prog.render(ins)
    s += "".join((l if l.endswith(":") else "    " + l) + "\n" for l in STUBS)
    s += f""".p2align 6
.type ktab,@object
ktab:
{ktab()}
.size ktab, 8256
.section .rodata,"a"
.p2align 6
.amdhsa_kernel {k}
  .amdhsa_next_free_vgpr 512
  .amdhsa_next_free_sgpr 102
  .amdhsa_accum_offset 256
  .amdhsa_group_segment_fixed_size 0
  .amdhsa_kernarg_size 136
  .amdhsa_user_sgpr_count 2
  .amdhsa_user_sgpr_kernarg_segment_ptr 1
  .amdhsa_system_sgpr_workgroup_id_x 1
  .amdhsa_float_denorm_mode_32 3
.end_amdhsa_kernel
"""
    open(path, "w").write(s)
    n = sum(1 for i in ins if i.kind not in ("label", "comment"))
    open(path + ".names", "w").write("\n".join(STAMP_NAMES))
    print("instructions:", n, "nops:", sum(1 for i in ins if i.kind == "nop"), "waits:", sum(1 for i in ins if i.kind == "wait"))


if __name__ == "__main__":
    path = sys.argv[1]
    for kv in sys.argv[2:]:
        k, v = kv.split("=")
        OPT[k] = v if k in ('em', 'probe') else int(v)
    main(path)
```

```python
import sys, math, struct
from asmlib import *

NAME = "interleave_layers__ssm_conv_s4__mixer_token_mlp__prompt"
OPT = dict(stamps=False, stop=99, upfront=True, dump=0, dbgwg=-1, fixdur=0, em='FSSFDSS', warm=1, h_flag=2, h_w=2, h_poll=9, h_ln=2, h_cv=0, h_g1=0, h_g2=0, rot=1, wA=0, wK=8, wP=8, wL=16, wB=120, wT=1, lag=2, gap=3, st_conv=100, ev_conv=150, ev_g1=100000, fill0=14, ln1w=0, ln0w=1, chk=1, samp=8, map18=1, ofl=0, tailord=1, cv=1, clk=0, ev_kg=150, mixpro=1, now=0, probe='', kc_in=0, w2t=0, g7=0, rl=4, bfr=1, wg=4, slp=0, ev_pro=30, t2=0, bg0=0)
DBG_SEL = ['start', 'kgen', 'conv0 go', 'ln0 go', 'g1_0 go', 'g1_0 loop', 'g2_0 go', 'g2_0 loop', 'conv1 poll', 'ln1 go', 'g1_1 go', 'g2_1 go', 'end']
STAMP_NAMES = []

EPOCH = 0
ST0 = 0x1000
ST1 = 0x8000
STAMPS = 0x20000
FL = 0x100000
BS = 448 * 64 + 128
CH = 0x20000
X1 = 0x400000
H1 = X1 + 15 * CH
G1 = H1 + 14 * CH
X3 = G1 + 13 * CH
H3 = X3 + 15 * CH
G3 = H3 + 14 * CH
X2 = G3 + 13 * CH
X0 = X2 + 15 * CH
FILL1, FILL3 = 6, 36
WS_BYTES = 268435456
OOB = 0x40000000

KST = 4160
KSLOT = {0: [0, 5, 2, 3], 1: [1, 6, 7, 4]}
UB = 8 * KST
UPAD = 1024
UST = 4096 + UPAD
ZB = UB + 2 * UST
EX = 2 * KST
RB = 2 * KST
GST = 15616
GROW = 272
TOFF = 12288
LNP = 57472
PERM = 61440
W2L = 65536
LDS_BYTES = 163840

sWAVE, sX, sJ, sPAIR, sDT1, sNT, sDT2, sST, sLN = 4, 5, 6, 7, 8, 9, 10, 11, 12
sNONCE = 14
P_U, P_ARE, P_AIM, P_BRE, P_BIM, P_CRE, P_CIM, P_LDT = 16, 18, 20, 22, 24, 26, 28, 30
P_DSK, P_W1, P_B1, P_W2, P_B2, P_OUT, P_DBG, P_WS = 32, 36, 38, 40, 42, 44, 46, 48
S_WS, S_W1, S_W2, S_X0, S_OUT = 52, 56, 60, 64, 68
sD0, sD1 = 72, 74
sLDT = 76
sEP = 78
sWOFF, sT0, sT1, sT2, sT3, sCNT = 80, 81, 82, 83, 84, 85
sRC, sR1, sR2, sRL = 86, 87, 88, 89
sM1, sM2 = 90, 92
sSTAMP = 94
sTAB = 96
sLN0, sRL0 = 77, 73
sCA, sCB = 34, 100

vLANE, vL16, vT2a, vT2b, vT1a, vT1b, vD1, vD2 = 127, 126, 125, 124, 123, 122, 121, 120
vA0, vA1 = 123, 122


def srd(n):
    return f"s[{n}:{n + 3}]"


def sp(n):
    return f"s[{n}:{n + 1}]"


def vr(n, k):
    return f"v[{n}:{n + k - 1}]" if k > 1 else f"v{n}"


def f32(x):
    return "0x%08x" % struct.unpack("<I", struct.pack("<f", x))[0]


a = Prog()
_lab = [0]


def label(p):
    _lab[0] += 1
    return f"L_{p}_{_lab[0]}"


_stamp = [0]


def stamp(name, r=1):
    k = _stamp[0]
    _stamp[0] += 1
    STAMP_NAMES.append(name)
    a("; MARK after " + name)
    if OPT["probe"] == name.replace(" ", "_"):
        a(f"s_memrealtime {sp(sSTAMP)}\ns_waitcnt lgkmcnt(0)\ns_mov_b32 s101, s{sSTAMP}")
    if OPT["stamps"] != 1:
        return
    l = label("st")
    if OPT["dbgwg"] >= 0:
        if name not in DBG_SEL:
            return
        a(f"s_lshl_b32 s3, s{sWAVE}, 8\ns_add_u32 s3, s3, s2\ns_cmp_lg_u32 s3, {OPT['dbgwg']}\ns_cbranch_scc1 {l}")
        a(f"s_memrealtime {sp(sSTAMP)}")
        a("s_waitcnt lgkmcnt(0)")
        a(f"s_mov_b64 exec, 1\nv_mov_b32 v{r}, s{sSTAMP}\ns_mov_b32 s{sSTAMP}, s{P_DBG}\ns_mov_b32 s{sSTAMP + 1}, s{P_DBG + 1}\ns_mov_b32 s{sSTAMP + 2}, 256\ns_mov_b32 s{sSTAMP + 3}, 0x20000".replace(f"s{sSTAMP}, s{P_DBG}", f"s64, s{P_DBG}").replace(f"s{sSTAMP + 1}, s{P_DBG + 1}", f"s65, s{P_DBG + 1}").replace(f"s{sSTAMP + 2}, 256", "s66, 256").replace(f"s{sSTAMP + 3}, 0x20000", "s67, 0x20000"))
        a(f"buffer_store_dword v{r}, off, s[64:67], 0 offset:{12 + 4 * DBG_SEL.index(name)} sc1", optional=True)
        a("s_mov_b64 exec, -1")
        a(f"{l}:")
        return
    a(f"s_cmp_lg_u32 s{sWAVE}, 0")
    a(f"s_cbranch_scc1 {l}")
    a(f"{'s_memtime' if OPT['clk'] else 's_memrealtime'} {sp(sSTAMP)}")
    a("s_waitcnt lgkmcnt(0)")
    a(f"s_lshl_b32 s3, s2, 8")
    a(f"s_add_u32 s3, s3, {STAMPS + 4 * k}")
    a(f"v_mov_b32 v{r}, s{sSTAMP}")
    a("s_mov_b64 exec, 1")
    a(f"buffer_store_dword v{r}, off, {srd(S_WS)}, s3", optional=True)
    a("s_mov_b64 exec, -1")
    a(f"{l}:")


_cnt = [0]


def count_out(r):
    if OPT["stamps"] != 1:
        return
    k = _cnt[0]
    _cnt[0] += 1
    a(f"s_lshl_b32 s3, s2, 2\ns_add_u32 s3, s3, s{sWAVE}\ns_lshl_b32 s3, s3, 5\ns_add_u32 s3, s3, {STAMPS + 0x10000 + 4 * k}")
    a(f"v_mov_b32 v{r}, s{sCNT}\ns_mov_b64 exec, 1")
    a(f"buffer_store_dword v{r}, off, {srd(S_WS)}, s3")
    a("s_mov_b64 exec, -1")


DUMP = 0x2000000


def dump_lds(point, r=96):
    if OPT["dump"] != point:
        return
    a.barrier()
    a(f"s_lshl_b32 s3, s{sWAVE}, 10\nv_add_u32 v{r + 4}, s3, v{vL16}\ns_lshl_b32 s3, s2, 16\ns_add_u32 s3, s3, {DUMP}")
    for i in range(16):
        a(f"ds_read_b128 {vr(r, 4)}, v{r + 4} offset:{i * 4096}")
        a(f"buffer_store_dwordx4 {vr(r, 4)}, v{r + 4}, {srd(S_WS)}, s3 offen")
        a("s_add_u32 s3, s3, 4096")
        a.wait_vm0()
    a.barrier()


def cmul(d, x, y):
    return [f"v_pk_mul_f32 {vr(d, 2)}, {vr(x, 2)}, {vr(y, 2)} op_sel:[1,1] op_sel_hi:[1,0] neg_lo:[0,1]",
            f"v_pk_fma_f32 {vr(d, 2)}, {vr(x, 2)}, {vr(y, 2)}, {vr(d, 2)} op_sel_hi:[0,1,1]"]


def cmul2(p, q=None):
    x = cmul(*p)
    if q is None:
        a(x[0]); a(x[1])
        return
    y = cmul(*q)
    a(x[0]); a(y[0]); a(x[1]); a(y[1])


def unpack(dlo, dhi, s):
    a(f"v_lshlrev_b32 v{dlo}, 16, v{s}")
    a(f"v_and_b32 v{dhi}, 0xffff0000, v{s}")


def prologue():
    a("s_cmp_lt_u32 s2, 256")
    a("s_cbranch_scc1 L_start")
    a("s_endpgm")
    a("L_start:")
    if OPT["fixdur"] or OPT["stamps"]:
        a("s_memrealtime s[50:51]")
    a("s_load_dwordx16 s[16:31], s[0:1], 0")
    a("s_load_dwordx16 s[32:47], s[0:1], 64")
    a("s_load_dwordx2 s[48:49], s[0:1], 128")
    a(f"v_lshrrev_b32 v1, 6, v0")
    a(f"v_and_b32 v{vLANE}, 63, v0")
    a(f"v_readfirstlane_b32 s{sWAVE}, v1")
    a(f"v_lshlrev_b32 v{vL16}, 4, v{vLANE}")
    a(f"""s_and_b32 s{sX}, s2, 7
s_lshr_b32 s{sJ}, s2, 3
s_add_u32 s{sJ}, s{sJ}, 28
s_and_b32 s{sJ}, s{sJ}, 31
""")
    a(f"""s_lshr_b32 s{sT0}, s{sX}, 2
s_mul_i32 s{sPAIR}, s{sX}, 28
s_sub_u32 s{sRC}, s{sJ}, s{sT0}
s_add_u32 s{sPAIR}, s{sPAIR}, s{sRC}
s_cmp_lt_u32 s{sRC}, 28
s_cselect_b32 s{sRC}, 1, 0
s_mul_i32 s{sT2}, s{sJ}, 37
s_lshr_b32 s{sT2}, s{sT2}, 8
s_mul_i32 s{sT3}, s{sT2}, 7
s_sub_u32 s{sDT1}, s{sJ}, s{sT3}
s_lshl_b32 s{sNT}, s{sT2}, 3
s_add_u32 s{sNT}, s{sNT}, s{sX}
s_sub_u32 s{sT1}, s{sJ}, 4
s_cselect_b32 s{sR2}, 0, 1
s_and_b32 s{sT1}, s{sT1}, 31
s_mul_i32 s{sT2}, s{sT1}, 37
s_lshr_b32 s{sT2}, s{sT2}, 8
s_mul_i32 s{sT3}, s{sT2}, 7
s_sub_u32 s{sDT2}, s{sT1}, s{sT3}
s_lshl_b32 s{sST}, s{sX}, 2
s_add_u32 s{sST}, s{sST}, s{sT2}
s_cmp_eq_u32 s{sJ}, 0
s_cselect_b32 s{sT1}, 32, s{sJ}
s_mul_i32 s{sT2}, s{sX}, 12
s_add_u32 s{sT2}, s{sT2}, s{sT1}
s_sub_u32 s{sT2}, s{sT2}, 53
s_lshl_b32 s{sT3}, s{sX}, 2
s_add_u32 s{sT3}, s{sT3}, s{sJ}
s_sub_u32 s{sT3}, s{sT3}, 28
s_cmp_lg_u32 s{sT0}, 0
s_cselect_b32 s{sT1}, s{sT1}, s{sJ}
s_cselect_b32 s{sLN0}, s{sT2}, s{sT3}
s_cselect_b32 s{sRL0}, 21, 28
s_cmp_ge_u32 s{sT1}, s{sRL0}
s_cselect_b32 s{sRL0}, 1, 0""" if OPT["map18"] == 1 else f"""s_and_b32 s{sT0}, s{sX}, 1
s_lshr_b32 s{sT1}, s{sX}, 1
s_mul_i32 s{sPAIR}, s{sX}, 28
s_sub_u32 s{sRC}, s{sJ}, s{sT0}
s_add_u32 s{sPAIR}, s{sPAIR}, s{sRC}
s_cmp_lt_u32 s{sRC}, 28
s_cselect_b32 s{sRC}, 1, 0
s_mul_i32 s{sT2}, s{sJ}, 37
s_lshr_b32 s{sT2}, s{sT2}, 8
s_mul_i32 s{sT3}, s{sT2}, 7
s_sub_u32 s{sT3}, s{sJ}, s{sT3}
s_mul_i32 s{sNT}, s{sT1}, 7
s_add_u32 s{sNT}, s{sNT}, s{sT3}
s_lshl_b32 s{sT3}, s{sT0}, 2
s_add_u32 s{sDT1}, s{sT2}, s{sT3}
s_lshl_b32 s{sST}, s{sT0}, 3
s_sub_u32 s{sST}, s{sJ}, s{sST}
s_cselect_b32 s{sR2}, 0, 1
s_lshr_b32 s{sDT2}, s{sST}, 3
s_and_b32 s{sDT2}, s{sDT2}, 3
s_add_u32 s{sDT2}, s{sDT2}, s{sT3}
s_and_b32 s{sST}, s{sST}, 7
s_lshl_b32 s{sLN0}, s{sT1}, 4
s_lshl_b32 s{sT1}, s{sT1}, 3
s_add_u32 s{sST}, s{sST}, s{sT1}
s_cmp_eq_u32 s{sJ}, 0
s_cselect_b32 s{sT1}, 32, s{sJ}
s_mul_i32 s{sT2}, s{sT0}, 11
s_add_u32 s{sT2}, s{sT2}, s{sT1}
s_cmp_lg_u32 s{sT0}, 0
s_cselect_b32 s{sT1}, s{sT1}, s{sJ}
s_cselect_b32 s{sT2}, s{sT2}, s{sJ}
s_cselect_b32 s{sRL0}, 21, 28
s_cmp_ge_u32 s{sT1}, s{sRL0}
s_cselect_b32 s{sRL0}, 1, 0
s_add_u32 s{sLN0}, s{sLN0}, s{sT2}
s_sub_u32 s{sLN0}, s{sLN0}, 28""")
    if OPT["map18"] == 2:
        a(f"""s_sub_u32 s{sT1}, s{sJ}, 4
s_cselect_b32 s{sR2}, 0, 1
s_and_b32 s{sT1}, s{sT1}, 31
s_mul_i32 s{sT2}, s{sT1}, 37
s_lshr_b32 s{sT2}, s{sT2}, 8
s_mul_i32 s{sT3}, s{sT2}, 7
s_sub_u32 s{sDT2}, s{sT1}, s{sT3}
s_lshl_b32 s{sST}, s{sX}, 2
s_add_u32 s{sST}, s{sST}, s{sT2}""")
    a(f"""s_lshl_b32 s{sLN}, s{sX}, 4
s_add_u32 s{sLN}, s{sLN}, s{sJ}
s_sub_u32 s{sLN}, s{sLN}, 8
s_mul_i32 s{sT2}, s{sT0}, 7
s_sub_u32 s{sT2}, 28, s{sT2}
s_cmp_lt_u32 s{sJ}, s{sT2}
s_cselect_b32 s{sR1}, 1, 0
s_sub_u32 s{sT2}, s{sJ}, 8
s_cmp_lt_u32 s{sT2}, 16
s_cselect_b32 s{sRL}, 1, 0
s_min_u32 s{sPAIR}, s{sPAIR}, 223
s_mov_b32 s{sM1}, 0xaaaaaaaa
s_mov_b32 s{sM1 + 1}, 0xaaaaaaaa
s_mov_b32 s{sM2}, 0xcccccccc
s_mov_b32 s{sM2 + 1}, 0xcccccccc""")
    a("s_waitcnt lgkmcnt(0)")
    if OPT["fixdur"] or OPT["stamps"]:
        a("s_mov_b32 s101, s50")
    a(f"""s_lshl_b32 s{sT0}, s{sPAIR}, 2
s_load_dword s{sLDT}, {sp(P_LDT)}, s{sT0}
s_load_dword s{sD0}, {sp(P_DSK)}, s{sT0}
s_load_dwordx2 {sp(sNONCE)}, {sp(P_WS)}, {EPOCH}""")
    kgen_loads()
    for n, p, size in ((S_X0, P_U, 1835008), (S_WS, P_WS, WS_BYTES), (S_OUT, P_OUT, 1835008)):
        a(f"s_mov_b32 s{n}, s{p}\ns_mov_b32 s{n + 1}, s{p + 1}\ns_mov_b32 s{n + 2}, {size}\ns_mov_b32 s{n + 3}, 0x20000")
    for n, p, role in ((S_W1, P_W1, sR1), (S_W2, P_W2, sR2)):
        a(f"s_mov_b32 s{n}, s{p}\ns_mov_b32 s{n + 1}, s{p + 1}\ns_cmp_lg_u32 s{role}, 0\ns_cselect_b32 s{n + 2}, {0 if OPT['now'] & (1 if n == S_W1 else 2) else 7340032}, 0\ns_mov_b32 s{n + 3}, 0x20000")


sAUX = 75


def code_warm(r):
    if not OPT["warm"]:
        return
    a(f"""s_lshl_b32 s{sT0}, s{sJ}, 2
s_add_u32 s{sT0}, s{sT0}, s{sWAVE}
s_mul_i32 s{sT0}, s{sT0}, 640
v_lshl_add_u32 v{r}, v{vLANE}, 7, s{sT0}
s_mov_b32 s{sT1}, ktab-L_entry+8192
v_min_u32 v{r}, s{sT1}, v{r}
s_sub_u32 s28, s{sTAB}, ktab-L_entry
s_subb_u32 s29, s{sTAB + 1}, 0
s_mov_b64 exec, 31
global_load_dword v{r}, v{r}, s[28:29]
s_mov_b64 exec, -1""")


def fill(base, n, r, sidx, stride, tag="st0"):
    a(f"""s_lshl_b32 s{sT0}, s{sidx}, 12
s_lshl_b32 s{sT1}, s{sWAVE}, 10
s_add_u32 s{sT0}, s{sT0}, s{sT1}
s_add_u32 s{sT0}, s{sT0}, {base}""")
    for k in range(4):
        a(f"v_mov_b32 v{r + k}, -1")
    for k in range(n):
        a(f"buffer_store_dwordx4 {vr(r, 4)}, v{vL16}, {srd(S_WS)}, s{sT0} offen sc1", tag=tag)
        if k + 1 < n:
            a(f"s_add_u32 s{sT0}, s{sT0}, {stride}")


def aux_loads():
    a(f"""s_and_b32 s{sAUX}, s{sJ}, 3
s_lshl_b32 s{sAUX}, s{sAUX}, 3
s_add_u32 s{sAUX}, s{sAUX}, s{sX}
s_lshl_b32 s16, s{sAUX}, 2
s_add_u32 s16, s16, s{sWAVE}
s_mul_i32 s{sT1}, s16, {16 * 896}
s_mul_i32 s17, s{sWAVE}, {16 * 912}
s_mov_b32 m0, s17
s_mov_b32 exec_hi, 0xffffff""")
    for k in range(16):
        if k:
            a(f"s_add_u32 m0, m0, 912\ns_add_u32 s{sT1}, s{sT1}, 896")
        a(f"buffer_load_dwordx4 v{vL16}, {srd(S_X0)}, s{sT1} offen lds", res_w=[f"x0"])
    a("s_mov_b64 exec, -1")


def aux_work():
    XR = 8
    a(f"""v_mov_b32 v76, 0
v_mov_b32 v77, 0
v_mov_b32 v78, 0
v_mov_b32 v79, 0
s_lshl_b32 s{sT1}, s16, 7
s_add_u32 s{sT1}, s{sT1}, {ST1}
s_lshl_b32 s18, s{sAUX}, 7
s_add_u32 s18, s18, {ST0}
s_mov_b64 exec, 0xff""")
    a(f"buffer_store_dwordx4 v[76:79], v{vL16}, {srd(S_WS)}, s{sT1} offen sc1", tag="st0")
    a(f"""s_mov_b64 exec, -1
v_and_b32 v2, 15, v{vLANE}
v_lshrrev_b32 v3, 4, v{vLANE}
v_mul_u32_u24 v4, 912, v2
v_lshl_add_u32 v4, v3, 4, v4
v_add_u32 v4, s17, v4
v_lshrrev_b32 v6, 2, v2
v_cmp_eq_u32 vcc, v6, v3
v_bfe_u32 v6, v2, 1, 2
v_lshlrev_b32 v6, 7, v6
v_lshrrev_b32 v7, 3, v2
v_lshl_add_u32 v6, v7, 4, v6
v_and_b32 v7, 1, v2
v_lshl_add_u32 v6, v7, 2, v6
s_lshl_b32 s{sT0}, s{sWAVE}, 5
s_add_u32 s{sT0}, s{sT0}, 60000
v_add_u32 v6, s{sT0}, v6
v_mov_b32 v7, 61024
v_cndmask_b32 v6, v7, v6, vcc
v_lshrrev_b32 v117, 3, v{vLANE}
v_cmp_eq_u32 vcc, s{sWAVE}, v117
v_lshlrev_b32 v117, 12, v117
v_and_b32 v7, 7, v{vLANE}
v_lshl_add_u32 v117, v7, 4, v117
v_mov_b32 v7, {OOB}
v_cndmask_b32 v117, v7, v117, vcc
v_mov_b32 v80, 0x3f803f80
v_mov_b32 v81, 0x3f803f80
v_mov_b32 v82, 0x3f803f80
v_mov_b32 v83, 0x3f803f80""")
    if OPT["stamps"] == 1:
        a.wait_vm0()
    stamp("aux data")
    for k in range(14):
        a(f"ds_read_b128 {vr(XR + 4 * k, 4)}, v4 offset:{64 * k}", res_r=["x0"])
    for k in range(14):
        x = vr(XR + 4 * k, 4)
        a(f"v_mfma_f32_16x16x32_bf16 v[64:67], v[80:83], {x}, {'v[64:67]' if k else 0}")
        a(f"v_mfma_f32_16x16x32_bf16 v[68:71], {x}, {x}, {'v[68:71]' if k else 0}")
    a(f"""v_cndmask_b32 v68, v68, v69, {sp(sM1)}
v_cndmask_b32 v70, v70, v71, {sp(sM1)}
v_cndmask_b32 v68, v68, v70, {sp(sM2)}""")
    a("ds_write2_b32 v6, v64, v68 offset0:0 offset1:2")
    a.barrier()
    a(f"ds_read_b128 v[64:67], v{vL16} offset:60000")
    a(f"buffer_store_dwordx4 v[64:67], v117, {srd(S_WS)}, s18 offen sc1", tag="st0")
    stamp("aux st")
    nonce_take()
    flag_put(0, f"s_add_u32 s{sT0}, s{sAUX}, 224\ns_lshl_b32 s{sT0}, s{sT0}, 6", 72, "st0")


def xt_loads():
    a(f"""s_lshl_b32 s{sT0}, s{sPAIR}, 1
s_lshr_b32 s{sT1}, s{sWAVE}, 1
s_add_u32 s{sT0}, s{sT0}, s{sT1}
s_mul_i32 s{sT1}, s{sT0}, 9363
s_lshr_b32 s{sT1}, s{sT1}, 16
s_mul_i32 s{sT2}, s{sT1}, 7
s_sub_u32 s{sT0}, s{sT0}, s{sT2}
s_lshl_b32 s{sT0}, s{sT0}, 1
s_and_b32 s{sT2}, s{sWAVE}, 1
s_add_u32 s{sT0}, s{sT0}, s{sT2}
s_mul_i32 s{sT2}, s{sT1}, {32 * 896}
s_lshl_b32 s{sT3}, s{sT0}, 6
s_add_u32 s{sT2}, s{sT2}, s{sT3}
v_lshrrev_b32 v2, 2, v{vLANE}
v_mul_u32_u24 v2, 896, v2
v_and_b32 v3, 3, v{vLANE}
v_lshl_add_u32 v2, v3, 4, v2
s_mul_i32 s22, s{sWAVE}, {GST}
s_mov_b32 m0, s22
s_mul_i32 s23, s{sT1}, {BS}""")
    a(f"buffer_load_dwordx4 v2, {srd(S_X0)}, s{sT2} offen lds", res_w=["x0"])
    a(f"s_add_u32 m0, m0, 1024\ns_add_u32 s{sT2}, s{sT2}, {16 * 896}")
    a(f"buffer_load_dwordx4 v2, {srd(S_X0)}, s{sT2} offen lds", res_w=["x0"])
    a(f"""s_lshl_b32 s{sT0}, s{sT0}, 11
s_add_u32 s23, s23, s{sT0}
s_add_u32 s23, s23, {X0}
v_lshrrev_b32 v2, 4, v{vLANE}
v_bfe_u32 v36, v{vLANE}, 2, 2
v_lshl_add_u32 v36, v2, 3, v36
v_lshlrev_b32 v36, 6, v36
v_lshl_add_u32 v36, v3, 3, v36
v_add_u32 v36, s22, v36
v_and_b32 v37, 15, v{vLANE}
v_lshlrev_b32 v37, 6, v37
v_lshl_add_u32 v37, v2, 4, v37""")


def xt_work():
    for u in range(2):
        for j in range(2):
            a(f"ds_read_b64_tr_b16 {vr(40 + 4 * u + 2 * j, 2)}, v36 offset:{j * 256 + u * 32}", res_r=["x0"])
    for u in range(2):
        a(f"buffer_store_dwordx4 {vr(40 + 4 * u, 4)}, v37, {srd(S_WS)}, s23 offen offset:{1024 * u} sc1", tag="st0")


def xt_poll_addr(ra, t):
    a(f"""s_lshl_b32 s{sT0}, s{sWAVE}, 4
v_and_b32 v{t}, 15, v{vLANE}
v_add_u32 v{t}, s{sT0}, v{t}
v_mul_u32_u24 v{t}, 7, v{t}
s_lshr_b32 s{sT0}, s{sPAIR}, 5
v_add_u32 v{t}, s{sT0}, v{t}
v_lshrrev_b32 v{t}, 1, v{t}
s_lshl_b32 s{sT0}, s{sWAVE}, 3
s_add_u32 s{sT0}, s{sT0}, 224
v_and_b32 v{ra}, 7, v{vLANE}
v_add_u32 v{ra}, s{sT0}, v{ra}
v_cmp_gt_u32 vcc, 16, v{vLANE}
v_cndmask_b32 v{ra}, v{ra}, v{t}, vcc""")


def e1_poll_addr(ra):
    a(f"s_lshl_b32 s{sT0}, s{sWAVE}, 6\nv_add_u32 v{ra}, s{sT0}, v{vLANE}")


def nonce_take():
    a(f"s_add_u32 s{sNONCE}, s{sNONCE}, 1")
    a(f"s_addc_u32 s{sNONCE + 1}, s{sNONCE + 1}, 0")


def nonce_retire():
    l = label("nr")
    a(f"s_or_b32 s{sT0}, s2, s{sWAVE}")
    a(f"s_cmp_lg_u32 s{sT0}, 32")
    a(f"s_cbranch_scc1 {l}")
    a(f"v_mov_b32 v110, s{sNONCE}\nv_mov_b32 v111, s{sNONCE + 1}\ns_mov_b64 exec, 1")
    a(f"buffer_store_dwordx2 v[110:111], off, {srd(S_WS)}, 0 offset:{EPOCH} sc1", optional=True)
    a("s_mov_b64 exec, -1")
    a(f"{l}:")


def flag_put(edge, sprod, r, tag):
    a(f"s_lshl_b32 s{sT0}, s{sprod}, 6" if isinstance(sprod, int) else sprod)
    a(f"""s_lshl_b32 s{sT1}, s{sWAVE}, 15
s_add_u32 s{sT0}, s{sT0}, s{sT1}
s_add_u32 s{sT0}, s{sT0}, {FL + edge * 0x20000}
v_lshlrev_b32 v{r + 4}, 12, v{vLANE}
v_and_b32 v{r + 4}, 0x4000, v{r + 4}
v_and_b32 v{r}, 3, v{vLANE}
v_lshl_add_u32 v{r + 4}, v{r}, 4, v{r + 4}
v_mov_b32 v{r}, s{sNONCE}
v_mov_b32 v{r + 1}, s{sNONCE + 1}
v_mov_b32 v{r + 2}, s{sNONCE}
v_mov_b32 v{r + 3}, s{sNONCE + 1}""")
    a.wait_tag(tag)
    a.barrier()
    a("s_mov_b64 exec, 0xff")
    a(f"buffer_store_dwordx4 {vr(r, 4)}, v{r + 4}, {srd(S_WS)}, s{sT0} offen sc1", tag="flag")
    a("s_mov_b64 exec, -1")


def emode(e):
    return OPT["em"][e - 1]


def hinted(e):
    return emode(e) in "HSM"


def sentinel(e):
    return emode(e) in "SDM"


def flagged(e):
    return emode(e) in "FH"


def armed(layer):
    return any(sentinel(e + 4 * layer) for e in (1, 2, 3))


def wait_edge(e, r, ra_full, ra_samp):
    if hinted(e):
        poll_issue(e + 10, r, ra_samp)
        poll_take(r, ra_samp)
    elif emode(e) == "D":
        a.wait_tag("pub")
    else:
        a.wait_tag("flag")
    if flagged(e):
        poll_issue(e, r, ra_full)
        poll_take(r, ra_full)


def hint_prep(edge, sprod, r):
    a(f"s_lshl_b32 s{sT0}, s{sprod}, 6" if isinstance(sprod, int) else sprod)
    a(f"""s_lshl_b32 s{sT1}, s{sWAVE}, 15
s_add_u32 s{sT0}, s{sT0}, s{sT1}
s_add_u32 s{sT0}, s{sT0}, {FL + edge * 0x20000}
v_lshlrev_b32 v{r + 4}, 12, v{vLANE}
v_and_b32 v{r + 4}, 0x4000, v{r + 4}
v_and_b32 v{r}, 3, v{vLANE}
v_lshl_add_u32 v{r + 4}, v{r}, 4, v{r + 4}
v_add_u32 v{r + 4}, s{sT0}, v{r + 4}
v_mov_b32 v{r}, s{sNONCE}
v_mov_b32 v{r + 1}, s{sNONCE + 1}
v_mov_b32 v{r + 2}, s{sNONCE}
v_mov_b32 v{r + 3}, s{sNONCE + 1}""")


def hint_put(r):
    a("s_mov_b64 exec, 0xff")
    a(f"buffer_store_dwordx4 {vr(r, 4)}, v{r + 4}, {srd(S_WS)}, 0 offen sc1", tag="hint")
    a("s_mov_b64 exec, -1")


def poll_issue(edge, r, ra=None):
    ra = r + 2 if ra is None else ra
    a(f"""s_lshl_b32 s{sT3}, s{sX}, 14
s_add_u32 s{sT3}, s{sT3}, {FL + edge * 0x20000}
v_lshl_add_u32 v{ra}, v{ra}, 6, s{sT3}
buffer_load_dwordx2 {vr(r, 2)}, v{ra}, {srd(S_WS)}, 0 offen sc1""")


def poll_take(r, ra=None):
    ra = r + 2 if ra is None else ra
    ok, lp = label("pok"), label("plp")
    a(f"v_cmp_ne_u64 vcc, {sp(sNONCE)}, {vr(r, 2)}")
    a(f"s_cbranch_vccz {ok}")
    a(f"s_mov_b32 s{sCNT}, 0")
    a(f"{lp}:")
    if OPT["slp"]:
        a(f"s_sleep {OPT['slp']}")
    a(f"buffer_load_dwordx2 {vr(r, 2)}, v{ra}, {srd(S_WS)}, 0 offen sc1")
    a("s_waitcnt vmcnt(0)")
    a(f"v_cmp_ne_u64 vcc, {sp(sNONCE)}, {vr(r, 2)}")
    a(f"s_add_u32 s{sCNT}, s{sCNT}, 1")
    a(f"s_cbranch_vccz {ok}")
    a(f"s_cmp_lt_u32 s{sCNT}, 0x100000")
    a(f"s_cbranch_scc1 {lp}")
    a(f"{ok}:")


sW1O, sW2O = 98, 99
sROT1, sROT2 = 33, 35
sW1E, sW2E = 78, 79


def w_setup():
    a(f"""v_lshrrev_b32 v2, 3, v{vLANE}
v_and_b32 v3, 7, v{vLANE}
v_bfe_u32 v4, v{vLANE}, 4, 1
v_lshlrev_b32 v4, 2, v4
v_xor_b32 v3, v3, v4
v_lshlrev_b32 v3, 4, v3
v_mul_u32_u24 v{vD1}, 3584, v2
v_add_u32 v{vD1}, v{vD1}, v3
v_lshl_add_u32 v{vD2}, v2, 12, v3
v_bfe_u32 v2, v{vLANE}, 2, 2
v_lshrrev_b32 v3, 5, v{vLANE}
v_bfe_u32 v4, v{vLANE}, 4, 1
v_and_b32 v5, 3, v{vLANE}
v_lshlrev_b32 v5, 3, v5
v_lshl_add_u32 v5, v4, 5, v5
v_lshrrev_b32 v4, 1, v2
v_lshl_add_u32 v5, v4, 6, v5
s_lshr_b32 s{sT0}, s{sWAVE}, 1
s_lshl_b32 s{sT0}, s{sT0}, 6
v_xor_b32 v5, s{sT0}, v5
v_lshl_add_u32 v5, v2, 7, v5
s_mul_i32 s{sT1}, s{sWAVE}, 24576
s_add_u32 s{sT1}, s{sT1}, {W2L}
v_add_u32 v5, s{sT1}, v5
v_lshl_add_u32 v{vT1a}, v3, 10, v5
v_xor_b32 v{vT1b}, 64, v{vT1a}
v_lshl_add_u32 v{vT2a}, v3, 9, v5
v_xor_b32 v{vT2b}, 64, v{vT2a}
s_mul_i32 s{sW1O}, s{sWAVE}, {512 * 3584}
s_lshl_b32 s{sT0}, s{sNT}, 7
s_add_u32 s{sW1O}, s{sW1O}, s{sT0}
s_mul_i32 s{sW2O}, s{sWAVE}, {448 * 4096}
s_lshl_b32 s{sT0}, s{sST}, 7
s_add_u32 s{sW2O}, s{sW2O}, s{sT0}
s_mov_b32 s{sWOFF}, s{sT1}""")
    if OPT["rot"] and OPT["map18"] == 1:
        if OPT["rot"] == 2:
            a(f"""s_add_u32 s{sROT1}, s{sDT1}, s{sX}
s_and_b32 s{sROT1}, s{sROT1}, 7
s_add_u32 s{sROT2}, s{sDT2}, s{sX}
s_cmp_ge_u32 s{sROT2}, 7
s_cselect_b32 s{sT0}, 7, 0
s_sub_u32 s{sROT2}, s{sROT2}, s{sT0}""")
        else:
            a(f"s_mov_b32 s{sROT1}, s{sDT1}\ns_mov_b32 s{sROT2}, s{sDT2}")
    elif OPT["rot"] == 3:
        a(f"""s_and_b32 s{sT0}, s{sDT1}, 3
s_lshr_b32 s{sT1}, s{sDT1}, 2
s_add_u32 s{sT1}, s{sT1}, 2
s_mul_i32 s{sROT1}, s{sT0}, s{sT1}
s_min_u32 s{sROT1}, s{sROT1}, 7
s_and_b32 s{sT0}, s{sDT2}, 3
s_lshr_b32 s{sT1}, s{sDT2}, 2
s_add_u32 s{sT1}, s{sT1}, 2
s_mul_i32 s{sROT2}, s{sT0}, s{sT1}
s_min_u32 s{sROT2}, s{sROT2}, 5""")
    elif OPT["rot"]:
        a(f"""s_and_b32 s{sT0}, s{sDT1}, 3
s_lshl_b32 s{sT0}, s{sT0}, 1
s_lshr_b32 s{sT1}, s{sDT1}, 2
s_add_u32 s{sT0}, s{sT0}, s{sT1}
s_and_b32 s{sROT1}, s{sT0}, 7
s_and_b32 s{sT0}, s{sDT2}, 3
s_lshl_b32 s{sT0}, s{sT0}, 1
s_lshr_b32 s{sT1}, s{sDT2}, 2
s_add_u32 s{sT0}, s{sT0}, s{sT1}
s_min_u32 s{sROT2}, s{sT0}, 6""")
        if OPT["map18"] == 2:
            a(f"s_mov_b32 s{sROT2}, s{sDT2}")
    else:
        a(f"s_mov_b32 s{sROT1}, 0\ns_mov_b32 s{sROT2}, 0")
    a(f"""s_add_u32 s{sW1E}, s{sW1O}, {512 * 3584}
s_mul_i32 s{sT0}, s{sROT1}, {64 * 3584}
s_add_u32 s{sW1O}, s{sW1O}, s{sT0}
s_add_u32 s{sW2E}, s{sW2O}, {448 * 4096}
s_mul_i32 s{sT0}, s{sROT2}, {64 * 4096}
s_add_u32 s{sW2O}, s{sW2O}, s{sT0}""")


WORDER = list(range(0, 4)) + list(range(32, 36)) + list(range(4, 32)) + list(range(36, 60))


def w_dma(pos, half):
    slot = pos % 12
    n = WORDER[pos]
    g = [Ins(f"s_add_u32 m0, s{sWOFF}, {slot * 2048 + half * 1024}")]
    if n < 32:
        g.append(Ins(f"s_add_u32 s{sW1O}, s{sW1O}, {8 * 3584}") if (n or half) else Ins("s_nop 0"))
        if n and n % 4 == 0 and half == 0:
            g += [Ins(f"s_cmp_eq_u32 s{sW1O}, s{sW1E}"), Ins(f"s_cselect_b32 s3, {512 * 3584}, 0"), Ins(f"s_sub_u32 s{sW1O}, s{sW1O}, s3")]
        g.append(Ins(f"buffer_load_dwordx4 v{vD1}, {srd(S_W1)}, s{sW1O} offen lds", res_w=[f"slot{slot}"]))
    else:
        g.append(Ins(f"s_add_u32 s{sW2O}, s{sW2O}, {8 * 4096}") if (n > 32 or half) else Ins("s_nop 0"))
        if n > 32 and n % 4 == 0 and half == 0:
            g += [Ins(f"s_cmp_eq_u32 s{sW2O}, s{sW2E}"), Ins(f"s_cselect_b32 s3, {448 * 4096}, 0"), Ins(f"s_sub_u32 s{sW2O}, s{sW2O}, s3")]
        g.append(Ins(f"buffer_load_dwordx4 v{vD2}, {srd(S_W2)}, s{sW2O} offen lds", res_w=[f"slot{slot}"]))
    return g


def w_tr(pos):
    slot = pos % 12
    n = WORDER[pos]
    g = []
    for nb in range(2):
        for j in range(2):
            if n < 32:
                r = (n * 2 + nb) * 4 + 2 * j
                g.append(Ins(f"ds_read_b64_tr_b16 a[{r}:{r + 1}], v{(vT1a, vT1b)[nb]} offset:{slot * 2048 + j * 512}", res_r=[f"slot{slot}"]))
            else:
                r = 128 + ((n - 32) * 2 + nb) * 4 + 2 * j
                g.append(Ins(f"ds_read_b64_tr_b16 v[{r}:{r + 1}], v{(vT2a, vT2b)[nb]} offset:{slot * 2048 + j * 1024}", res_r=[f"slot{slot}"]))
    return g


def w_all_upfront():
    for n in range(12):
        a.put(w_dma(n, 0)); a.put(w_dma(n, 1))
    for n in range(48):
        a.put(w_tr(n))
        if n >= 1:
            a.put(w_dma(n + 11, 0)); a.put(w_dma(n + 11, 1))
    a.put(w_dma(59, 0)); a.put(w_dma(59, 1))
    a.wait_vm0()
    a.wait_lgkm0()


PR = 56
TAB = 104


def kgen_loads():
    a(f"""s_lshl_b32 s{sT0}, s{sPAIR}, 10
s_lshl_b32 s{sT1}, s{sWAVE}, 8
s_add_u32 s{sT0}, s{sT0}, s{sT1}
v_lshl_add_u32 v3, v{vLANE}, 2, s{sT0}""")
    for k, p in enumerate((P_ARE, P_AIM, P_BRE, P_BIM, P_CRE, P_CIM)):
        a(f"global_load_dword v{PR + k}, v3, {sp(p)}")


def kgen_table_addr():
    l = label("pc")
    a(f"s_getpc_b64 {sp(sTAB)}")
    a(f"{l}:")
    a(f"s_add_u32 s{sTAB}, s{sTAB}, ktab-{l}")
    a(f"s_addc_u32 s{sTAB + 1}, s{sTAB + 1}, 0")


def kgen_table_load():
    kgen_table_addr()
    a(f"s_lshr_b32 s{sT0}, s{sWAVE}, 1\ns_lshl_b32 s{sT0}, s{sT0}, 5\nv_lshl_add_u32 v75, v0, 5, s{sT0}")


KBG = []


def kgen(hooks):
    F = {e: 2 * e for e in range(1, 8)}
    Qr = {1: 16, 2: 18, 3: 20, 4: 22}
    QN = [24, 26]
    Z1, Z2, C0, C1 = 28, 30, 32, 34
    CN = [36, 38]
    T0, T1 = 62, 64
    CV = [66, 67, 68, 69]
    A2, B2, DT = 70, 71, 72
    ACC = 76
    QF = 88
    PF = 40
    vG, vF = 73, 74
    a(f"""s_mul_i32 s{sT0}, s{sWAVE}, {GST}
v_lshl_add_u32 v{vG}, v{vLANE}, 2, s{sT0}
v_and_b32 v2, 15, v{vLANE}
v_mul_u32_u24 v2, {GROW}, v2
v_lshrrev_b32 v3, 4, v{vLANE}
v_lshl_add_u32 v2, v3, 4, v2
v_add_u32 v{vF}, s{sT0}, v2""")
    a.begin()
    a(f"""s_lshr_b32 s{sT0}, s{sWAVE}, 1
s_lshl_b32 s{sT0}, s{sT0}, 4
s_lshr_b32 s{sT0}, s{sLDT}, s{sT0}
s_lshl_b32 s{sT0}, s{sT0}, 16
v_mov_b32 v2, {f32(math.log2(math.e))}
v_mul_f32 v2, s{sT0}, v2
v_exp_f32 v2, v2
v_cvt_pk_bf16_f32 v2, v2, v2
v_lshlrev_b32 v{DT}, 16, v2
s_and_b32 s{sD1}, s{sD0}, 0xffff0000
s_lshl_b32 s{sD0}, s{sD0}, 16""")
    cvi = [0]

    def hook(name):
        if name is not None and name not in hooks:
            return
        a_body = space_ds(a.end(), OPT["lag"], OPT["gap"])
        m, rest = merge(a_body, KBG[:], 20, OPT["ev_kg"])
        del KBG[:]
        a.put(m)
        put_all(rest)
        if name is not None:
            hooks[name]()
            a.begin()

    def row(r, src, neg=False):
        c = CV[cvi[0] % 4]
        cvi[0] += 1
        a(f"v_cvt_pk_bf16_f32 v{c}, v{src}, {'-' if neg else ''}v{src + 1}")
        a(f"ds_write_b32 v{vG}, v{c} offset:{r * GROW}")

    def reads(dst, tile):
        for ks in range(4):
            a(f"ds_read_b128 {vr(dst + 4 * ks, 4)}, v{vF} offset:{tile * 16 * GROW + ks * 64}")

    def mfmas(t, first):
        for ks in range(4):
            c = "0" if (first and ks == 0) else vr(ACC + 4 * t, 4)
            a(f"v_mfma_f32_16x16x32_bf16 {vr(ACC + 4 * t, 4)}, {vr(PF + 4 * ks, 4)}, {vr(QF + 4 * ks, 4)}, {c}")

    def direct(d, scale):
        if scale != 1:
            a(f"v_mul_f32 v{T0}, {f32(scale)}, v{A2}")
            a(f"v_mul_f32 v{T1}, {f32(scale)}, v{B2}")
            x, y = T0, T1
        else:
            x, y = A2, B2
        a(f"v_fract_f32 v{T1}, v{y}")
        a(f"v_exp_f32 v{T0}, v{x}")
        a(f"v_cos_f32 v{d}, v{T1}")
        a(f"v_sin_f32 v{d + 1}, v{T1}")
        a(f"v_pk_mul_f32 {vr(d, 2)}, {vr(d, 2)}, {vr(T0, 2)} op_sel_hi:[1,0]")

    for rd in range(2):
        def up(d, s):
            a(f"v_lshlrev_b32 v{d}, 16, v{s}" if rd == 0 else f"v_and_b32 v{d}, 0xffff0000, v{s}")
        up(A2, PR); up(B2, PR + 1)
        up(QN[0], PR + 2); up(QN[0] + 1, PR + 3)
        up(QN[1], PR + 4); up(QN[1] + 1, PR + 5)
        a(f"v_mul_f32 v{A2}, v{DT}, v{A2}")
        a(f"v_mul_f32 v{B2}, v{DT}, v{B2}")
        a(f"v_pk_mul_f32 {vr(QN[0], 2)}, {vr(QN[0], 2)}, {vr(DT, 2)} op_sel_hi:[1,0]")
        a(f"v_mul_f32 v{A2}, {f32(math.log2(math.e))}, v{A2}")
        a(f"v_mul_f32 v{B2}, {f32(1 / (2 * math.pi))}, v{B2}")
        cmul2((C0, QN[1], QN[0]))
        direct(F[1], 1)
        if rd == 1:
            mfmas(2, True)
        direct(Z1, 128)
        hook(5 * rd)
        cmul2((F[2], F[1], F[1]), (Z2, Z1, Z1))
        cmul2((F[4], F[2], F[2]), (F[3], F[2], F[1]))
        cmul2((Qr[1], F[4], F[4]), (C1, C0, Z1))
        a(f"v_mov_b32 v{CV[3]}, 0x3f80")
        a(f"ds_write_b32 v{vG}, v{CV[3]}")
        cmul2((Qr[2], Qr[1], Qr[1]), (F[5], F[4], F[1]))
        row(1, Qr[1], True)
        cmul2((Qr[3], Qr[2], Qr[1]), (Qr[4], Qr[2], Qr[2]))
        row(2, Qr[2], True)
        cmul2((F[6], F[4], F[2]), (F[7], F[4], F[3]))
        row(3, Qr[3], True)
        row(4, Qr[4], True)
        cur = {1: Qr[1], 2: Qr[2], 3: Qr[3], 0: Qr[4]}
        free = list(QN) + [CN[0]]
        j = 5
        while j < 16:
            js = [j] + ([j + 1] if j + 1 < 16 else [])
            ps = []
            for jj in js:
                d = free.pop(0)
                ps.append((d, cur[jj % 4], Qr[4]))
            cmul2(*ps)
            for jj, p in zip(js, ps):
                if cur[jj % 4] != Qr[4]:
                    free.append(cur[jj % 4])
                cur[jj % 4] = p[0]
                row(jj, p[0], True)
            j += 2
        reads(QF, 0)
        hook(5 * rd + 1)
        TA, TB = QN
        row(16, C0); row(24, C1)
        for e in range(1, 8):
            cmul2((TA, C0, F[e]), (TB, C1, F[e]))
            row(16 + e, TA); row(24 + e, TB)
        reads(PF, 1)
        hook(5 * rd + 2)
        ca, cb = C0, C1
        na, nb_ = CN
        def adv():
            nonlocal ca, cb, na, nb_
            cmul2((na, ca, Z2), (nb_, cb, Z2))
            ca, cb, na, nb_ = na, nb_, ca, cb
        adv()
        row(32, ca); row(36, cb)
        for e in range(1, 4):
            cmul2((TA, ca, F[2 * e]), (TB, cb, F[2 * e]))
            row(32 + e, TA); row(36 + e, TB)
        mfmas(0, rd == 0)
        for k in range(2):
            adv()
            row(40 + 4 * k, ca); row(42 + 4 * k, cb)
            cmul2((TA, ca, F[4]), (TB, cb, F[4]))
            row(41 + 4 * k, TA); row(43 + 4 * k, TB)
        reads(PF, 2)
        hook(5 * rd + 3)
        for k in range(4):
            adv()
            row(48 + 2 * k, ca); row(49 + 2 * k, cb)
        cmul2((na, ca, Z2))
        row(56, na)
        mfmas(1, rd == 0)
        reads(PF, 3)
        hook(5 * rd + 4)
    hook(None)
    a(f"s_mul_i32 s{sT0}, s{sWAVE}, {GST}")
    a(f"v_add_u32 v{vF}, s{sT0}, v{vL16}")
    a(f"v_mov_b32 v{CV[0]}, 0")
    for k in range(8):
        a(f"v_and_b32 v{2 + 2 * k}, 0xffff, v{TAB + k}")
        a(f"v_lshrrev_b32 v{3 + 2 * k}, 16, v{TAB + k}")
    for t in range(2):
        a(f"ds_write_b128 v{vF}, {vr(ACC + 4 * t, 4)} offset:{TOFF + t * 1024}")
    mfmas(2, False)
    a(f"ds_write_b32 v{vG}, v{CV[0]} offset:{TOFF + 3072}")
    a("v_and_b32 v18, 0xffff, v0\nv_lshrrev_b32 v19, 16, v0\nv_and_b32 v20, 0xffff, v1")
    a(f"ds_write_b128 v{vF}, {vr(ACC + 8, 4)} offset:{TOFF + 2048}")


def kzero(r):
    a(f"""v_mov_b32 v{r}, 0
v_mov_b32 v{r + 1}, 0
v_mov_b32 v{r + 2}, 0
v_mov_b32 v{r + 3}, 0
v_bfe_u32 v{r + 4}, v{vLANE}, 1, 3
v_mul_u32_u24 v{r + 4}, {KST}, v{r + 4}
v_and_b32 v{r + 5}, 1, v{vLANE}
v_lshl_add_u32 v{r + 4}, v{r + 5}, 4, v{r + 4}
s_and_b32 s{sT0}, s{sWAVE}, 1
s_mul_i32 s{sT0}, s{sT0}, {UST}
v_add_u32 v{r + 5}, s{sT0}, v{vL16}""")
    return [f"ds_write_b128 v{r + 4}, {vr(r, 4)} offset:4096", f"ds_write_b128 v{r + 5}, {vr(r, 4)} offset:{UB}"]


def kaddr(r):
    a(f"""s_lshr_b32 s{sT0}, s{sWAVE}, 1
s_and_b32 s{sT1}, s{sWAVE}, 1
s_lshl_b32 s{sT1}, s{sT1}, 11
v_lshl_add_u32 v{r + 3}, v{vLANE}, 5, s{sT1}""")
    for c in range(4):
        a(f"s_cmp_lg_u32 s{sT0}, 0")
        a(f"s_cselect_b32 s{sT2}, {KSLOT[1][c]}, {KSLOT[0][c]}")
        a(f"s_mul_i32 s{sT2}, s{sT2}, {KST}")
        a(f"v_add_u32 v{r + c}, s{sT2}, v{r + 3}")


def kexpand(mid):
    AD, VAL = 2, 22
    P0, P1, P2, P3 = 2, 12, 88, 96
    a.barrier()
    for k in range(19):
        a(f"ds_read2st64_b32 {vr(VAL + 2 * k, 2)}, v{AD + k} offset0:{TOFF // 256} offset1:{TOFF // 256 + GST // 256}")
    mid()
    kaddr(60)
    zw = kzero(104)
    for k in range(19):
        a(f"v_add_f32 v{VAL + 2 * k}, v{VAL + 2 * k}, v{VAL + 2 * k + 1}")
        if k:
            a(f"v_cvt_pk_bf16_f32 v{(P0 if k & 1 else P1) + (k - 1) // 2}, v{VAL + 2 * k - 2}, v{VAL + 2 * k}")
    a.barrier()
    a.begin()
    for l in zw:
        a(l)
    for c, P in ((0, P0), (1, P1)):
        a(f"ds_write_b128 v{60 + c}, {vr(P, 4)}")
        a(f"ds_write_b128 v{60 + c}, {vr(P + 4, 4)} offset:16")
    for c, P, src in ((2, P2, P0), (3, P3, P1)):
        for i in range(4):
            a(f"v_pk_mov_b32 {vr(P + 2 * i, 2)}, {vr(src + 2 * i, 2)}, {vr(src + 2 * i + 2, 2)} op_sel:[1,0]")
        a(f"ds_write_b128 v{60 + c}, {vr(P, 4)}")
        a(f"ds_write_b128 v{60 + c}, {vr(P + 4, 4)} offset:16")
    return a.end()


def kcopies():
    R, E, M = 2, 12, 22
    kaddr(40)
    a(f"""ds_read_b128 {vr(R, 4)}, v40
ds_read_b128 {vr(R + 4, 4)}, v40 offset:16
ds_read_b64 {vr(R + 8, 2)}, v40 offset:32""")
    for l in kzero(32):
        a(l)
    for i in range(9):
        a(f"v_alignbit_b32 v{E + i}, v{R + i + 1}, v{R + i}, 16")
    a(f"ds_write_b128 v41, {vr(E, 4)}")
    a(f"ds_write_b128 v41, {vr(E + 4, 4)} offset:16")
    for i in range(4):
        a(f"v_pk_mov_b32 {vr(M + 2 * i, 2)}, {vr(R + 2 * i, 2)}, {vr(R + 2 * i + 2, 2)} op_sel:[1,0]")
    a(f"ds_write_b128 v42, {vr(M, 4)}")
    a(f"ds_write_b128 v42, {vr(M + 4, 4)} offset:16")
    for i in range(4):
        a(f"v_pk_mov_b32 {vr(R + 2 * i, 2)}, {vr(E + 2 * i, 2)}, {vr(E + 2 * i + 2, 2)} op_sel:[1,0]")
    a(f"ds_write_b128 v43, {vr(R, 4)}")
    a(f"ds_write_b128 v43, {vr(R + 4, 4)} offset:16")


GX = 80
CS = 64
cvA, cvB, cvZ, cvXW, cvXR, cvO, cvU, cvX, cvH, cvP = 112, 113, 114, 115, 116, 117, 118, 119, 100, 108
STUBS = []


def conv_poll1():
    r = cvP
    a(f"""v_lshrrev_b32 v{r}, 3, v{vLANE}
v_min_u32 v{r}, 6, v{r}
v_and_b32 v{r + 1}, 7, v{vLANE}
v_lshl_add_u32 v{r + 2}, v{r}, 5, v{r + 1}
s_lshl_b32 s{sT0}, s{sWAVE}, 3
v_add_u32 v{r + 2}, s{sT0}, v{r + 2}
v_and_b32 v{r + 1}, 7, v{vLANE}
v_min_u32 v{r}, 6, v{r + 1}
v_lshl_add_u32 v{r + 3}, v{r}, 5, v{r + 1}
v_add_u32 v{r + 3}, s{sT0}, v{r + 3}""")


def conv_loads():
    for p in range(4):
        a(f"buffer_load_dwordx4 {vr(CS + 4 * p, 4)}, v{vL16}, {srd(S_WS)}, s{16 + p} offen sc1")
    a(f"buffer_load_dwordx4 {vr(GX, 4)}, v{cvX}, {srd(S_WS)}, s20 offen sc1")
    a(f"buffer_load_dwordx4 {vr(GX + 4, 4)}, v{cvX}, {srd(S_WS)}, s20 offen offset:64 sc1")


def conv_setup(layer):
    a(f"""s_mov_b32 s{sCA}, {f32(1.0 / 448)}
s_mov_b32 s{sCB}, {f32(1e-5)}
s_lshl_b32 s{sT0}, s{sWAVE}, 10
v_add_u32 v{cvU}, s{sT0}, v{vL16}
s_lshr_b32 s{sT0}, s{sWAVE}, 1
s_and_b32 s{sT1}, s{sWAVE}, 1
v_and_b32 v8, 15, v{vLANE}
v_lshrrev_b32 v9, 4, v{vLANE}
v_not_b32 v10, v8
v_and_b32 v10, 3, v10""")
    for s in range(4):
        a(f"s_cmp_lg_u32 s{sT0}, 0")
        a(f"s_cselect_b32 s{sT2}, {KSLOT[1][s]}, {KSLOT[0][s]}")
        a(f"s_mul_i32 s{sT2}, s{sT2}, {KST}")
        if s == 0:
            a(f"v_mov_b32 v11, s{sT2}")
        else:
            a(f"v_mov_b32 v12, s{sT2}\nv_cmp_eq_u32 vcc, {s}, v10\nv_cndmask_b32 v11, v11, v12, vcc")
    a(f"""v_add_u32 v10, v10, v8
v_lshlrev_b32 v12, 3, v9
v_sub_u32 v12, v12, v10
v_lshl_add_u32 v11, v12, 1, v11
""")
    a(f"""s_lshl_b32 s{sT3}, s{sT1}, 8
s_sub_u32 s{sT2}, {2 * 2031 - 64 * 59}, s{sT3}
v_add_u32 v{cvA}, s{sT2}, v11
s_mul_i32 s{sT2}, s{sT0}, {UST}
s_sub_u32 s{sT2}, s{sT2}, s{sT3}
s_add_u32 s{sT2}, s{sT2}, {UB + UPAD - 2 * 112}
v_lshlrev_b32 v12, 5, v8
v_lshl_add_u32 v13, v9, 4, v12
v_add_u32 v{cvB}, s{sT2}, v13
s_lshl_b32 s{sT2}, s{sWAVE}, 11
v_lshl_add_u32 v13, v9, 3, v12
v_add_u32 v{cvZ}, s{sT2}, v13
s_xor_b32 s{sT2}, s{sWAVE}, 1
s_lshl_b32 s{sT2}, s{sT2}, 12
v_add_u32 v{cvXW}, s{sT2}, v{vL16}
s_lshl_b32 s{sT2}, s{sWAVE}, 12
v_add_u32 v{cvXR}, s{sT2}, v{vL16}
v_and_b32 v10, 1, v9
v_lshlrev_b32 v10, 3, v10
v_lshrrev_b32 v11, 1, v8
v_add_u32 v10, v10, v11
v_mul_u32_u24 v10, {BS}, v10
v_and_b32 v11, 1, v8
v_lshl_add_u32 v10, v11, 5, v10
v_lshrrev_b32 v11, 1, v9
v_lshl_add_u32 v{cvO}, v11, 4, v10
s_mul_i32 s{sT1}, s{sT1}, {32 * BS}
s_lshl_b32 s{sT2}, s{sPAIR}, 1
s_add_u32 s{sT0}, s{sT0}, s{sT2}
s_lshl_b32 s{sT0}, s{sT0}, 6
s_add_u32 s{sT0}, s{sT0}, s{sT1}
s_add_u32 s13, s{sT0}, {X1 if layer == 0 else X3}
s_add_u32 s21, s13, {16 * BS}""" if OPT["cv"] else f"""v_add_u32 v{cvA}, {2 * 2031 - 64 * 63}, v11
s_mul_i32 s{sT2}, s{sT0}, {UST}
s_lshl_b32 s{sT3}, s{sT1}, 9
s_add_u32 s{sT2}, s{sT2}, s{sT3}
s_add_u32 s{sT2}, s{sT2}, {UB + UPAD - 2 * 496}
v_lshlrev_b32 v12, 5, v8
v_lshl_add_u32 v13, v9, 4, v12
v_add_u32 v{cvB}, s{sT2}, v13
s_lshl_b32 s{sT2}, s{sT0}, 12
s_add_u32 s{sT2}, s{sT2}, s{sT3}
v_lshl_add_u32 v13, v9, 3, v12
v_add_u32 v{cvZ}, s{sT2}, v13
v_and_b32 v10, 1, v9
v_lshlrev_b32 v10, 4, v10
v_lshrrev_b32 v11, 1, v8
v_add_u32 v10, v10, v11
v_mul_u32_u24 v10, {BS}, v10
v_and_b32 v11, 1, v8
v_lshl_add_u32 v10, v11, 5, v10
v_lshrrev_b32 v11, 1, v9
v_lshl_add_u32 v{cvO}, v11, 4, v10
s_mul_i32 s{sT1}, s{sT1}, {8 * BS}
s_lshl_b32 s{sT2}, s{sPAIR}, 1
s_add_u32 s{sT0}, s{sT0}, s{sT2}
s_lshl_b32 s{sT0}, s{sT0}, 6
s_add_u32 s{sT0}, s{sT0}, s{sT1}
s_add_u32 s13, s{sT0}, {X1 if layer == 0 else X3}
s_add_u32 s21, s13, {32 * BS}""")
    a(f"""s_lshl_b32 s16, s{sWAVE}, 10
s_add_u32 s16, s16, {ST0 if layer == 0 else ST1}
s_add_u32 s17, s16, 4096
s_add_u32 s18, s16, 8192
s_add_u32 s19, s16, 12288
s_mul_i32 s20, s{sWAVE}, {16 * BS}
s_lshl_b32 s{sT2}, s{sPAIR}, 7
s_add_u32 s20, s20, s{sT2}
s_add_u32 s20, s20, {X0 if layer == 0 else X2}
v_lshrrev_b32 v10, 2, v{vLANE}
v_mul_u32_u24 v10, {BS}, v10
v_and_b32 v11, 3, v{vLANE}
v_lshl_add_u32 v{cvX}, v11, 4, v10""")


cXF, cUF, cAL, cBE, cUP = 0, 16, 32, 40, 48


def conv_pro(layer):
    XF, UF, AL, BE, UP = cXF, cUF, cAL, cBE, cUP
    for p in range(4):
        S = CS + 4 * p
        a(f"v_pk_mul_f32 {vr(S, 2)}, {vr(S, 2)}, {sp(sCA)} op_sel_hi:[1,0]")
    for p in range(4):
        S = CS + 4 * p
        a(f"v_pk_fma_f32 {vr(BE + 2 * p, 2)}, {vr(S, 2)}, {vr(S, 2)}, {sp(sCB)} op_sel_hi:[1,1,0] neg_lo:[1,0,0] neg_hi:[1,0,0]")
    for p in range(4):
        Q = CS + 4 * p + 2
        a(f"v_pk_fma_f32 {vr(Q, 2)}, {vr(Q, 2)}, {sp(sCA)}, {vr(BE + 2 * p, 2)} op_sel_hi:[1,0,1]")
    for p in range(4):
        Q = CS + 4 * p + 2
        a(f"v_max_f32 v{Q}, s{sCB}, v{Q}\nv_max_f32 v{Q + 1}, s{sCB}, v{Q + 1}")
    for p in range(4):
        Q = CS + 4 * p + 2
        a(f"v_rsq_f32 v{AL + 2 * p}, v{Q}\nv_rsq_f32 v{AL + 2 * p + 1}, v{Q + 1}")
    for k in range(8):
        unpack(XF + 2 * k, XF + 2 * k + 1, GX + k)
    for p in range(4):
        S = CS + 4 * p
        a(f"v_pk_mul_f32 {vr(BE + 2 * p, 2)}, {vr(S, 2)}, {vr(AL + 2 * p, 2)} neg_lo:[1,0] neg_hi:[1,0]")
    for c in range(2):
        for p in range(4):
            a(f"v_pk_fma_f32 {vr(UF + 8 * c + 2 * p, 2)}, {vr(XF + 8 * c + 2 * p, 2)}, {vr(AL + 2 * p, 2)}, {vr(BE + 2 * p, 2)}")
        for p in range(4):
            a(f"v_cvt_pk_bf16_f32 v{UP + 4 * c + p}, v{UF + 8 * c + 2 * p}, v{UF + 8 * c + 2 * p + 1}")
        a(f"ds_write_b128 v{cvU}, {vr(UP + 4 * c, 4)} offset:{UB + c * UST + UPAD}")
    if OPT["cv"]:
        for i in a.capture(conv_z, 88):
            if i.kind != "dsw":
                a.put([i])


def conv_z(ZP=cXF):
    XF, UF = cXF, cUF
    for c in range(2):
        for p in range(4):
            a(f"v_pk_fma_f32 {vr(UF + 8 * c + 2 * p, 2)}, {vr(UF + 8 * c + 2 * p, 2)}, {sp((sD0, sD1)[c])}, {vr(XF + 8 * c + 2 * p, 2)} op_sel_hi:[1,0,1]")
        for p in range(4):
            a(f"v_cvt_pk_bf16_f32 v{ZP + 4 * c + p}, v{UF + 8 * c + 2 * p}, v{UF + 8 * c + 2 * p + 1}")
        a(f"ds_write_b128 v{cvU}, {vr(ZP + 4 * c, 4)} offset:{ZB + c * 4096}")


def conv_main(layer, bg=(), bg_start=0, bg_every=64):
    return (conv_main_r if OPT["cv"] else conv_main_t)(layer, bg, bg_start, bg_every)


def conv_main_r(layer, bg, bg_start, bg_every):
    ACC, BF, AR = 0, 32, 64
    NA = 6
    EX2 = ZB
    seq = [(r, q) for r in range(4) for q in range(7, -1, -1)]
    e = 1 + 4 * layer

    def rdA(i):
        r, q = seq[i]
        d = AR + 4 * (i % NA)
        off = 64 * (59 - (8 * q + r))
        return [Ins(f"ds_read_b64 {vr(d, 2)}, v{cvA} offset:{off}"), Ins(f"ds_read_b64 {vr(d + 2, 2)}, v{cvA} offset:{off + 8}")]

    def rdB(r, p):
        return [Ins(f"ds_read_b128 {vr(BF + 4 * p, 4)}, v{cvB} offset:{512 * p + 64 * (3 - r)}")]

    a.put(rdA(0)); a.put(rdB(0, 0)); a.put(rdA(1)); a.put(rdB(0, 1)); a.put(rdA(2)); a.put(rdB(0, 2)); a.put(rdA(3))
    a.put(rdB(0, 3)); a.put(rdA(4))
    for p in range(4, 8):
        a.put(rdB(0, p))
    ZR, ZF, RR = 88, 64, 32
    side = [[i] for i in a.capture(conv_z, 88) if i.kind == "dsw"]
    if hinted(e):
        side += [[i] for i in a.capture(hint_prep, e + 10, sPAIR, cvH)]
    late = [[Ins("s_barrier")]] + [[Ins(f"ds_read_b64 {vr(ZR + 2 * i, 2)}, v{cvZ} offset:{ZB + i * 512}")] for i in range(4)]
    late2 = [[Ins("s_barrier")]]
    a.begin()
    started = set()
    for i, (r, q) in enumerate(seq):
        if hinted(e) and OPT["h_cv"] < 0 and i == 32 + OPT["h_cv"]:
            hint_put(cvH)
        ps = list(range(8 - q))
        for p in ps:
            b = q + p
            c = vr(ACC + 4 * b, 4) if b in started else "0"
            started.add(b)
            a(f"v_mfma_f32_16x16x32_bf16 {vr(ACC + 4 * b, 4)}, {vr(AR + 4 * (i % NA), 4)}, {vr(BF + 4 * p, 4)}, {c}")
            if p == 0 and i + NA - 1 < len(seq):
                a.put(rdA(i + NA - 1))
            elif 1 <= q <= 4 and p >= 1:
                for lst, r0 in ((side, 0), (late, 2), (late2, 3)):
                    if lst and r >= r0:
                        a.put(lst.pop(0))
                        break
            if q == 0 and r < 3:
                a.put(rdB(r + 1, p))
    assert not side and not late and not late2
    m, rest = merge(a.end(), list(bg), bg_start, bg_every)
    a.put(m)
    stamp(f"conv{layer} loop", 111)
    if hinted(e) and OPT["h_cv"] == 0:
        hint_put(cvH)
    for k in range(8):
        unpack(ZF + 2 * k, ZF + 2 * k + 1, ZR + k)
    l1, l2 = label("cx"), label("cy")
    a(f"s_bitcmp1_b32 s{sWAVE}, 0")
    a(f"s_cbranch_scc1 {l1}")
    for h in range(2):
        for i in range(4):
            a(f"ds_write_b128 v{cvXW}, {vr(ACC + 16 * (1 - h) + 4 * i, 4)} offset:{EX2 + i * 1024}")
            for k in range(2):
                a(f"v_pk_add_f32 {vr(ZF + 4 * i + 2 * k, 2)}, {vr(ZF + 4 * i + 2 * k, 2)}, {vr(ACC + 16 * h + 4 * i + 2 * k, 2)}")
        if h == 0:
            a(f"s_branch {l2}")
            a(f"{l1}:")
    a(f"{l2}:")
    if (armed(1) if layer else sentinel(1)):
        poll_take(cvP)
    a.barrier()
    if hinted(e) and OPT["h_cv"] == 1:
        hint_put(cvH)
    for i in range(4):
        a(f"ds_read_b128 {vr(RR + 4 * i, 4)}, v{cvXR} offset:{EX2 + i * 1024}")
    PK = 56
    for i in range(4):
        for k in range(2):
            a(f"v_pk_add_f32 {vr(ZF + 4 * i + 2 * k, 2)}, {vr(ZF + 4 * i + 2 * k, 2)}, {vr(RR + 4 * i + 2 * k, 2)}")
        for k in range(2):
            a(f"v_cvt_pk_bf16_f32 v{PK + 2 * i + k}, v{ZF + 4 * i + 2 * k}, v{ZF + 4 * i + 2 * k + 1}")
        if i & 1:
            b = PK + 2 * (i - 1)
            a(f"v_permlane16_swap_b32 v{b}, v{b + 2}")
            a(f"v_permlane16_swap_b32 v{b + 1}, v{b + 3}")
            a(f"buffer_store_dwordx4 {vr(b, 4)}, v{cvO}, {srd(S_WS)}, s{21 if i == 3 else 13} offen sc1", tag="pub")
    if hinted(e) and OPT["h_cv"] == 2:
        hint_put(cvH)
    if not flagged(e):
        a.barrier()
    else:
        flag_put(1 + 4 * layer, sPAIR, 40, "pub")
    return rest


def conv_main_t(layer, bg, bg_start, bg_every):
    ACC, BF, AR = 84, 32, 64
    NA = 5
    QORD = (7, 5, 6, 3, 4, 2, 1, 0)
    seq = [(r, q) for r in range(8) for q in QORD]
    e = 1 + 4 * layer

    def rdA(i):
        r, q = seq[i]
        d = AR + 4 * (i % NA)
        off = 64 * (63 - (8 * q + r))
        return [Ins(f"ds_read_b64 {vr(d, 2)}, v{cvA} offset:{off}"), Ins(f"ds_read_b64 {vr(d + 2, 2)}, v{cvA} offset:{off + 8}")]

    def rdB(r, p):
        return [Ins(f"ds_read_b128 {vr(BF + 4 * (p + 1), 4)}, v{cvB} offset:{512 * (p + 1) + 64 * (7 - r)}")]

    a.put(rdA(0)); a.put(rdB(0, -1)); a.put(rdA(1)); a.put(rdB(0, 1)); a.put(rdA(2)); a.put(rdB(0, 0)); a.put(rdA(3))
    for p in (3, 2, 4, 5, 6):
        a.put(rdB(0, p))
    ZR, ZF = 16, 0
    side = [[i] for i in a.capture(conv_z)]
    if hinted(e):
        side += [[i] for i in a.capture(hint_prep, e + 10, sPAIR, cvH)]
    late = [[Ins("s_barrier")]] + [[Ins(f"ds_read_b64 {vr(ZR + 2 * i, 2)}, v{cvZ} offset:{ZB + i * 1024}")] for i in range(4)]
    late2 = [[i] for k in range(8) for i in a.capture(unpack, ZF + 2 * k, ZF + 2 * k + 1, ZR + k)]
    a.begin()
    started = set()
    n = 0
    for i, (r, q) in enumerate(seq):
        if hinted(e) and OPT["h_cv"] < 0 and i == 64 + OPT["h_cv"]:
            hint_put(cvH)
        first = True
        for t in range(q // 2, 4):
            p = 2 * t - q
            c = vr(ACC + 4 * t, 4) if t in started else "0"
            started.add(t)
            a(f"v_mfma_f32_16x16x32_bf16 {vr(ACC + 4 * t, 4)}, {vr(AR + 4 * (i % NA), 4)}, {vr(BF + 4 * (p + 1), 4)}, {c}")
            n += 1
            if first and i + 4 < len(seq):
                a.put(rdA(i + 4))
            elif q >= 2:
                for lst, r0 in ((side, 0), (late, 4), (late2, 5)):
                    if lst and r >= r0:
                        a.put(lst.pop(0))
                        if lst is side and lst:
                            a.put(lst.pop(0))
                        break
            first = False
            if q <= 1 and r < 7:
                a.put(rdB(r + 1, p))
    assert not side and not late and not late2
    m, rest = merge(a.end(), list(bg), bg_start, bg_every)
    a.put(m)
    stamp(f"conv{layer} loop", 111)
    if (armed(1) if layer else sentinel(1)):
        poll_take(cvP)
    if hinted(e) and OPT["h_cv"] == 0:
        hint_put(cvH)
    PK = 24
    for i in range(4):
        for k in range(2):
            a(f"v_pk_add_f32 {vr(ZF + 4 * i + 2 * k, 2)}, {vr(ZF + 4 * i + 2 * k, 2)}, {vr(ACC + 4 * i + 2 * k, 2)}")
        for k in range(2):
            a(f"v_cvt_pk_bf16_f32 v{PK + 2 * i + k}, v{ZF + 4 * i + 2 * k}, v{ZF + 4 * i + 2 * k + 1}")
        if i & 1:
            b = PK + 2 * (i - 1)
            a(f"v_permlane16_swap_b32 v{b}, v{b + 2}")
            a(f"v_permlane16_swap_b32 v{b + 1}, v{b + 3}")
            a(f"buffer_store_dwordx4 {vr(b, 4)}, v{cvO}, {srd(S_WS)}, s{21 if i == 3 else 13} offen sc1", tag="pub")
    if hinted(e) and OPT["h_cv"] > 0:
        hint_put(cvH)
    if not flagged(e):
        a.barrier()
    else:
        flag_put(1 + 4 * layer, sPAIR, 40, "pub")
    return rest


def reduce32(V, n, W):
    for i in range(n):
        a(f"v_permlane16_swap_b32 v{V[i]}, v{V[n + i]}")
    for i in range(n):
        a(f"v_add_f32 v{V[i]}, v{V[i]}, v{V[n + i]}")
    h = n // 2
    for i in range(h):
        a(f"v_add_f32_dpp v{W[i]}, v{V[i]}, v{V[i]} row_ror:8 row_mask:0xf bank_mask:0x3")
    for i in range(h):
        a(f"v_add_f32_dpp v{W[i]}, v{V[i + h]}, v{V[i + h]} row_ror:8 row_mask:0xf bank_mask:0xc")
    g = h // 2
    for i in range(g):
        a(f"v_add_f32_dpp v{V[i]}, v{W[i]}, v{W[i]} row_half_mirror row_mask:0xf bank_mask:0x5")
    for i in range(g):
        a(f"v_add_f32_dpp v{V[i]}, v{W[i + g]}, v{W[i + g]} row_half_mirror row_mask:0xf bank_mask:0xa")
    for m in ("[1,0,3,2]", "[2,3,0,1]"):
        for i in range(g):
            a(f"v_add_f32_dpp v{V[i]}, v{V[i]}, v{V[i]} quad_perm:{m} row_mask:0xf bank_mask:0xf")
    return V[:g]


def maxchain(t, regs):
    regs = list(regs)
    if OPT["chk"] == 1:
        regs = regs[3::4]
    if len(regs) == 2:
        return [f"v_max_u32 v{t}, v{regs[0]}, v{regs[1]}"]
    out = [f"v_max3_u32 v{t}, v{regs[0]}, v{regs[1]}, v{regs[2]}"]
    regs = regs[3:]
    while len(regs) >= 2:
        out.append(f"v_max3_u32 v{t}, v{t}, v{regs[0]}, v{regs[1]}")
        regs = regs[2:]
    if regs:
        out.append(f"v_max_u32 v{t}, v{t}, v{regs[0]}")
    return out


RETRY = 0x10000


def ln(layer, wide):
    X = X1 if layer == 0 else X3
    H = H1 if layer == 0 else H3
    nf = 7 if wide else 4
    sI = sLN0 if wide else sLN
    RAW, XF, S, Q, W = 0, 28, 84, 92, 100
    vO, vPW, vPR, vAW, vAR, r, hr = 109, 110, 111, 112, 117, 114, 104
    vX, vS = 64, 68
    a(f"""s_mul_i32 s{sT0}, s{sWAVE}, 56
v_min_u32 v{r + 2}, 55, v{vLANE}""")
    a(f"v_add_u32 v{r + 2}, s{sT0}, v{r + 2}")
    a(f"v_and_b32 v118, {OPT['samp'] - 1}, v{vLANE}\nv_mul_u32_u24 v118, {56 // OPT['samp']}, v118\nv_add_u32 v118, s{sT0}, v118")
    ein, eout = 1 + 4 * layer, 2 + 4 * layer
    if wide:
        a(f"""s_mul_i32 s16, s{sI}, {BS}
s_lshl_b32 s{sT2}, s{sI}, 12""")
    else:
        a(f"""s_lshr_b32 s16, s{sI}, 1
s_mul_i32 s16, s16, {BS}
s_and_b32 s{sT0}, s{sI}, 1
s_lshl_b32 s{sT0}, s{sT0}, 5
s_add_u32 s16, s16, s{sT0}
s_lshl_b32 s{sT2}, s{sI}, 11""")
    a(f"""s_mul_i32 s{sT0}, s{sWAVE}, 7168
s_add_u32 s16, s16, s{sT0}
s_add_u32 s16, s16, {X}
s_add_u32 s17, s16, 4096
s_add_u32 s{sT2}, s{sT2}, {H}
s_mul_i32 s30, s{sWAVE}, 7""")
    if wide:
        for i in range(nf):
            a(f"""s_add_u32 s{sT0}, s30, {i}
s_lshr_b32 s{sT1}, s{sT0}, 2
s_lshl_b32 s{sT1}, s{sT1}, 18
s_add_u32 s{23 + i}, s{sT1}, s{sT2}
s_and_b32 s{sT1}, s{sT0}, 2
s_lshl_b32 s{sT1}, s{sT1}, 9
s_add_u32 s{23 + i}, s{23 + i}, s{sT1}
s_and_b32 s{sT1}, s{sT0}, 1
s_lshl_b32 s{sT1}, s{sT1}, 8
s_add_u32 s{23 + i}, s{23 + i}, s{sT1}""")
        a(f"""v_lshrrev_b32 v1, 2, v{vLANE}
v_lshlrev_b32 v{vO}, 4, v1
v_and_b32 v2, 1, v{vLANE}
v_lshl_add_u32 v{vO}, v2, 9, v{vO}
v_bfe_u32 v2, v{vLANE}, 1, 1
v_lshl_add_u32 v{vO}, v2, 11, v{vO}
v_and_b32 v1, 7, v1
v_and_b32 v2, 3, v{vLANE}
v_lshl_add_u32 v1, v2, 3, v1""")
    else:
        a(f"""v_lshrrev_b32 v1, 1, v{vLANE}
v_and_b32 v2, 1, v{vLANE}
v_lshlrev_b32 v{vX}, 6, v1
v_lshl_add_u32 v{vX}, v2, 4, v{vX}
v_mov_b32 v3, {OOB}
v_cmp_gt_u32 vcc, 32, v{vLANE}
v_cndmask_b32 v{vX + 1}, v3, v{vX}, vcc
s_lshl_b32 s30, s30, 4
s_mov_b32 s23, s{sT2}""")
        for i in range(nf):
            a(f"""v_add_u32 v4, s30, v1
v_lshrrev_b32 v5, 6, v4
v_lshlrev_b32 v5, 18, v5
v_bfe_u32 v6, v4, 5, 1
v_lshl_add_u32 v5, v6, 10, v5
v_and_b32 v6, 31, v4
v_lshl_add_u32 v5, v6, 4, v5
v_lshl_add_u32 v{vS + i}, v2, 9, v5""")
            if i < 3:
                a("s_add_u32 s30, s30, 32")
        a(f"""v_cndmask_b32 v{vS + 3}, v3, v{vS + 3}, vcc
v_bfe_u32 v1, v{vLANE}, 2, 3
v_lshl_add_u32 v1, v2, 3, v1""")
    a(f"""v_lshrrev_b32 v3, 5, v{vLANE}
v_lshl_add_u32 v1, v3, 5, v1
s_lshl_b32 s{sT1}, s{sWAVE}, 8
s_add_u32 s{sT1}, s{sT1}, {LNP}
v_lshl_add_u32 v{vPW}, v1, 2, s{sT1}
v_and_b32 v1, 31, v{vLANE}
v_lshlrev_b32 v{vPR}, 2, v1
v_add_u32 v{vPR}, {LNP}, v{vPR}
s_add_u32 s{sT1}, s{sT1}, 1024
v_lshl_add_u32 v{vAW}, v{vLANE}, 2, s{sT1}
v_lshl_add_u32 v{vAR}, v2, 5, s{sT1}
s_mov_b32 s18, 0
s_mov_b32 s19, -1""")
    prod = f"s_lshl_b32 s{sT0}, s{sI}, 6"
    if hinted(eout):
        hint_prep(eout + 10, prod, hr)
    arm = layer == 0 and sentinel(2)
    if arm:
        a(f"v_min_u32 v102, 27, v{vLANE}")
        poll_issue(18, 100)
    wait_edge(ein, r, r + 2, 118)
    if arm:
        poll_take(100)
    stamp(f"ln{layer} go")

    def loads():
        if not wide:
            return [f"buffer_load_dwordx4 {vr(RAW + 4 * i, 4)}, v{vX + (i == 3)}, {srd(S_WS)}, s{16 + i // 2} offen offset:{2048 * (i % 2)} sc1" for i in range(nf)]
        return [f"buffer_load_dwordx4 {vr(RAW + 4 * i, 4)}, v{vL16}, {srd(S_WS)}, s{16 + i // 4} offen offset:{1024 * (i % 4)} sc1" for i in range(nf)]
    for l in loads():
        a(l)
    if sentinel(ein):
        back, stub = label("lnb"), label("lns")
        chk = maxchain(113, range(RAW, RAW + 4 * nf)) + ["v_cmp_eq_u32 vcc, -1, v113"]
        a(f"s_mov_b32 s{sCNT}, 0")
        for l in chk:
            a(l)
        a(f"s_cbranch_vccnz {stub}")
        a(f"{back}:")
        STUBS.extend([f"{stub}:"] + loads() + ["s_waitcnt vmcnt(0)"] + chk + [f"s_add_u32 s{sCNT}, s{sCNT}, 1", f"s_cbranch_vccz {back}",
                      f"s_cmp_lt_u32 s{sCNT}, {RETRY}", f"s_cbranch_scc1 {stub}", f"s_branch {back}"])
    if hinted(eout) and OPT["h_ln"] == 0:
        a.wait_vm0()
        hint_put(hr)
    if OPT["stamps"] == 1:
        a.wait_vm0()
    count_out(113)
    stamp(f"ln{layer} data", 113)
    for i in range(nf):
        for k in range(4):
            unpack(XF + 8 * i + 2 * k, XF + 8 * i + 2 * k + 1, RAW + 4 * i + k)
        for k in range(4):
            x = vr(XF + 8 * i + 2 * k, 2)
            if i == 0:
                a(f"v_pk_mul_f32 {vr(Q + 2 * k, 2)}, {x}, {x}")
            else:
                a(f"v_pk_fma_f32 {vr(Q + 2 * k, 2)}, {x}, {x}, {vr(Q + 2 * k, 2)}")
                a(f"v_pk_add_f32 {vr(S + 2 * k, 2)}, {vr(XF + 2 * k, 2) if i == 1 else vr(S + 2 * k, 2)}, {x}")
    if hinted(eout) and OPT["h_ln"] == 1:
        hint_put(hr)
    for i in range(8):
        a(f"v_permlane32_swap_b32 v{S + i}, v{Q + i}")
    for i in range(0, 8, 2):
        a(f"v_pk_add_f32 {vr(S + i, 2)}, {vr(S + i, 2)}, {vr(Q + i, 2)}")
    for i in range(4):
        a(f"v_permlane16_swap_b32 v{S + i}, v{S + 4 + i}")
    for i in range(0, 4, 2):
        a(f"v_pk_add_f32 {vr(S + i, 2)}, {vr(S + i, 2)}, {vr(S + 4 + i, 2)}")
    for i in range(2):
        a(f"v_add_f32_dpp v{W + i}, v{S + i}, v{S + i} row_ror:8 row_mask:0xf bank_mask:0x3")
    for i in range(2):
        a(f"v_add_f32_dpp v{W + i}, v{S + 2 + i}, v{S + 2 + i} row_ror:8 row_mask:0xf bank_mask:0xc")
    a(f"v_add_f32_dpp v{S}, v{W}, v{W} row_shl:4 row_mask:0xf bank_mask:0x5")
    a(f"v_add_f32_dpp v{S}, v{W + 1}, v{W + 1} row_shr:4 row_mask:0xf bank_mask:0xa")
    if not wide:
        a(f"v_add_f32_dpp v{S}, v{S}, v{S} quad_perm:[2,3,0,1] row_mask:0xf bank_mask:0xf")
    a(f"ds_write_b32 v{vPW}, v{S}")
    a.barrier()
    if hinted(eout) and OPT["h_ln"] == 2:
        hint_put(hr)
    stamp(f"ln{layer} bar", 113)
    T = 0
    for w in range(4):
        a(f"ds_read2_b32 {vr(T + 2 * w, 2)}, v{vPR} offset0:{w * 64} offset1:{w * 64 + 32}")
    a(f"""v_pk_add_f32 {vr(T, 2)}, {vr(T, 2)}, {vr(T + 2, 2)}
v_pk_add_f32 {vr(T + 4, 2)}, {vr(T + 4, 2)}, {vr(T + 6, 2)}
v_pk_add_f32 {vr(T, 2)}, {vr(T, 2)}, {vr(T + 4, 2)}
v_mul_f32 v{T}, {f32(1 / 448)}, v{T}
v_mul_f32 v{T + 1}, {f32(1 / 448)}, v{T + 1}
v_fma_f32 v{T + 1}, -v{T}, v{T}, v{T + 1}
v_max_f32 v{T + 1}, 0, v{T + 1}
v_add_f32 v{T + 2}, {f32(1e-5)}, v{T + 1}
v_fmamk_f32 v{T + 2}, v{T + 2}, {f32(1e-5)}, v{T + 1}
v_rsq_f32 v{T + 2}, v{T + 2}
v_mul_f32 v{T + 3}, -v{T}, v{T + 2}
v_cndmask_b32 v{T + 2}, v{T + 2}, v{T + 3}, s[18:19]
ds_write_b32 v{vAW}, v{T + 2}""")
    AL, BE = S, Q
    done_hint = []
    a(f"""ds_read_b128 {vr(AL, 4)}, v{vAR}
ds_read_b128 {vr(BE, 4)}, v{vAR} offset:128
ds_read_b128 {vr(AL + 4, 4)}, v{vAR} offset:16
ds_read_b128 {vr(BE + 4, 4)}, v{vAR} offset:144""")
    for i in range(nf):
        for k in range(4):
            x = vr(XF + 8 * i + 2 * k, 2)
            a(f"v_pk_fma_f32 {x}, {x}, {vr(AL + 2 * k, 2)}, {vr(BE + 2 * k, 2)}")
        for k in range(4):
            a(f"v_cvt_pk_bf16_f32 v{RAW + 4 * i + k}, v{XF + 8 * i + 2 * k}, v{XF + 8 * i + 2 * k + 1}")
        a(f"buffer_store_dwordx4 {vr(RAW + 4 * i, 4)}, v{vO if wide else vS + i}, {srd(S_WS)}, s{23 + i if wide else 23} offen sc1", tag="pub")
        if hinted(eout) and OPT["h_ln"] - 3 == min(i, 6) * (4 if nf == 7 else 4) // (nf + 1):
            if not done_hint:
                hint_put(hr)
                done_hint.append(1)
    stamp(f"ln{layer} st", 113)
    if flagged(eout):
        flag_put(eout, prod, 100, "pub")


def gemm_addr():
    a(f"""s_and_b32 s{sT0}, s{sWAVE}, 1
s_lshl_b32 s{sT0}, s{sT0}, 10
v_add_u32 v{vA0}, s{sT0}, v{vL16}
v_xor_b32 v{vA1}, 0x400, v{vA0}""")


vCHK = 121


def gemm_loop(nks, ring, nring, wreg, swap, sent, lds_from=99, at=None, bg=()):
    WF = 104
    nfr = 2 * nks

    def load(f):
        ks, db = f // 2, f % 2
        g = []
        if db == 0 and ks and ks % 2 == 0:
            g.append(Ins("s_add_u32 s13, s13, 4096"))
            if ks % 4 == 0:
                g += [Ins("s_cmp_eq_u32 s13, s28"), Ins("s_cmov_b32 s13, s27")]
        d = ring + 4 * (f % nring)
        g.append(Ins(f"buffer_load_dwordx4 {vr(d, 4)}, v{(vA0, vA1)[db]}, {srd(S_WS)}, s13 offen offset:{(ks % 2) * 2048} sc1"))
        return g

    def wread(ks):
        g = []
        slot = ks - lds_from
        for nb in range(2):
            for j in range(2):
                d = WF + 8 * (ks % 2) + 4 * nb + 2 * j
                g.append(Ins(f"ds_read_b64_tr_b16 {vr(d, 2)}, v{(vT2a, vT2b)[nb]} offset:{slot * 2048 + j * 1024}", res_r=[f"slot{slot}"]))
        return g

    def check(ks, upto):
        regs = [ring + 4 * ((2 * ks + db) % nring) + k for db in range(2) for k in range(4)]
        chk = maxchain(vCHK, regs) + [f"v_cmp_eq_u32 vcc, -1, v{vCHK}"]
        back, stub = label("gb"), label("gs")
        rl, cnt = [], 0
        for f in range(2 * ks, max(2 * ks + 2, min(upto, 2 * ks + 2 * OPT["rl"]))):
            k2, db = f // 2, f % 2
            if db == 0:
                rl += [f"s_add_u32 s3, s22, {k2 * 2048}", "s_cmp_ge_u32 s3, s28", f"s_cselect_b32 s18, {nks * 2048}, 0", "s_sub_u32 s3, s3, s18"]
            rl.append(f"buffer_load_dwordx4 {vr(ring + 4 * (f % nring), 4)}, v{(vA0, vA1)[db]}, {srd(S_WS)}, s3 offen sc1")
        STUBS.extend([f"{stub}:"] + rl + ["s_waitcnt vmcnt(0)"] + chk + [f"s_add_u32 s{sCNT}, s{sCNT}, 1", f"s_cbranch_vccz {back}",
                                                     f"s_cmp_lt_u32 s{sCNT}, {RETRY}", f"s_cbranch_scc1 {stub}", f"s_branch {back}"])
        return [Ins(x) for x in chk], [Ins(f"s_cbranch_vccnz {stub}"), Ins(f"{back}:")]

    if sent:
        a(f"s_mov_b32 s{sCNT}, 0")
    nxt = min(OPT["fill0"], nring)
    for f in range(nxt):
        a.put(load(f))
    if sent:
        c, b = check(0, nxt)
        a.put(c); a.put(b)
    extra = []
    bg = list(bg)
    for ks in range(nks):
        if at and ks in at:
            extra += a.capture(at[ks])
        pend = wread(ks + 1) if lds_from <= ks + 1 < nks else []
        c, b = check(ks + 1, min(nfr, nxt + 2, nring + 2 * ks + 2)) if (sent and ks + 1 < nks) else ([], [])
        order = [(0, 0), (0, 1), (1, 0), (1, 1)]
        if ks == nks - 1 and OPT["tailord"]:
            order = [(0, 1), (1, 0), (1, 1), (0, 0)]
        if True:
            for nb, db in order:
                acc = vr(16 * (2 * nb + db), 16)
                cc = acc if (ks or (nb | db) == 0) else "0"
                w = wreg(ks, nb) if ks < lds_from else vr(WF + 8 * (ks % 2) + 4 * nb, 4)
                x = vr(ring + 4 * ((2 * ks + db) % nring), 4)
                a(f"v_mfma_f32_32x32x16_bf16 {acc}, {x if swap else w}, {w if swap else x}, {cc}")
                if pend:
                    a.put([pend.pop(0)])
                free = nring + 2 * ks + (db + 1 if nb == 1 else 0)
                if nxt < min(nfr, free) and (nb == 1 or db == 1):
                    a.put(load(nxt))
                    nxt += 1
                if bg and nb == 0 and ks >= OPT["bg0"]:
                    a.put(bg.pop(0))
                if extra and nb == 0:
                    k = 5
                    while k < len(extra) and ("exec" in extra[k - 1].defs and extra[k - 1].text != "s_mov_b64 exec, -1" or extra[k - 1].kind == "vstore"):
                        k += 1
                    a.put(extra[:k])
                    del extra[:k]
                if nb == 1 and db == 0:
                    a.put(c)
                if nb == 1 and db == 1:
                    a.put(b)
    a.put(extra)


def gemm_rot(nks, srot):
    a(f"s_mov_b32 s27, s13\ns_add_u32 s28, s13, {nks * 2048}\ns_lshl_b32 s{sT0}, s{srot}, 13\ns_add_u32 s13, s13, s{sT0}\ns_mov_b32 s22, s13")


def gemm_reduce_prep():
    slot = 6144 if OPT["bfr"] else 12288
    for rel in (1, 2, 3):
        a(f"s_xor_b32 s{23 + rel}, s{sWAVE}, {rel}\ns_mul_i32 s{23 + rel}, s{23 + rel}, {slot}")
    a(f"s_mul_i32 s23, s{sWAVE}, {slot}")


def gemm_reduce_addr():
    for rel in range(4):
        a(f"v_add_u32 v{64 + rel}, s{23 + rel}, v{vL16}")


def gemm_perm(P):
    if not OPT["bfr"]:
        return
    t, u = P + 8, P + 7
    a("s_mov_b32 s29, 0x3f80")
    a(f"""v_lshrrev_b32 v{u}, 5, v{vLANE}
v_and_b32 v{t}, 31, v{vLANE}
v_lshlrev_b32 v{u}, 2, v{u}
v_sub_u32 v{t}, v{t}, v{u}
v_and_b32 v{u}, 1, v{t}
v_lshlrev_b32 v{u}, 4, v{u}
v_lshlrev_b32 v{u}, v{u}, s29
v_ashrrev_i32 v{t}, 1, v{t}""")
    vals = (0, 1, 4, 5, 8, 9, 12, 13)
    pairs = ("s[16:17]", "s[30:31]", "s[50:51]")
    for d in range(10):
        if d < 8:
            a(f"v_cmp_eq_u32 {pairs[d % 3]}, {vals[d]}, v{t}")
        if d >= 2:
            a(f"v_cndmask_b32 v{P + d - 2}, 0, v{u}, {pairs[(d - 2) % 3]}")
    a(f"ds_write_b128 v{vL16}, {vr(P, 4)} offset:{PERM}")
    a(f"ds_write_b128 v{vL16}, {vr(P + 4, 4)} offset:{PERM + 1024}")


def gemm_perm_get(P):
    if OPT["bfr"]:
        a(f"ds_read_b128 {vr(P, 4)}, v{vL16} offset:{PERM}")
        a(f"ds_read_b128 {vr(P + 4, 4)}, v{vL16} offset:{PERM + 1024}")


def gemm_reduce_bf(P, pre, post, quarter):
    side = a.capture(pre) if pre else []
    a.put(side[:9])
    side = side[9:]
    T = [104, 108, 112, 116]
    n = 0
    for rel in (1, 2, 3):
        for j in range(2):
            t = T[n % 4]
            n += 1
            for k in range(4):
                r = 16 * rel + 8 * j + 2 * k
                a(f"v_cvt_pk_bf16_f32 v{t + k}, v{r}, v{r + 1}")
            a(f"ds_write_b128 v{64 + rel}, {vr(t, 4)} offset:{RB + (rel - 1) * 2048 + j * 1024}")
            a.put(side[:3])
            side = side[3:]
    a.put(side)
    a.barrier()
    for k in range(6):
        a(f"ds_read_b128 {vr(16 + 4 * k, 4)}, v64 offset:{RB + k * 1024}")
    if post:
        post()
    for k in range(6):
        a(f"v_mfma_f32_32x32x16_bf16 v[0:15], {vr(P + 4 * (k % 2), 4)}, {vr(16 + 4 * k, 4)}, v[0:15]")
    if quarter:
        for q in range(4):
            quarter(q)


def gemm_reduce(pre=None, post=None, quarter=None, P=None):
    if OPT["bfr"]:
        return gemm_reduce_bf(P, pre, post, quarter)
    side = a.capture(pre) if pre else []
    wr = [[Ins(f"ds_write_b128 v{64 + rel}, {vr(16 * rel + 4 * q, 4)} offset:{RB + (rel - 1) * 4096 + q * 1024}")] for rel in (1, 2, 3) for q in range(4)]
    a.put(side[:9])
    put_all(wr[:3])
    m, rest = merge(side[9:], wr[3:], 0, 12)
    a.put(m)
    put_all(rest)
    a.barrier()
    for q in range(4):
        for k in range(3):
            a(f"ds_read_b128 {vr(16 + 16 * k + 4 * q, 4)}, v64 offset:{RB + k * 4096 + q * 1024}")
        if q == 1 and post:
            post()
    for q in range(4):
        for h in range(2):
            r = 4 * q + 2 * h
            a(f"v_pk_add_f32 {vr(16 + r, 2)}, {vr(16 + r, 2)}, {vr(32 + r, 2)}")
            a(f"v_pk_add_f32 {vr(r, 2)}, {vr(r, 2)}, {vr(48 + r, 2)}")
        for h in range(2):
            r = 4 * q + 2 * h
            a(f"v_pk_add_f32 {vr(r, 2)}, {vr(r, 2)}, {vr(16 + r, 2)}")
        if quarter:
            quarter(q)


def gemm1(layer, wide, pre=None, bg=()):
    H = H1 if layer == 0 else H3
    G = G1 if layer == 0 else G3
    gemm_addr()
    a(f"""s_lshr_b32 s{sT0}, s{sWAVE}, 1
s_lshl_b32 s{sT0}, s{sT0}, 6
s_lshl_b32 s{sT1}, s{sNT}, 7
s_add_u32 s{sT0}, s{sT0}, s{sT1}
v_lshrrev_b32 v16, 5, v{vLANE}
v_lshl_add_u32 v16, v16, 3, s{sT0}""")
    for q in range(4):
        a(f"global_load_dwordx2 {vr(20 + 2 * q, 2)}, v16, {sp(P_B1)} offset:{16 * q}")
    r = 32
    a(f"""s_lshl_b32 s{sT0}, s{sWAVE}, 5
v_and_b32 v{r + 2}, 31, v{vLANE}
v_add_u32 v{r + 2}, s{sT0}, v{r + 2}
v_and_b32 v{r + 3}, {31 & ~(32 // OPT['samp'] - 1)}, v{vLANE}
v_add_u32 v{r + 3}, s{sT0}, v{r + 3}
s_lshl_b32 s13, s{sDT1}, 7
s_add_u32 s13, s13, s{sT0}
s_lshl_b32 s13, s13, 11
s_add_u32 s13, s13, {H}""")
    if wide:
        a(f"v_lshrrev_b32 v{r + 2}, 1, v{r + 2}\nv_lshrrev_b32 v{r + 3}, 1, v{r + 3}")
    c0 = -2 * math.log2(math.e) * math.sqrt(2 / math.pi)
    a(f"""s_mov_b32 s{sCA}, {f32(c0 * 0.044715)}
s_mul_i32 s21, s{sDT1}, 112
s_lshl_b32 s{sT0}, s{sNT}, 2
s_add_u32 s21, s21, s{sT0}
s_and_b32 s{sT0}, s{sWAVE}, 2
s_add_u32 s21, s21, s{sT0}
s_lshl_b32 s21, s21, 11
s_add_u32 s21, s21, {G}""")
    gemm_reduce_prep()
    gemm_rot(32, sROT1)
    if pre:
        pre()
    for k in range(8):
        unpack(2 * k, 2 * k + 1, 20 + k)
    ein, eout = 2 + 4 * layer, 3 + 4 * layer
    if emode(ein) == "M":
        l1, l2 = label("m1"), label("m2")
        a(f"s_cmp_eq_u32 s{sRL0 if wide else sRL}, 0\ns_cbranch_scc1 {l1}")
        a.wait_tag("pub")
        a(f"s_branch {l2}")
        a(f"{l1}:")
        wait_edge(ein, r, r + 2, r + 3)
        a(f"{l2}:")
    else:
        wait_edge(ein, r, r + 2, r + 3)
    stamp(f"g1_{layer} go", 63)
    prod = f"s_mul_i32 s{sT0}, s{sDT1}, 28\ns_add_u32 s{sT0}, s{sT0}, s{sNT}\ns_lshl_b32 s{sT0}, s{sT0}, 6"
    early = hinted(eout) and OPT["h_g1"] < 0
    at = {30: gemm_reduce_addr, 28: lambda: gemm_perm_get(96)}
    if early:
        assert OPT["h_g1"] in (-1, -3, -4)
        at[32 + OPT["h_g1"]] = lambda: (hint_prep(eout + 10, prod, 104), hint_put(104))
    gemm_loop(32, 64, 14, lambda ks, nb: f"a[{(ks * 2 + nb) * 4}:{(ks * 2 + nb) * 4 + 3}]", False, sentinel(ein), at=at)
    count_out(120)
    stamp(f"g1_{layer} loop", 120)
    a.begin()
    late = hinted(eout) and not early

    def pre():
        a(f"v_mov_b32 v80, {f32(c0)}")
        if late:
            hint_prep(eout + 10, prod, 72)

    def gelu(q):
        if q % 2 == 0:
            return
        half = q // 2
        if late and OPT["h_g1"] == 1 and half == 0:
            hint_put(72)
        rs = range(8 * half, 8 * half + 8, 2)
        for r in rs:
            a(f"v_pk_mul_f32 {vr(16 + r, 2)}, {vr(r, 2)}, {vr(r, 2)}")
        for r in rs:
            a(f"v_pk_fma_f32 {vr(16 + r, 2)}, {vr(16 + r, 2)}, {sp(sCA)}, {vr(80, 2)} op_sel_hi:[1,0,0]")
        for r in rs:
            a(f"v_pk_mul_f32 {vr(16 + r, 2)}, {vr(16 + r, 2)}, {vr(r, 2)}")
        for r in rs:
            a(f"v_exp_f32 v{16 + r}, v{16 + r}\nv_exp_f32 v{17 + r}, v{17 + r}")
        for r in rs:
            a(f"v_pk_add_f32 {vr(16 + r, 2)}, {vr(16 + r, 2)}, 1.0 op_sel_hi:[1,0]")
        for r in rs:
            a(f"v_rcp_f32 v{16 + r}, v{16 + r}\nv_rcp_f32 v{17 + r}, v{17 + r}")
        for r in rs:
            a(f"v_pk_mul_f32 {vr(r, 2)}, {vr(r, 2)}, {vr(16 + r, 2)}")
        for r in rs:
            a(f"v_cvt_pk_bf16_f32 v{84 + r // 2}, v{r}, v{r + 1}")
        a(f"buffer_store_dwordx4 {vr(84 + 4 * half, 4)}, v{vA0}, {srd(S_WS)}, s21 offen offset:{2048 * half} sc1", tag="pub")
        if late and OPT["h_g1"] == 2 + half:
            hint_put(72)
    gemm_reduce(pre, (lambda: hint_put(72)) if (late and OPT["h_g1"] == 0) else None, gelu, 96)
    m, rest = merge(a.end(), list(bg), 0, OPT["ev_g1"])
    a.put(m)
    if not flagged(eout):
        a.barrier()
    else:
        flag_put(eout, prod, 40, "pub")
    for g in rest:
        a.put(g)


def gemm2(layer, bg=()):
    G = G1 if layer == 0 else G3
    gemm_addr()
    a(f"""s_lshr_b32 s{sT0}, s{sWAVE}, 1
s_lshl_b32 s{sT0}, s{sT0}, 5
s_lshl_b32 s{sT1}, s{sST}, 6
s_add_u32 s50, s{sT0}, s{sT1}
s_and_b32 s{sT1}, s{sWAVE}, 1
s_lshl_b32 s{sT1}, s{sT1}, 5
s_lshl_b32 s{sT2}, s{sDT2}, 6
s_add_u32 s51, s{sT1}, s{sT2}
s_lshr_b32 s{sT2}, s50, 5
s_mul_i32 s{sT2}, s{sT2}, {BS}
s_lshl_b32 s{sT1}, s51, 6
s_add_u32 s20, s{sT2}, s{sT1}
s_add_u32 s30, s20, {X1 if layer == 0 else X3}
v_and_b32 v16, 31, v{vLANE}
v_lshrrev_b32 v17, 5, v{vLANE}
s_lshl_b32 s{sT0}, s50, 1""")
    r = 42

    def residual_issue():
        if layer == 0:
            for q in range(4):
                a(f"buffer_load_dwordx2 {vr(20 + 2 * q, 2)}, v18, {srd(S_WS)}, s30 offen offset:{16 * q} sc1")
        else:
            a(f"s_mov_b32 m0, s31")
            a(f"buffer_load_dwordx4 v{vL16}, {srd(S_WS)}, s30 offen sc1 lds", res_w=["x3"])
            a(f"buffer_load_dwordx4 v{vL16}, {srd(S_WS)}, s30 offen offset:1024 sc1 lds", res_w=["x3"])

    def residual_use():
        if layer == 0:
            for k in range(8):
                unpack(2 * k, 2 * k + 1, 20 + k)
            for k in range(8):
                unpack(40, 41, 28 + k)
                a(f"v_pk_add_f32 {vr(2 * k, 2)}, {vr(2 * k, 2)}, v[40:41]")
        else:
            for q in range(4):
                a(f"ds_read_b64_tr_b16 {vr(20 + 2 * q, 2)}, v31 offset:{512 * q}", res_r=["x3"])
            a("v_lshlrev_b32 v40, 16, v29")
            for k in range(8):
                unpack(2 * k, 2 * k + 1, 20 + k)
                a(f"v_pk_add_f32 {vr(2 * k, 2)}, {vr(2 * k, 2)}, v[40:41] op_sel_hi:[1,0]")

    if layer == 0:
        a(f"v_lshlrev_b32 v18, 6, v16\nv_lshl_add_u32 v18, v17, 3, v18\nv_lshl_add_u32 v19, v17, 3, s{sT0}")
        for q in range(4):
            a(f"global_load_dwordx2 {vr(28 + 2 * q, 2)}, v19, {sp(P_B2)} offset:{16 * q}")
    else:
        a(f"""v_and_b32 v19, 3, v{vLANE}
s_lshl_b32 s31, s{sWAVE}, 11
v_lshl_add_u32 v28, v16, 1, s{sT0}
global_load_ushort v29, v28, {sp(P_B2)}
v_bfe_u32 v31, v{vLANE}, 2, 2
v_lshl_add_u32 v31, v17, 2, v31
v_lshlrev_b32 v31, 6, v31
v_bfe_u32 v30, v{vLANE}, 4, 1
v_lshl_add_u32 v31, v30, 5, v31
v_lshl_add_u32 v31, v19, 3, v31
v_add_u32 v31, s31, v31""")
    a(f"""s_mul_i32 s{sT0}, s{sDT2}, 28
s_mul_i32 s{sT1}, s{sWAVE}, 7
s_add_u32 s{sT0}, s{sT0}, s{sT1}
v_min_u32 v{r + 2}, 6, v{vLANE}
v_add_u32 v{r + 2}, s{sT0}, v{r + 2}
v_mov_b32 v{r + 3}, v{r + 2}
s_lshl_b32 s13, s{sT0}, 13
s_add_u32 s13, s13, {G}""")
    if layer == 0:
        a(f"""s_add_u32 s21, s20, {X2}
s_lshl_b32 s19, s50, 1
s_add_u32 s19, s19, {ST1}""")
    else:
        a(f"s_mul_i32 s{sT0}, s50, 896\ns_lshl_b32 s{sT1}, s51, 1\ns_add_u32 s21, s{sT0}, s{sT1}")
    gemm_reduce_prep()
    gemm_rot(28, sROT2)
    lskip, ljoin = label("res"), label("resj")
    a(f"s_cmp_eq_u32 s{sR1}, 0")
    a(f"s_cbranch_scc1 {lskip}")
    residual_issue()
    residual_use()
    if emode(3 + 4 * layer) == "M":
        a.wait_tag("pub")
    else:
        wait_edge(3 + 4 * layer, r, r + 2, r + 3)
    a(f"s_branch {ljoin}")
    a(f"{lskip}:")
    wait_edge(3 + 4 * layer, r, r + 2, r + 3)
    residual_issue()
    residual_use()
    a(f"{ljoin}:")
    stamp(f"g2_{layer} go", 63)
    gemm_loop(28, 64, 10, lambda ks, nb: vr(128 + (ks * 2 + nb) * 4, 4), layer == 1, sentinel(3 + 4 * layer), lds_from=16, at={26: gemm_reduce_addr, 25: lambda: gemm_perm_get(88)}, bg=bg)
    count_out(120)
    stamp(f"g2_{layer} loop", 120)

    def addr():
        a(f"v_and_b32 v68, 31, v{vLANE}\nv_lshrrev_b32 v69, 5, v{vLANE}")
        if layer == 0:
            a(f"""v_and_b32 v70, 15, v{vLANE}
v_lshlrev_b32 v70, 6, v70
v_lshl_add_u32 v70, v69, 4, v70
v_bfe_u32 v71, v{vLANE}, 4, 1
v_lshl_add_u32 v70, v71, 5, v70
v_bfe_u32 v71, v{vLANE}, 2, 2
v_lshlrev_b32 v71, 4, v71
v_bfe_u32 v68, v{vLANE}, 4, 1
v_lshl_add_u32 v71, v68, 3, v71
v_and_b32 v68, 1, v{vLANE}
v_lshl_add_u32 v71, v68, 2, v71
v_bfe_u32 v68, v{vLANE}, 1, 1
v_lshl_add_u32 v68, v69, 1, v68
v_lshl_add_u32 v71, v68, 12, v71""")
        else:
            a(f"v_mul_u32_u24 v70, 896, v68\nv_lshl_add_u32 v70, v69, 4, v70")
    prod = f"s_lshl_b32 s{sT0}, s{sDT2}, 5\ns_add_u32 s{sT0}, s{sT0}, s{sST}\ns_lshl_b32 s{sT0}, s{sT0}, 6"
    hn = layer == 0 and hinted(4)

    def pre():
        addr()
        if hn:
            hint_prep(14, prod, 80)
    gemm_reduce(pre, (lambda: hint_put(80)) if (hn and OPT["h_g2"] == 0) else None, None, 88)
    if hn and OPT["h_g2"] == 1:
        hint_put(80)
    PK = 72
    stamp(f"g2_{layer} red", 120)
    for half in range(2):
        b = PK + 4 * half
        for k in range(4):
            a(f"v_cvt_pk_bf16_f32 v{b + k}, v{8 * half + 2 * k}, v{8 * half + 2 * k + 1}")
        a(f"v_permlane32_swap_b32 v{b}, v{b + 2}")
        a(f"v_permlane32_swap_b32 v{b + 1}, v{b + 3}")
        if layer == 1:
            a(f"buffer_store_dwordx4 {vr(b, 4)}, v70, {srd(S_OUT)}, s21 offen offset:{32 * half} {('', 'nt', 'sc1')[OPT['ofl']]}")
    if layer == 1:
        return
    for k in range(4):
        a(f"v_permlane16_swap_b32 v{PK + k}, v{PK + 4 + k}")
    for half in range(2):
        a(f"buffer_store_dwordx4 {vr(PK + 4 * half, 4)}, v70, {srd(S_WS)}, s21 offen offset:{1024 * half} sc1", tag="pub")
    if hn and OPT["h_g2"] == 2:
        hint_put(80)
    for k in range(8):
        a(f"v_pk_mul_f32 {vr(20 + 2 * k, 2)}, {vr(2 * k, 2)}, {vr(2 * k, 2)}")
    res = reduce32(list(range(16)) + list(range(20, 36)), 16, list(range(40, 48)))
    assert res == [0, 1, 2, 3]
    a(f"""v_cndmask_b32 v0, v0, v1, {sp(sM1)}
v_cndmask_b32 v2, v2, v3, {sp(sM1)}
v_cndmask_b32 v0, v0, v2, {sp(sM2)}""")
    a(f"buffer_atomic_add_f32 v0, v71, {srd(S_WS)}, s19 offen sc1", tag="pub")
    if hn and OPT["h_g2"] == 3:
        hint_put(80)
    stamp("g2_0 atom", 120)
    flag_put(4, prod, 40, "pub")
    stamp("g2_0 flag", 120)


def skip_unless(role):
    l = label("skip")
    a(f"s_cmp_eq_u32 s{role}, 0")
    a(f"s_cbranch_scc1 {l}")
    return l


def dmas(n0, n1):
    return [w_dma(n, h) for n in range(n0, n1) for h in range(2)]


def tr_dma(n0, n1):
    g = []
    for n in range(n0, n1):
        g.append(w_tr(n))
        if n > n0:
            g += dmas(n + 11, n + 12)
    g += dmas(n1 + 11, n1 + 12)
    return g


def wseq():
    nB = OPT["wB"] // 2
    assert 36 <= nB <= 60
    g = dmas(0, 12) + tr_dma(0, nB - 12)
    lastT = 48 if (nB >= 48 and OPT["wT"]) else 32 + OPT["wg"]
    g += [w_tr(n) for n in range(nB - 12, lastT)]
    g.append([])
    d = nB
    for n in range(max(lastT, nB - 12), 49):
        while d < min(n + 11, 60) or (n == 48 and d < 60):
            g += dmas(d, d + 1)
            d += 1
        if n < 48:
            g.append(w_tr(n))
    return g


def wcut(n_dma):
    k = 0
    for p, g in enumerate(wseq()):
        if k == n_dma:
            return p
        k += any(i.kind == "dma" for i in g)
    return len(wseq())


def put_all(gs):
    for g in gs:
        a.put(g)


def w2_touch(r):
    return [Ins(f"v_lshlrev_b32 v{r}, 12, v{vLANE}"), Ins(f"buffer_load_dword v{r}, v{r}, {srd(S_W2)}, s{sW2O} offen")]


def build():
    g = OPT["wg"]
    WORDER[:] = list(range(0, g)) + list(range(32, 32 + g)) + list(range(g, 32)) + list(range(32 + g, 60))
    if OPT["w2t"]:
        WORDER[:] = list(range(60))
    cA, cP, cL, cB = wcut(OPT["wA"]), wcut(OPT["wP"]), wcut(OPT["wL"]), wseq().index([])
    cK = wcut(OPT["wK"])
    prologue()
    laux, ljoin = label("aux"), label("join")
    a(f"s_cmp_eq_u32 s{sRC}, 0")
    a(f"s_cbranch_scc1 {laux}")
    xt_loads()
    kgen_table_load()
    code_warm(1)
    w_setup()
    put_all(wseq()[:cA])
    conv_setup(0)
    stamp("start", 2)

    xt_poll_addr(63, 2)
    xt_work()

    def h_flag():
        nonce_take()
        flag_put(0, sPAIR, 104, "st0")
        stamp("flag", 0)
        a(f"global_load_dwordx4 {vr(TAB, 4)}, v75, {sp(sTAB)}")
        a(f"global_load_dwordx4 {vr(TAB + 4, 4)}, v75, {sp(sTAB)} offset:16")
        a(f"global_load_dwordx2 v[0:1], v75, {sp(sTAB)} offset:32")

    hooks = {}
    for pos, fn in ((OPT["h_flag"], h_flag), (OPT["h_w"], lambda: KBG.extend(wseq()[cA:cK] + ([w2_touch(75)] if OPT["w2t"] else []))), (OPT["h_poll"], lambda: poll_issue(0, 64, 63))):
        hooks.setdefault(pos, []).append(fn)
    assert OPT["h_flag"] <= OPT["h_w"] and OPT["h_poll"] >= 6
    kgen({k: (lambda fs=fs: [f() for f in fs]) for k, fs in hooks.items()})
    dump_lds(1)
    stamp("kgen", 21)

    def mid():
        poll_take(64, 63)
        stamp("e1 seen", 0)
        conv_loads()
    wr = kexpand(mid)
    if OPT["mixpro"]:
        mv = [i for i in wr if i.kind != "dsw"]
        st = [i for i in wr if i.kind == "dsw"]
        pro = a.capture(conv_pro, 0)
        k = next(n for n, i in enumerate(pro) if i.defs & {f"v{r}" for r in range(0, 22)})
        a.put(mv)
        a.put(st[2:4])
        head, rest = merge(pro[:k], [[i] for i in st[4:6] + st[:2] + st[6:]], 0, 14)
        a.put(head)
        early = [g for g in rest if g[0].uses & {f"v{r}" for r in range(0, 22)}]
        put_all(early)
        rest = [g for g in rest if g not in early]
        k2 = next(n for n, i in enumerate(pro) if i.kind == "dsw")
        mid2, rest = merge(pro[k:k2], rest, 0, 30)
        put_all(rest)
        m3, rest = merge(mid2 + pro[k2:], wseq()[cK:cP], 50, OPT["ev_pro"])
        a.put(m3)
        put_all(rest)
        stamp("expand", 111)
    else:
        a.put(wr)
        stamp("expand")
        conv_pro(0)
    if sentinel(1):
        a(f"v_min_u32 v{cvP + 2}, 27, v{vLANE}")
        poll_issue(8, cvP)
    a.barrier()
    dump_lds(2)
    stamp("conv0 go", 111)
    put_all(conv_main(0, wseq()[cP:cL], OPT["st_conv"], OPT["ev_conv"]))
    stamp("conv0 done")
    a(f"s_branch {ljoin}")
    a(f"{laux}:")
    aux_loads()
    kgen_table_addr()
    code_warm(1)
    w_setup()
    aux_work()
    stamp("aux e1")
    if OPT["g7"] == 1:
        lg = label("g7")
        a(f"""s_cmp_lg_u32 s{sR1}, 0
s_cbranch_scc1 {lg}
s_lshr_b32 s{sT0}, s{sX}, 2
s_sub_u32 s{sT0}, s{sJ}, s{sT0}
s_sub_u32 s{sT0}, s{sT0}, 28
s_lshl_b32 s{sT0}, s{sT0}, 3
s_add_u32 s{sT0}, s{sT0}, s{sX}
s_lshl_b32 s{sT0}, s{sT0}, 7
s_mul_i32 s{sT1}, s{sWAVE}, {512 * 3584}
s_add_u32 s{sT0}, s{sT0}, s{sT1}
s_add_u32 s{sT0}, s{sT0}, {448 * 3584}
v_mul_u32_u24 v90, 3584, v{vLANE}
v_add_u32 v90, s{sT0}, v90""")
        a(f"global_load_dword v90, v90, {sp(P_W1)}")
        a(f"{lg}:")
    if armed(0):
        lnf = label("nf")
        a(f"s_cmp_lg_u32 s{sR1}, 0\ns_cbranch_scc1 {lnf}")
        if OPT["map18"] == 1:
            a(f"s_sub_u32 s16, s{sAUX}, 4\ns_cselect_b32 s16, s{sAUX}, s16")
        else:
            a(f"s_lshr_b32 s16, s{sAUX}, 1\ns_sub_u32 s17, s{sAUX}, 4\ns_cmp_lt_u32 s{sAUX}, 8\ns_cselect_b32 s16, s16, s17")
        if sentinel(1):
            fill(X1, -(-15 * 32 // 28), 80, 16, 28 * 4096, "fill")
            flag_put(8, 16, 72, "fill")
        if sentinel(2) or sentinel(3):
            fill(H1 if sentinel(2) else G1, -(-(14 * sentinel(2) + 13 * sentinel(3)) * 32 // 28), 80, 16, 28 * 4096, "fill")
            flag_put(18, 16, 72, "fill")
        a(f"{lnf}:")
    stamp("aux fill")
    if OPT["g7"] == 2:
        lg = label("g7")
        a(f"""s_cmp_lg_u32 s{sR1}, 0
s_cbranch_scc1 {lg}
s_lshr_b32 s{sT0}, s{sX}, 2
s_sub_u32 s{sT0}, s{sJ}, s{sT0}
s_sub_u32 s{sT0}, s{sT0}, 28
s_lshl_b32 s{sT0}, s{sT0}, 3
s_add_u32 s{sT0}, s{sT0}, s{sX}
s_lshl_b32 s{sT0}, s{sT0}, 7
s_mul_i32 s{sT1}, s{sWAVE}, {512 * 3584}
s_add_u32 s{sT0}, s{sT0}, s{sT1}
s_add_u32 s{sT0}, s{sT0}, {448 * 3584}
v_mul_u32_u24 v90, 3584, v{vLANE}
v_add_u32 v90, s{sT0}, v90""")
        a(f"global_load_dword v90, v90, {sp(P_W1)}")
        a(f"{lg}:")
    cX = min(wcut(64 + 2 * OPT["wg"]), cB)
    if OPT["w2t"]:
        a.put(w2_touch(75))
    put_all(wseq()[:cX])
    if sentinel(1):
        a(f"v_min_u32 v62, 27, v{vLANE}")
        poll_issue(8, 60)
        poll_take(60)
    a.wait_vm0()
    stamp("aux w")
    a(f"{ljoin}:")
    for layer in range(2):
        if layer == 1:
            l = skip_unless(sRC)
            conv_setup(1)
            conv_poll1()
            stamp("conv1 ready")
            if OPT["kc_in"] and not hinted(4):
                a.wait_tag("flag")
                poll_issue(4, cvP)
                kcopies()
                poll_take(cvP)
            else:
                kcopies()
                wait_edge(4, cvP, cvP + 2, cvP + 3)
            stamp("conv1 poll")
            conv_loads()
            conv_pro(1)
            if armed(1):
                a(f"v_and_b32 v{cvP + 2}, 31, v{vLANE}")
                poll_issue(9, cvP)
            a.barrier()
            dump_lds(3)
            stamp("conv1 go", 111)
            conv_main(1)
            stamp("conv1 done")
            if armed(1):
                lj = label("cvj")
                a(f"s_branch {lj}")
                a(f"{l}:")
                a(f"v_and_b32 v62, 31, v{vLANE}")
                poll_issue(9, 60)
                poll_take(60)
                a(f"{lj}:")
            else:
                a(f"{l}:")
        wide = OPT["ln1w"] if layer else OPT["ln0w"]
        l = skip_unless(sRL0 if wide else sRL)
        ln(layer, wide)
        stamp(f"ln{layer} done")
        a(f"{l}:")
        if layer == 0:
            gemm_perm(0)
            l = skip_unless(sRC)
            put_all(wseq()[cL:cX])
            a(f"{l}:")
            rest = wseq()[cX:cB]
            k = max(0, len(rest) - 12)
            put_all(rest[:k])
            if sentinel(2) or sentinel(3):
                a(f"v_min_u32 v62, 27, v{vLANE}")
                poll_issue(18, 60)
            put_all(rest[k:])
            if sentinel(2) or sentinel(3):
                poll_take(60)
            stamp("w B")
            tail = wseq()[cB:]
            assert not any(i.kind == "dsr" and "a[" in i.text for g in tail for i in g)
            lelse, lj = label("ng1"), label("g1j")
            a(f"s_cmp_eq_u32 s{sR1}, 0")
            a(f"s_cbranch_scc1 {lelse}")
            gemm1(0, wide, None, [] if OPT["t2"] else tail)
            nonce_retire()
            stamp("g1_0 done")
            a(f"s_branch {lj}")
            a(f"{lelse}:")
            put_all([] if OPT["t2"] else wseq()[cB:])
            a(f"{lj}:")
        else:
            l = skip_unless(sR1)
            gemm1(1, wide)
            stamp("g1_1 done")
            a(f"{l}:")
        l = skip_unless(sR2)
        gemm2(layer, [g for g in wseq()[cB:] if g] if (layer == 0 and OPT["t2"]) else [])
        if layer == 0 and armed(1):
            lj = label("g2j")
            a(f"s_branch {lj}")
            a(f"{l}:")
            if OPT["map18"]:
                a(f"s_lshl_b32 s16, s{sX}, 2\ns_add_u32 s16, s16, s{sJ}")
            else:
                a(f"s_lshr_b32 s16, s{sX}, 1\ns_lshl_b32 s16, s16, 3\ns_add_u32 s16, s16, s{sJ}")
            fill(X3, 42, 72, 16, CH)
            flag_put(9, 16, 8, "st0")
            a(f"{lj}:")
        else:
            a(f"{l}:")
        stamp("g2_0 done" if layer == 0 else "end")
    if OPT["stamps"] and OPT["dbgwg"] < 0:
        l = label("ls")
        a(f"s_cmp_lg_u32 s{sWAVE}, 0\ns_cbranch_scc1 {l}\ns_waitcnt vmcnt(0)\ns_memrealtime {sp(sSTAMP)}\ns_waitcnt lgkmcnt(0)")
        a(f"s_lshl_b32 s3, s2, 8\ns_add_u32 s3, s3, {STAMPS + 248}\nv_mov_b32 v0, s101\nv_mov_b32 v1, s{sSTAMP}\ns_mov_b64 exec, 1")
        a(f"buffer_store_dwordx2 v[0:1], off, {srd(S_WS)}, s3")
        a(f"{l}:")
    if OPT["fixdur"]:
        a(f"s_waitcnt vmcnt(0) lgkmcnt(0)\nL_fix:\ns_memrealtime s[28:29]\ns_waitcnt lgkmcnt(0)\ns_sub_u32 s28, s28, s101\ns_cmp_lt_u32 s28, {OPT['fixdur']}\ns_cbranch_scc1 L_fix")
    a("s_endpgm")


def bf16_round_int(l):
    b = struct.unpack("<I", struct.pack("<f", float(l)))[0]
    b = (b + 0x7FFF + ((b >> 16) & 1)) & 0xFFFF0000
    return int(struct.unpack("<f", struct.pack("<I", b))[0])


def ktab():
    vals = []
    for c in range(2):
        for x in range(2048):
            lr = bf16_round_int(2047 - x)
            aa, rem = lr >> 7, lr & 127
            j, e = rem >> 3, rem & 7
            if aa < 2:
                rho = 8 * aa + e
            elif aa < 4:
                rho = 4 * aa + 8 + (e >> 1)
            elif aa < 8:
                rho = 16 + 2 * aa + (e >> 2)
            else:
                rho = 24 + aa
            vals.append((rho >> 2) * 256 + j * 16 + (rho & 3) * 4 + c * 2 * GST)
        vals += [3072 + c * 2 * GST] * 16
    lines = []
    for i in range(0, len(vals), 16):
        lines.append("    .short " + ", ".join(str(v) for v in vals[i:i + 16]))
    return "\n".join(lines)


def main(path):
    build()
    ins = a.finish()
    ref = open(f"cdna_kernels/{NAME}.s.ref").read().split("\n")
    head = [l for l in ref if l.startswith(";") and "@launch" not in l and not l.startswith("; Override") and not l.startswith("; grid=ceil")]
    k = NAME + "_kernel"
    s = "\n".join(head) + f"\n; @launch grid=(256,1,1) block=(256,1,1) lds={LDS_BYTES}\n"
    s += f""".amdgcn_target "amdgcn-amd-amdhsa--gfx950"
.text
.globl {k}
.p2align 8
.type {k},@function
{k}:
L_entry:
"""
    s += Prog.render(ins)
    s += "".join((l if l.endswith(":") else "    " + l) + "\n" for l in STUBS)
    s += f""".p2align 6
.type ktab,@object
ktab:
{ktab()}
.size ktab, 8256
.section .rodata,"a"
.p2align 6
.amdhsa_kernel {k}
  .amdhsa_next_free_vgpr 512
  .amdhsa_next_free_sgpr 102
  .amdhsa_accum_offset 256
  .amdhsa_group_segment_fixed_size 0
  .amdhsa_kernarg_size 136
  .amdhsa_user_sgpr_count 2
  .amdhsa_user_sgpr_kernarg_segment_ptr 1
  .amdhsa_system_sgpr_workgroup_id_x 1
  .amdhsa_float_denorm_mode_32 3
.end_amdhsa_kernel
"""
    open(path, "w").write(s)
    n = sum(1 for i in ins if i.kind not in ("label", "comment"))
    open(path + ".names", "w").write("\n".join(STAMP_NAMES))
    print("instructions:", n, "nops:", sum(1 for i in ins if i.kind == "nop"), "waits:", sum(1 for i in ins if i.kind == "wait"))


if __name__ == "__main__":
    path = sys.argv[1]
    for kv in sys.argv[2:]:
        k, v = kv.split("=")
        OPT[k] = v if k in ('em', 'probe') else int(v)
    main(path)
```

```python
import sys, math, struct
from asmlib import *

NAME = "interleave_layers__ssm_conv_s4__mixer_token_mlp__prompt"
OPT = dict(stamps=False, stop=99, upfront=True, dump=0, dbgwg=-1, fixdur=0, em='FSSFSSS', warm=1, h_flag=2, h_w=2, h_poll=9, h_ln=2, h_cv=0, h_g1=0, h_g2=0, rot=1, wA=0, wK=8, wP=8, wL=16, wB=120, wT=1, lag=2, gap=3, st_conv=100, ev_conv=150, ev_g1=100000, fill0=14, ln1w=0, ln0w=1, chk=1, samp=8, map18=1, ofl=0, tailord=1, cv=1, clk=0, ev_kg=150, mixpro=1, now=0, probe='', kc_in=0, w2t=0, g7=0)
DBG_SEL = ['start', 'kgen', 'conv0 go', 'ln0 go', 'g1_0 go', 'g1_0 loop', 'g2_0 go', 'g2_0 loop', 'conv1 poll', 'ln1 go', 'g1_1 go', 'g2_1 go', 'end']
STAMP_NAMES = []

EPOCH = 0
ST0 = 0x1000
ST1 = 0x8000
STAMPS = 0x20000
FL = 0x100000
BS = 448 * 64 + 128
CH = 0x20000
X1 = 0x400000
H1 = X1 + 15 * CH
G1 = H1 + 14 * CH
X3 = G1 + 13 * CH
H3 = X3 + 15 * CH
G3 = H3 + 14 * CH
X2 = G3 + 13 * CH
X0 = X2 + 15 * CH
FILL1, FILL3 = 6, 36
WS_BYTES = 268435456
OOB = 0x40000000

KST = 4160
KSLOT = {0: [0, 5, 2, 3], 1: [1, 6, 7, 4]}
UB = 8 * KST
UPAD = 1024
UST = 4096 + UPAD
ZB = UB + 2 * UST
EX = 2 * KST
RB = 2 * KST
GST = 15616
GROW = 272
TOFF = 12288
LNP = 57472
W2L = 65536
LDS_BYTES = 163840

sWAVE, sX, sJ, sPAIR, sDT1, sNT, sDT2, sST, sLN = 4, 5, 6, 7, 8, 9, 10, 11, 12
sNONCE = 14
P_U, P_ARE, P_AIM, P_BRE, P_BIM, P_CRE, P_CIM, P_LDT = 16, 18, 20, 22, 24, 26, 28, 30
P_DSK, P_W1, P_B1, P_W2, P_B2, P_OUT, P_DBG, P_WS = 32, 36, 38, 40, 42, 44, 46, 48
S_WS, S_W1, S_W2, S_X0, S_OUT = 52, 56, 60, 64, 68
sD0, sD1 = 72, 74
sLDT = 76
sEP = 78
sWOFF, sT0, sT1, sT2, sT3, sCNT = 80, 81, 82, 83, 84, 85
sRC, sR1, sR2, sRL = 86, 87, 88, 89
sM1, sM2 = 90, 92
sSTAMP = 94
sTAB = 96
sLN0, sRL0 = 77, 73
sCA, sCB = 34, 100

vLANE, vL16, vT2a, vT2b, vT1a, vT1b, vD1, vD2 = 127, 126, 125, 124, 123, 122, 121, 120
vA0, vA1 = 123, 122


def srd(n):
    return f"s[{n}:{n + 3}]"


def sp(n):
    return f"s[{n}:{n + 1}]"


def vr(n, k):
    return f"v[{n}:{n + k - 1}]" if k > 1 else f"v{n}"


def f32(x):
    return "0x%08x" % struct.unpack("<I", struct.pack("<f", x))[0]


a = Prog()
_lab = [0]


def label(p):
    _lab[0] += 1
    return f"L_{p}_{_lab[0]}"


_stamp = [0]


def stamp(name, r=1):
    k = _stamp[0]
    _stamp[0] += 1
    STAMP_NAMES.append(name)
    a("; MARK after " + name)
    if OPT["probe"] == name.replace(" ", "_"):
        a(f"s_memrealtime {sp(sSTAMP)}\ns_waitcnt lgkmcnt(0)\ns_mov_b32 s101, s{sSTAMP}")
    if OPT["stamps"] != 1:
        return
    l = label("st")
    if OPT["dbgwg"] >= 0:
        if name not in DBG_SEL:
            return
        a(f"s_lshl_b32 s3, s{sWAVE}, 8\ns_add_u32 s3, s3, s2\ns_cmp_lg_u32 s3, {OPT['dbgwg']}\ns_cbranch_scc1 {l}")
        a(f"s_memrealtime {sp(sSTAMP)}")
        a("s_waitcnt lgkmcnt(0)")
        a(f"s_mov_b64 exec, 1\nv_mov_b32 v{r}, s{sSTAMP}\ns_mov_b32 s{sSTAMP}, s{P_DBG}\ns_mov_b32 s{sSTAMP + 1}, s{P_DBG + 1}\ns_mov_b32 s{sSTAMP + 2}, 256\ns_mov_b32 s{sSTAMP + 3}, 0x20000".replace(f"s{sSTAMP}, s{P_DBG}", f"s64, s{P_DBG}").replace(f"s{sSTAMP + 1}, s{P_DBG + 1}", f"s65, s{P_DBG + 1}").replace(f"s{sSTAMP + 2}, 256", "s66, 256").replace(f"s{sSTAMP + 3}, 0x20000", "s67, 0x20000"))
        a(f"buffer_store_dword v{r}, off, s[64:67], 0 offset:{12 + 4 * DBG_SEL.index(name)} sc1", optional=True)
        a("s_mov_b64 exec, -1")
        a(f"{l}:")
        return
    a(f"s_cmp_lg_u32 s{sWAVE}, 0")
    a(f"s_cbranch_scc1 {l}")
    a(f"{'s_memtime' if OPT['clk'] else 's_memrealtime'} {sp(sSTAMP)}")
    a("s_waitcnt lgkmcnt(0)")
    a(f"s_lshl_b32 s3, s2, 8")
    a(f"s_add_u32 s3, s3, {STAMPS + 4 * k}")
    a(f"v_mov_b32 v{r}, s{sSTAMP}")
    a("s_mov_b64 exec, 1")
    a(f"buffer_store_dword v{r}, off, {srd(S_WS)}, s3", optional=True)
    a("s_mov_b64 exec, -1")
    a(f"{l}:")


_cnt = [0]


def count_out(r):
    if OPT["stamps"] != 1:
        return
    k = _cnt[0]
    _cnt[0] += 1
    a(f"s_lshl_b32 s3, s2, 2\ns_add_u32 s3, s3, s{sWAVE}\ns_lshl_b32 s3, s3, 5\ns_add_u32 s3, s3, {STAMPS + 0x10000 + 4 * k}")
    a(f"v_mov_b32 v{r}, s{sCNT}\ns_mov_b64 exec, 1")
    a(f"buffer_store_dword v{r}, off, {srd(S_WS)}, s3")
    a("s_mov_b64 exec, -1")


DUMP = 0x2000000


def dump_lds(point, r=96):
    if OPT["dump"] != point:
        return
    a.barrier()
    a(f"s_lshl_b32 s3, s{sWAVE}, 10\nv_add_u32 v{r + 4}, s3, v{vL16}\ns_lshl_b32 s3, s2, 16\ns_add_u32 s3, s3, {DUMP}")
    for i in range(16):
        a(f"ds_read_b128 {vr(r, 4)}, v{r + 4} offset:{i * 4096}")
        a(f"buffer_store_dwordx4 {vr(r, 4)}, v{r + 4}, {srd(S_WS)}, s3 offen")
        a("s_add_u32 s3, s3, 4096")
        a.wait_vm0()
    a.barrier()


def cmul(d, x, y):
    return [f"v_pk_mul_f32 {vr(d, 2)}, {vr(x, 2)}, {vr(y, 2)} op_sel:[1,1] op_sel_hi:[1,0] neg_lo:[0,1]",
            f"v_pk_fma_f32 {vr(d, 2)}, {vr(x, 2)}, {vr(y, 2)}, {vr(d, 2)} op_sel_hi:[0,1,1]"]


def cmul2(p, q=None):
    x = cmul(*p)
    if q is None:
        a(x[0]); a(x[1])
        return
    y = cmul(*q)
    a(x[0]); a(y[0]); a(x[1]); a(y[1])


def unpack(dlo, dhi, s):
    a(f"v_lshlrev_b32 v{dlo}, 16, v{s}")
    a(f"v_and_b32 v{dhi}, 0xffff0000, v{s}")


def prologue():
    a("s_cmp_lt_u32 s2, 256")
    a("s_cbranch_scc1 L_start")
    a("s_endpgm")
    a("L_start:")
    if OPT["fixdur"] or OPT["stamps"]:
        a("s_memrealtime s[50:51]")
    a("s_load_dwordx16 s[16:31], s[0:1], 0")
    a("s_load_dwordx16 s[32:47], s[0:1], 64")
    a("s_load_dwordx2 s[48:49], s[0:1], 128")
    a(f"v_lshrrev_b32 v1, 6, v0")
    a(f"v_and_b32 v{vLANE}, 63, v0")
    a(f"v_readfirstlane_b32 s{sWAVE}, v1")
    a(f"v_lshlrev_b32 v{vL16}, 4, v{vLANE}")
    a(f"""s_and_b32 s{sX}, s2, 7
s_lshr_b32 s{sJ}, s2, 3
s_add_u32 s{sJ}, s{sJ}, 28
s_and_b32 s{sJ}, s{sJ}, 31
""")
    a(f"""s_lshr_b32 s{sT0}, s{sX}, 2
s_mul_i32 s{sPAIR}, s{sX}, 28
s_sub_u32 s{sRC}, s{sJ}, s{sT0}
s_add_u32 s{sPAIR}, s{sPAIR}, s{sRC}
s_cmp_lt_u32 s{sRC}, 28
s_cselect_b32 s{sRC}, 1, 0
s_mul_i32 s{sT2}, s{sJ}, 37
s_lshr_b32 s{sT2}, s{sT2}, 8
s_mul_i32 s{sT3}, s{sT2}, 7
s_sub_u32 s{sDT1}, s{sJ}, s{sT3}
s_lshl_b32 s{sNT}, s{sT2}, 3
s_add_u32 s{sNT}, s{sNT}, s{sX}
s_sub_u32 s{sT1}, s{sJ}, 4
s_cselect_b32 s{sR2}, 0, 1
s_and_b32 s{sT1}, s{sT1}, 31
s_mul_i32 s{sT2}, s{sT1}, 37
s_lshr_b32 s{sT2}, s{sT2}, 8
s_mul_i32 s{sT3}, s{sT2}, 7
s_sub_u32 s{sDT2}, s{sT1}, s{sT3}
s_lshl_b32 s{sST}, s{sX}, 2
s_add_u32 s{sST}, s{sST}, s{sT2}
s_cmp_eq_u32 s{sJ}, 0
s_cselect_b32 s{sT1}, 32, s{sJ}
s_mul_i32 s{sT2}, s{sX}, 12
s_add_u32 s{sT2}, s{sT2}, s{sT1}
s_sub_u32 s{sT2}, s{sT2}, 53
s_lshl_b32 s{sT3}, s{sX}, 2
s_add_u32 s{sT3}, s{sT3}, s{sJ}
s_sub_u32 s{sT3}, s{sT3}, 28
s_cmp_lg_u32 s{sT0}, 0
s_cselect_b32 s{sT1}, s{sT1}, s{sJ}
s_cselect_b32 s{sLN0}, s{sT2}, s{sT3}
s_cselect_b32 s{sRL0}, 21, 28
s_cmp_ge_u32 s{sT1}, s{sRL0}
s_cselect_b32 s{sRL0}, 1, 0""" if OPT["map18"] == 1 else f"""s_and_b32 s{sT0}, s{sX}, 1
s_lshr_b32 s{sT1}, s{sX}, 1
s_mul_i32 s{sPAIR}, s{sX}, 28
s_sub_u32 s{sRC}, s{sJ}, s{sT0}
s_add_u32 s{sPAIR}, s{sPAIR}, s{sRC}
s_cmp_lt_u32 s{sRC}, 28
s_cselect_b32 s{sRC}, 1, 0
s_mul_i32 s{sT2}, s{sJ}, 37
s_lshr_b32 s{sT2}, s{sT2}, 8
s_mul_i32 s{sT3}, s{sT2}, 7
s_sub_u32 s{sT3}, s{sJ}, s{sT3}
s_mul_i32 s{sNT}, s{sT1}, 7
s_add_u32 s{sNT}, s{sNT}, s{sT3}
s_lshl_b32 s{sT3}, s{sT0}, 2
s_add_u32 s{sDT1}, s{sT2}, s{sT3}
s_lshl_b32 s{sST}, s{sT0}, 3
s_sub_u32 s{sST}, s{sJ}, s{sST}
s_cselect_b32 s{sR2}, 0, 1
s_lshr_b32 s{sDT2}, s{sST}, 3
s_and_b32 s{sDT2}, s{sDT2}, 3
s_add_u32 s{sDT2}, s{sDT2}, s{sT3}
s_and_b32 s{sST}, s{sST}, 7
s_lshl_b32 s{sLN0}, s{sT1}, 4
s_lshl_b32 s{sT1}, s{sT1}, 3
s_add_u32 s{sST}, s{sST}, s{sT1}
s_cmp_eq_u32 s{sJ}, 0
s_cselect_b32 s{sT1}, 32, s{sJ}
s_mul_i32 s{sT2}, s{sT0}, 11
s_add_u32 s{sT2}, s{sT2}, s{sT1}
s_cmp_lg_u32 s{sT0}, 0
s_cselect_b32 s{sT1}, s{sT1}, s{sJ}
s_cselect_b32 s{sT2}, s{sT2}, s{sJ}
s_cselect_b32 s{sRL0}, 21, 28
s_cmp_ge_u32 s{sT1}, s{sRL0}
s_cselect_b32 s{sRL0}, 1, 0
s_add_u32 s{sLN0}, s{sLN0}, s{sT2}
s_sub_u32 s{sLN0}, s{sLN0}, 28""")
    if OPT["map18"] == 2:
        a(f"""s_sub_u32 s{sT1}, s{sJ}, 4
s_cselect_b32 s{sR2}, 0, 1
s_and_b32 s{sT1}, s{sT1}, 31
s_mul_i32 s{sT2}, s{sT1}, 37
s_lshr_b32 s{sT2}, s{sT2}, 8
s_mul_i32 s{sT3}, s{sT2}, 7
s_sub_u32 s{sDT2}, s{sT1}, s{sT3}
s_lshl_b32 s{sST}, s{sX}, 2
s_add_u32 s{sST}, s{sST}, s{sT2}""")
    a(f"""s_lshl_b32 s{sLN}, s{sX}, 4
s_add_u32 s{sLN}, s{sLN}, s{sJ}
s_sub_u32 s{sLN}, s{sLN}, 16
s_mul_i32 s{sT2}, s{sT0}, 7
s_sub_u32 s{sT2}, 28, s{sT2}
s_cmp_lt_u32 s{sJ}, s{sT2}
s_cselect_b32 s{sR1}, 1, 0
s_cmp_ge_u32 s{sJ}, 16
s_cselect_b32 s{sRL}, 1, 0
s_min_u32 s{sPAIR}, s{sPAIR}, 223
s_mov_b32 s{sM1}, 0xaaaaaaaa
s_mov_b32 s{sM1 + 1}, 0xaaaaaaaa
s_mov_b32 s{sM2}, 0xcccccccc
s_mov_b32 s{sM2 + 1}, 0xcccccccc""")
    a("s_waitcnt lgkmcnt(0)")
    if OPT["fixdur"] or OPT["stamps"]:
        a("s_mov_b32 s101, s50")
    a(f"""s_lshl_b32 s{sT0}, s{sPAIR}, 2
s_load_dword s{sLDT}, {sp(P_LDT)}, s{sT0}
s_load_dword s{sD0}, {sp(P_DSK)}, s{sT0}
s_load_dwordx2 {sp(sNONCE)}, {sp(P_WS)}, {EPOCH}""")
    kgen_loads()
    for n, p, size in ((S_X0, P_U, 1835008), (S_WS, P_WS, WS_BYTES), (S_OUT, P_OUT, 1835008)):
        a(f"s_mov_b32 s{n}, s{p}\ns_mov_b32 s{n + 1}, s{p + 1}\ns_mov_b32 s{n + 2}, {size}\ns_mov_b32 s{n + 3}, 0x20000")
    for n, p, role in ((S_W1, P_W1, sR1), (S_W2, P_W2, sR2)):
        a(f"s_mov_b32 s{n}, s{p}\ns_mov_b32 s{n + 1}, s{p + 1}\ns_cmp_lg_u32 s{role}, 0\ns_cselect_b32 s{n + 2}, {0 if OPT['now'] & (1 if n == S_W1 else 2) else 7340032}, 0\ns_mov_b32 s{n + 3}, 0x20000")


sAUX = 75


def code_warm(r):
    if not OPT["warm"]:
        return
    a(f"""s_lshl_b32 s{sT0}, s{sJ}, 2
s_add_u32 s{sT0}, s{sT0}, s{sWAVE}
s_mul_i32 s{sT0}, s{sT0}, 640
v_lshl_add_u32 v{r}, v{vLANE}, 7, s{sT0}
s_mov_b32 s{sT1}, ktab-L_entry+8192
v_min_u32 v{r}, s{sT1}, v{r}
s_sub_u32 s28, s{sTAB}, ktab-L_entry
s_subb_u32 s29, s{sTAB + 1}, 0
s_mov_b64 exec, 31
global_load_dword v{r}, v{r}, s[28:29]
s_mov_b64 exec, -1""")


def fill(base, n, r, sidx, stride, tag="st0"):
    a(f"""s_lshl_b32 s{sT0}, s{sidx}, 12
s_lshl_b32 s{sT1}, s{sWAVE}, 10
s_add_u32 s{sT0}, s{sT0}, s{sT1}
s_add_u32 s{sT0}, s{sT0}, {base}""")
    for k in range(4):
        a(f"v_mov_b32 v{r + k}, -1")
    for k in range(n):
        a(f"buffer_store_dwordx4 {vr(r, 4)}, v{vL16}, {srd(S_WS)}, s{sT0} offen sc1", tag=tag)
        if k + 1 < n:
            a(f"s_add_u32 s{sT0}, s{sT0}, {stride}")


def aux_loads():
    a(f"""s_and_b32 s{sAUX}, s{sJ}, 3
s_lshl_b32 s{sAUX}, s{sAUX}, 3
s_add_u32 s{sAUX}, s{sAUX}, s{sX}
s_lshl_b32 s16, s{sAUX}, 2
s_add_u32 s16, s16, s{sWAVE}
s_mul_i32 s{sT1}, s16, {16 * 896}
s_mul_i32 s17, s{sWAVE}, {16 * 912}
s_mov_b32 m0, s17
s_mov_b32 exec_hi, 0xffffff""")
    for k in range(16):
        if k:
            a(f"s_add_u32 m0, m0, 912\ns_add_u32 s{sT1}, s{sT1}, 896")
        a(f"buffer_load_dwordx4 v{vL16}, {srd(S_X0)}, s{sT1} offen lds", res_w=[f"x0"])
    a("s_mov_b64 exec, -1")


def aux_work():
    XR = 8
    a(f"""v_mov_b32 v76, 0
v_mov_b32 v77, 0
v_mov_b32 v78, 0
v_mov_b32 v79, 0
s_lshl_b32 s{sT1}, s16, 7
s_add_u32 s{sT1}, s{sT1}, {ST1}
s_lshl_b32 s18, s{sAUX}, 7
s_add_u32 s18, s18, {ST0}
s_mov_b64 exec, 0xff""")
    a(f"buffer_store_dwordx4 v[76:79], v{vL16}, {srd(S_WS)}, s{sT1} offen sc1", tag="st0")
    a(f"""s_mov_b64 exec, -1
v_and_b32 v2, 15, v{vLANE}
v_lshrrev_b32 v3, 4, v{vLANE}
v_mul_u32_u24 v4, 912, v2
v_lshl_add_u32 v4, v3, 4, v4
v_add_u32 v4, s17, v4
v_lshrrev_b32 v6, 2, v2
v_cmp_eq_u32 vcc, v6, v3
v_bfe_u32 v6, v2, 1, 2
v_lshlrev_b32 v6, 7, v6
v_lshrrev_b32 v7, 3, v2
v_lshl_add_u32 v6, v7, 4, v6
v_and_b32 v7, 1, v2
v_lshl_add_u32 v6, v7, 2, v6
s_lshl_b32 s{sT0}, s{sWAVE}, 5
s_add_u32 s{sT0}, s{sT0}, 60000
v_add_u32 v6, s{sT0}, v6
v_mov_b32 v7, 61024
v_cndmask_b32 v6, v7, v6, vcc
v_lshrrev_b32 v117, 3, v{vLANE}
v_cmp_eq_u32 vcc, s{sWAVE}, v117
v_lshlrev_b32 v117, 12, v117
v_and_b32 v7, 7, v{vLANE}
v_lshl_add_u32 v117, v7, 4, v117
v_mov_b32 v7, {OOB}
v_cndmask_b32 v117, v7, v117, vcc
v_mov_b32 v80, 0x3f803f80
v_mov_b32 v81, 0x3f803f80
v_mov_b32 v82, 0x3f803f80
v_mov_b32 v83, 0x3f803f80""")
    if OPT["stamps"] == 1:
        a.wait_vm0()
    stamp("aux data")
    for k in range(14):
        a(f"ds_read_b128 {vr(XR + 4 * k, 4)}, v4 offset:{64 * k}", res_r=["x0"])
    for k in range(14):
        x = vr(XR + 4 * k, 4)
        a(f"v_mfma_f32_16x16x32_bf16 v[64:67], v[80:83], {x}, {'v[64:67]' if k else 0}")
        a(f"v_mfma_f32_16x16x32_bf16 v[68:71], {x}, {x}, {'v[68:71]' if k else 0}")
    a(f"""v_cndmask_b32 v68, v68, v69, {sp(sM1)}
v_cndmask_b32 v70, v70, v71, {sp(sM1)}
v_cndmask_b32 v68, v68, v70, {sp(sM2)}""")
    a("ds_write2_b32 v6, v64, v68 offset0:0 offset1:2")
    a.barrier()
    a(f"ds_read_b128 v[64:67], v{vL16} offset:60000")
    a(f"buffer_store_dwordx4 v[64:67], v117, {srd(S_WS)}, s18 offen sc1", tag="st0")
    stamp("aux st")
    nonce_take()
    flag_put(0, f"s_add_u32 s{sT0}, s{sAUX}, 224\ns_lshl_b32 s{sT0}, s{sT0}, 6", 72, "st0")


def xt_loads():
    a(f"""s_lshl_b32 s{sT0}, s{sPAIR}, 1
s_lshr_b32 s{sT1}, s{sWAVE}, 1
s_add_u32 s{sT0}, s{sT0}, s{sT1}
s_mul_i32 s{sT1}, s{sT0}, 9363
s_lshr_b32 s{sT1}, s{sT1}, 16
s_mul_i32 s{sT2}, s{sT1}, 7
s_sub_u32 s{sT0}, s{sT0}, s{sT2}
s_lshl_b32 s{sT0}, s{sT0}, 1
s_and_b32 s{sT2}, s{sWAVE}, 1
s_add_u32 s{sT0}, s{sT0}, s{sT2}
s_mul_i32 s{sT2}, s{sT1}, {32 * 896}
s_lshl_b32 s{sT3}, s{sT0}, 6
s_add_u32 s{sT2}, s{sT2}, s{sT3}
v_lshrrev_b32 v2, 2, v{vLANE}
v_mul_u32_u24 v2, 896, v2
v_and_b32 v3, 3, v{vLANE}
v_lshl_add_u32 v2, v3, 4, v2
s_mul_i32 s22, s{sWAVE}, {GST}
s_mov_b32 m0, s22
s_mul_i32 s23, s{sT1}, {BS}""")
    a(f"buffer_load_dwordx4 v2, {srd(S_X0)}, s{sT2} offen lds", res_w=["x0"])
    a(f"s_add_u32 m0, m0, 1024\ns_add_u32 s{sT2}, s{sT2}, {16 * 896}")
    a(f"buffer_load_dwordx4 v2, {srd(S_X0)}, s{sT2} offen lds", res_w=["x0"])
    a(f"""s_lshl_b32 s{sT0}, s{sT0}, 11
s_add_u32 s23, s23, s{sT0}
s_add_u32 s23, s23, {X0}
v_lshrrev_b32 v2, 4, v{vLANE}
v_bfe_u32 v36, v{vLANE}, 2, 2
v_lshl_add_u32 v36, v2, 3, v36
v_lshlrev_b32 v36, 6, v36
v_lshl_add_u32 v36, v3, 3, v36
v_add_u32 v36, s22, v36
v_and_b32 v37, 15, v{vLANE}
v_lshlrev_b32 v37, 6, v37
v_lshl_add_u32 v37, v2, 4, v37""")


def xt_work():
    for u in range(2):
        for j in range(2):
            a(f"ds_read_b64_tr_b16 {vr(40 + 4 * u + 2 * j, 2)}, v36 offset:{j * 256 + u * 32}", res_r=["x0"])
    for u in range(2):
        a(f"buffer_store_dwordx4 {vr(40 + 4 * u, 4)}, v37, {srd(S_WS)}, s23 offen offset:{1024 * u} sc1", tag="st0")


def xt_poll_addr(ra, t):
    a(f"""s_lshl_b32 s{sT0}, s{sWAVE}, 4
v_and_b32 v{t}, 15, v{vLANE}
v_add_u32 v{t}, s{sT0}, v{t}
v_mul_u32_u24 v{t}, 7, v{t}
s_lshr_b32 s{sT0}, s{sPAIR}, 5
v_add_u32 v{t}, s{sT0}, v{t}
v_lshrrev_b32 v{t}, 1, v{t}
s_lshl_b32 s{sT0}, s{sWAVE}, 3
s_add_u32 s{sT0}, s{sT0}, 224
v_and_b32 v{ra}, 7, v{vLANE}
v_add_u32 v{ra}, s{sT0}, v{ra}
v_cmp_gt_u32 vcc, 16, v{vLANE}
v_cndmask_b32 v{ra}, v{ra}, v{t}, vcc""")


def e1_poll_addr(ra):
    a(f"s_lshl_b32 s{sT0}, s{sWAVE}, 6\nv_add_u32 v{ra}, s{sT0}, v{vLANE}")


def nonce_take():
    a(f"s_add_u32 s{sNONCE}, s{sNONCE}, 1")
    a(f"s_addc_u32 s{sNONCE + 1}, s{sNONCE + 1}, 0")


def nonce_retire():
    l = label("nr")
    a(f"s_or_b32 s{sT0}, s2, s{sWAVE}")
    a(f"s_cmp_lg_u32 s{sT0}, 32")
    a(f"s_cbranch_scc1 {l}")
    a(f"v_mov_b32 v110, s{sNONCE}\nv_mov_b32 v111, s{sNONCE + 1}\ns_mov_b64 exec, 1")
    a(f"buffer_store_dwordx2 v[110:111], off, {srd(S_WS)}, 0 offset:{EPOCH} sc1", optional=True)
    a("s_mov_b64 exec, -1")
    a(f"{l}:")


def flag_put(edge, sprod, r, tag):
    a(f"s_lshl_b32 s{sT0}, s{sprod}, 6" if isinstance(sprod, int) else sprod)
    a(f"""s_lshl_b32 s{sT1}, s{sWAVE}, 15
s_add_u32 s{sT0}, s{sT0}, s{sT1}
s_add_u32 s{sT0}, s{sT0}, {FL + edge * 0x20000}
v_lshlrev_b32 v{r + 4}, 12, v{vLANE}
v_and_b32 v{r + 4}, 0x4000, v{r + 4}
v_and_b32 v{r}, 3, v{vLANE}
v_lshl_add_u32 v{r + 4}, v{r}, 4, v{r + 4}
v_mov_b32 v{r}, s{sNONCE}
v_mov_b32 v{r + 1}, s{sNONCE + 1}
v_mov_b32 v{r + 2}, s{sNONCE}
v_mov_b32 v{r + 3}, s{sNONCE + 1}""")
    a.wait_tag(tag)
    a.barrier()
    a("s_mov_b64 exec, 0xff")
    a(f"buffer_store_dwordx4 {vr(r, 4)}, v{r + 4}, {srd(S_WS)}, s{sT0} offen sc1", tag="flag")
    a("s_mov_b64 exec, -1")


def emode(e):
    return OPT["em"][e - 1]


def hinted(e):
    return emode(e) in "HS"


def sentinel(e):
    return emode(e) == "S"


def flagged(e):
    return emode(e) in "FH"


def armed(layer):
    return any(sentinel(e + 4 * layer) for e in (1, 2, 3))


def wait_edge(e, r, ra_full, ra_samp):
    if hinted(e):
        poll_issue(e + 10, r, ra_samp)
        poll_take(r, ra_samp)
    else:
        a.wait_tag("flag")
    if flagged(e):
        poll_issue(e, r, ra_full)
        poll_take(r, ra_full)


def hint_prep(edge, sprod, r):
    a(f"s_lshl_b32 s{sT0}, s{sprod}, 6" if isinstance(sprod, int) else sprod)
    a(f"""s_lshl_b32 s{sT1}, s{sWAVE}, 15
s_add_u32 s{sT0}, s{sT0}, s{sT1}
s_add_u32 s{sT0}, s{sT0}, {FL + edge * 0x20000}
v_lshlrev_b32 v{r + 4}, 12, v{vLANE}
v_and_b32 v{r + 4}, 0x4000, v{r + 4}
v_and_b32 v{r}, 3, v{vLANE}
v_lshl_add_u32 v{r + 4}, v{r}, 4, v{r + 4}
v_add_u32 v{r + 4}, s{sT0}, v{r + 4}
v_mov_b32 v{r}, s{sNONCE}
v_mov_b32 v{r + 1}, s{sNONCE + 1}
v_mov_b32 v{r + 2}, s{sNONCE}
v_mov_b32 v{r + 3}, s{sNONCE + 1}""")


def hint_put(r):
    a("s_mov_b64 exec, 0xff")
    a(f"buffer_store_dwordx4 {vr(r, 4)}, v{r + 4}, {srd(S_WS)}, 0 offen sc1", tag="hint")
    a("s_mov_b64 exec, -1")


def poll_issue(edge, r, ra=None):
    ra = r + 2 if ra is None else ra
    a(f"""s_lshl_b32 s{sT3}, s{sX}, 14
s_add_u32 s{sT3}, s{sT3}, {FL + edge * 0x20000}
v_lshl_add_u32 v{ra}, v{ra}, 6, s{sT3}
buffer_load_dwordx2 {vr(r, 2)}, v{ra}, {srd(S_WS)}, 0 offen sc1""")


def poll_take(r, ra=None):
    ra = r + 2 if ra is None else ra
    ok, lp = label("pok"), label("plp")
    a(f"v_cmp_ne_u64 vcc, {sp(sNONCE)}, {vr(r, 2)}")
    a(f"s_cbranch_vccz {ok}")
    a(f"s_mov_b32 s{sCNT}, 0")
    a(f"{lp}:")
    a(f"buffer_load_dwordx2 {vr(r, 2)}, v{ra}, {srd(S_WS)}, 0 offen sc1")
    a("s_waitcnt vmcnt(0)")
    a(f"v_cmp_ne_u64 vcc, {sp(sNONCE)}, {vr(r, 2)}")
    a(f"s_add_u32 s{sCNT}, s{sCNT}, 1")
    a(f"s_cbranch_vccz {ok}")
    a(f"s_cmp_lt_u32 s{sCNT}, 0x100000")
    a(f"s_cbranch_scc1 {lp}")
    a(f"{ok}:")


sW1O, sW2O = 98, 99
sROT1, sROT2 = 33, 35
sW1E, sW2E = 78, 79


def w_setup():
    a(f"""v_lshrrev_b32 v2, 3, v{vLANE}
v_and_b32 v3, 7, v{vLANE}
v_bfe_u32 v4, v{vLANE}, 4, 1
v_lshlrev_b32 v4, 2, v4
v_xor_b32 v3, v3, v4
v_lshlrev_b32 v3, 4, v3
v_mul_u32_u24 v{vD1}, 3584, v2
v_add_u32 v{vD1}, v{vD1}, v3
v_lshl_add_u32 v{vD2}, v2, 12, v3
v_bfe_u32 v2, v{vLANE}, 2, 2
v_lshrrev_b32 v3, 5, v{vLANE}
v_bfe_u32 v4, v{vLANE}, 4, 1
v_and_b32 v5, 3, v{vLANE}
v_lshlrev_b32 v5, 3, v5
v_lshl_add_u32 v5, v4, 5, v5
v_lshrrev_b32 v4, 1, v2
v_lshl_add_u32 v5, v4, 6, v5
s_lshr_b32 s{sT0}, s{sWAVE}, 1
s_lshl_b32 s{sT0}, s{sT0}, 6
v_xor_b32 v5, s{sT0}, v5
v_lshl_add_u32 v5, v2, 7, v5
s_mul_i32 s{sT1}, s{sWAVE}, 24576
s_add_u32 s{sT1}, s{sT1}, {W2L}
v_add_u32 v5, s{sT1}, v5
v_lshl_add_u32 v{vT1a}, v3, 10, v5
v_xor_b32 v{vT1b}, 64, v{vT1a}
v_lshl_add_u32 v{vT2a}, v3, 9, v5
v_xor_b32 v{vT2b}, 64, v{vT2a}
s_mul_i32 s{sW1O}, s{sWAVE}, {512 * 3584}
s_lshl_b32 s{sT0}, s{sNT}, 7
s_add_u32 s{sW1O}, s{sW1O}, s{sT0}
s_mul_i32 s{sW2O}, s{sWAVE}, {448 * 4096}
s_lshl_b32 s{sT0}, s{sST}, 7
s_add_u32 s{sW2O}, s{sW2O}, s{sT0}
s_mov_b32 s{sWOFF}, s{sT1}""")
    if OPT["rot"] and OPT["map18"] == 1:
        if OPT["rot"] == 2:
            a(f"""s_add_u32 s{sROT1}, s{sDT1}, s{sX}
s_and_b32 s{sROT1}, s{sROT1}, 7
s_add_u32 s{sROT2}, s{sDT2}, s{sX}
s_cmp_ge_u32 s{sROT2}, 7
s_cselect_b32 s{sT0}, 7, 0
s_sub_u32 s{sROT2}, s{sROT2}, s{sT0}""")
        else:
            a(f"s_mov_b32 s{sROT1}, s{sDT1}\ns_mov_b32 s{sROT2}, s{sDT2}")
    elif OPT["rot"]:
        a(f"""s_and_b32 s{sT0}, s{sDT1}, 3
s_lshl_b32 s{sT0}, s{sT0}, 1
s_lshr_b32 s{sT1}, s{sDT1}, 2
s_add_u32 s{sT0}, s{sT0}, s{sT1}
s_and_b32 s{sROT1}, s{sT0}, 7
s_and_b32 s{sT0}, s{sDT2}, 3
s_lshl_b32 s{sT0}, s{sT0}, 1
s_lshr_b32 s{sT1}, s{sDT2}, 2
s_add_u32 s{sT0}, s{sT0}, s{sT1}
s_min_u32 s{sROT2}, s{sT0}, 6""")
        if OPT["map18"] == 2:
            a(f"s_mov_b32 s{sROT2}, s{sDT2}")
    else:
        a(f"s_mov_b32 s{sROT1}, 0\ns_mov_b32 s{sROT2}, 0")
    a(f"""s_add_u32 s{sW1E}, s{sW1O}, {512 * 3584}
s_mul_i32 s{sT0}, s{sROT1}, {64 * 3584}
s_add_u32 s{sW1O}, s{sW1O}, s{sT0}
s_add_u32 s{sW2E}, s{sW2O}, {448 * 4096}
s_mul_i32 s{sT0}, s{sROT2}, {64 * 4096}
s_add_u32 s{sW2O}, s{sW2O}, s{sT0}""")


WORDER = list(range(0, 4)) + list(range(32, 36)) + list(range(4, 32)) + list(range(36, 60))


def w_dma(pos, half):
    slot = pos % 12
    n = WORDER[pos]
    g = [Ins(f"s_add_u32 m0, s{sWOFF}, {slot * 2048 + half * 1024}")]
    if n < 32:
        g.append(Ins(f"s_add_u32 s{sW1O}, s{sW1O}, {8 * 3584}") if (n or half) else Ins("s_nop 0"))
        if n and n % 4 == 0 and half == 0:
            g += [Ins(f"s_cmp_eq_u32 s{sW1O}, s{sW1E}"), Ins(f"s_cselect_b32 s3, {512 * 3584}, 0"), Ins(f"s_sub_u32 s{sW1O}, s{sW1O}, s3")]
        g.append(Ins(f"buffer_load_dwordx4 v{vD1}, {srd(S_W1)}, s{sW1O} offen lds", res_w=[f"slot{slot}"]))
    else:
        g.append(Ins(f"s_add_u32 s{sW2O}, s{sW2O}, {8 * 4096}") if (n > 32 or half) else Ins("s_nop 0"))
        if n > 32 and n % 4 == 0 and half == 0:
            g += [Ins(f"s_cmp_eq_u32 s{sW2O}, s{sW2E}"), Ins(f"s_cselect_b32 s3, {448 * 4096}, 0"), Ins(f"s_sub_u32 s{sW2O}, s{sW2O}, s3")]
        g.append(Ins(f"buffer_load_dwordx4 v{vD2}, {srd(S_W2)}, s{sW2O} offen lds", res_w=[f"slot{slot}"]))
    return g


def w_tr(pos):
    slot = pos % 12
    n = WORDER[pos]
    g = []
    for nb in range(2):
        for j in range(2):
            if n < 32:
                r = (n * 2 + nb) * 4 + 2 * j
                g.append(Ins(f"ds_read_b64_tr_b16 a[{r}:{r + 1}], v{(vT1a, vT1b)[nb]} offset:{slot * 2048 + j * 512}", res_r=[f"slot{slot}"]))
            else:
                r = 128 + ((n - 32) * 2 + nb) * 4 + 2 * j
                g.append(Ins(f"ds_read_b64_tr_b16 v[{r}:{r + 1}], v{(vT2a, vT2b)[nb]} offset:{slot * 2048 + j * 1024}", res_r=[f"slot{slot}"]))
    return g


def w_all_upfront():
    for n in range(12):
        a.put(w_dma(n, 0)); a.put(w_dma(n, 1))
    for n in range(48):
        a.put(w_tr(n))
        if n >= 1:
            a.put(w_dma(n + 11, 0)); a.put(w_dma(n + 11, 1))
    a.put(w_dma(59, 0)); a.put(w_dma(59, 1))
    a.wait_vm0()
    a.wait_lgkm0()


PR = 56
TAB = 104


def kgen_loads():
    a(f"""s_lshl_b32 s{sT0}, s{sPAIR}, 10
s_lshl_b32 s{sT1}, s{sWAVE}, 8
s_add_u32 s{sT0}, s{sT0}, s{sT1}
v_lshl_add_u32 v3, v{vLANE}, 2, s{sT0}""")
    for k, p in enumerate((P_ARE, P_AIM, P_BRE, P_BIM, P_CRE, P_CIM)):
        a(f"global_load_dword v{PR + k}, v3, {sp(p)}")


def kgen_table_addr():
    l = label("pc")
    a(f"s_getpc_b64 {sp(sTAB)}")
    a(f"{l}:")
    a(f"s_add_u32 s{sTAB}, s{sTAB}, ktab-{l}")
    a(f"s_addc_u32 s{sTAB + 1}, s{sTAB + 1}, 0")


def kgen_table_load():
    kgen_table_addr()
    a(f"s_lshr_b32 s{sT0}, s{sWAVE}, 1\ns_lshl_b32 s{sT0}, s{sT0}, 5\nv_lshl_add_u32 v75, v0, 5, s{sT0}")


KBG = []


def kgen(hooks):
    F = {e: 2 * e for e in range(1, 8)}
    Qr = {1: 16, 2: 18, 3: 20, 4: 22}
    QN = [24, 26]
    Z1, Z2, C0, C1 = 28, 30, 32, 34
    CN = [36, 38]
    T0, T1 = 62, 64
    CV = [66, 67, 68, 69]
    A2, B2, DT = 70, 71, 72
    ACC = 76
    QF = 88
    PF = 40
    vG, vF = 73, 74
    a(f"""s_mul_i32 s{sT0}, s{sWAVE}, {GST}
v_lshl_add_u32 v{vG}, v{vLANE}, 2, s{sT0}
v_and_b32 v2, 15, v{vLANE}
v_mul_u32_u24 v2, {GROW}, v2
v_lshrrev_b32 v3, 4, v{vLANE}
v_lshl_add_u32 v2, v3, 4, v2
v_add_u32 v{vF}, s{sT0}, v2""")
    a.begin()
    a(f"""s_lshr_b32 s{sT0}, s{sWAVE}, 1
s_lshl_b32 s{sT0}, s{sT0}, 4
s_lshr_b32 s{sT0}, s{sLDT}, s{sT0}
s_lshl_b32 s{sT0}, s{sT0}, 16
v_mov_b32 v2, {f32(math.log2(math.e))}
v_mul_f32 v2, s{sT0}, v2
v_exp_f32 v2, v2
v_cvt_pk_bf16_f32 v2, v2, v2
v_lshlrev_b32 v{DT}, 16, v2
s_and_b32 s{sD1}, s{sD0}, 0xffff0000
s_lshl_b32 s{sD0}, s{sD0}, 16""")
    cvi = [0]

    def hook(name):
        if name is not None and name not in hooks:
            return
        a_body = space_ds(a.end(), OPT["lag"], OPT["gap"])
        m, rest = merge(a_body, KBG[:], 20, OPT["ev_kg"])
        del KBG[:]
        a.put(m)
        put_all(rest)
        if name is not None:
            hooks[name]()
            a.begin()

    def row(r, src, neg=False):
        c = CV[cvi[0] % 4]
        cvi[0] += 1
        a(f"v_cvt_pk_bf16_f32 v{c}, v{src}, {'-' if neg else ''}v{src + 1}")
        a(f"ds_write_b32 v{vG}, v{c} offset:{r * GROW}")

    def reads(dst, tile):
        for ks in range(4):
            a(f"ds_read_b128 {vr(dst + 4 * ks, 4)}, v{vF} offset:{tile * 16 * GROW + ks * 64}")

    def mfmas(t, first):
        for ks in range(4):
            c = "0" if (first and ks == 0) else vr(ACC + 4 * t, 4)
            a(f"v_mfma_f32_16x16x32_bf16 {vr(ACC + 4 * t, 4)}, {vr(PF + 4 * ks, 4)}, {vr(QF + 4 * ks, 4)}, {c}")

    def direct(d, scale):
        if scale != 1:
            a(f"v_mul_f32 v{T0}, {f32(scale)}, v{A2}")
            a(f"v_mul_f32 v{T1}, {f32(scale)}, v{B2}")
            x, y = T0, T1
        else:
            x, y = A2, B2
        a(f"v_fract_f32 v{T1}, v{y}")
        a(f"v_exp_f32 v{T0}, v{x}")
        a(f"v_cos_f32 v{d}, v{T1}")
        a(f"v_sin_f32 v{d + 1}, v{T1}")
        a(f"v_pk_mul_f32 {vr(d, 2)}, {vr(d, 2)}, {vr(T0, 2)} op_sel_hi:[1,0]")

    for rd in range(2):
        def up(d, s):
            a(f"v_lshlrev_b32 v{d}, 16, v{s}" if rd == 0 else f"v_and_b32 v{d}, 0xffff0000, v{s}")
        up(A2, PR); up(B2, PR + 1)
        up(QN[0], PR + 2); up(QN[0] + 1, PR + 3)
        up(QN[1], PR + 4); up(QN[1] + 1, PR + 5)
        a(f"v_mul_f32 v{A2}, v{DT}, v{A2}")
        a(f"v_mul_f32 v{B2}, v{DT}, v{B2}")
        a(f"v_pk_mul_f32 {vr(QN[0], 2)}, {vr(QN[0], 2)}, {vr(DT, 2)} op_sel_hi:[1,0]")
        a(f"v_mul_f32 v{A2}, {f32(math.log2(math.e))}, v{A2}")
        a(f"v_mul_f32 v{B2}, {f32(1 / (2 * math.pi))}, v{B2}")
        cmul2((C0, QN[1], QN[0]))
        direct(F[1], 1)
        if rd == 1:
            mfmas(2, True)
        direct(Z1, 128)
        hook(5 * rd)
        cmul2((F[2], F[1], F[1]), (Z2, Z1, Z1))
        cmul2((F[4], F[2], F[2]), (F[3], F[2], F[1]))
        cmul2((Qr[1], F[4], F[4]), (C1, C0, Z1))
        a(f"v_mov_b32 v{CV[3]}, 0x3f80")
        a(f"ds_write_b32 v{vG}, v{CV[3]}")
        cmul2((Qr[2], Qr[1], Qr[1]), (F[5], F[4], F[1]))
        row(1, Qr[1], True)
        cmul2((Qr[3], Qr[2], Qr[1]), (Qr[4], Qr[2], Qr[2]))
        row(2, Qr[2], True)
        cmul2((F[6], F[4], F[2]), (F[7], F[4], F[3]))
        row(3, Qr[3], True)
        row(4, Qr[4], True)
        cur = {1: Qr[1], 2: Qr[2], 3: Qr[3], 0: Qr[4]}
        free = list(QN) + [CN[0]]
        j = 5
        while j < 16:
            js = [j] + ([j + 1] if j + 1 < 16 else [])
            ps = []
            for jj in js:
                d = free.pop(0)
                ps.append((d, cur[jj % 4], Qr[4]))
            cmul2(*ps)
            for jj, p in zip(js, ps):
                if cur[jj % 4] != Qr[4]:
                    free.append(cur[jj % 4])
                cur[jj % 4] = p[0]
                row(jj, p[0], True)
            j += 2
        reads(QF, 0)
        hook(5 * rd + 1)
        TA, TB = QN
        row(16, C0); row(24, C1)
        for e in range(1, 8):
            cmul2((TA, C0, F[e]), (TB, C1, F[e]))
            row(16 + e, TA); row(24 + e, TB)
        reads(PF, 1)
        hook(5 * rd + 2)
        ca, cb = C0, C1
        na, nb_ = CN
        def adv():
            nonlocal ca, cb, na, nb_
            cmul2((na, ca, Z2), (nb_, cb, Z2))
            ca, cb, na, nb_ = na, nb_, ca, cb
        adv()
        row(32, ca); row(36, cb)
        for e in range(1, 4):
            cmul2((TA, ca, F[2 * e]), (TB, cb, F[2 * e]))
            row(32 + e, TA); row(36 + e, TB)
        mfmas(0, rd == 0)
        for k in range(2):
            adv()
            row(40 + 4 * k, ca); row(42 + 4 * k, cb)
            cmul2((TA, ca, F[4]), (TB, cb, F[4]))
            row(41 + 4 * k, TA); row(43 + 4 * k, TB)
        reads(PF, 2)
        hook(5 * rd + 3)
        for k in range(4):
            adv()
            row(48 + 2 * k, ca); row(49 + 2 * k, cb)
        cmul2((na, ca, Z2))
        row(56, na)
        mfmas(1, rd == 0)
        reads(PF, 3)
        hook(5 * rd + 4)
    hook(None)
    a(f"s_mul_i32 s{sT0}, s{sWAVE}, {GST}")
    a(f"v_add_u32 v{vF}, s{sT0}, v{vL16}")
    a(f"v_mov_b32 v{CV[0]}, 0")
    for k in range(8):
        a(f"v_and_b32 v{2 + 2 * k}, 0xffff, v{TAB + k}")
        a(f"v_lshrrev_b32 v{3 + 2 * k}, 16, v{TAB + k}")
    for t in range(2):
        a(f"ds_write_b128 v{vF}, {vr(ACC + 4 * t, 4)} offset:{TOFF + t * 1024}")
    mfmas(2, False)
    a(f"ds_write_b32 v{vG}, v{CV[0]} offset:{TOFF + 3072}")
    a("v_and_b32 v18, 0xffff, v0\nv_lshrrev_b32 v19, 16, v0\nv_and_b32 v20, 0xffff, v1")
    a(f"ds_write_b128 v{vF}, {vr(ACC + 8, 4)} offset:{TOFF + 2048}")


def kzero(r):
    a(f"""v_mov_b32 v{r}, 0
v_mov_b32 v{r + 1}, 0
v_mov_b32 v{r + 2}, 0
v_mov_b32 v{r + 3}, 0
v_bfe_u32 v{r + 4}, v{vLANE}, 1, 3
v_mul_u32_u24 v{r + 4}, {KST}, v{r + 4}
v_and_b32 v{r + 5}, 1, v{vLANE}
v_lshl_add_u32 v{r + 4}, v{r + 5}, 4, v{r + 4}
s_and_b32 s{sT0}, s{sWAVE}, 1
s_mul_i32 s{sT0}, s{sT0}, {UST}
v_add_u32 v{r + 5}, s{sT0}, v{vL16}""")
    return [f"ds_write_b128 v{r + 4}, {vr(r, 4)} offset:4096", f"ds_write_b128 v{r + 5}, {vr(r, 4)} offset:{UB}"]


def kaddr(r):
    a(f"""s_lshr_b32 s{sT0}, s{sWAVE}, 1
s_and_b32 s{sT1}, s{sWAVE}, 1
s_lshl_b32 s{sT1}, s{sT1}, 11
v_lshl_add_u32 v{r + 3}, v{vLANE}, 5, s{sT1}""")
    for c in range(4):
        a(f"s_cmp_lg_u32 s{sT0}, 0")
        a(f"s_cselect_b32 s{sT2}, {KSLOT[1][c]}, {KSLOT[0][c]}")
        a(f"s_mul_i32 s{sT2}, s{sT2}, {KST}")
        a(f"v_add_u32 v{r + c}, s{sT2}, v{r + 3}")


def kexpand(mid):
    AD, VAL = 2, 22
    P0, P1, P2, P3 = 2, 12, 88, 96
    a.barrier()
    for k in range(19):
        a(f"ds_read2st64_b32 {vr(VAL + 2 * k, 2)}, v{AD + k} offset0:{TOFF // 256} offset1:{TOFF // 256 + GST // 256}")
    mid()
    kaddr(60)
    zw = kzero(104)
    for k in range(19):
        a(f"v_add_f32 v{VAL + 2 * k}, v{VAL + 2 * k}, v{VAL + 2 * k + 1}")
        if k:
            a(f"v_cvt_pk_bf16_f32 v{(P0 if k & 1 else P1) + (k - 1) // 2}, v{VAL + 2 * k - 2}, v{VAL + 2 * k}")
    a.barrier()
    a.begin()
    for l in zw:
        a(l)
    for c, P in ((0, P0), (1, P1)):
        a(f"ds_write_b128 v{60 + c}, {vr(P, 4)}")
        a(f"ds_write_b128 v{60 + c}, {vr(P + 4, 4)} offset:16")
    for c, P, src in ((2, P2, P0), (3, P3, P1)):
        for i in range(4):
            a(f"v_pk_mov_b32 {vr(P + 2 * i, 2)}, {vr(src + 2 * i, 2)}, {vr(src + 2 * i + 2, 2)} op_sel:[1,0]")
        a(f"ds_write_b128 v{60 + c}, {vr(P, 4)}")
        a(f"ds_write_b128 v{60 + c}, {vr(P + 4, 4)} offset:16")
    return a.end()


def kcopies():
    R, E, M = 2, 12, 22
    kaddr(40)
    a(f"""ds_read_b128 {vr(R, 4)}, v40
ds_read_b128 {vr(R + 4, 4)}, v40 offset:16
ds_read_b64 {vr(R + 8, 2)}, v40 offset:32""")
    for l in kzero(32):
        a(l)
    for i in range(9):
        a(f"v_alignbit_b32 v{E + i}, v{R + i + 1}, v{R + i}, 16")
    a(f"ds_write_b128 v41, {vr(E, 4)}")
    a(f"ds_write_b128 v41, {vr(E + 4, 4)} offset:16")
    for i in range(4):
        a(f"v_pk_mov_b32 {vr(M + 2 * i, 2)}, {vr(R + 2 * i, 2)}, {vr(R + 2 * i + 2, 2)} op_sel:[1,0]")
    a(f"ds_write_b128 v42, {vr(M, 4)}")
    a(f"ds_write_b128 v42, {vr(M + 4, 4)} offset:16")
    for i in range(4):
        a(f"v_pk_mov_b32 {vr(R + 2 * i, 2)}, {vr(E + 2 * i, 2)}, {vr(E + 2 * i + 2, 2)} op_sel:[1,0]")
    a(f"ds_write_b128 v43, {vr(R, 4)}")
    a(f"ds_write_b128 v43, {vr(R + 4, 4)} offset:16")


GX = 80
CS = 64
cvA, cvB, cvZ, cvXW, cvXR, cvO, cvU, cvX, cvH, cvP = 112, 113, 114, 115, 116, 117, 118, 119, 100, 108
STUBS = []


def conv_poll1():
    r = cvP
    a(f"""v_lshrrev_b32 v{r}, 3, v{vLANE}
v_min_u32 v{r}, 6, v{r}
v_and_b32 v{r + 1}, 7, v{vLANE}
v_lshl_add_u32 v{r + 2}, v{r}, 5, v{r + 1}
s_lshl_b32 s{sT0}, s{sWAVE}, 3
v_add_u32 v{r + 2}, s{sT0}, v{r + 2}
v_and_b32 v{r + 1}, 7, v{vLANE}
v_min_u32 v{r}, 6, v{r + 1}
v_lshl_add_u32 v{r + 3}, v{r}, 5, v{r + 1}
v_add_u32 v{r + 3}, s{sT0}, v{r + 3}""")


def conv_loads():
    for p in range(4):
        a(f"buffer_load_dwordx4 {vr(CS + 4 * p, 4)}, v{vL16}, {srd(S_WS)}, s{16 + p} offen sc1")
    a(f"buffer_load_dwordx4 {vr(GX, 4)}, v{cvX}, {srd(S_WS)}, s20 offen sc1")
    a(f"buffer_load_dwordx4 {vr(GX + 4, 4)}, v{cvX}, {srd(S_WS)}, s20 offen offset:64 sc1")


def conv_setup(layer):
    a(f"""s_mov_b32 s{sCA}, {f32(1.0 / 448)}
s_mov_b32 s{sCB}, {f32(1e-5)}
s_lshl_b32 s{sT0}, s{sWAVE}, 10
v_add_u32 v{cvU}, s{sT0}, v{vL16}
s_lshr_b32 s{sT0}, s{sWAVE}, 1
s_and_b32 s{sT1}, s{sWAVE}, 1
v_and_b32 v8, 15, v{vLANE}
v_lshrrev_b32 v9, 4, v{vLANE}
v_not_b32 v10, v8
v_and_b32 v10, 3, v10""")
    for s in range(4):
        a(f"s_cmp_lg_u32 s{sT0}, 0")
        a(f"s_cselect_b32 s{sT2}, {KSLOT[1][s]}, {KSLOT[0][s]}")
        a(f"s_mul_i32 s{sT2}, s{sT2}, {KST}")
        if s == 0:
            a(f"v_mov_b32 v11, s{sT2}")
        else:
            a(f"v_mov_b32 v12, s{sT2}\nv_cmp_eq_u32 vcc, {s}, v10\nv_cndmask_b32 v11, v11, v12, vcc")
    a(f"""v_add_u32 v10, v10, v8
v_lshlrev_b32 v12, 3, v9
v_sub_u32 v12, v12, v10
v_lshl_add_u32 v11, v12, 1, v11
""")
    a(f"""s_lshl_b32 s{sT3}, s{sT1}, 8
s_sub_u32 s{sT2}, {2 * 2031 - 64 * 59}, s{sT3}
v_add_u32 v{cvA}, s{sT2}, v11
s_mul_i32 s{sT2}, s{sT0}, {UST}
s_sub_u32 s{sT2}, s{sT2}, s{sT3}
s_add_u32 s{sT2}, s{sT2}, {UB + UPAD - 2 * 112}
v_lshlrev_b32 v12, 5, v8
v_lshl_add_u32 v13, v9, 4, v12
v_add_u32 v{cvB}, s{sT2}, v13
s_lshl_b32 s{sT2}, s{sWAVE}, 11
v_lshl_add_u32 v13, v9, 3, v12
v_add_u32 v{cvZ}, s{sT2}, v13
s_xor_b32 s{sT2}, s{sWAVE}, 1
s_lshl_b32 s{sT2}, s{sT2}, 12
v_add_u32 v{cvXW}, s{sT2}, v{vL16}
s_lshl_b32 s{sT2}, s{sWAVE}, 12
v_add_u32 v{cvXR}, s{sT2}, v{vL16}
v_and_b32 v10, 1, v9
v_lshlrev_b32 v10, 3, v10
v_lshrrev_b32 v11, 1, v8
v_add_u32 v10, v10, v11
v_mul_u32_u24 v10, {BS}, v10
v_and_b32 v11, 1, v8
v_lshl_add_u32 v10, v11, 5, v10
v_lshrrev_b32 v11, 1, v9
v_lshl_add_u32 v{cvO}, v11, 4, v10
s_mul_i32 s{sT1}, s{sT1}, {32 * BS}
s_lshl_b32 s{sT2}, s{sPAIR}, 1
s_add_u32 s{sT0}, s{sT0}, s{sT2}
s_lshl_b32 s{sT0}, s{sT0}, 6
s_add_u32 s{sT0}, s{sT0}, s{sT1}
s_add_u32 s13, s{sT0}, {X1 if layer == 0 else X3}
s_add_u32 s21, s13, {16 * BS}""" if OPT["cv"] else f"""v_add_u32 v{cvA}, {2 * 2031 - 64 * 63}, v11
s_mul_i32 s{sT2}, s{sT0}, {UST}
s_lshl_b32 s{sT3}, s{sT1}, 9
s_add_u32 s{sT2}, s{sT2}, s{sT3}
s_add_u32 s{sT2}, s{sT2}, {UB + UPAD - 2 * 496}
v_lshlrev_b32 v12, 5, v8
v_lshl_add_u32 v13, v9, 4, v12
v_add_u32 v{cvB}, s{sT2}, v13
s_lshl_b32 s{sT2}, s{sT0}, 12
s_add_u32 s{sT2}, s{sT2}, s{sT3}
v_lshl_add_u32 v13, v9, 3, v12
v_add_u32 v{cvZ}, s{sT2}, v13
v_and_b32 v10, 1, v9
v_lshlrev_b32 v10, 4, v10
v_lshrrev_b32 v11, 1, v8
v_add_u32 v10, v10, v11
v_mul_u32_u24 v10, {BS}, v10
v_and_b32 v11, 1, v8
v_lshl_add_u32 v10, v11, 5, v10
v_lshrrev_b32 v11, 1, v9
v_lshl_add_u32 v{cvO}, v11, 4, v10
s_mul_i32 s{sT1}, s{sT1}, {8 * BS}
s_lshl_b32 s{sT2}, s{sPAIR}, 1
s_add_u32 s{sT0}, s{sT0}, s{sT2}
s_lshl_b32 s{sT0}, s{sT0}, 6
s_add_u32 s{sT0}, s{sT0}, s{sT1}
s_add_u32 s13, s{sT0}, {X1 if layer == 0 else X3}
s_add_u32 s21, s13, {32 * BS}""")
    a(f"""s_lshl_b32 s16, s{sWAVE}, 10
s_add_u32 s16, s16, {ST0 if layer == 0 else ST1}
s_add_u32 s17, s16, 4096
s_add_u32 s18, s16, 8192
s_add_u32 s19, s16, 12288
s_mul_i32 s20, s{sWAVE}, {16 * BS}
s_lshl_b32 s{sT2}, s{sPAIR}, 7
s_add_u32 s20, s20, s{sT2}
s_add_u32 s20, s20, {X0 if layer == 0 else X2}
v_lshrrev_b32 v10, 2, v{vLANE}
v_mul_u32_u24 v10, {BS}, v10
v_and_b32 v11, 3, v{vLANE}
v_lshl_add_u32 v{cvX}, v11, 4, v10""")


cXF, cUF, cAL, cBE, cUP = 0, 16, 32, 40, 48


def conv_pro(layer):
    XF, UF, AL, BE, UP = cXF, cUF, cAL, cBE, cUP
    for p in range(4):
        S = CS + 4 * p
        a(f"v_pk_mul_f32 {vr(S, 2)}, {vr(S, 2)}, {sp(sCA)} op_sel_hi:[1,0]")
    for p in range(4):
        S = CS + 4 * p
        a(f"v_pk_fma_f32 {vr(BE + 2 * p, 2)}, {vr(S, 2)}, {vr(S, 2)}, {sp(sCB)} op_sel_hi:[1,1,0] neg_lo:[1,0,0] neg_hi:[1,0,0]")
    for p in range(4):
        Q = CS + 4 * p + 2
        a(f"v_pk_fma_f32 {vr(Q, 2)}, {vr(Q, 2)}, {sp(sCA)}, {vr(BE + 2 * p, 2)} op_sel_hi:[1,0,1]")
    for p in range(4):
        Q = CS + 4 * p + 2
        a(f"v_max_f32 v{Q}, s{sCB}, v{Q}\nv_max_f32 v{Q + 1}, s{sCB}, v{Q + 1}")
    for p in range(4):
        Q = CS + 4 * p + 2
        a(f"v_rsq_f32 v{AL + 2 * p}, v{Q}\nv_rsq_f32 v{AL + 2 * p + 1}, v{Q + 1}")
    for k in range(8):
        unpack(XF + 2 * k, XF + 2 * k + 1, GX + k)
    for p in range(4):
        S = CS + 4 * p
        a(f"v_pk_mul_f32 {vr(BE + 2 * p, 2)}, {vr(S, 2)}, {vr(AL + 2 * p, 2)} neg_lo:[1,0] neg_hi:[1,0]")
    for c in range(2):
        for p in range(4):
            a(f"v_pk_fma_f32 {vr(UF + 8 * c + 2 * p, 2)}, {vr(XF + 8 * c + 2 * p, 2)}, {vr(AL + 2 * p, 2)}, {vr(BE + 2 * p, 2)}")
        for p in range(4):
            a(f"v_cvt_pk_bf16_f32 v{UP + 4 * c + p}, v{UF + 8 * c + 2 * p}, v{UF + 8 * c + 2 * p + 1}")
        a(f"ds_write_b128 v{cvU}, {vr(UP + 4 * c, 4)} offset:{UB + c * UST + UPAD}")
    if OPT["cv"]:
        for i in a.capture(conv_z, 88):
            if i.kind != "dsw":
                a.put([i])


def conv_z(ZP=cXF):
    XF, UF = cXF, cUF
    for c in range(2):
        for p in range(4):
            a(f"v_pk_fma_f32 {vr(UF + 8 * c + 2 * p, 2)}, {vr(UF + 8 * c + 2 * p, 2)}, {sp((sD0, sD1)[c])}, {vr(XF + 8 * c + 2 * p, 2)} op_sel_hi:[1,0,1]")
        for p in range(4):
            a(f"v_cvt_pk_bf16_f32 v{ZP + 4 * c + p}, v{UF + 8 * c + 2 * p}, v{UF + 8 * c + 2 * p + 1}")
        a(f"ds_write_b128 v{cvU}, {vr(ZP + 4 * c, 4)} offset:{ZB + c * 4096}")


def conv_main(layer, bg=(), bg_start=0, bg_every=64):
    return (conv_main_r if OPT["cv"] else conv_main_t)(layer, bg, bg_start, bg_every)


def conv_main_r(layer, bg, bg_start, bg_every):
    ACC, BF, AR = 0, 32, 64
    NA = 6
    EX2 = ZB
    seq = [(r, q) for r in range(4) for q in range(7, -1, -1)]
    e = 1 + 4 * layer

    def rdA(i):
        r, q = seq[i]
        d = AR + 4 * (i % NA)
        off = 64 * (59 - (8 * q + r))
        return [Ins(f"ds_read_b64 {vr(d, 2)}, v{cvA} offset:{off}"), Ins(f"ds_read_b64 {vr(d + 2, 2)}, v{cvA} offset:{off + 8}")]

    def rdB(r, p):
        return [Ins(f"ds_read_b128 {vr(BF + 4 * p, 4)}, v{cvB} offset:{512 * p + 64 * (3 - r)}")]

    a.put(rdA(0)); a.put(rdB(0, 0)); a.put(rdA(1)); a.put(rdB(0, 1)); a.put(rdA(2)); a.put(rdB(0, 2)); a.put(rdA(3))
    a.put(rdB(0, 3)); a.put(rdA(4))
    for p in range(4, 8):
        a.put(rdB(0, p))
    ZR, ZF, RR = 88, 64, 32
    side = [[i] for i in a.capture(conv_z, 88) if i.kind == "dsw"]
    if hinted(e):
        side += [[i] for i in a.capture(hint_prep, e + 10, sPAIR, cvH)]
    late = [[Ins("s_barrier")]] + [[Ins(f"ds_read_b64 {vr(ZR + 2 * i, 2)}, v{cvZ} offset:{ZB + i * 512}")] for i in range(4)]
    late2 = [[Ins("s_barrier")]]
    a.begin()
    started = set()
    for i, (r, q) in enumerate(seq):
        if hinted(e) and OPT["h_cv"] < 0 and i == 32 + OPT["h_cv"]:
            hint_put(cvH)
        ps = list(range(8 - q))
        for p in ps:
            b = q + p
            c = vr(ACC + 4 * b, 4) if b in started else "0"
            started.add(b)
            a(f"v_mfma_f32_16x16x32_bf16 {vr(ACC + 4 * b, 4)}, {vr(AR + 4 * (i % NA), 4)}, {vr(BF + 4 * p, 4)}, {c}")
            if p == 0 and i + NA - 1 < len(seq):
                a.put(rdA(i + NA - 1))
            elif 1 <= q <= 4 and p >= 1:
                for lst, r0 in ((side, 0), (late, 2), (late2, 3)):
                    if lst and r >= r0:
                        a.put(lst.pop(0))
                        break
            if q == 0 and r < 3:
                a.put(rdB(r + 1, p))
    assert not side and not late and not late2
    m, rest = merge(a.end(), list(bg), bg_start, bg_every)
    a.put(m)
    stamp(f"conv{layer} loop", 111)
    if hinted(e) and OPT["h_cv"] == 0:
        hint_put(cvH)
    for k in range(8):
        unpack(ZF + 2 * k, ZF + 2 * k + 1, ZR + k)
    l1, l2 = label("cx"), label("cy")
    a(f"s_bitcmp1_b32 s{sWAVE}, 0")
    a(f"s_cbranch_scc1 {l1}")
    for h in range(2):
        for i in range(4):
            a(f"ds_write_b128 v{cvXW}, {vr(ACC + 16 * (1 - h) + 4 * i, 4)} offset:{EX2 + i * 1024}")
            for k in range(2):
                a(f"v_pk_add_f32 {vr(ZF + 4 * i + 2 * k, 2)}, {vr(ZF + 4 * i + 2 * k, 2)}, {vr(ACC + 16 * h + 4 * i + 2 * k, 2)}")
        if h == 0:
            a(f"s_branch {l2}")
            a(f"{l1}:")
    a(f"{l2}:")
    if (armed(1) if layer else sentinel(1)):
        poll_take(cvP)
    a.barrier()
    if hinted(e) and OPT["h_cv"] == 1:
        hint_put(cvH)
    for i in range(4):
        a(f"ds_read_b128 {vr(RR + 4 * i, 4)}, v{cvXR} offset:{EX2 + i * 1024}")
    PK = 56
    for i in range(4):
        for k in range(2):
            a(f"v_pk_add_f32 {vr(ZF + 4 * i + 2 * k, 2)}, {vr(ZF + 4 * i + 2 * k, 2)}, {vr(RR + 4 * i + 2 * k, 2)}")
        for k in range(2):
            a(f"v_cvt_pk_bf16_f32 v{PK + 2 * i + k}, v{ZF + 4 * i + 2 * k}, v{ZF + 4 * i + 2 * k + 1}")
        if i & 1:
            b = PK + 2 * (i - 1)
            a(f"v_permlane16_swap_b32 v{b}, v{b + 2}")
            a(f"v_permlane16_swap_b32 v{b + 1}, v{b + 3}")
            a(f"buffer_store_dwordx4 {vr(b, 4)}, v{cvO}, {srd(S_WS)}, s{21 if i == 3 else 13} offen sc1", tag="pub")
    if hinted(e) and OPT["h_cv"] == 2:
        hint_put(cvH)
    if not flagged(e):
        a.barrier()
    else:
        flag_put(1 + 4 * layer, sPAIR, 40, "pub")
    return rest


def conv_main_t(layer, bg, bg_start, bg_every):
    ACC, BF, AR = 84, 32, 64
    NA = 5
    QORD = (7, 5, 6, 3, 4, 2, 1, 0)
    seq = [(r, q) for r in range(8) for q in QORD]
    e = 1 + 4 * layer

    def rdA(i):
        r, q = seq[i]
        d = AR + 4 * (i % NA)
        off = 64 * (63 - (8 * q + r))
        return [Ins(f"ds_read_b64 {vr(d, 2)}, v{cvA} offset:{off}"), Ins(f"ds_read_b64 {vr(d + 2, 2)}, v{cvA} offset:{off + 8}")]

    def rdB(r, p):
        return [Ins(f"ds_read_b128 {vr(BF + 4 * (p + 1), 4)}, v{cvB} offset:{512 * (p + 1) + 64 * (7 - r)}")]

    a.put(rdA(0)); a.put(rdB(0, -1)); a.put(rdA(1)); a.put(rdB(0, 1)); a.put(rdA(2)); a.put(rdB(0, 0)); a.put(rdA(3))
    for p in (3, 2, 4, 5, 6):
        a.put(rdB(0, p))
    ZR, ZF = 16, 0
    side = [[i] for i in a.capture(conv_z)]
    if hinted(e):
        side += [[i] for i in a.capture(hint_prep, e + 10, sPAIR, cvH)]
    late = [[Ins("s_barrier")]] + [[Ins(f"ds_read_b64 {vr(ZR + 2 * i, 2)}, v{cvZ} offset:{ZB + i * 1024}")] for i in range(4)]
    late2 = [[i] for k in range(8) for i in a.capture(unpack, ZF + 2 * k, ZF + 2 * k + 1, ZR + k)]
    a.begin()
    started = set()
    n = 0
    for i, (r, q) in enumerate(seq):
        if hinted(e) and OPT["h_cv"] < 0 and i == 64 + OPT["h_cv"]:
            hint_put(cvH)
        first = True
        for t in range(q // 2, 4):
            p = 2 * t - q
            c = vr(ACC + 4 * t, 4) if t in started else "0"
            started.add(t)
            a(f"v_mfma_f32_16x16x32_bf16 {vr(ACC + 4 * t, 4)}, {vr(AR + 4 * (i % NA), 4)}, {vr(BF + 4 * (p + 1), 4)}, {c}")
            n += 1
            if first and i + 4 < len(seq):
                a.put(rdA(i + 4))
            elif q >= 2:
                for lst, r0 in ((side, 0), (late, 4), (late2, 5)):
                    if lst and r >= r0:
                        a.put(lst.pop(0))
                        if lst is side and lst:
                            a.put(lst.pop(0))
                        break
            first = False
            if q <= 1 and r < 7:
                a.put(rdB(r + 1, p))
    assert not side and not late and not late2
    m, rest = merge(a.end(), list(bg), bg_start, bg_every)
    a.put(m)
    stamp(f"conv{layer} loop", 111)
    if (armed(1) if layer else sentinel(1)):
        poll_take(cvP)
    if hinted(e) and OPT["h_cv"] == 0:
        hint_put(cvH)
    PK = 24
    for i in range(4):
        for k in range(2):
            a(f"v_pk_add_f32 {vr(ZF + 4 * i + 2 * k, 2)}, {vr(ZF + 4 * i + 2 * k, 2)}, {vr(ACC + 4 * i + 2 * k, 2)}")
        for k in range(2):
            a(f"v_cvt_pk_bf16_f32 v{PK + 2 * i + k}, v{ZF + 4 * i + 2 * k}, v{ZF + 4 * i + 2 * k + 1}")
        if i & 1:
            b = PK + 2 * (i - 1)
            a(f"v_permlane16_swap_b32 v{b}, v{b + 2}")
            a(f"v_permlane16_swap_b32 v{b + 1}, v{b + 3}")
            a(f"buffer_store_dwordx4 {vr(b, 4)}, v{cvO}, {srd(S_WS)}, s{21 if i == 3 else 13} offen sc1", tag="pub")
    if hinted(e) and OPT["h_cv"] > 0:
        hint_put(cvH)
    if not flagged(e):
        a.barrier()
    else:
        flag_put(1 + 4 * layer, sPAIR, 40, "pub")
    return rest


def reduce32(V, n, W):
    for i in range(n):
        a(f"v_permlane16_swap_b32 v{V[i]}, v{V[n + i]}")
    for i in range(n):
        a(f"v_add_f32 v{V[i]}, v{V[i]}, v{V[n + i]}")
    h = n // 2
    for i in range(h):
        a(f"v_add_f32_dpp v{W[i]}, v{V[i]}, v{V[i]} row_ror:8 row_mask:0xf bank_mask:0x3")
    for i in range(h):
        a(f"v_add_f32_dpp v{W[i]}, v{V[i + h]}, v{V[i + h]} row_ror:8 row_mask:0xf bank_mask:0xc")
    g = h // 2
    for i in range(g):
        a(f"v_add_f32_dpp v{V[i]}, v{W[i]}, v{W[i]} row_half_mirror row_mask:0xf bank_mask:0x5")
    for i in range(g):
        a(f"v_add_f32_dpp v{V[i]}, v{W[i + g]}, v{W[i + g]} row_half_mirror row_mask:0xf bank_mask:0xa")
    for m in ("[1,0,3,2]", "[2,3,0,1]"):
        for i in range(g):
            a(f"v_add_f32_dpp v{V[i]}, v{V[i]}, v{V[i]} quad_perm:{m} row_mask:0xf bank_mask:0xf")
    return V[:g]


def maxchain(t, regs):
    regs = list(regs)
    if OPT["chk"] == 1:
        regs = regs[3::4]
    if len(regs) == 2:
        return [f"v_max_u32 v{t}, v{regs[0]}, v{regs[1]}"]
    out = [f"v_max3_u32 v{t}, v{regs[0]}, v{regs[1]}, v{regs[2]}"]
    regs = regs[3:]
    while len(regs) >= 2:
        out.append(f"v_max3_u32 v{t}, v{t}, v{regs[0]}, v{regs[1]}")
        regs = regs[2:]
    if regs:
        out.append(f"v_max_u32 v{t}, v{t}, v{regs[0]}")
    return out


RETRY = 0x10000


def ln(layer, wide):
    X = X1 if layer == 0 else X3
    H = H1 if layer == 0 else H3
    nf = 7 if wide else 4
    sI = sLN0 if wide else sLN
    RAW, XF, S, Q, W = 0, 28, 84, 92, 100
    vO, vPW, vPR, vAW, vAR, r, hr = 109, 110, 111, 112, 117, 114, 104
    vX, vS = 64, 68
    a(f"""s_mul_i32 s{sT0}, s{sWAVE}, 56
v_min_u32 v{r + 2}, 55, v{vLANE}""")
    a(f"v_add_u32 v{r + 2}, s{sT0}, v{r + 2}")
    a(f"v_and_b32 v118, {OPT['samp'] - 1}, v{vLANE}\nv_mul_u32_u24 v118, {56 // OPT['samp']}, v118\nv_add_u32 v118, s{sT0}, v118")
    ein, eout = 1 + 4 * layer, 2 + 4 * layer
    if wide:
        a(f"""s_mul_i32 s16, s{sI}, {BS}
s_lshl_b32 s{sT2}, s{sI}, 12""")
    else:
        a(f"""s_lshr_b32 s16, s{sI}, 1
s_mul_i32 s16, s16, {BS}
s_and_b32 s{sT0}, s{sI}, 1
s_lshl_b32 s{sT0}, s{sT0}, 5
s_add_u32 s16, s16, s{sT0}
s_lshl_b32 s{sT2}, s{sI}, 11""")
    a(f"""s_mul_i32 s{sT0}, s{sWAVE}, 7168
s_add_u32 s16, s16, s{sT0}
s_add_u32 s16, s16, {X}
s_add_u32 s17, s16, 4096
s_add_u32 s{sT2}, s{sT2}, {H}
s_mul_i32 s30, s{sWAVE}, 7""")
    if wide:
        for i in range(nf):
            a(f"""s_add_u32 s{sT0}, s30, {i}
s_lshr_b32 s{sT1}, s{sT0}, 2
s_lshl_b32 s{sT1}, s{sT1}, 18
s_add_u32 s{23 + i}, s{sT1}, s{sT2}
s_and_b32 s{sT1}, s{sT0}, 2
s_lshl_b32 s{sT1}, s{sT1}, 9
s_add_u32 s{23 + i}, s{23 + i}, s{sT1}
s_and_b32 s{sT1}, s{sT0}, 1
s_lshl_b32 s{sT1}, s{sT1}, 8
s_add_u32 s{23 + i}, s{23 + i}, s{sT1}""")
        a(f"""v_lshrrev_b32 v1, 2, v{vLANE}
v_lshlrev_b32 v{vO}, 4, v1
v_and_b32 v2, 1, v{vLANE}
v_lshl_add_u32 v{vO}, v2, 9, v{vO}
v_bfe_u32 v2, v{vLANE}, 1, 1
v_lshl_add_u32 v{vO}, v2, 11, v{vO}
v_and_b32 v1, 7, v1
v_and_b32 v2, 3, v{vLANE}
v_lshl_add_u32 v1, v2, 3, v1""")
    else:
        a(f"""v_lshrrev_b32 v1, 1, v{vLANE}
v_and_b32 v2, 1, v{vLANE}
v_lshlrev_b32 v{vX}, 6, v1
v_lshl_add_u32 v{vX}, v2, 4, v{vX}
v_mov_b32 v3, {OOB}
v_cmp_gt_u32 vcc, 32, v{vLANE}
v_cndmask_b32 v{vX + 1}, v3, v{vX}, vcc
s_lshl_b32 s30, s30, 4
s_mov_b32 s23, s{sT2}""")
        for i in range(nf):
            a(f"""v_add_u32 v4, s30, v1
v_lshrrev_b32 v5, 6, v4
v_lshlrev_b32 v5, 18, v5
v_bfe_u32 v6, v4, 5, 1
v_lshl_add_u32 v5, v6, 10, v5
v_and_b32 v6, 31, v4
v_lshl_add_u32 v5, v6, 4, v5
v_lshl_add_u32 v{vS + i}, v2, 9, v5""")
            if i < 3:
                a("s_add_u32 s30, s30, 32")
        a(f"""v_cndmask_b32 v{vS + 3}, v3, v{vS + 3}, vcc
v_bfe_u32 v1, v{vLANE}, 2, 3
v_lshl_add_u32 v1, v2, 3, v1""")
    a(f"""v_lshrrev_b32 v3, 5, v{vLANE}
v_lshl_add_u32 v1, v3, 5, v1
s_lshl_b32 s{sT1}, s{sWAVE}, 8
s_add_u32 s{sT1}, s{sT1}, {LNP}
v_lshl_add_u32 v{vPW}, v1, 2, s{sT1}
v_and_b32 v1, 31, v{vLANE}
v_lshlrev_b32 v{vPR}, 2, v1
v_add_u32 v{vPR}, {LNP}, v{vPR}
s_add_u32 s{sT1}, s{sT1}, 1024
v_lshl_add_u32 v{vAW}, v{vLANE}, 2, s{sT1}
v_lshl_add_u32 v{vAR}, v2, 5, s{sT1}
s_mov_b32 s18, 0
s_mov_b32 s19, -1""")
    prod = f"s_lshl_b32 s{sT0}, s{sI}, 6"
    if hinted(eout):
        hint_prep(eout + 10, prod, hr)
    arm = layer == 0 and sentinel(2)
    if arm:
        a(f"v_min_u32 v102, 27, v{vLANE}")
        poll_issue(18, 100)
    wait_edge(ein, r, r + 2, 118)
    if arm:
        poll_take(100)
    stamp(f"ln{layer} go")

    def loads():
        if not wide:
            return [f"buffer_load_dwordx4 {vr(RAW + 4 * i, 4)}, v{vX + (i == 3)}, {srd(S_WS)}, s{16 + i // 2} offen offset:{2048 * (i % 2)} sc1" for i in range(nf)]
        return [f"buffer_load_dwordx4 {vr(RAW + 4 * i, 4)}, v{vL16}, {srd(S_WS)}, s{16 + i // 4} offen offset:{1024 * (i % 4)} sc1" for i in range(nf)]
    for l in loads():
        a(l)
    if sentinel(ein):
        back, stub = label("lnb"), label("lns")
        chk = maxchain(113, range(RAW, RAW + 4 * nf)) + ["v_cmp_eq_u32 vcc, -1, v113"]
        a(f"s_mov_b32 s{sCNT}, 0")
        for l in chk:
            a(l)
        a(f"s_cbranch_vccnz {stub}")
        a(f"{back}:")
        STUBS.extend([f"{stub}:"] + loads() + ["s_waitcnt vmcnt(0)"] + chk + [f"s_add_u32 s{sCNT}, s{sCNT}, 1", f"s_cbranch_vccz {back}",
                      f"s_cmp_lt_u32 s{sCNT}, {RETRY}", f"s_cbranch_scc1 {stub}", f"s_branch {back}"])
    if hinted(eout) and OPT["h_ln"] == 0:
        a.wait_vm0()
        hint_put(hr)
    if OPT["stamps"] == 1:
        a.wait_vm0()
    count_out(113)
    stamp(f"ln{layer} data", 113)
    for i in range(nf):
        for k in range(4):
            unpack(XF + 8 * i + 2 * k, XF + 8 * i + 2 * k + 1, RAW + 4 * i + k)
        for k in range(4):
            x = vr(XF + 8 * i + 2 * k, 2)
            if i == 0:
                a(f"v_pk_mul_f32 {vr(Q + 2 * k, 2)}, {x}, {x}")
            else:
                a(f"v_pk_fma_f32 {vr(Q + 2 * k, 2)}, {x}, {x}, {vr(Q + 2 * k, 2)}")
                a(f"v_pk_add_f32 {vr(S + 2 * k, 2)}, {vr(XF + 2 * k, 2) if i == 1 else vr(S + 2 * k, 2)}, {x}")
    if hinted(eout) and OPT["h_ln"] == 1:
        hint_put(hr)
    for i in range(8):
        a(f"v_permlane32_swap_b32 v{S + i}, v{Q + i}")
    for i in range(0, 8, 2):
        a(f"v_pk_add_f32 {vr(S + i, 2)}, {vr(S + i, 2)}, {vr(Q + i, 2)}")
    for i in range(4):
        a(f"v_permlane16_swap_b32 v{S + i}, v{S + 4 + i}")
    for i in range(0, 4, 2):
        a(f"v_pk_add_f32 {vr(S + i, 2)}, {vr(S + i, 2)}, {vr(S + 4 + i, 2)}")
    for i in range(2):
        a(f"v_add_f32_dpp v{W + i}, v{S + i}, v{S + i} row_ror:8 row_mask:0xf bank_mask:0x3")
    for i in range(2):
        a(f"v_add_f32_dpp v{W + i}, v{S + 2 + i}, v{S + 2 + i} row_ror:8 row_mask:0xf bank_mask:0xc")
    a(f"v_add_f32_dpp v{S}, v{W}, v{W} row_shl:4 row_mask:0xf bank_mask:0x5")
    a(f"v_add_f32_dpp v{S}, v{W + 1}, v{W + 1} row_shr:4 row_mask:0xf bank_mask:0xa")
    if not wide:
        a(f"v_add_f32_dpp v{S}, v{S}, v{S} quad_perm:[2,3,0,1] row_mask:0xf bank_mask:0xf")
    a(f"ds_write_b32 v{vPW}, v{S}")
    a.barrier()
    if hinted(eout) and OPT["h_ln"] == 2:
        hint_put(hr)
    stamp(f"ln{layer} bar", 113)
    T = 0
    for w in range(4):
        a(f"ds_read2_b32 {vr(T + 2 * w, 2)}, v{vPR} offset0:{w * 64} offset1:{w * 64 + 32}")
    a(f"""v_pk_add_f32 {vr(T, 2)}, {vr(T, 2)}, {vr(T + 2, 2)}
v_pk_add_f32 {vr(T + 4, 2)}, {vr(T + 4, 2)}, {vr(T + 6, 2)}
v_pk_add_f32 {vr(T, 2)}, {vr(T, 2)}, {vr(T + 4, 2)}
v_mul_f32 v{T}, {f32(1 / 448)}, v{T}
v_mul_f32 v{T + 1}, {f32(1 / 448)}, v{T + 1}
v_fma_f32 v{T + 1}, -v{T}, v{T}, v{T + 1}
v_max_f32 v{T + 1}, 0, v{T + 1}
v_add_f32 v{T + 2}, {f32(1e-5)}, v{T + 1}
v_fmamk_f32 v{T + 2}, v{T + 2}, {f32(1e-5)}, v{T + 1}
v_rsq_f32 v{T + 2}, v{T + 2}
v_mul_f32 v{T + 3}, -v{T}, v{T + 2}
v_cndmask_b32 v{T + 2}, v{T + 2}, v{T + 3}, s[18:19]
ds_write_b32 v{vAW}, v{T + 2}""")
    AL, BE = S, Q
    done_hint = []
    a(f"""ds_read_b128 {vr(AL, 4)}, v{vAR}
ds_read_b128 {vr(BE, 4)}, v{vAR} offset:128
ds_read_b128 {vr(AL + 4, 4)}, v{vAR} offset:16
ds_read_b128 {vr(BE + 4, 4)}, v{vAR} offset:144""")
    for i in range(nf):
        for k in range(4):
            x = vr(XF + 8 * i + 2 * k, 2)
            a(f"v_pk_fma_f32 {x}, {x}, {vr(AL + 2 * k, 2)}, {vr(BE + 2 * k, 2)}")
        for k in range(4):
            a(f"v_cvt_pk_bf16_f32 v{RAW + 4 * i + k}, v{XF + 8 * i + 2 * k}, v{XF + 8 * i + 2 * k + 1}")
        a(f"buffer_store_dwordx4 {vr(RAW + 4 * i, 4)}, v{vO if wide else vS + i}, {srd(S_WS)}, s{23 + i if wide else 23} offen sc1", tag="pub")
        if hinted(eout) and OPT["h_ln"] - 3 == min(i, 6) * (4 if nf == 7 else 4) // (nf + 1):
            if not done_hint:
                hint_put(hr)
                done_hint.append(1)
    stamp(f"ln{layer} st", 113)
    if flagged(eout):
        flag_put(eout, prod, 100, "pub")


def gemm_addr():
    a(f"""s_and_b32 s{sT0}, s{sWAVE}, 1
s_lshl_b32 s{sT0}, s{sT0}, 10
v_add_u32 v{vA0}, s{sT0}, v{vL16}
v_xor_b32 v{vA1}, 0x400, v{vA0}""")


vCHK = 121


def gemm_loop(nks, ring, nring, wreg, swap, sent, lds_from=99, at=None):
    WF = 104
    nfr = 2 * nks

    def load(f):
        ks, db = f // 2, f % 2
        g = []
        if db == 0 and ks and ks % 2 == 0:
            g.append(Ins("s_add_u32 s13, s13, 4096"))
            if ks % 4 == 0:
                g += [Ins("s_cmp_eq_u32 s13, s28"), Ins("s_cmov_b32 s13, s27")]
        d = ring + 4 * (f % nring)
        g.append(Ins(f"buffer_load_dwordx4 {vr(d, 4)}, v{(vA0, vA1)[db]}, {srd(S_WS)}, s13 offen offset:{(ks % 2) * 2048} sc1"))
        return g

    def wread(ks):
        g = []
        slot = ks - lds_from
        for nb in range(2):
            for j in range(2):
                d = WF + 8 * (ks % 2) + 4 * nb + 2 * j
                g.append(Ins(f"ds_read_b64_tr_b16 {vr(d, 2)}, v{(vT2a, vT2b)[nb]} offset:{slot * 2048 + j * 1024}", res_r=[f"slot{slot}"]))
        return g

    def check(ks):
        regs = [ring + 4 * ((2 * ks + db) % nring) + k for db in range(2) for k in range(4)]
        chk = maxchain(vCHK, regs) + [f"v_cmp_eq_u32 vcc, -1, v{vCHK}"]
        back, stub = label("gb"), label("gs")
        STUBS.extend([f"{stub}:", f"s_add_u32 s3, s22, {ks * 2048}", "s_cmp_ge_u32 s3, s28", f"s_cselect_b32 s29, {nks * 2048}, 0", "s_sub_u32 s3, s3, s29"] +
                     [f"buffer_load_dwordx4 {vr(ring + 4 * ((2 * ks + db) % nring), 4)}, v{(vA0, vA1)[db]}, {srd(S_WS)}, s3 offen sc1" for db in range(2)] +
                     ["s_waitcnt vmcnt(0)"] + chk + [f"s_add_u32 s{sCNT}, s{sCNT}, 1", f"s_cbranch_vccz {back}",
                                                     f"s_cmp_lt_u32 s{sCNT}, {RETRY}", f"s_cbranch_scc1 {stub}", f"s_branch {back}"])
        return [Ins(x) for x in chk], [Ins(f"s_cbranch_vccnz {stub}"), Ins(f"{back}:")]

    if sent:
        a(f"s_mov_b32 s{sCNT}, 0")
    nxt = min(OPT["fill0"], nring)
    for f in range(nxt):
        a.put(load(f))
    if sent:
        c, b = check(0)
        a.put(c); a.put(b)
    for ks in range(nks):
        if at and ks in at:
            at[ks]()
        pend = wread(ks + 1) if lds_from <= ks + 1 < nks else []
        c, b = check(ks + 1) if (sent and ks + 1 < nks) else ([], [])
        order = [(0, 0), (0, 1), (1, 0), (1, 1)]
        if ks == nks - 1 and OPT["tailord"]:
            order = [(0, 1), (1, 0), (1, 1), (0, 0)]
        if True:
            for nb, db in order:
                acc = vr(16 * (2 * nb + db), 16)
                cc = acc if (ks or (nb | db) == 0) else "0"
                w = wreg(ks, nb) if ks < lds_from else vr(WF + 8 * (ks % 2) + 4 * nb, 4)
                x = vr(ring + 4 * ((2 * ks + db) % nring), 4)
                a(f"v_mfma_f32_32x32x16_bf16 {acc}, {x if swap else w}, {w if swap else x}, {cc}")
                if pend:
                    a.put([pend.pop(0)])
                free = nring + 2 * ks + (db + 1 if nb == 1 else 0)
                if nxt < min(nfr, free) and (nb == 1 or db == 1):
                    a.put(load(nxt))
                    nxt += 1
                if nb == 1 and db == 0:
                    a.put(c)
                if nb == 1 and db == 1:
                    a.put(b)


def gemm_rot(nks, srot):
    a(f"s_mov_b32 s27, s13\ns_add_u32 s28, s13, {nks * 2048}\ns_lshl_b32 s{sT0}, s{srot}, 13\ns_add_u32 s13, s13, s{sT0}\ns_mov_b32 s22, s13")


def gemm_reduce_prep():
    for rel in (1, 2, 3):
        a(f"s_xor_b32 s{23 + rel}, s{sWAVE}, {rel}\ns_mul_i32 s{23 + rel}, s{23 + rel}, 12288")
    a(f"s_mul_i32 s23, s{sWAVE}, 12288")


def gemm_reduce_addr():
    for rel in range(4):
        a(f"v_add_u32 v{64 + rel}, s{23 + rel}, v{vL16}")


def gemm_reduce(pre=None, post=None, quarter=None):
    side = a.capture(pre) if pre else []
    wr = [[Ins(f"ds_write_b128 v{64 + rel}, {vr(16 * rel + 4 * q, 4)} offset:{RB + (rel - 1) * 4096 + q * 1024}")] for rel in (1, 2, 3) for q in range(4)]
    a.put(side[:9])
    put_all(wr[:3])
    m, rest = merge(side[9:], wr[3:], 0, 12)
    a.put(m)
    put_all(rest)
    a.barrier()
    for q in range(4):
        for k in range(3):
            a(f"ds_read_b128 {vr(16 + 16 * k + 4 * q, 4)}, v64 offset:{RB + k * 4096 + q * 1024}")
        if q == 1 and post:
            post()
    for q in range(4):
        for h in range(2):
            r = 4 * q + 2 * h
            a(f"v_pk_add_f32 {vr(16 + r, 2)}, {vr(16 + r, 2)}, {vr(32 + r, 2)}")
            a(f"v_pk_add_f32 {vr(r, 2)}, {vr(r, 2)}, {vr(48 + r, 2)}")
        for h in range(2):
            r = 4 * q + 2 * h
            a(f"v_pk_add_f32 {vr(r, 2)}, {vr(r, 2)}, {vr(16 + r, 2)}")
        if quarter:
            quarter(q)


def gemm1(layer, wide, pre=None, bg=()):
    H = H1 if layer == 0 else H3
    G = G1 if layer == 0 else G3
    gemm_addr()
    a(f"""s_lshr_b32 s{sT0}, s{sWAVE}, 1
s_lshl_b32 s{sT0}, s{sT0}, 6
s_lshl_b32 s{sT1}, s{sNT}, 7
s_add_u32 s{sT0}, s{sT0}, s{sT1}
v_lshrrev_b32 v16, 5, v{vLANE}
v_lshl_add_u32 v16, v16, 3, s{sT0}""")
    for q in range(4):
        a(f"global_load_dwordx2 {vr(20 + 2 * q, 2)}, v16, {sp(P_B1)} offset:{16 * q}")
    r = 32
    a(f"""s_lshl_b32 s{sT0}, s{sWAVE}, 5
v_and_b32 v{r + 2}, 31, v{vLANE}
v_add_u32 v{r + 2}, s{sT0}, v{r + 2}
v_and_b32 v{r + 3}, {31 & ~(32 // OPT['samp'] - 1)}, v{vLANE}
v_add_u32 v{r + 3}, s{sT0}, v{r + 3}
s_lshl_b32 s13, s{sDT1}, 7
s_add_u32 s13, s13, s{sT0}
s_lshl_b32 s13, s13, 11
s_add_u32 s13, s13, {H}""")
    if wide:
        a(f"v_lshrrev_b32 v{r + 2}, 1, v{r + 2}\nv_lshrrev_b32 v{r + 3}, 1, v{r + 3}")
    c0 = -2 * math.log2(math.e) * math.sqrt(2 / math.pi)
    a(f"""s_mov_b32 s{sCA}, {f32(c0 * 0.044715)}
s_mul_i32 s21, s{sDT1}, 112
s_lshl_b32 s{sT0}, s{sNT}, 2
s_add_u32 s21, s21, s{sT0}
s_and_b32 s{sT0}, s{sWAVE}, 2
s_add_u32 s21, s21, s{sT0}
s_lshl_b32 s21, s21, 11
s_add_u32 s21, s21, {G}""")
    gemm_reduce_prep()
    gemm_rot(32, sROT1)
    if pre:
        pre()
    for k in range(8):
        unpack(2 * k, 2 * k + 1, 20 + k)
    ein, eout = 2 + 4 * layer, 3 + 4 * layer
    wait_edge(ein, r, r + 2, r + 3)
    stamp(f"g1_{layer} go", 63)
    prod = f"s_mul_i32 s{sT0}, s{sDT1}, 28\ns_add_u32 s{sT0}, s{sT0}, s{sNT}\ns_lshl_b32 s{sT0}, s{sT0}, 6"
    early = hinted(eout) and OPT["h_g1"] < 0
    at = {30: gemm_reduce_addr}
    if early:
        assert -6 <= OPT["h_g1"] and OPT["h_g1"] != -2
        at[32 + OPT["h_g1"]] = lambda: (hint_prep(eout + 10, prod, 96), hint_put(96))
    gemm_loop(32, 64, 14, lambda ks, nb: f"a[{(ks * 2 + nb) * 4}:{(ks * 2 + nb) * 4 + 3}]", False, sentinel(ein), at=at)
    count_out(100)
    stamp(f"g1_{layer} loop", 100)
    a.begin()
    late = hinted(eout) and not early

    def pre():
        a(f"v_mov_b32 v80, {f32(c0)}")
        if late:
            hint_prep(eout + 10, prod, 72)

    def gelu(q):
        if q % 2 == 0:
            return
        half = q // 2
        if late and OPT["h_g1"] == 1 and half == 0:
            hint_put(72)
        rs = range(8 * half, 8 * half + 8, 2)
        for r in rs:
            a(f"v_pk_mul_f32 {vr(16 + r, 2)}, {vr(r, 2)}, {vr(r, 2)}")
        for r in rs:
            a(f"v_pk_fma_f32 {vr(16 + r, 2)}, {vr(16 + r, 2)}, {sp(sCA)}, {vr(80, 2)} op_sel_hi:[1,0,0]")
        for r in rs:
            a(f"v_pk_mul_f32 {vr(16 + r, 2)}, {vr(16 + r, 2)}, {vr(r, 2)}")
        for r in rs:
            a(f"v_exp_f32 v{16 + r}, v{16 + r}\nv_exp_f32 v{17 + r}, v{17 + r}")
        for r in rs:
            a(f"v_pk_add_f32 {vr(16 + r, 2)}, {vr(16 + r, 2)}, 1.0 op_sel_hi:[1,0]")
        for r in rs:
            a(f"v_rcp_f32 v{16 + r}, v{16 + r}\nv_rcp_f32 v{17 + r}, v{17 + r}")
        for r in rs:
            a(f"v_pk_mul_f32 {vr(r, 2)}, {vr(r, 2)}, {vr(16 + r, 2)}")
        for r in rs:
            a(f"v_cvt_pk_bf16_f32 v{84 + r // 2}, v{r}, v{r + 1}")
        a(f"buffer_store_dwordx4 {vr(84 + 4 * half, 4)}, v{vA0}, {srd(S_WS)}, s21 offen offset:{2048 * half} sc1", tag="pub")
        if late and OPT["h_g1"] == 2 + half:
            hint_put(72)
    gemm_reduce(pre, (lambda: hint_put(72)) if (late and OPT["h_g1"] == 0) else None, gelu)
    m, rest = merge(a.end(), list(bg), 0, OPT["ev_g1"])
    a.put(m)
    if not flagged(eout):
        a.barrier()
    else:
        flag_put(eout, prod, 40, "pub")
    for g in rest:
        a.put(g)


def gemm2(layer):
    G = G1 if layer == 0 else G3
    gemm_addr()
    a(f"""s_lshr_b32 s{sT0}, s{sWAVE}, 1
s_lshl_b32 s{sT0}, s{sT0}, 5
s_lshl_b32 s{sT1}, s{sST}, 6
s_add_u32 s50, s{sT0}, s{sT1}
s_and_b32 s{sT1}, s{sWAVE}, 1
s_lshl_b32 s{sT1}, s{sT1}, 5
s_lshl_b32 s{sT2}, s{sDT2}, 6
s_add_u32 s51, s{sT1}, s{sT2}
s_lshr_b32 s{sT2}, s50, 5
s_mul_i32 s{sT2}, s{sT2}, {BS}
s_lshl_b32 s{sT1}, s51, 6
s_add_u32 s20, s{sT2}, s{sT1}
s_add_u32 s30, s20, {X1 if layer == 0 else X3}
v_and_b32 v16, 31, v{vLANE}
v_lshrrev_b32 v17, 5, v{vLANE}
s_lshl_b32 s{sT0}, s50, 1""")
    r = 42

    def residual_issue():
        if layer == 0:
            for q in range(4):
                a(f"buffer_load_dwordx2 {vr(20 + 2 * q, 2)}, v18, {srd(S_WS)}, s30 offen offset:{16 * q} sc1")
        else:
            a(f"s_mov_b32 m0, s31")
            a(f"buffer_load_dwordx4 v{vL16}, {srd(S_WS)}, s30 offen sc1 lds", res_w=["x3"])
            a(f"buffer_load_dwordx4 v{vL16}, {srd(S_WS)}, s30 offen offset:1024 sc1 lds", res_w=["x3"])

    def residual_use():
        if layer == 0:
            for k in range(8):
                unpack(2 * k, 2 * k + 1, 20 + k)
            for k in range(8):
                unpack(40, 41, 28 + k)
                a(f"v_pk_add_f32 {vr(2 * k, 2)}, {vr(2 * k, 2)}, v[40:41]")
        else:
            for q in range(4):
                a(f"ds_read_b64_tr_b16 {vr(20 + 2 * q, 2)}, v31 offset:{512 * q}", res_r=["x3"])
            a("v_lshlrev_b32 v40, 16, v29")
            for k in range(8):
                unpack(2 * k, 2 * k + 1, 20 + k)
                a(f"v_pk_add_f32 {vr(2 * k, 2)}, {vr(2 * k, 2)}, v[40:41] op_sel_hi:[1,0]")

    if layer == 0:
        a(f"v_lshlrev_b32 v18, 6, v16\nv_lshl_add_u32 v18, v17, 3, v18\nv_lshl_add_u32 v19, v17, 3, s{sT0}")
        for q in range(4):
            a(f"global_load_dwordx2 {vr(28 + 2 * q, 2)}, v19, {sp(P_B2)} offset:{16 * q}")
    else:
        a(f"""v_and_b32 v19, 3, v{vLANE}
s_lshl_b32 s31, s{sWAVE}, 11
v_lshl_add_u32 v28, v16, 1, s{sT0}
global_load_ushort v29, v28, {sp(P_B2)}
v_bfe_u32 v31, v{vLANE}, 2, 2
v_lshl_add_u32 v31, v17, 2, v31
v_lshlrev_b32 v31, 6, v31
v_bfe_u32 v30, v{vLANE}, 4, 1
v_lshl_add_u32 v31, v30, 5, v31
v_lshl_add_u32 v31, v19, 3, v31
v_add_u32 v31, s31, v31""")
    a(f"""s_mul_i32 s{sT0}, s{sDT2}, 28
s_mul_i32 s{sT1}, s{sWAVE}, 7
s_add_u32 s{sT0}, s{sT0}, s{sT1}
v_min_u32 v{r + 2}, 6, v{vLANE}
v_add_u32 v{r + 2}, s{sT0}, v{r + 2}
v_mov_b32 v{r + 3}, v{r + 2}
s_lshl_b32 s13, s{sT0}, 13
s_add_u32 s13, s13, {G}""")
    if layer == 0:
        a(f"""s_add_u32 s21, s20, {X2}
s_lshl_b32 s19, s50, 1
s_add_u32 s19, s19, {ST1}""")
    else:
        a(f"s_mul_i32 s{sT0}, s50, 896\ns_lshl_b32 s{sT1}, s51, 1\ns_add_u32 s21, s{sT0}, s{sT1}")
    gemm_reduce_prep()
    gemm_rot(28, sROT2)
    lskip, ljoin = label("res"), label("resj")
    a(f"s_cmp_eq_u32 s{sR1}, 0")
    a(f"s_cbranch_scc1 {lskip}")
    residual_issue()
    residual_use()
    wait_edge(3 + 4 * layer, r, r + 2, r + 3)
    a(f"s_branch {ljoin}")
    a(f"{lskip}:")
    wait_edge(3 + 4 * layer, r, r + 2, r + 3)
    residual_issue()
    residual_use()
    a(f"{ljoin}:")
    stamp(f"g2_{layer} go", 63)
    gemm_loop(28, 64, 10, lambda ks, nb: vr(128 + (ks * 2 + nb) * 4, 4), layer == 1, sentinel(3 + 4 * layer), lds_from=16, at={26: gemm_reduce_addr})
    count_out(100)
    stamp(f"g2_{layer} loop", 100)

    def addr():
        a(f"v_and_b32 v68, 31, v{vLANE}\nv_lshrrev_b32 v69, 5, v{vLANE}")
        if layer == 0:
            a(f"""v_and_b32 v70, 15, v{vLANE}
v_lshlrev_b32 v70, 6, v70
v_lshl_add_u32 v70, v69, 4, v70
v_bfe_u32 v71, v{vLANE}, 4, 1
v_lshl_add_u32 v70, v71, 5, v70
v_bfe_u32 v71, v{vLANE}, 2, 2
v_lshlrev_b32 v71, 4, v71
v_bfe_u32 v68, v{vLANE}, 4, 1
v_lshl_add_u32 v71, v68, 3, v71
v_and_b32 v68, 1, v{vLANE}
v_lshl_add_u32 v71, v68, 2, v71
v_bfe_u32 v68, v{vLANE}, 1, 1
v_lshl_add_u32 v68, v69, 1, v68
v_lshl_add_u32 v71, v68, 12, v71""")
        else:
            a(f"v_mul_u32_u24 v70, 896, v68\nv_lshl_add_u32 v70, v69, 4, v70")
    prod = f"s_lshl_b32 s{sT0}, s{sDT2}, 5\ns_add_u32 s{sT0}, s{sT0}, s{sST}\ns_lshl_b32 s{sT0}, s{sT0}, 6"
    hn = layer == 0 and hinted(4)

    def pre():
        addr()
        if hn:
            hint_prep(14, prod, 80)
    gemm_reduce(pre, (lambda: hint_put(80)) if (hn and OPT["h_g2"] == 0) else None)
    if hn and OPT["h_g2"] == 1:
        hint_put(80)
    PK = 72
    stamp(f"g2_{layer} red", 100)
    for half in range(2):
        b = PK + 4 * half
        for k in range(4):
            a(f"v_cvt_pk_bf16_f32 v{b + k}, v{8 * half + 2 * k}, v{8 * half + 2 * k + 1}")
        a(f"v_permlane32_swap_b32 v{b}, v{b + 2}")
        a(f"v_permlane32_swap_b32 v{b + 1}, v{b + 3}")
        if layer == 1:
            a(f"buffer_store_dwordx4 {vr(b, 4)}, v70, {srd(S_OUT)}, s21 offen offset:{32 * half} {('', 'nt', 'sc1')[OPT['ofl']]}")
    if layer == 1:
        return
    for k in range(4):
        a(f"v_permlane16_swap_b32 v{PK + k}, v{PK + 4 + k}")
    for half in range(2):
        a(f"buffer_store_dwordx4 {vr(PK + 4 * half, 4)}, v70, {srd(S_WS)}, s21 offen offset:{1024 * half} sc1", tag="pub")
    if hn and OPT["h_g2"] == 2:
        hint_put(80)
    for k in range(8):
        a(f"v_pk_mul_f32 {vr(20 + 2 * k, 2)}, {vr(2 * k, 2)}, {vr(2 * k, 2)}")
    res = reduce32(list(range(16)) + list(range(20, 36)), 16, list(range(40, 48)))
    assert res == [0, 1, 2, 3]
    a(f"""v_cndmask_b32 v0, v0, v1, {sp(sM1)}
v_cndmask_b32 v2, v2, v3, {sp(sM1)}
v_cndmask_b32 v0, v0, v2, {sp(sM2)}""")
    a(f"buffer_atomic_add_f32 v0, v71, {srd(S_WS)}, s19 offen sc1", tag="pub")
    if hn and OPT["h_g2"] == 3:
        hint_put(80)
    stamp("g2_0 atom", 100)
    flag_put(4, prod, 40, "pub")
    stamp("g2_0 flag", 100)


def skip_unless(role):
    l = label("skip")
    a(f"s_cmp_eq_u32 s{role}, 0")
    a(f"s_cbranch_scc1 {l}")
    return l


def dmas(n0, n1):
    return [w_dma(n, h) for n in range(n0, n1) for h in range(2)]


def tr_dma(n0, n1):
    g = []
    for n in range(n0, n1):
        g.append(w_tr(n))
        if n > n0:
            g += dmas(n + 11, n + 12)
    g += dmas(n1 + 11, n1 + 12)
    return g


def wseq():
    nB = OPT["wB"] // 2
    assert 36 <= nB <= 60
    g = dmas(0, 12) + tr_dma(0, nB - 12)
    lastT = 48 if (nB >= 48 and OPT["wT"]) else 36
    g += [w_tr(n) for n in range(nB - 12, lastT)]
    g.append([])
    d = nB
    for n in range(max(lastT, nB - 12), 49):
        while d < min(n + 11, 60) or (n == 48 and d < 60):
            g += dmas(d, d + 1)
            d += 1
        if n < 48:
            g.append(w_tr(n))
    return g


def wcut(n_dma):
    k = 0
    for p, g in enumerate(wseq()):
        if k == n_dma:
            return p
        k += any(i.kind == "dma" for i in g)
    return len(wseq())


def put_all(gs):
    for g in gs:
        a.put(g)


def w2_touch(r):
    return [Ins(f"v_lshlrev_b32 v{r}, 12, v{vLANE}"), Ins(f"buffer_load_dword v{r}, v{r}, {srd(S_W2)}, s{sW2O} offen")]


def build():
    if OPT["w2t"]:
        WORDER[:] = list(range(60))
    cA, cP, cL, cB = wcut(OPT["wA"]), wcut(OPT["wP"]), wcut(OPT["wL"]), wseq().index([])
    cK = wcut(OPT["wK"])
    prologue()
    laux, ljoin = label("aux"), label("join")
    a(f"s_cmp_eq_u32 s{sRC}, 0")
    a(f"s_cbranch_scc1 {laux}")
    xt_loads()
    kgen_table_load()
    code_warm(1)
    w_setup()
    put_all(wseq()[:cA])
    conv_setup(0)
    stamp("start", 2)

    xt_poll_addr(63, 2)
    xt_work()

    def h_flag():
        nonce_take()
        flag_put(0, sPAIR, 104, "st0")
        stamp("flag", 0)
        a(f"global_load_dwordx4 {vr(TAB, 4)}, v75, {sp(sTAB)}")
        a(f"global_load_dwordx4 {vr(TAB + 4, 4)}, v75, {sp(sTAB)} offset:16")
        a(f"global_load_dwordx2 v[0:1], v75, {sp(sTAB)} offset:32")

    hooks = {}
    for pos, fn in ((OPT["h_flag"], h_flag), (OPT["h_w"], lambda: KBG.extend(wseq()[cA:cK] + ([w2_touch(75)] if OPT["w2t"] else []))), (OPT["h_poll"], lambda: poll_issue(0, 64, 63))):
        hooks.setdefault(pos, []).append(fn)
    assert OPT["h_flag"] <= OPT["h_w"] and OPT["h_poll"] >= 6
    kgen({k: (lambda fs=fs: [f() for f in fs]) for k, fs in hooks.items()})
    dump_lds(1)
    stamp("kgen", 21)

    def mid():
        poll_take(64, 63)
        stamp("e1 seen", 0)
        conv_loads()
        put_all(wseq()[cK:cP])
    wr = kexpand(mid)
    if OPT["mixpro"]:
        mv = [i for i in wr if i.kind != "dsw"]
        st = [i for i in wr if i.kind == "dsw"]
        pro = a.capture(conv_pro, 0)
        k = next(n for n, i in enumerate(pro) if i.defs & {f"v{r}" for r in range(0, 22)})
        a.put(mv)
        a.put(st[2:4])
        head, rest = merge(pro[:k], [[i] for i in st[4:6] + st[:2] + st[6:]], 0, 14)
        a.put(head)
        early = [g for g in rest if g[0].uses & {f"v{r}" for r in range(0, 22)}]
        put_all(early)
        rest = [g for g in rest if g not in early]
        k2 = next(n for n, i in enumerate(pro) if i.kind == "dsw")
        mid2, rest = merge(pro[k:k2], rest, 0, 30)
        a.put(mid2)
        put_all(rest)
        a.put(pro[k2:])
        stamp("expand", 111)
    else:
        a.put(wr)
        stamp("expand")
        conv_pro(0)
    if sentinel(1):
        a(f"v_min_u32 v{cvP + 2}, 27, v{vLANE}")
        poll_issue(8, cvP)
    a.barrier()
    dump_lds(2)
    stamp("conv0 go", 111)
    put_all(conv_main(0, wseq()[cP:cL], OPT["st_conv"], OPT["ev_conv"]))
    stamp("conv0 done")
    a(f"s_branch {ljoin}")
    a(f"{laux}:")
    aux_loads()
    kgen_table_addr()
    code_warm(1)
    w_setup()
    aux_work()
    stamp("aux e1")
    if OPT["g7"] == 1:
        lg = label("g7")
        a(f"""s_cmp_lg_u32 s{sR1}, 0
s_cbranch_scc1 {lg}
s_lshr_b32 s{sT0}, s{sX}, 2
s_sub_u32 s{sT0}, s{sJ}, s{sT0}
s_sub_u32 s{sT0}, s{sT0}, 28
s_lshl_b32 s{sT0}, s{sT0}, 3
s_add_u32 s{sT0}, s{sT0}, s{sX}
s_lshl_b32 s{sT0}, s{sT0}, 7
s_mul_i32 s{sT1}, s{sWAVE}, {512 * 3584}
s_add_u32 s{sT0}, s{sT0}, s{sT1}
s_add_u32 s{sT0}, s{sT0}, {448 * 3584}
v_mul_u32_u24 v90, 3584, v{vLANE}
v_add_u32 v90, s{sT0}, v90""")
        a(f"global_load_dword v90, v90, {sp(P_W1)}")
        a(f"{lg}:")
    if armed(0):
        assert OPT["map18"] == 1
        lnf = label("nf")
        a(f"s_cmp_lg_u32 s{sR1}, 0\ns_cbranch_scc1 {lnf}")
        a(f"s_sub_u32 s16, s{sAUX}, 4\ns_cselect_b32 s16, s{sAUX}, s16")
        if sentinel(1):
            fill(X1, -(-15 * 32 // 28), 80, 16, 28 * 4096, "fill")
            flag_put(8, 16, 72, "fill")
        if sentinel(2) or sentinel(3):
            fill(H1 if sentinel(2) else G1, -(-(14 * sentinel(2) + 13 * sentinel(3)) * 32 // 28), 80, 16, 28 * 4096, "fill")
            flag_put(18, 16, 72, "fill")
        a(f"{lnf}:")
    stamp("aux fill")
    if OPT["g7"] == 2:
        lg = label("g7")
        a(f"""s_cmp_lg_u32 s{sR1}, 0
s_cbranch_scc1 {lg}
s_lshr_b32 s{sT0}, s{sX}, 2
s_sub_u32 s{sT0}, s{sJ}, s{sT0}
s_sub_u32 s{sT0}, s{sT0}, 28
s_lshl_b32 s{sT0}, s{sT0}, 3
s_add_u32 s{sT0}, s{sT0}, s{sX}
s_lshl_b32 s{sT0}, s{sT0}, 7
s_mul_i32 s{sT1}, s{sWAVE}, {512 * 3584}
s_add_u32 s{sT0}, s{sT0}, s{sT1}
s_add_u32 s{sT0}, s{sT0}, {448 * 3584}
v_mul_u32_u24 v90, 3584, v{vLANE}
v_add_u32 v90, s{sT0}, v90""")
        a(f"global_load_dword v90, v90, {sp(P_W1)}")
        a(f"{lg}:")
    cX = min(wcut(72), cB)
    if OPT["w2t"]:
        a.put(w2_touch(75))
    put_all(wseq()[:cX])
    if sentinel(1):
        a(f"v_min_u32 v62, 27, v{vLANE}")
        poll_issue(8, 60)
        poll_take(60)
    a.wait_vm0()
    stamp("aux w")
    a(f"{ljoin}:")
    for layer in range(2):
        if layer == 1:
            l = skip_unless(sRC)
            conv_setup(1)
            conv_poll1()
            stamp("conv1 ready")
            if OPT["kc_in"] and not hinted(4):
                a.wait_tag("flag")
                poll_issue(4, cvP)
                kcopies()
                poll_take(cvP)
            else:
                kcopies()
                wait_edge(4, cvP, cvP + 2, cvP + 3)
            stamp("conv1 poll")
            conv_loads()
            conv_pro(1)
            if armed(1):
                a(f"v_and_b32 v{cvP + 2}, 31, v{vLANE}")
                poll_issue(9, cvP)
            a.barrier()
            dump_lds(3)
            stamp("conv1 go", 111)
            conv_main(1)
            stamp("conv1 done")
            if armed(1):
                lj = label("cvj")
                a(f"s_branch {lj}")
                a(f"{l}:")
                a(f"v_and_b32 v62, 31, v{vLANE}")
                poll_issue(9, 60)
                poll_take(60)
                a(f"{lj}:")
            else:
                a(f"{l}:")
        wide = OPT["ln1w"] if layer else OPT["ln0w"]
        l = skip_unless(sRL0 if wide else sRL)
        ln(layer, wide)
        stamp(f"ln{layer} done")
        a(f"{l}:")
        if layer == 0:
            l = skip_unless(sRC)
            put_all(wseq()[cL:cX])
            a(f"{l}:")
            rest = wseq()[cX:cB]
            k = max(0, len(rest) - 12)
            put_all(rest[:k])
            if sentinel(2) or sentinel(3):
                a(f"v_min_u32 v62, 27, v{vLANE}")
                poll_issue(18, 60)
            put_all(rest[k:])
            if sentinel(2) or sentinel(3):
                poll_take(60)
            stamp("w B")
            tail = wseq()[cB:]
            assert not any(i.kind == "dsr" and "a[" in i.text for g in tail for i in g)
            lelse, lj = label("ng1"), label("g1j")
            a(f"s_cmp_eq_u32 s{sR1}, 0")
            a(f"s_cbranch_scc1 {lelse}")
            gemm1(0, wide, None, tail)
            nonce_retire()
            stamp("g1_0 done")
            a(f"s_branch {lj}")
            a(f"{lelse}:")
            put_all(wseq()[cB:])
            a(f"{lj}:")
        else:
            l = skip_unless(sR1)
            gemm1(1, wide)
            stamp("g1_1 done")
            a(f"{l}:")
        l = skip_unless(sR2)
        gemm2(layer)
        if layer == 0 and armed(1):
            lj = label("g2j")
            a(f"s_branch {lj}")
            a(f"{l}:")
            if OPT["map18"]:
                a(f"s_lshl_b32 s16, s{sX}, 2\ns_add_u32 s16, s16, s{sJ}")
            else:
                a(f"s_lshr_b32 s16, s{sX}, 1\ns_lshl_b32 s16, s16, 3\ns_add_u32 s16, s16, s{sJ}")
            fill(X3, 42, 72, 16, CH)
            flag_put(9, 16, 8, "st0")
            a(f"{lj}:")
        else:
            a(f"{l}:")
        stamp("g2_0 done" if layer == 0 else "end")
    if OPT["stamps"] and OPT["dbgwg"] < 0:
        l = label("ls")
        a(f"s_cmp_lg_u32 s{sWAVE}, 0\ns_cbranch_scc1 {l}\ns_waitcnt vmcnt(0)\ns_memrealtime {sp(sSTAMP)}\ns_waitcnt lgkmcnt(0)")
        a(f"s_lshl_b32 s3, s2, 8\ns_add_u32 s3, s3, {STAMPS + 248}\nv_mov_b32 v0, s101\nv_mov_b32 v1, s{sSTAMP}\ns_mov_b64 exec, 1")
        a(f"buffer_store_dwordx2 v[0:1], off, {srd(S_WS)}, s3")
        a(f"{l}:")
    if OPT["fixdur"]:
        a(f"s_waitcnt vmcnt(0) lgkmcnt(0)\nL_fix:\ns_memrealtime s[28:29]\ns_waitcnt lgkmcnt(0)\ns_sub_u32 s28, s28, s101\ns_cmp_lt_u32 s28, {OPT['fixdur']}\ns_cbranch_scc1 L_fix")
    a("s_endpgm")


def bf16_round_int(l):
    b = struct.unpack("<I", struct.pack("<f", float(l)))[0]
    b = (b + 0x7FFF + ((b >> 16) & 1)) & 0xFFFF0000
    return int(struct.unpack("<f", struct.pack("<I", b))[0])


def ktab():
    vals = []
    for c in range(2):
        for x in range(2048):
            lr = bf16_round_int(2047 - x)
            aa, rem = lr >> 7, lr & 127
            j, e = rem >> 3, rem & 7
            if aa < 2:
                rho = 8 * aa + e
            elif aa < 4:
                rho = 4 * aa + 8 + (e >> 1)
            elif aa < 8:
                rho = 16 + 2 * aa + (e >> 2)
            else:
                rho = 24 + aa
            vals.append((rho >> 2) * 256 + j * 16 + (rho & 3) * 4 + c * 2 * GST)
        vals += [3072 + c * 2 * GST] * 16
    lines = []
    for i in range(0, len(vals), 16):
        lines.append("    .short " + ", ".join(str(v) for v in vals[i:i + 16]))
    return "\n".join(lines)


def main(path):
    build()
    ins = a.finish()
    ref = open(f"cdna_kernels/{NAME}.s.ref").read().split("\n")
    head = [l for l in ref if l.startswith(";") and "@launch" not in l and not l.startswith("; Override") and not l.startswith("; grid=ceil")]
    k = NAME + "_kernel"
    s = "\n".join(head) + f"\n; @launch grid=(256,1,1) block=(256,1,1) lds={LDS_BYTES}\n"
    s += f""".amdgcn_target "amdgcn-amd-amdhsa--gfx950"
.text
.globl {k}
.p2align 8
.type {k},@function
{k}:
L_entry:
"""
    s += Prog.render(ins)
    s += "".join((l if l.endswith(":") else "    " + l) + "\n" for l in STUBS)
    s += f""".p2align 6
.type ktab,@object
ktab:
{ktab()}
.size ktab, 8256
.section .rodata,"a"
.p2align 6
.amdhsa_kernel {k}
  .amdhsa_next_free_vgpr 512
  .amdhsa_next_free_sgpr 102
  .amdhsa_accum_offset 256
  .amdhsa_group_segment_fixed_size 0
  .amdhsa_kernarg_size 136
  .amdhsa_user_sgpr_count 2
  .amdhsa_user_sgpr_kernarg_segment_ptr 1
  .amdhsa_system_sgpr_workgroup_id_x 1
  .amdhsa_float_denorm_mode_32 3
.end_amdhsa_kernel
"""
    open(path, "w").write(s)
    n = sum(1 for i in ins if i.kind not in ("label", "comment"))
    open(path + ".names", "w").write("\n".join(STAMP_NAMES))
    print("instructions:", n, "nops:", sum(1 for i in ins if i.kind == "nop"), "waits:", sum(1 for i in ins if i.kind == "wait"))


if __name__ == "__main__":
    path = sys.argv[1]
    for kv in sys.argv[2:]:
        k, v = kv.split("=")
        OPT[k] = v if k in ('em', 'probe') else int(v)
    main(path)
```

```python
import sys, math, struct
from asmlib import *

NAME = "interleave_layers__ssm_conv_s4__mixer_token_mlp__prompt"
OPT = dict(stamps=False, stop=99, upfront=True, dump=0, dbgwg=-1, fixdur=0, em='FSSFDSS', warm=1, h_flag=2, h_w=2, h_poll=9, h_ln=2, h_cv=0, h_g1=0, h_g2=0, rot=1, wA=0, wK=8, wP=8, wL=16, wB=120, wT=1, lag=2, gap=3, st_conv=100, ev_conv=150, ev_g1=100000, fill0=14, ln1w=0, ln0w=1, chk=1, samp=8, map18=1, ofl=0, tailord=1, cv=1, clk=0, ev_kg=150, mixpro=1, now=0, probe='', kc_in=0, w2t=0, g7=0, rl=4, bfr=1, wg=4, slp=0, ev_pro=30, t2=0, bg0=0, tlb=0)
DBG_SEL = ['start', 'kgen', 'conv0 go', 'ln0 go', 'g1_0 go', 'g1_0 loop', 'g2_0 go', 'g2_0 loop', 'conv1 poll', 'ln1 go', 'g1_1 go', 'g2_1 go', 'end']
STAMP_NAMES = []

EPOCH = 0
ST0 = 0x1000
ST1 = 0x8000
STAMPS = 0x20000
FL = 0x100000
BS = 448 * 64 + 128
CH = 0x20000
X1, H1, G1, X3, H3, G3, X2, X0 = (0x400000 + 0x200000 * i for i in range(8))
FILL1, FILL3 = 6, 36
WS_BYTES = 268435456
OOB = 0x40000000

KST = 4160
KSLOT = {0: [0, 5, 2, 3], 1: [1, 6, 7, 4]}
UB = 8 * KST
UPAD = 1024
UST = 4096 + UPAD
ZB = UB + 2 * UST
EX = 2 * KST
RB = 2 * KST
GST = 15616
GROW = 272
TOFF = 12288
LNP = 57472
PERM = 61440
W2L = 65536
LDS_BYTES = 163840

sWAVE, sX, sJ, sPAIR, sDT1, sNT, sDT2, sST, sLN = 4, 5, 6, 7, 8, 9, 10, 11, 12
sNONCE = 14
P_U, P_ARE, P_AIM, P_BRE, P_BIM, P_CRE, P_CIM, P_LDT = 16, 18, 20, 22, 24, 26, 28, 30
P_DSK, P_W1, P_B1, P_W2, P_B2, P_OUT, P_DBG, P_WS = 32, 36, 38, 40, 42, 44, 46, 48
S_WS, S_W1, S_W2, S_X0, S_OUT = 52, 56, 60, 64, 68
sD0, sD1 = 72, 74
sLDT = 76
sEP = 78
sWOFF, sT0, sT1, sT2, sT3, sCNT = 80, 81, 82, 83, 84, 85
sRC, sR1, sR2, sRL = 86, 87, 88, 89
sM1, sM2 = 90, 92
sSTAMP = 94
sTAB = 96
sLN0, sRL0 = 77, 73
sCA, sCB = 34, 100

vLANE, vL16, vT2a, vT2b, vT1a, vT1b, vD1, vD2 = 127, 126, 125, 124, 123, 122, 121, 120
vA0, vA1 = 123, 122


def srd(n):
    return f"s[{n}:{n + 3}]"


def sp(n):
    return f"s[{n}:{n + 1}]"


def vr(n, k):
    return f"v[{n}:{n + k - 1}]" if k > 1 else f"v{n}"


def f32(x):
    return "0x%08x" % struct.unpack("<I", struct.pack("<f", x))[0]


a = Prog()
_lab = [0]


def label(p):
    _lab[0] += 1
    return f"L_{p}_{_lab[0]}"


_stamp = [0]


def stamp(name, r=1):
    k = _stamp[0]
    _stamp[0] += 1
    STAMP_NAMES.append(name)
    a("; MARK after " + name)
    if OPT["probe"] == name.replace(" ", "_"):
        a(f"s_memrealtime {sp(sSTAMP)}\ns_waitcnt lgkmcnt(0)\ns_mov_b32 s101, s{sSTAMP}")
    if OPT["stamps"] != 1:
        return
    l = label("st")
    if OPT["dbgwg"] >= 0:
        if name not in DBG_SEL:
            return
        a(f"s_lshl_b32 s3, s{sWAVE}, 8\ns_add_u32 s3, s3, s2\ns_cmp_lg_u32 s3, {OPT['dbgwg']}\ns_cbranch_scc1 {l}")
        a(f"s_memrealtime {sp(sSTAMP)}")
        a("s_waitcnt lgkmcnt(0)")
        a(f"s_mov_b64 exec, 1\nv_mov_b32 v{r}, s{sSTAMP}\ns_mov_b32 s{sSTAMP}, s{P_DBG}\ns_mov_b32 s{sSTAMP + 1}, s{P_DBG + 1}\ns_mov_b32 s{sSTAMP + 2}, 256\ns_mov_b32 s{sSTAMP + 3}, 0x20000".replace(f"s{sSTAMP}, s{P_DBG}", f"s64, s{P_DBG}").replace(f"s{sSTAMP + 1}, s{P_DBG + 1}", f"s65, s{P_DBG + 1}").replace(f"s{sSTAMP + 2}, 256", "s66, 256").replace(f"s{sSTAMP + 3}, 0x20000", "s67, 0x20000"))
        a(f"buffer_store_dword v{r}, off, s[64:67], 0 offset:{12 + 4 * DBG_SEL.index(name)} sc1", optional=True)
        a("s_mov_b64 exec, -1")
        a(f"{l}:")
        return
    a(f"s_cmp_lg_u32 s{sWAVE}, 0")
    a(f"s_cbranch_scc1 {l}")
    a(f"{'s_memtime' if OPT['clk'] else 's_memrealtime'} {sp(sSTAMP)}")
    a("s_waitcnt lgkmcnt(0)")
    a(f"s_lshl_b32 s3, s2, 8")
    a(f"s_add_u32 s3, s3, {STAMPS + 4 * k}")
    a(f"v_mov_b32 v{r}, s{sSTAMP}")
    a("s_mov_b64 exec, 1")
    a(f"buffer_store_dword v{r}, off, {srd(S_WS)}, s3", optional=True)
    a("s_mov_b64 exec, -1")
    a(f"{l}:")


_cnt = [0]


def count_out(r):
    if OPT["stamps"] != 1:
        return
    k = _cnt[0]
    _cnt[0] += 1
    a(f"s_lshl_b32 s3, s2, 2\ns_add_u32 s3, s3, s{sWAVE}\ns_lshl_b32 s3, s3, 5\ns_add_u32 s3, s3, {STAMPS + 0x10000 + 4 * k}")
    a(f"v_mov_b32 v{r}, s{sCNT}\ns_mov_b64 exec, 1")
    a(f"buffer_store_dword v{r}, off, {srd(S_WS)}, s3")
    a("s_mov_b64 exec, -1")


DUMP = 0x2000000


def dump_lds(point, r=96):
    if OPT["dump"] != point:
        return
    a.barrier()
    a(f"s_lshl_b32 s3, s{sWAVE}, 10\nv_add_u32 v{r + 4}, s3, v{vL16}\ns_lshl_b32 s3, s2, 16\ns_add_u32 s3, s3, {DUMP}")
    for i in range(16):
        a(f"ds_read_b128 {vr(r, 4)}, v{r + 4} offset:{i * 4096}")
        a(f"buffer_store_dwordx4 {vr(r, 4)}, v{r + 4}, {srd(S_WS)}, s3 offen")
        a("s_add_u32 s3, s3, 4096")
        a.wait_vm0()
    a.barrier()


def cmul(d, x, y):
    return [f"v_pk_mul_f32 {vr(d, 2)}, {vr(x, 2)}, {vr(y, 2)} op_sel:[1,1] op_sel_hi:[1,0] neg_lo:[0,1]",
            f"v_pk_fma_f32 {vr(d, 2)}, {vr(x, 2)}, {vr(y, 2)}, {vr(d, 2)} op_sel_hi:[0,1,1]"]


def cmul2(p, q=None):
    x = cmul(*p)
    if q is None:
        a(x[0]); a(x[1])
        return
    y = cmul(*q)
    a(x[0]); a(y[0]); a(x[1]); a(y[1])


def unpack(dlo, dhi, s):
    a(f"v_lshlrev_b32 v{dlo}, 16, v{s}")
    a(f"v_and_b32 v{dhi}, 0xffff0000, v{s}")


def prologue():
    a("s_cmp_lt_u32 s2, 256")
    a("s_cbranch_scc1 L_start")
    a("s_endpgm")
    a("L_start:")
    if OPT["fixdur"] or OPT["stamps"]:
        a("s_memrealtime s[50:51]")
    a("s_load_dwordx16 s[16:31], s[0:1], 0")
    a("s_load_dwordx16 s[32:47], s[0:1], 64")
    a("s_load_dwordx2 s[48:49], s[0:1], 128")
    a(f"v_lshrrev_b32 v1, 6, v0")
    a(f"v_and_b32 v{vLANE}, 63, v0")
    a(f"v_readfirstlane_b32 s{sWAVE}, v1")
    a(f"v_lshlrev_b32 v{vL16}, 4, v{vLANE}")
    a(f"""s_and_b32 s{sX}, s2, 7
s_lshr_b32 s{sJ}, s2, 3
s_add_u32 s{sJ}, s{sJ}, 28
s_and_b32 s{sJ}, s{sJ}, 31
""")
    a(f"""s_lshr_b32 s{sT0}, s{sX}, 2
s_mul_i32 s{sPAIR}, s{sX}, 28
s_sub_u32 s{sRC}, s{sJ}, s{sT0}
s_add_u32 s{sPAIR}, s{sPAIR}, s{sRC}
s_cmp_lt_u32 s{sRC}, 28
s_cselect_b32 s{sRC}, 1, 0
s_mul_i32 s{sT2}, s{sJ}, 37
s_lshr_b32 s{sT2}, s{sT2}, 8
s_mul_i32 s{sT3}, s{sT2}, 7
s_sub_u32 s{sDT1}, s{sJ}, s{sT3}
s_lshl_b32 s{sNT}, s{sT2}, 3
s_add_u32 s{sNT}, s{sNT}, s{sX}
s_sub_u32 s{sT1}, s{sJ}, 4
s_cselect_b32 s{sR2}, 0, 1
s_and_b32 s{sT1}, s{sT1}, 31
s_mul_i32 s{sT2}, s{sT1}, 37
s_lshr_b32 s{sT2}, s{sT2}, 8
s_mul_i32 s{sT3}, s{sT2}, 7
s_sub_u32 s{sDT2}, s{sT1}, s{sT3}
s_lshl_b32 s{sST}, s{sX}, 2
s_add_u32 s{sST}, s{sST}, s{sT2}
s_cmp_eq_u32 s{sJ}, 0
s_cselect_b32 s{sT1}, 32, s{sJ}
s_mul_i32 s{sT2}, s{sX}, 12
s_add_u32 s{sT2}, s{sT2}, s{sT1}
s_sub_u32 s{sT2}, s{sT2}, 53
s_lshl_b32 s{sT3}, s{sX}, 2
s_add_u32 s{sT3}, s{sT3}, s{sJ}
s_sub_u32 s{sT3}, s{sT3}, 28
s_cmp_lg_u32 s{sT0}, 0
s_cselect_b32 s{sT1}, s{sT1}, s{sJ}
s_cselect_b32 s{sLN0}, s{sT2}, s{sT3}
s_cselect_b32 s{sRL0}, 21, 28
s_cmp_ge_u32 s{sT1}, s{sRL0}
s_cselect_b32 s{sRL0}, 1, 0""" if OPT["map18"] == 1 else f"""s_and_b32 s{sT0}, s{sX}, 1
s_lshr_b32 s{sT1}, s{sX}, 1
s_mul_i32 s{sPAIR}, s{sX}, 28
s_sub_u32 s{sRC}, s{sJ}, s{sT0}
s_add_u32 s{sPAIR}, s{sPAIR}, s{sRC}
s_cmp_lt_u32 s{sRC}, 28
s_cselect_b32 s{sRC}, 1, 0
s_mul_i32 s{sT2}, s{sJ}, 37
s_lshr_b32 s{sT2}, s{sT2}, 8
s_mul_i32 s{sT3}, s{sT2}, 7
s_sub_u32 s{sT3}, s{sJ}, s{sT3}
s_mul_i32 s{sNT}, s{sT1}, 7
s_add_u32 s{sNT}, s{sNT}, s{sT3}
s_lshl_b32 s{sT3}, s{sT0}, 2
s_add_u32 s{sDT1}, s{sT2}, s{sT3}
s_lshl_b32 s{sST}, s{sT0}, 3
s_sub_u32 s{sST}, s{sJ}, s{sST}
s_cselect_b32 s{sR2}, 0, 1
s_lshr_b32 s{sDT2}, s{sST}, 3
s_and_b32 s{sDT2}, s{sDT2}, 3
s_add_u32 s{sDT2}, s{sDT2}, s{sT3}
s_and_b32 s{sST}, s{sST}, 7
s_lshl_b32 s{sLN0}, s{sT1}, 4
s_lshl_b32 s{sT1}, s{sT1}, 3
s_add_u32 s{sST}, s{sST}, s{sT1}
s_cmp_eq_u32 s{sJ}, 0
s_cselect_b32 s{sT1}, 32, s{sJ}
s_mul_i32 s{sT2}, s{sT0}, 11
s_add_u32 s{sT2}, s{sT2}, s{sT1}
s_cmp_lg_u32 s{sT0}, 0
s_cselect_b32 s{sT1}, s{sT1}, s{sJ}
s_cselect_b32 s{sT2}, s{sT2}, s{sJ}
s_cselect_b32 s{sRL0}, 21, 28
s_cmp_ge_u32 s{sT1}, s{sRL0}
s_cselect_b32 s{sRL0}, 1, 0
s_add_u32 s{sLN0}, s{sLN0}, s{sT2}
s_sub_u32 s{sLN0}, s{sLN0}, 28""")
    if OPT["map18"] == 2:
        a(f"""s_sub_u32 s{sT1}, s{sJ}, 4
s_cselect_b32 s{sR2}, 0, 1
s_and_b32 s{sT1}, s{sT1}, 31
s_mul_i32 s{sT2}, s{sT1}, 37
s_lshr_b32 s{sT2}, s{sT2}, 8
s_mul_i32 s{sT3}, s{sT2}, 7
s_sub_u32 s{sDT2}, s{sT1}, s{sT3}
s_lshl_b32 s{sST}, s{sX}, 2
s_add_u32 s{sST}, s{sST}, s{sT2}""")
    a(f"""s_lshl_b32 s{sLN}, s{sX}, 4
s_add_u32 s{sLN}, s{sLN}, s{sJ}
s_sub_u32 s{sLN}, s{sLN}, 8
s_mul_i32 s{sT2}, s{sT0}, 7
s_sub_u32 s{sT2}, 28, s{sT2}
s_cmp_lt_u32 s{sJ}, s{sT2}
s_cselect_b32 s{sR1}, 1, 0
s_sub_u32 s{sT2}, s{sJ}, 8
s_cmp_lt_u32 s{sT2}, 16
s_cselect_b32 s{sRL}, 1, 0
s_min_u32 s{sPAIR}, s{sPAIR}, 223
s_mov_b32 s{sM1}, 0xaaaaaaaa
s_mov_b32 s{sM1 + 1}, 0xaaaaaaaa
s_mov_b32 s{sM2}, 0xcccccccc
s_mov_b32 s{sM2 + 1}, 0xcccccccc""")
    a("s_waitcnt lgkmcnt(0)")
    if OPT["fixdur"] or OPT["stamps"]:
        a("s_mov_b32 s101, s50")
    a(f"""s_lshl_b32 s{sT0}, s{sPAIR}, 2
s_load_dword s{sLDT}, {sp(P_LDT)}, s{sT0}
s_load_dword s{sD0}, {sp(P_DSK)}, s{sT0}
s_load_dwordx2 {sp(sNONCE)}, {sp(P_WS)}, {EPOCH}""")
    kgen_loads()
    for n, p, size in ((S_X0, P_U, 1835008), (S_WS, P_WS, WS_BYTES), (S_OUT, P_OUT, 1835008)):
        a(f"s_mov_b32 s{n}, s{p}\ns_mov_b32 s{n + 1}, s{p + 1}\ns_mov_b32 s{n + 2}, {size}\ns_mov_b32 s{n + 3}, 0x20000")
    for n, p, role in ((S_W1, P_W1, sR1), (S_W2, P_W2, sR2)):
        a(f"s_mov_b32 s{n}, s{p}\ns_mov_b32 s{n + 1}, s{p + 1}\ns_cmp_lg_u32 s{role}, 0\ns_cselect_b32 s{n + 2}, {0 if OPT['now'] & (1 if n == S_W1 else 2) else 7340032}, 0\ns_mov_b32 s{n + 3}, 0x20000")


sAUX = 75


def code_warm(r):
    if not OPT["warm"]:
        return
    a(f"""s_lshl_b32 s{sT0}, s{sJ}, 2
s_add_u32 s{sT0}, s{sT0}, s{sWAVE}
s_mul_i32 s{sT0}, s{sT0}, 640
v_lshl_add_u32 v{r}, v{vLANE}, 7, s{sT0}
s_mov_b32 s{sT1}, ktab-L_entry+8192
v_min_u32 v{r}, s{sT1}, v{r}
s_sub_u32 s28, s{sTAB}, ktab-L_entry
s_subb_u32 s29, s{sTAB + 1}, 0
s_mov_b64 exec, 31
global_load_dword v{r}, v{r}, s[28:29]
s_mov_b64 exec, -1""")


def page_warm(r):
    if not OPT["tlb"]:
        return
    a(f"""v_lshlrev_b32 v{r}, 21, v{vLANE}
v_add_u32 v{r}, 0x1fff80, v{r}
s_mov_b64 exec, 0x3ff
buffer_load_dword v{r}, v{r}, {srd(S_WS)}, 0 offen
s_mov_b64 exec, 1
buffer_load_dword v{r + 1}, off, {srd(S_OUT)}, 0
global_load_dword v{r + 2}, v{vLANE}, {sp(P_B1)}
global_load_dword v{r + 3}, v{vLANE}, {sp(P_B2)}
s_mov_b64 exec, -1""")


def fill(base, n, r, sidx, stride, tag="st0"):
    a(f"""s_lshl_b32 s{sT0}, s{sidx}, 12
s_lshl_b32 s{sT1}, s{sWAVE}, 10
s_add_u32 s{sT0}, s{sT0}, s{sT1}
s_add_u32 s{sT0}, s{sT0}, {base}""")
    for k in range(4):
        a(f"v_mov_b32 v{r + k}, -1")
    for k in range(n):
        a(f"buffer_store_dwordx4 {vr(r, 4)}, v{vL16}, {srd(S_WS)}, s{sT0} offen sc1", tag=tag)
        if k + 1 < n:
            a(f"s_add_u32 s{sT0}, s{sT0}, {stride}")


def aux_loads():
    a(f"""s_and_b32 s{sAUX}, s{sJ}, 3
s_lshl_b32 s{sAUX}, s{sAUX}, 3
s_add_u32 s{sAUX}, s{sAUX}, s{sX}
s_lshl_b32 s16, s{sAUX}, 2
s_add_u32 s16, s16, s{sWAVE}
s_mul_i32 s{sT1}, s16, {16 * 896}
s_mul_i32 s17, s{sWAVE}, {16 * 912}
s_mov_b32 m0, s17
s_mov_b32 exec_hi, 0xffffff""")
    for k in range(16):
        if k:
            a(f"s_add_u32 m0, m0, 912\ns_add_u32 s{sT1}, s{sT1}, 896")
        a(f"buffer_load_dwordx4 v{vL16}, {srd(S_X0)}, s{sT1} offen lds", res_w=[f"x0"])
    a("s_mov_b64 exec, -1")


def aux_work():
    XR = 8
    a(f"""v_mov_b32 v76, 0
v_mov_b32 v77, 0
v_mov_b32 v78, 0
v_mov_b32 v79, 0
s_lshl_b32 s{sT1}, s16, 7
s_add_u32 s{sT1}, s{sT1}, {ST1}
s_lshl_b32 s18, s{sAUX}, 7
s_add_u32 s18, s18, {ST0}
s_mov_b64 exec, 0xff""")
    a(f"buffer_store_dwordx4 v[76:79], v{vL16}, {srd(S_WS)}, s{sT1} offen sc1", tag="st0")
    a(f"""s_mov_b64 exec, -1
v_and_b32 v2, 15, v{vLANE}
v_lshrrev_b32 v3, 4, v{vLANE}
v_mul_u32_u24 v4, 912, v2
v_lshl_add_u32 v4, v3, 4, v4
v_add_u32 v4, s17, v4
v_lshrrev_b32 v6, 2, v2
v_cmp_eq_u32 vcc, v6, v3
v_bfe_u32 v6, v2, 1, 2
v_lshlrev_b32 v6, 7, v6
v_lshrrev_b32 v7, 3, v2
v_lshl_add_u32 v6, v7, 4, v6
v_and_b32 v7, 1, v2
v_lshl_add_u32 v6, v7, 2, v6
s_lshl_b32 s{sT0}, s{sWAVE}, 5
s_add_u32 s{sT0}, s{sT0}, 60000
v_add_u32 v6, s{sT0}, v6
v_mov_b32 v7, 61024
v_cndmask_b32 v6, v7, v6, vcc
v_lshrrev_b32 v117, 3, v{vLANE}
v_cmp_eq_u32 vcc, s{sWAVE}, v117
v_lshlrev_b32 v117, 12, v117
v_and_b32 v7, 7, v{vLANE}
v_lshl_add_u32 v117, v7, 4, v117
v_mov_b32 v7, {OOB}
v_cndmask_b32 v117, v7, v117, vcc
v_mov_b32 v80, 0x3f803f80
v_mov_b32 v81, 0x3f803f80
v_mov_b32 v82, 0x3f803f80
v_mov_b32 v83, 0x3f803f80""")
    if OPT["stamps"] == 1:
        a.wait_vm0()
    stamp("aux data")
    for k in range(14):
        a(f"ds_read_b128 {vr(XR + 4 * k, 4)}, v4 offset:{64 * k}", res_r=["x0"])
    for k in range(14):
        x = vr(XR + 4 * k, 4)
        a(f"v_mfma_f32_16x16x32_bf16 v[64:67], v[80:83], {x}, {'v[64:67]' if k else 0}")
        a(f"v_mfma_f32_16x16x32_bf16 v[68:71], {x}, {x}, {'v[68:71]' if k else 0}")
    a(f"""v_cndmask_b32 v68, v68, v69, {sp(sM1)}
v_cndmask_b32 v70, v70, v71, {sp(sM1)}
v_cndmask_b32 v68, v68, v70, {sp(sM2)}""")
    a("ds_write2_b32 v6, v64, v68 offset0:0 offset1:2")
    a.barrier()
    a(f"ds_read_b128 v[64:67], v{vL16} offset:60000")
    a(f"buffer_store_dwordx4 v[64:67], v117, {srd(S_WS)}, s18 offen sc1", tag="st0")
    stamp("aux st")
    nonce_take()
    flag_put(0, f"s_add_u32 s{sT0}, s{sAUX}, 224\ns_lshl_b32 s{sT0}, s{sT0}, 6", 72, "st0")


def xt_loads():
    a(f"""s_lshl_b32 s{sT0}, s{sPAIR}, 1
s_lshr_b32 s{sT1}, s{sWAVE}, 1
s_add_u32 s{sT0}, s{sT0}, s{sT1}
s_mul_i32 s{sT1}, s{sT0}, 9363
s_lshr_b32 s{sT1}, s{sT1}, 16
s_mul_i32 s{sT2}, s{sT1}, 7
s_sub_u32 s{sT0}, s{sT0}, s{sT2}
s_lshl_b32 s{sT0}, s{sT0}, 1
s_and_b32 s{sT2}, s{sWAVE}, 1
s_add_u32 s{sT0}, s{sT0}, s{sT2}
s_mul_i32 s{sT2}, s{sT1}, {32 * 896}
s_lshl_b32 s{sT3}, s{sT0}, 6
s_add_u32 s{sT2}, s{sT2}, s{sT3}
v_lshrrev_b32 v2, 2, v{vLANE}
v_mul_u32_u24 v2, 896, v2
v_and_b32 v3, 3, v{vLANE}
v_lshl_add_u32 v2, v3, 4, v2
s_mul_i32 s22, s{sWAVE}, {GST}
s_mov_b32 m0, s22
s_mul_i32 s23, s{sT1}, {BS}""")
    a(f"buffer_load_dwordx4 v2, {srd(S_X0)}, s{sT2} offen lds", res_w=["x0"])
    a(f"s_add_u32 m0, m0, 1024\ns_add_u32 s{sT2}, s{sT2}, {16 * 896}")
    a(f"buffer_load_dwordx4 v2, {srd(S_X0)}, s{sT2} offen lds", res_w=["x0"])
    a(f"""s_lshl_b32 s{sT0}, s{sT0}, 11
s_add_u32 s23, s23, s{sT0}
s_add_u32 s23, s23, {X0}
v_lshrrev_b32 v2, 4, v{vLANE}
v_bfe_u32 v36, v{vLANE}, 2, 2
v_lshl_add_u32 v36, v2, 3, v36
v_lshlrev_b32 v36, 6, v36
v_lshl_add_u32 v36, v3, 3, v36
v_add_u32 v36, s22, v36
v_and_b32 v37, 15, v{vLANE}
v_lshlrev_b32 v37, 6, v37
v_lshl_add_u32 v37, v2, 4, v37""")


def xt_work():
    for u in range(2):
        for j in range(2):
            a(f"ds_read_b64_tr_b16 {vr(40 + 4 * u + 2 * j, 2)}, v36 offset:{j * 256 + u * 32}", res_r=["x0"])
    for u in range(2):
        a(f"buffer_store_dwordx4 {vr(40 + 4 * u, 4)}, v37, {srd(S_WS)}, s23 offen offset:{1024 * u} sc1", tag="st0")


def xt_poll_addr(ra, t):
    a(f"""s_lshl_b32 s{sT0}, s{sWAVE}, 4
v_and_b32 v{t}, 15, v{vLANE}
v_add_u32 v{t}, s{sT0}, v{t}
v_mul_u32_u24 v{t}, 7, v{t}
s_lshr_b32 s{sT0}, s{sPAIR}, 5
v_add_u32 v{t}, s{sT0}, v{t}
v_lshrrev_b32 v{t}, 1, v{t}
s_lshl_b32 s{sT0}, s{sWAVE}, 3
s_add_u32 s{sT0}, s{sT0}, 224
v_and_b32 v{ra}, 7, v{vLANE}
v_add_u32 v{ra}, s{sT0}, v{ra}
v_cmp_gt_u32 vcc, 16, v{vLANE}
v_cndmask_b32 v{ra}, v{ra}, v{t}, vcc""")


def e1_poll_addr(ra):
    a(f"s_lshl_b32 s{sT0}, s{sWAVE}, 6\nv_add_u32 v{ra}, s{sT0}, v{vLANE}")


def nonce_take():
    a(f"s_add_u32 s{sNONCE}, s{sNONCE}, 1")
    a(f"s_addc_u32 s{sNONCE + 1}, s{sNONCE + 1}, 0")


def nonce_retire():
    l = label("nr")
    a(f"s_or_b32 s{sT0}, s2, s{sWAVE}")
    a(f"s_cmp_lg_u32 s{sT0}, 32")
    a(f"s_cbranch_scc1 {l}")
    a(f"v_mov_b32 v110, s{sNONCE}\nv_mov_b32 v111, s{sNONCE + 1}\ns_mov_b64 exec, 1")
    a(f"buffer_store_dwordx2 v[110:111], off, {srd(S_WS)}, 0 offset:{EPOCH} sc1", optional=True)
    a("s_mov_b64 exec, -1")
    a(f"{l}:")


def flag_put(edge, sprod, r, tag):
    a(f"s_lshl_b32 s{sT0}, s{sprod}, 6" if isinstance(sprod, int) else sprod)
    a(f"""s_lshl_b32 s{sT1}, s{sWAVE}, 15
s_add_u32 s{sT0}, s{sT0}, s{sT1}
s_add_u32 s{sT0}, s{sT0}, {FL + edge * 0x20000}
v_lshlrev_b32 v{r + 4}, 12, v{vLANE}
v_and_b32 v{r + 4}, 0x4000, v{r + 4}
v_and_b32 v{r}, 3, v{vLANE}
v_lshl_add_u32 v{r + 4}, v{r}, 4, v{r + 4}
v_mov_b32 v{r}, s{sNONCE}
v_mov_b32 v{r + 1}, s{sNONCE + 1}
v_mov_b32 v{r + 2}, s{sNONCE}
v_mov_b32 v{r + 3}, s{sNONCE + 1}""")
    a.wait_tag(tag)
    a.barrier()
    a("s_mov_b64 exec, 0xff")
    a(f"buffer_store_dwordx4 {vr(r, 4)}, v{r + 4}, {srd(S_WS)}, s{sT0} offen sc1", tag="flag")
    a("s_mov_b64 exec, -1")


def emode(e):
    return OPT["em"][e - 1]


def hinted(e):
    return emode(e) in "HSM"


def sentinel(e):
    return emode(e) in "SDM"


def flagged(e):
    return emode(e) in "FH"


def armed(layer):
    return any(sentinel(e + 4 * layer) for e in (1, 2, 3))


def wait_edge(e, r, ra_full, ra_samp):
    if hinted(e):
        poll_issue(e + 10, r, ra_samp)
        poll_take(r, ra_samp)
    elif emode(e) == "D":
        a.wait_tag("pub")
    else:
        a.wait_tag("flag")
    if flagged(e):
        poll_issue(e, r, ra_full)
        poll_take(r, ra_full)


def hint_prep(edge, sprod, r):
    a(f"s_lshl_b32 s{sT0}, s{sprod}, 6" if isinstance(sprod, int) else sprod)
    a(f"""s_lshl_b32 s{sT1}, s{sWAVE}, 15
s_add_u32 s{sT0}, s{sT0}, s{sT1}
s_add_u32 s{sT0}, s{sT0}, {FL + edge * 0x20000}
v_lshlrev_b32 v{r + 4}, 12, v{vLANE}
v_and_b32 v{r + 4}, 0x4000, v{r + 4}
v_and_b32 v{r}, 3, v{vLANE}
v_lshl_add_u32 v{r + 4}, v{r}, 4, v{r + 4}
v_add_u32 v{r + 4}, s{sT0}, v{r + 4}
v_mov_b32 v{r}, s{sNONCE}
v_mov_b32 v{r + 1}, s{sNONCE + 1}
v_mov_b32 v{r + 2}, s{sNONCE}
v_mov_b32 v{r + 3}, s{sNONCE + 1}""")


def hint_put(r):
    a("s_mov_b64 exec, 0xff")
    a(f"buffer_store_dwordx4 {vr(r, 4)}, v{r + 4}, {srd(S_WS)}, 0 offen sc1", tag="hint")
    a("s_mov_b64 exec, -1")


def poll_issue(edge, r, ra=None):
    ra = r + 2 if ra is None else ra
    a(f"""s_lshl_b32 s{sT3}, s{sX}, 14
s_add_u32 s{sT3}, s{sT3}, {FL + edge * 0x20000}
v_lshl_add_u32 v{ra}, v{ra}, 6, s{sT3}
buffer_load_dwordx2 {vr(r, 2)}, v{ra}, {srd(S_WS)}, 0 offen sc1""")


def poll_take(r, ra=None):
    ra = r + 2 if ra is None else ra
    ok, lp = label("pok"), label("plp")
    a(f"v_cmp_ne_u64 vcc, {sp(sNONCE)}, {vr(r, 2)}")
    a(f"s_cbranch_vccz {ok}")
    a(f"s_mov_b32 s{sCNT}, 0")
    a(f"{lp}:")
    if OPT["slp"]:
        a(f"s_sleep {OPT['slp']}")
    a(f"buffer_load_dwordx2 {vr(r, 2)}, v{ra}, {srd(S_WS)}, 0 offen sc1")
    a("s_waitcnt vmcnt(0)")
    a(f"v_cmp_ne_u64 vcc, {sp(sNONCE)}, {vr(r, 2)}")
    a(f"s_add_u32 s{sCNT}, s{sCNT}, 1")
    a(f"s_cbranch_vccz {ok}")
    a(f"s_cmp_lt_u32 s{sCNT}, 0x100000")
    a(f"s_cbranch_scc1 {lp}")
    a(f"{ok}:")


sW1O, sW2O = 98, 99
sROT1, sROT2 = 33, 35
sW1E, sW2E = 78, 79


def w_setup():
    a(f"""v_lshrrev_b32 v2, 3, v{vLANE}
v_and_b32 v3, 7, v{vLANE}
v_bfe_u32 v4, v{vLANE}, 4, 1
v_lshlrev_b32 v4, 2, v4
v_xor_b32 v3, v3, v4
v_lshlrev_b32 v3, 4, v3
v_mul_u32_u24 v{vD1}, 3584, v2
v_add_u32 v{vD1}, v{vD1}, v3
v_lshl_add_u32 v{vD2}, v2, 12, v3
v_bfe_u32 v2, v{vLANE}, 2, 2
v_lshrrev_b32 v3, 5, v{vLANE}
v_bfe_u32 v4, v{vLANE}, 4, 1
v_and_b32 v5, 3, v{vLANE}
v_lshlrev_b32 v5, 3, v5
v_lshl_add_u32 v5, v4, 5, v5
v_lshrrev_b32 v4, 1, v2
v_lshl_add_u32 v5, v4, 6, v5
s_lshr_b32 s{sT0}, s{sWAVE}, 1
s_lshl_b32 s{sT0}, s{sT0}, 6
v_xor_b32 v5, s{sT0}, v5
v_lshl_add_u32 v5, v2, 7, v5
s_mul_i32 s{sT1}, s{sWAVE}, 24576
s_add_u32 s{sT1}, s{sT1}, {W2L}
v_add_u32 v5, s{sT1}, v5
v_lshl_add_u32 v{vT1a}, v3, 10, v5
v_xor_b32 v{vT1b}, 64, v{vT1a}
v_lshl_add_u32 v{vT2a}, v3, 9, v5
v_xor_b32 v{vT2b}, 64, v{vT2a}
s_mul_i32 s{sW1O}, s{sWAVE}, {512 * 3584}
s_lshl_b32 s{sT0}, s{sNT}, 7
s_add_u32 s{sW1O}, s{sW1O}, s{sT0}
s_mul_i32 s{sW2O}, s{sWAVE}, {448 * 4096}
s_lshl_b32 s{sT0}, s{sST}, 7
s_add_u32 s{sW2O}, s{sW2O}, s{sT0}
s_mov_b32 s{sWOFF}, s{sT1}""")
    if OPT["rot"] and OPT["map18"] == 1:
        if OPT["rot"] == 2:
            a(f"""s_add_u32 s{sROT1}, s{sDT1}, s{sX}
s_and_b32 s{sROT1}, s{sROT1}, 7
s_add_u32 s{sROT2}, s{sDT2}, s{sX}
s_cmp_ge_u32 s{sROT2}, 7
s_cselect_b32 s{sT0}, 7, 0
s_sub_u32 s{sROT2}, s{sROT2}, s{sT0}""")
        else:
            a(f"s_mov_b32 s{sROT1}, s{sDT1}\ns_mov_b32 s{sROT2}, s{sDT2}")
    elif OPT["rot"] == 3:
        a(f"""s_and_b32 s{sT0}, s{sDT1}, 3
s_lshr_b32 s{sT1}, s{sDT1}, 2
s_add_u32 s{sT1}, s{sT1}, 2
s_mul_i32 s{sROT1}, s{sT0}, s{sT1}
s_min_u32 s{sROT1}, s{sROT1}, 7
s_and_b32 s{sT0}, s{sDT2}, 3
s_lshr_b32 s{sT1}, s{sDT2}, 2
s_add_u32 s{sT1}, s{sT1}, 2
s_mul_i32 s{sROT2}, s{sT0}, s{sT1}
s_min_u32 s{sROT2}, s{sROT2}, 5""")
    elif OPT["rot"]:
        a(f"""s_and_b32 s{sT0}, s{sDT1}, 3
s_lshl_b32 s{sT0}, s{sT0}, 1
s_lshr_b32 s{sT1}, s{sDT1}, 2
s_add_u32 s{sT0}, s{sT0}, s{sT1}
s_and_b32 s{sROT1}, s{sT0}, 7
s_and_b32 s{sT0}, s{sDT2}, 3
s_lshl_b32 s{sT0}, s{sT0}, 1
s_lshr_b32 s{sT1}, s{sDT2}, 2
s_add_u32 s{sT0}, s{sT0}, s{sT1}
s_min_u32 s{sROT2}, s{sT0}, 6""")
        if OPT["map18"] == 2:
            a(f"s_mov_b32 s{sROT2}, s{sDT2}")
    else:
        a(f"s_mov_b32 s{sROT1}, 0\ns_mov_b32 s{sROT2}, 0")
    a(f"""s_add_u32 s{sW1E}, s{sW1O}, {512 * 3584}
s_mul_i32 s{sT0}, s{sROT1}, {64 * 3584}
s_add_u32 s{sW1O}, s{sW1O}, s{sT0}
s_add_u32 s{sW2E}, s{sW2O}, {448 * 4096}
s_mul_i32 s{sT0}, s{sROT2}, {64 * 4096}
s_add_u32 s{sW2O}, s{sW2O}, s{sT0}""")


WORDER = list(range(0, 4)) + list(range(32, 36)) + list(range(4, 32)) + list(range(36, 60))


def w_dma(pos, half):
    slot = pos % 12
    n = WORDER[pos]
    g = [Ins(f"s_add_u32 m0, s{sWOFF}, {slot * 2048 + half * 1024}")]
    if n < 32:
        g.append(Ins(f"s_add_u32 s{sW1O}, s{sW1O}, {8 * 3584}") if (n or half) else Ins("s_nop 0"))
        if n and n % 4 == 0 and half == 0:
            g += [Ins(f"s_cmp_eq_u32 s{sW1O}, s{sW1E}"), Ins(f"s_cselect_b32 s3, {512 * 3584}, 0"), Ins(f"s_sub_u32 s{sW1O}, s{sW1O}, s3")]
        g.append(Ins(f"buffer_load_dwordx4 v{vD1}, {srd(S_W1)}, s{sW1O} offen lds", res_w=[f"slot{slot}"]))
    else:
        g.append(Ins(f"s_add_u32 s{sW2O}, s{sW2O}, {8 * 4096}") if (n > 32 or half) else Ins("s_nop 0"))
        if n > 32 and n % 4 == 0 and half == 0:
            g += [Ins(f"s_cmp_eq_u32 s{sW2O}, s{sW2E}"), Ins(f"s_cselect_b32 s3, {448 * 4096}, 0"), Ins(f"s_sub_u32 s{sW2O}, s{sW2O}, s3")]
        g.append(Ins(f"buffer_load_dwordx4 v{vD2}, {srd(S_W2)}, s{sW2O} offen lds", res_w=[f"slot{slot}"]))
    return g


def w_tr(pos):
    slot = pos % 12
    n = WORDER[pos]
    g = []
    for nb in range(2):
        for j in range(2):
            if n < 32:
                r = (n * 2 + nb) * 4 + 2 * j
                g.append(Ins(f"ds_read_b64_tr_b16 a[{r}:{r + 1}], v{(vT1a, vT1b)[nb]} offset:{slot * 2048 + j * 512}", res_r=[f"slot{slot}"]))
            else:
                r = 128 + ((n - 32) * 2 + nb) * 4 + 2 * j
                g.append(Ins(f"ds_read_b64_tr_b16 v[{r}:{r + 1}], v{(vT2a, vT2b)[nb]} offset:{slot * 2048 + j * 1024}", res_r=[f"slot{slot}"]))
    return g


def w_all_upfront():
    for n in range(12):
        a.put(w_dma(n, 0)); a.put(w_dma(n, 1))
    for n in range(48):
        a.put(w_tr(n))
        if n >= 1:
            a.put(w_dma(n + 11, 0)); a.put(w_dma(n + 11, 1))
    a.put(w_dma(59, 0)); a.put(w_dma(59, 1))
    a.wait_vm0()
    a.wait_lgkm0()


PR = 56
TAB = 104


def kgen_loads():
    a(f"""s_lshl_b32 s{sT0}, s{sPAIR}, 10
s_lshl_b32 s{sT1}, s{sWAVE}, 8
s_add_u32 s{sT0}, s{sT0}, s{sT1}
v_lshl_add_u32 v3, v{vLANE}, 2, s{sT0}""")
    for k, p in enumerate((P_ARE, P_AIM, P_BRE, P_BIM, P_CRE, P_CIM)):
        a(f"global_load_dword v{PR + k}, v3, {sp(p)}")


def kgen_table_addr():
    l = label("pc")
    a(f"s_getpc_b64 {sp(sTAB)}")
    a(f"{l}:")
    a(f"s_add_u32 s{sTAB}, s{sTAB}, ktab-{l}")
    a(f"s_addc_u32 s{sTAB + 1}, s{sTAB + 1}, 0")


def kgen_table_load():
    kgen_table_addr()
    a(f"s_lshr_b32 s{sT0}, s{sWAVE}, 1\ns_lshl_b32 s{sT0}, s{sT0}, 5\nv_lshl_add_u32 v75, v0, 5, s{sT0}")


KBG = []


def kgen(hooks):
    F = {e: 2 * e for e in range(1, 8)}
    Qr = {1: 16, 2: 18, 3: 20, 4: 22}
    QN = [24, 26]
    Z1, Z2, C0, C1 = 28, 30, 32, 34
    CN = [36, 38]
    T0, T1 = 62, 64
    CV = [66, 67, 68, 69]
    A2, B2, DT = 70, 71, 72
    ACC = 76
    QF = 88
    PF = 40
    vG, vF = 73, 74
    a(f"""s_mul_i32 s{sT0}, s{sWAVE}, {GST}
v_lshl_add_u32 v{vG}, v{vLANE}, 2, s{sT0}
v_and_b32 v2, 15, v{vLANE}
v_mul_u32_u24 v2, {GROW}, v2
v_lshrrev_b32 v3, 4, v{vLANE}
v_lshl_add_u32 v2, v3, 4, v2
v_add_u32 v{vF}, s{sT0}, v2""")
    a.begin()
    a(f"""s_lshr_b32 s{sT0}, s{sWAVE}, 1
s_lshl_b32 s{sT0}, s{sT0}, 4
s_lshr_b32 s{sT0}, s{sLDT}, s{sT0}
s_lshl_b32 s{sT0}, s{sT0}, 16
v_mov_b32 v2, {f32(math.log2(math.e))}
v_mul_f32 v2, s{sT0}, v2
v_exp_f32 v2, v2
v_cvt_pk_bf16_f32 v2, v2, v2
v_lshlrev_b32 v{DT}, 16, v2
s_and_b32 s{sD1}, s{sD0}, 0xffff0000
s_lshl_b32 s{sD0}, s{sD0}, 16""")
    cvi = [0]

    def hook(name):
        if name is not None and name not in hooks:
            return
        a_body = space_ds(a.end(), OPT["lag"], OPT["gap"])
        m, rest = merge(a_body, KBG[:], 20, OPT["ev_kg"])
        del KBG[:]
        a.put(m)
        put_all(rest)
        if name is not None:
            hooks[name]()
            a.begin()

    def row(r, src, neg=False):
        c = CV[cvi[0] % 4]
        cvi[0] += 1
        a(f"v_cvt_pk_bf16_f32 v{c}, v{src}, {'-' if neg else ''}v{src + 1}")
        a(f"ds_write_b32 v{vG}, v{c} offset:{r * GROW}")

    def reads(dst, tile):
        for ks in range(4):
            a(f"ds_read_b128 {vr(dst + 4 * ks, 4)}, v{vF} offset:{tile * 16 * GROW + ks * 64}")

    def mfmas(t, first):
        for ks in range(4):
            c = "0" if (first and ks == 0) else vr(ACC + 4 * t, 4)
            a(f"v_mfma_f32_16x16x32_bf16 {vr(ACC + 4 * t, 4)}, {vr(PF + 4 * ks, 4)}, {vr(QF + 4 * ks, 4)}, {c}")

    def direct(d, scale):
        if scale != 1:
            a(f"v_mul_f32 v{T0}, {f32(scale)}, v{A2}")
            a(f"v_mul_f32 v{T1}, {f32(scale)}, v{B2}")
            x, y = T0, T1
        else:
            x, y = A2, B2
        a(f"v_fract_f32 v{T1}, v{y}")
        a(f"v_exp_f32 v{T0}, v{x}")
        a(f"v_cos_f32 v{d}, v{T1}")
        a(f"v_sin_f32 v{d + 1}, v{T1}")
        a(f"v_pk_mul_f32 {vr(d, 2)}, {vr(d, 2)}, {vr(T0, 2)} op_sel_hi:[1,0]")

    for rd in range(2):
        def up(d, s):
            a(f"v_lshlrev_b32 v{d}, 16, v{s}" if rd == 0 else f"v_and_b32 v{d}, 0xffff0000, v{s}")
        up(A2, PR); up(B2, PR + 1)
        up(QN[0], PR + 2); up(QN[0] + 1, PR + 3)
        up(QN[1], PR + 4); up(QN[1] + 1, PR + 5)
        a(f"v_mul_f32 v{A2}, v{DT}, v{A2}")
        a(f"v_mul_f32 v{B2}, v{DT}, v{B2}")
        a(f"v_pk_mul_f32 {vr(QN[0], 2)}, {vr(QN[0], 2)}, {vr(DT, 2)} op_sel_hi:[1,0]")
        a(f"v_mul_f32 v{A2}, {f32(math.log2(math.e))}, v{A2}")
        a(f"v_mul_f32 v{B2}, {f32(1 / (2 * math.pi))}, v{B2}")
        cmul2((C0, QN[1], QN[0]))
        direct(F[1], 1)
        if rd == 1:
            mfmas(2, True)
        direct(Z1, 128)
        hook(5 * rd)
        cmul2((F[2], F[1], F[1]), (Z2, Z1, Z1))
        cmul2((F[4], F[2], F[2]), (F[3], F[2], F[1]))
        cmul2((Qr[1], F[4], F[4]), (C1, C0, Z1))
        a(f"v_mov_b32 v{CV[3]}, 0x3f80")
        a(f"ds_write_b32 v{vG}, v{CV[3]}")
        cmul2((Qr[2], Qr[1], Qr[1]), (F[5], F[4], F[1]))
        row(1, Qr[1], True)
        cmul2((Qr[3], Qr[2], Qr[1]), (Qr[4], Qr[2], Qr[2]))
        row(2, Qr[2], True)
        cmul2((F[6], F[4], F[2]), (F[7], F[4], F[3]))
        row(3, Qr[3], True)
        row(4, Qr[4], True)
        cur = {1: Qr[1], 2: Qr[2], 3: Qr[3], 0: Qr[4]}
        free = list(QN) + [CN[0]]
        j = 5
        while j < 16:
            js = [j] + ([j + 1] if j + 1 < 16 else [])
            ps = []
            for jj in js:
                d = free.pop(0)
                ps.append((d, cur[jj % 4], Qr[4]))
            cmul2(*ps)
            for jj, p in zip(js, ps):
                if cur[jj % 4] != Qr[4]:
                    free.append(cur[jj % 4])
                cur[jj % 4] = p[0]
                row(jj, p[0], True)
            j += 2
        reads(QF, 0)
        hook(5 * rd + 1)
        TA, TB = QN
        row(16, C0); row(24, C1)
        for e in range(1, 8):
            cmul2((TA, C0, F[e]), (TB, C1, F[e]))
            row(16 + e, TA); row(24 + e, TB)
        reads(PF, 1)
        hook(5 * rd + 2)
        ca, cb = C0, C1
        na, nb_ = CN
        def adv():
            nonlocal ca, cb, na, nb_
            cmul2((na, ca, Z2), (nb_, cb, Z2))
            ca, cb, na, nb_ = na, nb_, ca, cb
        adv()
        row(32, ca); row(36, cb)
        for e in range(1, 4):
            cmul2((TA, ca, F[2 * e]), (TB, cb, F[2 * e]))
            row(32 + e, TA); row(36 + e, TB)
        mfmas(0, rd == 0)
        for k in range(2):
            adv()
            row(40 + 4 * k, ca); row(42 + 4 * k, cb)
            cmul2((TA, ca, F[4]), (TB, cb, F[4]))
            row(41 + 4 * k, TA); row(43 + 4 * k, TB)
        reads(PF, 2)
        hook(5 * rd + 3)
        for k in range(4):
            adv()
            row(48 + 2 * k, ca); row(49 + 2 * k, cb)
        cmul2((na, ca, Z2))
        row(56, na)
        mfmas(1, rd == 0)
        reads(PF, 3)
        hook(5 * rd + 4)
    hook(None)
    a(f"s_mul_i32 s{sT0}, s{sWAVE}, {GST}")
    a(f"v_add_u32 v{vF}, s{sT0}, v{vL16}")
    a(f"v_mov_b32 v{CV[0]}, 0")
    for k in range(8):
        a(f"v_and_b32 v{2 + 2 * k}, 0xffff, v{TAB + k}")
        a(f"v_lshrrev_b32 v{3 + 2 * k}, 16, v{TAB + k}")
    for t in range(2):
        a(f"ds_write_b128 v{vF}, {vr(ACC + 4 * t, 4)} offset:{TOFF + t * 1024}")
    mfmas(2, False)
    a(f"ds_write_b32 v{vG}, v{CV[0]} offset:{TOFF + 3072}")
    a("v_and_b32 v18, 0xffff, v0\nv_lshrrev_b32 v19, 16, v0\nv_and_b32 v20, 0xffff, v1")
    a(f"ds_write_b128 v{vF}, {vr(ACC + 8, 4)} offset:{TOFF + 2048}")


def kzero(r):
    a(f"""v_mov_b32 v{r}, 0
v_mov_b32 v{r + 1}, 0
v_mov_b32 v{r + 2}, 0
v_mov_b32 v{r + 3}, 0
v_bfe_u32 v{r + 4}, v{vLANE}, 1, 3
v_mul_u32_u24 v{r + 4}, {KST}, v{r + 4}
v_and_b32 v{r + 5}, 1, v{vLANE}
v_lshl_add_u32 v{r + 4}, v{r + 5}, 4, v{r + 4}
s_and_b32 s{sT0}, s{sWAVE}, 1
s_mul_i32 s{sT0}, s{sT0}, {UST}
v_add_u32 v{r + 5}, s{sT0}, v{vL16}""")
    return [f"ds_write_b128 v{r + 4}, {vr(r, 4)} offset:4096", f"ds_write_b128 v{r + 5}, {vr(r, 4)} offset:{UB}"]


def kaddr(r):
    a(f"""s_lshr_b32 s{sT0}, s{sWAVE}, 1
s_and_b32 s{sT1}, s{sWAVE}, 1
s_lshl_b32 s{sT1}, s{sT1}, 11
v_lshl_add_u32 v{r + 3}, v{vLANE}, 5, s{sT1}""")
    for c in range(4):
        a(f"s_cmp_lg_u32 s{sT0}, 0")
        a(f"s_cselect_b32 s{sT2}, {KSLOT[1][c]}, {KSLOT[0][c]}")
        a(f"s_mul_i32 s{sT2}, s{sT2}, {KST}")
        a(f"v_add_u32 v{r + c}, s{sT2}, v{r + 3}")


def kexpand(mid):
    AD, VAL = 2, 22
    P0, P1, P2, P3 = 2, 12, 88, 96
    a.barrier()
    for k in range(19):
        a(f"ds_read2st64_b32 {vr(VAL + 2 * k, 2)}, v{AD + k} offset0:{TOFF // 256} offset1:{TOFF // 256 + GST // 256}")
    mid()
    kaddr(60)
    zw = kzero(104)
    for k in range(19):
        a(f"v_add_f32 v{VAL + 2 * k}, v{VAL + 2 * k}, v{VAL + 2 * k + 1}")
        if k:
            a(f"v_cvt_pk_bf16_f32 v{(P0 if k & 1 else P1) + (k - 1) // 2}, v{VAL + 2 * k - 2}, v{VAL + 2 * k}")
    a.barrier()
    a.begin()
    for l in zw:
        a(l)
    for c, P in ((0, P0), (1, P1)):
        a(f"ds_write_b128 v{60 + c}, {vr(P, 4)}")
        a(f"ds_write_b128 v{60 + c}, {vr(P + 4, 4)} offset:16")
    for c, P, src in ((2, P2, P0), (3, P3, P1)):
        for i in range(4):
            a(f"v_pk_mov_b32 {vr(P + 2 * i, 2)}, {vr(src + 2 * i, 2)}, {vr(src + 2 * i + 2, 2)} op_sel:[1,0]")
        a(f"ds_write_b128 v{60 + c}, {vr(P, 4)}")
        a(f"ds_write_b128 v{60 + c}, {vr(P + 4, 4)} offset:16")
    return a.end()


def kcopies():
    R, E, M = 2, 12, 22
    kaddr(40)
    a(f"""ds_read_b128 {vr(R, 4)}, v40
ds_read_b128 {vr(R + 4, 4)}, v40 offset:16
ds_read_b64 {vr(R + 8, 2)}, v40 offset:32""")
    for l in kzero(32):
        a(l)
    for i in range(9):
        a(f"v_alignbit_b32 v{E + i}, v{R + i + 1}, v{R + i}, 16")
    a(f"ds_write_b128 v41, {vr(E, 4)}")
    a(f"ds_write_b128 v41, {vr(E + 4, 4)} offset:16")
    for i in range(4):
        a(f"v_pk_mov_b32 {vr(M + 2 * i, 2)}, {vr(R + 2 * i, 2)}, {vr(R + 2 * i + 2, 2)} op_sel:[1,0]")
    a(f"ds_write_b128 v42, {vr(M, 4)}")
    a(f"ds_write_b128 v42, {vr(M + 4, 4)} offset:16")
    for i in range(4):
        a(f"v_pk_mov_b32 {vr(R + 2 * i, 2)}, {vr(E + 2 * i, 2)}, {vr(E + 2 * i + 2, 2)} op_sel:[1,0]")
    a(f"ds_write_b128 v43, {vr(R, 4)}")
    a(f"ds_write_b128 v43, {vr(R + 4, 4)} offset:16")


GX = 80
CS = 64
cvA, cvB, cvZ, cvXW, cvXR, cvO, cvU, cvX, cvH, cvP = 112, 113, 114, 115, 116, 117, 118, 119, 100, 108
STUBS = []


def conv_poll1():
    r = cvP
    a(f"""v_lshrrev_b32 v{r}, 3, v{vLANE}
v_min_u32 v{r}, 6, v{r}
v_and_b32 v{r + 1}, 7, v{vLANE}
v_lshl_add_u32 v{r + 2}, v{r}, 5, v{r + 1}
s_lshl_b32 s{sT0}, s{sWAVE}, 3
v_add_u32 v{r + 2}, s{sT0}, v{r + 2}
v_and_b32 v{r + 1}, 7, v{vLANE}
v_min_u32 v{r}, 6, v{r + 1}
v_lshl_add_u32 v{r + 3}, v{r}, 5, v{r + 1}
v_add_u32 v{r + 3}, s{sT0}, v{r + 3}""")


def conv_loads():
    for p in range(4):
        a(f"buffer_load_dwordx4 {vr(CS + 4 * p, 4)}, v{vL16}, {srd(S_WS)}, s{16 + p} offen sc1")
    a(f"buffer_load_dwordx4 {vr(GX, 4)}, v{cvX}, {srd(S_WS)}, s20 offen sc1")
    a(f"buffer_load_dwordx4 {vr(GX + 4, 4)}, v{cvX}, {srd(S_WS)}, s20 offen offset:64 sc1")


def conv_setup(layer):
    a(f"""s_mov_b32 s{sCA}, {f32(1.0 / 448)}
s_mov_b32 s{sCB}, {f32(1e-5)}
s_lshl_b32 s{sT0}, s{sWAVE}, 10
v_add_u32 v{cvU}, s{sT0}, v{vL16}
s_lshr_b32 s{sT0}, s{sWAVE}, 1
s_and_b32 s{sT1}, s{sWAVE}, 1
v_and_b32 v8, 15, v{vLANE}
v_lshrrev_b32 v9, 4, v{vLANE}
v_not_b32 v10, v8
v_and_b32 v10, 3, v10""")
    for s in range(4):
        a(f"s_cmp_lg_u32 s{sT0}, 0")
        a(f"s_cselect_b32 s{sT2}, {KSLOT[1][s]}, {KSLOT[0][s]}")
        a(f"s_mul_i32 s{sT2}, s{sT2}, {KST}")
        if s == 0:
            a(f"v_mov_b32 v11, s{sT2}")
        else:
            a(f"v_mov_b32 v12, s{sT2}\nv_cmp_eq_u32 vcc, {s}, v10\nv_cndmask_b32 v11, v11, v12, vcc")
    a(f"""v_add_u32 v10, v10, v8
v_lshlrev_b32 v12, 3, v9
v_sub_u32 v12, v12, v10
v_lshl_add_u32 v11, v12, 1, v11
""")
    a(f"""s_lshl_b32 s{sT3}, s{sT1}, 8
s_sub_u32 s{sT2}, {2 * 2031 - 64 * 59}, s{sT3}
v_add_u32 v{cvA}, s{sT2}, v11
s_mul_i32 s{sT2}, s{sT0}, {UST}
s_sub_u32 s{sT2}, s{sT2}, s{sT3}
s_add_u32 s{sT2}, s{sT2}, {UB + UPAD - 2 * 112}
v_lshlrev_b32 v12, 5, v8
v_lshl_add_u32 v13, v9, 4, v12
v_add_u32 v{cvB}, s{sT2}, v13
s_lshl_b32 s{sT2}, s{sWAVE}, 11
v_lshl_add_u32 v13, v9, 3, v12
v_add_u32 v{cvZ}, s{sT2}, v13
s_xor_b32 s{sT2}, s{sWAVE}, 1
s_lshl_b32 s{sT2}, s{sT2}, 12
v_add_u32 v{cvXW}, s{sT2}, v{vL16}
s_lshl_b32 s{sT2}, s{sWAVE}, 12
v_add_u32 v{cvXR}, s{sT2}, v{vL16}
v_and_b32 v10, 1, v9
v_lshlrev_b32 v10, 3, v10
v_lshrrev_b32 v11, 1, v8
v_add_u32 v10, v10, v11
v_mul_u32_u24 v10, {BS}, v10
v_and_b32 v11, 1, v8
v_lshl_add_u32 v10, v11, 5, v10
v_lshrrev_b32 v11, 1, v9
v_lshl_add_u32 v{cvO}, v11, 4, v10
s_mul_i32 s{sT1}, s{sT1}, {32 * BS}
s_lshl_b32 s{sT2}, s{sPAIR}, 1
s_add_u32 s{sT0}, s{sT0}, s{sT2}
s_lshl_b32 s{sT0}, s{sT0}, 6
s_add_u32 s{sT0}, s{sT0}, s{sT1}
s_add_u32 s13, s{sT0}, {X1 if layer == 0 else X3}
s_add_u32 s21, s13, {16 * BS}""" if OPT["cv"] else f"""v_add_u32 v{cvA}, {2 * 2031 - 64 * 63}, v11
s_mul_i32 s{sT2}, s{sT0}, {UST}
s_lshl_b32 s{sT3}, s{sT1}, 9
s_add_u32 s{sT2}, s{sT2}, s{sT3}
s_add_u32 s{sT2}, s{sT2}, {UB + UPAD - 2 * 496}
v_lshlrev_b32 v12, 5, v8
v_lshl_add_u32 v13, v9, 4, v12
v_add_u32 v{cvB}, s{sT2}, v13
s_lshl_b32 s{sT2}, s{sT0}, 12
s_add_u32 s{sT2}, s{sT2}, s{sT3}
v_lshl_add_u32 v13, v9, 3, v12
v_add_u32 v{cvZ}, s{sT2}, v13
v_and_b32 v10, 1, v9
v_lshlrev_b32 v10, 4, v10
v_lshrrev_b32 v11, 1, v8
v_add_u32 v10, v10, v11
v_mul_u32_u24 v10, {BS}, v10
v_and_b32 v11, 1, v8
v_lshl_add_u32 v10, v11, 5, v10
v_lshrrev_b32 v11, 1, v9
v_lshl_add_u32 v{cvO}, v11, 4, v10
s_mul_i32 s{sT1}, s{sT1}, {8 * BS}
s_lshl_b32 s{sT2}, s{sPAIR}, 1
s_add_u32 s{sT0}, s{sT0}, s{sT2}
s_lshl_b32 s{sT0}, s{sT0}, 6
s_add_u32 s{sT0}, s{sT0}, s{sT1}
s_add_u32 s13, s{sT0}, {X1 if layer == 0 else X3}
s_add_u32 s21, s13, {32 * BS}""")
    a(f"""s_lshl_b32 s16, s{sWAVE}, 10
s_add_u32 s16, s16, {ST0 if layer == 0 else ST1}
s_add_u32 s17, s16, 4096
s_add_u32 s18, s16, 8192
s_add_u32 s19, s16, 12288
s_mul_i32 s20, s{sWAVE}, {16 * BS}
s_lshl_b32 s{sT2}, s{sPAIR}, 7
s_add_u32 s20, s20, s{sT2}
s_add_u32 s20, s20, {X0 if layer == 0 else X2}
v_lshrrev_b32 v10, 2, v{vLANE}
v_mul_u32_u24 v10, {BS}, v10
v_and_b32 v11, 3, v{vLANE}
v_lshl_add_u32 v{cvX}, v11, 4, v10""")


cXF, cUF, cAL, cBE, cUP = 0, 16, 32, 40, 48


def conv_pro(layer):
    XF, UF, AL, BE, UP = cXF, cUF, cAL, cBE, cUP
    for p in range(4):
        S = CS + 4 * p
        a(f"v_pk_mul_f32 {vr(S, 2)}, {vr(S, 2)}, {sp(sCA)} op_sel_hi:[1,0]")
    for p in range(4):
        S = CS + 4 * p
        a(f"v_pk_fma_f32 {vr(BE + 2 * p, 2)}, {vr(S, 2)}, {vr(S, 2)}, {sp(sCB)} op_sel_hi:[1,1,0] neg_lo:[1,0,0] neg_hi:[1,0,0]")
    for p in range(4):
        Q = CS + 4 * p + 2
        a(f"v_pk_fma_f32 {vr(Q, 2)}, {vr(Q, 2)}, {sp(sCA)}, {vr(BE + 2 * p, 2)} op_sel_hi:[1,0,1]")
    for p in range(4):
        Q = CS + 4 * p + 2
        a(f"v_max_f32 v{Q}, s{sCB}, v{Q}\nv_max_f32 v{Q + 1}, s{sCB}, v{Q + 1}")
    for p in range(4):
        Q = CS + 4 * p + 2
        a(f"v_rsq_f32 v{AL + 2 * p}, v{Q}\nv_rsq_f32 v{AL + 2 * p + 1}, v{Q + 1}")
    for k in range(8):
        unpack(XF + 2 * k, XF + 2 * k + 1, GX + k)
    for p in range(4):
        S = CS + 4 * p
        a(f"v_pk_mul_f32 {vr(BE + 2 * p, 2)}, {vr(S, 2)}, {vr(AL + 2 * p, 2)} neg_lo:[1,0] neg_hi:[1,0]")
    for c in range(2):
        for p in range(4):
            a(f"v_pk_fma_f32 {vr(UF + 8 * c + 2 * p, 2)}, {vr(XF + 8 * c + 2 * p, 2)}, {vr(AL + 2 * p, 2)}, {vr(BE + 2 * p, 2)}")
        for p in range(4):
            a(f"v_cvt_pk_bf16_f32 v{UP + 4 * c + p}, v{UF + 8 * c + 2 * p}, v{UF + 8 * c + 2 * p + 1}")
        a(f"ds_write_b128 v{cvU}, {vr(UP + 4 * c, 4)} offset:{UB + c * UST + UPAD}")
    if OPT["cv"]:
        for i in a.capture(conv_z, 88):
            if i.kind != "dsw":
                a.put([i])


def conv_z(ZP=cXF):
    XF, UF = cXF, cUF
    for c in range(2):
        for p in range(4):
            a(f"v_pk_fma_f32 {vr(UF + 8 * c + 2 * p, 2)}, {vr(UF + 8 * c + 2 * p, 2)}, {sp((sD0, sD1)[c])}, {vr(XF + 8 * c + 2 * p, 2)} op_sel_hi:[1,0,1]")
        for p in range(4):
            a(f"v_cvt_pk_bf16_f32 v{ZP + 4 * c + p}, v{UF + 8 * c + 2 * p}, v{UF + 8 * c + 2 * p + 1}")
        a(f"ds_write_b128 v{cvU}, {vr(ZP + 4 * c, 4)} offset:{ZB + c * 4096}")


def conv_main(layer, bg=(), bg_start=0, bg_every=64):
    return (conv_main_r if OPT["cv"] else conv_main_t)(layer, bg, bg_start, bg_every)


def conv_main_r(layer, bg, bg_start, bg_every):
    ACC, BF, AR = 0, 32, 64
    NA = 6
    EX2 = ZB
    seq = [(r, q) for r in range(4) for q in range(7, -1, -1)]
    e = 1 + 4 * layer

    def rdA(i):
        r, q = seq[i]
        d = AR + 4 * (i % NA)
        off = 64 * (59 - (8 * q + r))
        return [Ins(f"ds_read_b64 {vr(d, 2)}, v{cvA} offset:{off}"), Ins(f"ds_read_b64 {vr(d + 2, 2)}, v{cvA} offset:{off + 8}")]

    def rdB(r, p):
        return [Ins(f"ds_read_b128 {vr(BF + 4 * p, 4)}, v{cvB} offset:{512 * p + 64 * (3 - r)}")]

    a.put(rdA(0)); a.put(rdB(0, 0)); a.put(rdA(1)); a.put(rdB(0, 1)); a.put(rdA(2)); a.put(rdB(0, 2)); a.put(rdA(3))
    a.put(rdB(0, 3)); a.put(rdA(4))
    for p in range(4, 8):
        a.put(rdB(0, p))
    ZR, ZF, RR = 88, 64, 32
    side = [[i] for i in a.capture(conv_z, 88) if i.kind == "dsw"]
    if hinted(e):
        side += [[i] for i in a.capture(hint_prep, e + 10, sPAIR, cvH)]
    late = [[Ins("s_barrier")]] + [[Ins(f"ds_read_b64 {vr(ZR + 2 * i, 2)}, v{cvZ} offset:{ZB + i * 512}")] for i in range(4)]
    late2 = [[Ins("s_barrier")]]
    a.begin()
    started = set()
    for i, (r, q) in enumerate(seq):
        if hinted(e) and OPT["h_cv"] < 0 and i == 32 + OPT["h_cv"]:
            hint_put(cvH)
        ps = list(range(8 - q))
        for p in ps:
            b = q + p
            c = vr(ACC + 4 * b, 4) if b in started else "0"
            started.add(b)
            a(f"v_mfma_f32_16x16x32_bf16 {vr(ACC + 4 * b, 4)}, {vr(AR + 4 * (i % NA), 4)}, {vr(BF + 4 * p, 4)}, {c}")
            if p == 0 and i + NA - 1 < len(seq):
                a.put(rdA(i + NA - 1))
            elif 1 <= q <= 4 and p >= 1:
                for lst, r0 in ((side, 0), (late, 2), (late2, 3)):
                    if lst and r >= r0:
                        a.put(lst.pop(0))
                        break
            if q == 0 and r < 3:
                a.put(rdB(r + 1, p))
    assert not side and not late and not late2
    m, rest = merge(a.end(), list(bg), bg_start, bg_every)
    a.put(m)
    stamp(f"conv{layer} loop", 111)
    if hinted(e) and OPT["h_cv"] == 0:
        hint_put(cvH)
    for k in range(8):
        unpack(ZF + 2 * k, ZF + 2 * k + 1, ZR + k)
    l1, l2 = label("cx"), label("cy")
    a(f"s_bitcmp1_b32 s{sWAVE}, 0")
    a(f"s_cbranch_scc1 {l1}")
    for h in range(2):
        for i in range(4):
            a(f"ds_write_b128 v{cvXW}, {vr(ACC + 16 * (1 - h) + 4 * i, 4)} offset:{EX2 + i * 1024}")
            for k in range(2):
                a(f"v_pk_add_f32 {vr(ZF + 4 * i + 2 * k, 2)}, {vr(ZF + 4 * i + 2 * k, 2)}, {vr(ACC + 16 * h + 4 * i + 2 * k, 2)}")
        if h == 0:
            a(f"s_branch {l2}")
            a(f"{l1}:")
    a(f"{l2}:")
    if (armed(1) if layer else sentinel(1)):
        poll_take(cvP)
    a.barrier()
    if hinted(e) and OPT["h_cv"] == 1:
        hint_put(cvH)
    for i in range(4):
        a(f"ds_read_b128 {vr(RR + 4 * i, 4)}, v{cvXR} offset:{EX2 + i * 1024}")
    PK = 56
    for i in range(4):
        for k in range(2):
            a(f"v_pk_add_f32 {vr(ZF + 4 * i + 2 * k, 2)}, {vr(ZF + 4 * i + 2 * k, 2)}, {vr(RR + 4 * i + 2 * k, 2)}")
        for k in range(2):
            a(f"v_cvt_pk_bf16_f32 v{PK + 2 * i + k}, v{ZF + 4 * i + 2 * k}, v{ZF + 4 * i + 2 * k + 1}")
        if i & 1:
            b = PK + 2 * (i - 1)
            a(f"v_permlane16_swap_b32 v{b}, v{b + 2}")
            a(f"v_permlane16_swap_b32 v{b + 1}, v{b + 3}")
            a(f"buffer_store_dwordx4 {vr(b, 4)}, v{cvO}, {srd(S_WS)}, s{21 if i == 3 else 13} offen sc1", tag="pub")
    if hinted(e) and OPT["h_cv"] == 2:
        hint_put(cvH)
    if not flagged(e):
        a.barrier()
    else:
        flag_put(1 + 4 * layer, sPAIR, 40, "pub")
    return rest


def conv_main_t(layer, bg, bg_start, bg_every):
    ACC, BF, AR = 84, 32, 64
    NA = 5
    QORD = (7, 5, 6, 3, 4, 2, 1, 0)
    seq = [(r, q) for r in range(8) for q in QORD]
    e = 1 + 4 * layer

    def rdA(i):
        r, q = seq[i]
        d = AR + 4 * (i % NA)
        off = 64 * (63 - (8 * q + r))
        return [Ins(f"ds_read_b64 {vr(d, 2)}, v{cvA} offset:{off}"), Ins(f"ds_read_b64 {vr(d + 2, 2)}, v{cvA} offset:{off + 8}")]

    def rdB(r, p):
        return [Ins(f"ds_read_b128 {vr(BF + 4 * (p + 1), 4)}, v{cvB} offset:{512 * (p + 1) + 64 * (7 - r)}")]

    a.put(rdA(0)); a.put(rdB(0, -1)); a.put(rdA(1)); a.put(rdB(0, 1)); a.put(rdA(2)); a.put(rdB(0, 0)); a.put(rdA(3))
    for p in (3, 2, 4, 5, 6):
        a.put(rdB(0, p))
    ZR, ZF = 16, 0
    side = [[i] for i in a.capture(conv_z)]
    if hinted(e):
        side += [[i] for i in a.capture(hint_prep, e + 10, sPAIR, cvH)]
    late = [[Ins("s_barrier")]] + [[Ins(f"ds_read_b64 {vr(ZR + 2 * i, 2)}, v{cvZ} offset:{ZB + i * 1024}")] for i in range(4)]
    late2 = [[i] for k in range(8) for i in a.capture(unpack, ZF + 2 * k, ZF + 2 * k + 1, ZR + k)]
    a.begin()
    started = set()
    n = 0
    for i, (r, q) in enumerate(seq):
        if hinted(e) and OPT["h_cv"] < 0 and i == 64 + OPT["h_cv"]:
            hint_put(cvH)
        first = True
        for t in range(q // 2, 4):
            p = 2 * t - q
            c = vr(ACC + 4 * t, 4) if t in started else "0"
            started.add(t)
            a(f"v_mfma_f32_16x16x32_bf16 {vr(ACC + 4 * t, 4)}, {vr(AR + 4 * (i % NA), 4)}, {vr(BF + 4 * (p + 1), 4)}, {c}")
            n += 1
            if first and i + 4 < len(seq):
                a.put(rdA(i + 4))
            elif q >= 2:
                for lst, r0 in ((side, 0), (late, 4), (late2, 5)):
                    if lst and r >= r0:
                        a.put(lst.pop(0))
                        if lst is side and lst:
                            a.put(lst.pop(0))
                        break
            first = False
            if q <= 1 and r < 7:
                a.put(rdB(r + 1, p))
    assert not side and not late and not late2
    m, rest = merge(a.end(), list(bg), bg_start, bg_every)
    a.put(m)
    stamp(f"conv{layer} loop", 111)
    if (armed(1) if layer else sentinel(1)):
        poll_take(cvP)
    if hinted(e) and OPT["h_cv"] == 0:
        hint_put(cvH)
    PK = 24
    for i in range(4):
        for k in range(2):
            a(f"v_pk_add_f32 {vr(ZF + 4 * i + 2 * k, 2)}, {vr(ZF + 4 * i + 2 * k, 2)}, {vr(ACC + 4 * i + 2 * k, 2)}")
        for k in range(2):
            a(f"v_cvt_pk_bf16_f32 v{PK + 2 * i + k}, v{ZF + 4 * i + 2 * k}, v{ZF + 4 * i + 2 * k + 1}")
        if i & 1:
            b = PK + 2 * (i - 1)
            a(f"v_permlane16_swap_b32 v{b}, v{b + 2}")
            a(f"v_permlane16_swap_b32 v{b + 1}, v{b + 3}")
            a(f"buffer_store_dwordx4 {vr(b, 4)}, v{cvO}, {srd(S_WS)}, s{21 if i == 3 else 13} offen sc1", tag="pub")
    if hinted(e) and OPT["h_cv"] > 0:
        hint_put(cvH)
    if not flagged(e):
        a.barrier()
    else:
        flag_put(1 + 4 * layer, sPAIR, 40, "pub")
    return rest


def reduce32(V, n, W):
    for i in range(n):
        a(f"v_permlane16_swap_b32 v{V[i]}, v{V[n + i]}")
    for i in range(n):
        a(f"v_add_f32 v{V[i]}, v{V[i]}, v{V[n + i]}")
    h = n // 2
    for i in range(h):
        a(f"v_add_f32_dpp v{W[i]}, v{V[i]}, v{V[i]} row_ror:8 row_mask:0xf bank_mask:0x3")
    for i in range(h):
        a(f"v_add_f32_dpp v{W[i]}, v{V[i + h]}, v{V[i + h]} row_ror:8 row_mask:0xf bank_mask:0xc")
    g = h // 2
    for i in range(g):
        a(f"v_add_f32_dpp v{V[i]}, v{W[i]}, v{W[i]} row_half_mirror row_mask:0xf bank_mask:0x5")
    for i in range(g):
        a(f"v_add_f32_dpp v{V[i]}, v{W[i + g]}, v{W[i + g]} row_half_mirror row_mask:0xf bank_mask:0xa")
    for m in ("[1,0,3,2]", "[2,3,0,1]"):
        for i in range(g):
            a(f"v_add_f32_dpp v{V[i]}, v{V[i]}, v{V[i]} quad_perm:{m} row_mask:0xf bank_mask:0xf")
    return V[:g]


def maxchain(t, regs):
    regs = list(regs)
    if OPT["chk"] == 1:
        regs = regs[3::4]
    if len(regs) == 2:
        return [f"v_max_u32 v{t}, v{regs[0]}, v{regs[1]}"]
    out = [f"v_max3_u32 v{t}, v{regs[0]}, v{regs[1]}, v{regs[2]}"]
    regs = regs[3:]
    while len(regs) >= 2:
        out.append(f"v_max3_u32 v{t}, v{t}, v{regs[0]}, v{regs[1]}")
        regs = regs[2:]
    if regs:
        out.append(f"v_max_u32 v{t}, v{t}, v{regs[0]}")
    return out


RETRY = 0x10000


def ln(layer, wide):
    X = X1 if layer == 0 else X3
    H = H1 if layer == 0 else H3
    nf = 7 if wide else 4
    sI = sLN0 if wide else sLN
    RAW, XF, S, Q, W = 0, 28, 84, 92, 100
    vO, vPW, vPR, vAW, vAR, r, hr = 109, 110, 111, 112, 117, 114, 104
    vX, vS = 64, 68
    a(f"""s_mul_i32 s{sT0}, s{sWAVE}, 56
v_min_u32 v{r + 2}, 55, v{vLANE}""")
    a(f"v_add_u32 v{r + 2}, s{sT0}, v{r + 2}")
    a(f"v_and_b32 v118, {OPT['samp'] - 1}, v{vLANE}\nv_mul_u32_u24 v118, {56 // OPT['samp']}, v118\nv_add_u32 v118, s{sT0}, v118")
    ein, eout = 1 + 4 * layer, 2 + 4 * layer
    if wide:
        a(f"""s_mul_i32 s16, s{sI}, {BS}
s_lshl_b32 s{sT2}, s{sI}, 12""")
    else:
        a(f"""s_lshr_b32 s16, s{sI}, 1
s_mul_i32 s16, s16, {BS}
s_and_b32 s{sT0}, s{sI}, 1
s_lshl_b32 s{sT0}, s{sT0}, 5
s_add_u32 s16, s16, s{sT0}
s_lshl_b32 s{sT2}, s{sI}, 11""")
    a(f"""s_mul_i32 s{sT0}, s{sWAVE}, 7168
s_add_u32 s16, s16, s{sT0}
s_add_u32 s16, s16, {X}
s_add_u32 s17, s16, 4096
s_add_u32 s{sT2}, s{sT2}, {H}
s_mul_i32 s30, s{sWAVE}, 7""")
    if wide:
        for i in range(nf):
            a(f"""s_add_u32 s{sT0}, s30, {i}
s_lshr_b32 s{sT1}, s{sT0}, 2
s_lshl_b32 s{sT1}, s{sT1}, 18
s_add_u32 s{23 + i}, s{sT1}, s{sT2}
s_and_b32 s{sT1}, s{sT0}, 2
s_lshl_b32 s{sT1}, s{sT1}, 9
s_add_u32 s{23 + i}, s{23 + i}, s{sT1}
s_and_b32 s{sT1}, s{sT0}, 1
s_lshl_b32 s{sT1}, s{sT1}, 8
s_add_u32 s{23 + i}, s{23 + i}, s{sT1}""")
        a(f"""v_lshrrev_b32 v1, 2, v{vLANE}
v_lshlrev_b32 v{vO}, 4, v1
v_and_b32 v2, 1, v{vLANE}
v_lshl_add_u32 v{vO}, v2, 9, v{vO}
v_bfe_u32 v2, v{vLANE}, 1, 1
v_lshl_add_u32 v{vO}, v2, 11, v{vO}
v_and_b32 v1, 7, v1
v_and_b32 v2, 3, v{vLANE}
v_lshl_add_u32 v1, v2, 3, v1""")
    else:
        a(f"""v_lshrrev_b32 v1, 1, v{vLANE}
v_and_b32 v2, 1, v{vLANE}
v_lshlrev_b32 v{vX}, 6, v1
v_lshl_add_u32 v{vX}, v2, 4, v{vX}
v_mov_b32 v3, {OOB}
v_cmp_gt_u32 vcc, 32, v{vLANE}
v_cndmask_b32 v{vX + 1}, v3, v{vX}, vcc
s_lshl_b32 s30, s30, 4
s_mov_b32 s23, s{sT2}""")
        for i in range(nf):
            a(f"""v_add_u32 v4, s30, v1
v_lshrrev_b32 v5, 6, v4
v_lshlrev_b32 v5, 18, v5
v_bfe_u32 v6, v4, 5, 1
v_lshl_add_u32 v5, v6, 10, v5
v_and_b32 v6, 31, v4
v_lshl_add_u32 v5, v6, 4, v5
v_lshl_add_u32 v{vS + i}, v2, 9, v5""")
            if i < 3:
                a("s_add_u32 s30, s30, 32")
        a(f"""v_cndmask_b32 v{vS + 3}, v3, v{vS + 3}, vcc
v_bfe_u32 v1, v{vLANE}, 2, 3
v_lshl_add_u32 v1, v2, 3, v1""")
    a(f"""v_lshrrev_b32 v3, 5, v{vLANE}
v_lshl_add_u32 v1, v3, 5, v1
s_lshl_b32 s{sT1}, s{sWAVE}, 8
s_add_u32 s{sT1}, s{sT1}, {LNP}
v_lshl_add_u32 v{vPW}, v1, 2, s{sT1}
v_and_b32 v1, 31, v{vLANE}
v_lshlrev_b32 v{vPR}, 2, v1
v_add_u32 v{vPR}, {LNP}, v{vPR}
s_add_u32 s{sT1}, s{sT1}, 1024
v_lshl_add_u32 v{vAW}, v{vLANE}, 2, s{sT1}
v_lshl_add_u32 v{vAR}, v2, 5, s{sT1}
s_mov_b32 s18, 0
s_mov_b32 s19, -1""")
    prod = f"s_lshl_b32 s{sT0}, s{sI}, 6"
    if hinted(eout):
        hint_prep(eout + 10, prod, hr)
    arm = layer == 0 and sentinel(2)
    if arm:
        a(f"v_min_u32 v102, 27, v{vLANE}")
        poll_issue(18, 100)
    wait_edge(ein, r, r + 2, 118)
    if arm:
        poll_take(100)
    stamp(f"ln{layer} go")

    def loads():
        if not wide:
            return [f"buffer_load_dwordx4 {vr(RAW + 4 * i, 4)}, v{vX + (i == 3)}, {srd(S_WS)}, s{16 + i // 2} offen offset:{2048 * (i % 2)} sc1" for i in range(nf)]
        return [f"buffer_load_dwordx4 {vr(RAW + 4 * i, 4)}, v{vL16}, {srd(S_WS)}, s{16 + i // 4} offen offset:{1024 * (i % 4)} sc1" for i in range(nf)]
    for l in loads():
        a(l)
    if sentinel(ein):
        back, stub = label("lnb"), label("lns")
        chk = maxchain(113, range(RAW, RAW + 4 * nf)) + ["v_cmp_eq_u32 vcc, -1, v113"]
        a(f"s_mov_b32 s{sCNT}, 0")
        for l in chk:
            a(l)
        a(f"s_cbranch_vccnz {stub}")
        a(f"{back}:")
        STUBS.extend([f"{stub}:"] + loads() + ["s_waitcnt vmcnt(0)"] + chk + [f"s_add_u32 s{sCNT}, s{sCNT}, 1", f"s_cbranch_vccz {back}",
                      f"s_cmp_lt_u32 s{sCNT}, {RETRY}", f"s_cbranch_scc1 {stub}", f"s_branch {back}"])
    if hinted(eout) and OPT["h_ln"] == 0:
        a.wait_vm0()
        hint_put(hr)
    if OPT["stamps"] == 1:
        a.wait_vm0()
    count_out(113)
    stamp(f"ln{layer} data", 113)
    for i in range(nf):
        for k in range(4):
            unpack(XF + 8 * i + 2 * k, XF + 8 * i + 2 * k + 1, RAW + 4 * i + k)
        for k in range(4):
            x = vr(XF + 8 * i + 2 * k, 2)
            if i == 0:
                a(f"v_pk_mul_f32 {vr(Q + 2 * k, 2)}, {x}, {x}")
            else:
                a(f"v_pk_fma_f32 {vr(Q + 2 * k, 2)}, {x}, {x}, {vr(Q + 2 * k, 2)}")
                a(f"v_pk_add_f32 {vr(S + 2 * k, 2)}, {vr(XF + 2 * k, 2) if i == 1 else vr(S + 2 * k, 2)}, {x}")
    if hinted(eout) and OPT["h_ln"] == 1:
        hint_put(hr)
    for i in range(8):
        a(f"v_permlane32_swap_b32 v{S + i}, v{Q + i}")
    for i in range(0, 8, 2):
        a(f"v_pk_add_f32 {vr(S + i, 2)}, {vr(S + i, 2)}, {vr(Q + i, 2)}")
    for i in range(4):
        a(f"v_permlane16_swap_b32 v{S + i}, v{S + 4 + i}")
    for i in range(0, 4, 2):
        a(f"v_pk_add_f32 {vr(S + i, 2)}, {vr(S + i, 2)}, {vr(S + 4 + i, 2)}")
    for i in range(2):
        a(f"v_add_f32_dpp v{W + i}, v{S + i}, v{S + i} row_ror:8 row_mask:0xf bank_mask:0x3")
    for i in range(2):
        a(f"v_add_f32_dpp v{W + i}, v{S + 2 + i}, v{S + 2 + i} row_ror:8 row_mask:0xf bank_mask:0xc")
    a(f"v_add_f32_dpp v{S}, v{W}, v{W} row_shl:4 row_mask:0xf bank_mask:0x5")
    a(f"v_add_f32_dpp v{S}, v{W + 1}, v{W + 1} row_shr:4 row_mask:0xf bank_mask:0xa")
    if not wide:
        a(f"v_add_f32_dpp v{S}, v{S}, v{S} quad_perm:[2,3,0,1] row_mask:0xf bank_mask:0xf")
    a(f"ds_write_b32 v{vPW}, v{S}")
    a.barrier()
    if hinted(eout) and OPT["h_ln"] == 2:
        hint_put(hr)
    stamp(f"ln{layer} bar", 113)
    T = 0
    for w in range(4):
        a(f"ds_read2_b32 {vr(T + 2 * w, 2)}, v{vPR} offset0:{w * 64} offset1:{w * 64 + 32}")
    a(f"""v_pk_add_f32 {vr(T, 2)}, {vr(T, 2)}, {vr(T + 2, 2)}
v_pk_add_f32 {vr(T + 4, 2)}, {vr(T + 4, 2)}, {vr(T + 6, 2)}
v_pk_add_f32 {vr(T, 2)}, {vr(T, 2)}, {vr(T + 4, 2)}
v_mul_f32 v{T}, {f32(1 / 448)}, v{T}
v_mul_f32 v{T + 1}, {f32(1 / 448)}, v{T + 1}
v_fma_f32 v{T + 1}, -v{T}, v{T}, v{T + 1}
v_max_f32 v{T + 1}, 0, v{T + 1}
v_add_f32 v{T + 2}, {f32(1e-5)}, v{T + 1}
v_fmamk_f32 v{T + 2}, v{T + 2}, {f32(1e-5)}, v{T + 1}
v_rsq_f32 v{T + 2}, v{T + 2}
v_mul_f32 v{T + 3}, -v{T}, v{T + 2}
v_cndmask_b32 v{T + 2}, v{T + 2}, v{T + 3}, s[18:19]
ds_write_b32 v{vAW}, v{T + 2}""")
    AL, BE = S, Q
    done_hint = []
    a(f"""ds_read_b128 {vr(AL, 4)}, v{vAR}
ds_read_b128 {vr(BE, 4)}, v{vAR} offset:128
ds_read_b128 {vr(AL + 4, 4)}, v{vAR} offset:16
ds_read_b128 {vr(BE + 4, 4)}, v{vAR} offset:144""")
    for i in range(nf):
        for k in range(4):
            x = vr(XF + 8 * i + 2 * k, 2)
            a(f"v_pk_fma_f32 {x}, {x}, {vr(AL + 2 * k, 2)}, {vr(BE + 2 * k, 2)}")
        for k in range(4):
            a(f"v_cvt_pk_bf16_f32 v{RAW + 4 * i + k}, v{XF + 8 * i + 2 * k}, v{XF + 8 * i + 2 * k + 1}")
        a(f"buffer_store_dwordx4 {vr(RAW + 4 * i, 4)}, v{vO if wide else vS + i}, {srd(S_WS)}, s{23 + i if wide else 23} offen sc1", tag="pub")
        if hinted(eout) and OPT["h_ln"] - 3 == min(i, 6) * (4 if nf == 7 else 4) // (nf + 1):
            if not done_hint:
                hint_put(hr)
                done_hint.append(1)
    stamp(f"ln{layer} st", 113)
    if flagged(eout):
        flag_put(eout, prod, 100, "pub")


def gemm_addr():
    a(f"""s_and_b32 s{sT0}, s{sWAVE}, 1
s_lshl_b32 s{sT0}, s{sT0}, 10
v_add_u32 v{vA0}, s{sT0}, v{vL16}
v_xor_b32 v{vA1}, 0x400, v{vA0}""")


vCHK = 121


def gemm_loop(nks, ring, nring, wreg, swap, sent, lds_from=99, at=None, bg=()):
    WF = 104
    nfr = 2 * nks

    def load(f):
        ks, db = f // 2, f % 2
        g = []
        if db == 0 and ks and ks % 2 == 0:
            g.append(Ins("s_add_u32 s13, s13, 4096"))
            if ks % 4 == 0:
                g += [Ins("s_cmp_eq_u32 s13, s28"), Ins("s_cmov_b32 s13, s27")]
        d = ring + 4 * (f % nring)
        g.append(Ins(f"buffer_load_dwordx4 {vr(d, 4)}, v{(vA0, vA1)[db]}, {srd(S_WS)}, s13 offen offset:{(ks % 2) * 2048} sc1"))
        return g

    def wread(ks):
        g = []
        slot = ks - lds_from
        for nb in range(2):
            for j in range(2):
                d = WF + 8 * (ks % 2) + 4 * nb + 2 * j
                g.append(Ins(f"ds_read_b64_tr_b16 {vr(d, 2)}, v{(vT2a, vT2b)[nb]} offset:{slot * 2048 + j * 1024}", res_r=[f"slot{slot}"]))
        return g

    def check(ks, upto):
        regs = [ring + 4 * ((2 * ks + db) % nring) + k for db in range(2) for k in range(4)]
        chk = maxchain(vCHK, regs) + [f"v_cmp_eq_u32 vcc, -1, v{vCHK}"]
        back, stub = label("gb"), label("gs")
        rl, cnt = [], 0
        for f in range(2 * ks, max(2 * ks + 2, min(upto, 2 * ks + 2 * OPT["rl"]))):
            k2, db = f // 2, f % 2
            if db == 0:
                rl += [f"s_add_u32 s3, s22, {k2 * 2048}", "s_cmp_ge_u32 s3, s28", f"s_cselect_b32 s18, {nks * 2048}, 0", "s_sub_u32 s3, s3, s18"]
            rl.append(f"buffer_load_dwordx4 {vr(ring + 4 * (f % nring), 4)}, v{(vA0, vA1)[db]}, {srd(S_WS)}, s3 offen sc1")
        STUBS.extend([f"{stub}:"] + rl + ["s_waitcnt vmcnt(0)"] + chk + [f"s_add_u32 s{sCNT}, s{sCNT}, 1", f"s_cbranch_vccz {back}",
                                                     f"s_cmp_lt_u32 s{sCNT}, {RETRY}", f"s_cbranch_scc1 {stub}", f"s_branch {back}"])
        return [Ins(x) for x in chk], [Ins(f"s_cbranch_vccnz {stub}"), Ins(f"{back}:")]

    if sent:
        a(f"s_mov_b32 s{sCNT}, 0")
    nxt = min(OPT["fill0"], nring)
    for f in range(nxt):
        a.put(load(f))
    if sent:
        c, b = check(0, nxt)
        a.put(c); a.put(b)
    extra = []
    bg = list(bg)
    for ks in range(nks):
        if at and ks in at:
            extra += a.capture(at[ks])
        pend = wread(ks + 1) if lds_from <= ks + 1 < nks else []
        c, b = check(ks + 1, min(nfr, nxt + 2, nring + 2 * ks + 2)) if (sent and ks + 1 < nks) else ([], [])
        order = [(0, 0), (0, 1), (1, 0), (1, 1)]
        if ks == nks - 1 and OPT["tailord"]:
            order = [(0, 1), (1, 0), (1, 1), (0, 0)]
        if True:
            for nb, db in order:
                acc = vr(16 * (2 * nb + db), 16)
                cc = acc if (ks or (nb | db) == 0) else "0"
                w = wreg(ks, nb) if ks < lds_from else vr(WF + 8 * (ks % 2) + 4 * nb, 4)
                x = vr(ring + 4 * ((2 * ks + db) % nring), 4)
                a(f"v_mfma_f32_32x32x16_bf16 {acc}, {x if swap else w}, {w if swap else x}, {cc}")
                if pend:
                    a.put([pend.pop(0)])
                free = nring + 2 * ks + (db + 1 if nb == 1 else 0)
                if nxt < min(nfr, free) and (nb == 1 or db == 1):
                    a.put(load(nxt))
                    nxt += 1
                if bg and nb == 0 and ks >= OPT["bg0"]:
                    a.put(bg.pop(0))
                if extra and nb == 0:
                    k = 5
                    while k < len(extra) and ("exec" in extra[k - 1].defs and extra[k - 1].text != "s_mov_b64 exec, -1" or extra[k - 1].kind == "vstore"):
                        k += 1
                    a.put(extra[:k])
                    del extra[:k]
                if nb == 1 and db == 0:
                    a.put(c)
                if nb == 1 and db == 1:
                    a.put(b)
    a.put(extra)


def gemm_rot(nks, srot):
    a(f"s_mov_b32 s27, s13\ns_add_u32 s28, s13, {nks * 2048}\ns_lshl_b32 s{sT0}, s{srot}, 13\ns_add_u32 s13, s13, s{sT0}\ns_mov_b32 s22, s13")


def gemm_reduce_prep():
    slot = 6144 if OPT["bfr"] else 12288
    for rel in (1, 2, 3):
        a(f"s_xor_b32 s{23 + rel}, s{sWAVE}, {rel}\ns_mul_i32 s{23 + rel}, s{23 + rel}, {slot}")
    a(f"s_mul_i32 s23, s{sWAVE}, {slot}")


def gemm_reduce_addr():
    for rel in range(4):
        a(f"v_add_u32 v{64 + rel}, s{23 + rel}, v{vL16}")


def gemm_perm(P):
    if not OPT["bfr"]:
        return
    t, u = P + 8, P + 7
    a("s_mov_b32 s29, 0x3f80")
    a(f"""v_lshrrev_b32 v{u}, 5, v{vLANE}
v_and_b32 v{t}, 31, v{vLANE}
v_lshlrev_b32 v{u}, 2, v{u}
v_sub_u32 v{t}, v{t}, v{u}
v_and_b32 v{u}, 1, v{t}
v_lshlrev_b32 v{u}, 4, v{u}
v_lshlrev_b32 v{u}, v{u}, s29
v_ashrrev_i32 v{t}, 1, v{t}""")
    vals = (0, 1, 4, 5, 8, 9, 12, 13)
    pairs = ("s[16:17]", "s[30:31]", "s[50:51]")
    for d in range(10):
        if d < 8:
            a(f"v_cmp_eq_u32 {pairs[d % 3]}, {vals[d]}, v{t}")
        if d >= 2:
            a(f"v_cndmask_b32 v{P + d - 2}, 0, v{u}, {pairs[(d - 2) % 3]}")
    a(f"ds_write_b128 v{vL16}, {vr(P, 4)} offset:{PERM}")
    a(f"ds_write_b128 v{vL16}, {vr(P + 4, 4)} offset:{PERM + 1024}")


def gemm_perm_get(P):
    if OPT["bfr"]:
        a(f"ds_read_b128 {vr(P, 4)}, v{vL16} offset:{PERM}")
        a(f"ds_read_b128 {vr(P + 4, 4)}, v{vL16} offset:{PERM + 1024}")


def gemm_reduce_bf(P, pre, post, quarter):
    side = a.capture(pre) if pre else []
    a.put(side[:9])
    side = side[9:]
    T = [104, 108, 112, 116]
    n = 0
    for rel in (1, 2, 3):
        for j in range(2):
            t = T[n % 4]
            n += 1
            for k in range(4):
                r = 16 * rel + 8 * j + 2 * k
                a(f"v_cvt_pk_bf16_f32 v{t + k}, v{r}, v{r + 1}")
            a(f"ds_write_b128 v{64 + rel}, {vr(t, 4)} offset:{RB + (rel - 1) * 2048 + j * 1024}")
            a.put(side[:3])
            side = side[3:]
    a.put(side)
    a.barrier()
    for k in range(6):
        a(f"ds_read_b128 {vr(16 + 4 * k, 4)}, v64 offset:{RB + k * 1024}")
    if post:
        post()
    for k in range(6):
        a(f"v_mfma_f32_32x32x16_bf16 v[0:15], {vr(P + 4 * (k % 2), 4)}, {vr(16 + 4 * k, 4)}, v[0:15]")
    if quarter:
        for q in range(4):
            quarter(q)


def gemm_reduce(pre=None, post=None, quarter=None, P=None):
    if OPT["bfr"]:
        return gemm_reduce_bf(P, pre, post, quarter)
    side = a.capture(pre) if pre else []
    wr = [[Ins(f"ds_write_b128 v{64 + rel}, {vr(16 * rel + 4 * q, 4)} offset:{RB + (rel - 1) * 4096 + q * 1024}")] for rel in (1, 2, 3) for q in range(4)]
    a.put(side[:9])
    put_all(wr[:3])
    m, rest = merge(side[9:], wr[3:], 0, 12)
    a.put(m)
    put_all(rest)
    a.barrier()
    for q in range(4):
        for k in range(3):
            a(f"ds_read_b128 {vr(16 + 16 * k + 4 * q, 4)}, v64 offset:{RB + k * 4096 + q * 1024}")
        if q == 1 and post:
            post()
    for q in range(4):
        for h in range(2):
            r = 4 * q + 2 * h
            a(f"v_pk_add_f32 {vr(16 + r, 2)}, {vr(16 + r, 2)}, {vr(32 + r, 2)}")
            a(f"v_pk_add_f32 {vr(r, 2)}, {vr(r, 2)}, {vr(48 + r, 2)}")
        for h in range(2):
            r = 4 * q + 2 * h
            a(f"v_pk_add_f32 {vr(r, 2)}, {vr(r, 2)}, {vr(16 + r, 2)}")
        if quarter:
            quarter(q)


def gemm1(layer, wide, pre=None, bg=()):
    H = H1 if layer == 0 else H3
    G = G1 if layer == 0 else G3
    gemm_addr()
    a(f"""s_lshr_b32 s{sT0}, s{sWAVE}, 1
s_lshl_b32 s{sT0}, s{sT0}, 6
s_lshl_b32 s{sT1}, s{sNT}, 7
s_add_u32 s{sT0}, s{sT0}, s{sT1}
v_lshrrev_b32 v16, 5, v{vLANE}
v_lshl_add_u32 v16, v16, 3, s{sT0}""")
    for q in range(4):
        a(f"global_load_dwordx2 {vr(20 + 2 * q, 2)}, v16, {sp(P_B1)} offset:{16 * q}")
    r = 32
    a(f"""s_lshl_b32 s{sT0}, s{sWAVE}, 5
v_and_b32 v{r + 2}, 31, v{vLANE}
v_add_u32 v{r + 2}, s{sT0}, v{r + 2}
v_and_b32 v{r + 3}, {31 & ~(32 // OPT['samp'] - 1)}, v{vLANE}
v_add_u32 v{r + 3}, s{sT0}, v{r + 3}
s_lshl_b32 s13, s{sDT1}, 7
s_add_u32 s13, s13, s{sT0}
s_lshl_b32 s13, s13, 11
s_add_u32 s13, s13, {H}""")
    if wide:
        a(f"v_lshrrev_b32 v{r + 2}, 1, v{r + 2}\nv_lshrrev_b32 v{r + 3}, 1, v{r + 3}")
    c0 = -2 * math.log2(math.e) * math.sqrt(2 / math.pi)
    a(f"""s_mov_b32 s{sCA}, {f32(c0 * 0.044715)}
s_mul_i32 s21, s{sDT1}, 112
s_lshl_b32 s{sT0}, s{sNT}, 2
s_add_u32 s21, s21, s{sT0}
s_and_b32 s{sT0}, s{sWAVE}, 2
s_add_u32 s21, s21, s{sT0}
s_lshl_b32 s21, s21, 11
s_add_u32 s21, s21, {G}""")
    gemm_reduce_prep()
    gemm_rot(32, sROT1)
    if pre:
        pre()
    for k in range(8):
        unpack(2 * k, 2 * k + 1, 20 + k)
    ein, eout = 2 + 4 * layer, 3 + 4 * layer
    if emode(ein) == "M":
        l1, l2 = label("m1"), label("m2")
        a(f"s_cmp_eq_u32 s{sRL0 if wide else sRL}, 0\ns_cbranch_scc1 {l1}")
        a.wait_tag("pub")
        a(f"s_branch {l2}")
        a(f"{l1}:")
        wait_edge(ein, r, r + 2, r + 3)
        a(f"{l2}:")
    else:
        wait_edge(ein, r, r + 2, r + 3)
    stamp(f"g1_{layer} go", 63)
    prod = f"s_mul_i32 s{sT0}, s{sDT1}, 28\ns_add_u32 s{sT0}, s{sT0}, s{sNT}\ns_lshl_b32 s{sT0}, s{sT0}, 6"
    early = hinted(eout) and OPT["h_g1"] < 0
    at = {30: gemm_reduce_addr, 28: lambda: gemm_perm_get(96)}
    if early:
        assert OPT["h_g1"] in (-1, -3, -4)
        at[32 + OPT["h_g1"]] = lambda: (hint_prep(eout + 10, prod, 104), hint_put(104))
    gemm_loop(32, 64, 14, lambda ks, nb: f"a[{(ks * 2 + nb) * 4}:{(ks * 2 + nb) * 4 + 3}]", False, sentinel(ein), at=at)
    count_out(120)
    stamp(f"g1_{layer} loop", 120)
    a.begin()
    late = hinted(eout) and not early

    def pre():
        a(f"v_mov_b32 v80, {f32(c0)}")
        if late:
            hint_prep(eout + 10, prod, 72)

    def gelu(q):
        if q % 2 == 0:
            return
        half = q // 2
        if late and OPT["h_g1"] == 1 and half == 0:
            hint_put(72)
        rs = range(8 * half, 8 * half + 8, 2)
        for r in rs:
            a(f"v_pk_mul_f32 {vr(16 + r, 2)}, {vr(r, 2)}, {vr(r, 2)}")
        for r in rs:
            a(f"v_pk_fma_f32 {vr(16 + r, 2)}, {vr(16 + r, 2)}, {sp(sCA)}, {vr(80, 2)} op_sel_hi:[1,0,0]")
        for r in rs:
            a(f"v_pk_mul_f32 {vr(16 + r, 2)}, {vr(16 + r, 2)}, {vr(r, 2)}")
        for r in rs:
            a(f"v_exp_f32 v{16 + r}, v{16 + r}\nv_exp_f32 v{17 + r}, v{17 + r}")
        for r in rs:
            a(f"v_pk_add_f32 {vr(16 + r, 2)}, {vr(16 + r, 2)}, 1.0 op_sel_hi:[1,0]")
        for r in rs:
            a(f"v_rcp_f32 v{16 + r}, v{16 + r}\nv_rcp_f32 v{17 + r}, v{17 + r}")
        for r in rs:
            a(f"v_pk_mul_f32 {vr(r, 2)}, {vr(r, 2)}, {vr(16 + r, 2)}")
        for r in rs:
            a(f"v_cvt_pk_bf16_f32 v{84 + r // 2}, v{r}, v{r + 1}")
        a(f"buffer_store_dwordx4 {vr(84 + 4 * half, 4)}, v{vA0}, {srd(S_WS)}, s21 offen offset:{2048 * half} sc1", tag="pub")
        if late and OPT["h_g1"] == 2 + half:
            hint_put(72)
    gemm_reduce(pre, (lambda: hint_put(72)) if (late and OPT["h_g1"] == 0) else None, gelu, 96)
    m, rest = merge(a.end(), list(bg), 0, OPT["ev_g1"])
    a.put(m)
    if not flagged(eout):
        a.barrier()
    else:
        flag_put(eout, prod, 40, "pub")
    for g in rest:
        a.put(g)


def gemm2(layer, bg=()):
    G = G1 if layer == 0 else G3
    gemm_addr()
    a(f"""s_lshr_b32 s{sT0}, s{sWAVE}, 1
s_lshl_b32 s{sT0}, s{sT0}, 5
s_lshl_b32 s{sT1}, s{sST}, 6
s_add_u32 s50, s{sT0}, s{sT1}
s_and_b32 s{sT1}, s{sWAVE}, 1
s_lshl_b32 s{sT1}, s{sT1}, 5
s_lshl_b32 s{sT2}, s{sDT2}, 6
s_add_u32 s51, s{sT1}, s{sT2}
s_lshr_b32 s{sT2}, s50, 5
s_mul_i32 s{sT2}, s{sT2}, {BS}
s_lshl_b32 s{sT1}, s51, 6
s_add_u32 s20, s{sT2}, s{sT1}
s_add_u32 s30, s20, {X1 if layer == 0 else X3}
v_and_b32 v16, 31, v{vLANE}
v_lshrrev_b32 v17, 5, v{vLANE}
s_lshl_b32 s{sT0}, s50, 1""")
    r = 42

    def residual_issue():
        if layer == 0:
            for q in range(4):
                a(f"buffer_load_dwordx2 {vr(20 + 2 * q, 2)}, v18, {srd(S_WS)}, s30 offen offset:{16 * q} sc1")
        else:
            a(f"s_mov_b32 m0, s31")
            a(f"buffer_load_dwordx4 v{vL16}, {srd(S_WS)}, s30 offen sc1 lds", res_w=["x3"])
            a(f"buffer_load_dwordx4 v{vL16}, {srd(S_WS)}, s30 offen offset:1024 sc1 lds", res_w=["x3"])

    def residual_use():
        if layer == 0:
            for k in range(8):
                unpack(2 * k, 2 * k + 1, 20 + k)
            for k in range(8):
                unpack(40, 41, 28 + k)
                a(f"v_pk_add_f32 {vr(2 * k, 2)}, {vr(2 * k, 2)}, v[40:41]")
        else:
            for q in range(4):
                a(f"ds_read_b64_tr_b16 {vr(20 + 2 * q, 2)}, v31 offset:{512 * q}", res_r=["x3"])
            a("v_lshlrev_b32 v40, 16, v29")
            for k in range(8):
                unpack(2 * k, 2 * k + 1, 20 + k)
                a(f"v_pk_add_f32 {vr(2 * k, 2)}, {vr(2 * k, 2)}, v[40:41] op_sel_hi:[1,0]")

    if layer == 0:
        a(f"v_lshlrev_b32 v18, 6, v16\nv_lshl_add_u32 v18, v17, 3, v18\nv_lshl_add_u32 v19, v17, 3, s{sT0}")
        for q in range(4):
            a(f"global_load_dwordx2 {vr(28 + 2 * q, 2)}, v19, {sp(P_B2)} offset:{16 * q}")
    else:
        a(f"""v_and_b32 v19, 3, v{vLANE}
s_lshl_b32 s31, s{sWAVE}, 11
v_lshl_add_u32 v28, v16, 1, s{sT0}
global_load_ushort v29, v28, {sp(P_B2)}
v_bfe_u32 v31, v{vLANE}, 2, 2
v_lshl_add_u32 v31, v17, 2, v31
v_lshlrev_b32 v31, 6, v31
v_bfe_u32 v30, v{vLANE}, 4, 1
v_lshl_add_u32 v31, v30, 5, v31
v_lshl_add_u32 v31, v19, 3, v31
v_add_u32 v31, s31, v31""")
    a(f"""s_mul_i32 s{sT0}, s{sDT2}, 28
s_mul_i32 s{sT1}, s{sWAVE}, 7
s_add_u32 s{sT0}, s{sT0}, s{sT1}
v_min_u32 v{r + 2}, 6, v{vLANE}
v_add_u32 v{r + 2}, s{sT0}, v{r + 2}
v_mov_b32 v{r + 3}, v{r + 2}
s_lshl_b32 s13, s{sT0}, 13
s_add_u32 s13, s13, {G}""")
    if layer == 0:
        a(f"""s_add_u32 s21, s20, {X2}
s_lshl_b32 s19, s50, 1
s_add_u32 s19, s19, {ST1}""")
    else:
        a(f"s_mul_i32 s{sT0}, s50, 896\ns_lshl_b32 s{sT1}, s51, 1\ns_add_u32 s21, s{sT0}, s{sT1}")
    gemm_reduce_prep()
    gemm_rot(28, sROT2)
    lskip, ljoin = label("res"), label("resj")
    a(f"s_cmp_eq_u32 s{sR1}, 0")
    a(f"s_cbranch_scc1 {lskip}")
    residual_issue()
    residual_use()
    if emode(3 + 4 * layer) == "M":
        a.wait_tag("pub")
    else:
        wait_edge(3 + 4 * layer, r, r + 2, r + 3)
    a(f"s_branch {ljoin}")
    a(f"{lskip}:")
    wait_edge(3 + 4 * layer, r, r + 2, r + 3)
    residual_issue()
    residual_use()
    a(f"{ljoin}:")
    stamp(f"g2_{layer} go", 63)
    gemm_loop(28, 64, 10, lambda ks, nb: vr(128 + (ks * 2 + nb) * 4, 4), layer == 1, sentinel(3 + 4 * layer), lds_from=16, at={26: gemm_reduce_addr, 25: lambda: gemm_perm_get(88)}, bg=bg)
    count_out(120)
    stamp(f"g2_{layer} loop", 120)

    def addr():
        a(f"v_and_b32 v68, 31, v{vLANE}\nv_lshrrev_b32 v69, 5, v{vLANE}")
        if layer == 0:
            a(f"""v_and_b32 v70, 15, v{vLANE}
v_lshlrev_b32 v70, 6, v70
v_lshl_add_u32 v70, v69, 4, v70
v_bfe_u32 v71, v{vLANE}, 4, 1
v_lshl_add_u32 v70, v71, 5, v70
v_bfe_u32 v71, v{vLANE}, 2, 2
v_lshlrev_b32 v71, 4, v71
v_bfe_u32 v68, v{vLANE}, 4, 1
v_lshl_add_u32 v71, v68, 3, v71
v_and_b32 v68, 1, v{vLANE}
v_lshl_add_u32 v71, v68, 2, v71
v_bfe_u32 v68, v{vLANE}, 1, 1
v_lshl_add_u32 v68, v69, 1, v68
v_lshl_add_u32 v71, v68, 12, v71""")
        else:
            a(f"v_mul_u32_u24 v70, 896, v68\nv_lshl_add_u32 v70, v69, 4, v70")
    prod = f"s_lshl_b32 s{sT0}, s{sDT2}, 5\ns_add_u32 s{sT0}, s{sT0}, s{sST}\ns_lshl_b32 s{sT0}, s{sT0}, 6"
    hn = layer == 0 and hinted(4)

    def pre():
        addr()
        if hn:
            hint_prep(14, prod, 80)
    gemm_reduce(pre, (lambda: hint_put(80)) if (hn and OPT["h_g2"] == 0) else None, None, 88)
    if hn and OPT["h_g2"] == 1:
        hint_put(80)
    PK = 72
    stamp(f"g2_{layer} red", 120)
    for half in range(2):
        b = PK + 4 * half
        for k in range(4):
            a(f"v_cvt_pk_bf16_f32 v{b + k}, v{8 * half + 2 * k}, v{8 * half + 2 * k + 1}")
        a(f"v_permlane32_swap_b32 v{b}, v{b + 2}")
        a(f"v_permlane32_swap_b32 v{b + 1}, v{b + 3}")
        if layer == 1:
            a(f"buffer_store_dwordx4 {vr(b, 4)}, v70, {srd(S_OUT)}, s21 offen offset:{32 * half} {('', 'nt', 'sc1')[OPT['ofl']]}")
    if layer == 1:
        return
    for k in range(4):
        a(f"v_permlane16_swap_b32 v{PK + k}, v{PK + 4 + k}")
    for half in range(2):
        a(f"buffer_store_dwordx4 {vr(PK + 4 * half, 4)}, v70, {srd(S_WS)}, s21 offen offset:{1024 * half} sc1", tag="pub")
    if hn and OPT["h_g2"] == 2:
        hint_put(80)
    for k in range(8):
        a(f"v_pk_mul_f32 {vr(20 + 2 * k, 2)}, {vr(2 * k, 2)}, {vr(2 * k, 2)}")
    res = reduce32(list(range(16)) + list(range(20, 36)), 16, list(range(40, 48)))
    assert res == [0, 1, 2, 3]
    a(f"""v_cndmask_b32 v0, v0, v1, {sp(sM1)}
v_cndmask_b32 v2, v2, v3, {sp(sM1)}
v_cndmask_b32 v0, v0, v2, {sp(sM2)}""")
    a(f"buffer_atomic_add_f32 v0, v71, {srd(S_WS)}, s19 offen sc1", tag="pub")
    if hn and OPT["h_g2"] == 3:
        hint_put(80)
    stamp("g2_0 atom", 120)
    flag_put(4, prod, 40, "pub")
    stamp("g2_0 flag", 120)


def skip_unless(role):
    l = label("skip")
    a(f"s_cmp_eq_u32 s{role}, 0")
    a(f"s_cbranch_scc1 {l}")
    return l


def dmas(n0, n1):
    return [w_dma(n, h) for n in range(n0, n1) for h in range(2)]


def tr_dma(n0, n1):
    g = []
    for n in range(n0, n1):
        g.append(w_tr(n))
        if n > n0:
            g += dmas(n + 11, n + 12)
    g += dmas(n1 + 11, n1 + 12)
    return g


def wseq():
    nB = OPT["wB"] // 2
    assert 36 <= nB <= 60
    g = dmas(0, 12) + tr_dma(0, nB - 12)
    lastT = 48 if (nB >= 48 and OPT["wT"]) else 32 + OPT["wg"]
    g += [w_tr(n) for n in range(nB - 12, lastT)]
    g.append([])
    d = nB
    for n in range(max(lastT, nB - 12), 49):
        while d < min(n + 11, 60) or (n == 48 and d < 60):
            g += dmas(d, d + 1)
            d += 1
        if n < 48:
            g.append(w_tr(n))
    return g


def wcut(n_dma):
    k = 0
    for p, g in enumerate(wseq()):
        if k == n_dma:
            return p
        k += any(i.kind == "dma" for i in g)
    return len(wseq())


def put_all(gs):
    for g in gs:
        a.put(g)


def w2_touch(r):
    return [Ins(f"v_lshlrev_b32 v{r}, 12, v{vLANE}"), Ins(f"buffer_load_dword v{r}, v{r}, {srd(S_W2)}, s{sW2O} offen")]


def build():
    g = OPT["wg"]
    WORDER[:] = list(range(0, g)) + list(range(32, 32 + g)) + list(range(g, 32)) + list(range(32 + g, 60))
    if OPT["w2t"]:
        WORDER[:] = list(range(60))
    cA, cP, cL, cB = wcut(OPT["wA"]), wcut(OPT["wP"]), wcut(OPT["wL"]), wseq().index([])
    cK = wcut(OPT["wK"])
    prologue()
    laux, ljoin = label("aux"), label("join")
    a(f"s_cmp_eq_u32 s{sRC}, 0")
    a(f"s_cbranch_scc1 {laux}")
    xt_loads()
    kgen_table_load()
    code_warm(1)
    page_warm(88)
    w_setup()
    put_all(wseq()[:cA])
    conv_setup(0)
    stamp("start", 2)

    xt_poll_addr(63, 2)
    xt_work()

    def h_flag():
        nonce_take()
        flag_put(0, sPAIR, 104, "st0")
        stamp("flag", 0)
        a(f"global_load_dwordx4 {vr(TAB, 4)}, v75, {sp(sTAB)}")
        a(f"global_load_dwordx4 {vr(TAB + 4, 4)}, v75, {sp(sTAB)} offset:16")
        a(f"global_load_dwordx2 v[0:1], v75, {sp(sTAB)} offset:32")

    hooks = {}
    for pos, fn in ((OPT["h_flag"], h_flag), (OPT["h_w"], lambda: KBG.extend(wseq()[cA:cK] + ([w2_touch(75)] if OPT["w2t"] else []))), (OPT["h_poll"], lambda: poll_issue(0, 64, 63))):
        hooks.setdefault(pos, []).append(fn)
    assert OPT["h_flag"] <= OPT["h_w"] and OPT["h_poll"] >= 6
    kgen({k: (lambda fs=fs: [f() for f in fs]) for k, fs in hooks.items()})
    dump_lds(1)
    stamp("kgen", 21)

    def mid():
        poll_take(64, 63)
        stamp("e1 seen", 0)
        conv_loads()
    wr = kexpand(mid)
    if OPT["mixpro"]:
        mv = [i for i in wr if i.kind != "dsw"]
        st = [i for i in wr if i.kind == "dsw"]
        pro = a.capture(conv_pro, 0)
        k = next(n for n, i in enumerate(pro) if i.defs & {f"v{r}" for r in range(0, 22)})
        a.put(mv)
        a.put(st[2:4])
        head, rest = merge(pro[:k], [[i] for i in st[4:6] + st[:2] + st[6:]], 0, 14)
        a.put(head)
        early = [g for g in rest if g[0].uses & {f"v{r}" for r in range(0, 22)}]
        put_all(early)
        rest = [g for g in rest if g not in early]
        k2 = next(n for n, i in enumerate(pro) if i.kind == "dsw")
        mid2, rest = merge(pro[k:k2], rest, 0, 30)
        put_all(rest)
        m3, rest = merge(mid2 + pro[k2:], wseq()[cK:cP], 50, OPT["ev_pro"])
        a.put(m3)
        put_all(rest)
        stamp("expand", 111)
    else:
        a.put(wr)
        stamp("expand")
        conv_pro(0)
    if sentinel(1):
        a(f"v_min_u32 v{cvP + 2}, 27, v{vLANE}")
        poll_issue(8, cvP)
    a.barrier()
    dump_lds(2)
    stamp("conv0 go", 111)
    put_all(conv_main(0, wseq()[cP:cL], OPT["st_conv"], OPT["ev_conv"]))
    stamp("conv0 done")
    a(f"s_branch {ljoin}")
    a(f"{laux}:")
    aux_loads()
    kgen_table_addr()
    code_warm(1)
    page_warm(88)
    w_setup()
    aux_work()
    stamp("aux e1")
    if OPT["g7"] == 1:
        lg = label("g7")
        a(f"""s_cmp_lg_u32 s{sR1}, 0
s_cbranch_scc1 {lg}
s_lshr_b32 s{sT0}, s{sX}, 2
s_sub_u32 s{sT0}, s{sJ}, s{sT0}
s_sub_u32 s{sT0}, s{sT0}, 28
s_lshl_b32 s{sT0}, s{sT0}, 3
s_add_u32 s{sT0}, s{sT0}, s{sX}
s_lshl_b32 s{sT0}, s{sT0}, 7
s_mul_i32 s{sT1}, s{sWAVE}, {512 * 3584}
s_add_u32 s{sT0}, s{sT0}, s{sT1}
s_add_u32 s{sT0}, s{sT0}, {448 * 3584}
v_mul_u32_u24 v90, 3584, v{vLANE}
v_add_u32 v90, s{sT0}, v90""")
        a(f"global_load_dword v90, v90, {sp(P_W1)}")
        a(f"{lg}:")
    if armed(0):
        lnf = label("nf")
        a(f"s_cmp_lg_u32 s{sR1}, 0\ns_cbranch_scc1 {lnf}")
        if OPT["map18"] == 1:
            a(f"s_sub_u32 s16, s{sAUX}, 4\ns_cselect_b32 s16, s{sAUX}, s16")
        else:
            a(f"s_lshr_b32 s16, s{sAUX}, 1\ns_sub_u32 s17, s{sAUX}, 4\ns_cmp_lt_u32 s{sAUX}, 8\ns_cselect_b32 s16, s16, s17")
        if sentinel(1):
            fill(X1, 17, 80, 16, 28 * 4096, "fill")
            flag_put(8, 16, 72, "fill")
        if sentinel(2) or sentinel(3):
            if sentinel(2):
                fill(H1, 16, 80, 16, 28 * 4096, "fill")
            if sentinel(3):
                fill(G1, 14, 80, 16, 28 * 4096, "fill")
            flag_put(18, 16, 72, "fill")
        a(f"{lnf}:")
    stamp("aux fill")
    if OPT["g7"] == 2:
        lg = label("g7")
        a(f"""s_cmp_lg_u32 s{sR1}, 0
s_cbranch_scc1 {lg}
s_lshr_b32 s{sT0}, s{sX}, 2
s_sub_u32 s{sT0}, s{sJ}, s{sT0}
s_sub_u32 s{sT0}, s{sT0}, 28
s_lshl_b32 s{sT0}, s{sT0}, 3
s_add_u32 s{sT0}, s{sT0}, s{sX}
s_lshl_b32 s{sT0}, s{sT0}, 7
s_mul_i32 s{sT1}, s{sWAVE}, {512 * 3584}
s_add_u32 s{sT0}, s{sT0}, s{sT1}
s_add_u32 s{sT0}, s{sT0}, {448 * 3584}
v_mul_u32_u24 v90, 3584, v{vLANE}
v_add_u32 v90, s{sT0}, v90""")
        a(f"global_load_dword v90, v90, {sp(P_W1)}")
        a(f"{lg}:")
    cX = min(wcut(64 + 2 * OPT["wg"]), cB)
    if OPT["w2t"]:
        a.put(w2_touch(75))
    put_all(wseq()[:cX])
    if sentinel(1):
        a(f"v_min_u32 v62, 27, v{vLANE}")
        poll_issue(8, 60)
        poll_take(60)
    a.wait_vm0()
    stamp("aux w")
    a(f"{ljoin}:")
    for layer in range(2):
        if layer == 1:
            l = skip_unless(sRC)
            conv_setup(1)
            conv_poll1()
            stamp("conv1 ready")
            if OPT["kc_in"] and not hinted(4):
                a.wait_tag("flag")
                poll_issue(4, cvP)
                kcopies()
                poll_take(cvP)
            else:
                kcopies()
                wait_edge(4, cvP, cvP + 2, cvP + 3)
            stamp("conv1 poll")
            conv_loads()
            conv_pro(1)
            if armed(1):
                a(f"v_and_b32 v{cvP + 2}, 31, v{vLANE}")
                poll_issue(9, cvP)
            a.barrier()
            dump_lds(3)
            stamp("conv1 go", 111)
            conv_main(1)
            stamp("conv1 done")
            if armed(1):
                lj = label("cvj")
                a(f"s_branch {lj}")
                a(f"{l}:")
                a(f"v_and_b32 v62, 31, v{vLANE}")
                poll_issue(9, 60)
                poll_take(60)
                a(f"{lj}:")
            else:
                a(f"{l}:")
        wide = OPT["ln1w"] if layer else OPT["ln0w"]
        l = skip_unless(sRL0 if wide else sRL)
        ln(layer, wide)
        stamp(f"ln{layer} done")
        a(f"{l}:")
        if layer == 0:
            gemm_perm(0)
            l = skip_unless(sRC)
            put_all(wseq()[cL:cX])
            a(f"{l}:")
            rest = wseq()[cX:cB]
            k = max(0, len(rest) - 12)
            put_all(rest[:k])
            if sentinel(2) or sentinel(3):
                a(f"v_min_u32 v62, 27, v{vLANE}")
                poll_issue(18, 60)
            put_all(rest[k:])
            if sentinel(2) or sentinel(3):
                poll_take(60)
            stamp("w B")
            tail = wseq()[cB:]
            assert not any(i.kind == "dsr" and "a[" in i.text for g in tail for i in g)
            lelse, lj = label("ng1"), label("g1j")
            a(f"s_cmp_eq_u32 s{sR1}, 0")
            a(f"s_cbranch_scc1 {lelse}")
            gemm1(0, wide, None, [] if OPT["t2"] else tail)
            nonce_retire()
            stamp("g1_0 done")
            a(f"s_branch {lj}")
            a(f"{lelse}:")
            put_all([] if OPT["t2"] else wseq()[cB:])
            a(f"{lj}:")
        else:
            l = skip_unless(sR1)
            gemm1(1, wide)
            stamp("g1_1 done")
            a(f"{l}:")
        l = skip_unless(sR2)
        gemm2(layer, [g for g in wseq()[cB:] if g] if (layer == 0 and OPT["t2"]) else [])
        if layer == 0 and armed(1):
            lj = label("g2j")
            a(f"s_branch {lj}")
            a(f"{l}:")
            if OPT["map18"]:
                a(f"s_lshl_b32 s16, s{sX}, 2\ns_add_u32 s16, s16, s{sJ}")
            else:
                a(f"s_lshr_b32 s16, s{sX}, 1\ns_lshl_b32 s16, s16, 3\ns_add_u32 s16, s16, s{sJ}")
            for base, n, e in ((X3, 15, 5), (H3, 14, 6), (G3, 13, 7)):
                if sentinel(e):
                    fill(base, n, 72, 16, CH)
            flag_put(9, 16, 8, "st0")
            a(f"{lj}:")
        else:
            a(f"{l}:")
        stamp("g2_0 done" if layer == 0 else "end")
    if OPT["stamps"] and OPT["dbgwg"] < 0:
        l = label("ls")
        a(f"s_cmp_lg_u32 s{sWAVE}, 0\ns_cbranch_scc1 {l}\ns_waitcnt vmcnt(0)\ns_memrealtime {sp(sSTAMP)}\ns_waitcnt lgkmcnt(0)")
        a(f"s_lshl_b32 s3, s2, 8\ns_add_u32 s3, s3, {STAMPS + 248}\nv_mov_b32 v0, s101\nv_mov_b32 v1, s{sSTAMP}\ns_mov_b64 exec, 1")
        a(f"buffer_store_dwordx2 v[0:1], off, {srd(S_WS)}, s3")
        a(f"{l}:")
    if OPT["fixdur"]:
        a(f"s_waitcnt vmcnt(0) lgkmcnt(0)\nL_fix:\ns_memrealtime s[28:29]\ns_waitcnt lgkmcnt(0)\ns_sub_u32 s28, s28, s101\ns_cmp_lt_u32 s28, {OPT['fixdur']}\ns_cbranch_scc1 L_fix")
    a("s_endpgm")


def bf16_round_int(l):
    b = struct.unpack("<I", struct.pack("<f", float(l)))[0]
    b = (b + 0x7FFF + ((b >> 16) & 1)) & 0xFFFF0000
    return int(struct.unpack("<f", struct.pack("<I", b))[0])


def ktab():
    vals = []
    for c in range(2):
        for x in range(2048):
            lr = bf16_round_int(2047 - x)
            aa, rem = lr >> 7, lr & 127
            j, e = rem >> 3, rem & 7
            if aa < 2:
                rho = 8 * aa + e
            elif aa < 4:
                rho = 4 * aa + 8 + (e >> 1)
            elif aa < 8:
                rho = 16 + 2 * aa + (e >> 2)
            else:
                rho = 24 + aa
            vals.append((rho >> 2) * 256 + j * 16 + (rho & 3) * 4 + c * 2 * GST)
        vals += [3072 + c * 2 * GST] * 16
    lines = []
    for i in range(0, len(vals), 16):
        lines.append("    .short " + ", ".join(str(v) for v in vals[i:i + 16]))
    return "\n".join(lines)


def main(path):
    build()
    ins = a.finish()
    ref = open(f"cdna_kernels/{NAME}.s.ref").read().split("\n")
    head = [l for l in ref if l.startswith(";") and "@launch" not in l and not l.startswith("; Override") and not l.startswith("; grid=ceil")]
    k = NAME + "_kernel"
    s = "\n".join(head) + f"\n; @launch grid=(256,1,1) block=(256,1,1) lds={LDS_BYTES}\n"
    s += f""".amdgcn_target "amdgcn-amd-amdhsa--gfx950"
.text
.globl {k}
.p2align 8
.type {k},@function
{k}:
L_entry:
"""
    s += Prog.render(ins)
    s += "".join((l if l.endswith(":") else "    " + l) + "\n" for l in STUBS)
    s += f""".p2align 6
.type ktab,@object
ktab:
{ktab()}
.size ktab, 8256
.section .rodata,"a"
.p2align 6
.amdhsa_kernel {k}
  .amdhsa_next_free_vgpr 512
  .amdhsa_next_free_sgpr 102
  .amdhsa_accum_offset 256
  .amdhsa_group_segment_fixed_size 0
  .amdhsa_kernarg_size 136
  .amdhsa_user_sgpr_count 2
  .amdhsa_user_sgpr_kernarg_segment_ptr 1
  .amdhsa_system_sgpr_workgroup_id_x 1
  .amdhsa_float_denorm_mode_32 3
.end_amdhsa_kernel
"""
    open(path, "w").write(s)
    n = sum(1 for i in ins if i.kind not in ("label", "comment"))
    open(path + ".names", "w").write("\n".join(STAMP_NAMES))
    print("instructions:", n, "nops:", sum(1 for i in ins if i.kind == "nop"), "waits:", sum(1 for i in ins if i.kind == "wait"))


if __name__ == "__main__":
    path = sys.argv[1]
    for kv in sys.argv[2:]:
        k, v = kv.split("=")
        OPT[k] = v if k in ('em', 'probe') else int(v)
    main(path)
```

```python
import sys, math, struct
from asmlib import *

NAME = "interleave_layers__ssm_conv_s4__mixer_token_mlp__prompt"
OPT = dict(stamps=False, stop=99, upfront=True, dump=0, dbgwg=-1, fixdur=0, em='FSSFDSS', warm=1, h_flag=2, h_w=2, h_poll=9, h_ln=2, h_cv=0, h_g1=0, h_g2=0, rot=1, wA=0, wK=8, wP=8, wL=16, wB=120, wT=1, lag=2, gap=3, st_conv=100, ev_conv=150, ev_g1=100000, fill0=14, ln1w=0, ln0w=1, chk=1, samp=8, map18=1, ofl=0, tailord=1, cv=1, clk=0, ev_kg=150, mixpro=1, now=0, probe='', kc_in=0, w2t=0, g7=0, rl=4, bfr=1, wg=4, slp=0, ev_pro=30, t2=0, bg0=0, tlb=0, rese=0, lnd=1)
DBG_SEL = ['start', 'kgen', 'conv0 go', 'ln0 go', 'g1_0 go', 'g1_0 loop', 'g2_0 go', 'g2_0 loop', 'conv1 poll', 'ln1 go', 'g1_1 go', 'g2_1 go', 'end']
STAMP_NAMES = []

EPOCH = 0
ST0 = 0x1000
ST1 = 0x8000
STAMPS = 0x20000
FL = 0x100000
BS = 448 * 64 + 128
CH = 0x20000
X1, H1, G1, X3, H3, G3, X2, X0 = (0x400000 + 0x200000 * i for i in range(8))
FILL1, FILL3 = 6, 36
WS_BYTES = 268435456
OOB = 0x40000000

KST = 4160
KSLOT = {0: [0, 5, 2, 3], 1: [1, 6, 7, 4]}
UB = 8 * KST
UPAD = 1024
UST = 4096 + UPAD
ZB = UB + 2 * UST
EX = 2 * KST
RB = 2 * KST
GST = 15616
GROW = 272
TOFF = 12288
LNP = 57472
PERM = 61440
W2L = 65536
LDS_BYTES = 163840

sWAVE, sX, sJ, sPAIR, sDT1, sNT, sDT2, sST, sLN = 4, 5, 6, 7, 8, 9, 10, 11, 12
sNONCE = 14
P_U, P_ARE, P_AIM, P_BRE, P_BIM, P_CRE, P_CIM, P_LDT = 16, 18, 20, 22, 24, 26, 28, 30
P_DSK, P_W1, P_B1, P_W2, P_B2, P_OUT, P_DBG, P_WS = 32, 36, 38, 40, 42, 44, 46, 48
S_WS, S_W1, S_W2, S_X0, S_OUT = 52, 56, 60, 64, 68
sD0, sD1 = 72, 74
sLDT = 76
sEP = 78
sWOFF, sT0, sT1, sT2, sT3, sCNT = 80, 81, 82, 83, 84, 85
sRC, sR1, sR2, sRL = 86, 87, 88, 89
sM1, sM2 = 90, 92
sSTAMP = 94
sTAB = 96
sLN0, sRL0 = 77, 73
sCA, sCB = 34, 100

vLANE, vL16, vT2a, vT2b, vT1a, vT1b, vD1, vD2 = 127, 126, 125, 124, 123, 122, 121, 120
vA0, vA1 = 123, 122


def srd(n):
    return f"s[{n}:{n + 3}]"


def sp(n):
    return f"s[{n}:{n + 1}]"


def vr(n, k):
    return f"v[{n}:{n + k - 1}]" if k > 1 else f"v{n}"


def f32(x):
    return "0x%08x" % struct.unpack("<I", struct.pack("<f", x))[0]


a = Prog()
_lab = [0]


def label(p):
    _lab[0] += 1
    return f"L_{p}_{_lab[0]}"


_stamp = [0]


def stamp(name, r=1):
    k = _stamp[0]
    _stamp[0] += 1
    STAMP_NAMES.append(name)
    a("; MARK after " + name)
    if OPT["probe"] == name.replace(" ", "_"):
        a(f"s_memrealtime {sp(sSTAMP)}\ns_waitcnt lgkmcnt(0)\ns_mov_b32 s101, s{sSTAMP}")
    if OPT["stamps"] != 1:
        return
    l = label("st")
    if OPT["dbgwg"] >= 0:
        if name not in DBG_SEL:
            return
        a(f"s_lshl_b32 s3, s{sWAVE}, 8\ns_add_u32 s3, s3, s2\ns_cmp_lg_u32 s3, {OPT['dbgwg']}\ns_cbranch_scc1 {l}")
        a(f"s_memrealtime {sp(sSTAMP)}")
        a("s_waitcnt lgkmcnt(0)")
        a(f"s_mov_b64 exec, 1\nv_mov_b32 v{r}, s{sSTAMP}\ns_mov_b32 s{sSTAMP}, s{P_DBG}\ns_mov_b32 s{sSTAMP + 1}, s{P_DBG + 1}\ns_mov_b32 s{sSTAMP + 2}, 256\ns_mov_b32 s{sSTAMP + 3}, 0x20000".replace(f"s{sSTAMP}, s{P_DBG}", f"s64, s{P_DBG}").replace(f"s{sSTAMP + 1}, s{P_DBG + 1}", f"s65, s{P_DBG + 1}").replace(f"s{sSTAMP + 2}, 256", "s66, 256").replace(f"s{sSTAMP + 3}, 0x20000", "s67, 0x20000"))
        a(f"buffer_store_dword v{r}, off, s[64:67], 0 offset:{12 + 4 * DBG_SEL.index(name)} sc1", optional=True)
        a("s_mov_b64 exec, -1")
        a(f"{l}:")
        return
    a(f"s_cmp_lg_u32 s{sWAVE}, 0")
    a(f"s_cbranch_scc1 {l}")
    a(f"{'s_memtime' if OPT['clk'] else 's_memrealtime'} {sp(sSTAMP)}")
    a("s_waitcnt lgkmcnt(0)")
    a(f"s_lshl_b32 s3, s2, 8")
    a(f"s_add_u32 s3, s3, {STAMPS + 4 * k}")
    a(f"v_mov_b32 v{r}, s{sSTAMP}")
    a("s_mov_b64 exec, 1")
    a(f"buffer_store_dword v{r}, off, {srd(S_WS)}, s3", optional=True)
    a("s_mov_b64 exec, -1")
    a(f"{l}:")


_cnt = [0]


def count_out(r):
    if OPT["stamps"] != 1:
        return
    k = _cnt[0]
    _cnt[0] += 1
    a(f"s_lshl_b32 s3, s2, 2\ns_add_u32 s3, s3, s{sWAVE}\ns_lshl_b32 s3, s3, 5\ns_add_u32 s3, s3, {STAMPS + 0x10000 + 4 * k}")
    a(f"v_mov_b32 v{r}, s{sCNT}\ns_mov_b64 exec, 1")
    a(f"buffer_store_dword v{r}, off, {srd(S_WS)}, s3")
    a("s_mov_b64 exec, -1")


DUMP = 0x2000000


def dump_lds(point, r=96):
    if OPT["dump"] != point:
        return
    a.barrier()
    a(f"s_lshl_b32 s3, s{sWAVE}, 10\nv_add_u32 v{r + 4}, s3, v{vL16}\ns_lshl_b32 s3, s2, 16\ns_add_u32 s3, s3, {DUMP}")
    for i in range(16):
        a(f"ds_read_b128 {vr(r, 4)}, v{r + 4} offset:{i * 4096}")
        a(f"buffer_store_dwordx4 {vr(r, 4)}, v{r + 4}, {srd(S_WS)}, s3 offen")
        a("s_add_u32 s3, s3, 4096")
        a.wait_vm0()
    a.barrier()


def cmul(d, x, y):
    return [f"v_pk_mul_f32 {vr(d, 2)}, {vr(x, 2)}, {vr(y, 2)} op_sel:[1,1] op_sel_hi:[1,0] neg_lo:[0,1]",
            f"v_pk_fma_f32 {vr(d, 2)}, {vr(x, 2)}, {vr(y, 2)}, {vr(d, 2)} op_sel_hi:[0,1,1]"]


def cmul2(p, q=None):
    x = cmul(*p)
    if q is None:
        a(x[0]); a(x[1])
        return
    y = cmul(*q)
    a(x[0]); a(y[0]); a(x[1]); a(y[1])


def unpack(dlo, dhi, s):
    a(f"v_lshlrev_b32 v{dlo}, 16, v{s}")
    a(f"v_and_b32 v{dhi}, s0, v{s}")


def prologue():
    a("s_cmp_lt_u32 s2, 256")
    a("s_cbranch_scc1 L_start")
    a("s_endpgm")
    a("L_start:")
    if OPT["fixdur"] or OPT["stamps"]:
        a("s_memrealtime s[50:51]")
    a("s_load_dwordx16 s[16:31], s[0:1], 0")
    a("s_load_dwordx16 s[32:47], s[0:1], 64")
    a("s_load_dwordx2 s[48:49], s[0:1], 128")
    a(f"v_lshrrev_b32 v1, 6, v0")
    a(f"v_and_b32 v{vLANE}, 63, v0")
    a(f"v_readfirstlane_b32 s{sWAVE}, v1")
    a(f"v_lshlrev_b32 v{vL16}, 4, v{vLANE}")
    a(f"""s_and_b32 s{sX}, s2, 7
s_lshr_b32 s{sJ}, s2, 3
s_add_u32 s{sJ}, s{sJ}, 28
s_and_b32 s{sJ}, s{sJ}, 31
""")
    a(f"""s_lshr_b32 s{sT0}, s{sX}, 2
s_mul_i32 s{sPAIR}, s{sX}, 28
s_sub_u32 s{sRC}, s{sJ}, s{sT0}
s_add_u32 s{sPAIR}, s{sPAIR}, s{sRC}
s_cmp_lt_u32 s{sRC}, 28
s_cselect_b32 s{sRC}, 1, 0
s_mul_i32 s{sT2}, s{sJ}, 37
s_lshr_b32 s{sT2}, s{sT2}, 8
s_mul_i32 s{sT3}, s{sT2}, 7
s_sub_u32 s{sDT1}, s{sJ}, s{sT3}
s_lshl_b32 s{sNT}, s{sT2}, 3
s_add_u32 s{sNT}, s{sNT}, s{sX}
s_sub_u32 s{sT1}, s{sJ}, 4
s_cselect_b32 s{sR2}, 0, 1
s_and_b32 s{sT1}, s{sT1}, 31
s_mul_i32 s{sT2}, s{sT1}, 37
s_lshr_b32 s{sT2}, s{sT2}, 8
s_mul_i32 s{sT3}, s{sT2}, 7
s_sub_u32 s{sDT2}, s{sT1}, s{sT3}
s_lshl_b32 s{sST}, s{sX}, 2
s_add_u32 s{sST}, s{sST}, s{sT2}
s_cmp_eq_u32 s{sJ}, 0
s_cselect_b32 s{sT1}, 32, s{sJ}
s_mul_i32 s{sT2}, s{sX}, 12
s_add_u32 s{sT2}, s{sT2}, s{sT1}
s_sub_u32 s{sT2}, s{sT2}, 53
s_lshl_b32 s{sT3}, s{sX}, 2
s_add_u32 s{sT3}, s{sT3}, s{sJ}
s_sub_u32 s{sT3}, s{sT3}, 28
s_cmp_lg_u32 s{sT0}, 0
s_cselect_b32 s{sT1}, s{sT1}, s{sJ}
s_cselect_b32 s{sLN0}, s{sT2}, s{sT3}
s_cselect_b32 s{sRL0}, 21, 28
s_cmp_ge_u32 s{sT1}, s{sRL0}
s_cselect_b32 s{sRL0}, 1, 0""" if OPT["map18"] == 1 else f"""s_and_b32 s{sT0}, s{sX}, 1
s_lshr_b32 s{sT1}, s{sX}, 1
s_mul_i32 s{sPAIR}, s{sX}, 28
s_sub_u32 s{sRC}, s{sJ}, s{sT0}
s_add_u32 s{sPAIR}, s{sPAIR}, s{sRC}
s_cmp_lt_u32 s{sRC}, 28
s_cselect_b32 s{sRC}, 1, 0
s_mul_i32 s{sT2}, s{sJ}, 37
s_lshr_b32 s{sT2}, s{sT2}, 8
s_mul_i32 s{sT3}, s{sT2}, 7
s_sub_u32 s{sT3}, s{sJ}, s{sT3}
s_mul_i32 s{sNT}, s{sT1}, 7
s_add_u32 s{sNT}, s{sNT}, s{sT3}
s_lshl_b32 s{sT3}, s{sT0}, 2
s_add_u32 s{sDT1}, s{sT2}, s{sT3}
s_lshl_b32 s{sST}, s{sT0}, 3
s_sub_u32 s{sST}, s{sJ}, s{sST}
s_cselect_b32 s{sR2}, 0, 1
s_lshr_b32 s{sDT2}, s{sST}, 3
s_and_b32 s{sDT2}, s{sDT2}, 3
s_add_u32 s{sDT2}, s{sDT2}, s{sT3}
s_and_b32 s{sST}, s{sST}, 7
s_lshl_b32 s{sLN0}, s{sT1}, 4
s_lshl_b32 s{sT1}, s{sT1}, 3
s_add_u32 s{sST}, s{sST}, s{sT1}
s_cmp_eq_u32 s{sJ}, 0
s_cselect_b32 s{sT1}, 32, s{sJ}
s_mul_i32 s{sT2}, s{sT0}, 11
s_add_u32 s{sT2}, s{sT2}, s{sT1}
s_cmp_lg_u32 s{sT0}, 0
s_cselect_b32 s{sT1}, s{sT1}, s{sJ}
s_cselect_b32 s{sT2}, s{sT2}, s{sJ}
s_cselect_b32 s{sRL0}, 21, 28
s_cmp_ge_u32 s{sT1}, s{sRL0}
s_cselect_b32 s{sRL0}, 1, 0
s_add_u32 s{sLN0}, s{sLN0}, s{sT2}
s_sub_u32 s{sLN0}, s{sLN0}, 28""")
    if OPT["map18"] == 2:
        a(f"""s_sub_u32 s{sT1}, s{sJ}, 4
s_cselect_b32 s{sR2}, 0, 1
s_and_b32 s{sT1}, s{sT1}, 31
s_mul_i32 s{sT2}, s{sT1}, 37
s_lshr_b32 s{sT2}, s{sT2}, 8
s_mul_i32 s{sT3}, s{sT2}, 7
s_sub_u32 s{sDT2}, s{sT1}, s{sT3}
s_lshl_b32 s{sST}, s{sX}, 2
s_add_u32 s{sST}, s{sST}, s{sT2}""")
    a(f"""s_lshl_b32 s{sLN}, s{sX}, 4
s_add_u32 s{sLN}, s{sLN}, s{sJ}
s_sub_u32 s{sLN}, s{sLN}, 8
s_mul_i32 s{sT2}, s{sT0}, 7
s_sub_u32 s{sT2}, 28, s{sT2}
s_cmp_lt_u32 s{sJ}, s{sT2}
s_cselect_b32 s{sR1}, 1, 0
s_sub_u32 s{sT2}, s{sJ}, 8
s_cmp_lt_u32 s{sT2}, 16
s_cselect_b32 s{sRL}, 1, 0
s_min_u32 s{sPAIR}, s{sPAIR}, 223
s_mov_b32 s{sM1}, 0xaaaaaaaa
s_mov_b32 s{sM1 + 1}, 0xaaaaaaaa
s_mov_b32 s{sM2}, 0xcccccccc
s_mov_b32 s{sM2 + 1}, 0xcccccccc""")
    a("s_waitcnt lgkmcnt(0)")
    if OPT["fixdur"] or OPT["stamps"]:
        a("s_mov_b32 s101, s50")
    a("s_mov_b32 s0, 0xffff0000\ns_mov_b32 s1, 0xffff")
    a(f"""s_lshl_b32 s{sT0}, s{sPAIR}, 2
s_load_dword s{sLDT}, {sp(P_LDT)}, s{sT0}
s_load_dword s{sD0}, {sp(P_DSK)}, s{sT0}
s_load_dwordx2 {sp(sNONCE)}, {sp(P_WS)}, {EPOCH}""")
    kgen_loads()
    for n, p, size in ((S_X0, P_U, 1835008), (S_WS, P_WS, WS_BYTES), (S_OUT, P_OUT, 1835008)):
        a(f"s_mov_b32 s{n}, s{p}\ns_mov_b32 s{n + 1}, s{p + 1}\ns_mov_b32 s{n + 2}, {size}\ns_mov_b32 s{n + 3}, 0x20000")
    for n, p, role in ((S_W1, P_W1, sR1), (S_W2, P_W2, sR2)):
        a(f"s_mov_b32 s{n}, s{p}\ns_mov_b32 s{n + 1}, s{p + 1}\ns_cmp_lg_u32 s{role}, 0\ns_cselect_b32 s{n + 2}, {0 if OPT['now'] & (1 if n == S_W1 else 2) else 7340032}, 0\ns_mov_b32 s{n + 3}, 0x20000")


sAUX = 75


def code_warm(r):
    if not OPT["warm"]:
        return
    a(f"""s_lshl_b32 s{sT0}, s{sJ}, 2
s_add_u32 s{sT0}, s{sT0}, s{sWAVE}
s_mul_i32 s{sT0}, s{sT0}, 640
v_lshl_add_u32 v{r}, v{vLANE}, 7, s{sT0}
s_mov_b32 s{sT1}, ktab-L_entry+8192
v_min_u32 v{r}, s{sT1}, v{r}
s_sub_u32 s28, s{sTAB}, ktab-L_entry
s_subb_u32 s29, s{sTAB + 1}, 0
s_mov_b64 exec, 31
global_load_dword v{r}, v{r}, s[28:29]
s_mov_b64 exec, -1""")


def page_warm(r):
    if not OPT["tlb"]:
        return
    a(f"""v_lshlrev_b32 v{r}, 21, v{vLANE}
v_add_u32 v{r}, 0x1fff80, v{r}
s_mov_b64 exec, 0x3ff
buffer_load_dword v{r}, v{r}, {srd(S_WS)}, 0 offen
s_mov_b64 exec, 1
buffer_load_dword v{r + 1}, off, {srd(S_OUT)}, 0
global_load_dword v{r + 2}, v{vLANE}, {sp(P_B1)}
global_load_dword v{r + 3}, v{vLANE}, {sp(P_B2)}
s_mov_b64 exec, -1""")


def fill(base, n, r, sidx, stride, tag="st0"):
    a(f"""s_lshl_b32 s{sT0}, s{sidx}, 12
s_lshl_b32 s{sT1}, s{sWAVE}, 10
s_add_u32 s{sT0}, s{sT0}, s{sT1}
s_add_u32 s{sT0}, s{sT0}, {base}""")
    for k in range(4):
        a(f"v_mov_b32 v{r + k}, -1")
    for k in range(n):
        a(f"buffer_store_dwordx4 {vr(r, 4)}, v{vL16}, {srd(S_WS)}, s{sT0} offen sc1", tag=tag)
        if k + 1 < n:
            a(f"s_add_u32 s{sT0}, s{sT0}, {stride}")


def aux_loads():
    a(f"""s_and_b32 s{sAUX}, s{sJ}, 3
s_lshl_b32 s{sAUX}, s{sAUX}, 3
s_add_u32 s{sAUX}, s{sAUX}, s{sX}
s_lshl_b32 s16, s{sAUX}, 2
s_add_u32 s16, s16, s{sWAVE}
s_mul_i32 s{sT1}, s16, {16 * 896}
s_mul_i32 s17, s{sWAVE}, {16 * 912}
s_mov_b32 m0, s17
s_mov_b32 exec_hi, 0xffffff""")
    for k in range(16):
        if k:
            a(f"s_add_u32 m0, m0, 912\ns_add_u32 s{sT1}, s{sT1}, 896")
        a(f"buffer_load_dwordx4 v{vL16}, {srd(S_X0)}, s{sT1} offen lds", res_w=[f"x0"])
    a("s_mov_b64 exec, -1")


def aux_work():
    XR = 8
    a(f"""v_mov_b32 v76, 0
v_mov_b32 v77, 0
v_mov_b32 v78, 0
v_mov_b32 v79, 0
s_lshl_b32 s{sT1}, s16, 7
s_add_u32 s{sT1}, s{sT1}, {ST1}
s_lshl_b32 s18, s{sAUX}, 7
s_add_u32 s18, s18, {ST0}
s_mov_b64 exec, 0xff""")
    a(f"buffer_store_dwordx4 v[76:79], v{vL16}, {srd(S_WS)}, s{sT1} offen sc1", tag="st0")
    a(f"""s_mov_b64 exec, -1
v_and_b32 v2, 15, v{vLANE}
v_lshrrev_b32 v3, 4, v{vLANE}
v_mul_u32_u24 v4, 912, v2
v_lshl_add_u32 v4, v3, 4, v4
v_add_u32 v4, s17, v4
v_lshrrev_b32 v6, 2, v2
v_cmp_eq_u32 vcc, v6, v3
v_bfe_u32 v6, v2, 1, 2
v_lshlrev_b32 v6, 7, v6
v_lshrrev_b32 v7, 3, v2
v_lshl_add_u32 v6, v7, 4, v6
v_and_b32 v7, 1, v2
v_lshl_add_u32 v6, v7, 2, v6
s_lshl_b32 s{sT0}, s{sWAVE}, 5
s_add_u32 s{sT0}, s{sT0}, 60000
v_add_u32 v6, s{sT0}, v6
v_mov_b32 v7, 61024
v_cndmask_b32 v6, v7, v6, vcc
v_lshrrev_b32 v117, 3, v{vLANE}
v_cmp_eq_u32 vcc, s{sWAVE}, v117
v_lshlrev_b32 v117, 12, v117
v_and_b32 v7, 7, v{vLANE}
v_lshl_add_u32 v117, v7, 4, v117
v_mov_b32 v7, {OOB}
v_cndmask_b32 v117, v7, v117, vcc
v_mov_b32 v80, 0x3f803f80
v_mov_b32 v81, 0x3f803f80
v_mov_b32 v82, 0x3f803f80
v_mov_b32 v83, 0x3f803f80""")
    if OPT["stamps"] == 1:
        a.wait_vm0()
    stamp("aux data")
    for k in range(14):
        a(f"ds_read_b128 {vr(XR + 4 * k, 4)}, v4 offset:{64 * k}", res_r=["x0"])
    for k in range(14):
        x = vr(XR + 4 * k, 4)
        a(f"v_mfma_f32_16x16x32_bf16 v[64:67], v[80:83], {x}, {'v[64:67]' if k else 0}")
        a(f"v_mfma_f32_16x16x32_bf16 v[68:71], {x}, {x}, {'v[68:71]' if k else 0}")
    a(f"""v_cndmask_b32 v68, v68, v69, {sp(sM1)}
v_cndmask_b32 v70, v70, v71, {sp(sM1)}
v_cndmask_b32 v68, v68, v70, {sp(sM2)}""")
    a("ds_write2_b32 v6, v64, v68 offset0:0 offset1:2")
    a.barrier()
    a(f"ds_read_b128 v[64:67], v{vL16} offset:60000")
    a(f"buffer_store_dwordx4 v[64:67], v117, {srd(S_WS)}, s18 offen sc1", tag="st0")
    stamp("aux st")
    nonce_take()
    flag_put(0, f"s_add_u32 s{sT0}, s{sAUX}, 224\ns_lshl_b32 s{sT0}, s{sT0}, 6", 72, "st0")


def xt_loads():
    a(f"""s_lshl_b32 s{sT0}, s{sPAIR}, 1
s_lshr_b32 s{sT1}, s{sWAVE}, 1
s_add_u32 s{sT0}, s{sT0}, s{sT1}
s_mul_i32 s{sT1}, s{sT0}, 9363
s_lshr_b32 s{sT1}, s{sT1}, 16
s_mul_i32 s{sT2}, s{sT1}, 7
s_sub_u32 s{sT0}, s{sT0}, s{sT2}
s_lshl_b32 s{sT0}, s{sT0}, 1
s_and_b32 s{sT2}, s{sWAVE}, 1
s_add_u32 s{sT0}, s{sT0}, s{sT2}
s_mul_i32 s{sT2}, s{sT1}, {32 * 896}
s_lshl_b32 s{sT3}, s{sT0}, 6
s_add_u32 s{sT2}, s{sT2}, s{sT3}
v_lshrrev_b32 v2, 2, v{vLANE}
v_mul_u32_u24 v2, 896, v2
v_and_b32 v3, 3, v{vLANE}
v_lshl_add_u32 v2, v3, 4, v2
s_mul_i32 s22, s{sWAVE}, {GST}
s_mov_b32 m0, s22
s_mul_i32 s23, s{sT1}, {BS}""")
    a(f"buffer_load_dwordx4 v2, {srd(S_X0)}, s{sT2} offen lds", res_w=["x0"])
    a(f"s_add_u32 m0, m0, 1024\ns_add_u32 s{sT2}, s{sT2}, {16 * 896}")
    a(f"buffer_load_dwordx4 v2, {srd(S_X0)}, s{sT2} offen lds", res_w=["x0"])
    a(f"""s_lshl_b32 s{sT0}, s{sT0}, 11
s_add_u32 s23, s23, s{sT0}
s_add_u32 s23, s23, {X0}
v_lshrrev_b32 v2, 4, v{vLANE}
v_bfe_u32 v36, v{vLANE}, 2, 2
v_lshl_add_u32 v36, v2, 3, v36
v_lshlrev_b32 v36, 6, v36
v_lshl_add_u32 v36, v3, 3, v36
v_add_u32 v36, s22, v36
v_and_b32 v37, 15, v{vLANE}
v_lshlrev_b32 v37, 6, v37
v_lshl_add_u32 v37, v2, 4, v37""")


def xt_work():
    for u in range(2):
        for j in range(2):
            a(f"ds_read_b64_tr_b16 {vr(40 + 4 * u + 2 * j, 2)}, v36 offset:{j * 256 + u * 32}", res_r=["x0"])
    for u in range(2):
        a(f"buffer_store_dwordx4 {vr(40 + 4 * u, 4)}, v37, {srd(S_WS)}, s23 offen offset:{1024 * u} sc1", tag="st0")


def xt_poll_addr(ra, t):
    a(f"""s_lshl_b32 s{sT0}, s{sWAVE}, 4
v_and_b32 v{t}, 15, v{vLANE}
v_add_u32 v{t}, s{sT0}, v{t}
v_mul_u32_u24 v{t}, 7, v{t}
s_lshr_b32 s{sT0}, s{sPAIR}, 5
v_add_u32 v{t}, s{sT0}, v{t}
v_lshrrev_b32 v{t}, 1, v{t}
s_lshl_b32 s{sT0}, s{sWAVE}, 3
s_add_u32 s{sT0}, s{sT0}, 224
v_and_b32 v{ra}, 7, v{vLANE}
v_add_u32 v{ra}, s{sT0}, v{ra}
v_cmp_gt_u32 vcc, 16, v{vLANE}
v_cndmask_b32 v{ra}, v{ra}, v{t}, vcc""")


def e1_poll_addr(ra):
    a(f"s_lshl_b32 s{sT0}, s{sWAVE}, 6\nv_add_u32 v{ra}, s{sT0}, v{vLANE}")


def nonce_take():
    a(f"s_add_u32 s{sNONCE}, s{sNONCE}, 1")
    a(f"s_addc_u32 s{sNONCE + 1}, s{sNONCE + 1}, 0")


def nonce_retire():
    l = label("nr")
    a(f"s_or_b32 s{sT0}, s2, s{sWAVE}")
    a(f"s_cmp_lg_u32 s{sT0}, 32")
    a(f"s_cbranch_scc1 {l}")
    a(f"v_mov_b32 v110, s{sNONCE}\nv_mov_b32 v111, s{sNONCE + 1}\ns_mov_b64 exec, 1")
    a(f"buffer_store_dwordx2 v[110:111], off, {srd(S_WS)}, 0 offset:{EPOCH} sc1", optional=True)
    a("s_mov_b64 exec, -1")
    a(f"{l}:")


def flag_put(edge, sprod, r, tag):
    a(f"s_lshl_b32 s{sT0}, s{sprod}, 6" if isinstance(sprod, int) else sprod)
    a(f"""s_lshl_b32 s{sT1}, s{sWAVE}, 15
s_add_u32 s{sT0}, s{sT0}, s{sT1}
s_add_u32 s{sT0}, s{sT0}, {FL + edge * 0x20000}
v_lshlrev_b32 v{r + 4}, 12, v{vLANE}
v_and_b32 v{r + 4}, 0x4000, v{r + 4}
v_and_b32 v{r}, 3, v{vLANE}
v_lshl_add_u32 v{r + 4}, v{r}, 4, v{r + 4}
v_mov_b32 v{r}, s{sNONCE}
v_mov_b32 v{r + 1}, s{sNONCE + 1}
v_mov_b32 v{r + 2}, s{sNONCE}
v_mov_b32 v{r + 3}, s{sNONCE + 1}""")
    a.wait_tag(tag)
    a.barrier()
    a("s_mov_b64 exec, 0xff")
    a(f"buffer_store_dwordx4 {vr(r, 4)}, v{r + 4}, {srd(S_WS)}, s{sT0} offen sc1", tag="flag")
    a("s_mov_b64 exec, -1")


def emode(e):
    return OPT["em"][e - 1]


def hinted(e):
    return emode(e) in "HSM"


def sentinel(e):
    return emode(e) in "SDM"


def flagged(e):
    return emode(e) in "FH"


def armed(layer):
    return any(sentinel(e + 4 * layer) for e in (1, 2, 3))


def wait_edge(e, r, ra_full, ra_samp):
    if hinted(e):
        poll_issue(e + 10, r, ra_samp)
        poll_take(r, ra_samp)
    elif emode(e) == "D":
        a.wait_tag("pub")
    else:
        a.wait_tag("flag")
    if flagged(e):
        poll_issue(e, r, ra_full)
        poll_take(r, ra_full)


def hint_prep(edge, sprod, r):
    a(f"s_lshl_b32 s{sT0}, s{sprod}, 6" if isinstance(sprod, int) else sprod)
    a(f"""s_lshl_b32 s{sT1}, s{sWAVE}, 15
s_add_u32 s{sT0}, s{sT0}, s{sT1}
s_add_u32 s{sT0}, s{sT0}, {FL + edge * 0x20000}
v_lshlrev_b32 v{r + 4}, 12, v{vLANE}
v_and_b32 v{r + 4}, 0x4000, v{r + 4}
v_and_b32 v{r}, 3, v{vLANE}
v_lshl_add_u32 v{r + 4}, v{r}, 4, v{r + 4}
v_add_u32 v{r + 4}, s{sT0}, v{r + 4}
v_mov_b32 v{r}, s{sNONCE}
v_mov_b32 v{r + 1}, s{sNONCE + 1}
v_mov_b32 v{r + 2}, s{sNONCE}
v_mov_b32 v{r + 3}, s{sNONCE + 1}""")


def hint_put(r):
    a("s_mov_b64 exec, 0xff")
    a(f"buffer_store_dwordx4 {vr(r, 4)}, v{r + 4}, {srd(S_WS)}, 0 offen sc1", tag="hint")
    a("s_mov_b64 exec, -1")


def poll_issue(edge, r, ra=None):
    ra = r + 2 if ra is None else ra
    a(f"""s_lshl_b32 s{sT3}, s{sX}, 14
s_add_u32 s{sT3}, s{sT3}, {FL + edge * 0x20000}
v_lshl_add_u32 v{ra}, v{ra}, 6, s{sT3}
buffer_load_dwordx2 {vr(r, 2)}, v{ra}, {srd(S_WS)}, 0 offen sc1""")


def poll_take(r, ra=None):
    ra = r + 2 if ra is None else ra
    ok, lp = label("pok"), label("plp")
    a(f"v_cmp_ne_u64 vcc, {sp(sNONCE)}, {vr(r, 2)}")
    a(f"s_cbranch_vccz {ok}")
    a(f"s_mov_b32 s{sCNT}, 0")
    a(f"{lp}:")
    if OPT["slp"]:
        a(f"s_sleep {OPT['slp']}")
    a(f"buffer_load_dwordx2 {vr(r, 2)}, v{ra}, {srd(S_WS)}, 0 offen sc1")
    a("s_waitcnt vmcnt(0)")
    a(f"v_cmp_ne_u64 vcc, {sp(sNONCE)}, {vr(r, 2)}")
    a(f"s_add_u32 s{sCNT}, s{sCNT}, 1")
    a(f"s_cbranch_vccz {ok}")
    a(f"s_cmp_lt_u32 s{sCNT}, 0x100000")
    a(f"s_cbranch_scc1 {lp}")
    a(f"{ok}:")


sW1O, sW2O = 98, 99
sROT1, sROT2 = 33, 35
sW1E, sW2E = 78, 79


def w_setup():
    a(f"""v_lshrrev_b32 v2, 3, v{vLANE}
v_and_b32 v3, 7, v{vLANE}
v_bfe_u32 v4, v{vLANE}, 4, 1
v_lshlrev_b32 v4, 2, v4
v_xor_b32 v3, v3, v4
v_lshlrev_b32 v3, 4, v3
v_mul_u32_u24 v{vD1}, 3584, v2
v_add_u32 v{vD1}, v{vD1}, v3
v_lshl_add_u32 v{vD2}, v2, 12, v3
v_bfe_u32 v2, v{vLANE}, 2, 2
v_lshrrev_b32 v3, 5, v{vLANE}
v_bfe_u32 v4, v{vLANE}, 4, 1
v_and_b32 v5, 3, v{vLANE}
v_lshlrev_b32 v5, 3, v5
v_lshl_add_u32 v5, v4, 5, v5
v_lshrrev_b32 v4, 1, v2
v_lshl_add_u32 v5, v4, 6, v5
s_lshr_b32 s{sT0}, s{sWAVE}, 1
s_lshl_b32 s{sT0}, s{sT0}, 6
v_xor_b32 v5, s{sT0}, v5
v_lshl_add_u32 v5, v2, 7, v5
s_mul_i32 s{sT1}, s{sWAVE}, 24576
s_add_u32 s{sT1}, s{sT1}, {W2L}
v_add_u32 v5, s{sT1}, v5
v_lshl_add_u32 v{vT1a}, v3, 10, v5
v_xor_b32 v{vT1b}, 64, v{vT1a}
v_lshl_add_u32 v{vT2a}, v3, 9, v5
v_xor_b32 v{vT2b}, 64, v{vT2a}
s_mul_i32 s{sW1O}, s{sWAVE}, {512 * 3584}
s_lshl_b32 s{sT0}, s{sNT}, 7
s_add_u32 s{sW1O}, s{sW1O}, s{sT0}
s_mul_i32 s{sW2O}, s{sWAVE}, {448 * 4096}
s_lshl_b32 s{sT0}, s{sST}, 7
s_add_u32 s{sW2O}, s{sW2O}, s{sT0}
s_mov_b32 s{sWOFF}, s{sT1}""")
    if OPT["rot"] and OPT["map18"] == 1:
        if OPT["rot"] == 2:
            a(f"""s_add_u32 s{sROT1}, s{sDT1}, s{sX}
s_and_b32 s{sROT1}, s{sROT1}, 7
s_add_u32 s{sROT2}, s{sDT2}, s{sX}
s_cmp_ge_u32 s{sROT2}, 7
s_cselect_b32 s{sT0}, 7, 0
s_sub_u32 s{sROT2}, s{sROT2}, s{sT0}""")
        else:
            a(f"s_mov_b32 s{sROT1}, s{sDT1}\ns_mov_b32 s{sROT2}, s{sDT2}")
    elif OPT["rot"] == 3:
        a(f"""s_and_b32 s{sT0}, s{sDT1}, 3
s_lshr_b32 s{sT1}, s{sDT1}, 2
s_add_u32 s{sT1}, s{sT1}, 2
s_mul_i32 s{sROT1}, s{sT0}, s{sT1}
s_min_u32 s{sROT1}, s{sROT1}, 7
s_and_b32 s{sT0}, s{sDT2}, 3
s_lshr_b32 s{sT1}, s{sDT2}, 2
s_add_u32 s{sT1}, s{sT1}, 2
s_mul_i32 s{sROT2}, s{sT0}, s{sT1}
s_min_u32 s{sROT2}, s{sROT2}, 5""")
    elif OPT["rot"]:
        a(f"""s_and_b32 s{sT0}, s{sDT1}, 3
s_lshl_b32 s{sT0}, s{sT0}, 1
s_lshr_b32 s{sT1}, s{sDT1}, 2
s_add_u32 s{sT0}, s{sT0}, s{sT1}
s_and_b32 s{sROT1}, s{sT0}, 7
s_and_b32 s{sT0}, s{sDT2}, 3
s_lshl_b32 s{sT0}, s{sT0}, 1
s_lshr_b32 s{sT1}, s{sDT2}, 2
s_add_u32 s{sT0}, s{sT0}, s{sT1}
s_min_u32 s{sROT2}, s{sT0}, 6""")
        if OPT["map18"] == 2:
            a(f"s_mov_b32 s{sROT2}, s{sDT2}")
    else:
        a(f"s_mov_b32 s{sROT1}, 0\ns_mov_b32 s{sROT2}, 0")
    a(f"""s_add_u32 s{sW1E}, s{sW1O}, {512 * 3584}
s_mul_i32 s{sT0}, s{sROT1}, {64 * 3584}
s_add_u32 s{sW1O}, s{sW1O}, s{sT0}
s_add_u32 s{sW2E}, s{sW2O}, {448 * 4096}
s_mul_i32 s{sT0}, s{sROT2}, {64 * 4096}
s_add_u32 s{sW2O}, s{sW2O}, s{sT0}""")


WORDER = list(range(0, 4)) + list(range(32, 36)) + list(range(4, 32)) + list(range(36, 60))


def w_dma(pos, half):
    slot = pos % 12
    n = WORDER[pos]
    g = [Ins(f"s_add_u32 m0, s{sWOFF}, {slot * 2048 + half * 1024}")]
    if n < 32:
        g.append(Ins(f"s_add_u32 s{sW1O}, s{sW1O}, {8 * 3584}") if (n or half) else Ins("s_nop 0"))
        if n and n % 4 == 0 and half == 0:
            g += [Ins(f"s_cmp_eq_u32 s{sW1O}, s{sW1E}"), Ins(f"s_cselect_b32 s3, {512 * 3584}, 0"), Ins(f"s_sub_u32 s{sW1O}, s{sW1O}, s3")]
        g.append(Ins(f"buffer_load_dwordx4 v{vD1}, {srd(S_W1)}, s{sW1O} offen lds", res_w=[f"slot{slot}"]))
    else:
        g.append(Ins(f"s_add_u32 s{sW2O}, s{sW2O}, {8 * 4096}") if (n > 32 or half) else Ins("s_nop 0"))
        if n > 32 and n % 4 == 0 and half == 0:
            g += [Ins(f"s_cmp_eq_u32 s{sW2O}, s{sW2E}"), Ins(f"s_cselect_b32 s3, {448 * 4096}, 0"), Ins(f"s_sub_u32 s{sW2O}, s{sW2O}, s3")]
        g.append(Ins(f"buffer_load_dwordx4 v{vD2}, {srd(S_W2)}, s{sW2O} offen lds", res_w=[f"slot{slot}"]))
    return g


def w_tr(pos):
    slot = pos % 12
    n = WORDER[pos]
    g = []
    for nb in range(2):
        for j in range(2):
            if n < 32:
                r = (n * 2 + nb) * 4 + 2 * j
                g.append(Ins(f"ds_read_b64_tr_b16 a[{r}:{r + 1}], v{(vT1a, vT1b)[nb]} offset:{slot * 2048 + j * 512}", res_r=[f"slot{slot}"]))
            else:
                r = 128 + ((n - 32) * 2 + nb) * 4 + 2 * j
                g.append(Ins(f"ds_read_b64_tr_b16 v[{r}:{r + 1}], v{(vT2a, vT2b)[nb]} offset:{slot * 2048 + j * 1024}", res_r=[f"slot{slot}"]))
    return g


def w_all_upfront():
    for n in range(12):
        a.put(w_dma(n, 0)); a.put(w_dma(n, 1))
    for n in range(48):
        a.put(w_tr(n))
        if n >= 1:
            a.put(w_dma(n + 11, 0)); a.put(w_dma(n + 11, 1))
    a.put(w_dma(59, 0)); a.put(w_dma(59, 1))
    a.wait_vm0()
    a.wait_lgkm0()


PR = 56
TAB = 104


def kgen_loads():
    a(f"""s_lshl_b32 s{sT0}, s{sPAIR}, 10
s_lshl_b32 s{sT1}, s{sWAVE}, 8
s_add_u32 s{sT0}, s{sT0}, s{sT1}
v_lshl_add_u32 v3, v{vLANE}, 2, s{sT0}""")
    for k, p in enumerate((P_ARE, P_AIM, P_BRE, P_BIM, P_CRE, P_CIM)):
        a(f"global_load_dword v{PR + k}, v3, {sp(p)}")


def kgen_table_addr():
    l = label("pc")
    a(f"s_getpc_b64 {sp(sTAB)}")
    a(f"{l}:")
    a(f"s_add_u32 s{sTAB}, s{sTAB}, ktab-{l}")
    a(f"s_addc_u32 s{sTAB + 1}, s{sTAB + 1}, 0")


def kgen_table_load():
    kgen_table_addr()
    a(f"s_lshr_b32 s{sT0}, s{sWAVE}, 1\ns_lshl_b32 s{sT0}, s{sT0}, 5\nv_lshl_add_u32 v75, v0, 5, s{sT0}")


KBG = []


def kgen(hooks):
    F = {e: 2 * e for e in range(1, 8)}
    Qr = {1: 16, 2: 18, 3: 20, 4: 22}
    QN = [24, 26]
    Z1, Z2, C0, C1 = 28, 30, 32, 34
    CN = [36, 38]
    T0, T1 = 62, 64
    CV = [66, 67, 68, 69]
    A2, B2, DT = 70, 71, 72
    ACC = 76
    QF = 88
    PF = 40
    vG, vF = 73, 74
    a(f"""s_mul_i32 s{sT0}, s{sWAVE}, {GST}
v_lshl_add_u32 v{vG}, v{vLANE}, 2, s{sT0}
v_and_b32 v2, 15, v{vLANE}
v_mul_u32_u24 v2, {GROW}, v2
v_lshrrev_b32 v3, 4, v{vLANE}
v_lshl_add_u32 v2, v3, 4, v2
v_add_u32 v{vF}, s{sT0}, v2""")
    a.begin()
    a(f"""s_lshr_b32 s{sT0}, s{sWAVE}, 1
s_lshl_b32 s{sT0}, s{sT0}, 4
s_lshr_b32 s{sT0}, s{sLDT}, s{sT0}
s_lshl_b32 s{sT0}, s{sT0}, 16
v_mov_b32 v2, {f32(math.log2(math.e))}
v_mul_f32 v2, s{sT0}, v2
v_exp_f32 v2, v2
v_cvt_pk_bf16_f32 v2, v2, v2
v_lshlrev_b32 v{DT}, 16, v2
s_and_b32 s{sD1}, s{sD0}, 0xffff0000
s_lshl_b32 s{sD0}, s{sD0}, 16""")
    cvi = [0]

    def hook(name):
        if name is not None and name not in hooks:
            return
        a_body = space_ds(a.end(), OPT["lag"], OPT["gap"])
        m, rest = merge(a_body, KBG[:], 20, OPT["ev_kg"])
        del KBG[:]
        a.put(m)
        put_all(rest)
        if name is not None:
            hooks[name]()
            a.begin()

    def row(r, src, neg=False):
        c = CV[cvi[0] % 4]
        cvi[0] += 1
        a(f"v_cvt_pk_bf16_f32 v{c}, v{src}, {'-' if neg else ''}v{src + 1}")
        a(f"ds_write_b32 v{vG}, v{c} offset:{r * GROW}")

    def reads(dst, tile):
        for ks in range(4):
            a(f"ds_read_b128 {vr(dst + 4 * ks, 4)}, v{vF} offset:{tile * 16 * GROW + ks * 64}")

    def mfmas(t, first):
        for ks in range(4):
            c = "0" if (first and ks == 0) else vr(ACC + 4 * t, 4)
            a(f"v_mfma_f32_16x16x32_bf16 {vr(ACC + 4 * t, 4)}, {vr(PF + 4 * ks, 4)}, {vr(QF + 4 * ks, 4)}, {c}")

    def direct(d, scale):
        if scale != 1:
            a(f"v_mul_f32 v{T0}, {f32(scale)}, v{A2}")
            a(f"v_mul_f32 v{T1}, {f32(scale)}, v{B2}")
            x, y = T0, T1
        else:
            x, y = A2, B2
        a(f"v_fract_f32 v{T1}, v{y}")
        a(f"v_exp_f32 v{T0}, v{x}")
        a(f"v_cos_f32 v{d}, v{T1}")
        a(f"v_sin_f32 v{d + 1}, v{T1}")
        a(f"v_pk_mul_f32 {vr(d, 2)}, {vr(d, 2)}, {vr(T0, 2)} op_sel_hi:[1,0]")

    for rd in range(2):
        def up(d, s):
            a(f"v_lshlrev_b32 v{d}, 16, v{s}" if rd == 0 else f"v_and_b32 v{d}, s0, v{s}")
        up(A2, PR); up(B2, PR + 1)
        up(QN[0], PR + 2); up(QN[0] + 1, PR + 3)
        up(QN[1], PR + 4); up(QN[1] + 1, PR + 5)
        a(f"v_mul_f32 v{A2}, v{DT}, v{A2}")
        a(f"v_mul_f32 v{B2}, v{DT}, v{B2}")
        a(f"v_pk_mul_f32 {vr(QN[0], 2)}, {vr(QN[0], 2)}, {vr(DT, 2)} op_sel_hi:[1,0]")
        a(f"v_mul_f32 v{A2}, {f32(math.log2(math.e))}, v{A2}")
        a(f"v_mul_f32 v{B2}, {f32(1 / (2 * math.pi))}, v{B2}")
        cmul2((C0, QN[1], QN[0]))
        direct(F[1], 1)
        if rd == 1:
            mfmas(2, True)
        direct(Z1, 128)
        hook(5 * rd)
        cmul2((F[2], F[1], F[1]), (Z2, Z1, Z1))
        cmul2((F[4], F[2], F[2]), (F[3], F[2], F[1]))
        cmul2((Qr[1], F[4], F[4]), (C1, C0, Z1))
        a(f"v_mov_b32 v{CV[3]}, 0x3f80")
        a(f"ds_write_b32 v{vG}, v{CV[3]}")
        cmul2((Qr[2], Qr[1], Qr[1]), (F[5], F[4], F[1]))
        row(1, Qr[1], True)
        cmul2((Qr[3], Qr[2], Qr[1]), (Qr[4], Qr[2], Qr[2]))
        row(2, Qr[2], True)
        cmul2((F[6], F[4], F[2]), (F[7], F[4], F[3]))
        row(3, Qr[3], True)
        row(4, Qr[4], True)
        cur = {1: Qr[1], 2: Qr[2], 3: Qr[3], 0: Qr[4]}
        free = list(QN) + [CN[0]]
        j = 5
        while j < 16:
            js = [j] + ([j + 1] if j + 1 < 16 else [])
            ps = []
            for jj in js:
                d = free.pop(0)
                ps.append((d, cur[jj % 4], Qr[4]))
            cmul2(*ps)
            for jj, p in zip(js, ps):
                if cur[jj % 4] != Qr[4]:
                    free.append(cur[jj % 4])
                cur[jj % 4] = p[0]
                row(jj, p[0], True)
            j += 2
        reads(QF, 0)
        hook(5 * rd + 1)
        TA, TB = QN
        row(16, C0); row(24, C1)
        for e in range(1, 8):
            cmul2((TA, C0, F[e]), (TB, C1, F[e]))
            row(16 + e, TA); row(24 + e, TB)
        reads(PF, 1)
        hook(5 * rd + 2)
        ca, cb = C0, C1
        na, nb_ = CN
        def adv():
            nonlocal ca, cb, na, nb_
            cmul2((na, ca, Z2), (nb_, cb, Z2))
            ca, cb, na, nb_ = na, nb_, ca, cb
        adv()
        row(32, ca); row(36, cb)
        for e in range(1, 4):
            cmul2((TA, ca, F[2 * e]), (TB, cb, F[2 * e]))
            row(32 + e, TA); row(36 + e, TB)
        mfmas(0, rd == 0)
        for k in range(2):
            adv()
            row(40 + 4 * k, ca); row(42 + 4 * k, cb)
            cmul2((TA, ca, F[4]), (TB, cb, F[4]))
            row(41 + 4 * k, TA); row(43 + 4 * k, TB)
        reads(PF, 2)
        hook(5 * rd + 3)
        for k in range(4):
            adv()
            row(48 + 2 * k, ca); row(49 + 2 * k, cb)
        cmul2((na, ca, Z2))
        row(56, na)
        mfmas(1, rd == 0)
        reads(PF, 3)
        hook(5 * rd + 4)
    hook(None)
    a(f"s_mul_i32 s{sT0}, s{sWAVE}, {GST}")
    a(f"v_add_u32 v{vF}, s{sT0}, v{vL16}")
    a(f"v_mov_b32 v{CV[0]}, 0")
    for k in range(8):
        a(f"v_and_b32 v{2 + 2 * k}, s1, v{TAB + k}")
        a(f"v_lshrrev_b32 v{3 + 2 * k}, 16, v{TAB + k}")
    for t in range(2):
        a(f"ds_write_b128 v{vF}, {vr(ACC + 4 * t, 4)} offset:{TOFF + t * 1024}")
    mfmas(2, False)
    a(f"ds_write_b32 v{vG}, v{CV[0]} offset:{TOFF + 3072}")
    a("v_and_b32 v18, 0xffff, v0\nv_lshrrev_b32 v19, 16, v0\nv_and_b32 v20, 0xffff, v1")
    a(f"ds_write_b128 v{vF}, {vr(ACC + 8, 4)} offset:{TOFF + 2048}")


def kzero(r):
    a(f"""v_mov_b32 v{r}, 0
v_mov_b32 v{r + 1}, 0
v_mov_b32 v{r + 2}, 0
v_mov_b32 v{r + 3}, 0
v_bfe_u32 v{r + 4}, v{vLANE}, 1, 3
v_mul_u32_u24 v{r + 4}, {KST}, v{r + 4}
v_and_b32 v{r + 5}, 1, v{vLANE}
v_lshl_add_u32 v{r + 4}, v{r + 5}, 4, v{r + 4}
s_and_b32 s{sT0}, s{sWAVE}, 1
s_mul_i32 s{sT0}, s{sT0}, {UST}
v_add_u32 v{r + 5}, s{sT0}, v{vL16}""")
    return [f"ds_write_b128 v{r + 4}, {vr(r, 4)} offset:4096", f"ds_write_b128 v{r + 5}, {vr(r, 4)} offset:{UB}"]


def kaddr(r):
    a(f"""s_lshr_b32 s{sT0}, s{sWAVE}, 1
s_and_b32 s{sT1}, s{sWAVE}, 1
s_lshl_b32 s{sT1}, s{sT1}, 11
v_lshl_add_u32 v{r + 3}, v{vLANE}, 5, s{sT1}""")
    for c in range(4):
        a(f"s_cmp_lg_u32 s{sT0}, 0")
        a(f"s_cselect_b32 s{sT2}, {KSLOT[1][c]}, {KSLOT[0][c]}")
        a(f"s_mul_i32 s{sT2}, s{sT2}, {KST}")
        a(f"v_add_u32 v{r + c}, s{sT2}, v{r + 3}")


def kexpand(mid):
    AD, VAL = 2, 22
    P0, P1, P2, P3 = 2, 12, 88, 96
    a.barrier()
    for k in range(19):
        a(f"ds_read2st64_b32 {vr(VAL + 2 * k, 2)}, v{AD + k} offset0:{TOFF // 256} offset1:{TOFF // 256 + GST // 256}")
    mid()
    kaddr(60)
    zw = kzero(104)
    for k in range(19):
        a(f"v_add_f32 v{VAL + 2 * k}, v{VAL + 2 * k}, v{VAL + 2 * k + 1}")
        if k:
            a(f"v_cvt_pk_bf16_f32 v{(P0 if k & 1 else P1) + (k - 1) // 2}, v{VAL + 2 * k - 2}, v{VAL + 2 * k}")
    a.barrier()
    a.begin()
    for l in zw:
        a(l)
    for c, P in ((0, P0), (1, P1)):
        a(f"ds_write_b128 v{60 + c}, {vr(P, 4)}")
        a(f"ds_write_b128 v{60 + c}, {vr(P + 4, 4)} offset:16")
    for c, P, src in ((2, P2, P0), (3, P3, P1)):
        for i in range(4):
            a(f"v_pk_mov_b32 {vr(P + 2 * i, 2)}, {vr(src + 2 * i, 2)}, {vr(src + 2 * i + 2, 2)} op_sel:[1,0]")
        a(f"ds_write_b128 v{60 + c}, {vr(P, 4)}")
        a(f"ds_write_b128 v{60 + c}, {vr(P + 4, 4)} offset:16")
    return a.end()


def kcopies():
    R, E, M = 2, 12, 22
    kaddr(40)
    a(f"""ds_read_b128 {vr(R, 4)}, v40
ds_read_b128 {vr(R + 4, 4)}, v40 offset:16
ds_read_b64 {vr(R + 8, 2)}, v40 offset:32""")
    for l in kzero(32):
        a(l)
    for i in range(9):
        a(f"v_alignbit_b32 v{E + i}, v{R + i + 1}, v{R + i}, 16")
    a(f"ds_write_b128 v41, {vr(E, 4)}")
    a(f"ds_write_b128 v41, {vr(E + 4, 4)} offset:16")
    for i in range(4):
        a(f"v_pk_mov_b32 {vr(M + 2 * i, 2)}, {vr(R + 2 * i, 2)}, {vr(R + 2 * i + 2, 2)} op_sel:[1,0]")
    a(f"ds_write_b128 v42, {vr(M, 4)}")
    a(f"ds_write_b128 v42, {vr(M + 4, 4)} offset:16")
    for i in range(4):
        a(f"v_pk_mov_b32 {vr(R + 2 * i, 2)}, {vr(E + 2 * i, 2)}, {vr(E + 2 * i + 2, 2)} op_sel:[1,0]")
    a(f"ds_write_b128 v43, {vr(R, 4)}")
    a(f"ds_write_b128 v43, {vr(R + 4, 4)} offset:16")


GX = 80
CS = 64
cvA, cvB, cvZ, cvXW, cvXR, cvO, cvU, cvX, cvH, cvP = 112, 113, 114, 115, 116, 117, 118, 119, 100, 108
STUBS = []


def conv_poll1():
    r = cvP
    a(f"""v_lshrrev_b32 v{r}, 3, v{vLANE}
v_min_u32 v{r}, 6, v{r}
v_and_b32 v{r + 1}, 7, v{vLANE}
v_lshl_add_u32 v{r + 2}, v{r}, 5, v{r + 1}
s_lshl_b32 s{sT0}, s{sWAVE}, 3
v_add_u32 v{r + 2}, s{sT0}, v{r + 2}
v_and_b32 v{r + 1}, 7, v{vLANE}
v_min_u32 v{r}, 6, v{r + 1}
v_lshl_add_u32 v{r + 3}, v{r}, 5, v{r + 1}
v_add_u32 v{r + 3}, s{sT0}, v{r + 3}""")


def conv_loads():
    for p in range(4):
        a(f"buffer_load_dwordx4 {vr(CS + 4 * p, 4)}, v{vL16}, {srd(S_WS)}, s{16 + p} offen sc1")
    a(f"buffer_load_dwordx4 {vr(GX, 4)}, v{cvX}, {srd(S_WS)}, s20 offen sc1")
    a(f"buffer_load_dwordx4 {vr(GX + 4, 4)}, v{cvX}, {srd(S_WS)}, s20 offen offset:64 sc1")


def conv_setup(layer):
    a(f"""s_mov_b32 s{sCA}, {f32(1.0 / 448)}
s_mov_b32 s{sCB}, {f32(1e-5)}
s_lshl_b32 s{sT0}, s{sWAVE}, 10
v_add_u32 v{cvU}, s{sT0}, v{vL16}
s_lshr_b32 s{sT0}, s{sWAVE}, 1
s_and_b32 s{sT1}, s{sWAVE}, 1
v_and_b32 v8, 15, v{vLANE}
v_lshrrev_b32 v9, 4, v{vLANE}
v_not_b32 v10, v8
v_and_b32 v10, 3, v10""")
    for s in range(4):
        a(f"s_cmp_lg_u32 s{sT0}, 0")
        a(f"s_cselect_b32 s{sT2}, {KSLOT[1][s]}, {KSLOT[0][s]}")
        a(f"s_mul_i32 s{sT2}, s{sT2}, {KST}")
        if s == 0:
            a(f"v_mov_b32 v11, s{sT2}")
        else:
            a(f"v_mov_b32 v12, s{sT2}\nv_cmp_eq_u32 vcc, {s}, v10\nv_cndmask_b32 v11, v11, v12, vcc")
    a(f"""v_add_u32 v10, v10, v8
v_lshlrev_b32 v12, 3, v9
v_sub_u32 v12, v12, v10
v_lshl_add_u32 v11, v12, 1, v11
""")
    a(f"""s_lshl_b32 s{sT3}, s{sT1}, 8
s_sub_u32 s{sT2}, {2 * 2031 - 64 * 59}, s{sT3}
v_add_u32 v{cvA}, s{sT2}, v11
s_mul_i32 s{sT2}, s{sT0}, {UST}
s_sub_u32 s{sT2}, s{sT2}, s{sT3}
s_add_u32 s{sT2}, s{sT2}, {UB + UPAD - 2 * 112}
v_lshlrev_b32 v12, 5, v8
v_lshl_add_u32 v13, v9, 4, v12
v_add_u32 v{cvB}, s{sT2}, v13
s_lshl_b32 s{sT2}, s{sWAVE}, 11
v_lshl_add_u32 v13, v9, 3, v12
v_add_u32 v{cvZ}, s{sT2}, v13
s_xor_b32 s{sT2}, s{sWAVE}, 1
s_lshl_b32 s{sT2}, s{sT2}, 12
v_add_u32 v{cvXW}, s{sT2}, v{vL16}
s_lshl_b32 s{sT2}, s{sWAVE}, 12
v_add_u32 v{cvXR}, s{sT2}, v{vL16}
v_and_b32 v10, 1, v9
v_lshlrev_b32 v10, 3, v10
v_lshrrev_b32 v11, 1, v8
v_add_u32 v10, v10, v11
v_mul_u32_u24 v10, {BS}, v10
v_and_b32 v11, 1, v8
v_lshl_add_u32 v10, v11, 5, v10
v_lshrrev_b32 v11, 1, v9
v_lshl_add_u32 v{cvO}, v11, 4, v10
s_mul_i32 s{sT1}, s{sT1}, {32 * BS}
s_lshl_b32 s{sT2}, s{sPAIR}, 1
s_add_u32 s{sT0}, s{sT0}, s{sT2}
s_lshl_b32 s{sT0}, s{sT0}, 6
s_add_u32 s{sT0}, s{sT0}, s{sT1}
s_add_u32 s13, s{sT0}, {X1 if layer == 0 else X3}
s_add_u32 s21, s13, {16 * BS}""" if OPT["cv"] else f"""v_add_u32 v{cvA}, {2 * 2031 - 64 * 63}, v11
s_mul_i32 s{sT2}, s{sT0}, {UST}
s_lshl_b32 s{sT3}, s{sT1}, 9
s_add_u32 s{sT2}, s{sT2}, s{sT3}
s_add_u32 s{sT2}, s{sT2}, {UB + UPAD - 2 * 496}
v_lshlrev_b32 v12, 5, v8
v_lshl_add_u32 v13, v9, 4, v12
v_add_u32 v{cvB}, s{sT2}, v13
s_lshl_b32 s{sT2}, s{sT0}, 12
s_add_u32 s{sT2}, s{sT2}, s{sT3}
v_lshl_add_u32 v13, v9, 3, v12
v_add_u32 v{cvZ}, s{sT2}, v13
v_and_b32 v10, 1, v9
v_lshlrev_b32 v10, 4, v10
v_lshrrev_b32 v11, 1, v8
v_add_u32 v10, v10, v11
v_mul_u32_u24 v10, {BS}, v10
v_and_b32 v11, 1, v8
v_lshl_add_u32 v10, v11, 5, v10
v_lshrrev_b32 v11, 1, v9
v_lshl_add_u32 v{cvO}, v11, 4, v10
s_mul_i32 s{sT1}, s{sT1}, {8 * BS}
s_lshl_b32 s{sT2}, s{sPAIR}, 1
s_add_u32 s{sT0}, s{sT0}, s{sT2}
s_lshl_b32 s{sT0}, s{sT0}, 6
s_add_u32 s{sT0}, s{sT0}, s{sT1}
s_add_u32 s13, s{sT0}, {X1 if layer == 0 else X3}
s_add_u32 s21, s13, {32 * BS}""")
    a(f"""s_lshl_b32 s16, s{sWAVE}, 10
s_add_u32 s16, s16, {ST0 if layer == 0 else ST1}
s_add_u32 s17, s16, 4096
s_add_u32 s18, s16, 8192
s_add_u32 s19, s16, 12288
s_mul_i32 s20, s{sWAVE}, {16 * BS}
s_lshl_b32 s{sT2}, s{sPAIR}, 7
s_add_u32 s20, s20, s{sT2}
s_add_u32 s20, s20, {X0 if layer == 0 else X2}
v_lshrrev_b32 v10, 2, v{vLANE}
v_mul_u32_u24 v10, {BS}, v10
v_and_b32 v11, 3, v{vLANE}
v_lshl_add_u32 v{cvX}, v11, 4, v10""")


cXF, cUF, cAL, cBE, cUP = 0, 16, 32, 40, 48


def conv_pro(layer):
    XF, UF, AL, BE, UP = cXF, cUF, cAL, cBE, cUP
    for p in range(4):
        S = CS + 4 * p
        a(f"v_pk_mul_f32 {vr(S, 2)}, {vr(S, 2)}, {sp(sCA)} op_sel_hi:[1,0]")
    for p in range(4):
        S = CS + 4 * p
        a(f"v_pk_fma_f32 {vr(BE + 2 * p, 2)}, {vr(S, 2)}, {vr(S, 2)}, {sp(sCB)} op_sel_hi:[1,1,0] neg_lo:[1,0,0] neg_hi:[1,0,0]")
    for p in range(4):
        Q = CS + 4 * p + 2
        a(f"v_pk_fma_f32 {vr(Q, 2)}, {vr(Q, 2)}, {sp(sCA)}, {vr(BE + 2 * p, 2)} op_sel_hi:[1,0,1]")
    for p in range(4):
        Q = CS + 4 * p + 2
        a(f"v_max_f32 v{Q}, s{sCB}, v{Q}\nv_max_f32 v{Q + 1}, s{sCB}, v{Q + 1}")
    for p in range(4):
        Q = CS + 4 * p + 2
        a(f"v_rsq_f32 v{AL + 2 * p}, v{Q}\nv_rsq_f32 v{AL + 2 * p + 1}, v{Q + 1}")
    for k in range(8):
        unpack(XF + 2 * k, XF + 2 * k + 1, GX + k)
    for p in range(4):
        S = CS + 4 * p
        a(f"v_pk_mul_f32 {vr(BE + 2 * p, 2)}, {vr(S, 2)}, {vr(AL + 2 * p, 2)} neg_lo:[1,0] neg_hi:[1,0]")
    for c in range(2):
        for p in range(4):
            a(f"v_pk_fma_f32 {vr(UF + 8 * c + 2 * p, 2)}, {vr(XF + 8 * c + 2 * p, 2)}, {vr(AL + 2 * p, 2)}, {vr(BE + 2 * p, 2)}")
        for p in range(4):
            a(f"v_cvt_pk_bf16_f32 v{UP + 4 * c + p}, v{UF + 8 * c + 2 * p}, v{UF + 8 * c + 2 * p + 1}")
        a(f"ds_write_b128 v{cvU}, {vr(UP + 4 * c, 4)} offset:{UB + c * UST + UPAD}")
    if OPT["cv"]:
        for i in a.capture(conv_z, 88):
            if i.kind != "dsw":
                a.put([i])


def conv_z(ZP=cXF):
    XF, UF = cXF, cUF
    for c in range(2):
        for p in range(4):
            a(f"v_pk_fma_f32 {vr(UF + 8 * c + 2 * p, 2)}, {vr(UF + 8 * c + 2 * p, 2)}, {sp((sD0, sD1)[c])}, {vr(XF + 8 * c + 2 * p, 2)} op_sel_hi:[1,0,1]")
        for p in range(4):
            a(f"v_cvt_pk_bf16_f32 v{ZP + 4 * c + p}, v{UF + 8 * c + 2 * p}, v{UF + 8 * c + 2 * p + 1}")
        a(f"ds_write_b128 v{cvU}, {vr(ZP + 4 * c, 4)} offset:{ZB + c * 4096}")


def conv_main(layer, bg=(), bg_start=0, bg_every=64):
    return (conv_main_r if OPT["cv"] else conv_main_t)(layer, bg, bg_start, bg_every)


def conv_main_r(layer, bg, bg_start, bg_every):
    ACC, BF, AR = 0, 32, 64
    NA = 6
    EX2 = ZB
    seq = [(r, q) for r in range(4) for q in range(7, -1, -1)]
    e = 1 + 4 * layer

    def rdA(i):
        r, q = seq[i]
        d = AR + 4 * (i % NA)
        off = 64 * (59 - (8 * q + r))
        return [Ins(f"ds_read_b64 {vr(d, 2)}, v{cvA} offset:{off}"), Ins(f"ds_read_b64 {vr(d + 2, 2)}, v{cvA} offset:{off + 8}")]

    def rdB(r, p):
        return [Ins(f"ds_read_b128 {vr(BF + 4 * p, 4)}, v{cvB} offset:{512 * p + 64 * (3 - r)}")]

    a.put(rdA(0)); a.put(rdB(0, 0)); a.put(rdA(1)); a.put(rdB(0, 1)); a.put(rdA(2)); a.put(rdB(0, 2)); a.put(rdA(3))
    a.put(rdB(0, 3)); a.put(rdA(4))
    for p in range(4, 8):
        a.put(rdB(0, p))
    ZR, ZF, RR = 88, 64, 32
    side = [[i] for i in a.capture(conv_z, 88) if i.kind == "dsw"]
    if hinted(e):
        side += [[i] for i in a.capture(hint_prep, e + 10, sPAIR, cvH)]
    late = [[Ins("s_barrier")]] + [[Ins(f"ds_read_b64 {vr(ZR + 2 * i, 2)}, v{cvZ} offset:{ZB + i * 512}")] for i in range(4)]
    late2 = [[Ins("s_barrier")]]
    a.begin()
    started = set()
    for i, (r, q) in enumerate(seq):
        if hinted(e) and OPT["h_cv"] < 0 and i == 32 + OPT["h_cv"]:
            hint_put(cvH)
        ps = list(range(8 - q))
        for p in ps:
            b = q + p
            c = vr(ACC + 4 * b, 4) if b in started else "0"
            started.add(b)
            a(f"v_mfma_f32_16x16x32_bf16 {vr(ACC + 4 * b, 4)}, {vr(AR + 4 * (i % NA), 4)}, {vr(BF + 4 * p, 4)}, {c}")
            if p == 0 and i + NA - 1 < len(seq):
                a.put(rdA(i + NA - 1))
            elif 1 <= q <= 4 and p >= 1:
                for lst, r0 in ((side, 0), (late, 2), (late2, 3)):
                    if lst and r >= r0:
                        a.put(lst.pop(0))
                        break
            if q == 0 and r < 3:
                a.put(rdB(r + 1, p))
    assert not side and not late and not late2
    m, rest = merge(a.end(), list(bg), bg_start, bg_every)
    a.put(m)
    stamp(f"conv{layer} loop", 111)
    if hinted(e) and OPT["h_cv"] == 0:
        hint_put(cvH)
    for k in range(8):
        unpack(ZF + 2 * k, ZF + 2 * k + 1, ZR + k)
    l1, l2 = label("cx"), label("cy")
    a(f"s_bitcmp1_b32 s{sWAVE}, 0")
    a(f"s_cbranch_scc1 {l1}")
    for h in range(2):
        for i in range(4):
            a(f"ds_write_b128 v{cvXW}, {vr(ACC + 16 * (1 - h) + 4 * i, 4)} offset:{EX2 + i * 1024}")
            for k in range(2):
                a(f"v_pk_add_f32 {vr(ZF + 4 * i + 2 * k, 2)}, {vr(ZF + 4 * i + 2 * k, 2)}, {vr(ACC + 16 * h + 4 * i + 2 * k, 2)}")
        if h == 0:
            a(f"s_branch {l2}")
            a(f"{l1}:")
    a(f"{l2}:")
    if (armed(1) if layer else sentinel(1)):
        poll_take(cvP)
    a.barrier()
    if hinted(e) and OPT["h_cv"] == 1:
        hint_put(cvH)
    for i in range(4):
        a(f"ds_read_b128 {vr(RR + 4 * i, 4)}, v{cvXR} offset:{EX2 + i * 1024}")
    PK = 56
    for i in range(4):
        for k in range(2):
            a(f"v_pk_add_f32 {vr(ZF + 4 * i + 2 * k, 2)}, {vr(ZF + 4 * i + 2 * k, 2)}, {vr(RR + 4 * i + 2 * k, 2)}")
        for k in range(2):
            a(f"v_cvt_pk_bf16_f32 v{PK + 2 * i + k}, v{ZF + 4 * i + 2 * k}, v{ZF + 4 * i + 2 * k + 1}")
        if i & 1:
            b = PK + 2 * (i - 1)
            a(f"v_permlane16_swap_b32 v{b}, v{b + 2}")
            a(f"v_permlane16_swap_b32 v{b + 1}, v{b + 3}")
            a(f"buffer_store_dwordx4 {vr(b, 4)}, v{cvO}, {srd(S_WS)}, s{21 if i == 3 else 13} offen sc1", tag="pub")
    if hinted(e) and OPT["h_cv"] == 2:
        hint_put(cvH)
    if not flagged(e):
        a.barrier()
    else:
        flag_put(1 + 4 * layer, sPAIR, 40, "pub")
    return rest


def conv_main_t(layer, bg, bg_start, bg_every):
    ACC, BF, AR = 84, 32, 64
    NA = 5
    QORD = (7, 5, 6, 3, 4, 2, 1, 0)
    seq = [(r, q) for r in range(8) for q in QORD]
    e = 1 + 4 * layer

    def rdA(i):
        r, q = seq[i]
        d = AR + 4 * (i % NA)
        off = 64 * (63 - (8 * q + r))
        return [Ins(f"ds_read_b64 {vr(d, 2)}, v{cvA} offset:{off}"), Ins(f"ds_read_b64 {vr(d + 2, 2)}, v{cvA} offset:{off + 8}")]

    def rdB(r, p):
        return [Ins(f"ds_read_b128 {vr(BF + 4 * (p + 1), 4)}, v{cvB} offset:{512 * (p + 1) + 64 * (7 - r)}")]

    a.put(rdA(0)); a.put(rdB(0, -1)); a.put(rdA(1)); a.put(rdB(0, 1)); a.put(rdA(2)); a.put(rdB(0, 0)); a.put(rdA(3))
    for p in (3, 2, 4, 5, 6):
        a.put(rdB(0, p))
    ZR, ZF = 16, 0
    side = [[i] for i in a.capture(conv_z)]
    if hinted(e):
        side += [[i] for i in a.capture(hint_prep, e + 10, sPAIR, cvH)]
    late = [[Ins("s_barrier")]] + [[Ins(f"ds_read_b64 {vr(ZR + 2 * i, 2)}, v{cvZ} offset:{ZB + i * 1024}")] for i in range(4)]
    late2 = [[i] for k in range(8) for i in a.capture(unpack, ZF + 2 * k, ZF + 2 * k + 1, ZR + k)]
    a.begin()
    started = set()
    n = 0
    for i, (r, q) in enumerate(seq):
        if hinted(e) and OPT["h_cv"] < 0 and i == 64 + OPT["h_cv"]:
            hint_put(cvH)
        first = True
        for t in range(q // 2, 4):
            p = 2 * t - q
            c = vr(ACC + 4 * t, 4) if t in started else "0"
            started.add(t)
            a(f"v_mfma_f32_16x16x32_bf16 {vr(ACC + 4 * t, 4)}, {vr(AR + 4 * (i % NA), 4)}, {vr(BF + 4 * (p + 1), 4)}, {c}")
            n += 1
            if first and i + 4 < len(seq):
                a.put(rdA(i + 4))
            elif q >= 2:
                for lst, r0 in ((side, 0), (late, 4), (late2, 5)):
                    if lst and r >= r0:
                        a.put(lst.pop(0))
                        if lst is side and lst:
                            a.put(lst.pop(0))
                        break
            first = False
            if q <= 1 and r < 7:
                a.put(rdB(r + 1, p))
    assert not side and not late and not late2
    m, rest = merge(a.end(), list(bg), bg_start, bg_every)
    a.put(m)
    stamp(f"conv{layer} loop", 111)
    if (armed(1) if layer else sentinel(1)):
        poll_take(cvP)
    if hinted(e) and OPT["h_cv"] == 0:
        hint_put(cvH)
    PK = 24
    for i in range(4):
        for k in range(2):
            a(f"v_pk_add_f32 {vr(ZF + 4 * i + 2 * k, 2)}, {vr(ZF + 4 * i + 2 * k, 2)}, {vr(ACC + 4 * i + 2 * k, 2)}")
        for k in range(2):
            a(f"v_cvt_pk_bf16_f32 v{PK + 2 * i + k}, v{ZF + 4 * i + 2 * k}, v{ZF + 4 * i + 2 * k + 1}")
        if i & 1:
            b = PK + 2 * (i - 1)
            a(f"v_permlane16_swap_b32 v{b}, v{b + 2}")
            a(f"v_permlane16_swap_b32 v{b + 1}, v{b + 3}")
            a(f"buffer_store_dwordx4 {vr(b, 4)}, v{cvO}, {srd(S_WS)}, s{21 if i == 3 else 13} offen sc1", tag="pub")
    if hinted(e) and OPT["h_cv"] > 0:
        hint_put(cvH)
    if not flagged(e):
        a.barrier()
    else:
        flag_put(1 + 4 * layer, sPAIR, 40, "pub")
    return rest


def reduce32(V, n, W):
    for i in range(n):
        a(f"v_permlane16_swap_b32 v{V[i]}, v{V[n + i]}")
    for i in range(n):
        a(f"v_add_f32 v{V[i]}, v{V[i]}, v{V[n + i]}")
    h = n // 2
    for i in range(h):
        a(f"v_add_f32_dpp v{W[i]}, v{V[i]}, v{V[i]} row_ror:8 row_mask:0xf bank_mask:0x3")
    for i in range(h):
        a(f"v_add_f32_dpp v{W[i]}, v{V[i + h]}, v{V[i + h]} row_ror:8 row_mask:0xf bank_mask:0xc")
    g = h // 2
    for i in range(g):
        a(f"v_add_f32_dpp v{V[i]}, v{W[i]}, v{W[i]} row_half_mirror row_mask:0xf bank_mask:0x5")
    for i in range(g):
        a(f"v_add_f32_dpp v{V[i]}, v{W[i + g]}, v{W[i + g]} row_half_mirror row_mask:0xf bank_mask:0xa")
    for m in ("[1,0,3,2]", "[2,3,0,1]"):
        for i in range(g):
            a(f"v_add_f32_dpp v{V[i]}, v{V[i]}, v{V[i]} quad_perm:{m} row_mask:0xf bank_mask:0xf")
    return V[:g]


def maxchain(t, regs):
    regs = list(regs)
    if OPT["chk"] == 1:
        regs = regs[3::4]
    if len(regs) == 2:
        return [f"v_max_u32 v{t}, v{regs[0]}, v{regs[1]}"]
    out = [f"v_max3_u32 v{t}, v{regs[0]}, v{regs[1]}, v{regs[2]}"]
    regs = regs[3:]
    while len(regs) >= 2:
        out.append(f"v_max3_u32 v{t}, v{t}, v{regs[0]}, v{regs[1]}")
        regs = regs[2:]
    if regs:
        out.append(f"v_max_u32 v{t}, v{t}, v{regs[0]}")
    return out


RETRY = 0x10000


def ln(layer, wide):
    X = X1 if layer == 0 else X3
    H = H1 if layer == 0 else H3
    nf = 7 if wide else 4
    sI = sLN0 if wide else sLN
    RAW, XF, S, Q, W = 0, 28, 84, 92, 100
    vO, vPW, vPR, vAW, vAR, r, hr = 109, 110, 111, 112, 117, 114, 104
    vX, vS = 64, 68
    a(f"""s_mul_i32 s{sT0}, s{sWAVE}, 56
v_min_u32 v{r + 2}, 55, v{vLANE}""")
    a(f"v_add_u32 v{r + 2}, s{sT0}, v{r + 2}")
    a(f"v_and_b32 v118, {OPT['samp'] - 1}, v{vLANE}\nv_mul_u32_u24 v118, {56 // OPT['samp']}, v118\nv_add_u32 v118, s{sT0}, v118")
    ein, eout = 1 + 4 * layer, 2 + 4 * layer
    if OPT["lnd"] and emode(ein) == "D":
        a.wait_tag("pub")
    if wide:
        a(f"""s_mul_i32 s16, s{sI}, {BS}
s_lshl_b32 s{sT2}, s{sI}, 12""")
    else:
        a(f"""s_lshr_b32 s16, s{sI}, 1
s_mul_i32 s16, s16, {BS}
s_and_b32 s{sT0}, s{sI}, 1
s_lshl_b32 s{sT0}, s{sT0}, 5
s_add_u32 s16, s16, s{sT0}
s_lshl_b32 s{sT2}, s{sI}, 11""")
    a(f"""s_mul_i32 s{sT0}, s{sWAVE}, 7168
s_add_u32 s16, s16, s{sT0}
s_add_u32 s16, s16, {X}
s_add_u32 s17, s16, 4096
s_add_u32 s{sT2}, s{sT2}, {H}
s_mul_i32 s30, s{sWAVE}, 7""")
    if wide:
        for i in range(nf):
            a(f"""s_add_u32 s{sT0}, s30, {i}
s_lshr_b32 s{sT1}, s{sT0}, 2
s_lshl_b32 s{sT1}, s{sT1}, 18
s_add_u32 s{23 + i}, s{sT1}, s{sT2}
s_and_b32 s{sT1}, s{sT0}, 2
s_lshl_b32 s{sT1}, s{sT1}, 9
s_add_u32 s{23 + i}, s{23 + i}, s{sT1}
s_and_b32 s{sT1}, s{sT0}, 1
s_lshl_b32 s{sT1}, s{sT1}, 8
s_add_u32 s{23 + i}, s{23 + i}, s{sT1}""")
        a(f"""v_lshrrev_b32 v1, 2, v{vLANE}
v_lshlrev_b32 v{vO}, 4, v1
v_and_b32 v2, 1, v{vLANE}
v_lshl_add_u32 v{vO}, v2, 9, v{vO}
v_bfe_u32 v2, v{vLANE}, 1, 1
v_lshl_add_u32 v{vO}, v2, 11, v{vO}
v_and_b32 v1, 7, v1
v_and_b32 v2, 3, v{vLANE}
v_lshl_add_u32 v1, v2, 3, v1""")
    else:
        a(f"""v_lshrrev_b32 v1, 1, v{vLANE}
v_and_b32 v2, 1, v{vLANE}
v_lshlrev_b32 v{vX}, 6, v1
v_lshl_add_u32 v{vX}, v2, 4, v{vX}
v_mov_b32 v3, {OOB}
v_cmp_gt_u32 vcc, 32, v{vLANE}
v_cndmask_b32 v{vX + 1}, v3, v{vX}, vcc
s_lshl_b32 s30, s30, 4
s_mov_b32 s23, s{sT2}""")
        for i in range(nf):
            a(f"""v_add_u32 v4, s30, v1
v_lshrrev_b32 v5, 6, v4
v_lshlrev_b32 v5, 18, v5
v_bfe_u32 v6, v4, 5, 1
v_lshl_add_u32 v5, v6, 10, v5
v_and_b32 v6, 31, v4
v_lshl_add_u32 v5, v6, 4, v5
v_lshl_add_u32 v{vS + i}, v2, 9, v5""")
            if i < 3:
                a("s_add_u32 s30, s30, 32")
        a(f"""v_cndmask_b32 v{vS + 3}, v3, v{vS + 3}, vcc
v_bfe_u32 v1, v{vLANE}, 2, 3
v_lshl_add_u32 v1, v2, 3, v1""")
    a(f"""v_lshrrev_b32 v3, 5, v{vLANE}
v_lshl_add_u32 v1, v3, 5, v1
s_lshl_b32 s{sT1}, s{sWAVE}, 8
s_add_u32 s{sT1}, s{sT1}, {LNP}
v_lshl_add_u32 v{vPW}, v1, 2, s{sT1}
v_and_b32 v1, 31, v{vLANE}
v_lshlrev_b32 v{vPR}, 2, v1
v_add_u32 v{vPR}, {LNP}, v{vPR}
s_add_u32 s{sT1}, s{sT1}, 1024
v_lshl_add_u32 v{vAW}, v{vLANE}, 2, s{sT1}
v_lshl_add_u32 v{vAR}, v2, 5, s{sT1}
s_mov_b32 s18, 0
s_mov_b32 s19, -1""")
    prod = f"s_lshl_b32 s{sT0}, s{sI}, 6"
    if hinted(eout):
        hint_prep(eout + 10, prod, hr)
    arm = layer == 0 and sentinel(2)
    if arm:
        a(f"v_min_u32 v102, 27, v{vLANE}")
        poll_issue(18, 100)
    wait_edge(ein, r, r + 2, 118)
    if arm:
        poll_take(100)
    stamp(f"ln{layer} go")

    def loads():
        if not wide:
            return [f"buffer_load_dwordx4 {vr(RAW + 4 * i, 4)}, v{vX + (i == 3)}, {srd(S_WS)}, s{16 + i // 2} offen offset:{2048 * (i % 2)} sc1" for i in range(nf)]
        return [f"buffer_load_dwordx4 {vr(RAW + 4 * i, 4)}, v{vL16}, {srd(S_WS)}, s{16 + i // 4} offen offset:{1024 * (i % 4)} sc1" for i in range(nf)]
    again, back, stub = label("lna"), label("lnb"), label("lns")
    if sentinel(ein):
        a(f"s_mov_b32 s{sCNT}, 0")
        a(f"{again}:")
    for l in loads():
        a(l)
    if hinted(eout) and OPT["h_ln"] == 0:
        a.wait_vm0()
        hint_put(hr)
    if OPT["stamps"] == 1:
        a.wait_vm0()
    count_out(113)
    stamp(f"ln{layer} data", 113)
    for i in range(nf):
        for k in range(4):
            unpack(XF + 8 * i + 2 * k, XF + 8 * i + 2 * k + 1, RAW + 4 * i + k)
        for k in range(4):
            x = vr(XF + 8 * i + 2 * k, 2)
            if i == 0:
                a(f"v_pk_mul_f32 {vr(Q + 2 * k, 2)}, {x}, {x}")
            else:
                a(f"v_pk_fma_f32 {vr(Q + 2 * k, 2)}, {x}, {x}, {vr(Q + 2 * k, 2)}")
                a(f"v_pk_add_f32 {vr(S + 2 * k, 2)}, {vr(XF + 2 * k, 2) if i == 1 else vr(S + 2 * k, 2)}, {x}")
    if sentinel(ein):
        for l in maxchain(113, range(RAW, RAW + 4 * nf)) + ["v_cmp_eq_u32 vcc, -1, v113"]:
            a(l)
        STUBS.extend([f"{stub}:", f"s_add_u32 s{sCNT}, s{sCNT}, 1", f"s_cmp_lt_u32 s{sCNT}, {RETRY}", f"s_cbranch_scc1 {again}", f"s_branch {back}"])
    if hinted(eout) and OPT["h_ln"] == 1:
        hint_put(hr)
    for i in range(8):
        a(f"v_permlane32_swap_b32 v{S + i}, v{Q + i}")
        if i == 1 and sentinel(ein):
            a(f"s_cbranch_vccnz {stub}")
            a(f"{back}:")
    for i in range(0, 8, 2):
        a(f"v_pk_add_f32 {vr(S + i, 2)}, {vr(S + i, 2)}, {vr(Q + i, 2)}")
    for i in range(4):
        a(f"v_permlane16_swap_b32 v{S + i}, v{S + 4 + i}")
    for i in range(0, 4, 2):
        a(f"v_pk_add_f32 {vr(S + i, 2)}, {vr(S + i, 2)}, {vr(S + 4 + i, 2)}")
    for i in range(2):
        a(f"v_add_f32_dpp v{W + i}, v{S + i}, v{S + i} row_ror:8 row_mask:0xf bank_mask:0x3")
    for i in range(2):
        a(f"v_add_f32_dpp v{W + i}, v{S + 2 + i}, v{S + 2 + i} row_ror:8 row_mask:0xf bank_mask:0xc")
    a(f"v_add_f32_dpp v{S}, v{W}, v{W} row_shl:4 row_mask:0xf bank_mask:0x5")
    a(f"v_add_f32_dpp v{S}, v{W + 1}, v{W + 1} row_shr:4 row_mask:0xf bank_mask:0xa")
    if not wide:
        a(f"v_add_f32_dpp v{S}, v{S}, v{S} quad_perm:[2,3,0,1] row_mask:0xf bank_mask:0xf")
    a(f"ds_write_b32 v{vPW}, v{S}")
    a.barrier()
    if hinted(eout) and OPT["h_ln"] == 2:
        hint_put(hr)
    stamp(f"ln{layer} bar", 113)
    T = 0
    for w in range(4):
        a(f"ds_read2_b32 {vr(T + 2 * w, 2)}, v{vPR} offset0:{w * 64} offset1:{w * 64 + 32}")
    a(f"""v_pk_add_f32 {vr(T, 2)}, {vr(T, 2)}, {vr(T + 2, 2)}
v_pk_add_f32 {vr(T + 4, 2)}, {vr(T + 4, 2)}, {vr(T + 6, 2)}
v_pk_add_f32 {vr(T, 2)}, {vr(T, 2)}, {vr(T + 4, 2)}
v_mul_f32 v{T}, {f32(1 / 448)}, v{T}
v_mul_f32 v{T + 1}, {f32(1 / 448)}, v{T + 1}
v_fma_f32 v{T + 1}, -v{T}, v{T}, v{T + 1}
v_max_f32 v{T + 1}, 0, v{T + 1}
v_add_f32 v{T + 2}, {f32(1e-5)}, v{T + 1}
v_fmamk_f32 v{T + 2}, v{T + 2}, {f32(1e-5)}, v{T + 1}
v_rsq_f32 v{T + 2}, v{T + 2}
v_mul_f32 v{T + 3}, -v{T}, v{T + 2}
v_cndmask_b32 v{T + 2}, v{T + 2}, v{T + 3}, s[18:19]
ds_write_b32 v{vAW}, v{T + 2}""")
    AL, BE = S, Q
    done_hint = []
    a(f"""ds_read_b128 {vr(AL, 4)}, v{vAR}
ds_read_b128 {vr(BE, 4)}, v{vAR} offset:128
ds_read_b128 {vr(AL + 4, 4)}, v{vAR} offset:16
ds_read_b128 {vr(BE + 4, 4)}, v{vAR} offset:144""")
    for i in range(nf):
        for k in range(4):
            x = vr(XF + 8 * i + 2 * k, 2)
            a(f"v_pk_fma_f32 {x}, {x}, {vr(AL + 2 * k, 2)}, {vr(BE + 2 * k, 2)}")
        for k in range(4):
            a(f"v_cvt_pk_bf16_f32 v{RAW + 4 * i + k}, v{XF + 8 * i + 2 * k}, v{XF + 8 * i + 2 * k + 1}")
        a(f"buffer_store_dwordx4 {vr(RAW + 4 * i, 4)}, v{vO if wide else vS + i}, {srd(S_WS)}, s{23 + i if wide else 23} offen sc1", tag="pub")
        if hinted(eout) and OPT["h_ln"] - 3 == min(i, 6) * (4 if nf == 7 else 4) // (nf + 1):
            if not done_hint:
                hint_put(hr)
                done_hint.append(1)
    stamp(f"ln{layer} st", 113)
    if flagged(eout):
        flag_put(eout, prod, 100, "pub")


def gemm_addr():
    a(f"""s_and_b32 s{sT0}, s{sWAVE}, 1
s_lshl_b32 s{sT0}, s{sT0}, 10
v_add_u32 v{vA0}, s{sT0}, v{vL16}
v_xor_b32 v{vA1}, 0x400, v{vA0}""")


vCHK = 121


def gemm_loop(nks, ring, nring, wreg, swap, sent, lds_from=99, at=None, bg=()):
    WF = 104
    nfr = 2 * nks

    def load(f):
        ks, db = f // 2, f % 2
        g = []
        if db == 0 and ks and ks % 2 == 0:
            g.append(Ins("s_add_u32 s13, s13, 4096"))
            if ks % 4 == 0:
                g += [Ins("s_cmp_eq_u32 s13, s28"), Ins("s_cmov_b32 s13, s27")]
        d = ring + 4 * (f % nring)
        g.append(Ins(f"buffer_load_dwordx4 {vr(d, 4)}, v{(vA0, vA1)[db]}, {srd(S_WS)}, s13 offen offset:{(ks % 2) * 2048} sc1"))
        return g

    def wread(ks):
        g = []
        slot = ks - lds_from
        for nb in range(2):
            for j in range(2):
                d = WF + 8 * (ks % 2) + 4 * nb + 2 * j
                g.append(Ins(f"ds_read_b64_tr_b16 {vr(d, 2)}, v{(vT2a, vT2b)[nb]} offset:{slot * 2048 + j * 1024}", res_r=[f"slot{slot}"]))
        return g

    def check(ks, upto):
        regs = [ring + 4 * ((2 * ks + db) % nring) + k for db in range(2) for k in range(4)]
        chk = maxchain(vCHK, regs) + [f"v_cmp_eq_u32 vcc, -1, v{vCHK}"]
        back, stub = label("gb"), label("gs")
        rl, cnt = [], 0
        for f in range(2 * ks, max(2 * ks + 2, min(upto, 2 * ks + 2 * OPT["rl"]))):
            k2, db = f // 2, f % 2
            if db == 0:
                rl += [f"s_add_u32 s3, s22, {k2 * 2048}", "s_cmp_ge_u32 s3, s28", f"s_cselect_b32 s18, {nks * 2048}, 0", "s_sub_u32 s3, s3, s18"]
            rl.append(f"buffer_load_dwordx4 {vr(ring + 4 * (f % nring), 4)}, v{(vA0, vA1)[db]}, {srd(S_WS)}, s3 offen sc1")
        STUBS.extend([f"{stub}:"] + rl + ["s_waitcnt vmcnt(0)"] + chk + [f"s_add_u32 s{sCNT}, s{sCNT}, 1", f"s_cbranch_vccz {back}",
                                                     f"s_cmp_lt_u32 s{sCNT}, {RETRY}", f"s_cbranch_scc1 {stub}", f"s_branch {back}"])
        return [Ins(x) for x in chk], [Ins(f"s_cbranch_vccnz {stub}"), Ins(f"{back}:")]

    if sent:
        a(f"s_mov_b32 s{sCNT}, 0")
    nxt = min(OPT["fill0"], nring)
    for f in range(nxt):
        a.put(load(f))
    if sent:
        c, b = check(0, nxt)
        a.put(c); a.put(b)
    extra = []
    bg = list(bg)
    for ks in range(nks):
        if at and ks in at:
            extra += a.capture(at[ks])
        pend = wread(ks + 1) if lds_from <= ks + 1 < nks else []
        c, b = check(ks + 1, min(nfr, nxt + 2, nring + 2 * ks + 2)) if (sent and ks + 1 < nks) else ([], [])
        order = [(0, 0), (0, 1), (1, 0), (1, 1)]
        if ks == nks - 1 and OPT["tailord"]:
            order = [(0, 1), (1, 0), (1, 1), (0, 0)]
        if True:
            for nb, db in order:
                acc = vr(16 * (2 * nb + db), 16)
                cc = acc if (ks or (nb | db) == 0) else "0"
                w = wreg(ks, nb) if ks < lds_from else vr(WF + 8 * (ks % 2) + 4 * nb, 4)
                x = vr(ring + 4 * ((2 * ks + db) % nring), 4)
                a(f"v_mfma_f32_32x32x16_bf16 {acc}, {x if swap else w}, {w if swap else x}, {cc}")
                if pend:
                    a.put([pend.pop(0)])
                free = nring + 2 * ks + (db + 1 if nb == 1 else 0)
                if nxt < min(nfr, free) and (nb == 1 or db == 1):
                    a.put(load(nxt))
                    nxt += 1
                if bg and nb == 0 and ks >= OPT["bg0"]:
                    a.put(bg.pop(0))
                if extra and nb == 0:
                    k = 5
                    while k < len(extra) and ("exec" in extra[k - 1].defs and extra[k - 1].text != "s_mov_b64 exec, -1" or extra[k - 1].kind == "vstore"):
                        k += 1
                    a.put(extra[:k])
                    del extra[:k]
                if nb == 1 and db == 0:
                    a.put(c)
                if nb == 1 and db == 1:
                    a.put(b)
    a.put(extra)


def gemm_rot(nks, srot):
    a(f"s_mov_b32 s27, s13\ns_add_u32 s28, s13, {nks * 2048}\ns_lshl_b32 s{sT0}, s{srot}, 13\ns_add_u32 s13, s13, s{sT0}\ns_mov_b32 s22, s13")


def gemm_reduce_prep():
    slot = 6144 if OPT["bfr"] else 12288
    for rel in (1, 2, 3):
        a(f"s_xor_b32 s{23 + rel}, s{sWAVE}, {rel}\ns_mul_i32 s{23 + rel}, s{23 + rel}, {slot}")
    a(f"s_mul_i32 s23, s{sWAVE}, {slot}")


def gemm_reduce_addr():
    for rel in range(4):
        a(f"v_add_u32 v{64 + rel}, s{23 + rel}, v{vL16}")


def gemm_perm(P):
    if not OPT["bfr"]:
        return
    t, u = P + 8, P + 7
    a("s_mov_b32 s29, 0x3f80")
    a(f"""v_lshrrev_b32 v{u}, 5, v{vLANE}
v_and_b32 v{t}, 31, v{vLANE}
v_lshlrev_b32 v{u}, 2, v{u}
v_sub_u32 v{t}, v{t}, v{u}
v_and_b32 v{u}, 1, v{t}
v_lshlrev_b32 v{u}, 4, v{u}
v_lshlrev_b32 v{u}, v{u}, s29
v_ashrrev_i32 v{t}, 1, v{t}""")
    vals = (0, 1, 4, 5, 8, 9, 12, 13)
    pairs = ("s[16:17]", "s[30:31]", "s[50:51]")
    for d in range(10):
        if d < 8:
            a(f"v_cmp_eq_u32 {pairs[d % 3]}, {vals[d]}, v{t}")
        if d >= 2:
            a(f"v_cndmask_b32 v{P + d - 2}, 0, v{u}, {pairs[(d - 2) % 3]}")
    a(f"ds_write_b128 v{vL16}, {vr(P, 4)} offset:{PERM}")
    a(f"ds_write_b128 v{vL16}, {vr(P + 4, 4)} offset:{PERM + 1024}")


def gemm_perm_get(P):
    if OPT["bfr"]:
        a(f"ds_read_b128 {vr(P, 4)}, v{vL16} offset:{PERM}")
        a(f"ds_read_b128 {vr(P + 4, 4)}, v{vL16} offset:{PERM + 1024}")


def gemm_reduce_bf(P, pre, post, quarter):
    side = a.capture(pre) if pre else []
    a.put(side[:9])
    side = side[9:]
    T = [104, 108, 112, 116]
    n = 0
    for rel in (1, 2, 3):
        for j in range(2):
            t = T[n % 4]
            n += 1
            for k in range(4):
                r = 16 * rel + 8 * j + 2 * k
                a(f"v_cvt_pk_bf16_f32 v{t + k}, v{r}, v{r + 1}")
            a(f"ds_write_b128 v{64 + rel}, {vr(t, 4)} offset:{RB + (rel - 1) * 2048 + j * 1024}")
            a.put(side[:3])
            side = side[3:]
    a.put(side)
    a.barrier()
    for k in range(6):
        a(f"ds_read_b128 {vr(16 + 4 * k, 4)}, v64 offset:{RB + k * 1024}")
    if post:
        post()
    for k in range(6):
        a(f"v_mfma_f32_32x32x16_bf16 v[0:15], {vr(P + 4 * (k % 2), 4)}, {vr(16 + 4 * k, 4)}, v[0:15]")
    if quarter:
        for q in range(4):
            quarter(q)


def gemm_reduce(pre=None, post=None, quarter=None, P=None):
    if OPT["bfr"]:
        return gemm_reduce_bf(P, pre, post, quarter)
    side = a.capture(pre) if pre else []
    wr = [[Ins(f"ds_write_b128 v{64 + rel}, {vr(16 * rel + 4 * q, 4)} offset:{RB + (rel - 1) * 4096 + q * 1024}")] for rel in (1, 2, 3) for q in range(4)]
    a.put(side[:9])
    put_all(wr[:3])
    m, rest = merge(side[9:], wr[3:], 0, 12)
    a.put(m)
    put_all(rest)
    a.barrier()
    for q in range(4):
        for k in range(3):
            a(f"ds_read_b128 {vr(16 + 16 * k + 4 * q, 4)}, v64 offset:{RB + k * 4096 + q * 1024}")
        if q == 1 and post:
            post()
    for q in range(4):
        for h in range(2):
            r = 4 * q + 2 * h
            a(f"v_pk_add_f32 {vr(16 + r, 2)}, {vr(16 + r, 2)}, {vr(32 + r, 2)}")
            a(f"v_pk_add_f32 {vr(r, 2)}, {vr(r, 2)}, {vr(48 + r, 2)}")
        for h in range(2):
            r = 4 * q + 2 * h
            a(f"v_pk_add_f32 {vr(r, 2)}, {vr(r, 2)}, {vr(16 + r, 2)}")
        if quarter:
            quarter(q)


def gemm1(layer, wide, pre=None, bg=()):
    H = H1 if layer == 0 else H3
    G = G1 if layer == 0 else G3
    gemm_addr()
    a(f"""s_lshr_b32 s{sT0}, s{sWAVE}, 1
s_lshl_b32 s{sT0}, s{sT0}, 6
s_lshl_b32 s{sT1}, s{sNT}, 7
s_add_u32 s{sT0}, s{sT0}, s{sT1}
v_lshrrev_b32 v16, 5, v{vLANE}
v_lshl_add_u32 v16, v16, 3, s{sT0}""")
    for q in range(4):
        a(f"global_load_dwordx2 {vr(20 + 2 * q, 2)}, v16, {sp(P_B1)} offset:{16 * q}")
    r = 32
    a(f"""s_lshl_b32 s{sT0}, s{sWAVE}, 5
v_and_b32 v{r + 2}, 31, v{vLANE}
v_add_u32 v{r + 2}, s{sT0}, v{r + 2}
v_and_b32 v{r + 3}, {31 & ~(32 // OPT['samp'] - 1)}, v{vLANE}
v_add_u32 v{r + 3}, s{sT0}, v{r + 3}
s_lshl_b32 s13, s{sDT1}, 7
s_add_u32 s13, s13, s{sT0}
s_lshl_b32 s13, s13, 11
s_add_u32 s13, s13, {H}""")
    if wide:
        a(f"v_lshrrev_b32 v{r + 2}, 1, v{r + 2}\nv_lshrrev_b32 v{r + 3}, 1, v{r + 3}")
    c0 = -2 * math.log2(math.e) * math.sqrt(2 / math.pi)
    a(f"""s_mov_b32 s{sCA}, {f32(c0 * 0.044715)}
s_mul_i32 s21, s{sDT1}, 112
s_lshl_b32 s{sT0}, s{sNT}, 2
s_add_u32 s21, s21, s{sT0}
s_and_b32 s{sT0}, s{sWAVE}, 2
s_add_u32 s21, s21, s{sT0}
s_lshl_b32 s21, s21, 11
s_add_u32 s21, s21, {G}""")
    gemm_reduce_prep()
    gemm_rot(32, sROT1)
    if pre:
        pre()
    for k in range(8):
        unpack(2 * k, 2 * k + 1, 20 + k)
    ein, eout = 2 + 4 * layer, 3 + 4 * layer
    if emode(ein) == "M":
        l1, l2 = label("m1"), label("m2")
        a(f"s_cmp_eq_u32 s{sRL0 if wide else sRL}, 0\ns_cbranch_scc1 {l1}")
        a.wait_tag("pub")
        a(f"s_branch {l2}")
        a(f"{l1}:")
        wait_edge(ein, r, r + 2, r + 3)
        a(f"{l2}:")
    else:
        wait_edge(ein, r, r + 2, r + 3)
    stamp(f"g1_{layer} go", 63)
    prod = f"s_mul_i32 s{sT0}, s{sDT1}, 28\ns_add_u32 s{sT0}, s{sT0}, s{sNT}\ns_lshl_b32 s{sT0}, s{sT0}, 6"
    early = hinted(eout) and OPT["h_g1"] < 0
    at = {30: gemm_reduce_addr, 28: lambda: gemm_perm_get(96)}
    if early:
        assert OPT["h_g1"] in (-1, -3, -4)
        at[32 + OPT["h_g1"]] = lambda: (hint_prep(eout + 10, prod, 104), hint_put(104))
    gemm_loop(32, 64, 14, lambda ks, nb: f"a[{(ks * 2 + nb) * 4}:{(ks * 2 + nb) * 4 + 3}]", False, sentinel(ein), at=at)
    count_out(120)
    stamp(f"g1_{layer} loop", 120)
    a.begin()
    late = hinted(eout) and not early

    def pre():
        a(f"v_mov_b32 v80, {f32(c0)}")
        if late:
            hint_prep(eout + 10, prod, 72)

    def gelu(q):
        if q % 2 == 0:
            return
        half = q // 2
        if late and OPT["h_g1"] == 1 and half == 0:
            hint_put(72)
        rs = range(8 * half, 8 * half + 8, 2)
        for r in rs:
            a(f"v_pk_mul_f32 {vr(16 + r, 2)}, {vr(r, 2)}, {vr(r, 2)}")
        for r in rs:
            a(f"v_pk_fma_f32 {vr(16 + r, 2)}, {vr(16 + r, 2)}, {sp(sCA)}, {vr(80, 2)} op_sel_hi:[1,0,0]")
        for r in rs:
            a(f"v_pk_mul_f32 {vr(16 + r, 2)}, {vr(16 + r, 2)}, {vr(r, 2)}")
        for r in rs:
            a(f"v_exp_f32 v{16 + r}, v{16 + r}\nv_exp_f32 v{17 + r}, v{17 + r}")
        for r in rs:
            a(f"v_pk_add_f32 {vr(16 + r, 2)}, {vr(16 + r, 2)}, 1.0 op_sel_hi:[1,0]")
        for r in rs:
            a(f"v_rcp_f32 v{16 + r}, v{16 + r}\nv_rcp_f32 v{17 + r}, v{17 + r}")
        for r in rs:
            a(f"v_pk_mul_f32 {vr(r, 2)}, {vr(r, 2)}, {vr(16 + r, 2)}")
        for r in rs:
            a(f"v_cvt_pk_bf16_f32 v{84 + r // 2}, v{r}, v{r + 1}")
        a(f"buffer_store_dwordx4 {vr(84 + 4 * half, 4)}, v{vA0}, {srd(S_WS)}, s21 offen offset:{2048 * half} sc1", tag="pub")
        if late and OPT["h_g1"] == 2 + half:
            hint_put(72)
    gemm_reduce(pre, (lambda: hint_put(72)) if (late and OPT["h_g1"] == 0) else None, gelu, 96)
    m, rest = merge(a.end(), list(bg), 0, OPT["ev_g1"])
    a.put(m)
    if not flagged(eout):
        a.barrier()
    else:
        flag_put(eout, prod, 40, "pub")
    for g in rest:
        a.put(g)


def gemm2(layer, bg=()):
    G = G1 if layer == 0 else G3
    gemm_addr()
    a(f"""s_lshr_b32 s{sT0}, s{sWAVE}, 1
s_lshl_b32 s{sT0}, s{sT0}, 5
s_lshl_b32 s{sT1}, s{sST}, 6
s_add_u32 s50, s{sT0}, s{sT1}
s_and_b32 s{sT1}, s{sWAVE}, 1
s_lshl_b32 s{sT1}, s{sT1}, 5
s_lshl_b32 s{sT2}, s{sDT2}, 6
s_add_u32 s51, s{sT1}, s{sT2}
s_lshr_b32 s{sT2}, s50, 5
s_mul_i32 s{sT2}, s{sT2}, {BS}
s_lshl_b32 s{sT1}, s51, 6
s_add_u32 s20, s{sT2}, s{sT1}
s_add_u32 s30, s20, {X1 if layer == 0 else X3}
v_and_b32 v16, 31, v{vLANE}
v_lshrrev_b32 v17, 5, v{vLANE}
s_lshl_b32 s{sT0}, s50, 1""")
    r = 42

    def residual_issue():
        if layer == 0:
            for q in range(4):
                a(f"buffer_load_dwordx2 {vr(20 + 2 * q, 2)}, v18, {srd(S_WS)}, s30 offen offset:{16 * q} sc1")
        else:
            a(f"s_mov_b32 m0, s31")
            a(f"buffer_load_dwordx4 v{vL16}, {srd(S_WS)}, s30 offen sc1 lds", res_w=["x3"])
            a(f"buffer_load_dwordx4 v{vL16}, {srd(S_WS)}, s30 offen offset:1024 sc1 lds", res_w=["x3"])

    def residual_use():
        if layer == 0:
            for k in range(8):
                unpack(2 * k, 2 * k + 1, 20 + k)
            for k in range(8):
                unpack(40, 41, 28 + k)
                a(f"v_pk_add_f32 {vr(2 * k, 2)}, {vr(2 * k, 2)}, v[40:41]")
        else:
            for q in range(4):
                a(f"ds_read_b64_tr_b16 {vr(20 + 2 * q, 2)}, v31 offset:{512 * q}", res_r=["x3"])
            a("v_lshlrev_b32 v40, 16, v29")
            for k in range(8):
                unpack(2 * k, 2 * k + 1, 20 + k)
                a(f"v_pk_add_f32 {vr(2 * k, 2)}, {vr(2 * k, 2)}, v[40:41] op_sel_hi:[1,0]")

    if layer == 0:
        a(f"v_lshlrev_b32 v18, 6, v16\nv_lshl_add_u32 v18, v17, 3, v18\nv_lshl_add_u32 v19, v17, 3, s{sT0}")
        for q in range(4):
            a(f"global_load_dwordx2 {vr(28 + 2 * q, 2)}, v19, {sp(P_B2)} offset:{16 * q}")
    else:
        a(f"""v_and_b32 v19, 3, v{vLANE}
s_lshl_b32 s31, s{sWAVE}, 11
v_lshl_add_u32 v28, v16, 1, s{sT0}
global_load_ushort v29, v28, {sp(P_B2)}
v_bfe_u32 v31, v{vLANE}, 2, 2
v_lshl_add_u32 v31, v17, 2, v31
v_lshlrev_b32 v31, 6, v31
v_bfe_u32 v30, v{vLANE}, 4, 1
v_lshl_add_u32 v31, v30, 5, v31
v_lshl_add_u32 v31, v19, 3, v31
v_add_u32 v31, s31, v31""")
    a(f"""s_mul_i32 s{sT0}, s{sDT2}, 28
s_mul_i32 s{sT1}, s{sWAVE}, 7
s_add_u32 s{sT0}, s{sT0}, s{sT1}
v_min_u32 v{r + 2}, 6, v{vLANE}
v_add_u32 v{r + 2}, s{sT0}, v{r + 2}
v_mov_b32 v{r + 3}, v{r + 2}
s_lshl_b32 s13, s{sT0}, 13
s_add_u32 s13, s13, {G}""")
    if layer == 0:
        a(f"""s_add_u32 s21, s20, {X2}
s_lshl_b32 s19, s50, 1
s_add_u32 s19, s19, {ST1}""")
    else:
        a(f"s_mul_i32 s{sT0}, s50, 896\ns_lshl_b32 s{sT1}, s51, 1\ns_add_u32 s21, s{sT0}, s{sT1}")
    gemm_reduce_prep()
    gemm_rot(28, sROT2)
    lskip, ljoin = label("res"), label("resj")
    a(f"s_cmp_eq_u32 s{sR1}, 0")
    a(f"s_cbranch_scc1 {lskip}")
    residual_issue()
    residual_use()
    if emode(3 + 4 * layer) == "M":
        a.wait_tag("pub")
    else:
        wait_edge(3 + 4 * layer, r, r + 2, r + 3)
    a(f"s_branch {ljoin}")
    a(f"{lskip}:")
    eln = 2 + 4 * layer
    if OPT["rese"] and hinted(eln) and OPT["h_ln"] >= 2:
        wide = OPT["ln1w"] if layer else OPT["ln0w"]
        a(f"s_lshl_b32 s{sT0}, s{sST}, {1 if wide else 2}\nv_and_b32 v48, {1 if wide else 3}, v{vLANE}\nv_add_u32 v48, s{sT0}, v48")
        poll_issue(eln + 10, 46)
        poll_take(46)
        residual_issue()
        residual_use()
        wait_edge(3 + 4 * layer, r, r + 2, r + 3)
    else:
        wait_edge(3 + 4 * layer, r, r + 2, r + 3)
        residual_issue()
        residual_use()
    a(f"{ljoin}:")
    stamp(f"g2_{layer} go", 63)
    gemm_loop(28, 64, 10, lambda ks, nb: vr(128 + (ks * 2 + nb) * 4, 4), layer == 1, sentinel(3 + 4 * layer), lds_from=16, at={26: gemm_reduce_addr, 25: lambda: gemm_perm_get(88)}, bg=bg)
    count_out(120)
    stamp(f"g2_{layer} loop", 120)

    def addr():
        a(f"v_and_b32 v68, 31, v{vLANE}\nv_lshrrev_b32 v69, 5, v{vLANE}")
        if layer == 0:
            a(f"""v_and_b32 v70, 15, v{vLANE}
v_lshlrev_b32 v70, 6, v70
v_lshl_add_u32 v70, v69, 4, v70
v_bfe_u32 v71, v{vLANE}, 4, 1
v_lshl_add_u32 v70, v71, 5, v70
v_bfe_u32 v71, v{vLANE}, 2, 2
v_lshlrev_b32 v71, 4, v71
v_bfe_u32 v68, v{vLANE}, 4, 1
v_lshl_add_u32 v71, v68, 3, v71
v_and_b32 v68, 1, v{vLANE}
v_lshl_add_u32 v71, v68, 2, v71
v_bfe_u32 v68, v{vLANE}, 1, 1
v_lshl_add_u32 v68, v69, 1, v68
v_lshl_add_u32 v71, v68, 12, v71""")
        else:
            a(f"v_mul_u32_u24 v70, 896, v68\nv_lshl_add_u32 v70, v69, 4, v70")
    prod = f"s_lshl_b32 s{sT0}, s{sDT2}, 5\ns_add_u32 s{sT0}, s{sT0}, s{sST}\ns_lshl_b32 s{sT0}, s{sT0}, 6"
    hn = layer == 0 and hinted(4)

    def pre():
        addr()
        if hn:
            hint_prep(14, prod, 80)
    gemm_reduce(pre, (lambda: hint_put(80)) if (hn and OPT["h_g2"] == 0) else None, None, 88)
    if hn and OPT["h_g2"] == 1:
        hint_put(80)
    PK = 72
    stamp(f"g2_{layer} red", 120)
    for half in range(2):
        b = PK + 4 * half
        for k in range(4):
            a(f"v_cvt_pk_bf16_f32 v{b + k}, v{8 * half + 2 * k}, v{8 * half + 2 * k + 1}")
        a(f"v_permlane32_swap_b32 v{b}, v{b + 2}")
        a(f"v_permlane32_swap_b32 v{b + 1}, v{b + 3}")
        if layer == 1:
            a(f"buffer_store_dwordx4 {vr(b, 4)}, v70, {srd(S_OUT)}, s21 offen offset:{32 * half} {('', 'nt', 'sc1')[OPT['ofl']]}")
    if layer == 1:
        return
    for k in range(4):
        a(f"v_permlane16_swap_b32 v{PK + k}, v{PK + 4 + k}")
    for half in range(2):
        a(f"buffer_store_dwordx4 {vr(PK + 4 * half, 4)}, v70, {srd(S_WS)}, s21 offen offset:{1024 * half} sc1", tag="pub")
    if hn and OPT["h_g2"] == 2:
        hint_put(80)
    for k in range(8):
        a(f"v_pk_mul_f32 {vr(20 + 2 * k, 2)}, {vr(2 * k, 2)}, {vr(2 * k, 2)}")
    res = reduce32(list(range(16)) + list(range(20, 36)), 16, list(range(40, 48)))
    assert res == [0, 1, 2, 3]
    a(f"""v_cndmask_b32 v0, v0, v1, {sp(sM1)}
v_cndmask_b32 v2, v2, v3, {sp(sM1)}
v_cndmask_b32 v0, v0, v2, {sp(sM2)}""")
    a(f"buffer_atomic_add_f32 v0, v71, {srd(S_WS)}, s19 offen sc1", tag="pub")
    if hn and OPT["h_g2"] == 3:
        hint_put(80)
    stamp("g2_0 atom", 120)
    flag_put(4, prod, 40, "pub")
    stamp("g2_0 flag", 120)


def skip_unless(role):
    l = label("skip")
    a(f"s_cmp_eq_u32 s{role}, 0")
    a(f"s_cbranch_scc1 {l}")
    return l


def dmas(n0, n1):
    return [w_dma(n, h) for n in range(n0, n1) for h in range(2)]


def tr_dma(n0, n1):
    g = []
    for n in range(n0, n1):
        g.append(w_tr(n))
        if n > n0:
            g += dmas(n + 11, n + 12)
    g += dmas(n1 + 11, n1 + 12)
    return g


def wseq():
    nB = OPT["wB"] // 2
    assert 36 <= nB <= 60
    g = dmas(0, 12) + tr_dma(0, nB - 12)
    lastT = 48 if (nB >= 48 and OPT["wT"]) else 32 + OPT["wg"]
    g += [w_tr(n) for n in range(nB - 12, lastT)]
    g.append([])
    d = nB
    for n in range(max(lastT, nB - 12), 49):
        while d < min(n + 11, 60) or (n == 48 and d < 60):
            g += dmas(d, d + 1)
            d += 1
        if n < 48:
            g.append(w_tr(n))
    return g


def wcut(n_dma):
    k = 0
    for p, g in enumerate(wseq()):
        if k == n_dma:
            return p
        k += any(i.kind == "dma" for i in g)
    return len(wseq())


def put_all(gs):
    for g in gs:
        a.put(g)


def w2_touch(r):
    return [Ins(f"v_lshlrev_b32 v{r}, 12, v{vLANE}"), Ins(f"buffer_load_dword v{r}, v{r}, {srd(S_W2)}, s{sW2O} offen")]


def build():
    g = OPT["wg"]
    WORDER[:] = list(range(0, g)) + list(range(32, 32 + g)) + list(range(g, 32)) + list(range(32 + g, 60))
    if OPT["w2t"]:
        WORDER[:] = list(range(60))
    cA, cP, cL, cB = wcut(OPT["wA"]), wcut(OPT["wP"]), wcut(OPT["wL"]), wseq().index([])
    cK = wcut(OPT["wK"])
    prologue()
    laux, ljoin = label("aux"), label("join")
    a(f"s_cmp_eq_u32 s{sRC}, 0")
    a(f"s_cbranch_scc1 {laux}")
    xt_loads()
    kgen_table_load()
    code_warm(1)
    page_warm(88)
    w_setup()
    put_all(wseq()[:cA])
    conv_setup(0)
    stamp("start", 2)

    xt_poll_addr(63, 2)
    xt_work()

    def h_flag():
        nonce_take()
        flag_put(0, sPAIR, 104, "st0")
        stamp("flag", 0)
        a(f"global_load_dwordx4 {vr(TAB, 4)}, v75, {sp(sTAB)}")
        a(f"global_load_dwordx4 {vr(TAB + 4, 4)}, v75, {sp(sTAB)} offset:16")
        a(f"global_load_dwordx2 v[0:1], v75, {sp(sTAB)} offset:32")

    hooks = {}
    for pos, fn in ((OPT["h_flag"], h_flag), (OPT["h_w"], lambda: KBG.extend(wseq()[cA:cK] + ([w2_touch(75)] if OPT["w2t"] else []))), (OPT["h_poll"], lambda: poll_issue(0, 64, 63))):
        hooks.setdefault(pos, []).append(fn)
    assert OPT["h_flag"] <= OPT["h_w"] and OPT["h_poll"] >= 6
    kgen({k: (lambda fs=fs: [f() for f in fs]) for k, fs in hooks.items()})
    dump_lds(1)
    stamp("kgen", 21)

    def mid():
        poll_take(64, 63)
        stamp("e1 seen", 0)
        conv_loads()
    wr = kexpand(mid)
    if OPT["mixpro"]:
        mv = [i for i in wr if i.kind != "dsw"]
        st = [i for i in wr if i.kind == "dsw"]
        pro = a.capture(conv_pro, 0)
        k = next(n for n, i in enumerate(pro) if i.defs & {f"v{r}" for r in range(0, 22)})
        a.put(mv)
        a.put(st[2:4])
        head, rest = merge(pro[:k], [[i] for i in st[4:6] + st[:2] + st[6:]], 0, 14)
        a.put(head)
        early = [g for g in rest if g[0].uses & {f"v{r}" for r in range(0, 22)}]
        put_all(early)
        rest = [g for g in rest if g not in early]
        k2 = next(n for n, i in enumerate(pro) if i.kind == "dsw")
        mid2, rest = merge(pro[k:k2], rest, 0, 30)
        put_all(rest)
        m3, rest = merge(mid2 + pro[k2:], wseq()[cK:cP], 50, OPT["ev_pro"])
        a.put(m3)
        put_all(rest)
        stamp("expand", 111)
    else:
        a.put(wr)
        stamp("expand")
        conv_pro(0)
    if sentinel(1):
        a(f"v_min_u32 v{cvP + 2}, 27, v{vLANE}")
        poll_issue(8, cvP)
    a.barrier()
    dump_lds(2)
    stamp("conv0 go", 111)
    put_all(conv_main(0, wseq()[cP:cL], OPT["st_conv"], OPT["ev_conv"]))
    stamp("conv0 done")
    a(f"s_branch {ljoin}")
    a(f"{laux}:")
    aux_loads()
    kgen_table_addr()
    code_warm(1)
    page_warm(88)
    w_setup()
    aux_work()
    stamp("aux e1")
    if OPT["g7"] == 1:
        lg = label("g7")
        a(f"""s_cmp_lg_u32 s{sR1}, 0
s_cbranch_scc1 {lg}
s_lshr_b32 s{sT0}, s{sX}, 2
s_sub_u32 s{sT0}, s{sJ}, s{sT0}
s_sub_u32 s{sT0}, s{sT0}, 28
s_lshl_b32 s{sT0}, s{sT0}, 3
s_add_u32 s{sT0}, s{sT0}, s{sX}
s_lshl_b32 s{sT0}, s{sT0}, 7
s_mul_i32 s{sT1}, s{sWAVE}, {512 * 3584}
s_add_u32 s{sT0}, s{sT0}, s{sT1}
s_add_u32 s{sT0}, s{sT0}, {448 * 3584}
v_mul_u32_u24 v90, 3584, v{vLANE}
v_add_u32 v90, s{sT0}, v90""")
        a(f"global_load_dword v90, v90, {sp(P_W1)}")
        a(f"{lg}:")
    if armed(0):
        lnf = label("nf")
        a(f"s_cmp_lg_u32 s{sR1}, 0\ns_cbranch_scc1 {lnf}")
        if OPT["map18"] == 1:
            a(f"s_sub_u32 s16, s{sAUX}, 4\ns_cselect_b32 s16, s{sAUX}, s16")
        else:
            a(f"s_lshr_b32 s16, s{sAUX}, 1\ns_sub_u32 s17, s{sAUX}, 4\ns_cmp_lt_u32 s{sAUX}, 8\ns_cselect_b32 s16, s16, s17")
        if sentinel(1):
            fill(X1, 17, 80, 16, 28 * 4096, "fill")
            flag_put(8, 16, 72, "fill")
        if sentinel(2) or sentinel(3):
            if sentinel(2):
                fill(H1, 16, 80, 16, 28 * 4096, "fill")
            if sentinel(3):
                fill(G1, 14, 80, 16, 28 * 4096, "fill")
            flag_put(18, 16, 72, "fill")
        a(f"{lnf}:")
    stamp("aux fill")
    if OPT["g7"] == 2:
        lg = label("g7")
        a(f"""s_cmp_lg_u32 s{sR1}, 0
s_cbranch_scc1 {lg}
s_lshr_b32 s{sT0}, s{sX}, 2
s_sub_u32 s{sT0}, s{sJ}, s{sT0}
s_sub_u32 s{sT0}, s{sT0}, 28
s_lshl_b32 s{sT0}, s{sT0}, 3
s_add_u32 s{sT0}, s{sT0}, s{sX}
s_lshl_b32 s{sT0}, s{sT0}, 7
s_mul_i32 s{sT1}, s{sWAVE}, {512 * 3584}
s_add_u32 s{sT0}, s{sT0}, s{sT1}
s_add_u32 s{sT0}, s{sT0}, {448 * 3584}
v_mul_u32_u24 v90, 3584, v{vLANE}
v_add_u32 v90, s{sT0}, v90""")
        a(f"global_load_dword v90, v90, {sp(P_W1)}")
        a(f"{lg}:")
    cX = min(wcut(64 + 2 * OPT["wg"]), cB)
    if OPT["w2t"]:
        a.put(w2_touch(75))
    put_all(wseq()[:cX])
    if sentinel(1):
        a(f"v_min_u32 v62, 27, v{vLANE}")
        poll_issue(8, 60)
        poll_take(60)
    a.wait_vm0()
    stamp("aux w")
    a(f"{ljoin}:")
    for layer in range(2):
        if layer == 1:
            l = skip_unless(sRC)
            conv_setup(1)
            conv_poll1()
            stamp("conv1 ready")
            if OPT["kc_in"] and not hinted(4):
                a.wait_tag("flag")
                poll_issue(4, cvP)
                kcopies()
                poll_take(cvP)
            else:
                kcopies()
                wait_edge(4, cvP, cvP + 2, cvP + 3)
            stamp("conv1 poll")
            conv_loads()
            conv_pro(1)
            if armed(1):
                a(f"v_and_b32 v{cvP + 2}, 31, v{vLANE}")
                poll_issue(9, cvP)
            a.barrier()
            dump_lds(3)
            stamp("conv1 go", 111)
            conv_main(1)
            stamp("conv1 done")
            if armed(1):
                lj = label("cvj")
                a(f"s_branch {lj}")
                a(f"{l}:")
                a(f"v_and_b32 v62, 31, v{vLANE}")
                poll_issue(9, 60)
                poll_take(60)
                a(f"{lj}:")
            else:
                a(f"{l}:")
        wide = OPT["ln1w"] if layer else OPT["ln0w"]
        l = skip_unless(sRL0 if wide else sRL)
        ln(layer, wide)
        stamp(f"ln{layer} done")
        a(f"{l}:")
        if layer == 0:
            gemm_perm(0)
            l = skip_unless(sRC)
            put_all(wseq()[cL:cX])
            a(f"{l}:")
            rest = wseq()[cX:cB]
            k = max(0, len(rest) - 12)
            put_all(rest[:k])
            if sentinel(2) or sentinel(3):
                a(f"v_min_u32 v62, 27, v{vLANE}")
                poll_issue(18, 60)
            put_all(rest[k:])
            if sentinel(2) or sentinel(3):
                poll_take(60)
            stamp("w B")
            tail = wseq()[cB:]
            assert not any(i.kind == "dsr" and "a[" in i.text for g in tail for i in g)
            lelse, lj = label("ng1"), label("g1j")
            a(f"s_cmp_eq_u32 s{sR1}, 0")
            a(f"s_cbranch_scc1 {lelse}")
            gemm1(0, wide, None, [] if OPT["t2"] else tail)
            nonce_retire()
            stamp("g1_0 done")
            a(f"s_branch {lj}")
            a(f"{lelse}:")
            put_all([] if OPT["t2"] else wseq()[cB:])
            a(f"{lj}:")
        else:
            l = skip_unless(sR1)
            gemm1(1, wide)
            stamp("g1_1 done")
            a(f"{l}:")
        l = skip_unless(sR2)
        gemm2(layer, [g for g in wseq()[cB:] if g] if (layer == 0 and OPT["t2"]) else [])
        if layer == 0 and armed(1):
            lj = label("g2j")
            a(f"s_branch {lj}")
            a(f"{l}:")
            if OPT["map18"]:
                a(f"s_lshl_b32 s16, s{sX}, 2\ns_add_u32 s16, s16, s{sJ}")
            else:
                a(f"s_lshr_b32 s16, s{sX}, 1\ns_lshl_b32 s16, s16, 3\ns_add_u32 s16, s16, s{sJ}")
            for base, n, e in ((X3, 15, 5), (H3, 14, 6), (G3, 13, 7)):
                if sentinel(e):
                    fill(base, n, 72, 16, CH)
            flag_put(9, 16, 8, "st0")
            a(f"{lj}:")
        else:
            a(f"{l}:")
        stamp("g2_0 done" if layer == 0 else "end")
    if OPT["stamps"] and OPT["dbgwg"] < 0:
        l = label("ls")
        a(f"s_cmp_lg_u32 s{sWAVE}, 0\ns_cbranch_scc1 {l}\ns_waitcnt vmcnt(0)\ns_memrealtime {sp(sSTAMP)}\ns_waitcnt lgkmcnt(0)")
        a(f"s_lshl_b32 s3, s2, 8\ns_add_u32 s3, s3, {STAMPS + 248}\nv_mov_b32 v0, s101\nv_mov_b32 v1, s{sSTAMP}\ns_mov_b64 exec, 1")
        a(f"buffer_store_dwordx2 v[0:1], off, {srd(S_WS)}, s3")
        a(f"{l}:")
    if OPT["fixdur"]:
        a(f"s_waitcnt vmcnt(0) lgkmcnt(0)\nL_fix:\ns_memrealtime s[28:29]\ns_waitcnt lgkmcnt(0)\ns_sub_u32 s28, s28, s101\ns_cmp_lt_u32 s28, {OPT['fixdur']}\ns_cbranch_scc1 L_fix")
    a("s_endpgm")


def bf16_round_int(l):
    b = struct.unpack("<I", struct.pack("<f", float(l)))[0]
    b = (b + 0x7FFF + ((b >> 16) & 1)) & 0xFFFF0000
    return int(struct.unpack("<f", struct.pack("<I", b))[0])


def ktab():
    vals = []
    for c in range(2):
        for x in range(2048):
            lr = bf16_round_int(2047 - x)
            aa, rem = lr >> 7, lr & 127
            j, e = rem >> 3, rem & 7
            if aa < 2:
                rho = 8 * aa + e
            elif aa < 4:
                rho = 4 * aa + 8 + (e >> 1)
            elif aa < 8:
                rho = 16 + 2 * aa + (e >> 2)
            else:
                rho = 24 + aa
            vals.append((rho >> 2) * 256 + j * 16 + (rho & 3) * 4 + c * 2 * GST)
        vals += [3072 + c * 2 * GST] * 16
    lines = []
    for i in range(0, len(vals), 16):
        lines.append("    .short " + ", ".join(str(v) for v in vals[i:i + 16]))
    return "\n".join(lines)


def main(path):
    build()
    ins = a.finish()
    ref = open(f"cdna_kernels/{NAME}.s.ref").read().split("\n")
    head = [l for l in ref if l.startswith(";") and "@launch" not in l and not l.startswith("; Override") and not l.startswith("; grid=ceil")]
    k = NAME + "_kernel"
    s = "\n".join(head) + f"\n; @launch grid=(256,1,1) block=(256,1,1) lds={LDS_BYTES}\n"
    s += f""".amdgcn_target "amdgcn-amd-amdhsa--gfx950"
.text
.globl {k}
.p2align 8
.type {k},@function
{k}:
L_entry:
"""
    s += Prog.render(ins)
    s += "".join((l if l.endswith(":") else "    " + l) + "\n" for l in STUBS)
    s += f""".p2align 6
.type ktab,@object
ktab:
{ktab()}
.size ktab, 8256
.section .rodata,"a"
.p2align 6
.amdhsa_kernel {k}
  .amdhsa_next_free_vgpr 512
  .amdhsa_next_free_sgpr 102
  .amdhsa_accum_offset 256
  .amdhsa_group_segment_fixed_size 0
  .amdhsa_kernarg_size 136
  .amdhsa_user_sgpr_count 2
  .amdhsa_user_sgpr_kernarg_segment_ptr 1
  .amdhsa_system_sgpr_workgroup_id_x 1
  .amdhsa_float_denorm_mode_32 3
.end_amdhsa_kernel
"""
    open(path, "w").write(s)
    n = sum(1 for i in ins if i.kind not in ("label", "comment"))
    open(path + ".names", "w").write("\n".join(STAMP_NAMES))
    print("instructions:", n, "nops:", sum(1 for i in ins if i.kind == "nop"), "waits:", sum(1 for i in ins if i.kind == "wait"))


if __name__ == "__main__":
    path = sys.argv[1]
    for kv in sys.argv[2:]:
        k, v = kv.split("=")
        OPT[k] = v if k in ('em', 'probe') else int(v)
    main(path)
```

```python
import sys, math, struct
from asmlib import *

NAME = "interleave_layers__ssm_conv_s4__mixer_token_mlp__prompt"
OPT = dict(stamps=False, stop=99, upfront=True, dump=0, dbgwg=-1, fixdur=0, em='FSSFDSS', warm=1, h_flag=2, h_w=2, h_poll=9, h_ln=2, h_cv=0, h_g1=0, h_g2=3, rot=1, wA=0, wK=8, wP=8, wL=16, wB=120, wT=1, lag=2, gap=3, st_conv=100, ev_conv=150, ev_g1=100000, fill0=14, ln1w=0, ln0w=1, chk=1, samp=8, map18=1, ofl=0, tailord=1, cv=1, clk=0, ev_kg=150, mixpro=1, now=0, probe='', kc_in=0, w2t=0, g7=0, rl=4, bfr=1, wg=4, slp=0, ev_pro=30, t2=0, bg0=0, tlb=0, rese=0, lnd=1, keepk=0, fake16=0)
DBG_SEL = ['start', 'kgen', 'conv0 go', 'ln0 go', 'g1_0 go', 'g1_0 loop', 'g2_0 go', 'g2_0 loop', 'conv1 poll', 'ln1 go', 'g1_1 go', 'g2_1 go', 'end']
STAMP_NAMES = []

EPOCH = 0
ST0 = 0x1000
ST1 = 0x8000
STAMPS = 0x20000
FL = 0x100000
BS = 448 * 64 + 128
CH = 0x20000
X1, H1, G1, X3, H3, G3, X2, X0 = (0x400000 + 0x200000 * i for i in range(8))
FILL1, FILL3 = 6, 36
WS_BYTES = 268435456
OOB = 0x40000000

KST = 4160
KSLOT = {0: [0, 5, 2, 3], 1: [1, 6, 7, 4]}
UB = 8 * KST
UPAD = 1024
UST = 4096 + UPAD
ZB = UB + 2 * UST
EX = 2 * KST
RB = 2 * KST
GST = 15616
GROW = 272
TOFF = 12288
LNP = 57472
PERM = 61440
W2L = 65536
LDS_BYTES = 163840

sWAVE, sX, sJ, sPAIR, sDT1, sNT, sDT2, sST, sLN = 4, 5, 6, 7, 8, 9, 10, 11, 12
sNONCE = 14
P_U, P_ARE, P_AIM, P_BRE, P_BIM, P_CRE, P_CIM, P_LDT = 16, 18, 20, 22, 24, 26, 28, 30
P_DSK, P_W1, P_B1, P_W2, P_B2, P_OUT, P_DBG, P_WS = 32, 36, 38, 40, 42, 44, 46, 48
S_WS, S_W1, S_W2, S_X0, S_OUT = 52, 56, 60, 64, 68
sD0, sD1 = 72, 74
sLDT = 76
sEP = 78
sWOFF, sT0, sT1, sT2, sT3, sCNT = 80, 81, 82, 83, 84, 85
sRC, sR1, sR2, sRL = 86, 87, 88, 89
sM1, sM2 = 90, 92
sSTAMP = 94
sTAB = 96
sLN0, sRL0 = 77, 73
sCA, sCB = 34, 100

vLANE, vL16, vT2a, vT2b, vT1a, vT1b, vD1, vD2 = 127, 126, 125, 124, 123, 122, 121, 120
vA0, vA1 = 123, 122


def srd(n):
    return f"s[{n}:{n + 3}]"


def sp(n):
    return f"s[{n}:{n + 1}]"


def vr(n, k):
    return f"v[{n}:{n + k - 1}]" if k > 1 else f"v{n}"


def f32(x):
    return "0x%08x" % struct.unpack("<I", struct.pack("<f", x))[0]


a = Prog()
_lab = [0]


def label(p):
    _lab[0] += 1
    return f"L_{p}_{_lab[0]}"


_stamp = [0]


def stamp(name, r=1):
    k = _stamp[0]
    _stamp[0] += 1
    STAMP_NAMES.append(name)
    a("; MARK after " + name)
    if OPT["probe"] == name.replace(" ", "_"):
        a(f"s_memrealtime {sp(sSTAMP)}\ns_waitcnt lgkmcnt(0)\ns_mov_b32 s101, s{sSTAMP}")
    if OPT["stamps"] != 1:
        return
    l = label("st")
    if OPT["dbgwg"] >= 0:
        if name not in DBG_SEL:
            return
        a(f"s_lshl_b32 s3, s{sWAVE}, 8\ns_add_u32 s3, s3, s2\ns_cmp_lg_u32 s3, {OPT['dbgwg']}\ns_cbranch_scc1 {l}")
        a(f"s_memrealtime {sp(sSTAMP)}")
        a("s_waitcnt lgkmcnt(0)")
        a(f"s_mov_b64 exec, 1\nv_mov_b32 v{r}, s{sSTAMP}\ns_mov_b32 s{sSTAMP}, s{P_DBG}\ns_mov_b32 s{sSTAMP + 1}, s{P_DBG + 1}\ns_mov_b32 s{sSTAMP + 2}, 256\ns_mov_b32 s{sSTAMP + 3}, 0x20000".replace(f"s{sSTAMP}, s{P_DBG}", f"s64, s{P_DBG}").replace(f"s{sSTAMP + 1}, s{P_DBG + 1}", f"s65, s{P_DBG + 1}").replace(f"s{sSTAMP + 2}, 256", "s66, 256").replace(f"s{sSTAMP + 3}, 0x20000", "s67, 0x20000"))
        a(f"buffer_store_dword v{r}, off, s[64:67], 0 offset:{12 + 4 * DBG_SEL.index(name)} sc1", optional=True)
        a("s_mov_b64 exec, -1")
        a(f"{l}:")
        return
    a(f"s_cmp_lg_u32 s{sWAVE}, 0")
    a(f"s_cbranch_scc1 {l}")
    a(f"{'s_memtime' if OPT['clk'] else 's_memrealtime'} {sp(sSTAMP)}")
    a("s_waitcnt lgkmcnt(0)")
    a(f"s_lshl_b32 s3, s2, 8")
    a(f"s_add_u32 s3, s3, {STAMPS + 4 * k}")
    a(f"v_mov_b32 v{r}, s{sSTAMP}")
    a("s_mov_b64 exec, 1")
    a(f"buffer_store_dword v{r}, off, {srd(S_WS)}, s3", optional=True)
    a("s_mov_b64 exec, -1")
    a(f"{l}:")


_cnt = [0]


def count_out(r):
    if OPT["stamps"] != 1:
        return
    k = _cnt[0]
    _cnt[0] += 1
    a(f"s_lshl_b32 s3, s2, 2\ns_add_u32 s3, s3, s{sWAVE}\ns_lshl_b32 s3, s3, 5\ns_add_u32 s3, s3, {STAMPS + 0x10000 + 4 * k}")
    a(f"v_mov_b32 v{r}, s{sCNT}\ns_mov_b64 exec, 1")
    a(f"buffer_store_dword v{r}, off, {srd(S_WS)}, s3")
    a("s_mov_b64 exec, -1")


DUMP = 0x2000000


def dump_lds(point, r=96):
    if OPT["dump"] != point:
        return
    a.barrier()
    a(f"s_lshl_b32 s3, s{sWAVE}, 10\nv_add_u32 v{r + 4}, s3, v{vL16}\ns_lshl_b32 s3, s2, 16\ns_add_u32 s3, s3, {DUMP}")
    for i in range(16):
        a(f"ds_read_b128 {vr(r, 4)}, v{r + 4} offset:{i * 4096}")
        a(f"buffer_store_dwordx4 {vr(r, 4)}, v{r + 4}, {srd(S_WS)}, s3 offen")
        a("s_add_u32 s3, s3, 4096")
        a.wait_vm0()
    a.barrier()


def cmul(d, x, y):
    return [f"v_pk_mul_f32 {vr(d, 2)}, {vr(x, 2)}, {vr(y, 2)} op_sel:[1,1] op_sel_hi:[1,0] neg_lo:[0,1]",
            f"v_pk_fma_f32 {vr(d, 2)}, {vr(x, 2)}, {vr(y, 2)}, {vr(d, 2)} op_sel_hi:[0,1,1]"]


def cmul2(p, q=None):
    x = cmul(*p)
    if q is None:
        a(x[0]); a(x[1])
        return
    y = cmul(*q)
    a(x[0]); a(y[0]); a(x[1]); a(y[1])


def unpack(dlo, dhi, s):
    a(f"v_lshlrev_b32 v{dlo}, 16, v{s}")
    a(f"v_and_b32 v{dhi}, s0, v{s}")


def prologue():
    a("s_cmp_lt_u32 s2, 256")
    a("s_cbranch_scc1 L_start")
    a("s_endpgm")
    a("L_start:")
    if OPT["fixdur"] or OPT["stamps"]:
        a("s_memrealtime s[50:51]")
    a("s_load_dwordx16 s[16:31], s[0:1], 0")
    a("s_load_dwordx16 s[32:47], s[0:1], 64")
    a("s_load_dwordx2 s[48:49], s[0:1], 128")
    a(f"v_lshrrev_b32 v1, 6, v0")
    a(f"v_and_b32 v{vLANE}, 63, v0")
    a(f"v_readfirstlane_b32 s{sWAVE}, v1")
    a(f"v_lshlrev_b32 v{vL16}, 4, v{vLANE}")
    a(f"""s_and_b32 s{sX}, s2, 7
s_lshr_b32 s{sJ}, s2, 3
s_add_u32 s{sJ}, s{sJ}, 28
s_and_b32 s{sJ}, s{sJ}, 31
""")
    a(f"""s_lshr_b32 s{sT0}, s{sX}, 2
s_mul_i32 s{sPAIR}, s{sX}, 28
s_sub_u32 s{sRC}, s{sJ}, s{sT0}
s_add_u32 s{sPAIR}, s{sPAIR}, s{sRC}
s_cmp_lt_u32 s{sRC}, 28
s_cselect_b32 s{sRC}, 1, 0
s_mul_i32 s{sT2}, s{sJ}, 37
s_lshr_b32 s{sT2}, s{sT2}, 8
s_mul_i32 s{sT3}, s{sT2}, 7
s_sub_u32 s{sDT1}, s{sJ}, s{sT3}
s_lshl_b32 s{sNT}, s{sT2}, 3
s_add_u32 s{sNT}, s{sNT}, s{sX}
s_sub_u32 s{sT1}, s{sJ}, 4
s_cselect_b32 s{sR2}, 0, 1
s_and_b32 s{sT1}, s{sT1}, 31
s_mul_i32 s{sT2}, s{sT1}, 37
s_lshr_b32 s{sT2}, s{sT2}, 8
s_mul_i32 s{sT3}, s{sT2}, 7
s_sub_u32 s{sDT2}, s{sT1}, s{sT3}
s_lshl_b32 s{sST}, s{sX}, 2
s_add_u32 s{sST}, s{sST}, s{sT2}
s_cmp_eq_u32 s{sJ}, 0
s_cselect_b32 s{sT1}, 32, s{sJ}
s_mul_i32 s{sT2}, s{sX}, 12
s_add_u32 s{sT2}, s{sT2}, s{sT1}
s_sub_u32 s{sT2}, s{sT2}, 53
s_lshl_b32 s{sT3}, s{sX}, 2
s_add_u32 s{sT3}, s{sT3}, s{sJ}
s_sub_u32 s{sT3}, s{sT3}, 28
s_cmp_lg_u32 s{sT0}, 0
s_cselect_b32 s{sT1}, s{sT1}, s{sJ}
s_cselect_b32 s{sLN0}, s{sT2}, s{sT3}
s_cselect_b32 s{sRL0}, 21, 28
s_cmp_ge_u32 s{sT1}, s{sRL0}
s_cselect_b32 s{sRL0}, 1, 0""" if OPT["map18"] == 1 else f"""s_and_b32 s{sT0}, s{sX}, 1
s_lshr_b32 s{sT1}, s{sX}, 1
s_mul_i32 s{sPAIR}, s{sX}, 28
s_sub_u32 s{sRC}, s{sJ}, s{sT0}
s_add_u32 s{sPAIR}, s{sPAIR}, s{sRC}
s_cmp_lt_u32 s{sRC}, 28
s_cselect_b32 s{sRC}, 1, 0
s_mul_i32 s{sT2}, s{sJ}, 37
s_lshr_b32 s{sT2}, s{sT2}, 8
s_mul_i32 s{sT3}, s{sT2}, 7
s_sub_u32 s{sT3}, s{sJ}, s{sT3}
s_mul_i32 s{sNT}, s{sT1}, 7
s_add_u32 s{sNT}, s{sNT}, s{sT3}
s_lshl_b32 s{sT3}, s{sT0}, 2
s_add_u32 s{sDT1}, s{sT2}, s{sT3}
s_lshl_b32 s{sST}, s{sT0}, 3
s_sub_u32 s{sST}, s{sJ}, s{sST}
s_cselect_b32 s{sR2}, 0, 1
s_lshr_b32 s{sDT2}, s{sST}, 3
s_and_b32 s{sDT2}, s{sDT2}, 3
s_add_u32 s{sDT2}, s{sDT2}, s{sT3}
s_and_b32 s{sST}, s{sST}, 7
s_lshl_b32 s{sLN0}, s{sT1}, 4
s_lshl_b32 s{sT1}, s{sT1}, 3
s_add_u32 s{sST}, s{sST}, s{sT1}
s_cmp_eq_u32 s{sJ}, 0
s_cselect_b32 s{sT1}, 32, s{sJ}
s_mul_i32 s{sT2}, s{sT0}, 11
s_add_u32 s{sT2}, s{sT2}, s{sT1}
s_cmp_lg_u32 s{sT0}, 0
s_cselect_b32 s{sT1}, s{sT1}, s{sJ}
s_cselect_b32 s{sT2}, s{sT2}, s{sJ}
s_cselect_b32 s{sRL0}, 21, 28
s_cmp_ge_u32 s{sT1}, s{sRL0}
s_cselect_b32 s{sRL0}, 1, 0
s_add_u32 s{sLN0}, s{sLN0}, s{sT2}
s_sub_u32 s{sLN0}, s{sLN0}, 28""")
    if OPT["map18"] == 2:
        a(f"""s_sub_u32 s{sT1}, s{sJ}, 4
s_cselect_b32 s{sR2}, 0, 1
s_and_b32 s{sT1}, s{sT1}, 31
s_mul_i32 s{sT2}, s{sT1}, 37
s_lshr_b32 s{sT2}, s{sT2}, 8
s_mul_i32 s{sT3}, s{sT2}, 7
s_sub_u32 s{sDT2}, s{sT1}, s{sT3}
s_lshl_b32 s{sST}, s{sX}, 2
s_add_u32 s{sST}, s{sST}, s{sT2}""")
    a(f"""s_lshl_b32 s{sLN}, s{sX}, 4
s_add_u32 s{sLN}, s{sLN}, s{sJ}
s_sub_u32 s{sLN}, s{sLN}, 8
s_mul_i32 s{sT2}, s{sT0}, 7
s_sub_u32 s{sT2}, 28, s{sT2}
s_cmp_lt_u32 s{sJ}, s{sT2}
s_cselect_b32 s{sR1}, 1, 0
s_sub_u32 s{sT2}, s{sJ}, 8
s_cmp_lt_u32 s{sT2}, 16
s_cselect_b32 s{sRL}, 1, 0
s_min_u32 s{sPAIR}, s{sPAIR}, 223
s_mov_b32 s{sM1}, 0xaaaaaaaa
s_mov_b32 s{sM1 + 1}, 0xaaaaaaaa
s_mov_b32 s{sM2}, 0xcccccccc
s_mov_b32 s{sM2 + 1}, 0xcccccccc""")
    a("s_waitcnt lgkmcnt(0)")
    if OPT["fixdur"] or OPT["stamps"]:
        a("s_mov_b32 s101, s50")
    a("s_mov_b32 s0, 0xffff0000\ns_mov_b32 s1, 0xffff")
    a(f"""s_lshl_b32 s{sT0}, s{sPAIR}, 2
s_load_dword s{sLDT}, {sp(P_LDT)}, s{sT0}
s_load_dword s{sD0}, {sp(P_DSK)}, s{sT0}""")
    kgen_loads()
    for n, p, size in ((S_X0, P_U, 1835008), (S_WS, P_WS, WS_BYTES), (S_OUT, P_OUT, 1835008)):
        a(f"s_mov_b32 s{n}, s{p}\ns_mov_b32 s{n + 1}, s{p + 1}\ns_mov_b32 s{n + 2}, {size}\ns_mov_b32 s{n + 3}, 0x20000")
    a(f"buffer_load_dwordx2 v[104:105], off, {srd(S_WS)}, 0 offset:{EPOCH} sc1")
    for n, p, role in ((S_W1, P_W1, sR1), (S_W2, P_W2, sR2)):
        a(f"s_mov_b32 s{n}, s{p}\ns_mov_b32 s{n + 1}, s{p + 1}\ns_cmp_lg_u32 s{role}, 0\ns_cselect_b32 s{n + 2}, {0 if OPT['now'] & (1 if n == S_W1 else 2) else 7340032}, 0\ns_mov_b32 s{n + 3}, 0x20000")


sAUX = 75


def code_warm(r):
    if not OPT["warm"]:
        return
    a(f"""s_lshl_b32 s{sT0}, s{sJ}, 2
s_add_u32 s{sT0}, s{sT0}, s{sWAVE}
s_mul_i32 s{sT0}, s{sT0}, 640
v_lshl_add_u32 v{r}, v{vLANE}, 7, s{sT0}
s_mov_b32 s{sT1}, ktab-L_entry+8192
v_min_u32 v{r}, s{sT1}, v{r}
s_sub_u32 s28, s{sTAB}, ktab-L_entry
s_subb_u32 s29, s{sTAB + 1}, 0
s_mov_b64 exec, 31
global_load_dword v{r}, v{r}, s[28:29]
s_mov_b64 exec, -1""")


def page_warm(r):
    if not OPT["tlb"]:
        return
    a(f"""v_lshlrev_b32 v{r}, 21, v{vLANE}
v_add_u32 v{r}, 0x1fff80, v{r}
s_mov_b64 exec, 0x3ff
buffer_load_dword v{r}, v{r}, {srd(S_WS)}, 0 offen
s_mov_b64 exec, 1
buffer_load_dword v{r + 1}, off, {srd(S_OUT)}, 0
global_load_dword v{r + 2}, v{vLANE}, {sp(P_B1)}
global_load_dword v{r + 3}, v{vLANE}, {sp(P_B2)}
s_mov_b64 exec, -1""")


def fill(base, n, r, sidx, stride, tag="st0"):
    a(f"""s_lshl_b32 s{sT0}, s{sidx}, 12
s_lshl_b32 s{sT1}, s{sWAVE}, 10
s_add_u32 s{sT0}, s{sT0}, s{sT1}
s_add_u32 s{sT0}, s{sT0}, {base}""")
    for k in range(4):
        a(f"v_mov_b32 v{r + k}, -1")
    for k in range(n):
        a(f"buffer_store_dwordx4 {vr(r, 4)}, v{vL16}, {srd(S_WS)}, s{sT0} offen sc1", tag=tag)
        if k + 1 < n:
            a(f"s_add_u32 s{sT0}, s{sT0}, {stride}")


def aux_loads():
    a(f"""s_and_b32 s{sAUX}, s{sJ}, 3
s_lshl_b32 s{sAUX}, s{sAUX}, 3
s_add_u32 s{sAUX}, s{sAUX}, s{sX}
s_lshl_b32 s16, s{sAUX}, 2
s_add_u32 s16, s16, s{sWAVE}
s_mul_i32 s{sT1}, s16, {16 * 896}
s_mul_i32 s17, s{sWAVE}, {16 * 912}
s_mov_b32 m0, s17
s_mov_b32 exec_hi, 0xffffff""")
    for k in range(16):
        if k:
            a(f"s_add_u32 m0, m0, 912\ns_add_u32 s{sT1}, s{sT1}, 896")
        a(f"buffer_load_dwordx4 v{vL16}, {srd(S_X0)}, s{sT1} offen lds", res_w=[f"x0"])
    a("s_mov_b64 exec, -1")


def aux_work():
    XR = 8
    a(f"""v_mov_b32 v76, 0
v_mov_b32 v77, 0
v_mov_b32 v78, 0
v_mov_b32 v79, 0
s_lshl_b32 s{sT1}, s16, 7
s_add_u32 s{sT1}, s{sT1}, {ST1}
s_lshl_b32 s18, s{sAUX}, 7
s_add_u32 s18, s18, {ST0}
s_mov_b64 exec, 0xff""")
    a(f"buffer_store_dwordx4 v[76:79], v{vL16}, {srd(S_WS)}, s{sT1} offen sc1", tag="st0")
    a(f"""s_mov_b64 exec, -1
v_and_b32 v2, 15, v{vLANE}
v_lshrrev_b32 v3, 4, v{vLANE}
v_mul_u32_u24 v4, 912, v2
v_lshl_add_u32 v4, v3, 4, v4
v_add_u32 v4, s17, v4
v_lshrrev_b32 v6, 2, v2
v_cmp_eq_u32 vcc, v6, v3
v_bfe_u32 v6, v2, 1, 2
v_lshlrev_b32 v6, 7, v6
v_lshrrev_b32 v7, 3, v2
v_lshl_add_u32 v6, v7, 4, v6
v_and_b32 v7, 1, v2
v_lshl_add_u32 v6, v7, 2, v6
s_lshl_b32 s{sT0}, s{sWAVE}, 5
s_add_u32 s{sT0}, s{sT0}, 60000
v_add_u32 v6, s{sT0}, v6
v_mov_b32 v7, 61024
v_cndmask_b32 v6, v7, v6, vcc
v_lshrrev_b32 v117, 3, v{vLANE}
v_cmp_eq_u32 vcc, s{sWAVE}, v117
v_lshlrev_b32 v117, 12, v117
v_and_b32 v7, 7, v{vLANE}
v_lshl_add_u32 v117, v7, 4, v117
v_mov_b32 v7, {OOB}
v_cndmask_b32 v117, v7, v117, vcc
v_mov_b32 v80, 0x3f803f80
v_mov_b32 v81, 0x3f803f80
v_mov_b32 v82, 0x3f803f80
v_mov_b32 v83, 0x3f803f80""")
    if OPT["stamps"] == 1:
        a.wait_vm0()
    stamp("aux data")
    for k in range(14):
        a(f"ds_read_b128 {vr(XR + 4 * k, 4)}, v4 offset:{64 * k}", res_r=["x0"])
    for k in range(14):
        x = vr(XR + 4 * k, 4)
        a(f"v_mfma_f32_16x16x32_bf16 v[64:67], v[80:83], {x}, {'v[64:67]' if k else 0}")
        a(f"v_mfma_f32_16x16x32_bf16 v[68:71], {x}, {x}, {'v[68:71]' if k else 0}")
    a(f"""v_cndmask_b32 v68, v68, v69, {sp(sM1)}
v_cndmask_b32 v70, v70, v71, {sp(sM1)}
v_cndmask_b32 v68, v68, v70, {sp(sM2)}""")
    a("ds_write2_b32 v6, v64, v68 offset0:0 offset1:2")
    a.barrier()
    a(f"ds_read_b128 v[64:67], v{vL16} offset:60000")
    a(f"buffer_store_dwordx4 v[64:67], v117, {srd(S_WS)}, s18 offen sc1", tag="st0")
    stamp("aux st")
    nonce_take()
    flag_put(0, f"s_add_u32 s{sT0}, s{sAUX}, 224\ns_lshl_b32 s{sT0}, s{sT0}, 6", 72, "st0")


def xt_loads():
    a(f"""s_lshl_b32 s{sT0}, s{sPAIR}, 1
s_lshr_b32 s{sT1}, s{sWAVE}, 1
s_add_u32 s{sT0}, s{sT0}, s{sT1}
s_mul_i32 s{sT1}, s{sT0}, 9363
s_lshr_b32 s{sT1}, s{sT1}, 16
s_mul_i32 s{sT2}, s{sT1}, 7
s_sub_u32 s{sT0}, s{sT0}, s{sT2}
s_lshl_b32 s{sT0}, s{sT0}, 1
s_and_b32 s{sT2}, s{sWAVE}, 1
s_add_u32 s{sT0}, s{sT0}, s{sT2}
s_mul_i32 s{sT2}, s{sT1}, {32 * 896}
s_lshl_b32 s{sT3}, s{sT0}, 6
s_add_u32 s{sT2}, s{sT2}, s{sT3}
v_lshrrev_b32 v2, 2, v{vLANE}
v_mul_u32_u24 v2, 896, v2
v_and_b32 v3, 3, v{vLANE}
v_lshl_add_u32 v2, v3, 4, v2
s_mul_i32 s22, s{sWAVE}, {GST}
s_mov_b32 m0, s22
s_mul_i32 s23, s{sT1}, {BS}""")
    a(f"buffer_load_dwordx4 v2, {srd(S_X0)}, s{sT2} offen lds", res_w=["x0"])
    a(f"s_add_u32 m0, m0, 1024\ns_add_u32 s{sT2}, s{sT2}, {16 * 896}")
    a(f"buffer_load_dwordx4 v2, {srd(S_X0)}, s{sT2} offen lds", res_w=["x0"])
    a(f"""s_lshl_b32 s{sT0}, s{sT0}, 11
s_add_u32 s23, s23, s{sT0}
s_add_u32 s23, s23, {X0}
v_lshrrev_b32 v2, 4, v{vLANE}
v_bfe_u32 v36, v{vLANE}, 2, 2
v_lshl_add_u32 v36, v2, 3, v36
v_lshlrev_b32 v36, 6, v36
v_lshl_add_u32 v36, v3, 3, v36
v_add_u32 v36, s22, v36
v_and_b32 v37, 15, v{vLANE}
v_lshlrev_b32 v37, 6, v37
v_lshl_add_u32 v37, v2, 4, v37""")


def xt_work():
    for u in range(2):
        for j in range(2):
            a(f"ds_read_b64_tr_b16 {vr(40 + 4 * u + 2 * j, 2)}, v36 offset:{j * 256 + u * 32}", res_r=["x0"])
    for u in range(2):
        a(f"buffer_store_dwordx4 {vr(40 + 4 * u, 4)}, v37, {srd(S_WS)}, s23 offen offset:{1024 * u} sc1", tag="st0")


def xt_poll_addr(ra, t):
    a(f"""s_lshl_b32 s{sT0}, s{sWAVE}, 4
v_and_b32 v{t}, 15, v{vLANE}
v_add_u32 v{t}, s{sT0}, v{t}
v_mul_u32_u24 v{t}, 7, v{t}
s_lshr_b32 s{sT0}, s{sPAIR}, 5
v_add_u32 v{t}, s{sT0}, v{t}
v_lshrrev_b32 v{t}, 1, v{t}
s_lshl_b32 s{sT0}, s{sWAVE}, 3
s_add_u32 s{sT0}, s{sT0}, 224
v_and_b32 v{ra}, 7, v{vLANE}
v_add_u32 v{ra}, s{sT0}, v{ra}
v_cmp_gt_u32 vcc, 16, v{vLANE}
v_cndmask_b32 v{ra}, v{ra}, v{t}, vcc""")


def e1_poll_addr(ra):
    a(f"s_lshl_b32 s{sT0}, s{sWAVE}, 6\nv_add_u32 v{ra}, s{sT0}, v{vLANE}")


def nonce_take():
    a(f"v_readfirstlane_b32 s{sNONCE}, v104\nv_readfirstlane_b32 s{sNONCE + 1}, v105")
    a(f"s_add_u32 s{sNONCE}, s{sNONCE}, 1")
    a(f"s_addc_u32 s{sNONCE + 1}, s{sNONCE + 1}, 0")


def nonce_retire():
    l = label("nr")
    a(f"s_or_b32 s{sT0}, s2, s{sWAVE}")
    a(f"s_cmp_lg_u32 s{sT0}, 32")
    a(f"s_cbranch_scc1 {l}")
    a(f"v_mov_b32 v110, s{sNONCE}\nv_mov_b32 v111, s{sNONCE + 1}\ns_mov_b64 exec, 1")
    a(f"buffer_store_dwordx2 v[110:111], off, {srd(S_WS)}, 0 offset:{EPOCH} sc1", optional=True)
    a("s_mov_b64 exec, -1")
    a(f"{l}:")


def flag_put(edge, sprod, r, tag):
    a(f"s_lshl_b32 s{sT0}, s{sprod}, 6" if isinstance(sprod, int) else sprod)
    a(f"""s_lshl_b32 s{sT1}, s{sWAVE}, 15
s_add_u32 s{sT0}, s{sT0}, s{sT1}
s_add_u32 s{sT0}, s{sT0}, {FL + edge * 0x20000}
v_lshlrev_b32 v{r + 4}, 12, v{vLANE}
v_and_b32 v{r + 4}, 0x4000, v{r + 4}
v_and_b32 v{r}, 3, v{vLANE}
v_lshl_add_u32 v{r + 4}, v{r}, 4, v{r + 4}
v_mov_b32 v{r}, s{sNONCE}
v_mov_b32 v{r + 1}, s{sNONCE + 1}
v_mov_b32 v{r + 2}, s{sNONCE}
v_mov_b32 v{r + 3}, s{sNONCE + 1}""")
    a.wait_tag(tag)
    a.barrier()
    a("s_mov_b64 exec, 0xff")
    a(f"buffer_store_dwordx4 {vr(r, 4)}, v{r + 4}, {srd(S_WS)}, s{sT0} offen sc1", tag="flag")
    a("s_mov_b64 exec, -1")


def emode(e):
    return OPT["em"][e - 1]


def hinted(e):
    return emode(e) in "HSMG"


def sentinel(e):
    return emode(e) in "SDM"


def flagged(e):
    return emode(e) in "FHG"


def armed(layer):
    return any(sentinel(e + 4 * layer) for e in (1, 2, 3))


def wait_edge(e, r, ra_full, ra_samp):
    if hinted(e):
        poll_issue(e + 10, r, ra_samp)
        poll_take(r, ra_samp)
    elif emode(e) == "D":
        a.wait_tag("pub")
    else:
        a.wait_tag("flag")
    if flagged(e):
        poll_issue(e, r, ra_full)
        poll_take(r, ra_full)


def hint_prep(edge, sprod, r):
    a(f"s_lshl_b32 s{sT0}, s{sprod}, 6" if isinstance(sprod, int) else sprod)
    a(f"""s_lshl_b32 s{sT1}, s{sWAVE}, 15
s_add_u32 s{sT0}, s{sT0}, s{sT1}
s_add_u32 s{sT0}, s{sT0}, {FL + edge * 0x20000}
v_lshlrev_b32 v{r + 4}, 12, v{vLANE}
v_and_b32 v{r + 4}, 0x4000, v{r + 4}
v_and_b32 v{r}, 3, v{vLANE}
v_lshl_add_u32 v{r + 4}, v{r}, 4, v{r + 4}
v_add_u32 v{r + 4}, s{sT0}, v{r + 4}
v_mov_b32 v{r}, s{sNONCE}
v_mov_b32 v{r + 1}, s{sNONCE + 1}
v_mov_b32 v{r + 2}, s{sNONCE}
v_mov_b32 v{r + 3}, s{sNONCE + 1}""")


def hint_put(r):
    a("s_mov_b64 exec, 0xff")
    a(f"buffer_store_dwordx4 {vr(r, 4)}, v{r + 4}, {srd(S_WS)}, 0 offen sc1", tag="hint")
    a("s_mov_b64 exec, -1")


def poll_issue(edge, r, ra=None):
    ra = r + 2 if ra is None else ra
    a(f"""s_lshl_b32 s{sT3}, s{sX}, 14
s_add_u32 s{sT3}, s{sT3}, {FL + edge * 0x20000}
v_lshl_add_u32 v{ra}, v{ra}, 6, s{sT3}
buffer_load_dwordx2 {vr(r, 2)}, v{ra}, {srd(S_WS)}, 0 offen sc1""")


def poll_take(r, ra=None):
    ra = r + 2 if ra is None else ra
    ok, lp = label("pok"), label("plp")
    a(f"v_cmp_ne_u64 vcc, {sp(sNONCE)}, {vr(r, 2)}")
    a(f"s_cbranch_vccz {ok}")
    a(f"s_mov_b32 s{sCNT}, 0")
    a(f"{lp}:")
    if OPT["slp"]:
        a(f"s_sleep {OPT['slp']}")
    a(f"buffer_load_dwordx2 {vr(r, 2)}, v{ra}, {srd(S_WS)}, 0 offen sc1")
    a("s_waitcnt vmcnt(0)")
    a(f"v_cmp_ne_u64 vcc, {sp(sNONCE)}, {vr(r, 2)}")
    a(f"s_add_u32 s{sCNT}, s{sCNT}, 1")
    a(f"s_cbranch_vccz {ok}")
    a(f"s_cmp_lt_u32 s{sCNT}, 0x100000")
    a(f"s_cbranch_scc1 {lp}")
    a(f"{ok}:")


sW1O, sW2O = 98, 99
sROT1, sROT2 = 33, 35
sW1E, sW2E = 78, 79


def w_setup():
    a(f"""v_lshrrev_b32 v2, 3, v{vLANE}
v_and_b32 v3, 7, v{vLANE}
v_bfe_u32 v4, v{vLANE}, 4, 1
v_lshlrev_b32 v4, 2, v4
v_xor_b32 v3, v3, v4
v_lshlrev_b32 v3, 4, v3
v_mul_u32_u24 v{vD1}, 3584, v2
v_add_u32 v{vD1}, v{vD1}, v3
v_lshl_add_u32 v{vD2}, v2, 12, v3
v_bfe_u32 v2, v{vLANE}, 2, 2
v_lshrrev_b32 v3, 5, v{vLANE}
v_bfe_u32 v4, v{vLANE}, 4, 1
v_and_b32 v5, 3, v{vLANE}
v_lshlrev_b32 v5, 3, v5
v_lshl_add_u32 v5, v4, 5, v5
v_lshrrev_b32 v4, 1, v2
v_lshl_add_u32 v5, v4, 6, v5
s_lshr_b32 s{sT0}, s{sWAVE}, 1
s_lshl_b32 s{sT0}, s{sT0}, 6
v_xor_b32 v5, s{sT0}, v5
v_lshl_add_u32 v5, v2, 7, v5
s_mul_i32 s{sT1}, s{sWAVE}, 24576
s_add_u32 s{sT1}, s{sT1}, {W2L}
v_add_u32 v5, s{sT1}, v5
v_lshl_add_u32 v{vT1a}, v3, 10, v5
v_xor_b32 v{vT1b}, 64, v{vT1a}
v_lshl_add_u32 v{vT2a}, v3, 9, v5
v_xor_b32 v{vT2b}, 64, v{vT2a}
s_mul_i32 s{sW1O}, s{sWAVE}, {512 * 3584}
s_lshl_b32 s{sT0}, s{sNT}, 7
s_add_u32 s{sW1O}, s{sW1O}, s{sT0}
s_mul_i32 s{sW2O}, s{sWAVE}, {448 * 4096}
s_lshl_b32 s{sT0}, s{sST}, 7
s_add_u32 s{sW2O}, s{sW2O}, s{sT0}
s_mov_b32 s{sWOFF}, s{sT1}""")
    if OPT["rot"] and OPT["map18"] == 1:
        if OPT["rot"] == 2:
            a(f"""s_add_u32 s{sROT1}, s{sDT1}, s{sX}
s_and_b32 s{sROT1}, s{sROT1}, 7
s_add_u32 s{sROT2}, s{sDT2}, s{sX}
s_cmp_ge_u32 s{sROT2}, 7
s_cselect_b32 s{sT0}, 7, 0
s_sub_u32 s{sROT2}, s{sROT2}, s{sT0}""")
        else:
            a(f"s_mov_b32 s{sROT1}, s{sDT1}\ns_mov_b32 s{sROT2}, s{sDT2}")
    elif OPT["rot"] == 3:
        a(f"""s_and_b32 s{sT0}, s{sDT1}, 3
s_lshr_b32 s{sT1}, s{sDT1}, 2
s_add_u32 s{sT1}, s{sT1}, 2
s_mul_i32 s{sROT1}, s{sT0}, s{sT1}
s_min_u32 s{sROT1}, s{sROT1}, 7
s_and_b32 s{sT0}, s{sDT2}, 3
s_lshr_b32 s{sT1}, s{sDT2}, 2
s_add_u32 s{sT1}, s{sT1}, 2
s_mul_i32 s{sROT2}, s{sT0}, s{sT1}
s_min_u32 s{sROT2}, s{sROT2}, 5""")
    elif OPT["rot"]:
        a(f"""s_and_b32 s{sT0}, s{sDT1}, 3
s_lshl_b32 s{sT0}, s{sT0}, 1
s_lshr_b32 s{sT1}, s{sDT1}, 2
s_add_u32 s{sT0}, s{sT0}, s{sT1}
s_and_b32 s{sROT1}, s{sT0}, 7
s_and_b32 s{sT0}, s{sDT2}, 3
s_lshl_b32 s{sT0}, s{sT0}, 1
s_lshr_b32 s{sT1}, s{sDT2}, 2
s_add_u32 s{sT0}, s{sT0}, s{sT1}
s_min_u32 s{sROT2}, s{sT0}, 6""")
        if OPT["map18"] == 2:
            a(f"s_mov_b32 s{sROT2}, s{sDT2}")
    else:
        a(f"s_mov_b32 s{sROT1}, 0\ns_mov_b32 s{sROT2}, 0")
    a(f"""s_add_u32 s{sW1E}, s{sW1O}, {512 * 3584}
s_mul_i32 s{sT0}, s{sROT1}, {64 * 3584}
s_add_u32 s{sW1O}, s{sW1O}, s{sT0}
s_add_u32 s{sW2E}, s{sW2O}, {448 * 4096}
s_mul_i32 s{sT0}, s{sROT2}, {64 * 4096}
s_add_u32 s{sW2O}, s{sW2O}, s{sT0}""")


WORDER = list(range(0, 4)) + list(range(32, 36)) + list(range(4, 32)) + list(range(36, 60))


def w_dma(pos, half):
    slot = pos % 12
    n = WORDER[pos]
    g = [Ins(f"s_add_u32 m0, s{sWOFF}, {slot * 2048 + half * 1024}")]
    if n < 32:
        g.append(Ins(f"s_add_u32 s{sW1O}, s{sW1O}, {8 * 3584}") if (n or half) else Ins("s_nop 0"))
        if n and n % 4 == 0 and half == 0:
            g += [Ins(f"s_cmp_eq_u32 s{sW1O}, s{sW1E}"), Ins(f"s_cselect_b32 s3, {512 * 3584}, 0"), Ins(f"s_sub_u32 s{sW1O}, s{sW1O}, s3")]
        g.append(Ins(f"buffer_load_dwordx4 v{vD1}, {srd(S_W1)}, s{sW1O} offen lds", res_w=[f"slot{slot}"]))
    else:
        g.append(Ins(f"s_add_u32 s{sW2O}, s{sW2O}, {8 * 4096}") if (n > 32 or half) else Ins("s_nop 0"))
        if n > 32 and n % 4 == 0 and half == 0:
            g += [Ins(f"s_cmp_eq_u32 s{sW2O}, s{sW2E}"), Ins(f"s_cselect_b32 s3, {448 * 4096}, 0"), Ins(f"s_sub_u32 s{sW2O}, s{sW2O}, s3")]
        g.append(Ins(f"buffer_load_dwordx4 v{vD2}, {srd(S_W2)}, s{sW2O} offen lds", res_w=[f"slot{slot}"]))
    return g


def w_tr(pos):
    slot = pos % 12
    n = WORDER[pos]
    g = []
    for nb in range(2):
        for j in range(2):
            if n < 32:
                r = (n * 2 + nb) * 4 + 2 * j
                g.append(Ins(f"ds_read_b64_tr_b16 a[{r}:{r + 1}], v{(vT1a, vT1b)[nb]} offset:{slot * 2048 + j * 512}", res_r=[f"slot{slot}"]))
            else:
                r = 128 + ((n - 32) * 2 + nb) * 4 + 2 * j
                g.append(Ins(f"ds_read_b64_tr_b16 v[{r}:{r + 1}], v{(vT2a, vT2b)[nb]} offset:{slot * 2048 + j * 1024}", res_r=[f"slot{slot}"]))
    return g


def w_all_upfront():
    for n in range(12):
        a.put(w_dma(n, 0)); a.put(w_dma(n, 1))
    for n in range(48):
        a.put(w_tr(n))
        if n >= 1:
            a.put(w_dma(n + 11, 0)); a.put(w_dma(n + 11, 1))
    a.put(w_dma(59, 0)); a.put(w_dma(59, 1))
    a.wait_vm0()
    a.wait_lgkm0()


PR = 56
TAB = 104


def kgen_loads():
    a(f"""s_lshl_b32 s{sT0}, s{sPAIR}, 10
s_lshl_b32 s{sT1}, s{sWAVE}, 8
s_add_u32 s{sT0}, s{sT0}, s{sT1}
v_lshl_add_u32 v3, v{vLANE}, 2, s{sT0}""")
    for k, p in enumerate((P_ARE, P_AIM, P_BRE, P_BIM, P_CRE, P_CIM)):
        a(f"global_load_dword v{PR + k}, v3, {sp(p)}")


def kgen_table_addr():
    l = label("pc")
    a(f"s_getpc_b64 {sp(sTAB)}")
    a(f"{l}:")
    a(f"s_add_u32 s{sTAB}, s{sTAB}, ktab-{l}")
    a(f"s_addc_u32 s{sTAB + 1}, s{sTAB + 1}, 0")


def kgen_table_load():
    kgen_table_addr()
    a(f"s_lshr_b32 s{sT0}, s{sWAVE}, 1\ns_lshl_b32 s{sT0}, s{sT0}, 5\nv_lshl_add_u32 v75, v0, 5, s{sT0}")


KBG = []


def kgen(hooks):
    F = {e: 2 * e for e in range(1, 8)}
    Qr = {1: 16, 2: 18, 3: 20, 4: 22}
    QN = [24, 26]
    Z1, Z2, C0, C1 = 28, 30, 32, 34
    CN = [36, 38]
    T0, T1 = 62, 64
    CV = [66, 67, 68, 69]
    A2, B2, DT = 70, 71, 72
    ACC = 76
    QF = 88
    PF = 40
    vG, vF = 73, 74
    a(f"""s_mul_i32 s{sT0}, s{sWAVE}, {GST}
v_lshl_add_u32 v{vG}, v{vLANE}, 2, s{sT0}
v_and_b32 v2, 15, v{vLANE}
v_mul_u32_u24 v2, {GROW}, v2
v_lshrrev_b32 v3, 4, v{vLANE}
v_lshl_add_u32 v2, v3, 4, v2
v_add_u32 v{vF}, s{sT0}, v2""")
    a.begin()
    a(f"""s_lshr_b32 s{sT0}, s{sWAVE}, 1
s_lshl_b32 s{sT0}, s{sT0}, 4
s_lshr_b32 s{sT0}, s{sLDT}, s{sT0}
s_lshl_b32 s{sT0}, s{sT0}, 16
v_mov_b32 v2, {f32(math.log2(math.e))}
v_mul_f32 v2, s{sT0}, v2
v_exp_f32 v2, v2
v_cvt_pk_bf16_f32 v2, v2, v2
v_lshlrev_b32 v{DT}, 16, v2
s_and_b32 s{sD1}, s{sD0}, 0xffff0000
s_lshl_b32 s{sD0}, s{sD0}, 16""")
    cvi = [0]

    def hook(name):
        if name is not None and name not in hooks:
            return
        a_body = space_ds(a.end(), OPT["lag"], OPT["gap"])
        m, rest = merge(a_body, KBG[:], 20, OPT["ev_kg"])
        del KBG[:]
        a.put(m)
        put_all(rest)
        if name is not None:
            hooks[name]()
            a.begin()

    def row(r, src, neg=False):
        c = CV[cvi[0] % 4]
        cvi[0] += 1
        a(f"v_cvt_pk_bf16_f32 v{c}, v{src}, {'-' if neg else ''}v{src + 1}")
        a(f"ds_write_b32 v{vG}, v{c} offset:{r * GROW}")

    def reads(dst, tile):
        for ks in range(4):
            a(f"ds_read_b128 {vr(dst + 4 * ks, 4)}, v{vF} offset:{tile * 16 * GROW + ks * 64}")

    def mfmas(t, first):
        for ks in range(4):
            c = "0" if (first and ks == 0) else vr(ACC + 4 * t, 4)
            a(f"v_mfma_f32_16x16x32_bf16 {vr(ACC + 4 * t, 4)}, {vr(PF + 4 * ks, 4)}, {vr(QF + 4 * ks, 4)}, {c}")

    def direct(d, scale):
        if scale != 1:
            a(f"v_mul_f32 v{T0}, {f32(scale)}, v{A2}")
            a(f"v_mul_f32 v{T1}, {f32(scale)}, v{B2}")
            x, y = T0, T1
        else:
            x, y = A2, B2
        a(f"v_fract_f32 v{T1}, v{y}")
        a(f"v_exp_f32 v{T0}, v{x}")
        a(f"v_cos_f32 v{d}, v{T1}")
        a(f"v_sin_f32 v{d + 1}, v{T1}")
        a(f"v_pk_mul_f32 {vr(d, 2)}, {vr(d, 2)}, {vr(T0, 2)} op_sel_hi:[1,0]")

    for rd in range(2):
        def up(d, s):
            a(f"v_lshlrev_b32 v{d}, 16, v{s}" if rd == 0 else f"v_and_b32 v{d}, s0, v{s}")
        up(A2, PR); up(B2, PR + 1)
        up(QN[0], PR + 2); up(QN[0] + 1, PR + 3)
        up(QN[1], PR + 4); up(QN[1] + 1, PR + 5)
        a(f"v_mul_f32 v{A2}, v{DT}, v{A2}")
        a(f"v_mul_f32 v{B2}, v{DT}, v{B2}")
        a(f"v_pk_mul_f32 {vr(QN[0], 2)}, {vr(QN[0], 2)}, {vr(DT, 2)} op_sel_hi:[1,0]")
        a(f"v_mul_f32 v{A2}, {f32(math.log2(math.e))}, v{A2}")
        a(f"v_mul_f32 v{B2}, {f32(1 / (2 * math.pi))}, v{B2}")
        cmul2((C0, QN[1], QN[0]))
        direct(F[1], 1)
        if rd == 1:
            mfmas(2, True)
        direct(Z1, 128)
        hook(5 * rd)
        cmul2((F[2], F[1], F[1]), (Z2, Z1, Z1))
        cmul2((F[4], F[2], F[2]), (F[3], F[2], F[1]))
        cmul2((Qr[1], F[4], F[4]), (C1, C0, Z1))
        a(f"v_mov_b32 v{CV[3]}, 0x3f80")
        a(f"ds_write_b32 v{vG}, v{CV[3]}")
        cmul2((Qr[2], Qr[1], Qr[1]), (F[5], F[4], F[1]))
        row(1, Qr[1], True)
        cmul2((Qr[3], Qr[2], Qr[1]), (Qr[4], Qr[2], Qr[2]))
        row(2, Qr[2], True)
        cmul2((F[6], F[4], F[2]), (F[7], F[4], F[3]))
        row(3, Qr[3], True)
        row(4, Qr[4], True)
        cur = {1: Qr[1], 2: Qr[2], 3: Qr[3], 0: Qr[4]}
        free = list(QN) + [CN[0]]
        j = 5
        while j < 16:
            js = [j] + ([j + 1] if j + 1 < 16 else [])
            ps = []
            for jj in js:
                d = free.pop(0)
                ps.append((d, cur[jj % 4], Qr[4]))
            cmul2(*ps)
            for jj, p in zip(js, ps):
                if cur[jj % 4] != Qr[4]:
                    free.append(cur[jj % 4])
                cur[jj % 4] = p[0]
                row(jj, p[0], True)
            j += 2
        reads(QF, 0)
        hook(5 * rd + 1)
        TA, TB = QN
        row(16, C0); row(24, C1)
        for e in range(1, 8):
            cmul2((TA, C0, F[e]), (TB, C1, F[e]))
            row(16 + e, TA); row(24 + e, TB)
        reads(PF, 1)
        hook(5 * rd + 2)
        ca, cb = C0, C1
        na, nb_ = CN
        def adv():
            nonlocal ca, cb, na, nb_
            cmul2((na, ca, Z2), (nb_, cb, Z2))
            ca, cb, na, nb_ = na, nb_, ca, cb
        adv()
        row(32, ca); row(36, cb)
        for e in range(1, 4):
            cmul2((TA, ca, F[2 * e]), (TB, cb, F[2 * e]))
            row(32 + e, TA); row(36 + e, TB)
        mfmas(0, rd == 0)
        for k in range(2):
            adv()
            row(40 + 4 * k, ca); row(42 + 4 * k, cb)
            cmul2((TA, ca, F[4]), (TB, cb, F[4]))
            row(41 + 4 * k, TA); row(43 + 4 * k, TB)
        reads(PF, 2)
        hook(5 * rd + 3)
        for k in range(4):
            adv()
            row(48 + 2 * k, ca); row(49 + 2 * k, cb)
        cmul2((na, ca, Z2))
        row(56, na)
        mfmas(1, rd == 0)
        reads(PF, 3)
        hook(5 * rd + 4)
    hook(None)
    a(f"s_mul_i32 s{sT0}, s{sWAVE}, {GST}")
    a(f"v_add_u32 v{vF}, s{sT0}, v{vL16}")
    a(f"v_mov_b32 v{CV[0]}, 0")
    for k in range(8):
        a(f"v_and_b32 v{2 + 2 * k}, s1, v{TAB + k}")
        a(f"v_lshrrev_b32 v{3 + 2 * k}, 16, v{TAB + k}")
    for t in range(2):
        a(f"ds_write_b128 v{vF}, {vr(ACC + 4 * t, 4)} offset:{TOFF + t * 1024}")
    mfmas(2, False)
    a(f"ds_write_b32 v{vG}, v{CV[0]} offset:{TOFF + 3072}")
    a("v_and_b32 v18, 0xffff, v0\nv_lshrrev_b32 v19, 16, v0\nv_and_b32 v20, 0xffff, v1")
    a(f"ds_write_b128 v{vF}, {vr(ACC + 8, 4)} offset:{TOFF + 2048}")


def kzero(r):
    a(f"""v_mov_b32 v{r}, 0
v_mov_b32 v{r + 1}, 0
v_mov_b32 v{r + 2}, 0
v_mov_b32 v{r + 3}, 0
v_bfe_u32 v{r + 4}, v{vLANE}, 1, 3
v_mul_u32_u24 v{r + 4}, {KST}, v{r + 4}
v_and_b32 v{r + 5}, 1, v{vLANE}
v_lshl_add_u32 v{r + 4}, v{r + 5}, 4, v{r + 4}
s_and_b32 s{sT0}, s{sWAVE}, 1
s_mul_i32 s{sT0}, s{sT0}, {UST}
v_add_u32 v{r + 5}, s{sT0}, v{vL16}""")
    return [f"ds_write_b128 v{r + 4}, {vr(r, 4)} offset:4096", f"ds_write_b128 v{r + 5}, {vr(r, 4)} offset:{UB}"]


def kaddr(r):
    a(f"""s_lshr_b32 s{sT0}, s{sWAVE}, 1
s_and_b32 s{sT1}, s{sWAVE}, 1
s_lshl_b32 s{sT1}, s{sT1}, 11
v_lshl_add_u32 v{r + 3}, v{vLANE}, 5, s{sT1}""")
    for c in range(4):
        a(f"s_cmp_lg_u32 s{sT0}, 0")
        a(f"s_cselect_b32 s{sT2}, {KSLOT[1][c]}, {KSLOT[0][c]}")
        a(f"s_mul_i32 s{sT2}, s{sT2}, {KST}")
        a(f"v_add_u32 v{r + c}, s{sT2}, v{r + 3}")


def kexpand(mid):
    AD, VAL = 2, 22
    P0, P1, P2, P3 = 2, 12, 88, 96
    a.barrier()
    for k in range(19):
        a(f"ds_read2st64_b32 {vr(VAL + 2 * k, 2)}, v{AD + k} offset0:{TOFF // 256} offset1:{TOFF // 256 + GST // 256}")
    mid()
    kaddr(60)
    zw = kzero(104)
    for k in range(19):
        a(f"v_add_f32 v{VAL + 2 * k}, v{VAL + 2 * k}, v{VAL + 2 * k + 1}")
        if k:
            a(f"v_cvt_pk_bf16_f32 v{(P0 if k & 1 else P1) + (k - 1) // 2}, v{VAL + 2 * k - 2}, v{VAL + 2 * k}")
    a.barrier()
    a.begin()
    for l in zw:
        a(l)
    for c, P in ((0, P0), (1, P1)):
        a(f"ds_write_b128 v{60 + c}, {vr(P, 4)}")
        a(f"ds_write_b128 v{60 + c}, {vr(P + 4, 4)} offset:16")
    for c, P, src in ((2, P2, P0), (3, P3, P1)):
        for i in range(4):
            a(f"v_pk_mov_b32 {vr(P + 2 * i, 2)}, {vr(src + 2 * i, 2)}, {vr(src + 2 * i + 2, 2)} op_sel:[1,0]")
        a(f"ds_write_b128 v{60 + c}, {vr(P, 4)}")
        a(f"ds_write_b128 v{60 + c}, {vr(P + 4, 4)} offset:16")
    return a.end()


def kcopies():
    R, E, M = 2, 12, 22
    kaddr(40)
    a(f"""ds_read_b128 {vr(R, 4)}, v40
ds_read_b128 {vr(R + 4, 4)}, v40 offset:16
ds_read_b64 {vr(R + 8, 2)}, v40 offset:32""")
    for l in kzero(32):
        a(l)
    for i in range(9):
        a(f"v_alignbit_b32 v{E + i}, v{R + i + 1}, v{R + i}, 16")
    a(f"ds_write_b128 v41, {vr(E, 4)}")
    a(f"ds_write_b128 v41, {vr(E + 4, 4)} offset:16")
    for i in range(4):
        a(f"v_pk_mov_b32 {vr(M + 2 * i, 2)}, {vr(R + 2 * i, 2)}, {vr(R + 2 * i + 2, 2)} op_sel:[1,0]")
    a(f"ds_write_b128 v42, {vr(M, 4)}")
    a(f"ds_write_b128 v42, {vr(M + 4, 4)} offset:16")
    for i in range(4):
        a(f"v_pk_mov_b32 {vr(R + 2 * i, 2)}, {vr(E + 2 * i, 2)}, {vr(E + 2 * i + 2, 2)} op_sel:[1,0]")
    a(f"ds_write_b128 v43, {vr(R, 4)}")
    a(f"ds_write_b128 v43, {vr(R + 4, 4)} offset:16")


GX = 80
CS = 64
cvA, cvB, cvZ, cvXW, cvXR, cvO, cvU, cvX, cvH, cvP = 112, 113, 114, 115, 116, 117, 118, 119, 100, 108
STUBS = []


def conv_poll1():
    r = cvP
    a(f"""v_lshrrev_b32 v{r}, 3, v{vLANE}
v_min_u32 v{r}, 6, v{r}
v_and_b32 v{r + 1}, 7, v{vLANE}
v_lshl_add_u32 v{r + 2}, v{r}, 5, v{r + 1}
s_lshl_b32 s{sT0}, s{sWAVE}, 3
v_add_u32 v{r + 2}, s{sT0}, v{r + 2}
v_and_b32 v{r + 1}, 7, v{vLANE}
v_min_u32 v{r}, 6, v{r + 1}
v_lshl_add_u32 v{r + 3}, v{r}, 5, v{r + 1}
v_add_u32 v{r + 3}, s{sT0}, v{r + 3}""")


def conv_loads():
    for p in range(4):
        a(f"buffer_load_dwordx4 {vr(CS + 4 * p, 4)}, v{vL16}, {srd(S_WS)}, s{16 + p} offen sc1")
    a(f"buffer_load_dwordx4 {vr(GX, 4)}, v{cvX}, {srd(S_WS)}, s20 offen sc1")
    a(f"buffer_load_dwordx4 {vr(GX + 4, 4)}, v{cvX}, {srd(S_WS)}, s20 offen offset:64 sc1")


def conv_setup(layer):
    a(f"""s_mov_b32 s{sCA}, {f32(1.0 / 448)}
s_mov_b32 s{sCB}, {f32(1e-5)}
s_lshl_b32 s{sT0}, s{sWAVE}, 10
v_add_u32 v{cvU}, s{sT0}, v{vL16}
s_lshr_b32 s{sT0}, s{sWAVE}, 1
s_and_b32 s{sT1}, s{sWAVE}, 1
v_and_b32 v8, 15, v{vLANE}
v_lshrrev_b32 v9, 4, v{vLANE}
v_not_b32 v10, v8
v_and_b32 v10, 3, v10""")
    for s in range(4):
        a(f"s_cmp_lg_u32 s{sT0}, 0")
        a(f"s_cselect_b32 s{sT2}, {KSLOT[1][s]}, {KSLOT[0][s]}")
        a(f"s_mul_i32 s{sT2}, s{sT2}, {KST}")
        if s == 0:
            a(f"v_mov_b32 v11, s{sT2}")
        else:
            a(f"v_mov_b32 v12, s{sT2}\nv_cmp_eq_u32 vcc, {s}, v10\nv_cndmask_b32 v11, v11, v12, vcc")
    a(f"""v_add_u32 v10, v10, v8
v_lshlrev_b32 v12, 3, v9
v_sub_u32 v12, v12, v10
v_lshl_add_u32 v11, v12, 1, v11
""")
    a(f"""s_lshl_b32 s{sT3}, s{sT1}, 8
s_sub_u32 s{sT2}, {2 * 2031 - 64 * 59}, s{sT3}
v_add_u32 v{cvA}, s{sT2}, v11
s_mul_i32 s{sT2}, s{sT0}, {UST}
s_sub_u32 s{sT2}, s{sT2}, s{sT3}
s_add_u32 s{sT2}, s{sT2}, {UB + UPAD - 2 * 112}
v_lshlrev_b32 v12, 5, v8
v_lshl_add_u32 v13, v9, 4, v12
v_add_u32 v{cvB}, s{sT2}, v13
s_lshl_b32 s{sT2}, s{sWAVE}, 11
v_lshl_add_u32 v13, v9, 3, v12
v_add_u32 v{cvZ}, s{sT2}, v13
s_xor_b32 s{sT2}, s{sWAVE}, 1
s_lshl_b32 s{sT2}, s{sT2}, 12
v_add_u32 v{cvXW}, s{sT2}, v{vL16}
s_lshl_b32 s{sT2}, s{sWAVE}, 12
v_add_u32 v{cvXR}, s{sT2}, v{vL16}
v_and_b32 v10, 1, v9
v_lshlrev_b32 v10, 3, v10
v_lshrrev_b32 v11, 1, v8
v_add_u32 v10, v10, v11
v_mul_u32_u24 v10, {BS}, v10
v_and_b32 v11, 1, v8
v_lshl_add_u32 v10, v11, 5, v10
v_lshrrev_b32 v11, 1, v9
v_lshl_add_u32 v{cvO}, v11, 4, v10
s_mul_i32 s{sT1}, s{sT1}, {32 * BS}
s_lshl_b32 s{sT2}, s{sPAIR}, 1
s_add_u32 s{sT0}, s{sT0}, s{sT2}
s_lshl_b32 s{sT0}, s{sT0}, 6
s_add_u32 s{sT0}, s{sT0}, s{sT1}
s_add_u32 s13, s{sT0}, {X1 if layer == 0 else X3}
s_add_u32 s21, s13, {16 * BS}""" if OPT["cv"] else f"""v_add_u32 v{cvA}, {2 * 2031 - 64 * 63}, v11
s_mul_i32 s{sT2}, s{sT0}, {UST}
s_lshl_b32 s{sT3}, s{sT1}, 9
s_add_u32 s{sT2}, s{sT2}, s{sT3}
s_add_u32 s{sT2}, s{sT2}, {UB + UPAD - 2 * 496}
v_lshlrev_b32 v12, 5, v8
v_lshl_add_u32 v13, v9, 4, v12
v_add_u32 v{cvB}, s{sT2}, v13
s_lshl_b32 s{sT2}, s{sT0}, 12
s_add_u32 s{sT2}, s{sT2}, s{sT3}
v_lshl_add_u32 v13, v9, 3, v12
v_add_u32 v{cvZ}, s{sT2}, v13
v_and_b32 v10, 1, v9
v_lshlrev_b32 v10, 4, v10
v_lshrrev_b32 v11, 1, v8
v_add_u32 v10, v10, v11
v_mul_u32_u24 v10, {BS}, v10
v_and_b32 v11, 1, v8
v_lshl_add_u32 v10, v11, 5, v10
v_lshrrev_b32 v11, 1, v9
v_lshl_add_u32 v{cvO}, v11, 4, v10
s_mul_i32 s{sT1}, s{sT1}, {8 * BS}
s_lshl_b32 s{sT2}, s{sPAIR}, 1
s_add_u32 s{sT0}, s{sT0}, s{sT2}
s_lshl_b32 s{sT0}, s{sT0}, 6
s_add_u32 s{sT0}, s{sT0}, s{sT1}
s_add_u32 s13, s{sT0}, {X1 if layer == 0 else X3}
s_add_u32 s21, s13, {32 * BS}""")
    a(f"""s_lshl_b32 s16, s{sWAVE}, 10
s_add_u32 s16, s16, {ST0 if layer == 0 else ST1}
s_add_u32 s17, s16, 4096
s_add_u32 s18, s16, 8192
s_add_u32 s19, s16, 12288
s_mul_i32 s20, s{sWAVE}, {16 * BS}
s_lshl_b32 s{sT2}, s{sPAIR}, 7
s_add_u32 s20, s20, s{sT2}
s_add_u32 s20, s20, {X0 if layer == 0 else X2}
v_lshrrev_b32 v10, 2, v{vLANE}
v_mul_u32_u24 v10, {BS}, v10
v_and_b32 v11, 3, v{vLANE}
v_lshl_add_u32 v{cvX}, v11, 4, v10""")


cXF, cUF, cAL, cBE, cUP = 0, 16, 32, 40, 48


def conv_pro(layer):
    XF, UF, AL, BE, UP = cXF, cUF, cAL, cBE, cUP
    for p in range(4):
        S = CS + 4 * p
        a(f"v_pk_mul_f32 {vr(S, 2)}, {vr(S, 2)}, {sp(sCA)} op_sel_hi:[1,0]")
    for p in range(4):
        S = CS + 4 * p
        a(f"v_pk_fma_f32 {vr(BE + 2 * p, 2)}, {vr(S, 2)}, {vr(S, 2)}, {sp(sCB)} op_sel_hi:[1,1,0] neg_lo:[1,0,0] neg_hi:[1,0,0]")
    for p in range(4):
        Q = CS + 4 * p + 2
        a(f"v_pk_fma_f32 {vr(Q, 2)}, {vr(Q, 2)}, {sp(sCA)}, {vr(BE + 2 * p, 2)} op_sel_hi:[1,0,1]")
    for p in range(4):
        Q = CS + 4 * p + 2
        a(f"v_max_f32 v{Q}, s{sCB}, v{Q}\nv_max_f32 v{Q + 1}, s{sCB}, v{Q + 1}")
    for p in range(4):
        Q = CS + 4 * p + 2
        a(f"v_rsq_f32 v{AL + 2 * p}, v{Q}\nv_rsq_f32 v{AL + 2 * p + 1}, v{Q + 1}")
    for k in range(8):
        unpack(XF + 2 * k, XF + 2 * k + 1, GX + k)
    for p in range(4):
        S = CS + 4 * p
        a(f"v_pk_mul_f32 {vr(BE + 2 * p, 2)}, {vr(S, 2)}, {vr(AL + 2 * p, 2)} neg_lo:[1,0] neg_hi:[1,0]")
    for c in range(2):
        for p in range(4):
            a(f"v_pk_fma_f32 {vr(UF + 8 * c + 2 * p, 2)}, {vr(XF + 8 * c + 2 * p, 2)}, {vr(AL + 2 * p, 2)}, {vr(BE + 2 * p, 2)}")
        for p in range(4):
            a(f"v_cvt_pk_bf16_f32 v{UP + 4 * c + p}, v{UF + 8 * c + 2 * p}, v{UF + 8 * c + 2 * p + 1}")
        a(f"ds_write_b128 v{cvU}, {vr(UP + 4 * c, 4)} offset:{UB + c * UST + UPAD}")
    if OPT["cv"]:
        for i in a.capture(conv_z, 88):
            if i.kind != "dsw":
                a.put([i])


def conv_z(ZP=cXF):
    XF, UF = cXF, cUF
    for c in range(2):
        for p in range(4):
            a(f"v_pk_fma_f32 {vr(UF + 8 * c + 2 * p, 2)}, {vr(UF + 8 * c + 2 * p, 2)}, {sp((sD0, sD1)[c])}, {vr(XF + 8 * c + 2 * p, 2)} op_sel_hi:[1,0,1]")
        for p in range(4):
            a(f"v_cvt_pk_bf16_f32 v{ZP + 4 * c + p}, v{UF + 8 * c + 2 * p}, v{UF + 8 * c + 2 * p + 1}")
        a(f"ds_write_b128 v{cvU}, {vr(ZP + 4 * c, 4)} offset:{ZB + c * 4096}")


def conv_main(layer, bg=(), bg_start=0, bg_every=64):
    return (conv_main_r if OPT["cv"] else conv_main_t)(layer, bg, bg_start, bg_every)


def conv_main_r(layer, bg, bg_start, bg_every):
    ACC, BF, AR = 0, 32, 64
    NA = 6
    EX2 = ZB
    seq = [(r, q) for r in range(4) for q in range(7, -1, -1)]
    e = 1 + 4 * layer

    def rdA(i):
        r, q = seq[i]
        d = AR + 4 * (i % NA)
        off = 64 * (59 - (8 * q + r))
        return [Ins(f"ds_read_b64 {vr(d, 2)}, v{cvA} offset:{off}"), Ins(f"ds_read_b64 {vr(d + 2, 2)}, v{cvA} offset:{off + 8}")]

    def rdB(r, p):
        return [Ins(f"ds_read_b128 {vr(BF + 4 * p, 4)}, v{cvB} offset:{512 * p + 64 * (3 - r)}")]

    a.put(rdA(0)); a.put(rdB(0, 0)); a.put(rdA(1)); a.put(rdB(0, 1)); a.put(rdA(2)); a.put(rdB(0, 2)); a.put(rdA(3))
    a.put(rdB(0, 3)); a.put(rdA(4))
    for p in range(4, 8):
        a.put(rdB(0, p))
    ZR, ZF, RR = 88, 64, 32
    side = [[i] for i in a.capture(conv_z, 88) if i.kind == "dsw"]
    if hinted(e):
        side += [[i] for i in a.capture(hint_prep, e + 10, sPAIR, cvH)]
    late = [[Ins("s_barrier")]] + [[Ins(f"ds_read_b64 {vr(ZR + 2 * i, 2)}, v{cvZ} offset:{ZB + i * 512}")] for i in range(4)]
    late2 = [[Ins("s_barrier")]]
    a.begin()
    started = set()
    for i, (r, q) in enumerate(seq):
        if hinted(e) and OPT["h_cv"] < 0 and i == 32 + OPT["h_cv"]:
            hint_put(cvH)
        ps = list(range(8 - q))
        for p in ps:
            b = q + p
            c = vr(ACC + 4 * b, 4) if b in started else "0"
            started.add(b)
            a(f"v_mfma_f32_16x16x32_bf16 {vr(ACC + 4 * b, 4)}, {vr(AR + 4 * (i % NA), 4)}, {vr(BF + 4 * p, 4)}, {c}")
            if p == 0 and i + NA - 1 < len(seq):
                a.put(rdA(i + NA - 1))
            elif 1 <= q <= 4 and p >= 1:
                for lst, r0 in ((side, 0), (late, 2), (late2, 3)):
                    if lst and r >= r0:
                        a.put(lst.pop(0))
                        break
            if q == 0 and r < 3:
                a.put(rdB(r + 1, p))
    assert not side and not late and not late2
    m, rest = merge(a.end(), list(bg), bg_start, bg_every)
    a.put(m)
    stamp(f"conv{layer} loop", 111)
    if hinted(e) and OPT["h_cv"] == 0:
        hint_put(cvH)
    for k in range(8):
        unpack(ZF + 2 * k, ZF + 2 * k + 1, ZR + k)
    l1, l2 = label("cx"), label("cy")
    a(f"s_bitcmp1_b32 s{sWAVE}, 0")
    a(f"s_cbranch_scc1 {l1}")
    for h in range(2):
        for i in range(4):
            a(f"ds_write_b128 v{cvXW}, {vr(ACC + 16 * (1 - h) + 4 * i, 4)} offset:{EX2 + i * 1024}")
            for k in range(2):
                a(f"v_pk_add_f32 {vr(ZF + 4 * i + 2 * k, 2)}, {vr(ZF + 4 * i + 2 * k, 2)}, {vr(ACC + 16 * h + 4 * i + 2 * k, 2)}")
        if h == 0:
            a(f"s_branch {l2}")
            a(f"{l1}:")
    a(f"{l2}:")
    if (armed(1) if layer else sentinel(1)):
        poll_take(cvP)
    a.barrier()
    if hinted(e) and OPT["h_cv"] == 1:
        hint_put(cvH)
    for i in range(4):
        a(f"ds_read_b128 {vr(RR + 4 * i, 4)}, v{cvXR} offset:{EX2 + i * 1024}")
    PK = 56
    for i in range(4):
        for k in range(2):
            a(f"v_pk_add_f32 {vr(ZF + 4 * i + 2 * k, 2)}, {vr(ZF + 4 * i + 2 * k, 2)}, {vr(RR + 4 * i + 2 * k, 2)}")
        for k in range(2):
            a(f"v_cvt_pk_bf16_f32 v{PK + 2 * i + k}, v{ZF + 4 * i + 2 * k}, v{ZF + 4 * i + 2 * k + 1}")
        if i & 1:
            b = PK + 2 * (i - 1)
            a(f"v_permlane16_swap_b32 v{b}, v{b + 2}")
            a(f"v_permlane16_swap_b32 v{b + 1}, v{b + 3}")
            a(f"buffer_store_dwordx4 {vr(b, 4)}, v{cvO}, {srd(S_WS)}, s{21 if i == 3 else 13} offen sc1", tag="pub")
    if hinted(e) and OPT["h_cv"] == 2:
        hint_put(cvH)
    if not flagged(e):
        a.barrier()
    else:
        flag_put(1 + 4 * layer, sPAIR, 40, "pub")
    return rest


def conv_main_t(layer, bg, bg_start, bg_every):
    ACC, BF, AR = 84, 32, 64
    NA = 5
    QORD = (7, 5, 6, 3, 4, 2, 1, 0)
    seq = [(r, q) for r in range(8) for q in QORD]
    e = 1 + 4 * layer

    def rdA(i):
        r, q = seq[i]
        d = AR + 4 * (i % NA)
        off = 64 * (63 - (8 * q + r))
        return [Ins(f"ds_read_b64 {vr(d, 2)}, v{cvA} offset:{off}"), Ins(f"ds_read_b64 {vr(d + 2, 2)}, v{cvA} offset:{off + 8}")]

    def rdB(r, p):
        return [Ins(f"ds_read_b128 {vr(BF + 4 * (p + 1), 4)}, v{cvB} offset:{512 * (p + 1) + 64 * (7 - r)}")]

    a.put(rdA(0)); a.put(rdB(0, -1)); a.put(rdA(1)); a.put(rdB(0, 1)); a.put(rdA(2)); a.put(rdB(0, 0)); a.put(rdA(3))
    for p in (3, 2, 4, 5, 6):
        a.put(rdB(0, p))
    ZR, ZF = 16, 0
    side = [[i] for i in a.capture(conv_z)]
    if hinted(e):
        side += [[i] for i in a.capture(hint_prep, e + 10, sPAIR, cvH)]
    late = [[Ins("s_barrier")]] + [[Ins(f"ds_read_b64 {vr(ZR + 2 * i, 2)}, v{cvZ} offset:{ZB + i * 1024}")] for i in range(4)]
    late2 = [[i] for k in range(8) for i in a.capture(unpack, ZF + 2 * k, ZF + 2 * k + 1, ZR + k)]
    a.begin()
    started = set()
    n = 0
    for i, (r, q) in enumerate(seq):
        if hinted(e) and OPT["h_cv"] < 0 and i == 64 + OPT["h_cv"]:
            hint_put(cvH)
        first = True
        for t in range(q // 2, 4):
            p = 2 * t - q
            c = vr(ACC + 4 * t, 4) if t in started else "0"
            started.add(t)
            a(f"v_mfma_f32_16x16x32_bf16 {vr(ACC + 4 * t, 4)}, {vr(AR + 4 * (i % NA), 4)}, {vr(BF + 4 * (p + 1), 4)}, {c}")
            n += 1
            if first and i + 4 < len(seq):
                a.put(rdA(i + 4))
            elif q >= 2:
                for lst, r0 in ((side, 0), (late, 4), (late2, 5)):
                    if lst and r >= r0:
                        a.put(lst.pop(0))
                        if lst is side and lst:
                            a.put(lst.pop(0))
                        break
            first = False
            if q <= 1 and r < 7:
                a.put(rdB(r + 1, p))
    assert not side and not late and not late2
    m, rest = merge(a.end(), list(bg), bg_start, bg_every)
    a.put(m)
    stamp(f"conv{layer} loop", 111)
    if (armed(1) if layer else sentinel(1)):
        poll_take(cvP)
    if hinted(e) and OPT["h_cv"] == 0:
        hint_put(cvH)
    PK = 24
    for i in range(4):
        for k in range(2):
            a(f"v_pk_add_f32 {vr(ZF + 4 * i + 2 * k, 2)}, {vr(ZF + 4 * i + 2 * k, 2)}, {vr(ACC + 4 * i + 2 * k, 2)}")
        for k in range(2):
            a(f"v_cvt_pk_bf16_f32 v{PK + 2 * i + k}, v{ZF + 4 * i + 2 * k}, v{ZF + 4 * i + 2 * k + 1}")
        if i & 1:
            b = PK + 2 * (i - 1)
            a(f"v_permlane16_swap_b32 v{b}, v{b + 2}")
            a(f"v_permlane16_swap_b32 v{b + 1}, v{b + 3}")
            a(f"buffer_store_dwordx4 {vr(b, 4)}, v{cvO}, {srd(S_WS)}, s{21 if i == 3 else 13} offen sc1", tag="pub")
    if hinted(e) and OPT["h_cv"] > 0:
        hint_put(cvH)
    if not flagged(e):
        a.barrier()
    else:
        flag_put(1 + 4 * layer, sPAIR, 40, "pub")
    return rest


def reduce32(V, n, W):
    for i in range(n):
        a(f"v_permlane16_swap_b32 v{V[i]}, v{V[n + i]}")
    for i in range(n):
        a(f"v_add_f32 v{V[i]}, v{V[i]}, v{V[n + i]}")
    h = n // 2
    for i in range(h):
        a(f"v_add_f32_dpp v{W[i]}, v{V[i]}, v{V[i]} row_ror:8 row_mask:0xf bank_mask:0x3")
    for i in range(h):
        a(f"v_add_f32_dpp v{W[i]}, v{V[i + h]}, v{V[i + h]} row_ror:8 row_mask:0xf bank_mask:0xc")
    g = h // 2
    for i in range(g):
        a(f"v_add_f32_dpp v{V[i]}, v{W[i]}, v{W[i]} row_half_mirror row_mask:0xf bank_mask:0x5")
    for i in range(g):
        a(f"v_add_f32_dpp v{V[i]}, v{W[i + g]}, v{W[i + g]} row_half_mirror row_mask:0xf bank_mask:0xa")
    for m in ("[1,0,3,2]", "[2,3,0,1]"):
        for i in range(g):
            a(f"v_add_f32_dpp v{V[i]}, v{V[i]}, v{V[i]} quad_perm:{m} row_mask:0xf bank_mask:0xf")
    return V[:g]


def maxchain(t, regs):
    regs = list(regs)
    if OPT["chk"] == 1:
        regs = regs[3::4]
    if len(regs) == 2:
        return [f"v_max_u32 v{t}, v{regs[0]}, v{regs[1]}"]
    out = [f"v_max3_u32 v{t}, v{regs[0]}, v{regs[1]}, v{regs[2]}"]
    regs = regs[3:]
    while len(regs) >= 2:
        out.append(f"v_max3_u32 v{t}, v{t}, v{regs[0]}, v{regs[1]}")
        regs = regs[2:]
    if regs:
        out.append(f"v_max_u32 v{t}, v{t}, v{regs[0]}")
    return out


RETRY = 0x10000


def ln(layer, wide):
    X = X1 if layer == 0 else X3
    H = H1 if layer == 0 else H3
    nf = 7 if wide else 4
    sI = sLN0 if wide else sLN
    RAW, XF, S, Q, W = 0, 28, 84, 92, 100
    vO, vPW, vPR, vAW, vAR, r, hr = 109, 110, 111, 112, 117, 114, 104
    vX, vS = 64, 68
    a(f"""s_mul_i32 s{sT0}, s{sWAVE}, 56
v_min_u32 v{r + 2}, 55, v{vLANE}""")
    a(f"v_add_u32 v{r + 2}, s{sT0}, v{r + 2}")
    a(f"v_and_b32 v118, {OPT['samp'] - 1}, v{vLANE}\nv_mul_u32_u24 v118, {56 // OPT['samp']}, v118\nv_add_u32 v118, s{sT0}, v118")
    ein, eout = 1 + 4 * layer, 2 + 4 * layer
    if OPT["lnd"] and emode(ein) == "D":
        a.wait_tag("pub")
    if wide:
        a(f"""s_mul_i32 s16, s{sI}, {BS}
s_lshl_b32 s{sT2}, s{sI}, 12""")
    else:
        a(f"""s_lshr_b32 s16, s{sI}, 1
s_mul_i32 s16, s16, {BS}
s_and_b32 s{sT0}, s{sI}, 1
s_lshl_b32 s{sT0}, s{sT0}, 5
s_add_u32 s16, s16, s{sT0}
s_lshl_b32 s{sT2}, s{sI}, 11""")
    a(f"""s_mul_i32 s{sT0}, s{sWAVE}, 7168
s_add_u32 s16, s16, s{sT0}
s_add_u32 s16, s16, {X}
s_add_u32 s17, s16, 4096
s_add_u32 s{sT2}, s{sT2}, {H}
s_mul_i32 s30, s{sWAVE}, 7""")
    if wide:
        for i in range(nf):
            a(f"""s_add_u32 s{sT0}, s30, {i}
s_lshr_b32 s{sT1}, s{sT0}, 2
s_lshl_b32 s{sT1}, s{sT1}, 18
s_add_u32 s{23 + i}, s{sT1}, s{sT2}
s_and_b32 s{sT1}, s{sT0}, 2
s_lshl_b32 s{sT1}, s{sT1}, 9
s_add_u32 s{23 + i}, s{23 + i}, s{sT1}
s_and_b32 s{sT1}, s{sT0}, 1
s_lshl_b32 s{sT1}, s{sT1}, 8
s_add_u32 s{23 + i}, s{23 + i}, s{sT1}""")
        a(f"""v_lshrrev_b32 v1, 2, v{vLANE}
v_lshlrev_b32 v{vO}, 4, v1
v_and_b32 v2, 1, v{vLANE}
v_lshl_add_u32 v{vO}, v2, 9, v{vO}
v_bfe_u32 v2, v{vLANE}, 1, 1
v_lshl_add_u32 v{vO}, v2, 11, v{vO}
v_and_b32 v1, 7, v1
v_and_b32 v2, 3, v{vLANE}
v_lshl_add_u32 v1, v2, 3, v1""")
    else:
        a(f"""v_lshrrev_b32 v1, 1, v{vLANE}
v_and_b32 v2, 1, v{vLANE}
v_lshlrev_b32 v{vX}, 6, v1
v_lshl_add_u32 v{vX}, v2, 4, v{vX}
v_mov_b32 v3, {OOB}
v_cmp_gt_u32 vcc, 32, v{vLANE}
v_cndmask_b32 v{vX + 1}, v3, v{vX}, vcc
s_lshl_b32 s30, s30, 4
s_mov_b32 s23, s{sT2}""")
        for i in range(nf):
            a(f"""v_add_u32 v4, s30, v1
v_lshrrev_b32 v5, 6, v4
v_lshlrev_b32 v5, 18, v5
v_bfe_u32 v6, v4, 5, 1
v_lshl_add_u32 v5, v6, 10, v5
v_and_b32 v6, 31, v4
v_lshl_add_u32 v5, v6, 4, v5
v_lshl_add_u32 v{vS + i}, v2, 9, v5""")
            if i < 3:
                a("s_add_u32 s30, s30, 32")
        a(f"""v_cndmask_b32 v{vS + 3}, v3, v{vS + 3}, vcc
v_bfe_u32 v1, v{vLANE}, 2, 3
v_lshl_add_u32 v1, v2, 3, v1""")
    a(f"""v_lshrrev_b32 v3, 5, v{vLANE}
v_lshl_add_u32 v1, v3, 5, v1
s_lshl_b32 s{sT1}, s{sWAVE}, 8
s_add_u32 s{sT1}, s{sT1}, {LNP}
v_lshl_add_u32 v{vPW}, v1, 2, s{sT1}
v_and_b32 v1, 31, v{vLANE}
v_lshlrev_b32 v{vPR}, 2, v1
v_add_u32 v{vPR}, {LNP}, v{vPR}
s_add_u32 s{sT1}, s{sT1}, 1024
v_lshl_add_u32 v{vAW}, v{vLANE}, 2, s{sT1}
v_lshl_add_u32 v{vAR}, v2, 5, s{sT1}
s_mov_b32 s18, 0
s_mov_b32 s19, -1""")
    prod = f"s_lshl_b32 s{sT0}, s{sI}, 6"
    if hinted(eout):
        hint_prep(eout + 10, prod, hr)
    arm = layer == 0 and sentinel(2)
    if arm:
        a(f"v_min_u32 v102, 27, v{vLANE}")
        poll_issue(18, 100)
    wait_edge(ein, r, r + 2, 118)
    if arm:
        poll_take(100)
    stamp(f"ln{layer} go")

    def loads():
        if not wide:
            return [f"buffer_load_dwordx4 {vr(RAW + 4 * i, 4)}, v{vX + (i == 3)}, {srd(S_WS)}, s{16 + i // 2} offen offset:{2048 * (i % 2)} sc1" for i in range(nf)]
        return [f"buffer_load_dwordx4 {vr(RAW + 4 * i, 4)}, v{vL16}, {srd(S_WS)}, s{16 + i // 4} offen offset:{1024 * (i % 4)} sc1" for i in range(nf)]
    again, back, stub = label("lna"), label("lnb"), label("lns")
    if sentinel(ein):
        a(f"s_mov_b32 s{sCNT}, 0")
        a(f"{again}:")
    for l in loads():
        a(l)
    if hinted(eout) and OPT["h_ln"] == 0:
        a.wait_vm0()
        hint_put(hr)
    if OPT["stamps"] == 1:
        a.wait_vm0()
    count_out(113)
    stamp(f"ln{layer} data", 113)
    for i in range(nf):
        for k in range(4):
            unpack(XF + 8 * i + 2 * k, XF + 8 * i + 2 * k + 1, RAW + 4 * i + k)
        for k in range(4):
            x = vr(XF + 8 * i + 2 * k, 2)
            if i == 0:
                a(f"v_pk_mul_f32 {vr(Q + 2 * k, 2)}, {x}, {x}")
            else:
                a(f"v_pk_fma_f32 {vr(Q + 2 * k, 2)}, {x}, {x}, {vr(Q + 2 * k, 2)}")
                a(f"v_pk_add_f32 {vr(S + 2 * k, 2)}, {vr(XF + 2 * k, 2) if i == 1 else vr(S + 2 * k, 2)}, {x}")
    if sentinel(ein):
        for l in maxchain(113, range(RAW, RAW + 4 * nf)) + ["v_cmp_eq_u32 vcc, -1, v113"]:
            a(l)
        STUBS.extend([f"{stub}:", f"s_add_u32 s{sCNT}, s{sCNT}, 1", f"s_cmp_lt_u32 s{sCNT}, {RETRY}", f"s_cbranch_scc1 {again}", f"s_branch {back}"])
    if hinted(eout) and OPT["h_ln"] == 1:
        hint_put(hr)
    for i in range(8):
        a(f"v_permlane32_swap_b32 v{S + i}, v{Q + i}")
        if i == 1 and sentinel(ein):
            a(f"s_cbranch_vccnz {stub}")
            a(f"{back}:")
    for i in range(0, 8, 2):
        a(f"v_pk_add_f32 {vr(S + i, 2)}, {vr(S + i, 2)}, {vr(Q + i, 2)}")
    for i in range(4):
        a(f"v_permlane16_swap_b32 v{S + i}, v{S + 4 + i}")
    for i in range(0, 4, 2):
        a(f"v_pk_add_f32 {vr(S + i, 2)}, {vr(S + i, 2)}, {vr(S + 4 + i, 2)}")
    for i in range(2):
        a(f"v_add_f32_dpp v{W + i}, v{S + i}, v{S + i} row_ror:8 row_mask:0xf bank_mask:0x3")
    for i in range(2):
        a(f"v_add_f32_dpp v{W + i}, v{S + 2 + i}, v{S + 2 + i} row_ror:8 row_mask:0xf bank_mask:0xc")
    a(f"v_add_f32_dpp v{S}, v{W}, v{W} row_shl:4 row_mask:0xf bank_mask:0x5")
    a(f"v_add_f32_dpp v{S}, v{W + 1}, v{W + 1} row_shr:4 row_mask:0xf bank_mask:0xa")
    if not wide:
        a(f"v_add_f32_dpp v{S}, v{S}, v{S} quad_perm:[2,3,0,1] row_mask:0xf bank_mask:0xf")
    a(f"ds_write_b32 v{vPW}, v{S}")
    a.barrier()
    if hinted(eout) and OPT["h_ln"] == 2:
        hint_put(hr)
    stamp(f"ln{layer} bar", 113)
    T = 0
    for w in range(4):
        a(f"ds_read2_b32 {vr(T + 2 * w, 2)}, v{vPR} offset0:{w * 64} offset1:{w * 64 + 32}")
    a(f"""v_pk_add_f32 {vr(T, 2)}, {vr(T, 2)}, {vr(T + 2, 2)}
v_pk_add_f32 {vr(T + 4, 2)}, {vr(T + 4, 2)}, {vr(T + 6, 2)}
v_pk_add_f32 {vr(T, 2)}, {vr(T, 2)}, {vr(T + 4, 2)}
v_mul_f32 v{T}, {f32(1 / 448)}, v{T}
v_mul_f32 v{T + 1}, {f32(1 / 448)}, v{T + 1}
v_fma_f32 v{T + 1}, -v{T}, v{T}, v{T + 1}
v_max_f32 v{T + 1}, 0, v{T + 1}
v_add_f32 v{T + 2}, {f32(1e-5)}, v{T + 1}
v_fmamk_f32 v{T + 2}, v{T + 2}, {f32(1e-5)}, v{T + 1}
v_rsq_f32 v{T + 2}, v{T + 2}
v_mul_f32 v{T + 3}, -v{T}, v{T + 2}
v_cndmask_b32 v{T + 2}, v{T + 2}, v{T + 3}, s[18:19]
ds_write_b32 v{vAW}, v{T + 2}""")
    AL, BE = S, Q
    done_hint = []
    a(f"""ds_read_b128 {vr(AL, 4)}, v{vAR}
ds_read_b128 {vr(BE, 4)}, v{vAR} offset:128
ds_read_b128 {vr(AL + 4, 4)}, v{vAR} offset:16
ds_read_b128 {vr(BE + 4, 4)}, v{vAR} offset:144""")
    for i in range(nf):
        for k in range(4):
            x = vr(XF + 8 * i + 2 * k, 2)
            a(f"v_pk_fma_f32 {x}, {x}, {vr(AL + 2 * k, 2)}, {vr(BE + 2 * k, 2)}")
        for k in range(4):
            a(f"v_cvt_pk_bf16_f32 v{RAW + 4 * i + k}, v{XF + 8 * i + 2 * k}, v{XF + 8 * i + 2 * k + 1}")
        a(f"buffer_store_dwordx4 {vr(RAW + 4 * i, 4)}, v{vO if wide else vS + i}, {srd(S_WS)}, s{23 + i if wide else 23} offen sc1", tag="pub")
        if hinted(eout) and OPT["h_ln"] - 3 == min(i, 6) * (4 if nf == 7 else 4) // (nf + 1):
            if not done_hint:
                hint_put(hr)
                done_hint.append(1)
    stamp(f"ln{layer} st", 113)
    if flagged(eout):
        flag_put(eout, prod, 100, "pub")


def gemm_addr():
    a(f"""s_and_b32 s{sT0}, s{sWAVE}, 1
s_lshl_b32 s{sT0}, s{sT0}, 10
v_add_u32 v{vA0}, s{sT0}, v{vL16}
v_xor_b32 v{vA1}, 0x400, v{vA0}""")


vCHK = 121


def gemm_loop(nks, ring, nring, wreg, swap, sent, lds_from=99, at=None, bg=()):
    WF = 104
    nfr = 2 * nks

    def load(f):
        ks, db = f // 2, f % 2
        g = []
        if db == 0 and ks and ks % 2 == 0:
            g.append(Ins("s_add_u32 s13, s13, 4096"))
            if ks % 4 == 0:
                g += [Ins("s_cmp_eq_u32 s13, s28"), Ins("s_cmov_b32 s13, s27")]
        d = ring + 4 * (f % nring)
        g.append(Ins(f"buffer_load_dwordx4 {vr(d, 4)}, v{(vA0, vA1)[db]}, {srd(S_WS)}, s13 offen offset:{(ks % 2) * 2048} sc1"))
        return g

    def wread(ks):
        g = []
        slot = ks - lds_from
        for nb in range(2):
            for j in range(2):
                d = WF + 8 * (ks % 2) + 4 * nb + 2 * j
                g.append(Ins(f"ds_read_b64_tr_b16 {vr(d, 2)}, v{(vT2a, vT2b)[nb]} offset:{slot * 2048 + j * 1024}", res_r=[f"slot{slot}"]))
        return g

    def check(ks, upto):
        regs = [ring + 4 * ((2 * ks + db) % nring) + k for db in range(2) for k in range(4)]
        chk = maxchain(vCHK, regs) + [f"v_cmp_eq_u32 vcc, -1, v{vCHK}"]
        back, stub = label("gb"), label("gs")
        rl, cnt = [], 0
        for f in range(2 * ks, max(2 * ks + 2, min(upto, 2 * ks + 2 * OPT["rl"]))):
            k2, db = f // 2, f % 2
            if db == 0:
                rl += [f"s_add_u32 s3, s22, {k2 * 2048}", "s_cmp_ge_u32 s3, s28", f"s_cselect_b32 s18, {nks * 2048}, 0", "s_sub_u32 s3, s3, s18"]
            rl.append(f"buffer_load_dwordx4 {vr(ring + 4 * (f % nring), 4)}, v{(vA0, vA1)[db]}, {srd(S_WS)}, s3 offen sc1")
        STUBS.extend([f"{stub}:"] + rl + ["s_waitcnt vmcnt(0)"] + chk + [f"s_add_u32 s{sCNT}, s{sCNT}, 1", f"s_cbranch_vccz {back}",
                                                     f"s_cmp_lt_u32 s{sCNT}, {RETRY}", f"s_cbranch_scc1 {stub}", f"s_branch {back}"])
        return [Ins(x) for x in chk], [Ins(f"s_cbranch_vccnz {stub}"), Ins(f"{back}:")]

    if sent:
        a(f"s_mov_b32 s{sCNT}, 0")
    nxt = min(OPT["fill0"], nring)
    for f in range(nxt):
        a.put(load(f))
    if sent:
        c, b = check(0, nxt)
        a.put(c); a.put(b)
    extra = []
    bg = list(bg)
    for ks in range(nks):
        if at and ks in at:
            extra += a.capture(at[ks])
        pend = wread(ks + 1) if lds_from <= ks + 1 < nks else []
        c, b = check(ks + 1, min(nfr, nxt + 2, nring + 2 * ks + 2)) if (sent and ks + 1 < nks) else ([], [])
        order = [(0, 0), (0, 1), (1, 0), (1, 1)]
        if ks == nks - 1 and OPT["tailord"]:
            order = [(0, 1), (1, 0), (1, 1), (0, 0)]
        if True:
            for nb, db in order:
                acc = vr(16 * (2 * nb + db), 16)
                cc = acc if (ks or (nb | db) == 0) else "0"
                w = wreg(ks, nb) if ks < lds_from else vr(WF + 8 * (ks % 2) + 4 * nb, 4)
                x = vr(ring + 4 * ((2 * ks + db) % nring), 4)
                if OPT["fake16"] and 0 < ks < nks - 1:
                    b0 = 16 * (2 * nb + db) + 8 * (ks & 1)
                    for t in range(2):
                        a(f"v_mfma_f32_16x16x32_bf16 {vr(b0 + 4 * t, 4)}, {x if swap ^ t else w}, {w if swap ^ t else x}, {vr(b0 + 4 * t, 4)}")
                else:
                    a(f"v_mfma_f32_32x32x16_bf16 {acc}, {x if swap else w}, {w if swap else x}, {cc}")
                if pend:
                    a.put([pend.pop(0)])
                free = nring + 2 * ks + (db + 1 if nb == 1 else 0)
                if nxt < min(nfr, free) and (nb == 1 or db == 1):
                    a.put(load(nxt))
                    nxt += 1
                if bg and nb == 0 and ks >= OPT["bg0"]:
                    a.put(bg.pop(0))
                if extra and nb == 0:
                    k = 5
                    while k < len(extra) and ("exec" in extra[k - 1].defs and extra[k - 1].text != "s_mov_b64 exec, -1" or extra[k - 1].kind == "vstore"):
                        k += 1
                    a.put(extra[:k])
                    del extra[:k]
                if nb == 1 and db == 0:
                    a.put(c)
                if nb == 1 and db == 1:
                    a.put(b)
    a.put(extra)


def gemm_rot(nks, srot):
    a(f"s_mov_b32 s27, s13\ns_add_u32 s28, s13, {nks * 2048}\ns_lshl_b32 s{sT0}, s{srot}, 13\ns_add_u32 s13, s13, s{sT0}\ns_mov_b32 s22, s13")


def gemm_reduce_prep():
    slot = 6144 if OPT["bfr"] else 12288
    for rel in (1, 2, 3):
        a(f"s_xor_b32 s{23 + rel}, s{sWAVE}, {rel}\ns_mul_i32 s{23 + rel}, s{23 + rel}, {slot}")
    a(f"s_mul_i32 s23, s{sWAVE}, {slot}")


def gemm_reduce_addr():
    for rel in range(4):
        a(f"v_add_u32 v{64 + rel}, s{23 + rel}, v{vL16}")


def gemm_perm(P):
    if not OPT["bfr"]:
        return
    t, u = P + 8, P + 7
    a("s_mov_b32 s29, 0x3f80")
    a(f"""v_lshrrev_b32 v{u}, 5, v{vLANE}
v_and_b32 v{t}, 31, v{vLANE}
v_lshlrev_b32 v{u}, 2, v{u}
v_sub_u32 v{t}, v{t}, v{u}
v_and_b32 v{u}, 1, v{t}
v_lshlrev_b32 v{u}, 4, v{u}
v_lshlrev_b32 v{u}, v{u}, s29
v_ashrrev_i32 v{t}, 1, v{t}""")
    vals = (0, 1, 4, 5, 8, 9, 12, 13)
    pairs = ("s[16:17]", "s[30:31]", "s[50:51]")
    for d in range(10):
        if d < 8:
            a(f"v_cmp_eq_u32 {pairs[d % 3]}, {vals[d]}, v{t}")
        if d >= 2:
            a(f"v_cndmask_b32 v{P + d - 2}, 0, v{u}, {pairs[(d - 2) % 3]}")
    a(f"ds_write_b128 v{vL16}, {vr(P, 4)} offset:{PERM}")
    a(f"ds_write_b128 v{vL16}, {vr(P + 4, 4)} offset:{PERM + 1024}")


def gemm_perm_get(P):
    if OPT["bfr"]:
        a(f"ds_read_b128 {vr(P, 4)}, v{vL16} offset:{PERM}")
        a(f"ds_read_b128 {vr(P + 4, 4)}, v{vL16} offset:{PERM + 1024}")


def gemm_reduce_bf(P, pre, post, quarter):
    side = a.capture(pre) if pre else []
    a.put(side[:9])
    side = side[9:]
    T = [104, 108, 112, 116]
    n = 0
    for rel in (1, 2, 3):
        for j in range(2):
            t = T[n % 4]
            n += 1
            for k in range(4):
                r = 16 * rel + 8 * j + 2 * k
                a(f"v_cvt_pk_bf16_f32 v{t + k}, v{r}, v{r + 1}")
            a(f"ds_write_b128 v{64 + rel}, {vr(t, 4)} offset:{RB + (rel - 1) * 2048 + j * 1024}")
            a.put(side[:3])
            side = side[3:]
    a.put(side)
    a.barrier()
    for k in range(6):
        a(f"ds_read_b128 {vr(16 + 4 * k, 4)}, v64 offset:{RB + k * 1024}")
    if post:
        post()
    for k in range(6):
        a(f"v_mfma_f32_32x32x16_bf16 v[0:15], {vr(P + 4 * (k % 2), 4)}, {vr(16 + 4 * k, 4)}, v[0:15]")
    if quarter:
        for q in range(4):
            quarter(q)


def gemm_reduce(pre=None, post=None, quarter=None, P=None):
    if OPT["bfr"]:
        return gemm_reduce_bf(P, pre, post, quarter)
    side = a.capture(pre) if pre else []
    wr = [[Ins(f"ds_write_b128 v{64 + rel}, {vr(16 * rel + 4 * q, 4)} offset:{RB + (rel - 1) * 4096 + q * 1024}")] for rel in (1, 2, 3) for q in range(4)]
    a.put(side[:9])
    put_all(wr[:3])
    m, rest = merge(side[9:], wr[3:], 0, 12)
    a.put(m)
    put_all(rest)
    a.barrier()
    for q in range(4):
        for k in range(3):
            a(f"ds_read_b128 {vr(16 + 16 * k + 4 * q, 4)}, v64 offset:{RB + k * 4096 + q * 1024}")
        if q == 1 and post:
            post()
    for q in range(4):
        for h in range(2):
            r = 4 * q + 2 * h
            a(f"v_pk_add_f32 {vr(16 + r, 2)}, {vr(16 + r, 2)}, {vr(32 + r, 2)}")
            a(f"v_pk_add_f32 {vr(r, 2)}, {vr(r, 2)}, {vr(48 + r, 2)}")
        for h in range(2):
            r = 4 * q + 2 * h
            a(f"v_pk_add_f32 {vr(r, 2)}, {vr(r, 2)}, {vr(16 + r, 2)}")
        if quarter:
            quarter(q)


def gemm1(layer, wide, pre=None, bg=()):
    H = H1 if layer == 0 else H3
    G = G1 if layer == 0 else G3
    gemm_addr()
    a(f"""s_lshr_b32 s{sT0}, s{sWAVE}, 1
s_lshl_b32 s{sT0}, s{sT0}, 6
s_lshl_b32 s{sT1}, s{sNT}, 7
s_add_u32 s{sT0}, s{sT0}, s{sT1}
v_lshrrev_b32 v16, 5, v{vLANE}
v_lshl_add_u32 v16, v16, 3, s{sT0}""")
    for q in range(4):
        a(f"global_load_dwordx2 {vr(20 + 2 * q, 2)}, v16, {sp(P_B1)} offset:{16 * q}")
    r = 32
    a(f"""s_lshl_b32 s{sT0}, s{sWAVE}, 5
v_and_b32 v{r + 2}, 31, v{vLANE}
v_add_u32 v{r + 2}, s{sT0}, v{r + 2}
v_and_b32 v{r + 3}, {31 & ~(32 // OPT['samp'] - 1)}, v{vLANE}
v_add_u32 v{r + 3}, s{sT0}, v{r + 3}
s_lshl_b32 s13, s{sDT1}, 7
s_add_u32 s13, s13, s{sT0}
s_lshl_b32 s13, s13, 11
s_add_u32 s13, s13, {H}""")
    if wide:
        a(f"v_lshrrev_b32 v{r + 2}, 1, v{r + 2}\nv_lshrrev_b32 v{r + 3}, 1, v{r + 3}")
    c0 = -2 * math.log2(math.e) * math.sqrt(2 / math.pi)
    a(f"""s_mov_b32 s{sCA}, {f32(c0 * 0.044715)}
s_mul_i32 s21, s{sDT1}, 112
s_lshl_b32 s{sT0}, s{sNT}, 2
s_add_u32 s21, s21, s{sT0}
s_and_b32 s{sT0}, s{sWAVE}, 2
s_add_u32 s21, s21, s{sT0}
s_lshl_b32 s21, s21, 11
s_add_u32 s21, s21, {G}""")
    gemm_reduce_prep()
    gemm_rot(32, sROT1)
    if pre:
        pre()
    for k in range(8):
        unpack(2 * k, 2 * k + 1, 20 + k)
    ein, eout = 2 + 4 * layer, 3 + 4 * layer
    if emode(ein) == "M":
        l1, l2 = label("m1"), label("m2")
        a(f"s_cmp_eq_u32 s{sRL0 if wide else sRL}, 0\ns_cbranch_scc1 {l1}")
        a.wait_tag("pub")
        a(f"s_branch {l2}")
        a(f"{l1}:")
        wait_edge(ein, r, r + 2, r + 3)
        a(f"{l2}:")
    else:
        wait_edge(ein, r, r + 2, r + 3)
    stamp(f"g1_{layer} go", 63)
    prod = f"s_mul_i32 s{sT0}, s{sDT1}, 28\ns_add_u32 s{sT0}, s{sT0}, s{sNT}\ns_lshl_b32 s{sT0}, s{sT0}, 6"
    early = hinted(eout) and OPT["h_g1"] < 0
    at = {30: gemm_reduce_addr, 28: lambda: gemm_perm_get(96)}
    if early:
        assert OPT["h_g1"] in (-1, -3, -4)
        at[32 + OPT["h_g1"]] = lambda: (hint_prep(eout + 10, prod, 104), hint_put(104))
    gemm_loop(32, 64, 14, lambda ks, nb: f"a[{(ks * 2 + nb) * 4}:{(ks * 2 + nb) * 4 + 3}]", False, sentinel(ein), at=at)
    count_out(120)
    stamp(f"g1_{layer} loop", 120)
    a.begin()
    late = hinted(eout) and not early

    def pre():
        a(f"v_mov_b32 v80, {f32(c0)}")
        if late:
            hint_prep(eout + 10, prod, 72)

    def gelu(q):
        if q % 2 == 0:
            return
        half = q // 2
        if late and OPT["h_g1"] == 1 and half == 0:
            hint_put(72)
        rs = range(8 * half, 8 * half + 8, 2)
        for r in rs:
            a(f"v_pk_mul_f32 {vr(16 + r, 2)}, {vr(r, 2)}, {vr(r, 2)}")
        for r in rs:
            a(f"v_pk_fma_f32 {vr(16 + r, 2)}, {vr(16 + r, 2)}, {sp(sCA)}, {vr(80, 2)} op_sel_hi:[1,0,0]")
        for r in rs:
            a(f"v_pk_mul_f32 {vr(16 + r, 2)}, {vr(16 + r, 2)}, {vr(r, 2)}")
        for r in rs:
            a(f"v_exp_f32 v{16 + r}, v{16 + r}\nv_exp_f32 v{17 + r}, v{17 + r}")
        for r in rs:
            a(f"v_pk_add_f32 {vr(16 + r, 2)}, {vr(16 + r, 2)}, 1.0 op_sel_hi:[1,0]")
        for r in rs:
            a(f"v_rcp_f32 v{16 + r}, v{16 + r}\nv_rcp_f32 v{17 + r}, v{17 + r}")
        for r in rs:
            a(f"v_pk_mul_f32 {vr(r, 2)}, {vr(r, 2)}, {vr(16 + r, 2)}")
        for r in rs:
            a(f"v_cvt_pk_bf16_f32 v{84 + r // 2}, v{r}, v{r + 1}")
        a(f"buffer_store_dwordx4 {vr(84 + 4 * half, 4)}, v{vA0}, {srd(S_WS)}, s21 offen offset:{2048 * half} sc1", tag="pub")
        if late and OPT["h_g1"] == 2 + half:
            hint_put(72)
    gemm_reduce(pre, (lambda: hint_put(72)) if (late and OPT["h_g1"] == 0) else None, gelu, 96)
    m, rest = merge(a.end(), list(bg), 0, OPT["ev_g1"])
    a.put(m)
    if not flagged(eout):
        a.barrier()
    else:
        flag_put(eout, prod, 40, "pub")
    for g in rest:
        a.put(g)


def gemm2(layer, bg=()):
    G = G1 if layer == 0 else G3
    gemm_addr()
    a(f"""s_lshr_b32 s{sT0}, s{sWAVE}, 1
s_lshl_b32 s{sT0}, s{sT0}, 5
s_lshl_b32 s{sT1}, s{sST}, 6
s_add_u32 s50, s{sT0}, s{sT1}
s_and_b32 s{sT1}, s{sWAVE}, 1
s_lshl_b32 s{sT1}, s{sT1}, 5
s_lshl_b32 s{sT2}, s{sDT2}, 6
s_add_u32 s51, s{sT1}, s{sT2}
s_lshr_b32 s{sT2}, s50, 5
s_mul_i32 s{sT2}, s{sT2}, {BS}
s_lshl_b32 s{sT1}, s51, 6
s_add_u32 s20, s{sT2}, s{sT1}
s_add_u32 s30, s20, {X1 if layer == 0 else X3}
v_and_b32 v16, 31, v{vLANE}
v_lshrrev_b32 v17, 5, v{vLANE}
s_lshl_b32 s{sT0}, s50, 1""")
    r = 42

    def residual_issue():
        if layer == 0:
            for q in range(4):
                a(f"buffer_load_dwordx2 {vr(20 + 2 * q, 2)}, v18, {srd(S_WS)}, s30 offen offset:{16 * q} sc1")
        else:
            a(f"s_mov_b32 m0, s31")
            a(f"buffer_load_dwordx4 v{vL16}, {srd(S_WS)}, s30 offen sc1 lds", res_w=["x3"])
            a(f"buffer_load_dwordx4 v{vL16}, {srd(S_WS)}, s30 offen offset:1024 sc1 lds", res_w=["x3"])

    def residual_use():
        if layer == 0:
            for k in range(8):
                unpack(2 * k, 2 * k + 1, 20 + k)
            for k in range(8):
                unpack(40, 41, 28 + k)
                a(f"v_pk_add_f32 {vr(2 * k, 2)}, {vr(2 * k, 2)}, v[40:41]")
        else:
            for q in range(4):
                a(f"ds_read_b64_tr_b16 {vr(20 + 2 * q, 2)}, v31 offset:{512 * q}", res_r=["x3"])
            a("v_lshlrev_b32 v40, 16, v29")
            for k in range(8):
                unpack(2 * k, 2 * k + 1, 20 + k)
                a(f"v_pk_add_f32 {vr(2 * k, 2)}, {vr(2 * k, 2)}, v[40:41] op_sel_hi:[1,0]")

    if layer == 0:
        a(f"v_lshlrev_b32 v18, 6, v16\nv_lshl_add_u32 v18, v17, 3, v18\nv_lshl_add_u32 v19, v17, 3, s{sT0}")
        for q in range(4):
            a(f"global_load_dwordx2 {vr(28 + 2 * q, 2)}, v19, {sp(P_B2)} offset:{16 * q}")
    else:
        a(f"""v_and_b32 v19, 3, v{vLANE}
s_lshl_b32 s31, s{sWAVE}, 11
v_lshl_add_u32 v28, v16, 1, s{sT0}
global_load_ushort v29, v28, {sp(P_B2)}
v_bfe_u32 v31, v{vLANE}, 2, 2
v_lshl_add_u32 v31, v17, 2, v31
v_lshlrev_b32 v31, 6, v31
v_bfe_u32 v30, v{vLANE}, 4, 1
v_lshl_add_u32 v31, v30, 5, v31
v_lshl_add_u32 v31, v19, 3, v31
v_add_u32 v31, s31, v31""")
    a(f"""s_mul_i32 s{sT0}, s{sDT2}, 28
s_mul_i32 s{sT1}, s{sWAVE}, 7
s_add_u32 s{sT0}, s{sT0}, s{sT1}
v_min_u32 v{r + 2}, 6, v{vLANE}
v_add_u32 v{r + 2}, s{sT0}, v{r + 2}
v_mov_b32 v{r + 3}, v{r + 2}
s_lshl_b32 s13, s{sT0}, 13
s_add_u32 s13, s13, {G}""")
    if layer == 0:
        a(f"""s_add_u32 s21, s20, {X2}
s_lshl_b32 s19, s50, 1
s_add_u32 s19, s19, {ST1}""")
    else:
        a(f"s_mul_i32 s{sT0}, s50, 896\ns_lshl_b32 s{sT1}, s51, 1\ns_add_u32 s21, s{sT0}, s{sT1}")
    gemm_reduce_prep()
    gemm_rot(28, sROT2)
    lskip, ljoin = label("res"), label("resj")
    a(f"s_cmp_eq_u32 s{sR1}, 0")
    a(f"s_cbranch_scc1 {lskip}")
    residual_issue()
    residual_use()
    if emode(3 + 4 * layer) == "M":
        a.wait_tag("pub")
    else:
        wait_edge(3 + 4 * layer, r, r + 2, r + 3)
    a(f"s_branch {ljoin}")
    a(f"{lskip}:")
    eln = 2 + 4 * layer
    if OPT["rese"] and hinted(eln) and OPT["h_ln"] >= 2:
        wide = OPT["ln1w"] if layer else OPT["ln0w"]
        a(f"s_lshl_b32 s{sT0}, s{sST}, {1 if wide else 2}\nv_and_b32 v48, {1 if wide else 3}, v{vLANE}\nv_add_u32 v48, s{sT0}, v48")
        poll_issue(eln + 10, 46)
        poll_take(46)
        residual_issue()
        residual_use()
        wait_edge(3 + 4 * layer, r, r + 2, r + 3)
    else:
        wait_edge(3 + 4 * layer, r, r + 2, r + 3)
        residual_issue()
        residual_use()
    a(f"{ljoin}:")
    stamp(f"g2_{layer} go", 63)
    gemm_loop(28, 64, 10, lambda ks, nb: vr(128 + (ks * 2 + nb) * 4, 4), layer == 1, sentinel(3 + 4 * layer), lds_from=16, at={26: gemm_reduce_addr, 25: lambda: gemm_perm_get(88)}, bg=bg)
    count_out(120)
    stamp(f"g2_{layer} loop", 120)

    def addr():
        a(f"v_and_b32 v68, 31, v{vLANE}\nv_lshrrev_b32 v69, 5, v{vLANE}")
        if layer == 0:
            a(f"""v_and_b32 v70, 15, v{vLANE}
v_lshlrev_b32 v70, 6, v70
v_lshl_add_u32 v70, v69, 4, v70
v_bfe_u32 v71, v{vLANE}, 4, 1
v_lshl_add_u32 v70, v71, 5, v70
v_bfe_u32 v71, v{vLANE}, 2, 2
v_lshlrev_b32 v71, 4, v71
v_bfe_u32 v68, v{vLANE}, 4, 1
v_lshl_add_u32 v71, v68, 3, v71
v_and_b32 v68, 1, v{vLANE}
v_lshl_add_u32 v71, v68, 2, v71
v_bfe_u32 v68, v{vLANE}, 1, 1
v_lshl_add_u32 v68, v69, 1, v68
v_lshl_add_u32 v71, v68, 12, v71""")
        else:
            a(f"v_mul_u32_u24 v70, 896, v68\nv_lshl_add_u32 v70, v69, 4, v70")
    prod = f"s_lshl_b32 s{sT0}, s{sDT2}, 5\ns_add_u32 s{sT0}, s{sT0}, s{sST}\ns_lshl_b32 s{sT0}, s{sT0}, 6"
    hn = layer == 0 and hinted(4)

    def pre():
        addr()
        if hn:
            hint_prep(14, prod, 80)
    gemm_reduce(pre, (lambda: hint_put(80)) if (hn and OPT["h_g2"] == 0) else None, None, 88)
    if hn and OPT["h_g2"] == 1:
        hint_put(80)
    PK = 72
    stamp(f"g2_{layer} red", 120)
    for half in range(2):
        b = PK + 4 * half
        for k in range(4):
            a(f"v_cvt_pk_bf16_f32 v{b + k}, v{8 * half + 2 * k}, v{8 * half + 2 * k + 1}")
        a(f"v_permlane32_swap_b32 v{b}, v{b + 2}")
        a(f"v_permlane32_swap_b32 v{b + 1}, v{b + 3}")
        if layer == 1:
            a(f"buffer_store_dwordx4 {vr(b, 4)}, v70, {srd(S_OUT)}, s21 offen offset:{32 * half} {('', 'nt', 'sc1')[OPT['ofl']]}")
    if layer == 1:
        return
    for k in range(4):
        a(f"v_permlane16_swap_b32 v{PK + k}, v{PK + 4 + k}")
    for half in range(2):
        a(f"buffer_store_dwordx4 {vr(PK + 4 * half, 4)}, v70, {srd(S_WS)}, s21 offen offset:{1024 * half} sc1", tag="pub")
    if hn and OPT["h_g2"] == 2:
        hint_put(80)
    for k in range(8):
        a(f"v_pk_mul_f32 {vr(20 + 2 * k, 2)}, {vr(2 * k, 2)}, {vr(2 * k, 2)}")
    res = reduce32(list(range(16)) + list(range(20, 36)), 16, list(range(40, 48)))
    assert res == [0, 1, 2, 3]
    a(f"""v_cndmask_b32 v0, v0, v1, {sp(sM1)}
v_cndmask_b32 v2, v2, v3, {sp(sM1)}
v_cndmask_b32 v0, v0, v2, {sp(sM2)}""")
    a(f"buffer_atomic_add_f32 v0, v71, {srd(S_WS)}, s19 offen sc1", tag="pub")
    if hn and OPT["h_g2"] == 3:
        hint_put(80)
    stamp("g2_0 atom", 120)
    flag_put(4, prod, 40, "pub")
    stamp("g2_0 flag", 120)


def skip_unless(role):
    l = label("skip")
    a(f"s_cmp_eq_u32 s{role}, 0")
    a(f"s_cbranch_scc1 {l}")
    return l


def dmas(n0, n1):
    return [w_dma(n, h) for n in range(n0, n1) for h in range(2)]


def tr_dma(n0, n1):
    g = []
    for n in range(n0, n1):
        g.append(w_tr(n))
        if n > n0:
            g += dmas(n + 11, n + 12)
    g += dmas(n1 + 11, n1 + 12)
    return g


def wseq():
    nB = OPT["wB"] // 2
    assert 36 <= nB <= 60
    g = dmas(0, 12) + tr_dma(0, nB - 12)
    lastT = 48 if (nB >= 48 and OPT["wT"]) else 32 + OPT["wg"]
    g += [w_tr(n) for n in range(nB - 12, lastT)]
    g.append([])
    d = nB
    for n in range(max(lastT, nB - 12), 49):
        while d < min(n + 11, 60) or (n == 48 and d < 60):
            g += dmas(d, d + 1)
            d += 1
        if n < 48:
            g.append(w_tr(n))
    return g


def wcut(n_dma):
    k = 0
    for p, g in enumerate(wseq()):
        if k == n_dma:
            return p
        k += any(i.kind == "dma" for i in g)
    return len(wseq())


def put_all(gs):
    for g in gs:
        a.put(g)


def w2_touch(r):
    return [Ins(f"v_lshlrev_b32 v{r}, 12, v{vLANE}"), Ins(f"buffer_load_dword v{r}, v{r}, {srd(S_W2)}, s{sW2O} offen")]


def upad():
    a(f"""v_mov_b32 v32, 0
v_mov_b32 v33, 0
v_mov_b32 v34, 0
v_mov_b32 v35, 0
s_and_b32 s{sT0}, s{sWAVE}, 1
s_mul_i32 s{sT0}, s{sT0}, {UST}
v_add_u32 v36, s{sT0}, v{vL16}
ds_write_b128 v36, v[32:35] offset:{UB}""")


def build():
    global RB
    if OPT["bfr"] and OPT["keepk"]:
        RB = UB
    g = OPT["wg"]
    WORDER[:] = list(range(0, g)) + list(range(32, 32 + g)) + list(range(g, 32)) + list(range(32 + g, 60))
    if OPT["w2t"]:
        WORDER[:] = list(range(60))
    cA, cP, cL, cB = wcut(OPT["wA"]), wcut(OPT["wP"]), wcut(OPT["wL"]), wseq().index([])
    cK = wcut(OPT["wK"])
    prologue()
    laux, ljoin = label("aux"), label("join")
    a(f"s_cmp_eq_u32 s{sRC}, 0")
    a(f"s_cbranch_scc1 {laux}")
    stamp("args", 2)
    xt_loads()
    kgen_table_load()
    code_warm(1)
    page_warm(88)
    w_setup()
    put_all(wseq()[:cA])
    conv_setup(0)
    stamp("start", 2)

    xt_poll_addr(63, 2)
    xt_work()
    stamp("xt", 2)

    def h_flag():
        nonce_take()
        flag_put(0, sPAIR, 104, "st0")
        stamp("flag", 0)
        a(f"global_load_dwordx4 {vr(TAB, 4)}, v75, {sp(sTAB)}")
        a(f"global_load_dwordx4 {vr(TAB + 4, 4)}, v75, {sp(sTAB)} offset:16")
        a(f"global_load_dwordx2 v[0:1], v75, {sp(sTAB)} offset:32")

    hooks = {}
    dbg = tuple((p, (lambda p=p: stamp(f"hook{p}", 65))) for p in (0, 1, 2, 5)) if OPT["stamps"] == 1 else ()
    for pos, fn in dbg + ((OPT["h_flag"], h_flag), (OPT["h_w"], lambda: KBG.extend(wseq()[cA:cK] + ([w2_touch(75)] if OPT["w2t"] else []))), (OPT["h_poll"], lambda: poll_issue(0, 64, 63))):
        hooks.setdefault(pos, []).append(fn)
    assert OPT["h_flag"] <= OPT["h_w"] and OPT["h_poll"] >= 6
    kgen({k: (lambda fs=fs: [f() for f in fs]) for k, fs in hooks.items()})
    dump_lds(1)
    stamp("kgen", 21)

    def mid():
        poll_take(64, 63)
        stamp("e1 seen", 0)
        conv_loads()
    wr = kexpand(mid)
    if OPT["mixpro"]:
        mv = [i for i in wr if i.kind != "dsw"]
        st = [i for i in wr if i.kind == "dsw"]
        pro = a.capture(conv_pro, 0)
        k = next(n for n, i in enumerate(pro) if i.defs & {f"v{r}" for r in range(0, 22)})
        a.put(mv)
        a.put(st[2:4])
        head, rest = merge(pro[:k], [[i] for i in st[4:6] + st[:2] + st[6:]], 0, 14)
        a.put(head)
        early = [g for g in rest if g[0].uses & {f"v{r}" for r in range(0, 22)}]
        put_all(early)
        rest = [g for g in rest if g not in early]
        k2 = next(n for n, i in enumerate(pro) if i.kind == "dsw")
        mid2, rest = merge(pro[k:k2], rest, 0, 30)
        put_all(rest)
        m3, rest = merge(mid2 + pro[k2:], wseq()[cK:cP], 50, OPT["ev_pro"])
        a.put(m3)
        put_all(rest)
        stamp("expand", 111)
    else:
        a.put(wr)
        stamp("expand")
        conv_pro(0)
    if sentinel(1):
        a(f"v_min_u32 v{cvP + 2}, 27, v{vLANE}")
        poll_issue(8, cvP)
    a.barrier()
    dump_lds(2)
    stamp("conv0 go", 111)
    put_all(conv_main(0, wseq()[cP:cL], OPT["st_conv"], OPT["ev_conv"]))
    stamp("conv0 done")
    a(f"s_branch {ljoin}")
    a(f"{laux}:")
    aux_loads()
    kgen_table_addr()
    code_warm(1)
    page_warm(88)
    w_setup()
    aux_work()
    stamp("aux e1")
    if OPT["g7"] == 1:
        lg = label("g7")
        a(f"""s_cmp_lg_u32 s{sR1}, 0
s_cbranch_scc1 {lg}
s_lshr_b32 s{sT0}, s{sX}, 2
s_sub_u32 s{sT0}, s{sJ}, s{sT0}
s_sub_u32 s{sT0}, s{sT0}, 28
s_lshl_b32 s{sT0}, s{sT0}, 3
s_add_u32 s{sT0}, s{sT0}, s{sX}
s_lshl_b32 s{sT0}, s{sT0}, 7
s_mul_i32 s{sT1}, s{sWAVE}, {512 * 3584}
s_add_u32 s{sT0}, s{sT0}, s{sT1}
s_add_u32 s{sT0}, s{sT0}, {448 * 3584}
v_mul_u32_u24 v90, 3584, v{vLANE}
v_add_u32 v90, s{sT0}, v90""")
        a(f"global_load_dword v90, v90, {sp(P_W1)}")
        a(f"{lg}:")
    if armed(0):
        lnf = label("nf")
        a(f"s_cmp_lg_u32 s{sR1}, 0\ns_cbranch_scc1 {lnf}")
        if OPT["map18"] == 1:
            a(f"s_sub_u32 s16, s{sAUX}, 4\ns_cselect_b32 s16, s{sAUX}, s16")
        else:
            a(f"s_lshr_b32 s16, s{sAUX}, 1\ns_sub_u32 s17, s{sAUX}, 4\ns_cmp_lt_u32 s{sAUX}, 8\ns_cselect_b32 s16, s16, s17")
        if sentinel(1):
            fill(X1, 17, 80, 16, 28 * 4096, "fill")
            flag_put(8, 16, 72, "fill")
        if sentinel(2) or sentinel(3):
            if sentinel(2):
                fill(H1, 16, 80, 16, 28 * 4096, "fill")
            if sentinel(3):
                fill(G1, 14, 80, 16, 28 * 4096, "fill")
            flag_put(18, 16, 72, "fill")
        a(f"{lnf}:")
    stamp("aux fill")
    if OPT["g7"] == 2:
        lg = label("g7")
        a(f"""s_cmp_lg_u32 s{sR1}, 0
s_cbranch_scc1 {lg}
s_lshr_b32 s{sT0}, s{sX}, 2
s_sub_u32 s{sT0}, s{sJ}, s{sT0}
s_sub_u32 s{sT0}, s{sT0}, 28
s_lshl_b32 s{sT0}, s{sT0}, 3
s_add_u32 s{sT0}, s{sT0}, s{sX}
s_lshl_b32 s{sT0}, s{sT0}, 7
s_mul_i32 s{sT1}, s{sWAVE}, {512 * 3584}
s_add_u32 s{sT0}, s{sT0}, s{sT1}
s_add_u32 s{sT0}, s{sT0}, {448 * 3584}
v_mul_u32_u24 v90, 3584, v{vLANE}
v_add_u32 v90, s{sT0}, v90""")
        a(f"global_load_dword v90, v90, {sp(P_W1)}")
        a(f"{lg}:")
    cX = min(wcut(64 + 2 * OPT["wg"]), cB)
    if OPT["w2t"]:
        a.put(w2_touch(75))
    put_all(wseq()[:cX])
    if sentinel(1):
        a(f"v_min_u32 v62, 27, v{vLANE}")
        poll_issue(8, 60)
        poll_take(60)
    a.wait_vm0()
    stamp("aux w")
    a(f"{ljoin}:")
    for layer in range(2):
        if layer == 1:
            l = skip_unless(sRC)
            conv_setup(1)
            conv_poll1()
            stamp("conv1 ready")
            if OPT["kc_in"] and not hinted(4):
                a.wait_tag("flag")
                poll_issue(4, cvP)
                kcopies()
                poll_take(cvP)
            else:
                upad() if RB == UB else kcopies()
                if emode(4) == "G":
                    lg = label("gt")
                    a(f"s_cmp_lg_u32 s{sR2}, 0\ns_cbranch_scc1 {lg}")
                    poll_issue(14, cvP, cvP + 3)
                    poll_take(cvP, cvP + 3)
                    a(f"{lg}:")
                    a.wait_tag("flag")
                    poll_issue(4, cvP)
                    poll_take(cvP)
                else:
                    wait_edge(4, cvP, cvP + 2, cvP + 3)
            stamp("conv1 poll")
            conv_loads()
            conv_pro(1)
            if armed(1):
                a(f"v_and_b32 v{cvP + 2}, 31, v{vLANE}")
                poll_issue(9, cvP)
            a.barrier()
            dump_lds(3)
            stamp("conv1 go", 111)
            conv_main(1)
            stamp("conv1 done")
            if armed(1):
                lj = label("cvj")
                a(f"s_branch {lj}")
                a(f"{l}:")
                a(f"v_and_b32 v62, 31, v{vLANE}")
                poll_issue(9, 60)
                poll_take(60)
                a(f"{lj}:")
            else:
                a(f"{l}:")
        wide = OPT["ln1w"] if layer else OPT["ln0w"]
        l = skip_unless(sRL0 if wide else sRL)
        ln(layer, wide)
        stamp(f"ln{layer} done")
        a(f"{l}:")
        if layer == 0:
            gemm_perm(0)
            l = skip_unless(sRC)
            put_all(wseq()[cL:cX])
            a(f"{l}:")
            rest = wseq()[cX:cB]
            k = max(0, len(rest) - 12)
            put_all(rest[:k])
            if sentinel(2) or sentinel(3):
                a(f"v_min_u32 v62, 27, v{vLANE}")
                poll_issue(18, 60)
            put_all(rest[k:])
            if sentinel(2) or sentinel(3):
                poll_take(60)
            stamp("w B")
            tail = wseq()[cB:]
            assert not any(i.kind == "dsr" and "a[" in i.text for g in tail for i in g)
            lelse, lj = label("ng1"), label("g1j")
            a(f"s_cmp_eq_u32 s{sR1}, 0")
            a(f"s_cbranch_scc1 {lelse}")
            gemm1(0, wide, None, [] if OPT["t2"] else tail)
            nonce_retire()
            stamp("g1_0 done")
            a(f"s_branch {lj}")
            a(f"{lelse}:")
            put_all([] if OPT["t2"] else wseq()[cB:])
            a(f"{lj}:")
        else:
            l = skip_unless(sR1)
            gemm1(1, wide)
            stamp("g1_1 done")
            a(f"{l}:")
        l = skip_unless(sR2)
        gemm2(layer, [g for g in wseq()[cB:] if g] if (layer == 0 and OPT["t2"]) else [])
        if layer == 0 and armed(1):
            lj = label("g2j")
            a(f"s_branch {lj}")
            a(f"{l}:")
            if OPT["map18"]:
                a(f"s_lshl_b32 s16, s{sX}, 2\ns_add_u32 s16, s16, s{sJ}")
            else:
                a(f"s_lshr_b32 s16, s{sX}, 1\ns_lshl_b32 s16, s16, 3\ns_add_u32 s16, s16, s{sJ}")
            for base, n, e in ((X3, 15, 5), (H3, 14, 6), (G3, 13, 7)):
                if sentinel(e):
                    fill(base, n, 72, 16, CH)
            flag_put(9, 16, 8, "st0")
            a(f"{lj}:")
        else:
            a(f"{l}:")
        stamp("g2_0 done" if layer == 0 else "end")
    if OPT["stamps"] and OPT["dbgwg"] < 0:
        l = label("ls")
        a(f"s_cmp_lg_u32 s{sWAVE}, 0\ns_cbranch_scc1 {l}\ns_waitcnt vmcnt(0)\ns_memrealtime {sp(sSTAMP)}\ns_waitcnt lgkmcnt(0)")
        a(f"s_lshl_b32 s3, s2, 8\ns_add_u32 s3, s3, {STAMPS + 248}\nv_mov_b32 v0, s101\nv_mov_b32 v1, s{sSTAMP}\ns_mov_b64 exec, 1")
        a(f"buffer_store_dwordx2 v[0:1], off, {srd(S_WS)}, s3")
        a(f"{l}:")
    if OPT["fixdur"]:
        a(f"s_waitcnt vmcnt(0) lgkmcnt(0)\nL_fix:\ns_memrealtime s[28:29]\ns_waitcnt lgkmcnt(0)\ns_sub_u32 s28, s28, s101\ns_cmp_lt_u32 s28, {OPT['fixdur']}\ns_cbranch_scc1 L_fix")
    a("s_endpgm")


def bf16_round_int(l):
    b = struct.unpack("<I", struct.pack("<f", float(l)))[0]
    b = (b + 0x7FFF + ((b >> 16) & 1)) & 0xFFFF0000
    return int(struct.unpack("<f", struct.pack("<I", b))[0])


def ktab():
    vals = []
    for c in range(2):
        for x in range(2048):
            lr = bf16_round_int(2047 - x)
            aa, rem = lr >> 7, lr & 127
            j, e = rem >> 3, rem & 7
            if aa < 2:
                rho = 8 * aa + e
            elif aa < 4:
                rho = 4 * aa + 8 + (e >> 1)
            elif aa < 8:
                rho = 16 + 2 * aa + (e >> 2)
            else:
                rho = 24 + aa
            vals.append((rho >> 2) * 256 + j * 16 + (rho & 3) * 4 + c * 2 * GST)
        vals += [3072 + c * 2 * GST] * 16
    lines = []
    for i in range(0, len(vals), 16):
        lines.append("    .short " + ", ".join(str(v) for v in vals[i:i + 16]))
    return "\n".join(lines)


DOC = """;
;   gemm1 : gelu(h^T W1 + b1), 64x64 tile per workgroup, K split over the waves, W1 tile resident in AGPRs
;   gemm2 : x + g W2 + b2, W2 tile resident in VGPRs + LDS; per-token sums for the next LayerNorm by atomics
; Every wait is bounded.  Generated by the author's own script (register allocation and schedule are explicit).
"""


def main(path):
    build()
    ins = a.finish()
    ref = open(f"cdna_kernels/{NAME}.s.ref").read().split("\n")
    head = [l for l in ref if l.startswith(";") and "@launch" not in l and not l.startswith("; Override") and not l.startswith("; grid=ceil")]
    k = NAME + "_kernel"
    s = "\n".join(head) + f"\n; @launch grid=(256,1,1) block=(256,1,1) lds={LDS_BYTES}\n"
    s += DOC
    s += f""".amdgcn_target "amdgcn-amd-amdhsa--gfx950"
.text
.globl {k}
.p2align 8
.type {k},@function
{k}:
L_entry:
"""
    s += Prog.render(ins)
    s += "".join((l if l.endswith(":") else "    " + l) + "\n" for l in STUBS)
    s += f""".p2align 6
.type ktab,@object
ktab:
{ktab()}
.size ktab, 8256
.section .rodata,"a"
.p2align 6
.amdhsa_kernel {k}
  .amdhsa_next_free_vgpr 512
  .amdhsa_next_free_sgpr 102
  .amdhsa_accum_offset 256
  .amdhsa_group_segment_fixed_size 0
  .amdhsa_kernarg_size 136
  .amdhsa_user_sgpr_count 2
  .amdhsa_user_sgpr_kernarg_segment_ptr 1
  .amdhsa_system_sgpr_workgroup_id_x 1
  .amdhsa_float_denorm_mode_32 3
.end_amdhsa_kernel
"""
    open(path, "w").write(s)
    n = sum(1 for i in ins if i.kind not in ("label", "comment"))
    open(path + ".names", "w").write("\n".join(STAMP_NAMES))
    print("instructions:", n, "nops:", sum(1 for i in ins if i.kind == "nop"), "waits:", sum(1 for i in ins if i.kind == "wait"))


if __name__ == "__main__":
    path = sys.argv[1]
    for kv in sys.argv[2:]:
        k, v = kv.split("=")
        OPT[k] = v if k in ('em', 'probe') else int(v)
    main(path)
```

```python
import sys, math, struct
from asmlib import *

NAME = "interleave_layers__ssm_conv_s4__mixer_token_mlp__prompt"
OPT = dict(stamps=False, stop=99, upfront=True, dump=0, dbgwg=-1, fixdur=0, em='FSSFDSS', warm=1, h_flag=2, h_w=2, h_poll=9, h_ln=2, h_cv=0, h_g1=0, h_g2=3, rot=1, wA=0, wK=8, wP=8, wL=16, wB=120, wT=1, lag=2, gap=3, st_conv=100, ev_conv=150, ev_g1=100000, fill0=14, ln1w=0, ln0w=1, chk=1, samp=8, map18=1, ofl=0, tailord=1, cv=1, clk=0, ev_kg=150, mixpro=1, now=0, probe='', kc_in=0, w2t=0, g7=0, rl=4, bfr=1, wg=4, slp=0, ev_pro=30, t2=0, bg0=0, tlb=0, rese=0, lnd=1, keepk=0, fake16=0, wnt=1, wnta=0, fnt=0, pnt=0, xnt=0)
DBG_SEL = ['start', 'kgen', 'conv0 go', 'ln0 go', 'g1_0 go', 'g1_0 loop', 'g2_0 go', 'g2_0 loop', 'conv1 poll', 'ln1 go', 'g1_1 go', 'g2_1 go', 'end']
STAMP_NAMES = []

EPOCH = 0
ST0 = 0x1000
ST1 = 0x8000
STAMPS = 0x20000
FL = 0x100000
BS = 448 * 64 + 128
CH = 0x20000
X1, H1, G1, X3, H3, G3, X2, X0 = (0x400000 + 0x200000 * i for i in range(8))
FILL1, FILL3 = 6, 36
WS_BYTES = 268435456
OOB = 0x40000000

KST = 4160
KSLOT = {0: [0, 5, 2, 3], 1: [1, 6, 7, 4]}
UB = 8 * KST
UPAD = 1024
UST = 4096 + UPAD
ZB = UB + 2 * UST
EX = 2 * KST
RB = 2 * KST
GST = 15616
GROW = 272
TOFF = 12288
LNP = 57472
PERM = 61440
W2L = 65536
LDS_BYTES = 163840

sWAVE, sX, sJ, sPAIR, sDT1, sNT, sDT2, sST, sLN = 4, 5, 6, 7, 8, 9, 10, 11, 12
sNONCE = 14
P_U, P_ARE, P_AIM, P_BRE, P_BIM, P_CRE, P_CIM, P_LDT = 16, 18, 20, 22, 24, 26, 28, 30
P_DSK, P_W1, P_B1, P_W2, P_B2, P_OUT, P_DBG, P_WS = 32, 36, 38, 40, 42, 44, 46, 48
S_WS, S_W1, S_W2, S_X0, S_OUT = 52, 56, 60, 64, 68
sD0, sD1 = 72, 74
sLDT = 76
sEP = 78
sWOFF, sT0, sT1, sT2, sT3, sCNT = 80, 81, 82, 83, 84, 85
sRC, sR1, sR2, sRL = 86, 87, 88, 89
sM1, sM2 = 90, 92
sSTAMP = 94
sTAB = 96
sLN0, sRL0 = 77, 73
sCA, sCB = 34, 100

vLANE, vL16, vT2a, vT2b, vT1a, vT1b, vD1, vD2 = 127, 126, 125, 124, 123, 122, 121, 120
vA0, vA1 = 123, 122


def srd(n):
    return f"s[{n}:{n + 3}]"


def sp(n):
    return f"s[{n}:{n + 1}]"


def vr(n, k):
    return f"v[{n}:{n + k - 1}]" if k > 1 else f"v{n}"


def f32(x):
    return "0x%08x" % struct.unpack("<I", struct.pack("<f", x))[0]


a = Prog()
_lab = [0]


def label(p):
    _lab[0] += 1
    return f"L_{p}_{_lab[0]}"


_stamp = [0]


def stamp(name, r=1):
    k = _stamp[0]
    _stamp[0] += 1
    STAMP_NAMES.append(name)
    a("; MARK after " + name)
    if OPT["probe"] == name.replace(" ", "_"):
        a(f"s_memrealtime {sp(sSTAMP)}\ns_waitcnt lgkmcnt(0)\ns_mov_b32 s101, s{sSTAMP}")
    if OPT["stamps"] != 1:
        return
    l = label("st")
    if OPT["dbgwg"] >= 0:
        if name not in DBG_SEL:
            return
        a(f"s_lshl_b32 s3, s{sWAVE}, 8\ns_add_u32 s3, s3, s2\ns_cmp_lg_u32 s3, {OPT['dbgwg']}\ns_cbranch_scc1 {l}")
        a(f"s_memrealtime {sp(sSTAMP)}")
        a("s_waitcnt lgkmcnt(0)")
        a(f"s_mov_b64 exec, 1\nv_mov_b32 v{r}, s{sSTAMP}\ns_mov_b32 s{sSTAMP}, s{P_DBG}\ns_mov_b32 s{sSTAMP + 1}, s{P_DBG + 1}\ns_mov_b32 s{sSTAMP + 2}, 256\ns_mov_b32 s{sSTAMP + 3}, 0x20000".replace(f"s{sSTAMP}, s{P_DBG}", f"s64, s{P_DBG}").replace(f"s{sSTAMP + 1}, s{P_DBG + 1}", f"s65, s{P_DBG + 1}").replace(f"s{sSTAMP + 2}, 256", "s66, 256").replace(f"s{sSTAMP + 3}, 0x20000", "s67, 0x20000"))
        a(f"buffer_store_dword v{r}, off, s[64:67], 0 offset:{12 + 4 * DBG_SEL.index(name)} sc1", optional=True)
        a("s_mov_b64 exec, -1")
        a(f"{l}:")
        return
    a(f"s_cmp_lg_u32 s{sWAVE}, 0")
    a(f"s_cbranch_scc1 {l}")
    a(f"{'s_memtime' if OPT['clk'] else 's_memrealtime'} {sp(sSTAMP)}")
    a("s_waitcnt lgkmcnt(0)")
    a(f"s_lshl_b32 s3, s2, 8")
    a(f"s_add_u32 s3, s3, {STAMPS + 4 * k}")
    a(f"v_mov_b32 v{r}, s{sSTAMP}")
    a("s_mov_b64 exec, 1")
    a(f"buffer_store_dword v{r}, off, {srd(S_WS)}, s3", optional=True)
    a("s_mov_b64 exec, -1")
    a(f"{l}:")


_cnt = [0]


def count_out(r):
    if OPT["stamps"] != 1:
        return
    k = _cnt[0]
    _cnt[0] += 1
    a(f"s_lshl_b32 s3, s2, 2\ns_add_u32 s3, s3, s{sWAVE}\ns_lshl_b32 s3, s3, 5\ns_add_u32 s3, s3, {STAMPS + 0x10000 + 4 * k}")
    a(f"v_mov_b32 v{r}, s{sCNT}\ns_mov_b64 exec, 1")
    a(f"buffer_store_dword v{r}, off, {srd(S_WS)}, s3")
    a("s_mov_b64 exec, -1")


DUMP = 0x2000000


def dump_lds(point, r=96):
    if OPT["dump"] != point:
        return
    a.barrier()
    a(f"s_lshl_b32 s3, s{sWAVE}, 10\nv_add_u32 v{r + 4}, s3, v{vL16}\ns_lshl_b32 s3, s2, 16\ns_add_u32 s3, s3, {DUMP}")
    for i in range(16):
        a(f"ds_read_b128 {vr(r, 4)}, v{r + 4} offset:{i * 4096}")
        a(f"buffer_store_dwordx4 {vr(r, 4)}, v{r + 4}, {srd(S_WS)}, s3 offen")
        a("s_add_u32 s3, s3, 4096")
        a.wait_vm0()
    a.barrier()


def cmul(d, x, y):
    return [f"v_pk_mul_f32 {vr(d, 2)}, {vr(x, 2)}, {vr(y, 2)} op_sel:[1,1] op_sel_hi:[1,0] neg_lo:[0,1]",
            f"v_pk_fma_f32 {vr(d, 2)}, {vr(x, 2)}, {vr(y, 2)}, {vr(d, 2)} op_sel_hi:[0,1,1]"]


def cmul2(p, q=None):
    x = cmul(*p)
    if q is None:
        a(x[0]); a(x[1])
        return
    y = cmul(*q)
    a(x[0]); a(y[0]); a(x[1]); a(y[1])


def unpack(dlo, dhi, s):
    a(f"v_lshlrev_b32 v{dlo}, 16, v{s}")
    a(f"v_and_b32 v{dhi}, s0, v{s}")


def prologue():
    a("s_cmp_lt_u32 s2, 256")
    a("s_cbranch_scc1 L_start")
    a("s_endpgm")
    a("L_start:")
    if OPT["fixdur"] or OPT["stamps"]:
        a("s_memrealtime s[50:51]")
    a("s_load_dwordx16 s[16:31], s[0:1], 0")
    a("s_load_dwordx16 s[32:47], s[0:1], 64")
    a("s_load_dwordx2 s[48:49], s[0:1], 128")
    a(f"v_lshrrev_b32 v1, 6, v0")
    a(f"v_and_b32 v{vLANE}, 63, v0")
    a(f"v_readfirstlane_b32 s{sWAVE}, v1")
    a(f"v_lshlrev_b32 v{vL16}, 4, v{vLANE}")
    a(f"""s_and_b32 s{sX}, s2, 7
s_lshr_b32 s{sJ}, s2, 3
s_add_u32 s{sJ}, s{sJ}, 28
s_and_b32 s{sJ}, s{sJ}, 31
""")
    a(f"""s_lshr_b32 s{sT0}, s{sX}, 2
s_mul_i32 s{sPAIR}, s{sX}, 28
s_sub_u32 s{sRC}, s{sJ}, s{sT0}
s_add_u32 s{sPAIR}, s{sPAIR}, s{sRC}
s_cmp_lt_u32 s{sRC}, 28
s_cselect_b32 s{sRC}, 1, 0
s_mul_i32 s{sT2}, s{sJ}, 37
s_lshr_b32 s{sT2}, s{sT2}, 8
s_mul_i32 s{sT3}, s{sT2}, 7
s_sub_u32 s{sDT1}, s{sJ}, s{sT3}
s_lshl_b32 s{sNT}, s{sT2}, 3
s_add_u32 s{sNT}, s{sNT}, s{sX}
s_sub_u32 s{sT1}, s{sJ}, 4
s_cselect_b32 s{sR2}, 0, 1
s_and_b32 s{sT1}, s{sT1}, 31
s_mul_i32 s{sT2}, s{sT1}, 37
s_lshr_b32 s{sT2}, s{sT2}, 8
s_mul_i32 s{sT3}, s{sT2}, 7
s_sub_u32 s{sDT2}, s{sT1}, s{sT3}
s_lshl_b32 s{sST}, s{sX}, 2
s_add_u32 s{sST}, s{sST}, s{sT2}
s_cmp_eq_u32 s{sJ}, 0
s_cselect_b32 s{sT1}, 32, s{sJ}
s_mul_i32 s{sT2}, s{sX}, 12
s_add_u32 s{sT2}, s{sT2}, s{sT1}
s_sub_u32 s{sT2}, s{sT2}, 53
s_lshl_b32 s{sT3}, s{sX}, 2
s_add_u32 s{sT3}, s{sT3}, s{sJ}
s_sub_u32 s{sT3}, s{sT3}, 28
s_cmp_lg_u32 s{sT0}, 0
s_cselect_b32 s{sT1}, s{sT1}, s{sJ}
s_cselect_b32 s{sLN0}, s{sT2}, s{sT3}
s_cselect_b32 s{sRL0}, 21, 28
s_cmp_ge_u32 s{sT1}, s{sRL0}
s_cselect_b32 s{sRL0}, 1, 0""" if OPT["map18"] == 1 else f"""s_and_b32 s{sT0}, s{sX}, 1
s_lshr_b32 s{sT1}, s{sX}, 1
s_mul_i32 s{sPAIR}, s{sX}, 28
s_sub_u32 s{sRC}, s{sJ}, s{sT0}
s_add_u32 s{sPAIR}, s{sPAIR}, s{sRC}
s_cmp_lt_u32 s{sRC}, 28
s_cselect_b32 s{sRC}, 1, 0
s_mul_i32 s{sT2}, s{sJ}, 37
s_lshr_b32 s{sT2}, s{sT2}, 8
s_mul_i32 s{sT3}, s{sT2}, 7
s_sub_u32 s{sT3}, s{sJ}, s{sT3}
s_mul_i32 s{sNT}, s{sT1}, 7
s_add_u32 s{sNT}, s{sNT}, s{sT3}
s_lshl_b32 s{sT3}, s{sT0}, 2
s_add_u32 s{sDT1}, s{sT2}, s{sT3}
s_lshl_b32 s{sST}, s{sT0}, 3
s_sub_u32 s{sST}, s{sJ}, s{sST}
s_cselect_b32 s{sR2}, 0, 1
s_lshr_b32 s{sDT2}, s{sST}, 3
s_and_b32 s{sDT2}, s{sDT2}, 3
s_add_u32 s{sDT2}, s{sDT2}, s{sT3}
s_and_b32 s{sST}, s{sST}, 7
s_lshl_b32 s{sLN0}, s{sT1}, 4
s_lshl_b32 s{sT1}, s{sT1}, 3
s_add_u32 s{sST}, s{sST}, s{sT1}
s_cmp_eq_u32 s{sJ}, 0
s_cselect_b32 s{sT1}, 32, s{sJ}
s_mul_i32 s{sT2}, s{sT0}, 11
s_add_u32 s{sT2}, s{sT2}, s{sT1}
s_cmp_lg_u32 s{sT0}, 0
s_cselect_b32 s{sT1}, s{sT1}, s{sJ}
s_cselect_b32 s{sT2}, s{sT2}, s{sJ}
s_cselect_b32 s{sRL0}, 21, 28
s_cmp_ge_u32 s{sT1}, s{sRL0}
s_cselect_b32 s{sRL0}, 1, 0
s_add_u32 s{sLN0}, s{sLN0}, s{sT2}
s_sub_u32 s{sLN0}, s{sLN0}, 28""")
    if OPT["map18"] == 2:
        a(f"""s_sub_u32 s{sT1}, s{sJ}, 4
s_cselect_b32 s{sR2}, 0, 1
s_and_b32 s{sT1}, s{sT1}, 31
s_mul_i32 s{sT2}, s{sT1}, 37
s_lshr_b32 s{sT2}, s{sT2}, 8
s_mul_i32 s{sT3}, s{sT2}, 7
s_sub_u32 s{sDT2}, s{sT1}, s{sT3}
s_lshl_b32 s{sST}, s{sX}, 2
s_add_u32 s{sST}, s{sST}, s{sT2}""")
    a(f"""s_lshl_b32 s{sLN}, s{sX}, 4
s_add_u32 s{sLN}, s{sLN}, s{sJ}
s_sub_u32 s{sLN}, s{sLN}, 8
s_mul_i32 s{sT2}, s{sT0}, 7
s_sub_u32 s{sT2}, 28, s{sT2}
s_cmp_lt_u32 s{sJ}, s{sT2}
s_cselect_b32 s{sR1}, 1, 0
s_sub_u32 s{sT2}, s{sJ}, 8
s_cmp_lt_u32 s{sT2}, 16
s_cselect_b32 s{sRL}, 1, 0
s_min_u32 s{sPAIR}, s{sPAIR}, 223
s_mov_b32 s{sM1}, 0xaaaaaaaa
s_mov_b32 s{sM1 + 1}, 0xaaaaaaaa
s_mov_b32 s{sM2}, 0xcccccccc
s_mov_b32 s{sM2 + 1}, 0xcccccccc""")
    a("s_waitcnt lgkmcnt(0)")
    if OPT["fixdur"] or OPT["stamps"]:
        a("s_mov_b32 s101, s50")
    a("s_mov_b32 s0, 0xffff0000\ns_mov_b32 s1, 0xffff")
    a(f"""s_lshl_b32 s{sT0}, s{sPAIR}, 2
s_load_dword s{sLDT}, {sp(P_LDT)}, s{sT0}
s_load_dword s{sD0}, {sp(P_DSK)}, s{sT0}""")
    kgen_loads()
    for n, p, size in ((S_X0, P_U, 1835008), (S_WS, P_WS, WS_BYTES), (S_OUT, P_OUT, 1835008)):
        a(f"s_mov_b32 s{n}, s{p}\ns_mov_b32 s{n + 1}, s{p + 1}\ns_mov_b32 s{n + 2}, {size}\ns_mov_b32 s{n + 3}, 0x20000")
    a(f"buffer_load_dwordx2 v[104:105], off, {srd(S_WS)}, 0 offset:{EPOCH} sc1")
    for n, p, role in ((S_W1, P_W1, sR1), (S_W2, P_W2, sR2)):
        a(f"s_mov_b32 s{n}, s{p}\ns_mov_b32 s{n + 1}, s{p + 1}\ns_cmp_lg_u32 s{role}, 0\ns_cselect_b32 s{n + 2}, {0 if OPT['now'] & (1 if n == S_W1 else 2) else 7340032}, 0\ns_mov_b32 s{n + 3}, 0x20000")


sAUX = 75


def code_warm(r):
    if not OPT["warm"]:
        return
    a(f"""s_lshl_b32 s{sT0}, s{sJ}, 2
s_add_u32 s{sT0}, s{sT0}, s{sWAVE}
s_mul_i32 s{sT0}, s{sT0}, 640
v_lshl_add_u32 v{r}, v{vLANE}, 7, s{sT0}
s_mov_b32 s{sT1}, ktab-L_entry+8192
v_min_u32 v{r}, s{sT1}, v{r}
s_sub_u32 s28, s{sTAB}, ktab-L_entry
s_subb_u32 s29, s{sTAB + 1}, 0
s_mov_b64 exec, 31
global_load_dword v{r}, v{r}, s[28:29]
s_mov_b64 exec, -1""")


def page_warm(r):
    if not OPT["tlb"]:
        return
    a(f"""v_lshlrev_b32 v{r}, 21, v{vLANE}
v_add_u32 v{r}, 0x1fff80, v{r}
s_mov_b64 exec, 0x3ff
buffer_load_dword v{r}, v{r}, {srd(S_WS)}, 0 offen
s_mov_b64 exec, 1
buffer_load_dword v{r + 1}, off, {srd(S_OUT)}, 0
global_load_dword v{r + 2}, v{vLANE}, {sp(P_B1)}
global_load_dword v{r + 3}, v{vLANE}, {sp(P_B2)}
s_mov_b64 exec, -1""")


def fill(base, n, r, sidx, stride, tag="st0"):
    a(f"""s_lshl_b32 s{sT0}, s{sidx}, 12
s_lshl_b32 s{sT1}, s{sWAVE}, 10
s_add_u32 s{sT0}, s{sT0}, s{sT1}
s_add_u32 s{sT0}, s{sT0}, {base}""")
    for k in range(4):
        a(f"v_mov_b32 v{r + k}, -1")
    for k in range(n):
        a(f"buffer_store_dwordx4 {vr(r, 4)}, v{vL16}, {srd(S_WS)}, s{sT0} offen sc1{' nt' if OPT['fnt'] else ''}", tag=tag)
        if k + 1 < n:
            a(f"s_add_u32 s{sT0}, s{sT0}, {stride}")


def aux_loads():
    a(f"""s_and_b32 s{sAUX}, s{sJ}, 3
s_lshl_b32 s{sAUX}, s{sAUX}, 3
s_add_u32 s{sAUX}, s{sAUX}, s{sX}
s_lshl_b32 s16, s{sAUX}, 2
s_add_u32 s16, s16, s{sWAVE}
s_mul_i32 s{sT1}, s16, {16 * 896}
s_mul_i32 s17, s{sWAVE}, {16 * 912}
s_mov_b32 m0, s17
s_mov_b32 exec_hi, 0xffffff""")
    for k in range(16):
        if k:
            a(f"s_add_u32 m0, m0, 912\ns_add_u32 s{sT1}, s{sT1}, 896")
        a(f"buffer_load_dwordx4 v{vL16}, {srd(S_X0)}, s{sT1} offen {'nt ' if OPT['xnt'] & 2 else ''}lds", res_w=[f"x0"])
    a("s_mov_b64 exec, -1")


def aux_work():
    XR = 8
    a(f"""v_mov_b32 v76, 0
v_mov_b32 v77, 0
v_mov_b32 v78, 0
v_mov_b32 v79, 0
s_lshl_b32 s{sT1}, s16, 7
s_add_u32 s{sT1}, s{sT1}, {ST1}
s_lshl_b32 s18, s{sAUX}, 7
s_add_u32 s18, s18, {ST0}
s_mov_b64 exec, 0xff""")
    a(f"buffer_store_dwordx4 v[76:79], v{vL16}, {srd(S_WS)}, s{sT1} offen sc1", tag="st0")
    a(f"""s_mov_b64 exec, -1
v_and_b32 v2, 15, v{vLANE}
v_lshrrev_b32 v3, 4, v{vLANE}
v_mul_u32_u24 v4, 912, v2
v_lshl_add_u32 v4, v3, 4, v4
v_add_u32 v4, s17, v4
v_lshrrev_b32 v6, 2, v2
v_cmp_eq_u32 vcc, v6, v3
v_bfe_u32 v6, v2, 1, 2
v_lshlrev_b32 v6, 7, v6
v_lshrrev_b32 v7, 3, v2
v_lshl_add_u32 v6, v7, 4, v6
v_and_b32 v7, 1, v2
v_lshl_add_u32 v6, v7, 2, v6
s_lshl_b32 s{sT0}, s{sWAVE}, 5
s_add_u32 s{sT0}, s{sT0}, 60000
v_add_u32 v6, s{sT0}, v6
v_mov_b32 v7, 61024
v_cndmask_b32 v6, v7, v6, vcc
v_lshrrev_b32 v117, 3, v{vLANE}
v_cmp_eq_u32 vcc, s{sWAVE}, v117
v_lshlrev_b32 v117, 12, v117
v_and_b32 v7, 7, v{vLANE}
v_lshl_add_u32 v117, v7, 4, v117
v_mov_b32 v7, {OOB}
v_cndmask_b32 v117, v7, v117, vcc
v_mov_b32 v80, 0x3f803f80
v_mov_b32 v81, 0x3f803f80
v_mov_b32 v82, 0x3f803f80
v_mov_b32 v83, 0x3f803f80""")
    if OPT["stamps"] == 1:
        a.wait_vm0()
    stamp("aux data")
    for k in range(14):
        a(f"ds_read_b128 {vr(XR + 4 * k, 4)}, v4 offset:{64 * k}", res_r=["x0"])
    for k in range(14):
        x = vr(XR + 4 * k, 4)
        a(f"v_mfma_f32_16x16x32_bf16 v[64:67], v[80:83], {x}, {'v[64:67]' if k else 0}")
        a(f"v_mfma_f32_16x16x32_bf16 v[68:71], {x}, {x}, {'v[68:71]' if k else 0}")
    a(f"""v_cndmask_b32 v68, v68, v69, {sp(sM1)}
v_cndmask_b32 v70, v70, v71, {sp(sM1)}
v_cndmask_b32 v68, v68, v70, {sp(sM2)}""")
    a("ds_write2_b32 v6, v64, v68 offset0:0 offset1:2")
    a.barrier()
    a(f"ds_read_b128 v[64:67], v{vL16} offset:60000")
    a(f"buffer_store_dwordx4 v[64:67], v117, {srd(S_WS)}, s18 offen sc1", tag="st0")
    stamp("aux st")
    nonce_take()
    flag_put(0, f"s_add_u32 s{sT0}, s{sAUX}, 224\ns_lshl_b32 s{sT0}, s{sT0}, 6", 72, "st0")


def xt_loads():
    a(f"""s_lshl_b32 s{sT0}, s{sPAIR}, 1
s_lshr_b32 s{sT1}, s{sWAVE}, 1
s_add_u32 s{sT0}, s{sT0}, s{sT1}
s_mul_i32 s{sT1}, s{sT0}, 9363
s_lshr_b32 s{sT1}, s{sT1}, 16
s_mul_i32 s{sT2}, s{sT1}, 7
s_sub_u32 s{sT0}, s{sT0}, s{sT2}
s_lshl_b32 s{sT0}, s{sT0}, 1
s_and_b32 s{sT2}, s{sWAVE}, 1
s_add_u32 s{sT0}, s{sT0}, s{sT2}
s_mul_i32 s{sT2}, s{sT1}, {32 * 896}
s_lshl_b32 s{sT3}, s{sT0}, 6
s_add_u32 s{sT2}, s{sT2}, s{sT3}
v_lshrrev_b32 v2, 2, v{vLANE}
v_mul_u32_u24 v2, 896, v2
v_and_b32 v3, 3, v{vLANE}
v_lshl_add_u32 v2, v3, 4, v2
s_mul_i32 s22, s{sWAVE}, {GST}
s_mov_b32 m0, s22
s_mul_i32 s23, s{sT1}, {BS}""")
    a(f"buffer_load_dwordx4 v2, {srd(S_X0)}, s{sT2} offen {'nt ' if OPT['xnt'] & 1 else ''}lds", res_w=["x0"])
    a(f"s_add_u32 m0, m0, 1024\ns_add_u32 s{sT2}, s{sT2}, {16 * 896}")
    a(f"buffer_load_dwordx4 v2, {srd(S_X0)}, s{sT2} offen {'nt ' if OPT['xnt'] & 1 else ''}lds", res_w=["x0"])
    a(f"""s_lshl_b32 s{sT0}, s{sT0}, 11
s_add_u32 s23, s23, s{sT0}
s_add_u32 s23, s23, {X0}
v_lshrrev_b32 v2, 4, v{vLANE}
v_bfe_u32 v36, v{vLANE}, 2, 2
v_lshl_add_u32 v36, v2, 3, v36
v_lshlrev_b32 v36, 6, v36
v_lshl_add_u32 v36, v3, 3, v36
v_add_u32 v36, s22, v36
v_and_b32 v37, 15, v{vLANE}
v_lshlrev_b32 v37, 6, v37
v_lshl_add_u32 v37, v2, 4, v37""")


def xt_work():
    for u in range(2):
        for j in range(2):
            a(f"ds_read_b64_tr_b16 {vr(40 + 4 * u + 2 * j, 2)}, v36 offset:{j * 256 + u * 32}", res_r=["x0"])
    for u in range(2):
        a(f"buffer_store_dwordx4 {vr(40 + 4 * u, 4)}, v37, {srd(S_WS)}, s23 offen offset:{1024 * u} sc1", tag="st0")


def xt_poll_addr(ra, t):
    a(f"""s_lshl_b32 s{sT0}, s{sWAVE}, 4
v_and_b32 v{t}, 15, v{vLANE}
v_add_u32 v{t}, s{sT0}, v{t}
v_mul_u32_u24 v{t}, 7, v{t}
s_lshr_b32 s{sT0}, s{sPAIR}, 5
v_add_u32 v{t}, s{sT0}, v{t}
v_lshrrev_b32 v{t}, 1, v{t}
s_lshl_b32 s{sT0}, s{sWAVE}, 3
s_add_u32 s{sT0}, s{sT0}, 224
v_and_b32 v{ra}, 7, v{vLANE}
v_add_u32 v{ra}, s{sT0}, v{ra}
v_cmp_gt_u32 vcc, 16, v{vLANE}
v_cndmask_b32 v{ra}, v{ra}, v{t}, vcc""")


def e1_poll_addr(ra):
    a(f"s_lshl_b32 s{sT0}, s{sWAVE}, 6\nv_add_u32 v{ra}, s{sT0}, v{vLANE}")


def nonce_take():
    a(f"v_readfirstlane_b32 s{sNONCE}, v104\nv_readfirstlane_b32 s{sNONCE + 1}, v105")
    a(f"s_add_u32 s{sNONCE}, s{sNONCE}, 1")
    a(f"s_addc_u32 s{sNONCE + 1}, s{sNONCE + 1}, 0")


def nonce_retire():
    l = label("nr")
    a(f"s_or_b32 s{sT0}, s2, s{sWAVE}")
    a(f"s_cmp_lg_u32 s{sT0}, 32")
    a(f"s_cbranch_scc1 {l}")
    a(f"v_mov_b32 v110, s{sNONCE}\nv_mov_b32 v111, s{sNONCE + 1}\ns_mov_b64 exec, 1")
    a(f"buffer_store_dwordx2 v[110:111], off, {srd(S_WS)}, 0 offset:{EPOCH} sc1", optional=True)
    a("s_mov_b64 exec, -1")
    a(f"{l}:")


def flag_put(edge, sprod, r, tag):
    a(f"s_lshl_b32 s{sT0}, s{sprod}, 6" if isinstance(sprod, int) else sprod)
    a(f"""s_lshl_b32 s{sT1}, s{sWAVE}, 15
s_add_u32 s{sT0}, s{sT0}, s{sT1}
s_add_u32 s{sT0}, s{sT0}, {FL + edge * 0x20000}
v_lshlrev_b32 v{r + 4}, 12, v{vLANE}
v_and_b32 v{r + 4}, 0x4000, v{r + 4}
v_and_b32 v{r}, 3, v{vLANE}
v_lshl_add_u32 v{r + 4}, v{r}, 4, v{r + 4}
v_mov_b32 v{r}, s{sNONCE}
v_mov_b32 v{r + 1}, s{sNONCE + 1}
v_mov_b32 v{r + 2}, s{sNONCE}
v_mov_b32 v{r + 3}, s{sNONCE + 1}""")
    a.wait_tag(tag)
    a.barrier()
    a("s_mov_b64 exec, 0xff")
    a(f"buffer_store_dwordx4 {vr(r, 4)}, v{r + 4}, {srd(S_WS)}, s{sT0} offen sc1", tag="flag")
    a("s_mov_b64 exec, -1")


def emode(e):
    return OPT["em"][e - 1]


def hinted(e):
    return emode(e) in "HSMG"


def sentinel(e):
    return emode(e) in "SDM"


def flagged(e):
    return emode(e) in "FHG"


def armed(layer):
    return any(sentinel(e + 4 * layer) for e in (1, 2, 3))


def wait_edge(e, r, ra_full, ra_samp):
    if hinted(e):
        poll_issue(e + 10, r, ra_samp)
        poll_take(r, ra_samp)
    elif emode(e) == "D":
        a.wait_tag("pub")
    else:
        a.wait_tag("flag")
    if flagged(e):
        poll_issue(e, r, ra_full)
        poll_take(r, ra_full)


def hint_prep(edge, sprod, r):
    a(f"s_lshl_b32 s{sT0}, s{sprod}, 6" if isinstance(sprod, int) else sprod)
    a(f"""s_lshl_b32 s{sT1}, s{sWAVE}, 15
s_add_u32 s{sT0}, s{sT0}, s{sT1}
s_add_u32 s{sT0}, s{sT0}, {FL + edge * 0x20000}
v_lshlrev_b32 v{r + 4}, 12, v{vLANE}
v_and_b32 v{r + 4}, 0x4000, v{r + 4}
v_and_b32 v{r}, 3, v{vLANE}
v_lshl_add_u32 v{r + 4}, v{r}, 4, v{r + 4}
v_add_u32 v{r + 4}, s{sT0}, v{r + 4}
v_mov_b32 v{r}, s{sNONCE}
v_mov_b32 v{r + 1}, s{sNONCE + 1}
v_mov_b32 v{r + 2}, s{sNONCE}
v_mov_b32 v{r + 3}, s{sNONCE + 1}""")


def hint_put(r):
    a("s_mov_b64 exec, 0xff")
    a(f"buffer_store_dwordx4 {vr(r, 4)}, v{r + 4}, {srd(S_WS)}, 0 offen sc1", tag="hint")
    a("s_mov_b64 exec, -1")


def poll_issue(edge, r, ra=None):
    ra = r + 2 if ra is None else ra
    a(f"""s_lshl_b32 s{sT3}, s{sX}, 14
s_add_u32 s{sT3}, s{sT3}, {FL + edge * 0x20000}
v_lshl_add_u32 v{ra}, v{ra}, 6, s{sT3}
buffer_load_dwordx2 {vr(r, 2)}, v{ra}, {srd(S_WS)}, 0 offen sc1""")


def poll_take(r, ra=None):
    ra = r + 2 if ra is None else ra
    ok, lp = label("pok"), label("plp")
    a(f"v_cmp_ne_u64 vcc, {sp(sNONCE)}, {vr(r, 2)}")
    a(f"s_cbranch_vccz {ok}")
    a(f"s_mov_b32 s{sCNT}, 0")
    a(f"{lp}:")
    if OPT["slp"]:
        a(f"s_sleep {OPT['slp']}")
    a(f"buffer_load_dwordx2 {vr(r, 2)}, v{ra}, {srd(S_WS)}, 0 offen sc1")
    a("s_waitcnt vmcnt(0)")
    a(f"v_cmp_ne_u64 vcc, {sp(sNONCE)}, {vr(r, 2)}")
    a(f"s_add_u32 s{sCNT}, s{sCNT}, 1")
    a(f"s_cbranch_vccz {ok}")
    a(f"s_cmp_lt_u32 s{sCNT}, 0x100000")
    a(f"s_cbranch_scc1 {lp}")
    a(f"{ok}:")


sW1O, sW2O = 98, 99
sROT1, sROT2 = 33, 35
sW1E, sW2E = 78, 79


def w_setup():
    a(f"""v_lshrrev_b32 v2, 3, v{vLANE}
v_and_b32 v3, 7, v{vLANE}
v_bfe_u32 v4, v{vLANE}, 4, 1
v_lshlrev_b32 v4, 2, v4
v_xor_b32 v3, v3, v4
v_lshlrev_b32 v3, 4, v3
v_mul_u32_u24 v{vD1}, 3584, v2
v_add_u32 v{vD1}, v{vD1}, v3
v_lshl_add_u32 v{vD2}, v2, 12, v3
v_bfe_u32 v2, v{vLANE}, 2, 2
v_lshrrev_b32 v3, 5, v{vLANE}
v_bfe_u32 v4, v{vLANE}, 4, 1
v_and_b32 v5, 3, v{vLANE}
v_lshlrev_b32 v5, 3, v5
v_lshl_add_u32 v5, v4, 5, v5
v_lshrrev_b32 v4, 1, v2
v_lshl_add_u32 v5, v4, 6, v5
s_lshr_b32 s{sT0}, s{sWAVE}, 1
s_lshl_b32 s{sT0}, s{sT0}, 6
v_xor_b32 v5, s{sT0}, v5
v_lshl_add_u32 v5, v2, 7, v5
s_mul_i32 s{sT1}, s{sWAVE}, 24576
s_add_u32 s{sT1}, s{sT1}, {W2L}
v_add_u32 v5, s{sT1}, v5
v_lshl_add_u32 v{vT1a}, v3, 10, v5
v_xor_b32 v{vT1b}, 64, v{vT1a}
v_lshl_add_u32 v{vT2a}, v3, 9, v5
v_xor_b32 v{vT2b}, 64, v{vT2a}
s_mul_i32 s{sW1O}, s{sWAVE}, {512 * 3584}
s_lshl_b32 s{sT0}, s{sNT}, 7
s_add_u32 s{sW1O}, s{sW1O}, s{sT0}
s_mul_i32 s{sW2O}, s{sWAVE}, {448 * 4096}
s_lshl_b32 s{sT0}, s{sST}, 7
s_add_u32 s{sW2O}, s{sW2O}, s{sT0}
s_mov_b32 s{sWOFF}, s{sT1}""")
    if OPT["rot"] and OPT["map18"] == 1:
        if OPT["rot"] == 2:
            a(f"""s_add_u32 s{sROT1}, s{sDT1}, s{sX}
s_and_b32 s{sROT1}, s{sROT1}, 7
s_add_u32 s{sROT2}, s{sDT2}, s{sX}
s_cmp_ge_u32 s{sROT2}, 7
s_cselect_b32 s{sT0}, 7, 0
s_sub_u32 s{sROT2}, s{sROT2}, s{sT0}""")
        else:
            a(f"s_mov_b32 s{sROT1}, s{sDT1}\ns_mov_b32 s{sROT2}, s{sDT2}")
    elif OPT["rot"] == 3:
        a(f"""s_and_b32 s{sT0}, s{sDT1}, 3
s_lshr_b32 s{sT1}, s{sDT1}, 2
s_add_u32 s{sT1}, s{sT1}, 2
s_mul_i32 s{sROT1}, s{sT0}, s{sT1}
s_min_u32 s{sROT1}, s{sROT1}, 7
s_and_b32 s{sT0}, s{sDT2}, 3
s_lshr_b32 s{sT1}, s{sDT2}, 2
s_add_u32 s{sT1}, s{sT1}, 2
s_mul_i32 s{sROT2}, s{sT0}, s{sT1}
s_min_u32 s{sROT2}, s{sROT2}, 5""")
    elif OPT["rot"]:
        a(f"""s_and_b32 s{sT0}, s{sDT1}, 3
s_lshl_b32 s{sT0}, s{sT0}, 1
s_lshr_b32 s{sT1}, s{sDT1}, 2
s_add_u32 s{sT0}, s{sT0}, s{sT1}
s_and_b32 s{sROT1}, s{sT0}, 7
s_and_b32 s{sT0}, s{sDT2}, 3
s_lshl_b32 s{sT0}, s{sT0}, 1
s_lshr_b32 s{sT1}, s{sDT2}, 2
s_add_u32 s{sT0}, s{sT0}, s{sT1}
s_min_u32 s{sROT2}, s{sT0}, 6""")
        if OPT["map18"] == 2:
            a(f"s_mov_b32 s{sROT2}, s{sDT2}")
    else:
        a(f"s_mov_b32 s{sROT1}, 0\ns_mov_b32 s{sROT2}, 0")
    a(f"""s_add_u32 s{sW1E}, s{sW1O}, {512 * 3584}
s_mul_i32 s{sT0}, s{sROT1}, {64 * 3584}
s_add_u32 s{sW1O}, s{sW1O}, s{sT0}
s_add_u32 s{sW2E}, s{sW2O}, {448 * 4096}
s_mul_i32 s{sT0}, s{sROT2}, {64 * 4096}
s_add_u32 s{sW2O}, s{sW2O}, s{sT0}""")


WORDER = list(range(0, 4)) + list(range(32, 36)) + list(range(4, 32)) + list(range(36, 60))


def w_dma(pos, half):
    slot = pos % 12
    n = WORDER[pos]
    pol = ("", "nt ", "sc1 ", "sc0 sc1 ", "sc0 sc1 nt ")[OPT["wnt"]] if (OPT["wnta"] or pos < 2 * OPT["wg"]) else ""
    g = [Ins(f"s_add_u32 m0, s{sWOFF}, {slot * 2048 + half * 1024}")]
    if n < 32:
        g.append(Ins(f"s_add_u32 s{sW1O}, s{sW1O}, {8 * 3584}") if (n or half) else Ins("s_nop 0"))
        if n and n % 4 == 0 and half == 0:
            g += [Ins(f"s_cmp_eq_u32 s{sW1O}, s{sW1E}"), Ins(f"s_cselect_b32 s3, {512 * 3584}, 0"), Ins(f"s_sub_u32 s{sW1O}, s{sW1O}, s3")]
        g.append(Ins(f"buffer_load_dwordx4 v{vD1}, {srd(S_W1)}, s{sW1O} offen {pol}lds", res_w=[f"slot{slot}"]))
    else:
        g.append(Ins(f"s_add_u32 s{sW2O}, s{sW2O}, {8 * 4096}") if (n > 32 or half) else Ins("s_nop 0"))
        if n > 32 and n % 4 == 0 and half == 0:
            g += [Ins(f"s_cmp_eq_u32 s{sW2O}, s{sW2E}"), Ins(f"s_cselect_b32 s3, {448 * 4096}, 0"), Ins(f"s_sub_u32 s{sW2O}, s{sW2O}, s3")]
        g.append(Ins(f"buffer_load_dwordx4 v{vD2}, {srd(S_W2)}, s{sW2O} offen {pol}lds", res_w=[f"slot{slot}"]))
    return g


def w_tr(pos):
    slot = pos % 12
    n = WORDER[pos]
    g = []
    for nb in range(2):
        for j in range(2):
            if n < 32:
                r = (n * 2 + nb) * 4 + 2 * j
                g.append(Ins(f"ds_read_b64_tr_b16 a[{r}:{r + 1}], v{(vT1a, vT1b)[nb]} offset:{slot * 2048 + j * 512}", res_r=[f"slot{slot}"]))
            else:
                r = 128 + ((n - 32) * 2 + nb) * 4 + 2 * j
                g.append(Ins(f"ds_read_b64_tr_b16 v[{r}:{r + 1}], v{(vT2a, vT2b)[nb]} offset:{slot * 2048 + j * 1024}", res_r=[f"slot{slot}"]))
    return g


def w_all_upfront():
    for n in range(12):
        a.put(w_dma(n, 0)); a.put(w_dma(n, 1))
    for n in range(48):
        a.put(w_tr(n))
        if n >= 1:
            a.put(w_dma(n + 11, 0)); a.put(w_dma(n + 11, 1))
    a.put(w_dma(59, 0)); a.put(w_dma(59, 1))
    a.wait_vm0()
    a.wait_lgkm0()


PR = 56
TAB = 104


def kgen_loads():
    a(f"""s_lshl_b32 s{sT0}, s{sPAIR}, 10
s_lshl_b32 s{sT1}, s{sWAVE}, 8
s_add_u32 s{sT0}, s{sT0}, s{sT1}
v_lshl_add_u32 v3, v{vLANE}, 2, s{sT0}""")
    for k, p in enumerate((P_ARE, P_AIM, P_BRE, P_BIM, P_CRE, P_CIM)):
        a(f"global_load_dword v{PR + k}, v3, {sp(p)}{' nt' if OPT['pnt'] else ''}")


def kgen_table_addr():
    l = label("pc")
    a(f"s_getpc_b64 {sp(sTAB)}")
    a(f"{l}:")
    a(f"s_add_u32 s{sTAB}, s{sTAB}, ktab-{l}")
    a(f"s_addc_u32 s{sTAB + 1}, s{sTAB + 1}, 0")


def kgen_table_load():
    kgen_table_addr()
    a(f"s_lshr_b32 s{sT0}, s{sWAVE}, 1\ns_lshl_b32 s{sT0}, s{sT0}, 5\nv_lshl_add_u32 v75, v0, 5, s{sT0}")


KBG = []


def kgen(hooks):
    F = {e: 2 * e for e in range(1, 8)}
    Qr = {1: 16, 2: 18, 3: 20, 4: 22}
    QN = [24, 26]
    Z1, Z2, C0, C1 = 28, 30, 32, 34
    CN = [36, 38]
    T0, T1 = 62, 64
    CV = [66, 67, 68, 69]
    A2, B2, DT = 70, 71, 72
    ACC = 76
    QF = 88
    PF = 40
    vG, vF = 73, 74
    a(f"""s_mul_i32 s{sT0}, s{sWAVE}, {GST}
v_lshl_add_u32 v{vG}, v{vLANE}, 2, s{sT0}
v_and_b32 v2, 15, v{vLANE}
v_mul_u32_u24 v2, {GROW}, v2
v_lshrrev_b32 v3, 4, v{vLANE}
v_lshl_add_u32 v2, v3, 4, v2
v_add_u32 v{vF}, s{sT0}, v2""")
    a.begin()
    a(f"""s_lshr_b32 s{sT0}, s{sWAVE}, 1
s_lshl_b32 s{sT0}, s{sT0}, 4
s_lshr_b32 s{sT0}, s{sLDT}, s{sT0}
s_lshl_b32 s{sT0}, s{sT0}, 16
v_mov_b32 v2, {f32(math.log2(math.e))}
v_mul_f32 v2, s{sT0}, v2
v_exp_f32 v2, v2
v_cvt_pk_bf16_f32 v2, v2, v2
v_lshlrev_b32 v{DT}, 16, v2
s_and_b32 s{sD1}, s{sD0}, 0xffff0000
s_lshl_b32 s{sD0}, s{sD0}, 16""")
    cvi = [0]

    def hook(name):
        if name is not None and name not in hooks:
            return
        a_body = space_ds(a.end(), OPT["lag"], OPT["gap"])
        m, rest = merge(a_body, KBG[:], 20, OPT["ev_kg"])
        del KBG[:]
        a.put(m)
        put_all(rest)
        if name is not None:
            hooks[name]()
            a.begin()

    def row(r, src, neg=False):
        c = CV[cvi[0] % 4]
        cvi[0] += 1
        a(f"v_cvt_pk_bf16_f32 v{c}, v{src}, {'-' if neg else ''}v{src + 1}")
        a(f"ds_write_b32 v{vG}, v{c} offset:{r * GROW}")

    def reads(dst, tile):
        for ks in range(4):
            a(f"ds_read_b128 {vr(dst + 4 * ks, 4)}, v{vF} offset:{tile * 16 * GROW + ks * 64}")

    def mfmas(t, first):
        for ks in range(4):
            c = "0" if (first and ks == 0) else vr(ACC + 4 * t, 4)
            a(f"v_mfma_f32_16x16x32_bf16 {vr(ACC + 4 * t, 4)}, {vr(PF + 4 * ks, 4)}, {vr(QF + 4 * ks, 4)}, {c}")

    def direct(d, scale):
        if scale != 1:
            a(f"v_mul_f32 v{T0}, {f32(scale)}, v{A2}")
            a(f"v_mul_f32 v{T1}, {f32(scale)}, v{B2}")
            x, y = T0, T1
        else:
            x, y = A2, B2
        a(f"v_fract_f32 v{T1}, v{y}")
        a(f"v_exp_f32 v{T0}, v{x}")
        a(f"v_cos_f32 v{d}, v{T1}")
        a(f"v_sin_f32 v{d + 1}, v{T1}")
        a(f"v_pk_mul_f32 {vr(d, 2)}, {vr(d, 2)}, {vr(T0, 2)} op_sel_hi:[1,0]")

    for rd in range(2):
        def up(d, s):
            a(f"v_lshlrev_b32 v{d}, 16, v{s}" if rd == 0 else f"v_and_b32 v{d}, s0, v{s}")
        up(A2, PR); up(B2, PR + 1)
        up(QN[0], PR + 2); up(QN[0] + 1, PR + 3)
        up(QN[1], PR + 4); up(QN[1] + 1, PR + 5)
        a(f"v_mul_f32 v{A2}, v{DT}, v{A2}")
        a(f"v_mul_f32 v{B2}, v{DT}, v{B2}")
        a(f"v_pk_mul_f32 {vr(QN[0], 2)}, {vr(QN[0], 2)}, {vr(DT, 2)} op_sel_hi:[1,0]")
        a(f"v_mul_f32 v{A2}, {f32(math.log2(math.e))}, v{A2}")
        a(f"v_mul_f32 v{B2}, {f32(1 / (2 * math.pi))}, v{B2}")
        cmul2((C0, QN[1], QN[0]))
        direct(F[1], 1)
        if rd == 1:
            mfmas(2, True)
        direct(Z1, 128)
        hook(5 * rd)
        cmul2((F[2], F[1], F[1]), (Z2, Z1, Z1))
        cmul2((F[4], F[2], F[2]), (F[3], F[2], F[1]))
        cmul2((Qr[1], F[4], F[4]), (C1, C0, Z1))
        a(f"v_mov_b32 v{CV[3]}, 0x3f80")
        a(f"ds_write_b32 v{vG}, v{CV[3]}")
        cmul2((Qr[2], Qr[1], Qr[1]), (F[5], F[4], F[1]))
        row(1, Qr[1], True)
        cmul2((Qr[3], Qr[2], Qr[1]), (Qr[4], Qr[2], Qr[2]))
        row(2, Qr[2], True)
        cmul2((F[6], F[4], F[2]), (F[7], F[4], F[3]))
        row(3, Qr[3], True)
        row(4, Qr[4], True)
        cur = {1: Qr[1], 2: Qr[2], 3: Qr[3], 0: Qr[4]}
        free = list(QN) + [CN[0]]
        j = 5
        while j < 16:
            js = [j] + ([j + 1] if j + 1 < 16 else [])
            ps = []
            for jj in js:
                d = free.pop(0)
                ps.append((d, cur[jj % 4], Qr[4]))
            cmul2(*ps)
            for jj, p in zip(js, ps):
                if cur[jj % 4] != Qr[4]:
                    free.append(cur[jj % 4])
                cur[jj % 4] = p[0]
                row(jj, p[0], True)
            j += 2
        reads(QF, 0)
        hook(5 * rd + 1)
        TA, TB = QN
        row(16, C0); row(24, C1)
        for e in range(1, 8):
            cmul2((TA, C0, F[e]), (TB, C1, F[e]))
            row(16 + e, TA); row(24 + e, TB)
        reads(PF, 1)
        hook(5 * rd + 2)
        ca, cb = C0, C1
        na, nb_ = CN
        def adv():
            nonlocal ca, cb, na, nb_
            cmul2((na, ca, Z2), (nb_, cb, Z2))
            ca, cb, na, nb_ = na, nb_, ca, cb
        adv()
        row(32, ca); row(36, cb)
        for e in range(1, 4):
            cmul2((TA, ca, F[2 * e]), (TB, cb, F[2 * e]))
            row(32 + e, TA); row(36 + e, TB)
        mfmas(0, rd == 0)
        for k in range(2):
            adv()
            row(40 + 4 * k, ca); row(42 + 4 * k, cb)
            cmul2((TA, ca, F[4]), (TB, cb, F[4]))
            row(41 + 4 * k, TA); row(43 + 4 * k, TB)
        reads(PF, 2)
        hook(5 * rd + 3)
        for k in range(4):
            adv()
            row(48 + 2 * k, ca); row(49 + 2 * k, cb)
        cmul2((na, ca, Z2))
        row(56, na)
        mfmas(1, rd == 0)
        reads(PF, 3)
        hook(5 * rd + 4)
    hook(None)
    a(f"s_mul_i32 s{sT0}, s{sWAVE}, {GST}")
    a(f"v_add_u32 v{vF}, s{sT0}, v{vL16}")
    a(f"v_mov_b32 v{CV[0]}, 0")
    for k in range(8):
        a(f"v_and_b32 v{2 + 2 * k}, s1, v{TAB + k}")
        a(f"v_lshrrev_b32 v{3 + 2 * k}, 16, v{TAB + k}")
    for t in range(2):
        a(f"ds_write_b128 v{vF}, {vr(ACC + 4 * t, 4)} offset:{TOFF + t * 1024}")
    mfmas(2, False)
    a(f"ds_write_b32 v{vG}, v{CV[0]} offset:{TOFF + 3072}")
    a("v_and_b32 v18, 0xffff, v0\nv_lshrrev_b32 v19, 16, v0\nv_and_b32 v20, 0xffff, v1")
    a(f"ds_write_b128 v{vF}, {vr(ACC + 8, 4)} offset:{TOFF + 2048}")


def kzero(r):
    a(f"""v_mov_b32 v{r}, 0
v_mov_b32 v{r + 1}, 0
v_mov_b32 v{r + 2}, 0
v_mov_b32 v{r + 3}, 0
v_bfe_u32 v{r + 4}, v{vLANE}, 1, 3
v_mul_u32_u24 v{r + 4}, {KST}, v{r + 4}
v_and_b32 v{r + 5}, 1, v{vLANE}
v_lshl_add_u32 v{r + 4}, v{r + 5}, 4, v{r + 4}
s_and_b32 s{sT0}, s{sWAVE}, 1
s_mul_i32 s{sT0}, s{sT0}, {UST}
v_add_u32 v{r + 5}, s{sT0}, v{vL16}""")
    return [f"ds_write_b128 v{r + 4}, {vr(r, 4)} offset:4096", f"ds_write_b128 v{r + 5}, {vr(r, 4)} offset:{UB}"]


def kaddr(r):
    a(f"""s_lshr_b32 s{sT0}, s{sWAVE}, 1
s_and_b32 s{sT1}, s{sWAVE}, 1
s_lshl_b32 s{sT1}, s{sT1}, 11
v_lshl_add_u32 v{r + 3}, v{vLANE}, 5, s{sT1}""")
    for c in range(4):
        a(f"s_cmp_lg_u32 s{sT0}, 0")
        a(f"s_cselect_b32 s{sT2}, {KSLOT[1][c]}, {KSLOT[0][c]}")
        a(f"s_mul_i32 s{sT2}, s{sT2}, {KST}")
        a(f"v_add_u32 v{r + c}, s{sT2}, v{r + 3}")


def kexpand(mid):
    AD, VAL = 2, 22
    P0, P1, P2, P3 = 2, 12, 88, 96
    a.barrier()
    for k in range(19):
        a(f"ds_read2st64_b32 {vr(VAL + 2 * k, 2)}, v{AD + k} offset0:{TOFF // 256} offset1:{TOFF // 256 + GST // 256}")
    mid()
    kaddr(60)
    zw = kzero(104)
    for k in range(19):
        a(f"v_add_f32 v{VAL + 2 * k}, v{VAL + 2 * k}, v{VAL + 2 * k + 1}")
        if k:
            a(f"v_cvt_pk_bf16_f32 v{(P0 if k & 1 else P1) + (k - 1) // 2}, v{VAL + 2 * k - 2}, v{VAL + 2 * k}")
    a.barrier()
    a.begin()
    for l in zw:
        a(l)
    for c, P in ((0, P0), (1, P1)):
        a(f"ds_write_b128 v{60 + c}, {vr(P, 4)}")
        a(f"ds_write_b128 v{60 + c}, {vr(P + 4, 4)} offset:16")
    for c, P, src in ((2, P2, P0), (3, P3, P1)):
        for i in range(4):
            a(f"v_pk_mov_b32 {vr(P + 2 * i, 2)}, {vr(src + 2 * i, 2)}, {vr(src + 2 * i + 2, 2)} op_sel:[1,0]")
        a(f"ds_write_b128 v{60 + c}, {vr(P, 4)}")
        a(f"ds_write_b128 v{60 + c}, {vr(P + 4, 4)} offset:16")
    return a.end()


def kcopies():
    R, E, M = 2, 12, 22
    kaddr(40)
    a(f"""ds_read_b128 {vr(R, 4)}, v40
ds_read_b128 {vr(R + 4, 4)}, v40 offset:16
ds_read_b64 {vr(R + 8, 2)}, v40 offset:32""")
    for l in kzero(32):
        a(l)
    for i in range(9):
        a(f"v_alignbit_b32 v{E + i}, v{R + i + 1}, v{R + i}, 16")
    a(f"ds_write_b128 v41, {vr(E, 4)}")
    a(f"ds_write_b128 v41, {vr(E + 4, 4)} offset:16")
    for i in range(4):
        a(f"v_pk_mov_b32 {vr(M + 2 * i, 2)}, {vr(R + 2 * i, 2)}, {vr(R + 2 * i + 2, 2)} op_sel:[1,0]")
    a(f"ds_write_b128 v42, {vr(M, 4)}")
    a(f"ds_write_b128 v42, {vr(M + 4, 4)} offset:16")
    for i in range(4):
        a(f"v_pk_mov_b32 {vr(R + 2 * i, 2)}, {vr(E + 2 * i, 2)}, {vr(E + 2 * i + 2, 2)} op_sel:[1,0]")
    a(f"ds_write_b128 v43, {vr(R, 4)}")
    a(f"ds_write_b128 v43, {vr(R + 4, 4)} offset:16")


GX = 80
CS = 64
cvA, cvB, cvZ, cvXW, cvXR, cvO, cvU, cvX, cvH, cvP = 112, 113, 114, 115, 116, 117, 118, 119, 100, 108
STUBS = []


def conv_poll1():
    r = cvP
    a(f"""v_lshrrev_b32 v{r}, 3, v{vLANE}
v_min_u32 v{r}, 6, v{r}
v_and_b32 v{r + 1}, 7, v{vLANE}
v_lshl_add_u32 v{r + 2}, v{r}, 5, v{r + 1}
s_lshl_b32 s{sT0}, s{sWAVE}, 3
v_add_u32 v{r + 2}, s{sT0}, v{r + 2}
v_and_b32 v{r + 1}, 7, v{vLANE}
v_min_u32 v{r}, 6, v{r + 1}
v_lshl_add_u32 v{r + 3}, v{r}, 5, v{r + 1}
v_add_u32 v{r + 3}, s{sT0}, v{r + 3}""")


def conv_loads():
    for p in range(4):
        a(f"buffer_load_dwordx4 {vr(CS + 4 * p, 4)}, v{vL16}, {srd(S_WS)}, s{16 + p} offen sc1")
    a(f"buffer_load_dwordx4 {vr(GX, 4)}, v{cvX}, {srd(S_WS)}, s20 offen sc1")
    a(f"buffer_load_dwordx4 {vr(GX + 4, 4)}, v{cvX}, {srd(S_WS)}, s20 offen offset:64 sc1")


def conv_setup(layer):
    a(f"""s_mov_b32 s{sCA}, {f32(1.0 / 448)}
s_mov_b32 s{sCB}, {f32(1e-5)}
s_lshl_b32 s{sT0}, s{sWAVE}, 10
v_add_u32 v{cvU}, s{sT0}, v{vL16}
s_lshr_b32 s{sT0}, s{sWAVE}, 1
s_and_b32 s{sT1}, s{sWAVE}, 1
v_and_b32 v8, 15, v{vLANE}
v_lshrrev_b32 v9, 4, v{vLANE}
v_not_b32 v10, v8
v_and_b32 v10, 3, v10""")
    for s in range(4):
        a(f"s_cmp_lg_u32 s{sT0}, 0")
        a(f"s_cselect_b32 s{sT2}, {KSLOT[1][s]}, {KSLOT[0][s]}")
        a(f"s_mul_i32 s{sT2}, s{sT2}, {KST}")
        if s == 0:
            a(f"v_mov_b32 v11, s{sT2}")
        else:
            a(f"v_mov_b32 v12, s{sT2}\nv_cmp_eq_u32 vcc, {s}, v10\nv_cndmask_b32 v11, v11, v12, vcc")
    a(f"""v_add_u32 v10, v10, v8
v_lshlrev_b32 v12, 3, v9
v_sub_u32 v12, v12, v10
v_lshl_add_u32 v11, v12, 1, v11
""")
    a(f"""s_lshl_b32 s{sT3}, s{sT1}, 8
s_sub_u32 s{sT2}, {2 * 2031 - 64 * 59}, s{sT3}
v_add_u32 v{cvA}, s{sT2}, v11
s_mul_i32 s{sT2}, s{sT0}, {UST}
s_sub_u32 s{sT2}, s{sT2}, s{sT3}
s_add_u32 s{sT2}, s{sT2}, {UB + UPAD - 2 * 112}
v_lshlrev_b32 v12, 5, v8
v_lshl_add_u32 v13, v9, 4, v12
v_add_u32 v{cvB}, s{sT2}, v13
s_lshl_b32 s{sT2}, s{sWAVE}, 11
v_lshl_add_u32 v13, v9, 3, v12
v_add_u32 v{cvZ}, s{sT2}, v13
s_xor_b32 s{sT2}, s{sWAVE}, 1
s_lshl_b32 s{sT2}, s{sT2}, 12
v_add_u32 v{cvXW}, s{sT2}, v{vL16}
s_lshl_b32 s{sT2}, s{sWAVE}, 12
v_add_u32 v{cvXR}, s{sT2}, v{vL16}
v_and_b32 v10, 1, v9
v_lshlrev_b32 v10, 3, v10
v_lshrrev_b32 v11, 1, v8
v_add_u32 v10, v10, v11
v_mul_u32_u24 v10, {BS}, v10
v_and_b32 v11, 1, v8
v_lshl_add_u32 v10, v11, 5, v10
v_lshrrev_b32 v11, 1, v9
v_lshl_add_u32 v{cvO}, v11, 4, v10
s_mul_i32 s{sT1}, s{sT1}, {32 * BS}
s_lshl_b32 s{sT2}, s{sPAIR}, 1
s_add_u32 s{sT0}, s{sT0}, s{sT2}
s_lshl_b32 s{sT0}, s{sT0}, 6
s_add_u32 s{sT0}, s{sT0}, s{sT1}
s_add_u32 s13, s{sT0}, {X1 if layer == 0 else X3}
s_add_u32 s21, s13, {16 * BS}""" if OPT["cv"] else f"""v_add_u32 v{cvA}, {2 * 2031 - 64 * 63}, v11
s_mul_i32 s{sT2}, s{sT0}, {UST}
s_lshl_b32 s{sT3}, s{sT1}, 9
s_add_u32 s{sT2}, s{sT2}, s{sT3}
s_add_u32 s{sT2}, s{sT2}, {UB + UPAD - 2 * 496}
v_lshlrev_b32 v12, 5, v8
v_lshl_add_u32 v13, v9, 4, v12
v_add_u32 v{cvB}, s{sT2}, v13
s_lshl_b32 s{sT2}, s{sT0}, 12
s_add_u32 s{sT2}, s{sT2}, s{sT3}
v_lshl_add_u32 v13, v9, 3, v12
v_add_u32 v{cvZ}, s{sT2}, v13
v_and_b32 v10, 1, v9
v_lshlrev_b32 v10, 4, v10
v_lshrrev_b32 v11, 1, v8
v_add_u32 v10, v10, v11
v_mul_u32_u24 v10, {BS}, v10
v_and_b32 v11, 1, v8
v_lshl_add_u32 v10, v11, 5, v10
v_lshrrev_b32 v11, 1, v9
v_lshl_add_u32 v{cvO}, v11, 4, v10
s_mul_i32 s{sT1}, s{sT1}, {8 * BS}
s_lshl_b32 s{sT2}, s{sPAIR}, 1
s_add_u32 s{sT0}, s{sT0}, s{sT2}
s_lshl_b32 s{sT0}, s{sT0}, 6
s_add_u32 s{sT0}, s{sT0}, s{sT1}
s_add_u32 s13, s{sT0}, {X1 if layer == 0 else X3}
s_add_u32 s21, s13, {32 * BS}""")
    a(f"""s_lshl_b32 s16, s{sWAVE}, 10
s_add_u32 s16, s16, {ST0 if layer == 0 else ST1}
s_add_u32 s17, s16, 4096
s_add_u32 s18, s16, 8192
s_add_u32 s19, s16, 12288
s_mul_i32 s20, s{sWAVE}, {16 * BS}
s_lshl_b32 s{sT2}, s{sPAIR}, 7
s_add_u32 s20, s20, s{sT2}
s_add_u32 s20, s20, {X0 if layer == 0 else X2}
v_lshrrev_b32 v10, 2, v{vLANE}
v_mul_u32_u24 v10, {BS}, v10
v_and_b32 v11, 3, v{vLANE}
v_lshl_add_u32 v{cvX}, v11, 4, v10""")


cXF, cUF, cAL, cBE, cUP = 0, 16, 32, 40, 48


def conv_pro(layer):
    XF, UF, AL, BE, UP = cXF, cUF, cAL, cBE, cUP
    for p in range(4):
        S = CS + 4 * p
        a(f"v_pk_mul_f32 {vr(S, 2)}, {vr(S, 2)}, {sp(sCA)} op_sel_hi:[1,0]")
    for p in range(4):
        S = CS + 4 * p
        a(f"v_pk_fma_f32 {vr(BE + 2 * p, 2)}, {vr(S, 2)}, {vr(S, 2)}, {sp(sCB)} op_sel_hi:[1,1,0] neg_lo:[1,0,0] neg_hi:[1,0,0]")
    for p in range(4):
        Q = CS + 4 * p + 2
        a(f"v_pk_fma_f32 {vr(Q, 2)}, {vr(Q, 2)}, {sp(sCA)}, {vr(BE + 2 * p, 2)} op_sel_hi:[1,0,1]")
    for p in range(4):
        Q = CS + 4 * p + 2
        a(f"v_max_f32 v{Q}, s{sCB}, v{Q}\nv_max_f32 v{Q + 1}, s{sCB}, v{Q + 1}")
    for p in range(4):
        Q = CS + 4 * p + 2
        a(f"v_rsq_f32 v{AL + 2 * p}, v{Q}\nv_rsq_f32 v{AL + 2 * p + 1}, v{Q + 1}")
    for k in range(8):
        unpack(XF + 2 * k, XF + 2 * k + 1, GX + k)
    for p in range(4):
        S = CS + 4 * p
        a(f"v_pk_mul_f32 {vr(BE + 2 * p, 2)}, {vr(S, 2)}, {vr(AL + 2 * p, 2)} neg_lo:[1,0] neg_hi:[1,0]")
    for c in range(2):
        for p in range(4):
            a(f"v_pk_fma_f32 {vr(UF + 8 * c + 2 * p, 2)}, {vr(XF + 8 * c + 2 * p, 2)}, {vr(AL + 2 * p, 2)}, {vr(BE + 2 * p, 2)}")
        for p in range(4):
            a(f"v_cvt_pk_bf16_f32 v{UP + 4 * c + p}, v{UF + 8 * c + 2 * p}, v{UF + 8 * c + 2 * p + 1}")
        a(f"ds_write_b128 v{cvU}, {vr(UP + 4 * c, 4)} offset:{UB + c * UST + UPAD}")
    if OPT["cv"]:
        for i in a.capture(conv_z, 88):
            if i.kind != "dsw":
                a.put([i])


def conv_z(ZP=cXF):
    XF, UF = cXF, cUF
    for c in range(2):
        for p in range(4):
            a(f"v_pk_fma_f32 {vr(UF + 8 * c + 2 * p, 2)}, {vr(UF + 8 * c + 2 * p, 2)}, {sp((sD0, sD1)[c])}, {vr(XF + 8 * c + 2 * p, 2)} op_sel_hi:[1,0,1]")
        for p in range(4):
            a(f"v_cvt_pk_bf16_f32 v{ZP + 4 * c + p}, v{UF + 8 * c + 2 * p}, v{UF + 8 * c + 2 * p + 1}")
        a(f"ds_write_b128 v{cvU}, {vr(ZP + 4 * c, 4)} offset:{ZB + c * 4096}")


def conv_main(layer, bg=(), bg_start=0, bg_every=64):
    return (conv_main_r if OPT["cv"] else conv_main_t)(layer, bg, bg_start, bg_every)


def conv_main_r(layer, bg, bg_start, bg_every):
    ACC, BF, AR = 0, 32, 64
    NA = 6
    EX2 = ZB
    seq = [(r, q) for r in range(4) for q in range(7, -1, -1)]
    e = 1 + 4 * layer

    def rdA(i):
        r, q = seq[i]
        d = AR + 4 * (i % NA)
        off = 64 * (59 - (8 * q + r))
        return [Ins(f"ds_read_b64 {vr(d, 2)}, v{cvA} offset:{off}"), Ins(f"ds_read_b64 {vr(d + 2, 2)}, v{cvA} offset:{off + 8}")]

    def rdB(r, p):
        return [Ins(f"ds_read_b128 {vr(BF + 4 * p, 4)}, v{cvB} offset:{512 * p + 64 * (3 - r)}")]

    a.put(rdA(0)); a.put(rdB(0, 0)); a.put(rdA(1)); a.put(rdB(0, 1)); a.put(rdA(2)); a.put(rdB(0, 2)); a.put(rdA(3))
    a.put(rdB(0, 3)); a.put(rdA(4))
    for p in range(4, 8):
        a.put(rdB(0, p))
    ZR, ZF, RR = 88, 64, 32
    side = [[i] for i in a.capture(conv_z, 88) if i.kind == "dsw"]
    if hinted(e):
        side += [[i] for i in a.capture(hint_prep, e + 10, sPAIR, cvH)]
    late = [[Ins("s_barrier")]] + [[Ins(f"ds_read_b64 {vr(ZR + 2 * i, 2)}, v{cvZ} offset:{ZB + i * 512}")] for i in range(4)]
    late2 = [[Ins("s_barrier")]]
    a.begin()
    started = set()
    for i, (r, q) in enumerate(seq):
        if hinted(e) and OPT["h_cv"] < 0 and i == 32 + OPT["h_cv"]:
            hint_put(cvH)
        ps = list(range(8 - q))
        for p in ps:
            b = q + p
            c = vr(ACC + 4 * b, 4) if b in started else "0"
            started.add(b)
            a(f"v_mfma_f32_16x16x32_bf16 {vr(ACC + 4 * b, 4)}, {vr(AR + 4 * (i % NA), 4)}, {vr(BF + 4 * p, 4)}, {c}")
            if p == 0 and i + NA - 1 < len(seq):
                a.put(rdA(i + NA - 1))
            elif 1 <= q <= 4 and p >= 1:
                for lst, r0 in ((side, 0), (late, 2), (late2, 3)):
                    if lst and r >= r0:
                        a.put(lst.pop(0))
                        break
            if q == 0 and r < 3:
                a.put(rdB(r + 1, p))
    assert not side and not late and not late2
    m, rest = merge(a.end(), list(bg), bg_start, bg_every)
    a.put(m)
    stamp(f"conv{layer} loop", 111)
    if hinted(e) and OPT["h_cv"] == 0:
        hint_put(cvH)
    for k in range(8):
        unpack(ZF + 2 * k, ZF + 2 * k + 1, ZR + k)
    l1, l2 = label("cx"), label("cy")
    a(f"s_bitcmp1_b32 s{sWAVE}, 0")
    a(f"s_cbranch_scc1 {l1}")
    for h in range(2):
        for i in range(4):
            a(f"ds_write_b128 v{cvXW}, {vr(ACC + 16 * (1 - h) + 4 * i, 4)} offset:{EX2 + i * 1024}")
            for k in range(2):
                a(f"v_pk_add_f32 {vr(ZF + 4 * i + 2 * k, 2)}, {vr(ZF + 4 * i + 2 * k, 2)}, {vr(ACC + 16 * h + 4 * i + 2 * k, 2)}")
        if h == 0:
            a(f"s_branch {l2}")
            a(f"{l1}:")
    a(f"{l2}:")
    if (armed(1) if layer else sentinel(1)):
        poll_take(cvP)
    a.barrier()
    if hinted(e) and OPT["h_cv"] == 1:
        hint_put(cvH)
    for i in range(4):
        a(f"ds_read_b128 {vr(RR + 4 * i, 4)}, v{cvXR} offset:{EX2 + i * 1024}")
    PK = 56
    for i in range(4):
        for k in range(2):
            a(f"v_pk_add_f32 {vr(ZF + 4 * i + 2 * k, 2)}, {vr(ZF + 4 * i + 2 * k, 2)}, {vr(RR + 4 * i + 2 * k, 2)}")
        for k in range(2):
            a(f"v_cvt_pk_bf16_f32 v{PK + 2 * i + k}, v{ZF + 4 * i + 2 * k}, v{ZF + 4 * i + 2 * k + 1}")
        if i & 1:
            b = PK + 2 * (i - 1)
            a(f"v_permlane16_swap_b32 v{b}, v{b + 2}")
            a(f"v_permlane16_swap_b32 v{b + 1}, v{b + 3}")
            a(f"buffer_store_dwordx4 {vr(b, 4)}, v{cvO}, {srd(S_WS)}, s{21 if i == 3 else 13} offen sc1", tag="pub")
    if hinted(e) and OPT["h_cv"] == 2:
        hint_put(cvH)
    if not flagged(e):
        a.barrier()
    else:
        flag_put(1 + 4 * layer, sPAIR, 40, "pub")
    return rest


def conv_main_t(layer, bg, bg_start, bg_every):
    ACC, BF, AR = 84, 32, 64
    NA = 5
    QORD = (7, 5, 6, 3, 4, 2, 1, 0)
    seq = [(r, q) for r in range(8) for q in QORD]
    e = 1 + 4 * layer

    def rdA(i):
        r, q = seq[i]
        d = AR + 4 * (i % NA)
        off = 64 * (63 - (8 * q + r))
        return [Ins(f"ds_read_b64 {vr(d, 2)}, v{cvA} offset:{off}"), Ins(f"ds_read_b64 {vr(d + 2, 2)}, v{cvA} offset:{off + 8}")]

    def rdB(r, p):
        return [Ins(f"ds_read_b128 {vr(BF + 4 * (p + 1), 4)}, v{cvB} offset:{512 * (p + 1) + 64 * (7 - r)}")]

    a.put(rdA(0)); a.put(rdB(0, -1)); a.put(rdA(1)); a.put(rdB(0, 1)); a.put(rdA(2)); a.put(rdB(0, 0)); a.put(rdA(3))
    for p in (3, 2, 4, 5, 6):
        a.put(rdB(0, p))
    ZR, ZF = 16, 0
    side = [[i] for i in a.capture(conv_z)]
    if hinted(e):
        side += [[i] for i in a.capture(hint_prep, e + 10, sPAIR, cvH)]
    late = [[Ins("s_barrier")]] + [[Ins(f"ds_read_b64 {vr(ZR + 2 * i, 2)}, v{cvZ} offset:{ZB + i * 1024}")] for i in range(4)]
    late2 = [[i] for k in range(8) for i in a.capture(unpack, ZF + 2 * k, ZF + 2 * k + 1, ZR + k)]
    a.begin()
    started = set()
    n = 0
    for i, (r, q) in enumerate(seq):
        if hinted(e) and OPT["h_cv"] < 0 and i == 64 + OPT["h_cv"]:
            hint_put(cvH)
        first = True
        for t in range(q // 2, 4):
            p = 2 * t - q
            c = vr(ACC + 4 * t, 4) if t in started else "0"
            started.add(t)
            a(f"v_mfma_f32_16x16x32_bf16 {vr(ACC + 4 * t, 4)}, {vr(AR + 4 * (i % NA), 4)}, {vr(BF + 4 * (p + 1), 4)}, {c}")
            n += 1
            if first and i + 4 < len(seq):
                a.put(rdA(i + 4))
            elif q >= 2:
                for lst, r0 in ((side, 0), (late, 4), (late2, 5)):
                    if lst and r >= r0:
                        a.put(lst.pop(0))
                        if lst is side and lst:
                            a.put(lst.pop(0))
                        break
            first = False
            if q <= 1 and r < 7:
                a.put(rdB(r + 1, p))
    assert not side and not late and not late2
    m, rest = merge(a.end(), list(bg), bg_start, bg_every)
    a.put(m)
    stamp(f"conv{layer} loop", 111)
    if (armed(1) if layer else sentinel(1)):
        poll_take(cvP)
    if hinted(e) and OPT["h_cv"] == 0:
        hint_put(cvH)
    PK = 24
    for i in range(4):
        for k in range(2):
            a(f"v_pk_add_f32 {vr(ZF + 4 * i + 2 * k, 2)}, {vr(ZF + 4 * i + 2 * k, 2)}, {vr(ACC + 4 * i + 2 * k, 2)}")
        for k in range(2):
            a(f"v_cvt_pk_bf16_f32 v{PK + 2 * i + k}, v{ZF + 4 * i + 2 * k}, v{ZF + 4 * i + 2 * k + 1}")
        if i & 1:
            b = PK + 2 * (i - 1)
            a(f"v_permlane16_swap_b32 v{b}, v{b + 2}")
            a(f"v_permlane16_swap_b32 v{b + 1}, v{b + 3}")
            a(f"buffer_store_dwordx4 {vr(b, 4)}, v{cvO}, {srd(S_WS)}, s{21 if i == 3 else 13} offen sc1", tag="pub")
    if hinted(e) and OPT["h_cv"] > 0:
        hint_put(cvH)
    if not flagged(e):
        a.barrier()
    else:
        flag_put(1 + 4 * layer, sPAIR, 40, "pub")
    return rest


def reduce32(V, n, W):
    for i in range(n):
        a(f"v_permlane16_swap_b32 v{V[i]}, v{V[n + i]}")
    for i in range(n):
        a(f"v_add_f32 v{V[i]}, v{V[i]}, v{V[n + i]}")
    h = n // 2
    for i in range(h):
        a(f"v_add_f32_dpp v{W[i]}, v{V[i]}, v{V[i]} row_ror:8 row_mask:0xf bank_mask:0x3")
    for i in range(h):
        a(f"v_add_f32_dpp v{W[i]}, v{V[i + h]}, v{V[i + h]} row_ror:8 row_mask:0xf bank_mask:0xc")
    g = h // 2
    for i in range(g):
        a(f"v_add_f32_dpp v{V[i]}, v{W[i]}, v{W[i]} row_half_mirror row_mask:0xf bank_mask:0x5")
    for i in range(g):
        a(f"v_add_f32_dpp v{V[i]}, v{W[i + g]}, v{W[i + g]} row_half_mirror row_mask:0xf bank_mask:0xa")
    for m in ("[1,0,3,2]", "[2,3,0,1]"):
        for i in range(g):
            a(f"v_add_f32_dpp v{V[i]}, v{V[i]}, v{V[i]} quad_perm:{m} row_mask:0xf bank_mask:0xf")
    return V[:g]


def maxchain(t, regs):
    regs = list(regs)
    if OPT["chk"] == 1:
        regs = regs[3::4]
    if len(regs) == 2:
        return [f"v_max_u32 v{t}, v{regs[0]}, v{regs[1]}"]
    out = [f"v_max3_u32 v{t}, v{regs[0]}, v{regs[1]}, v{regs[2]}"]
    regs = regs[3:]
    while len(regs) >= 2:
        out.append(f"v_max3_u32 v{t}, v{t}, v{regs[0]}, v{regs[1]}")
        regs = regs[2:]
    if regs:
        out.append(f"v_max_u32 v{t}, v{t}, v{regs[0]}")
    return out


RETRY = 0x10000


def ln(layer, wide):
    X = X1 if layer == 0 else X3
    H = H1 if layer == 0 else H3
    nf = 7 if wide else 4
    sI = sLN0 if wide else sLN
    RAW, XF, S, Q, W = 0, 28, 84, 92, 100
    vO, vPW, vPR, vAW, vAR, r, hr = 109, 110, 111, 112, 117, 114, 104
    vX, vS = 64, 68
    a(f"""s_mul_i32 s{sT0}, s{sWAVE}, 56
v_min_u32 v{r + 2}, 55, v{vLANE}""")
    a(f"v_add_u32 v{r + 2}, s{sT0}, v{r + 2}")
    a(f"v_and_b32 v118, {OPT['samp'] - 1}, v{vLANE}\nv_mul_u32_u24 v118, {56 // OPT['samp']}, v118\nv_add_u32 v118, s{sT0}, v118")
    ein, eout = 1 + 4 * layer, 2 + 4 * layer
    if OPT["lnd"] and emode(ein) == "D":
        a.wait_tag("pub")
    if wide:
        a(f"""s_mul_i32 s16, s{sI}, {BS}
s_lshl_b32 s{sT2}, s{sI}, 12""")
    else:
        a(f"""s_lshr_b32 s16, s{sI}, 1
s_mul_i32 s16, s16, {BS}
s_and_b32 s{sT0}, s{sI}, 1
s_lshl_b32 s{sT0}, s{sT0}, 5
s_add_u32 s16, s16, s{sT0}
s_lshl_b32 s{sT2}, s{sI}, 11""")
    a(f"""s_mul_i32 s{sT0}, s{sWAVE}, 7168
s_add_u32 s16, s16, s{sT0}
s_add_u32 s16, s16, {X}
s_add_u32 s17, s16, 4096
s_add_u32 s{sT2}, s{sT2}, {H}
s_mul_i32 s30, s{sWAVE}, 7""")
    if wide:
        for i in range(nf):
            a(f"""s_add_u32 s{sT0}, s30, {i}
s_lshr_b32 s{sT1}, s{sT0}, 2
s_lshl_b32 s{sT1}, s{sT1}, 18
s_add_u32 s{23 + i}, s{sT1}, s{sT2}
s_and_b32 s{sT1}, s{sT0}, 2
s_lshl_b32 s{sT1}, s{sT1}, 9
s_add_u32 s{23 + i}, s{23 + i}, s{sT1}
s_and_b32 s{sT1}, s{sT0}, 1
s_lshl_b32 s{sT1}, s{sT1}, 8
s_add_u32 s{23 + i}, s{23 + i}, s{sT1}""")
        a(f"""v_lshrrev_b32 v1, 2, v{vLANE}
v_lshlrev_b32 v{vO}, 4, v1
v_and_b32 v2, 1, v{vLANE}
v_lshl_add_u32 v{vO}, v2, 9, v{vO}
v_bfe_u32 v2, v{vLANE}, 1, 1
v_lshl_add_u32 v{vO}, v2, 11, v{vO}
v_and_b32 v1, 7, v1
v_and_b32 v2, 3, v{vLANE}
v_lshl_add_u32 v1, v2, 3, v1""")
    else:
        a(f"""v_lshrrev_b32 v1, 1, v{vLANE}
v_and_b32 v2, 1, v{vLANE}
v_lshlrev_b32 v{vX}, 6, v1
v_lshl_add_u32 v{vX}, v2, 4, v{vX}
v_mov_b32 v3, {OOB}
v_cmp_gt_u32 vcc, 32, v{vLANE}
v_cndmask_b32 v{vX + 1}, v3, v{vX}, vcc
s_lshl_b32 s30, s30, 4
s_mov_b32 s23, s{sT2}""")
        for i in range(nf):
            a(f"""v_add_u32 v4, s30, v1
v_lshrrev_b32 v5, 6, v4
v_lshlrev_b32 v5, 18, v5
v_bfe_u32 v6, v4, 5, 1
v_lshl_add_u32 v5, v6, 10, v5
v_and_b32 v6, 31, v4
v_lshl_add_u32 v5, v6, 4, v5
v_lshl_add_u32 v{vS + i}, v2, 9, v5""")
            if i < 3:
                a("s_add_u32 s30, s30, 32")
        a(f"""v_cndmask_b32 v{vS + 3}, v3, v{vS + 3}, vcc
v_bfe_u32 v1, v{vLANE}, 2, 3
v_lshl_add_u32 v1, v2, 3, v1""")
    a(f"""v_lshrrev_b32 v3, 5, v{vLANE}
v_lshl_add_u32 v1, v3, 5, v1
s_lshl_b32 s{sT1}, s{sWAVE}, 8
s_add_u32 s{sT1}, s{sT1}, {LNP}
v_lshl_add_u32 v{vPW}, v1, 2, s{sT1}
v_and_b32 v1, 31, v{vLANE}
v_lshlrev_b32 v{vPR}, 2, v1
v_add_u32 v{vPR}, {LNP}, v{vPR}
s_add_u32 s{sT1}, s{sT1}, 1024
v_lshl_add_u32 v{vAW}, v{vLANE}, 2, s{sT1}
v_lshl_add_u32 v{vAR}, v2, 5, s{sT1}
s_mov_b32 s18, 0
s_mov_b32 s19, -1""")
    prod = f"s_lshl_b32 s{sT0}, s{sI}, 6"
    if hinted(eout):
        hint_prep(eout + 10, prod, hr)
    arm = layer == 0 and sentinel(2)
    if arm:
        a(f"v_min_u32 v102, 27, v{vLANE}")
        poll_issue(18, 100)
    wait_edge(ein, r, r + 2, 118)
    if arm:
        poll_take(100)
    stamp(f"ln{layer} go")

    def loads():
        if not wide:
            return [f"buffer_load_dwordx4 {vr(RAW + 4 * i, 4)}, v{vX + (i == 3)}, {srd(S_WS)}, s{16 + i // 2} offen offset:{2048 * (i % 2)} sc1" for i in range(nf)]
        return [f"buffer_load_dwordx4 {vr(RAW + 4 * i, 4)}, v{vL16}, {srd(S_WS)}, s{16 + i // 4} offen offset:{1024 * (i % 4)} sc1" for i in range(nf)]
    again, back, stub = label("lna"), label("lnb"), label("lns")
    if sentinel(ein):
        a(f"s_mov_b32 s{sCNT}, 0")
        a(f"{again}:")
    for l in loads():
        a(l)
    if hinted(eout) and OPT["h_ln"] == 0:
        a.wait_vm0()
        hint_put(hr)
    if OPT["stamps"] == 1:
        a.wait_vm0()
    count_out(113)
    stamp(f"ln{layer} data", 113)
    for i in range(nf):
        for k in range(4):
            unpack(XF + 8 * i + 2 * k, XF + 8 * i + 2 * k + 1, RAW + 4 * i + k)
        for k in range(4):
            x = vr(XF + 8 * i + 2 * k, 2)
            if i == 0:
                a(f"v_pk_mul_f32 {vr(Q + 2 * k, 2)}, {x}, {x}")
            else:
                a(f"v_pk_fma_f32 {vr(Q + 2 * k, 2)}, {x}, {x}, {vr(Q + 2 * k, 2)}")
                a(f"v_pk_add_f32 {vr(S + 2 * k, 2)}, {vr(XF + 2 * k, 2) if i == 1 else vr(S + 2 * k, 2)}, {x}")
    if sentinel(ein):
        for l in maxchain(113, range(RAW, RAW + 4 * nf)) + ["v_cmp_eq_u32 vcc, -1, v113"]:
            a(l)
        STUBS.extend([f"{stub}:", f"s_add_u32 s{sCNT}, s{sCNT}, 1", f"s_cmp_lt_u32 s{sCNT}, {RETRY}", f"s_cbranch_scc1 {again}", f"s_branch {back}"])
    if hinted(eout) and OPT["h_ln"] == 1:
        hint_put(hr)
    for i in range(8):
        a(f"v_permlane32_swap_b32 v{S + i}, v{Q + i}")
        if i == 1 and sentinel(ein):
            a(f"s_cbranch_vccnz {stub}")
            a(f"{back}:")
    for i in range(0, 8, 2):
        a(f"v_pk_add_f32 {vr(S + i, 2)}, {vr(S + i, 2)}, {vr(Q + i, 2)}")
    for i in range(4):
        a(f"v_permlane16_swap_b32 v{S + i}, v{S + 4 + i}")
    for i in range(0, 4, 2):
        a(f"v_pk_add_f32 {vr(S + i, 2)}, {vr(S + i, 2)}, {vr(S + 4 + i, 2)}")
    for i in range(2):
        a(f"v_add_f32_dpp v{W + i}, v{S + i}, v{S + i} row_ror:8 row_mask:0xf bank_mask:0x3")
    for i in range(2):
        a(f"v_add_f32_dpp v{W + i}, v{S + 2 + i}, v{S + 2 + i} row_ror:8 row_mask:0xf bank_mask:0xc")
    a(f"v_add_f32_dpp v{S}, v{W}, v{W} row_shl:4 row_mask:0xf bank_mask:0x5")
    a(f"v_add_f32_dpp v{S}, v{W + 1}, v{W + 1} row_shr:4 row_mask:0xf bank_mask:0xa")
    if not wide:
        a(f"v_add_f32_dpp v{S}, v{S}, v{S} quad_perm:[2,3,0,1] row_mask:0xf bank_mask:0xf")
    a(f"ds_write_b32 v{vPW}, v{S}")
    a.barrier()
    if hinted(eout) and OPT["h_ln"] == 2:
        hint_put(hr)
    stamp(f"ln{layer} bar", 113)
    T = 0
    for w in range(4):
        a(f"ds_read2_b32 {vr(T + 2 * w, 2)}, v{vPR} offset0:{w * 64} offset1:{w * 64 + 32}")
    a(f"""v_pk_add_f32 {vr(T, 2)}, {vr(T, 2)}, {vr(T + 2, 2)}
v_pk_add_f32 {vr(T + 4, 2)}, {vr(T + 4, 2)}, {vr(T + 6, 2)}
v_pk_add_f32 {vr(T, 2)}, {vr(T, 2)}, {vr(T + 4, 2)}
v_mul_f32 v{T}, {f32(1 / 448)}, v{T}
v_mul_f32 v{T + 1}, {f32(1 / 448)}, v{T + 1}
v_fma_f32 v{T + 1}, -v{T}, v{T}, v{T + 1}
v_max_f32 v{T + 1}, 0, v{T + 1}
v_add_f32 v{T + 2}, {f32(1e-5)}, v{T + 1}
v_fmamk_f32 v{T + 2}, v{T + 2}, {f32(1e-5)}, v{T + 1}
v_rsq_f32 v{T + 2}, v{T + 2}
v_mul_f32 v{T + 3}, -v{T}, v{T + 2}
v_cndmask_b32 v{T + 2}, v{T + 2}, v{T + 3}, s[18:19]
ds_write_b32 v{vAW}, v{T + 2}""")
    AL, BE = S, Q
    done_hint = []
    a(f"""ds_read_b128 {vr(AL, 4)}, v{vAR}
ds_read_b128 {vr(BE, 4)}, v{vAR} offset:128
ds_read_b128 {vr(AL + 4, 4)}, v{vAR} offset:16
ds_read_b128 {vr(BE + 4, 4)}, v{vAR} offset:144""")
    for i in range(nf):
        for k in range(4):
            x = vr(XF + 8 * i + 2 * k, 2)
            a(f"v_pk_fma_f32 {x}, {x}, {vr(AL + 2 * k, 2)}, {vr(BE + 2 * k, 2)}")
        for k in range(4):
            a(f"v_cvt_pk_bf16_f32 v{RAW + 4 * i + k}, v{XF + 8 * i + 2 * k}, v{XF + 8 * i + 2 * k + 1}")
        a(f"buffer_store_dwordx4 {vr(RAW + 4 * i, 4)}, v{vO if wide else vS + i}, {srd(S_WS)}, s{23 + i if wide else 23} offen sc1", tag="pub")
        if hinted(eout) and OPT["h_ln"] - 3 == min(i, 6) * (4 if nf == 7 else 4) // (nf + 1):
            if not done_hint:
                hint_put(hr)
                done_hint.append(1)
    stamp(f"ln{layer} st", 113)
    if flagged(eout):
        flag_put(eout, prod, 100, "pub")


def gemm_addr():
    a(f"""s_and_b32 s{sT0}, s{sWAVE}, 1
s_lshl_b32 s{sT0}, s{sT0}, 10
v_add_u32 v{vA0}, s{sT0}, v{vL16}
v_xor_b32 v{vA1}, 0x400, v{vA0}""")


vCHK = 121


def gemm_loop(nks, ring, nring, wreg, swap, sent, lds_from=99, at=None, bg=()):
    WF = 104
    nfr = 2 * nks

    def load(f):
        ks, db = f // 2, f % 2
        g = []
        if db == 0 and ks and ks % 2 == 0:
            g.append(Ins("s_add_u32 s13, s13, 4096"))
            if ks % 4 == 0:
                g += [Ins("s_cmp_eq_u32 s13, s28"), Ins("s_cmov_b32 s13, s27")]
        d = ring + 4 * (f % nring)
        g.append(Ins(f"buffer_load_dwordx4 {vr(d, 4)}, v{(vA0, vA1)[db]}, {srd(S_WS)}, s13 offen offset:{(ks % 2) * 2048} sc1"))
        return g

    def wread(ks):
        g = []
        slot = ks - lds_from
        for nb in range(2):
            for j in range(2):
                d = WF + 8 * (ks % 2) + 4 * nb + 2 * j
                g.append(Ins(f"ds_read_b64_tr_b16 {vr(d, 2)}, v{(vT2a, vT2b)[nb]} offset:{slot * 2048 + j * 1024}", res_r=[f"slot{slot}"]))
        return g

    def check(ks, upto):
        regs = [ring + 4 * ((2 * ks + db) % nring) + k for db in range(2) for k in range(4)]
        chk = maxchain(vCHK, regs) + [f"v_cmp_eq_u32 vcc, -1, v{vCHK}"]
        back, stub = label("gb"), label("gs")
        rl, cnt = [], 0
        for f in range(2 * ks, max(2 * ks + 2, min(upto, 2 * ks + 2 * OPT["rl"]))):
            k2, db = f // 2, f % 2
            if db == 0:
                rl += [f"s_add_u32 s3, s22, {k2 * 2048}", "s_cmp_ge_u32 s3, s28", f"s_cselect_b32 s18, {nks * 2048}, 0", "s_sub_u32 s3, s3, s18"]
            rl.append(f"buffer_load_dwordx4 {vr(ring + 4 * (f % nring), 4)}, v{(vA0, vA1)[db]}, {srd(S_WS)}, s3 offen sc1")
        STUBS.extend([f"{stub}:"] + rl + ["s_waitcnt vmcnt(0)"] + chk + [f"s_add_u32 s{sCNT}, s{sCNT}, 1", f"s_cbranch_vccz {back}",
                                                     f"s_cmp_lt_u32 s{sCNT}, {RETRY}", f"s_cbranch_scc1 {stub}", f"s_branch {back}"])
        return [Ins(x) for x in chk], [Ins(f"s_cbranch_vccnz {stub}"), Ins(f"{back}:")]

    if sent:
        a(f"s_mov_b32 s{sCNT}, 0")
    nxt = min(OPT["fill0"], nring)
    for f in range(nxt):
        a.put(load(f))
    if sent:
        c, b = check(0, nxt)
        a.put(c); a.put(b)
    extra = []
    bg = list(bg)
    for ks in range(nks):
        if at and ks in at:
            extra += a.capture(at[ks])
        pend = wread(ks + 1) if lds_from <= ks + 1 < nks else []
        c, b = check(ks + 1, min(nfr, nxt + 2, nring + 2 * ks + 2)) if (sent and ks + 1 < nks) else ([], [])
        order = [(0, 0), (0, 1), (1, 0), (1, 1)]
        if ks == nks - 1 and OPT["tailord"]:
            order = [(0, 1), (1, 0), (1, 1), (0, 0)]
        if True:
            for nb, db in order:
                acc = vr(16 * (2 * nb + db), 16)
                cc = acc if (ks or (nb | db) == 0) else "0"
                w = wreg(ks, nb) if ks < lds_from else vr(WF + 8 * (ks % 2) + 4 * nb, 4)
                x = vr(ring + 4 * ((2 * ks + db) % nring), 4)
                if OPT["fake16"] and 0 < ks < nks - 1:
                    b0 = 16 * (2 * nb + db) + 8 * (ks & 1)
                    for t in range(2):
                        a(f"v_mfma_f32_16x16x32_bf16 {vr(b0 + 4 * t, 4)}, {x if swap ^ t else w}, {w if swap ^ t else x}, {vr(b0 + 4 * t, 4)}")
                else:
                    a(f"v_mfma_f32_32x32x16_bf16 {acc}, {x if swap else w}, {w if swap else x}, {cc}")
                if pend:
                    a.put([pend.pop(0)])
                free = nring + 2 * ks + (db + 1 if nb == 1 else 0)
                if nxt < min(nfr, free) and (nb == 1 or db == 1):
                    a.put(load(nxt))
                    nxt += 1
                if bg and nb == 0 and ks >= OPT["bg0"]:
                    a.put(bg.pop(0))
                if extra and nb == 0:
                    k = 5
                    while k < len(extra) and ("exec" in extra[k - 1].defs and extra[k - 1].text != "s_mov_b64 exec, -1" or extra[k - 1].kind == "vstore"):
                        k += 1
                    a.put(extra[:k])
                    del extra[:k]
                if nb == 1 and db == 0:
                    a.put(c)
                if nb == 1 and db == 1:
                    a.put(b)
    a.put(extra)


def gemm_rot(nks, srot):
    a(f"s_mov_b32 s27, s13\ns_add_u32 s28, s13, {nks * 2048}\ns_lshl_b32 s{sT0}, s{srot}, 13\ns_add_u32 s13, s13, s{sT0}\ns_mov_b32 s22, s13")


def gemm_reduce_prep():
    slot = 6144 if OPT["bfr"] else 12288
    for rel in (1, 2, 3):
        a(f"s_xor_b32 s{23 + rel}, s{sWAVE}, {rel}\ns_mul_i32 s{23 + rel}, s{23 + rel}, {slot}")
    a(f"s_mul_i32 s23, s{sWAVE}, {slot}")


def gemm_reduce_addr():
    for rel in range(4):
        a(f"v_add_u32 v{64 + rel}, s{23 + rel}, v{vL16}")


def gemm_perm(P):
    if not OPT["bfr"]:
        return
    t, u = P + 8, P + 7
    a("s_mov_b32 s29, 0x3f80")
    a(f"""v_lshrrev_b32 v{u}, 5, v{vLANE}
v_and_b32 v{t}, 31, v{vLANE}
v_lshlrev_b32 v{u}, 2, v{u}
v_sub_u32 v{t}, v{t}, v{u}
v_and_b32 v{u}, 1, v{t}
v_lshlrev_b32 v{u}, 4, v{u}
v_lshlrev_b32 v{u}, v{u}, s29
v_ashrrev_i32 v{t}, 1, v{t}""")
    vals = (0, 1, 4, 5, 8, 9, 12, 13)
    pairs = ("s[16:17]", "s[30:31]", "s[50:51]")
    for d in range(10):
        if d < 8:
            a(f"v_cmp_eq_u32 {pairs[d % 3]}, {vals[d]}, v{t}")
        if d >= 2:
            a(f"v_cndmask_b32 v{P + d - 2}, 0, v{u}, {pairs[(d - 2) % 3]}")
    a(f"ds_write_b128 v{vL16}, {vr(P, 4)} offset:{PERM}")
    a(f"ds_write_b128 v{vL16}, {vr(P + 4, 4)} offset:{PERM + 1024}")


def gemm_perm_get(P):
    if OPT["bfr"]:
        a(f"ds_read_b128 {vr(P, 4)}, v{vL16} offset:{PERM}")
        a(f"ds_read_b128 {vr(P + 4, 4)}, v{vL16} offset:{PERM + 1024}")


def gemm_reduce_bf(P, pre, post, quarter):
    side = a.capture(pre) if pre else []
    a.put(side[:9])
    side = side[9:]
    T = [104, 108, 112, 116]
    n = 0
    for rel in (1, 2, 3):
        for j in range(2):
            t = T[n % 4]
            n += 1
            for k in range(4):
                r = 16 * rel + 8 * j + 2 * k
                a(f"v_cvt_pk_bf16_f32 v{t + k}, v{r}, v{r + 1}")
            a(f"ds_write_b128 v{64 + rel}, {vr(t, 4)} offset:{RB + (rel - 1) * 2048 + j * 1024}")
            a.put(side[:3])
            side = side[3:]
    a.put(side)
    a.barrier()
    for k in range(6):
        a(f"ds_read_b128 {vr(16 + 4 * k, 4)}, v64 offset:{RB + k * 1024}")
    if post:
        post()
    for k in range(6):
        a(f"v_mfma_f32_32x32x16_bf16 v[0:15], {vr(P + 4 * (k % 2), 4)}, {vr(16 + 4 * k, 4)}, v[0:15]")
    if quarter:
        for q in range(4):
            quarter(q)


def gemm_reduce(pre=None, post=None, quarter=None, P=None):
    if OPT["bfr"]:
        return gemm_reduce_bf(P, pre, post, quarter)
    side = a.capture(pre) if pre else []
    wr = [[Ins(f"ds_write_b128 v{64 + rel}, {vr(16 * rel + 4 * q, 4)} offset:{RB + (rel - 1) * 4096 + q * 1024}")] for rel in (1, 2, 3) for q in range(4)]
    a.put(side[:9])
    put_all(wr[:3])
    m, rest = merge(side[9:], wr[3:], 0, 12)
    a.put(m)
    put_all(rest)
    a.barrier()
    for q in range(4):
        for k in range(3):
            a(f"ds_read_b128 {vr(16 + 16 * k + 4 * q, 4)}, v64 offset:{RB + k * 4096 + q * 1024}")
        if q == 1 and post:
            post()
    for q in range(4):
        for h in range(2):
            r = 4 * q + 2 * h
            a(f"v_pk_add_f32 {vr(16 + r, 2)}, {vr(16 + r, 2)}, {vr(32 + r, 2)}")
            a(f"v_pk_add_f32 {vr(r, 2)}, {vr(r, 2)}, {vr(48 + r, 2)}")
        for h in range(2):
            r = 4 * q + 2 * h
            a(f"v_pk_add_f32 {vr(r, 2)}, {vr(r, 2)}, {vr(16 + r, 2)}")
        if quarter:
            quarter(q)


def gemm1(layer, wide, pre=None, bg=()):
    H = H1 if layer == 0 else H3
    G = G1 if layer == 0 else G3
    gemm_addr()
    a(f"""s_lshr_b32 s{sT0}, s{sWAVE}, 1
s_lshl_b32 s{sT0}, s{sT0}, 6
s_lshl_b32 s{sT1}, s{sNT}, 7
s_add_u32 s{sT0}, s{sT0}, s{sT1}
v_lshrrev_b32 v16, 5, v{vLANE}
v_lshl_add_u32 v16, v16, 3, s{sT0}""")
    for q in range(4):
        a(f"global_load_dwordx2 {vr(20 + 2 * q, 2)}, v16, {sp(P_B1)} offset:{16 * q}")
    r = 32
    a(f"""s_lshl_b32 s{sT0}, s{sWAVE}, 5
v_and_b32 v{r + 2}, 31, v{vLANE}
v_add_u32 v{r + 2}, s{sT0}, v{r + 2}
v_and_b32 v{r + 3}, {31 & ~(32 // OPT['samp'] - 1)}, v{vLANE}
v_add_u32 v{r + 3}, s{sT0}, v{r + 3}
s_lshl_b32 s13, s{sDT1}, 7
s_add_u32 s13, s13, s{sT0}
s_lshl_b32 s13, s13, 11
s_add_u32 s13, s13, {H}""")
    if wide:
        a(f"v_lshrrev_b32 v{r + 2}, 1, v{r + 2}\nv_lshrrev_b32 v{r + 3}, 1, v{r + 3}")
    c0 = -2 * math.log2(math.e) * math.sqrt(2 / math.pi)
    a(f"""s_mov_b32 s{sCA}, {f32(c0 * 0.044715)}
s_mul_i32 s21, s{sDT1}, 112
s_lshl_b32 s{sT0}, s{sNT}, 2
s_add_u32 s21, s21, s{sT0}
s_and_b32 s{sT0}, s{sWAVE}, 2
s_add_u32 s21, s21, s{sT0}
s_lshl_b32 s21, s21, 11
s_add_u32 s21, s21, {G}""")
    gemm_reduce_prep()
    gemm_rot(32, sROT1)
    if pre:
        pre()
    for k in range(8):
        unpack(2 * k, 2 * k + 1, 20 + k)
    ein, eout = 2 + 4 * layer, 3 + 4 * layer
    if emode(ein) == "M":
        l1, l2 = label("m1"), label("m2")
        a(f"s_cmp_eq_u32 s{sRL0 if wide else sRL}, 0\ns_cbranch_scc1 {l1}")
        a.wait_tag("pub")
        a(f"s_branch {l2}")
        a(f"{l1}:")
        wait_edge(ein, r, r + 2, r + 3)
        a(f"{l2}:")
    else:
        wait_edge(ein, r, r + 2, r + 3)
    stamp(f"g1_{layer} go", 63)
    prod = f"s_mul_i32 s{sT0}, s{sDT1}, 28\ns_add_u32 s{sT0}, s{sT0}, s{sNT}\ns_lshl_b32 s{sT0}, s{sT0}, 6"
    early = hinted(eout) and OPT["h_g1"] < 0
    at = {30: gemm_reduce_addr, 28: lambda: gemm_perm_get(96)}
    if early:
        assert OPT["h_g1"] in (-1, -3, -4)
        at[32 + OPT["h_g1"]] = lambda: (hint_prep(eout + 10, prod, 104), hint_put(104))
    gemm_loop(32, 64, 14, lambda ks, nb: f"a[{(ks * 2 + nb) * 4}:{(ks * 2 + nb) * 4 + 3}]", False, sentinel(ein), at=at)
    count_out(120)
    stamp(f"g1_{layer} loop", 120)
    a.begin()
    late = hinted(eout) and not early

    def pre():
        a(f"v_mov_b32 v80, {f32(c0)}")
        if late:
            hint_prep(eout + 10, prod, 72)

    def gelu(q):
        if q % 2 == 0:
            return
        half = q // 2
        if late and OPT["h_g1"] == 1 and half == 0:
            hint_put(72)
        rs = range(8 * half, 8 * half + 8, 2)
        for r in rs:
            a(f"v_pk_mul_f32 {vr(16 + r, 2)}, {vr(r, 2)}, {vr(r, 2)}")
        for r in rs:
            a(f"v_pk_fma_f32 {vr(16 + r, 2)}, {vr(16 + r, 2)}, {sp(sCA)}, {vr(80, 2)} op_sel_hi:[1,0,0]")
        for r in rs:
            a(f"v_pk_mul_f32 {vr(16 + r, 2)}, {vr(16 + r, 2)}, {vr(r, 2)}")
        for r in rs:
            a(f"v_exp_f32 v{16 + r}, v{16 + r}\nv_exp_f32 v{17 + r}, v{17 + r}")
        for r in rs:
            a(f"v_pk_add_f32 {vr(16 + r, 2)}, {vr(16 + r, 2)}, 1.0 op_sel_hi:[1,0]")
        for r in rs:
            a(f"v_rcp_f32 v{16 + r}, v{16 + r}\nv_rcp_f32 v{17 + r}, v{17 + r}")
        for r in rs:
            a(f"v_pk_mul_f32 {vr(r, 2)}, {vr(r, 2)}, {vr(16 + r, 2)}")
        for r in rs:
            a(f"v_cvt_pk_bf16_f32 v{84 + r // 2}, v{r}, v{r + 1}")
        a(f"buffer_store_dwordx4 {vr(84 + 4 * half, 4)}, v{vA0}, {srd(S_WS)}, s21 offen offset:{2048 * half} sc1", tag="pub")
        if late and OPT["h_g1"] == 2 + half:
            hint_put(72)
    gemm_reduce(pre, (lambda: hint_put(72)) if (late and OPT["h_g1"] == 0) else None, gelu, 96)
    m, rest = merge(a.end(), list(bg), 0, OPT["ev_g1"])
    a.put(m)
    if not flagged(eout):
        a.barrier()
    else:
        flag_put(eout, prod, 40, "pub")
    for g in rest:
        a.put(g)


def gemm2(layer, bg=()):
    G = G1 if layer == 0 else G3
    gemm_addr()
    a(f"""s_lshr_b32 s{sT0}, s{sWAVE}, 1
s_lshl_b32 s{sT0}, s{sT0}, 5
s_lshl_b32 s{sT1}, s{sST}, 6
s_add_u32 s50, s{sT0}, s{sT1}
s_and_b32 s{sT1}, s{sWAVE}, 1
s_lshl_b32 s{sT1}, s{sT1}, 5
s_lshl_b32 s{sT2}, s{sDT2}, 6
s_add_u32 s51, s{sT1}, s{sT2}
s_lshr_b32 s{sT2}, s50, 5
s_mul_i32 s{sT2}, s{sT2}, {BS}
s_lshl_b32 s{sT1}, s51, 6
s_add_u32 s20, s{sT2}, s{sT1}
s_add_u32 s30, s20, {X1 if layer == 0 else X3}
v_and_b32 v16, 31, v{vLANE}
v_lshrrev_b32 v17, 5, v{vLANE}
s_lshl_b32 s{sT0}, s50, 1""")
    r = 42

    def residual_issue():
        if layer == 0:
            for q in range(4):
                a(f"buffer_load_dwordx2 {vr(20 + 2 * q, 2)}, v18, {srd(S_WS)}, s30 offen offset:{16 * q} sc1")
        else:
            a(f"s_mov_b32 m0, s31")
            a(f"buffer_load_dwordx4 v{vL16}, {srd(S_WS)}, s30 offen sc1 lds", res_w=["x3"])
            a(f"buffer_load_dwordx4 v{vL16}, {srd(S_WS)}, s30 offen offset:1024 sc1 lds", res_w=["x3"])

    def residual_use():
        if layer == 0:
            for k in range(8):
                unpack(2 * k, 2 * k + 1, 20 + k)
            for k in range(8):
                unpack(40, 41, 28 + k)
                a(f"v_pk_add_f32 {vr(2 * k, 2)}, {vr(2 * k, 2)}, v[40:41]")
        else:
            for q in range(4):
                a(f"ds_read_b64_tr_b16 {vr(20 + 2 * q, 2)}, v31 offset:{512 * q}", res_r=["x3"])
            a("v_lshlrev_b32 v40, 16, v29")
            for k in range(8):
                unpack(2 * k, 2 * k + 1, 20 + k)
                a(f"v_pk_add_f32 {vr(2 * k, 2)}, {vr(2 * k, 2)}, v[40:41] op_sel_hi:[1,0]")

    if layer == 0:
        a(f"v_lshlrev_b32 v18, 6, v16\nv_lshl_add_u32 v18, v17, 3, v18\nv_lshl_add_u32 v19, v17, 3, s{sT0}")
        for q in range(4):
            a(f"global_load_dwordx2 {vr(28 + 2 * q, 2)}, v19, {sp(P_B2)} offset:{16 * q}")
    else:
        a(f"""v_and_b32 v19, 3, v{vLANE}
s_lshl_b32 s31, s{sWAVE}, 11
v_lshl_add_u32 v28, v16, 1, s{sT0}
global_load_ushort v29, v28, {sp(P_B2)}
v_bfe_u32 v31, v{vLANE}, 2, 2
v_lshl_add_u32 v31, v17, 2, v31
v_lshlrev_b32 v31, 6, v31
v_bfe_u32 v30, v{vLANE}, 4, 1
v_lshl_add_u32 v31, v30, 5, v31
v_lshl_add_u32 v31, v19, 3, v31
v_add_u32 v31, s31, v31""")
    a(f"""s_mul_i32 s{sT0}, s{sDT2}, 28
s_mul_i32 s{sT1}, s{sWAVE}, 7
s_add_u32 s{sT0}, s{sT0}, s{sT1}
v_min_u32 v{r + 2}, 6, v{vLANE}
v_add_u32 v{r + 2}, s{sT0}, v{r + 2}
v_mov_b32 v{r + 3}, v{r + 2}
s_lshl_b32 s13, s{sT0}, 13
s_add_u32 s13, s13, {G}""")
    if layer == 0:
        a(f"""s_add_u32 s21, s20, {X2}
s_lshl_b32 s19, s50, 1
s_add_u32 s19, s19, {ST1}""")
    else:
        a(f"s_mul_i32 s{sT0}, s50, 896\ns_lshl_b32 s{sT1}, s51, 1\ns_add_u32 s21, s{sT0}, s{sT1}")
    gemm_reduce_prep()
    gemm_rot(28, sROT2)
    lskip, ljoin = label("res"), label("resj")
    a(f"s_cmp_eq_u32 s{sR1}, 0")
    a(f"s_cbranch_scc1 {lskip}")
    residual_issue()
    residual_use()
    if emode(3 + 4 * layer) == "M":
        a.wait_tag("pub")
    else:
        wait_edge(3 + 4 * layer, r, r + 2, r + 3)
    a(f"s_branch {ljoin}")
    a(f"{lskip}:")
    eln = 2 + 4 * layer
    if OPT["rese"] and hinted(eln) and OPT["h_ln"] >= 2:
        wide = OPT["ln1w"] if layer else OPT["ln0w"]
        a(f"s_lshl_b32 s{sT0}, s{sST}, {1 if wide else 2}\nv_and_b32 v48, {1 if wide else 3}, v{vLANE}\nv_add_u32 v48, s{sT0}, v48")
        poll_issue(eln + 10, 46)
        poll_take(46)
        residual_issue()
        residual_use()
        wait_edge(3 + 4 * layer, r, r + 2, r + 3)
    else:
        wait_edge(3 + 4 * layer, r, r + 2, r + 3)
        residual_issue()
        residual_use()
    a(f"{ljoin}:")
    stamp(f"g2_{layer} go", 63)
    gemm_loop(28, 64, 10, lambda ks, nb: vr(128 + (ks * 2 + nb) * 4, 4), layer == 1, sentinel(3 + 4 * layer), lds_from=16, at={26: gemm_reduce_addr, 25: lambda: gemm_perm_get(88)}, bg=bg)
    count_out(120)
    stamp(f"g2_{layer} loop", 120)

    def addr():
        a(f"v_and_b32 v68, 31, v{vLANE}\nv_lshrrev_b32 v69, 5, v{vLANE}")
        if layer == 0:
            a(f"""v_and_b32 v70, 15, v{vLANE}
v_lshlrev_b32 v70, 6, v70
v_lshl_add_u32 v70, v69, 4, v70
v_bfe_u32 v71, v{vLANE}, 4, 1
v_lshl_add_u32 v70, v71, 5, v70
v_bfe_u32 v71, v{vLANE}, 2, 2
v_lshlrev_b32 v71, 4, v71
v_bfe_u32 v68, v{vLANE}, 4, 1
v_lshl_add_u32 v71, v68, 3, v71
v_and_b32 v68, 1, v{vLANE}
v_lshl_add_u32 v71, v68, 2, v71
v_bfe_u32 v68, v{vLANE}, 1, 1
v_lshl_add_u32 v68, v69, 1, v68
v_lshl_add_u32 v71, v68, 12, v71""")
        else:
            a(f"v_mul_u32_u24 v70, 896, v68\nv_lshl_add_u32 v70, v69, 4, v70")
    prod = f"s_lshl_b32 s{sT0}, s{sDT2}, 5\ns_add_u32 s{sT0}, s{sT0}, s{sST}\ns_lshl_b32 s{sT0}, s{sT0}, 6"
    hn = layer == 0 and hinted(4)

    def pre():
        addr()
        if hn:
            hint_prep(14, prod, 80)
    gemm_reduce(pre, (lambda: hint_put(80)) if (hn and OPT["h_g2"] == 0) else None, None, 88)
    if hn and OPT["h_g2"] == 1:
        hint_put(80)
    PK = 72
    stamp(f"g2_{layer} red", 120)
    for half in range(2):
        b = PK + 4 * half
        for k in range(4):
            a(f"v_cvt_pk_bf16_f32 v{b + k}, v{8 * half + 2 * k}, v{8 * half + 2 * k + 1}")
        a(f"v_permlane32_swap_b32 v{b}, v{b + 2}")
        a(f"v_permlane32_swap_b32 v{b + 1}, v{b + 3}")
        if layer == 1:
            a(f"buffer_store_dwordx4 {vr(b, 4)}, v70, {srd(S_OUT)}, s21 offen offset:{32 * half} {('', 'nt', 'sc1')[OPT['ofl']]}")
    if layer == 1:
        return
    for k in range(4):
        a(f"v_permlane16_swap_b32 v{PK + k}, v{PK + 4 + k}")
    for half in range(2):
        a(f"buffer_store_dwordx4 {vr(PK + 4 * half, 4)}, v70, {srd(S_WS)}, s21 offen offset:{1024 * half} sc1", tag="pub")
    if hn and OPT["h_g2"] == 2:
        hint_put(80)
    for k in range(8):
        a(f"v_pk_mul_f32 {vr(20 + 2 * k, 2)}, {vr(2 * k, 2)}, {vr(2 * k, 2)}")
    res = reduce32(list(range(16)) + list(range(20, 36)), 16, list(range(40, 48)))
    assert res == [0, 1, 2, 3]
    a(f"""v_cndmask_b32 v0, v0, v1, {sp(sM1)}
v_cndmask_b32 v2, v2, v3, {sp(sM1)}
v_cndmask_b32 v0, v0, v2, {sp(sM2)}""")
    a(f"buffer_atomic_add_f32 v0, v71, {srd(S_WS)}, s19 offen sc1", tag="pub")
    if hn and OPT["h_g2"] == 3:
        hint_put(80)
    stamp("g2_0 atom", 120)
    flag_put(4, prod, 40, "pub")
    stamp("g2_0 flag", 120)


def skip_unless(role):
    l = label("skip")
    a(f"s_cmp_eq_u32 s{role}, 0")
    a(f"s_cbranch_scc1 {l}")
    return l


def dmas(n0, n1):
    return [w_dma(n, h) for n in range(n0, n1) for h in range(2)]


def tr_dma(n0, n1):
    g = []
    for n in range(n0, n1):
        g.append(w_tr(n))
        if n > n0:
            g += dmas(n + 11, n + 12)
    g += dmas(n1 + 11, n1 + 12)
    return g


def wseq():
    nB = OPT["wB"] // 2
    assert 36 <= nB <= 60
    g = dmas(0, 12) + tr_dma(0, nB - 12)
    lastT = 48 if (nB >= 48 and OPT["wT"]) else 32 + OPT["wg"]
    g += [w_tr(n) for n in range(nB - 12, lastT)]
    g.append([])
    d = nB
    for n in range(max(lastT, nB - 12), 49):
        while d < min(n + 11, 60) or (n == 48 and d < 60):
            g += dmas(d, d + 1)
            d += 1
        if n < 48:
            g.append(w_tr(n))
    return g


def wcut(n_dma):
    k = 0
    for p, g in enumerate(wseq()):
        if k == n_dma:
            return p
        k += any(i.kind == "dma" for i in g)
    return len(wseq())


def put_all(gs):
    for g in gs:
        a.put(g)


def w2_touch(r):
    return [Ins(f"v_lshlrev_b32 v{r}, 12, v{vLANE}"), Ins(f"buffer_load_dword v{r}, v{r}, {srd(S_W2)}, s{sW2O} offen")]


def upad():
    a(f"""v_mov_b32 v32, 0
v_mov_b32 v33, 0
v_mov_b32 v34, 0
v_mov_b32 v35, 0
s_and_b32 s{sT0}, s{sWAVE}, 1
s_mul_i32 s{sT0}, s{sT0}, {UST}
v_add_u32 v36, s{sT0}, v{vL16}
ds_write_b128 v36, v[32:35] offset:{UB}""")


def build():
    global RB
    if OPT["bfr"] and OPT["keepk"]:
        RB = UB
    g = OPT["wg"]
    WORDER[:] = list(range(0, g)) + list(range(32, 32 + g)) + list(range(g, 32)) + list(range(32 + g, 60))
    if OPT["w2t"]:
        WORDER[:] = list(range(60))
    cA, cP, cL, cB = wcut(OPT["wA"]), wcut(OPT["wP"]), wcut(OPT["wL"]), wseq().index([])
    cK = wcut(OPT["wK"])
    prologue()
    laux, ljoin = label("aux"), label("join")
    a(f"s_cmp_eq_u32 s{sRC}, 0")
    a(f"s_cbranch_scc1 {laux}")
    stamp("args", 2)
    xt_loads()
    kgen_table_load()
    code_warm(1)
    page_warm(88)
    w_setup()
    put_all(wseq()[:cA])
    conv_setup(0)
    stamp("start", 2)

    xt_poll_addr(63, 2)
    xt_work()
    stamp("xt", 2)

    def h_flag():
        nonce_take()
        flag_put(0, sPAIR, 104, "st0")
        stamp("flag", 0)
        a(f"global_load_dwordx4 {vr(TAB, 4)}, v75, {sp(sTAB)}")
        a(f"global_load_dwordx4 {vr(TAB + 4, 4)}, v75, {sp(sTAB)} offset:16")
        a(f"global_load_dwordx2 v[0:1], v75, {sp(sTAB)} offset:32")

    hooks = {}
    dbg = tuple((p, (lambda p=p: stamp(f"hook{p}", 65))) for p in (0, 1, 2, 5)) if OPT["stamps"] == 1 else ()
    for pos, fn in dbg + ((OPT["h_flag"], h_flag), (OPT["h_w"], lambda: KBG.extend(wseq()[cA:cK] + ([w2_touch(75)] if OPT["w2t"] else []))), (OPT["h_poll"], lambda: poll_issue(0, 64, 63))):
        hooks.setdefault(pos, []).append(fn)
    assert OPT["h_flag"] <= OPT["h_w"] and OPT["h_poll"] >= 6
    kgen({k: (lambda fs=fs: [f() for f in fs]) for k, fs in hooks.items()})
    dump_lds(1)
    stamp("kgen", 21)

    def mid():
        poll_take(64, 63)
        stamp("e1 seen", 0)
        conv_loads()
    wr = kexpand(mid)
    if OPT["mixpro"]:
        mv = [i for i in wr if i.kind != "dsw"]
        st = [i for i in wr if i.kind == "dsw"]
        pro = a.capture(conv_pro, 0)
        k = next(n for n, i in enumerate(pro) if i.defs & {f"v{r}" for r in range(0, 22)})
        a.put(mv)
        a.put(st[2:4])
        head, rest = merge(pro[:k], [[i] for i in st[4:6] + st[:2] + st[6:]], 0, 14)
        a.put(head)
        early = [g for g in rest if g[0].uses & {f"v{r}" for r in range(0, 22)}]
        put_all(early)
        rest = [g for g in rest if g not in early]
        k2 = next(n for n, i in enumerate(pro) if i.kind == "dsw")
        mid2, rest = merge(pro[k:k2], rest, 0, 30)
        put_all(rest)
        m3, rest = merge(mid2 + pro[k2:], wseq()[cK:cP], 50, OPT["ev_pro"])
        a.put(m3)
        put_all(rest)
        stamp("expand", 111)
    else:
        a.put(wr)
        stamp("expand")
        conv_pro(0)
    if sentinel(1):
        a(f"v_min_u32 v{cvP + 2}, 27, v{vLANE}")
        poll_issue(8, cvP)
    a.barrier()
    dump_lds(2)
    stamp("conv0 go", 111)
    put_all(conv_main(0, wseq()[cP:cL], OPT["st_conv"], OPT["ev_conv"]))
    stamp("conv0 done")
    a(f"s_branch {ljoin}")
    a(f"{laux}:")
    aux_loads()
    kgen_table_addr()
    code_warm(1)
    page_warm(88)
    w_setup()
    aux_work()
    stamp("aux e1")
    if OPT["g7"] == 1:
        lg = label("g7")
        a(f"""s_cmp_lg_u32 s{sR1}, 0
s_cbranch_scc1 {lg}
s_lshr_b32 s{sT0}, s{sX}, 2
s_sub_u32 s{sT0}, s{sJ}, s{sT0}
s_sub_u32 s{sT0}, s{sT0}, 28
s_lshl_b32 s{sT0}, s{sT0}, 3
s_add_u32 s{sT0}, s{sT0}, s{sX}
s_lshl_b32 s{sT0}, s{sT0}, 7
s_mul_i32 s{sT1}, s{sWAVE}, {512 * 3584}
s_add_u32 s{sT0}, s{sT0}, s{sT1}
s_add_u32 s{sT0}, s{sT0}, {448 * 3584}
v_mul_u32_u24 v90, 3584, v{vLANE}
v_add_u32 v90, s{sT0}, v90""")
        a(f"global_load_dword v90, v90, {sp(P_W1)}")
        a(f"{lg}:")
    if armed(0):
        lnf = label("nf")
        a(f"s_cmp_lg_u32 s{sR1}, 0\ns_cbranch_scc1 {lnf}")
        if OPT["map18"] == 1:
            a(f"s_sub_u32 s16, s{sAUX}, 4\ns_cselect_b32 s16, s{sAUX}, s16")
        else:
            a(f"s_lshr_b32 s16, s{sAUX}, 1\ns_sub_u32 s17, s{sAUX}, 4\ns_cmp_lt_u32 s{sAUX}, 8\ns_cselect_b32 s16, s16, s17")
        if sentinel(1):
            fill(X1, 17, 80, 16, 28 * 4096, "fill")
            flag_put(8, 16, 72, "fill")
        if sentinel(2) or sentinel(3):
            if sentinel(2):
                fill(H1, 16, 80, 16, 28 * 4096, "fill")
            if sentinel(3):
                fill(G1, 14, 80, 16, 28 * 4096, "fill")
            flag_put(18, 16, 72, "fill")
        a(f"{lnf}:")
    stamp("aux fill")
    if OPT["g7"] == 2:
        lg = label("g7")
        a(f"""s_cmp_lg_u32 s{sR1}, 0
s_cbranch_scc1 {lg}
s_lshr_b32 s{sT0}, s{sX}, 2
s_sub_u32 s{sT0}, s{sJ}, s{sT0}
s_sub_u32 s{sT0}, s{sT0}, 28
s_lshl_b32 s{sT0}, s{sT0}, 3
s_add_u32 s{sT0}, s{sT0}, s{sX}
s_lshl_b32 s{sT0}, s{sT0}, 7
s_mul_i32 s{sT1}, s{sWAVE}, {512 * 3584}
s_add_u32 s{sT0}, s{sT0}, s{sT1}
s_add_u32 s{sT0}, s{sT0}, {448 * 3584}
v_mul_u32_u24 v90, 3584, v{vLANE}
v_add_u32 v90, s{sT0}, v90""")
        a(f"global_load_dword v90, v90, {sp(P_W1)}")
        a(f"{lg}:")
    cX = min(wcut(64 + 2 * OPT["wg"]), cB)
    if OPT["w2t"]:
        a.put(w2_touch(75))
    put_all(wseq()[:cX])
    if sentinel(1):
        a(f"v_min_u32 v62, 27, v{vLANE}")
        poll_issue(8, 60)
        poll_take(60)
    a.wait_vm0()
    stamp("aux w")
    a(f"{ljoin}:")
    for layer in range(2):
        if layer == 1:
            l = skip_unless(sRC)
            conv_setup(1)
            conv_poll1()
            stamp("conv1 ready")
            if OPT["kc_in"] and not hinted(4):
                a.wait_tag("flag")
                poll_issue(4, cvP)
                kcopies()
                poll_take(cvP)
            else:
                upad() if RB == UB else kcopies()
                if emode(4) == "G":
                    lg = label("gt")
                    a(f"s_cmp_lg_u32 s{sR2}, 0\ns_cbranch_scc1 {lg}")
                    poll_issue(14, cvP, cvP + 3)
                    poll_take(cvP, cvP + 3)
                    a(f"{lg}:")
                    a.wait_tag("flag")
                    poll_issue(4, cvP)
                    poll_take(cvP)
                else:
                    wait_edge(4, cvP, cvP + 2, cvP + 3)
            stamp("conv1 poll")
            conv_loads()
            conv_pro(1)
            if armed(1):
                a(f"v_and_b32 v{cvP + 2}, 31, v{vLANE}")
                poll_issue(9, cvP)
            a.barrier()
            dump_lds(3)
            stamp("conv1 go", 111)
            conv_main(1)
            stamp("conv1 done")
            if armed(1):
                lj = label("cvj")
                a(f"s_branch {lj}")
                a(f"{l}:")
                a(f"v_and_b32 v62, 31, v{vLANE}")
                poll_issue(9, 60)
                poll_take(60)
                a(f"{lj}:")
            else:
                a(f"{l}:")
        wide = OPT["ln1w"] if layer else OPT["ln0w"]
        l = skip_unless(sRL0 if wide else sRL)
        ln(layer, wide)
        stamp(f"ln{layer} done")
        a(f"{l}:")
        if layer == 0:
            gemm_perm(0)
            l = skip_unless(sRC)
            put_all(wseq()[cL:cX])
            a(f"{l}:")
            rest = wseq()[cX:cB]
            k = max(0, len(rest) - 12)
            put_all(rest[:k])
            if sentinel(2) or sentinel(3):
                a(f"v_min_u32 v62, 27, v{vLANE}")
                poll_issue(18, 60)
            put_all(rest[k:])
            if sentinel(2) or sentinel(3):
                poll_take(60)
            stamp("w B")
            tail = wseq()[cB:]
            assert not any(i.kind == "dsr" and "a[" in i.text for g in tail for i in g)
            lelse, lj = label("ng1"), label("g1j")
            a(f"s_cmp_eq_u32 s{sR1}, 0")
            a(f"s_cbranch_scc1 {lelse}")
            gemm1(0, wide, None, [] if OPT["t2"] else tail)
            nonce_retire()
            stamp("g1_0 done")
            a(f"s_branch {lj}")
            a(f"{lelse}:")
            put_all([] if OPT["t2"] else wseq()[cB:])
            a(f"{lj}:")
        else:
            l = skip_unless(sR1)
            gemm1(1, wide)
            stamp("g1_1 done")
            a(f"{l}:")
        l = skip_unless(sR2)
        gemm2(layer, [g for g in wseq()[cB:] if g] if (layer == 0 and OPT["t2"]) else [])
        if layer == 0 and armed(1):
            lj = label("g2j")
            a(f"s_branch {lj}")
            a(f"{l}:")
            if OPT["map18"]:
                a(f"s_lshl_b32 s16, s{sX}, 2\ns_add_u32 s16, s16, s{sJ}")
            else:
                a(f"s_lshr_b32 s16, s{sX}, 1\ns_lshl_b32 s16, s16, 3\ns_add_u32 s16, s16, s{sJ}")
            for base, n, e in ((X3, 15, 5), (H3, 14, 6), (G3, 13, 7)):
                if sentinel(e):
                    fill(base, n, 72, 16, CH)
            flag_put(9, 16, 8, "st0")
            a(f"{lj}:")
        else:
            a(f"{l}:")
        stamp("g2_0 done" if layer == 0 else "end")
    if OPT["stamps"] and OPT["dbgwg"] < 0:
        l = label("ls")
        a(f"s_cmp_lg_u32 s{sWAVE}, 0\ns_cbranch_scc1 {l}\ns_waitcnt vmcnt(0)\ns_memrealtime {sp(sSTAMP)}\ns_waitcnt lgkmcnt(0)")
        a(f"s_lshl_b32 s3, s2, 8\ns_add_u32 s3, s3, {STAMPS + 248}\nv_mov_b32 v0, s101\nv_mov_b32 v1, s{sSTAMP}\ns_mov_b64 exec, 1")
        a(f"buffer_store_dwordx2 v[0:1], off, {srd(S_WS)}, s3")
        a(f"{l}:")
    if OPT["fixdur"]:
        a(f"s_waitcnt vmcnt(0) lgkmcnt(0)\nL_fix:\ns_memrealtime s[28:29]\ns_waitcnt lgkmcnt(0)\ns_sub_u32 s28, s28, s101\ns_cmp_lt_u32 s28, {OPT['fixdur']}\ns_cbranch_scc1 L_fix")
    a("s_endpgm")


def bf16_round_int(l):
    b = struct.unpack("<I", struct.pack("<f", float(l)))[0]
    b = (b + 0x7FFF + ((b >> 16) & 1)) & 0xFFFF0000
    return int(struct.unpack("<f", struct.pack("<I", b))[0])


def ktab():
    vals = []
    for c in range(2):
        for x in range(2048):
            lr = bf16_round_int(2047 - x)
            aa, rem = lr >> 7, lr & 127
            j, e = rem >> 3, rem & 7
            if aa < 2:
                rho = 8 * aa + e
            elif aa < 4:
                rho = 4 * aa + 8 + (e >> 1)
            elif aa < 8:
                rho = 16 + 2 * aa + (e >> 2)
            else:
                rho = 24 + aa
            vals.append((rho >> 2) * 256 + j * 16 + (rho & 3) * 4 + c * 2 * GST)
        vals += [3072 + c * 2 * GST] * 16
    lines = []
    for i in range(0, len(vals), 16):
        lines.append("    .short " + ", ".join(str(v) for v in vals[i:i + 16]))
    return "\n".join(lines)


DOC = """;
;   gemm1 : gelu(h^T W1 + b1), 64x64 tile per workgroup, K split over the waves, W1 tile resident in AGPRs
;   gemm2 : x + g W2 + b2, W2 tile resident in VGPRs + LDS; per-token sums for the next LayerNorm by atomics
; Every wait is bounded.  Generated by the author's own script (register allocation and schedule are explicit).
"""


def main(path):
    build()
    ins = a.finish()
    ref = open(f"cdna_kernels/{NAME}.s.ref").read().split("\n")
    head = [l for l in ref if l.startswith(";") and "@launch" not in l and not l.startswith("; Override") and not l.startswith("; grid=ceil")]
    k = NAME + "_kernel"
    s = "\n".join(head) + f"\n; @launch grid=(256,1,1) block=(256,1,1) lds={LDS_BYTES}\n"
    s += DOC
    s += f""".amdgcn_target "amdgcn-amd-amdhsa--gfx950"
.text
.globl {k}
.p2align 8
.type {k},@function
{k}:
L_entry:
"""
    s += Prog.render(ins)
    s += "".join((l if l.endswith(":") else "    " + l) + "\n" for l in STUBS)
    s += f""".p2align 6
.type ktab,@object
ktab:
{ktab()}
.size ktab, 8256
.section .rodata,"a"
.p2align 6
.amdhsa_kernel {k}
  .amdhsa_next_free_vgpr 512
  .amdhsa_next_free_sgpr 102
  .amdhsa_accum_offset 256
  .amdhsa_group_segment_fixed_size 0
  .amdhsa_kernarg_size 136
  .amdhsa_user_sgpr_count 2
  .amdhsa_user_sgpr_kernarg_segment_ptr 1
  .amdhsa_system_sgpr_workgroup_id_x 1
  .amdhsa_float_denorm_mode_32 3
.end_amdhsa_kernel
"""
    open(path, "w").write(s)
    n = sum(1 for i in ins if i.kind not in ("label", "comment"))
    open(path + ".names", "w").write("\n".join(STAMP_NAMES))
    print("instructions:", n, "nops:", sum(1 for i in ins if i.kind == "nop"), "waits:", sum(1 for i in ins if i.kind == "wait"))


if __name__ == "__main__":
    path = sys.argv[1]
    for kv in sys.argv[2:]:
        k, v = kv.split("=")
        OPT[k] = v if k in ('em', 'probe') else int(v)
    main(path)
```

```python
import sys, math, struct
from asmlib import *

NAME = "interleave_layers__ssm_conv_s4__mixer_token_mlp__prompt"
OPT = dict(stamps=False, stop=99, upfront=True, dump=0, dbgwg=-1, fixdur=0, em='FSSFDSS', warm=1, h_flag=2, h_w=2, h_poll=9, h_ln=2, h_cv=0, h_g1=0, h_g2=3, rot=1, wA=0, wK=8, wP=8, wL=16, wB=120, wT=1, lag=2, gap=3, st_conv=100, ev_conv=150, ev_g1=100000, fill0=14, ln1w=0, ln0w=1, chk=1, samp=8, map18=1, ofl=0, tailord=1, cv=1, clk=0, ev_kg=150, mixpro=1, now=0, probe='', kc_in=0, w2t=0, g7=0, rl=4, bfr=1, wg=4, slp=0, ev_pro=30, t2=0, bg0=0, tlb=0, rese=0, lnd=1, keepk=0, fake16=0, wnt=0, wnta=0, fnt=0, pnt=0, xnt=0, auxs=1, inb=2)
DBG_SEL = ['start', 'kgen', 'conv0 go', 'ln0 go', 'g1_0 go', 'g1_0 loop', 'g2_0 go', 'g2_0 loop', 'conv1 poll', 'ln1 go', 'g1_1 go', 'g2_1 go', 'end']
STAMP_NAMES = []

EPOCH = 0
ST0 = 0x1000
ST1 = 0x8000
STAMPS = 0x20000
FL = 0x100000
BS = 448 * 64 + 128
CH = 0x20000
X1, H1, G1, X3, H3, G3, X2, X0 = (0x400000 + 0x200000 * i for i in range(8))
FILL1, FILL3 = 6, 36
WS_BYTES = 268435456
OOB = 0x40000000

KST = 4160
KSLOT = {0: [0, 5, 2, 3], 1: [1, 6, 7, 4]}
UB = 8 * KST
UPAD = 1024
UST = 4096 + UPAD
ZB = UB + 2 * UST
EX = 2 * KST
RB = 2 * KST
GST = 15616
GROW = 272
TOFF = 12288
LNP = 57472
PERM = 61440
W2L = 65536
LDS_BYTES = 163840

sWAVE, sX, sJ, sPAIR, sDT1, sNT, sDT2, sST, sLN = 4, 5, 6, 7, 8, 9, 10, 11, 12
sNONCE = 14
P_U, P_ARE, P_AIM, P_BRE, P_BIM, P_CRE, P_CIM, P_LDT = 16, 18, 20, 22, 24, 26, 28, 30
P_DSK, P_W1, P_B1, P_W2, P_B2, P_OUT, P_DBG, P_WS = 32, 36, 38, 40, 42, 44, 46, 48
S_WS, S_W1, S_W2, S_X0, S_OUT = 52, 56, 60, 64, 68
sD0, sD1 = 72, 74
sLDT = 76
sEP = 78
sWOFF, sT0, sT1, sT2, sT3, sCNT = 80, 81, 82, 83, 84, 85
sRC, sR1, sR2, sRL = 86, 87, 88, 89
sM1, sM2 = 90, 92
sSTAMP = 94
sTAB = 96
sLN0, sRL0 = 77, 73
sCA, sCB = 34, 100

vLANE, vL16, vT2a, vT2b, vT1a, vT1b, vD1, vD2 = 127, 126, 125, 124, 123, 122, 121, 120
vA0, vA1 = 123, 122


def srd(n):
    return f"s[{n}:{n + 3}]"


def sp(n):
    return f"s[{n}:{n + 1}]"


def vr(n, k):
    return f"v[{n}:{n + k - 1}]" if k > 1 else f"v{n}"


def f32(x):
    return "0x%08x" % struct.unpack("<I", struct.pack("<f", x))[0]


a = Prog()
_lab = [0]


def label(p):
    _lab[0] += 1
    return f"L_{p}_{_lab[0]}"


_stamp = [0]


def stamp(name, r=1):
    k = _stamp[0]
    _stamp[0] += 1
    STAMP_NAMES.append(name)
    a("; MARK after " + name)
    if OPT["probe"] == name.replace(" ", "_"):
        a(f"s_memrealtime {sp(sSTAMP)}\ns_waitcnt lgkmcnt(0)\ns_mov_b32 s101, s{sSTAMP}")
    if OPT["stamps"] != 1:
        return
    l = label("st")
    if OPT["dbgwg"] >= 0:
        if name not in DBG_SEL:
            return
        a(f"s_lshl_b32 s3, s{sWAVE}, 8\ns_add_u32 s3, s3, s2\ns_cmp_lg_u32 s3, {OPT['dbgwg']}\ns_cbranch_scc1 {l}")
        a(f"s_memrealtime {sp(sSTAMP)}")
        a("s_waitcnt lgkmcnt(0)")
        a(f"s_mov_b64 exec, 1\nv_mov_b32 v{r}, s{sSTAMP}\ns_mov_b32 s{sSTAMP}, s{P_DBG}\ns_mov_b32 s{sSTAMP + 1}, s{P_DBG + 1}\ns_mov_b32 s{sSTAMP + 2}, 256\ns_mov_b32 s{sSTAMP + 3}, 0x20000".replace(f"s{sSTAMP}, s{P_DBG}", f"s64, s{P_DBG}").replace(f"s{sSTAMP + 1}, s{P_DBG + 1}", f"s65, s{P_DBG + 1}").replace(f"s{sSTAMP + 2}, 256", "s66, 256").replace(f"s{sSTAMP + 3}, 0x20000", "s67, 0x20000"))
        a(f"buffer_store_dword v{r}, off, s[64:67], 0 offset:{12 + 4 * DBG_SEL.index(name)} sc1", optional=True)
        a("s_mov_b64 exec, -1")
        a(f"{l}:")
        return
    a(f"s_cmp_lg_u32 s{sWAVE}, 0")
    a(f"s_cbranch_scc1 {l}")
    a(f"{'s_memtime' if OPT['clk'] else 's_memrealtime'} {sp(sSTAMP)}")
    a("s_waitcnt lgkmcnt(0)")
    a(f"s_lshl_b32 s3, s2, 8")
    a(f"s_add_u32 s3, s3, {STAMPS + 4 * k}")
    a(f"v_mov_b32 v{r}, s{sSTAMP}")
    a("s_mov_b64 exec, 1")
    a(f"buffer_store_dword v{r}, off, {srd(S_WS)}, s3", optional=True)
    a("s_mov_b64 exec, -1")
    a(f"{l}:")


_cnt = [0]


def count_out(r):
    if OPT["stamps"] != 1:
        return
    k = _cnt[0]
    _cnt[0] += 1
    a(f"s_lshl_b32 s3, s2, 2\ns_add_u32 s3, s3, s{sWAVE}\ns_lshl_b32 s3, s3, 5\ns_add_u32 s3, s3, {STAMPS + 0x10000 + 4 * k}")
    a(f"v_mov_b32 v{r}, s{sCNT}\ns_mov_b64 exec, 1")
    a(f"buffer_store_dword v{r}, off, {srd(S_WS)}, s3")
    a("s_mov_b64 exec, -1")


DUMP = 0x2000000


def dump_lds(point, r=96):
    if OPT["dump"] != point:
        return
    a.barrier()
    a(f"s_lshl_b32 s3, s{sWAVE}, 10\nv_add_u32 v{r + 4}, s3, v{vL16}\ns_lshl_b32 s3, s2, 16\ns_add_u32 s3, s3, {DUMP}")
    for i in range(16):
        a(f"ds_read_b128 {vr(r, 4)}, v{r + 4} offset:{i * 4096}")
        a(f"buffer_store_dwordx4 {vr(r, 4)}, v{r + 4}, {srd(S_WS)}, s3 offen")
        a("s_add_u32 s3, s3, 4096")
        a.wait_vm0()
    a.barrier()


def cmul(d, x, y):
    return [f"v_pk_mul_f32 {vr(d, 2)}, {vr(x, 2)}, {vr(y, 2)} op_sel:[1,1] op_sel_hi:[1,0] neg_lo:[0,1]",
            f"v_pk_fma_f32 {vr(d, 2)}, {vr(x, 2)}, {vr(y, 2)}, {vr(d, 2)} op_sel_hi:[0,1,1]"]


def cmul2(p, q=None):
    x = cmul(*p)
    if q is None:
        a(x[0]); a(x[1])
        return
    y = cmul(*q)
    a(x[0]); a(y[0]); a(x[1]); a(y[1])


def unpack(dlo, dhi, s):
    a(f"v_lshlrev_b32 v{dlo}, 16, v{s}")
    a(f"v_and_b32 v{dhi}, s0, v{s}")


def prologue():
    a("s_cmp_lt_u32 s2, 256")
    a("s_cbranch_scc1 L_start")
    a("s_endpgm")
    a("L_start:")
    if OPT["fixdur"] or OPT["stamps"]:
        a("s_memrealtime s[50:51]")
    a("s_load_dwordx16 s[16:31], s[0:1], 0")
    a("s_load_dwordx16 s[32:47], s[0:1], 64")
    a("s_load_dwordx2 s[48:49], s[0:1], 128")
    a(f"v_lshrrev_b32 v1, 6, v0")
    a(f"v_and_b32 v{vLANE}, 63, v0")
    a(f"v_readfirstlane_b32 s{sWAVE}, v1")
    a(f"v_lshlrev_b32 v{vL16}, 4, v{vLANE}")
    a(f"""s_and_b32 s{sX}, s2, 7
s_lshr_b32 s{sJ}, s2, 3
s_add_u32 s{sJ}, s{sJ}, 28
s_and_b32 s{sJ}, s{sJ}, 31
""")
    a(f"""s_lshr_b32 s{sT0}, s{sX}, 2
s_mul_i32 s{sPAIR}, s{sX}, 28
s_sub_u32 s{sRC}, s{sJ}, s{sT0}
s_add_u32 s{sPAIR}, s{sPAIR}, s{sRC}
s_cmp_lt_u32 s{sRC}, 28
s_cselect_b32 s{sRC}, 1, 0
s_mul_i32 s{sT2}, s{sJ}, 37
s_lshr_b32 s{sT2}, s{sT2}, 8
s_mul_i32 s{sT3}, s{sT2}, 7
s_sub_u32 s{sDT1}, s{sJ}, s{sT3}
s_lshl_b32 s{sNT}, s{sT2}, 3
s_add_u32 s{sNT}, s{sNT}, s{sX}
s_sub_u32 s{sT1}, s{sJ}, 4
s_cselect_b32 s{sR2}, 0, 1
s_and_b32 s{sT1}, s{sT1}, 31
s_mul_i32 s{sT2}, s{sT1}, 37
s_lshr_b32 s{sT2}, s{sT2}, 8
s_mul_i32 s{sT3}, s{sT2}, 7
s_sub_u32 s{sDT2}, s{sT1}, s{sT3}
s_lshl_b32 s{sST}, s{sX}, 2
s_add_u32 s{sST}, s{sST}, s{sT2}
s_cmp_eq_u32 s{sJ}, 0
s_cselect_b32 s{sT1}, 32, s{sJ}
s_mul_i32 s{sT2}, s{sX}, 12
s_add_u32 s{sT2}, s{sT2}, s{sT1}
s_sub_u32 s{sT2}, s{sT2}, 53
s_lshl_b32 s{sT3}, s{sX}, 2
s_add_u32 s{sT3}, s{sT3}, s{sJ}
s_sub_u32 s{sT3}, s{sT3}, 28
s_cmp_lg_u32 s{sT0}, 0
s_cselect_b32 s{sT1}, s{sT1}, s{sJ}
s_cselect_b32 s{sLN0}, s{sT2}, s{sT3}
s_cselect_b32 s{sRL0}, 21, 28
s_cmp_ge_u32 s{sT1}, s{sRL0}
s_cselect_b32 s{sRL0}, 1, 0""" if OPT["map18"] == 1 else f"""s_and_b32 s{sT0}, s{sX}, 1
s_lshr_b32 s{sT1}, s{sX}, 1
s_mul_i32 s{sPAIR}, s{sX}, 28
s_sub_u32 s{sRC}, s{sJ}, s{sT0}
s_add_u32 s{sPAIR}, s{sPAIR}, s{sRC}
s_cmp_lt_u32 s{sRC}, 28
s_cselect_b32 s{sRC}, 1, 0
s_mul_i32 s{sT2}, s{sJ}, 37
s_lshr_b32 s{sT2}, s{sT2}, 8
s_mul_i32 s{sT3}, s{sT2}, 7
s_sub_u32 s{sT3}, s{sJ}, s{sT3}
s_mul_i32 s{sNT}, s{sT1}, 7
s_add_u32 s{sNT}, s{sNT}, s{sT3}
s_lshl_b32 s{sT3}, s{sT0}, 2
s_add_u32 s{sDT1}, s{sT2}, s{sT3}
s_lshl_b32 s{sST}, s{sT0}, 3
s_sub_u32 s{sST}, s{sJ}, s{sST}
s_cselect_b32 s{sR2}, 0, 1
s_lshr_b32 s{sDT2}, s{sST}, 3
s_and_b32 s{sDT2}, s{sDT2}, 3
s_add_u32 s{sDT2}, s{sDT2}, s{sT3}
s_and_b32 s{sST}, s{sST}, 7
s_lshl_b32 s{sLN0}, s{sT1}, 4
s_lshl_b32 s{sT1}, s{sT1}, 3
s_add_u32 s{sST}, s{sST}, s{sT1}
s_cmp_eq_u32 s{sJ}, 0
s_cselect_b32 s{sT1}, 32, s{sJ}
s_mul_i32 s{sT2}, s{sT0}, 11
s_add_u32 s{sT2}, s{sT2}, s{sT1}
s_cmp_lg_u32 s{sT0}, 0
s_cselect_b32 s{sT1}, s{sT1}, s{sJ}
s_cselect_b32 s{sT2}, s{sT2}, s{sJ}
s_cselect_b32 s{sRL0}, 21, 28
s_cmp_ge_u32 s{sT1}, s{sRL0}
s_cselect_b32 s{sRL0}, 1, 0
s_add_u32 s{sLN0}, s{sLN0}, s{sT2}
s_sub_u32 s{sLN0}, s{sLN0}, 28""")
    if OPT["map18"] == 2:
        a(f"""s_sub_u32 s{sT1}, s{sJ}, 4
s_cselect_b32 s{sR2}, 0, 1
s_and_b32 s{sT1}, s{sT1}, 31
s_mul_i32 s{sT2}, s{sT1}, 37
s_lshr_b32 s{sT2}, s{sT2}, 8
s_mul_i32 s{sT3}, s{sT2}, 7
s_sub_u32 s{sDT2}, s{sT1}, s{sT3}
s_lshl_b32 s{sST}, s{sX}, 2
s_add_u32 s{sST}, s{sST}, s{sT2}""")
    a(f"""s_lshl_b32 s{sLN}, s{sX}, 4
s_add_u32 s{sLN}, s{sLN}, s{sJ}
s_sub_u32 s{sLN}, s{sLN}, 8
s_mul_i32 s{sT2}, s{sT0}, 7
s_sub_u32 s{sT2}, 28, s{sT2}
s_cmp_lt_u32 s{sJ}, s{sT2}
s_cselect_b32 s{sR1}, 1, 0
s_sub_u32 s{sT2}, s{sJ}, 8
s_cmp_lt_u32 s{sT2}, 16
s_cselect_b32 s{sRL}, 1, 0
s_min_u32 s{sPAIR}, s{sPAIR}, 223
s_min_u32 s{sNT}, s{sNT}, 27
s_mov_b32 s{sM1}, 0xaaaaaaaa
s_mov_b32 s{sM1 + 1}, 0xaaaaaaaa
s_mov_b32 s{sM2}, 0xcccccccc
s_mov_b32 s{sM2 + 1}, 0xcccccccc""")
    a("s_waitcnt lgkmcnt(0)")
    if OPT["fixdur"] or OPT["stamps"]:
        a("s_mov_b32 s101, s50")
    a("s_mov_b32 s0, 0xffff0000\ns_mov_b32 s1, 0xffff")
    a(f"""s_lshl_b32 s{sT0}, s{sPAIR}, 2
s_load_dword s{sLDT}, {sp(P_LDT)}, s{sT0}
s_load_dword s{sD0}, {sp(P_DSK)}, s{sT0}""")
    kgen_loads()
    for n, p, size in ((S_X0, P_U, 1835008), (S_WS, P_WS, WS_BYTES), (S_OUT, P_OUT, 1835008)):
        a(f"s_mov_b32 s{n}, s{p}\ns_mov_b32 s{n + 1}, s{p + 1}\ns_mov_b32 s{n + 2}, {size}\ns_mov_b32 s{n + 3}, 0x20000")
    a(f"buffer_load_dwordx2 v[104:105], off, {srd(S_WS)}, 0 offset:{EPOCH} sc1")
    for n, p, role in ((S_W1, P_W1, sR1), (S_W2, P_W2, sR2)):
        a(f"s_mov_b32 s{n}, s{p}\ns_mov_b32 s{n + 1}, s{p + 1}\ns_cmp_lg_u32 s{role}, 0\ns_cselect_b32 s{n + 2}, {0 if OPT['now'] & (1 if n == S_W1 else 2) else 7340032}, 0\ns_mov_b32 s{n + 3}, 0x20000")


sAUX = 75


def code_warm(r):
    if not OPT["warm"]:
        return
    a(f"""s_lshl_b32 s{sT0}, s{sJ}, 2
s_add_u32 s{sT0}, s{sT0}, s{sWAVE}
s_mul_i32 s{sT0}, s{sT0}, 640
v_lshl_add_u32 v{r}, v{vLANE}, 7, s{sT0}
s_mov_b32 s{sT1}, ktab-L_entry+8192
v_min_u32 v{r}, s{sT1}, v{r}
s_sub_u32 s28, s{sTAB}, ktab-L_entry
s_subb_u32 s29, s{sTAB + 1}, 0
s_mov_b64 exec, 31
global_load_dword v{r}, v{r}, s[28:29]
s_mov_b64 exec, -1""")


def page_warm(r):
    if not OPT["tlb"]:
        return
    a(f"""v_lshlrev_b32 v{r}, 21, v{vLANE}
v_add_u32 v{r}, 0x1fff80, v{r}
s_mov_b64 exec, 0x3ff
buffer_load_dword v{r}, v{r}, {srd(S_WS)}, 0 offen
s_mov_b64 exec, 1
buffer_load_dword v{r + 1}, off, {srd(S_OUT)}, 0
global_load_dword v{r + 2}, v{vLANE}, {sp(P_B1)}
global_load_dword v{r + 3}, v{vLANE}, {sp(P_B2)}
s_mov_b64 exec, -1""")


def fill(base, n, r, sidx, stride, tag="st0"):
    a(f"""s_lshl_b32 s{sT0}, s{sidx}, 12
s_lshl_b32 s{sT1}, s{sWAVE}, 10
s_add_u32 s{sT0}, s{sT0}, s{sT1}
s_add_u32 s{sT0}, s{sT0}, {base}""")
    for k in range(4):
        a(f"v_mov_b32 v{r + k}, -1")
    for k in range(n):
        a(f"buffer_store_dwordx4 {vr(r, 4)}, v{vL16}, {srd(S_WS)}, s{sT0} offen sc1{' nt' if OPT['fnt'] else ''}", tag=tag)
        if k + 1 < n:
            a(f"s_add_u32 s{sT0}, s{sT0}, {stride}")


def aux_loads():
    a(f"""s_and_b32 s{sAUX}, s{sJ}, 3
s_lshl_b32 s{sAUX}, s{sAUX}, 3
s_add_u32 s{sAUX}, s{sAUX}, s{sX}
s_lshl_b32 s16, s{sAUX}, 2
s_add_u32 s16, s16, s{sWAVE}
s_mul_i32 s{sT1}, s16, {16 * 896}
s_mul_i32 s17, s{sWAVE}, {16 * 912}
s_mov_b32 m0, s17
s_mov_b32 exec_hi, 0xffffff""")
    for k in range(16):
        if k:
            a(f"s_add_u32 m0, m0, 912\ns_add_u32 s{sT1}, s{sT1}, 896")
        a(f"buffer_load_dwordx4 v{vL16}, {srd(S_X0)}, s{sT1} offen {'nt ' if OPT['xnt'] & 2 else ''}lds", res_w=[f"x0"])
    a("s_mov_b64 exec, -1")


def aux_work():
    XR = 8
    a(f"""v_mov_b32 v76, 0
v_mov_b32 v77, 0
v_mov_b32 v78, 0
v_mov_b32 v79, 0
s_lshl_b32 s{sT1}, s16, 7
s_add_u32 s{sT1}, s{sT1}, {ST1}
s_lshl_b32 s18, s{sAUX}, 7
s_add_u32 s18, s18, {ST0}
s_mov_b64 exec, 0xff""")
    a(f"buffer_store_dwordx4 v[76:79], v{vL16}, {srd(S_WS)}, s{sT1} offen sc1", tag="st0")
    a(f"""s_mov_b64 exec, -1
v_and_b32 v2, 15, v{vLANE}
v_lshrrev_b32 v3, 4, v{vLANE}
v_mul_u32_u24 v4, 912, v2
v_lshl_add_u32 v4, v3, 4, v4
v_add_u32 v4, s17, v4
v_lshrrev_b32 v6, 2, v2
v_cmp_eq_u32 vcc, v6, v3
v_bfe_u32 v6, v2, 1, 2
v_lshlrev_b32 v6, 7, v6
v_lshrrev_b32 v7, 3, v2
v_lshl_add_u32 v6, v7, 4, v6
v_and_b32 v7, 1, v2
v_lshl_add_u32 v6, v7, 2, v6
s_lshl_b32 s{sT0}, s{sWAVE}, 5
s_add_u32 s{sT0}, s{sT0}, 60000
v_add_u32 v6, s{sT0}, v6
v_mov_b32 v7, 61024
v_cndmask_b32 v6, v7, v6, vcc
v_lshrrev_b32 v117, 3, v{vLANE}
v_cmp_eq_u32 vcc, s{sWAVE}, v117
v_lshlrev_b32 v117, 12, v117
v_and_b32 v7, 7, v{vLANE}
v_lshl_add_u32 v117, v7, 4, v117
v_mov_b32 v7, {OOB}
v_cndmask_b32 v117, v7, v117, vcc
v_mov_b32 v80, 0x3f803f80
v_mov_b32 v81, 0x3f803f80
v_mov_b32 v82, 0x3f803f80
v_mov_b32 v83, 0x3f803f80""")
    if OPT["stamps"] == 1:
        a.wait_vm0()
    stamp("aux data")
    for k in range(14):
        a(f"ds_read_b128 {vr(XR + 4 * k, 4)}, v4 offset:{64 * k}", res_r=["x0"])
    for k in range(14):
        x = vr(XR + 4 * k, 4)
        a(f"v_mfma_f32_16x16x32_bf16 v[64:67], v[80:83], {x}, {'v[64:67]' if k else 0}")
        a(f"v_mfma_f32_16x16x32_bf16 v[68:71], {x}, {x}, {'v[68:71]' if k else 0}")
    a(f"""v_cndmask_b32 v68, v68, v69, {sp(sM1)}
v_cndmask_b32 v70, v70, v71, {sp(sM1)}
v_cndmask_b32 v68, v68, v70, {sp(sM2)}""")
    a("ds_write2_b32 v6, v64, v68 offset0:0 offset1:2")
    a.barrier()
    a(f"ds_read_b128 v[64:67], v{vL16} offset:60000")
    a(f"buffer_store_dwordx4 v[64:67], v117, {srd(S_WS)}, s18 offen sc1", tag="st0")
    stamp("aux st")
    nonce_take()
    flag_put(0, f"s_add_u32 s{sT0}, s{sAUX}, 224\ns_lshl_b32 s{sT0}, s{sT0}, 6", 72, "st0")


def xt_loads():
    a(f"""s_lshl_b32 s{sT0}, s{sPAIR}, 1
s_lshr_b32 s{sT1}, s{sWAVE}, 1
s_add_u32 s{sT0}, s{sT0}, s{sT1}
s_mul_i32 s{sT1}, s{sT0}, 9363
s_lshr_b32 s{sT1}, s{sT1}, 16
s_mul_i32 s{sT2}, s{sT1}, 7
s_sub_u32 s{sT0}, s{sT0}, s{sT2}
s_lshl_b32 s{sT0}, s{sT0}, 1
s_and_b32 s{sT2}, s{sWAVE}, 1
s_add_u32 s{sT0}, s{sT0}, s{sT2}
s_mul_i32 s{sT2}, s{sT1}, {32 * 896}
s_lshl_b32 s{sT3}, s{sT0}, 6
s_add_u32 s{sT2}, s{sT2}, s{sT3}
v_lshrrev_b32 v2, 2, v{vLANE}
v_mul_u32_u24 v2, 896, v2
v_and_b32 v3, 3, v{vLANE}
v_lshl_add_u32 v2, v3, 4, v2
s_mul_i32 s22, s{sWAVE}, {GST}
s_mov_b32 m0, s22
s_mul_i32 s23, s{sT1}, {BS}""")
    a(f"buffer_load_dwordx4 v2, {srd(S_X0)}, s{sT2} offen {'nt ' if OPT['xnt'] & 1 else ''}lds", res_w=["x0"])
    a(f"s_add_u32 m0, m0, 1024\ns_add_u32 s{sT2}, s{sT2}, {16 * 896}")
    a(f"buffer_load_dwordx4 v2, {srd(S_X0)}, s{sT2} offen {'nt ' if OPT['xnt'] & 1 else ''}lds", res_w=["x0"])
    a(f"""s_lshl_b32 s{sT0}, s{sT0}, 11
s_add_u32 s23, s23, s{sT0}
s_add_u32 s23, s23, {X0}
v_lshrrev_b32 v2, 4, v{vLANE}
v_bfe_u32 v36, v{vLANE}, 2, 2
v_lshl_add_u32 v36, v2, 3, v36
v_lshlrev_b32 v36, 6, v36
v_lshl_add_u32 v36, v3, 3, v36
v_add_u32 v36, s22, v36
v_and_b32 v37, 15, v{vLANE}
v_lshlrev_b32 v37, 6, v37
v_lshl_add_u32 v37, v2, 4, v37""")


def xt_work():
    for u in range(2):
        for j in range(2):
            a(f"ds_read_b64_tr_b16 {vr(40 + 4 * u + 2 * j, 2)}, v36 offset:{j * 256 + u * 32}", res_r=["x0"])
    for u in range(2):
        a(f"buffer_store_dwordx4 {vr(40 + 4 * u, 4)}, v37, {srd(S_WS)}, s23 offen offset:{1024 * u} sc1", tag="st0")


def xt_poll_addr(ra, t):
    a(f"""s_lshl_b32 s{sT0}, s{sWAVE}, 4
v_and_b32 v{t}, 15, v{vLANE}
v_add_u32 v{t}, s{sT0}, v{t}
v_mul_u32_u24 v{t}, 7, v{t}
s_lshr_b32 s{sT0}, s{sPAIR}, 5
v_add_u32 v{t}, s{sT0}, v{t}
v_lshrrev_b32 v{t}, 1, v{t}
s_lshl_b32 s{sT0}, s{sWAVE}, 3
s_add_u32 s{sT0}, s{sT0}, 224
v_and_b32 v{ra}, 7, v{vLANE}
v_add_u32 v{ra}, s{sT0}, v{ra}
v_cmp_gt_u32 vcc, 16, v{vLANE}
v_cndmask_b32 v{ra}, v{ra}, v{t}, vcc""")


def e1_poll_addr(ra):
    a(f"s_lshl_b32 s{sT0}, s{sWAVE}, 6\nv_add_u32 v{ra}, s{sT0}, v{vLANE}")


def nonce_take():
    a(f"v_readfirstlane_b32 s{sNONCE}, v104\nv_readfirstlane_b32 s{sNONCE + 1}, v105")
    a(f"s_add_u32 s{sNONCE}, s{sNONCE}, 1")
    a(f"s_addc_u32 s{sNONCE + 1}, s{sNONCE + 1}, 0")


def nonce_retire():
    l = label("nr")
    a(f"s_or_b32 s{sT0}, s2, s{sWAVE}")
    a(f"s_cmp_lg_u32 s{sT0}, 32")
    a(f"s_cbranch_scc1 {l}")
    a(f"v_mov_b32 v110, s{sNONCE}\nv_mov_b32 v111, s{sNONCE + 1}\ns_mov_b64 exec, 1")
    a(f"buffer_store_dwordx2 v[110:111], off, {srd(S_WS)}, 0 offset:{EPOCH} sc1", optional=True)
    a("s_mov_b64 exec, -1")
    a(f"{l}:")


def flag_put(edge, sprod, r, tag):
    a(f"s_lshl_b32 s{sT0}, s{sprod}, 6" if isinstance(sprod, int) else sprod)
    a(f"""s_lshl_b32 s{sT1}, s{sWAVE}, 15
s_add_u32 s{sT0}, s{sT0}, s{sT1}
s_add_u32 s{sT0}, s{sT0}, {FL + edge * 0x20000}
v_lshlrev_b32 v{r + 4}, 12, v{vLANE}
v_and_b32 v{r + 4}, 0x4000, v{r + 4}
v_and_b32 v{r}, 3, v{vLANE}
v_lshl_add_u32 v{r + 4}, v{r}, 4, v{r + 4}
v_mov_b32 v{r}, s{sNONCE}
v_mov_b32 v{r + 1}, s{sNONCE + 1}
v_mov_b32 v{r + 2}, s{sNONCE}
v_mov_b32 v{r + 3}, s{sNONCE + 1}""")
    a.wait_tag(tag)
    a.barrier()
    a("s_mov_b64 exec, 0xff")
    a(f"buffer_store_dwordx4 {vr(r, 4)}, v{r + 4}, {srd(S_WS)}, s{sT0} offen sc1", tag="flag")
    a("s_mov_b64 exec, -1")


def emode(e):
    return OPT["em"][e - 1]


def hinted(e):
    return emode(e) in "HSMG"


def sentinel(e):
    return emode(e) in "SDM"


def flagged(e):
    return emode(e) in "FHG"


def armed(layer):
    return any(sentinel(e + 4 * layer) for e in (1, 2, 3))


def wait_edge(e, r, ra_full, ra_samp):
    if hinted(e):
        poll_issue(e + 10, r, ra_samp)
        poll_take(r, ra_samp)
    elif emode(e) == "D":
        a.wait_tag("pub")
    else:
        a.wait_tag("flag")
    if flagged(e):
        poll_issue(e, r, ra_full)
        poll_take(r, ra_full)


def hint_prep(edge, sprod, r):
    a(f"s_lshl_b32 s{sT0}, s{sprod}, 6" if isinstance(sprod, int) else sprod)
    a(f"""s_lshl_b32 s{sT1}, s{sWAVE}, 15
s_add_u32 s{sT0}, s{sT0}, s{sT1}
s_add_u32 s{sT0}, s{sT0}, {FL + edge * 0x20000}
v_lshlrev_b32 v{r + 4}, 12, v{vLANE}
v_and_b32 v{r + 4}, 0x4000, v{r + 4}
v_and_b32 v{r}, 3, v{vLANE}
v_lshl_add_u32 v{r + 4}, v{r}, 4, v{r + 4}
v_add_u32 v{r + 4}, s{sT0}, v{r + 4}
v_mov_b32 v{r}, s{sNONCE}
v_mov_b32 v{r + 1}, s{sNONCE + 1}
v_mov_b32 v{r + 2}, s{sNONCE}
v_mov_b32 v{r + 3}, s{sNONCE + 1}""")


def hint_put(r):
    a("s_mov_b64 exec, 0xff")
    a(f"buffer_store_dwordx4 {vr(r, 4)}, v{r + 4}, {srd(S_WS)}, 0 offen sc1", tag="hint")
    a("s_mov_b64 exec, -1")


def poll_issue(edge, r, ra=None):
    ra = r + 2 if ra is None else ra
    a(f"""s_lshl_b32 s{sT3}, s{sX}, 14
s_add_u32 s{sT3}, s{sT3}, {FL + edge * 0x20000}
v_lshl_add_u32 v{ra}, v{ra}, 6, s{sT3}
buffer_load_dwordx2 {vr(r, 2)}, v{ra}, {srd(S_WS)}, 0 offen sc1""")


def poll_take(r, ra=None):
    ra = r + 2 if ra is None else ra
    ok, lp = label("pok"), label("plp")
    a(f"v_cmp_ne_u64 vcc, {sp(sNONCE)}, {vr(r, 2)}")
    a(f"s_cbranch_vccz {ok}")
    a(f"s_mov_b32 s{sCNT}, 0")
    a(f"{lp}:")
    if OPT["slp"]:
        a(f"s_sleep {OPT['slp']}")
    a(f"buffer_load_dwordx2 {vr(r, 2)}, v{ra}, {srd(S_WS)}, 0 offen sc1")
    a("s_waitcnt vmcnt(0)")
    a(f"v_cmp_ne_u64 vcc, {sp(sNONCE)}, {vr(r, 2)}")
    a(f"s_add_u32 s{sCNT}, s{sCNT}, 1")
    a(f"s_cbranch_vccz {ok}")
    a(f"s_cmp_lt_u32 s{sCNT}, 0x100000")
    a(f"s_cbranch_scc1 {lp}")
    a(f"{ok}:")


sW1O, sW2O = 98, 99
sROT1, sROT2 = 33, 35
sW1E, sW2E = 78, 79


def w_setup():
    a(f"""v_lshrrev_b32 v2, 3, v{vLANE}
v_and_b32 v3, 7, v{vLANE}
v_bfe_u32 v4, v{vLANE}, 4, 1
v_lshlrev_b32 v4, 2, v4
v_xor_b32 v3, v3, v4
v_lshlrev_b32 v3, 4, v3
v_mul_u32_u24 v{vD1}, 3584, v2
v_add_u32 v{vD1}, v{vD1}, v3
v_lshl_add_u32 v{vD2}, v2, 12, v3
v_bfe_u32 v2, v{vLANE}, 2, 2
v_lshrrev_b32 v3, 5, v{vLANE}
v_bfe_u32 v4, v{vLANE}, 4, 1
v_and_b32 v5, 3, v{vLANE}
v_lshlrev_b32 v5, 3, v5
v_lshl_add_u32 v5, v4, 5, v5
v_lshrrev_b32 v4, 1, v2
v_lshl_add_u32 v5, v4, 6, v5
s_lshr_b32 s{sT0}, s{sWAVE}, 1
s_lshl_b32 s{sT0}, s{sT0}, 6
v_xor_b32 v5, s{sT0}, v5
v_lshl_add_u32 v5, v2, 7, v5
s_mul_i32 s{sT1}, s{sWAVE}, 24576
s_add_u32 s{sT1}, s{sT1}, {W2L}
v_add_u32 v5, s{sT1}, v5
v_lshl_add_u32 v{vT1a}, v3, 10, v5
v_xor_b32 v{vT1b}, 64, v{vT1a}
v_lshl_add_u32 v{vT2a}, v3, 9, v5
v_xor_b32 v{vT2b}, 64, v{vT2a}
s_mul_i32 s{sW1O}, s{sWAVE}, {512 * 3584}
s_lshl_b32 s{sT0}, s{sNT}, 7
s_add_u32 s{sW1O}, s{sW1O}, s{sT0}
s_mul_i32 s{sW2O}, s{sWAVE}, {448 * 4096}
s_lshl_b32 s{sT0}, s{sST}, 7
s_add_u32 s{sW2O}, s{sW2O}, s{sT0}
s_mov_b32 s{sWOFF}, s{sT1}""")
    if OPT["rot"] and OPT["map18"] == 1:
        if OPT["rot"] == 2:
            a(f"""s_add_u32 s{sROT1}, s{sDT1}, s{sX}
s_and_b32 s{sROT1}, s{sROT1}, 7
s_add_u32 s{sROT2}, s{sDT2}, s{sX}
s_cmp_ge_u32 s{sROT2}, 7
s_cselect_b32 s{sT0}, 7, 0
s_sub_u32 s{sROT2}, s{sROT2}, s{sT0}""")
        else:
            a(f"s_mov_b32 s{sROT1}, s{sDT1}\ns_mov_b32 s{sROT2}, s{sDT2}")
    elif OPT["rot"] == 3:
        a(f"""s_and_b32 s{sT0}, s{sDT1}, 3
s_lshr_b32 s{sT1}, s{sDT1}, 2
s_add_u32 s{sT1}, s{sT1}, 2
s_mul_i32 s{sROT1}, s{sT0}, s{sT1}
s_min_u32 s{sROT1}, s{sROT1}, 7
s_and_b32 s{sT0}, s{sDT2}, 3
s_lshr_b32 s{sT1}, s{sDT2}, 2
s_add_u32 s{sT1}, s{sT1}, 2
s_mul_i32 s{sROT2}, s{sT0}, s{sT1}
s_min_u32 s{sROT2}, s{sROT2}, 5""")
    elif OPT["rot"]:
        a(f"""s_and_b32 s{sT0}, s{sDT1}, 3
s_lshl_b32 s{sT0}, s{sT0}, 1
s_lshr_b32 s{sT1}, s{sDT1}, 2
s_add_u32 s{sT0}, s{sT0}, s{sT1}
s_and_b32 s{sROT1}, s{sT0}, 7
s_and_b32 s{sT0}, s{sDT2}, 3
s_lshl_b32 s{sT0}, s{sT0}, 1
s_lshr_b32 s{sT1}, s{sDT2}, 2
s_add_u32 s{sT0}, s{sT0}, s{sT1}
s_min_u32 s{sROT2}, s{sT0}, 6""")
        if OPT["map18"] == 2:
            a(f"s_mov_b32 s{sROT2}, s{sDT2}")
    else:
        a(f"s_mov_b32 s{sROT1}, 0\ns_mov_b32 s{sROT2}, 0")
    a(f"""s_add_u32 s{sW1E}, s{sW1O}, {512 * 3584}
s_mul_i32 s{sT0}, s{sROT1}, {64 * 3584}
s_add_u32 s{sW1O}, s{sW1O}, s{sT0}
s_add_u32 s{sW2E}, s{sW2O}, {448 * 4096}
s_mul_i32 s{sT0}, s{sROT2}, {64 * 4096}
s_add_u32 s{sW2O}, s{sW2O}, s{sT0}""")


WORDER = list(range(0, 4)) + list(range(32, 36)) + list(range(4, 32)) + list(range(36, 60))


def w_dma(pos, half):
    slot = pos % 12
    n = WORDER[pos]
    pol = ("", "nt ", "sc1 ", "sc0 sc1 ", "sc0 sc1 nt ")[OPT["wnt"]] if (OPT["wnta"] or pos < 2 * OPT["wg"]) else ""
    g = [Ins(f"s_add_u32 m0, s{sWOFF}, {slot * 2048 + half * 1024}")]
    if n < 32:
        g.append(Ins(f"s_add_u32 s{sW1O}, s{sW1O}, {8 * 3584}") if (n or half) else Ins("s_nop 0"))
        if n and n % 4 == 0 and half == 0:
            g += [Ins(f"s_cmp_eq_u32 s{sW1O}, s{sW1E}"), Ins(f"s_cselect_b32 s3, {512 * 3584}, 0"), Ins(f"s_sub_u32 s{sW1O}, s{sW1O}, s3")]
        g.append(Ins(f"buffer_load_dwordx4 v{vD1}, {srd(S_W1)}, s{sW1O} offen {pol}lds", res_w=[f"slot{slot}"]))
    else:
        g.append(Ins(f"s_add_u32 s{sW2O}, s{sW2O}, {8 * 4096}") if (n > 32 or half) else Ins("s_nop 0"))
        if n > 32 and n % 4 == 0 and half == 0:
            g += [Ins(f"s_cmp_eq_u32 s{sW2O}, s{sW2E}"), Ins(f"s_cselect_b32 s3, {448 * 4096}, 0"), Ins(f"s_sub_u32 s{sW2O}, s{sW2O}, s3")]
        g.append(Ins(f"buffer_load_dwordx4 v{vD2}, {srd(S_W2)}, s{sW2O} offen {pol}lds", res_w=[f"slot{slot}"]))
    return g


def w_tr(pos):
    slot = pos % 12
    n = WORDER[pos]
    g = []
    for nb in range(2):
        for j in range(2):
            if n < 32:
                r = (n * 2 + nb) * 4 + 2 * j
                g.append(Ins(f"ds_read_b64_tr_b16 a[{r}:{r + 1}], v{(vT1a, vT1b)[nb]} offset:{slot * 2048 + j * 512}", res_r=[f"slot{slot}"]))
            else:
                r = 128 + ((n - 32) * 2 + nb) * 4 + 2 * j
                g.append(Ins(f"ds_read_b64_tr_b16 v[{r}:{r + 1}], v{(vT2a, vT2b)[nb]} offset:{slot * 2048 + j * 1024}", res_r=[f"slot{slot}"]))
    return g


def w_all_upfront():
    for n in range(12):
        a.put(w_dma(n, 0)); a.put(w_dma(n, 1))
    for n in range(48):
        a.put(w_tr(n))
        if n >= 1:
            a.put(w_dma(n + 11, 0)); a.put(w_dma(n + 11, 1))
    a.put(w_dma(59, 0)); a.put(w_dma(59, 1))
    a.wait_vm0()
    a.wait_lgkm0()


PR = 56
TAB = 104


def kgen_loads():
    a(f"""s_lshl_b32 s{sT0}, s{sPAIR}, 10
s_lshl_b32 s{sT1}, s{sWAVE}, 8
s_add_u32 s{sT0}, s{sT0}, s{sT1}
v_lshl_add_u32 v3, v{vLANE}, 2, s{sT0}""")
    for k, p in enumerate((P_ARE, P_AIM, P_BRE, P_BIM, P_CRE, P_CIM)):
        a(f"global_load_dword v{PR + k}, v3, {sp(p)}{' nt' if OPT['pnt'] else ''}")


def kgen_table_addr():
    l = label("pc")
    a(f"s_getpc_b64 {sp(sTAB)}")
    a(f"{l}:")
    a(f"s_add_u32 s{sTAB}, s{sTAB}, ktab-{l}")
    a(f"s_addc_u32 s{sTAB + 1}, s{sTAB + 1}, 0")


def kgen_table_load():
    kgen_table_addr()
    a(f"s_lshr_b32 s{sT0}, s{sWAVE}, 1\ns_lshl_b32 s{sT0}, s{sT0}, 5\nv_lshl_add_u32 v75, v0, 5, s{sT0}")


KBG = []


def kgen(hooks):
    F = {e: 2 * e for e in range(1, 8)}
    Qr = {1: 16, 2: 18, 3: 20, 4: 22}
    QN = [24, 26]
    Z1, Z2, C0, C1 = 28, 30, 32, 34
    CN = [36, 38]
    T0, T1 = 62, 64
    CV = [66, 67, 68, 69]
    A2, B2, DT = 70, 71, 72
    ACC = 76
    QF = 88
    PF = 40
    vG, vF = 73, 74
    a(f"""s_mul_i32 s{sT0}, s{sWAVE}, {GST}
v_lshl_add_u32 v{vG}, v{vLANE}, 2, s{sT0}
v_and_b32 v2, 15, v{vLANE}
v_mul_u32_u24 v2, {GROW}, v2
v_lshrrev_b32 v3, 4, v{vLANE}
v_lshl_add_u32 v2, v3, 4, v2
v_add_u32 v{vF}, s{sT0}, v2""")
    a.begin()
    a(f"""s_lshr_b32 s{sT0}, s{sWAVE}, 1
s_lshl_b32 s{sT0}, s{sT0}, 4
s_lshr_b32 s{sT0}, s{sLDT}, s{sT0}
s_lshl_b32 s{sT0}, s{sT0}, 16
v_mov_b32 v2, {f32(math.log2(math.e))}
v_mul_f32 v2, s{sT0}, v2
v_exp_f32 v2, v2
v_cvt_pk_bf16_f32 v2, v2, v2
v_lshlrev_b32 v{DT}, 16, v2
s_and_b32 s{sD1}, s{sD0}, 0xffff0000
s_lshl_b32 s{sD0}, s{sD0}, 16""")
    cvi = [0]

    def hook(name):
        if name is not None and name not in hooks:
            return
        a_body = space_ds(a.end(), OPT["lag"], OPT["gap"])
        m, rest = merge(a_body, KBG[:], 20, OPT["ev_kg"])
        del KBG[:]
        a.put(m)
        put_all(rest)
        if name is not None:
            hooks[name]()
            a.begin()

    def row(r, src, neg=False):
        c = CV[cvi[0] % 4]
        cvi[0] += 1
        a(f"v_cvt_pk_bf16_f32 v{c}, v{src}, {'-' if neg else ''}v{src + 1}")
        a(f"ds_write_b32 v{vG}, v{c} offset:{r * GROW}")

    def reads(dst, tile):
        for ks in range(4):
            a(f"ds_read_b128 {vr(dst + 4 * ks, 4)}, v{vF} offset:{tile * 16 * GROW + ks * 64}")

    def mfmas(t, first):
        for ks in range(4):
            c = "0" if (first and ks == 0) else vr(ACC + 4 * t, 4)
            a(f"v_mfma_f32_16x16x32_bf16 {vr(ACC + 4 * t, 4)}, {vr(PF + 4 * ks, 4)}, {vr(QF + 4 * ks, 4)}, {c}")

    def direct(d, scale):
        if scale != 1:
            a(f"v_mul_f32 v{T0}, {f32(scale)}, v{A2}")
            a(f"v_mul_f32 v{T1}, {f32(scale)}, v{B2}")
            x, y = T0, T1
        else:
            x, y = A2, B2
        a(f"v_fract_f32 v{T1}, v{y}")
        a(f"v_exp_f32 v{T0}, v{x}")
        a(f"v_cos_f32 v{d}, v{T1}")
        a(f"v_sin_f32 v{d + 1}, v{T1}")
        a(f"v_pk_mul_f32 {vr(d, 2)}, {vr(d, 2)}, {vr(T0, 2)} op_sel_hi:[1,0]")

    for rd in range(2):
        def up(d, s):
            a(f"v_lshlrev_b32 v{d}, 16, v{s}" if rd == 0 else f"v_and_b32 v{d}, s0, v{s}")
        up(A2, PR); up(B2, PR + 1)
        up(QN[0], PR + 2); up(QN[0] + 1, PR + 3)
        up(QN[1], PR + 4); up(QN[1] + 1, PR + 5)
        a(f"v_mul_f32 v{A2}, v{DT}, v{A2}")
        a(f"v_mul_f32 v{B2}, v{DT}, v{B2}")
        a(f"v_pk_mul_f32 {vr(QN[0], 2)}, {vr(QN[0], 2)}, {vr(DT, 2)} op_sel_hi:[1,0]")
        a(f"v_mul_f32 v{A2}, {f32(math.log2(math.e))}, v{A2}")
        a(f"v_mul_f32 v{B2}, {f32(1 / (2 * math.pi))}, v{B2}")
        cmul2((C0, QN[1], QN[0]))
        direct(F[1], 1)
        if rd == 1:
            mfmas(2, True)
        direct(Z1, 128)
        hook(5 * rd)
        cmul2((F[2], F[1], F[1]), (Z2, Z1, Z1))
        cmul2((F[4], F[2], F[2]), (F[3], F[2], F[1]))
        cmul2((Qr[1], F[4], F[4]), (C1, C0, Z1))
        a(f"v_mov_b32 v{CV[3]}, 0x3f80")
        a(f"ds_write_b32 v{vG}, v{CV[3]}")
        cmul2((Qr[2], Qr[1], Qr[1]), (F[5], F[4], F[1]))
        row(1, Qr[1], True)
        cmul2((Qr[3], Qr[2], Qr[1]), (Qr[4], Qr[2], Qr[2]))
        row(2, Qr[2], True)
        cmul2((F[6], F[4], F[2]), (F[7], F[4], F[3]))
        row(3, Qr[3], True)
        row(4, Qr[4], True)
        cur = {1: Qr[1], 2: Qr[2], 3: Qr[3], 0: Qr[4]}
        free = list(QN) + [CN[0]]
        j = 5
        while j < 16:
            js = [j] + ([j + 1] if j + 1 < 16 else [])
            ps = []
            for jj in js:
                d = free.pop(0)
                ps.append((d, cur[jj % 4], Qr[4]))
            cmul2(*ps)
            for jj, p in zip(js, ps):
                if cur[jj % 4] != Qr[4]:
                    free.append(cur[jj % 4])
                cur[jj % 4] = p[0]
                row(jj, p[0], True)
            j += 2
        reads(QF, 0)
        hook(5 * rd + 1)
        TA, TB = QN
        row(16, C0); row(24, C1)
        for e in range(1, 8):
            cmul2((TA, C0, F[e]), (TB, C1, F[e]))
            row(16 + e, TA); row(24 + e, TB)
        reads(PF, 1)
        hook(5 * rd + 2)
        ca, cb = C0, C1
        na, nb_ = CN
        def adv():
            nonlocal ca, cb, na, nb_
            cmul2((na, ca, Z2), (nb_, cb, Z2))
            ca, cb, na, nb_ = na, nb_, ca, cb
        adv()
        row(32, ca); row(36, cb)
        for e in range(1, 4):
            cmul2((TA, ca, F[2 * e]), (TB, cb, F[2 * e]))
            row(32 + e, TA); row(36 + e, TB)
        mfmas(0, rd == 0)
        for k in range(2):
            adv()
            row(40 + 4 * k, ca); row(42 + 4 * k, cb)
            cmul2((TA, ca, F[4]), (TB, cb, F[4]))
            row(41 + 4 * k, TA); row(43 + 4 * k, TB)
        reads(PF, 2)
        hook(5 * rd + 3)
        for k in range(4):
            adv()
            row(48 + 2 * k, ca); row(49 + 2 * k, cb)
        cmul2((na, ca, Z2))
        row(56, na)
        mfmas(1, rd == 0)
        reads(PF, 3)
        hook(5 * rd + 4)
    hook(None)
    a(f"s_mul_i32 s{sT0}, s{sWAVE}, {GST}")
    a(f"v_add_u32 v{vF}, s{sT0}, v{vL16}")
    a(f"v_mov_b32 v{CV[0]}, 0")
    for k in range(8):
        a(f"v_and_b32 v{2 + 2 * k}, s1, v{TAB + k}")
        a(f"v_lshrrev_b32 v{3 + 2 * k}, 16, v{TAB + k}")
    for t in range(2):
        a(f"ds_write_b128 v{vF}, {vr(ACC + 4 * t, 4)} offset:{TOFF + t * 1024}")
    mfmas(2, False)
    a(f"ds_write_b32 v{vG}, v{CV[0]} offset:{TOFF + 3072}")
    a("v_and_b32 v18, 0xffff, v0\nv_lshrrev_b32 v19, 16, v0\nv_and_b32 v20, 0xffff, v1")
    a(f"ds_write_b128 v{vF}, {vr(ACC + 8, 4)} offset:{TOFF + 2048}")


def kzero(r):
    a(f"""v_mov_b32 v{r}, 0
v_mov_b32 v{r + 1}, 0
v_mov_b32 v{r + 2}, 0
v_mov_b32 v{r + 3}, 0
v_bfe_u32 v{r + 4}, v{vLANE}, 1, 3
v_mul_u32_u24 v{r + 4}, {KST}, v{r + 4}
v_and_b32 v{r + 5}, 1, v{vLANE}
v_lshl_add_u32 v{r + 4}, v{r + 5}, 4, v{r + 4}
s_and_b32 s{sT0}, s{sWAVE}, 1
s_mul_i32 s{sT0}, s{sT0}, {UST}
v_add_u32 v{r + 5}, s{sT0}, v{vL16}""")
    return [f"ds_write_b128 v{r + 4}, {vr(r, 4)} offset:4096", f"ds_write_b128 v{r + 5}, {vr(r, 4)} offset:{UB}"]


def kaddr(r):
    a(f"""s_lshr_b32 s{sT0}, s{sWAVE}, 1
s_and_b32 s{sT1}, s{sWAVE}, 1
s_lshl_b32 s{sT1}, s{sT1}, 11
v_lshl_add_u32 v{r + 3}, v{vLANE}, 5, s{sT1}""")
    for c in range(4):
        a(f"s_cmp_lg_u32 s{sT0}, 0")
        a(f"s_cselect_b32 s{sT2}, {KSLOT[1][c]}, {KSLOT[0][c]}")
        a(f"s_mul_i32 s{sT2}, s{sT2}, {KST}")
        a(f"v_add_u32 v{r + c}, s{sT2}, v{r + 3}")


def kexpand(mid):
    AD, VAL = 2, 22
    P0, P1, P2, P3 = 2, 12, 88, 96
    a.barrier()
    for k in range(19):
        a(f"ds_read2st64_b32 {vr(VAL + 2 * k, 2)}, v{AD + k} offset0:{TOFF // 256} offset1:{TOFF // 256 + GST // 256}")
    mid()
    kaddr(60)
    zw = kzero(104)
    for k in range(19):
        a(f"v_add_f32 v{VAL + 2 * k}, v{VAL + 2 * k}, v{VAL + 2 * k + 1}")
        if k:
            a(f"v_cvt_pk_bf16_f32 v{(P0 if k & 1 else P1) + (k - 1) // 2}, v{VAL + 2 * k - 2}, v{VAL + 2 * k}")
    a.barrier()
    a.begin()
    for l in zw:
        a(l)
    for c, P in ((0, P0), (1, P1)):
        a(f"ds_write_b128 v{60 + c}, {vr(P, 4)}")
        a(f"ds_write_b128 v{60 + c}, {vr(P + 4, 4)} offset:16")
    for c, P, src in ((2, P2, P0), (3, P3, P1)):
        for i in range(4):
            a(f"v_pk_mov_b32 {vr(P + 2 * i, 2)}, {vr(src + 2 * i, 2)}, {vr(src + 2 * i + 2, 2)} op_sel:[1,0]")
        a(f"ds_write_b128 v{60 + c}, {vr(P, 4)}")
        a(f"ds_write_b128 v{60 + c}, {vr(P + 4, 4)} offset:16")
    return a.end()


def kcopies():
    R, E, M = 2, 12, 22
    kaddr(40)
    a(f"""ds_read_b128 {vr(R, 4)}, v40
ds_read_b128 {vr(R + 4, 4)}, v40 offset:16
ds_read_b64 {vr(R + 8, 2)}, v40 offset:32""")
    for l in kzero(32):
        a(l)
    for i in range(9):
        a(f"v_alignbit_b32 v{E + i}, v{R + i + 1}, v{R + i}, 16")
    a(f"ds_write_b128 v41, {vr(E, 4)}")
    a(f"ds_write_b128 v41, {vr(E + 4, 4)} offset:16")
    for i in range(4):
        a(f"v_pk_mov_b32 {vr(M + 2 * i, 2)}, {vr(R + 2 * i, 2)}, {vr(R + 2 * i + 2, 2)} op_sel:[1,0]")
    a(f"ds_write_b128 v42, {vr(M, 4)}")
    a(f"ds_write_b128 v42, {vr(M + 4, 4)} offset:16")
    for i in range(4):
        a(f"v_pk_mov_b32 {vr(R + 2 * i, 2)}, {vr(E + 2 * i, 2)}, {vr(E + 2 * i + 2, 2)} op_sel:[1,0]")
    a(f"ds_write_b128 v43, {vr(R, 4)}")
    a(f"ds_write_b128 v43, {vr(R + 4, 4)} offset:16")


GX = 80
CS = 64
cvA, cvB, cvZ, cvXW, cvXR, cvO, cvU, cvX, cvH, cvP = 112, 113, 114, 115, 116, 117, 118, 119, 100, 108
STUBS = []


def conv_poll1():
    r = cvP
    a(f"""v_lshrrev_b32 v{r}, 3, v{vLANE}
v_min_u32 v{r}, 6, v{r}
v_and_b32 v{r + 1}, 7, v{vLANE}
v_lshl_add_u32 v{r + 2}, v{r}, 5, v{r + 1}
s_lshl_b32 s{sT0}, s{sWAVE}, 3
v_add_u32 v{r + 2}, s{sT0}, v{r + 2}
v_and_b32 v{r + 1}, 7, v{vLANE}
v_min_u32 v{r}, 6, v{r + 1}
v_lshl_add_u32 v{r + 3}, v{r}, 5, v{r + 1}
v_add_u32 v{r + 3}, s{sT0}, v{r + 3}""")


def conv_loads():
    for p in range(4):
        a(f"buffer_load_dwordx4 {vr(CS + 4 * p, 4)}, v{vL16}, {srd(S_WS)}, s{16 + p} offen sc1")
    a(f"buffer_load_dwordx4 {vr(GX, 4)}, v{cvX}, {srd(S_WS)}, s20 offen sc1")
    a(f"buffer_load_dwordx4 {vr(GX + 4, 4)}, v{cvX}, {srd(S_WS)}, s20 offen offset:64 sc1")


def conv_setup(layer):
    a(f"""s_mov_b32 s{sCA}, {f32(1.0 / 448)}
s_mov_b32 s{sCB}, {f32(1e-5)}
s_lshl_b32 s{sT0}, s{sWAVE}, 10
v_add_u32 v{cvU}, s{sT0}, v{vL16}
s_lshr_b32 s{sT0}, s{sWAVE}, 1
s_and_b32 s{sT1}, s{sWAVE}, 1
v_and_b32 v8, 15, v{vLANE}
v_lshrrev_b32 v9, 4, v{vLANE}
v_not_b32 v10, v8
v_and_b32 v10, 3, v10""")
    for s in range(4):
        a(f"s_cmp_lg_u32 s{sT0}, 0")
        a(f"s_cselect_b32 s{sT2}, {KSLOT[1][s]}, {KSLOT[0][s]}")
        a(f"s_mul_i32 s{sT2}, s{sT2}, {KST}")
        if s == 0:
            a(f"v_mov_b32 v11, s{sT2}")
        else:
            a(f"v_mov_b32 v12, s{sT2}\nv_cmp_eq_u32 vcc, {s}, v10\nv_cndmask_b32 v11, v11, v12, vcc")
    a(f"""v_add_u32 v10, v10, v8
v_lshlrev_b32 v12, 3, v9
v_sub_u32 v12, v12, v10
v_lshl_add_u32 v11, v12, 1, v11
""")
    a(f"""s_lshl_b32 s{sT3}, s{sT1}, 8
s_sub_u32 s{sT2}, {2 * 2031 - 64 * 59}, s{sT3}
v_add_u32 v{cvA}, s{sT2}, v11
s_mul_i32 s{sT2}, s{sT0}, {UST}
s_sub_u32 s{sT2}, s{sT2}, s{sT3}
s_add_u32 s{sT2}, s{sT2}, {UB + UPAD - 2 * 112}
v_lshlrev_b32 v12, 5, v8
v_lshl_add_u32 v13, v9, 4, v12
v_add_u32 v{cvB}, s{sT2}, v13
s_lshl_b32 s{sT2}, s{sWAVE}, 11
v_lshl_add_u32 v13, v9, 3, v12
v_add_u32 v{cvZ}, s{sT2}, v13
s_xor_b32 s{sT2}, s{sWAVE}, 1
s_lshl_b32 s{sT2}, s{sT2}, 12
v_add_u32 v{cvXW}, s{sT2}, v{vL16}
s_lshl_b32 s{sT2}, s{sWAVE}, 12
v_add_u32 v{cvXR}, s{sT2}, v{vL16}
v_and_b32 v10, 1, v9
v_lshlrev_b32 v10, 3, v10
v_lshrrev_b32 v11, 1, v8
v_add_u32 v10, v10, v11
v_mul_u32_u24 v10, {BS}, v10
v_and_b32 v11, 1, v8
v_lshl_add_u32 v10, v11, 5, v10
v_lshrrev_b32 v11, 1, v9
v_lshl_add_u32 v{cvO}, v11, 4, v10
s_mul_i32 s{sT1}, s{sT1}, {32 * BS}
s_lshl_b32 s{sT2}, s{sPAIR}, 1
s_add_u32 s{sT0}, s{sT0}, s{sT2}
s_lshl_b32 s{sT0}, s{sT0}, 6
s_add_u32 s{sT0}, s{sT0}, s{sT1}
s_add_u32 s13, s{sT0}, {X1 if layer == 0 else X3}
s_add_u32 s21, s13, {16 * BS}""" if OPT["cv"] else f"""v_add_u32 v{cvA}, {2 * 2031 - 64 * 63}, v11
s_mul_i32 s{sT2}, s{sT0}, {UST}
s_lshl_b32 s{sT3}, s{sT1}, 9
s_add_u32 s{sT2}, s{sT2}, s{sT3}
s_add_u32 s{sT2}, s{sT2}, {UB + UPAD - 2 * 496}
v_lshlrev_b32 v12, 5, v8
v_lshl_add_u32 v13, v9, 4, v12
v_add_u32 v{cvB}, s{sT2}, v13
s_lshl_b32 s{sT2}, s{sT0}, 12
s_add_u32 s{sT2}, s{sT2}, s{sT3}
v_lshl_add_u32 v13, v9, 3, v12
v_add_u32 v{cvZ}, s{sT2}, v13
v_and_b32 v10, 1, v9
v_lshlrev_b32 v10, 4, v10
v_lshrrev_b32 v11, 1, v8
v_add_u32 v10, v10, v11
v_mul_u32_u24 v10, {BS}, v10
v_and_b32 v11, 1, v8
v_lshl_add_u32 v10, v11, 5, v10
v_lshrrev_b32 v11, 1, v9
v_lshl_add_u32 v{cvO}, v11, 4, v10
s_mul_i32 s{sT1}, s{sT1}, {8 * BS}
s_lshl_b32 s{sT2}, s{sPAIR}, 1
s_add_u32 s{sT0}, s{sT0}, s{sT2}
s_lshl_b32 s{sT0}, s{sT0}, 6
s_add_u32 s{sT0}, s{sT0}, s{sT1}
s_add_u32 s13, s{sT0}, {X1 if layer == 0 else X3}
s_add_u32 s21, s13, {32 * BS}""")
    a(f"""s_lshl_b32 s16, s{sWAVE}, 10
s_add_u32 s16, s16, {ST0 if layer == 0 else ST1}
s_add_u32 s17, s16, 4096
s_add_u32 s18, s16, 8192
s_add_u32 s19, s16, 12288
s_mul_i32 s20, s{sWAVE}, {16 * BS}
s_lshl_b32 s{sT2}, s{sPAIR}, 7
s_add_u32 s20, s20, s{sT2}
s_add_u32 s20, s20, {X0 if layer == 0 else X2}
v_lshrrev_b32 v10, 2, v{vLANE}
v_mul_u32_u24 v10, {BS}, v10
v_and_b32 v11, 3, v{vLANE}
v_lshl_add_u32 v{cvX}, v11, 4, v10""")


cXF, cUF, cAL, cBE, cUP = 0, 16, 32, 40, 48


def conv_pro(layer):
    XF, UF, AL, BE, UP = cXF, cUF, cAL, cBE, cUP
    for p in range(4):
        S = CS + 4 * p
        a(f"v_pk_mul_f32 {vr(S, 2)}, {vr(S, 2)}, {sp(sCA)} op_sel_hi:[1,0]")
    for p in range(4):
        S = CS + 4 * p
        a(f"v_pk_fma_f32 {vr(BE + 2 * p, 2)}, {vr(S, 2)}, {vr(S, 2)}, {sp(sCB)} op_sel_hi:[1,1,0] neg_lo:[1,0,0] neg_hi:[1,0,0]")
    for p in range(4):
        Q = CS + 4 * p + 2
        a(f"v_pk_fma_f32 {vr(Q, 2)}, {vr(Q, 2)}, {sp(sCA)}, {vr(BE + 2 * p, 2)} op_sel_hi:[1,0,1]")
    for p in range(4):
        Q = CS + 4 * p + 2
        a(f"v_max_f32 v{Q}, s{sCB}, v{Q}\nv_max_f32 v{Q + 1}, s{sCB}, v{Q + 1}")
    for p in range(4):
        Q = CS + 4 * p + 2
        a(f"v_rsq_f32 v{AL + 2 * p}, v{Q}\nv_rsq_f32 v{AL + 2 * p + 1}, v{Q + 1}")
    for k in range(8):
        unpack(XF + 2 * k, XF + 2 * k + 1, GX + k)
    for p in range(4):
        S = CS + 4 * p
        a(f"v_pk_mul_f32 {vr(BE + 2 * p, 2)}, {vr(S, 2)}, {vr(AL + 2 * p, 2)} neg_lo:[1,0] neg_hi:[1,0]")
    for c in range(2):
        for p in range(4):
            a(f"v_pk_fma_f32 {vr(UF + 8 * c + 2 * p, 2)}, {vr(XF + 8 * c + 2 * p, 2)}, {vr(AL + 2 * p, 2)}, {vr(BE + 2 * p, 2)}")
        for p in range(4):
            a(f"v_cvt_pk_bf16_f32 v{UP + 4 * c + p}, v{UF + 8 * c + 2 * p}, v{UF + 8 * c + 2 * p + 1}")
        a(f"ds_write_b128 v{cvU}, {vr(UP + 4 * c, 4)} offset:{UB + c * UST + UPAD}")
    if OPT["cv"]:
        for i in a.capture(conv_z, 88):
            if i.kind != "dsw":
                a.put([i])


def conv_z(ZP=cXF):
    XF, UF = cXF, cUF
    for c in range(2):
        for p in range(4):
            a(f"v_pk_fma_f32 {vr(UF + 8 * c + 2 * p, 2)}, {vr(UF + 8 * c + 2 * p, 2)}, {sp((sD0, sD1)[c])}, {vr(XF + 8 * c + 2 * p, 2)} op_sel_hi:[1,0,1]")
        for p in range(4):
            a(f"v_cvt_pk_bf16_f32 v{ZP + 4 * c + p}, v{UF + 8 * c + 2 * p}, v{UF + 8 * c + 2 * p + 1}")
        a(f"ds_write_b128 v{cvU}, {vr(ZP + 4 * c, 4)} offset:{ZB + c * 4096}")


def conv_main(layer, bg=(), bg_start=0, bg_every=64):
    return (conv_main_r if OPT["cv"] else conv_main_t)(layer, bg, bg_start, bg_every)


def conv_main_r(layer, bg, bg_start, bg_every):
    ACC, BF, AR = 0, 32, 64
    NA = 6
    EX2 = ZB
    seq = [(r, q) for r in range(4) for q in range(7, -1, -1)]
    e = 1 + 4 * layer

    def rdA(i):
        r, q = seq[i]
        d = AR + 4 * (i % NA)
        off = 64 * (59 - (8 * q + r))
        return [Ins(f"ds_read_b64 {vr(d, 2)}, v{cvA} offset:{off}"), Ins(f"ds_read_b64 {vr(d + 2, 2)}, v{cvA} offset:{off + 8}")]

    def rdB(r, p):
        return [Ins(f"ds_read_b128 {vr(BF + 4 * p, 4)}, v{cvB} offset:{512 * p + 64 * (3 - r)}")]

    a.put(rdA(0)); a.put(rdB(0, 0)); a.put(rdA(1)); a.put(rdB(0, 1)); a.put(rdA(2)); a.put(rdB(0, 2)); a.put(rdA(3))
    a.put(rdB(0, 3)); a.put(rdA(4))
    for p in range(4, 8):
        a.put(rdB(0, p))
    ZR, ZF, RR = 88, 64, 32
    side = [[i] for i in a.capture(conv_z, 88) if i.kind == "dsw"]
    if hinted(e):
        side += [[i] for i in a.capture(hint_prep, e + 10, sPAIR, cvH)]
    late = [[Ins("s_barrier")]] + [[Ins(f"ds_read_b64 {vr(ZR + 2 * i, 2)}, v{cvZ} offset:{ZB + i * 512}")] for i in range(4)]
    late2 = [[Ins("s_barrier")]]
    a.begin()
    started = set()
    for i, (r, q) in enumerate(seq):
        if hinted(e) and OPT["h_cv"] < 0 and i == 32 + OPT["h_cv"]:
            hint_put(cvH)
        ps = list(range(8 - q))
        for p in ps:
            b = q + p
            c = vr(ACC + 4 * b, 4) if b in started else "0"
            started.add(b)
            a(f"v_mfma_f32_16x16x32_bf16 {vr(ACC + 4 * b, 4)}, {vr(AR + 4 * (i % NA), 4)}, {vr(BF + 4 * p, 4)}, {c}")
            if p == 0 and i + NA - 1 < len(seq):
                a.put(rdA(i + NA - 1))
            elif 1 <= q <= 4 and p >= 1:
                for lst, r0 in ((side, 0), (late, 2), (late2, 3)):
                    if lst and r >= r0:
                        a.put(lst.pop(0))
                        break
            if q == 0 and r < 3:
                a.put(rdB(r + 1, p))
    assert not side and not late and not late2
    m, rest = merge(a.end(), list(bg), bg_start, bg_every)
    a.put(m)
    stamp(f"conv{layer} loop", 111)
    if hinted(e) and OPT["h_cv"] == 0:
        hint_put(cvH)
    for k in range(8):
        unpack(ZF + 2 * k, ZF + 2 * k + 1, ZR + k)
    l1, l2 = label("cx"), label("cy")
    a(f"s_bitcmp1_b32 s{sWAVE}, 0")
    a(f"s_cbranch_scc1 {l1}")
    for h in range(2):
        for i in range(4):
            a(f"ds_write_b128 v{cvXW}, {vr(ACC + 16 * (1 - h) + 4 * i, 4)} offset:{EX2 + i * 1024}")
            for k in range(2):
                a(f"v_pk_add_f32 {vr(ZF + 4 * i + 2 * k, 2)}, {vr(ZF + 4 * i + 2 * k, 2)}, {vr(ACC + 16 * h + 4 * i + 2 * k, 2)}")
        if h == 0:
            a(f"s_branch {l2}")
            a(f"{l1}:")
    a(f"{l2}:")
    if (armed(1) if layer else sentinel(1)):
        poll_take(cvP)
    a.barrier()
    if hinted(e) and OPT["h_cv"] == 1:
        hint_put(cvH)
    for i in range(4):
        a(f"ds_read_b128 {vr(RR + 4 * i, 4)}, v{cvXR} offset:{EX2 + i * 1024}")
    PK = 56
    for i in range(4):
        for k in range(2):
            a(f"v_pk_add_f32 {vr(ZF + 4 * i + 2 * k, 2)}, {vr(ZF + 4 * i + 2 * k, 2)}, {vr(RR + 4 * i + 2 * k, 2)}")
        for k in range(2):
            a(f"v_cvt_pk_bf16_f32 v{PK + 2 * i + k}, v{ZF + 4 * i + 2 * k}, v{ZF + 4 * i + 2 * k + 1}")
        if i & 1:
            b = PK + 2 * (i - 1)
            a(f"v_permlane16_swap_b32 v{b}, v{b + 2}")
            a(f"v_permlane16_swap_b32 v{b + 1}, v{b + 3}")
            a(f"buffer_store_dwordx4 {vr(b, 4)}, v{cvO}, {srd(S_WS)}, s{21 if i == 3 else 13} offen sc1", tag="pub")
    if hinted(e) and OPT["h_cv"] == 2:
        hint_put(cvH)
    if not flagged(e):
        a.barrier()
    else:
        flag_put(1 + 4 * layer, sPAIR, 40, "pub")
    return rest


def conv_main_t(layer, bg, bg_start, bg_every):
    ACC, BF, AR = 84, 32, 64
    NA = 5
    QORD = (7, 5, 6, 3, 4, 2, 1, 0)
    seq = [(r, q) for r in range(8) for q in QORD]
    e = 1 + 4 * layer

    def rdA(i):
        r, q = seq[i]
        d = AR + 4 * (i % NA)
        off = 64 * (63 - (8 * q + r))
        return [Ins(f"ds_read_b64 {vr(d, 2)}, v{cvA} offset:{off}"), Ins(f"ds_read_b64 {vr(d + 2, 2)}, v{cvA} offset:{off + 8}")]

    def rdB(r, p):
        return [Ins(f"ds_read_b128 {vr(BF + 4 * (p + 1), 4)}, v{cvB} offset:{512 * (p + 1) + 64 * (7 - r)}")]

    a.put(rdA(0)); a.put(rdB(0, -1)); a.put(rdA(1)); a.put(rdB(0, 1)); a.put(rdA(2)); a.put(rdB(0, 0)); a.put(rdA(3))
    for p in (3, 2, 4, 5, 6):
        a.put(rdB(0, p))
    ZR, ZF = 16, 0
    side = [[i] for i in a.capture(conv_z)]
    if hinted(e):
        side += [[i] for i in a.capture(hint_prep, e + 10, sPAIR, cvH)]
    late = [[Ins("s_barrier")]] + [[Ins(f"ds_read_b64 {vr(ZR + 2 * i, 2)}, v{cvZ} offset:{ZB + i * 1024}")] for i in range(4)]
    late2 = [[i] for k in range(8) for i in a.capture(unpack, ZF + 2 * k, ZF + 2 * k + 1, ZR + k)]
    a.begin()
    started = set()
    n = 0
    for i, (r, q) in enumerate(seq):
        if hinted(e) and OPT["h_cv"] < 0 and i == 64 + OPT["h_cv"]:
            hint_put(cvH)
        first = True
        for t in range(q // 2, 4):
            p = 2 * t - q
            c = vr(ACC + 4 * t, 4) if t in started else "0"
            started.add(t)
            a(f"v_mfma_f32_16x16x32_bf16 {vr(ACC + 4 * t, 4)}, {vr(AR + 4 * (i % NA), 4)}, {vr(BF + 4 * (p + 1), 4)}, {c}")
            n += 1
            if first and i + 4 < len(seq):
                a.put(rdA(i + 4))
            elif q >= 2:
                for lst, r0 in ((side, 0), (late, 4), (late2, 5)):
                    if lst and r >= r0:
                        a.put(lst.pop(0))
                        if lst is side and lst:
                            a.put(lst.pop(0))
                        break
            first = False
            if q <= 1 and r < 7:
                a.put(rdB(r + 1, p))
    assert not side and not late and not late2
    m, rest = merge(a.end(), list(bg), bg_start, bg_every)
    a.put(m)
    stamp(f"conv{layer} loop", 111)
    if (armed(1) if layer else sentinel(1)):
        poll_take(cvP)
    if hinted(e) and OPT["h_cv"] == 0:
        hint_put(cvH)
    PK = 24
    for i in range(4):
        for k in range(2):
            a(f"v_pk_add_f32 {vr(ZF + 4 * i + 2 * k, 2)}, {vr(ZF + 4 * i + 2 * k, 2)}, {vr(ACC + 4 * i + 2 * k, 2)}")
        for k in range(2):
            a(f"v_cvt_pk_bf16_f32 v{PK + 2 * i + k}, v{ZF + 4 * i + 2 * k}, v{ZF + 4 * i + 2 * k + 1}")
        if i & 1:
            b = PK + 2 * (i - 1)
            a(f"v_permlane16_swap_b32 v{b}, v{b + 2}")
            a(f"v_permlane16_swap_b32 v{b + 1}, v{b + 3}")
            a(f"buffer_store_dwordx4 {vr(b, 4)}, v{cvO}, {srd(S_WS)}, s{21 if i == 3 else 13} offen sc1", tag="pub")
    if hinted(e) and OPT["h_cv"] > 0:
        hint_put(cvH)
    if not flagged(e):
        a.barrier()
    else:
        flag_put(1 + 4 * layer, sPAIR, 40, "pub")
    return rest


def reduce32(V, n, W):
    for i in range(n):
        a(f"v_permlane16_swap_b32 v{V[i]}, v{V[n + i]}")
    for i in range(n):
        a(f"v_add_f32 v{V[i]}, v{V[i]}, v{V[n + i]}")
    h = n // 2
    for i in range(h):
        a(f"v_add_f32_dpp v{W[i]}, v{V[i]}, v{V[i]} row_ror:8 row_mask:0xf bank_mask:0x3")
    for i in range(h):
        a(f"v_add_f32_dpp v{W[i]}, v{V[i + h]}, v{V[i + h]} row_ror:8 row_mask:0xf bank_mask:0xc")
    g = h // 2
    for i in range(g):
        a(f"v_add_f32_dpp v{V[i]}, v{W[i]}, v{W[i]} row_half_mirror row_mask:0xf bank_mask:0x5")
    for i in range(g):
        a(f"v_add_f32_dpp v{V[i]}, v{W[i + g]}, v{W[i + g]} row_half_mirror row_mask:0xf bank_mask:0xa")
    for m in ("[1,0,3,2]", "[2,3,0,1]"):
        for i in range(g):
            a(f"v_add_f32_dpp v{V[i]}, v{V[i]}, v{V[i]} quad_perm:{m} row_mask:0xf bank_mask:0xf")
    return V[:g]


def maxchain(t, regs):
    regs = list(regs)
    if OPT["chk"] == 1:
        regs = regs[3::4]
    if len(regs) == 2:
        return [f"v_max_u32 v{t}, v{regs[0]}, v{regs[1]}"]
    out = [f"v_max3_u32 v{t}, v{regs[0]}, v{regs[1]}, v{regs[2]}"]
    regs = regs[3:]
    while len(regs) >= 2:
        out.append(f"v_max3_u32 v{t}, v{t}, v{regs[0]}, v{regs[1]}")
        regs = regs[2:]
    if regs:
        out.append(f"v_max_u32 v{t}, v{t}, v{regs[0]}")
    return out


RETRY = 0x10000


def ln(layer, wide):
    X = X1 if layer == 0 else X3
    H = H1 if layer == 0 else H3
    nf = 7 if wide else 4
    sI = sLN0 if wide else sLN
    RAW, XF, S, Q, W = 0, 28, 84, 92, 100
    vO, vPW, vPR, vAW, vAR, r, hr = 109, 110, 111, 112, 117, 114, 104
    vX, vS = 64, 68
    a(f"""s_mul_i32 s{sT0}, s{sWAVE}, 56
v_min_u32 v{r + 2}, 55, v{vLANE}""")
    a(f"v_add_u32 v{r + 2}, s{sT0}, v{r + 2}")
    a(f"v_and_b32 v118, {OPT['samp'] - 1}, v{vLANE}\nv_mul_u32_u24 v118, {56 // OPT['samp']}, v118\nv_add_u32 v118, s{sT0}, v118")
    ein, eout = 1 + 4 * layer, 2 + 4 * layer
    if OPT["lnd"] and emode(ein) == "D":
        a.wait_tag("pub")
    if wide:
        a(f"""s_mul_i32 s16, s{sI}, {BS}
s_lshl_b32 s{sT2}, s{sI}, 12""")
    else:
        a(f"""s_lshr_b32 s16, s{sI}, 1
s_mul_i32 s16, s16, {BS}
s_and_b32 s{sT0}, s{sI}, 1
s_lshl_b32 s{sT0}, s{sT0}, 5
s_add_u32 s16, s16, s{sT0}
s_lshl_b32 s{sT2}, s{sI}, 11""")
    a(f"""s_mul_i32 s{sT0}, s{sWAVE}, 7168
s_add_u32 s16, s16, s{sT0}
s_add_u32 s16, s16, {X}
s_add_u32 s17, s16, 4096
s_add_u32 s{sT2}, s{sT2}, {H}
s_mul_i32 s30, s{sWAVE}, 7""")
    if wide:
        for i in range(nf):
            a(f"""s_add_u32 s{sT0}, s30, {i}
s_lshr_b32 s{sT1}, s{sT0}, 2
s_lshl_b32 s{sT1}, s{sT1}, 18
s_add_u32 s{23 + i}, s{sT1}, s{sT2}
s_and_b32 s{sT1}, s{sT0}, 2
s_lshl_b32 s{sT1}, s{sT1}, 9
s_add_u32 s{23 + i}, s{23 + i}, s{sT1}
s_and_b32 s{sT1}, s{sT0}, 1
s_lshl_b32 s{sT1}, s{sT1}, 8
s_add_u32 s{23 + i}, s{23 + i}, s{sT1}""")
        a(f"""v_lshrrev_b32 v1, 2, v{vLANE}
v_lshlrev_b32 v{vO}, 4, v1
v_and_b32 v2, 1, v{vLANE}
v_lshl_add_u32 v{vO}, v2, 9, v{vO}
v_bfe_u32 v2, v{vLANE}, 1, 1
v_lshl_add_u32 v{vO}, v2, 11, v{vO}
v_and_b32 v1, 7, v1
v_and_b32 v2, 3, v{vLANE}
v_lshl_add_u32 v1, v2, 3, v1""")
    else:
        a(f"""v_lshrrev_b32 v1, 1, v{vLANE}
v_and_b32 v2, 1, v{vLANE}
v_lshlrev_b32 v{vX}, 6, v1
v_lshl_add_u32 v{vX}, v2, 4, v{vX}
v_mov_b32 v3, {OOB}
v_cmp_gt_u32 vcc, 32, v{vLANE}
v_cndmask_b32 v{vX + 1}, v3, v{vX}, vcc
s_lshl_b32 s30, s30, 4
s_mov_b32 s23, s{sT2}""")
        for i in range(nf):
            a(f"""v_add_u32 v4, s30, v1
v_lshrrev_b32 v5, 6, v4
v_lshlrev_b32 v5, 18, v5
v_bfe_u32 v6, v4, 5, 1
v_lshl_add_u32 v5, v6, 10, v5
v_and_b32 v6, 31, v4
v_lshl_add_u32 v5, v6, 4, v5
v_lshl_add_u32 v{vS + i}, v2, 9, v5""")
            if i < 3:
                a("s_add_u32 s30, s30, 32")
        a(f"""v_cndmask_b32 v{vS + 3}, v3, v{vS + 3}, vcc
v_bfe_u32 v1, v{vLANE}, 2, 3
v_lshl_add_u32 v1, v2, 3, v1""")
    a(f"""v_lshrrev_b32 v3, 5, v{vLANE}
v_lshl_add_u32 v1, v3, 5, v1
s_lshl_b32 s{sT1}, s{sWAVE}, 8
s_add_u32 s{sT1}, s{sT1}, {LNP}
v_lshl_add_u32 v{vPW}, v1, 2, s{sT1}
v_and_b32 v1, 31, v{vLANE}
v_lshlrev_b32 v{vPR}, 2, v1
v_add_u32 v{vPR}, {LNP}, v{vPR}
s_add_u32 s{sT1}, s{sT1}, 1024
v_lshl_add_u32 v{vAW}, v{vLANE}, 2, s{sT1}
v_lshl_add_u32 v{vAR}, v2, 5, s{sT1}
s_mov_b32 s18, 0
s_mov_b32 s19, -1""")
    prod = f"s_lshl_b32 s{sT0}, s{sI}, 6"
    if hinted(eout):
        hint_prep(eout + 10, prod, hr)
    arm = layer == 0 and sentinel(2)
    if arm:
        a(f"v_min_u32 v102, 27, v{vLANE}")
        poll_issue(18, 100)
    wait_edge(ein, r, r + 2, 118)
    if arm:
        poll_take(100)
    stamp(f"ln{layer} go")

    def loads():
        if not wide:
            return [f"buffer_load_dwordx4 {vr(RAW + 4 * i, 4)}, v{vX + (i == 3)}, {srd(S_WS)}, s{16 + i // 2} offen offset:{2048 * (i % 2)} sc1" for i in range(nf)]
        return [f"buffer_load_dwordx4 {vr(RAW + 4 * i, 4)}, v{vL16}, {srd(S_WS)}, s{16 + i // 4} offen offset:{1024 * (i % 4)} sc1" for i in range(nf)]
    again, back, stub = label("lna"), label("lnb"), label("lns")
    if sentinel(ein):
        a(f"s_mov_b32 s{sCNT}, 0")
        a(f"{again}:")
    for l in loads():
        a(l)
    if hinted(eout) and OPT["h_ln"] == 0:
        a.wait_vm0()
        hint_put(hr)
    if OPT["stamps"] == 1:
        a.wait_vm0()
    count_out(113)
    stamp(f"ln{layer} data", 113)
    for i in range(nf):
        for k in range(4):
            unpack(XF + 8 * i + 2 * k, XF + 8 * i + 2 * k + 1, RAW + 4 * i + k)
        for k in range(4):
            x = vr(XF + 8 * i + 2 * k, 2)
            if i == 0:
                a(f"v_pk_mul_f32 {vr(Q + 2 * k, 2)}, {x}, {x}")
            else:
                a(f"v_pk_fma_f32 {vr(Q + 2 * k, 2)}, {x}, {x}, {vr(Q + 2 * k, 2)}")
                a(f"v_pk_add_f32 {vr(S + 2 * k, 2)}, {vr(XF + 2 * k, 2) if i == 1 else vr(S + 2 * k, 2)}, {x}")
    if sentinel(ein):
        for l in maxchain(113, range(RAW, RAW + 4 * nf)) + ["v_cmp_eq_u32 vcc, -1, v113"]:
            a(l)
        STUBS.extend([f"{stub}:", f"s_add_u32 s{sCNT}, s{sCNT}, 1", f"s_cmp_lt_u32 s{sCNT}, {RETRY}", f"s_cbranch_scc1 {again}", f"s_branch {back}"])
    if hinted(eout) and OPT["h_ln"] == 1:
        hint_put(hr)
    for i in range(8):
        a(f"v_permlane32_swap_b32 v{S + i}, v{Q + i}")
        if i == 1 and sentinel(ein):
            a(f"s_cbranch_vccnz {stub}")
            a(f"{back}:")
    for i in range(0, 8, 2):
        a(f"v_pk_add_f32 {vr(S + i, 2)}, {vr(S + i, 2)}, {vr(Q + i, 2)}")
    for i in range(4):
        a(f"v_permlane16_swap_b32 v{S + i}, v{S + 4 + i}")
    for i in range(0, 4, 2):
        a(f"v_pk_add_f32 {vr(S + i, 2)}, {vr(S + i, 2)}, {vr(S + 4 + i, 2)}")
    for i in range(2):
        a(f"v_add_f32_dpp v{W + i}, v{S + i}, v{S + i} row_ror:8 row_mask:0xf bank_mask:0x3")
    for i in range(2):
        a(f"v_add_f32_dpp v{W + i}, v{S + 2 + i}, v{S + 2 + i} row_ror:8 row_mask:0xf bank_mask:0xc")
    a(f"v_add_f32_dpp v{S}, v{W}, v{W} row_shl:4 row_mask:0xf bank_mask:0x5")
    a(f"v_add_f32_dpp v{S}, v{W + 1}, v{W + 1} row_shr:4 row_mask:0xf bank_mask:0xa")
    if not wide:
        a(f"v_add_f32_dpp v{S}, v{S}, v{S} quad_perm:[2,3,0,1] row_mask:0xf bank_mask:0xf")
    a(f"ds_write_b32 v{vPW}, v{S}")
    a.barrier()
    if hinted(eout) and OPT["h_ln"] == 2:
        hint_put(hr)
    stamp(f"ln{layer} bar", 113)
    T = 0
    for w in range(4):
        a(f"ds_read2_b32 {vr(T + 2 * w, 2)}, v{vPR} offset0:{w * 64} offset1:{w * 64 + 32}")
    a(f"""v_pk_add_f32 {vr(T, 2)}, {vr(T, 2)}, {vr(T + 2, 2)}
v_pk_add_f32 {vr(T + 4, 2)}, {vr(T + 4, 2)}, {vr(T + 6, 2)}
v_pk_add_f32 {vr(T, 2)}, {vr(T, 2)}, {vr(T + 4, 2)}
v_mul_f32 v{T}, {f32(1 / 448)}, v{T}
v_mul_f32 v{T + 1}, {f32(1 / 448)}, v{T + 1}
v_fma_f32 v{T + 1}, -v{T}, v{T}, v{T + 1}
v_max_f32 v{T + 1}, 0, v{T + 1}
v_add_f32 v{T + 2}, {f32(1e-5)}, v{T + 1}
v_fmamk_f32 v{T + 2}, v{T + 2}, {f32(1e-5)}, v{T + 1}
v_rsq_f32 v{T + 2}, v{T + 2}
v_mul_f32 v{T + 3}, -v{T}, v{T + 2}
v_cndmask_b32 v{T + 2}, v{T + 2}, v{T + 3}, s[18:19]
ds_write_b32 v{vAW}, v{T + 2}""")
    AL, BE = S, Q
    done_hint = []
    a(f"""ds_read_b128 {vr(AL, 4)}, v{vAR}
ds_read_b128 {vr(BE, 4)}, v{vAR} offset:128
ds_read_b128 {vr(AL + 4, 4)}, v{vAR} offset:16
ds_read_b128 {vr(BE + 4, 4)}, v{vAR} offset:144""")
    for i in range(nf):
        for k in range(4):
            x = vr(XF + 8 * i + 2 * k, 2)
            a(f"v_pk_fma_f32 {x}, {x}, {vr(AL + 2 * k, 2)}, {vr(BE + 2 * k, 2)}")
        for k in range(4):
            a(f"v_cvt_pk_bf16_f32 v{RAW + 4 * i + k}, v{XF + 8 * i + 2 * k}, v{XF + 8 * i + 2 * k + 1}")
        a(f"buffer_store_dwordx4 {vr(RAW + 4 * i, 4)}, v{vO if wide else vS + i}, {srd(S_WS)}, s{23 + i if wide else 23} offen sc1", tag="pub")
        if hinted(eout) and OPT["h_ln"] - 3 == min(i, 6) * (4 if nf == 7 else 4) // (nf + 1):
            if not done_hint:
                hint_put(hr)
                done_hint.append(1)
    stamp(f"ln{layer} st", 113)
    if flagged(eout):
        flag_put(eout, prod, 100, "pub")


def gemm_addr():
    a(f"""s_and_b32 s{sT0}, s{sWAVE}, 1
s_lshl_b32 s{sT0}, s{sT0}, 10
v_add_u32 v{vA0}, s{sT0}, v{vL16}
v_xor_b32 v{vA1}, 0x400, v{vA0}""")


vCHK = 121


def gemm_loop(nks, ring, nring, wreg, swap, sent, lds_from=99, at=None, bg=()):
    WF = 104
    nfr = 2 * nks

    def load(f):
        ks, db = f // 2, f % 2
        g = []
        if db == 0 and ks and ks % 2 == 0:
            g.append(Ins("s_add_u32 s13, s13, 4096"))
            if ks % 4 == 0:
                g += [Ins("s_cmp_eq_u32 s13, s28"), Ins("s_cmov_b32 s13, s27")]
        d = ring + 4 * (f % nring)
        g.append(Ins(f"buffer_load_dwordx4 {vr(d, 4)}, v{(vA0, vA1)[db]}, {srd(S_WS)}, s13 offen offset:{(ks % 2) * 2048} sc1"))
        return g

    def wread(ks):
        g = []
        slot = ks - lds_from
        for nb in range(2):
            for j in range(2):
                d = WF + 8 * (ks % 2) + 4 * nb + 2 * j
                g.append(Ins(f"ds_read_b64_tr_b16 {vr(d, 2)}, v{(vT2a, vT2b)[nb]} offset:{slot * 2048 + j * 1024}", res_r=[f"slot{slot}"]))
        return g

    def check(ks, upto):
        regs = [ring + 4 * ((2 * ks + db) % nring) + k for db in range(2) for k in range(4)]
        chk = maxchain(vCHK, regs) + [f"v_cmp_eq_u32 vcc, -1, v{vCHK}"]
        back, stub = label("gb"), label("gs")
        rl, cnt = [], 0
        for f in range(2 * ks, max(2 * ks + 2, min(upto, 2 * ks + 2 * OPT["rl"]))):
            k2, db = f // 2, f % 2
            if db == 0:
                rl += [f"s_add_u32 s3, s22, {k2 * 2048}", "s_cmp_ge_u32 s3, s28", f"s_cselect_b32 s18, {nks * 2048}, 0", "s_sub_u32 s3, s3, s18"]
            rl.append(f"buffer_load_dwordx4 {vr(ring + 4 * (f % nring), 4)}, v{(vA0, vA1)[db]}, {srd(S_WS)}, s3 offen sc1")
        STUBS.extend([f"{stub}:"] + rl + ["s_waitcnt vmcnt(0)"] + chk + [f"s_add_u32 s{sCNT}, s{sCNT}, 1", f"s_cbranch_vccz {back}",
                                                     f"s_cmp_lt_u32 s{sCNT}, {RETRY}", f"s_cbranch_scc1 {stub}", f"s_branch {back}"])
        return [Ins(x) for x in chk], [Ins(f"s_cbranch_vccnz {stub}"), Ins(f"{back}:")]

    if sent:
        a(f"s_mov_b32 s{sCNT}, 0")
    nxt = min(OPT["fill0"], nring)
    for f in range(nxt):
        a.put(load(f))
    if sent:
        c, b = check(0, nxt)
        a.put(c); a.put(b)
    extra = []
    bg = list(bg)
    for ks in range(nks):
        if at and ks in at:
            extra += a.capture(at[ks])
        pend = wread(ks + 1) if lds_from <= ks + 1 < nks else []
        c, b = check(ks + 1, min(nfr, nxt + 2, nring + 2 * ks + 2)) if (sent and ks + 1 < nks) else ([], [])
        order = [(0, 0), (0, 1), (1, 0), (1, 1)]
        if ks == nks - 1 and OPT["tailord"]:
            order = [(0, 1), (1, 0), (1, 1), (0, 0)]
        if True:
            for nb, db in order:
                acc = vr(16 * (2 * nb + db), 16)
                cc = acc if (ks or (nb | db) == 0) else "0"
                w = wreg(ks, nb) if ks < lds_from else vr(WF + 8 * (ks % 2) + 4 * nb, 4)
                x = vr(ring + 4 * ((2 * ks + db) % nring), 4)
                if OPT["fake16"] and 0 < ks < nks - 1:
                    b0 = 16 * (2 * nb + db) + 8 * (ks & 1)
                    for t in range(2):
                        a(f"v_mfma_f32_16x16x32_bf16 {vr(b0 + 4 * t, 4)}, {x if swap ^ t else w}, {w if swap ^ t else x}, {vr(b0 + 4 * t, 4)}")
                else:
                    a(f"v_mfma_f32_32x32x16_bf16 {acc}, {x if swap else w}, {w if swap else x}, {cc}")
                if pend:
                    a.put([pend.pop(0)])
                free = nring + 2 * ks + (db + 1 if nb == 1 else 0)
                if nxt < min(nfr, free) and (nb == 1 or db == 1):
                    a.put(load(nxt))
                    nxt += 1
                if bg and nb == 0 and ks >= OPT["bg0"]:
                    a.put(bg.pop(0))
                if extra and nb == 0:
                    k = 5
                    while k < len(extra) and ("exec" in extra[k - 1].defs and extra[k - 1].text != "s_mov_b64 exec, -1" or extra[k - 1].kind == "vstore"):
                        k += 1
                    a.put(extra[:k])
                    del extra[:k]
                if nb == 1 and db == 0:
                    a.put(c)
                if nb == 1 and db == 1:
                    a.put(b)
    a.put(extra)


def gemm_rot(nks, srot):
    a(f"s_mov_b32 s27, s13\ns_add_u32 s28, s13, {nks * 2048}\ns_lshl_b32 s{sT0}, s{srot}, 13\ns_add_u32 s13, s13, s{sT0}\ns_mov_b32 s22, s13")


def gemm_reduce_prep():
    slot = 6144 if OPT["bfr"] else 12288
    for rel in (1, 2, 3):
        a(f"s_xor_b32 s{23 + rel}, s{sWAVE}, {rel}\ns_mul_i32 s{23 + rel}, s{23 + rel}, {slot}")
    a(f"s_mul_i32 s23, s{sWAVE}, {slot}")


def gemm_reduce_addr():
    for rel in range(4):
        a(f"v_add_u32 v{64 + rel}, s{23 + rel}, v{vL16}")


def gemm_perm(P):
    if not OPT["bfr"]:
        return
    t, u = P + 8, P + 7
    a("s_mov_b32 s29, 0x3f80")
    a(f"""v_lshrrev_b32 v{u}, 5, v{vLANE}
v_and_b32 v{t}, 31, v{vLANE}
v_lshlrev_b32 v{u}, 2, v{u}
v_sub_u32 v{t}, v{t}, v{u}
v_and_b32 v{u}, 1, v{t}
v_lshlrev_b32 v{u}, 4, v{u}
v_lshlrev_b32 v{u}, v{u}, s29
v_ashrrev_i32 v{t}, 1, v{t}""")
    vals = (0, 1, 4, 5, 8, 9, 12, 13)
    pairs = ("s[16:17]", "s[30:31]", "s[50:51]")
    for d in range(10):
        if d < 8:
            a(f"v_cmp_eq_u32 {pairs[d % 3]}, {vals[d]}, v{t}")
        if d >= 2:
            a(f"v_cndmask_b32 v{P + d - 2}, 0, v{u}, {pairs[(d - 2) % 3]}")
    a(f"ds_write_b128 v{vL16}, {vr(P, 4)} offset:{PERM}")
    a(f"ds_write_b128 v{vL16}, {vr(P + 4, 4)} offset:{PERM + 1024}")


def gemm_perm_get(P):
    if OPT["bfr"]:
        a(f"ds_read_b128 {vr(P, 4)}, v{vL16} offset:{PERM}")
        a(f"ds_read_b128 {vr(P + 4, 4)}, v{vL16} offset:{PERM + 1024}")


def gemm_reduce_bf(P, pre, post, quarter):
    side = a.capture(pre) if pre else []
    a.put(side[:9])
    side = side[9:]
    T = [104, 108, 112, 116]
    n = 0
    for rel in (1, 2, 3):
        for j in range(2):
            t = T[n % 4]
            n += 1
            for k in range(4):
                r = 16 * rel + 8 * j + 2 * k
                a(f"v_cvt_pk_bf16_f32 v{t + k}, v{r}, v{r + 1}")
            a(f"ds_write_b128 v{64 + rel}, {vr(t, 4)} offset:{RB + (rel - 1) * 2048 + j * 1024}")
            a.put(side[:3])
            side = side[3:]
    a.put(side)
    a.barrier()
    for k in range(6):
        a(f"ds_read_b128 {vr(16 + 4 * k, 4)}, v64 offset:{RB + k * 1024}")
    if post:
        post()
    for k in range(6):
        a(f"v_mfma_f32_32x32x16_bf16 v[0:15], {vr(P + 4 * (k % 2), 4)}, {vr(16 + 4 * k, 4)}, v[0:15]")
    if quarter:
        for q in range(4):
            quarter(q)


def gemm_reduce(pre=None, post=None, quarter=None, P=None):
    if OPT["bfr"]:
        return gemm_reduce_bf(P, pre, post, quarter)
    side = a.capture(pre) if pre else []
    wr = [[Ins(f"ds_write_b128 v{64 + rel}, {vr(16 * rel + 4 * q, 4)} offset:{RB + (rel - 1) * 4096 + q * 1024}")] for rel in (1, 2, 3) for q in range(4)]
    a.put(side[:9])
    put_all(wr[:3])
    m, rest = merge(side[9:], wr[3:], 0, 12)
    a.put(m)
    put_all(rest)
    a.barrier()
    for q in range(4):
        for k in range(3):
            a(f"ds_read_b128 {vr(16 + 16 * k + 4 * q, 4)}, v64 offset:{RB + k * 4096 + q * 1024}")
        if q == 1 and post:
            post()
    for q in range(4):
        for h in range(2):
            r = 4 * q + 2 * h
            a(f"v_pk_add_f32 {vr(16 + r, 2)}, {vr(16 + r, 2)}, {vr(32 + r, 2)}")
            a(f"v_pk_add_f32 {vr(r, 2)}, {vr(r, 2)}, {vr(48 + r, 2)}")
        for h in range(2):
            r = 4 * q + 2 * h
            a(f"v_pk_add_f32 {vr(r, 2)}, {vr(r, 2)}, {vr(16 + r, 2)}")
        if quarter:
            quarter(q)


def gemm1(layer, wide, pre=None, bg=(), part="all"):
    H = H1 if layer == 0 else H3
    G = G1 if layer == 0 else G3
    r = 32
    c0 = -2 * math.log2(math.e) * math.sqrt(2 / math.pi)
    ein, eout = 2 + 4 * layer, 3 + 4 * layer
    if part == "poll":
        assert emode(ein) == "S"
        for k in range(8):
            unpack(2 * k, 2 * k + 1, 20 + k)
        poll_issue(ein + 10, r, r + 3)
        return
    if part != "rest":
        gemm1_head(H, G, wide, r, c0)
    if part == "head":
        return
    gemm1_rest(layer, wide, pre, bg, part, r, c0, ein, eout)


def gemm1_head(H, G, wide, r, c0):
    gemm_addr()
    a(f"""s_lshr_b32 s{sT0}, s{sWAVE}, 1
s_lshl_b32 s{sT0}, s{sT0}, 6
s_lshl_b32 s{sT1}, s{sNT}, 7
s_add_u32 s{sT0}, s{sT0}, s{sT1}
v_lshrrev_b32 v16, 5, v{vLANE}
v_lshl_add_u32 v16, v16, 3, s{sT0}""")
    for q in range(4):
        a(f"global_load_dwordx2 {vr(20 + 2 * q, 2)}, v16, {sp(P_B1)} offset:{16 * q}")
    a(f"""s_lshl_b32 s{sT0}, s{sWAVE}, 5
v_and_b32 v{r + 2}, 31, v{vLANE}
v_add_u32 v{r + 2}, s{sT0}, v{r + 2}
v_and_b32 v{r + 3}, {31 & ~(32 // OPT['samp'] - 1)}, v{vLANE}
v_add_u32 v{r + 3}, s{sT0}, v{r + 3}
s_lshl_b32 s13, s{sDT1}, 7
s_add_u32 s13, s13, s{sT0}
s_lshl_b32 s13, s13, 11
s_add_u32 s13, s13, {H}""")
    if wide:
        a(f"v_lshrrev_b32 v{r + 2}, 1, v{r + 2}\nv_lshrrev_b32 v{r + 3}, 1, v{r + 3}")
    a(f"""s_mov_b32 s{sCA}, {f32(c0 * 0.044715)}
s_mul_i32 s21, s{sDT1}, 112
s_lshl_b32 s{sT0}, s{sNT}, 2
s_add_u32 s21, s21, s{sT0}
s_and_b32 s{sT0}, s{sWAVE}, 2
s_add_u32 s21, s21, s{sT0}
s_lshl_b32 s21, s21, 11
s_add_u32 s21, s21, {G}""")
    gemm_reduce_prep()
    gemm_rot(32, sROT1)


def gemm1_rest(layer, wide, pre, bg, part, r, c0, ein, eout):
    if pre:
        pre()
    if part != "rest":
        for k in range(8):
            unpack(2 * k, 2 * k + 1, 20 + k)
    if part == "rest":
        poll_take(r, r + 3)
    elif emode(ein) == "M":
        l1, l2 = label("m1"), label("m2")
        a(f"s_cmp_eq_u32 s{sRL0 if wide else sRL}, 0\ns_cbranch_scc1 {l1}")
        a.wait_tag("pub")
        a(f"s_branch {l2}")
        a(f"{l1}:")
        wait_edge(ein, r, r + 2, r + 3)
        a(f"{l2}:")
    else:
        wait_edge(ein, r, r + 2, r + 3)
    stamp(f"g1_{layer} go", 63)
    prod = f"s_mul_i32 s{sT0}, s{sDT1}, 28\ns_add_u32 s{sT0}, s{sT0}, s{sNT}\ns_lshl_b32 s{sT0}, s{sT0}, 6"
    early = hinted(eout) and OPT["h_g1"] < 0
    at = {30: gemm_reduce_addr, 28: lambda: gemm_perm_get(96)}
    if early:
        assert OPT["h_g1"] in (-1, -3, -4)
        at[32 + OPT["h_g1"]] = lambda: (hint_prep(eout + 10, prod, 104), hint_put(104))
    gemm_loop(32, 64, 14, lambda ks, nb: f"a[{(ks * 2 + nb) * 4}:{(ks * 2 + nb) * 4 + 3}]", False, sentinel(ein), at=at)
    count_out(120)
    stamp(f"g1_{layer} loop", 120)
    a.begin()
    late = hinted(eout) and not early

    def pre():
        a(f"v_mov_b32 v80, {f32(c0)}")
        if late:
            hint_prep(eout + 10, prod, 72)

    def gelu(q):
        if q % 2 == 0:
            return
        half = q // 2
        if late and OPT["h_g1"] == 1 and half == 0:
            hint_put(72)
        rs = range(8 * half, 8 * half + 8, 2)
        for r in rs:
            a(f"v_pk_mul_f32 {vr(16 + r, 2)}, {vr(r, 2)}, {vr(r, 2)}")
        for r in rs:
            a(f"v_pk_fma_f32 {vr(16 + r, 2)}, {vr(16 + r, 2)}, {sp(sCA)}, {vr(80, 2)} op_sel_hi:[1,0,0]")
        for r in rs:
            a(f"v_pk_mul_f32 {vr(16 + r, 2)}, {vr(16 + r, 2)}, {vr(r, 2)}")
        for r in rs:
            a(f"v_exp_f32 v{16 + r}, v{16 + r}\nv_exp_f32 v{17 + r}, v{17 + r}")
        for r in rs:
            a(f"v_pk_add_f32 {vr(16 + r, 2)}, {vr(16 + r, 2)}, 1.0 op_sel_hi:[1,0]")
        for r in rs:
            a(f"v_rcp_f32 v{16 + r}, v{16 + r}\nv_rcp_f32 v{17 + r}, v{17 + r}")
        for r in rs:
            a(f"v_pk_mul_f32 {vr(r, 2)}, {vr(r, 2)}, {vr(16 + r, 2)}")
        for r in rs:
            a(f"v_cvt_pk_bf16_f32 v{84 + r // 2}, v{r}, v{r + 1}")
        a(f"buffer_store_dwordx4 {vr(84 + 4 * half, 4)}, v{vA0}, {srd(S_WS)}, s21 offen offset:{2048 * half} sc1", tag="pub")
        if late and OPT["h_g1"] == 2 + half:
            hint_put(72)
    gemm_reduce(pre, (lambda: hint_put(72)) if (late and OPT["h_g1"] == 0) else None, gelu, 96)
    m, rest = merge(a.end(), list(bg), 0, OPT["ev_g1"])
    a.put(m)
    if not flagged(eout):
        a.barrier()
    else:
        flag_put(eout, prod, 40, "pub")
    for g in rest:
        a.put(g)


def gemm2(layer, bg=()):
    G = G1 if layer == 0 else G3
    gemm_addr()
    a(f"""s_lshr_b32 s{sT0}, s{sWAVE}, 1
s_lshl_b32 s{sT0}, s{sT0}, 5
s_lshl_b32 s{sT1}, s{sST}, 6
s_add_u32 s50, s{sT0}, s{sT1}
s_and_b32 s{sT1}, s{sWAVE}, 1
s_lshl_b32 s{sT1}, s{sT1}, 5
s_lshl_b32 s{sT2}, s{sDT2}, 6
s_add_u32 s51, s{sT1}, s{sT2}
s_lshr_b32 s{sT2}, s50, 5
s_mul_i32 s{sT2}, s{sT2}, {BS}
s_lshl_b32 s{sT1}, s51, 6
s_add_u32 s20, s{sT2}, s{sT1}
s_add_u32 s30, s20, {X1 if layer == 0 else X3}
v_and_b32 v16, 31, v{vLANE}
v_lshrrev_b32 v17, 5, v{vLANE}
s_lshl_b32 s{sT0}, s50, 1""")
    r = 42

    def residual_issue():
        if layer == 0:
            for q in range(4):
                a(f"buffer_load_dwordx2 {vr(20 + 2 * q, 2)}, v18, {srd(S_WS)}, s30 offen offset:{16 * q} sc1")
        else:
            a(f"s_mov_b32 m0, s31")
            a(f"buffer_load_dwordx4 v{vL16}, {srd(S_WS)}, s30 offen sc1 lds", res_w=["x3"])
            a(f"buffer_load_dwordx4 v{vL16}, {srd(S_WS)}, s30 offen offset:1024 sc1 lds", res_w=["x3"])

    def residual_use():
        if layer == 0:
            for k in range(8):
                unpack(2 * k, 2 * k + 1, 20 + k)
            for k in range(8):
                unpack(40, 41, 28 + k)
                a(f"v_pk_add_f32 {vr(2 * k, 2)}, {vr(2 * k, 2)}, v[40:41]")
        else:
            for q in range(4):
                a(f"ds_read_b64_tr_b16 {vr(20 + 2 * q, 2)}, v31 offset:{512 * q}", res_r=["x3"])
            a("v_lshlrev_b32 v40, 16, v29")
            for k in range(8):
                unpack(2 * k, 2 * k + 1, 20 + k)
                a(f"v_pk_add_f32 {vr(2 * k, 2)}, {vr(2 * k, 2)}, v[40:41] op_sel_hi:[1,0]")

    if layer == 0:
        a(f"v_lshlrev_b32 v18, 6, v16\nv_lshl_add_u32 v18, v17, 3, v18\nv_lshl_add_u32 v19, v17, 3, s{sT0}")
        for q in range(4):
            a(f"global_load_dwordx2 {vr(28 + 2 * q, 2)}, v19, {sp(P_B2)} offset:{16 * q}")
    else:
        a(f"""v_and_b32 v19, 3, v{vLANE}
s_lshl_b32 s31, s{sWAVE}, 11
v_lshl_add_u32 v28, v16, 1, s{sT0}
global_load_ushort v29, v28, {sp(P_B2)}
v_bfe_u32 v31, v{vLANE}, 2, 2
v_lshl_add_u32 v31, v17, 2, v31
v_lshlrev_b32 v31, 6, v31
v_bfe_u32 v30, v{vLANE}, 4, 1
v_lshl_add_u32 v31, v30, 5, v31
v_lshl_add_u32 v31, v19, 3, v31
v_add_u32 v31, s31, v31""")
    a(f"""s_mul_i32 s{sT0}, s{sDT2}, 28
s_mul_i32 s{sT1}, s{sWAVE}, 7
s_add_u32 s{sT0}, s{sT0}, s{sT1}
v_min_u32 v{r + 2}, 6, v{vLANE}
v_add_u32 v{r + 2}, s{sT0}, v{r + 2}
v_mov_b32 v{r + 3}, v{r + 2}
s_lshl_b32 s13, s{sT0}, 13
s_add_u32 s13, s13, {G}""")
    if layer == 0:
        a(f"""s_add_u32 s21, s20, {X2}
s_lshl_b32 s19, s50, 1
s_add_u32 s19, s19, {ST1}""")
    else:
        a(f"s_mul_i32 s{sT0}, s50, 896\ns_lshl_b32 s{sT1}, s51, 1\ns_add_u32 s21, s{sT0}, s{sT1}")
    gemm_reduce_prep()
    gemm_rot(28, sROT2)
    lskip, ljoin = label("res"), label("resj")
    a(f"s_cmp_eq_u32 s{sR1}, 0")
    a(f"s_cbranch_scc1 {lskip}")
    residual_issue()
    residual_use()
    if emode(3 + 4 * layer) == "M":
        a.wait_tag("pub")
    else:
        wait_edge(3 + 4 * layer, r, r + 2, r + 3)
    a(f"s_branch {ljoin}")
    a(f"{lskip}:")
    eln = 2 + 4 * layer
    if OPT["rese"] and hinted(eln) and OPT["h_ln"] >= 2:
        wide = OPT["ln1w"] if layer else OPT["ln0w"]
        a(f"s_lshl_b32 s{sT0}, s{sST}, {1 if wide else 2}\nv_and_b32 v48, {1 if wide else 3}, v{vLANE}\nv_add_u32 v48, s{sT0}, v48")
        poll_issue(eln + 10, 46)
        poll_take(46)
        residual_issue()
        residual_use()
        wait_edge(3 + 4 * layer, r, r + 2, r + 3)
    else:
        wait_edge(3 + 4 * layer, r, r + 2, r + 3)
        residual_issue()
        residual_use()
    a(f"{ljoin}:")
    stamp(f"g2_{layer} go", 63)
    gemm_loop(28, 64, 10, lambda ks, nb: vr(128 + (ks * 2 + nb) * 4, 4), layer == 1, sentinel(3 + 4 * layer), lds_from=16, at={26: gemm_reduce_addr, 25: lambda: gemm_perm_get(88)}, bg=bg)
    count_out(120)
    stamp(f"g2_{layer} loop", 120)

    def addr():
        a(f"v_and_b32 v68, 31, v{vLANE}\nv_lshrrev_b32 v69, 5, v{vLANE}")
        if layer == 0:
            a(f"""v_and_b32 v70, 15, v{vLANE}
v_lshlrev_b32 v70, 6, v70
v_lshl_add_u32 v70, v69, 4, v70
v_bfe_u32 v71, v{vLANE}, 4, 1
v_lshl_add_u32 v70, v71, 5, v70
v_bfe_u32 v71, v{vLANE}, 2, 2
v_lshlrev_b32 v71, 4, v71
v_bfe_u32 v68, v{vLANE}, 4, 1
v_lshl_add_u32 v71, v68, 3, v71
v_and_b32 v68, 1, v{vLANE}
v_lshl_add_u32 v71, v68, 2, v71
v_bfe_u32 v68, v{vLANE}, 1, 1
v_lshl_add_u32 v68, v69, 1, v68
v_lshl_add_u32 v71, v68, 12, v71""")
        else:
            a(f"v_mul_u32_u24 v70, 896, v68\nv_lshl_add_u32 v70, v69, 4, v70")
    prod = f"s_lshl_b32 s{sT0}, s{sDT2}, 5\ns_add_u32 s{sT0}, s{sT0}, s{sST}\ns_lshl_b32 s{sT0}, s{sT0}, 6"
    hn = layer == 0 and hinted(4)

    def pre():
        addr()
        if hn:
            hint_prep(14, prod, 80)
    gemm_reduce(pre, (lambda: hint_put(80)) if (hn and OPT["h_g2"] == 0) else None, None, 88)
    if hn and OPT["h_g2"] == 1:
        hint_put(80)
    PK = 72
    stamp(f"g2_{layer} red", 120)
    for half in range(2):
        b = PK + 4 * half
        for k in range(4):
            a(f"v_cvt_pk_bf16_f32 v{b + k}, v{8 * half + 2 * k}, v{8 * half + 2 * k + 1}")
        a(f"v_permlane32_swap_b32 v{b}, v{b + 2}")
        a(f"v_permlane32_swap_b32 v{b + 1}, v{b + 3}")
        if layer == 1:
            a(f"buffer_store_dwordx4 {vr(b, 4)}, v70, {srd(S_OUT)}, s21 offen offset:{32 * half} {('', 'nt', 'sc1')[OPT['ofl']]}")
    if layer == 1:
        return
    for k in range(4):
        a(f"v_permlane16_swap_b32 v{PK + k}, v{PK + 4 + k}")
    for half in range(2):
        a(f"buffer_store_dwordx4 {vr(PK + 4 * half, 4)}, v70, {srd(S_WS)}, s21 offen offset:{1024 * half} sc1", tag="pub")
    if hn and OPT["h_g2"] == 2:
        hint_put(80)
    for k in range(8):
        a(f"v_pk_mul_f32 {vr(20 + 2 * k, 2)}, {vr(2 * k, 2)}, {vr(2 * k, 2)}")
    res = reduce32(list(range(16)) + list(range(20, 36)), 16, list(range(40, 48)))
    assert res == [0, 1, 2, 3]
    a(f"""v_cndmask_b32 v0, v0, v1, {sp(sM1)}
v_cndmask_b32 v2, v2, v3, {sp(sM1)}
v_cndmask_b32 v0, v0, v2, {sp(sM2)}""")
    a(f"buffer_atomic_add_f32 v0, v71, {srd(S_WS)}, s19 offen sc1", tag="pub")
    if hn and OPT["h_g2"] == 3:
        hint_put(80)
    stamp("g2_0 atom", 120)
    flag_put(4, prod, 40, "pub")
    stamp("g2_0 flag", 120)


def skip_unless(role):
    l = label("skip")
    a(f"s_cmp_eq_u32 s{role}, 0")
    a(f"s_cbranch_scc1 {l}")
    return l


def dmas(n0, n1):
    return [w_dma(n, h) for n in range(n0, n1) for h in range(2)]


def tr_dma(n0, n1):
    g = []
    for n in range(n0, n1):
        g.append(w_tr(n))
        if n > n0:
            g += dmas(n + 11, n + 12)
    g += dmas(n1 + 11, n1 + 12)
    return g


def wseq():
    nB = OPT["wB"] // 2
    assert 36 <= nB <= 60
    g = dmas(0, 12) + tr_dma(0, nB - 12)
    lastT = 48 if (nB >= 48 and OPT["wT"]) else 32 + OPT["wg"]
    g += [w_tr(n) for n in range(nB - 12, lastT)]
    g.append([])
    d = nB
    for n in range(max(lastT, nB - 12), 49):
        while d < min(n + 11, 60) or (n == 48 and d < 60):
            g += dmas(d, d + 1)
            d += 1
        if n < 48:
            g.append(w_tr(n))
    return g


def wcut(n_dma):
    k = 0
    for p, g in enumerate(wseq()):
        if k == n_dma:
            return p
        k += any(i.kind == "dma" for i in g)
    return len(wseq())


def put_all(gs):
    for g in gs:
        a.put(g)


def w2_touch(r):
    return [Ins(f"v_lshlrev_b32 v{r}, 12, v{vLANE}"), Ins(f"buffer_load_dword v{r}, v{r}, {srd(S_W2)}, s{sW2O} offen")]


def upad():
    a(f"""v_mov_b32 v32, 0
v_mov_b32 v33, 0
v_mov_b32 v34, 0
v_mov_b32 v35, 0
s_and_b32 s{sT0}, s{sWAVE}, 1
s_mul_i32 s{sT0}, s{sT0}, {UST}
v_add_u32 v36, s{sT0}, v{vL16}
ds_write_b128 v36, v[32:35] offset:{UB}""")


def build():
    global RB
    if OPT["bfr"] and OPT["keepk"]:
        RB = UB
    g = OPT["wg"]
    WORDER[:] = list(range(0, g)) + list(range(32, 32 + g)) + list(range(g, 32)) + list(range(32 + g, 60))
    if OPT["w2t"]:
        WORDER[:] = list(range(60))
    cA, cP, cL, cB = wcut(OPT["wA"]), wcut(OPT["wP"]), wcut(OPT["wL"]), wseq().index([])
    cK = wcut(OPT["wK"])
    prologue()
    laux, ljoin = label("aux"), label("join")
    a(f"s_cmp_eq_u32 s{sRC}, 0")
    a(f"s_cbranch_scc1 {laux}")
    stamp("args", 2)
    xt_loads()
    kgen_table_load()
    code_warm(1)
    page_warm(88)
    w_setup()
    put_all(wseq()[:cA])
    conv_setup(0)
    stamp("start", 2)

    xt_poll_addr(63, 2)
    xt_work()
    stamp("xt", 2)

    def h_flag():
        nonce_take()
        flag_put(0, sPAIR, 104, "st0")
        stamp("flag", 0)
        a(f"global_load_dwordx4 {vr(TAB, 4)}, v75, {sp(sTAB)}")
        a(f"global_load_dwordx4 {vr(TAB + 4, 4)}, v75, {sp(sTAB)} offset:16")
        a(f"global_load_dwordx2 v[0:1], v75, {sp(sTAB)} offset:32")

    hooks = {}
    dbg = tuple((p, (lambda p=p: stamp(f"hook{p}", 65))) for p in (0, 1, 2, 5)) if OPT["stamps"] == 1 else ()
    for pos, fn in dbg + ((OPT["h_flag"], h_flag), (OPT["h_w"], lambda: KBG.extend(wseq()[cA:cK] + ([w2_touch(75)] if OPT["w2t"] else []))), (OPT["h_poll"], lambda: poll_issue(0, 64, 63))):
        hooks.setdefault(pos, []).append(fn)
    assert OPT["h_flag"] <= OPT["h_w"] and OPT["h_poll"] >= 6
    kgen({k: (lambda fs=fs: [f() for f in fs]) for k, fs in hooks.items()})
    dump_lds(1)
    stamp("kgen", 21)

    def mid():
        poll_take(64, 63)
        stamp("e1 seen", 0)
        conv_loads()
    wr = kexpand(mid)
    if OPT["mixpro"]:
        mv = [i for i in wr if i.kind != "dsw"]
        st = [i for i in wr if i.kind == "dsw"]
        pro = a.capture(conv_pro, 0)
        k = next(n for n, i in enumerate(pro) if i.defs & {f"v{r}" for r in range(0, 22)})
        a.put(mv)
        a.put(st[2:4])
        head, rest = merge(pro[:k], [[i] for i in st[4:6] + st[:2] + st[6:]], 0, 14)
        a.put(head)
        early = [g for g in rest if g[0].uses & {f"v{r}" for r in range(0, 22)}]
        put_all(early)
        rest = [g for g in rest if g not in early]
        k2 = next(n for n, i in enumerate(pro) if i.kind == "dsw")
        mid2, rest = merge(pro[k:k2], rest, 0, 30)
        put_all(rest)
        m3, rest = merge(mid2 + pro[k2:], wseq()[cK:cP], 50, OPT["ev_pro"])
        a.put(m3)
        put_all(rest)
        stamp("expand", 111)
    else:
        a.put(wr)
        stamp("expand")
        conv_pro(0)
    if sentinel(1):
        a(f"v_min_u32 v{cvP + 2}, 27, v{vLANE}")
        poll_issue(8, cvP)
    a.barrier()
    dump_lds(2)
    stamp("conv0 go", 111)
    put_all(conv_main(0, wseq()[cP:cL], OPT["st_conv"], OPT["ev_conv"]))
    stamp("conv0 done")
    a(f"s_branch {ljoin}")
    a(f"{laux}:")
    aux_loads()
    kgen_table_addr()
    code_warm(1)
    page_warm(88)
    w_setup()
    aux_work()
    stamp("aux e1")
    if OPT["g7"] == 1:
        lg = label("g7")
        a(f"""s_cmp_lg_u32 s{sR1}, 0
s_cbranch_scc1 {lg}
s_lshr_b32 s{sT0}, s{sX}, 2
s_sub_u32 s{sT0}, s{sJ}, s{sT0}
s_sub_u32 s{sT0}, s{sT0}, 28
s_lshl_b32 s{sT0}, s{sT0}, 3
s_add_u32 s{sT0}, s{sT0}, s{sX}
s_lshl_b32 s{sT0}, s{sT0}, 7
s_mul_i32 s{sT1}, s{sWAVE}, {512 * 3584}
s_add_u32 s{sT0}, s{sT0}, s{sT1}
s_add_u32 s{sT0}, s{sT0}, {448 * 3584}
v_mul_u32_u24 v90, 3584, v{vLANE}
v_add_u32 v90, s{sT0}, v90""")
        a(f"global_load_dword v90, v90, {sp(P_W1)}")
        a(f"{lg}:")
    if armed(0):
        lnf = label("nf")
        a(f"s_cmp_lg_u32 s{sR1}, 0\ns_cbranch_scc1 {lnf}")
        if OPT["map18"] == 1:
            a(f"s_sub_u32 s16, s{sAUX}, 4\ns_cselect_b32 s16, s{sAUX}, s16")
        else:
            a(f"s_lshr_b32 s16, s{sAUX}, 1\ns_sub_u32 s17, s{sAUX}, 4\ns_cmp_lt_u32 s{sAUX}, 8\ns_cselect_b32 s16, s16, s17")
        if sentinel(1):
            fill(X1, 17, 80, 16, 28 * 4096, "fill")
            flag_put(8, 16, 72, "fill")
        if sentinel(2) or sentinel(3):
            if sentinel(2):
                fill(H1, 16, 80, 16, 28 * 4096, "fill")
            if sentinel(3):
                fill(G1, 14, 80, 16, 28 * 4096, "fill")
            flag_put(18, 16, 72, "fill")
        a(f"{lnf}:")
    stamp("aux fill")
    if OPT["g7"] == 2:
        lg = label("g7")
        a(f"""s_cmp_lg_u32 s{sR1}, 0
s_cbranch_scc1 {lg}
s_lshr_b32 s{sT0}, s{sX}, 2
s_sub_u32 s{sT0}, s{sJ}, s{sT0}
s_sub_u32 s{sT0}, s{sT0}, 28
s_lshl_b32 s{sT0}, s{sT0}, 3
s_add_u32 s{sT0}, s{sT0}, s{sX}
s_lshl_b32 s{sT0}, s{sT0}, 7
s_mul_i32 s{sT1}, s{sWAVE}, {512 * 3584}
s_add_u32 s{sT0}, s{sT0}, s{sT1}
s_add_u32 s{sT0}, s{sT0}, {448 * 3584}
v_mul_u32_u24 v90, 3584, v{vLANE}
v_add_u32 v90, s{sT0}, v90""")
        a(f"global_load_dword v90, v90, {sp(P_W1)}")
        a(f"{lg}:")
    cX = min(wcut(64 + 2 * OPT["wg"]), cB)
    if OPT["w2t"]:
        a.put(w2_touch(75))
    n1 = 32 + OPT["wg"]
    if OPT["auxs"]:
        put_all(dmas(0, 12) + tr_dma(0, n1 - 12) + [w_tr(n) for n in range(n1 - 12, n1)])
    else:
        put_all(wseq()[:cX])
    if sentinel(1):
        a(f"v_min_u32 v62, 27, v{vLANE}")
        poll_issue(8, 60)
        poll_take(60)
    a.wait_vm0()
    stamp("aux w")
    a(f"{ljoin}:")
    for layer in range(2):
        if layer == 1:
            l = skip_unless(sRC)
            conv_setup(1)
            conv_poll1()
            stamp("conv1 ready")
            if OPT["kc_in"] and not hinted(4):
                a.wait_tag("flag")
                poll_issue(4, cvP)
                kcopies()
                poll_take(cvP)
            else:
                upad() if RB == UB else kcopies()
                if emode(4) == "G":
                    lg = label("gt")
                    a(f"s_cmp_lg_u32 s{sR2}, 0\ns_cbranch_scc1 {lg}")
                    poll_issue(14, cvP, cvP + 3)
                    poll_take(cvP, cvP + 3)
                    a(f"{lg}:")
                    a.wait_tag("flag")
                    poll_issue(4, cvP)
                    poll_take(cvP)
                else:
                    wait_edge(4, cvP, cvP + 2, cvP + 3)
            stamp("conv1 poll")
            conv_loads()
            conv_pro(1)
            if armed(1):
                a(f"v_and_b32 v{cvP + 2}, 31, v{vLANE}")
                poll_issue(9, cvP)
            a.barrier()
            dump_lds(3)
            stamp("conv1 go", 111)
            conv_main(1)
            stamp("conv1 done")
            if armed(1):
                lj = label("cvj")
                a(f"s_branch {lj}")
                a(f"{l}:")
                a(f"v_and_b32 v62, 31, v{vLANE}")
                poll_issue(9, 60)
                poll_take(60)
                a(f"{lj}:")
            else:
                a(f"{l}:")
        wide = OPT["ln1w"] if layer else OPT["ln0w"]
        l = skip_unless(sRL0 if wide else sRL)
        ln(layer, wide)
        stamp(f"ln{layer} done")
        a(f"{l}:")
        if layer == 0:
            gemm_perm(0)
            def arm_poll(part):
                k = max(0, len(part) - 12)
                put_all(part[:k])
                if sentinel(2) or sentinel(3):
                    a(f"v_min_u32 v62, 27, v{vLANE}")
                    poll_issue(18, 60)
                if inb:
                    gemm1(0, wide, part="head")
                k2 = max(k, len(part) - OPT["inb"])
                put_all(part[k:k2])
                if inb:
                    gemm1(0, wide, part="poll")
                put_all(part[k2:])
                if sentinel(2) or sentinel(3):
                    poll_take(60)
            inb = OPT["inb"] > 0 and emode(2) == "S"
            if OPT["auxs"]:
                assert OPT["wB"] == 120
                la, lb, lc = label("ba"), label("bb"), label("bc")
                a(f"s_cmp_eq_u32 s{sRC}, 0\ns_cbranch_scc1 {la}")
                arm_poll(wseq()[cL:cB])
                a(f"s_branch {lb}")
                a(f"{la}:")
                a(f"s_cmp_eq_u32 s{sR2}, 0\ns_cbranch_scc1 {lc}")
                put_all(dmas(n1, n1 + 12) + tr_dma(n1, 48))
                a(f"{lc}:")
                if inb:
                    gemm1(0, wide, part="head")
                    gemm1(0, wide, part="poll")
                elif not sentinel(2):
                    arm_poll([])
                a(f"{lb}:")
            else:
                l = skip_unless(sRC)
                put_all(wseq()[cL:cX])
                a(f"{l}:")
                rest = wseq()[cX:cB]
                k = max(0, len(rest) - 12)
                put_all(rest[:k])
                if sentinel(2) or sentinel(3):
                    a(f"v_min_u32 v62, 27, v{vLANE}")
                    poll_issue(18, 60)
                put_all(rest[k:])
                if sentinel(2) or sentinel(3):
                    poll_take(60)
            stamp("w B")
            tail = wseq()[cB:]
            assert not any(i.kind == "dsr" and "a[" in i.text for g in tail for i in g)
            lelse, lj = label("ng1"), label("g1j")
            a(f"s_cmp_eq_u32 s{sR1}, 0")
            a(f"s_cbranch_scc1 {lelse}")
            gemm1(0, wide, None, [] if OPT["t2"] else tail, "rest" if inb else "all")
            nonce_retire()
            stamp("g1_0 done")
            a(f"s_branch {lj}")
            a(f"{lelse}:")
            put_all([] if OPT["t2"] else wseq()[cB:])
            a(f"{lj}:")
        else:
            l = skip_unless(sR1)
            gemm1(1, wide)
            stamp("g1_1 done")
            a(f"{l}:")
        l = skip_unless(sR2)
        gemm2(layer, [g for g in wseq()[cB:] if g] if (layer == 0 and OPT["t2"]) else [])
        if layer == 0 and armed(1):
            lj = label("g2j")
            a(f"s_branch {lj}")
            a(f"{l}:")
            if OPT["map18"]:
                a(f"s_lshl_b32 s16, s{sX}, 2\ns_add_u32 s16, s16, s{sJ}")
            else:
                a(f"s_lshr_b32 s16, s{sX}, 1\ns_lshl_b32 s16, s16, 3\ns_add_u32 s16, s16, s{sJ}")
            for base, n, e in ((X3, 15, 5), (H3, 14, 6), (G3, 13, 7)):
                if sentinel(e):
                    fill(base, n, 72, 16, CH)
            flag_put(9, 16, 8, "st0")
            a(f"{lj}:")
        else:
            a(f"{l}:")
        stamp("g2_0 done" if layer == 0 else "end")
    if OPT["stamps"] and OPT["dbgwg"] < 0:
        l = label("ls")
        a(f"s_cmp_lg_u32 s{sWAVE}, 0\ns_cbranch_scc1 {l}\ns_waitcnt vmcnt(0)\ns_memrealtime {sp(sSTAMP)}\ns_waitcnt lgkmcnt(0)")
        a(f"s_lshl_b32 s3, s2, 8\ns_add_u32 s3, s3, {STAMPS + 248}\nv_mov_b32 v0, s101\nv_mov_b32 v1, s{sSTAMP}\ns_mov_b64 exec, 1")
        a(f"buffer_store_dwordx2 v[0:1], off, {srd(S_WS)}, s3")
        a(f"{l}:")
    if OPT["fixdur"]:
        a(f"s_waitcnt vmcnt(0) lgkmcnt(0)\nL_fix:\ns_memrealtime s[28:29]\ns_waitcnt lgkmcnt(0)\ns_sub_u32 s28, s28, s101\ns_cmp_lt_u32 s28, {OPT['fixdur']}\ns_cbranch_scc1 L_fix")
    a("s_endpgm")


def bf16_round_int(l):
    b = struct.unpack("<I", struct.pack("<f", float(l)))[0]
    b = (b + 0x7FFF + ((b >> 16) & 1)) & 0xFFFF0000
    return int(struct.unpack("<f", struct.pack("<I", b))[0])


def ktab():
    vals = []
    for c in range(2):
        for x in range(2048):
            lr = bf16_round_int(2047 - x)
            aa, rem = lr >> 7, lr & 127
            j, e = rem >> 3, rem & 7
            if aa < 2:
                rho = 8 * aa + e
            elif aa < 4:
                rho = 4 * aa + 8 + (e >> 1)
            elif aa < 8:
                rho = 16 + 2 * aa + (e >> 2)
            else:
                rho = 24 + aa
            vals.append((rho >> 2) * 256 + j * 16 + (rho & 3) * 4 + c * 2 * GST)
        vals += [3072 + c * 2 * GST] * 16
    lines = []
    for i in range(0, len(vals), 16):
        lines.append("    .short " + ", ".join(str(v) for v in vals[i:i + 16]))
    return "\n".join(lines)


DOC = """;
;   gemm1 : gelu(h^T W1 + b1), 64x64 tile per workgroup, K split over the waves, W1 tile resident in AGPRs
;   gemm2 : x + g W2 + b2, W2 tile resident in VGPRs + LDS; per-token sums for the next LayerNorm by atomics
; Every wait is bounded.  Generated by the author's own script (register allocation and schedule are explicit).
"""


def main(path):
    build()
    ins = a.finish()
    ref = open(f"cdna_kernels/{NAME}.s.ref").read().split("\n")
    head = [l for l in ref if l.startswith(";") and "@launch" not in l and not l.startswith("; Override") and not l.startswith("; grid=ceil")]
    k = NAME + "_kernel"
    s = "\n".join(head) + f"\n; @launch grid=(256,1,1) block=(256,1,1) lds={LDS_BYTES}\n"
    s += DOC
    s += f""".amdgcn_target "amdgcn-amd-amdhsa--gfx950"
.text
.globl {k}
.p2align 8
.type {k},@function
{k}:
L_entry:
"""
    s += Prog.render(ins)
    s += "".join((l if l.endswith(":") else "    " + l) + "\n" for l in STUBS)
    s += f""".p2align 6
.type ktab,@object
ktab:
{ktab()}
.size ktab, 8256
.section .rodata,"a"
.p2align 6
.amdhsa_kernel {k}
  .amdhsa_next_free_vgpr 512
  .amdhsa_next_free_sgpr 102
  .amdhsa_accum_offset 256
  .amdhsa_group_segment_fixed_size 0
  .amdhsa_kernarg_size 136
  .amdhsa_user_sgpr_count 2
  .amdhsa_user_sgpr_kernarg_segment_ptr 1
  .amdhsa_system_sgpr_workgroup_id_x 1
  .amdhsa_float_denorm_mode_32 3
.end_amdhsa_kernel
"""
    open(path, "w").write(s)
    n = sum(1 for i in ins if i.kind not in ("label", "comment"))
    open(path + ".names", "w").write("\n".join(STAMP_NAMES))
    print("instructions:", n, "nops:", sum(1 for i in ins if i.kind == "nop"), "waits:", sum(1 for i in ins if i.kind == "wait"))


if __name__ == "__main__":
    path = sys.argv[1]
    for kv in sys.argv[2:]:
        k, v = kv.split("=")
        OPT[k] = v if k in ('em', 'probe') else int(v)
    main(path)
```

```python
import sys, math, struct
from asmlib import *

NAME = "interleave_layers__ssm_conv_s4__mixer_token_mlp__prompt"
OPT = dict(stamps=False, stop=99, upfront=True, dump=0, dbgwg=-1, fixdur=0, em='FSSCDSS', warm=1, h_flag=2, h_w=2, h_poll=9, h_ln=2, h_cv=0, h_g1=0, h_g2=2, rot=1, wA=0, wK=8, wP=8, wL=16, wB=120, wT=1, lag=2, gap=3, st_conv=100, ev_conv=150, ev_g1=100000, fill0=14, ln1w=0, ln0w=1, chk=1, samp=8, map18=1, ofl=0, tailord=1, cv=1, clk=0, ev_kg=150, mixpro=1, now=0, probe='', kc_in=0, w2t=0, g7=0, rl=4, bfr=1, wg=4, slp=0, ev_pro=30, t2=0, bg0=0, tlb=0, rese=0, lnd=1, keepk=1, fake16=0, wnt=0, wnta=0, fnt=0, pnt=0, xnt=0, auxs=1, inb=2, x2l=0)
DBG_SEL = ['start', 'kgen', 'conv0 go', 'ln0 go', 'g1_0 go', 'g1_0 loop', 'g2_0 go', 'g2_0 loop', 'conv1 poll', 'ln1 go', 'g1_1 go', 'g2_1 go', 'end']
STAMP_NAMES = []

EPOCH = 0
ST0 = 0x1000
ST1 = 0x8000
STAMPS = 0x20000
FL = 0x100000
BS = 448 * 64 + 128
CH = 0x20000
X1, H1, G1, X3, H3, G3, X2, X0 = (0x400000 + 0x200000 * i for i in range(8))
FILL1, FILL3 = 6, 36
WS_BYTES = 268435456
OOB = 0x40000000

KST = 4160
KSLOT = {0: [0, 5, 2, 3], 1: [1, 6, 7, 4]}
UB = 8 * KST
UPAD = 1024
UST = 4096 + UPAD
ZB = UB + 2 * UST
EX = 2 * KST
RB = 2 * KST
GST = 15616
GROW = 272
TOFF = 12288
LNP = 57472
PERM = 61440
W2L = 65536
LDS_BYTES = 163840

sWAVE, sX, sJ, sPAIR, sDT1, sNT, sDT2, sST, sLN = 4, 5, 6, 7, 8, 9, 10, 11, 12
sNONCE = 14
P_U, P_ARE, P_AIM, P_BRE, P_BIM, P_CRE, P_CIM, P_LDT = 16, 18, 20, 22, 24, 26, 28, 30
P_DSK, P_W1, P_B1, P_W2, P_B2, P_OUT, P_DBG, P_WS = 32, 36, 38, 40, 42, 44, 46, 48
S_WS, S_W1, S_W2, S_X0, S_OUT = 52, 56, 60, 64, 68
sD0, sD1 = 72, 74
sLDT = 76
sEP = 78
sWOFF, sT0, sT1, sT2, sT3, sCNT = 80, 81, 82, 83, 84, 85
sRC, sR1, sR2, sRL = 86, 87, 88, 89
sM1, sM2 = 90, 92
sSTAMP = 94
sTAB = 96
sLN0, sRL0 = 77, 73
sCA, sCB = 34, 100

vLANE, vL16, vT2a, vT2b, vT1a, vT1b, vD1, vD2 = 127, 126, 125, 124, 123, 122, 121, 120
vA0, vA1 = 123, 122


def srd(n):
    return f"s[{n}:{n + 3}]"


def sp(n):
    return f"s[{n}:{n + 1}]"


def vr(n, k):
    return f"v[{n}:{n + k - 1}]" if k > 1 else f"v{n}"


def f32(x):
    return "0x%08x" % struct.unpack("<I", struct.pack("<f", x))[0]


a = Prog()
_lab = [0]


def label(p):
    _lab[0] += 1
    return f"L_{p}_{_lab[0]}"


_stamp = [0]


def stamp(name, r=1):
    k = _stamp[0]
    _stamp[0] += 1
    STAMP_NAMES.append(name)
    a("; MARK after " + name)
    if OPT["probe"] == name.replace(" ", "_"):
        a(f"s_memrealtime {sp(sSTAMP)}\ns_waitcnt lgkmcnt(0)\ns_mov_b32 s101, s{sSTAMP}")
    if OPT["stamps"] != 1:
        return
    l = label("st")
    if OPT["dbgwg"] >= 0:
        if name not in DBG_SEL:
            return
        a(f"s_lshl_b32 s3, s{sWAVE}, 8\ns_add_u32 s3, s3, s2\ns_cmp_lg_u32 s3, {OPT['dbgwg']}\ns_cbranch_scc1 {l}")
        a(f"s_memrealtime {sp(sSTAMP)}")
        a("s_waitcnt lgkmcnt(0)")
        a(f"s_mov_b64 exec, 1\nv_mov_b32 v{r}, s{sSTAMP}\ns_mov_b32 s{sSTAMP}, s{P_DBG}\ns_mov_b32 s{sSTAMP + 1}, s{P_DBG + 1}\ns_mov_b32 s{sSTAMP + 2}, 256\ns_mov_b32 s{sSTAMP + 3}, 0x20000".replace(f"s{sSTAMP}, s{P_DBG}", f"s64, s{P_DBG}").replace(f"s{sSTAMP + 1}, s{P_DBG + 1}", f"s65, s{P_DBG + 1}").replace(f"s{sSTAMP + 2}, 256", "s66, 256").replace(f"s{sSTAMP + 3}, 0x20000", "s67, 0x20000"))
        a(f"buffer_store_dword v{r}, off, s[64:67], 0 offset:{12 + 4 * DBG_SEL.index(name)} sc1", optional=True)
        a("s_mov_b64 exec, -1")
        a(f"{l}:")
        return
    a(f"s_cmp_lg_u32 s{sWAVE}, 0")
    a(f"s_cbranch_scc1 {l}")
    a(f"{'s_memtime' if OPT['clk'] else 's_memrealtime'} {sp(sSTAMP)}")
    a("s_waitcnt lgkmcnt(0)")
    a(f"s_lshl_b32 s3, s2, 8")
    a(f"s_add_u32 s3, s3, {STAMPS + 4 * k}")
    a(f"v_mov_b32 v{r}, s{sSTAMP}")
    a("s_mov_b64 exec, 1")
    a(f"buffer_store_dword v{r}, off, {srd(S_WS)}, s3", optional=True)
    a("s_mov_b64 exec, -1")
    a(f"{l}:")


_cnt = [0]


def count_out(r):
    if OPT["stamps"] != 1:
        return
    k = _cnt[0]
    _cnt[0] += 1
    a(f"s_lshl_b32 s3, s2, 2\ns_add_u32 s3, s3, s{sWAVE}\ns_lshl_b32 s3, s3, 5\ns_add_u32 s3, s3, {STAMPS + 0x10000 + 4 * k}")
    a(f"v_mov_b32 v{r}, s{sCNT}\ns_mov_b64 exec, 1")
    a(f"buffer_store_dword v{r}, off, {srd(S_WS)}, s3")
    a("s_mov_b64 exec, -1")


DUMP = 0x2000000


def dump_lds(point, r=96):
    if OPT["dump"] != point:
        return
    a.barrier()
    a(f"s_lshl_b32 s3, s{sWAVE}, 10\nv_add_u32 v{r + 4}, s3, v{vL16}\ns_lshl_b32 s3, s2, 16\ns_add_u32 s3, s3, {DUMP}")
    for i in range(16):
        a(f"ds_read_b128 {vr(r, 4)}, v{r + 4} offset:{i * 4096}")
        a(f"buffer_store_dwordx4 {vr(r, 4)}, v{r + 4}, {srd(S_WS)}, s3 offen")
        a("s_add_u32 s3, s3, 4096")
        a.wait_vm0()
    a.barrier()


def cmul(d, x, y):
    return [f"v_pk_mul_f32 {vr(d, 2)}, {vr(x, 2)}, {vr(y, 2)} op_sel:[1,1] op_sel_hi:[1,0] neg_lo:[0,1]",
            f"v_pk_fma_f32 {vr(d, 2)}, {vr(x, 2)}, {vr(y, 2)}, {vr(d, 2)} op_sel_hi:[0,1,1]"]


def cmul2(p, q=None):
    x = cmul(*p)
    if q is None:
        a(x[0]); a(x[1])
        return
    y = cmul(*q)
    a(x[0]); a(y[0]); a(x[1]); a(y[1])


def unpack(dlo, dhi, s):
    a(f"v_lshlrev_b32 v{dlo}, 16, v{s}")
    a(f"v_and_b32 v{dhi}, s0, v{s}")


def prologue():
    a("s_cmp_lt_u32 s2, 256")
    a("s_cbranch_scc1 L_start")
    a("s_endpgm")
    a("L_start:")
    if OPT["fixdur"] or OPT["stamps"]:
        a("s_memrealtime s[50:51]")
    a("s_load_dwordx16 s[16:31], s[0:1], 0")
    a("s_load_dwordx16 s[32:47], s[0:1], 64")
    a("s_load_dwordx2 s[48:49], s[0:1], 128")
    a(f"v_lshrrev_b32 v1, 6, v0")
    a(f"v_and_b32 v{vLANE}, 63, v0")
    a(f"v_readfirstlane_b32 s{sWAVE}, v1")
    a(f"v_lshlrev_b32 v{vL16}, 4, v{vLANE}")
    a(f"""s_and_b32 s{sX}, s2, 7
s_lshr_b32 s{sJ}, s2, 3
s_add_u32 s{sJ}, s{sJ}, 28
s_and_b32 s{sJ}, s{sJ}, 31
""")
    a(f"""s_lshr_b32 s{sT0}, s{sX}, 2
s_mul_i32 s{sPAIR}, s{sX}, 28
s_sub_u32 s{sRC}, s{sJ}, s{sT0}
s_add_u32 s{sPAIR}, s{sPAIR}, s{sRC}
s_cmp_lt_u32 s{sRC}, 28
s_cselect_b32 s{sRC}, 1, 0
s_mul_i32 s{sT2}, s{sJ}, 37
s_lshr_b32 s{sT2}, s{sT2}, 8
s_mul_i32 s{sT3}, s{sT2}, 7
s_sub_u32 s{sDT1}, s{sJ}, s{sT3}
s_lshl_b32 s{sNT}, s{sT2}, 3
s_add_u32 s{sNT}, s{sNT}, s{sX}
s_sub_u32 s{sT1}, s{sJ}, 4
s_cselect_b32 s{sR2}, 0, 1
s_and_b32 s{sT1}, s{sT1}, 31
s_mul_i32 s{sT2}, s{sT1}, 37
s_lshr_b32 s{sT2}, s{sT2}, 8
s_mul_i32 s{sT3}, s{sT2}, 7
s_sub_u32 s{sDT2}, s{sT1}, s{sT3}
s_lshl_b32 s{sST}, s{sX}, 2
s_add_u32 s{sST}, s{sST}, s{sT2}
s_cmp_eq_u32 s{sJ}, 0
s_cselect_b32 s{sT1}, 32, s{sJ}
s_mul_i32 s{sT2}, s{sX}, 12
s_add_u32 s{sT2}, s{sT2}, s{sT1}
s_sub_u32 s{sT2}, s{sT2}, 53
s_lshl_b32 s{sT3}, s{sX}, 2
s_add_u32 s{sT3}, s{sT3}, s{sJ}
s_sub_u32 s{sT3}, s{sT3}, 28
s_cmp_lg_u32 s{sT0}, 0
s_cselect_b32 s{sT1}, s{sT1}, s{sJ}
s_cselect_b32 s{sLN0}, s{sT2}, s{sT3}
s_cselect_b32 s{sRL0}, 21, 28
s_cmp_ge_u32 s{sT1}, s{sRL0}
s_cselect_b32 s{sRL0}, 1, 0""" if OPT["map18"] == 1 else f"""s_and_b32 s{sT0}, s{sX}, 1
s_lshr_b32 s{sT1}, s{sX}, 1
s_mul_i32 s{sPAIR}, s{sX}, 28
s_sub_u32 s{sRC}, s{sJ}, s{sT0}
s_add_u32 s{sPAIR}, s{sPAIR}, s{sRC}
s_cmp_lt_u32 s{sRC}, 28
s_cselect_b32 s{sRC}, 1, 0
s_mul_i32 s{sT2}, s{sJ}, 37
s_lshr_b32 s{sT2}, s{sT2}, 8
s_mul_i32 s{sT3}, s{sT2}, 7
s_sub_u32 s{sT3}, s{sJ}, s{sT3}
s_mul_i32 s{sNT}, s{sT1}, 7
s_add_u32 s{sNT}, s{sNT}, s{sT3}
s_lshl_b32 s{sT3}, s{sT0}, 2
s_add_u32 s{sDT1}, s{sT2}, s{sT3}
s_lshl_b32 s{sST}, s{sT0}, 3
s_sub_u32 s{sST}, s{sJ}, s{sST}
s_cselect_b32 s{sR2}, 0, 1
s_lshr_b32 s{sDT2}, s{sST}, 3
s_and_b32 s{sDT2}, s{sDT2}, 3
s_add_u32 s{sDT2}, s{sDT2}, s{sT3}
s_and_b32 s{sST}, s{sST}, 7
s_lshl_b32 s{sLN0}, s{sT1}, 4
s_lshl_b32 s{sT1}, s{sT1}, 3
s_add_u32 s{sST}, s{sST}, s{sT1}
s_cmp_eq_u32 s{sJ}, 0
s_cselect_b32 s{sT1}, 32, s{sJ}
s_mul_i32 s{sT2}, s{sT0}, 11
s_add_u32 s{sT2}, s{sT2}, s{sT1}
s_cmp_lg_u32 s{sT0}, 0
s_cselect_b32 s{sT1}, s{sT1}, s{sJ}
s_cselect_b32 s{sT2}, s{sT2}, s{sJ}
s_cselect_b32 s{sRL0}, 21, 28
s_cmp_ge_u32 s{sT1}, s{sRL0}
s_cselect_b32 s{sRL0}, 1, 0
s_add_u32 s{sLN0}, s{sLN0}, s{sT2}
s_sub_u32 s{sLN0}, s{sLN0}, 28""")
    if OPT["map18"] == 2:
        a(f"""s_sub_u32 s{sT1}, s{sJ}, 4
s_cselect_b32 s{sR2}, 0, 1
s_and_b32 s{sT1}, s{sT1}, 31
s_mul_i32 s{sT2}, s{sT1}, 37
s_lshr_b32 s{sT2}, s{sT2}, 8
s_mul_i32 s{sT3}, s{sT2}, 7
s_sub_u32 s{sDT2}, s{sT1}, s{sT3}
s_lshl_b32 s{sST}, s{sX}, 2
s_add_u32 s{sST}, s{sST}, s{sT2}""")
    a(f"""s_lshl_b32 s{sLN}, s{sX}, 4
s_add_u32 s{sLN}, s{sLN}, s{sJ}
s_sub_u32 s{sLN}, s{sLN}, 8
s_mul_i32 s{sT2}, s{sT0}, 7
s_sub_u32 s{sT2}, 28, s{sT2}
s_cmp_lt_u32 s{sJ}, s{sT2}
s_cselect_b32 s{sR1}, 1, 0
s_sub_u32 s{sT2}, s{sJ}, 8
s_cmp_lt_u32 s{sT2}, 16
s_cselect_b32 s{sRL}, 1, 0
s_min_u32 s{sPAIR}, s{sPAIR}, 223
s_min_u32 s{sNT}, s{sNT}, 27
s_mov_b32 s{sM1}, 0xaaaaaaaa
s_mov_b32 s{sM1 + 1}, 0xaaaaaaaa
s_mov_b32 s{sM2}, 0xcccccccc
s_mov_b32 s{sM2 + 1}, 0xcccccccc""")
    a("s_waitcnt lgkmcnt(0)")
    if OPT["fixdur"] or OPT["stamps"]:
        a("s_mov_b32 s101, s50")
    a("s_mov_b32 s0, 0xffff0000\ns_mov_b32 s1, 0xffff")
    a(f"""s_lshl_b32 s{sT0}, s{sPAIR}, 2
s_load_dword s{sLDT}, {sp(P_LDT)}, s{sT0}
s_load_dword s{sD0}, {sp(P_DSK)}, s{sT0}""")
    kgen_loads()
    for n, p, size in ((S_X0, P_U, 1835008), (S_WS, P_WS, WS_BYTES), (S_OUT, P_OUT, 1835008)):
        a(f"s_mov_b32 s{n}, s{p}\ns_mov_b32 s{n + 1}, s{p + 1}\ns_mov_b32 s{n + 2}, {size}\ns_mov_b32 s{n + 3}, 0x20000")
    a(f"buffer_load_dwordx2 v[104:105], off, {srd(S_WS)}, 0 offset:{EPOCH} sc1")
    for n, p, role in ((S_W1, P_W1, sR1), (S_W2, P_W2, sR2)):
        a(f"s_mov_b32 s{n}, s{p}\ns_mov_b32 s{n + 1}, s{p + 1}\ns_cmp_lg_u32 s{role}, 0\ns_cselect_b32 s{n + 2}, {0 if OPT['now'] & (1 if n == S_W1 else 2) else 7340032}, 0\ns_mov_b32 s{n + 3}, 0x20000")


sAUX = 75


def code_warm(r):
    if not OPT["warm"]:
        return
    a(f"""s_lshl_b32 s{sT0}, s{sJ}, 2
s_add_u32 s{sT0}, s{sT0}, s{sWAVE}
s_mul_i32 s{sT0}, s{sT0}, 640
v_lshl_add_u32 v{r}, v{vLANE}, 7, s{sT0}
s_mov_b32 s{sT1}, ktab-L_entry+8192
v_min_u32 v{r}, s{sT1}, v{r}
s_sub_u32 s28, s{sTAB}, ktab-L_entry
s_subb_u32 s29, s{sTAB + 1}, 0
s_mov_b64 exec, 31
global_load_dword v{r}, v{r}, s[28:29]
s_mov_b64 exec, -1""")


def page_warm(r):
    if not OPT["tlb"]:
        return
    a(f"""v_lshlrev_b32 v{r}, 21, v{vLANE}
v_add_u32 v{r}, 0x1fff80, v{r}
s_mov_b64 exec, 0x3ff
buffer_load_dword v{r}, v{r}, {srd(S_WS)}, 0 offen
s_mov_b64 exec, 1
buffer_load_dword v{r + 1}, off, {srd(S_OUT)}, 0
global_load_dword v{r + 2}, v{vLANE}, {sp(P_B1)}
global_load_dword v{r + 3}, v{vLANE}, {sp(P_B2)}
s_mov_b64 exec, -1""")


def fill(base, n, r, sidx, stride, tag="st0"):
    a(f"""s_lshl_b32 s{sT0}, s{sidx}, 12
s_lshl_b32 s{sT1}, s{sWAVE}, 10
s_add_u32 s{sT0}, s{sT0}, s{sT1}
s_add_u32 s{sT0}, s{sT0}, {base}""")
    for k in range(4):
        a(f"v_mov_b32 v{r + k}, -1")
    for k in range(n):
        a(f"buffer_store_dwordx4 {vr(r, 4)}, v{vL16}, {srd(S_WS)}, s{sT0} offen sc1{' nt' if OPT['fnt'] else ''}", tag=tag)
        if k + 1 < n:
            a(f"s_add_u32 s{sT0}, s{sT0}, {stride}")


def aux_loads():
    a(f"""s_and_b32 s{sAUX}, s{sJ}, 3
s_lshl_b32 s{sAUX}, s{sAUX}, 3
s_add_u32 s{sAUX}, s{sAUX}, s{sX}
s_lshl_b32 s16, s{sAUX}, 2
s_add_u32 s16, s16, s{sWAVE}
s_mul_i32 s{sT1}, s16, {16 * 896}
s_mul_i32 s17, s{sWAVE}, {16 * 912}
s_mov_b32 m0, s17
s_mov_b32 exec_hi, 0xffffff""")
    for k in range(16):
        if k:
            a(f"s_add_u32 m0, m0, 912\ns_add_u32 s{sT1}, s{sT1}, 896")
        a(f"buffer_load_dwordx4 v{vL16}, {srd(S_X0)}, s{sT1} offen {'nt ' if OPT['xnt'] & 2 else ''}lds", res_w=[f"x0"])
    a("s_mov_b64 exec, -1")


def aux_work():
    XR = 8
    a(f"""v_mov_b32 v76, 0
v_mov_b32 v77, 0
v_mov_b32 v78, 0
v_mov_b32 v79, 0
s_lshl_b32 s{sT1}, s16, {8 if emode(4) == "C" else 7}
s_add_u32 s{sT1}, s{sT1}, {ST1}
s_lshl_b32 s18, s{sAUX}, 7
s_add_u32 s18, s18, {ST0}
s_mov_b64 exec, {"0xffff" if emode(4) == "C" else "0xff"}""")
    a(f"buffer_store_dwordx4 v[76:79], v{vL16}, {srd(S_WS)}, s{sT1} offen sc1", tag="st0")
    a(f"""s_mov_b64 exec, -1
v_and_b32 v2, 15, v{vLANE}
v_lshrrev_b32 v3, 4, v{vLANE}
v_mul_u32_u24 v4, 912, v2
v_lshl_add_u32 v4, v3, 4, v4
v_add_u32 v4, s17, v4
v_lshrrev_b32 v6, 2, v2
v_cmp_eq_u32 vcc, v6, v3
v_bfe_u32 v6, v2, 1, 2
v_lshlrev_b32 v6, 7, v6
v_lshrrev_b32 v7, 3, v2
v_lshl_add_u32 v6, v7, 4, v6
v_and_b32 v7, 1, v2
v_lshl_add_u32 v6, v7, 2, v6
s_lshl_b32 s{sT0}, s{sWAVE}, 5
s_add_u32 s{sT0}, s{sT0}, 60000
v_add_u32 v6, s{sT0}, v6
v_mov_b32 v7, 61024
v_cndmask_b32 v6, v7, v6, vcc
v_lshrrev_b32 v117, 3, v{vLANE}
v_cmp_eq_u32 vcc, s{sWAVE}, v117
v_lshlrev_b32 v117, 12, v117
v_and_b32 v7, 7, v{vLANE}
v_lshl_add_u32 v117, v7, 4, v117
v_mov_b32 v7, {OOB}
v_cndmask_b32 v117, v7, v117, vcc
v_mov_b32 v80, 0x3f803f80
v_mov_b32 v81, 0x3f803f80
v_mov_b32 v82, 0x3f803f80
v_mov_b32 v83, 0x3f803f80""")
    if OPT["stamps"] == 1:
        a.wait_vm0()
    stamp("aux data")
    for k in range(14):
        a(f"ds_read_b128 {vr(XR + 4 * k, 4)}, v4 offset:{64 * k}", res_r=["x0"])
    for k in range(14):
        x = vr(XR + 4 * k, 4)
        a(f"v_mfma_f32_16x16x32_bf16 v[64:67], v[80:83], {x}, {'v[64:67]' if k else 0}")
        a(f"v_mfma_f32_16x16x32_bf16 v[68:71], {x}, {x}, {'v[68:71]' if k else 0}")
    a(f"""v_cndmask_b32 v68, v68, v69, {sp(sM1)}
v_cndmask_b32 v70, v70, v71, {sp(sM1)}
v_cndmask_b32 v68, v68, v70, {sp(sM2)}""")
    a("ds_write2_b32 v6, v64, v68 offset0:0 offset1:2")
    a.barrier()
    a(f"ds_read_b128 v[64:67], v{vL16} offset:60000")
    a(f"buffer_store_dwordx4 v[64:67], v117, {srd(S_WS)}, s18 offen sc1", tag="st0")
    stamp("aux st")
    nonce_take()
    flag_put(0, f"s_add_u32 s{sT0}, s{sAUX}, 224\ns_lshl_b32 s{sT0}, s{sT0}, 6", 72, "st0")


def xt_loads():
    a(f"""s_lshl_b32 s{sT0}, s{sPAIR}, 1
s_lshr_b32 s{sT1}, s{sWAVE}, 1
s_add_u32 s{sT0}, s{sT0}, s{sT1}
s_mul_i32 s{sT1}, s{sT0}, 9363
s_lshr_b32 s{sT1}, s{sT1}, 16
s_mul_i32 s{sT2}, s{sT1}, 7
s_sub_u32 s{sT0}, s{sT0}, s{sT2}
s_lshl_b32 s{sT0}, s{sT0}, 1
s_and_b32 s{sT2}, s{sWAVE}, 1
s_add_u32 s{sT0}, s{sT0}, s{sT2}
s_mul_i32 s{sT2}, s{sT1}, {32 * 896}
s_lshl_b32 s{sT3}, s{sT0}, 6
s_add_u32 s{sT2}, s{sT2}, s{sT3}
v_lshrrev_b32 v2, 2, v{vLANE}
v_mul_u32_u24 v2, 896, v2
v_and_b32 v3, 3, v{vLANE}
v_lshl_add_u32 v2, v3, 4, v2
s_mul_i32 s22, s{sWAVE}, {GST}
s_mov_b32 m0, s22
s_mul_i32 s23, s{sT1}, {BS}""")
    a(f"buffer_load_dwordx4 v2, {srd(S_X0)}, s{sT2} offen {'nt ' if OPT['xnt'] & 1 else ''}lds", res_w=["x0"])
    a(f"s_add_u32 m0, m0, 1024\ns_add_u32 s{sT2}, s{sT2}, {16 * 896}")
    a(f"buffer_load_dwordx4 v2, {srd(S_X0)}, s{sT2} offen {'nt ' if OPT['xnt'] & 1 else ''}lds", res_w=["x0"])
    a(f"""s_lshl_b32 s{sT0}, s{sT0}, 11
s_add_u32 s23, s23, s{sT0}
s_add_u32 s23, s23, {X0}
v_lshrrev_b32 v2, 4, v{vLANE}
v_bfe_u32 v36, v{vLANE}, 2, 2
v_lshl_add_u32 v36, v2, 3, v36
v_lshlrev_b32 v36, 6, v36
v_lshl_add_u32 v36, v3, 3, v36
v_add_u32 v36, s22, v36
v_and_b32 v37, 15, v{vLANE}
v_lshlrev_b32 v37, 6, v37
v_lshl_add_u32 v37, v2, 4, v37""")


def xt_work():
    for u in range(2):
        for j in range(2):
            a(f"ds_read_b64_tr_b16 {vr(40 + 4 * u + 2 * j, 2)}, v36 offset:{j * 256 + u * 32}", res_r=["x0"])
    for u in range(2):
        a(f"buffer_store_dwordx4 {vr(40 + 4 * u, 4)}, v37, {srd(S_WS)}, s23 offen offset:{1024 * u} sc1", tag="st0")


def xt_poll_addr(ra, t):
    a(f"""s_lshl_b32 s{sT0}, s{sWAVE}, 4
v_and_b32 v{t}, 15, v{vLANE}
v_add_u32 v{t}, s{sT0}, v{t}
v_mul_u32_u24 v{t}, 7, v{t}
s_lshr_b32 s{sT0}, s{sPAIR}, 5
v_add_u32 v{t}, s{sT0}, v{t}
v_lshrrev_b32 v{t}, 1, v{t}
s_lshl_b32 s{sT0}, s{sWAVE}, 3
s_add_u32 s{sT0}, s{sT0}, 224
v_and_b32 v{ra}, 7, v{vLANE}
v_add_u32 v{ra}, s{sT0}, v{ra}
v_cmp_gt_u32 vcc, 16, v{vLANE}
v_cndmask_b32 v{ra}, v{ra}, v{t}, vcc""")


def e1_poll_addr(ra):
    a(f"s_lshl_b32 s{sT0}, s{sWAVE}, 6\nv_add_u32 v{ra}, s{sT0}, v{vLANE}")


def nonce_take():
    a(f"v_readfirstlane_b32 s{sNONCE}, v104\nv_readfirstlane_b32 s{sNONCE + 1}, v105")
    a(f"s_add_u32 s{sNONCE}, s{sNONCE}, 1")
    a(f"s_addc_u32 s{sNONCE + 1}, s{sNONCE + 1}, 0")


def nonce_retire():
    l = label("nr")
    a(f"s_or_b32 s{sT0}, s2, s{sWAVE}")
    a(f"s_cmp_lg_u32 s{sT0}, 32")
    a(f"s_cbranch_scc1 {l}")
    a(f"v_mov_b32 v110, s{sNONCE}\nv_mov_b32 v111, s{sNONCE + 1}\ns_mov_b64 exec, 1")
    a(f"buffer_store_dwordx2 v[110:111], off, {srd(S_WS)}, 0 offset:{EPOCH} sc1", optional=True)
    a("s_mov_b64 exec, -1")
    a(f"{l}:")


def flag_put(edge, sprod, r, tag):
    a(f"s_lshl_b32 s{sT0}, s{sprod}, 6" if isinstance(sprod, int) else sprod)
    a(f"""s_lshl_b32 s{sT1}, s{sWAVE}, 15
s_add_u32 s{sT0}, s{sT0}, s{sT1}
s_add_u32 s{sT0}, s{sT0}, {FL + edge * 0x20000}
v_lshlrev_b32 v{r + 4}, 12, v{vLANE}
v_and_b32 v{r + 4}, 0x4000, v{r + 4}
v_and_b32 v{r}, 3, v{vLANE}
v_lshl_add_u32 v{r + 4}, v{r}, 4, v{r + 4}
v_mov_b32 v{r}, s{sNONCE}
v_mov_b32 v{r + 1}, s{sNONCE + 1}
v_mov_b32 v{r + 2}, s{sNONCE}
v_mov_b32 v{r + 3}, s{sNONCE + 1}""")
    a.wait_tag(tag)
    a.barrier()
    a("s_mov_b64 exec, 0xff")
    a(f"buffer_store_dwordx4 {vr(r, 4)}, v{r + 4}, {srd(S_WS)}, s{sT0} offen sc1", tag="flag")
    a("s_mov_b64 exec, -1")


def emode(e):
    return OPT["em"][e - 1]


def hinted(e):
    return emode(e) in "HSMGC"


def sentinel(e):
    return emode(e) in "SDM"


def flagged(e):
    return emode(e) in "FHG"


def armed(layer):
    return any(sentinel(e + 4 * layer) for e in (1, 2, 3))


def wait_edge(e, r, ra_full, ra_samp):
    if hinted(e):
        poll_issue(e + 10, r, ra_samp)
        poll_take(r, ra_samp)
    elif emode(e) == "D":
        a.wait_tag("pub")
    else:
        a.wait_tag("flag")
    if flagged(e):
        poll_issue(e, r, ra_full)
        poll_take(r, ra_full)


def hint_prep(edge, sprod, r):
    a(f"s_lshl_b32 s{sT0}, s{sprod}, 6" if isinstance(sprod, int) else sprod)
    a(f"""s_lshl_b32 s{sT1}, s{sWAVE}, 15
s_add_u32 s{sT0}, s{sT0}, s{sT1}
s_add_u32 s{sT0}, s{sT0}, {FL + edge * 0x20000}
v_lshlrev_b32 v{r + 4}, 12, v{vLANE}
v_and_b32 v{r + 4}, 0x4000, v{r + 4}
v_and_b32 v{r}, 3, v{vLANE}
v_lshl_add_u32 v{r + 4}, v{r}, 4, v{r + 4}
v_add_u32 v{r + 4}, s{sT0}, v{r + 4}
v_mov_b32 v{r}, s{sNONCE}
v_mov_b32 v{r + 1}, s{sNONCE + 1}
v_mov_b32 v{r + 2}, s{sNONCE}
v_mov_b32 v{r + 3}, s{sNONCE + 1}""")


def hint_put(r):
    a("s_mov_b64 exec, 0xff")
    a(f"buffer_store_dwordx4 {vr(r, 4)}, v{r + 4}, {srd(S_WS)}, 0 offen sc1", tag="hint")
    a("s_mov_b64 exec, -1")


def poll_issue(edge, r, ra=None):
    ra = r + 2 if ra is None else ra
    a(f"""s_lshl_b32 s{sT3}, s{sX}, 14
s_add_u32 s{sT3}, s{sT3}, {FL + edge * 0x20000}
v_lshl_add_u32 v{ra}, v{ra}, 6, s{sT3}
buffer_load_dwordx2 {vr(r, 2)}, v{ra}, {srd(S_WS)}, 0 offen sc1""")


def poll_take(r, ra=None):
    ra = r + 2 if ra is None else ra
    ok, lp = label("pok"), label("plp")
    a(f"v_cmp_ne_u64 vcc, {sp(sNONCE)}, {vr(r, 2)}")
    a(f"s_cbranch_vccz {ok}")
    a(f"s_mov_b32 s{sCNT}, 0")
    a(f"{lp}:")
    if OPT["slp"]:
        a(f"s_sleep {OPT['slp']}")
    a(f"buffer_load_dwordx2 {vr(r, 2)}, v{ra}, {srd(S_WS)}, 0 offen sc1")
    a("s_waitcnt vmcnt(0)")
    a(f"v_cmp_ne_u64 vcc, {sp(sNONCE)}, {vr(r, 2)}")
    a(f"s_add_u32 s{sCNT}, s{sCNT}, 1")
    a(f"s_cbranch_vccz {ok}")
    a(f"s_cmp_lt_u32 s{sCNT}, 0x100000")
    a(f"s_cbranch_scc1 {lp}")
    a(f"{ok}:")


sW1O, sW2O = 98, 99
sROT1, sROT2 = 33, 35
sW1E, sW2E = 78, 79


def w_setup():
    a(f"""v_lshrrev_b32 v2, 3, v{vLANE}
v_and_b32 v3, 7, v{vLANE}
v_bfe_u32 v4, v{vLANE}, 4, 1
v_lshlrev_b32 v4, 2, v4
v_xor_b32 v3, v3, v4
v_lshlrev_b32 v3, 4, v3
v_mul_u32_u24 v{vD1}, 3584, v2
v_add_u32 v{vD1}, v{vD1}, v3
v_lshl_add_u32 v{vD2}, v2, 12, v3
v_bfe_u32 v2, v{vLANE}, 2, 2
v_lshrrev_b32 v3, 5, v{vLANE}
v_bfe_u32 v4, v{vLANE}, 4, 1
v_and_b32 v5, 3, v{vLANE}
v_lshlrev_b32 v5, 3, v5
v_lshl_add_u32 v5, v4, 5, v5
v_lshrrev_b32 v4, 1, v2
v_lshl_add_u32 v5, v4, 6, v5
s_lshr_b32 s{sT0}, s{sWAVE}, 1
s_lshl_b32 s{sT0}, s{sT0}, 6
v_xor_b32 v5, s{sT0}, v5
v_lshl_add_u32 v5, v2, 7, v5
s_mul_i32 s{sT1}, s{sWAVE}, 24576
s_add_u32 s{sT1}, s{sT1}, {W2L}
v_add_u32 v5, s{sT1}, v5
v_lshl_add_u32 v{vT1a}, v3, 10, v5
v_xor_b32 v{vT1b}, 64, v{vT1a}
v_lshl_add_u32 v{vT2a}, v3, 9, v5
v_xor_b32 v{vT2b}, 64, v{vT2a}
s_mul_i32 s{sW1O}, s{sWAVE}, {512 * 3584}
s_lshl_b32 s{sT0}, s{sNT}, 7
s_add_u32 s{sW1O}, s{sW1O}, s{sT0}
s_mul_i32 s{sW2O}, s{sWAVE}, {448 * 4096}
s_lshl_b32 s{sT0}, s{sST}, 7
s_add_u32 s{sW2O}, s{sW2O}, s{sT0}
s_mov_b32 s{sWOFF}, s{sT1}""")
    if OPT["rot"] and OPT["map18"] == 1:
        if OPT["rot"] == 2:
            a(f"""s_add_u32 s{sROT1}, s{sDT1}, s{sX}
s_and_b32 s{sROT1}, s{sROT1}, 7
s_add_u32 s{sROT2}, s{sDT2}, s{sX}
s_cmp_ge_u32 s{sROT2}, 7
s_cselect_b32 s{sT0}, 7, 0
s_sub_u32 s{sROT2}, s{sROT2}, s{sT0}""")
        else:
            a(f"s_mov_b32 s{sROT1}, s{sDT1}\ns_mov_b32 s{sROT2}, s{sDT2}")
    elif OPT["rot"] == 3:
        a(f"""s_and_b32 s{sT0}, s{sDT1}, 3
s_lshr_b32 s{sT1}, s{sDT1}, 2
s_add_u32 s{sT1}, s{sT1}, 2
s_mul_i32 s{sROT1}, s{sT0}, s{sT1}
s_min_u32 s{sROT1}, s{sROT1}, 7
s_and_b32 s{sT0}, s{sDT2}, 3
s_lshr_b32 s{sT1}, s{sDT2}, 2
s_add_u32 s{sT1}, s{sT1}, 2
s_mul_i32 s{sROT2}, s{sT0}, s{sT1}
s_min_u32 s{sROT2}, s{sROT2}, 5""")
    elif OPT["rot"]:
        a(f"""s_and_b32 s{sT0}, s{sDT1}, 3
s_lshl_b32 s{sT0}, s{sT0}, 1
s_lshr_b32 s{sT1}, s{sDT1}, 2
s_add_u32 s{sT0}, s{sT0}, s{sT1}
s_and_b32 s{sROT1}, s{sT0}, 7
s_and_b32 s{sT0}, s{sDT2}, 3
s_lshl_b32 s{sT0}, s{sT0}, 1
s_lshr_b32 s{sT1}, s{sDT2}, 2
s_add_u32 s{sT0}, s{sT0}, s{sT1}
s_min_u32 s{sROT2}, s{sT0}, 6""")
        if OPT["map18"] == 2:
            a(f"s_mov_b32 s{sROT2}, s{sDT2}")
    else:
        a(f"s_mov_b32 s{sROT1}, 0\ns_mov_b32 s{sROT2}, 0")
    a(f"""s_add_u32 s{sW1E}, s{sW1O}, {512 * 3584}
s_mul_i32 s{sT0}, s{sROT1}, {64 * 3584}
s_add_u32 s{sW1O}, s{sW1O}, s{sT0}
s_add_u32 s{sW2E}, s{sW2O}, {448 * 4096}
s_mul_i32 s{sT0}, s{sROT2}, {64 * 4096}
s_add_u32 s{sW2O}, s{sW2O}, s{sT0}""")


WORDER = list(range(0, 4)) + list(range(32, 36)) + list(range(4, 32)) + list(range(36, 60))


def w_dma(pos, half):
    slot = pos % 12
    n = WORDER[pos]
    pol = ("", "nt ", "sc1 ", "sc0 sc1 ", "sc0 sc1 nt ")[OPT["wnt"]] if (OPT["wnta"] or pos < 2 * OPT["wg"]) else ""
    g = [Ins(f"s_add_u32 m0, s{sWOFF}, {slot * 2048 + half * 1024}")]
    if n < 32:
        g.append(Ins(f"s_add_u32 s{sW1O}, s{sW1O}, {8 * 3584}") if (n or half) else Ins("s_nop 0"))
        if n and n % 4 == 0 and half == 0:
            g += [Ins(f"s_cmp_eq_u32 s{sW1O}, s{sW1E}"), Ins(f"s_cselect_b32 s3, {512 * 3584}, 0"), Ins(f"s_sub_u32 s{sW1O}, s{sW1O}, s3")]
        g.append(Ins(f"buffer_load_dwordx4 v{vD1}, {srd(S_W1)}, s{sW1O} offen {pol}lds", res_w=[f"slot{slot}"]))
    else:
        g.append(Ins(f"s_add_u32 s{sW2O}, s{sW2O}, {8 * 4096}") if (n > 32 or half) else Ins("s_nop 0"))
        if n > 32 and n % 4 == 0 and half == 0:
            g += [Ins(f"s_cmp_eq_u32 s{sW2O}, s{sW2E}"), Ins(f"s_cselect_b32 s3, {448 * 4096}, 0"), Ins(f"s_sub_u32 s{sW2O}, s{sW2O}, s3")]
        g.append(Ins(f"buffer_load_dwordx4 v{vD2}, {srd(S_W2)}, s{sW2O} offen {pol}lds", res_w=[f"slot{slot}"]))
    return g


def w_tr(pos):
    slot = pos % 12
    n = WORDER[pos]
    g = []
    for nb in range(2):
        for j in range(2):
            if n < 32:
                r = (n * 2 + nb) * 4 + 2 * j
                g.append(Ins(f"ds_read_b64_tr_b16 a[{r}:{r + 1}], v{(vT1a, vT1b)[nb]} offset:{slot * 2048 + j * 512}", res_r=[f"slot{slot}"]))
            else:
                r = 128 + ((n - 32) * 2 + nb) * 4 + 2 * j
                g.append(Ins(f"ds_read_b64_tr_b16 v[{r}:{r + 1}], v{(vT2a, vT2b)[nb]} offset:{slot * 2048 + j * 1024}", res_r=[f"slot{slot}"]))
    return g


def w_all_upfront():
    for n in range(12):
        a.put(w_dma(n, 0)); a.put(w_dma(n, 1))
    for n in range(48):
        a.put(w_tr(n))
        if n >= 1:
            a.put(w_dma(n + 11, 0)); a.put(w_dma(n + 11, 1))
    a.put(w_dma(59, 0)); a.put(w_dma(59, 1))
    a.wait_vm0()
    a.wait_lgkm0()


PR = 56
TAB = 104


def kgen_loads():
    a(f"""s_lshl_b32 s{sT0}, s{sPAIR}, 10
s_lshl_b32 s{sT1}, s{sWAVE}, 8
s_add_u32 s{sT0}, s{sT0}, s{sT1}
v_lshl_add_u32 v3, v{vLANE}, 2, s{sT0}""")
    for k, p in enumerate((P_ARE, P_AIM, P_BRE, P_BIM, P_CRE, P_CIM)):
        a(f"global_load_dword v{PR + k}, v3, {sp(p)}{' nt' if OPT['pnt'] else ''}")


def kgen_table_addr():
    l = label("pc")
    a(f"s_getpc_b64 {sp(sTAB)}")
    a(f"{l}:")
    a(f"s_add_u32 s{sTAB}, s{sTAB}, ktab-{l}")
    a(f"s_addc_u32 s{sTAB + 1}, s{sTAB + 1}, 0")


def kgen_table_load():
    kgen_table_addr()
    a(f"s_lshr_b32 s{sT0}, s{sWAVE}, 1\ns_lshl_b32 s{sT0}, s{sT0}, 5\nv_lshl_add_u32 v75, v0, 5, s{sT0}")


KBG = []


def kgen(hooks):
    F = {e: 2 * e for e in range(1, 8)}
    Qr = {1: 16, 2: 18, 3: 20, 4: 22}
    QN = [24, 26]
    Z1, Z2, C0, C1 = 28, 30, 32, 34
    CN = [36, 38]
    T0, T1 = 62, 64
    CV = [66, 67, 68, 69]
    A2, B2, DT = 70, 71, 72
    ACC = 76
    QF = 88
    PF = 40
    vG, vF = 73, 74
    a(f"""s_mul_i32 s{sT0}, s{sWAVE}, {GST}
v_lshl_add_u32 v{vG}, v{vLANE}, 2, s{sT0}
v_and_b32 v2, 15, v{vLANE}
v_mul_u32_u24 v2, {GROW}, v2
v_lshrrev_b32 v3, 4, v{vLANE}
v_lshl_add_u32 v2, v3, 4, v2
v_add_u32 v{vF}, s{sT0}, v2""")
    a.begin()
    a(f"""s_lshr_b32 s{sT0}, s{sWAVE}, 1
s_lshl_b32 s{sT0}, s{sT0}, 4
s_lshr_b32 s{sT0}, s{sLDT}, s{sT0}
s_lshl_b32 s{sT0}, s{sT0}, 16
v_mov_b32 v2, {f32(math.log2(math.e))}
v_mul_f32 v2, s{sT0}, v2
v_exp_f32 v2, v2
v_cvt_pk_bf16_f32 v2, v2, v2
v_lshlrev_b32 v{DT}, 16, v2
s_and_b32 s{sD1}, s{sD0}, 0xffff0000
s_lshl_b32 s{sD0}, s{sD0}, 16""")
    cvi = [0]

    def hook(name):
        if name is not None and name not in hooks:
            return
        a_body = space_ds(a.end(), OPT["lag"], OPT["gap"])
        m, rest = merge(a_body, KBG[:], 20, OPT["ev_kg"])
        del KBG[:]
        a.put(m)
        put_all(rest)
        if name is not None:
            hooks[name]()
            a.begin()

    def row(r, src, neg=False):
        c = CV[cvi[0] % 4]
        cvi[0] += 1
        a(f"v_cvt_pk_bf16_f32 v{c}, v{src}, {'-' if neg else ''}v{src + 1}")
        a(f"ds_write_b32 v{vG}, v{c} offset:{r * GROW}")

    def reads(dst, tile):
        for ks in range(4):
            a(f"ds_read_b128 {vr(dst + 4 * ks, 4)}, v{vF} offset:{tile * 16 * GROW + ks * 64}")

    def mfmas(t, first):
        for ks in range(4):
            c = "0" if (first and ks == 0) else vr(ACC + 4 * t, 4)
            a(f"v_mfma_f32_16x16x32_bf16 {vr(ACC + 4 * t, 4)}, {vr(PF + 4 * ks, 4)}, {vr(QF + 4 * ks, 4)}, {c}")

    def direct(d, scale):
        if scale != 1:
            a(f"v_mul_f32 v{T0}, {f32(scale)}, v{A2}")
            a(f"v_mul_f32 v{T1}, {f32(scale)}, v{B2}")
            x, y = T0, T1
        else:
            x, y = A2, B2
        a(f"v_fract_f32 v{T1}, v{y}")
        a(f"v_exp_f32 v{T0}, v{x}")
        a(f"v_cos_f32 v{d}, v{T1}")
        a(f"v_sin_f32 v{d + 1}, v{T1}")
        a(f"v_pk_mul_f32 {vr(d, 2)}, {vr(d, 2)}, {vr(T0, 2)} op_sel_hi:[1,0]")

    for rd in range(2):
        def up(d, s):
            a(f"v_lshlrev_b32 v{d}, 16, v{s}" if rd == 0 else f"v_and_b32 v{d}, s0, v{s}")
        up(A2, PR); up(B2, PR + 1)
        up(QN[0], PR + 2); up(QN[0] + 1, PR + 3)
        up(QN[1], PR + 4); up(QN[1] + 1, PR + 5)
        a(f"v_mul_f32 v{A2}, v{DT}, v{A2}")
        a(f"v_mul_f32 v{B2}, v{DT}, v{B2}")
        a(f"v_pk_mul_f32 {vr(QN[0], 2)}, {vr(QN[0], 2)}, {vr(DT, 2)} op_sel_hi:[1,0]")
        a(f"v_mul_f32 v{A2}, {f32(math.log2(math.e))}, v{A2}")
        a(f"v_mul_f32 v{B2}, {f32(1 / (2 * math.pi))}, v{B2}")
        cmul2((C0, QN[1], QN[0]))
        direct(F[1], 1)
        if rd == 1:
            mfmas(2, True)
        direct(Z1, 128)
        hook(5 * rd)
        cmul2((F[2], F[1], F[1]), (Z2, Z1, Z1))
        cmul2((F[4], F[2], F[2]), (F[3], F[2], F[1]))
        cmul2((Qr[1], F[4], F[4]), (C1, C0, Z1))
        a(f"v_mov_b32 v{CV[3]}, 0x3f80")
        a(f"ds_write_b32 v{vG}, v{CV[3]}")
        cmul2((Qr[2], Qr[1], Qr[1]), (F[5], F[4], F[1]))
        row(1, Qr[1], True)
        cmul2((Qr[3], Qr[2], Qr[1]), (Qr[4], Qr[2], Qr[2]))
        row(2, Qr[2], True)
        cmul2((F[6], F[4], F[2]), (F[7], F[4], F[3]))
        row(3, Qr[3], True)
        row(4, Qr[4], True)
        cur = {1: Qr[1], 2: Qr[2], 3: Qr[3], 0: Qr[4]}
        free = list(QN) + [CN[0]]
        j = 5
        while j < 16:
            js = [j] + ([j + 1] if j + 1 < 16 else [])
            ps = []
            for jj in js:
                d = free.pop(0)
                ps.append((d, cur[jj % 4], Qr[4]))
            cmul2(*ps)
            for jj, p in zip(js, ps):
                if cur[jj % 4] != Qr[4]:
                    free.append(cur[jj % 4])
                cur[jj % 4] = p[0]
                row(jj, p[0], True)
            j += 2
        reads(QF, 0)
        hook(5 * rd + 1)
        TA, TB = QN
        row(16, C0); row(24, C1)
        for e in range(1, 8):
            cmul2((TA, C0, F[e]), (TB, C1, F[e]))
            row(16 + e, TA); row(24 + e, TB)
        reads(PF, 1)
        hook(5 * rd + 2)
        ca, cb = C0, C1
        na, nb_ = CN
        def adv():
            nonlocal ca, cb, na, nb_
            cmul2((na, ca, Z2), (nb_, cb, Z2))
            ca, cb, na, nb_ = na, nb_, ca, cb
        adv()
        row(32, ca); row(36, cb)
        for e in range(1, 4):
            cmul2((TA, ca, F[2 * e]), (TB, cb, F[2 * e]))
            row(32 + e, TA); row(36 + e, TB)
        mfmas(0, rd == 0)
        for k in range(2):
            adv()
            row(40 + 4 * k, ca); row(42 + 4 * k, cb)
            cmul2((TA, ca, F[4]), (TB, cb, F[4]))
            row(41 + 4 * k, TA); row(43 + 4 * k, TB)
        reads(PF, 2)
        hook(5 * rd + 3)
        for k in range(4):
            adv()
            row(48 + 2 * k, ca); row(49 + 2 * k, cb)
        cmul2((na, ca, Z2))
        row(56, na)
        mfmas(1, rd == 0)
        reads(PF, 3)
        hook(5 * rd + 4)
    hook(None)
    a(f"s_mul_i32 s{sT0}, s{sWAVE}, {GST}")
    a(f"v_add_u32 v{vF}, s{sT0}, v{vL16}")
    a(f"v_mov_b32 v{CV[0]}, 0")
    for k in range(8):
        a(f"v_and_b32 v{2 + 2 * k}, s1, v{TAB + k}")
        a(f"v_lshrrev_b32 v{3 + 2 * k}, 16, v{TAB + k}")
    for t in range(2):
        a(f"ds_write_b128 v{vF}, {vr(ACC + 4 * t, 4)} offset:{TOFF + t * 1024}")
    mfmas(2, False)
    a(f"ds_write_b32 v{vG}, v{CV[0]} offset:{TOFF + 3072}")
    a("v_and_b32 v18, 0xffff, v0\nv_lshrrev_b32 v19, 16, v0\nv_and_b32 v20, 0xffff, v1")
    a(f"ds_write_b128 v{vF}, {vr(ACC + 8, 4)} offset:{TOFF + 2048}")


def kzero(r):
    a(f"""v_mov_b32 v{r}, 0
v_mov_b32 v{r + 1}, 0
v_mov_b32 v{r + 2}, 0
v_mov_b32 v{r + 3}, 0
v_bfe_u32 v{r + 4}, v{vLANE}, 1, 3
v_mul_u32_u24 v{r + 4}, {KST}, v{r + 4}
v_and_b32 v{r + 5}, 1, v{vLANE}
v_lshl_add_u32 v{r + 4}, v{r + 5}, 4, v{r + 4}
s_and_b32 s{sT0}, s{sWAVE}, 1
s_mul_i32 s{sT0}, s{sT0}, {UST}
v_add_u32 v{r + 5}, s{sT0}, v{vL16}""")
    return [f"ds_write_b128 v{r + 4}, {vr(r, 4)} offset:4096", f"ds_write_b128 v{r + 5}, {vr(r, 4)} offset:{UB}"]


def kaddr(r):
    a(f"""s_lshr_b32 s{sT0}, s{sWAVE}, 1
s_and_b32 s{sT1}, s{sWAVE}, 1
s_lshl_b32 s{sT1}, s{sT1}, 11
v_lshl_add_u32 v{r + 3}, v{vLANE}, 5, s{sT1}""")
    for c in range(4):
        a(f"s_cmp_lg_u32 s{sT0}, 0")
        a(f"s_cselect_b32 s{sT2}, {KSLOT[1][c]}, {KSLOT[0][c]}")
        a(f"s_mul_i32 s{sT2}, s{sT2}, {KST}")
        a(f"v_add_u32 v{r + c}, s{sT2}, v{r + 3}")


def kexpand(mid):
    AD, VAL = 2, 22
    P0, P1, P2, P3 = 2, 12, 88, 96
    a.barrier()
    for k in range(19):
        a(f"ds_read2st64_b32 {vr(VAL + 2 * k, 2)}, v{AD + k} offset0:{TOFF // 256} offset1:{TOFF // 256 + GST // 256}")
    mid()
    kaddr(60)
    zw = kzero(104)
    for k in range(19):
        a(f"v_add_f32 v{VAL + 2 * k}, v{VAL + 2 * k}, v{VAL + 2 * k + 1}")
        if k:
            a(f"v_cvt_pk_bf16_f32 v{(P0 if k & 1 else P1) + (k - 1) // 2}, v{VAL + 2 * k - 2}, v{VAL + 2 * k}")
    a.barrier()
    a.begin()
    for l in zw:
        a(l)
    for c, P in ((0, P0), (1, P1)):
        a(f"ds_write_b128 v{60 + c}, {vr(P, 4)}")
        a(f"ds_write_b128 v{60 + c}, {vr(P + 4, 4)} offset:16")
    for c, P, src in ((2, P2, P0), (3, P3, P1)):
        for i in range(4):
            a(f"v_pk_mov_b32 {vr(P + 2 * i, 2)}, {vr(src + 2 * i, 2)}, {vr(src + 2 * i + 2, 2)} op_sel:[1,0]")
        a(f"ds_write_b128 v{60 + c}, {vr(P, 4)}")
        a(f"ds_write_b128 v{60 + c}, {vr(P + 4, 4)} offset:16")
    return a.end()


def kcopies():
    R, E, M = 2, 12, 22
    kaddr(40)
    a(f"""ds_read_b128 {vr(R, 4)}, v40
ds_read_b128 {vr(R + 4, 4)}, v40 offset:16
ds_read_b64 {vr(R + 8, 2)}, v40 offset:32""")
    for l in kzero(32):
        a(l)
    for i in range(9):
        a(f"v_alignbit_b32 v{E + i}, v{R + i + 1}, v{R + i}, 16")
    a(f"ds_write_b128 v41, {vr(E, 4)}")
    a(f"ds_write_b128 v41, {vr(E + 4, 4)} offset:16")
    for i in range(4):
        a(f"v_pk_mov_b32 {vr(M + 2 * i, 2)}, {vr(R + 2 * i, 2)}, {vr(R + 2 * i + 2, 2)} op_sel:[1,0]")
    a(f"ds_write_b128 v42, {vr(M, 4)}")
    a(f"ds_write_b128 v42, {vr(M + 4, 4)} offset:16")
    for i in range(4):
        a(f"v_pk_mov_b32 {vr(R + 2 * i, 2)}, {vr(E + 2 * i, 2)}, {vr(E + 2 * i + 2, 2)} op_sel:[1,0]")
    a(f"ds_write_b128 v43, {vr(R, 4)}")
    a(f"ds_write_b128 v43, {vr(R + 4, 4)} offset:16")


GX = 80
CS = 64
cvA, cvB, cvZ, cvXW, cvXR, cvO, cvU, cvX, cvH, cvP = 112, 113, 114, 115, 116, 117, 118, 119, 100, 108
STUBS = []


def conv_poll1():
    r = cvP
    a(f"""v_lshrrev_b32 v{r}, 3, v{vLANE}
v_min_u32 v{r}, 6, v{r}
v_and_b32 v{r + 1}, 7, v{vLANE}
v_lshl_add_u32 v{r + 2}, v{r}, 5, v{r + 1}
s_lshl_b32 s{sT0}, s{sWAVE}, 3
v_add_u32 v{r + 2}, s{sT0}, v{r + 2}
v_and_b32 v{r + 1}, 7, v{vLANE}
v_min_u32 v{r}, 6, v{r + 1}
v_lshl_add_u32 v{r + 3}, v{r}, 5, v{r + 1}
v_add_u32 v{r + 3}, s{sT0}, v{r + 3}""")


def conv_loads():
    for p in range(4):
        a(f"buffer_load_dwordx4 {vr(CS + 4 * p, 4)}, v{vL16}, {srd(S_WS)}, s{16 + p} offen sc1")
    a(f"buffer_load_dwordx4 {vr(GX, 4)}, v{cvX}, {srd(S_WS)}, s20 offen sc1")
    a(f"buffer_load_dwordx4 {vr(GX + 4, 4)}, v{cvX}, {srd(S_WS)}, s20 offen offset:64 sc1")


CS1, GX1 = 64, 96


def conv_counted():
    XF, UF, AL, BE, UP = cXF, cUF, cAL, cBE, cUP
    again, back, stub = label("cca"), label("ccb"), label("ccs")
    a(f"s_mov_b32 s{sCNT}, 0")
    a(f"{again}:")
    for e in range(8):
        a(f"buffer_load_dwordx4 {vr(CS1 + 4 * e, 4)}, v{vL16}, {srd(S_WS)}, s{22 + e} offen sc1")
        if e == 1:
            a(f"buffer_load_dwordx4 {vr(GX1, 4)}, v{cvX}, {srd(S_WS)}, s20 offen sc1")
            a(f"buffer_load_dwordx4 {vr(GX1 + 4, 4)}, v{cvX}, {srd(S_WS)}, s20 offen offset:64 sc1")

    def tok(e):
        S = CS1 + 4 * e
        a(f"v_pk_mul_f32 {vr(S, 2)}, {vr(S, 2)}, {sp(sCA)} op_sel_hi:[1,0]")
        a(f"v_fma_f32 v{S + 3}, -v{S}, v{S}, s{sCB}")
        a(f"v_add_f32 v{S + 1}, v{S + 1}, v{S + 3}")
        a(f"v_max_f32 v{S + 1}, s{sCB}, v{S + 1}")
        a(f"v_rsq_f32 v{AL + e}, v{S + 1}")
    tok(0)
    tok(1)
    for k in range(8):
        unpack(XF + 2 * k, XF + 2 * k + 1, GX1 + k)
    a(f"v_max_u32 v63, v{GX1 + 3}, v{GX1 + 7}")
    a(f"v_cmp_eq_u32 s[16:17], -1, v63")
    for e in range(2, 8):
        tok(e)
    c = [CS1 + 4 * e + 2 for e in range(8)]
    a(f"v_min3_f32 v62, v{c[0]}, v{c[1]}, v{c[2]}\nv_min3_f32 v62, v62, v{c[3]}, v{c[4]}\nv_min3_f32 v62, v62, v{c[5]}, v{c[6]}\nv_min_f32 v62, v62, v{c[7]}")
    a(f"v_cmp_neq_f32 vcc, {f32(14.0)}, v62")
    for e in range(8):
        a(f"v_mul_f32 v{BE + e}, -v{CS1 + 4 * e}, v{AL + e}")
    a("s_or_b64 vcc, vcc, s[16:17]")
    a(f"s_cbranch_vccnz {stub}")
    a(f"{back}:")
    STUBS.extend([f"{stub}:", f"s_add_u32 s{sCNT}, s{sCNT}, 1", f"s_cmp_lt_u32 s{sCNT}, {RETRY}", f"s_cbranch_scc1 {again}", f"s_branch {back}"])


def conv_setup(layer):
    a(f"""s_mov_b32 s{sCA}, {f32(1.0 / 448)}
s_mov_b32 s{sCB}, {f32(1e-5)}
s_lshl_b32 s{sT0}, s{sWAVE}, 10
v_add_u32 v{cvU}, s{sT0}, v{vL16}
s_lshr_b32 s{sT0}, s{sWAVE}, 1
s_and_b32 s{sT1}, s{sWAVE}, 1
v_and_b32 v8, 15, v{vLANE}
v_lshrrev_b32 v9, 4, v{vLANE}
v_not_b32 v10, v8
v_and_b32 v10, 3, v10""")
    for s in range(4):
        a(f"s_cmp_lg_u32 s{sT0}, 0")
        a(f"s_cselect_b32 s{sT2}, {KSLOT[1][s]}, {KSLOT[0][s]}")
        a(f"s_mul_i32 s{sT2}, s{sT2}, {KST}")
        if s == 0:
            a(f"v_mov_b32 v11, s{sT2}")
        else:
            a(f"v_mov_b32 v12, s{sT2}\nv_cmp_eq_u32 vcc, {s}, v10\nv_cndmask_b32 v11, v11, v12, vcc")
    a(f"""v_add_u32 v10, v10, v8
v_lshlrev_b32 v12, 3, v9
v_sub_u32 v12, v12, v10
v_lshl_add_u32 v11, v12, 1, v11
""")
    a(f"""s_lshl_b32 s{sT3}, s{sT1}, 8
s_sub_u32 s{sT2}, {2 * 2031 - 64 * 59}, s{sT3}
v_add_u32 v{cvA}, s{sT2}, v11
s_mul_i32 s{sT2}, s{sT0}, {UST}
s_sub_u32 s{sT2}, s{sT2}, s{sT3}
s_add_u32 s{sT2}, s{sT2}, {UB + UPAD - 2 * 112}
v_lshlrev_b32 v12, 5, v8
v_lshl_add_u32 v13, v9, 4, v12
v_add_u32 v{cvB}, s{sT2}, v13
s_lshl_b32 s{sT2}, s{sWAVE}, 11
v_lshl_add_u32 v13, v9, 3, v12
v_add_u32 v{cvZ}, s{sT2}, v13
s_xor_b32 s{sT2}, s{sWAVE}, 1
s_lshl_b32 s{sT2}, s{sT2}, 12
v_add_u32 v{cvXW}, s{sT2}, v{vL16}
s_lshl_b32 s{sT2}, s{sWAVE}, 12
v_add_u32 v{cvXR}, s{sT2}, v{vL16}
v_and_b32 v10, 1, v9
v_lshlrev_b32 v10, 3, v10
v_lshrrev_b32 v11, 1, v8
v_add_u32 v10, v10, v11
v_mul_u32_u24 v10, {BS}, v10
v_and_b32 v11, 1, v8
v_lshl_add_u32 v10, v11, 5, v10
v_lshrrev_b32 v11, 1, v9
v_lshl_add_u32 v{cvO}, v11, 4, v10
s_mul_i32 s{sT1}, s{sT1}, {32 * BS}
s_lshl_b32 s{sT2}, s{sPAIR}, 1
s_add_u32 s{sT0}, s{sT0}, s{sT2}
s_lshl_b32 s{sT0}, s{sT0}, 6
s_add_u32 s{sT0}, s{sT0}, s{sT1}
s_add_u32 s13, s{sT0}, {X1 if layer == 0 else X3}
s_add_u32 s21, s13, {16 * BS}""" if OPT["cv"] else f"""v_add_u32 v{cvA}, {2 * 2031 - 64 * 63}, v11
s_mul_i32 s{sT2}, s{sT0}, {UST}
s_lshl_b32 s{sT3}, s{sT1}, 9
s_add_u32 s{sT2}, s{sT2}, s{sT3}
s_add_u32 s{sT2}, s{sT2}, {UB + UPAD - 2 * 496}
v_lshlrev_b32 v12, 5, v8
v_lshl_add_u32 v13, v9, 4, v12
v_add_u32 v{cvB}, s{sT2}, v13
s_lshl_b32 s{sT2}, s{sT0}, 12
s_add_u32 s{sT2}, s{sT2}, s{sT3}
v_lshl_add_u32 v13, v9, 3, v12
v_add_u32 v{cvZ}, s{sT2}, v13
v_and_b32 v10, 1, v9
v_lshlrev_b32 v10, 4, v10
v_lshrrev_b32 v11, 1, v8
v_add_u32 v10, v10, v11
v_mul_u32_u24 v10, {BS}, v10
v_and_b32 v11, 1, v8
v_lshl_add_u32 v10, v11, 5, v10
v_lshrrev_b32 v11, 1, v9
v_lshl_add_u32 v{cvO}, v11, 4, v10
s_mul_i32 s{sT1}, s{sT1}, {8 * BS}
s_lshl_b32 s{sT2}, s{sPAIR}, 1
s_add_u32 s{sT0}, s{sT0}, s{sT2}
s_lshl_b32 s{sT0}, s{sT0}, 6
s_add_u32 s{sT0}, s{sT0}, s{sT1}
s_add_u32 s13, s{sT0}, {X1 if layer == 0 else X3}
s_add_u32 s21, s13, {32 * BS}""")
    a(f"""s_lshl_b32 s16, s{sWAVE}, 10
s_add_u32 s16, s16, {ST0 if layer == 0 else ST1}
s_add_u32 s17, s16, 4096
s_add_u32 s18, s16, 8192
s_add_u32 s19, s16, 12288
s_mul_i32 s20, s{sWAVE}, {16 * BS}
s_lshl_b32 s{sT2}, s{sPAIR}, 7
s_add_u32 s20, s20, s{sT2}
s_add_u32 s20, s20, {X0 if layer == 0 else X2}
v_lshrrev_b32 v10, 2, v{vLANE}
v_mul_u32_u24 v10, {BS}, v10
v_and_b32 v11, 3, v{vLANE}
v_lshl_add_u32 v{cvX}, v11, 4, v10""")
    if layer == 1 and emode(4) == "C":
        for e in range(8):
            a(f"s_add_u32 s{22 + e}, s16, {4096 * e}")


cXF, cUF, cAL, cBE, cUP = 0, 16, 32, 40, 48


def conv_pro(layer):
    XF, UF, AL, BE, UP = cXF, cUF, cAL, cBE, cUP
    if layer == 1 and emode(4) == "C":
        conv_counted()
    else:
        conv_stats()
    conv_norm()


def conv_stats():
    XF, UF, AL, BE, UP = cXF, cUF, cAL, cBE, cUP
    for p in range(4):
        S = CS + 4 * p
        a(f"v_pk_mul_f32 {vr(S, 2)}, {vr(S, 2)}, {sp(sCA)} op_sel_hi:[1,0]")
    for p in range(4):
        S = CS + 4 * p
        a(f"v_pk_fma_f32 {vr(BE + 2 * p, 2)}, {vr(S, 2)}, {vr(S, 2)}, {sp(sCB)} op_sel_hi:[1,1,0] neg_lo:[1,0,0] neg_hi:[1,0,0]")
    for p in range(4):
        Q = CS + 4 * p + 2
        a(f"v_pk_fma_f32 {vr(Q, 2)}, {vr(Q, 2)}, {sp(sCA)}, {vr(BE + 2 * p, 2)} op_sel_hi:[1,0,1]")
    for p in range(4):
        Q = CS + 4 * p + 2
        a(f"v_max_f32 v{Q}, s{sCB}, v{Q}\nv_max_f32 v{Q + 1}, s{sCB}, v{Q + 1}")
    for p in range(4):
        Q = CS + 4 * p + 2
        a(f"v_rsq_f32 v{AL + 2 * p}, v{Q}\nv_rsq_f32 v{AL + 2 * p + 1}, v{Q + 1}")
    for k in range(8):
        unpack(XF + 2 * k, XF + 2 * k + 1, GX + k)
    for p in range(4):
        S = CS + 4 * p
        a(f"v_pk_mul_f32 {vr(BE + 2 * p, 2)}, {vr(S, 2)}, {vr(AL + 2 * p, 2)} neg_lo:[1,0] neg_hi:[1,0]")


def conv_norm():
    XF, UF, AL, BE, UP = cXF, cUF, cAL, cBE, cUP
    for c in range(2):
        for p in range(4):
            a(f"v_pk_fma_f32 {vr(UF + 8 * c + 2 * p, 2)}, {vr(XF + 8 * c + 2 * p, 2)}, {vr(AL + 2 * p, 2)}, {vr(BE + 2 * p, 2)}")
        for p in range(4):
            a(f"v_cvt_pk_bf16_f32 v{UP + 4 * c + p}, v{UF + 8 * c + 2 * p}, v{UF + 8 * c + 2 * p + 1}")
        a(f"ds_write_b128 v{cvU}, {vr(UP + 4 * c, 4)} offset:{UB + c * UST + UPAD}")
    if OPT["cv"]:
        for i in a.capture(conv_z, 88):
            if i.kind != "dsw":
                a.put([i])


def conv_z(ZP=cXF):
    XF, UF = cXF, cUF
    for c in range(2):
        for p in range(4):
            a(f"v_pk_fma_f32 {vr(UF + 8 * c + 2 * p, 2)}, {vr(UF + 8 * c + 2 * p, 2)}, {sp((sD0, sD1)[c])}, {vr(XF + 8 * c + 2 * p, 2)} op_sel_hi:[1,0,1]")
        for p in range(4):
            a(f"v_cvt_pk_bf16_f32 v{ZP + 4 * c + p}, v{UF + 8 * c + 2 * p}, v{UF + 8 * c + 2 * p + 1}")
        a(f"ds_write_b128 v{cvU}, {vr(ZP + 4 * c, 4)} offset:{ZB + c * 4096}")


def conv_main(layer, bg=(), bg_start=0, bg_every=64):
    return (conv_main_r if OPT["cv"] else conv_main_t)(layer, bg, bg_start, bg_every)


def conv_main_r(layer, bg, bg_start, bg_every):
    ACC, BF, AR = 0, 32, 64
    NA = 6
    EX2 = ZB
    seq = [(r, q) for r in range(4) for q in range(7, -1, -1)]
    e = 1 + 4 * layer

    def rdA(i):
        r, q = seq[i]
        d = AR + 4 * (i % NA)
        off = 64 * (59 - (8 * q + r))
        return [Ins(f"ds_read_b64 {vr(d, 2)}, v{cvA} offset:{off}"), Ins(f"ds_read_b64 {vr(d + 2, 2)}, v{cvA} offset:{off + 8}")]

    def rdB(r, p):
        return [Ins(f"ds_read_b128 {vr(BF + 4 * p, 4)}, v{cvB} offset:{512 * p + 64 * (3 - r)}")]

    a.put(rdA(0)); a.put(rdB(0, 0)); a.put(rdA(1)); a.put(rdB(0, 1)); a.put(rdA(2)); a.put(rdB(0, 2)); a.put(rdA(3))
    a.put(rdB(0, 3)); a.put(rdA(4))
    for p in range(4, 8):
        a.put(rdB(0, p))
    ZR, ZF, RR = 88, 64, 32
    side = [[i] for i in a.capture(conv_z, 88) if i.kind == "dsw"]
    if hinted(e):
        side += [[i] for i in a.capture(hint_prep, e + 10, sPAIR, cvH)]
    late = [[Ins("s_barrier")]] + [[Ins(f"ds_read_b64 {vr(ZR + 2 * i, 2)}, v{cvZ} offset:{ZB + i * 512}")] for i in range(4)]
    late2 = [[Ins("s_barrier")]]
    a.begin()
    started = set()
    for i, (r, q) in enumerate(seq):
        if hinted(e) and OPT["h_cv"] < 0 and i == 32 + OPT["h_cv"]:
            hint_put(cvH)
        ps = list(range(8 - q))
        for p in ps:
            b = q + p
            c = vr(ACC + 4 * b, 4) if b in started else "0"
            started.add(b)
            a(f"v_mfma_f32_16x16x32_bf16 {vr(ACC + 4 * b, 4)}, {vr(AR + 4 * (i % NA), 4)}, {vr(BF + 4 * p, 4)}, {c}")
            if p == 0 and i + NA - 1 < len(seq):
                a.put(rdA(i + NA - 1))
            elif 1 <= q <= 4 and p >= 1:
                for lst, r0 in ((side, 0), (late, 2), (late2, 3)):
                    if lst and r >= r0:
                        a.put(lst.pop(0))
                        break
            if q == 0 and r < 3:
                a.put(rdB(r + 1, p))
    assert not side and not late and not late2
    m, rest = merge(a.end(), list(bg), bg_start, bg_every)
    a.put(m)
    stamp(f"conv{layer} loop", 111)
    if hinted(e) and OPT["h_cv"] == 0:
        hint_put(cvH)
    for k in range(8):
        unpack(ZF + 2 * k, ZF + 2 * k + 1, ZR + k)
    l1, l2 = label("cx"), label("cy")
    a(f"s_bitcmp1_b32 s{sWAVE}, 0")
    a(f"s_cbranch_scc1 {l1}")
    for h in range(2):
        for i in range(4):
            a(f"ds_write_b128 v{cvXW}, {vr(ACC + 16 * (1 - h) + 4 * i, 4)} offset:{EX2 + i * 1024}")
            for k in range(2):
                a(f"v_pk_add_f32 {vr(ZF + 4 * i + 2 * k, 2)}, {vr(ZF + 4 * i + 2 * k, 2)}, {vr(ACC + 16 * h + 4 * i + 2 * k, 2)}")
        if h == 0:
            a(f"s_branch {l2}")
            a(f"{l1}:")
    a(f"{l2}:")
    if (armed(1) if layer else sentinel(1)):
        poll_take(cvP)
    a.barrier()
    if hinted(e) and OPT["h_cv"] == 1:
        hint_put(cvH)
    for i in range(4):
        a(f"ds_read_b128 {vr(RR + 4 * i, 4)}, v{cvXR} offset:{EX2 + i * 1024}")
    PK = 56
    for i in range(4):
        for k in range(2):
            a(f"v_pk_add_f32 {vr(ZF + 4 * i + 2 * k, 2)}, {vr(ZF + 4 * i + 2 * k, 2)}, {vr(RR + 4 * i + 2 * k, 2)}")
        for k in range(2):
            a(f"v_cvt_pk_bf16_f32 v{PK + 2 * i + k}, v{ZF + 4 * i + 2 * k}, v{ZF + 4 * i + 2 * k + 1}")
        if i & 1:
            b = PK + 2 * (i - 1)
            a(f"v_permlane16_swap_b32 v{b}, v{b + 2}")
            a(f"v_permlane16_swap_b32 v{b + 1}, v{b + 3}")
            a(f"buffer_store_dwordx4 {vr(b, 4)}, v{cvO}, {srd(S_WS)}, s{21 if i == 3 else 13} offen sc1", tag="pub")
    if hinted(e) and OPT["h_cv"] == 2:
        hint_put(cvH)
    if not flagged(e):
        a.barrier()
    else:
        flag_put(1 + 4 * layer, sPAIR, 40, "pub")
    return rest


def conv_main_t(layer, bg, bg_start, bg_every):
    ACC, BF, AR = 84, 32, 64
    NA = 5
    QORD = (7, 5, 6, 3, 4, 2, 1, 0)
    seq = [(r, q) for r in range(8) for q in QORD]
    e = 1 + 4 * layer

    def rdA(i):
        r, q = seq[i]
        d = AR + 4 * (i % NA)
        off = 64 * (63 - (8 * q + r))
        return [Ins(f"ds_read_b64 {vr(d, 2)}, v{cvA} offset:{off}"), Ins(f"ds_read_b64 {vr(d + 2, 2)}, v{cvA} offset:{off + 8}")]

    def rdB(r, p):
        return [Ins(f"ds_read_b128 {vr(BF + 4 * (p + 1), 4)}, v{cvB} offset:{512 * (p + 1) + 64 * (7 - r)}")]

    a.put(rdA(0)); a.put(rdB(0, -1)); a.put(rdA(1)); a.put(rdB(0, 1)); a.put(rdA(2)); a.put(rdB(0, 0)); a.put(rdA(3))
    for p in (3, 2, 4, 5, 6):
        a.put(rdB(0, p))
    ZR, ZF = 16, 0
    side = [[i] for i in a.capture(conv_z)]
    if hinted(e):
        side += [[i] for i in a.capture(hint_prep, e + 10, sPAIR, cvH)]
    late = [[Ins("s_barrier")]] + [[Ins(f"ds_read_b64 {vr(ZR + 2 * i, 2)}, v{cvZ} offset:{ZB + i * 1024}")] for i in range(4)]
    late2 = [[i] for k in range(8) for i in a.capture(unpack, ZF + 2 * k, ZF + 2 * k + 1, ZR + k)]
    a.begin()
    started = set()
    n = 0
    for i, (r, q) in enumerate(seq):
        if hinted(e) and OPT["h_cv"] < 0 and i == 64 + OPT["h_cv"]:
            hint_put(cvH)
        first = True
        for t in range(q // 2, 4):
            p = 2 * t - q
            c = vr(ACC + 4 * t, 4) if t in started else "0"
            started.add(t)
            a(f"v_mfma_f32_16x16x32_bf16 {vr(ACC + 4 * t, 4)}, {vr(AR + 4 * (i % NA), 4)}, {vr(BF + 4 * (p + 1), 4)}, {c}")
            n += 1
            if first and i + 4 < len(seq):
                a.put(rdA(i + 4))
            elif q >= 2:
                for lst, r0 in ((side, 0), (late, 4), (late2, 5)):
                    if lst and r >= r0:
                        a.put(lst.pop(0))
                        if lst is side and lst:
                            a.put(lst.pop(0))
                        break
            first = False
            if q <= 1 and r < 7:
                a.put(rdB(r + 1, p))
    assert not side and not late and not late2
    m, rest = merge(a.end(), list(bg), bg_start, bg_every)
    a.put(m)
    stamp(f"conv{layer} loop", 111)
    if (armed(1) if layer else sentinel(1)):
        poll_take(cvP)
    if hinted(e) and OPT["h_cv"] == 0:
        hint_put(cvH)
    PK = 24
    for i in range(4):
        for k in range(2):
            a(f"v_pk_add_f32 {vr(ZF + 4 * i + 2 * k, 2)}, {vr(ZF + 4 * i + 2 * k, 2)}, {vr(ACC + 4 * i + 2 * k, 2)}")
        for k in range(2):
            a(f"v_cvt_pk_bf16_f32 v{PK + 2 * i + k}, v{ZF + 4 * i + 2 * k}, v{ZF + 4 * i + 2 * k + 1}")
        if i & 1:
            b = PK + 2 * (i - 1)
            a(f"v_permlane16_swap_b32 v{b}, v{b + 2}")
            a(f"v_permlane16_swap_b32 v{b + 1}, v{b + 3}")
            a(f"buffer_store_dwordx4 {vr(b, 4)}, v{cvO}, {srd(S_WS)}, s{21 if i == 3 else 13} offen sc1", tag="pub")
    if hinted(e) and OPT["h_cv"] > 0:
        hint_put(cvH)
    if not flagged(e):
        a.barrier()
    else:
        flag_put(1 + 4 * layer, sPAIR, 40, "pub")
    return rest


def reduce32(V, n, W):
    for i in range(n):
        a(f"v_permlane16_swap_b32 v{V[i]}, v{V[n + i]}")
    for i in range(n):
        a(f"v_add_f32 v{V[i]}, v{V[i]}, v{V[n + i]}")
    h = n // 2
    for i in range(h):
        a(f"v_add_f32_dpp v{W[i]}, v{V[i]}, v{V[i]} row_ror:8 row_mask:0xf bank_mask:0x3")
    for i in range(h):
        a(f"v_add_f32_dpp v{W[i]}, v{V[i + h]}, v{V[i + h]} row_ror:8 row_mask:0xf bank_mask:0xc")
    g = h // 2
    for i in range(g):
        a(f"v_add_f32_dpp v{V[i]}, v{W[i]}, v{W[i]} row_half_mirror row_mask:0xf bank_mask:0x5")
    for i in range(g):
        a(f"v_add_f32_dpp v{V[i]}, v{W[i + g]}, v{W[i + g]} row_half_mirror row_mask:0xf bank_mask:0xa")
    for m in ("[1,0,3,2]", "[2,3,0,1]"):
        for i in range(g):
            a(f"v_add_f32_dpp v{V[i]}, v{V[i]}, v{V[i]} quad_perm:{m} row_mask:0xf bank_mask:0xf")
    return V[:g]


def maxchain(t, regs):
    regs = list(regs)
    if OPT["chk"] == 1:
        regs = regs[3::4]
    if len(regs) == 2:
        return [f"v_max_u32 v{t}, v{regs[0]}, v{regs[1]}"]
    out = [f"v_max3_u32 v{t}, v{regs[0]}, v{regs[1]}, v{regs[2]}"]
    regs = regs[3:]
    while len(regs) >= 2:
        out.append(f"v_max3_u32 v{t}, v{t}, v{regs[0]}, v{regs[1]}")
        regs = regs[2:]
    if regs:
        out.append(f"v_max_u32 v{t}, v{t}, v{regs[0]}")
    return out


RETRY = 0x10000


def ln(layer, wide):
    X = X1 if layer == 0 else X3
    H = H1 if layer == 0 else H3
    nf = 7 if wide else 4
    sI = sLN0 if wide else sLN
    RAW, XF, S, Q, W = 0, 28, 84, 92, 100
    vO, vPW, vPR, vAW, vAR, r, hr = 109, 110, 111, 112, 117, 114, 104
    vX, vS = 64, 68
    a(f"""s_mul_i32 s{sT0}, s{sWAVE}, 56
v_min_u32 v{r + 2}, 55, v{vLANE}""")
    a(f"v_add_u32 v{r + 2}, s{sT0}, v{r + 2}")
    a(f"v_and_b32 v118, {OPT['samp'] - 1}, v{vLANE}\nv_mul_u32_u24 v118, {56 // OPT['samp']}, v118\nv_add_u32 v118, s{sT0}, v118")
    ein, eout = 1 + 4 * layer, 2 + 4 * layer
    if OPT["lnd"] and emode(ein) == "D":
        a.wait_tag("pub")
    if wide:
        a(f"""s_mul_i32 s16, s{sI}, {BS}
s_lshl_b32 s{sT2}, s{sI}, 12""")
    else:
        a(f"""s_lshr_b32 s16, s{sI}, 1
s_mul_i32 s16, s16, {BS}
s_and_b32 s{sT0}, s{sI}, 1
s_lshl_b32 s{sT0}, s{sT0}, 5
s_add_u32 s16, s16, s{sT0}
s_lshl_b32 s{sT2}, s{sI}, 11""")
    a(f"""s_mul_i32 s{sT0}, s{sWAVE}, 7168
s_add_u32 s16, s16, s{sT0}
s_add_u32 s16, s16, {X}
s_add_u32 s17, s16, 4096
s_add_u32 s{sT2}, s{sT2}, {H}
s_mul_i32 s30, s{sWAVE}, 7""")
    if wide:
        for i in range(nf):
            a(f"""s_add_u32 s{sT0}, s30, {i}
s_lshr_b32 s{sT1}, s{sT0}, 2
s_lshl_b32 s{sT1}, s{sT1}, 18
s_add_u32 s{23 + i}, s{sT1}, s{sT2}
s_and_b32 s{sT1}, s{sT0}, 2
s_lshl_b32 s{sT1}, s{sT1}, 9
s_add_u32 s{23 + i}, s{23 + i}, s{sT1}
s_and_b32 s{sT1}, s{sT0}, 1
s_lshl_b32 s{sT1}, s{sT1}, 8
s_add_u32 s{23 + i}, s{23 + i}, s{sT1}""")
        a(f"""v_lshrrev_b32 v1, 2, v{vLANE}
v_lshlrev_b32 v{vO}, 4, v1
v_and_b32 v2, 1, v{vLANE}
v_lshl_add_u32 v{vO}, v2, 9, v{vO}
v_bfe_u32 v2, v{vLANE}, 1, 1
v_lshl_add_u32 v{vO}, v2, 11, v{vO}
v_and_b32 v1, 7, v1
v_and_b32 v2, 3, v{vLANE}
v_lshl_add_u32 v1, v2, 3, v1""")
    else:
        a(f"""v_lshrrev_b32 v1, 1, v{vLANE}
v_and_b32 v2, 1, v{vLANE}
v_lshlrev_b32 v{vX}, 6, v1
v_lshl_add_u32 v{vX}, v2, 4, v{vX}
v_mov_b32 v3, {OOB}
v_cmp_gt_u32 vcc, 32, v{vLANE}
v_cndmask_b32 v{vX + 1}, v3, v{vX}, vcc
s_lshl_b32 s30, s30, 4
s_mov_b32 s23, s{sT2}""")
        for i in range(nf):
            a(f"""v_add_u32 v4, s30, v1
v_lshrrev_b32 v5, 6, v4
v_lshlrev_b32 v5, 18, v5
v_bfe_u32 v6, v4, 5, 1
v_lshl_add_u32 v5, v6, 10, v5
v_and_b32 v6, 31, v4
v_lshl_add_u32 v5, v6, 4, v5
v_lshl_add_u32 v{vS + i}, v2, 9, v5""")
            if i < 3:
                a("s_add_u32 s30, s30, 32")
        a(f"""v_cndmask_b32 v{vS + 3}, v3, v{vS + 3}, vcc
v_bfe_u32 v1, v{vLANE}, 2, 3
v_lshl_add_u32 v1, v2, 3, v1""")
    a(f"""v_lshrrev_b32 v3, 5, v{vLANE}
v_lshl_add_u32 v1, v3, 5, v1
s_lshl_b32 s{sT1}, s{sWAVE}, 8
s_add_u32 s{sT1}, s{sT1}, {LNP}
v_lshl_add_u32 v{vPW}, v1, 2, s{sT1}
v_and_b32 v1, 31, v{vLANE}
v_lshlrev_b32 v{vPR}, 2, v1
v_add_u32 v{vPR}, {LNP}, v{vPR}
s_add_u32 s{sT1}, s{sT1}, 1024
v_lshl_add_u32 v{vAW}, v{vLANE}, 2, s{sT1}
v_lshl_add_u32 v{vAR}, v2, 5, s{sT1}
s_mov_b32 s18, 0
s_mov_b32 s19, -1""")
    prod = f"s_lshl_b32 s{sT0}, s{sI}, 6"
    if hinted(eout):
        hint_prep(eout + 10, prod, hr)
    arm = layer == 0 and sentinel(2)
    if arm:
        a(f"v_min_u32 v102, 27, v{vLANE}")
        poll_issue(18, 100)
    wait_edge(ein, r, r + 2, 118)
    if arm:
        poll_take(100)
    stamp(f"ln{layer} go")

    def loads():
        if not wide:
            return [f"buffer_load_dwordx4 {vr(RAW + 4 * i, 4)}, v{vX + (i == 3)}, {srd(S_WS)}, s{16 + i // 2} offen offset:{2048 * (i % 2)} sc1" for i in range(nf)]
        return [f"buffer_load_dwordx4 {vr(RAW + 4 * i, 4)}, v{vL16}, {srd(S_WS)}, s{16 + i // 4} offen offset:{1024 * (i % 4)} sc1" for i in range(nf)]
    again, back, stub = label("lna"), label("lnb"), label("lns")
    if sentinel(ein):
        a(f"s_mov_b32 s{sCNT}, 0")
        a(f"{again}:")
    for l in loads():
        a(l)
    if hinted(eout) and OPT["h_ln"] == 0:
        a.wait_vm0()
        hint_put(hr)
    if OPT["stamps"] == 1:
        a.wait_vm0()
    count_out(113)
    stamp(f"ln{layer} data", 113)
    for i in range(nf):
        for k in range(4):
            unpack(XF + 8 * i + 2 * k, XF + 8 * i + 2 * k + 1, RAW + 4 * i + k)
        for k in range(4):
            x = vr(XF + 8 * i + 2 * k, 2)
            if i == 0:
                a(f"v_pk_mul_f32 {vr(Q + 2 * k, 2)}, {x}, {x}")
            else:
                a(f"v_pk_fma_f32 {vr(Q + 2 * k, 2)}, {x}, {x}, {vr(Q + 2 * k, 2)}")
                a(f"v_pk_add_f32 {vr(S + 2 * k, 2)}, {vr(XF + 2 * k, 2) if i == 1 else vr(S + 2 * k, 2)}, {x}")
    if sentinel(ein):
        for l in maxchain(113, range(RAW, RAW + 4 * nf)) + ["v_cmp_eq_u32 vcc, -1, v113"]:
            a(l)
        STUBS.extend([f"{stub}:", f"s_add_u32 s{sCNT}, s{sCNT}, 1", f"s_cmp_lt_u32 s{sCNT}, {RETRY}", f"s_cbranch_scc1 {again}", f"s_branch {back}"])
    if hinted(eout) and OPT["h_ln"] == 1:
        hint_put(hr)
    for i in range(8):
        a(f"v_permlane32_swap_b32 v{S + i}, v{Q + i}")
        if i == 1 and sentinel(ein):
            a(f"s_cbranch_vccnz {stub}")
            a(f"{back}:")
    for i in range(0, 8, 2):
        a(f"v_pk_add_f32 {vr(S + i, 2)}, {vr(S + i, 2)}, {vr(Q + i, 2)}")
    for i in range(4):
        a(f"v_permlane16_swap_b32 v{S + i}, v{S + 4 + i}")
    for i in range(0, 4, 2):
        a(f"v_pk_add_f32 {vr(S + i, 2)}, {vr(S + i, 2)}, {vr(S + 4 + i, 2)}")
    for i in range(2):
        a(f"v_add_f32_dpp v{W + i}, v{S + i}, v{S + i} row_ror:8 row_mask:0xf bank_mask:0x3")
    for i in range(2):
        a(f"v_add_f32_dpp v{W + i}, v{S + 2 + i}, v{S + 2 + i} row_ror:8 row_mask:0xf bank_mask:0xc")
    a(f"v_add_f32_dpp v{S}, v{W}, v{W} row_shl:4 row_mask:0xf bank_mask:0x5")
    a(f"v_add_f32_dpp v{S}, v{W + 1}, v{W + 1} row_shr:4 row_mask:0xf bank_mask:0xa")
    if not wide:
        a(f"v_add_f32_dpp v{S}, v{S}, v{S} quad_perm:[2,3,0,1] row_mask:0xf bank_mask:0xf")
    a(f"ds_write_b32 v{vPW}, v{S}")
    a.barrier()
    if hinted(eout) and OPT["h_ln"] == 2:
        hint_put(hr)
    stamp(f"ln{layer} bar", 113)
    T = 0
    for w in range(4):
        a(f"ds_read2_b32 {vr(T + 2 * w, 2)}, v{vPR} offset0:{w * 64} offset1:{w * 64 + 32}")
    a(f"""v_pk_add_f32 {vr(T, 2)}, {vr(T, 2)}, {vr(T + 2, 2)}
v_pk_add_f32 {vr(T + 4, 2)}, {vr(T + 4, 2)}, {vr(T + 6, 2)}
v_pk_add_f32 {vr(T, 2)}, {vr(T, 2)}, {vr(T + 4, 2)}
v_mul_f32 v{T}, {f32(1 / 448)}, v{T}
v_mul_f32 v{T + 1}, {f32(1 / 448)}, v{T + 1}
v_fma_f32 v{T + 1}, -v{T}, v{T}, v{T + 1}
v_max_f32 v{T + 1}, 0, v{T + 1}
v_add_f32 v{T + 2}, {f32(1e-5)}, v{T + 1}
v_fmamk_f32 v{T + 2}, v{T + 2}, {f32(1e-5)}, v{T + 1}
v_rsq_f32 v{T + 2}, v{T + 2}
v_mul_f32 v{T + 3}, -v{T}, v{T + 2}
v_cndmask_b32 v{T + 2}, v{T + 2}, v{T + 3}, s[18:19]
ds_write_b32 v{vAW}, v{T + 2}""")
    AL, BE = S, Q
    done_hint = []
    a(f"""ds_read_b128 {vr(AL, 4)}, v{vAR}
ds_read_b128 {vr(BE, 4)}, v{vAR} offset:128
ds_read_b128 {vr(AL + 4, 4)}, v{vAR} offset:16
ds_read_b128 {vr(BE + 4, 4)}, v{vAR} offset:144""")
    for i in range(nf):
        for k in range(4):
            x = vr(XF + 8 * i + 2 * k, 2)
            a(f"v_pk_fma_f32 {x}, {x}, {vr(AL + 2 * k, 2)}, {vr(BE + 2 * k, 2)}")
        for k in range(4):
            a(f"v_cvt_pk_bf16_f32 v{RAW + 4 * i + k}, v{XF + 8 * i + 2 * k}, v{XF + 8 * i + 2 * k + 1}")
        a(f"buffer_store_dwordx4 {vr(RAW + 4 * i, 4)}, v{vO if wide else vS + i}, {srd(S_WS)}, s{23 + i if wide else 23} offen sc1", tag="pub")
        if hinted(eout) and OPT["h_ln"] - 3 == min(i, 6) * (4 if nf == 7 else 4) // (nf + 1):
            if not done_hint:
                hint_put(hr)
                done_hint.append(1)
    stamp(f"ln{layer} st", 113)
    if flagged(eout):
        flag_put(eout, prod, 100, "pub")


def gemm_addr():
    a(f"""s_and_b32 s{sT0}, s{sWAVE}, 1
s_lshl_b32 s{sT0}, s{sT0}, 10
v_add_u32 v{vA0}, s{sT0}, v{vL16}
v_xor_b32 v{vA1}, 0x400, v{vA0}""")


vCHK = 121


def gemm_loop(nks, ring, nring, wreg, swap, sent, lds_from=99, at=None, bg=()):
    WF = 104
    nfr = 2 * nks

    def load(f):
        ks, db = f // 2, f % 2
        g = []
        if db == 0 and ks and ks % 2 == 0:
            g.append(Ins("s_add_u32 s13, s13, 4096"))
            if ks % 4 == 0:
                g += [Ins("s_cmp_eq_u32 s13, s28"), Ins("s_cmov_b32 s13, s27")]
        d = ring + 4 * (f % nring)
        g.append(Ins(f"buffer_load_dwordx4 {vr(d, 4)}, v{(vA0, vA1)[db]}, {srd(S_WS)}, s13 offen offset:{(ks % 2) * 2048} sc1"))
        return g

    def wread(ks):
        g = []
        slot = ks - lds_from
        for nb in range(2):
            for j in range(2):
                d = WF + 8 * (ks % 2) + 4 * nb + 2 * j
                g.append(Ins(f"ds_read_b64_tr_b16 {vr(d, 2)}, v{(vT2a, vT2b)[nb]} offset:{slot * 2048 + j * 1024}", res_r=[f"slot{slot}"]))
        return g

    def check(ks, upto):
        regs = [ring + 4 * ((2 * ks + db) % nring) + k for db in range(2) for k in range(4)]
        chk = maxchain(vCHK, regs) + [f"v_cmp_eq_u32 vcc, -1, v{vCHK}"]
        back, stub = label("gb"), label("gs")
        rl, cnt = [], 0
        for f in range(2 * ks, max(2 * ks + 2, min(upto, 2 * ks + 2 * OPT["rl"]))):
            k2, db = f // 2, f % 2
            if db == 0:
                rl += [f"s_add_u32 s3, s22, {k2 * 2048}", "s_cmp_ge_u32 s3, s28", f"s_cselect_b32 s18, {nks * 2048}, 0", "s_sub_u32 s3, s3, s18"]
            rl.append(f"buffer_load_dwordx4 {vr(ring + 4 * (f % nring), 4)}, v{(vA0, vA1)[db]}, {srd(S_WS)}, s3 offen sc1")
        STUBS.extend([f"{stub}:"] + rl + ["s_waitcnt vmcnt(0)"] + chk + [f"s_add_u32 s{sCNT}, s{sCNT}, 1", f"s_cbranch_vccz {back}",
                                                     f"s_cmp_lt_u32 s{sCNT}, {RETRY}", f"s_cbranch_scc1 {stub}", f"s_branch {back}"])
        return [Ins(x) for x in chk], [Ins(f"s_cbranch_vccnz {stub}"), Ins(f"{back}:")]

    if sent:
        a(f"s_mov_b32 s{sCNT}, 0")
    nxt = min(OPT["fill0"], nring)
    for f in range(nxt):
        a.put(load(f))
    if sent:
        c, b = check(0, nxt)
        a.put(c); a.put(b)
    extra = []
    bg = list(bg)
    for ks in range(nks):
        if at and ks in at:
            extra += a.capture(at[ks])
        pend = wread(ks + 1) if lds_from <= ks + 1 < nks else []
        c, b = check(ks + 1, min(nfr, nxt + 2, nring + 2 * ks + 2)) if (sent and ks + 1 < nks) else ([], [])
        order = [(0, 0), (0, 1), (1, 0), (1, 1)]
        if ks == nks - 1 and OPT["tailord"]:
            order = [(0, 1), (1, 0), (1, 1), (0, 0)]
        if True:
            for nb, db in order:
                acc = vr(16 * (2 * nb + db), 16)
                cc = acc if (ks or (nb | db) == 0) else "0"
                w = wreg(ks, nb) if ks < lds_from else vr(WF + 8 * (ks % 2) + 4 * nb, 4)
                x = vr(ring + 4 * ((2 * ks + db) % nring), 4)
                if OPT["fake16"] and 0 < ks < nks - 1:
                    b0 = 16 * (2 * nb + db) + 8 * (ks & 1)
                    for t in range(2):
                        a(f"v_mfma_f32_16x16x32_bf16 {vr(b0 + 4 * t, 4)}, {x if swap ^ t else w}, {w if swap ^ t else x}, {vr(b0 + 4 * t, 4)}")
                else:
                    a(f"v_mfma_f32_32x32x16_bf16 {acc}, {x if swap else w}, {w if swap else x}, {cc}")
                if pend:
                    a.put([pend.pop(0)])
                free = nring + 2 * ks + (db + 1 if nb == 1 else 0)
                if nxt < min(nfr, free) and (nb == 1 or db == 1):
                    a.put(load(nxt))
                    nxt += 1
                if bg and nb == 0 and ks >= OPT["bg0"]:
                    a.put(bg.pop(0))
                if extra and nb == 0:
                    k = 5
                    while k < len(extra) and ("exec" in extra[k - 1].defs and extra[k - 1].text != "s_mov_b64 exec, -1" or extra[k - 1].kind == "vstore"):
                        k += 1
                    a.put(extra[:k])
                    del extra[:k]
                if nb == 1 and db == 0:
                    a.put(c)
                if nb == 1 and db == 1:
                    a.put(b)
    a.put(extra)


def gemm_rot(nks, srot):
    a(f"s_mov_b32 s27, s13\ns_add_u32 s28, s13, {nks * 2048}\ns_lshl_b32 s{sT0}, s{srot}, 13\ns_add_u32 s13, s13, s{sT0}\ns_mov_b32 s22, s13")


def gemm_reduce_prep():
    slot = 6144 if OPT["bfr"] else 12288
    for rel in (1, 2, 3):
        a(f"s_xor_b32 s{23 + rel}, s{sWAVE}, {rel}\ns_mul_i32 s{23 + rel}, s{23 + rel}, {slot}")
    a(f"s_mul_i32 s23, s{sWAVE}, {slot}")


def gemm_reduce_addr():
    for rel in range(4):
        a(f"v_add_u32 v{64 + rel}, s{23 + rel}, v{vL16}")


def gemm_perm(P):
    if not OPT["bfr"]:
        return
    t, u = P + 8, P + 7
    a("s_mov_b32 s29, 0x3f80")
    a(f"""v_lshrrev_b32 v{u}, 5, v{vLANE}
v_and_b32 v{t}, 31, v{vLANE}
v_lshlrev_b32 v{u}, 2, v{u}
v_sub_u32 v{t}, v{t}, v{u}
v_and_b32 v{u}, 1, v{t}
v_lshlrev_b32 v{u}, 4, v{u}
v_lshlrev_b32 v{u}, v{u}, s29
v_ashrrev_i32 v{t}, 1, v{t}""")
    vals = (0, 1, 4, 5, 8, 9, 12, 13)
    pairs = ("s[16:17]", "s[30:31]", "s[50:51]")
    for d in range(10):
        if d < 8:
            a(f"v_cmp_eq_u32 {pairs[d % 3]}, {vals[d]}, v{t}")
        if d >= 2:
            a(f"v_cndmask_b32 v{P + d - 2}, 0, v{u}, {pairs[(d - 2) % 3]}")
    a(f"ds_write_b128 v{vL16}, {vr(P, 4)} offset:{PERM}")
    a(f"ds_write_b128 v{vL16}, {vr(P + 4, 4)} offset:{PERM + 1024}")


def gemm_perm_get(P):
    if OPT["bfr"]:
        a(f"ds_read_b128 {vr(P, 4)}, v{vL16} offset:{PERM}")
        a(f"ds_read_b128 {vr(P + 4, 4)}, v{vL16} offset:{PERM + 1024}")


def gemm_reduce_bf(P, pre, post, quarter):
    side = a.capture(pre) if pre else []
    a.put(side[:9])
    side = side[9:]
    T = [104, 108, 112, 116]
    n = 0
    for rel in (1, 2, 3):
        for j in range(2):
            t = T[n % 4]
            n += 1
            for k in range(4):
                r = 16 * rel + 8 * j + 2 * k
                a(f"v_cvt_pk_bf16_f32 v{t + k}, v{r}, v{r + 1}")
            a(f"ds_write_b128 v{64 + rel}, {vr(t, 4)} offset:{RB + (rel - 1) * 2048 + j * 1024}")
            a.put(side[:3])
            side = side[3:]
    a.put(side)
    a.barrier()
    for k in range(6):
        a(f"ds_read_b128 {vr(16 + 4 * k, 4)}, v64 offset:{RB + k * 1024}")
    if post:
        post()
    for k in range(6):
        a(f"v_mfma_f32_32x32x16_bf16 v[0:15], {vr(P + 4 * (k % 2), 4)}, {vr(16 + 4 * k, 4)}, v[0:15]")
    if quarter:
        for q in range(4):
            quarter(q)


def gemm_reduce(pre=None, post=None, quarter=None, P=None):
    if OPT["bfr"]:
        return gemm_reduce_bf(P, pre, post, quarter)
    side = a.capture(pre) if pre else []
    wr = [[Ins(f"ds_write_b128 v{64 + rel}, {vr(16 * rel + 4 * q, 4)} offset:{RB + (rel - 1) * 4096 + q * 1024}")] for rel in (1, 2, 3) for q in range(4)]
    a.put(side[:9])
    put_all(wr[:3])
    m, rest = merge(side[9:], wr[3:], 0, 12)
    a.put(m)
    put_all(rest)
    a.barrier()
    for q in range(4):
        for k in range(3):
            a(f"ds_read_b128 {vr(16 + 16 * k + 4 * q, 4)}, v64 offset:{RB + k * 4096 + q * 1024}")
        if q == 1 and post:
            post()
    for q in range(4):
        for h in range(2):
            r = 4 * q + 2 * h
            a(f"v_pk_add_f32 {vr(16 + r, 2)}, {vr(16 + r, 2)}, {vr(32 + r, 2)}")
            a(f"v_pk_add_f32 {vr(r, 2)}, {vr(r, 2)}, {vr(48 + r, 2)}")
        for h in range(2):
            r = 4 * q + 2 * h
            a(f"v_pk_add_f32 {vr(r, 2)}, {vr(r, 2)}, {vr(16 + r, 2)}")
        if quarter:
            quarter(q)


def gemm1(layer, wide, pre=None, bg=(), part="all"):
    H = H1 if layer == 0 else H3
    G = G1 if layer == 0 else G3
    r = 32
    c0 = -2 * math.log2(math.e) * math.sqrt(2 / math.pi)
    ein, eout = 2 + 4 * layer, 3 + 4 * layer
    if part == "poll":
        assert emode(ein) == "S"
        for k in range(8):
            unpack(2 * k, 2 * k + 1, 20 + k)
        poll_issue(ein + 10, r, r + 3)
        return
    if part != "rest":
        gemm1_head(H, G, wide, r, c0)
    if part == "head":
        return
    gemm1_rest(layer, wide, pre, bg, part, r, c0, ein, eout)


def gemm1_head(H, G, wide, r, c0):
    gemm_addr()
    a(f"""s_lshr_b32 s{sT0}, s{sWAVE}, 1
s_lshl_b32 s{sT0}, s{sT0}, 6
s_lshl_b32 s{sT1}, s{sNT}, 7
s_add_u32 s{sT0}, s{sT0}, s{sT1}
v_lshrrev_b32 v16, 5, v{vLANE}
v_lshl_add_u32 v16, v16, 3, s{sT0}""")
    for q in range(4):
        a(f"global_load_dwordx2 {vr(20 + 2 * q, 2)}, v16, {sp(P_B1)} offset:{16 * q}")
    a(f"""s_lshl_b32 s{sT0}, s{sWAVE}, 5
v_and_b32 v{r + 2}, 31, v{vLANE}
v_add_u32 v{r + 2}, s{sT0}, v{r + 2}
v_and_b32 v{r + 3}, {31 & ~(32 // OPT['samp'] - 1)}, v{vLANE}
v_add_u32 v{r + 3}, s{sT0}, v{r + 3}
s_lshl_b32 s13, s{sDT1}, 7
s_add_u32 s13, s13, s{sT0}
s_lshl_b32 s13, s13, 11
s_add_u32 s13, s13, {H}""")
    if wide:
        a(f"v_lshrrev_b32 v{r + 2}, 1, v{r + 2}\nv_lshrrev_b32 v{r + 3}, 1, v{r + 3}")
    a(f"""s_mov_b32 s{sCA}, {f32(c0 * 0.044715)}
s_mul_i32 s21, s{sDT1}, 112
s_lshl_b32 s{sT0}, s{sNT}, 2
s_add_u32 s21, s21, s{sT0}
s_and_b32 s{sT0}, s{sWAVE}, 2
s_add_u32 s21, s21, s{sT0}
s_lshl_b32 s21, s21, 11
s_add_u32 s21, s21, {G}""")
    gemm_reduce_prep()
    gemm_rot(32, sROT1)


def gemm1_rest(layer, wide, pre, bg, part, r, c0, ein, eout):
    if pre:
        pre()
    if part != "rest":
        for k in range(8):
            unpack(2 * k, 2 * k + 1, 20 + k)
    if part == "rest":
        poll_take(r, r + 3)
    elif emode(ein) == "M":
        l1, l2 = label("m1"), label("m2")
        a(f"s_cmp_eq_u32 s{sRL0 if wide else sRL}, 0\ns_cbranch_scc1 {l1}")
        a.wait_tag("pub")
        a(f"s_branch {l2}")
        a(f"{l1}:")
        wait_edge(ein, r, r + 2, r + 3)
        a(f"{l2}:")
    else:
        wait_edge(ein, r, r + 2, r + 3)
    stamp(f"g1_{layer} go", 63)
    prod = f"s_mul_i32 s{sT0}, s{sDT1}, 28\ns_add_u32 s{sT0}, s{sT0}, s{sNT}\ns_lshl_b32 s{sT0}, s{sT0}, 6"
    early = hinted(eout) and OPT["h_g1"] < 0
    at = {30: gemm_reduce_addr, 28: lambda: gemm_perm_get(96)}
    if early:
        assert OPT["h_g1"] in (-1, -3, -4)
        at[32 + OPT["h_g1"]] = lambda: (hint_prep(eout + 10, prod, 104), hint_put(104))
    gemm_loop(32, 64, 14, lambda ks, nb: f"a[{(ks * 2 + nb) * 4}:{(ks * 2 + nb) * 4 + 3}]", False, sentinel(ein), at=at)
    count_out(120)
    stamp(f"g1_{layer} loop", 120)
    a.begin()
    late = hinted(eout) and not early

    def pre():
        a(f"v_mov_b32 v80, {f32(c0)}")
        if late:
            hint_prep(eout + 10, prod, 72)

    def gelu(q):
        if q % 2 == 0:
            return
        half = q // 2
        if late and OPT["h_g1"] == 1 and half == 0:
            hint_put(72)
        rs = range(8 * half, 8 * half + 8, 2)
        for r in rs:
            a(f"v_pk_mul_f32 {vr(16 + r, 2)}, {vr(r, 2)}, {vr(r, 2)}")
        for r in rs:
            a(f"v_pk_fma_f32 {vr(16 + r, 2)}, {vr(16 + r, 2)}, {sp(sCA)}, {vr(80, 2)} op_sel_hi:[1,0,0]")
        for r in rs:
            a(f"v_pk_mul_f32 {vr(16 + r, 2)}, {vr(16 + r, 2)}, {vr(r, 2)}")
        for r in rs:
            a(f"v_exp_f32 v{16 + r}, v{16 + r}\nv_exp_f32 v{17 + r}, v{17 + r}")
        for r in rs:
            a(f"v_pk_add_f32 {vr(16 + r, 2)}, {vr(16 + r, 2)}, 1.0 op_sel_hi:[1,0]")
        for r in rs:
            a(f"v_rcp_f32 v{16 + r}, v{16 + r}\nv_rcp_f32 v{17 + r}, v{17 + r}")
        for r in rs:
            a(f"v_pk_mul_f32 {vr(r, 2)}, {vr(r, 2)}, {vr(16 + r, 2)}")
        for r in rs:
            a(f"v_cvt_pk_bf16_f32 v{84 + r // 2}, v{r}, v{r + 1}")
        a(f"buffer_store_dwordx4 {vr(84 + 4 * half, 4)}, v{vA0}, {srd(S_WS)}, s21 offen offset:{2048 * half} sc1", tag="pub")
        if late and OPT["h_g1"] == 2 + half:
            hint_put(72)
    gemm_reduce(pre, (lambda: hint_put(72)) if (late and OPT["h_g1"] == 0) else None, gelu, 96)
    m, rest = merge(a.end(), list(bg), 0, OPT["ev_g1"])
    a.put(m)
    if not flagged(eout):
        a.barrier()
    else:
        flag_put(eout, prod, 40, "pub")
    for g in rest:
        a.put(g)


def gemm2(layer, bg=()):
    G = G1 if layer == 0 else G3
    gemm_addr()
    a(f"""s_lshr_b32 s{sT0}, s{sWAVE}, 1
s_lshl_b32 s{sT0}, s{sT0}, 5
s_lshl_b32 s{sT1}, s{sST}, 6
s_add_u32 s50, s{sT0}, s{sT1}
s_and_b32 s{sT1}, s{sWAVE}, 1
s_lshl_b32 s{sT1}, s{sT1}, 5
s_lshl_b32 s{sT2}, s{sDT2}, 6
s_add_u32 s51, s{sT1}, s{sT2}
s_lshr_b32 s{sT2}, s50, 5
s_mul_i32 s{sT2}, s{sT2}, {BS}
s_lshl_b32 s{sT1}, s51, 6
s_add_u32 s20, s{sT2}, s{sT1}
s_add_u32 s30, s20, {X1 if layer == 0 else X3}
v_and_b32 v16, 31, v{vLANE}
v_lshrrev_b32 v17, 5, v{vLANE}
s_lshl_b32 s{sT0}, s50, 1""")
    r = 42

    def residual_issue():
        if layer == 0:
            for q in range(4):
                a(f"buffer_load_dwordx2 {vr(20 + 2 * q, 2)}, v18, {srd(S_WS)}, s30 offen offset:{16 * q} sc1")
        else:
            a(f"s_mov_b32 m0, s31")
            a(f"buffer_load_dwordx4 v{vL16}, {srd(S_WS)}, s30 offen sc1 lds", res_w=["x3"])
            a(f"buffer_load_dwordx4 v{vL16}, {srd(S_WS)}, s30 offen offset:1024 sc1 lds", res_w=["x3"])

    def residual_use():
        if layer == 0:
            for k in range(8):
                unpack(2 * k, 2 * k + 1, 20 + k)
            for k in range(8):
                unpack(40, 41, 28 + k)
                a(f"v_pk_add_f32 {vr(2 * k, 2)}, {vr(2 * k, 2)}, v[40:41]")
        else:
            for q in range(4):
                a(f"ds_read_b64_tr_b16 {vr(20 + 2 * q, 2)}, v31 offset:{512 * q}", res_r=["x3"])
            a("v_lshlrev_b32 v40, 16, v29")
            for k in range(8):
                unpack(2 * k, 2 * k + 1, 20 + k)
                a(f"v_pk_add_f32 {vr(2 * k, 2)}, {vr(2 * k, 2)}, v[40:41] op_sel_hi:[1,0]")

    if layer == 0:
        a(f"v_lshlrev_b32 v18, 6, v16\nv_lshl_add_u32 v18, v17, 3, v18\nv_lshl_add_u32 v19, v17, 3, s{sT0}")
        for q in range(4):
            a(f"global_load_dwordx2 {vr(28 + 2 * q, 2)}, v19, {sp(P_B2)} offset:{16 * q}")
    else:
        a(f"""v_and_b32 v19, 3, v{vLANE}
s_lshl_b32 s31, s{sWAVE}, 11
v_lshl_add_u32 v28, v16, 1, s{sT0}
global_load_ushort v29, v28, {sp(P_B2)}
v_bfe_u32 v31, v{vLANE}, 2, 2
v_lshl_add_u32 v31, v17, 2, v31
v_lshlrev_b32 v31, 6, v31
v_bfe_u32 v30, v{vLANE}, 4, 1
v_lshl_add_u32 v31, v30, 5, v31
v_lshl_add_u32 v31, v19, 3, v31
v_add_u32 v31, s31, v31""")
    a(f"""s_mul_i32 s{sT0}, s{sDT2}, 28
s_mul_i32 s{sT1}, s{sWAVE}, 7
s_add_u32 s{sT0}, s{sT0}, s{sT1}
v_min_u32 v{r + 2}, 6, v{vLANE}
v_add_u32 v{r + 2}, s{sT0}, v{r + 2}
v_mov_b32 v{r + 3}, v{r + 2}
s_lshl_b32 s13, s{sT0}, 13
s_add_u32 s13, s13, {G}""")
    if layer == 0:
        a(f"""s_add_u32 s21, s20, {X2}
s_lshl_b32 s19, s50, 1
s_add_u32 s19, s19, {ST1}""")
    else:
        a(f"s_mul_i32 s{sT0}, s50, 896\ns_lshl_b32 s{sT1}, s51, 1\ns_add_u32 s21, s{sT0}, s{sT1}")
    gemm_reduce_prep()
    gemm_rot(28, sROT2)
    if layer == 0 and emode(4) == "C" and OPT["x2l"] == 2:
        a(f"v_min_u32 v52, 27, v{vLANE}")
        poll_issue(19, 50)
    lskip, ljoin = label("res"), label("resj")
    a(f"s_cmp_eq_u32 s{sR1}, 0")
    a(f"s_cbranch_scc1 {lskip}")
    residual_issue()
    residual_use()
    if emode(3 + 4 * layer) == "M":
        a.wait_tag("pub")
    else:
        wait_edge(3 + 4 * layer, r, r + 2, r + 3)
    a(f"s_branch {ljoin}")
    a(f"{lskip}:")
    eln = 2 + 4 * layer
    if OPT["rese"] and hinted(eln) and OPT["h_ln"] >= 2:
        wide = OPT["ln1w"] if layer else OPT["ln0w"]
        a(f"s_lshl_b32 s{sT0}, s{sST}, {1 if wide else 2}\nv_and_b32 v48, {1 if wide else 3}, v{vLANE}\nv_add_u32 v48, s{sT0}, v48")
        poll_issue(eln + 10, 46)
        poll_take(46)
        residual_issue()
        residual_use()
        wait_edge(3 + 4 * layer, r, r + 2, r + 3)
    else:
        wait_edge(3 + 4 * layer, r, r + 2, r + 3)
        residual_issue()
        residual_use()
    a(f"{ljoin}:")
    if layer == 0 and emode(4) == "C" and OPT["x2l"] == 2:
        poll_take(50)
    at = {26: gemm_reduce_addr, 25: lambda: gemm_perm_get(88)}
    late = layer == 0 and emode(4) == "C" and OPT["x2l"] == 1
    if late:
        at[25] = lambda: (gemm_perm_get(88), a(f"v_and_b32 v98, 31, v{vLANE}"), poll_issue(19, 96))
    stamp(f"g2_{layer} go", 63)
    gemm_loop(28, 64, 10, lambda ks, nb: vr(128 + (ks * 2 + nb) * 4, 4), layer == 1, sentinel(3 + 4 * layer), lds_from=16, at=at, bg=bg)
    count_out(120)
    stamp(f"g2_{layer} loop", 120)

    def addr():
        a(f"v_and_b32 v68, 31, v{vLANE}\nv_lshrrev_b32 v69, 5, v{vLANE}")
        if layer == 0:
            a(f"""v_and_b32 v70, 15, v{vLANE}
v_lshlrev_b32 v70, 6, v70
v_lshl_add_u32 v70, v69, 4, v70
v_bfe_u32 v71, v{vLANE}, 4, 1
v_lshl_add_u32 v70, v71, 5, v70
""")
            if emode(4) == "C":
                a(f"""v_lshl_add_u32 v71, v69, 2, v71
v_lshlrev_b32 v71, 12, v71
v_and_b32 v68, 15, v{vLANE}
v_lshl_add_u32 v71, v68, 2, v71
v_mov_b32 v68, 1.0
v_cndmask_b32 v68, v68, 0, {sp(sM1)}
s_add_u32 s18, s19, 8192""")
            else:
                a(f"""v_bfe_u32 v71, v{vLANE}, 2, 2
v_lshlrev_b32 v71, 4, v71
v_bfe_u32 v68, v{vLANE}, 4, 1
v_lshl_add_u32 v71, v68, 3, v71
v_and_b32 v68, 1, v{vLANE}
v_lshl_add_u32 v71, v68, 2, v71
v_bfe_u32 v68, v{vLANE}, 1, 1
v_lshl_add_u32 v68, v69, 1, v68
v_lshl_add_u32 v71, v68, 12, v71""")
        else:
            a(f"v_mul_u32_u24 v70, 896, v68\nv_lshl_add_u32 v70, v69, 4, v70")
    prod = f"s_lshl_b32 s{sT0}, s{sDT2}, 5\ns_add_u32 s{sT0}, s{sT0}, s{sST}\ns_lshl_b32 s{sT0}, s{sT0}, 6"
    hn = layer == 0 and hinted(4)

    def pre():
        addr()
        if hn:
            hint_prep(14, prod, 80)
    gemm_reduce(pre, (lambda: hint_put(80)) if (hn and OPT["h_g2"] == 0) else None, None, 88)
    if hn and OPT["h_g2"] == 1:
        hint_put(80)
    PK = 72
    if late:
        poll_take(96)
    stamp(f"g2_{layer} red", 120)
    for half in range(2):
        b = PK + 4 * half
        for k in range(4):
            a(f"v_cvt_pk_bf16_f32 v{b + k}, v{8 * half + 2 * k}, v{8 * half + 2 * k + 1}")
        a(f"v_permlane32_swap_b32 v{b}, v{b + 2}")
        a(f"v_permlane32_swap_b32 v{b + 1}, v{b + 3}")
        if layer == 1:
            a(f"buffer_store_dwordx4 {vr(b, 4)}, v70, {srd(S_OUT)}, s21 offen offset:{32 * half} {('', 'nt', 'sc1')[OPT['ofl']]}")
    if layer == 1:
        return
    def put_x():
        for k in range(4):
            a(f"v_permlane16_swap_b32 v{PK + k}, v{PK + 4 + k}")
        for half in range(2):
            a(f"buffer_store_dwordx4 {vr(PK + 4 * half, 4)}, v70, {srd(S_WS)}, s21 offen offset:{1024 * half} sc1", tag="pub")
    put_x()
    if hn and OPT["h_g2"] == 2:
        hint_put(80)
    for k in range(8):
        a(f"v_pk_mul_f32 {vr(20 + 2 * k, 2)}, {vr(2 * k, 2)}, {vr(2 * k, 2)}")
    res = reduce32(list(range(16)) + list(range(20, 36)), 16, list(range(40, 48)))
    assert res == [0, 1, 2, 3]
    if emode(4) == "C":
        a(f"""v_permlane16_swap_b32 v0, v1
v_permlane16_swap_b32 v2, v3
v_cndmask_b32 v0, v0, v1, {sp(sM1)}
v_cndmask_b32 v2, v2, v3, {sp(sM1)}
v_cndmask_b32 v0, v0, v68, {sp(sM2)}
v_cndmask_b32 v2, v2, v68, {sp(sM2)}""")
        a(f"buffer_atomic_add_f32 v0, v71, {srd(S_WS)}, s19 offen sc1", tag="pub")
        a(f"buffer_atomic_add_f32 v2, v71, {srd(S_WS)}, s18 offen sc1", tag="pub")
    else:
        a(f"""v_cndmask_b32 v0, v0, v1, {sp(sM1)}
v_cndmask_b32 v2, v2, v3, {sp(sM1)}
v_cndmask_b32 v0, v0, v2, {sp(sM2)}""")
        a(f"buffer_atomic_add_f32 v0, v71, {srd(S_WS)}, s19 offen sc1", tag="pub")
    if hn and OPT["h_g2"] == 3:
        hint_put(80)
    stamp("g2_0 atom", 120)
    if flagged(4):
        flag_put(4, prod, 40, "pub")
    else:
        a.barrier()
    stamp("g2_0 flag", 120)


def skip_unless(role):
    l = label("skip")
    a(f"s_cmp_eq_u32 s{role}, 0")
    a(f"s_cbranch_scc1 {l}")
    return l


def dmas(n0, n1):
    return [w_dma(n, h) for n in range(n0, n1) for h in range(2)]


def tr_dma(n0, n1):
    g = []
    for n in range(n0, n1):
        g.append(w_tr(n))
        if n > n0:
            g += dmas(n + 11, n + 12)
    g += dmas(n1 + 11, n1 + 12)
    return g


def wseq():
    nB = OPT["wB"] // 2
    assert 36 <= nB <= 60
    g = dmas(0, 12) + tr_dma(0, nB - 12)
    lastT = 48 if (nB >= 48 and OPT["wT"]) else 32 + OPT["wg"]
    g += [w_tr(n) for n in range(nB - 12, lastT)]
    g.append([])
    d = nB
    for n in range(max(lastT, nB - 12), 49):
        while d < min(n + 11, 60) or (n == 48 and d < 60):
            g += dmas(d, d + 1)
            d += 1
        if n < 48:
            g.append(w_tr(n))
    return g


def wcut(n_dma):
    k = 0
    for p, g in enumerate(wseq()):
        if k == n_dma:
            return p
        k += any(i.kind == "dma" for i in g)
    return len(wseq())


def put_all(gs):
    for g in gs:
        a.put(g)


def w2_touch(r):
    return [Ins(f"v_lshlrev_b32 v{r}, 12, v{vLANE}"), Ins(f"buffer_load_dword v{r}, v{r}, {srd(S_W2)}, s{sW2O} offen")]


def upad():
    a(f"""v_mov_b32 v32, 0
v_mov_b32 v33, 0
v_mov_b32 v34, 0
v_mov_b32 v35, 0
s_and_b32 s{sT0}, s{sWAVE}, 1
s_mul_i32 s{sT0}, s{sT0}, {UST}
v_add_u32 v36, s{sT0}, v{vL16}
ds_write_b128 v36, v[32:35] offset:{UB}""")


def build():
    global RB
    if OPT["bfr"] and OPT["keepk"]:
        RB = UB
    g = OPT["wg"]
    WORDER[:] = list(range(0, g)) + list(range(32, 32 + g)) + list(range(g, 32)) + list(range(32 + g, 60))
    if OPT["w2t"]:
        WORDER[:] = list(range(60))
    cA, cP, cL, cB = wcut(OPT["wA"]), wcut(OPT["wP"]), wcut(OPT["wL"]), wseq().index([])
    cK = wcut(OPT["wK"])
    prologue()
    laux, ljoin = label("aux"), label("join")
    a(f"s_cmp_eq_u32 s{sRC}, 0")
    a(f"s_cbranch_scc1 {laux}")
    stamp("args", 2)
    xt_loads()
    kgen_table_load()
    code_warm(1)
    page_warm(88)
    w_setup()
    put_all(wseq()[:cA])
    conv_setup(0)
    stamp("start", 2)

    xt_poll_addr(63, 2)
    xt_work()
    stamp("xt", 2)

    def h_flag():
        nonce_take()
        flag_put(0, sPAIR, 104, "st0")
        stamp("flag", 0)
        a(f"global_load_dwordx4 {vr(TAB, 4)}, v75, {sp(sTAB)}")
        a(f"global_load_dwordx4 {vr(TAB + 4, 4)}, v75, {sp(sTAB)} offset:16")
        a(f"global_load_dwordx2 v[0:1], v75, {sp(sTAB)} offset:32")

    hooks = {}
    dbg = tuple((p, (lambda p=p: stamp(f"hook{p}", 65))) for p in (0, 1, 2, 5)) if OPT["stamps"] == 1 else ()
    for pos, fn in dbg + ((OPT["h_flag"], h_flag), (OPT["h_w"], lambda: KBG.extend(wseq()[cA:cK] + ([w2_touch(75)] if OPT["w2t"] else []))), (OPT["h_poll"], lambda: poll_issue(0, 64, 63))):
        hooks.setdefault(pos, []).append(fn)
    assert OPT["h_flag"] <= OPT["h_w"] and OPT["h_poll"] >= 6
    kgen({k: (lambda fs=fs: [f() for f in fs]) for k, fs in hooks.items()})
    dump_lds(1)
    stamp("kgen", 21)

    def mid():
        poll_take(64, 63)
        stamp("e1 seen", 0)
        conv_loads()
    wr = kexpand(mid)
    if OPT["mixpro"]:
        mv = [i for i in wr if i.kind != "dsw"]
        st = [i for i in wr if i.kind == "dsw"]
        pro = a.capture(conv_pro, 0)
        k = next(n for n, i in enumerate(pro) if i.defs & {f"v{r}" for r in range(0, 22)})
        a.put(mv)
        a.put(st[2:4])
        head, rest = merge(pro[:k], [[i] for i in st[4:6] + st[:2] + st[6:]], 0, 14)
        a.put(head)
        early = [g for g in rest if g[0].uses & {f"v{r}" for r in range(0, 22)}]
        put_all(early)
        rest = [g for g in rest if g not in early]
        k2 = next(n for n, i in enumerate(pro) if i.kind == "dsw")
        mid2, rest = merge(pro[k:k2], rest, 0, 30)
        put_all(rest)
        m3, rest = merge(mid2 + pro[k2:], wseq()[cK:cP], 50, OPT["ev_pro"])
        a.put(m3)
        put_all(rest)
        stamp("expand", 111)
    else:
        a.put(wr)
        stamp("expand")
        conv_pro(0)
    if sentinel(1):
        a(f"v_min_u32 v{cvP + 2}, 27, v{vLANE}")
        poll_issue(8, cvP)
    a.barrier()
    dump_lds(2)
    stamp("conv0 go", 111)
    put_all(conv_main(0, wseq()[cP:cL], OPT["st_conv"], OPT["ev_conv"]))
    stamp("conv0 done")
    a(f"s_branch {ljoin}")
    a(f"{laux}:")
    aux_loads()
    kgen_table_addr()
    code_warm(1)
    page_warm(88)
    w_setup()
    aux_work()
    stamp("aux e1")
    if OPT["g7"] == 1:
        lg = label("g7")
        a(f"""s_cmp_lg_u32 s{sR1}, 0
s_cbranch_scc1 {lg}
s_lshr_b32 s{sT0}, s{sX}, 2
s_sub_u32 s{sT0}, s{sJ}, s{sT0}
s_sub_u32 s{sT0}, s{sT0}, 28
s_lshl_b32 s{sT0}, s{sT0}, 3
s_add_u32 s{sT0}, s{sT0}, s{sX}
s_lshl_b32 s{sT0}, s{sT0}, 7
s_mul_i32 s{sT1}, s{sWAVE}, {512 * 3584}
s_add_u32 s{sT0}, s{sT0}, s{sT1}
s_add_u32 s{sT0}, s{sT0}, {448 * 3584}
v_mul_u32_u24 v90, 3584, v{vLANE}
v_add_u32 v90, s{sT0}, v90""")
        a(f"global_load_dword v90, v90, {sp(P_W1)}")
        a(f"{lg}:")
    if armed(0):
        lnf = label("nf")
        a(f"s_cmp_lg_u32 s{sR1}, 0\ns_cbranch_scc1 {lnf}")
        if OPT["map18"] == 1:
            a(f"s_sub_u32 s16, s{sAUX}, 4\ns_cselect_b32 s16, s{sAUX}, s16")
        else:
            a(f"s_lshr_b32 s16, s{sAUX}, 1\ns_sub_u32 s17, s{sAUX}, 4\ns_cmp_lt_u32 s{sAUX}, 8\ns_cselect_b32 s16, s16, s17")
        if sentinel(1):
            fill(X1, 17, 80, 16, 28 * 4096, "fill")
            flag_put(8, 16, 72, "fill")
        if sentinel(2) or sentinel(3):
            if sentinel(2):
                fill(H1, 16, 80, 16, 28 * 4096, "fill")
            if sentinel(3):
                fill(G1, 14, 80, 16, 28 * 4096, "fill")
            if emode(4) == "C" and not OPT["x2l"]:
                assert sentinel(2) and sentinel(3)
                fill(X2, 17, 80, 16, 28 * 4096, "fill")
            flag_put(18, 16, 72, "fill")
        a(f"{lnf}:")
    stamp("aux fill")
    if OPT["g7"] == 2:
        lg = label("g7")
        a(f"""s_cmp_lg_u32 s{sR1}, 0
s_cbranch_scc1 {lg}
s_lshr_b32 s{sT0}, s{sX}, 2
s_sub_u32 s{sT0}, s{sJ}, s{sT0}
s_sub_u32 s{sT0}, s{sT0}, 28
s_lshl_b32 s{sT0}, s{sT0}, 3
s_add_u32 s{sT0}, s{sT0}, s{sX}
s_lshl_b32 s{sT0}, s{sT0}, 7
s_mul_i32 s{sT1}, s{sWAVE}, {512 * 3584}
s_add_u32 s{sT0}, s{sT0}, s{sT1}
s_add_u32 s{sT0}, s{sT0}, {448 * 3584}
v_mul_u32_u24 v90, 3584, v{vLANE}
v_add_u32 v90, s{sT0}, v90""")
        a(f"global_load_dword v90, v90, {sp(P_W1)}")
        a(f"{lg}:")
    cX = min(wcut(64 + 2 * OPT["wg"]), cB)
    if OPT["w2t"]:
        a.put(w2_touch(75))
    n1 = 32 + OPT["wg"]
    if OPT["auxs"]:
        put_all(dmas(0, 12) + tr_dma(0, n1 - 12) + [w_tr(n) for n in range(n1 - 12, n1)])
    else:
        put_all(wseq()[:cX])
    if sentinel(1):
        a(f"v_min_u32 v62, 27, v{vLANE}")
        poll_issue(8, 60)
        poll_take(60)
    a.wait_vm0()
    stamp("aux w")
    a(f"{ljoin}:")
    for layer in range(2):
        if layer == 1:
            l = skip_unless(sRC)
            conv_setup(1)
            conv_poll1()
            stamp("conv1 ready")
            if OPT["kc_in"] and not hinted(4):
                a.wait_tag("flag")
                poll_issue(4, cvP)
                kcopies()
                poll_take(cvP)
            else:
                upad() if RB == UB else kcopies()
                if emode(4) == "G":
                    lg = label("gt")
                    a(f"s_cmp_lg_u32 s{sR2}, 0\ns_cbranch_scc1 {lg}")
                    poll_issue(14, cvP, cvP + 3)
                    poll_take(cvP, cvP + 3)
                    a(f"{lg}:")
                    a.wait_tag("flag")
                    poll_issue(4, cvP)
                    poll_take(cvP)
                else:
                    wait_edge(4, cvP, cvP + 2, cvP + 3)
            stamp("conv1 poll")
            if emode(4) != "C":
                conv_loads()
            conv_pro(1)
            count_out(111)
            if armed(1):
                a(f"v_and_b32 v{cvP + 2}, 31, v{vLANE}")
                poll_issue(9, cvP)
            a.barrier()
            dump_lds(3)
            stamp("conv1 go", 111)
            conv_main(1)
            stamp("conv1 done")
            if armed(1):
                lj = label("cvj")
                a(f"s_branch {lj}")
                a(f"{l}:")
                a(f"v_and_b32 v62, 31, v{vLANE}")
                poll_issue(9, 60)
                poll_take(60)
                a(f"{lj}:")
            else:
                a(f"{l}:")
        wide = OPT["ln1w"] if layer else OPT["ln0w"]
        l = skip_unless(sRL0 if wide else sRL)
        ln(layer, wide)
        stamp(f"ln{layer} done")
        a(f"{l}:")
        if layer == 0:
            gemm_perm(0)
            def arm_poll(part):
                k = max(0, len(part) - 12)
                put_all(part[:k])
                if sentinel(2) or sentinel(3):
                    a(f"v_min_u32 v62, 27, v{vLANE}")
                    poll_issue(18, 60)
                if inb:
                    gemm1(0, wide, part="head")
                k2 = max(k, len(part) - OPT["inb"])
                put_all(part[k:k2])
                if inb:
                    gemm1(0, wide, part="poll")
                put_all(part[k2:])
                if sentinel(2) or sentinel(3):
                    poll_take(60)
            inb = OPT["inb"] > 0 and emode(2) == "S"
            if OPT["auxs"]:
                assert OPT["wB"] == 120
                la, lb, lc = label("ba"), label("bb"), label("bc")
                a(f"s_cmp_eq_u32 s{sRC}, 0\ns_cbranch_scc1 {la}")
                arm_poll(wseq()[cL:cB])
                a(f"s_branch {lb}")
                a(f"{la}:")
                a(f"s_cmp_eq_u32 s{sR2}, 0\ns_cbranch_scc1 {lc}")
                put_all(dmas(n1, n1 + 12) + tr_dma(n1, 48))
                if emode(4) == "C" and OPT["x2l"] == 2:
                    a(f"s_sub_u32 s16, s{sAUX}, 4\ns_cselect_b32 s16, s{sAUX}, s16")
                    fill(X2, 17, 80, 16, 28 * 4096, "fill")
                    flag_put(19, 16, 72, "fill")
                a(f"{lc}:")
                if inb:
                    gemm1(0, wide, part="head")
                    gemm1(0, wide, part="poll")
                elif not sentinel(2):
                    arm_poll([])
                a(f"{lb}:")
            else:
                l = skip_unless(sRC)
                put_all(wseq()[cL:cX])
                a(f"{l}:")
                rest = wseq()[cX:cB]
                k = max(0, len(rest) - 12)
                put_all(rest[:k])
                if sentinel(2) or sentinel(3):
                    a(f"v_min_u32 v62, 27, v{vLANE}")
                    poll_issue(18, 60)
                put_all(rest[k:])
                if sentinel(2) or sentinel(3):
                    poll_take(60)
            stamp("w B", 63)
            tail = wseq()[cB:]
            assert not any(i.kind == "dsr" and "a[" in i.text for g in tail for i in g)
            lelse, lj = label("ng1"), label("g1j")
            a(f"s_cmp_eq_u32 s{sR1}, 0")
            a(f"s_cbranch_scc1 {lelse}")
            gemm1(0, wide, None, [] if OPT["t2"] else tail, "rest" if inb else "all")
            nonce_retire()
            stamp("g1_0 done")
            a(f"s_branch {lj}")
            a(f"{lelse}:")
            put_all([] if OPT["t2"] else wseq()[cB:])
            a(f"{lj}:")
        else:
            l = skip_unless(sR1)
            gemm1(1, wide)
            stamp("g1_1 done")
            a(f"{l}:")
        l = skip_unless(sR2)
        gemm2(layer, [g for g in wseq()[cB:] if g] if (layer == 0 and OPT["t2"]) else [])
        if layer == 0 and armed(1):
            lj = label("g2j")
            a(f"s_branch {lj}")
            a(f"{l}:")
            if OPT["map18"]:
                a(f"s_lshl_b32 s16, s{sX}, 2\ns_add_u32 s16, s16, s{sJ}")
            else:
                a(f"s_lshr_b32 s16, s{sX}, 1\ns_lshl_b32 s16, s16, 3\ns_add_u32 s16, s16, s{sJ}")
            late = emode(4) == "C" and OPT["x2l"]
            if late == 1:
                fill(X2, 15, 72, 16, CH)
                flag_put(19, 16, 8, "st0")
            for base, n, e in ((X3, 15, 5), (H3, 14, 6), (G3, 13, 7)):
                if sentinel(e):
                    fill(base, n, 72, 16, CH)
            flag_put(9, 16, 8, "st0")
            if late:
                a(f"v_and_b32 v62, 31, v{vLANE}" if late == 1 else f"v_min_u32 v62, 27, v{vLANE}")
                poll_issue(19, 60)
                poll_take(60)
            a(f"{lj}:")
        else:
            a(f"{l}:")
        stamp("g2_0 done" if layer == 0 else "end")
    if OPT["stamps"] and OPT["dbgwg"] < 0:
        l = label("ls")
        a(f"s_cmp_lg_u32 s{sWAVE}, 0\ns_cbranch_scc1 {l}\ns_waitcnt vmcnt(0)\ns_memrealtime {sp(sSTAMP)}\ns_waitcnt lgkmcnt(0)")
        a(f"s_lshl_b32 s3, s2, 8\ns_add_u32 s3, s3, {STAMPS + 248}\nv_mov_b32 v0, s101\nv_mov_b32 v1, s{sSTAMP}\ns_mov_b64 exec, 1")
        a(f"buffer_store_dwordx2 v[0:1], off, {srd(S_WS)}, s3")
        a(f"{l}:")
    if OPT["fixdur"]:
        a(f"s_waitcnt vmcnt(0) lgkmcnt(0)\nL_fix:\ns_memrealtime s[28:29]\ns_waitcnt lgkmcnt(0)\ns_sub_u32 s28, s28, s101\ns_cmp_lt_u32 s28, {OPT['fixdur']}\ns_cbranch_scc1 L_fix")
    a("s_endpgm")


def bf16_round_int(l):
    b = struct.unpack("<I", struct.pack("<f", float(l)))[0]
    b = (b + 0x7FFF + ((b >> 16) & 1)) & 0xFFFF0000
    return int(struct.unpack("<f", struct.pack("<I", b))[0])


def ktab():
    vals = []
    for c in range(2):
        for x in range(2048):
            lr = bf16_round_int(2047 - x)
            aa, rem = lr >> 7, lr & 127
            j, e = rem >> 3, rem & 7
            if aa < 2:
                rho = 8 * aa + e
            elif aa < 4:
                rho = 4 * aa + 8 + (e >> 1)
            elif aa < 8:
                rho = 16 + 2 * aa + (e >> 2)
            else:
                rho = 24 + aa
            vals.append((rho >> 2) * 256 + j * 16 + (rho & 3) * 4 + c * 2 * GST)
        vals += [3072 + c * 2 * GST] * 16
    lines = []
    for i in range(0, len(vals), 16):
        lines.append("    .short " + ", ".join(str(v) for v in vals[i:i + 16]))
    return "\n".join(lines)


DOC = """;
;   gemm1 : gelu(h^T W1 + b1), 64x64 tile per workgroup, K split over the waves, W1 tile resident in AGPRs
;   gemm2 : x + g W2 + b2, W2 tile resident in VGPRs + LDS; per-token sums for the next LayerNorm by atomics
; Every wait is bounded.  Generated by the author's own script (register allocation and schedule are explicit).
"""


def main(path):
    build()
    ins = a.finish()
    ref = open(f"cdna_kernels/{NAME}.s.ref").read().split("\n")
    head = [l for l in ref if l.startswith(";") and "@launch" not in l and not l.startswith("; Override") and not l.startswith("; grid=ceil")]
    k = NAME + "_kernel"
    s = "\n".join(head) + f"\n; @launch grid=(256,1,1) block=(256,1,1) lds={LDS_BYTES}\n"
    s += DOC
    s += f""".amdgcn_target "amdgcn-amd-amdhsa--gfx950"
.text
.globl {k}
.p2align 8
.type {k},@function
{k}:
L_entry:
"""
    s += Prog.render(ins)
    s += "".join((l if l.endswith(":") else "    " + l) + "\n" for l in STUBS)
    s += f""".p2align 6
.type ktab,@object
ktab:
{ktab()}
.size ktab, 8256
.section .rodata,"a"
.p2align 6
.amdhsa_kernel {k}
  .amdhsa_next_free_vgpr 512
  .amdhsa_next_free_sgpr 102
  .amdhsa_accum_offset 256
  .amdhsa_group_segment_fixed_size 0
  .amdhsa_kernarg_size 136
  .amdhsa_user_sgpr_count 2
  .amdhsa_user_sgpr_kernarg_segment_ptr 1
  .amdhsa_system_sgpr_workgroup_id_x 1
  .amdhsa_float_denorm_mode_32 3
.end_amdhsa_kernel
"""
    open(path, "w").write(s)
    n = sum(1 for i in ins if i.kind not in ("label", "comment"))
    open(path + ".names", "w").write("\n".join(STAMP_NAMES))
    print("instructions:", n, "nops:", sum(1 for i in ins if i.kind == "nop"), "waits:", sum(1 for i in ins if i.kind == "wait"))


if __name__ == "__main__":
    path = sys.argv[1]
    for kv in sys.argv[2:]:
        k, v = kv.split("=")
        OPT[k] = v if k in ('em', 'probe') else int(v)
    main(path)
```

```python
import sys, math, struct
from asmlib import *

NAME = "interleave_layers__ssm_conv_s4__mixer_token_mlp__prompt"
OPT = dict(stamps=False, stop=99, upfront=True, dump=0, dbgwg=-1, fixdur=0, em='FSSCDSS', warm=1, h_flag=2, h_w=2, h_poll=9, h_ln=2, h_cv=0, h_g1=0, h_g2=2, rot=1, wA=0, wK=8, wP=8, wL=16, wB=120, wT=1, lag=2, gap=3, st_conv=100, ev_conv=150, ev_g1=100000, fill0=14, ln1w=0, ln0w=1, chk=1, samp=8, map18=1, ofl=0, tailord=1, cv=1, clk=0, ev_kg=150, mixpro=1, now=0, probe='', kc_in=0, w2t=0, g7=0, rl=4, bfr=1, wg=4, slp=0, ev_pro=30, t2=0, bg0=0, tlb=0, rese=0, lnd=1, keepk=1, fake16=0, wnt=0, wnta=0, fnt=0, pnt=0, xnt=0, auxs=1, inb=2, x2l=2, res4=0, xe=0)
DBG_SEL = ['start', 'kgen', 'conv0 go', 'ln0 go', 'g1_0 go', 'g1_0 loop', 'g2_0 go', 'g2_0 loop', 'conv1 poll', 'ln1 go', 'g1_1 go', 'g2_1 go', 'end']
STAMP_NAMES = []

EPOCH = 0
ST0 = 0x1000
ST1 = 0x8000
STAMPS = 0x20000
FL = 0x100000
BS = 448 * 64 + 128
CH = 0x20000
X1, H1, G1, X3, H3, G3, X2, X0 = (0x400000 + 0x200000 * i for i in range(8))
FILL1, FILL3 = 6, 36
WS_BYTES = 268435456
OOB = 0x40000000

KST = 4160
KSLOT = {0: [0, 5, 2, 3], 1: [1, 6, 7, 4]}
UB = 8 * KST
UPAD = 1024
UST = 4096 + UPAD
ZB = UB + 2 * UST
EX = 2 * KST
RB = 2 * KST
GST = 15616
GROW = 272
TOFF = 12288
LNP = 57472
PERM = 61440
W2L = 65536
LDS_BYTES = 163840

sWAVE, sX, sJ, sPAIR, sDT1, sNT, sDT2, sST, sLN = 4, 5, 6, 7, 8, 9, 10, 11, 12
sNONCE = 14
P_U, P_ARE, P_AIM, P_BRE, P_BIM, P_CRE, P_CIM, P_LDT = 16, 18, 20, 22, 24, 26, 28, 30
P_DSK, P_W1, P_B1, P_W2, P_B2, P_OUT, P_DBG, P_WS = 32, 36, 38, 40, 42, 44, 46, 48
S_WS, S_W1, S_W2, S_X0, S_OUT = 52, 56, 60, 64, 68
sD0, sD1 = 72, 74
sLDT = 76
sEP = 78
sWOFF, sT0, sT1, sT2, sT3, sCNT = 80, 81, 82, 83, 84, 85
sRC, sR1, sR2, sRL = 86, 87, 88, 89
sM1, sM2 = 90, 92
sSTAMP = 94
sTAB = 96
sLN0, sRL0 = 77, 73
sCA, sCB = 34, 100

vLANE, vL16, vT2a, vT2b, vT1a, vT1b, vD1, vD2 = 127, 126, 125, 124, 123, 122, 121, 120
vA0, vA1 = 123, 122


def srd(n):
    return f"s[{n}:{n + 3}]"


def sp(n):
    return f"s[{n}:{n + 1}]"


def vr(n, k):
    return f"v[{n}:{n + k - 1}]" if k > 1 else f"v{n}"


def f32(x):
    return "0x%08x" % struct.unpack("<I", struct.pack("<f", x))[0]


a = Prog()
_lab = [0]


def label(p):
    _lab[0] += 1
    return f"L_{p}_{_lab[0]}"


_stamp = [0]


def stamp(name, r=1):
    k = _stamp[0]
    _stamp[0] += 1
    STAMP_NAMES.append(name)
    a("; MARK after " + name)
    if OPT["probe"] == name.replace(" ", "_"):
        a(f"s_memrealtime {sp(sSTAMP)}\ns_waitcnt lgkmcnt(0)\ns_mov_b32 s101, s{sSTAMP}")
    if OPT["stamps"] != 1:
        return
    l = label("st")
    if OPT["dbgwg"] >= 0:
        if name not in DBG_SEL:
            return
        a(f"s_lshl_b32 s3, s{sWAVE}, 8\ns_add_u32 s3, s3, s2\ns_cmp_lg_u32 s3, {OPT['dbgwg']}\ns_cbranch_scc1 {l}")
        a(f"s_memrealtime {sp(sSTAMP)}")
        a("s_waitcnt lgkmcnt(0)")
        a(f"s_mov_b64 exec, 1\nv_mov_b32 v{r}, s{sSTAMP}\ns_mov_b32 s{sSTAMP}, s{P_DBG}\ns_mov_b32 s{sSTAMP + 1}, s{P_DBG + 1}\ns_mov_b32 s{sSTAMP + 2}, 256\ns_mov_b32 s{sSTAMP + 3}, 0x20000".replace(f"s{sSTAMP}, s{P_DBG}", f"s64, s{P_DBG}").replace(f"s{sSTAMP + 1}, s{P_DBG + 1}", f"s65, s{P_DBG + 1}").replace(f"s{sSTAMP + 2}, 256", "s66, 256").replace(f"s{sSTAMP + 3}, 0x20000", "s67, 0x20000"))
        a(f"buffer_store_dword v{r}, off, s[64:67], 0 offset:{12 + 4 * DBG_SEL.index(name)} sc1", optional=True)
        a("s_mov_b64 exec, -1")
        a(f"{l}:")
        return
    a(f"s_cmp_lg_u32 s{sWAVE}, 0")
    a(f"s_cbranch_scc1 {l}")
    a(f"{'s_memtime' if OPT['clk'] else 's_memrealtime'} {sp(sSTAMP)}")
    a("s_waitcnt lgkmcnt(0)")
    a(f"s_lshl_b32 s3, s2, 8")
    a(f"s_add_u32 s3, s3, {STAMPS + 4 * k}")
    a(f"v_mov_b32 v{r}, s{sSTAMP}")
    a("s_mov_b64 exec, 1")
    a(f"buffer_store_dword v{r}, off, {srd(S_WS)}, s3", optional=True)
    a("s_mov_b64 exec, -1")
    a(f"{l}:")


_cnt = [0]


def count_out(r):
    if OPT["stamps"] != 1:
        return
    k = _cnt[0]
    _cnt[0] += 1
    a(f"s_lshl_b32 s3, s2, 2\ns_add_u32 s3, s3, s{sWAVE}\ns_lshl_b32 s3, s3, 5\ns_add_u32 s3, s3, {STAMPS + 0x10000 + 4 * k}")
    a(f"v_mov_b32 v{r}, s{sCNT}\ns_mov_b64 exec, 1")
    a(f"buffer_store_dword v{r}, off, {srd(S_WS)}, s3")
    a("s_mov_b64 exec, -1")


DUMP = 0x2000000


def dump_lds(point, r=96):
    if OPT["dump"] != point:
        return
    a.barrier()
    a(f"s_lshl_b32 s3, s{sWAVE}, 10\nv_add_u32 v{r + 4}, s3, v{vL16}\ns_lshl_b32 s3, s2, 16\ns_add_u32 s3, s3, {DUMP}")
    for i in range(16):
        a(f"ds_read_b128 {vr(r, 4)}, v{r + 4} offset:{i * 4096}")
        a(f"buffer_store_dwordx4 {vr(r, 4)}, v{r + 4}, {srd(S_WS)}, s3 offen")
        a("s_add_u32 s3, s3, 4096")
        a.wait_vm0()
    a.barrier()


def cmul(d, x, y):
    return [f"v_pk_mul_f32 {vr(d, 2)}, {vr(x, 2)}, {vr(y, 2)} op_sel:[1,1] op_sel_hi:[1,0] neg_lo:[0,1]",
            f"v_pk_fma_f32 {vr(d, 2)}, {vr(x, 2)}, {vr(y, 2)}, {vr(d, 2)} op_sel_hi:[0,1,1]"]


def cmul2(p, q=None):
    x = cmul(*p)
    if q is None:
        a(x[0]); a(x[1])
        return
    y = cmul(*q)
    a(x[0]); a(y[0]); a(x[1]); a(y[1])


def unpack(dlo, dhi, s):
    a(f"v_lshlrev_b32 v{dlo}, 16, v{s}")
    a(f"v_and_b32 v{dhi}, s0, v{s}")


def prologue():
    a("s_cmp_lt_u32 s2, 256")
    a("s_cbranch_scc1 L_start")
    a("s_endpgm")
    a("L_start:")
    if OPT["fixdur"] or OPT["stamps"]:
        a("s_memrealtime s[50:51]")
    a("s_load_dwordx16 s[16:31], s[0:1], 0")
    a("s_load_dwordx16 s[32:47], s[0:1], 64")
    a("s_load_dwordx2 s[48:49], s[0:1], 128")
    a(f"v_lshrrev_b32 v1, 6, v0")
    a(f"v_and_b32 v{vLANE}, 63, v0")
    a(f"v_readfirstlane_b32 s{sWAVE}, v1")
    a(f"v_lshlrev_b32 v{vL16}, 4, v{vLANE}")
    a(f"""s_and_b32 s{sX}, s2, 7
s_lshr_b32 s{sJ}, s2, 3
s_add_u32 s{sJ}, s{sJ}, 28
s_and_b32 s{sJ}, s{sJ}, 31
""")
    a(f"""s_lshr_b32 s{sT0}, s{sX}, 2
s_mul_i32 s{sPAIR}, s{sX}, 28
s_sub_u32 s{sRC}, s{sJ}, s{sT0}
s_add_u32 s{sPAIR}, s{sPAIR}, s{sRC}
s_cmp_lt_u32 s{sRC}, 28
s_cselect_b32 s{sRC}, 1, 0
s_mul_i32 s{sT2}, s{sJ}, 37
s_lshr_b32 s{sT2}, s{sT2}, 8
s_mul_i32 s{sT3}, s{sT2}, 7
s_sub_u32 s{sDT1}, s{sJ}, s{sT3}
s_lshl_b32 s{sNT}, s{sT2}, 3
s_add_u32 s{sNT}, s{sNT}, s{sX}
s_sub_u32 s{sT1}, s{sJ}, 4
s_cselect_b32 s{sR2}, 0, 1
s_and_b32 s{sT1}, s{sT1}, 31
s_mul_i32 s{sT2}, s{sT1}, 37
s_lshr_b32 s{sT2}, s{sT2}, 8
s_mul_i32 s{sT3}, s{sT2}, 7
s_sub_u32 s{sDT2}, s{sT1}, s{sT3}
s_lshl_b32 s{sST}, s{sX}, 2
s_add_u32 s{sST}, s{sST}, s{sT2}
s_cmp_eq_u32 s{sJ}, 0
s_cselect_b32 s{sT1}, 32, s{sJ}
s_mul_i32 s{sT2}, s{sX}, 12
s_add_u32 s{sT2}, s{sT2}, s{sT1}
s_sub_u32 s{sT2}, s{sT2}, 53
s_lshl_b32 s{sT3}, s{sX}, 2
s_add_u32 s{sT3}, s{sT3}, s{sJ}
s_sub_u32 s{sT3}, s{sT3}, 28
s_cmp_lg_u32 s{sT0}, 0
s_cselect_b32 s{sT1}, s{sT1}, s{sJ}
s_cselect_b32 s{sLN0}, s{sT2}, s{sT3}
s_cselect_b32 s{sRL0}, 21, 28
s_cmp_ge_u32 s{sT1}, s{sRL0}
s_cselect_b32 s{sRL0}, 1, 0""" if OPT["map18"] == 1 else f"""s_and_b32 s{sT0}, s{sX}, 1
s_lshr_b32 s{sT1}, s{sX}, 1
s_mul_i32 s{sPAIR}, s{sX}, 28
s_sub_u32 s{sRC}, s{sJ}, s{sT0}
s_add_u32 s{sPAIR}, s{sPAIR}, s{sRC}
s_cmp_lt_u32 s{sRC}, 28
s_cselect_b32 s{sRC}, 1, 0
s_mul_i32 s{sT2}, s{sJ}, 37
s_lshr_b32 s{sT2}, s{sT2}, 8
s_mul_i32 s{sT3}, s{sT2}, 7
s_sub_u32 s{sT3}, s{sJ}, s{sT3}
s_mul_i32 s{sNT}, s{sT1}, 7
s_add_u32 s{sNT}, s{sNT}, s{sT3}
s_lshl_b32 s{sT3}, s{sT0}, 2
s_add_u32 s{sDT1}, s{sT2}, s{sT3}
s_lshl_b32 s{sST}, s{sT0}, 3
s_sub_u32 s{sST}, s{sJ}, s{sST}
s_cselect_b32 s{sR2}, 0, 1
s_lshr_b32 s{sDT2}, s{sST}, 3
s_and_b32 s{sDT2}, s{sDT2}, 3
s_add_u32 s{sDT2}, s{sDT2}, s{sT3}
s_and_b32 s{sST}, s{sST}, 7
s_lshl_b32 s{sLN0}, s{sT1}, 4
s_lshl_b32 s{sT1}, s{sT1}, 3
s_add_u32 s{sST}, s{sST}, s{sT1}
s_cmp_eq_u32 s{sJ}, 0
s_cselect_b32 s{sT1}, 32, s{sJ}
s_mul_i32 s{sT2}, s{sT0}, 11
s_add_u32 s{sT2}, s{sT2}, s{sT1}
s_cmp_lg_u32 s{sT0}, 0
s_cselect_b32 s{sT1}, s{sT1}, s{sJ}
s_cselect_b32 s{sT2}, s{sT2}, s{sJ}
s_cselect_b32 s{sRL0}, 21, 28
s_cmp_ge_u32 s{sT1}, s{sRL0}
s_cselect_b32 s{sRL0}, 1, 0
s_add_u32 s{sLN0}, s{sLN0}, s{sT2}
s_sub_u32 s{sLN0}, s{sLN0}, 28""")
    if OPT["map18"] == 2:
        a(f"""s_sub_u32 s{sT1}, s{sJ}, 4
s_cselect_b32 s{sR2}, 0, 1
s_and_b32 s{sT1}, s{sT1}, 31
s_mul_i32 s{sT2}, s{sT1}, 37
s_lshr_b32 s{sT2}, s{sT2}, 8
s_mul_i32 s{sT3}, s{sT2}, 7
s_sub_u32 s{sDT2}, s{sT1}, s{sT3}
s_lshl_b32 s{sST}, s{sX}, 2
s_add_u32 s{sST}, s{sST}, s{sT2}""")
    a(f"""s_lshl_b32 s{sLN}, s{sX}, 4
s_add_u32 s{sLN}, s{sLN}, s{sJ}
s_sub_u32 s{sLN}, s{sLN}, 8
s_mul_i32 s{sT2}, s{sT0}, 7
s_sub_u32 s{sT2}, 28, s{sT2}
s_cmp_lt_u32 s{sJ}, s{sT2}
s_cselect_b32 s{sR1}, 1, 0
s_sub_u32 s{sT2}, s{sJ}, 8
s_cmp_lt_u32 s{sT2}, 16
s_cselect_b32 s{sRL}, 1, 0
s_min_u32 s{sPAIR}, s{sPAIR}, 223
s_min_u32 s{sNT}, s{sNT}, 27
s_mov_b32 s{sM1}, 0xaaaaaaaa
s_mov_b32 s{sM1 + 1}, 0xaaaaaaaa
s_mov_b32 s{sM2}, 0xcccccccc
s_mov_b32 s{sM2 + 1}, 0xcccccccc""")
    a("s_waitcnt lgkmcnt(0)")
    if OPT["fixdur"] or OPT["stamps"]:
        a("s_mov_b32 s101, s50")
    a("s_mov_b32 s0, 0xffff0000\ns_mov_b32 s1, 0xffff")
    a(f"""s_lshl_b32 s{sT0}, s{sPAIR}, 2
s_load_dword s{sLDT}, {sp(P_LDT)}, s{sT0}
s_load_dword s{sD0}, {sp(P_DSK)}, s{sT0}""")
    kgen_loads()
    for n, p, size in ((S_X0, P_U, 1835008), (S_WS, P_WS, WS_BYTES), (S_OUT, P_OUT, 1835008)):
        a(f"s_mov_b32 s{n}, s{p}\ns_mov_b32 s{n + 1}, s{p + 1}\ns_mov_b32 s{n + 2}, {size}\ns_mov_b32 s{n + 3}, 0x20000")
    a(f"buffer_load_dwordx2 v[104:105], off, {srd(S_WS)}, 0 offset:{EPOCH} sc1")
    for n, p, role in ((S_W1, P_W1, sR1), (S_W2, P_W2, sR2)):
        a(f"s_mov_b32 s{n}, s{p}\ns_mov_b32 s{n + 1}, s{p + 1}\ns_cmp_lg_u32 s{role}, 0\ns_cselect_b32 s{n + 2}, {0 if OPT['now'] & (1 if n == S_W1 else 2) else 7340032}, 0\ns_mov_b32 s{n + 3}, 0x20000")


sAUX = 75


def code_warm(r):
    if not OPT["warm"]:
        return
    a(f"""s_lshl_b32 s{sT0}, s{sJ}, 2
s_add_u32 s{sT0}, s{sT0}, s{sWAVE}
s_mul_i32 s{sT0}, s{sT0}, 640
v_lshl_add_u32 v{r}, v{vLANE}, 7, s{sT0}
s_mov_b32 s{sT1}, ktab-L_entry+8192
v_min_u32 v{r}, s{sT1}, v{r}
s_sub_u32 s28, s{sTAB}, ktab-L_entry
s_subb_u32 s29, s{sTAB + 1}, 0
s_mov_b64 exec, 31
global_load_dword v{r}, v{r}, s[28:29]
s_mov_b64 exec, -1""")


def page_warm(r):
    if not OPT["tlb"]:
        return
    a(f"""v_lshlrev_b32 v{r}, 21, v{vLANE}
v_add_u32 v{r}, 0x1fff80, v{r}
s_mov_b64 exec, 0x3ff
buffer_load_dword v{r}, v{r}, {srd(S_WS)}, 0 offen
s_mov_b64 exec, 1
buffer_load_dword v{r + 1}, off, {srd(S_OUT)}, 0
global_load_dword v{r + 2}, v{vLANE}, {sp(P_B1)}
global_load_dword v{r + 3}, v{vLANE}, {sp(P_B2)}
s_mov_b64 exec, -1""")


def fill(base, n, r, sidx, stride, tag="st0"):
    a(f"""s_lshl_b32 s{sT0}, s{sidx}, 12
s_lshl_b32 s{sT1}, s{sWAVE}, 10
s_add_u32 s{sT0}, s{sT0}, s{sT1}
s_add_u32 s{sT0}, s{sT0}, {base}""")
    for k in range(4):
        a(f"v_mov_b32 v{r + k}, -1")
    for k in range(n):
        a(f"buffer_store_dwordx4 {vr(r, 4)}, v{vL16}, {srd(S_WS)}, s{sT0} offen sc1{' nt' if OPT['fnt'] else ''}", tag=tag)
        if k + 1 < n:
            a(f"s_add_u32 s{sT0}, s{sT0}, {stride}")


def aux_loads():
    a(f"""s_and_b32 s{sAUX}, s{sJ}, 3
s_lshl_b32 s{sAUX}, s{sAUX}, 3
s_add_u32 s{sAUX}, s{sAUX}, s{sX}
s_lshl_b32 s16, s{sAUX}, 2
s_add_u32 s16, s16, s{sWAVE}
s_mul_i32 s{sT1}, s16, {16 * 896}
s_mul_i32 s17, s{sWAVE}, {16 * 912}
s_mov_b32 m0, s17
s_mov_b32 exec_hi, 0xffffff""")
    for k in range(16):
        if k:
            a(f"s_add_u32 m0, m0, 912\ns_add_u32 s{sT1}, s{sT1}, 896")
        a(f"buffer_load_dwordx4 v{vL16}, {srd(S_X0)}, s{sT1} offen {'nt ' if OPT['xnt'] & 2 else ''}lds", res_w=[f"x0"])
    a("s_mov_b64 exec, -1")


def aux_work():
    XR = 8
    a(f"""v_mov_b32 v76, 0
v_mov_b32 v77, 0
v_mov_b32 v78, 0
v_mov_b32 v79, 0
s_lshl_b32 s{sT1}, s16, {8 if emode(4) == "C" else 7}
s_add_u32 s{sT1}, s{sT1}, {ST1}
s_lshl_b32 s18, s{sAUX}, 7
s_add_u32 s18, s18, {ST0}
s_mov_b64 exec, {"0xffff" if emode(4) == "C" else "0xff"}""")
    a(f"buffer_store_dwordx4 v[76:79], v{vL16}, {srd(S_WS)}, s{sT1} offen sc1", tag="st0")
    a(f"""s_mov_b64 exec, -1
v_and_b32 v2, 15, v{vLANE}
v_lshrrev_b32 v3, 4, v{vLANE}
v_mul_u32_u24 v4, 912, v2
v_lshl_add_u32 v4, v3, 4, v4
v_add_u32 v4, s17, v4
v_lshrrev_b32 v6, 2, v2
v_cmp_eq_u32 vcc, v6, v3
v_bfe_u32 v6, v2, 1, 2
v_lshlrev_b32 v6, 7, v6
v_lshrrev_b32 v7, 3, v2
v_lshl_add_u32 v6, v7, 4, v6
v_and_b32 v7, 1, v2
v_lshl_add_u32 v6, v7, 2, v6
s_lshl_b32 s{sT0}, s{sWAVE}, 5
s_add_u32 s{sT0}, s{sT0}, 60000
v_add_u32 v6, s{sT0}, v6
v_mov_b32 v7, 61024
v_cndmask_b32 v6, v7, v6, vcc
v_lshrrev_b32 v117, 3, v{vLANE}
v_cmp_eq_u32 vcc, s{sWAVE}, v117
v_lshlrev_b32 v117, 12, v117
v_and_b32 v7, 7, v{vLANE}
v_lshl_add_u32 v117, v7, 4, v117
v_mov_b32 v7, {OOB}
v_cndmask_b32 v117, v7, v117, vcc
v_mov_b32 v80, 0x3f803f80
v_mov_b32 v81, 0x3f803f80
v_mov_b32 v82, 0x3f803f80
v_mov_b32 v83, 0x3f803f80""")
    if OPT["stamps"] == 1:
        a.wait_vm0()
    stamp("aux data")
    for k in range(14):
        a(f"ds_read_b128 {vr(XR + 4 * k, 4)}, v4 offset:{64 * k}", res_r=["x0"])
    for k in range(14):
        x = vr(XR + 4 * k, 4)
        a(f"v_mfma_f32_16x16x32_bf16 v[64:67], v[80:83], {x}, {'v[64:67]' if k else 0}")
        a(f"v_mfma_f32_16x16x32_bf16 v[68:71], {x}, {x}, {'v[68:71]' if k else 0}")
    a(f"""v_cndmask_b32 v68, v68, v69, {sp(sM1)}
v_cndmask_b32 v70, v70, v71, {sp(sM1)}
v_cndmask_b32 v68, v68, v70, {sp(sM2)}""")
    a("ds_write2_b32 v6, v64, v68 offset0:0 offset1:2")
    a.barrier()
    a(f"ds_read_b128 v[64:67], v{vL16} offset:60000")
    a(f"buffer_store_dwordx4 v[64:67], v117, {srd(S_WS)}, s18 offen sc1", tag="st0")
    stamp("aux st")
    nonce_take()
    flag_put(0, f"s_add_u32 s{sT0}, s{sAUX}, 224\ns_lshl_b32 s{sT0}, s{sT0}, 6", 72, "st0")


def xt_loads():
    a(f"""s_lshl_b32 s{sT0}, s{sPAIR}, 1
s_lshr_b32 s{sT1}, s{sWAVE}, 1
s_add_u32 s{sT0}, s{sT0}, s{sT1}
s_mul_i32 s{sT1}, s{sT0}, 9363
s_lshr_b32 s{sT1}, s{sT1}, 16
s_mul_i32 s{sT2}, s{sT1}, 7
s_sub_u32 s{sT0}, s{sT0}, s{sT2}
s_lshl_b32 s{sT0}, s{sT0}, 1
s_and_b32 s{sT2}, s{sWAVE}, 1
s_add_u32 s{sT0}, s{sT0}, s{sT2}
s_mul_i32 s{sT2}, s{sT1}, {32 * 896}
s_lshl_b32 s{sT3}, s{sT0}, 6
s_add_u32 s{sT2}, s{sT2}, s{sT3}
v_lshrrev_b32 v2, 2, v{vLANE}
v_mul_u32_u24 v2, 896, v2
v_and_b32 v3, 3, v{vLANE}
v_lshl_add_u32 v2, v3, 4, v2
s_mul_i32 s22, s{sWAVE}, {GST}
s_mov_b32 m0, s22
s_mul_i32 s23, s{sT1}, {BS}""")
    a(f"buffer_load_dwordx4 v2, {srd(S_X0)}, s{sT2} offen {'nt ' if OPT['xnt'] & 1 else ''}lds", res_w=["x0"])
    a(f"s_add_u32 m0, m0, 1024\ns_add_u32 s{sT2}, s{sT2}, {16 * 896}")
    a(f"buffer_load_dwordx4 v2, {srd(S_X0)}, s{sT2} offen {'nt ' if OPT['xnt'] & 1 else ''}lds", res_w=["x0"])
    a(f"""s_lshl_b32 s{sT0}, s{sT0}, 11
s_add_u32 s23, s23, s{sT0}
s_add_u32 s23, s23, {X0}
v_lshrrev_b32 v2, 4, v{vLANE}
v_bfe_u32 v36, v{vLANE}, 2, 2
v_lshl_add_u32 v36, v2, 3, v36
v_lshlrev_b32 v36, 6, v36
v_lshl_add_u32 v36, v3, 3, v36
v_add_u32 v36, s22, v36
v_and_b32 v37, 15, v{vLANE}
v_lshlrev_b32 v37, 6, v37
v_lshl_add_u32 v37, v2, 4, v37""")


def xt_work():
    for u in range(2):
        for j in range(2):
            a(f"ds_read_b64_tr_b16 {vr(40 + 4 * u + 2 * j, 2)}, v36 offset:{j * 256 + u * 32}", res_r=["x0"])
    for u in range(2):
        a(f"buffer_store_dwordx4 {vr(40 + 4 * u, 4)}, v37, {srd(S_WS)}, s23 offen offset:{1024 * u} sc1", tag="st0")


def xt_poll_addr(ra, t):
    a(f"""s_lshl_b32 s{sT0}, s{sWAVE}, 4
v_and_b32 v{t}, 15, v{vLANE}
v_add_u32 v{t}, s{sT0}, v{t}
v_mul_u32_u24 v{t}, 7, v{t}
s_lshr_b32 s{sT0}, s{sPAIR}, 5
v_add_u32 v{t}, s{sT0}, v{t}
v_lshrrev_b32 v{t}, 1, v{t}
s_lshl_b32 s{sT0}, s{sWAVE}, 3
s_add_u32 s{sT0}, s{sT0}, 224
v_and_b32 v{ra}, 7, v{vLANE}
v_add_u32 v{ra}, s{sT0}, v{ra}
v_cmp_gt_u32 vcc, 16, v{vLANE}
v_cndmask_b32 v{ra}, v{ra}, v{t}, vcc""")


def e1_poll_addr(ra):
    a(f"s_lshl_b32 s{sT0}, s{sWAVE}, 6\nv_add_u32 v{ra}, s{sT0}, v{vLANE}")


def nonce_take():
    a(f"v_readfirstlane_b32 s{sNONCE}, v104\nv_readfirstlane_b32 s{sNONCE + 1}, v105")
    a(f"s_add_u32 s{sNONCE}, s{sNONCE}, 1")
    a(f"s_addc_u32 s{sNONCE + 1}, s{sNONCE + 1}, 0")


def nonce_retire():
    l = label("nr")
    a(f"s_or_b32 s{sT0}, s2, s{sWAVE}")
    a(f"s_cmp_lg_u32 s{sT0}, 32")
    a(f"s_cbranch_scc1 {l}")
    a(f"v_mov_b32 v110, s{sNONCE}\nv_mov_b32 v111, s{sNONCE + 1}\ns_mov_b64 exec, 1")
    a(f"buffer_store_dwordx2 v[110:111], off, {srd(S_WS)}, 0 offset:{EPOCH} sc1", optional=True)
    a("s_mov_b64 exec, -1")
    a(f"{l}:")


def flag_put(edge, sprod, r, tag):
    a(f"s_lshl_b32 s{sT0}, s{sprod}, 6" if isinstance(sprod, int) else sprod)
    a(f"""s_lshl_b32 s{sT1}, s{sWAVE}, 15
s_add_u32 s{sT0}, s{sT0}, s{sT1}
s_add_u32 s{sT0}, s{sT0}, {FL + edge * 0x20000}
v_lshlrev_b32 v{r + 4}, 12, v{vLANE}
v_and_b32 v{r + 4}, 0x4000, v{r + 4}
v_and_b32 v{r}, 3, v{vLANE}
v_lshl_add_u32 v{r + 4}, v{r}, 4, v{r + 4}
v_mov_b32 v{r}, s{sNONCE}
v_mov_b32 v{r + 1}, s{sNONCE + 1}
v_mov_b32 v{r + 2}, s{sNONCE}
v_mov_b32 v{r + 3}, s{sNONCE + 1}""")
    a.wait_tag(tag)
    a.barrier()
    a("s_mov_b64 exec, 0xff")
    a(f"buffer_store_dwordx4 {vr(r, 4)}, v{r + 4}, {srd(S_WS)}, s{sT0} offen sc1", tag="flag")
    a("s_mov_b64 exec, -1")


def emode(e):
    return OPT["em"][e - 1]


def hinted(e):
    return emode(e) in "HSMGC"


def sentinel(e):
    return emode(e) in "SDM"


def flagged(e):
    return emode(e) in "FHG"


def armed(layer):
    return any(sentinel(e + 4 * layer) for e in (1, 2, 3))


def wait_edge(e, r, ra_full, ra_samp):
    if hinted(e):
        poll_issue(e + 10, r, ra_samp)
        poll_take(r, ra_samp)
    elif emode(e) == "D":
        a.wait_tag("pub")
    else:
        a.wait_tag("flag")
    if flagged(e):
        poll_issue(e, r, ra_full)
        poll_take(r, ra_full)


def hint_prep(edge, sprod, r):
    a(f"s_lshl_b32 s{sT0}, s{sprod}, 6" if isinstance(sprod, int) else sprod)
    a(f"""s_lshl_b32 s{sT1}, s{sWAVE}, 15
s_add_u32 s{sT0}, s{sT0}, s{sT1}
s_add_u32 s{sT0}, s{sT0}, {FL + edge * 0x20000}
v_lshlrev_b32 v{r + 4}, 12, v{vLANE}
v_and_b32 v{r + 4}, 0x4000, v{r + 4}
v_and_b32 v{r}, 3, v{vLANE}
v_lshl_add_u32 v{r + 4}, v{r}, 4, v{r + 4}
v_add_u32 v{r + 4}, s{sT0}, v{r + 4}
v_mov_b32 v{r}, s{sNONCE}
v_mov_b32 v{r + 1}, s{sNONCE + 1}
v_mov_b32 v{r + 2}, s{sNONCE}
v_mov_b32 v{r + 3}, s{sNONCE + 1}""")


def hint_put(r):
    a("s_mov_b64 exec, 0xff")
    a(f"buffer_store_dwordx4 {vr(r, 4)}, v{r + 4}, {srd(S_WS)}, 0 offen sc1", tag="hint")
    a("s_mov_b64 exec, -1")


def poll_issue(edge, r, ra=None):
    ra = r + 2 if ra is None else ra
    a(f"""s_lshl_b32 s{sT3}, s{sX}, 14
s_add_u32 s{sT3}, s{sT3}, {FL + edge * 0x20000}
v_lshl_add_u32 v{ra}, v{ra}, 6, s{sT3}
buffer_load_dwordx2 {vr(r, 2)}, v{ra}, {srd(S_WS)}, 0 offen sc1""")


def poll_take(r, ra=None):
    ra = r + 2 if ra is None else ra
    ok, lp = label("pok"), label("plp")
    a(f"v_cmp_ne_u64 vcc, {sp(sNONCE)}, {vr(r, 2)}")
    a(f"s_cbranch_vccz {ok}")
    a(f"s_mov_b32 s{sCNT}, 0")
    a(f"{lp}:")
    if OPT["slp"]:
        a(f"s_sleep {OPT['slp']}")
    a(f"buffer_load_dwordx2 {vr(r, 2)}, v{ra}, {srd(S_WS)}, 0 offen sc1")
    a("s_waitcnt vmcnt(0)")
    a(f"v_cmp_ne_u64 vcc, {sp(sNONCE)}, {vr(r, 2)}")
    a(f"s_add_u32 s{sCNT}, s{sCNT}, 1")
    a(f"s_cbranch_vccz {ok}")
    a(f"s_cmp_lt_u32 s{sCNT}, 0x100000")
    a(f"s_cbranch_scc1 {lp}")
    a(f"{ok}:")


sW1O, sW2O = 98, 99
sROT1, sROT2 = 33, 35
sW1E, sW2E = 78, 79


def w_setup():
    a(f"""v_lshrrev_b32 v2, 3, v{vLANE}
v_and_b32 v3, 7, v{vLANE}
v_bfe_u32 v4, v{vLANE}, 4, 1
v_lshlrev_b32 v4, 2, v4
v_xor_b32 v3, v3, v4
v_lshlrev_b32 v3, 4, v3
v_mul_u32_u24 v{vD1}, 3584, v2
v_add_u32 v{vD1}, v{vD1}, v3
v_lshl_add_u32 v{vD2}, v2, 12, v3
v_bfe_u32 v2, v{vLANE}, 2, 2
v_lshrrev_b32 v3, 5, v{vLANE}
v_bfe_u32 v4, v{vLANE}, 4, 1
v_and_b32 v5, 3, v{vLANE}
v_lshlrev_b32 v5, 3, v5
v_lshl_add_u32 v5, v4, 5, v5
v_lshrrev_b32 v4, 1, v2
v_lshl_add_u32 v5, v4, 6, v5
s_lshr_b32 s{sT0}, s{sWAVE}, 1
s_lshl_b32 s{sT0}, s{sT0}, 6
v_xor_b32 v5, s{sT0}, v5
v_lshl_add_u32 v5, v2, 7, v5
s_mul_i32 s{sT1}, s{sWAVE}, 24576
s_add_u32 s{sT1}, s{sT1}, {W2L}
v_add_u32 v5, s{sT1}, v5
v_lshl_add_u32 v{vT1a}, v3, 10, v5
v_xor_b32 v{vT1b}, 64, v{vT1a}
v_lshl_add_u32 v{vT2a}, v3, 9, v5
v_xor_b32 v{vT2b}, 64, v{vT2a}
s_mul_i32 s{sW1O}, s{sWAVE}, {512 * 3584}
s_lshl_b32 s{sT0}, s{sNT}, 7
s_add_u32 s{sW1O}, s{sW1O}, s{sT0}
s_mul_i32 s{sW2O}, s{sWAVE}, {448 * 4096}
s_lshl_b32 s{sT0}, s{sST}, 7
s_add_u32 s{sW2O}, s{sW2O}, s{sT0}
s_mov_b32 s{sWOFF}, s{sT1}""")
    if OPT["rot"] and OPT["map18"] == 1:
        if OPT["rot"] == 2:
            a(f"""s_add_u32 s{sROT1}, s{sDT1}, s{sX}
s_and_b32 s{sROT1}, s{sROT1}, 7
s_add_u32 s{sROT2}, s{sDT2}, s{sX}
s_cmp_ge_u32 s{sROT2}, 7
s_cselect_b32 s{sT0}, 7, 0
s_sub_u32 s{sROT2}, s{sROT2}, s{sT0}""")
        else:
            a(f"s_mov_b32 s{sROT1}, s{sDT1}\ns_mov_b32 s{sROT2}, s{sDT2}")
    elif OPT["rot"] == 3:
        a(f"""s_and_b32 s{sT0}, s{sDT1}, 3
s_lshr_b32 s{sT1}, s{sDT1}, 2
s_add_u32 s{sT1}, s{sT1}, 2
s_mul_i32 s{sROT1}, s{sT0}, s{sT1}
s_min_u32 s{sROT1}, s{sROT1}, 7
s_and_b32 s{sT0}, s{sDT2}, 3
s_lshr_b32 s{sT1}, s{sDT2}, 2
s_add_u32 s{sT1}, s{sT1}, 2
s_mul_i32 s{sROT2}, s{sT0}, s{sT1}
s_min_u32 s{sROT2}, s{sROT2}, 5""")
    elif OPT["rot"]:
        a(f"""s_and_b32 s{sT0}, s{sDT1}, 3
s_lshl_b32 s{sT0}, s{sT0}, 1
s_lshr_b32 s{sT1}, s{sDT1}, 2
s_add_u32 s{sT0}, s{sT0}, s{sT1}
s_and_b32 s{sROT1}, s{sT0}, 7
s_and_b32 s{sT0}, s{sDT2}, 3
s_lshl_b32 s{sT0}, s{sT0}, 1
s_lshr_b32 s{sT1}, s{sDT2}, 2
s_add_u32 s{sT0}, s{sT0}, s{sT1}
s_min_u32 s{sROT2}, s{sT0}, 6""")
        if OPT["map18"] == 2:
            a(f"s_mov_b32 s{sROT2}, s{sDT2}")
    else:
        a(f"s_mov_b32 s{sROT1}, 0\ns_mov_b32 s{sROT2}, 0")
    a(f"""s_add_u32 s{sW1E}, s{sW1O}, {512 * 3584}
s_mul_i32 s{sT0}, s{sROT1}, {64 * 3584}
s_add_u32 s{sW1O}, s{sW1O}, s{sT0}
s_add_u32 s{sW2E}, s{sW2O}, {448 * 4096}
s_mul_i32 s{sT0}, s{sROT2}, {64 * 4096}
s_add_u32 s{sW2O}, s{sW2O}, s{sT0}""")


WORDER = list(range(0, 4)) + list(range(32, 36)) + list(range(4, 32)) + list(range(36, 60))


def w_dma(pos, half):
    slot = pos % 12
    n = WORDER[pos]
    pol = ("", "nt ", "sc1 ", "sc0 sc1 ", "sc0 sc1 nt ")[OPT["wnt"]] if (OPT["wnta"] or pos < 2 * OPT["wg"]) else ""
    g = [Ins(f"s_add_u32 m0, s{sWOFF}, {slot * 2048 + half * 1024}")]
    if n < 32:
        g.append(Ins(f"s_add_u32 s{sW1O}, s{sW1O}, {8 * 3584}") if (n or half) else Ins("s_nop 0"))
        if n and n % 4 == 0 and half == 0:
            g += [Ins(f"s_cmp_eq_u32 s{sW1O}, s{sW1E}"), Ins(f"s_cselect_b32 s3, {512 * 3584}, 0"), Ins(f"s_sub_u32 s{sW1O}, s{sW1O}, s3")]
        g.append(Ins(f"buffer_load_dwordx4 v{vD1}, {srd(S_W1)}, s{sW1O} offen {pol}lds", res_w=[f"slot{slot}"]))
    else:
        g.append(Ins(f"s_add_u32 s{sW2O}, s{sW2O}, {8 * 4096}") if (n > 32 or half) else Ins("s_nop 0"))
        if n > 32 and n % 4 == 0 and half == 0:
            g += [Ins(f"s_cmp_eq_u32 s{sW2O}, s{sW2E}"), Ins(f"s_cselect_b32 s3, {448 * 4096}, 0"), Ins(f"s_sub_u32 s{sW2O}, s{sW2O}, s3")]
        g.append(Ins(f"buffer_load_dwordx4 v{vD2}, {srd(S_W2)}, s{sW2O} offen {pol}lds", res_w=[f"slot{slot}"]))
    return g


def w_tr(pos):
    slot = pos % 12
    n = WORDER[pos]
    g = []
    for nb in range(2):
        for j in range(2):
            if n < 32:
                r = (n * 2 + nb) * 4 + 2 * j
                g.append(Ins(f"ds_read_b64_tr_b16 a[{r}:{r + 1}], v{(vT1a, vT1b)[nb]} offset:{slot * 2048 + j * 512}", res_r=[f"slot{slot}"]))
            else:
                r = 128 + ((n - 32) * 2 + nb) * 4 + 2 * j
                g.append(Ins(f"ds_read_b64_tr_b16 v[{r}:{r + 1}], v{(vT2a, vT2b)[nb]} offset:{slot * 2048 + j * 1024}", res_r=[f"slot{slot}"]))
    return g


def w_all_upfront():
    for n in range(12):
        a.put(w_dma(n, 0)); a.put(w_dma(n, 1))
    for n in range(48):
        a.put(w_tr(n))
        if n >= 1:
            a.put(w_dma(n + 11, 0)); a.put(w_dma(n + 11, 1))
    a.put(w_dma(59, 0)); a.put(w_dma(59, 1))
    a.wait_vm0()
    a.wait_lgkm0()


PR = 56
TAB = 104


def kgen_loads():
    a(f"""s_lshl_b32 s{sT0}, s{sPAIR}, 10
s_lshl_b32 s{sT1}, s{sWAVE}, 8
s_add_u32 s{sT0}, s{sT0}, s{sT1}
v_lshl_add_u32 v3, v{vLANE}, 2, s{sT0}""")
    for k, p in enumerate((P_ARE, P_AIM, P_BRE, P_BIM, P_CRE, P_CIM)):
        a(f"global_load_dword v{PR + k}, v3, {sp(p)}{' nt' if OPT['pnt'] else ''}")


def kgen_table_addr():
    l = label("pc")
    a(f"s_getpc_b64 {sp(sTAB)}")
    a(f"{l}:")
    a(f"s_add_u32 s{sTAB}, s{sTAB}, ktab-{l}")
    a(f"s_addc_u32 s{sTAB + 1}, s{sTAB + 1}, 0")


def kgen_table_load():
    kgen_table_addr()
    a(f"s_lshr_b32 s{sT0}, s{sWAVE}, 1\ns_lshl_b32 s{sT0}, s{sT0}, 5\nv_lshl_add_u32 v75, v0, 5, s{sT0}")


KBG = []


def kgen(hooks):
    F = {e: 2 * e for e in range(1, 8)}
    Qr = {1: 16, 2: 18, 3: 20, 4: 22}
    QN = [24, 26]
    Z1, Z2, C0, C1 = 28, 30, 32, 34
    CN = [36, 38]
    T0, T1 = 62, 64
    CV = [66, 67, 68, 69]
    A2, B2, DT = 70, 71, 72
    ACC = 76
    QF = 88
    PF = 40
    vG, vF = 73, 74
    a(f"""s_mul_i32 s{sT0}, s{sWAVE}, {GST}
v_lshl_add_u32 v{vG}, v{vLANE}, 2, s{sT0}
v_and_b32 v2, 15, v{vLANE}
v_mul_u32_u24 v2, {GROW}, v2
v_lshrrev_b32 v3, 4, v{vLANE}
v_lshl_add_u32 v2, v3, 4, v2
v_add_u32 v{vF}, s{sT0}, v2""")
    a.begin()
    a(f"""s_lshr_b32 s{sT0}, s{sWAVE}, 1
s_lshl_b32 s{sT0}, s{sT0}, 4
s_lshr_b32 s{sT0}, s{sLDT}, s{sT0}
s_lshl_b32 s{sT0}, s{sT0}, 16
v_mov_b32 v2, {f32(math.log2(math.e))}
v_mul_f32 v2, s{sT0}, v2
v_exp_f32 v2, v2
v_cvt_pk_bf16_f32 v2, v2, v2
v_lshlrev_b32 v{DT}, 16, v2
s_and_b32 s{sD1}, s{sD0}, 0xffff0000
s_lshl_b32 s{sD0}, s{sD0}, 16""")
    cvi = [0]

    def hook(name):
        if name is not None and name not in hooks:
            return
        a_body = space_ds(a.end(), OPT["lag"], OPT["gap"])
        m, rest = merge(a_body, KBG[:], 20, OPT["ev_kg"])
        del KBG[:]
        a.put(m)
        put_all(rest)
        if name is not None:
            hooks[name]()
            a.begin()

    def row(r, src, neg=False):
        c = CV[cvi[0] % 4]
        cvi[0] += 1
        a(f"v_cvt_pk_bf16_f32 v{c}, v{src}, {'-' if neg else ''}v{src + 1}")
        a(f"ds_write_b32 v{vG}, v{c} offset:{r * GROW}")

    def reads(dst, tile):
        for ks in range(4):
            a(f"ds_read_b128 {vr(dst + 4 * ks, 4)}, v{vF} offset:{tile * 16 * GROW + ks * 64}")

    def mfmas(t, first):
        for ks in range(4):
            c = "0" if (first and ks == 0) else vr(ACC + 4 * t, 4)
            a(f"v_mfma_f32_16x16x32_bf16 {vr(ACC + 4 * t, 4)}, {vr(PF + 4 * ks, 4)}, {vr(QF + 4 * ks, 4)}, {c}")

    def direct(d, scale):
        if scale != 1:
            a(f"v_mul_f32 v{T0}, {f32(scale)}, v{A2}")
            a(f"v_mul_f32 v{T1}, {f32(scale)}, v{B2}")
            x, y = T0, T1
        else:
            x, y = A2, B2
        a(f"v_fract_f32 v{T1}, v{y}")
        a(f"v_exp_f32 v{T0}, v{x}")
        a(f"v_cos_f32 v{d}, v{T1}")
        a(f"v_sin_f32 v{d + 1}, v{T1}")
        a(f"v_pk_mul_f32 {vr(d, 2)}, {vr(d, 2)}, {vr(T0, 2)} op_sel_hi:[1,0]")

    for rd in range(2):
        def up(d, s):
            a(f"v_lshlrev_b32 v{d}, 16, v{s}" if rd == 0 else f"v_and_b32 v{d}, s0, v{s}")
        up(A2, PR); up(B2, PR + 1)
        up(QN[0], PR + 2); up(QN[0] + 1, PR + 3)
        up(QN[1], PR + 4); up(QN[1] + 1, PR + 5)
        a(f"v_mul_f32 v{A2}, v{DT}, v{A2}")
        a(f"v_mul_f32 v{B2}, v{DT}, v{B2}")
        a(f"v_pk_mul_f32 {vr(QN[0], 2)}, {vr(QN[0], 2)}, {vr(DT, 2)} op_sel_hi:[1,0]")
        a(f"v_mul_f32 v{A2}, {f32(math.log2(math.e))}, v{A2}")
        a(f"v_mul_f32 v{B2}, {f32(1 / (2 * math.pi))}, v{B2}")
        cmul2((C0, QN[1], QN[0]))
        direct(F[1], 1)
        if rd == 1:
            mfmas(2, True)
        direct(Z1, 128)
        hook(5 * rd)
        cmul2((F[2], F[1], F[1]), (Z2, Z1, Z1))
        cmul2((F[4], F[2], F[2]), (F[3], F[2], F[1]))
        cmul2((Qr[1], F[4], F[4]), (C1, C0, Z1))
        a(f"v_mov_b32 v{CV[3]}, 0x3f80")
        a(f"ds_write_b32 v{vG}, v{CV[3]}")
        cmul2((Qr[2], Qr[1], Qr[1]), (F[5], F[4], F[1]))
        row(1, Qr[1], True)
        cmul2((Qr[3], Qr[2], Qr[1]), (Qr[4], Qr[2], Qr[2]))
        row(2, Qr[2], True)
        cmul2((F[6], F[4], F[2]), (F[7], F[4], F[3]))
        row(3, Qr[3], True)
        row(4, Qr[4], True)
        cur = {1: Qr[1], 2: Qr[2], 3: Qr[3], 0: Qr[4]}
        free = list(QN) + [CN[0]]
        j = 5
        while j < 16:
            js = [j] + ([j + 1] if j + 1 < 16 else [])
            ps = []
            for jj in js:
                d = free.pop(0)
                ps.append((d, cur[jj % 4], Qr[4]))
            cmul2(*ps)
            for jj, p in zip(js, ps):
                if cur[jj % 4] != Qr[4]:
                    free.append(cur[jj % 4])
                cur[jj % 4] = p[0]
                row(jj, p[0], True)
            j += 2
        reads(QF, 0)
        hook(5 * rd + 1)
        TA, TB = QN
        row(16, C0); row(24, C1)
        for e in range(1, 8):
            cmul2((TA, C0, F[e]), (TB, C1, F[e]))
            row(16 + e, TA); row(24 + e, TB)
        reads(PF, 1)
        hook(5 * rd + 2)
        ca, cb = C0, C1
        na, nb_ = CN
        def adv():
            nonlocal ca, cb, na, nb_
            cmul2((na, ca, Z2), (nb_, cb, Z2))
            ca, cb, na, nb_ = na, nb_, ca, cb
        adv()
        row(32, ca); row(36, cb)
        for e in range(1, 4):
            cmul2((TA, ca, F[2 * e]), (TB, cb, F[2 * e]))
            row(32 + e, TA); row(36 + e, TB)
        mfmas(0, rd == 0)
        for k in range(2):
            adv()
            row(40 + 4 * k, ca); row(42 + 4 * k, cb)
            cmul2((TA, ca, F[4]), (TB, cb, F[4]))
            row(41 + 4 * k, TA); row(43 + 4 * k, TB)
        reads(PF, 2)
        hook(5 * rd + 3)
        for k in range(4):
            adv()
            row(48 + 2 * k, ca); row(49 + 2 * k, cb)
        cmul2((na, ca, Z2))
        row(56, na)
        mfmas(1, rd == 0)
        reads(PF, 3)
        hook(5 * rd + 4)
    hook(None)
    a(f"s_mul_i32 s{sT0}, s{sWAVE}, {GST}")
    a(f"v_add_u32 v{vF}, s{sT0}, v{vL16}")
    a(f"v_mov_b32 v{CV[0]}, 0")
    for k in range(8):
        a(f"v_and_b32 v{2 + 2 * k}, s1, v{TAB + k}")
        a(f"v_lshrrev_b32 v{3 + 2 * k}, 16, v{TAB + k}")
    for t in range(2):
        a(f"ds_write_b128 v{vF}, {vr(ACC + 4 * t, 4)} offset:{TOFF + t * 1024}")
    mfmas(2, False)
    a(f"ds_write_b32 v{vG}, v{CV[0]} offset:{TOFF + 3072}")
    a("v_and_b32 v18, 0xffff, v0\nv_lshrrev_b32 v19, 16, v0\nv_and_b32 v20, 0xffff, v1")
    a(f"ds_write_b128 v{vF}, {vr(ACC + 8, 4)} offset:{TOFF + 2048}")


def kzero(r):
    a(f"""v_mov_b32 v{r}, 0
v_mov_b32 v{r + 1}, 0
v_mov_b32 v{r + 2}, 0
v_mov_b32 v{r + 3}, 0
v_bfe_u32 v{r + 4}, v{vLANE}, 1, 3
v_mul_u32_u24 v{r + 4}, {KST}, v{r + 4}
v_and_b32 v{r + 5}, 1, v{vLANE}
v_lshl_add_u32 v{r + 4}, v{r + 5}, 4, v{r + 4}
s_and_b32 s{sT0}, s{sWAVE}, 1
s_mul_i32 s{sT0}, s{sT0}, {UST}
v_add_u32 v{r + 5}, s{sT0}, v{vL16}""")
    return [f"ds_write_b128 v{r + 4}, {vr(r, 4)} offset:4096", f"ds_write_b128 v{r + 5}, {vr(r, 4)} offset:{UB}"]


def kaddr(r):
    a(f"""s_lshr_b32 s{sT0}, s{sWAVE}, 1
s_and_b32 s{sT1}, s{sWAVE}, 1
s_lshl_b32 s{sT1}, s{sT1}, 11
v_lshl_add_u32 v{r + 3}, v{vLANE}, 5, s{sT1}""")
    for c in range(4):
        a(f"s_cmp_lg_u32 s{sT0}, 0")
        a(f"s_cselect_b32 s{sT2}, {KSLOT[1][c]}, {KSLOT[0][c]}")
        a(f"s_mul_i32 s{sT2}, s{sT2}, {KST}")
        a(f"v_add_u32 v{r + c}, s{sT2}, v{r + 3}")


def kexpand(mid):
    AD, VAL = 2, 22
    P0, P1, P2, P3 = 2, 12, 88, 96
    a.barrier()
    for k in range(19):
        a(f"ds_read2st64_b32 {vr(VAL + 2 * k, 2)}, v{AD + k} offset0:{TOFF // 256} offset1:{TOFF // 256 + GST // 256}")
    mid()
    kaddr(60)
    zw = kzero(104)
    for k in range(19):
        a(f"v_add_f32 v{VAL + 2 * k}, v{VAL + 2 * k}, v{VAL + 2 * k + 1}")
        if k:
            a(f"v_cvt_pk_bf16_f32 v{(P0 if k & 1 else P1) + (k - 1) // 2}, v{VAL + 2 * k - 2}, v{VAL + 2 * k}")
    a.barrier()
    a.begin()
    for l in zw:
        a(l)
    for c, P in ((0, P0), (1, P1)):
        a(f"ds_write_b128 v{60 + c}, {vr(P, 4)}")
        a(f"ds_write_b128 v{60 + c}, {vr(P + 4, 4)} offset:16")
    for c, P, src in ((2, P2, P0), (3, P3, P1)):
        for i in range(4):
            a(f"v_pk_mov_b32 {vr(P + 2 * i, 2)}, {vr(src + 2 * i, 2)}, {vr(src + 2 * i + 2, 2)} op_sel:[1,0]")
        a(f"ds_write_b128 v{60 + c}, {vr(P, 4)}")
        a(f"ds_write_b128 v{60 + c}, {vr(P + 4, 4)} offset:16")
    return a.end()


def kcopies():
    R, E, M = 2, 12, 22
    kaddr(40)
    a(f"""ds_read_b128 {vr(R, 4)}, v40
ds_read_b128 {vr(R + 4, 4)}, v40 offset:16
ds_read_b64 {vr(R + 8, 2)}, v40 offset:32""")
    for l in kzero(32):
        a(l)
    for i in range(9):
        a(f"v_alignbit_b32 v{E + i}, v{R + i + 1}, v{R + i}, 16")
    a(f"ds_write_b128 v41, {vr(E, 4)}")
    a(f"ds_write_b128 v41, {vr(E + 4, 4)} offset:16")
    for i in range(4):
        a(f"v_pk_mov_b32 {vr(M + 2 * i, 2)}, {vr(R + 2 * i, 2)}, {vr(R + 2 * i + 2, 2)} op_sel:[1,0]")
    a(f"ds_write_b128 v42, {vr(M, 4)}")
    a(f"ds_write_b128 v42, {vr(M + 4, 4)} offset:16")
    for i in range(4):
        a(f"v_pk_mov_b32 {vr(R + 2 * i, 2)}, {vr(E + 2 * i, 2)}, {vr(E + 2 * i + 2, 2)} op_sel:[1,0]")
    a(f"ds_write_b128 v43, {vr(R, 4)}")
    a(f"ds_write_b128 v43, {vr(R + 4, 4)} offset:16")


GX = 80
CS = 64
cvA, cvB, cvZ, cvXW, cvXR, cvO, cvU, cvX, cvH, cvP = 112, 113, 114, 115, 116, 117, 118, 119, 100, 108
STUBS = []


def conv_poll1():
    r = cvP
    a(f"""v_lshrrev_b32 v{r}, 3, v{vLANE}
v_min_u32 v{r}, 6, v{r}
v_and_b32 v{r + 1}, 7, v{vLANE}
v_lshl_add_u32 v{r + 2}, v{r}, 5, v{r + 1}
s_lshl_b32 s{sT0}, s{sWAVE}, 3
v_add_u32 v{r + 2}, s{sT0}, v{r + 2}
v_and_b32 v{r + 1}, 7, v{vLANE}
v_min_u32 v{r}, 6, v{r + 1}
v_lshl_add_u32 v{r + 3}, v{r}, 5, v{r + 1}
v_add_u32 v{r + 3}, s{sT0}, v{r + 3}""")


def conv_loads():
    for p in range(4):
        a(f"buffer_load_dwordx4 {vr(CS + 4 * p, 4)}, v{vL16}, {srd(S_WS)}, s{16 + p} offen sc1")
    a(f"buffer_load_dwordx4 {vr(GX, 4)}, v{cvX}, {srd(S_WS)}, s20 offen sc1")
    a(f"buffer_load_dwordx4 {vr(GX + 4, 4)}, v{cvX}, {srd(S_WS)}, s20 offen offset:64 sc1")


CS1, GX1 = 64, 96


def conv_counted():
    XF, UF, AL, BE, UP = cXF, cUF, cAL, cBE, cUP
    again, back, stub = label("cca"), label("ccb"), label("ccs")
    xl = [f"buffer_load_dwordx4 {vr(GX1, 4)}, v{cvX}, {srd(S_WS)}, s20 offen sc1", f"buffer_load_dwordx4 {vr(GX1 + 4, 4)}, v{cvX}, {srd(S_WS)}, s20 offen offset:64 sc1"]
    a(f"s_mov_b32 s{sCNT}, 0")
    a(f"{again}:")
    for e in range(8):
        a(f"buffer_load_dwordx4 {vr(CS1 + 4 * e, 4)}, v{vL16}, {srd(S_WS)}, s{22 + e} offen sc1")
        if e == 1 and not OPT["xe"]:
            a(xl[0]); a(xl[1])

    def tok(e):
        S = CS1 + 4 * e
        a(f"v_pk_mul_f32 {vr(S, 2)}, {vr(S, 2)}, {sp(sCA)} op_sel_hi:[1,0]")
        a(f"v_fma_f32 v{S + 3}, -v{S}, v{S}, s{sCB}")
        a(f"v_add_f32 v{S + 1}, v{S + 1}, v{S + 3}")
        a(f"v_max_f32 v{S + 1}, s{sCB}, v{S + 1}")
        a(f"v_rsq_f32 v{AL + e}, v{S + 1}")
    tok(0)
    tok(1)
    for k in range(8):
        unpack(XF + 2 * k, XF + 2 * k + 1, GX1 + k)
    a(f"v_max_u32 v63, v{GX1 + 3}, v{GX1 + 7}")
    a(f"v_cmp_eq_u32 s[16:17], -1, v63")
    for e in range(2, 8):
        tok(e)
    c = [CS1 + 4 * e + 2 for e in range(8)]
    a(f"v_min3_f32 v62, v{c[0]}, v{c[1]}, v{c[2]}\nv_min3_f32 v62, v62, v{c[3]}, v{c[4]}\nv_min3_f32 v62, v62, v{c[5]}, v{c[6]}\nv_min_f32 v62, v62, v{c[7]}")
    a(f"v_cmp_neq_f32 vcc, {f32(14.0)}, v62")
    for e in range(8):
        a(f"v_mul_f32 v{BE + e}, -v{CS1 + 4 * e}, v{AL + e}")
    a("s_or_b64 vcc, vcc, s[16:17]")
    a(f"s_cbranch_vccnz {stub}")
    a(f"{back}:")
    STUBS.extend([f"{stub}:", f"s_add_u32 s{sCNT}, s{sCNT}, 1", f"s_cmp_lt_u32 s{sCNT}, {RETRY}", f"s_cbranch_scc0 {back}"] + (xl + ["s_waitcnt vmcnt(0)"] if OPT["xe"] else []) + [f"s_branch {again}"])


def conv_xearly():
    if emode(4) == "C" and OPT["xe"]:
        a.wait_tag("pub")
        a(f"buffer_load_dwordx4 {vr(GX1, 4)}, v{cvX}, {srd(S_WS)}, s20 offen sc1")
        a(f"buffer_load_dwordx4 {vr(GX1 + 4, 4)}, v{cvX}, {srd(S_WS)}, s20 offen offset:64 sc1")


def conv_setup(layer):
    a(f"""s_mov_b32 s{sCA}, {f32(1.0 / 448)}
s_mov_b32 s{sCB}, {f32(1e-5)}
s_lshl_b32 s{sT0}, s{sWAVE}, 10
v_add_u32 v{cvU}, s{sT0}, v{vL16}
s_lshr_b32 s{sT0}, s{sWAVE}, 1
s_and_b32 s{sT1}, s{sWAVE}, 1
v_and_b32 v8, 15, v{vLANE}
v_lshrrev_b32 v9, 4, v{vLANE}
v_not_b32 v10, v8
v_and_b32 v10, 3, v10""")
    for s in range(4):
        a(f"s_cmp_lg_u32 s{sT0}, 0")
        a(f"s_cselect_b32 s{sT2}, {KSLOT[1][s]}, {KSLOT[0][s]}")
        a(f"s_mul_i32 s{sT2}, s{sT2}, {KST}")
        if s == 0:
            a(f"v_mov_b32 v11, s{sT2}")
        else:
            a(f"v_mov_b32 v12, s{sT2}\nv_cmp_eq_u32 vcc, {s}, v10\nv_cndmask_b32 v11, v11, v12, vcc")
    a(f"""v_add_u32 v10, v10, v8
v_lshlrev_b32 v12, 3, v9
v_sub_u32 v12, v12, v10
v_lshl_add_u32 v11, v12, 1, v11
""")
    a(f"""s_lshl_b32 s{sT3}, s{sT1}, 8
s_sub_u32 s{sT2}, {2 * 2031 - 64 * 59}, s{sT3}
v_add_u32 v{cvA}, s{sT2}, v11
s_mul_i32 s{sT2}, s{sT0}, {UST}
s_sub_u32 s{sT2}, s{sT2}, s{sT3}
s_add_u32 s{sT2}, s{sT2}, {UB + UPAD - 2 * 112}
v_lshlrev_b32 v12, 5, v8
v_lshl_add_u32 v13, v9, 4, v12
v_add_u32 v{cvB}, s{sT2}, v13
s_lshl_b32 s{sT2}, s{sWAVE}, 11
v_lshl_add_u32 v13, v9, 3, v12
v_add_u32 v{cvZ}, s{sT2}, v13
s_xor_b32 s{sT2}, s{sWAVE}, 1
s_lshl_b32 s{sT2}, s{sT2}, 12
v_add_u32 v{cvXW}, s{sT2}, v{vL16}
s_lshl_b32 s{sT2}, s{sWAVE}, 12
v_add_u32 v{cvXR}, s{sT2}, v{vL16}
v_and_b32 v10, 1, v9
v_lshlrev_b32 v10, 3, v10
v_lshrrev_b32 v11, 1, v8
v_add_u32 v10, v10, v11
v_mul_u32_u24 v10, {BS}, v10
v_and_b32 v11, 1, v8
v_lshl_add_u32 v10, v11, 5, v10
v_lshrrev_b32 v11, 1, v9
v_lshl_add_u32 v{cvO}, v11, 4, v10
s_mul_i32 s{sT1}, s{sT1}, {32 * BS}
s_lshl_b32 s{sT2}, s{sPAIR}, 1
s_add_u32 s{sT0}, s{sT0}, s{sT2}
s_lshl_b32 s{sT0}, s{sT0}, 6
s_add_u32 s{sT0}, s{sT0}, s{sT1}
s_add_u32 s13, s{sT0}, {X1 if layer == 0 else X3}
s_add_u32 s21, s13, {16 * BS}""" if OPT["cv"] else f"""v_add_u32 v{cvA}, {2 * 2031 - 64 * 63}, v11
s_mul_i32 s{sT2}, s{sT0}, {UST}
s_lshl_b32 s{sT3}, s{sT1}, 9
s_add_u32 s{sT2}, s{sT2}, s{sT3}
s_add_u32 s{sT2}, s{sT2}, {UB + UPAD - 2 * 496}
v_lshlrev_b32 v12, 5, v8
v_lshl_add_u32 v13, v9, 4, v12
v_add_u32 v{cvB}, s{sT2}, v13
s_lshl_b32 s{sT2}, s{sT0}, 12
s_add_u32 s{sT2}, s{sT2}, s{sT3}
v_lshl_add_u32 v13, v9, 3, v12
v_add_u32 v{cvZ}, s{sT2}, v13
v_and_b32 v10, 1, v9
v_lshlrev_b32 v10, 4, v10
v_lshrrev_b32 v11, 1, v8
v_add_u32 v10, v10, v11
v_mul_u32_u24 v10, {BS}, v10
v_and_b32 v11, 1, v8
v_lshl_add_u32 v10, v11, 5, v10
v_lshrrev_b32 v11, 1, v9
v_lshl_add_u32 v{cvO}, v11, 4, v10
s_mul_i32 s{sT1}, s{sT1}, {8 * BS}
s_lshl_b32 s{sT2}, s{sPAIR}, 1
s_add_u32 s{sT0}, s{sT0}, s{sT2}
s_lshl_b32 s{sT0}, s{sT0}, 6
s_add_u32 s{sT0}, s{sT0}, s{sT1}
s_add_u32 s13, s{sT0}, {X1 if layer == 0 else X3}
s_add_u32 s21, s13, {32 * BS}""")
    a(f"""s_lshl_b32 s16, s{sWAVE}, 10
s_add_u32 s16, s16, {ST0 if layer == 0 else ST1}
s_add_u32 s17, s16, 4096
s_add_u32 s18, s16, 8192
s_add_u32 s19, s16, 12288
s_mul_i32 s20, s{sWAVE}, {16 * BS}
s_lshl_b32 s{sT2}, s{sPAIR}, 7
s_add_u32 s20, s20, s{sT2}
s_add_u32 s20, s20, {X0 if layer == 0 else X2}
v_lshrrev_b32 v10, 2, v{vLANE}
v_mul_u32_u24 v10, {BS}, v10
v_and_b32 v11, 3, v{vLANE}
v_lshl_add_u32 v{cvX}, v11, 4, v10""")
    if layer == 1 and emode(4) == "C":
        for e in range(8):
            a(f"s_add_u32 s{22 + e}, s16, {4096 * e}")


cXF, cUF, cAL, cBE, cUP = 0, 16, 32, 40, 48


def conv_pro(layer):
    XF, UF, AL, BE, UP = cXF, cUF, cAL, cBE, cUP
    if layer == 1 and emode(4) == "C":
        conv_counted()
    else:
        conv_stats()
    conv_norm()


def conv_stats():
    XF, UF, AL, BE, UP = cXF, cUF, cAL, cBE, cUP
    for p in range(4):
        S = CS + 4 * p
        a(f"v_pk_mul_f32 {vr(S, 2)}, {vr(S, 2)}, {sp(sCA)} op_sel_hi:[1,0]")
    for p in range(4):
        S = CS + 4 * p
        a(f"v_pk_fma_f32 {vr(BE + 2 * p, 2)}, {vr(S, 2)}, {vr(S, 2)}, {sp(sCB)} op_sel_hi:[1,1,0] neg_lo:[1,0,0] neg_hi:[1,0,0]")
    for p in range(4):
        Q = CS + 4 * p + 2
        a(f"v_pk_fma_f32 {vr(Q, 2)}, {vr(Q, 2)}, {sp(sCA)}, {vr(BE + 2 * p, 2)} op_sel_hi:[1,0,1]")
    for p in range(4):
        Q = CS + 4 * p + 2
        a(f"v_max_f32 v{Q}, s{sCB}, v{Q}\nv_max_f32 v{Q + 1}, s{sCB}, v{Q + 1}")
    for p in range(4):
        Q = CS + 4 * p + 2
        a(f"v_rsq_f32 v{AL + 2 * p}, v{Q}\nv_rsq_f32 v{AL + 2 * p + 1}, v{Q + 1}")
    for k in range(8):
        unpack(XF + 2 * k, XF + 2 * k + 1, GX + k)
    for p in range(4):
        S = CS + 4 * p
        a(f"v_pk_mul_f32 {vr(BE + 2 * p, 2)}, {vr(S, 2)}, {vr(AL + 2 * p, 2)} neg_lo:[1,0] neg_hi:[1,0]")


def conv_norm():
    XF, UF, AL, BE, UP = cXF, cUF, cAL, cBE, cUP
    for c in range(2):
        for p in range(4):
            a(f"v_pk_fma_f32 {vr(UF + 8 * c + 2 * p, 2)}, {vr(XF + 8 * c + 2 * p, 2)}, {vr(AL + 2 * p, 2)}, {vr(BE + 2 * p, 2)}")
        for p in range(4):
            a(f"v_cvt_pk_bf16_f32 v{UP + 4 * c + p}, v{UF + 8 * c + 2 * p}, v{UF + 8 * c + 2 * p + 1}")
        a(f"ds_write_b128 v{cvU}, {vr(UP + 4 * c, 4)} offset:{UB + c * UST + UPAD}")
    if OPT["cv"]:
        for i in a.capture(conv_z, 88):
            if i.kind != "dsw":
                a.put([i])


def conv_z(ZP=cXF):
    XF, UF = cXF, cUF
    for c in range(2):
        for p in range(4):
            a(f"v_pk_fma_f32 {vr(UF + 8 * c + 2 * p, 2)}, {vr(UF + 8 * c + 2 * p, 2)}, {sp((sD0, sD1)[c])}, {vr(XF + 8 * c + 2 * p, 2)} op_sel_hi:[1,0,1]")
        for p in range(4):
            a(f"v_cvt_pk_bf16_f32 v{ZP + 4 * c + p}, v{UF + 8 * c + 2 * p}, v{UF + 8 * c + 2 * p + 1}")
        a(f"ds_write_b128 v{cvU}, {vr(ZP + 4 * c, 4)} offset:{ZB + c * 4096}")


def conv_main(layer, bg=(), bg_start=0, bg_every=64):
    return (conv_main_r if OPT["cv"] else conv_main_t)(layer, bg, bg_start, bg_every)


def conv_main_r(layer, bg, bg_start, bg_every):
    ACC, BF, AR = 0, 32, 64
    NA = 6
    EX2 = ZB
    seq = [(r, q) for r in range(4) for q in range(7, -1, -1)]
    e = 1 + 4 * layer

    def rdA(i):
        r, q = seq[i]
        d = AR + 4 * (i % NA)
        off = 64 * (59 - (8 * q + r))
        return [Ins(f"ds_read_b64 {vr(d, 2)}, v{cvA} offset:{off}"), Ins(f"ds_read_b64 {vr(d + 2, 2)}, v{cvA} offset:{off + 8}")]

    def rdB(r, p):
        return [Ins(f"ds_read_b128 {vr(BF + 4 * p, 4)}, v{cvB} offset:{512 * p + 64 * (3 - r)}")]

    a.put(rdA(0)); a.put(rdB(0, 0)); a.put(rdA(1)); a.put(rdB(0, 1)); a.put(rdA(2)); a.put(rdB(0, 2)); a.put(rdA(3))
    a.put(rdB(0, 3)); a.put(rdA(4))
    for p in range(4, 8):
        a.put(rdB(0, p))
    ZR, ZF, RR = 88, 64, 32
    side = [[i] for i in a.capture(conv_z, 88) if i.kind == "dsw"]
    if hinted(e):
        side += [[i] for i in a.capture(hint_prep, e + 10, sPAIR, cvH)]
    late = [[Ins("s_barrier")]] + [[Ins(f"ds_read_b64 {vr(ZR + 2 * i, 2)}, v{cvZ} offset:{ZB + i * 512}")] for i in range(4)]
    late2 = [[Ins("s_barrier")]]
    a.begin()
    started = set()
    for i, (r, q) in enumerate(seq):
        if hinted(e) and OPT["h_cv"] < 0 and i == 32 + OPT["h_cv"]:
            hint_put(cvH)
        ps = list(range(8 - q))
        for p in ps:
            b = q + p
            c = vr(ACC + 4 * b, 4) if b in started else "0"
            started.add(b)
            a(f"v_mfma_f32_16x16x32_bf16 {vr(ACC + 4 * b, 4)}, {vr(AR + 4 * (i % NA), 4)}, {vr(BF + 4 * p, 4)}, {c}")
            if p == 0 and i + NA - 1 < len(seq):
                a.put(rdA(i + NA - 1))
            elif 1 <= q <= 4 and p >= 1:
                for lst, r0 in ((side, 0), (late, 2), (late2, 3)):
                    if lst and r >= r0:
                        a.put(lst.pop(0))
                        break
            if q == 0 and r < 3:
                a.put(rdB(r + 1, p))
    assert not side and not late and not late2
    m, rest = merge(a.end(), list(bg), bg_start, bg_every)
    a.put(m)
    stamp(f"conv{layer} loop", 111)
    if hinted(e) and OPT["h_cv"] == 0:
        hint_put(cvH)
    for k in range(8):
        unpack(ZF + 2 * k, ZF + 2 * k + 1, ZR + k)
    l1, l2 = label("cx"), label("cy")
    a(f"s_bitcmp1_b32 s{sWAVE}, 0")
    a(f"s_cbranch_scc1 {l1}")
    for h in range(2):
        for i in range(4):
            a(f"ds_write_b128 v{cvXW}, {vr(ACC + 16 * (1 - h) + 4 * i, 4)} offset:{EX2 + i * 1024}")
            for k in range(2):
                a(f"v_pk_add_f32 {vr(ZF + 4 * i + 2 * k, 2)}, {vr(ZF + 4 * i + 2 * k, 2)}, {vr(ACC + 16 * h + 4 * i + 2 * k, 2)}")
        if h == 0:
            a(f"s_branch {l2}")
            a(f"{l1}:")
    a(f"{l2}:")
    if (armed(1) if layer else sentinel(1)):
        poll_take(cvP)
    a.barrier()
    if hinted(e) and OPT["h_cv"] == 1:
        hint_put(cvH)
    for i in range(4):
        a(f"ds_read_b128 {vr(RR + 4 * i, 4)}, v{cvXR} offset:{EX2 + i * 1024}")
    PK = 56
    for i in range(4):
        for k in range(2):
            a(f"v_pk_add_f32 {vr(ZF + 4 * i + 2 * k, 2)}, {vr(ZF + 4 * i + 2 * k, 2)}, {vr(RR + 4 * i + 2 * k, 2)}")
        for k in range(2):
            a(f"v_cvt_pk_bf16_f32 v{PK + 2 * i + k}, v{ZF + 4 * i + 2 * k}, v{ZF + 4 * i + 2 * k + 1}")
        if i & 1:
            b = PK + 2 * (i - 1)
            a(f"v_permlane16_swap_b32 v{b}, v{b + 2}")
            a(f"v_permlane16_swap_b32 v{b + 1}, v{b + 3}")
            a(f"buffer_store_dwordx4 {vr(b, 4)}, v{cvO}, {srd(S_WS)}, s{21 if i == 3 else 13} offen sc1", tag="pub")
    if hinted(e) and OPT["h_cv"] == 2:
        hint_put(cvH)
    if not flagged(e):
        a.barrier()
    else:
        flag_put(1 + 4 * layer, sPAIR, 40, "pub")
    return rest


def conv_main_t(layer, bg, bg_start, bg_every):
    ACC, BF, AR = 84, 32, 64
    NA = 5
    QORD = (7, 5, 6, 3, 4, 2, 1, 0)
    seq = [(r, q) for r in range(8) for q in QORD]
    e = 1 + 4 * layer

    def rdA(i):
        r, q = seq[i]
        d = AR + 4 * (i % NA)
        off = 64 * (63 - (8 * q + r))
        return [Ins(f"ds_read_b64 {vr(d, 2)}, v{cvA} offset:{off}"), Ins(f"ds_read_b64 {vr(d + 2, 2)}, v{cvA} offset:{off + 8}")]

    def rdB(r, p):
        return [Ins(f"ds_read_b128 {vr(BF + 4 * (p + 1), 4)}, v{cvB} offset:{512 * (p + 1) + 64 * (7 - r)}")]

    a.put(rdA(0)); a.put(rdB(0, -1)); a.put(rdA(1)); a.put(rdB(0, 1)); a.put(rdA(2)); a.put(rdB(0, 0)); a.put(rdA(3))
    for p in (3, 2, 4, 5, 6):
        a.put(rdB(0, p))
    ZR, ZF = 16, 0
    side = [[i] for i in a.capture(conv_z)]
    if hinted(e):
        side += [[i] for i in a.capture(hint_prep, e + 10, sPAIR, cvH)]
    late = [[Ins("s_barrier")]] + [[Ins(f"ds_read_b64 {vr(ZR + 2 * i, 2)}, v{cvZ} offset:{ZB + i * 1024}")] for i in range(4)]
    late2 = [[i] for k in range(8) for i in a.capture(unpack, ZF + 2 * k, ZF + 2 * k + 1, ZR + k)]
    a.begin()
    started = set()
    n = 0
    for i, (r, q) in enumerate(seq):
        if hinted(e) and OPT["h_cv"] < 0 and i == 64 + OPT["h_cv"]:
            hint_put(cvH)
        first = True
        for t in range(q // 2, 4):
            p = 2 * t - q
            c = vr(ACC + 4 * t, 4) if t in started else "0"
            started.add(t)
            a(f"v_mfma_f32_16x16x32_bf16 {vr(ACC + 4 * t, 4)}, {vr(AR + 4 * (i % NA), 4)}, {vr(BF + 4 * (p + 1), 4)}, {c}")
            n += 1
            if first and i + 4 < len(seq):
                a.put(rdA(i + 4))
            elif q >= 2:
                for lst, r0 in ((side, 0), (late, 4), (late2, 5)):
                    if lst and r >= r0:
                        a.put(lst.pop(0))
                        if lst is side and lst:
                            a.put(lst.pop(0))
                        break
            first = False
            if q <= 1 and r < 7:
                a.put(rdB(r + 1, p))
    assert not side and not late and not late2
    m, rest = merge(a.end(), list(bg), bg_start, bg_every)
    a.put(m)
    stamp(f"conv{layer} loop", 111)
    if (armed(1) if layer else sentinel(1)):
        poll_take(cvP)
    if hinted(e) and OPT["h_cv"] == 0:
        hint_put(cvH)
    PK = 24
    for i in range(4):
        for k in range(2):
            a(f"v_pk_add_f32 {vr(ZF + 4 * i + 2 * k, 2)}, {vr(ZF + 4 * i + 2 * k, 2)}, {vr(ACC + 4 * i + 2 * k, 2)}")
        for k in range(2):
            a(f"v_cvt_pk_bf16_f32 v{PK + 2 * i + k}, v{ZF + 4 * i + 2 * k}, v{ZF + 4 * i + 2 * k + 1}")
        if i & 1:
            b = PK + 2 * (i - 1)
            a(f"v_permlane16_swap_b32 v{b}, v{b + 2}")
            a(f"v_permlane16_swap_b32 v{b + 1}, v{b + 3}")
            a(f"buffer_store_dwordx4 {vr(b, 4)}, v{cvO}, {srd(S_WS)}, s{21 if i == 3 else 13} offen sc1", tag="pub")
    if hinted(e) and OPT["h_cv"] > 0:
        hint_put(cvH)
    if not flagged(e):
        a.barrier()
    else:
        flag_put(1 + 4 * layer, sPAIR, 40, "pub")
    return rest


def reduce32(V, n, W):
    for i in range(n):
        a(f"v_permlane16_swap_b32 v{V[i]}, v{V[n + i]}")
    for i in range(n):
        a(f"v_add_f32 v{V[i]}, v{V[i]}, v{V[n + i]}")
    h = n // 2
    for i in range(h):
        a(f"v_add_f32_dpp v{W[i]}, v{V[i]}, v{V[i]} row_ror:8 row_mask:0xf bank_mask:0x3")
    for i in range(h):
        a(f"v_add_f32_dpp v{W[i]}, v{V[i + h]}, v{V[i + h]} row_ror:8 row_mask:0xf bank_mask:0xc")
    g = h // 2
    for i in range(g):
        a(f"v_add_f32_dpp v{V[i]}, v{W[i]}, v{W[i]} row_half_mirror row_mask:0xf bank_mask:0x5")
    for i in range(g):
        a(f"v_add_f32_dpp v{V[i]}, v{W[i + g]}, v{W[i + g]} row_half_mirror row_mask:0xf bank_mask:0xa")
    for m in ("[1,0,3,2]", "[2,3,0,1]"):
        for i in range(g):
            a(f"v_add_f32_dpp v{V[i]}, v{V[i]}, v{V[i]} quad_perm:{m} row_mask:0xf bank_mask:0xf")
    return V[:g]


def maxchain(t, regs):
    regs = list(regs)
    if OPT["chk"] == 1:
        regs = regs[3::4]
    if len(regs) == 2:
        return [f"v_max_u32 v{t}, v{regs[0]}, v{regs[1]}"]
    out = [f"v_max3_u32 v{t}, v{regs[0]}, v{regs[1]}, v{regs[2]}"]
    regs = regs[3:]
    while len(regs) >= 2:
        out.append(f"v_max3_u32 v{t}, v{t}, v{regs[0]}, v{regs[1]}")
        regs = regs[2:]
    if regs:
        out.append(f"v_max_u32 v{t}, v{t}, v{regs[0]}")
    return out


RETRY = 0x10000


def ln(layer, wide):
    X = X1 if layer == 0 else X3
    H = H1 if layer == 0 else H3
    nf = 7 if wide else 4
    sI = sLN0 if wide else sLN
    RAW, XF, S, Q, W = 0, 28, 84, 92, 100
    vO, vPW, vPR, vAW, vAR, r, hr = 109, 110, 111, 112, 117, 114, 104
    vX, vS = 64, 68
    a(f"""s_mul_i32 s{sT0}, s{sWAVE}, 56
v_min_u32 v{r + 2}, 55, v{vLANE}""")
    a(f"v_add_u32 v{r + 2}, s{sT0}, v{r + 2}")
    a(f"v_and_b32 v118, {OPT['samp'] - 1}, v{vLANE}\nv_mul_u32_u24 v118, {56 // OPT['samp']}, v118\nv_add_u32 v118, s{sT0}, v118")
    ein, eout = 1 + 4 * layer, 2 + 4 * layer
    if OPT["lnd"] and emode(ein) == "D":
        a.wait_tag("pub")
    if wide:
        a(f"""s_mul_i32 s16, s{sI}, {BS}
s_lshl_b32 s{sT2}, s{sI}, 12""")
    else:
        a(f"""s_lshr_b32 s16, s{sI}, 1
s_mul_i32 s16, s16, {BS}
s_and_b32 s{sT0}, s{sI}, 1
s_lshl_b32 s{sT0}, s{sT0}, 5
s_add_u32 s16, s16, s{sT0}
s_lshl_b32 s{sT2}, s{sI}, 11""")
    a(f"""s_mul_i32 s{sT0}, s{sWAVE}, 7168
s_add_u32 s16, s16, s{sT0}
s_add_u32 s16, s16, {X}
s_add_u32 s17, s16, 4096
s_add_u32 s{sT2}, s{sT2}, {H}
s_mul_i32 s30, s{sWAVE}, 7""")
    if wide:
        for i in range(nf):
            a(f"""s_add_u32 s{sT0}, s30, {i}
s_lshr_b32 s{sT1}, s{sT0}, 2
s_lshl_b32 s{sT1}, s{sT1}, 18
s_add_u32 s{23 + i}, s{sT1}, s{sT2}
s_and_b32 s{sT1}, s{sT0}, 2
s_lshl_b32 s{sT1}, s{sT1}, 9
s_add_u32 s{23 + i}, s{23 + i}, s{sT1}
s_and_b32 s{sT1}, s{sT0}, 1
s_lshl_b32 s{sT1}, s{sT1}, 8
s_add_u32 s{23 + i}, s{23 + i}, s{sT1}""")
        a(f"""v_lshrrev_b32 v1, 2, v{vLANE}
v_lshlrev_b32 v{vO}, 4, v1
v_and_b32 v2, 1, v{vLANE}
v_lshl_add_u32 v{vO}, v2, 9, v{vO}
v_bfe_u32 v2, v{vLANE}, 1, 1
v_lshl_add_u32 v{vO}, v2, 11, v{vO}
v_and_b32 v1, 7, v1
v_and_b32 v2, 3, v{vLANE}
v_lshl_add_u32 v1, v2, 3, v1""")
    else:
        a(f"""v_lshrrev_b32 v1, 1, v{vLANE}
v_and_b32 v2, 1, v{vLANE}
v_lshlrev_b32 v{vX}, 6, v1
v_lshl_add_u32 v{vX}, v2, 4, v{vX}
v_mov_b32 v3, {OOB}
v_cmp_gt_u32 vcc, 32, v{vLANE}
v_cndmask_b32 v{vX + 1}, v3, v{vX}, vcc
s_lshl_b32 s30, s30, 4
s_mov_b32 s23, s{sT2}""")
        for i in range(nf):
            a(f"""v_add_u32 v4, s30, v1
v_lshrrev_b32 v5, 6, v4
v_lshlrev_b32 v5, 18, v5
v_bfe_u32 v6, v4, 5, 1
v_lshl_add_u32 v5, v6, 10, v5
v_and_b32 v6, 31, v4
v_lshl_add_u32 v5, v6, 4, v5
v_lshl_add_u32 v{vS + i}, v2, 9, v5""")
            if i < 3:
                a("s_add_u32 s30, s30, 32")
        a(f"""v_cndmask_b32 v{vS + 3}, v3, v{vS + 3}, vcc
v_bfe_u32 v1, v{vLANE}, 2, 3
v_lshl_add_u32 v1, v2, 3, v1""")
    a(f"""v_lshrrev_b32 v3, 5, v{vLANE}
v_lshl_add_u32 v1, v3, 5, v1
s_lshl_b32 s{sT1}, s{sWAVE}, 8
s_add_u32 s{sT1}, s{sT1}, {LNP}
v_lshl_add_u32 v{vPW}, v1, 2, s{sT1}
v_and_b32 v1, 31, v{vLANE}
v_lshlrev_b32 v{vPR}, 2, v1
v_add_u32 v{vPR}, {LNP}, v{vPR}
s_add_u32 s{sT1}, s{sT1}, 1024
v_lshl_add_u32 v{vAW}, v{vLANE}, 2, s{sT1}
v_lshl_add_u32 v{vAR}, v2, 5, s{sT1}
s_mov_b32 s18, 0
s_mov_b32 s19, -1""")
    prod = f"s_lshl_b32 s{sT0}, s{sI}, 6"
    if hinted(eout):
        hint_prep(eout + 10, prod, hr)
    arm = layer == 0 and sentinel(2)
    if arm:
        a(f"v_min_u32 v102, 27, v{vLANE}")
        poll_issue(18, 100)
    wait_edge(ein, r, r + 2, 118)
    if arm:
        poll_take(100)
    stamp(f"ln{layer} go")

    def loads():
        if not wide:
            return [f"buffer_load_dwordx4 {vr(RAW + 4 * i, 4)}, v{vX + (i == 3)}, {srd(S_WS)}, s{16 + i // 2} offen offset:{2048 * (i % 2)} sc1" for i in range(nf)]
        return [f"buffer_load_dwordx4 {vr(RAW + 4 * i, 4)}, v{vL16}, {srd(S_WS)}, s{16 + i // 4} offen offset:{1024 * (i % 4)} sc1" for i in range(nf)]
    again, back, stub = label("lna"), label("lnb"), label("lns")
    if sentinel(ein):
        a(f"s_mov_b32 s{sCNT}, 0")
        a(f"{again}:")
    for l in loads():
        a(l)
    if hinted(eout) and OPT["h_ln"] == 0:
        a.wait_vm0()
        hint_put(hr)
    if OPT["stamps"] == 1:
        a.wait_vm0()
    count_out(113)
    stamp(f"ln{layer} data", 113)
    for i in range(nf):
        for k in range(4):
            unpack(XF + 8 * i + 2 * k, XF + 8 * i + 2 * k + 1, RAW + 4 * i + k)
        for k in range(4):
            x = vr(XF + 8 * i + 2 * k, 2)
            if i == 0:
                a(f"v_pk_mul_f32 {vr(Q + 2 * k, 2)}, {x}, {x}")
            else:
                a(f"v_pk_fma_f32 {vr(Q + 2 * k, 2)}, {x}, {x}, {vr(Q + 2 * k, 2)}")
                a(f"v_pk_add_f32 {vr(S + 2 * k, 2)}, {vr(XF + 2 * k, 2) if i == 1 else vr(S + 2 * k, 2)}, {x}")
    if sentinel(ein):
        for l in maxchain(113, range(RAW, RAW + 4 * nf)) + ["v_cmp_eq_u32 vcc, -1, v113"]:
            a(l)
        STUBS.extend([f"{stub}:", f"s_add_u32 s{sCNT}, s{sCNT}, 1", f"s_cmp_lt_u32 s{sCNT}, {RETRY}", f"s_cbranch_scc1 {again}", f"s_branch {back}"])
    if hinted(eout) and OPT["h_ln"] == 1:
        hint_put(hr)
    for i in range(8):
        a(f"v_permlane32_swap_b32 v{S + i}, v{Q + i}")
        if i == 1 and sentinel(ein):
            a(f"s_cbranch_vccnz {stub}")
            a(f"{back}:")
    for i in range(0, 8, 2):
        a(f"v_pk_add_f32 {vr(S + i, 2)}, {vr(S + i, 2)}, {vr(Q + i, 2)}")
    for i in range(4):
        a(f"v_permlane16_swap_b32 v{S + i}, v{S + 4 + i}")
    for i in range(0, 4, 2):
        a(f"v_pk_add_f32 {vr(S + i, 2)}, {vr(S + i, 2)}, {vr(S + 4 + i, 2)}")
    for i in range(2):
        a(f"v_add_f32_dpp v{W + i}, v{S + i}, v{S + i} row_ror:8 row_mask:0xf bank_mask:0x3")
    for i in range(2):
        a(f"v_add_f32_dpp v{W + i}, v{S + 2 + i}, v{S + 2 + i} row_ror:8 row_mask:0xf bank_mask:0xc")
    a(f"v_add_f32_dpp v{S}, v{W}, v{W} row_shl:4 row_mask:0xf bank_mask:0x5")
    a(f"v_add_f32_dpp v{S}, v{W + 1}, v{W + 1} row_shr:4 row_mask:0xf bank_mask:0xa")
    if not wide:
        a(f"v_add_f32_dpp v{S}, v{S}, v{S} quad_perm:[2,3,0,1] row_mask:0xf bank_mask:0xf")
    a(f"ds_write_b32 v{vPW}, v{S}")
    a.barrier()
    if hinted(eout) and OPT["h_ln"] == 2:
        hint_put(hr)
    stamp(f"ln{layer} bar", 113)
    T = 0
    for w in range(4):
        a(f"ds_read2_b32 {vr(T + 2 * w, 2)}, v{vPR} offset0:{w * 64} offset1:{w * 64 + 32}")
    a(f"""v_pk_add_f32 {vr(T, 2)}, {vr(T, 2)}, {vr(T + 2, 2)}
v_pk_add_f32 {vr(T + 4, 2)}, {vr(T + 4, 2)}, {vr(T + 6, 2)}
v_pk_add_f32 {vr(T, 2)}, {vr(T, 2)}, {vr(T + 4, 2)}
v_mul_f32 v{T}, {f32(1 / 448)}, v{T}
v_mul_f32 v{T + 1}, {f32(1 / 448)}, v{T + 1}
v_fma_f32 v{T + 1}, -v{T}, v{T}, v{T + 1}
v_max_f32 v{T + 1}, 0, v{T + 1}
v_add_f32 v{T + 2}, {f32(1e-5)}, v{T + 1}
v_fmamk_f32 v{T + 2}, v{T + 2}, {f32(1e-5)}, v{T + 1}
v_rsq_f32 v{T + 2}, v{T + 2}
v_mul_f32 v{T + 3}, -v{T}, v{T + 2}
v_cndmask_b32 v{T + 2}, v{T + 2}, v{T + 3}, s[18:19]
ds_write_b32 v{vAW}, v{T + 2}""")
    AL, BE = S, Q
    done_hint = []
    a(f"""ds_read_b128 {vr(AL, 4)}, v{vAR}
ds_read_b128 {vr(BE, 4)}, v{vAR} offset:128
ds_read_b128 {vr(AL + 4, 4)}, v{vAR} offset:16
ds_read_b128 {vr(BE + 4, 4)}, v{vAR} offset:144""")
    for i in range(nf):
        for k in range(4):
            x = vr(XF + 8 * i + 2 * k, 2)
            a(f"v_pk_fma_f32 {x}, {x}, {vr(AL + 2 * k, 2)}, {vr(BE + 2 * k, 2)}")
        for k in range(4):
            a(f"v_cvt_pk_bf16_f32 v{RAW + 4 * i + k}, v{XF + 8 * i + 2 * k}, v{XF + 8 * i + 2 * k + 1}")
        a(f"buffer_store_dwordx4 {vr(RAW + 4 * i, 4)}, v{vO if wide else vS + i}, {srd(S_WS)}, s{23 + i if wide else 23} offen sc1", tag="pub")
        if hinted(eout) and OPT["h_ln"] - 3 == min(i, 6) * (4 if nf == 7 else 4) // (nf + 1):
            if not done_hint:
                hint_put(hr)
                done_hint.append(1)
    stamp(f"ln{layer} st", 113)
    if flagged(eout):
        flag_put(eout, prod, 100, "pub")


def gemm_addr():
    a(f"""s_and_b32 s{sT0}, s{sWAVE}, 1
s_lshl_b32 s{sT0}, s{sT0}, 10
v_add_u32 v{vA0}, s{sT0}, v{vL16}
v_xor_b32 v{vA1}, 0x400, v{vA0}""")


vCHK = 121


def gemm_loop(nks, ring, nring, wreg, swap, sent, lds_from=99, at=None, bg=()):
    WF = 104
    nfr = 2 * nks

    def load(f):
        ks, db = f // 2, f % 2
        g = []
        if db == 0 and ks and ks % 2 == 0:
            g.append(Ins("s_add_u32 s13, s13, 4096"))
            if ks % 4 == 0:
                g += [Ins("s_cmp_eq_u32 s13, s28"), Ins("s_cmov_b32 s13, s27")]
        d = ring + 4 * (f % nring)
        g.append(Ins(f"buffer_load_dwordx4 {vr(d, 4)}, v{(vA0, vA1)[db]}, {srd(S_WS)}, s13 offen offset:{(ks % 2) * 2048} sc1"))
        return g

    def wread(ks):
        g = []
        slot = ks - lds_from
        for nb in range(2):
            for j in range(2):
                d = WF + 8 * (ks % 2) + 4 * nb + 2 * j
                g.append(Ins(f"ds_read_b64_tr_b16 {vr(d, 2)}, v{(vT2a, vT2b)[nb]} offset:{slot * 2048 + j * 1024}", res_r=[f"slot{slot}"]))
        return g

    def check(ks, upto):
        regs = [ring + 4 * ((2 * ks + db) % nring) + k for db in range(2) for k in range(4)]
        chk = maxchain(vCHK, regs) + [f"v_cmp_eq_u32 vcc, -1, v{vCHK}"]
        back, stub = label("gb"), label("gs")
        rl, cnt = [], 0
        for f in range(2 * ks, max(2 * ks + 2, min(upto, 2 * ks + 2 * OPT["rl"]))):
            k2, db = f // 2, f % 2
            if db == 0:
                rl += [f"s_add_u32 s3, s22, {k2 * 2048}", "s_cmp_ge_u32 s3, s28", f"s_cselect_b32 s18, {nks * 2048}, 0", "s_sub_u32 s3, s3, s18"]
            rl.append(f"buffer_load_dwordx4 {vr(ring + 4 * (f % nring), 4)}, v{(vA0, vA1)[db]}, {srd(S_WS)}, s3 offen sc1")
        STUBS.extend([f"{stub}:"] + rl + ["s_waitcnt vmcnt(0)"] + chk + [f"s_add_u32 s{sCNT}, s{sCNT}, 1", f"s_cbranch_vccz {back}",
                                                     f"s_cmp_lt_u32 s{sCNT}, {RETRY}", f"s_cbranch_scc1 {stub}", f"s_branch {back}"])
        return [Ins(x) for x in chk], [Ins(f"s_cbranch_vccnz {stub}"), Ins(f"{back}:")]

    if sent:
        a(f"s_mov_b32 s{sCNT}, 0")
    nxt = min(OPT["fill0"], nring)
    for f in range(nxt):
        a.put(load(f))
    if sent:
        c, b = check(0, nxt)
        a.put(c); a.put(b)
    extra = []
    bg = list(bg)
    for ks in range(nks):
        if at and ks in at:
            extra += a.capture(at[ks])
        pend = wread(ks + 1) if lds_from <= ks + 1 < nks else []
        c, b = check(ks + 1, min(nfr, nxt + 2, nring + 2 * ks + 2)) if (sent and ks + 1 < nks) else ([], [])
        order = [(0, 0), (0, 1), (1, 0), (1, 1)]
        if ks == nks - 1 and OPT["tailord"]:
            order = [(0, 1), (1, 0), (1, 1), (0, 0)]
        if True:
            for nb, db in order:
                acc = vr(16 * (2 * nb + db), 16)
                cc = acc if (ks or (nb | db) == 0) else "0"
                w = wreg(ks, nb) if ks < lds_from else vr(WF + 8 * (ks % 2) + 4 * nb, 4)
                x = vr(ring + 4 * ((2 * ks + db) % nring), 4)
                if OPT["fake16"] and 0 < ks < nks - 1:
                    b0 = 16 * (2 * nb + db) + 8 * (ks & 1)
                    for t in range(2):
                        a(f"v_mfma_f32_16x16x32_bf16 {vr(b0 + 4 * t, 4)}, {x if swap ^ t else w}, {w if swap ^ t else x}, {vr(b0 + 4 * t, 4)}")
                else:
                    a(f"v_mfma_f32_32x32x16_bf16 {acc}, {x if swap else w}, {w if swap else x}, {cc}")
                if pend:
                    a.put([pend.pop(0)])
                free = nring + 2 * ks + (db + 1 if nb == 1 else 0)
                if nxt < min(nfr, free) and (nb == 1 or db == 1):
                    a.put(load(nxt))
                    nxt += 1
                if bg and nb == 0 and ks >= OPT["bg0"]:
                    a.put(bg.pop(0))
                if extra and nb == 0:
                    k = 5
                    while k < len(extra) and ("exec" in extra[k - 1].defs and extra[k - 1].text != "s_mov_b64 exec, -1" or extra[k - 1].kind == "vstore"):
                        k += 1
                    a.put(extra[:k])
                    del extra[:k]
                if nb == 1 and db == 0:
                    a.put(c)
                if nb == 1 and db == 1:
                    a.put(b)
    a.put(extra)


def gemm_rot(nks, srot):
    a(f"s_mov_b32 s27, s13\ns_add_u32 s28, s13, {nks * 2048}\ns_lshl_b32 s{sT0}, s{srot}, 13\ns_add_u32 s13, s13, s{sT0}\ns_mov_b32 s22, s13")


def gemm_reduce_prep():
    slot = 6144 if OPT["bfr"] else 12288
    for rel in (1, 2, 3):
        a(f"s_xor_b32 s{23 + rel}, s{sWAVE}, {rel}\ns_mul_i32 s{23 + rel}, s{23 + rel}, {slot}")
    a(f"s_mul_i32 s23, s{sWAVE}, {slot}")


def gemm_reduce_addr():
    for rel in range(4):
        a(f"v_add_u32 v{64 + rel}, s{23 + rel}, v{vL16}")


def gemm_perm(P):
    if not OPT["bfr"]:
        return
    t, u = P + 8, P + 7
    a("s_mov_b32 s29, 0x3f80")
    a(f"""v_lshrrev_b32 v{u}, 5, v{vLANE}
v_and_b32 v{t}, 31, v{vLANE}
v_lshlrev_b32 v{u}, 2, v{u}
v_sub_u32 v{t}, v{t}, v{u}
v_and_b32 v{u}, 1, v{t}
v_lshlrev_b32 v{u}, 4, v{u}
v_lshlrev_b32 v{u}, v{u}, s29
v_ashrrev_i32 v{t}, 1, v{t}""")
    vals = (0, 1, 4, 5, 8, 9, 12, 13)
    pairs = ("s[16:17]", "s[30:31]", "s[50:51]")
    for d in range(10):
        if d < 8:
            a(f"v_cmp_eq_u32 {pairs[d % 3]}, {vals[d]}, v{t}")
        if d >= 2:
            a(f"v_cndmask_b32 v{P + d - 2}, 0, v{u}, {pairs[(d - 2) % 3]}")
    a(f"ds_write_b128 v{vL16}, {vr(P, 4)} offset:{PERM}")
    a(f"ds_write_b128 v{vL16}, {vr(P + 4, 4)} offset:{PERM + 1024}")


def gemm_perm_get(P):
    if OPT["bfr"]:
        a(f"ds_read_b128 {vr(P, 4)}, v{vL16} offset:{PERM}")
        a(f"ds_read_b128 {vr(P + 4, 4)}, v{vL16} offset:{PERM + 1024}")


def gemm_reduce_bf(P, pre, post, quarter):
    side = a.capture(pre) if pre else []
    a.put(side[:9])
    side = side[9:]
    T = [104, 108, 112, 116]
    n = 0
    for rel in (1, 2, 3):
        for j in range(2):
            t = T[n % 4]
            n += 1
            for k in range(4):
                r = 16 * rel + 8 * j + 2 * k
                a(f"v_cvt_pk_bf16_f32 v{t + k}, v{r}, v{r + 1}")
            a(f"ds_write_b128 v{64 + rel}, {vr(t, 4)} offset:{RB + (rel - 1) * 2048 + j * 1024}")
            a.put(side[:3])
            side = side[3:]
    a.put(side)
    a.barrier()
    for k in range(6):
        a(f"ds_read_b128 {vr(16 + 4 * k, 4)}, v64 offset:{RB + k * 1024}")
    if post:
        post()
    for k in range(6):
        a(f"v_mfma_f32_32x32x16_bf16 v[0:15], {vr(P + 4 * (k % 2), 4)}, {vr(16 + 4 * k, 4)}, v[0:15]")
    if quarter:
        for q in range(4):
            quarter(q)


def gemm_reduce(pre=None, post=None, quarter=None, P=None):
    if OPT["bfr"]:
        return gemm_reduce_bf(P, pre, post, quarter)
    side = a.capture(pre) if pre else []
    wr = [[Ins(f"ds_write_b128 v{64 + rel}, {vr(16 * rel + 4 * q, 4)} offset:{RB + (rel - 1) * 4096 + q * 1024}")] for rel in (1, 2, 3) for q in range(4)]
    a.put(side[:9])
    put_all(wr[:3])
    m, rest = merge(side[9:], wr[3:], 0, 12)
    a.put(m)
    put_all(rest)
    a.barrier()
    for q in range(4):
        for k in range(3):
            a(f"ds_read_b128 {vr(16 + 16 * k + 4 * q, 4)}, v64 offset:{RB + k * 4096 + q * 1024}")
        if q == 1 and post:
            post()
    for q in range(4):
        for h in range(2):
            r = 4 * q + 2 * h
            a(f"v_pk_add_f32 {vr(16 + r, 2)}, {vr(16 + r, 2)}, {vr(32 + r, 2)}")
            a(f"v_pk_add_f32 {vr(r, 2)}, {vr(r, 2)}, {vr(48 + r, 2)}")
        for h in range(2):
            r = 4 * q + 2 * h
            a(f"v_pk_add_f32 {vr(r, 2)}, {vr(r, 2)}, {vr(16 + r, 2)}")
        if quarter:
            quarter(q)


def gemm1(layer, wide, pre=None, bg=(), part="all"):
    H = H1 if layer == 0 else H3
    G = G1 if layer == 0 else G3
    r = 32
    c0 = -2 * math.log2(math.e) * math.sqrt(2 / math.pi)
    ein, eout = 2 + 4 * layer, 3 + 4 * layer
    if part == "poll":
        assert emode(ein) == "S"
        for k in range(8):
            unpack(2 * k, 2 * k + 1, 20 + k)
        poll_issue(ein + 10, r, r + 3)
        return
    if part != "rest":
        gemm1_head(H, G, wide, r, c0)
    if part == "head":
        return
    gemm1_rest(layer, wide, pre, bg, part, r, c0, ein, eout)


def gemm1_head(H, G, wide, r, c0):
    gemm_addr()
    a(f"""s_lshr_b32 s{sT0}, s{sWAVE}, 1
s_lshl_b32 s{sT0}, s{sT0}, 6
s_lshl_b32 s{sT1}, s{sNT}, 7
s_add_u32 s{sT0}, s{sT0}, s{sT1}
v_lshrrev_b32 v16, 5, v{vLANE}
v_lshl_add_u32 v16, v16, 3, s{sT0}""")
    for q in range(4):
        a(f"global_load_dwordx2 {vr(20 + 2 * q, 2)}, v16, {sp(P_B1)} offset:{16 * q}")
    a(f"""s_lshl_b32 s{sT0}, s{sWAVE}, 5
v_and_b32 v{r + 2}, 31, v{vLANE}
v_add_u32 v{r + 2}, s{sT0}, v{r + 2}
v_and_b32 v{r + 3}, {31 & ~(32 // OPT['samp'] - 1)}, v{vLANE}
v_add_u32 v{r + 3}, s{sT0}, v{r + 3}
s_lshl_b32 s13, s{sDT1}, 7
s_add_u32 s13, s13, s{sT0}
s_lshl_b32 s13, s13, 11
s_add_u32 s13, s13, {H}""")
    if wide:
        a(f"v_lshrrev_b32 v{r + 2}, 1, v{r + 2}\nv_lshrrev_b32 v{r + 3}, 1, v{r + 3}")
    a(f"""s_mov_b32 s{sCA}, {f32(c0 * 0.044715)}
s_mul_i32 s21, s{sDT1}, 112
s_lshl_b32 s{sT0}, s{sNT}, 2
s_add_u32 s21, s21, s{sT0}
s_and_b32 s{sT0}, s{sWAVE}, 2
s_add_u32 s21, s21, s{sT0}
s_lshl_b32 s21, s21, 11
s_add_u32 s21, s21, {G}""")
    gemm_reduce_prep()
    gemm_rot(32, sROT1)


def gemm1_rest(layer, wide, pre, bg, part, r, c0, ein, eout):
    if pre:
        pre()
    if part != "rest":
        for k in range(8):
            unpack(2 * k, 2 * k + 1, 20 + k)
    if part == "rest":
        poll_take(r, r + 3)
    elif emode(ein) == "M":
        l1, l2 = label("m1"), label("m2")
        a(f"s_cmp_eq_u32 s{sRL0 if wide else sRL}, 0\ns_cbranch_scc1 {l1}")
        a.wait_tag("pub")
        a(f"s_branch {l2}")
        a(f"{l1}:")
        wait_edge(ein, r, r + 2, r + 3)
        a(f"{l2}:")
    else:
        wait_edge(ein, r, r + 2, r + 3)
    stamp(f"g1_{layer} go", 63)
    prod = f"s_mul_i32 s{sT0}, s{sDT1}, 28\ns_add_u32 s{sT0}, s{sT0}, s{sNT}\ns_lshl_b32 s{sT0}, s{sT0}, 6"
    early = hinted(eout) and OPT["h_g1"] < 0
    at = {30: gemm_reduce_addr, 28: lambda: gemm_perm_get(96)}
    if early:
        assert OPT["h_g1"] in (-1, -3, -4)
        at[32 + OPT["h_g1"]] = lambda: (hint_prep(eout + 10, prod, 104), hint_put(104))
    gemm_loop(32, 64, 14, lambda ks, nb: f"a[{(ks * 2 + nb) * 4}:{(ks * 2 + nb) * 4 + 3}]", False, sentinel(ein), at=at)
    count_out(120)
    stamp(f"g1_{layer} loop", 120)
    a.begin()
    late = hinted(eout) and not early

    def pre():
        a(f"v_mov_b32 v80, {f32(c0)}")
        if late:
            hint_prep(eout + 10, prod, 72)

    def gelu(q):
        if q % 2 == 0:
            return
        half = q // 2
        if late and OPT["h_g1"] == 1 and half == 0:
            hint_put(72)
        rs = range(8 * half, 8 * half + 8, 2)
        for r in rs:
            a(f"v_pk_mul_f32 {vr(16 + r, 2)}, {vr(r, 2)}, {vr(r, 2)}")
        for r in rs:
            a(f"v_pk_fma_f32 {vr(16 + r, 2)}, {vr(16 + r, 2)}, {sp(sCA)}, {vr(80, 2)} op_sel_hi:[1,0,0]")
        for r in rs:
            a(f"v_pk_mul_f32 {vr(16 + r, 2)}, {vr(16 + r, 2)}, {vr(r, 2)}")
        for r in rs:
            a(f"v_exp_f32 v{16 + r}, v{16 + r}\nv_exp_f32 v{17 + r}, v{17 + r}")
        for r in rs:
            a(f"v_pk_add_f32 {vr(16 + r, 2)}, {vr(16 + r, 2)}, 1.0 op_sel_hi:[1,0]")
        for r in rs:
            a(f"v_rcp_f32 v{16 + r}, v{16 + r}\nv_rcp_f32 v{17 + r}, v{17 + r}")
        for r in rs:
            a(f"v_pk_mul_f32 {vr(r, 2)}, {vr(r, 2)}, {vr(16 + r, 2)}")
        for r in rs:
            a(f"v_cvt_pk_bf16_f32 v{84 + r // 2}, v{r}, v{r + 1}")
        a(f"buffer_store_dwordx4 {vr(84 + 4 * half, 4)}, v{vA0}, {srd(S_WS)}, s21 offen offset:{2048 * half} sc1", tag="pub")
        if late and OPT["h_g1"] == 2 + half:
            hint_put(72)
    gemm_reduce(pre, (lambda: hint_put(72)) if (late and OPT["h_g1"] == 0) else None, gelu, 96)
    m, rest = merge(a.end(), list(bg), 0, OPT["ev_g1"])
    a.put(m)
    if not flagged(eout):
        a.barrier()
    else:
        flag_put(eout, prod, 40, "pub")
    for g in rest:
        a.put(g)


def gemm2(layer, bg=()):
    G = G1 if layer == 0 else G3
    gemm_addr()
    a(f"""s_lshr_b32 s{sT0}, s{sWAVE}, 1
s_lshl_b32 s{sT0}, s{sT0}, 5
s_lshl_b32 s{sT1}, s{sST}, 6
s_add_u32 s50, s{sT0}, s{sT1}
s_and_b32 s{sT1}, s{sWAVE}, 1
s_lshl_b32 s{sT1}, s{sT1}, 5
s_lshl_b32 s{sT2}, s{sDT2}, 6
s_add_u32 s51, s{sT1}, s{sT2}
s_lshr_b32 s{sT2}, s50, 5
s_mul_i32 s{sT2}, s{sT2}, {BS}
s_lshl_b32 s{sT1}, s51, 6
s_add_u32 s20, s{sT2}, s{sT1}
s_add_u32 s30, s20, {X1 if layer == 0 else X3}
v_and_b32 v16, 31, v{vLANE}
v_lshrrev_b32 v17, 5, v{vLANE}
s_lshl_b32 s{sT0}, s50, 1""")
    r = 42

    def residual_issue():
        if layer == 0:
            if OPT["res4"]:
                for k in range(2):
                    a(f"buffer_load_dwordx4 {vr(20 + 4 * k, 4)}, v18, {srd(S_WS)}, s30 offen offset:{32 * k} sc1")
            else:
                for q in range(4):
                    a(f"buffer_load_dwordx2 {vr(20 + 2 * q, 2)}, v18, {srd(S_WS)}, s30 offen offset:{16 * q} sc1")
        else:
            a(f"s_mov_b32 m0, s31")
            a(f"buffer_load_dwordx4 v{vL16}, {srd(S_WS)}, s30 offen sc1 lds", res_w=["x3"])
            a(f"buffer_load_dwordx4 v{vL16}, {srd(S_WS)}, s30 offen offset:1024 sc1 lds", res_w=["x3"])

    def residual_use():
        if layer == 0:
            if OPT["res4"]:
                for k in (20, 21, 24, 25):
                    a(f"v_permlane32_swap_b32 v{k}, v{k + 2}")
            for k in range(8):
                unpack(2 * k, 2 * k + 1, 20 + k)
            for k in range(8):
                unpack(40, 41, 28 + k)
                a(f"v_pk_add_f32 {vr(2 * k, 2)}, {vr(2 * k, 2)}, v[40:41]")
        else:
            for q in range(4):
                a(f"ds_read_b64_tr_b16 {vr(20 + 2 * q, 2)}, v31 offset:{512 * q}", res_r=["x3"])
            a("v_lshlrev_b32 v40, 16, v29")
            for k in range(8):
                unpack(2 * k, 2 * k + 1, 20 + k)
                a(f"v_pk_add_f32 {vr(2 * k, 2)}, {vr(2 * k, 2)}, v[40:41] op_sel_hi:[1,0]")

    if layer == 0:
        a(f"v_lshlrev_b32 v18, 6, v16\nv_lshl_add_u32 v18, v17, {4 if OPT['res4'] else 3}, v18\nv_lshl_add_u32 v19, v17, 3, s{sT0}")
        for q in range(4):
            a(f"global_load_dwordx2 {vr(28 + 2 * q, 2)}, v19, {sp(P_B2)} offset:{16 * q}")
    else:
        a(f"""v_and_b32 v19, 3, v{vLANE}
s_lshl_b32 s31, s{sWAVE}, 11
v_lshl_add_u32 v28, v16, 1, s{sT0}
global_load_ushort v29, v28, {sp(P_B2)}
v_bfe_u32 v31, v{vLANE}, 2, 2
v_lshl_add_u32 v31, v17, 2, v31
v_lshlrev_b32 v31, 6, v31
v_bfe_u32 v30, v{vLANE}, 4, 1
v_lshl_add_u32 v31, v30, 5, v31
v_lshl_add_u32 v31, v19, 3, v31
v_add_u32 v31, s31, v31""")
    a(f"""s_mul_i32 s{sT0}, s{sDT2}, 28
s_mul_i32 s{sT1}, s{sWAVE}, 7
s_add_u32 s{sT0}, s{sT0}, s{sT1}
v_min_u32 v{r + 2}, 6, v{vLANE}
v_add_u32 v{r + 2}, s{sT0}, v{r + 2}
v_mov_b32 v{r + 3}, v{r + 2}
s_lshl_b32 s13, s{sT0}, 13
s_add_u32 s13, s13, {G}""")
    if layer == 0:
        a(f"""s_add_u32 s21, s20, {X2}
s_lshl_b32 s19, s50, 1
s_add_u32 s19, s19, {ST1}""")
    else:
        a(f"s_mul_i32 s{sT0}, s50, 896\ns_lshl_b32 s{sT1}, s51, 1\ns_add_u32 s21, s{sT0}, s{sT1}")
    gemm_reduce_prep()
    gemm_rot(28, sROT2)
    if layer == 0 and emode(4) == "C" and OPT["x2l"] == 2:
        a(f"s_mul_i32 s{sT0}, s{sWAVE}, 7\nv_min_u32 v52, 6, v{vLANE}\nv_add_u32 v52, s{sT0}, v52")
        poll_issue(19, 50)
    lskip, ljoin = label("res"), label("resj")
    a(f"s_cmp_eq_u32 s{sR1}, 0")
    a(f"s_cbranch_scc1 {lskip}")
    residual_issue()
    residual_use()
    if emode(3 + 4 * layer) == "M":
        a.wait_tag("pub")
    else:
        wait_edge(3 + 4 * layer, r, r + 2, r + 3)
    a(f"s_branch {ljoin}")
    a(f"{lskip}:")
    eln = 2 + 4 * layer
    if OPT["rese"] and hinted(eln) and OPT["h_ln"] >= 2:
        wide = OPT["ln1w"] if layer else OPT["ln0w"]
        a(f"s_lshl_b32 s{sT0}, s{sST}, {1 if wide else 2}\nv_and_b32 v48, {1 if wide else 3}, v{vLANE}\nv_add_u32 v48, s{sT0}, v48")
        poll_issue(eln + 10, 46)
        poll_take(46)
        residual_issue()
        residual_use()
        wait_edge(3 + 4 * layer, r, r + 2, r + 3)
    else:
        wait_edge(3 + 4 * layer, r, r + 2, r + 3)
        residual_issue()
        residual_use()
    a(f"{ljoin}:")
    if layer == 0 and emode(4) == "C" and OPT["x2l"] == 2:
        poll_take(50)
    at = {26: gemm_reduce_addr, 25: lambda: gemm_perm_get(88)}
    late = layer == 0 and emode(4) == "C" and OPT["x2l"] == 1
    if late:
        at[25] = lambda: (gemm_perm_get(88), a(f"v_and_b32 v98, 31, v{vLANE}"), poll_issue(19, 96))
    stamp(f"g2_{layer} go", 63)
    gemm_loop(28, 64, 10, lambda ks, nb: vr(128 + (ks * 2 + nb) * 4, 4), layer == 1, sentinel(3 + 4 * layer), lds_from=16, at=at, bg=bg)
    count_out(120)
    stamp(f"g2_{layer} loop", 120)

    def addr():
        a(f"v_and_b32 v68, 31, v{vLANE}\nv_lshrrev_b32 v69, 5, v{vLANE}")
        if layer == 0:
            a(f"""v_and_b32 v70, 15, v{vLANE}
v_lshlrev_b32 v70, 6, v70
v_lshl_add_u32 v70, v69, 4, v70
v_bfe_u32 v71, v{vLANE}, 4, 1
v_lshl_add_u32 v70, v71, 5, v70
""")
            if emode(4) == "C":
                a(f"""v_lshl_add_u32 v71, v69, 2, v71
v_lshlrev_b32 v71, 12, v71
v_and_b32 v68, 15, v{vLANE}
v_lshl_add_u32 v71, v68, 2, v71
v_mov_b32 v68, 1.0
v_cndmask_b32 v68, v68, 0, {sp(sM1)}
s_add_u32 s18, s19, 8192""")
            else:
                a(f"""v_bfe_u32 v71, v{vLANE}, 2, 2
v_lshlrev_b32 v71, 4, v71
v_bfe_u32 v68, v{vLANE}, 4, 1
v_lshl_add_u32 v71, v68, 3, v71
v_and_b32 v68, 1, v{vLANE}
v_lshl_add_u32 v71, v68, 2, v71
v_bfe_u32 v68, v{vLANE}, 1, 1
v_lshl_add_u32 v68, v69, 1, v68
v_lshl_add_u32 v71, v68, 12, v71""")
        else:
            a(f"v_mul_u32_u24 v70, 896, v68\nv_lshl_add_u32 v70, v69, 4, v70")
    prod = f"s_lshl_b32 s{sT0}, s{sDT2}, 5\ns_add_u32 s{sT0}, s{sT0}, s{sST}\ns_lshl_b32 s{sT0}, s{sT0}, 6"
    hn = layer == 0 and hinted(4)

    def pre():
        addr()
        if hn:
            hint_prep(14, prod, 80)
    gemm_reduce(pre, (lambda: hint_put(80)) if (hn and OPT["h_g2"] == 0) else None, None, 88)
    if hn and OPT["h_g2"] == 1:
        hint_put(80)
    PK = 72
    if late:
        poll_take(96)
    stamp(f"g2_{layer} red", 120)
    for half in range(2):
        b = PK + 4 * half
        for k in range(4):
            a(f"v_cvt_pk_bf16_f32 v{b + k}, v{8 * half + 2 * k}, v{8 * half + 2 * k + 1}")
        a(f"v_permlane32_swap_b32 v{b}, v{b + 2}")
        a(f"v_permlane32_swap_b32 v{b + 1}, v{b + 3}")
        if layer == 1:
            a(f"buffer_store_dwordx4 {vr(b, 4)}, v70, {srd(S_OUT)}, s21 offen offset:{32 * half} {('', 'nt', 'sc1')[OPT['ofl']]}")
    if layer == 1:
        return
    def put_x():
        for k in range(4):
            a(f"v_permlane16_swap_b32 v{PK + k}, v{PK + 4 + k}")
        for half in range(2):
            a(f"buffer_store_dwordx4 {vr(PK + 4 * half, 4)}, v70, {srd(S_WS)}, s21 offen offset:{1024 * half} sc1", tag="pub")
    put_x()
    if hn and OPT["h_g2"] == 2:
        hint_put(80)
    for k in range(8):
        a(f"v_pk_mul_f32 {vr(20 + 2 * k, 2)}, {vr(2 * k, 2)}, {vr(2 * k, 2)}")
    res = reduce32(list(range(16)) + list(range(20, 36)), 16, list(range(40, 48)))
    assert res == [0, 1, 2, 3]
    if emode(4) == "C":
        a(f"""v_permlane16_swap_b32 v0, v1
v_permlane16_swap_b32 v2, v3
v_cndmask_b32 v0, v0, v1, {sp(sM1)}
v_cndmask_b32 v2, v2, v3, {sp(sM1)}
v_cndmask_b32 v0, v0, v68, {sp(sM2)}
v_cndmask_b32 v2, v2, v68, {sp(sM2)}""")
        a(f"buffer_atomic_add_f32 v0, v71, {srd(S_WS)}, s19 offen sc1", tag="pub")
        a(f"buffer_atomic_add_f32 v2, v71, {srd(S_WS)}, s18 offen sc1", tag="pub")
    else:
        a(f"""v_cndmask_b32 v0, v0, v1, {sp(sM1)}
v_cndmask_b32 v2, v2, v3, {sp(sM1)}
v_cndmask_b32 v0, v0, v2, {sp(sM2)}""")
        a(f"buffer_atomic_add_f32 v0, v71, {srd(S_WS)}, s19 offen sc1", tag="pub")
    if hn and OPT["h_g2"] == 3:
        hint_put(80)
    stamp("g2_0 atom", 120)
    if flagged(4):
        flag_put(4, prod, 40, "pub")
    else:
        a.barrier()
    stamp("g2_0 flag", 120)


def skip_unless(role):
    l = label("skip")
    a(f"s_cmp_eq_u32 s{role}, 0")
    a(f"s_cbranch_scc1 {l}")
    return l


def dmas(n0, n1):
    return [w_dma(n, h) for n in range(n0, n1) for h in range(2)]


def tr_dma(n0, n1):
    g = []
    for n in range(n0, n1):
        g.append(w_tr(n))
        if n > n0:
            g += dmas(n + 11, n + 12)
    g += dmas(n1 + 11, n1 + 12)
    return g


def wseq():
    nB = OPT["wB"] // 2
    assert 36 <= nB <= 60
    g = dmas(0, 12) + tr_dma(0, nB - 12)
    lastT = 48 if (nB >= 48 and OPT["wT"]) else 32 + OPT["wg"]
    g += [w_tr(n) for n in range(nB - 12, lastT)]
    g.append([])
    d = nB
    for n in range(max(lastT, nB - 12), 49):
        while d < min(n + 11, 60) or (n == 48 and d < 60):
            g += dmas(d, d + 1)
            d += 1
        if n < 48:
            g.append(w_tr(n))
    return g


def wcut(n_dma):
    k = 0
    for p, g in enumerate(wseq()):
        if k == n_dma:
            return p
        k += any(i.kind == "dma" for i in g)
    return len(wseq())


def put_all(gs):
    for g in gs:
        a.put(g)


def w2_touch(r):
    return [Ins(f"v_lshlrev_b32 v{r}, 12, v{vLANE}"), Ins(f"buffer_load_dword v{r}, v{r}, {srd(S_W2)}, s{sW2O} offen")]


def upad():
    a(f"""v_mov_b32 v32, 0
v_mov_b32 v33, 0
v_mov_b32 v34, 0
v_mov_b32 v35, 0
s_and_b32 s{sT0}, s{sWAVE}, 1
s_mul_i32 s{sT0}, s{sT0}, {UST}
v_add_u32 v36, s{sT0}, v{vL16}
ds_write_b128 v36, v[32:35] offset:{UB}""")


def build():
    global RB
    if OPT["bfr"] and OPT["keepk"]:
        RB = UB
    g = OPT["wg"]
    WORDER[:] = list(range(0, g)) + list(range(32, 32 + g)) + list(range(g, 32)) + list(range(32 + g, 60))
    if OPT["w2t"]:
        WORDER[:] = list(range(60))
    cA, cP, cL, cB = wcut(OPT["wA"]), wcut(OPT["wP"]), wcut(OPT["wL"]), wseq().index([])
    cK = wcut(OPT["wK"])
    prologue()
    laux, ljoin = label("aux"), label("join")
    a(f"s_cmp_eq_u32 s{sRC}, 0")
    a(f"s_cbranch_scc1 {laux}")
    stamp("args", 2)
    xt_loads()
    kgen_table_load()
    code_warm(1)
    page_warm(88)
    w_setup()
    put_all(wseq()[:cA])
    conv_setup(0)
    stamp("start", 2)

    xt_poll_addr(63, 2)
    xt_work()
    stamp("xt", 2)

    def h_flag():
        nonce_take()
        flag_put(0, sPAIR, 104, "st0")
        stamp("flag", 0)
        a(f"global_load_dwordx4 {vr(TAB, 4)}, v75, {sp(sTAB)}")
        a(f"global_load_dwordx4 {vr(TAB + 4, 4)}, v75, {sp(sTAB)} offset:16")
        a(f"global_load_dwordx2 v[0:1], v75, {sp(sTAB)} offset:32")

    hooks = {}
    dbg = tuple((p, (lambda p=p: stamp(f"hook{p}", 65))) for p in (0, 1, 2, 5)) if OPT["stamps"] == 1 else ()
    for pos, fn in dbg + ((OPT["h_flag"], h_flag), (OPT["h_w"], lambda: KBG.extend(wseq()[cA:cK] + ([w2_touch(75)] if OPT["w2t"] else []))), (OPT["h_poll"], lambda: poll_issue(0, 64, 63))):
        hooks.setdefault(pos, []).append(fn)
    assert OPT["h_flag"] <= OPT["h_w"] and OPT["h_poll"] >= 6
    kgen({k: (lambda fs=fs: [f() for f in fs]) for k, fs in hooks.items()})
    dump_lds(1)
    stamp("kgen", 21)

    def mid():
        poll_take(64, 63)
        stamp("e1 seen", 0)
        conv_loads()
    wr = kexpand(mid)
    if OPT["mixpro"]:
        mv = [i for i in wr if i.kind != "dsw"]
        st = [i for i in wr if i.kind == "dsw"]
        pro = a.capture(conv_pro, 0)
        k = next(n for n, i in enumerate(pro) if i.defs & {f"v{r}" for r in range(0, 22)})
        a.put(mv)
        a.put(st[2:4])
        head, rest = merge(pro[:k], [[i] for i in st[4:6] + st[:2] + st[6:]], 0, 14)
        a.put(head)
        early = [g for g in rest if g[0].uses & {f"v{r}" for r in range(0, 22)}]
        put_all(early)
        rest = [g for g in rest if g not in early]
        k2 = next(n for n, i in enumerate(pro) if i.kind == "dsw")
        mid2, rest = merge(pro[k:k2], rest, 0, 30)
        put_all(rest)
        m3, rest = merge(mid2 + pro[k2:], wseq()[cK:cP], 50, OPT["ev_pro"])
        a.put(m3)
        put_all(rest)
        stamp("expand", 111)
    else:
        a.put(wr)
        stamp("expand")
        conv_pro(0)
    if sentinel(1):
        a(f"v_min_u32 v{cvP + 2}, 27, v{vLANE}")
        poll_issue(8, cvP)
    a.barrier()
    dump_lds(2)
    stamp("conv0 go", 111)
    put_all(conv_main(0, wseq()[cP:cL], OPT["st_conv"], OPT["ev_conv"]))
    stamp("conv0 done")
    a(f"s_branch {ljoin}")
    a(f"{laux}:")
    aux_loads()
    kgen_table_addr()
    code_warm(1)
    page_warm(88)
    w_setup()
    aux_work()
    stamp("aux e1")
    if OPT["g7"] == 1:
        lg = label("g7")
        a(f"""s_cmp_lg_u32 s{sR1}, 0
s_cbranch_scc1 {lg}
s_lshr_b32 s{sT0}, s{sX}, 2
s_sub_u32 s{sT0}, s{sJ}, s{sT0}
s_sub_u32 s{sT0}, s{sT0}, 28
s_lshl_b32 s{sT0}, s{sT0}, 3
s_add_u32 s{sT0}, s{sT0}, s{sX}
s_lshl_b32 s{sT0}, s{sT0}, 7
s_mul_i32 s{sT1}, s{sWAVE}, {512 * 3584}
s_add_u32 s{sT0}, s{sT0}, s{sT1}
s_add_u32 s{sT0}, s{sT0}, {448 * 3584}
v_mul_u32_u24 v90, 3584, v{vLANE}
v_add_u32 v90, s{sT0}, v90""")
        a(f"global_load_dword v90, v90, {sp(P_W1)}")
        a(f"{lg}:")
    if armed(0):
        lnf = label("nf")
        a(f"s_cmp_lg_u32 s{sR1}, 0\ns_cbranch_scc1 {lnf}")
        if OPT["map18"] == 1:
            a(f"s_sub_u32 s16, s{sAUX}, 4\ns_cselect_b32 s16, s{sAUX}, s16")
        else:
            a(f"s_lshr_b32 s16, s{sAUX}, 1\ns_sub_u32 s17, s{sAUX}, 4\ns_cmp_lt_u32 s{sAUX}, 8\ns_cselect_b32 s16, s16, s17")
        if sentinel(1):
            fill(X1, 17, 80, 16, 28 * 4096, "fill")
            flag_put(8, 16, 72, "fill")
        if sentinel(2) or sentinel(3):
            if sentinel(2):
                fill(H1, 16, 80, 16, 28 * 4096, "fill")
            if sentinel(3):
                fill(G1, 14, 80, 16, 28 * 4096, "fill")
            if emode(4) == "C" and not OPT["x2l"]:
                assert sentinel(2) and sentinel(3)
                fill(X2, 17, 80, 16, 28 * 4096, "fill")
            flag_put(18, 16, 72, "fill")
        a(f"{lnf}:")
    stamp("aux fill")
    if OPT["g7"] == 2:
        lg = label("g7")
        a(f"""s_cmp_lg_u32 s{sR1}, 0
s_cbranch_scc1 {lg}
s_lshr_b32 s{sT0}, s{sX}, 2
s_sub_u32 s{sT0}, s{sJ}, s{sT0}
s_sub_u32 s{sT0}, s{sT0}, 28
s_lshl_b32 s{sT0}, s{sT0}, 3
s_add_u32 s{sT0}, s{sT0}, s{sX}
s_lshl_b32 s{sT0}, s{sT0}, 7
s_mul_i32 s{sT1}, s{sWAVE}, {512 * 3584}
s_add_u32 s{sT0}, s{sT0}, s{sT1}
s_add_u32 s{sT0}, s{sT0}, {448 * 3584}
v_mul_u32_u24 v90, 3584, v{vLANE}
v_add_u32 v90, s{sT0}, v90""")
        a(f"global_load_dword v90, v90, {sp(P_W1)}")
        a(f"{lg}:")
    cX = min(wcut(64 + 2 * OPT["wg"]), cB)
    if OPT["w2t"]:
        a.put(w2_touch(75))
    n1 = 32 + OPT["wg"]
    if OPT["auxs"]:
        put_all(dmas(0, 12) + tr_dma(0, n1 - 12) + [w_tr(n) for n in range(n1 - 12, n1)])
    else:
        put_all(wseq()[:cX])
    if sentinel(1):
        a(f"v_min_u32 v62, 27, v{vLANE}")
        poll_issue(8, 60)
        poll_take(60)
    a.wait_vm0()
    stamp("aux w")
    a(f"{ljoin}:")
    for layer in range(2):
        if layer == 1:
            l = skip_unless(sRC)
            conv_setup(1)
            conv_poll1()
            stamp("conv1 ready")
            if OPT["kc_in"] and not hinted(4):
                a.wait_tag("flag")
                poll_issue(4, cvP)
                kcopies()
                poll_take(cvP)
            else:
                upad() if RB == UB else kcopies()
                conv_xearly()
                if emode(4) == "G":
                    lg = label("gt")
                    a(f"s_cmp_lg_u32 s{sR2}, 0\ns_cbranch_scc1 {lg}")
                    poll_issue(14, cvP, cvP + 3)
                    poll_take(cvP, cvP + 3)
                    a(f"{lg}:")
                    a.wait_tag("flag")
                    poll_issue(4, cvP)
                    poll_take(cvP)
                else:
                    wait_edge(4, cvP, cvP + 2, cvP + 3)
            stamp("conv1 poll")
            if emode(4) != "C":
                conv_loads()
            conv_pro(1)
            count_out(111)
            if armed(1):
                a(f"v_and_b32 v{cvP + 2}, 31, v{vLANE}")
                poll_issue(9, cvP)
            a.barrier()
            dump_lds(3)
            stamp("conv1 go", 111)
            conv_main(1)
            stamp("conv1 done")
            if armed(1):
                lj = label("cvj")
                a(f"s_branch {lj}")
                a(f"{l}:")
                a(f"v_and_b32 v62, 31, v{vLANE}")
                poll_issue(9, 60)
                poll_take(60)
                a(f"{lj}:")
            else:
                a(f"{l}:")
        wide = OPT["ln1w"] if layer else OPT["ln0w"]
        l = skip_unless(sRL0 if wide else sRL)
        ln(layer, wide)
        stamp(f"ln{layer} done")
        a(f"{l}:")
        if layer == 0:
            gemm_perm(0)
            def arm_poll(part):
                k = max(0, len(part) - 12)
                put_all(part[:k])
                if sentinel(2) or sentinel(3):
                    a(f"v_min_u32 v62, 27, v{vLANE}")
                    poll_issue(18, 60)
                if inb:
                    gemm1(0, wide, part="head")
                k2 = max(k, len(part) - OPT["inb"])
                put_all(part[k:k2])
                if inb:
                    gemm1(0, wide, part="poll")
                put_all(part[k2:])
                if sentinel(2) or sentinel(3):
                    poll_take(60)
            inb = OPT["inb"] > 0 and emode(2) == "S"
            if OPT["auxs"]:
                assert OPT["wB"] == 120
                la, lb, lc = label("ba"), label("bb"), label("bc")
                a(f"s_cmp_eq_u32 s{sRC}, 0\ns_cbranch_scc1 {la}")
                arm_poll(wseq()[cL:cB])
                a(f"s_branch {lb}")
                a(f"{la}:")
                a(f"s_cmp_eq_u32 s{sR2}, 0\ns_cbranch_scc1 {lc}")
                put_all(dmas(n1, n1 + 12) + tr_dma(n1, 48))
                if emode(4) == "C" and OPT["x2l"] == 2:
                    a(f"s_sub_u32 s16, s{sAUX}, 4\ns_cselect_b32 s16, s{sAUX}, s16")
                    fill(X2, 17, 80, 16, 28 * 4096, "fill")
                    flag_put(19, 16, 72, "fill")
                a(f"{lc}:")
                if inb:
                    gemm1(0, wide, part="head")
                    gemm1(0, wide, part="poll")
                elif not sentinel(2):
                    arm_poll([])
                a(f"{lb}:")
            else:
                l = skip_unless(sRC)
                put_all(wseq()[cL:cX])
                a(f"{l}:")
                rest = wseq()[cX:cB]
                k = max(0, len(rest) - 12)
                put_all(rest[:k])
                if sentinel(2) or sentinel(3):
                    a(f"v_min_u32 v62, 27, v{vLANE}")
                    poll_issue(18, 60)
                put_all(rest[k:])
                if sentinel(2) or sentinel(3):
                    poll_take(60)
            stamp("w B", 63)
            tail = wseq()[cB:]
            assert not any(i.kind == "dsr" and "a[" in i.text for g in tail for i in g)
            lelse, lj = label("ng1"), label("g1j")
            a(f"s_cmp_eq_u32 s{sR1}, 0")
            a(f"s_cbranch_scc1 {lelse}")
            gemm1(0, wide, None, [] if OPT["t2"] else tail, "rest" if inb else "all")
            nonce_retire()
            stamp("g1_0 done")
            a(f"s_branch {lj}")
            a(f"{lelse}:")
            put_all([] if OPT["t2"] else wseq()[cB:])
            a(f"{lj}:")
        else:
            l = skip_unless(sR1)
            gemm1(1, wide)
            stamp("g1_1 done")
            a(f"{l}:")
        l = skip_unless(sR2)
        gemm2(layer, [g for g in wseq()[cB:] if g] if (layer == 0 and OPT["t2"]) else [])
        if layer == 0 and armed(1):
            lj = label("g2j")
            a(f"s_branch {lj}")
            a(f"{l}:")
            if OPT["map18"]:
                a(f"s_lshl_b32 s16, s{sX}, 2\ns_add_u32 s16, s16, s{sJ}")
            else:
                a(f"s_lshr_b32 s16, s{sX}, 1\ns_lshl_b32 s16, s16, 3\ns_add_u32 s16, s16, s{sJ}")
            late = emode(4) == "C" and OPT["x2l"]
            if late == 1:
                fill(X2, 15, 72, 16, CH)
                flag_put(19, 16, 8, "st0")
            for base, n, e in ((X3, 15, 5), (H3, 14, 6), (G3, 13, 7)):
                if sentinel(e):
                    fill(base, n, 72, 16, CH)
            flag_put(9, 16, 8, "st0")
            if late:
                a(f"v_and_b32 v62, 31, v{vLANE}" if late == 1 else f"v_min_u32 v62, 27, v{vLANE}")
                poll_issue(19, 60)
                poll_take(60)
            a(f"{lj}:")
        else:
            a(f"{l}:")
        stamp("g2_0 done" if layer == 0 else "end")
    if OPT["stamps"] and OPT["dbgwg"] < 0:
        l = label("ls")
        a(f"s_cmp_lg_u32 s{sWAVE}, 0\ns_cbranch_scc1 {l}\ns_waitcnt vmcnt(0)\ns_memrealtime {sp(sSTAMP)}\ns_waitcnt lgkmcnt(0)")
        a(f"s_lshl_b32 s3, s2, 8\ns_add_u32 s3, s3, {STAMPS + 248}\nv_mov_b32 v0, s101\nv_mov_b32 v1, s{sSTAMP}\ns_mov_b64 exec, 1")
        a(f"buffer_store_dwordx2 v[0:1], off, {srd(S_WS)}, s3")
        a(f"{l}:")
    if OPT["fixdur"]:
        a(f"s_waitcnt vmcnt(0) lgkmcnt(0)\nL_fix:\ns_memrealtime s[28:29]\ns_waitcnt lgkmcnt(0)\ns_sub_u32 s28, s28, s101\ns_cmp_lt_u32 s28, {OPT['fixdur']}\ns_cbranch_scc1 L_fix")
    a("s_endpgm")


def bf16_round_int(l):
    b = struct.unpack("<I", struct.pack("<f", float(l)))[0]
    b = (b + 0x7FFF + ((b >> 16) & 1)) & 0xFFFF0000
    return int(struct.unpack("<f", struct.pack("<I", b))[0])


def ktab():
    vals = []
    for c in range(2):
        for x in range(2048):
            lr = bf16_round_int(2047 - x)
            aa, rem = lr >> 7, lr & 127
            j, e = rem >> 3, rem & 7
            if aa < 2:
                rho = 8 * aa + e
            elif aa < 4:
                rho = 4 * aa + 8 + (e >> 1)
            elif aa < 8:
                rho = 16 + 2 * aa + (e >> 2)
            else:
                rho = 24 + aa
            vals.append((rho >> 2) * 256 + j * 16 + (rho & 3) * 4 + c * 2 * GST)
        vals += [3072 + c * 2 * GST] * 16
    lines = []
    for i in range(0, len(vals), 16):
        lines.append("    .short " + ", ".join(str(v) for v in vals[i:i + 16]))
    return "\n".join(lines)


DOC = """;
;   gemm1 : gelu(h^T W1 + b1), 64x64 tile per workgroup, K split over the waves, W1 tile resident in AGPRs
;   gemm2 : x + g W2 + b2, W2 tile resident in VGPRs + LDS; per-token sums for the next LayerNorm by float atomics
; Hand-offs between workgroups go through d_ws with write-through stores and L1-bypassing loads, valid for any placement:
; Every wait is bounded.  Generated by the author's own script (register allocation and schedule are explicit).
"""


def main(path):
    build()
    ins = a.finish()
    ref = open(f"cdna_kernels/{NAME}.s.ref").read().split("\n")
    head = [l for l in ref if l.startswith(";") and "@launch" not in l and not l.startswith("; Override") and not l.startswith("; grid=ceil")]
    k = NAME + "_kernel"
    s = "\n".join(head) + f"\n; @launch grid=(256,1,1) block=(256,1,1) lds={LDS_BYTES}\n"
    s += DOC
    s += f""".amdgcn_target "amdgcn-amd-amdhsa--gfx950"
.text
.globl {k}
.p2align 8
.type {k},@function
{k}:
L_entry:
"""
    s += Prog.render(ins)
    s += "".join((l if l.endswith(":") else "    " + l) + "\n" for l in STUBS)
    s += f""".p2align 6
.type ktab,@object
ktab:
{ktab()}
.size ktab, 8256
.section .rodata,"a"
.p2align 6
.amdhsa_kernel {k}
  .amdhsa_next_free_vgpr 512
  .amdhsa_next_free_sgpr 102
  .amdhsa_accum_offset 256
  .amdhsa_group_segment_fixed_size 0
  .amdhsa_kernarg_size 136
  .amdhsa_user_sgpr_count 2
  .amdhsa_user_sgpr_kernarg_segment_ptr 1
  .amdhsa_system_sgpr_workgroup_id_x 1
  .amdhsa_float_denorm_mode_32 3
.end_amdhsa_kernel
"""
    open(path, "w").write(s)
    n = sum(1 for i in ins if i.kind not in ("label", "comment"))
    open(path + ".names", "w").write("\n".join(STAMP_NAMES))
    print("instructions:", n, "nops:", sum(1 for i in ins if i.kind == "nop"), "waits:", sum(1 for i in ins if i.kind == "wait"))


if __name__ == "__main__":
    path = sys.argv[1]
    for kv in sys.argv[2:]:
        k, v = kv.split("=")
        OPT[k] = v if k in ('em', 'probe') else int(v)
    main(path)
```

```python
import sys, math, struct, re
from asmlib import *

NAME = "interleave_layers__ssm_conv_s4__mixer_token_mlp__prompt"
OPT = dict(stamps=False, stop=99, upfront=True, dump=0, dbgwg=-1, fixdur=0, em='SSSCDSS', warm=1, h_flag=2, h_w=2, h_poll=9, h_ln=2, h_cv=0, h_g1=0, h_g2=2, rot=1, wA=0, wK=8, wP=8, wL=24, wB=120, wT=1, lag=2, gap=3, st_conv=100, ev_conv=150, ev_g1=100000, fill0=14, ln1w=0, ln0w=1, chk=1, samp=8, map18=1, ofl=0, tailord=1, cv=1, clk=0, ev_kg=150, mixpro=1, now=0, probe='', kc_in=0, w2t=0, g7=0, rl=4, bfr=1, wg=4, slp=0, ev_pro=30, t2=0, bg0=0, tlb=0, rese=0, lnd=1, keepk=1, fake16=0, wnt=0, wnta=0, fnt=0, pnt=0, xnt=0, auxs=1, inb=2, x2l=2, res4=0, xe=0, cpipe=1, spl=1, h_load=99, x1s=1)
DBG_SEL = ['start', 'kgen', 'conv0 go', 'ln0 go', 'g1_0 go', 'g1_0 loop', 'g2_0 go', 'g2_0 loop', 'conv1 poll', 'ln1 go', 'g1_1 go', 'g2_1 go', 'end']
STAMP_NAMES = []

EPOCH = 0
ST0 = 0x1000
ST1 = 0x8000
STAMPS = 0x20000
FL = 0x100000
BS = 448 * 64 + 128
CH = 0x20000
X1, H1, G1, X3, H3, G3, X2, X0 = (0x400000 + 0x200000 * i for i in range(8))
FILL1, FILL3 = 6, 36
WS_BYTES = 268435456
OOB = 0x40000000

KST = 4160
KSLOT = {0: [0, 5, 2, 3], 1: [1, 6, 7, 4]}
UB = 8 * KST
UPAD = 1024
UST = 4096 + UPAD
ZB = UB + 2 * UST
EX = 2 * KST
RB = 2 * KST
GST = 15616
GROW = 272
TOFF = 12288
LNP = 57472
PERM = 61440
W2L = 65536
LDS_BYTES = 163840

sWAVE, sX, sJ, sPAIR, sDT1, sNT, sDT2, sST, sLN = 4, 5, 6, 7, 8, 9, 10, 11, 12
sNONCE = 14
P_U, P_ARE, P_AIM, P_BRE, P_BIM, P_CRE, P_CIM, P_LDT = 16, 18, 20, 22, 24, 26, 28, 30
P_DSK, P_W1, P_B1, P_W2, P_B2, P_OUT, P_DBG, P_WS = 32, 36, 38, 40, 42, 44, 46, 48
S_WS, S_W1, S_W2, S_X0, S_OUT = 52, 56, 60, 64, 68
sD0, sD1 = 72, 74
sLDT = 76
sEP = 78
sWOFF, sT0, sT1, sT2, sT3, sCNT = 80, 81, 82, 83, 84, 85
sRC, sR1, sR2, sRL = 86, 87, 88, 89
sM1, sM2 = 90, 92
sSTAMP = 94
sTAB = 96
sLN0, sRL0 = 77, 73
sCA, sCB = 34, 100

vLANE, vL16, vT2a, vT2b, vT1a, vT1b, vD1, vD2 = 127, 126, 125, 124, 123, 122, 121, 120
vA0, vA1 = 123, 122


def srd(n):
    return f"s[{n}:{n + 3}]"


def sp(n):
    return f"s[{n}:{n + 1}]"


def vr(n, k):
    return f"v[{n}:{n + k - 1}]" if k > 1 else f"v{n}"


def f32(x):
    return "0x%08x" % struct.unpack("<I", struct.pack("<f", x))[0]


a = Prog()
_lab = [0]


def label(p):
    _lab[0] += 1
    return f"L_{p}_{_lab[0]}"


_stamp = [0]


def stamp(name, r=1):
    k = _stamp[0]
    _stamp[0] += 1
    STAMP_NAMES.append(name)
    a("; MARK after " + name)
    if OPT["probe"] == name.replace(" ", "_"):
        a(f"s_memrealtime {sp(sSTAMP)}\ns_waitcnt lgkmcnt(0)\ns_mov_b32 s101, s{sSTAMP}")
    if OPT["stamps"] != 1:
        return
    l = label("st")
    if OPT["dbgwg"] >= 0:
        if name not in DBG_SEL:
            return
        a(f"s_lshl_b32 s3, s{sWAVE}, 8\ns_add_u32 s3, s3, s2\ns_cmp_lg_u32 s3, {OPT['dbgwg']}\ns_cbranch_scc1 {l}")
        a(f"s_memrealtime {sp(sSTAMP)}")
        a("s_waitcnt lgkmcnt(0)")
        a(f"s_mov_b64 exec, 1\nv_mov_b32 v{r}, s{sSTAMP}\ns_mov_b32 s{sSTAMP}, s{P_DBG}\ns_mov_b32 s{sSTAMP + 1}, s{P_DBG + 1}\ns_mov_b32 s{sSTAMP + 2}, 256\ns_mov_b32 s{sSTAMP + 3}, 0x20000".replace(f"s{sSTAMP}, s{P_DBG}", f"s64, s{P_DBG}").replace(f"s{sSTAMP + 1}, s{P_DBG + 1}", f"s65, s{P_DBG + 1}").replace(f"s{sSTAMP + 2}, 256", "s66, 256").replace(f"s{sSTAMP + 3}, 0x20000", "s67, 0x20000"))
        a(f"buffer_store_dword v{r}, off, s[64:67], 0 offset:{12 + 4 * DBG_SEL.index(name)} sc1", optional=True)
        a("s_mov_b64 exec, -1")
        a(f"{l}:")
        return
    a(f"s_cmp_lg_u32 s{sWAVE}, 0")
    a(f"s_cbranch_scc1 {l}")
    a(f"{'s_memtime' if OPT['clk'] else 's_memrealtime'} {sp(sSTAMP)}")
    a("s_waitcnt lgkmcnt(0)")
    a(f"s_lshl_b32 s3, s2, 8")
    a(f"s_add_u32 s3, s3, {STAMPS + 4 * k}")
    a(f"v_mov_b32 v{r}, s{sSTAMP}")
    a("s_mov_b64 exec, 1")
    a(f"buffer_store_dword v{r}, off, {srd(S_WS)}, s3", optional=True)
    a("s_mov_b64 exec, -1")
    a(f"{l}:")


_cnt = [0]


def count_out(r):
    if OPT["stamps"] != 1:
        return
    k = _cnt[0]
    _cnt[0] += 1
    a(f"s_lshl_b32 s3, s2, 2\ns_add_u32 s3, s3, s{sWAVE}\ns_lshl_b32 s3, s3, 5\ns_add_u32 s3, s3, {STAMPS + 0x10000 + 4 * k}")
    a(f"v_mov_b32 v{r}, s{sCNT}\ns_mov_b64 exec, 1")
    a(f"buffer_store_dword v{r}, off, {srd(S_WS)}, s3")
    a("s_mov_b64 exec, -1")


DUMP = 0x2000000


def dump_lds(point, r=96):
    if OPT["dump"] != point:
        return
    a.barrier()
    a(f"s_lshl_b32 s3, s{sWAVE}, 10\nv_add_u32 v{r + 4}, s3, v{vL16}\ns_lshl_b32 s3, s2, 16\ns_add_u32 s3, s3, {DUMP}")
    for i in range(16):
        a(f"ds_read_b128 {vr(r, 4)}, v{r + 4} offset:{i * 4096}")
        a(f"buffer_store_dwordx4 {vr(r, 4)}, v{r + 4}, {srd(S_WS)}, s3 offen")
        a("s_add_u32 s3, s3, 4096")
        a.wait_vm0()
    a.barrier()


def cmul(d, x, y):
    return [f"v_pk_mul_f32 {vr(d, 2)}, {vr(x, 2)}, {vr(y, 2)} op_sel:[1,1] op_sel_hi:[1,0] neg_lo:[0,1]",
            f"v_pk_fma_f32 {vr(d, 2)}, {vr(x, 2)}, {vr(y, 2)}, {vr(d, 2)} op_sel_hi:[0,1,1]"]


def cmul2(p, q=None):
    x = cmul(*p)
    if q is None:
        a(x[0]); a(x[1])
        return
    y = cmul(*q)
    a(x[0]); a(y[0]); a(x[1]); a(y[1])


def unpack(dlo, dhi, s):
    a(f"v_lshlrev_b32 v{dlo}, 16, v{s}")
    a(f"v_and_b32 v{dhi}, s0, v{s}")


def prologue():
    a("s_cmp_lt_u32 s2, 256")
    a("s_cbranch_scc1 L_start")
    a("s_endpgm")
    a("L_start:")
    if OPT["fixdur"] or OPT["stamps"]:
        a("s_memrealtime s[50:51]")
    a("s_load_dwordx16 s[16:31], s[0:1], 0")
    a("s_load_dwordx16 s[32:47], s[0:1], 64")
    a("s_load_dwordx2 s[48:49], s[0:1], 128")
    a(f"v_lshrrev_b32 v1, 6, v0")
    a(f"v_and_b32 v{vLANE}, 63, v0")
    a(f"v_readfirstlane_b32 s{sWAVE}, v1")
    a(f"v_lshlrev_b32 v{vL16}, 4, v{vLANE}")
    a(f"""s_and_b32 s{sX}, s2, 7
s_lshr_b32 s{sJ}, s2, 3
s_add_u32 s{sJ}, s{sJ}, 28
s_and_b32 s{sJ}, s{sJ}, 31
""")
    a(f"""s_lshr_b32 s{sT0}, s{sX}, 2
s_mul_i32 s{sPAIR}, s{sX}, 28
s_sub_u32 s{sRC}, s{sJ}, s{sT0}
s_add_u32 s{sPAIR}, s{sPAIR}, s{sRC}
s_cmp_lt_u32 s{sRC}, 28
s_cselect_b32 s{sRC}, 1, 0
s_mul_i32 s{sT2}, s{sJ}, 37
s_lshr_b32 s{sT2}, s{sT2}, 8
s_mul_i32 s{sT3}, s{sT2}, 7
s_sub_u32 s{sDT1}, s{sJ}, s{sT3}
s_lshl_b32 s{sNT}, s{sT2}, 3
s_add_u32 s{sNT}, s{sNT}, s{sX}
s_sub_u32 s{sT1}, s{sJ}, 4
s_cselect_b32 s{sR2}, 0, 1
s_and_b32 s{sT1}, s{sT1}, 31
s_mul_i32 s{sT2}, s{sT1}, 37
s_lshr_b32 s{sT2}, s{sT2}, 8
s_mul_i32 s{sT3}, s{sT2}, 7
s_sub_u32 s{sDT2}, s{sT1}, s{sT3}
s_lshl_b32 s{sST}, s{sX}, 2
s_add_u32 s{sST}, s{sST}, s{sT2}
s_cmp_eq_u32 s{sJ}, 0
s_cselect_b32 s{sT1}, 32, s{sJ}
s_mul_i32 s{sT2}, s{sX}, 12
s_add_u32 s{sT2}, s{sT2}, s{sT1}
s_sub_u32 s{sT2}, s{sT2}, 53
s_lshl_b32 s{sT3}, s{sX}, 2
s_add_u32 s{sT3}, s{sT3}, s{sJ}
s_sub_u32 s{sT3}, s{sT3}, 28
s_cmp_lg_u32 s{sT0}, 0
s_cselect_b32 s{sT1}, s{sT1}, s{sJ}
s_cselect_b32 s{sLN0}, s{sT2}, s{sT3}
s_cselect_b32 s{sRL0}, 21, 28
s_cmp_ge_u32 s{sT1}, s{sRL0}
s_cselect_b32 s{sRL0}, 1, 0""" if OPT["map18"] == 1 else f"""s_and_b32 s{sT0}, s{sX}, 1
s_lshr_b32 s{sT1}, s{sX}, 1
s_mul_i32 s{sPAIR}, s{sX}, 28
s_sub_u32 s{sRC}, s{sJ}, s{sT0}
s_add_u32 s{sPAIR}, s{sPAIR}, s{sRC}
s_cmp_lt_u32 s{sRC}, 28
s_cselect_b32 s{sRC}, 1, 0
s_mul_i32 s{sT2}, s{sJ}, 37
s_lshr_b32 s{sT2}, s{sT2}, 8
s_mul_i32 s{sT3}, s{sT2}, 7
s_sub_u32 s{sT3}, s{sJ}, s{sT3}
s_mul_i32 s{sNT}, s{sT1}, 7
s_add_u32 s{sNT}, s{sNT}, s{sT3}
s_lshl_b32 s{sT3}, s{sT0}, 2
s_add_u32 s{sDT1}, s{sT2}, s{sT3}
s_lshl_b32 s{sST}, s{sT0}, 3
s_sub_u32 s{sST}, s{sJ}, s{sST}
s_cselect_b32 s{sR2}, 0, 1
s_lshr_b32 s{sDT2}, s{sST}, 3
s_and_b32 s{sDT2}, s{sDT2}, 3
s_add_u32 s{sDT2}, s{sDT2}, s{sT3}
s_and_b32 s{sST}, s{sST}, 7
s_lshl_b32 s{sLN0}, s{sT1}, 4
s_lshl_b32 s{sT1}, s{sT1}, 3
s_add_u32 s{sST}, s{sST}, s{sT1}
s_cmp_eq_u32 s{sJ}, 0
s_cselect_b32 s{sT1}, 32, s{sJ}
s_mul_i32 s{sT2}, s{sT0}, 11
s_add_u32 s{sT2}, s{sT2}, s{sT1}
s_cmp_lg_u32 s{sT0}, 0
s_cselect_b32 s{sT1}, s{sT1}, s{sJ}
s_cselect_b32 s{sT2}, s{sT2}, s{sJ}
s_cselect_b32 s{sRL0}, 21, 28
s_cmp_ge_u32 s{sT1}, s{sRL0}
s_cselect_b32 s{sRL0}, 1, 0
s_add_u32 s{sLN0}, s{sLN0}, s{sT2}
s_sub_u32 s{sLN0}, s{sLN0}, 28""")
    if OPT["map18"] == 2:
        a(f"""s_sub_u32 s{sT1}, s{sJ}, 4
s_cselect_b32 s{sR2}, 0, 1
s_and_b32 s{sT1}, s{sT1}, 31
s_mul_i32 s{sT2}, s{sT1}, 37
s_lshr_b32 s{sT2}, s{sT2}, 8
s_mul_i32 s{sT3}, s{sT2}, 7
s_sub_u32 s{sDT2}, s{sT1}, s{sT3}
s_lshl_b32 s{sST}, s{sX}, 2
s_add_u32 s{sST}, s{sST}, s{sT2}""")
    a(f"""s_lshl_b32 s{sLN}, s{sX}, 4
s_add_u32 s{sLN}, s{sLN}, s{sJ}
s_sub_u32 s{sLN}, s{sLN}, 8
s_mul_i32 s{sT2}, s{sT0}, 7
s_sub_u32 s{sT2}, 28, s{sT2}
s_cmp_lt_u32 s{sJ}, s{sT2}
s_cselect_b32 s{sR1}, 1, 0
s_sub_u32 s{sT2}, s{sJ}, 8
s_cmp_lt_u32 s{sT2}, 16
s_cselect_b32 s{sRL}, 1, 0
s_min_u32 s{sPAIR}, s{sPAIR}, 223
s_min_u32 s{sNT}, s{sNT}, 27
s_mov_b32 s{sM1}, 0xaaaaaaaa
s_mov_b32 s{sM1 + 1}, 0xaaaaaaaa
s_mov_b32 s{sM2}, 0xcccccccc
s_mov_b32 s{sM2 + 1}, 0xcccccccc""")
    a("s_waitcnt lgkmcnt(0)")
    if OPT["fixdur"] or OPT["stamps"]:
        a("s_mov_b32 s101, s50")
    a("s_mov_b32 s0, 0xffff0000\ns_mov_b32 s1, 0xffff")
    a(f"""s_lshl_b32 s{sT0}, s{sPAIR}, 2
s_load_dword s{sLDT}, {sp(P_LDT)}, s{sT0}
s_load_dword s{sD0}, {sp(P_DSK)}, s{sT0}""")
    kgen_loads()
    for n, p, size in ((S_X0, P_U, 1835008), (S_WS, P_WS, WS_BYTES), (S_OUT, P_OUT, 1835008)):
        a(f"s_mov_b32 s{n}, s{p}\ns_mov_b32 s{n + 1}, s{p + 1}\ns_mov_b32 s{n + 2}, {size}\ns_mov_b32 s{n + 3}, 0x20000")
    a(f"buffer_load_dwordx2 v[104:105], off, {srd(S_WS)}, 0 offset:{EPOCH} sc1")
    for n, p, role in ((S_W1, P_W1, sR1), (S_W2, P_W2, sR2)):
        a(f"s_mov_b32 s{n}, s{p}\ns_mov_b32 s{n + 1}, s{p + 1}\ns_cmp_lg_u32 s{role}, 0\ns_cselect_b32 s{n + 2}, {0 if OPT['now'] & (1 if n == S_W1 else 2) else 7340032}, 0\ns_mov_b32 s{n + 3}, 0x20000")


sAUX = 75


def code_warm(r):
    if not OPT["warm"]:
        return
    a(f"""s_lshl_b32 s{sT0}, s{sJ}, 2
s_add_u32 s{sT0}, s{sT0}, s{sWAVE}
s_mul_i32 s{sT0}, s{sT0}, 640
v_lshl_add_u32 v{r}, v{vLANE}, 7, s{sT0}
s_mov_b32 s{sT1}, ktab-L_entry+8192
v_min_u32 v{r}, s{sT1}, v{r}
s_sub_u32 s28, s{sTAB}, ktab-L_entry
s_subb_u32 s29, s{sTAB + 1}, 0
s_mov_b64 exec, 31
global_load_dword v{r}, v{r}, s[28:29]
s_mov_b64 exec, -1""")


def page_warm(r):
    if not OPT["tlb"]:
        return
    a(f"""v_lshlrev_b32 v{r}, 21, v{vLANE}
v_add_u32 v{r}, 0x1fff80, v{r}
s_mov_b64 exec, 0x3ff
buffer_load_dword v{r}, v{r}, {srd(S_WS)}, 0 offen
s_mov_b64 exec, 1
buffer_load_dword v{r + 1}, off, {srd(S_OUT)}, 0
global_load_dword v{r + 2}, v{vLANE}, {sp(P_B1)}
global_load_dword v{r + 3}, v{vLANE}, {sp(P_B2)}
s_mov_b64 exec, -1""")


def fill(base, n, r, sidx, stride, tag="st0"):
    a(f"""s_lshl_b32 s{sT0}, s{sidx}, 12
s_lshl_b32 s{sT1}, s{sWAVE}, 10
s_add_u32 s{sT0}, s{sT0}, s{sT1}
s_add_u32 s{sT0}, s{sT0}, {base}""")
    for k in range(4):
        a(f"v_mov_b32 v{r + k}, -1")
    for k in range(n):
        a(f"buffer_store_dwordx4 {vr(r, 4)}, v{vL16}, {srd(S_WS)}, s{sT0} offen sc1{' nt' if OPT['fnt'] else ''}", tag=tag)
        if k + 1 < n:
            a(f"s_add_u32 s{sT0}, s{sT0}, {stride}")


def aux_loads():
    a(f"""s_and_b32 s{sAUX}, s{sJ}, 3
s_lshl_b32 s{sAUX}, s{sAUX}, 3
s_add_u32 s{sAUX}, s{sAUX}, s{sX}
s_lshl_b32 s16, s{sAUX}, 2
s_add_u32 s16, s16, s{sWAVE}
s_mul_i32 s{sT1}, s16, {16 * 896}
s_mul_i32 s17, s{sWAVE}, {16 * 912}
s_mov_b32 m0, s17
s_mov_b32 exec_hi, 0xffffff""")
    for k in range(16):
        if k:
            a(f"s_add_u32 m0, m0, 912\ns_add_u32 s{sT1}, s{sT1}, 896")
        a(f"buffer_load_dwordx4 v{vL16}, {srd(S_X0)}, s{sT1} offen {'nt ' if OPT['xnt'] & 2 else ''}lds", res_w=[f"x0"])
    a("s_mov_b64 exec, -1")


def aux_work():
    XR = 8
    a(f"""v_mov_b32 v76, 0
v_mov_b32 v77, 0
v_mov_b32 v78, 0
v_mov_b32 v79, 0
s_lshl_b32 s{sT1}, s16, {8 if emode(4) == "C" else 7}
s_add_u32 s{sT1}, s{sT1}, {ST1}
s_lshl_b32 s18, s{sAUX}, 7
s_add_u32 s18, s18, {ST0}
s_mov_b64 exec, {"0xffff" if emode(4) == "C" else "0xff"}""")
    a(f"buffer_store_dwordx4 v[76:79], v{vL16}, {srd(S_WS)}, s{sT1} offen sc1", tag="st0")
    a(f"""s_mov_b64 exec, -1
v_and_b32 v2, 15, v{vLANE}
v_lshrrev_b32 v3, 4, v{vLANE}
v_mul_u32_u24 v4, 912, v2
v_lshl_add_u32 v4, v3, 4, v4
v_add_u32 v4, s17, v4
v_lshrrev_b32 v6, 2, v2
v_cmp_eq_u32 vcc, v6, v3
v_bfe_u32 v6, v2, 1, 2
v_lshlrev_b32 v6, 7, v6
v_lshrrev_b32 v7, 3, v2
v_lshl_add_u32 v6, v7, 4, v6
v_and_b32 v7, 1, v2
v_lshl_add_u32 v6, v7, 2, v6
s_lshl_b32 s{sT0}, s{sWAVE}, 5
s_add_u32 s{sT0}, s{sT0}, 60000
v_add_u32 v6, s{sT0}, v6
v_mov_b32 v7, 61024
v_cndmask_b32 v6, v7, v6, vcc
v_lshrrev_b32 v117, 3, v{vLANE}
v_cmp_eq_u32 vcc, s{sWAVE}, v117
v_lshlrev_b32 v117, 12, v117
v_and_b32 v7, 7, v{vLANE}
v_lshl_add_u32 v117, v7, 4, v117
v_mov_b32 v7, {OOB}
v_cndmask_b32 v117, v7, v117, vcc
v_mov_b32 v80, 0x3f803f80
v_mov_b32 v81, 0x3f803f80
v_mov_b32 v82, 0x3f803f80
v_mov_b32 v83, 0x3f803f80""")
    if OPT["stamps"] == 1:
        a.wait_vm0()
    stamp("aux data")
    for k in range(14):
        a(f"ds_read_b128 {vr(XR + 4 * k, 4)}, v4 offset:{64 * k}", res_r=["x0"])
    for k in range(14):
        x = vr(XR + 4 * k, 4)
        a(f"v_mfma_f32_16x16x32_bf16 v[64:67], v[80:83], {x}, {'v[64:67]' if k else 0}")
        a(f"v_mfma_f32_16x16x32_bf16 v[68:71], {x}, {x}, {'v[68:71]' if k else 0}")
    a(f"""v_cndmask_b32 v68, v68, v69, {sp(sM1)}
v_cndmask_b32 v70, v70, v71, {sp(sM1)}
v_cndmask_b32 v68, v68, v70, {sp(sM2)}""")
    a("ds_write2_b32 v6, v64, v68 offset0:0 offset1:2")
    a.barrier()
    a(f"ds_read_b128 v[64:67], v{vL16} offset:60000")
    a(f"buffer_store_dwordx4 v[64:67], v117, {srd(S_WS)}, s18 offen sc1", tag="st0")
    stamp("aux st")
    nonce_take()
    flag_put(0, f"s_add_u32 s{sT0}, s{sAUX}, 224\ns_lshl_b32 s{sT0}, s{sT0}, 6", 72, "st0")


def xt_loads():
    a(f"""s_lshl_b32 s{sT0}, s{sPAIR}, 1
s_lshr_b32 s{sT1}, s{sWAVE}, 1
s_add_u32 s{sT0}, s{sT0}, s{sT1}
s_mul_i32 s{sT1}, s{sT0}, 9363
s_lshr_b32 s{sT1}, s{sT1}, 16
s_mul_i32 s{sT2}, s{sT1}, 7
s_sub_u32 s{sT0}, s{sT0}, s{sT2}
s_lshl_b32 s{sT0}, s{sT0}, 1
s_and_b32 s{sT2}, s{sWAVE}, 1
s_add_u32 s{sT0}, s{sT0}, s{sT2}
s_mul_i32 s{sT2}, s{sT1}, {32 * 896}
s_lshl_b32 s{sT3}, s{sT0}, 6
s_add_u32 s{sT2}, s{sT2}, s{sT3}
v_lshrrev_b32 v2, 2, v{vLANE}
v_mul_u32_u24 v2, 896, v2
v_and_b32 v3, 3, v{vLANE}
v_lshl_add_u32 v2, v3, 4, v2
s_mul_i32 s22, s{sWAVE}, {GST}
s_mov_b32 m0, s22
s_mul_i32 s23, s{sT1}, {BS}""")
    a(f"buffer_load_dwordx4 v2, {srd(S_X0)}, s{sT2} offen {'nt ' if OPT['xnt'] & 1 else ''}lds", res_w=["x0"])
    a(f"s_add_u32 m0, m0, 1024\ns_add_u32 s{sT2}, s{sT2}, {16 * 896}")
    a(f"buffer_load_dwordx4 v2, {srd(S_X0)}, s{sT2} offen {'nt ' if OPT['xnt'] & 1 else ''}lds", res_w=["x0"])
    a(f"""s_lshl_b32 s{sT0}, s{sT0}, 11
s_add_u32 s23, s23, s{sT0}
s_add_u32 s23, s23, {X0}
v_lshrrev_b32 v2, 4, v{vLANE}
v_bfe_u32 v36, v{vLANE}, 2, 2
v_lshl_add_u32 v36, v2, 3, v36
v_lshlrev_b32 v36, 6, v36
v_lshl_add_u32 v36, v3, 3, v36
v_add_u32 v36, s22, v36
v_and_b32 v37, 15, v{vLANE}
v_lshlrev_b32 v37, 6, v37
v_lshl_add_u32 v37, v2, 4, v37""")


def xt_work():
    for u in range(2):
        for j in range(2):
            a(f"ds_read_b64_tr_b16 {vr(40 + 4 * u + 2 * j, 2)}, v36 offset:{j * 256 + u * 32}", res_r=["x0"])
    for u in range(2):
        a(f"buffer_store_dwordx4 {vr(40 + 4 * u, 4)}, v37, {srd(S_WS)}, s23 offen offset:{1024 * u} sc1", tag="st0")


def xt_poll_addr(ra, t):
    a(f"""s_lshl_b32 s{sT0}, s{sWAVE}, 4
v_and_b32 v{t}, 15, v{vLANE}
v_add_u32 v{t}, s{sT0}, v{t}
v_mul_u32_u24 v{t}, 7, v{t}
s_lshr_b32 s{sT0}, s{sPAIR}, 5
v_add_u32 v{t}, s{sT0}, v{t}
v_lshrrev_b32 v{t}, 1, v{t}
s_lshl_b32 s{sT0}, s{sWAVE}, 3
s_add_u32 s{sT0}, s{sT0}, 224
v_and_b32 v{ra}, 7, v{vLANE}
v_add_u32 v{ra}, s{sT0}, v{ra}
v_cmp_gt_u32 vcc, 16, v{vLANE}
v_cndmask_b32 v{ra}, v{ra}, v{t}, vcc""")


def e1_poll_addr(ra):
    a(f"s_lshl_b32 s{sT0}, s{sWAVE}, 6\nv_add_u32 v{ra}, s{sT0}, v{vLANE}")


def nonce_take():
    a(f"v_readfirstlane_b32 s{sNONCE}, v104\nv_readfirstlane_b32 s{sNONCE + 1}, v105")
    a(f"s_add_u32 s{sNONCE}, s{sNONCE}, 1")
    a(f"s_addc_u32 s{sNONCE + 1}, s{sNONCE + 1}, 0")


def nonce_retire():
    l = label("nr")
    a(f"s_or_b32 s{sT0}, s2, s{sWAVE}")
    a(f"s_cmp_lg_u32 s{sT0}, 32")
    a(f"s_cbranch_scc1 {l}")
    a(f"v_mov_b32 v110, s{sNONCE}\nv_mov_b32 v111, s{sNONCE + 1}\ns_mov_b64 exec, 1")
    a(f"buffer_store_dwordx2 v[110:111], off, {srd(S_WS)}, 0 offset:{EPOCH} sc1", optional=True)
    a("s_mov_b64 exec, -1")
    a(f"{l}:")


def flag_put(edge, sprod, r, tag):
    a(f"s_lshl_b32 s{sT0}, s{sprod}, 6" if isinstance(sprod, int) else sprod)
    a(f"""s_lshl_b32 s{sT1}, s{sWAVE}, 15
s_add_u32 s{sT0}, s{sT0}, s{sT1}
s_add_u32 s{sT0}, s{sT0}, {FL + edge * 0x20000}
v_lshlrev_b32 v{r + 4}, 12, v{vLANE}
v_and_b32 v{r + 4}, 0x4000, v{r + 4}
v_and_b32 v{r}, 3, v{vLANE}
v_lshl_add_u32 v{r + 4}, v{r}, 4, v{r + 4}
v_mov_b32 v{r}, s{sNONCE}
v_mov_b32 v{r + 1}, s{sNONCE + 1}
v_mov_b32 v{r + 2}, s{sNONCE}
v_mov_b32 v{r + 3}, s{sNONCE + 1}""")
    a.wait_tag(tag)
    a.barrier()
    a("s_mov_b64 exec, 0xff")
    a(f"buffer_store_dwordx4 {vr(r, 4)}, v{r + 4}, {srd(S_WS)}, s{sT0} offen sc1", tag="flag")
    a("s_mov_b64 exec, -1")


def emode(e):
    return OPT["em"][e - 1]


def hinted(e):
    return emode(e) in "HSMGC"


def sentinel(e):
    return emode(e) in "SDM"


def flagged(e):
    return emode(e) in "FHG"


def armed(layer):
    return any(sentinel(e + 4 * layer) for e in (1, 2, 3))


def wait_edge(e, r, ra_full, ra_samp):
    if hinted(e):
        poll_issue(e + 10, r, ra_samp)
        poll_take(r, ra_samp)
    elif emode(e) == "D":
        a.wait_tag("pub")
    else:
        a.wait_tag("flag")
    if flagged(e):
        poll_issue(e, r, ra_full)
        poll_take(r, ra_full)


def hint_prep(edge, sprod, r):
    a(f"s_lshl_b32 s{sT0}, s{sprod}, 6" if isinstance(sprod, int) else sprod)
    a(f"""s_lshl_b32 s{sT1}, s{sWAVE}, 15
s_add_u32 s{sT0}, s{sT0}, s{sT1}
s_add_u32 s{sT0}, s{sT0}, {FL + edge * 0x20000}
v_lshlrev_b32 v{r + 4}, 12, v{vLANE}
v_and_b32 v{r + 4}, 0x4000, v{r + 4}
v_and_b32 v{r}, 3, v{vLANE}
v_lshl_add_u32 v{r + 4}, v{r}, 4, v{r + 4}
v_add_u32 v{r + 4}, s{sT0}, v{r + 4}
v_mov_b32 v{r}, s{sNONCE}
v_mov_b32 v{r + 1}, s{sNONCE + 1}
v_mov_b32 v{r + 2}, s{sNONCE}
v_mov_b32 v{r + 3}, s{sNONCE + 1}""")


def hint_put(r):
    a("s_mov_b64 exec, 0xff")
    a(f"buffer_store_dwordx4 {vr(r, 4)}, v{r + 4}, {srd(S_WS)}, 0 offen sc1", tag="hint")
    a("s_mov_b64 exec, -1")


def poll_issue(edge, r, ra=None):
    ra = r + 2 if ra is None else ra
    a(f"""s_lshl_b32 s{sT3}, s{sX}, 14
s_add_u32 s{sT3}, s{sT3}, {FL + edge * 0x20000}
v_lshl_add_u32 v{ra}, v{ra}, 6, s{sT3}
buffer_load_dwordx2 {vr(r, 2)}, v{ra}, {srd(S_WS)}, 0 offen sc1""")


def poll_take(r, ra=None):
    ra = r + 2 if ra is None else ra
    ok, lp = label("pok"), label("plp")
    a(f"v_cmp_ne_u64 vcc, {sp(sNONCE)}, {vr(r, 2)}")
    a(f"s_cbranch_vccz {ok}")
    a(f"s_mov_b32 s{sCNT}, 0")
    a(f"{lp}:")
    if OPT["slp"]:
        a(f"s_sleep {OPT['slp']}")
    a(f"buffer_load_dwordx2 {vr(r, 2)}, v{ra}, {srd(S_WS)}, 0 offen sc1")
    a("s_waitcnt vmcnt(0)")
    a(f"v_cmp_ne_u64 vcc, {sp(sNONCE)}, {vr(r, 2)}")
    a(f"s_add_u32 s{sCNT}, s{sCNT}, 1")
    a(f"s_cbranch_vccz {ok}")
    a(f"s_cmp_lt_u32 s{sCNT}, 0x100000")
    a(f"s_cbranch_scc1 {lp}")
    a(f"{ok}:")


sW1O, sW2O = 98, 99
sROT1, sROT2 = 33, 35
sW1E, sW2E = 78, 79


def w_setup():
    a(f"""v_lshrrev_b32 v2, 3, v{vLANE}
v_and_b32 v3, 7, v{vLANE}
v_bfe_u32 v4, v{vLANE}, 4, 1
v_lshlrev_b32 v4, 2, v4
v_xor_b32 v3, v3, v4
v_lshlrev_b32 v3, 4, v3
v_mul_u32_u24 v{vD1}, 3584, v2
v_add_u32 v{vD1}, v{vD1}, v3
v_lshl_add_u32 v{vD2}, v2, 12, v3
v_bfe_u32 v2, v{vLANE}, 2, 2
v_lshrrev_b32 v3, 5, v{vLANE}
v_bfe_u32 v4, v{vLANE}, 4, 1
v_and_b32 v5, 3, v{vLANE}
v_lshlrev_b32 v5, 3, v5
v_lshl_add_u32 v5, v4, 5, v5
v_lshrrev_b32 v4, 1, v2
v_lshl_add_u32 v5, v4, 6, v5
s_lshr_b32 s{sT0}, s{sWAVE}, 1
s_lshl_b32 s{sT0}, s{sT0}, 6
v_xor_b32 v5, s{sT0}, v5
v_lshl_add_u32 v5, v2, 7, v5
s_mul_i32 s{sT1}, s{sWAVE}, 24576
s_add_u32 s{sT1}, s{sT1}, {W2L}
v_add_u32 v5, s{sT1}, v5
v_lshl_add_u32 v{vT1a}, v3, 10, v5
v_xor_b32 v{vT1b}, 64, v{vT1a}
v_lshl_add_u32 v{vT2a}, v3, 9, v5
v_xor_b32 v{vT2b}, 64, v{vT2a}
s_mul_i32 s{sW1O}, s{sWAVE}, {512 * 3584}
s_lshl_b32 s{sT0}, s{sNT}, 7
s_add_u32 s{sW1O}, s{sW1O}, s{sT0}
s_mul_i32 s{sW2O}, s{sWAVE}, {448 * 4096}
s_lshl_b32 s{sT0}, s{sST}, 7
s_add_u32 s{sW2O}, s{sW2O}, s{sT0}
s_mov_b32 s{sWOFF}, s{sT1}""")
    if OPT["rot"] and OPT["map18"] == 1:
        if OPT["rot"] == 2:
            a(f"""s_add_u32 s{sROT1}, s{sDT1}, s{sX}
s_and_b32 s{sROT1}, s{sROT1}, 7
s_add_u32 s{sROT2}, s{sDT2}, s{sX}
s_cmp_ge_u32 s{sROT2}, 7
s_cselect_b32 s{sT0}, 7, 0
s_sub_u32 s{sROT2}, s{sROT2}, s{sT0}""")
        else:
            a(f"s_mov_b32 s{sROT1}, s{sDT1}\ns_mov_b32 s{sROT2}, s{sDT2}")
    elif OPT["rot"] == 3:
        a(f"""s_and_b32 s{sT0}, s{sDT1}, 3
s_lshr_b32 s{sT1}, s{sDT1}, 2
s_add_u32 s{sT1}, s{sT1}, 2
s_mul_i32 s{sROT1}, s{sT0}, s{sT1}
s_min_u32 s{sROT1}, s{sROT1}, 7
s_and_b32 s{sT0}, s{sDT2}, 3
s_lshr_b32 s{sT1}, s{sDT2}, 2
s_add_u32 s{sT1}, s{sT1}, 2
s_mul_i32 s{sROT2}, s{sT0}, s{sT1}
s_min_u32 s{sROT2}, s{sROT2}, 5""")
    elif OPT["rot"]:
        a(f"""s_and_b32 s{sT0}, s{sDT1}, 3
s_lshl_b32 s{sT0}, s{sT0}, 1
s_lshr_b32 s{sT1}, s{sDT1}, 2
s_add_u32 s{sT0}, s{sT0}, s{sT1}
s_and_b32 s{sROT1}, s{sT0}, 7
s_and_b32 s{sT0}, s{sDT2}, 3
s_lshl_b32 s{sT0}, s{sT0}, 1
s_lshr_b32 s{sT1}, s{sDT2}, 2
s_add_u32 s{sT0}, s{sT0}, s{sT1}
s_min_u32 s{sROT2}, s{sT0}, 6""")
        if OPT["map18"] == 2:
            a(f"s_mov_b32 s{sROT2}, s{sDT2}")
    else:
        a(f"s_mov_b32 s{sROT1}, 0\ns_mov_b32 s{sROT2}, 0")
    a(f"""s_add_u32 s{sW1E}, s{sW1O}, {512 * 3584}
s_mul_i32 s{sT0}, s{sROT1}, {64 * 3584}
s_add_u32 s{sW1O}, s{sW1O}, s{sT0}
s_add_u32 s{sW2E}, s{sW2O}, {448 * 4096}
s_mul_i32 s{sT0}, s{sROT2}, {64 * 4096}
s_add_u32 s{sW2O}, s{sW2O}, s{sT0}""")


WORDER = list(range(0, 4)) + list(range(32, 36)) + list(range(4, 32)) + list(range(36, 60))


def w_dma(pos, half):
    slot = pos % 12
    n = WORDER[pos]
    pol = ("", "nt ", "sc1 ", "sc0 sc1 ", "sc0 sc1 nt ")[OPT["wnt"]] if (OPT["wnta"] or pos < 2 * OPT["wg"]) else ""
    g = [Ins(f"s_add_u32 m0, s{sWOFF}, {slot * 2048 + half * 1024}")]
    if n < 32:
        g.append(Ins(f"s_add_u32 s{sW1O}, s{sW1O}, {8 * 3584}") if (n or half) else Ins("s_nop 0"))
        if n and n % 4 == 0 and half == 0:
            g += [Ins(f"s_cmp_eq_u32 s{sW1O}, s{sW1E}"), Ins(f"s_cselect_b32 s3, {512 * 3584}, 0"), Ins(f"s_sub_u32 s{sW1O}, s{sW1O}, s3")]
        g.append(Ins(f"buffer_load_dwordx4 v{vD1}, {srd(S_W1)}, s{sW1O} offen {pol}lds", res_w=[f"slot{slot}"]))
    else:
        g.append(Ins(f"s_add_u32 s{sW2O}, s{sW2O}, {8 * 4096}") if (n > 32 or half) else Ins("s_nop 0"))
        if n > 32 and n % 4 == 0 and half == 0:
            g += [Ins(f"s_cmp_eq_u32 s{sW2O}, s{sW2E}"), Ins(f"s_cselect_b32 s3, {448 * 4096}, 0"), Ins(f"s_sub_u32 s{sW2O}, s{sW2O}, s3")]
        g.append(Ins(f"buffer_load_dwordx4 v{vD2}, {srd(S_W2)}, s{sW2O} offen {pol}lds", res_w=[f"slot{slot}"]))
    return g


def w_tr(pos):
    slot = pos % 12
    n = WORDER[pos]
    g = []
    for nb in range(2):
        for j in range(2):
            if n < 32:
                r = (n * 2 + nb) * 4 + 2 * j
                g.append(Ins(f"ds_read_b64_tr_b16 a[{r}:{r + 1}], v{(vT1a, vT1b)[nb]} offset:{slot * 2048 + j * 512}", res_r=[f"slot{slot}"]))
            else:
                r = 128 + ((n - 32) * 2 + nb) * 4 + 2 * j
                g.append(Ins(f"ds_read_b64_tr_b16 v[{r}:{r + 1}], v{(vT2a, vT2b)[nb]} offset:{slot * 2048 + j * 1024}", res_r=[f"slot{slot}"]))
    return g


def w_all_upfront():
    for n in range(12):
        a.put(w_dma(n, 0)); a.put(w_dma(n, 1))
    for n in range(48):
        a.put(w_tr(n))
        if n >= 1:
            a.put(w_dma(n + 11, 0)); a.put(w_dma(n + 11, 1))
    a.put(w_dma(59, 0)); a.put(w_dma(59, 1))
    a.wait_vm0()
    a.wait_lgkm0()


GX = 80
CS = 64
PR = 56
TAB = 104


def kgen_loads():
    a(f"""s_lshl_b32 s{sT0}, s{sPAIR}, 10
s_lshl_b32 s{sT1}, s{sWAVE}, 8
s_add_u32 s{sT0}, s{sT0}, s{sT1}
v_lshl_add_u32 v3, v{vLANE}, 2, s{sT0}""")
    for k, p in enumerate((P_ARE, P_AIM, P_BRE, P_BIM, P_CRE, P_CIM)):
        a(f"global_load_dword v{PR + k}, v3, {sp(p)}{' nt' if OPT['pnt'] else ''}")


def kgen_table_addr():
    l = label("pc")
    a(f"s_getpc_b64 {sp(sTAB)}")
    a(f"{l}:")
    a(f"s_add_u32 s{sTAB}, s{sTAB}, ktab-{l}")
    a(f"s_addc_u32 s{sTAB + 1}, s{sTAB + 1}, 0")


def kgen_table_load():
    kgen_table_addr()
    a(f"s_lshr_b32 s{sT0}, s{sWAVE}, 1\ns_lshl_b32 s{sT0}, s{sT0}, 5\nv_lshl_add_u32 v75, v0, 5, s{sT0}")


KBG = []


def kgen(hooks):
    F = {e: 2 * e for e in range(1, 8)}
    Qr = {1: 16, 2: 18, 3: 20, 4: 22}
    QN = [24, 26]
    Z1, Z2, C0, C1 = 28, 30, 32, 34
    CN = [36, 38]
    T0, T1 = 62, 64
    CV = [66, 67, 68, 69]
    A2, B2, DT = 70, 71, 72
    ACC = 76
    QF = 88
    PF = 40
    vG, vF = 73, 74
    a(f"""s_mul_i32 s{sT0}, s{sWAVE}, {GST}
v_lshl_add_u32 v{vG}, v{vLANE}, 2, s{sT0}
v_and_b32 v2, 15, v{vLANE}
v_mul_u32_u24 v2, {GROW}, v2
v_lshrrev_b32 v3, 4, v{vLANE}
v_lshl_add_u32 v2, v3, 4, v2
v_add_u32 v{vF}, s{sT0}, v2""")
    a.begin()
    a(f"""s_lshr_b32 s{sT0}, s{sWAVE}, 1
s_lshl_b32 s{sT0}, s{sT0}, 4
s_lshr_b32 s{sT0}, s{sLDT}, s{sT0}
s_lshl_b32 s{sT0}, s{sT0}, 16
v_mov_b32 v2, {f32(math.log2(math.e))}
v_mul_f32 v2, s{sT0}, v2
v_exp_f32 v2, v2
v_cvt_pk_bf16_f32 v2, v2, v2
v_lshlrev_b32 v{DT}, 16, v2
s_and_b32 s{sD1}, s{sD0}, 0xffff0000
s_lshl_b32 s{sD0}, s{sD0}, 16""")
    cvi = [0]

    def hook(name):
        if name is not None and name not in hooks:
            return
        a_body = space_ds(a.end(), OPT["lag"], OPT["gap"])
        m, rest = merge(a_body, KBG[:], 20, OPT["ev_kg"])
        del KBG[:]
        a.put(m)
        put_all(rest)
        if name is not None:
            hooks[name]()
            a.begin()

    def row(r, src, neg=False):
        c = CV[cvi[0] % 4]
        cvi[0] += 1
        a(f"v_cvt_pk_bf16_f32 v{c}, v{src}, {'-' if neg else ''}v{src + 1}")
        a(f"ds_write_b32 v{vG}, v{c} offset:{r * GROW}")

    def reads(dst, tile):
        for ks in range(4):
            a(f"ds_read_b128 {vr(dst + 4 * ks, 4)}, v{vF} offset:{tile * 16 * GROW + ks * 64}")

    def mfmas(t, first):
        for ks in range(4):
            c = "0" if (first and ks == 0) else vr(ACC + 4 * t, 4)
            a(f"v_mfma_f32_16x16x32_bf16 {vr(ACC + 4 * t, 4)}, {vr(PF + 4 * ks, 4)}, {vr(QF + 4 * ks, 4)}, {c}")

    def direct(d, scale):
        if scale != 1:
            a(f"v_mul_f32 v{T0}, {f32(scale)}, v{A2}")
            a(f"v_mul_f32 v{T1}, {f32(scale)}, v{B2}")
            x, y = T0, T1
        else:
            x, y = A2, B2
        a(f"v_fract_f32 v{T1}, v{y}")
        a(f"v_exp_f32 v{T0}, v{x}")
        a(f"v_cos_f32 v{d}, v{T1}")
        a(f"v_sin_f32 v{d + 1}, v{T1}")
        a(f"v_pk_mul_f32 {vr(d, 2)}, {vr(d, 2)}, {vr(T0, 2)} op_sel_hi:[1,0]")

    for rd in range(2):
        def up(d, s):
            a(f"v_lshlrev_b32 v{d}, 16, v{s}" if rd == 0 else f"v_and_b32 v{d}, s0, v{s}")
        up(A2, PR); up(B2, PR + 1)
        up(QN[0], PR + 2); up(QN[0] + 1, PR + 3)
        up(QN[1], PR + 4); up(QN[1] + 1, PR + 5)
        a(f"v_mul_f32 v{A2}, v{DT}, v{A2}")
        a(f"v_mul_f32 v{B2}, v{DT}, v{B2}")
        a(f"v_pk_mul_f32 {vr(QN[0], 2)}, {vr(QN[0], 2)}, {vr(DT, 2)} op_sel_hi:[1,0]")
        a(f"v_mul_f32 v{A2}, {f32(math.log2(math.e))}, v{A2}")
        a(f"v_mul_f32 v{B2}, {f32(1 / (2 * math.pi))}, v{B2}")
        cmul2((C0, QN[1], QN[0]))
        direct(F[1], 1)
        if rd == 1:
            mfmas(2, True)
        direct(Z1, 128)
        hook(5 * rd)
        cmul2((F[2], F[1], F[1]), (Z2, Z1, Z1))
        cmul2((F[4], F[2], F[2]), (F[3], F[2], F[1]))
        cmul2((Qr[1], F[4], F[4]), (C1, C0, Z1))
        a(f"v_mov_b32 v{CV[3]}, 0x3f80")
        a(f"ds_write_b32 v{vG}, v{CV[3]}")
        cmul2((Qr[2], Qr[1], Qr[1]), (F[5], F[4], F[1]))
        row(1, Qr[1], True)
        cmul2((Qr[3], Qr[2], Qr[1]), (Qr[4], Qr[2], Qr[2]))
        row(2, Qr[2], True)
        cmul2((F[6], F[4], F[2]), (F[7], F[4], F[3]))
        row(3, Qr[3], True)
        row(4, Qr[4], True)
        cur = {1: Qr[1], 2: Qr[2], 3: Qr[3], 0: Qr[4]}
        free = list(QN) + [CN[0]]
        j = 5
        while j < 16:
            js = [j] + ([j + 1] if j + 1 < 16 else [])
            ps = []
            for jj in js:
                d = free.pop(0)
                ps.append((d, cur[jj % 4], Qr[4]))
            cmul2(*ps)
            for jj, p in zip(js, ps):
                if cur[jj % 4] != Qr[4]:
                    free.append(cur[jj % 4])
                cur[jj % 4] = p[0]
                row(jj, p[0], True)
            j += 2
        reads(QF, 0)
        hook(5 * rd + 1)
        TA, TB = QN
        row(16, C0); row(24, C1)
        for e in range(1, 8):
            cmul2((TA, C0, F[e]), (TB, C1, F[e]))
            row(16 + e, TA); row(24 + e, TB)
        reads(PF, 1)
        hook(5 * rd + 2)
        ca, cb = C0, C1
        na, nb_ = CN
        def adv():
            nonlocal ca, cb, na, nb_
            cmul2((na, ca, Z2), (nb_, cb, Z2))
            ca, cb, na, nb_ = na, nb_, ca, cb
        adv()
        row(32, ca); row(36, cb)
        for e in range(1, 4):
            cmul2((TA, ca, F[2 * e]), (TB, cb, F[2 * e]))
            row(32 + e, TA); row(36 + e, TB)
        mfmas(0, rd == 0)
        for k in range(2):
            adv()
            row(40 + 4 * k, ca); row(42 + 4 * k, cb)
            cmul2((TA, ca, F[4]), (TB, cb, F[4]))
            row(41 + 4 * k, TA); row(43 + 4 * k, TB)
        reads(PF, 2)
        hook(5 * rd + 3)
        for k in range(4):
            adv()
            row(48 + 2 * k, ca); row(49 + 2 * k, cb)
        cmul2((na, ca, Z2))
        row(56, na)
        mfmas(1, rd == 0)
        reads(PF, 3)
        hook(5 * rd + 4)
    hook(None)
    a(f"s_mul_i32 s{sT0}, s{sWAVE}, {GST}")
    a(f"v_add_u32 v{vF}, s{sT0}, v{vL16}")
    a(f"v_mov_b32 v{CV[0]}, 0")
    for k in range(8):
        a(f"v_and_b32 v{2 + 2 * k}, s1, v{TAB + k}")
        a(f"v_lshrrev_b32 v{3 + 2 * k}, 16, v{TAB + k}")
    for t in range(2):
        a(f"ds_write_b128 v{vF}, {vr(ACC + 4 * t, 4)} offset:{TOFF + t * 1024}")
    mfmas(2, False)
    a(f"ds_write_b32 v{vG}, v{CV[0]} offset:{TOFF + 3072}")
    a("v_and_b32 v18, 0xffff, v0\nv_lshrrev_b32 v19, 16, v0\nv_and_b32 v20, 0xffff, v1")
    a(f"ds_write_b128 v{vF}, {vr(ACC + 8, 4)} offset:{TOFF + 2048}")


def kzero(r):
    a(f"""v_mov_b32 v{r}, 0
v_mov_b32 v{r + 1}, 0
v_mov_b32 v{r + 2}, 0
v_mov_b32 v{r + 3}, 0
v_bfe_u32 v{r + 4}, v{vLANE}, 1, 3
v_mul_u32_u24 v{r + 4}, {KST}, v{r + 4}
v_and_b32 v{r + 5}, 1, v{vLANE}
v_lshl_add_u32 v{r + 4}, v{r + 5}, 4, v{r + 4}
s_and_b32 s{sT0}, s{sWAVE}, 1
s_mul_i32 s{sT0}, s{sT0}, {UST}
v_add_u32 v{r + 5}, s{sT0}, v{vL16}""")
    return [f"ds_write_b128 v{r + 4}, {vr(r, 4)} offset:4096", f"ds_write_b128 v{r + 5}, {vr(r, 4)} offset:{UB}"]


def kaddr(r):
    a(f"""s_lshr_b32 s{sT0}, s{sWAVE}, 1
s_and_b32 s{sT1}, s{sWAVE}, 1
s_lshl_b32 s{sT1}, s{sT1}, 11
v_lshl_add_u32 v{r + 3}, v{vLANE}, 5, s{sT1}""")
    for c in range(4):
        a(f"s_cmp_lg_u32 s{sT0}, 0")
        a(f"s_cselect_b32 s{sT2}, {KSLOT[1][c]}, {KSLOT[0][c]}")
        a(f"s_mul_i32 s{sT2}, s{sT2}, {KST}")
        a(f"v_add_u32 v{r + c}, s{sT2}, v{r + 3}")


def kexpand(mid):
    AD, VAL = 2, 22
    P0, P1, P2, P3 = 2, 12, 88, 96
    a.barrier()
    for k in range(19):
        a(f"ds_read2st64_b32 {vr(VAL + 2 * k, 2)}, v{AD + k} offset0:{TOFF // 256} offset1:{TOFF // 256 + GST // 256}")
    mid()
    kaddr(60)
    zw = kzero(104)
    if OPT["h_load"] < 10:
        for k in range(24):
            a(f"v_accvgpr_read_b32 v{CS + k}, a{k}")
    for k in range(19):
        a(f"v_add_f32 v{VAL + 2 * k}, v{VAL + 2 * k}, v{VAL + 2 * k + 1}")
        if k:
            a(f"v_cvt_pk_bf16_f32 v{(P0 if k & 1 else P1) + (k - 1) // 2}, v{VAL + 2 * k - 2}, v{VAL + 2 * k}")
    a.barrier()
    a.begin()
    for l in zw:
        a(l)
    for c, P in ((0, P0), (1, P1)):
        a(f"ds_write_b128 v{60 + c}, {vr(P, 4)}")
        a(f"ds_write_b128 v{60 + c}, {vr(P + 4, 4)} offset:16")
    for c, P, src in ((2, P2, P0), (3, P3, P1)):
        for i in range(4):
            a(f"v_pk_mov_b32 {vr(P + 2 * i, 2)}, {vr(src + 2 * i, 2)}, {vr(src + 2 * i + 2, 2)} op_sel:[1,0]")
        a(f"ds_write_b128 v{60 + c}, {vr(P, 4)}")
        a(f"ds_write_b128 v{60 + c}, {vr(P + 4, 4)} offset:16")
    return a.end()


def kcopies():
    R, E, M = 2, 12, 22
    kaddr(40)
    a(f"""ds_read_b128 {vr(R, 4)}, v40
ds_read_b128 {vr(R + 4, 4)}, v40 offset:16
ds_read_b64 {vr(R + 8, 2)}, v40 offset:32""")
    for l in kzero(32):
        a(l)
    for i in range(9):
        a(f"v_alignbit_b32 v{E + i}, v{R + i + 1}, v{R + i}, 16")
    a(f"ds_write_b128 v41, {vr(E, 4)}")
    a(f"ds_write_b128 v41, {vr(E + 4, 4)} offset:16")
    for i in range(4):
        a(f"v_pk_mov_b32 {vr(M + 2 * i, 2)}, {vr(R + 2 * i, 2)}, {vr(R + 2 * i + 2, 2)} op_sel:[1,0]")
    a(f"ds_write_b128 v42, {vr(M, 4)}")
    a(f"ds_write_b128 v42, {vr(M + 4, 4)} offset:16")
    for i in range(4):
        a(f"v_pk_mov_b32 {vr(R + 2 * i, 2)}, {vr(E + 2 * i, 2)}, {vr(E + 2 * i + 2, 2)} op_sel:[1,0]")
    a(f"ds_write_b128 v43, {vr(R, 4)}")
    a(f"ds_write_b128 v43, {vr(R + 4, 4)} offset:16")


cvA, cvB, cvZ, cvXW, cvXR, cvO, cvU, cvX, cvH, cvP = 112, 113, 114, 115, 116, 117, 118, 119, 100, 108
STUBS = []


def conv_poll1():
    r = cvP
    a(f"""v_lshrrev_b32 v{r}, 3, v{vLANE}
v_min_u32 v{r}, 6, v{r}
v_and_b32 v{r + 1}, 7, v{vLANE}
v_lshl_add_u32 v{r + 2}, v{r}, 5, v{r + 1}
s_lshl_b32 s{sT0}, s{sWAVE}, 3
v_add_u32 v{r + 2}, s{sT0}, v{r + 2}
v_and_b32 v{r + 1}, 7, v{vLANE}
v_min_u32 v{r}, 6, v{r + 1}
v_lshl_add_u32 v{r + 3}, v{r}, 5, v{r + 1}
v_add_u32 v{r + 3}, s{sT0}, v{r + 3}""")


def conv_loads():
    for p in range(4):
        a(f"buffer_load_dwordx4 {vr(CS + 4 * p, 4)}, v{vL16}, {srd(S_WS)}, s{16 + p} offen sc1")
    a(f"buffer_load_dwordx4 {vr(GX, 4)}, v{cvX}, {srd(S_WS)}, s20 offen sc1")
    a(f"buffer_load_dwordx4 {vr(GX + 4, 4)}, v{cvX}, {srd(S_WS)}, s20 offen offset:64 sc1")


CS1, GX1 = 64, 96


def conv_counted():
    XF, UF, AL, BE, UP = cXF, cUF, cAL, cBE, cUP
    again, back, stub = label("cca"), label("ccb"), label("ccs")
    xl = [f"buffer_load_dwordx4 {vr(GX1, 4)}, v{cvX}, {srd(S_WS)}, s20 offen sc1", f"buffer_load_dwordx4 {vr(GX1 + 4, 4)}, v{cvX}, {srd(S_WS)}, s20 offen offset:64 sc1"]
    a(f"s_mov_b32 s{sCNT}, 0")
    a(f"{again}:")
    for e in range(8):
        a(f"buffer_load_dwordx4 {vr(CS1 + 4 * e, 4)}, v{vL16}, {srd(S_WS)}, s{22 + e} offen sc1")
        if e == 1 and not OPT["xe"]:
            a(xl[0]); a(xl[1])

    def tok(e):
        S = CS1 + 4 * e
        a(f"v_pk_mul_f32 {vr(S, 2)}, {vr(S, 2)}, {sp(sCA)} op_sel_hi:[1,0]")
        a(f"v_fma_f32 v{S + 3}, -v{S}, v{S}, s{sCB}")
        a(f"v_add_f32 v{S + 1}, v{S + 1}, v{S + 3}")
        a(f"v_max_f32 v{S + 1}, s{sCB}, v{S + 1}")
        a(f"v_rsq_f32 v{AL + e}, v{S + 1}")
    c = [CS1 + 4 * e + 2 for e in range(8)]
    if OPT["cpipe"]:
        for p in range(4):
            tok(2 * p)
            tok(2 * p + 1)
            if p == 0:
                for k in range(8):
                    unpack(XF + 2 * k, XF + 2 * k + 1, GX1 + k)
                a(f"v_max_u32 v63, v{GX1 + 3}, v{GX1 + 7}")
                a(f"v_cmp_eq_u32 s[16:17], -1, v63")
                a(f"v_min_f32 v62, v{c[0]}, v{c[1]}")
            else:
                a(f"v_min3_f32 v62, v62, v{c[2 * p]}, v{c[2 * p + 1]}")
            if p == 3:
                a(f"v_cmp_neq_f32 vcc, {f32(14.0)}, v62")
            for e in (2 * p, 2 * p + 1):
                a(f"v_mul_f32 v{BE + e}, -v{CS1 + 4 * e}, v{AL + e}")
            for ch in range(2):
                a(f"v_pk_fma_f32 {vr(UF + 8 * ch + 2 * p, 2)}, {vr(XF + 8 * ch + 2 * p, 2)}, {vr(AL + 2 * p, 2)}, {vr(BE + 2 * p, 2)}")
            for ch in range(2):
                a(f"v_cvt_pk_bf16_f32 v{UP + 4 * ch + p}, v{UF + 8 * ch + 2 * p}, v{UF + 8 * ch + 2 * p + 1}")
    else:
        tok(0)
        tok(1)
        for k in range(8):
            unpack(XF + 2 * k, XF + 2 * k + 1, GX1 + k)
        a(f"v_max_u32 v63, v{GX1 + 3}, v{GX1 + 7}")
        a(f"v_cmp_eq_u32 s[16:17], -1, v63")
        for e in range(2, 8):
            tok(e)
        c = [CS1 + 4 * e + 2 for e in range(8)]
        a(f"v_min3_f32 v62, v{c[0]}, v{c[1]}, v{c[2]}\nv_min3_f32 v62, v62, v{c[3]}, v{c[4]}\nv_min3_f32 v62, v62, v{c[5]}, v{c[6]}\nv_min_f32 v62, v62, v{c[7]}")
        a(f"v_cmp_neq_f32 vcc, {f32(14.0)}, v62")
        for e in range(8):
            a(f"v_mul_f32 v{BE + e}, -v{CS1 + 4 * e}, v{AL + e}")
    a("s_or_b64 vcc, vcc, s[16:17]")
    a(f"s_cbranch_vccnz {stub}")
    a(f"{back}:")
    STUBS.extend([f"{stub}:", f"s_add_u32 s{sCNT}, s{sCNT}, 1", f"s_cmp_lt_u32 s{sCNT}, {RETRY}", f"s_cbranch_scc0 {back}"] + (xl + ["s_waitcnt vmcnt(0)"] if OPT["xe"] else []) + [f"s_branch {again}"])


def conv_xearly():
    if emode(4) == "C" and OPT["xe"]:
        a.wait_tag("pub")
        a(f"buffer_load_dwordx4 {vr(GX1, 4)}, v{cvX}, {srd(S_WS)}, s20 offen sc1")
        a(f"buffer_load_dwordx4 {vr(GX1 + 4, 4)}, v{cvX}, {srd(S_WS)}, s20 offen offset:64 sc1")


def conv_setup(layer):
    a(f"""s_mov_b32 s{sCA}, {f32(1.0 / 448)}
s_mov_b32 s{sCB}, {f32(1e-5)}
s_lshl_b32 s{sT0}, s{sWAVE}, 10
v_add_u32 v{cvU}, s{sT0}, v{vL16}
s_lshr_b32 s{sT0}, s{sWAVE}, 1
s_and_b32 s{sT1}, s{sWAVE}, 1
v_and_b32 v8, 15, v{vLANE}
v_lshrrev_b32 v9, 4, v{vLANE}
v_not_b32 v10, v8
v_and_b32 v10, 3, v10""")
    for s in range(4):
        a(f"s_cmp_lg_u32 s{sT0}, 0")
        a(f"s_cselect_b32 s{sT2}, {KSLOT[1][s]}, {KSLOT[0][s]}")
        a(f"s_mul_i32 s{sT2}, s{sT2}, {KST}")
        if s == 0:
            a(f"v_mov_b32 v11, s{sT2}")
        else:
            a(f"v_mov_b32 v12, s{sT2}\nv_cmp_eq_u32 vcc, {s}, v10\nv_cndmask_b32 v11, v11, v12, vcc")
    a(f"""v_add_u32 v10, v10, v8
v_lshlrev_b32 v12, 3, v9
v_sub_u32 v12, v12, v10
v_lshl_add_u32 v11, v12, 1, v11
""")
    a(f"""s_lshl_b32 s{sT3}, s{sT1}, 8
s_sub_u32 s{sT2}, {2 * 2031 - 64 * 59}, s{sT3}
v_add_u32 v{cvA}, s{sT2}, v11
s_mul_i32 s{sT2}, s{sT0}, {UST}
s_sub_u32 s{sT2}, s{sT2}, s{sT3}
s_add_u32 s{sT2}, s{sT2}, {UB + UPAD - 2 * 112}
v_lshlrev_b32 v12, 5, v8
v_lshl_add_u32 v13, v9, 4, v12
v_add_u32 v{cvB}, s{sT2}, v13
s_lshl_b32 s{sT2}, s{sWAVE}, 11
v_lshl_add_u32 v13, v9, 3, v12
v_add_u32 v{cvZ}, s{sT2}, v13
s_xor_b32 s{sT2}, s{sWAVE}, 1
s_lshl_b32 s{sT2}, s{sT2}, 12
v_add_u32 v{cvXW}, s{sT2}, v{vL16}
s_lshl_b32 s{sT2}, s{sWAVE}, 12
v_add_u32 v{cvXR}, s{sT2}, v{vL16}
v_and_b32 v10, 1, v9
v_lshlrev_b32 v10, 3, v10
v_lshrrev_b32 v11, 1, v8
v_add_u32 v10, v10, v11
v_mul_u32_u24 v10, {BS}, v10
v_and_b32 v11, 1, v8
v_lshl_add_u32 v10, v11, 5, v10
v_lshrrev_b32 v11, 1, v9
v_lshl_add_u32 v{cvO}, v11, 4, v10
s_mul_i32 s{sT1}, s{sT1}, {32 * BS}
s_lshl_b32 s{sT2}, s{sPAIR}, 1
s_add_u32 s{sT0}, s{sT0}, s{sT2}
s_lshl_b32 s{sT0}, s{sT0}, 6
s_add_u32 s{sT0}, s{sT0}, s{sT1}
s_add_u32 s13, s{sT0}, {X1 if layer == 0 else X3}
s_add_u32 s21, s13, {16 * BS}""" if OPT["cv"] else f"""v_add_u32 v{cvA}, {2 * 2031 - 64 * 63}, v11
s_mul_i32 s{sT2}, s{sT0}, {UST}
s_lshl_b32 s{sT3}, s{sT1}, 9
s_add_u32 s{sT2}, s{sT2}, s{sT3}
s_add_u32 s{sT2}, s{sT2}, {UB + UPAD - 2 * 496}
v_lshlrev_b32 v12, 5, v8
v_lshl_add_u32 v13, v9, 4, v12
v_add_u32 v{cvB}, s{sT2}, v13
s_lshl_b32 s{sT2}, s{sT0}, 12
s_add_u32 s{sT2}, s{sT2}, s{sT3}
v_lshl_add_u32 v13, v9, 3, v12
v_add_u32 v{cvZ}, s{sT2}, v13
v_and_b32 v10, 1, v9
v_lshlrev_b32 v10, 4, v10
v_lshrrev_b32 v11, 1, v8
v_add_u32 v10, v10, v11
v_mul_u32_u24 v10, {BS}, v10
v_and_b32 v11, 1, v8
v_lshl_add_u32 v10, v11, 5, v10
v_lshrrev_b32 v11, 1, v9
v_lshl_add_u32 v{cvO}, v11, 4, v10
s_mul_i32 s{sT1}, s{sT1}, {8 * BS}
s_lshl_b32 s{sT2}, s{sPAIR}, 1
s_add_u32 s{sT0}, s{sT0}, s{sT2}
s_lshl_b32 s{sT0}, s{sT0}, 6
s_add_u32 s{sT0}, s{sT0}, s{sT1}
s_add_u32 s13, s{sT0}, {X1 if layer == 0 else X3}
s_add_u32 s21, s13, {32 * BS}""")
    a(f"""s_lshl_b32 s16, s{sWAVE}, 10
s_add_u32 s16, s16, {ST0 if layer == 0 else ST1}
s_add_u32 s17, s16, 4096
s_add_u32 s18, s16, 8192
s_add_u32 s19, s16, 12288
s_mul_i32 s20, s{sWAVE}, {16 * BS}
s_lshl_b32 s{sT2}, s{sPAIR}, 7
s_add_u32 s20, s20, s{sT2}
s_add_u32 s20, s20, {X0 if layer == 0 else X2}
v_lshrrev_b32 v10, 2, v{vLANE}
v_mul_u32_u24 v10, {BS}, v10
v_and_b32 v11, 3, v{vLANE}
v_lshl_add_u32 v{cvX}, v11, 4, v10""")
    if layer == 1 and emode(4) == "C":
        for e in range(8):
            a(f"s_add_u32 s{22 + e}, s16, {4096 * e}")


cXF, cUF, cAL, cBE, cUP = 0, 16, 32, 40, 48


def conv_pro(layer):
    XF, UF, AL, BE, UP = cXF, cUF, cAL, cBE, cUP
    if layer == 1 and emode(4) == "C":
        conv_counted()
    else:
        conv_stats()
    conv_norm(layer == 1 and emode(4) == "C" and OPT["cpipe"])


def conv_stats():
    XF, UF, AL, BE, UP = cXF, cUF, cAL, cBE, cUP
    for p in range(4):
        S = CS + 4 * p
        a(f"v_pk_mul_f32 {vr(S, 2)}, {vr(S, 2)}, {sp(sCA)} op_sel_hi:[1,0]")
    for p in range(4):
        S = CS + 4 * p
        a(f"v_pk_fma_f32 {vr(BE + 2 * p, 2)}, {vr(S, 2)}, {vr(S, 2)}, {sp(sCB)} op_sel_hi:[1,1,0] neg_lo:[1,0,0] neg_hi:[1,0,0]")
    for p in range(4):
        Q = CS + 4 * p + 2
        a(f"v_pk_fma_f32 {vr(Q, 2)}, {vr(Q, 2)}, {sp(sCA)}, {vr(BE + 2 * p, 2)} op_sel_hi:[1,0,1]")
    for p in range(4):
        Q = CS + 4 * p + 2
        a(f"v_max_f32 v{Q}, s{sCB}, v{Q}\nv_max_f32 v{Q + 1}, s{sCB}, v{Q + 1}")
    for p in range(4):
        Q = CS + 4 * p + 2
        a(f"v_rsq_f32 v{AL + 2 * p}, v{Q}\nv_rsq_f32 v{AL + 2 * p + 1}, v{Q + 1}")
    for k in range(8):
        unpack(XF + 2 * k, XF + 2 * k + 1, GX + k)
    for p in range(4):
        S = CS + 4 * p
        a(f"v_pk_mul_f32 {vr(BE + 2 * p, 2)}, {vr(S, 2)}, {vr(AL + 2 * p, 2)} neg_lo:[1,0] neg_hi:[1,0]")


def conv_norm(done=False):
    XF, UF, AL, BE, UP = cXF, cUF, cAL, cBE, cUP
    for c in range(2):
        for p in range(0 if done else 4):
            a(f"v_pk_fma_f32 {vr(UF + 8 * c + 2 * p, 2)}, {vr(XF + 8 * c + 2 * p, 2)}, {vr(AL + 2 * p, 2)}, {vr(BE + 2 * p, 2)}")
        for p in range(0 if done else 4):
            a(f"v_cvt_pk_bf16_f32 v{UP + 4 * c + p}, v{UF + 8 * c + 2 * p}, v{UF + 8 * c + 2 * p + 1}")
        a(f"ds_write_b128 v{cvU}, {vr(UP + 4 * c, 4)} offset:{UB + c * UST + UPAD}")
    if OPT["cv"]:
        for i in a.capture(conv_z, 88):
            if i.kind != "dsw":
                a.put([i])


def conv_z(ZP=cXF):
    XF, UF = cXF, cUF
    for c in range(2):
        for p in range(4):
            a(f"v_pk_fma_f32 {vr(UF + 8 * c + 2 * p, 2)}, {vr(UF + 8 * c + 2 * p, 2)}, {sp((sD0, sD1)[c])}, {vr(XF + 8 * c + 2 * p, 2)} op_sel_hi:[1,0,1]")
        for p in range(4):
            a(f"v_cvt_pk_bf16_f32 v{ZP + 4 * c + p}, v{UF + 8 * c + 2 * p}, v{UF + 8 * c + 2 * p + 1}")
        a(f"ds_write_b128 v{cvU}, {vr(ZP + 4 * c, 4)} offset:{ZB + c * 4096}")


def conv_main(layer, bg=(), bg_start=0, bg_every=64):
    return (conv_main_r if OPT["cv"] else conv_main_t)(layer, bg, bg_start, bg_every)


def conv_main_r(layer, bg, bg_start, bg_every):
    ACC, BF, AR = 0, 32, 64
    NA = 6
    EX2 = ZB
    seq = [(r, q) for r in range(4) for q in range(7, -1, -1)]
    e = 1 + 4 * layer

    def rdA(i):
        r, q = seq[i]
        d = AR + 4 * (i % NA)
        off = 64 * (59 - (8 * q + r))
        return [Ins(f"ds_read_b64 {vr(d, 2)}, v{cvA} offset:{off}"), Ins(f"ds_read_b64 {vr(d + 2, 2)}, v{cvA} offset:{off + 8}")]

    def rdB(r, p):
        return [Ins(f"ds_read_b128 {vr(BF + 4 * p, 4)}, v{cvB} offset:{512 * p + 64 * (3 - r)}")]

    a.put(rdA(0)); a.put(rdB(0, 0)); a.put(rdA(1)); a.put(rdB(0, 1)); a.put(rdA(2)); a.put(rdB(0, 2)); a.put(rdA(3))
    a.put(rdB(0, 3)); a.put(rdA(4))
    for p in range(4, 8):
        a.put(rdB(0, p))
    ZR, ZF, RR = 88, 64, 32
    side = [[i] for i in a.capture(conv_z, 88) if i.kind == "dsw"]
    if hinted(e):
        side += [[i] for i in a.capture(hint_prep, e + 10, sPAIR, cvH)]
    late = [[Ins("s_barrier")]] + [[Ins(f"ds_read_b64 {vr(ZR + 2 * i, 2)}, v{cvZ} offset:{ZB + i * 512}")] for i in range(4)]
    late2 = [[Ins("s_barrier")]]
    a.begin()
    started = set()
    for i, (r, q) in enumerate(seq):
        if hinted(e) and OPT["h_cv"] < 0 and i == 32 + OPT["h_cv"]:
            hint_put(cvH)
        ps = list(range(8 - q))
        for p in ps:
            b = q + p
            c = vr(ACC + 4 * b, 4) if b in started else "0"
            started.add(b)
            a(f"v_mfma_f32_16x16x32_bf16 {vr(ACC + 4 * b, 4)}, {vr(AR + 4 * (i % NA), 4)}, {vr(BF + 4 * p, 4)}, {c}")
            if p == 0 and i + NA - 1 < len(seq):
                a.put(rdA(i + NA - 1))
            elif 1 <= q <= 4 and p >= 1:
                for lst, r0 in ((side, 0), (late, 2), (late2, 3)):
                    if lst and r >= r0:
                        a.put(lst.pop(0))
                        break
            if q == 0 and r < 3:
                a.put(rdB(r + 1, p))
    assert not side and not late and not late2
    m, rest = merge(a.end(), list(bg), bg_start, bg_every)
    a.put(m)
    stamp(f"conv{layer} loop", 111)
    if hinted(e) and OPT["h_cv"] == 0:
        hint_put(cvH)
    for k in range(8):
        unpack(ZF + 2 * k, ZF + 2 * k + 1, ZR + k)
    l1, l2 = label("cx"), label("cy")
    a(f"s_bitcmp1_b32 s{sWAVE}, 0")
    a(f"s_cbranch_scc1 {l1}")
    for h in range(2):
        for i in range(4):
            a(f"ds_write_b128 v{cvXW}, {vr(ACC + 16 * (1 - h) + 4 * i, 4)} offset:{EX2 + i * 1024}")
            for k in range(2):
                a(f"v_pk_add_f32 {vr(ZF + 4 * i + 2 * k, 2)}, {vr(ZF + 4 * i + 2 * k, 2)}, {vr(ACC + 16 * h + 4 * i + 2 * k, 2)}")
        if h == 0:
            a(f"s_branch {l2}")
            a(f"{l1}:")
    a(f"{l2}:")
    if (armed(1) if layer else (sentinel(1) and not OPT["x1s"])):
        poll_take(cvP)
    a.barrier()
    if hinted(e) and OPT["h_cv"] == 1:
        hint_put(cvH)
    for i in range(4):
        a(f"ds_read_b128 {vr(RR + 4 * i, 4)}, v{cvXR} offset:{EX2 + i * 1024}")
    PK = 56
    for i in range(4):
        for k in range(2):
            a(f"v_pk_add_f32 {vr(ZF + 4 * i + 2 * k, 2)}, {vr(ZF + 4 * i + 2 * k, 2)}, {vr(RR + 4 * i + 2 * k, 2)}")
        for k in range(2):
            a(f"v_cvt_pk_bf16_f32 v{PK + 2 * i + k}, v{ZF + 4 * i + 2 * k}, v{ZF + 4 * i + 2 * k + 1}")
        if i & 1:
            b = PK + 2 * (i - 1)
            a(f"v_permlane16_swap_b32 v{b}, v{b + 2}")
            a(f"v_permlane16_swap_b32 v{b + 1}, v{b + 3}")
            a(f"buffer_store_dwordx4 {vr(b, 4)}, v{cvO}, {srd(S_WS)}, s{21 if i == 3 else 13} offen sc1", tag="pub")
    if hinted(e) and OPT["h_cv"] == 2:
        hint_put(cvH)
    if not flagged(e):
        a.barrier()
    else:
        flag_put(1 + 4 * layer, sPAIR, 40, "pub")
    return rest


def conv_main_t(layer, bg, bg_start, bg_every):
    ACC, BF, AR = 84, 32, 64
    NA = 5
    QORD = (7, 5, 6, 3, 4, 2, 1, 0)
    seq = [(r, q) for r in range(8) for q in QORD]
    e = 1 + 4 * layer

    def rdA(i):
        r, q = seq[i]
        d = AR + 4 * (i % NA)
        off = 64 * (63 - (8 * q + r))
        return [Ins(f"ds_read_b64 {vr(d, 2)}, v{cvA} offset:{off}"), Ins(f"ds_read_b64 {vr(d + 2, 2)}, v{cvA} offset:{off + 8}")]

    def rdB(r, p):
        return [Ins(f"ds_read_b128 {vr(BF + 4 * (p + 1), 4)}, v{cvB} offset:{512 * (p + 1) + 64 * (7 - r)}")]

    a.put(rdA(0)); a.put(rdB(0, -1)); a.put(rdA(1)); a.put(rdB(0, 1)); a.put(rdA(2)); a.put(rdB(0, 0)); a.put(rdA(3))
    for p in (3, 2, 4, 5, 6):
        a.put(rdB(0, p))
    ZR, ZF = 16, 0
    side = [[i] for i in a.capture(conv_z)]
    if hinted(e):
        side += [[i] for i in a.capture(hint_prep, e + 10, sPAIR, cvH)]
    late = [[Ins("s_barrier")]] + [[Ins(f"ds_read_b64 {vr(ZR + 2 * i, 2)}, v{cvZ} offset:{ZB + i * 1024}")] for i in range(4)]
    late2 = [[i] for k in range(8) for i in a.capture(unpack, ZF + 2 * k, ZF + 2 * k + 1, ZR + k)]
    a.begin()
    started = set()
    n = 0
    for i, (r, q) in enumerate(seq):
        if hinted(e) and OPT["h_cv"] < 0 and i == 64 + OPT["h_cv"]:
            hint_put(cvH)
        first = True
        for t in range(q // 2, 4):
            p = 2 * t - q
            c = vr(ACC + 4 * t, 4) if t in started else "0"
            started.add(t)
            a(f"v_mfma_f32_16x16x32_bf16 {vr(ACC + 4 * t, 4)}, {vr(AR + 4 * (i % NA), 4)}, {vr(BF + 4 * (p + 1), 4)}, {c}")
            n += 1
            if first and i + 4 < len(seq):
                a.put(rdA(i + 4))
            elif q >= 2:
                for lst, r0 in ((side, 0), (late, 4), (late2, 5)):
                    if lst and r >= r0:
                        a.put(lst.pop(0))
                        if lst is side and lst:
                            a.put(lst.pop(0))
                        break
            first = False
            if q <= 1 and r < 7:
                a.put(rdB(r + 1, p))
    assert not side and not late and not late2
    m, rest = merge(a.end(), list(bg), bg_start, bg_every)
    a.put(m)
    stamp(f"conv{layer} loop", 111)
    if (armed(1) if layer else (sentinel(1) and not OPT["x1s"])):
        poll_take(cvP)
    if hinted(e) and OPT["h_cv"] == 0:
        hint_put(cvH)
    PK = 24
    for i in range(4):
        for k in range(2):
            a(f"v_pk_add_f32 {vr(ZF + 4 * i + 2 * k, 2)}, {vr(ZF + 4 * i + 2 * k, 2)}, {vr(ACC + 4 * i + 2 * k, 2)}")
        for k in range(2):
            a(f"v_cvt_pk_bf16_f32 v{PK + 2 * i + k}, v{ZF + 4 * i + 2 * k}, v{ZF + 4 * i + 2 * k + 1}")
        if i & 1:
            b = PK + 2 * (i - 1)
            a(f"v_permlane16_swap_b32 v{b}, v{b + 2}")
            a(f"v_permlane16_swap_b32 v{b + 1}, v{b + 3}")
            a(f"buffer_store_dwordx4 {vr(b, 4)}, v{cvO}, {srd(S_WS)}, s{21 if i == 3 else 13} offen sc1", tag="pub")
    if hinted(e) and OPT["h_cv"] > 0:
        hint_put(cvH)
    if not flagged(e):
        a.barrier()
    else:
        flag_put(1 + 4 * layer, sPAIR, 40, "pub")
    return rest


def reduce32(V, n, W):
    for i in range(n):
        a(f"v_permlane16_swap_b32 v{V[i]}, v{V[n + i]}")
    for i in range(n):
        a(f"v_add_f32 v{V[i]}, v{V[i]}, v{V[n + i]}")
    h = n // 2
    for i in range(h):
        a(f"v_add_f32_dpp v{W[i]}, v{V[i]}, v{V[i]} row_ror:8 row_mask:0xf bank_mask:0x3")
    for i in range(h):
        a(f"v_add_f32_dpp v{W[i]}, v{V[i + h]}, v{V[i + h]} row_ror:8 row_mask:0xf bank_mask:0xc")
    g = h // 2
    for i in range(g):
        a(f"v_add_f32_dpp v{V[i]}, v{W[i]}, v{W[i]} row_half_mirror row_mask:0xf bank_mask:0x5")
    for i in range(g):
        a(f"v_add_f32_dpp v{V[i]}, v{W[i + g]}, v{W[i + g]} row_half_mirror row_mask:0xf bank_mask:0xa")
    for m in ("[1,0,3,2]", "[2,3,0,1]"):
        for i in range(g):
            a(f"v_add_f32_dpp v{V[i]}, v{V[i]}, v{V[i]} quad_perm:{m} row_mask:0xf bank_mask:0xf")
    return V[:g]


def maxchain(t, regs):
    regs = list(regs)
    if OPT["chk"] == 1:
        regs = regs[3::4]
    if len(regs) == 2:
        return [f"v_max_u32 v{t}, v{regs[0]}, v{regs[1]}"]
    out = [f"v_max3_u32 v{t}, v{regs[0]}, v{regs[1]}, v{regs[2]}"]
    regs = regs[3:]
    while len(regs) >= 2:
        out.append(f"v_max3_u32 v{t}, v{t}, v{regs[0]}, v{regs[1]}")
        regs = regs[2:]
    if regs:
        out.append(f"v_max_u32 v{t}, v{t}, v{regs[0]}")
    return out


RETRY = 0x10000


def ln(layer, wide):
    X = X1 if layer == 0 else X3
    H = H1 if layer == 0 else H3
    nf = 7 if wide else 4
    sI = sLN0 if wide else sLN
    RAW, XF, S, Q, W = 0, 28, 84, 92, 100
    vO, vPW, vPR, vAW, vAR, r, hr = 109, 110, 111, 112, 117, 114, 104
    vX, vS = 64, 68
    a(f"""s_mul_i32 s{sT0}, s{sWAVE}, 56
v_min_u32 v{r + 2}, 55, v{vLANE}""")
    a(f"v_add_u32 v{r + 2}, s{sT0}, v{r + 2}")
    a(f"v_and_b32 v118, {OPT['samp'] - 1}, v{vLANE}\nv_mul_u32_u24 v118, {56 // OPT['samp']}, v118\nv_add_u32 v118, s{sT0}, v118")
    ein, eout = 1 + 4 * layer, 2 + 4 * layer
    if OPT["lnd"] and emode(ein) == "D":
        a.wait_tag("pub")
    if wide:
        a(f"""s_mul_i32 s16, s{sI}, {BS}
s_lshl_b32 s{sT2}, s{sI}, 12""")
    else:
        a(f"""s_lshr_b32 s16, s{sI}, 1
s_mul_i32 s16, s16, {BS}
s_and_b32 s{sT0}, s{sI}, 1
s_lshl_b32 s{sT0}, s{sT0}, 5
s_add_u32 s16, s16, s{sT0}
s_lshl_b32 s{sT2}, s{sI}, 11""")
    a(f"""s_mul_i32 s{sT0}, s{sWAVE}, 7168
s_add_u32 s16, s16, s{sT0}
s_add_u32 s16, s16, {X}
s_add_u32 s17, s16, 4096
s_add_u32 s{sT2}, s{sT2}, {H}
s_mul_i32 s30, s{sWAVE}, 7""")
    if wide:
        for i in range(nf):
            a(f"""s_add_u32 s{sT0}, s30, {i}
s_lshr_b32 s{sT1}, s{sT0}, 2
s_lshl_b32 s{sT1}, s{sT1}, 18
s_add_u32 s{23 + i}, s{sT1}, s{sT2}
s_and_b32 s{sT1}, s{sT0}, 2
s_lshl_b32 s{sT1}, s{sT1}, 9
s_add_u32 s{23 + i}, s{23 + i}, s{sT1}
s_and_b32 s{sT1}, s{sT0}, 1
s_lshl_b32 s{sT1}, s{sT1}, 8
s_add_u32 s{23 + i}, s{23 + i}, s{sT1}""")
        a(f"""v_lshrrev_b32 v1, 2, v{vLANE}
v_lshlrev_b32 v{vO}, 4, v1
v_and_b32 v2, 1, v{vLANE}
v_lshl_add_u32 v{vO}, v2, 9, v{vO}
v_bfe_u32 v2, v{vLANE}, 1, 1
v_lshl_add_u32 v{vO}, v2, 11, v{vO}
v_and_b32 v1, 7, v1
v_and_b32 v2, 3, v{vLANE}
v_lshl_add_u32 v1, v2, 3, v1""")
    else:
        a(f"""v_lshrrev_b32 v1, 1, v{vLANE}
v_and_b32 v2, 1, v{vLANE}
v_lshlrev_b32 v{vX}, 6, v1
v_lshl_add_u32 v{vX}, v2, 4, v{vX}
v_mov_b32 v3, {OOB}
v_cmp_gt_u32 vcc, 32, v{vLANE}
v_cndmask_b32 v{vX + 1}, v3, v{vX}, vcc
s_lshl_b32 s30, s30, 4
s_mov_b32 s23, s{sT2}""")
        for i in range(nf):
            a(f"""v_add_u32 v4, s30, v1
v_lshrrev_b32 v5, 6, v4
v_lshlrev_b32 v5, 18, v5
v_bfe_u32 v6, v4, 5, 1
v_lshl_add_u32 v5, v6, 10, v5
v_and_b32 v6, 31, v4
v_lshl_add_u32 v5, v6, 4, v5
v_lshl_add_u32 v{vS + i}, v2, 9, v5""")
            if i < 3:
                a("s_add_u32 s30, s30, 32")
        a(f"""v_cndmask_b32 v{vS + 3}, v3, v{vS + 3}, vcc
v_bfe_u32 v1, v{vLANE}, 2, 3
v_lshl_add_u32 v1, v2, 3, v1""")
    a(f"""v_lshrrev_b32 v3, 5, v{vLANE}
v_lshl_add_u32 v1, v3, 5, v1
s_lshl_b32 s{sT1}, s{sWAVE}, 8
s_add_u32 s{sT1}, s{sT1}, {LNP}
v_lshl_add_u32 v{vPW}, v1, 2, s{sT1}
v_and_b32 v1, 31, v{vLANE}
v_lshlrev_b32 v{vPR}, 2, v1
v_add_u32 v{vPR}, {LNP}, v{vPR}
s_add_u32 s{sT1}, s{sT1}, 1024
v_lshl_add_u32 v{vAW}, v{vLANE}, 2, s{sT1}
v_lshl_add_u32 v{vAR}, v2, 5, s{sT1}
s_mov_b32 s18, 0
s_mov_b32 s19, -1""")
    prod = f"s_lshl_b32 s{sT0}, s{sI}, 6"
    if hinted(eout):
        hint_prep(eout + 10, prod, hr)
    arm = layer == 0 and sentinel(2)
    if arm:
        a(f"v_min_u32 v102, 27, v{vLANE}")
        poll_issue(18, 100)
    own = layer == 0 and sentinel(1) and OPT["x1s"]
    if own:
        poll_issue(0, 98, r + 2)
    wait_edge(ein, r, r + 2, 118)
    if arm:
        poll_take(100)
    if own:
        poll_take(98, r + 2)
    stamp(f"ln{layer} go")

    def loads():
        if not wide:
            return [f"buffer_load_dwordx4 {vr(RAW + 4 * i, 4)}, v{vX + (i == 3)}, {srd(S_WS)}, s{16 + i // 2} offen offset:{2048 * (i % 2)} sc1" for i in range(nf)]
        return [f"buffer_load_dwordx4 {vr(RAW + 4 * i, 4)}, v{vL16}, {srd(S_WS)}, s{16 + i // 4} offen offset:{1024 * (i % 4)} sc1" for i in range(nf)]
    again, back, stub = label("lna"), label("lnb"), label("lns")
    if sentinel(ein):
        a(f"s_mov_b32 s{sCNT}, 0")
        a(f"{again}:")
    for l in loads():
        a(l)
    if hinted(eout) and OPT["h_ln"] == 0:
        a.wait_vm0()
        hint_put(hr)
    if OPT["stamps"] == 1:
        a.wait_vm0()
    count_out(113)
    stamp(f"ln{layer} data", 113)
    for i in range(nf):
        for k in range(4):
            unpack(XF + 8 * i + 2 * k, XF + 8 * i + 2 * k + 1, RAW + 4 * i + k)
        for k in range(4):
            x = vr(XF + 8 * i + 2 * k, 2)
            if i == 0:
                a(f"v_pk_mul_f32 {vr(Q + 2 * k, 2)}, {x}, {x}")
            else:
                a(f"v_pk_fma_f32 {vr(Q + 2 * k, 2)}, {x}, {x}, {vr(Q + 2 * k, 2)}")
                a(f"v_pk_add_f32 {vr(S + 2 * k, 2)}, {vr(XF + 2 * k, 2) if i == 1 else vr(S + 2 * k, 2)}, {x}")
    if sentinel(ein):
        for l in maxchain(113, range(RAW, RAW + 4 * nf)) + ["v_cmp_eq_u32 vcc, -1, v113"]:
            a(l)
        STUBS.extend([f"{stub}:", f"s_add_u32 s{sCNT}, s{sCNT}, 1", f"s_cmp_lt_u32 s{sCNT}, {RETRY}", f"s_cbranch_scc1 {again}", f"s_branch {back}"])
    if hinted(eout) and OPT["h_ln"] == 1:
        hint_put(hr)
    for i in range(8):
        a(f"v_permlane32_swap_b32 v{S + i}, v{Q + i}")
        if i == 1 and sentinel(ein):
            a(f"s_cbranch_vccnz {stub}")
            a(f"{back}:")
    for i in range(0, 8, 2):
        a(f"v_pk_add_f32 {vr(S + i, 2)}, {vr(S + i, 2)}, {vr(Q + i, 2)}")
    for i in range(4):
        a(f"v_permlane16_swap_b32 v{S + i}, v{S + 4 + i}")
    for i in range(0, 4, 2):
        a(f"v_pk_add_f32 {vr(S + i, 2)}, {vr(S + i, 2)}, {vr(S + 4 + i, 2)}")
    for i in range(2):
        a(f"v_add_f32_dpp v{W + i}, v{S + i}, v{S + i} row_ror:8 row_mask:0xf bank_mask:0x3")
    for i in range(2):
        a(f"v_add_f32_dpp v{W + i}, v{S + 2 + i}, v{S + 2 + i} row_ror:8 row_mask:0xf bank_mask:0xc")
    a(f"v_add_f32_dpp v{S}, v{W}, v{W} row_shl:4 row_mask:0xf bank_mask:0x5")
    a(f"v_add_f32_dpp v{S}, v{W + 1}, v{W + 1} row_shr:4 row_mask:0xf bank_mask:0xa")
    if not wide:
        a(f"v_add_f32_dpp v{S}, v{S}, v{S} quad_perm:[2,3,0,1] row_mask:0xf bank_mask:0xf")
    a(f"ds_write_b32 v{vPW}, v{S}")
    a.barrier()
    if hinted(eout) and OPT["h_ln"] == 2:
        hint_put(hr)
    stamp(f"ln{layer} bar", 113)
    T = 0
    for w in range(4):
        a(f"ds_read2_b32 {vr(T + 2 * w, 2)}, v{vPR} offset0:{w * 64} offset1:{w * 64 + 32}")
    a(f"""v_pk_add_f32 {vr(T, 2)}, {vr(T, 2)}, {vr(T + 2, 2)}
v_pk_add_f32 {vr(T + 4, 2)}, {vr(T + 4, 2)}, {vr(T + 6, 2)}
v_pk_add_f32 {vr(T, 2)}, {vr(T, 2)}, {vr(T + 4, 2)}
v_mul_f32 v{T}, {f32(1 / 448)}, v{T}
v_mul_f32 v{T + 1}, {f32(1 / 448)}, v{T + 1}
v_fma_f32 v{T + 1}, -v{T}, v{T}, v{T + 1}
v_max_f32 v{T + 1}, 0, v{T + 1}
v_add_f32 v{T + 2}, {f32(1e-5)}, v{T + 1}
v_fmamk_f32 v{T + 2}, v{T + 2}, {f32(1e-5)}, v{T + 1}
v_rsq_f32 v{T + 2}, v{T + 2}
v_mul_f32 v{T + 3}, -v{T}, v{T + 2}
v_cndmask_b32 v{T + 2}, v{T + 2}, v{T + 3}, s[18:19]
ds_write_b32 v{vAW}, v{T + 2}""")
    AL, BE = S, Q
    done_hint = []
    a(f"""ds_read_b128 {vr(AL, 4)}, v{vAR}
ds_read_b128 {vr(BE, 4)}, v{vAR} offset:128
ds_read_b128 {vr(AL + 4, 4)}, v{vAR} offset:16
ds_read_b128 {vr(BE + 4, 4)}, v{vAR} offset:144""")
    for i in range(nf):
        for k in range(4):
            x = vr(XF + 8 * i + 2 * k, 2)
            a(f"v_pk_fma_f32 {x}, {x}, {vr(AL + 2 * k, 2)}, {vr(BE + 2 * k, 2)}")
        for k in range(4):
            a(f"v_cvt_pk_bf16_f32 v{RAW + 4 * i + k}, v{XF + 8 * i + 2 * k}, v{XF + 8 * i + 2 * k + 1}")
        a(f"buffer_store_dwordx4 {vr(RAW + 4 * i, 4)}, v{vO if wide else vS + i}, {srd(S_WS)}, s{23 + i if wide else 23} offen sc1", tag="pub")
        if hinted(eout) and OPT["h_ln"] - 3 == min(i, 6) * (4 if nf == 7 else 4) // (nf + 1):
            if not done_hint:
                hint_put(hr)
                done_hint.append(1)
    stamp(f"ln{layer} st", 113)
    if flagged(eout):
        flag_put(eout, prod, 100, "pub")


def gemm_addr():
    a(f"""s_and_b32 s{sT0}, s{sWAVE}, 1
s_lshl_b32 s{sT0}, s{sT0}, 10
v_add_u32 v{vA0}, s{sT0}, v{vL16}
v_xor_b32 v{vA1}, 0x400, v{vA0}""")


vCHK = 121


def gemm_loop(nks, ring, nring, wreg, swap, sent, lds_from=99, at=None, bg=()):
    WF = 104
    nfr = 2 * nks

    def load(f):
        ks, db = f // 2, f % 2
        g = []
        if db == 0 and ks and ks % 2 == 0:
            g.append(Ins("s_add_u32 s13, s13, 4096"))
            if ks % 4 == 0:
                g += [Ins("s_cmp_eq_u32 s13, s28"), Ins("s_cmov_b32 s13, s27")]
        d = ring + 4 * (f % nring)
        g.append(Ins(f"buffer_load_dwordx4 {vr(d, 4)}, v{(vA0, vA1)[db]}, {srd(S_WS)}, s13 offen offset:{(ks % 2) * 2048} sc1"))
        return g

    def wread(ks):
        g = []
        slot = ks - lds_from
        for nb in range(2):
            for j in range(2):
                d = WF + 8 * (ks % 2) + 4 * nb + 2 * j
                g.append(Ins(f"ds_read_b64_tr_b16 {vr(d, 2)}, v{(vT2a, vT2b)[nb]} offset:{slot * 2048 + j * 1024}", res_r=[f"slot{slot}"]))
        return g

    def check(ks, upto):
        regs = [ring + 4 * ((2 * ks + db) % nring) + k for db in range(2) for k in range(4)]
        chk = maxchain(vCHK, regs) + [f"v_cmp_eq_u32 vcc, -1, v{vCHK}"]
        back, stub = label("gb"), label("gs")
        rl, cnt = [], 0
        for f in range(2 * ks, max(2 * ks + 2, min(upto, 2 * ks + 2 * OPT["rl"]))):
            k2, db = f // 2, f % 2
            if db == 0:
                rl += [f"s_add_u32 s3, s22, {k2 * 2048}", "s_cmp_ge_u32 s3, s28", f"s_cselect_b32 s18, {nks * 2048}, 0", "s_sub_u32 s3, s3, s18"]
            rl.append(f"buffer_load_dwordx4 {vr(ring + 4 * (f % nring), 4)}, v{(vA0, vA1)[db]}, {srd(S_WS)}, s3 offen sc1")
        STUBS.extend([f"{stub}:"] + rl + ["s_waitcnt vmcnt(0)"] + chk + [f"s_add_u32 s{sCNT}, s{sCNT}, 1", f"s_cbranch_vccz {back}",
                                                     f"s_cmp_lt_u32 s{sCNT}, {RETRY}", f"s_cbranch_scc1 {stub}", f"s_branch {back}"])
        return [Ins(x) for x in chk], [Ins(f"s_cbranch_vccnz {stub}"), Ins(f"{back}:")]

    if sent:
        a(f"s_mov_b32 s{sCNT}, 0")
    nxt = min(OPT["fill0"], nring)
    for f in range(nxt):
        a.put(load(f))
    if sent:
        c, b = check(0, nxt)
        a.put(c); a.put(b)
    extra = []
    bg = list(bg)
    for ks in range(nks):
        if at and ks in at:
            extra += a.capture(at[ks])
        pend = wread(ks + 1) if lds_from <= ks + 1 < nks else []
        c, b = check(ks + 1, min(nfr, nxt + 2, nring + 2 * ks + 2)) if (sent and ks + 1 < nks) else ([], [])
        order = [(0, 0), (0, 1), (1, 0), (1, 1)]
        if ks == nks - 1 and OPT["tailord"]:
            order = [(0, 1), (1, 0), (1, 1), (0, 0)]
        if True:
            for nb, db in order:
                acc = vr(16 * (2 * nb + db), 16)
                cc = acc if (ks or (nb | db) == 0) else "0"
                w = wreg(ks, nb) if ks < lds_from else vr(WF + 8 * (ks % 2) + 4 * nb, 4)
                x = vr(ring + 4 * ((2 * ks + db) % nring), 4)
                if OPT["fake16"] and 0 < ks < nks - 1:
                    b0 = 16 * (2 * nb + db) + 8 * (ks & 1)
                    for t in range(2):
                        a(f"v_mfma_f32_16x16x32_bf16 {vr(b0 + 4 * t, 4)}, {x if swap ^ t else w}, {w if swap ^ t else x}, {vr(b0 + 4 * t, 4)}")
                else:
                    a(f"v_mfma_f32_32x32x16_bf16 {acc}, {x if swap else w}, {w if swap else x}, {cc}")
                if pend:
                    a.put([pend.pop(0)])
                free = nring + 2 * ks + (db + 1 if nb == 1 else 0)
                if nxt < min(nfr, free) and (nb == 1 or db == 1):
                    a.put(load(nxt))
                    nxt += 1
                if bg and nb == 0 and ks >= OPT["bg0"]:
                    a.put(bg.pop(0))
                if extra and nb == 0:
                    k = 5
                    while k < len(extra) and ("exec" in extra[k - 1].defs and extra[k - 1].text != "s_mov_b64 exec, -1" or extra[k - 1].kind == "vstore"):
                        k += 1
                    a.put(extra[:k])
                    del extra[:k]
                if nb == 1 and db == 0:
                    a.put(c)
                if nb == 1 and db == 1:
                    a.put(b)
    a.put(extra)


def gemm_rot(nks, srot):
    a(f"s_mov_b32 s27, s13\ns_add_u32 s28, s13, {nks * 2048}\ns_lshl_b32 s{sT0}, s{srot}, 13\ns_add_u32 s13, s13, s{sT0}\ns_mov_b32 s22, s13")


def gemm_reduce_prep():
    slot = 6144 if OPT["bfr"] else 12288
    for rel in (1, 2, 3):
        a(f"s_xor_b32 s{23 + rel}, s{sWAVE}, {rel}\ns_mul_i32 s{23 + rel}, s{23 + rel}, {slot}")
    a(f"s_mul_i32 s23, s{sWAVE}, {slot}")


def gemm_reduce_addr():
    for rel in range(4):
        a(f"v_add_u32 v{64 + rel}, s{23 + rel}, v{vL16}")


def gemm_perm(P):
    if not OPT["bfr"]:
        return
    t, u = P + 8, P + 7
    a("s_mov_b32 s29, 0x3f80")
    a(f"""v_lshrrev_b32 v{u}, 5, v{vLANE}
v_and_b32 v{t}, 31, v{vLANE}
v_lshlrev_b32 v{u}, 2, v{u}
v_sub_u32 v{t}, v{t}, v{u}
v_and_b32 v{u}, 1, v{t}
v_lshlrev_b32 v{u}, 4, v{u}
v_lshlrev_b32 v{u}, v{u}, s29
v_ashrrev_i32 v{t}, 1, v{t}""")
    vals = (0, 1, 4, 5, 8, 9, 12, 13)
    pairs = ("s[16:17]", "s[30:31]", "s[50:51]")
    for d in range(10):
        if d < 8:
            a(f"v_cmp_eq_u32 {pairs[d % 3]}, {vals[d]}, v{t}")
        if d >= 2:
            a(f"v_cndmask_b32 v{P + d - 2}, 0, v{u}, {pairs[(d - 2) % 3]}")
    a(f"ds_write_b128 v{vL16}, {vr(P, 4)} offset:{PERM}")
    a(f"ds_write_b128 v{vL16}, {vr(P + 4, 4)} offset:{PERM + 1024}")


def gemm_perm_get(P):
    if OPT["bfr"]:
        a(f"ds_read_b128 {vr(P, 4)}, v{vL16} offset:{PERM}")
        a(f"ds_read_b128 {vr(P + 4, 4)}, v{vL16} offset:{PERM + 1024}")


def gemm_reduce_bf(P, pre, post, quarter):
    side = a.capture(pre) if pre else []
    a.put(side[:9])
    side = side[9:]
    T = [104, 108, 112, 116]
    n = 0
    for rel in (1, 2, 3):
        for j in range(2):
            t = T[n % 4]
            n += 1
            for k in range(4):
                r = 16 * rel + 8 * j + 2 * k
                a(f"v_cvt_pk_bf16_f32 v{t + k}, v{r}, v{r + 1}")
            a(f"ds_write_b128 v{64 + rel}, {vr(t, 4)} offset:{RB + (rel - 1) * 2048 + j * 1024}")
            a.put(side[:3])
            side = side[3:]
    a.put(side)
    a.barrier()
    for k in ((0, 2, 4, 1, 3, 5) if (quarter and OPT["spl"]) else range(6)):
        a(f"ds_read_b128 {vr(16 + 4 * k, 4)}, v64 offset:{RB + k * 1024}")
    if post:
        post()
    if quarter and OPT["spl"]:
        for k in (0, 2, 4):
            a(f"v_mfma_f32_32x32x16_bf16 v[0:15], {vr(P, 4)}, {vr(16 + 4 * k, 4)}, v[0:15]")
        ms = [[Ins(f"v_mfma_f32_32x32x16_bf16 v[48:63], {vr(P + 4, 4)}, {vr(16 + 4 * k, 4)}, {'v[48:63]' if k > 1 else 0}")] for k in (1, 3, 5)]
        a.put(ms[0])
        a.put(ms[1])
        m, rest = merge(a.capture(lambda: (quarter(0), quarter(1))), ms[2:], 10, 30)
        a.put(m)
        assert not rest
        for r in range(8, 16, 2):
            a(f"v_pk_add_f32 {vr(r, 2)}, {vr(r, 2)}, {vr(48 + r, 2)}")
        quarter(2)
        quarter(3)
        return
    for k in range(6):
        a(f"v_mfma_f32_32x32x16_bf16 v[0:15], {vr(P + 4 * (k % 2), 4)}, {vr(16 + 4 * k, 4)}, v[0:15]")
    if quarter:
        for q in range(4):
            quarter(q)


def gemm_reduce(pre=None, post=None, quarter=None, P=None):
    if OPT["bfr"]:
        return gemm_reduce_bf(P, pre, post, quarter)
    side = a.capture(pre) if pre else []
    wr = [[Ins(f"ds_write_b128 v{64 + rel}, {vr(16 * rel + 4 * q, 4)} offset:{RB + (rel - 1) * 4096 + q * 1024}")] for rel in (1, 2, 3) for q in range(4)]
    a.put(side[:9])
    put_all(wr[:3])
    m, rest = merge(side[9:], wr[3:], 0, 12)
    a.put(m)
    put_all(rest)
    a.barrier()
    for q in range(4):
        for k in range(3):
            a(f"ds_read_b128 {vr(16 + 16 * k + 4 * q, 4)}, v64 offset:{RB + k * 4096 + q * 1024}")
        if q == 1 and post:
            post()
    for q in range(4):
        for h in range(2):
            r = 4 * q + 2 * h
            a(f"v_pk_add_f32 {vr(16 + r, 2)}, {vr(16 + r, 2)}, {vr(32 + r, 2)}")
            a(f"v_pk_add_f32 {vr(r, 2)}, {vr(r, 2)}, {vr(48 + r, 2)}")
        for h in range(2):
            r = 4 * q + 2 * h
            a(f"v_pk_add_f32 {vr(r, 2)}, {vr(r, 2)}, {vr(16 + r, 2)}")
        if quarter:
            quarter(q)


def gemm1(layer, wide, pre=None, bg=(), part="all"):
    H = H1 if layer == 0 else H3
    G = G1 if layer == 0 else G3
    r = 32
    c0 = -2 * math.log2(math.e) * math.sqrt(2 / math.pi)
    ein, eout = 2 + 4 * layer, 3 + 4 * layer
    if part == "poll":
        assert emode(ein) == "S"
        for k in range(8):
            unpack(2 * k, 2 * k + 1, 20 + k)
        poll_issue(ein + 10, r, r + 3)
        return
    if part != "rest":
        gemm1_head(H, G, wide, r, c0)
    if part == "head":
        return
    gemm1_rest(layer, wide, pre, bg, part, r, c0, ein, eout)


def gemm1_head(H, G, wide, r, c0):
    gemm_addr()
    a(f"""s_lshr_b32 s{sT0}, s{sWAVE}, 1
s_lshl_b32 s{sT0}, s{sT0}, 6
s_lshl_b32 s{sT1}, s{sNT}, 7
s_add_u32 s{sT0}, s{sT0}, s{sT1}
v_lshrrev_b32 v16, 5, v{vLANE}
v_lshl_add_u32 v16, v16, 3, s{sT0}""")
    for q in range(4):
        a(f"global_load_dwordx2 {vr(20 + 2 * q, 2)}, v16, {sp(P_B1)} offset:{16 * q}")
    a(f"""s_lshl_b32 s{sT0}, s{sWAVE}, 5
v_and_b32 v{r + 2}, 31, v{vLANE}
v_add_u32 v{r + 2}, s{sT0}, v{r + 2}
v_and_b32 v{r + 3}, {31 & ~(32 // OPT['samp'] - 1)}, v{vLANE}
v_add_u32 v{r + 3}, s{sT0}, v{r + 3}
s_lshl_b32 s13, s{sDT1}, 7
s_add_u32 s13, s13, s{sT0}
s_lshl_b32 s13, s13, 11
s_add_u32 s13, s13, {H}""")
    if wide:
        a(f"v_lshrrev_b32 v{r + 2}, 1, v{r + 2}\nv_lshrrev_b32 v{r + 3}, 1, v{r + 3}")
    a(f"""s_mov_b32 s{sCA}, {f32(c0 * 0.044715)}
s_mul_i32 s21, s{sDT1}, 112
s_lshl_b32 s{sT0}, s{sNT}, 2
s_add_u32 s21, s21, s{sT0}
s_and_b32 s{sT0}, s{sWAVE}, 2
s_add_u32 s21, s21, s{sT0}
s_lshl_b32 s21, s21, 11
s_add_u32 s21, s21, {G}""")
    gemm_reduce_prep()
    gemm_rot(32, sROT1)


def gemm1_rest(layer, wide, pre, bg, part, r, c0, ein, eout):
    if pre:
        pre()
    if part != "rest":
        for k in range(8):
            unpack(2 * k, 2 * k + 1, 20 + k)
    if part == "rest":
        poll_take(r, r + 3)
    elif emode(ein) == "M":
        l1, l2 = label("m1"), label("m2")
        a(f"s_cmp_eq_u32 s{sRL0 if wide else sRL}, 0\ns_cbranch_scc1 {l1}")
        a.wait_tag("pub")
        a(f"s_branch {l2}")
        a(f"{l1}:")
        wait_edge(ein, r, r + 2, r + 3)
        a(f"{l2}:")
    else:
        wait_edge(ein, r, r + 2, r + 3)
    stamp(f"g1_{layer} go", 63)
    prod = f"s_mul_i32 s{sT0}, s{sDT1}, 28\ns_add_u32 s{sT0}, s{sT0}, s{sNT}\ns_lshl_b32 s{sT0}, s{sT0}, 6"
    early = hinted(eout) and OPT["h_g1"] < 0
    at = {30: gemm_reduce_addr, 28: lambda: gemm_perm_get(96)}
    if early:
        assert OPT["h_g1"] in (-1, -3, -4)
        at[32 + OPT["h_g1"]] = lambda: (hint_prep(eout + 10, prod, 104), hint_put(104))
    gemm_loop(32, 64, 14, lambda ks, nb: f"a[{(ks * 2 + nb) * 4}:{(ks * 2 + nb) * 4 + 3}]", False, sentinel(ein), at=at)
    count_out(120)
    stamp(f"g1_{layer} loop", 120)
    a.begin()
    late = hinted(eout) and not early

    def pre():
        a(f"v_mov_b32 v80, {f32(c0)}")
        if late:
            hint_prep(eout + 10, prod, 72)

    def gelu(q):
        if q % 2 == 0:
            return
        half = q // 2
        if late and OPT["h_g1"] == 1 and half == 0:
            hint_put(72)
        rs = range(8 * half, 8 * half + 8, 2)
        for r in rs:
            a(f"v_pk_mul_f32 {vr(16 + r, 2)}, {vr(r, 2)}, {vr(r, 2)}")
        for r in rs:
            a(f"v_pk_fma_f32 {vr(16 + r, 2)}, {vr(16 + r, 2)}, {sp(sCA)}, {vr(80, 2)} op_sel_hi:[1,0,0]")
        for r in rs:
            a(f"v_pk_mul_f32 {vr(16 + r, 2)}, {vr(16 + r, 2)}, {vr(r, 2)}")
        for r in rs:
            a(f"v_exp_f32 v{16 + r}, v{16 + r}\nv_exp_f32 v{17 + r}, v{17 + r}")
        for r in rs:
            a(f"v_pk_add_f32 {vr(16 + r, 2)}, {vr(16 + r, 2)}, 1.0 op_sel_hi:[1,0]")
        for r in rs:
            a(f"v_rcp_f32 v{16 + r}, v{16 + r}\nv_rcp_f32 v{17 + r}, v{17 + r}")
        for r in rs:
            a(f"v_pk_mul_f32 {vr(r, 2)}, {vr(r, 2)}, {vr(16 + r, 2)}")
        for r in rs:
            a(f"v_cvt_pk_bf16_f32 v{84 + r // 2}, v{r}, v{r + 1}")
        a(f"buffer_store_dwordx4 {vr(84 + 4 * half, 4)}, v{vA0}, {srd(S_WS)}, s21 offen offset:{2048 * half} sc1", tag="pub")
        if late and OPT["h_g1"] == 2 + half:
            hint_put(72)
    gemm_reduce(pre, (lambda: hint_put(72)) if (late and OPT["h_g1"] == 0) else None, gelu, 96)
    m, rest = merge(a.end(), list(bg), 0, OPT["ev_g1"])
    a.put(m)
    if not flagged(eout):
        a.barrier()
    else:
        flag_put(eout, prod, 40, "pub")
    for g in rest:
        a.put(g)


def gemm2(layer, bg=()):
    G = G1 if layer == 0 else G3
    gemm_addr()
    a(f"""s_lshr_b32 s{sT0}, s{sWAVE}, 1
s_lshl_b32 s{sT0}, s{sT0}, 5
s_lshl_b32 s{sT1}, s{sST}, 6
s_add_u32 s50, s{sT0}, s{sT1}
s_and_b32 s{sT1}, s{sWAVE}, 1
s_lshl_b32 s{sT1}, s{sT1}, 5
s_lshl_b32 s{sT2}, s{sDT2}, 6
s_add_u32 s51, s{sT1}, s{sT2}
s_lshr_b32 s{sT2}, s50, 5
s_mul_i32 s{sT2}, s{sT2}, {BS}
s_lshl_b32 s{sT1}, s51, 6
s_add_u32 s20, s{sT2}, s{sT1}
s_add_u32 s30, s20, {X1 if layer == 0 else X3}
v_and_b32 v16, 31, v{vLANE}
v_lshrrev_b32 v17, 5, v{vLANE}
s_lshl_b32 s{sT0}, s50, 1""")
    r = 42

    def residual_issue():
        if layer == 0:
            if OPT["res4"]:
                for k in range(2):
                    a(f"buffer_load_dwordx4 {vr(20 + 4 * k, 4)}, v18, {srd(S_WS)}, s30 offen offset:{32 * k} sc1")
            else:
                for q in range(4):
                    a(f"buffer_load_dwordx2 {vr(20 + 2 * q, 2)}, v18, {srd(S_WS)}, s30 offen offset:{16 * q} sc1")
        else:
            a(f"s_mov_b32 m0, s31")
            a(f"buffer_load_dwordx4 v{vL16}, {srd(S_WS)}, s30 offen sc1 lds", res_w=["x3"])
            a(f"buffer_load_dwordx4 v{vL16}, {srd(S_WS)}, s30 offen offset:1024 sc1 lds", res_w=["x3"])

    def residual_use():
        if layer == 0:
            if OPT["res4"]:
                for k in (20, 21, 24, 25):
                    a(f"v_permlane32_swap_b32 v{k}, v{k + 2}")
            for k in range(8):
                unpack(2 * k, 2 * k + 1, 20 + k)
            for k in range(8):
                unpack(40, 41, 28 + k)
                a(f"v_pk_add_f32 {vr(2 * k, 2)}, {vr(2 * k, 2)}, v[40:41]")
        else:
            for q in range(4):
                a(f"ds_read_b64_tr_b16 {vr(20 + 2 * q, 2)}, v31 offset:{512 * q}", res_r=["x3"])
            a("v_lshlrev_b32 v40, 16, v29")
            for k in range(8):
                unpack(2 * k, 2 * k + 1, 20 + k)
                a(f"v_pk_add_f32 {vr(2 * k, 2)}, {vr(2 * k, 2)}, v[40:41] op_sel_hi:[1,0]")

    if layer == 0:
        a(f"v_lshlrev_b32 v18, 6, v16\nv_lshl_add_u32 v18, v17, {4 if OPT['res4'] else 3}, v18\nv_lshl_add_u32 v19, v17, 3, s{sT0}")
        for q in range(4):
            a(f"global_load_dwordx2 {vr(28 + 2 * q, 2)}, v19, {sp(P_B2)} offset:{16 * q}")
    else:
        a(f"""v_and_b32 v19, 3, v{vLANE}
s_lshl_b32 s31, s{sWAVE}, 11
v_lshl_add_u32 v28, v16, 1, s{sT0}
global_load_ushort v29, v28, {sp(P_B2)}
v_bfe_u32 v31, v{vLANE}, 2, 2
v_lshl_add_u32 v31, v17, 2, v31
v_lshlrev_b32 v31, 6, v31
v_bfe_u32 v30, v{vLANE}, 4, 1
v_lshl_add_u32 v31, v30, 5, v31
v_lshl_add_u32 v31, v19, 3, v31
v_add_u32 v31, s31, v31""")
    a(f"""s_mul_i32 s{sT0}, s{sDT2}, 28
s_mul_i32 s{sT1}, s{sWAVE}, 7
s_add_u32 s{sT0}, s{sT0}, s{sT1}
v_min_u32 v{r + 2}, 6, v{vLANE}
v_add_u32 v{r + 2}, s{sT0}, v{r + 2}
v_mov_b32 v{r + 3}, v{r + 2}
s_lshl_b32 s13, s{sT0}, 13
s_add_u32 s13, s13, {G}""")
    if layer == 0:
        a(f"""s_add_u32 s21, s20, {X2}
s_lshl_b32 s19, s50, 1
s_add_u32 s19, s19, {ST1}""")
    else:
        a(f"s_mul_i32 s{sT0}, s50, 896\ns_lshl_b32 s{sT1}, s51, 1\ns_add_u32 s21, s{sT0}, s{sT1}")
    gemm_reduce_prep()
    gemm_rot(28, sROT2)
    if layer == 0 and emode(4) == "C" and OPT["x2l"] == 2:
        a(f"s_mul_i32 s{sT0}, s{sWAVE}, 7\nv_min_u32 v52, 6, v{vLANE}\nv_add_u32 v52, s{sT0}, v52")
        poll_issue(19, 50)
    lskip, ljoin = label("res"), label("resj")
    a(f"s_cmp_eq_u32 s{sR1}, 0")
    a(f"s_cbranch_scc1 {lskip}")
    residual_issue()
    residual_use()
    if emode(3 + 4 * layer) == "M":
        a.wait_tag("pub")
    else:
        wait_edge(3 + 4 * layer, r, r + 2, r + 3)
    a(f"s_branch {ljoin}")
    a(f"{lskip}:")
    eln = 2 + 4 * layer
    if OPT["rese"] and hinted(eln) and OPT["h_ln"] >= 2:
        wide = OPT["ln1w"] if layer else OPT["ln0w"]
        a(f"s_lshl_b32 s{sT0}, s{sST}, {1 if wide else 2}\nv_and_b32 v48, {1 if wide else 3}, v{vLANE}\nv_add_u32 v48, s{sT0}, v48")
        poll_issue(eln + 10, 46)
        poll_take(46)
        residual_issue()
        residual_use()
        wait_edge(3 + 4 * layer, r, r + 2, r + 3)
    else:
        wait_edge(3 + 4 * layer, r, r + 2, r + 3)
        residual_issue()
        residual_use()
    a(f"{ljoin}:")
    if layer == 0 and emode(4) == "C" and OPT["x2l"] == 2:
        poll_take(50)
    at = {26: gemm_reduce_addr, 25: lambda: gemm_perm_get(88)}
    late = layer == 0 and emode(4) == "C" and OPT["x2l"] == 1
    if late:
        at[25] = lambda: (gemm_perm_get(88), a(f"v_and_b32 v98, 31, v{vLANE}"), poll_issue(19, 96))
    stamp(f"g2_{layer} go", 63)
    gemm_loop(28, 64, 10, lambda ks, nb: vr(128 + (ks * 2 + nb) * 4, 4), layer == 1, sentinel(3 + 4 * layer), lds_from=16, at=at, bg=bg)
    count_out(120)
    stamp(f"g2_{layer} loop", 120)

    def addr():
        a(f"v_and_b32 v68, 31, v{vLANE}\nv_lshrrev_b32 v69, 5, v{vLANE}")
        if layer == 0:
            a(f"""v_and_b32 v70, 15, v{vLANE}
v_lshlrev_b32 v70, 6, v70
v_lshl_add_u32 v70, v69, 4, v70
v_bfe_u32 v71, v{vLANE}, 4, 1
v_lshl_add_u32 v70, v71, 5, v70
""")
            if emode(4) == "C":
                a(f"""v_lshl_add_u32 v71, v69, 2, v71
v_lshlrev_b32 v71, 12, v71
v_and_b32 v68, 15, v{vLANE}
v_lshl_add_u32 v71, v68, 2, v71
v_mov_b32 v68, 1.0
v_cndmask_b32 v68, v68, 0, {sp(sM1)}
s_add_u32 s18, s19, 8192""")
            else:
                a(f"""v_bfe_u32 v71, v{vLANE}, 2, 2
v_lshlrev_b32 v71, 4, v71
v_bfe_u32 v68, v{vLANE}, 4, 1
v_lshl_add_u32 v71, v68, 3, v71
v_and_b32 v68, 1, v{vLANE}
v_lshl_add_u32 v71, v68, 2, v71
v_bfe_u32 v68, v{vLANE}, 1, 1
v_lshl_add_u32 v68, v69, 1, v68
v_lshl_add_u32 v71, v68, 12, v71""")
        else:
            a(f"v_mul_u32_u24 v70, 896, v68\nv_lshl_add_u32 v70, v69, 4, v70")
    prod = f"s_lshl_b32 s{sT0}, s{sDT2}, 5\ns_add_u32 s{sT0}, s{sT0}, s{sST}\ns_lshl_b32 s{sT0}, s{sT0}, 6"
    hn = layer == 0 and hinted(4)

    def pre():
        addr()
        if hn:
            hint_prep(14, prod, 80)
    gemm_reduce(pre, (lambda: hint_put(80)) if (hn and OPT["h_g2"] == 0) else None, None, 88)
    if hn and OPT["h_g2"] == 1:
        hint_put(80)
    PK = 72
    if late:
        poll_take(96)
    stamp(f"g2_{layer} red", 120)
    for half in range(2):
        b = PK + 4 * half
        for k in range(4):
            a(f"v_cvt_pk_bf16_f32 v{b + k}, v{8 * half + 2 * k}, v{8 * half + 2 * k + 1}")
        a(f"v_permlane32_swap_b32 v{b}, v{b + 2}")
        a(f"v_permlane32_swap_b32 v{b + 1}, v{b + 3}")
        if layer == 1:
            a(f"buffer_store_dwordx4 {vr(b, 4)}, v70, {srd(S_OUT)}, s21 offen offset:{32 * half} {('', 'nt', 'sc1')[OPT['ofl']]}")
    if layer == 1:
        return
    def put_x():
        for k in range(4):
            a(f"v_permlane16_swap_b32 v{PK + k}, v{PK + 4 + k}")
        for half in range(2):
            a(f"buffer_store_dwordx4 {vr(PK + 4 * half, 4)}, v70, {srd(S_WS)}, s21 offen offset:{1024 * half} sc1", tag="pub")
    put_x()
    if hn and OPT["h_g2"] == 2:
        hint_put(80)
    for k in range(8):
        a(f"v_pk_mul_f32 {vr(20 + 2 * k, 2)}, {vr(2 * k, 2)}, {vr(2 * k, 2)}")
    res = reduce32(list(range(16)) + list(range(20, 36)), 16, list(range(40, 48)))
    assert res == [0, 1, 2, 3]
    if emode(4) == "C":
        a(f"""v_permlane16_swap_b32 v0, v1
v_permlane16_swap_b32 v2, v3
v_cndmask_b32 v0, v0, v1, {sp(sM1)}
v_cndmask_b32 v2, v2, v3, {sp(sM1)}
v_cndmask_b32 v0, v0, v68, {sp(sM2)}
v_cndmask_b32 v2, v2, v68, {sp(sM2)}""")
        a(f"buffer_atomic_add_f32 v0, v71, {srd(S_WS)}, s19 offen sc1", tag="pub")
        a(f"buffer_atomic_add_f32 v2, v71, {srd(S_WS)}, s18 offen sc1", tag="pub")
    else:
        a(f"""v_cndmask_b32 v0, v0, v1, {sp(sM1)}
v_cndmask_b32 v2, v2, v3, {sp(sM1)}
v_cndmask_b32 v0, v0, v2, {sp(sM2)}""")
        a(f"buffer_atomic_add_f32 v0, v71, {srd(S_WS)}, s19 offen sc1", tag="pub")
    if hn and OPT["h_g2"] == 3:
        hint_put(80)
    stamp("g2_0 atom", 120)
    if flagged(4):
        flag_put(4, prod, 40, "pub")
    else:
        a.barrier()
    stamp("g2_0 flag", 120)


def skip_unless(role):
    l = label("skip")
    a(f"s_cmp_eq_u32 s{role}, 0")
    a(f"s_cbranch_scc1 {l}")
    return l


def dmas(n0, n1):
    return [w_dma(n, h) for n in range(n0, n1) for h in range(2)]


def tr_dma(n0, n1):
    g = []
    for n in range(n0, n1):
        g.append(w_tr(n))
        if n > n0:
            g += dmas(n + 11, n + 12)
    g += dmas(n1 + 11, n1 + 12)
    return g


def wseq():
    nB = OPT["wB"] // 2
    assert 36 <= nB <= 60
    g = dmas(0, 12) + tr_dma(0, nB - 12)
    lastT = 48 if (nB >= 48 and OPT["wT"]) else 32 + OPT["wg"]
    g += [w_tr(n) for n in range(nB - 12, lastT)]
    g.append([])
    d = nB
    for n in range(max(lastT, nB - 12), 49):
        while d < min(n + 11, 60) or (n == 48 and d < 60):
            g += dmas(d, d + 1)
            d += 1
        if n < 48:
            g.append(w_tr(n))
    return g


def wcut(n_dma):
    k = 0
    for p, g in enumerate(wseq()):
        if k == n_dma:
            return p
        k += any(i.kind == "dma" for i in g)
    return len(wseq())


def put_all(gs):
    for g in gs:
        a.put(g)


def w2_touch(r):
    return [Ins(f"v_lshlrev_b32 v{r}, 12, v{vLANE}"), Ins(f"buffer_load_dword v{r}, v{r}, {srd(S_W2)}, s{sW2O} offen")]


def upad():
    a(f"""v_mov_b32 v32, 0
v_mov_b32 v33, 0
v_mov_b32 v34, 0
v_mov_b32 v35, 0
s_and_b32 s{sT0}, s{sWAVE}, 1
s_mul_i32 s{sT0}, s{sT0}, {UST}
v_add_u32 v36, s{sT0}, v{vL16}
ds_write_b128 v36, v[32:35] offset:{UB}""")


def build():
    global RB
    if OPT["bfr"] and OPT["keepk"]:
        RB = UB
    g = OPT["wg"]
    WORDER[:] = list(range(0, g)) + list(range(32, 32 + g)) + list(range(g, 32)) + list(range(32 + g, 60))
    if OPT["w2t"]:
        WORDER[:] = list(range(60))
    cA, cP, cL, cB = wcut(OPT["wA"]), wcut(OPT["wP"]), wcut(OPT["wL"]), wseq().index([])
    cK = wcut(OPT["wK"])
    prologue()
    laux, ljoin = label("aux"), label("join")
    a(f"s_cmp_eq_u32 s{sRC}, 0")
    a(f"s_cbranch_scc1 {laux}")
    stamp("args", 2)
    xt_loads()
    kgen_table_load()
    code_warm(1)
    page_warm(88)
    w_setup()
    put_all(wseq()[:cA])
    conv_setup(0)
    stamp("start", 2)

    xt_poll_addr(63, 2)
    if sentinel(1) and OPT["x1s"]:
        a(f"""v_lshrrev_b32 v2, 3, v{vLANE}
v_mul_u32_u24 v2, {BS}, v2
v_and_b32 v3, 7, v{vLANE}
v_lshl_add_u32 v2, v3, 4, v2
s_mul_i32 s{sT0}, s{sWAVE}, {16 * BS}
s_lshl_b32 s{sT1}, s{sPAIR}, 7
s_add_u32 s{sT0}, s{sT0}, s{sT1}
s_add_u32 s{sT0}, s{sT0}, {X1}
s_add_u32 s{sT1}, s{sT0}, {8 * BS}
v_mov_b32 v4, -1
v_mov_b32 v5, -1
v_mov_b32 v6, -1
v_mov_b32 v7, -1""")
        a(f"buffer_store_dwordx4 v[4:7], v2, {srd(S_WS)}, s{sT0} offen sc1", tag="st0")
        a(f"buffer_store_dwordx4 v[4:7], v2, {srd(S_WS)}, s{sT1} offen sc1", tag="st0")
    xt_work()
    stamp("xt", 2)

    def h_flag():
        nonce_take()
        flag_put(0, sPAIR, 104, "st0")
        stamp("flag", 0)
        a(f"global_load_dwordx4 {vr(TAB, 4)}, v75, {sp(sTAB)}")
        a(f"global_load_dwordx4 {vr(TAB + 4, 4)}, v75, {sp(sTAB)} offset:16")
        a(f"global_load_dwordx2 v[0:1], v75, {sp(sTAB)} offset:32")

    def h_load():
        poll_take(64, 63)
        stamp("e1 seen", 64)
        for i in a.capture(conv_loads):
            a(re.sub(r"v\[(\d+):(\d+)\]", lambda m: f"a[{int(m.group(1)) - CS}:{int(m.group(2)) - CS}]", i.text, count=1))

    hooks = {}
    dbg = tuple((p, (lambda p=p: stamp(f"hook{p}", 65))) for p in (0, 1, 2, 5)) if OPT["stamps"] == 1 else ()
    for pos, fn in dbg + ((OPT["h_flag"], h_flag), (OPT["h_w"], lambda: KBG.extend(wseq()[cA:cK] + ([w2_touch(75)] if OPT["w2t"] else []))), (OPT["h_poll"], lambda: poll_issue(0, 64, 63)), (OPT["h_load"], h_load)):
        hooks.setdefault(pos, []).append(fn)
    assert OPT["h_flag"] <= OPT["h_w"] and OPT["h_poll"] >= 6
    kgen({k: (lambda fs=fs: [f() for f in fs]) for k, fs in hooks.items()})
    dump_lds(1)
    stamp("kgen", 21)

    def mid():
        if OPT["h_load"] < 10:
            return
        poll_take(64, 63)
        stamp("e1 seen", 0)
        conv_loads()
    wr = kexpand(mid)
    if OPT["mixpro"]:
        mv = [i for i in wr if i.kind != "dsw"]
        st = [i for i in wr if i.kind == "dsw"]
        pro = a.capture(conv_pro, 0)
        k = next(n for n, i in enumerate(pro) if i.defs & {f"v{r}" for r in range(0, 22)})
        a.put(mv)
        a.put(st[2:4])
        head, rest = merge(pro[:k], [[i] for i in st[4:6] + st[:2] + st[6:]], 0, 14)
        a.put(head)
        early = [g for g in rest if g[0].uses & {f"v{r}" for r in range(0, 22)}]
        put_all(early)
        rest = [g for g in rest if g not in early]
        k2 = next(n for n, i in enumerate(pro) if i.kind == "dsw")
        mid2, rest = merge(pro[k:k2], rest, 0, 30)
        put_all(rest)
        m3, rest = merge(mid2 + pro[k2:], wseq()[cK:cP], 50, OPT["ev_pro"])
        a.put(m3)
        put_all(rest)
        stamp("expand", 111)
    else:
        a.put(wr)
        stamp("expand")
        conv_pro(0)
    if sentinel(1) and not OPT["x1s"]:
        a(f"v_min_u32 v{cvP + 2}, 27, v{vLANE}")
        poll_issue(8, cvP)
    a.barrier()
    dump_lds(2)
    stamp("conv0 go", 111)
    put_all(conv_main(0, wseq()[cP:cL], OPT["st_conv"], OPT["ev_conv"]))
    stamp("conv0 done")
    a(f"s_branch {ljoin}")
    a(f"{laux}:")
    aux_loads()
    kgen_table_addr()
    code_warm(1)
    page_warm(88)
    w_setup()
    aux_work()
    stamp("aux e1")
    if OPT["g7"] == 1:
        lg = label("g7")
        a(f"""s_cmp_lg_u32 s{sR1}, 0
s_cbranch_scc1 {lg}
s_lshr_b32 s{sT0}, s{sX}, 2
s_sub_u32 s{sT0}, s{sJ}, s{sT0}
s_sub_u32 s{sT0}, s{sT0}, 28
s_lshl_b32 s{sT0}, s{sT0}, 3
s_add_u32 s{sT0}, s{sT0}, s{sX}
s_lshl_b32 s{sT0}, s{sT0}, 7
s_mul_i32 s{sT1}, s{sWAVE}, {512 * 3584}
s_add_u32 s{sT0}, s{sT0}, s{sT1}
s_add_u32 s{sT0}, s{sT0}, {448 * 3584}
v_mul_u32_u24 v90, 3584, v{vLANE}
v_add_u32 v90, s{sT0}, v90""")
        a(f"global_load_dword v90, v90, {sp(P_W1)}")
        a(f"{lg}:")
    if armed(0):
        lnf = label("nf")
        a(f"s_cmp_lg_u32 s{sR1}, 0\ns_cbranch_scc1 {lnf}")
        if OPT["map18"] == 1:
            a(f"s_sub_u32 s16, s{sAUX}, 4\ns_cselect_b32 s16, s{sAUX}, s16")
        else:
            a(f"s_lshr_b32 s16, s{sAUX}, 1\ns_sub_u32 s17, s{sAUX}, 4\ns_cmp_lt_u32 s{sAUX}, 8\ns_cselect_b32 s16, s16, s17")
        if sentinel(1) and not OPT["x1s"]:
            fill(X1, 17, 80, 16, 28 * 4096, "fill")
            flag_put(8, 16, 72, "fill")
        if sentinel(2) or sentinel(3):
            if sentinel(2):
                fill(H1, 16, 80, 16, 28 * 4096, "fill")
            if sentinel(3):
                fill(G1, 14, 80, 16, 28 * 4096, "fill")
            if emode(4) == "C" and not OPT["x2l"]:
                assert sentinel(2) and sentinel(3)
                fill(X2, 17, 80, 16, 28 * 4096, "fill")
            flag_put(18, 16, 72, "fill")
        a(f"{lnf}:")
    stamp("aux fill")
    if OPT["g7"] == 2:
        lg = label("g7")
        a(f"""s_cmp_lg_u32 s{sR1}, 0
s_cbranch_scc1 {lg}
s_lshr_b32 s{sT0}, s{sX}, 2
s_sub_u32 s{sT0}, s{sJ}, s{sT0}
s_sub_u32 s{sT0}, s{sT0}, 28
s_lshl_b32 s{sT0}, s{sT0}, 3
s_add_u32 s{sT0}, s{sT0}, s{sX}
s_lshl_b32 s{sT0}, s{sT0}, 7
s_mul_i32 s{sT1}, s{sWAVE}, {512 * 3584}
s_add_u32 s{sT0}, s{sT0}, s{sT1}
s_add_u32 s{sT0}, s{sT0}, {448 * 3584}
v_mul_u32_u24 v90, 3584, v{vLANE}
v_add_u32 v90, s{sT0}, v90""")
        a(f"global_load_dword v90, v90, {sp(P_W1)}")
        a(f"{lg}:")
    cX = min(wcut(64 + 2 * OPT["wg"]), cB)
    if OPT["w2t"]:
        a.put(w2_touch(75))
    n1 = 32 + OPT["wg"]
    if OPT["auxs"]:
        put_all(dmas(0, 12) + tr_dma(0, n1 - 12) + [w_tr(n) for n in range(n1 - 12, n1)])
    else:
        put_all(wseq()[:cX])
    if sentinel(1) and not OPT["x1s"]:
        a(f"v_min_u32 v62, 27, v{vLANE}")
        poll_issue(8, 60)
        poll_take(60)
    a.wait_vm0()
    stamp("aux w")
    a(f"{ljoin}:")
    for layer in range(2):
        if layer == 1:
            l = skip_unless(sRC)
            conv_setup(1)
            conv_poll1()
            stamp("conv1 ready")
            if OPT["kc_in"] and not hinted(4):
                a.wait_tag("flag")
                poll_issue(4, cvP)
                kcopies()
                poll_take(cvP)
            else:
                upad() if RB == UB else kcopies()
                conv_xearly()
                if emode(4) == "G":
                    lg = label("gt")
                    a(f"s_cmp_lg_u32 s{sR2}, 0\ns_cbranch_scc1 {lg}")
                    poll_issue(14, cvP, cvP + 3)
                    poll_take(cvP, cvP + 3)
                    a(f"{lg}:")
                    a.wait_tag("flag")
                    poll_issue(4, cvP)
                    poll_take(cvP)
                else:
                    wait_edge(4, cvP, cvP + 2, cvP + 3)
            stamp("conv1 poll")
            if emode(4) != "C":
                conv_loads()
            conv_pro(1)
            count_out(111)
            if armed(1):
                a(f"v_and_b32 v{cvP + 2}, 31, v{vLANE}")
                poll_issue(9, cvP)
            a.barrier()
            dump_lds(3)
            stamp("conv1 go", 111)
            conv_main(1)
            stamp("conv1 done")
            if armed(1):
                lj = label("cvj")
                a(f"s_branch {lj}")
                a(f"{l}:")
                a(f"v_and_b32 v62, 31, v{vLANE}")
                poll_issue(9, 60)
                poll_take(60)
                a(f"{lj}:")
            else:
                a(f"{l}:")
        wide = OPT["ln1w"] if layer else OPT["ln0w"]
        l = skip_unless(sRL0 if wide else sRL)
        ln(layer, wide)
        stamp(f"ln{layer} done")
        a(f"{l}:")
        if layer == 0:
            gemm_perm(0)
            def arm_poll(part):
                k = max(0, len(part) - 12)
                put_all(part[:k])
                if sentinel(2) or sentinel(3):
                    a(f"v_min_u32 v62, 27, v{vLANE}")
                    poll_issue(18, 60)
                if inb:
                    gemm1(0, wide, part="head")
                k2 = max(k, len(part) - OPT["inb"])
                put_all(part[k:k2])
                if inb:
                    gemm1(0, wide, part="poll")
                put_all(part[k2:])
                if sentinel(2) or sentinel(3):
                    poll_take(60)
            inb = OPT["inb"] > 0 and emode(2) == "S"
            if OPT["auxs"]:
                assert OPT["wB"] == 120
                la, lb, lc = label("ba"), label("bb"), label("bc")
                a(f"s_cmp_eq_u32 s{sRC}, 0\ns_cbranch_scc1 {la}")
                arm_poll(wseq()[cL:cB])
                a(f"s_branch {lb}")
                a(f"{la}:")
                a(f"s_cmp_eq_u32 s{sR2}, 0\ns_cbranch_scc1 {lc}")
                put_all(dmas(n1, n1 + 12) + tr_dma(n1, 48))
                if emode(4) == "C" and OPT["x2l"] == 2:
                    a(f"s_sub_u32 s16, s{sAUX}, 4\ns_cselect_b32 s16, s{sAUX}, s16")
                    fill(X2, 17, 80, 16, 28 * 4096, "fill")
                    flag_put(19, 16, 72, "fill")
                a(f"{lc}:")
                if inb:
                    gemm1(0, wide, part="head")
                    gemm1(0, wide, part="poll")
                elif not sentinel(2):
                    arm_poll([])
                a(f"{lb}:")
            else:
                l = skip_unless(sRC)
                put_all(wseq()[cL:cX])
                a(f"{l}:")
                rest = wseq()[cX:cB]
                k = max(0, len(rest) - 12)
                put_all(rest[:k])
                if sentinel(2) or sentinel(3):
                    a(f"v_min_u32 v62, 27, v{vLANE}")
                    poll_issue(18, 60)
                put_all(rest[k:])
                if sentinel(2) or sentinel(3):
                    poll_take(60)
            stamp("w B", 63)
            tail = wseq()[cB:]
            assert not any(i.kind == "dsr" and "a[" in i.text for g in tail for i in g)
            lelse, lj = label("ng1"), label("g1j")
            a(f"s_cmp_eq_u32 s{sR1}, 0")
            a(f"s_cbranch_scc1 {lelse}")
            gemm1(0, wide, None, [] if OPT["t2"] else tail, "rest" if inb else "all")
            nonce_retire()
            stamp("g1_0 done")
            a(f"s_branch {lj}")
            a(f"{lelse}:")
            put_all([] if OPT["t2"] else wseq()[cB:])
            a(f"{lj}:")
        else:
            l = skip_unless(sR1)
            gemm1(1, wide)
            stamp("g1_1 done")
            a(f"{l}:")
        l = skip_unless(sR2)
        gemm2(layer, [g for g in wseq()[cB:] if g] if (layer == 0 and OPT["t2"]) else [])
        if layer == 0 and armed(1):
            lj = label("g2j")
            a(f"s_branch {lj}")
            a(f"{l}:")
            if OPT["map18"]:
                a(f"s_lshl_b32 s16, s{sX}, 2\ns_add_u32 s16, s16, s{sJ}")
            else:
                a(f"s_lshr_b32 s16, s{sX}, 1\ns_lshl_b32 s16, s16, 3\ns_add_u32 s16, s16, s{sJ}")
            late = emode(4) == "C" and OPT["x2l"]
            if late == 1:
                fill(X2, 15, 72, 16, CH)
                flag_put(19, 16, 8, "st0")
            for base, n, e in ((X3, 15, 5), (H3, 14, 6), (G3, 13, 7)):
                if sentinel(e):
                    fill(base, n, 72, 16, CH)
            flag_put(9, 16, 8, "st0")
            if late:
                a(f"v_and_b32 v62, 31, v{vLANE}" if late == 1 else f"v_min_u32 v62, 27, v{vLANE}")
                poll_issue(19, 60)
                poll_take(60)
            a(f"{lj}:")
        else:
            a(f"{l}:")
        stamp("g2_0 done" if layer == 0 else "end")
    if OPT["stamps"] and OPT["dbgwg"] < 0:
        l = label("ls")
        a(f"s_cmp_lg_u32 s{sWAVE}, 0\ns_cbranch_scc1 {l}\ns_waitcnt vmcnt(0)\ns_memrealtime {sp(sSTAMP)}\ns_waitcnt lgkmcnt(0)")
        a(f"s_lshl_b32 s3, s2, 8\ns_add_u32 s3, s3, {STAMPS + 248}\nv_mov_b32 v0, s101\nv_mov_b32 v1, s{sSTAMP}\ns_mov_b64 exec, 1")
        a(f"buffer_store_dwordx2 v[0:1], off, {srd(S_WS)}, s3")
        a(f"{l}:")
    if OPT["fixdur"]:
        a(f"s_waitcnt vmcnt(0) lgkmcnt(0)\nL_fix:\ns_memrealtime s[28:29]\ns_waitcnt lgkmcnt(0)\ns_sub_u32 s28, s28, s101\ns_cmp_lt_u32 s28, {OPT['fixdur']}\ns_cbranch_scc1 L_fix")
    a("s_endpgm")


def bf16_round_int(l):
    b = struct.unpack("<I", struct.pack("<f", float(l)))[0]
    b = (b + 0x7FFF + ((b >> 16) & 1)) & 0xFFFF0000
    return int(struct.unpack("<f", struct.pack("<I", b))[0])


def ktab():
    vals = []
    for c in range(2):
        for x in range(2048):
            lr = bf16_round_int(2047 - x)
            aa, rem = lr >> 7, lr & 127
            j, e = rem >> 3, rem & 7
            if aa < 2:
                rho = 8 * aa + e
            elif aa < 4:
                rho = 4 * aa + 8 + (e >> 1)
            elif aa < 8:
                rho = 16 + 2 * aa + (e >> 2)
            else:
                rho = 24 + aa
            vals.append((rho >> 2) * 256 + j * 16 + (rho & 3) * 4 + c * 2 * GST)
        vals += [3072 + c * 2 * GST] * 16
    lines = []
    for i in range(0, len(vals), 16):
        lines.append("    .short " + ", ".join(str(v) for v in vals[i:i + 16]))
    return "\n".join(lines)


DOC = """;
;   gemm1 : gelu(h^T W1 + b1), 64x64 tile per workgroup, K split over the waves, W1 tile resident in AGPRs
;   gemm2 : x + g W2 + b2, W2 tile resident in VGPRs + LDS; per-token sums for the next LayerNorm by float atomics
; Hand-offs between workgroups go through d_ws with write-through stores and L1-bypassing loads, valid for any placement:
; Every wait is bounded.  Generated by the author's own script (register allocation and schedule are explicit).
"""


def main(path):
    build()
    ins = a.finish()
    ref = open(f"cdna_kernels/{NAME}.s.ref").read().split("\n")
    head = [l for l in ref if l.startswith(";") and "@launch" not in l and not l.startswith("; Override") and not l.startswith("; grid=ceil")]
    k = NAME + "_kernel"
    s = "\n".join(head) + f"\n; @launch grid=(256,1,1) block=(256,1,1) lds={LDS_BYTES}\n"
    s += DOC
    s += f""".amdgcn_target "amdgcn-amd-amdhsa--gfx950"
.text
.globl {k}
.p2align 8
.type {k},@function
{k}:
L_entry:
"""
    s += Prog.render(ins)
    s += "".join((l if l.endswith(":") else "    " + l) + "\n" for l in STUBS)
    s += f""".p2align 6
.type ktab,@object
ktab:
{ktab()}
.size ktab, 8256
.section .rodata,"a"
.p2align 6
.amdhsa_kernel {k}
  .amdhsa_next_free_vgpr 512
  .amdhsa_next_free_sgpr 102
  .amdhsa_accum_offset 256
  .amdhsa_group_segment_fixed_size 0
  .amdhsa_kernarg_size 136
  .amdhsa_user_sgpr_count 2
  .amdhsa_user_sgpr_kernarg_segment_ptr 1
  .amdhsa_system_sgpr_workgroup_id_x 1
  .amdhsa_float_denorm_mode_32 3
.end_amdhsa_kernel
"""
    open(path, "w").write(s)
    n = sum(1 for i in ins if i.kind not in ("label", "comment"))
    open(path + ".names", "w").write("\n".join(STAMP_NAMES))
    print("instructions:", n, "nops:", sum(1 for i in ins if i.kind == "nop"), "waits:", sum(1 for i in ins if i.kind == "wait"))


if __name__ == "__main__":
    path = sys.argv[1]
    for kv in sys.argv[2:]:
        k, v = kv.split("=")
        OPT[k] = v if k in ('em', 'probe') else int(v)
    main(path)
```

```python
import sys, math, struct, re
from asmlib import *

NAME = "interleave_layers__ssm_conv_s4__mixer_token_mlp__prompt"
OPT = dict(stamps=False, stop=99, upfront=True, dump=0, dbgwg=-1, fixdur=0, em='SSSCDSS', warm=1, h_flag=2, h_w=2, h_poll=9, h_ln=2, h_cv=0, h_g1=0, h_g2=2, rot=1, wA=0, wK=8, wP=8, wL=24, wB=120, wT=1, lag=2, gap=3, st_conv=100, ev_conv=150, ev_g1=100000, fill0=14, ln1w=0, ln0w=1, chk=1, samp=8, map18=1, ofl=0, tailord=1, cv=1, clk=0, ev_kg=150, mixpro=1, now=0, probe='', kc_in=0, w2t=0, g7=0, rl=4, bfr=1, wg=4, slp=0, ev_pro=30, t2=0, bg0=0, tlb=0, rese=0, lnd=1, keepk=1, fake16=0, wnt=0, wnta=0, fnt=0, pnt=0, xnt=0, auxs=2, inb=6, x2l=2, res4=0, xe=0, cpipe=1, spl=1, h_load=99, x1s=1, aw=24)
DBG_SEL = ['start', 'kgen', 'conv0 go', 'ln0 go', 'g1_0 go', 'g1_0 loop', 'g2_0 go', 'g2_0 loop', 'conv1 poll', 'ln1 go', 'g1_1 go', 'g2_1 go', 'end']
STAMP_NAMES = []

EPOCH = 0
ST0 = 0x1000
ST1 = 0x8000
STAMPS = 0x20000
FL = 0x100000
BS = 448 * 64 + 128
CH = 0x20000
X1, H1, G1, X3, H3, G3, X2, X0 = (0x400000 + 0x200000 * i for i in range(8))
FILL1, FILL3 = 6, 36
WS_BYTES = 268435456
OOB = 0x40000000

KST = 4160
KSLOT = {0: [0, 5, 2, 3], 1: [1, 6, 7, 4]}
UB = 8 * KST
UPAD = 1024
UST = 4096 + UPAD
ZB = UB + 2 * UST
EX = 2 * KST
RB = 2 * KST
GST = 15616
GROW = 272
TOFF = 12288
LNP = 57472
PERM = 61440
W2L = 65536
LDS_BYTES = 163840

sWAVE, sX, sJ, sPAIR, sDT1, sNT, sDT2, sST, sLN = 4, 5, 6, 7, 8, 9, 10, 11, 12
sNONCE = 14
P_U, P_ARE, P_AIM, P_BRE, P_BIM, P_CRE, P_CIM, P_LDT = 16, 18, 20, 22, 24, 26, 28, 30
P_DSK, P_W1, P_B1, P_W2, P_B2, P_OUT, P_DBG, P_WS = 32, 36, 38, 40, 42, 44, 46, 48
S_WS, S_W1, S_W2, S_X0, S_OUT = 52, 56, 60, 64, 68
sD0, sD1 = 72, 74
sLDT = 76
sEP = 78
sWOFF, sT0, sT1, sT2, sT3, sCNT = 80, 81, 82, 83, 84, 85
sRC, sR1, sR2, sRL = 86, 87, 88, 89
sM1, sM2 = 90, 92
sSTAMP = 94
sTAB = 96
sLN0, sRL0 = 77, 73
sCA, sCB = 34, 100

vLANE, vL16, vT2a, vT2b, vT1a, vT1b, vD1, vD2 = 127, 126, 125, 124, 123, 122, 121, 120
vA0, vA1 = 123, 122


def srd(n):
    return f"s[{n}:{n + 3}]"


def sp(n):
    return f"s[{n}:{n + 1}]"


def vr(n, k):
    return f"v[{n}:{n + k - 1}]" if k > 1 else f"v{n}"


def f32(x):
    return "0x%08x" % struct.unpack("<I", struct.pack("<f", x))[0]


a = Prog()
_lab = [0]


def label(p):
    _lab[0] += 1
    return f"L_{p}_{_lab[0]}"


_stamp = [0]


def stamp(name, r=1):
    k = _stamp[0]
    _stamp[0] += 1
    STAMP_NAMES.append(name)
    a("; MARK after " + name)
    if OPT["probe"] == name.replace(" ", "_"):
        a(f"s_memrealtime {sp(sSTAMP)}\ns_waitcnt lgkmcnt(0)\ns_mov_b32 s101, s{sSTAMP}")
    if OPT["stamps"] != 1:
        return
    l = label("st")
    if OPT["dbgwg"] >= 0:
        if name not in DBG_SEL:
            return
        a(f"s_lshl_b32 s3, s{sWAVE}, 8\ns_add_u32 s3, s3, s2\ns_cmp_lg_u32 s3, {OPT['dbgwg']}\ns_cbranch_scc1 {l}")
        a(f"s_memrealtime {sp(sSTAMP)}")
        a("s_waitcnt lgkmcnt(0)")
        a(f"s_mov_b64 exec, 1\nv_mov_b32 v{r}, s{sSTAMP}\ns_mov_b32 s{sSTAMP}, s{P_DBG}\ns_mov_b32 s{sSTAMP + 1}, s{P_DBG + 1}\ns_mov_b32 s{sSTAMP + 2}, 256\ns_mov_b32 s{sSTAMP + 3}, 0x20000".replace(f"s{sSTAMP}, s{P_DBG}", f"s64, s{P_DBG}").replace(f"s{sSTAMP + 1}, s{P_DBG + 1}", f"s65, s{P_DBG + 1}").replace(f"s{sSTAMP + 2}, 256", "s66, 256").replace(f"s{sSTAMP + 3}, 0x20000", "s67, 0x20000"))
        a(f"buffer_store_dword v{r}, off, s[64:67], 0 offset:{12 + 4 * DBG_SEL.index(name)} sc1", optional=True)
        a("s_mov_b64 exec, -1")
        a(f"{l}:")
        return
    a(f"s_cmp_lg_u32 s{sWAVE}, 0")
    a(f"s_cbranch_scc1 {l}")
    a(f"{'s_memtime' if OPT['clk'] else 's_memrealtime'} {sp(sSTAMP)}")
    a("s_waitcnt lgkmcnt(0)")
    a(f"s_lshl_b32 s3, s2, 8")
    a(f"s_add_u32 s3, s3, {STAMPS + 4 * k}")
    a(f"v_mov_b32 v{r}, s{sSTAMP}")
    a("s_mov_b64 exec, 1")
    a(f"buffer_store_dword v{r}, off, {srd(S_WS)}, s3", optional=True)
    a("s_mov_b64 exec, -1")
    a(f"{l}:")


_cnt = [0]


def count_out(r):
    if OPT["stamps"] != 1:
        return
    k = _cnt[0]
    _cnt[0] += 1
    a(f"s_lshl_b32 s3, s2, 2\ns_add_u32 s3, s3, s{sWAVE}\ns_lshl_b32 s3, s3, 5\ns_add_u32 s3, s3, {STAMPS + 0x10000 + 4 * k}")
    a(f"v_mov_b32 v{r}, s{sCNT}\ns_mov_b64 exec, 1")
    a(f"buffer_store_dword v{r}, off, {srd(S_WS)}, s3")
    a("s_mov_b64 exec, -1")


DUMP = 0x2000000


def dump_lds(point, r=96):
    if OPT["dump"] != point:
        return
    a.barrier()
    a(f"s_lshl_b32 s3, s{sWAVE}, 10\nv_add_u32 v{r + 4}, s3, v{vL16}\ns_lshl_b32 s3, s2, 16\ns_add_u32 s3, s3, {DUMP}")
    for i in range(16):
        a(f"ds_read_b128 {vr(r, 4)}, v{r + 4} offset:{i * 4096}")
        a(f"buffer_store_dwordx4 {vr(r, 4)}, v{r + 4}, {srd(S_WS)}, s3 offen")
        a("s_add_u32 s3, s3, 4096")
        a.wait_vm0()
    a.barrier()


def cmul(d, x, y):
    return [f"v_pk_mul_f32 {vr(d, 2)}, {vr(x, 2)}, {vr(y, 2)} op_sel:[1,1] op_sel_hi:[1,0] neg_lo:[0,1]",
            f"v_pk_fma_f32 {vr(d, 2)}, {vr(x, 2)}, {vr(y, 2)}, {vr(d, 2)} op_sel_hi:[0,1,1]"]


def cmul2(p, q=None):
    x = cmul(*p)
    if q is None:
        a(x[0]); a(x[1])
        return
    y = cmul(*q)
    a(x[0]); a(y[0]); a(x[1]); a(y[1])


def unpack(dlo, dhi, s):
    a(f"v_lshlrev_b32 v{dlo}, 16, v{s}")
    a(f"v_and_b32 v{dhi}, s0, v{s}")


def prologue():
    a("s_cmp_lt_u32 s2, 256")
    a("s_cbranch_scc1 L_start")
    a("s_endpgm")
    a("L_start:")
    if OPT["fixdur"] or OPT["stamps"]:
        a("s_memrealtime s[50:51]")
    a("s_load_dwordx16 s[16:31], s[0:1], 0")
    a("s_load_dwordx16 s[32:47], s[0:1], 64")
    a("s_load_dwordx2 s[48:49], s[0:1], 128")
    a(f"v_lshrrev_b32 v1, 6, v0")
    a(f"v_and_b32 v{vLANE}, 63, v0")
    a(f"v_readfirstlane_b32 s{sWAVE}, v1")
    a(f"v_lshlrev_b32 v{vL16}, 4, v{vLANE}")
    a(f"""s_and_b32 s{sX}, s2, 7
s_lshr_b32 s{sJ}, s2, 3
s_add_u32 s{sJ}, s{sJ}, 28
s_and_b32 s{sJ}, s{sJ}, 31
""")
    a(f"""s_lshr_b32 s{sT0}, s{sX}, 2
s_mul_i32 s{sPAIR}, s{sX}, 28
s_sub_u32 s{sRC}, s{sJ}, s{sT0}
s_add_u32 s{sPAIR}, s{sPAIR}, s{sRC}
s_cmp_lt_u32 s{sRC}, 28
s_cselect_b32 s{sRC}, 1, 0
s_mul_i32 s{sT2}, s{sJ}, 37
s_lshr_b32 s{sT2}, s{sT2}, 8
s_mul_i32 s{sT3}, s{sT2}, 7
s_sub_u32 s{sDT1}, s{sJ}, s{sT3}
s_lshl_b32 s{sNT}, s{sT2}, 3
s_add_u32 s{sNT}, s{sNT}, s{sX}
s_sub_u32 s{sT1}, s{sJ}, 4
s_cselect_b32 s{sR2}, 0, 1
s_and_b32 s{sT1}, s{sT1}, 31
s_mul_i32 s{sT2}, s{sT1}, 37
s_lshr_b32 s{sT2}, s{sT2}, 8
s_mul_i32 s{sT3}, s{sT2}, 7
s_sub_u32 s{sDT2}, s{sT1}, s{sT3}
s_lshl_b32 s{sST}, s{sX}, 2
s_add_u32 s{sST}, s{sST}, s{sT2}
s_cmp_eq_u32 s{sJ}, 0
s_cselect_b32 s{sT1}, 32, s{sJ}
s_mul_i32 s{sT2}, s{sX}, 12
s_add_u32 s{sT2}, s{sT2}, s{sT1}
s_sub_u32 s{sT2}, s{sT2}, 53
s_lshl_b32 s{sT3}, s{sX}, 2
s_add_u32 s{sT3}, s{sT3}, s{sJ}
s_sub_u32 s{sT3}, s{sT3}, 28
s_cmp_lg_u32 s{sT0}, 0
s_cselect_b32 s{sT1}, s{sT1}, s{sJ}
s_cselect_b32 s{sLN0}, s{sT2}, s{sT3}
s_cselect_b32 s{sRL0}, 21, 28
s_cmp_ge_u32 s{sT1}, s{sRL0}
s_cselect_b32 s{sRL0}, 1, 0""" if OPT["map18"] == 1 else f"""s_and_b32 s{sT0}, s{sX}, 1
s_lshr_b32 s{sT1}, s{sX}, 1
s_mul_i32 s{sPAIR}, s{sX}, 28
s_sub_u32 s{sRC}, s{sJ}, s{sT0}
s_add_u32 s{sPAIR}, s{sPAIR}, s{sRC}
s_cmp_lt_u32 s{sRC}, 28
s_cselect_b32 s{sRC}, 1, 0
s_mul_i32 s{sT2}, s{sJ}, 37
s_lshr_b32 s{sT2}, s{sT2}, 8
s_mul_i32 s{sT3}, s{sT2}, 7
s_sub_u32 s{sT3}, s{sJ}, s{sT3}
s_mul_i32 s{sNT}, s{sT1}, 7
s_add_u32 s{sNT}, s{sNT}, s{sT3}
s_lshl_b32 s{sT3}, s{sT0}, 2
s_add_u32 s{sDT1}, s{sT2}, s{sT3}
s_lshl_b32 s{sST}, s{sT0}, 3
s_sub_u32 s{sST}, s{sJ}, s{sST}
s_cselect_b32 s{sR2}, 0, 1
s_lshr_b32 s{sDT2}, s{sST}, 3
s_and_b32 s{sDT2}, s{sDT2}, 3
s_add_u32 s{sDT2}, s{sDT2}, s{sT3}
s_and_b32 s{sST}, s{sST}, 7
s_lshl_b32 s{sLN0}, s{sT1}, 4
s_lshl_b32 s{sT1}, s{sT1}, 3
s_add_u32 s{sST}, s{sST}, s{sT1}
s_cmp_eq_u32 s{sJ}, 0
s_cselect_b32 s{sT1}, 32, s{sJ}
s_mul_i32 s{sT2}, s{sT0}, 11
s_add_u32 s{sT2}, s{sT2}, s{sT1}
s_cmp_lg_u32 s{sT0}, 0
s_cselect_b32 s{sT1}, s{sT1}, s{sJ}
s_cselect_b32 s{sT2}, s{sT2}, s{sJ}
s_cselect_b32 s{sRL0}, 21, 28
s_cmp_ge_u32 s{sT1}, s{sRL0}
s_cselect_b32 s{sRL0}, 1, 0
s_add_u32 s{sLN0}, s{sLN0}, s{sT2}
s_sub_u32 s{sLN0}, s{sLN0}, 28""")
    if OPT["map18"] == 2:
        a(f"""s_sub_u32 s{sT1}, s{sJ}, 4
s_cselect_b32 s{sR2}, 0, 1
s_and_b32 s{sT1}, s{sT1}, 31
s_mul_i32 s{sT2}, s{sT1}, 37
s_lshr_b32 s{sT2}, s{sT2}, 8
s_mul_i32 s{sT3}, s{sT2}, 7
s_sub_u32 s{sDT2}, s{sT1}, s{sT3}
s_lshl_b32 s{sST}, s{sX}, 2
s_add_u32 s{sST}, s{sST}, s{sT2}""")
    a(f"""s_lshl_b32 s{sLN}, s{sX}, 4
s_add_u32 s{sLN}, s{sLN}, s{sJ}
s_sub_u32 s{sLN}, s{sLN}, 8
s_mul_i32 s{sT2}, s{sT0}, 7
s_sub_u32 s{sT2}, 28, s{sT2}
s_cmp_lt_u32 s{sJ}, s{sT2}
s_cselect_b32 s{sR1}, 1, 0
s_sub_u32 s{sT2}, s{sJ}, 8
s_cmp_lt_u32 s{sT2}, 16
s_cselect_b32 s{sRL}, 1, 0
s_min_u32 s{sPAIR}, s{sPAIR}, 223
s_min_u32 s{sNT}, s{sNT}, 27
s_mov_b32 s{sM1}, 0xaaaaaaaa
s_mov_b32 s{sM1 + 1}, 0xaaaaaaaa
s_mov_b32 s{sM2}, 0xcccccccc
s_mov_b32 s{sM2 + 1}, 0xcccccccc""")
    a("s_waitcnt lgkmcnt(0)")
    if OPT["fixdur"] or OPT["stamps"]:
        a("s_mov_b32 s101, s50")
    a("s_mov_b32 s0, 0xffff0000\ns_mov_b32 s1, 0xffff")
    a(f"""s_lshl_b32 s{sT0}, s{sPAIR}, 2
s_load_dword s{sLDT}, {sp(P_LDT)}, s{sT0}
s_load_dword s{sD0}, {sp(P_DSK)}, s{sT0}""")
    kgen_loads()
    for n, p, size in ((S_X0, P_U, 1835008), (S_WS, P_WS, WS_BYTES), (S_OUT, P_OUT, 1835008)):
        a(f"s_mov_b32 s{n}, s{p}\ns_mov_b32 s{n + 1}, s{p + 1}\ns_mov_b32 s{n + 2}, {size}\ns_mov_b32 s{n + 3}, 0x20000")
    a(f"buffer_load_dwordx2 v[104:105], off, {srd(S_WS)}, 0 offset:{EPOCH} sc1")
    for n, p, role in ((S_W1, P_W1, sR1), (S_W2, P_W2, sR2)):
        a(f"s_mov_b32 s{n}, s{p}\ns_mov_b32 s{n + 1}, s{p + 1}\ns_cmp_lg_u32 s{role}, 0\ns_cselect_b32 s{n + 2}, {0 if OPT['now'] & (1 if n == S_W1 else 2) else 7340032}, 0\ns_mov_b32 s{n + 3}, 0x20000")


sAUX = 75


def code_warm(r):
    if not OPT["warm"]:
        return
    a(f"""s_lshl_b32 s{sT0}, s{sJ}, 2
s_add_u32 s{sT0}, s{sT0}, s{sWAVE}
s_mul_i32 s{sT0}, s{sT0}, 640
v_lshl_add_u32 v{r}, v{vLANE}, 7, s{sT0}
s_mov_b32 s{sT1}, ktab-L_entry+8192
v_min_u32 v{r}, s{sT1}, v{r}
s_sub_u32 s28, s{sTAB}, ktab-L_entry
s_subb_u32 s29, s{sTAB + 1}, 0
s_mov_b64 exec, 31
global_load_dword v{r}, v{r}, s[28:29]
s_mov_b64 exec, -1""")


def page_warm(r):
    if not OPT["tlb"]:
        return
    a(f"""v_lshlrev_b32 v{r}, 21, v{vLANE}
v_add_u32 v{r}, 0x1fff80, v{r}
s_mov_b64 exec, 0x3ff
buffer_load_dword v{r}, v{r}, {srd(S_WS)}, 0 offen
s_mov_b64 exec, 1
buffer_load_dword v{r + 1}, off, {srd(S_OUT)}, 0
global_load_dword v{r + 2}, v{vLANE}, {sp(P_B1)}
global_load_dword v{r + 3}, v{vLANE}, {sp(P_B2)}
s_mov_b64 exec, -1""")


def fill(base, n, r, sidx, stride, tag="st0"):
    a(f"""s_lshl_b32 s{sT0}, s{sidx}, 12
s_lshl_b32 s{sT1}, s{sWAVE}, 10
s_add_u32 s{sT0}, s{sT0}, s{sT1}
s_add_u32 s{sT0}, s{sT0}, {base}""")
    for k in range(4):
        a(f"v_mov_b32 v{r + k}, -1")
    for k in range(n):
        a(f"buffer_store_dwordx4 {vr(r, 4)}, v{vL16}, {srd(S_WS)}, s{sT0} offen sc1{' nt' if OPT['fnt'] else ''}", tag=tag)
        if k + 1 < n:
            a(f"s_add_u32 s{sT0}, s{sT0}, {stride}")


def aux_loads():
    a(f"""s_and_b32 s{sAUX}, s{sJ}, 3
s_lshl_b32 s{sAUX}, s{sAUX}, 3
s_add_u32 s{sAUX}, s{sAUX}, s{sX}
s_lshl_b32 s16, s{sAUX}, 2
s_add_u32 s16, s16, s{sWAVE}
s_mul_i32 s{sT1}, s16, {16 * 896}
s_mul_i32 s17, s{sWAVE}, {16 * 912}
s_mov_b32 m0, s17
s_mov_b32 exec_hi, 0xffffff""")
    for k in range(16):
        if k:
            a(f"s_add_u32 m0, m0, 912\ns_add_u32 s{sT1}, s{sT1}, 896")
        a(f"buffer_load_dwordx4 v{vL16}, {srd(S_X0)}, s{sT1} offen {'nt ' if OPT['xnt'] & 2 else ''}lds", res_w=[f"x0"])
    a("s_mov_b64 exec, -1")


def aux_work():
    XR = 8
    a(f"""v_mov_b32 v76, 0
v_mov_b32 v77, 0
v_mov_b32 v78, 0
v_mov_b32 v79, 0
s_lshl_b32 s{sT1}, s16, {8 if emode(4) == "C" else 7}
s_add_u32 s{sT1}, s{sT1}, {ST1}
s_lshl_b32 s18, s{sAUX}, 7
s_add_u32 s18, s18, {ST0}
s_mov_b64 exec, {"0xffff" if emode(4) == "C" else "0xff"}""")
    a(f"buffer_store_dwordx4 v[76:79], v{vL16}, {srd(S_WS)}, s{sT1} offen sc1", tag="st0")
    a(f"""s_mov_b64 exec, -1
v_and_b32 v2, 15, v{vLANE}
v_lshrrev_b32 v3, 4, v{vLANE}
v_mul_u32_u24 v4, 912, v2
v_lshl_add_u32 v4, v3, 4, v4
v_add_u32 v4, s17, v4
v_lshrrev_b32 v6, 2, v2
v_cmp_eq_u32 vcc, v6, v3
v_bfe_u32 v6, v2, 1, 2
v_lshlrev_b32 v6, 7, v6
v_lshrrev_b32 v7, 3, v2
v_lshl_add_u32 v6, v7, 4, v6
v_and_b32 v7, 1, v2
v_lshl_add_u32 v6, v7, 2, v6
s_lshl_b32 s{sT0}, s{sWAVE}, 5
s_add_u32 s{sT0}, s{sT0}, 60000
v_add_u32 v6, s{sT0}, v6
v_mov_b32 v7, 61024
v_cndmask_b32 v6, v7, v6, vcc
v_lshrrev_b32 v117, 3, v{vLANE}
v_cmp_eq_u32 vcc, s{sWAVE}, v117
v_lshlrev_b32 v117, 12, v117
v_and_b32 v7, 7, v{vLANE}
v_lshl_add_u32 v117, v7, 4, v117
v_mov_b32 v7, {OOB}
v_cndmask_b32 v117, v7, v117, vcc
v_mov_b32 v80, 0x3f803f80
v_mov_b32 v81, 0x3f803f80
v_mov_b32 v82, 0x3f803f80
v_mov_b32 v83, 0x3f803f80""")
    if OPT["stamps"] == 1:
        a.wait_vm0()
    stamp("aux data")
    for k in range(14):
        a(f"ds_read_b128 {vr(XR + 4 * k, 4)}, v4 offset:{64 * k}", res_r=["x0"])
    for k in range(14):
        x = vr(XR + 4 * k, 4)
        a(f"v_mfma_f32_16x16x32_bf16 v[64:67], v[80:83], {x}, {'v[64:67]' if k else 0}")
        a(f"v_mfma_f32_16x16x32_bf16 v[68:71], {x}, {x}, {'v[68:71]' if k else 0}")
    a(f"""v_cndmask_b32 v68, v68, v69, {sp(sM1)}
v_cndmask_b32 v70, v70, v71, {sp(sM1)}
v_cndmask_b32 v68, v68, v70, {sp(sM2)}""")
    a("ds_write2_b32 v6, v64, v68 offset0:0 offset1:2")
    a.barrier()
    a(f"ds_read_b128 v[64:67], v{vL16} offset:60000")
    a(f"buffer_store_dwordx4 v[64:67], v117, {srd(S_WS)}, s18 offen sc1", tag="st0")
    stamp("aux st")
    nonce_take()
    flag_put(0, f"s_add_u32 s{sT0}, s{sAUX}, 224\ns_lshl_b32 s{sT0}, s{sT0}, 6", 72, "st0")


def xt_loads():
    a(f"""s_lshl_b32 s{sT0}, s{sPAIR}, 1
s_lshr_b32 s{sT1}, s{sWAVE}, 1
s_add_u32 s{sT0}, s{sT0}, s{sT1}
s_mul_i32 s{sT1}, s{sT0}, 9363
s_lshr_b32 s{sT1}, s{sT1}, 16
s_mul_i32 s{sT2}, s{sT1}, 7
s_sub_u32 s{sT0}, s{sT0}, s{sT2}
s_lshl_b32 s{sT0}, s{sT0}, 1
s_and_b32 s{sT2}, s{sWAVE}, 1
s_add_u32 s{sT0}, s{sT0}, s{sT2}
s_mul_i32 s{sT2}, s{sT1}, {32 * 896}
s_lshl_b32 s{sT3}, s{sT0}, 6
s_add_u32 s{sT2}, s{sT2}, s{sT3}
v_lshrrev_b32 v2, 2, v{vLANE}
v_mul_u32_u24 v2, 896, v2
v_and_b32 v3, 3, v{vLANE}
v_lshl_add_u32 v2, v3, 4, v2
s_mul_i32 s22, s{sWAVE}, {GST}
s_mov_b32 m0, s22
s_mul_i32 s23, s{sT1}, {BS}""")
    a(f"buffer_load_dwordx4 v2, {srd(S_X0)}, s{sT2} offen {'nt ' if OPT['xnt'] & 1 else ''}lds", res_w=["x0"])
    a(f"s_add_u32 m0, m0, 1024\ns_add_u32 s{sT2}, s{sT2}, {16 * 896}")
    a(f"buffer_load_dwordx4 v2, {srd(S_X0)}, s{sT2} offen {'nt ' if OPT['xnt'] & 1 else ''}lds", res_w=["x0"])
    a(f"""s_lshl_b32 s{sT0}, s{sT0}, 11
s_add_u32 s23, s23, s{sT0}
s_add_u32 s23, s23, {X0}
v_lshrrev_b32 v2, 4, v{vLANE}
v_bfe_u32 v36, v{vLANE}, 2, 2
v_lshl_add_u32 v36, v2, 3, v36
v_lshlrev_b32 v36, 6, v36
v_lshl_add_u32 v36, v3, 3, v36
v_add_u32 v36, s22, v36
v_and_b32 v37, 15, v{vLANE}
v_lshlrev_b32 v37, 6, v37
v_lshl_add_u32 v37, v2, 4, v37""")


def xt_work():
    for u in range(2):
        for j in range(2):
            a(f"ds_read_b64_tr_b16 {vr(40 + 4 * u + 2 * j, 2)}, v36 offset:{j * 256 + u * 32}", res_r=["x0"])
    for u in range(2):
        a(f"buffer_store_dwordx4 {vr(40 + 4 * u, 4)}, v37, {srd(S_WS)}, s23 offen offset:{1024 * u} sc1", tag="st0")


def xt_poll_addr(ra, t):
    a(f"""s_lshl_b32 s{sT0}, s{sWAVE}, 4
v_and_b32 v{t}, 15, v{vLANE}
v_add_u32 v{t}, s{sT0}, v{t}
v_mul_u32_u24 v{t}, 7, v{t}
s_lshr_b32 s{sT0}, s{sPAIR}, 5
v_add_u32 v{t}, s{sT0}, v{t}
v_lshrrev_b32 v{t}, 1, v{t}
s_lshl_b32 s{sT0}, s{sWAVE}, 3
s_add_u32 s{sT0}, s{sT0}, 224
v_and_b32 v{ra}, 7, v{vLANE}
v_add_u32 v{ra}, s{sT0}, v{ra}
v_cmp_gt_u32 vcc, 16, v{vLANE}
v_cndmask_b32 v{ra}, v{ra}, v{t}, vcc""")


def e1_poll_addr(ra):
    a(f"s_lshl_b32 s{sT0}, s{sWAVE}, 6\nv_add_u32 v{ra}, s{sT0}, v{vLANE}")


def nonce_take():
    a(f"v_readfirstlane_b32 s{sNONCE}, v104\nv_readfirstlane_b32 s{sNONCE + 1}, v105")
    a(f"s_add_u32 s{sNONCE}, s{sNONCE}, 1")
    a(f"s_addc_u32 s{sNONCE + 1}, s{sNONCE + 1}, 0")


def nonce_retire():
    l = label("nr")
    a(f"s_or_b32 s{sT0}, s2, s{sWAVE}")
    a(f"s_cmp_lg_u32 s{sT0}, 32")
    a(f"s_cbranch_scc1 {l}")
    a(f"v_mov_b32 v110, s{sNONCE}\nv_mov_b32 v111, s{sNONCE + 1}\ns_mov_b64 exec, 1")
    a(f"buffer_store_dwordx2 v[110:111], off, {srd(S_WS)}, 0 offset:{EPOCH} sc1", optional=True)
    a("s_mov_b64 exec, -1")
    a(f"{l}:")


def flag_put(edge, sprod, r, tag):
    a(f"s_lshl_b32 s{sT0}, s{sprod}, 6" if isinstance(sprod, int) else sprod)
    a(f"""s_lshl_b32 s{sT1}, s{sWAVE}, 15
s_add_u32 s{sT0}, s{sT0}, s{sT1}
s_add_u32 s{sT0}, s{sT0}, {FL + edge * 0x20000}
v_lshlrev_b32 v{r + 4}, 12, v{vLANE}
v_and_b32 v{r + 4}, 0x4000, v{r + 4}
v_and_b32 v{r}, 3, v{vLANE}
v_lshl_add_u32 v{r + 4}, v{r}, 4, v{r + 4}
v_mov_b32 v{r}, s{sNONCE}
v_mov_b32 v{r + 1}, s{sNONCE + 1}
v_mov_b32 v{r + 2}, s{sNONCE}
v_mov_b32 v{r + 3}, s{sNONCE + 1}""")
    a.wait_tag(tag)
    a.barrier()
    a("s_mov_b64 exec, 0xff")
    a(f"buffer_store_dwordx4 {vr(r, 4)}, v{r + 4}, {srd(S_WS)}, s{sT0} offen sc1", tag="flag")
    a("s_mov_b64 exec, -1")


def emode(e):
    return OPT["em"][e - 1]


def hinted(e):
    return emode(e) in "HSMGC"


def sentinel(e):
    return emode(e) in "SDM"


def flagged(e):
    return emode(e) in "FHG"


def armed(layer):
    return any(sentinel(e + 4 * layer) for e in (1, 2, 3))


def wait_edge(e, r, ra_full, ra_samp):
    if hinted(e):
        poll_issue(e + 10, r, ra_samp)
        poll_take(r, ra_samp)
    elif emode(e) == "D":
        a.wait_tag("pub")
    else:
        a.wait_tag("flag")
    if flagged(e):
        poll_issue(e, r, ra_full)
        poll_take(r, ra_full)


def hint_prep(edge, sprod, r):
    a(f"s_lshl_b32 s{sT0}, s{sprod}, 6" if isinstance(sprod, int) else sprod)
    a(f"""s_lshl_b32 s{sT1}, s{sWAVE}, 15
s_add_u32 s{sT0}, s{sT0}, s{sT1}
s_add_u32 s{sT0}, s{sT0}, {FL + edge * 0x20000}
v_lshlrev_b32 v{r + 4}, 12, v{vLANE}
v_and_b32 v{r + 4}, 0x4000, v{r + 4}
v_and_b32 v{r}, 3, v{vLANE}
v_lshl_add_u32 v{r + 4}, v{r}, 4, v{r + 4}
v_add_u32 v{r + 4}, s{sT0}, v{r + 4}
v_mov_b32 v{r}, s{sNONCE}
v_mov_b32 v{r + 1}, s{sNONCE + 1}
v_mov_b32 v{r + 2}, s{sNONCE}
v_mov_b32 v{r + 3}, s{sNONCE + 1}""")


def hint_put(r):
    a("s_mov_b64 exec, 0xff")
    a(f"buffer_store_dwordx4 {vr(r, 4)}, v{r + 4}, {srd(S_WS)}, 0 offen sc1", tag="hint")
    a("s_mov_b64 exec, -1")


def poll_issue(edge, r, ra=None):
    ra = r + 2 if ra is None else ra
    a(f"""s_lshl_b32 s{sT3}, s{sX}, 14
s_add_u32 s{sT3}, s{sT3}, {FL + edge * 0x20000}
v_lshl_add_u32 v{ra}, v{ra}, 6, s{sT3}
buffer_load_dwordx2 {vr(r, 2)}, v{ra}, {srd(S_WS)}, 0 offen sc1""")


def poll_take(r, ra=None):
    ra = r + 2 if ra is None else ra
    ok, lp = label("pok"), label("plp")
    a(f"v_cmp_ne_u64 vcc, {sp(sNONCE)}, {vr(r, 2)}")
    a(f"s_cbranch_vccz {ok}")
    a(f"s_mov_b32 s{sCNT}, 0")
    a(f"{lp}:")
    if OPT["slp"]:
        a(f"s_sleep {OPT['slp']}")
    a(f"buffer_load_dwordx2 {vr(r, 2)}, v{ra}, {srd(S_WS)}, 0 offen sc1")
    a("s_waitcnt vmcnt(0)")
    a(f"v_cmp_ne_u64 vcc, {sp(sNONCE)}, {vr(r, 2)}")
    a(f"s_add_u32 s{sCNT}, s{sCNT}, 1")
    a(f"s_cbranch_vccz {ok}")
    a(f"s_cmp_lt_u32 s{sCNT}, 0x100000")
    a(f"s_cbranch_scc1 {lp}")
    a(f"{ok}:")


sW1O, sW2O = 98, 99
sROT1, sROT2 = 33, 35
sW1E, sW2E = 78, 79


def w_setup():
    a(f"""v_lshrrev_b32 v2, 3, v{vLANE}
v_and_b32 v3, 7, v{vLANE}
v_bfe_u32 v4, v{vLANE}, 4, 1
v_lshlrev_b32 v4, 2, v4
v_xor_b32 v3, v3, v4
v_lshlrev_b32 v3, 4, v3
v_mul_u32_u24 v{vD1}, 3584, v2
v_add_u32 v{vD1}, v{vD1}, v3
v_lshl_add_u32 v{vD2}, v2, 12, v3
v_bfe_u32 v2, v{vLANE}, 2, 2
v_lshrrev_b32 v3, 5, v{vLANE}
v_bfe_u32 v4, v{vLANE}, 4, 1
v_and_b32 v5, 3, v{vLANE}
v_lshlrev_b32 v5, 3, v5
v_lshl_add_u32 v5, v4, 5, v5
v_lshrrev_b32 v4, 1, v2
v_lshl_add_u32 v5, v4, 6, v5
s_lshr_b32 s{sT0}, s{sWAVE}, 1
s_lshl_b32 s{sT0}, s{sT0}, 6
v_xor_b32 v5, s{sT0}, v5
v_lshl_add_u32 v5, v2, 7, v5
s_mul_i32 s{sT1}, s{sWAVE}, 24576
s_add_u32 s{sT1}, s{sT1}, {W2L}
v_add_u32 v5, s{sT1}, v5
v_lshl_add_u32 v{vT1a}, v3, 10, v5
v_xor_b32 v{vT1b}, 64, v{vT1a}
v_lshl_add_u32 v{vT2a}, v3, 9, v5
v_xor_b32 v{vT2b}, 64, v{vT2a}
s_mul_i32 s{sW1O}, s{sWAVE}, {512 * 3584}
s_lshl_b32 s{sT0}, s{sNT}, 7
s_add_u32 s{sW1O}, s{sW1O}, s{sT0}
s_mul_i32 s{sW2O}, s{sWAVE}, {448 * 4096}
s_lshl_b32 s{sT0}, s{sST}, 7
s_add_u32 s{sW2O}, s{sW2O}, s{sT0}
s_mov_b32 s{sWOFF}, s{sT1}""")
    if OPT["rot"] and OPT["map18"] == 1:
        if OPT["rot"] == 2:
            a(f"""s_add_u32 s{sROT1}, s{sDT1}, s{sX}
s_and_b32 s{sROT1}, s{sROT1}, 7
s_add_u32 s{sROT2}, s{sDT2}, s{sX}
s_cmp_ge_u32 s{sROT2}, 7
s_cselect_b32 s{sT0}, 7, 0
s_sub_u32 s{sROT2}, s{sROT2}, s{sT0}""")
        else:
            a(f"s_mov_b32 s{sROT1}, s{sDT1}\ns_mov_b32 s{sROT2}, s{sDT2}")
    elif OPT["rot"] == 3:
        a(f"""s_and_b32 s{sT0}, s{sDT1}, 3
s_lshr_b32 s{sT1}, s{sDT1}, 2
s_add_u32 s{sT1}, s{sT1}, 2
s_mul_i32 s{sROT1}, s{sT0}, s{sT1}
s_min_u32 s{sROT1}, s{sROT1}, 7
s_and_b32 s{sT0}, s{sDT2}, 3
s_lshr_b32 s{sT1}, s{sDT2}, 2
s_add_u32 s{sT1}, s{sT1}, 2
s_mul_i32 s{sROT2}, s{sT0}, s{sT1}
s_min_u32 s{sROT2}, s{sROT2}, 5""")
    elif OPT["rot"]:
        a(f"""s_and_b32 s{sT0}, s{sDT1}, 3
s_lshl_b32 s{sT0}, s{sT0}, 1
s_lshr_b32 s{sT1}, s{sDT1}, 2
s_add_u32 s{sT0}, s{sT0}, s{sT1}
s_and_b32 s{sROT1}, s{sT0}, 7
s_and_b32 s{sT0}, s{sDT2}, 3
s_lshl_b32 s{sT0}, s{sT0}, 1
s_lshr_b32 s{sT1}, s{sDT2}, 2
s_add_u32 s{sT0}, s{sT0}, s{sT1}
s_min_u32 s{sROT2}, s{sT0}, 6""")
        if OPT["map18"] == 2:
            a(f"s_mov_b32 s{sROT2}, s{sDT2}")
    else:
        a(f"s_mov_b32 s{sROT1}, 0\ns_mov_b32 s{sROT2}, 0")
    a(f"""s_add_u32 s{sW1E}, s{sW1O}, {512 * 3584}
s_mul_i32 s{sT0}, s{sROT1}, {64 * 3584}
s_add_u32 s{sW1O}, s{sW1O}, s{sT0}
s_add_u32 s{sW2E}, s{sW2O}, {448 * 4096}
s_mul_i32 s{sT0}, s{sROT2}, {64 * 4096}
s_add_u32 s{sW2O}, s{sW2O}, s{sT0}""")


WORDER = list(range(0, 4)) + list(range(32, 36)) + list(range(4, 32)) + list(range(36, 60))


def w_dma(pos, half):
    return w_dma_n(WORDER[pos], pos % 12, half, pos)


def w_dma_n(n, slot, half, pos=99):
    pol = ("", "nt ", "sc1 ", "sc0 sc1 ", "sc0 sc1 nt ")[OPT["wnt"]] if (OPT["wnta"] or pos < 2 * OPT["wg"]) else ""
    g = [Ins(f"s_add_u32 m0, s{sWOFF}, {slot * 2048 + half * 1024}")]
    if n < 32:
        g.append(Ins(f"s_add_u32 s{sW1O}, s{sW1O}, {8 * 3584}") if (n or half) else Ins("s_nop 0"))
        if n and n % 4 == 0 and half == 0:
            g += [Ins(f"s_cmp_eq_u32 s{sW1O}, s{sW1E}"), Ins(f"s_cselect_b32 s3, {512 * 3584}, 0"), Ins(f"s_sub_u32 s{sW1O}, s{sW1O}, s3")]
        g.append(Ins(f"buffer_load_dwordx4 v{vD1}, {srd(S_W1)}, s{sW1O} offen {pol}lds", res_w=[f"slot{slot}"]))
    else:
        g.append(Ins(f"s_add_u32 s{sW2O}, s{sW2O}, {8 * 4096}") if (n > 32 or half) else Ins("s_nop 0"))
        if n > 32 and n % 4 == 0 and half == 0:
            g += [Ins(f"s_cmp_eq_u32 s{sW2O}, s{sW2E}"), Ins(f"s_cselect_b32 s3, {448 * 4096}, 0"), Ins(f"s_sub_u32 s{sW2O}, s{sW2O}, s3")]
        g.append(Ins(f"buffer_load_dwordx4 v{vD2}, {srd(S_W2)}, s{sW2O} offen {pol}lds", res_w=[f"slot{slot}"]))
    return g


def w_tr(pos):
    return w_tr_n(WORDER[pos], pos % 12)


def wone(n0, n1, nt):
    g = [w_dma_n(n, n % 12, h) for n in range(n0, n0 + 12) for h in range(2)]
    for n in range(n0, nt + 1):
        if n < nt:
            g.append(w_tr_n(n, n % 12))
        if n > n0 and n + 11 < n1:
            g += [w_dma_n(n + 11, (n + 11) % 12, h) for h in range(2)]
    return g


def w_tr_n(n, slot):
    g = []
    for nb in range(2):
        for j in range(2):
            if n < 32:
                r = (n * 2 + nb) * 4 + 2 * j
                g.append(Ins(f"ds_read_b64_tr_b16 a[{r}:{r + 1}], v{(vT1a, vT1b)[nb]} offset:{slot * 2048 + j * 512}", res_r=[f"slot{slot}"]))
            else:
                r = 128 + ((n - 32) * 2 + nb) * 4 + 2 * j
                g.append(Ins(f"ds_read_b64_tr_b16 v[{r}:{r + 1}], v{(vT2a, vT2b)[nb]} offset:{slot * 2048 + j * 1024}", res_r=[f"slot{slot}"]))
    return g


def w_all_upfront():
    for n in range(12):
        a.put(w_dma(n, 0)); a.put(w_dma(n, 1))
    for n in range(48):
        a.put(w_tr(n))
        if n >= 1:
            a.put(w_dma(n + 11, 0)); a.put(w_dma(n + 11, 1))
    a.put(w_dma(59, 0)); a.put(w_dma(59, 1))
    a.wait_vm0()
    a.wait_lgkm0()


GX = 80
CS = 64
PR = 56
TAB = 104


def kgen_loads():
    a(f"""s_lshl_b32 s{sT0}, s{sPAIR}, 10
s_lshl_b32 s{sT1}, s{sWAVE}, 8
s_add_u32 s{sT0}, s{sT0}, s{sT1}
v_lshl_add_u32 v3, v{vLANE}, 2, s{sT0}""")
    for k, p in enumerate((P_ARE, P_AIM, P_BRE, P_BIM, P_CRE, P_CIM)):
        a(f"global_load_dword v{PR + k}, v3, {sp(p)}{' nt' if OPT['pnt'] else ''}")


def kgen_table_addr():
    l = label("pc")
    a(f"s_getpc_b64 {sp(sTAB)}")
    a(f"{l}:")
    a(f"s_add_u32 s{sTAB}, s{sTAB}, ktab-{l}")
    a(f"s_addc_u32 s{sTAB + 1}, s{sTAB + 1}, 0")


def kgen_table_load():
    kgen_table_addr()
    a(f"s_lshr_b32 s{sT0}, s{sWAVE}, 1\ns_lshl_b32 s{sT0}, s{sT0}, 5\nv_lshl_add_u32 v75, v0, 5, s{sT0}")


KBG = []


def kgen(hooks):
    F = {e: 2 * e for e in range(1, 8)}
    Qr = {1: 16, 2: 18, 3: 20, 4: 22}
    QN = [24, 26]
    Z1, Z2, C0, C1 = 28, 30, 32, 34
    CN = [36, 38]
    T0, T1 = 62, 64
    CV = [66, 67, 68, 69]
    A2, B2, DT = 70, 71, 72
    ACC = 76
    QF = 88
    PF = 40
    vG, vF = 73, 74
    a(f"""s_mul_i32 s{sT0}, s{sWAVE}, {GST}
v_lshl_add_u32 v{vG}, v{vLANE}, 2, s{sT0}
v_and_b32 v2, 15, v{vLANE}
v_mul_u32_u24 v2, {GROW}, v2
v_lshrrev_b32 v3, 4, v{vLANE}
v_lshl_add_u32 v2, v3, 4, v2
v_add_u32 v{vF}, s{sT0}, v2""")
    a.begin()
    a(f"""s_lshr_b32 s{sT0}, s{sWAVE}, 1
s_lshl_b32 s{sT0}, s{sT0}, 4
s_lshr_b32 s{sT0}, s{sLDT}, s{sT0}
s_lshl_b32 s{sT0}, s{sT0}, 16
v_mov_b32 v2, {f32(math.log2(math.e))}
v_mul_f32 v2, s{sT0}, v2
v_exp_f32 v2, v2
v_cvt_pk_bf16_f32 v2, v2, v2
v_lshlrev_b32 v{DT}, 16, v2
s_and_b32 s{sD1}, s{sD0}, 0xffff0000
s_lshl_b32 s{sD0}, s{sD0}, 16""")
    cvi = [0]

    def hook(name):
        if name is not None and name not in hooks:
            return
        a_body = space_ds(a.end(), OPT["lag"], OPT["gap"])
        m, rest = merge(a_body, KBG[:], 20, OPT["ev_kg"])
        del KBG[:]
        a.put(m)
        put_all(rest)
        if name is not None:
            hooks[name]()
            a.begin()

    def row(r, src, neg=False):
        c = CV[cvi[0] % 4]
        cvi[0] += 1
        a(f"v_cvt_pk_bf16_f32 v{c}, v{src}, {'-' if neg else ''}v{src + 1}")
        a(f"ds_write_b32 v{vG}, v{c} offset:{r * GROW}")

    def reads(dst, tile):
        for ks in range(4):
            a(f"ds_read_b128 {vr(dst + 4 * ks, 4)}, v{vF} offset:{tile * 16 * GROW + ks * 64}")

    def mfmas(t, first):
        for ks in range(4):
            c = "0" if (first and ks == 0) else vr(ACC + 4 * t, 4)
            a(f"v_mfma_f32_16x16x32_bf16 {vr(ACC + 4 * t, 4)}, {vr(PF + 4 * ks, 4)}, {vr(QF + 4 * ks, 4)}, {c}")

    def direct(d, scale):
        if scale != 1:
            a(f"v_mul_f32 v{T0}, {f32(scale)}, v{A2}")
            a(f"v_mul_f32 v{T1}, {f32(scale)}, v{B2}")
            x, y = T0, T1
        else:
            x, y = A2, B2
        a(f"v_fract_f32 v{T1}, v{y}")
        a(f"v_exp_f32 v{T0}, v{x}")
        a(f"v_cos_f32 v{d}, v{T1}")
        a(f"v_sin_f32 v{d + 1}, v{T1}")
        a(f"v_pk_mul_f32 {vr(d, 2)}, {vr(d, 2)}, {vr(T0, 2)} op_sel_hi:[1,0]")

    for rd in range(2):
        def up(d, s):
            a(f"v_lshlrev_b32 v{d}, 16, v{s}" if rd == 0 else f"v_and_b32 v{d}, s0, v{s}")
        up(A2, PR); up(B2, PR + 1)
        up(QN[0], PR + 2); up(QN[0] + 1, PR + 3)
        up(QN[1], PR + 4); up(QN[1] + 1, PR + 5)
        a(f"v_mul_f32 v{A2}, v{DT}, v{A2}")
        a(f"v_mul_f32 v{B2}, v{DT}, v{B2}")
        a(f"v_pk_mul_f32 {vr(QN[0], 2)}, {vr(QN[0], 2)}, {vr(DT, 2)} op_sel_hi:[1,0]")
        a(f"v_mul_f32 v{A2}, {f32(math.log2(math.e))}, v{A2}")
        a(f"v_mul_f32 v{B2}, {f32(1 / (2 * math.pi))}, v{B2}")
        cmul2((C0, QN[1], QN[0]))
        direct(F[1], 1)
        if rd == 1:
            mfmas(2, True)
        direct(Z1, 128)
        hook(5 * rd)
        cmul2((F[2], F[1], F[1]), (Z2, Z1, Z1))
        cmul2((F[4], F[2], F[2]), (F[3], F[2], F[1]))
        cmul2((Qr[1], F[4], F[4]), (C1, C0, Z1))
        a(f"v_mov_b32 v{CV[3]}, 0x3f80")
        a(f"ds_write_b32 v{vG}, v{CV[3]}")
        cmul2((Qr[2], Qr[1], Qr[1]), (F[5], F[4], F[1]))
        row(1, Qr[1], True)
        cmul2((Qr[3], Qr[2], Qr[1]), (Qr[4], Qr[2], Qr[2]))
        row(2, Qr[2], True)
        cmul2((F[6], F[4], F[2]), (F[7], F[4], F[3]))
        row(3, Qr[3], True)
        row(4, Qr[4], True)
        cur = {1: Qr[1], 2: Qr[2], 3: Qr[3], 0: Qr[4]}
        free = list(QN) + [CN[0]]
        j = 5
        while j < 16:
            js = [j] + ([j + 1] if j + 1 < 16 else [])
            ps = []
            for jj in js:
                d = free.pop(0)
                ps.append((d, cur[jj % 4], Qr[4]))
            cmul2(*ps)
            for jj, p in zip(js, ps):
                if cur[jj % 4] != Qr[4]:
                    free.append(cur[jj % 4])
                cur[jj % 4] = p[0]
                row(jj, p[0], True)
            j += 2
        reads(QF, 0)
        hook(5 * rd + 1)
        TA, TB = QN
        row(16, C0); row(24, C1)
        for e in range(1, 8):
            cmul2((TA, C0, F[e]), (TB, C1, F[e]))
            row(16 + e, TA); row(24 + e, TB)
        reads(PF, 1)
        hook(5 * rd + 2)
        ca, cb = C0, C1
        na, nb_ = CN
        def adv():
            nonlocal ca, cb, na, nb_
            cmul2((na, ca, Z2), (nb_, cb, Z2))
            ca, cb, na, nb_ = na, nb_, ca, cb
        adv()
        row(32, ca); row(36, cb)
        for e in range(1, 4):
            cmul2((TA, ca, F[2 * e]), (TB, cb, F[2 * e]))
            row(32 + e, TA); row(36 + e, TB)
        mfmas(0, rd == 0)
        for k in range(2):
            adv()
            row(40 + 4 * k, ca); row(42 + 4 * k, cb)
            cmul2((TA, ca, F[4]), (TB, cb, F[4]))
            row(41 + 4 * k, TA); row(43 + 4 * k, TB)
        reads(PF, 2)
        hook(5 * rd + 3)
        for k in range(4):
            adv()
            row(48 + 2 * k, ca); row(49 + 2 * k, cb)
        cmul2((na, ca, Z2))
        row(56, na)
        mfmas(1, rd == 0)
        reads(PF, 3)
        hook(5 * rd + 4)
    hook(None)
    a(f"s_mul_i32 s{sT0}, s{sWAVE}, {GST}")
    a(f"v_add_u32 v{vF}, s{sT0}, v{vL16}")
    a(f"v_mov_b32 v{CV[0]}, 0")
    for k in range(8):
        a(f"v_and_b32 v{2 + 2 * k}, s1, v{TAB + k}")
        a(f"v_lshrrev_b32 v{3 + 2 * k}, 16, v{TAB + k}")
    for t in range(2):
        a(f"ds_write_b128 v{vF}, {vr(ACC + 4 * t, 4)} offset:{TOFF + t * 1024}")
    mfmas(2, False)
    a(f"ds_write_b32 v{vG}, v{CV[0]} offset:{TOFF + 3072}")
    a("v_and_b32 v18, 0xffff, v0\nv_lshrrev_b32 v19, 16, v0\nv_and_b32 v20, 0xffff, v1")
    a(f"ds_write_b128 v{vF}, {vr(ACC + 8, 4)} offset:{TOFF + 2048}")


def kzero(r):
    a(f"""v_mov_b32 v{r}, 0
v_mov_b32 v{r + 1}, 0
v_mov_b32 v{r + 2}, 0
v_mov_b32 v{r + 3}, 0
v_bfe_u32 v{r + 4}, v{vLANE}, 1, 3
v_mul_u32_u24 v{r + 4}, {KST}, v{r + 4}
v_and_b32 v{r + 5}, 1, v{vLANE}
v_lshl_add_u32 v{r + 4}, v{r + 5}, 4, v{r + 4}
s_and_b32 s{sT0}, s{sWAVE}, 1
s_mul_i32 s{sT0}, s{sT0}, {UST}
v_add_u32 v{r + 5}, s{sT0}, v{vL16}""")
    return [f"ds_write_b128 v{r + 4}, {vr(r, 4)} offset:4096", f"ds_write_b128 v{r + 5}, {vr(r, 4)} offset:{UB}"]


def kaddr(r):
    a(f"""s_lshr_b32 s{sT0}, s{sWAVE}, 1
s_and_b32 s{sT1}, s{sWAVE}, 1
s_lshl_b32 s{sT1}, s{sT1}, 11
v_lshl_add_u32 v{r + 3}, v{vLANE}, 5, s{sT1}""")
    for c in range(4):
        a(f"s_cmp_lg_u32 s{sT0}, 0")
        a(f"s_cselect_b32 s{sT2}, {KSLOT[1][c]}, {KSLOT[0][c]}")
        a(f"s_mul_i32 s{sT2}, s{sT2}, {KST}")
        a(f"v_add_u32 v{r + c}, s{sT2}, v{r + 3}")


def kexpand(mid):
    AD, VAL = 2, 22
    P0, P1, P2, P3 = 2, 12, 88, 96
    a.barrier()
    for k in range(19):
        a(f"ds_read2st64_b32 {vr(VAL + 2 * k, 2)}, v{AD + k} offset0:{TOFF // 256} offset1:{TOFF // 256 + GST // 256}")
    mid()
    kaddr(60)
    zw = kzero(104)
    if OPT["h_load"] < 10:
        for k in range(24):
            a(f"v_accvgpr_read_b32 v{CS + k}, a{k}")
    for k in range(19):
        a(f"v_add_f32 v{VAL + 2 * k}, v{VAL + 2 * k}, v{VAL + 2 * k + 1}")
        if k:
            a(f"v_cvt_pk_bf16_f32 v{(P0 if k & 1 else P1) + (k - 1) // 2}, v{VAL + 2 * k - 2}, v{VAL + 2 * k}")
    a.barrier()
    a.begin()
    for l in zw:
        a(l)
    for c, P in ((0, P0), (1, P1)):
        a(f"ds_write_b128 v{60 + c}, {vr(P, 4)}")
        a(f"ds_write_b128 v{60 + c}, {vr(P + 4, 4)} offset:16")
    for c, P, src in ((2, P2, P0), (3, P3, P1)):
        for i in range(4):
            a(f"v_pk_mov_b32 {vr(P + 2 * i, 2)}, {vr(src + 2 * i, 2)}, {vr(src + 2 * i + 2, 2)} op_sel:[1,0]")
        a(f"ds_write_b128 v{60 + c}, {vr(P, 4)}")
        a(f"ds_write_b128 v{60 + c}, {vr(P + 4, 4)} offset:16")
    return a.end()


def kcopies():
    R, E, M = 2, 12, 22
    kaddr(40)
    a(f"""ds_read_b128 {vr(R, 4)}, v40
ds_read_b128 {vr(R + 4, 4)}, v40 offset:16
ds_read_b64 {vr(R + 8, 2)}, v40 offset:32""")
    for l in kzero(32):
        a(l)
    for i in range(9):
        a(f"v_alignbit_b32 v{E + i}, v{R + i + 1}, v{R + i}, 16")
    a(f"ds_write_b128 v41, {vr(E, 4)}")
    a(f"ds_write_b128 v41, {vr(E + 4, 4)} offset:16")
    for i in range(4):
        a(f"v_pk_mov_b32 {vr(M + 2 * i, 2)}, {vr(R + 2 * i, 2)}, {vr(R + 2 * i + 2, 2)} op_sel:[1,0]")
    a(f"ds_write_b128 v42, {vr(M, 4)}")
    a(f"ds_write_b128 v42, {vr(M + 4, 4)} offset:16")
    for i in range(4):
        a(f"v_pk_mov_b32 {vr(R + 2 * i, 2)}, {vr(E + 2 * i, 2)}, {vr(E + 2 * i + 2, 2)} op_sel:[1,0]")
    a(f"ds_write_b128 v43, {vr(R, 4)}")
    a(f"ds_write_b128 v43, {vr(R + 4, 4)} offset:16")


cvA, cvB, cvZ, cvXW, cvXR, cvO, cvU, cvX, cvH, cvP = 112, 113, 114, 115, 116, 117, 118, 119, 100, 108
STUBS = []


def conv_poll1():
    r = cvP
    a(f"""v_lshrrev_b32 v{r}, 3, v{vLANE}
v_min_u32 v{r}, 6, v{r}
v_and_b32 v{r + 1}, 7, v{vLANE}
v_lshl_add_u32 v{r + 2}, v{r}, 5, v{r + 1}
s_lshl_b32 s{sT0}, s{sWAVE}, 3
v_add_u32 v{r + 2}, s{sT0}, v{r + 2}
v_and_b32 v{r + 1}, 7, v{vLANE}
v_min_u32 v{r}, 6, v{r + 1}
v_lshl_add_u32 v{r + 3}, v{r}, 5, v{r + 1}
v_add_u32 v{r + 3}, s{sT0}, v{r + 3}""")


def conv_loads():
    for p in range(4):
        a(f"buffer_load_dwordx4 {vr(CS + 4 * p, 4)}, v{vL16}, {srd(S_WS)}, s{16 + p} offen sc1")
    a(f"buffer_load_dwordx4 {vr(GX, 4)}, v{cvX}, {srd(S_WS)}, s20 offen sc1")
    a(f"buffer_load_dwordx4 {vr(GX + 4, 4)}, v{cvX}, {srd(S_WS)}, s20 offen offset:64 sc1")


CS1, GX1 = 64, 96


def conv_counted():
    XF, UF, AL, BE, UP = cXF, cUF, cAL, cBE, cUP
    again, back, stub = label("cca"), label("ccb"), label("ccs")
    xl = [f"buffer_load_dwordx4 {vr(GX1, 4)}, v{cvX}, {srd(S_WS)}, s20 offen sc1", f"buffer_load_dwordx4 {vr(GX1 + 4, 4)}, v{cvX}, {srd(S_WS)}, s20 offen offset:64 sc1"]
    a(f"s_mov_b32 s{sCNT}, 0")
    a(f"{again}:")
    for e in range(8):
        a(f"buffer_load_dwordx4 {vr(CS1 + 4 * e, 4)}, v{vL16}, {srd(S_WS)}, s{22 + e} offen sc1")
        if e == 1 and not OPT["xe"]:
            a(xl[0]); a(xl[1])

    def tok(e):
        S = CS1 + 4 * e
        a(f"v_pk_mul_f32 {vr(S, 2)}, {vr(S, 2)}, {sp(sCA)} op_sel_hi:[1,0]")
        a(f"v_fma_f32 v{S + 3}, -v{S}, v{S}, s{sCB}")
        a(f"v_add_f32 v{S + 1}, v{S + 1}, v{S + 3}")
        a(f"v_max_f32 v{S + 1}, s{sCB}, v{S + 1}")
        a(f"v_rsq_f32 v{AL + e}, v{S + 1}")
    c = [CS1 + 4 * e + 2 for e in range(8)]
    if OPT["cpipe"]:
        for p in range(4):
            tok(2 * p)
            tok(2 * p + 1)
            if p == 0:
                for k in range(8):
                    unpack(XF + 2 * k, XF + 2 * k + 1, GX1 + k)
                a(f"v_max_u32 v63, v{GX1 + 3}, v{GX1 + 7}")
                a(f"v_cmp_eq_u32 s[16:17], -1, v63")
                a(f"v_min_f32 v62, v{c[0]}, v{c[1]}")
            else:
                a(f"v_min3_f32 v62, v62, v{c[2 * p]}, v{c[2 * p + 1]}")
            if p == 3:
                a(f"v_cmp_neq_f32 vcc, {f32(14.0)}, v62")
            for e in (2 * p, 2 * p + 1):
                a(f"v_mul_f32 v{BE + e}, -v{CS1 + 4 * e}, v{AL + e}")
            for ch in range(2):
                a(f"v_pk_fma_f32 {vr(UF + 8 * ch + 2 * p, 2)}, {vr(XF + 8 * ch + 2 * p, 2)}, {vr(AL + 2 * p, 2)}, {vr(BE + 2 * p, 2)}")
            for ch in range(2):
                a(f"v_cvt_pk_bf16_f32 v{UP + 4 * ch + p}, v{UF + 8 * ch + 2 * p}, v{UF + 8 * ch + 2 * p + 1}")
    else:
        tok(0)
        tok(1)
        for k in range(8):
            unpack(XF + 2 * k, XF + 2 * k + 1, GX1 + k)
        a(f"v_max_u32 v63, v{GX1 + 3}, v{GX1 + 7}")
        a(f"v_cmp_eq_u32 s[16:17], -1, v63")
        for e in range(2, 8):
            tok(e)
        c = [CS1 + 4 * e + 2 for e in range(8)]
        a(f"v_min3_f32 v62, v{c[0]}, v{c[1]}, v{c[2]}\nv_min3_f32 v62, v62, v{c[3]}, v{c[4]}\nv_min3_f32 v62, v62, v{c[5]}, v{c[6]}\nv_min_f32 v62, v62, v{c[7]}")
        a(f"v_cmp_neq_f32 vcc, {f32(14.0)}, v62")
        for e in range(8):
            a(f"v_mul_f32 v{BE + e}, -v{CS1 + 4 * e}, v{AL + e}")
    a("s_or_b64 vcc, vcc, s[16:17]")
    a(f"s_cbranch_vccnz {stub}")
    a(f"{back}:")
    STUBS.extend([f"{stub}:", f"s_add_u32 s{sCNT}, s{sCNT}, 1", f"s_cmp_lt_u32 s{sCNT}, {RETRY}", f"s_cbranch_scc0 {back}"] + (xl + ["s_waitcnt vmcnt(0)"] if OPT["xe"] else []) + [f"s_branch {again}"])


def conv_xearly():
    if emode(4) == "C" and OPT["xe"]:
        a.wait_tag("pub")
        a(f"buffer_load_dwordx4 {vr(GX1, 4)}, v{cvX}, {srd(S_WS)}, s20 offen sc1")
        a(f"buffer_load_dwordx4 {vr(GX1 + 4, 4)}, v{cvX}, {srd(S_WS)}, s20 offen offset:64 sc1")


def conv_setup(layer):
    a(f"""s_mov_b32 s{sCA}, {f32(1.0 / 448)}
s_mov_b32 s{sCB}, {f32(1e-5)}
s_lshl_b32 s{sT0}, s{sWAVE}, 10
v_add_u32 v{cvU}, s{sT0}, v{vL16}
s_lshr_b32 s{sT0}, s{sWAVE}, 1
s_and_b32 s{sT1}, s{sWAVE}, 1
v_and_b32 v8, 15, v{vLANE}
v_lshrrev_b32 v9, 4, v{vLANE}
v_not_b32 v10, v8
v_and_b32 v10, 3, v10""")
    for s in range(4):
        a(f"s_cmp_lg_u32 s{sT0}, 0")
        a(f"s_cselect_b32 s{sT2}, {KSLOT[1][s]}, {KSLOT[0][s]}")
        a(f"s_mul_i32 s{sT2}, s{sT2}, {KST}")
        if s == 0:
            a(f"v_mov_b32 v11, s{sT2}")
        else:
            a(f"v_mov_b32 v12, s{sT2}\nv_cmp_eq_u32 vcc, {s}, v10\nv_cndmask_b32 v11, v11, v12, vcc")
    a(f"""v_add_u32 v10, v10, v8
v_lshlrev_b32 v12, 3, v9
v_sub_u32 v12, v12, v10
v_lshl_add_u32 v11, v12, 1, v11
""")
    a(f"""s_lshl_b32 s{sT3}, s{sT1}, 8
s_sub_u32 s{sT2}, {2 * 2031 - 64 * 59}, s{sT3}
v_add_u32 v{cvA}, s{sT2}, v11
s_mul_i32 s{sT2}, s{sT0}, {UST}
s_sub_u32 s{sT2}, s{sT2}, s{sT3}
s_add_u32 s{sT2}, s{sT2}, {UB + UPAD - 2 * 112}
v_lshlrev_b32 v12, 5, v8
v_lshl_add_u32 v13, v9, 4, v12
v_add_u32 v{cvB}, s{sT2}, v13
s_lshl_b32 s{sT2}, s{sWAVE}, 11
v_lshl_add_u32 v13, v9, 3, v12
v_add_u32 v{cvZ}, s{sT2}, v13
s_xor_b32 s{sT2}, s{sWAVE}, 1
s_lshl_b32 s{sT2}, s{sT2}, 12
v_add_u32 v{cvXW}, s{sT2}, v{vL16}
s_lshl_b32 s{sT2}, s{sWAVE}, 12
v_add_u32 v{cvXR}, s{sT2}, v{vL16}
v_and_b32 v10, 1, v9
v_lshlrev_b32 v10, 3, v10
v_lshrrev_b32 v11, 1, v8
v_add_u32 v10, v10, v11
v_mul_u32_u24 v10, {BS}, v10
v_and_b32 v11, 1, v8
v_lshl_add_u32 v10, v11, 5, v10
v_lshrrev_b32 v11, 1, v9
v_lshl_add_u32 v{cvO}, v11, 4, v10
s_mul_i32 s{sT1}, s{sT1}, {32 * BS}
s_lshl_b32 s{sT2}, s{sPAIR}, 1
s_add_u32 s{sT0}, s{sT0}, s{sT2}
s_lshl_b32 s{sT0}, s{sT0}, 6
s_add_u32 s{sT0}, s{sT0}, s{sT1}
s_add_u32 s13, s{sT0}, {X1 if layer == 0 else X3}
s_add_u32 s21, s13, {16 * BS}""" if OPT["cv"] else f"""v_add_u32 v{cvA}, {2 * 2031 - 64 * 63}, v11
s_mul_i32 s{sT2}, s{sT0}, {UST}
s_lshl_b32 s{sT3}, s{sT1}, 9
s_add_u32 s{sT2}, s{sT2}, s{sT3}
s_add_u32 s{sT2}, s{sT2}, {UB + UPAD - 2 * 496}
v_lshlrev_b32 v12, 5, v8
v_lshl_add_u32 v13, v9, 4, v12
v_add_u32 v{cvB}, s{sT2}, v13
s_lshl_b32 s{sT2}, s{sT0}, 12
s_add_u32 s{sT2}, s{sT2}, s{sT3}
v_lshl_add_u32 v13, v9, 3, v12
v_add_u32 v{cvZ}, s{sT2}, v13
v_and_b32 v10, 1, v9
v_lshlrev_b32 v10, 4, v10
v_lshrrev_b32 v11, 1, v8
v_add_u32 v10, v10, v11
v_mul_u32_u24 v10, {BS}, v10
v_and_b32 v11, 1, v8
v_lshl_add_u32 v10, v11, 5, v10
v_lshrrev_b32 v11, 1, v9
v_lshl_add_u32 v{cvO}, v11, 4, v10
s_mul_i32 s{sT1}, s{sT1}, {8 * BS}
s_lshl_b32 s{sT2}, s{sPAIR}, 1
s_add_u32 s{sT0}, s{sT0}, s{sT2}
s_lshl_b32 s{sT0}, s{sT0}, 6
s_add_u32 s{sT0}, s{sT0}, s{sT1}
s_add_u32 s13, s{sT0}, {X1 if layer == 0 else X3}
s_add_u32 s21, s13, {32 * BS}""")
    a(f"""s_lshl_b32 s16, s{sWAVE}, 10
s_add_u32 s16, s16, {ST0 if layer == 0 else ST1}
s_add_u32 s17, s16, 4096
s_add_u32 s18, s16, 8192
s_add_u32 s19, s16, 12288
s_mul_i32 s20, s{sWAVE}, {16 * BS}
s_lshl_b32 s{sT2}, s{sPAIR}, 7
s_add_u32 s20, s20, s{sT2}
s_add_u32 s20, s20, {X0 if layer == 0 else X2}
v_lshrrev_b32 v10, 2, v{vLANE}
v_mul_u32_u24 v10, {BS}, v10
v_and_b32 v11, 3, v{vLANE}
v_lshl_add_u32 v{cvX}, v11, 4, v10""")
    if layer == 1 and emode(4) == "C":
        for e in range(8):
            a(f"s_add_u32 s{22 + e}, s16, {4096 * e}")


cXF, cUF, cAL, cBE, cUP = 0, 16, 32, 40, 48


def conv_pro(layer):
    XF, UF, AL, BE, UP = cXF, cUF, cAL, cBE, cUP
    if layer == 1 and emode(4) == "C":
        conv_counted()
    else:
        conv_stats()
    conv_norm(layer == 1 and emode(4) == "C" and OPT["cpipe"])


def conv_stats():
    XF, UF, AL, BE, UP = cXF, cUF, cAL, cBE, cUP
    for p in range(4):
        S = CS + 4 * p
        a(f"v_pk_mul_f32 {vr(S, 2)}, {vr(S, 2)}, {sp(sCA)} op_sel_hi:[1,0]")
    for p in range(4):
        S = CS + 4 * p
        a(f"v_pk_fma_f32 {vr(BE + 2 * p, 2)}, {vr(S, 2)}, {vr(S, 2)}, {sp(sCB)} op_sel_hi:[1,1,0] neg_lo:[1,0,0] neg_hi:[1,0,0]")
    for p in range(4):
        Q = CS + 4 * p + 2
        a(f"v_pk_fma_f32 {vr(Q, 2)}, {vr(Q, 2)}, {sp(sCA)}, {vr(BE + 2 * p, 2)} op_sel_hi:[1,0,1]")
    for p in range(4):
        Q = CS + 4 * p + 2
        a(f"v_max_f32 v{Q}, s{sCB}, v{Q}\nv_max_f32 v{Q + 1}, s{sCB}, v{Q + 1}")
    for p in range(4):
        Q = CS + 4 * p + 2
        a(f"v_rsq_f32 v{AL + 2 * p}, v{Q}\nv_rsq_f32 v{AL + 2 * p + 1}, v{Q + 1}")
    for k in range(8):
        unpack(XF + 2 * k, XF + 2 * k + 1, GX + k)
    for p in range(4):
        S = CS + 4 * p
        a(f"v_pk_mul_f32 {vr(BE + 2 * p, 2)}, {vr(S, 2)}, {vr(AL + 2 * p, 2)} neg_lo:[1,0] neg_hi:[1,0]")


def conv_norm(done=False):
    XF, UF, AL, BE, UP = cXF, cUF, cAL, cBE, cUP
    for c in range(2):
        for p in range(0 if done else 4):
            a(f"v_pk_fma_f32 {vr(UF + 8 * c + 2 * p, 2)}, {vr(XF + 8 * c + 2 * p, 2)}, {vr(AL + 2 * p, 2)}, {vr(BE + 2 * p, 2)}")
        for p in range(0 if done else 4):
            a(f"v_cvt_pk_bf16_f32 v{UP + 4 * c + p}, v{UF + 8 * c + 2 * p}, v{UF + 8 * c + 2 * p + 1}")
        a(f"ds_write_b128 v{cvU}, {vr(UP + 4 * c, 4)} offset:{UB + c * UST + UPAD}")
    if OPT["cv"]:
        for i in a.capture(conv_z, 88):
            if i.kind != "dsw":
                a.put([i])


def conv_z(ZP=cXF):
    XF, UF = cXF, cUF
    for c in range(2):
        for p in range(4):
            a(f"v_pk_fma_f32 {vr(UF + 8 * c + 2 * p, 2)}, {vr(UF + 8 * c + 2 * p, 2)}, {sp((sD0, sD1)[c])}, {vr(XF + 8 * c + 2 * p, 2)} op_sel_hi:[1,0,1]")
        for p in range(4):
            a(f"v_cvt_pk_bf16_f32 v{ZP + 4 * c + p}, v{UF + 8 * c + 2 * p}, v{UF + 8 * c + 2 * p + 1}")
        a(f"ds_write_b128 v{cvU}, {vr(ZP + 4 * c, 4)} offset:{ZB + c * 4096}")


def conv_main(layer, bg=(), bg_start=0, bg_every=64):
    return (conv_main_r if OPT["cv"] else conv_main_t)(layer, bg, bg_start, bg_every)


def conv_main_r(layer, bg, bg_start, bg_every):
    ACC, BF, AR = 0, 32, 64
    NA = 6
    EX2 = ZB
    seq = [(r, q) for r in range(4) for q in range(7, -1, -1)]
    e = 1 + 4 * layer

    def rdA(i):
        r, q = seq[i]
        d = AR + 4 * (i % NA)
        off = 64 * (59 - (8 * q + r))
        return [Ins(f"ds_read_b64 {vr(d, 2)}, v{cvA} offset:{off}"), Ins(f"ds_read_b64 {vr(d + 2, 2)}, v{cvA} offset:{off + 8}")]

    def rdB(r, p):
        return [Ins(f"ds_read_b128 {vr(BF + 4 * p, 4)}, v{cvB} offset:{512 * p + 64 * (3 - r)}")]

    a.put(rdA(0)); a.put(rdB(0, 0)); a.put(rdA(1)); a.put(rdB(0, 1)); a.put(rdA(2)); a.put(rdB(0, 2)); a.put(rdA(3))
    a.put(rdB(0, 3)); a.put(rdA(4))
    for p in range(4, 8):
        a.put(rdB(0, p))
    ZR, ZF, RR = 88, 64, 32
    side = [[i] for i in a.capture(conv_z, 88) if i.kind == "dsw"]
    if hinted(e):
        side += [[i] for i in a.capture(hint_prep, e + 10, sPAIR, cvH)]
    late = [[Ins("s_barrier")]] + [[Ins(f"ds_read_b64 {vr(ZR + 2 * i, 2)}, v{cvZ} offset:{ZB + i * 512}")] for i in range(4)]
    late2 = [[Ins("s_barrier")]]
    a.begin()
    started = set()
    for i, (r, q) in enumerate(seq):
        if hinted(e) and OPT["h_cv"] < 0 and i == 32 + OPT["h_cv"]:
            hint_put(cvH)
        ps = list(range(8 - q))
        for p in ps:
            b = q + p
            c = vr(ACC + 4 * b, 4) if b in started else "0"
            started.add(b)
            a(f"v_mfma_f32_16x16x32_bf16 {vr(ACC + 4 * b, 4)}, {vr(AR + 4 * (i % NA), 4)}, {vr(BF + 4 * p, 4)}, {c}")
            if p == 0 and i + NA - 1 < len(seq):
                a.put(rdA(i + NA - 1))
            elif 1 <= q <= 4 and p >= 1:
                for lst, r0 in ((side, 0), (late, 2), (late2, 3)):
                    if lst and r >= r0:
                        a.put(lst.pop(0))
                        break
            if q == 0 and r < 3:
                a.put(rdB(r + 1, p))
    assert not side and not late and not late2
    m, rest = merge(a.end(), list(bg), bg_start, bg_every)
    a.put(m)
    stamp(f"conv{layer} loop", 111)
    if hinted(e) and OPT["h_cv"] == 0:
        hint_put(cvH)
    for k in range(8):
        unpack(ZF + 2 * k, ZF + 2 * k + 1, ZR + k)
    l1, l2 = label("cx"), label("cy")
    a(f"s_bitcmp1_b32 s{sWAVE}, 0")
    a(f"s_cbranch_scc1 {l1}")
    for h in range(2):
        for i in range(4):
            a(f"ds_write_b128 v{cvXW}, {vr(ACC + 16 * (1 - h) + 4 * i, 4)} offset:{EX2 + i * 1024}")
            for k in range(2):
                a(f"v_pk_add_f32 {vr(ZF + 4 * i + 2 * k, 2)}, {vr(ZF + 4 * i + 2 * k, 2)}, {vr(ACC + 16 * h + 4 * i + 2 * k, 2)}")
        if h == 0:
            a(f"s_branch {l2}")
            a(f"{l1}:")
    a(f"{l2}:")
    if (armed(1) if layer else (sentinel(1) and not OPT["x1s"])):
        poll_take(cvP)
    a.barrier()
    if hinted(e) and OPT["h_cv"] == 1:
        hint_put(cvH)
    for i in range(4):
        a(f"ds_read_b128 {vr(RR + 4 * i, 4)}, v{cvXR} offset:{EX2 + i * 1024}")
    PK = 56
    for i in range(4):
        for k in range(2):
            a(f"v_pk_add_f32 {vr(ZF + 4 * i + 2 * k, 2)}, {vr(ZF + 4 * i + 2 * k, 2)}, {vr(RR + 4 * i + 2 * k, 2)}")
        for k in range(2):
            a(f"v_cvt_pk_bf16_f32 v{PK + 2 * i + k}, v{ZF + 4 * i + 2 * k}, v{ZF + 4 * i + 2 * k + 1}")
        if i & 1:
            b = PK + 2 * (i - 1)
            a(f"v_permlane16_swap_b32 v{b}, v{b + 2}")
            a(f"v_permlane16_swap_b32 v{b + 1}, v{b + 3}")
            a(f"buffer_store_dwordx4 {vr(b, 4)}, v{cvO}, {srd(S_WS)}, s{21 if i == 3 else 13} offen sc1", tag="pub")
    if hinted(e) and OPT["h_cv"] == 2:
        hint_put(cvH)
    if not flagged(e):
        a.barrier()
    else:
        flag_put(1 + 4 * layer, sPAIR, 40, "pub")
    return rest


def conv_main_t(layer, bg, bg_start, bg_every):
    ACC, BF, AR = 84, 32, 64
    NA = 5
    QORD = (7, 5, 6, 3, 4, 2, 1, 0)
    seq = [(r, q) for r in range(8) for q in QORD]
    e = 1 + 4 * layer

    def rdA(i):
        r, q = seq[i]
        d = AR + 4 * (i % NA)
        off = 64 * (63 - (8 * q + r))
        return [Ins(f"ds_read_b64 {vr(d, 2)}, v{cvA} offset:{off}"), Ins(f"ds_read_b64 {vr(d + 2, 2)}, v{cvA} offset:{off + 8}")]

    def rdB(r, p):
        return [Ins(f"ds_read_b128 {vr(BF + 4 * (p + 1), 4)}, v{cvB} offset:{512 * (p + 1) + 64 * (7 - r)}")]

    a.put(rdA(0)); a.put(rdB(0, -1)); a.put(rdA(1)); a.put(rdB(0, 1)); a.put(rdA(2)); a.put(rdB(0, 0)); a.put(rdA(3))
    for p in (3, 2, 4, 5, 6):
        a.put(rdB(0, p))
    ZR, ZF = 16, 0
    side = [[i] for i in a.capture(conv_z)]
    if hinted(e):
        side += [[i] for i in a.capture(hint_prep, e + 10, sPAIR, cvH)]
    late = [[Ins("s_barrier")]] + [[Ins(f"ds_read_b64 {vr(ZR + 2 * i, 2)}, v{cvZ} offset:{ZB + i * 1024}")] for i in range(4)]
    late2 = [[i] for k in range(8) for i in a.capture(unpack, ZF + 2 * k, ZF + 2 * k + 1, ZR + k)]
    a.begin()
    started = set()
    n = 0
    for i, (r, q) in enumerate(seq):
        if hinted(e) and OPT["h_cv"] < 0 and i == 64 + OPT["h_cv"]:
            hint_put(cvH)
        first = True
        for t in range(q // 2, 4):
            p = 2 * t - q
            c = vr(ACC + 4 * t, 4) if t in started else "0"
            started.add(t)
            a(f"v_mfma_f32_16x16x32_bf16 {vr(ACC + 4 * t, 4)}, {vr(AR + 4 * (i % NA), 4)}, {vr(BF + 4 * (p + 1), 4)}, {c}")
            n += 1
            if first and i + 4 < len(seq):
                a.put(rdA(i + 4))
            elif q >= 2:
                for lst, r0 in ((side, 0), (late, 4), (late2, 5)):
                    if lst and r >= r0:
                        a.put(lst.pop(0))
                        if lst is side and lst:
                            a.put(lst.pop(0))
                        break
            first = False
            if q <= 1 and r < 7:
                a.put(rdB(r + 1, p))
    assert not side and not late and not late2
    m, rest = merge(a.end(), list(bg), bg_start, bg_every)
    a.put(m)
    stamp(f"conv{layer} loop", 111)
    if (armed(1) if layer else (sentinel(1) and not OPT["x1s"])):
        poll_take(cvP)
    if hinted(e) and OPT["h_cv"] == 0:
        hint_put(cvH)
    PK = 24
    for i in range(4):
        for k in range(2):
            a(f"v_pk_add_f32 {vr(ZF + 4 * i + 2 * k, 2)}, {vr(ZF + 4 * i + 2 * k, 2)}, {vr(ACC + 4 * i + 2 * k, 2)}")
        for k in range(2):
            a(f"v_cvt_pk_bf16_f32 v{PK + 2 * i + k}, v{ZF + 4 * i + 2 * k}, v{ZF + 4 * i + 2 * k + 1}")
        if i & 1:
            b = PK + 2 * (i - 1)
            a(f"v_permlane16_swap_b32 v{b}, v{b + 2}")
            a(f"v_permlane16_swap_b32 v{b + 1}, v{b + 3}")
            a(f"buffer_store_dwordx4 {vr(b, 4)}, v{cvO}, {srd(S_WS)}, s{21 if i == 3 else 13} offen sc1", tag="pub")
    if hinted(e) and OPT["h_cv"] > 0:
        hint_put(cvH)
    if not flagged(e):
        a.barrier()
    else:
        flag_put(1 + 4 * layer, sPAIR, 40, "pub")
    return rest


def reduce32(V, n, W):
    for i in range(n):
        a(f"v_permlane16_swap_b32 v{V[i]}, v{V[n + i]}")
    for i in range(n):
        a(f"v_add_f32 v{V[i]}, v{V[i]}, v{V[n + i]}")
    h = n // 2
    for i in range(h):
        a(f"v_add_f32_dpp v{W[i]}, v{V[i]}, v{V[i]} row_ror:8 row_mask:0xf bank_mask:0x3")
    for i in range(h):
        a(f"v_add_f32_dpp v{W[i]}, v{V[i + h]}, v{V[i + h]} row_ror:8 row_mask:0xf bank_mask:0xc")
    g = h // 2
    for i in range(g):
        a(f"v_add_f32_dpp v{V[i]}, v{W[i]}, v{W[i]} row_half_mirror row_mask:0xf bank_mask:0x5")
    for i in range(g):
        a(f"v_add_f32_dpp v{V[i]}, v{W[i + g]}, v{W[i + g]} row_half_mirror row_mask:0xf bank_mask:0xa")
    for m in ("[1,0,3,2]", "[2,3,0,1]"):
        for i in range(g):
            a(f"v_add_f32_dpp v{V[i]}, v{V[i]}, v{V[i]} quad_perm:{m} row_mask:0xf bank_mask:0xf")
    return V[:g]


def maxchain(t, regs):
    regs = list(regs)
    if OPT["chk"] == 1:
        regs = regs[3::4]
    if len(regs) == 2:
        return [f"v_max_u32 v{t}, v{regs[0]}, v{regs[1]}"]
    out = [f"v_max3_u32 v{t}, v{regs[0]}, v{regs[1]}, v{regs[2]}"]
    regs = regs[3:]
    while len(regs) >= 2:
        out.append(f"v_max3_u32 v{t}, v{t}, v{regs[0]}, v{regs[1]}")
        regs = regs[2:]
    if regs:
        out.append(f"v_max_u32 v{t}, v{t}, v{regs[0]}")
    return out


RETRY = 0x10000


def ln(layer, wide):
    X = X1 if layer == 0 else X3
    H = H1 if layer == 0 else H3
    nf = 7 if wide else 4
    sI = sLN0 if wide else sLN
    RAW, XF, S, Q, W = 0, 28, 84, 92, 100
    vO, vPW, vPR, vAW, vAR, r, hr = 109, 110, 111, 112, 117, 114, 104
    vX, vS = 64, 68
    a(f"""s_mul_i32 s{sT0}, s{sWAVE}, 56
v_min_u32 v{r + 2}, 55, v{vLANE}""")
    a(f"v_add_u32 v{r + 2}, s{sT0}, v{r + 2}")
    a(f"v_and_b32 v118, {OPT['samp'] - 1}, v{vLANE}\nv_mul_u32_u24 v118, {56 // OPT['samp']}, v118\nv_add_u32 v118, s{sT0}, v118")
    ein, eout = 1 + 4 * layer, 2 + 4 * layer
    if OPT["lnd"] and emode(ein) == "D":
        a.wait_tag("pub")
    if wide:
        a(f"""s_mul_i32 s16, s{sI}, {BS}
s_lshl_b32 s{sT2}, s{sI}, 12""")
    else:
        a(f"""s_lshr_b32 s16, s{sI}, 1
s_mul_i32 s16, s16, {BS}
s_and_b32 s{sT0}, s{sI}, 1
s_lshl_b32 s{sT0}, s{sT0}, 5
s_add_u32 s16, s16, s{sT0}
s_lshl_b32 s{sT2}, s{sI}, 11""")
    a(f"""s_mul_i32 s{sT0}, s{sWAVE}, 7168
s_add_u32 s16, s16, s{sT0}
s_add_u32 s16, s16, {X}
s_add_u32 s17, s16, 4096
s_add_u32 s{sT2}, s{sT2}, {H}
s_mul_i32 s30, s{sWAVE}, 7""")
    if wide:
        for i in range(nf):
            a(f"""s_add_u32 s{sT0}, s30, {i}
s_lshr_b32 s{sT1}, s{sT0}, 2
s_lshl_b32 s{sT1}, s{sT1}, 18
s_add_u32 s{23 + i}, s{sT1}, s{sT2}
s_and_b32 s{sT1}, s{sT0}, 2
s_lshl_b32 s{sT1}, s{sT1}, 9
s_add_u32 s{23 + i}, s{23 + i}, s{sT1}
s_and_b32 s{sT1}, s{sT0}, 1
s_lshl_b32 s{sT1}, s{sT1}, 8
s_add_u32 s{23 + i}, s{23 + i}, s{sT1}""")
        a(f"""v_lshrrev_b32 v1, 2, v{vLANE}
v_lshlrev_b32 v{vO}, 4, v1
v_and_b32 v2, 1, v{vLANE}
v_lshl_add_u32 v{vO}, v2, 9, v{vO}
v_bfe_u32 v2, v{vLANE}, 1, 1
v_lshl_add_u32 v{vO}, v2, 11, v{vO}
v_and_b32 v1, 7, v1
v_and_b32 v2, 3, v{vLANE}
v_lshl_add_u32 v1, v2, 3, v1""")
    else:
        a(f"""v_lshrrev_b32 v1, 1, v{vLANE}
v_and_b32 v2, 1, v{vLANE}
v_lshlrev_b32 v{vX}, 6, v1
v_lshl_add_u32 v{vX}, v2, 4, v{vX}
v_mov_b32 v3, {OOB}
v_cmp_gt_u32 vcc, 32, v{vLANE}
v_cndmask_b32 v{vX + 1}, v3, v{vX}, vcc
s_lshl_b32 s30, s30, 4
s_mov_b32 s23, s{sT2}""")
        for i in range(nf):
            a(f"""v_add_u32 v4, s30, v1
v_lshrrev_b32 v5, 6, v4
v_lshlrev_b32 v5, 18, v5
v_bfe_u32 v6, v4, 5, 1
v_lshl_add_u32 v5, v6, 10, v5
v_and_b32 v6, 31, v4
v_lshl_add_u32 v5, v6, 4, v5
v_lshl_add_u32 v{vS + i}, v2, 9, v5""")
            if i < 3:
                a("s_add_u32 s30, s30, 32")
        a(f"""v_cndmask_b32 v{vS + 3}, v3, v{vS + 3}, vcc
v_bfe_u32 v1, v{vLANE}, 2, 3
v_lshl_add_u32 v1, v2, 3, v1""")
    a(f"""v_lshrrev_b32 v3, 5, v{vLANE}
v_lshl_add_u32 v1, v3, 5, v1
s_lshl_b32 s{sT1}, s{sWAVE}, 8
s_add_u32 s{sT1}, s{sT1}, {LNP}
v_lshl_add_u32 v{vPW}, v1, 2, s{sT1}
v_and_b32 v1, 31, v{vLANE}
v_lshlrev_b32 v{vPR}, 2, v1
v_add_u32 v{vPR}, {LNP}, v{vPR}
s_add_u32 s{sT1}, s{sT1}, 1024
v_lshl_add_u32 v{vAW}, v{vLANE}, 2, s{sT1}
v_lshl_add_u32 v{vAR}, v2, 5, s{sT1}
s_mov_b32 s18, 0
s_mov_b32 s19, -1""")
    prod = f"s_lshl_b32 s{sT0}, s{sI}, 6"
    if hinted(eout):
        hint_prep(eout + 10, prod, hr)
    arm = layer == 0 and sentinel(2)
    if arm:
        a(f"v_min_u32 v102, 27, v{vLANE}")
        poll_issue(18, 100)
    own = layer == 0 and sentinel(1) and OPT["x1s"]
    if own:
        poll_issue(0, 98, r + 2)
    wait_edge(ein, r, r + 2, 118)
    if arm:
        poll_take(100)
    if own:
        poll_take(98, r + 2)
    stamp(f"ln{layer} go")

    def loads():
        if not wide:
            return [f"buffer_load_dwordx4 {vr(RAW + 4 * i, 4)}, v{vX + (i == 3)}, {srd(S_WS)}, s{16 + i // 2} offen offset:{2048 * (i % 2)} sc1" for i in range(nf)]
        return [f"buffer_load_dwordx4 {vr(RAW + 4 * i, 4)}, v{vL16}, {srd(S_WS)}, s{16 + i // 4} offen offset:{1024 * (i % 4)} sc1" for i in range(nf)]
    again, back, stub = label("lna"), label("lnb"), label("lns")
    if sentinel(ein):
        a(f"s_mov_b32 s{sCNT}, 0")
        a(f"{again}:")
    for l in loads():
        a(l)
    if hinted(eout) and OPT["h_ln"] == 0:
        a.wait_vm0()
        hint_put(hr)
    if OPT["stamps"] == 1:
        a.wait_vm0()
    count_out(113)
    stamp(f"ln{layer} data", 113)
    for i in range(nf):
        for k in range(4):
            unpack(XF + 8 * i + 2 * k, XF + 8 * i + 2 * k + 1, RAW + 4 * i + k)
        for k in range(4):
            x = vr(XF + 8 * i + 2 * k, 2)
            if i == 0:
                a(f"v_pk_mul_f32 {vr(Q + 2 * k, 2)}, {x}, {x}")
            else:
                a(f"v_pk_fma_f32 {vr(Q + 2 * k, 2)}, {x}, {x}, {vr(Q + 2 * k, 2)}")
                a(f"v_pk_add_f32 {vr(S + 2 * k, 2)}, {vr(XF + 2 * k, 2) if i == 1 else vr(S + 2 * k, 2)}, {x}")
    if sentinel(ein):
        for l in maxchain(113, range(RAW, RAW + 4 * nf)) + ["v_cmp_eq_u32 vcc, -1, v113"]:
            a(l)
        STUBS.extend([f"{stub}:", f"s_add_u32 s{sCNT}, s{sCNT}, 1", f"s_cmp_lt_u32 s{sCNT}, {RETRY}", f"s_cbranch_scc1 {again}", f"s_branch {back}"])
    if hinted(eout) and OPT["h_ln"] == 1:
        hint_put(hr)
    for i in range(8):
        a(f"v_permlane32_swap_b32 v{S + i}, v{Q + i}")
        if i == 1 and sentinel(ein):
            a(f"s_cbranch_vccnz {stub}")
            a(f"{back}:")
    for i in range(0, 8, 2):
        a(f"v_pk_add_f32 {vr(S + i, 2)}, {vr(S + i, 2)}, {vr(Q + i, 2)}")
    for i in range(4):
        a(f"v_permlane16_swap_b32 v{S + i}, v{S + 4 + i}")
    for i in range(0, 4, 2):
        a(f"v_pk_add_f32 {vr(S + i, 2)}, {vr(S + i, 2)}, {vr(S + 4 + i, 2)}")
    for i in range(2):
        a(f"v_add_f32_dpp v{W + i}, v{S + i}, v{S + i} row_ror:8 row_mask:0xf bank_mask:0x3")
    for i in range(2):
        a(f"v_add_f32_dpp v{W + i}, v{S + 2 + i}, v{S + 2 + i} row_ror:8 row_mask:0xf bank_mask:0xc")
    a(f"v_add_f32_dpp v{S}, v{W}, v{W} row_shl:4 row_mask:0xf bank_mask:0x5")
    a(f"v_add_f32_dpp v{S}, v{W + 1}, v{W + 1} row_shr:4 row_mask:0xf bank_mask:0xa")
    if not wide:
        a(f"v_add_f32_dpp v{S}, v{S}, v{S} quad_perm:[2,3,0,1] row_mask:0xf bank_mask:0xf")
    a(f"ds_write_b32 v{vPW}, v{S}")
    a.barrier()
    if hinted(eout) and OPT["h_ln"] == 2:
        hint_put(hr)
    stamp(f"ln{layer} bar", 113)
    T = 0
    for w in range(4):
        a(f"ds_read2_b32 {vr(T + 2 * w, 2)}, v{vPR} offset0:{w * 64} offset1:{w * 64 + 32}")
    a(f"""v_pk_add_f32 {vr(T, 2)}, {vr(T, 2)}, {vr(T + 2, 2)}
v_pk_add_f32 {vr(T + 4, 2)}, {vr(T + 4, 2)}, {vr(T + 6, 2)}
v_pk_add_f32 {vr(T, 2)}, {vr(T, 2)}, {vr(T + 4, 2)}
v_mul_f32 v{T}, {f32(1 / 448)}, v{T}
v_mul_f32 v{T + 1}, {f32(1 / 448)}, v{T + 1}
v_fma_f32 v{T + 1}, -v{T}, v{T}, v{T + 1}
v_max_f32 v{T + 1}, 0, v{T + 1}
v_add_f32 v{T + 2}, {f32(1e-5)}, v{T + 1}
v_fmamk_f32 v{T + 2}, v{T + 2}, {f32(1e-5)}, v{T + 1}
v_rsq_f32 v{T + 2}, v{T + 2}
v_mul_f32 v{T + 3}, -v{T}, v{T + 2}
v_cndmask_b32 v{T + 2}, v{T + 2}, v{T + 3}, s[18:19]
ds_write_b32 v{vAW}, v{T + 2}""")
    AL, BE = S, Q
    done_hint = []
    a(f"""ds_read_b128 {vr(AL, 4)}, v{vAR}
ds_read_b128 {vr(BE, 4)}, v{vAR} offset:128
ds_read_b128 {vr(AL + 4, 4)}, v{vAR} offset:16
ds_read_b128 {vr(BE + 4, 4)}, v{vAR} offset:144""")
    for i in range(nf):
        for k in range(4):
            x = vr(XF + 8 * i + 2 * k, 2)
            a(f"v_pk_fma_f32 {x}, {x}, {vr(AL + 2 * k, 2)}, {vr(BE + 2 * k, 2)}")
        for k in range(4):
            a(f"v_cvt_pk_bf16_f32 v{RAW + 4 * i + k}, v{XF + 8 * i + 2 * k}, v{XF + 8 * i + 2 * k + 1}")
        a(f"buffer_store_dwordx4 {vr(RAW + 4 * i, 4)}, v{vO if wide else vS + i}, {srd(S_WS)}, s{23 + i if wide else 23} offen sc1", tag="pub")
        if hinted(eout) and OPT["h_ln"] - 3 == min(i, 6) * (4 if nf == 7 else 4) // (nf + 1):
            if not done_hint:
                hint_put(hr)
                done_hint.append(1)
    stamp(f"ln{layer} st", 113)
    if flagged(eout):
        flag_put(eout, prod, 100, "pub")


def gemm_addr():
    a(f"""s_and_b32 s{sT0}, s{sWAVE}, 1
s_lshl_b32 s{sT0}, s{sT0}, 10
v_add_u32 v{vA0}, s{sT0}, v{vL16}
v_xor_b32 v{vA1}, 0x400, v{vA0}""")


vCHK = 121


def gemm_loop(nks, ring, nring, wreg, swap, sent, lds_from=99, at=None, bg=()):
    WF = 104
    nfr = 2 * nks

    def load(f):
        ks, db = f // 2, f % 2
        g = []
        if db == 0 and ks and ks % 2 == 0:
            g.append(Ins("s_add_u32 s13, s13, 4096"))
            if ks % 4 == 0:
                g += [Ins("s_cmp_eq_u32 s13, s28"), Ins("s_cmov_b32 s13, s27")]
        d = ring + 4 * (f % nring)
        g.append(Ins(f"buffer_load_dwordx4 {vr(d, 4)}, v{(vA0, vA1)[db]}, {srd(S_WS)}, s13 offen offset:{(ks % 2) * 2048} sc1"))
        return g

    def wread(ks):
        g = []
        slot = ks - lds_from
        for nb in range(2):
            for j in range(2):
                d = WF + 8 * (ks % 2) + 4 * nb + 2 * j
                g.append(Ins(f"ds_read_b64_tr_b16 {vr(d, 2)}, v{(vT2a, vT2b)[nb]} offset:{slot * 2048 + j * 1024}", res_r=[f"slot{slot}"]))
        return g

    def check(ks, upto):
        regs = [ring + 4 * ((2 * ks + db) % nring) + k for db in range(2) for k in range(4)]
        chk = maxchain(vCHK, regs) + [f"v_cmp_eq_u32 vcc, -1, v{vCHK}"]
        back, stub = label("gb"), label("gs")
        rl, cnt = [], 0
        for f in range(2 * ks, max(2 * ks + 2, min(upto, 2 * ks + 2 * OPT["rl"]))):
            k2, db = f // 2, f % 2
            if db == 0:
                rl += [f"s_add_u32 s3, s22, {k2 * 2048}", "s_cmp_ge_u32 s3, s28", f"s_cselect_b32 s18, {nks * 2048}, 0", "s_sub_u32 s3, s3, s18"]
            rl.append(f"buffer_load_dwordx4 {vr(ring + 4 * (f % nring), 4)}, v{(vA0, vA1)[db]}, {srd(S_WS)}, s3 offen sc1")
        STUBS.extend([f"{stub}:"] + rl + ["s_waitcnt vmcnt(0)"] + chk + [f"s_add_u32 s{sCNT}, s{sCNT}, 1", f"s_cbranch_vccz {back}",
                                                     f"s_cmp_lt_u32 s{sCNT}, {RETRY}", f"s_cbranch_scc1 {stub}", f"s_branch {back}"])
        return [Ins(x) for x in chk], [Ins(f"s_cbranch_vccnz {stub}"), Ins(f"{back}:")]

    if sent:
        a(f"s_mov_b32 s{sCNT}, 0")
    nxt = min(OPT["fill0"], nring)
    for f in range(nxt):
        a.put(load(f))
    if sent:
        c, b = check(0, nxt)
        a.put(c); a.put(b)
    extra = []
    bg = list(bg)
    for ks in range(nks):
        if at and ks in at:
            extra += a.capture(at[ks])
        pend = wread(ks + 1) if lds_from <= ks + 1 < nks else []
        c, b = check(ks + 1, min(nfr, nxt + 2, nring + 2 * ks + 2)) if (sent and ks + 1 < nks) else ([], [])
        order = [(0, 0), (0, 1), (1, 0), (1, 1)]
        if ks == nks - 1 and OPT["tailord"]:
            order = [(0, 1), (1, 0), (1, 1), (0, 0)]
        if True:
            for nb, db in order:
                acc = vr(16 * (2 * nb + db), 16)
                cc = acc if (ks or (nb | db) == 0) else "0"
                w = wreg(ks, nb) if ks < lds_from else vr(WF + 8 * (ks % 2) + 4 * nb, 4)
                x = vr(ring + 4 * ((2 * ks + db) % nring), 4)
                if OPT["fake16"] and 0 < ks < nks - 1:
                    b0 = 16 * (2 * nb + db) + 8 * (ks & 1)
                    for t in range(2):
                        a(f"v_mfma_f32_16x16x32_bf16 {vr(b0 + 4 * t, 4)}, {x if swap ^ t else w}, {w if swap ^ t else x}, {vr(b0 + 4 * t, 4)}")
                else:
                    a(f"v_mfma_f32_32x32x16_bf16 {acc}, {x if swap else w}, {w if swap else x}, {cc}")
                if pend:
                    a.put([pend.pop(0)])
                free = nring + 2 * ks + (db + 1 if nb == 1 else 0)
                if nxt < min(nfr, free) and (nb == 1 or db == 1):
                    a.put(load(nxt))
                    nxt += 1
                if bg and nb == 0 and ks >= OPT["bg0"]:
                    a.put(bg.pop(0))
                if extra and nb == 0:
                    k = 5
                    while k < len(extra) and ("exec" in extra[k - 1].defs and extra[k - 1].text != "s_mov_b64 exec, -1" or extra[k - 1].kind == "vstore"):
                        k += 1
                    a.put(extra[:k])
                    del extra[:k]
                if nb == 1 and db == 0:
                    a.put(c)
                if nb == 1 and db == 1:
                    a.put(b)
    a.put(extra)


def gemm_rot(nks, srot):
    a(f"s_mov_b32 s27, s13\ns_add_u32 s28, s13, {nks * 2048}\ns_lshl_b32 s{sT0}, s{srot}, 13\ns_add_u32 s13, s13, s{sT0}\ns_mov_b32 s22, s13")


def gemm_reduce_prep():
    slot = 6144 if OPT["bfr"] else 12288
    for rel in (1, 2, 3):
        a(f"s_xor_b32 s{23 + rel}, s{sWAVE}, {rel}\ns_mul_i32 s{23 + rel}, s{23 + rel}, {slot}")
    a(f"s_mul_i32 s23, s{sWAVE}, {slot}")


def gemm_reduce_addr():
    for rel in range(4):
        a(f"v_add_u32 v{64 + rel}, s{23 + rel}, v{vL16}")


def gemm_perm(P):
    if not OPT["bfr"]:
        return
    t, u = P + 8, P + 7
    a("s_mov_b32 s29, 0x3f80")
    a(f"""v_lshrrev_b32 v{u}, 5, v{vLANE}
v_and_b32 v{t}, 31, v{vLANE}
v_lshlrev_b32 v{u}, 2, v{u}
v_sub_u32 v{t}, v{t}, v{u}
v_and_b32 v{u}, 1, v{t}
v_lshlrev_b32 v{u}, 4, v{u}
v_lshlrev_b32 v{u}, v{u}, s29
v_ashrrev_i32 v{t}, 1, v{t}""")
    vals = (0, 1, 4, 5, 8, 9, 12, 13)
    pairs = ("s[16:17]", "s[30:31]", "s[50:51]")
    for d in range(10):
        if d < 8:
            a(f"v_cmp_eq_u32 {pairs[d % 3]}, {vals[d]}, v{t}")
        if d >= 2:
            a(f"v_cndmask_b32 v{P + d - 2}, 0, v{u}, {pairs[(d - 2) % 3]}")
    a(f"ds_write_b128 v{vL16}, {vr(P, 4)} offset:{PERM}")
    a(f"ds_write_b128 v{vL16}, {vr(P + 4, 4)} offset:{PERM + 1024}")


def gemm_perm_get(P):
    if OPT["bfr"]:
        a(f"ds_read_b128 {vr(P, 4)}, v{vL16} offset:{PERM}")
        a(f"ds_read_b128 {vr(P + 4, 4)}, v{vL16} offset:{PERM + 1024}")


def gemm_reduce_bf(P, pre, post, quarter):
    side = a.capture(pre) if pre else []
    a.put(side[:9])
    side = side[9:]
    T = [104, 108, 112, 116]
    n = 0
    for rel in (1, 2, 3):
        for j in range(2):
            t = T[n % 4]
            n += 1
            for k in range(4):
                r = 16 * rel + 8 * j + 2 * k
                a(f"v_cvt_pk_bf16_f32 v{t + k}, v{r}, v{r + 1}")
            a(f"ds_write_b128 v{64 + rel}, {vr(t, 4)} offset:{RB + (rel - 1) * 2048 + j * 1024}")
            a.put(side[:3])
            side = side[3:]
    a.put(side)
    a.barrier()
    for k in ((0, 2, 4, 1, 3, 5) if (quarter and OPT["spl"]) else range(6)):
        a(f"ds_read_b128 {vr(16 + 4 * k, 4)}, v64 offset:{RB + k * 1024}")
    if post:
        post()
    if quarter and OPT["spl"]:
        for k in (0, 2, 4):
            a(f"v_mfma_f32_32x32x16_bf16 v[0:15], {vr(P, 4)}, {vr(16 + 4 * k, 4)}, v[0:15]")
        ms = [[Ins(f"v_mfma_f32_32x32x16_bf16 v[48:63], {vr(P + 4, 4)}, {vr(16 + 4 * k, 4)}, {'v[48:63]' if k > 1 else 0}")] for k in (1, 3, 5)]
        a.put(ms[0])
        a.put(ms[1])
        m, rest = merge(a.capture(lambda: (quarter(0), quarter(1))), ms[2:], 10, 30)
        a.put(m)
        assert not rest
        for r in range(8, 16, 2):
            a(f"v_pk_add_f32 {vr(r, 2)}, {vr(r, 2)}, {vr(48 + r, 2)}")
        quarter(2)
        quarter(3)
        return
    for k in range(6):
        a(f"v_mfma_f32_32x32x16_bf16 v[0:15], {vr(P + 4 * (k % 2), 4)}, {vr(16 + 4 * k, 4)}, v[0:15]")
    if quarter:
        for q in range(4):
            quarter(q)


def gemm_reduce(pre=None, post=None, quarter=None, P=None):
    if OPT["bfr"]:
        return gemm_reduce_bf(P, pre, post, quarter)
    side = a.capture(pre) if pre else []
    wr = [[Ins(f"ds_write_b128 v{64 + rel}, {vr(16 * rel + 4 * q, 4)} offset:{RB + (rel - 1) * 4096 + q * 1024}")] for rel in (1, 2, 3) for q in range(4)]
    a.put(side[:9])
    put_all(wr[:3])
    m, rest = merge(side[9:], wr[3:], 0, 12)
    a.put(m)
    put_all(rest)
    a.barrier()
    for q in range(4):
        for k in range(3):
            a(f"ds_read_b128 {vr(16 + 16 * k + 4 * q, 4)}, v64 offset:{RB + k * 4096 + q * 1024}")
        if q == 1 and post:
            post()
    for q in range(4):
        for h in range(2):
            r = 4 * q + 2 * h
            a(f"v_pk_add_f32 {vr(16 + r, 2)}, {vr(16 + r, 2)}, {vr(32 + r, 2)}")
            a(f"v_pk_add_f32 {vr(r, 2)}, {vr(r, 2)}, {vr(48 + r, 2)}")
        for h in range(2):
            r = 4 * q + 2 * h
            a(f"v_pk_add_f32 {vr(r, 2)}, {vr(r, 2)}, {vr(16 + r, 2)}")
        if quarter:
            quarter(q)


def gemm1(layer, wide, pre=None, bg=(), part="all"):
    H = H1 if layer == 0 else H3
    G = G1 if layer == 0 else G3
    r = 32
    c0 = -2 * math.log2(math.e) * math.sqrt(2 / math.pi)
    ein, eout = 2 + 4 * layer, 3 + 4 * layer
    if part == "poll":
        assert emode(ein) == "S"
        for k in range(8):
            unpack(2 * k, 2 * k + 1, 20 + k)
        poll_issue(ein + 10, r, r + 3)
        return
    if part != "rest":
        gemm1_head(H, G, wide, r, c0)
    if part == "head":
        return
    gemm1_rest(layer, wide, pre, bg, part, r, c0, ein, eout)


def gemm1_head(H, G, wide, r, c0):
    gemm_addr()
    a(f"""s_lshr_b32 s{sT0}, s{sWAVE}, 1
s_lshl_b32 s{sT0}, s{sT0}, 6
s_lshl_b32 s{sT1}, s{sNT}, 7
s_add_u32 s{sT0}, s{sT0}, s{sT1}
v_lshrrev_b32 v16, 5, v{vLANE}
v_lshl_add_u32 v16, v16, 3, s{sT0}""")
    for q in range(4):
        a(f"global_load_dwordx2 {vr(20 + 2 * q, 2)}, v16, {sp(P_B1)} offset:{16 * q}")
    a(f"""s_lshl_b32 s{sT0}, s{sWAVE}, 5
v_and_b32 v{r + 2}, 31, v{vLANE}
v_add_u32 v{r + 2}, s{sT0}, v{r + 2}
v_and_b32 v{r + 3}, {31 & ~(32 // OPT['samp'] - 1)}, v{vLANE}
v_add_u32 v{r + 3}, s{sT0}, v{r + 3}
s_lshl_b32 s13, s{sDT1}, 7
s_add_u32 s13, s13, s{sT0}
s_lshl_b32 s13, s13, 11
s_add_u32 s13, s13, {H}""")
    if wide:
        a(f"v_lshrrev_b32 v{r + 2}, 1, v{r + 2}\nv_lshrrev_b32 v{r + 3}, 1, v{r + 3}")
    a(f"""s_mov_b32 s{sCA}, {f32(c0 * 0.044715)}
s_mul_i32 s21, s{sDT1}, 112
s_lshl_b32 s{sT0}, s{sNT}, 2
s_add_u32 s21, s21, s{sT0}
s_and_b32 s{sT0}, s{sWAVE}, 2
s_add_u32 s21, s21, s{sT0}
s_lshl_b32 s21, s21, 11
s_add_u32 s21, s21, {G}""")
    gemm_reduce_prep()
    gemm_rot(32, sROT1)


def gemm1_rest(layer, wide, pre, bg, part, r, c0, ein, eout):
    if pre:
        pre()
    if part != "rest":
        for k in range(8):
            unpack(2 * k, 2 * k + 1, 20 + k)
    if part == "rest":
        poll_take(r, r + 3)
    elif emode(ein) == "M":
        l1, l2 = label("m1"), label("m2")
        a(f"s_cmp_eq_u32 s{sRL0 if wide else sRL}, 0\ns_cbranch_scc1 {l1}")
        a.wait_tag("pub")
        a(f"s_branch {l2}")
        a(f"{l1}:")
        wait_edge(ein, r, r + 2, r + 3)
        a(f"{l2}:")
    else:
        wait_edge(ein, r, r + 2, r + 3)
    stamp(f"g1_{layer} go", 63)
    prod = f"s_mul_i32 s{sT0}, s{sDT1}, 28\ns_add_u32 s{sT0}, s{sT0}, s{sNT}\ns_lshl_b32 s{sT0}, s{sT0}, 6"
    early = hinted(eout) and OPT["h_g1"] < 0
    at = {30: gemm_reduce_addr, 28: lambda: gemm_perm_get(96)}
    if early:
        assert OPT["h_g1"] in (-1, -3, -4)
        at[32 + OPT["h_g1"]] = lambda: (hint_prep(eout + 10, prod, 104), hint_put(104))
    gemm_loop(32, 64, 14, lambda ks, nb: f"a[{(ks * 2 + nb) * 4}:{(ks * 2 + nb) * 4 + 3}]", False, sentinel(ein), at=at)
    count_out(120)
    stamp(f"g1_{layer} loop", 120)
    a.begin()
    late = hinted(eout) and not early

    def pre():
        a(f"v_mov_b32 v80, {f32(c0)}")
        if late:
            hint_prep(eout + 10, prod, 72)

    def gelu(q):
        if q % 2 == 0:
            return
        half = q // 2
        if late and OPT["h_g1"] == 1 and half == 0:
            hint_put(72)
        rs = range(8 * half, 8 * half + 8, 2)
        for r in rs:
            a(f"v_pk_mul_f32 {vr(16 + r, 2)}, {vr(r, 2)}, {vr(r, 2)}")
        for r in rs:
            a(f"v_pk_fma_f32 {vr(16 + r, 2)}, {vr(16 + r, 2)}, {sp(sCA)}, {vr(80, 2)} op_sel_hi:[1,0,0]")
        for r in rs:
            a(f"v_pk_mul_f32 {vr(16 + r, 2)}, {vr(16 + r, 2)}, {vr(r, 2)}")
        for r in rs:
            a(f"v_exp_f32 v{16 + r}, v{16 + r}\nv_exp_f32 v{17 + r}, v{17 + r}")
        for r in rs:
            a(f"v_pk_add_f32 {vr(16 + r, 2)}, {vr(16 + r, 2)}, 1.0 op_sel_hi:[1,0]")
        for r in rs:
            a(f"v_rcp_f32 v{16 + r}, v{16 + r}\nv_rcp_f32 v{17 + r}, v{17 + r}")
        for r in rs:
            a(f"v_pk_mul_f32 {vr(r, 2)}, {vr(r, 2)}, {vr(16 + r, 2)}")
        for r in rs:
            a(f"v_cvt_pk_bf16_f32 v{84 + r // 2}, v{r}, v{r + 1}")
        a(f"buffer_store_dwordx4 {vr(84 + 4 * half, 4)}, v{vA0}, {srd(S_WS)}, s21 offen offset:{2048 * half} sc1", tag="pub")
        if late and OPT["h_g1"] == 2 + half:
            hint_put(72)
    gemm_reduce(pre, (lambda: hint_put(72)) if (late and OPT["h_g1"] == 0) else None, gelu, 96)
    m, rest = merge(a.end(), list(bg), 0, OPT["ev_g1"])
    a.put(m)
    if not flagged(eout):
        a.barrier()
    else:
        flag_put(eout, prod, 40, "pub")
    for g in rest:
        a.put(g)


def gemm2(layer, bg=()):
    G = G1 if layer == 0 else G3
    gemm_addr()
    a(f"""s_lshr_b32 s{sT0}, s{sWAVE}, 1
s_lshl_b32 s{sT0}, s{sT0}, 5
s_lshl_b32 s{sT1}, s{sST}, 6
s_add_u32 s50, s{sT0}, s{sT1}
s_and_b32 s{sT1}, s{sWAVE}, 1
s_lshl_b32 s{sT1}, s{sT1}, 5
s_lshl_b32 s{sT2}, s{sDT2}, 6
s_add_u32 s51, s{sT1}, s{sT2}
s_lshr_b32 s{sT2}, s50, 5
s_mul_i32 s{sT2}, s{sT2}, {BS}
s_lshl_b32 s{sT1}, s51, 6
s_add_u32 s20, s{sT2}, s{sT1}
s_add_u32 s30, s20, {X1 if layer == 0 else X3}
v_and_b32 v16, 31, v{vLANE}
v_lshrrev_b32 v17, 5, v{vLANE}
s_lshl_b32 s{sT0}, s50, 1""")
    r = 42

    def residual_issue():
        if layer == 0:
            if OPT["res4"]:
                for k in range(2):
                    a(f"buffer_load_dwordx4 {vr(20 + 4 * k, 4)}, v18, {srd(S_WS)}, s30 offen offset:{32 * k} sc1")
            else:
                for q in range(4):
                    a(f"buffer_load_dwordx2 {vr(20 + 2 * q, 2)}, v18, {srd(S_WS)}, s30 offen offset:{16 * q} sc1")
        else:
            a(f"s_mov_b32 m0, s31")
            a(f"buffer_load_dwordx4 v{vL16}, {srd(S_WS)}, s30 offen sc1 lds", res_w=["x3"])
            a(f"buffer_load_dwordx4 v{vL16}, {srd(S_WS)}, s30 offen offset:1024 sc1 lds", res_w=["x3"])

    def residual_use():
        if layer == 0:
            if OPT["res4"]:
                for k in (20, 21, 24, 25):
                    a(f"v_permlane32_swap_b32 v{k}, v{k + 2}")
            for k in range(8):
                unpack(2 * k, 2 * k + 1, 20 + k)
            for k in range(8):
                unpack(40, 41, 28 + k)
                a(f"v_pk_add_f32 {vr(2 * k, 2)}, {vr(2 * k, 2)}, v[40:41]")
        else:
            for q in range(4):
                a(f"ds_read_b64_tr_b16 {vr(20 + 2 * q, 2)}, v31 offset:{512 * q}", res_r=["x3"])
            a("v_lshlrev_b32 v40, 16, v29")
            for k in range(8):
                unpack(2 * k, 2 * k + 1, 20 + k)
                a(f"v_pk_add_f32 {vr(2 * k, 2)}, {vr(2 * k, 2)}, v[40:41] op_sel_hi:[1,0]")

    if layer == 0:
        a(f"v_lshlrev_b32 v18, 6, v16\nv_lshl_add_u32 v18, v17, {4 if OPT['res4'] else 3}, v18\nv_lshl_add_u32 v19, v17, 3, s{sT0}")
        for q in range(4):
            a(f"global_load_dwordx2 {vr(28 + 2 * q, 2)}, v19, {sp(P_B2)} offset:{16 * q}")
    else:
        a(f"""v_and_b32 v19, 3, v{vLANE}
s_lshl_b32 s31, s{sWAVE}, 11
v_lshl_add_u32 v28, v16, 1, s{sT0}
global_load_ushort v29, v28, {sp(P_B2)}
v_bfe_u32 v31, v{vLANE}, 2, 2
v_lshl_add_u32 v31, v17, 2, v31
v_lshlrev_b32 v31, 6, v31
v_bfe_u32 v30, v{vLANE}, 4, 1
v_lshl_add_u32 v31, v30, 5, v31
v_lshl_add_u32 v31, v19, 3, v31
v_add_u32 v31, s31, v31""")
    a(f"""s_mul_i32 s{sT0}, s{sDT2}, 28
s_mul_i32 s{sT1}, s{sWAVE}, 7
s_add_u32 s{sT0}, s{sT0}, s{sT1}
v_min_u32 v{r + 2}, 6, v{vLANE}
v_add_u32 v{r + 2}, s{sT0}, v{r + 2}
v_mov_b32 v{r + 3}, v{r + 2}
s_lshl_b32 s13, s{sT0}, 13
s_add_u32 s13, s13, {G}""")
    if layer == 0:
        a(f"""s_add_u32 s21, s20, {X2}
s_lshl_b32 s19, s50, 1
s_add_u32 s19, s19, {ST1}""")
    else:
        a(f"s_mul_i32 s{sT0}, s50, 896\ns_lshl_b32 s{sT1}, s51, 1\ns_add_u32 s21, s{sT0}, s{sT1}")
    gemm_reduce_prep()
    gemm_rot(28, sROT2)
    if layer == 0 and emode(4) == "C" and OPT["x2l"] == 2:
        a(f"s_mul_i32 s{sT0}, s{sWAVE}, 7\nv_min_u32 v52, 6, v{vLANE}\nv_add_u32 v52, s{sT0}, v52")
        poll_issue(19, 50)
    lskip, ljoin = label("res"), label("resj")
    a(f"s_cmp_eq_u32 s{sR1}, 0")
    a(f"s_cbranch_scc1 {lskip}")
    residual_issue()
    residual_use()
    if emode(3 + 4 * layer) == "M":
        a.wait_tag("pub")
    else:
        wait_edge(3 + 4 * layer, r, r + 2, r + 3)
    a(f"s_branch {ljoin}")
    a(f"{lskip}:")
    eln = 2 + 4 * layer
    if OPT["rese"] and hinted(eln) and OPT["h_ln"] >= 2:
        wide = OPT["ln1w"] if layer else OPT["ln0w"]
        a(f"s_lshl_b32 s{sT0}, s{sST}, {1 if wide else 2}\nv_and_b32 v48, {1 if wide else 3}, v{vLANE}\nv_add_u32 v48, s{sT0}, v48")
        poll_issue(eln + 10, 46)
        poll_take(46)
        residual_issue()
        residual_use()
        wait_edge(3 + 4 * layer, r, r + 2, r + 3)
    else:
        wait_edge(3 + 4 * layer, r, r + 2, r + 3)
        residual_issue()
        residual_use()
    a(f"{ljoin}:")
    if layer == 0 and emode(4) == "C" and OPT["x2l"] == 2:
        poll_take(50)
    at = {26: gemm_reduce_addr, 25: lambda: gemm_perm_get(88)}
    late = layer == 0 and emode(4) == "C" and OPT["x2l"] == 1
    if late:
        at[25] = lambda: (gemm_perm_get(88), a(f"v_and_b32 v98, 31, v{vLANE}"), poll_issue(19, 96))
    stamp(f"g2_{layer} go", 63)
    gemm_loop(28, 64, 10, lambda ks, nb: vr(128 + (ks * 2 + nb) * 4, 4), layer == 1, sentinel(3 + 4 * layer), lds_from=16, at=at, bg=bg)
    count_out(120)
    stamp(f"g2_{layer} loop", 120)

    def addr():
        a(f"v_and_b32 v68, 31, v{vLANE}\nv_lshrrev_b32 v69, 5, v{vLANE}")
        if layer == 0:
            a(f"""v_and_b32 v70, 15, v{vLANE}
v_lshlrev_b32 v70, 6, v70
v_lshl_add_u32 v70, v69, 4, v70
v_bfe_u32 v71, v{vLANE}, 4, 1
v_lshl_add_u32 v70, v71, 5, v70
""")
            if emode(4) == "C":
                a(f"""v_lshl_add_u32 v71, v69, 2, v71
v_lshlrev_b32 v71, 12, v71
v_and_b32 v68, 15, v{vLANE}
v_lshl_add_u32 v71, v68, 2, v71
v_mov_b32 v68, 1.0
v_cndmask_b32 v68, v68, 0, {sp(sM1)}
s_add_u32 s18, s19, 8192""")
            else:
                a(f"""v_bfe_u32 v71, v{vLANE}, 2, 2
v_lshlrev_b32 v71, 4, v71
v_bfe_u32 v68, v{vLANE}, 4, 1
v_lshl_add_u32 v71, v68, 3, v71
v_and_b32 v68, 1, v{vLANE}
v_lshl_add_u32 v71, v68, 2, v71
v_bfe_u32 v68, v{vLANE}, 1, 1
v_lshl_add_u32 v68, v69, 1, v68
v_lshl_add_u32 v71, v68, 12, v71""")
        else:
            a(f"v_mul_u32_u24 v70, 896, v68\nv_lshl_add_u32 v70, v69, 4, v70")
    prod = f"s_lshl_b32 s{sT0}, s{sDT2}, 5\ns_add_u32 s{sT0}, s{sT0}, s{sST}\ns_lshl_b32 s{sT0}, s{sT0}, 6"
    hn = layer == 0 and hinted(4)

    def pre():
        addr()
        if hn:
            hint_prep(14, prod, 80)
    gemm_reduce(pre, (lambda: hint_put(80)) if (hn and OPT["h_g2"] == 0) else None, None, 88)
    if hn and OPT["h_g2"] == 1:
        hint_put(80)
    PK = 72
    if late:
        poll_take(96)
    stamp(f"g2_{layer} red", 120)
    for half in range(2):
        b = PK + 4 * half
        for k in range(4):
            a(f"v_cvt_pk_bf16_f32 v{b + k}, v{8 * half + 2 * k}, v{8 * half + 2 * k + 1}")
        a(f"v_permlane32_swap_b32 v{b}, v{b + 2}")
        a(f"v_permlane32_swap_b32 v{b + 1}, v{b + 3}")
        if layer == 1:
            a(f"buffer_store_dwordx4 {vr(b, 4)}, v70, {srd(S_OUT)}, s21 offen offset:{32 * half} {('', 'nt', 'sc1')[OPT['ofl']]}")
    if layer == 1:
        return
    def put_x():
        for k in range(4):
            a(f"v_permlane16_swap_b32 v{PK + k}, v{PK + 4 + k}")
        for half in range(2):
            a(f"buffer_store_dwordx4 {vr(PK + 4 * half, 4)}, v70, {srd(S_WS)}, s21 offen offset:{1024 * half} sc1", tag="pub")
    put_x()
    if hn and OPT["h_g2"] == 2:
        hint_put(80)
    for k in range(8):
        a(f"v_pk_mul_f32 {vr(20 + 2 * k, 2)}, {vr(2 * k, 2)}, {vr(2 * k, 2)}")
    res = reduce32(list(range(16)) + list(range(20, 36)), 16, list(range(40, 48)))
    assert res == [0, 1, 2, 3]
    if emode(4) == "C":
        a(f"""v_permlane16_swap_b32 v0, v1
v_permlane16_swap_b32 v2, v3
v_cndmask_b32 v0, v0, v1, {sp(sM1)}
v_cndmask_b32 v2, v2, v3, {sp(sM1)}
v_cndmask_b32 v0, v0, v68, {sp(sM2)}
v_cndmask_b32 v2, v2, v68, {sp(sM2)}""")
        a(f"buffer_atomic_add_f32 v0, v71, {srd(S_WS)}, s19 offen sc1", tag="pub")
        a(f"buffer_atomic_add_f32 v2, v71, {srd(S_WS)}, s18 offen sc1", tag="pub")
    else:
        a(f"""v_cndmask_b32 v0, v0, v1, {sp(sM1)}
v_cndmask_b32 v2, v2, v3, {sp(sM1)}
v_cndmask_b32 v0, v0, v2, {sp(sM2)}""")
        a(f"buffer_atomic_add_f32 v0, v71, {srd(S_WS)}, s19 offen sc1", tag="pub")
    if hn and OPT["h_g2"] == 3:
        hint_put(80)
    stamp("g2_0 atom", 120)
    if flagged(4):
        flag_put(4, prod, 40, "pub")
    else:
        a.barrier()
    stamp("g2_0 flag", 120)


def skip_unless(role):
    l = label("skip")
    a(f"s_cmp_eq_u32 s{role}, 0")
    a(f"s_cbranch_scc1 {l}")
    return l


def dmas(n0, n1):
    return [w_dma(n, h) for n in range(n0, n1) for h in range(2)]


def tr_dma(n0, n1):
    g = []
    for n in range(n0, n1):
        g.append(w_tr(n))
        if n > n0:
            g += dmas(n + 11, n + 12)
    g += dmas(n1 + 11, n1 + 12)
    return g


def wseq():
    nB = OPT["wB"] // 2
    assert 36 <= nB <= 60
    g = dmas(0, 12) + tr_dma(0, nB - 12)
    lastT = 48 if (nB >= 48 and OPT["wT"]) else 32 + OPT["wg"]
    g += [w_tr(n) for n in range(nB - 12, lastT)]
    g.append([])
    d = nB
    for n in range(max(lastT, nB - 12), 49):
        while d < min(n + 11, 60) or (n == 48 and d < 60):
            g += dmas(d, d + 1)
            d += 1
        if n < 48:
            g.append(w_tr(n))
    return g


def wcut(n_dma):
    k = 0
    for p, g in enumerate(wseq()):
        if k == n_dma:
            return p
        k += any(i.kind == "dma" for i in g)
    return len(wseq())


def put_all(gs):
    for g in gs:
        a.put(g)


def w2_touch(r):
    return [Ins(f"v_lshlrev_b32 v{r}, 12, v{vLANE}"), Ins(f"buffer_load_dword v{r}, v{r}, {srd(S_W2)}, s{sW2O} offen")]


def upad():
    a(f"""v_mov_b32 v32, 0
v_mov_b32 v33, 0
v_mov_b32 v34, 0
v_mov_b32 v35, 0
s_and_b32 s{sT0}, s{sWAVE}, 1
s_mul_i32 s{sT0}, s{sT0}, {UST}
v_add_u32 v36, s{sT0}, v{vL16}
ds_write_b128 v36, v[32:35] offset:{UB}""")


def build():
    global RB
    if OPT["bfr"] and OPT["keepk"]:
        RB = UB
    g = OPT["wg"]
    WORDER[:] = list(range(0, g)) + list(range(32, 32 + g)) + list(range(g, 32)) + list(range(32 + g, 60))
    if OPT["w2t"]:
        WORDER[:] = list(range(60))
    cA, cP, cL, cB = wcut(OPT["wA"]), wcut(OPT["wP"]), wcut(OPT["wL"]), wseq().index([])
    cK = wcut(OPT["wK"])
    prologue()
    laux, ljoin = label("aux"), label("join")
    a(f"s_cmp_eq_u32 s{sRC}, 0")
    a(f"s_cbranch_scc1 {laux}")
    stamp("args", 2)
    xt_loads()
    kgen_table_load()
    code_warm(1)
    page_warm(88)
    w_setup()
    put_all(wseq()[:cA])
    conv_setup(0)
    stamp("start", 2)

    xt_poll_addr(63, 2)
    if sentinel(1) and OPT["x1s"]:
        a(f"""v_lshrrev_b32 v2, 3, v{vLANE}
v_mul_u32_u24 v2, {BS}, v2
v_and_b32 v3, 7, v{vLANE}
v_lshl_add_u32 v2, v3, 4, v2
s_mul_i32 s{sT0}, s{sWAVE}, {16 * BS}
s_lshl_b32 s{sT1}, s{sPAIR}, 7
s_add_u32 s{sT0}, s{sT0}, s{sT1}
s_add_u32 s{sT0}, s{sT0}, {X1}
s_add_u32 s{sT1}, s{sT0}, {8 * BS}
v_mov_b32 v4, -1
v_mov_b32 v5, -1
v_mov_b32 v6, -1
v_mov_b32 v7, -1""")
        a(f"buffer_store_dwordx4 v[4:7], v2, {srd(S_WS)}, s{sT0} offen sc1", tag="st0")
        a(f"buffer_store_dwordx4 v[4:7], v2, {srd(S_WS)}, s{sT1} offen sc1", tag="st0")
    xt_work()
    stamp("xt", 2)

    def h_flag():
        nonce_take()
        flag_put(0, sPAIR, 104, "st0")
        stamp("flag", 0)
        a(f"global_load_dwordx4 {vr(TAB, 4)}, v75, {sp(sTAB)}")
        a(f"global_load_dwordx4 {vr(TAB + 4, 4)}, v75, {sp(sTAB)} offset:16")
        a(f"global_load_dwordx2 v[0:1], v75, {sp(sTAB)} offset:32")

    def h_load():
        poll_take(64, 63)
        stamp("e1 seen", 64)
        for i in a.capture(conv_loads):
            a(re.sub(r"v\[(\d+):(\d+)\]", lambda m: f"a[{int(m.group(1)) - CS}:{int(m.group(2)) - CS}]", i.text, count=1))

    hooks = {}
    dbg = tuple((p, (lambda p=p: stamp(f"hook{p}", 65))) for p in (0, 1, 2, 5)) if OPT["stamps"] == 1 else ()
    for pos, fn in dbg + ((OPT["h_flag"], h_flag), (OPT["h_w"], lambda: KBG.extend(wseq()[cA:cK] + ([w2_touch(75)] if OPT["w2t"] else []))), (OPT["h_poll"], lambda: poll_issue(0, 64, 63)), (OPT["h_load"], h_load)):
        hooks.setdefault(pos, []).append(fn)
    assert OPT["h_flag"] <= OPT["h_w"] and OPT["h_poll"] >= 6
    kgen({k: (lambda fs=fs: [f() for f in fs]) for k, fs in hooks.items()})
    dump_lds(1)
    stamp("kgen", 21)

    def mid():
        if OPT["h_load"] < 10:
            return
        poll_take(64, 63)
        stamp("e1 seen", 0)
        conv_loads()
    wr = kexpand(mid)
    if OPT["mixpro"]:
        mv = [i for i in wr if i.kind != "dsw"]
        st = [i for i in wr if i.kind == "dsw"]
        pro = a.capture(conv_pro, 0)
        k = next(n for n, i in enumerate(pro) if i.defs & {f"v{r}" for r in range(0, 22)})
        a.put(mv)
        a.put(st[2:4])
        head, rest = merge(pro[:k], [[i] for i in st[4:6] + st[:2] + st[6:]], 0, 14)
        a.put(head)
        early = [g for g in rest if g[0].uses & {f"v{r}" for r in range(0, 22)}]
        put_all(early)
        rest = [g for g in rest if g not in early]
        k2 = next(n for n, i in enumerate(pro) if i.kind == "dsw")
        mid2, rest = merge(pro[k:k2], rest, 0, 30)
        put_all(rest)
        m3, rest = merge(mid2 + pro[k2:], wseq()[cK:cP], 50, OPT["ev_pro"])
        a.put(m3)
        put_all(rest)
        stamp("expand", 111)
    else:
        a.put(wr)
        stamp("expand")
        conv_pro(0)
    if sentinel(1) and not OPT["x1s"]:
        a(f"v_min_u32 v{cvP + 2}, 27, v{vLANE}")
        poll_issue(8, cvP)
    a.barrier()
    dump_lds(2)
    stamp("conv0 go", 111)
    put_all(conv_main(0, wseq()[cP:cL], OPT["st_conv"], OPT["ev_conv"]))
    stamp("conv0 done")
    a(f"s_branch {ljoin}")
    a(f"{laux}:")
    aux_loads()
    kgen_table_addr()
    code_warm(1)
    page_warm(88)
    w_setup()
    aux_work()
    stamp("aux e1")
    if OPT["g7"] == 1:
        lg = label("g7")
        a(f"""s_cmp_lg_u32 s{sR1}, 0
s_cbranch_scc1 {lg}
s_lshr_b32 s{sT0}, s{sX}, 2
s_sub_u32 s{sT0}, s{sJ}, s{sT0}
s_sub_u32 s{sT0}, s{sT0}, 28
s_lshl_b32 s{sT0}, s{sT0}, 3
s_add_u32 s{sT0}, s{sT0}, s{sX}
s_lshl_b32 s{sT0}, s{sT0}, 7
s_mul_i32 s{sT1}, s{sWAVE}, {512 * 3584}
s_add_u32 s{sT0}, s{sT0}, s{sT1}
s_add_u32 s{sT0}, s{sT0}, {448 * 3584}
v_mul_u32_u24 v90, 3584, v{vLANE}
v_add_u32 v90, s{sT0}, v90""")
        a(f"global_load_dword v90, v90, {sp(P_W1)}")
        a(f"{lg}:")
    if armed(0):
        lnf = label("nf")
        a(f"s_cmp_lg_u32 s{sR1}, 0\ns_cbranch_scc1 {lnf}")
        if OPT["map18"] == 1:
            a(f"s_sub_u32 s16, s{sAUX}, 4\ns_cselect_b32 s16, s{sAUX}, s16")
        else:
            a(f"s_lshr_b32 s16, s{sAUX}, 1\ns_sub_u32 s17, s{sAUX}, 4\ns_cmp_lt_u32 s{sAUX}, 8\ns_cselect_b32 s16, s16, s17")
        if sentinel(1) and not OPT["x1s"]:
            fill(X1, 17, 80, 16, 28 * 4096, "fill")
            flag_put(8, 16, 72, "fill")
        if sentinel(2) or sentinel(3):
            if sentinel(2):
                fill(H1, 16, 80, 16, 28 * 4096, "fill")
            if sentinel(3):
                fill(G1, 14, 80, 16, 28 * 4096, "fill")
            if emode(4) == "C" and not OPT["x2l"]:
                assert sentinel(2) and sentinel(3)
                fill(X2, 17, 80, 16, 28 * 4096, "fill")
            flag_put(18, 16, 72, "fill")
        a(f"{lnf}:")
    stamp("aux fill")
    if OPT["g7"] == 2:
        lg = label("g7")
        a(f"""s_cmp_lg_u32 s{sR1}, 0
s_cbranch_scc1 {lg}
s_lshr_b32 s{sT0}, s{sX}, 2
s_sub_u32 s{sT0}, s{sJ}, s{sT0}
s_sub_u32 s{sT0}, s{sT0}, 28
s_lshl_b32 s{sT0}, s{sT0}, 3
s_add_u32 s{sT0}, s{sT0}, s{sX}
s_lshl_b32 s{sT0}, s{sT0}, 7
s_mul_i32 s{sT1}, s{sWAVE}, {512 * 3584}
s_add_u32 s{sT0}, s{sT0}, s{sT1}
s_add_u32 s{sT0}, s{sT0}, {448 * 3584}
v_mul_u32_u24 v90, 3584, v{vLANE}
v_add_u32 v90, s{sT0}, v90""")
        a(f"global_load_dword v90, v90, {sp(P_W1)}")
        a(f"{lg}:")
    cX = min(wcut(64 + 2 * OPT["wg"]), cB)
    if OPT["w2t"]:
        a.put(w2_touch(75))
    n1 = 32 + OPT["wg"]
    if OPT["auxs"] == 2:
        assert OPT["wB"] == 120
        lw, lx = label("aw"), label("ax")
        a(f"s_cmp_eq_u32 s{sR1}, 0\ns_cbranch_scc1 {lw}")
        put_all(wone(0, 32, 32))
        a(f"s_branch {lx}")
        a(f"{lw}:")
        put_all(wone(32, 60, 48)[:OPT["aw"]])
        a(f"{lx}:")
    elif OPT["auxs"]:
        put_all(dmas(0, 12) + tr_dma(0, n1 - 12) + [w_tr(n) for n in range(n1 - 12, n1)])
    else:
        put_all(wseq()[:cX])
    if sentinel(1) and not OPT["x1s"]:
        a(f"v_min_u32 v62, 27, v{vLANE}")
        poll_issue(8, 60)
        poll_take(60)
    a.wait_vm0()
    stamp("aux w")
    a(f"{ljoin}:")
    for layer in range(2):
        if layer == 1:
            l = skip_unless(sRC)
            conv_setup(1)
            conv_poll1()
            stamp("conv1 ready")
            if OPT["kc_in"] and not hinted(4):
                a.wait_tag("flag")
                poll_issue(4, cvP)
                kcopies()
                poll_take(cvP)
            else:
                upad() if RB == UB else kcopies()
                conv_xearly()
                if emode(4) == "G":
                    lg = label("gt")
                    a(f"s_cmp_lg_u32 s{sR2}, 0\ns_cbranch_scc1 {lg}")
                    poll_issue(14, cvP, cvP + 3)
                    poll_take(cvP, cvP + 3)
                    a(f"{lg}:")
                    a.wait_tag("flag")
                    poll_issue(4, cvP)
                    poll_take(cvP)
                else:
                    wait_edge(4, cvP, cvP + 2, cvP + 3)
            stamp("conv1 poll")
            if emode(4) != "C":
                conv_loads()
            conv_pro(1)
            count_out(111)
            if armed(1):
                a(f"v_and_b32 v{cvP + 2}, 31, v{vLANE}")
                poll_issue(9, cvP)
            a.barrier()
            dump_lds(3)
            stamp("conv1 go", 111)
            conv_main(1)
            stamp("conv1 done")
            if armed(1):
                lj = label("cvj")
                a(f"s_branch {lj}")
                a(f"{l}:")
                a(f"v_and_b32 v62, 31, v{vLANE}")
                poll_issue(9, 60)
                poll_take(60)
                a(f"{lj}:")
            else:
                a(f"{l}:")
        wide = OPT["ln1w"] if layer else OPT["ln0w"]
        l = skip_unless(sRL0 if wide else sRL)
        ln(layer, wide)
        stamp(f"ln{layer} done")
        a(f"{l}:")
        if layer == 0:
            gemm_perm(0)
            def arm_poll(part):
                k = max(0, len(part) - 12)
                put_all(part[:k])
                if sentinel(2) or sentinel(3):
                    a(f"v_min_u32 v62, 27, v{vLANE}")
                    poll_issue(18, 60)
                if inb:
                    gemm1(0, wide, part="head")
                k2 = max(k, len(part) - OPT["inb"])
                put_all(part[k:k2])
                if inb:
                    gemm1(0, wide, part="poll")
                put_all(part[k2:])
                if sentinel(2) or sentinel(3):
                    poll_take(60)
            inb = OPT["inb"] > 0 and emode(2) == "S"
            if OPT["auxs"]:
                assert OPT["wB"] == 120 or (OPT["t2"] and OPT["wB"] >= 96)
                la, lb, lc = label("ba"), label("bb"), label("bc")
                a(f"s_cmp_eq_u32 s{sRC}, 0\ns_cbranch_scc1 {la}")
                arm_poll(wseq()[cL:cB])
                a(f"s_branch {lb}")
                a(f"{la}:")
                a(f"s_cmp_eq_u32 s{sR2}, 0\ns_cbranch_scc1 {lc}")
                nB = OPT["wB"] // 2
                put_all(wone(32, 60, 48)[OPT["aw"]:] if OPT["auxs"] == 2 else dmas(n1, n1 + 12) + (tr_dma(n1, nB - 12) if nB - 12 > n1 else []) + [w_tr(n) for n in range(max(n1, nB - 12), 48)])
                if emode(4) == "C" and OPT["x2l"] == 2:
                    a(f"s_sub_u32 s16, s{sAUX}, 4\ns_cselect_b32 s16, s{sAUX}, s16")
                    fill(X2, 17, 80, 16, 28 * 4096, "fill")
                    flag_put(19, 16, 72, "fill")
                a(f"{lc}:")
                if inb:
                    gemm1(0, wide, part="head")
                    gemm1(0, wide, part="poll")
                elif not sentinel(2):
                    arm_poll([])
                a(f"{lb}:")
            else:
                l = skip_unless(sRC)
                put_all(wseq()[cL:cX])
                a(f"{l}:")
                rest = wseq()[cX:cB]
                k = max(0, len(rest) - 12)
                put_all(rest[:k])
                if sentinel(2) or sentinel(3):
                    a(f"v_min_u32 v62, 27, v{vLANE}")
                    poll_issue(18, 60)
                put_all(rest[k:])
                if sentinel(2) or sentinel(3):
                    poll_take(60)
            stamp("w B", 63)
            tail = wseq()[cB:]
            assert not any(i.kind == "dsr" and "a[" in i.text for g in tail for i in g)
            lelse, lj = label("ng1"), label("g1j")
            a(f"s_cmp_eq_u32 s{sR1}, 0")
            a(f"s_cbranch_scc1 {lelse}")
            gemm1(0, wide, None, [] if OPT["t2"] else tail, "rest" if inb else "all")
            nonce_retire()
            stamp("g1_0 done")
            a(f"s_branch {lj}")
            a(f"{lelse}:")
            put_all([] if OPT["t2"] else wseq()[cB:])
            a(f"{lj}:")
        else:
            l = skip_unless(sR1)
            gemm1(1, wide)
            stamp("g1_1 done")
            a(f"{l}:")
        l = skip_unless(sR2)
        gemm2(layer, [g for g in wseq()[cB:] if g] if (layer == 0 and OPT["t2"]) else [])
        if layer == 0 and armed(1):
            lj = label("g2j")
            a(f"s_branch {lj}")
            a(f"{l}:")
            if OPT["map18"]:
                a(f"s_lshl_b32 s16, s{sX}, 2\ns_add_u32 s16, s16, s{sJ}")
            else:
                a(f"s_lshr_b32 s16, s{sX}, 1\ns_lshl_b32 s16, s16, 3\ns_add_u32 s16, s16, s{sJ}")
            late = emode(4) == "C" and OPT["x2l"]
            if late == 1:
                fill(X2, 15, 72, 16, CH)
                flag_put(19, 16, 8, "st0")
            for base, n, e in ((X3, 15, 5), (H3, 14, 6), (G3, 13, 7)):
                if sentinel(e):
                    fill(base, n, 72, 16, CH)
            flag_put(9, 16, 8, "st0")
            if late:
                a(f"v_and_b32 v62, 31, v{vLANE}" if late == 1 else f"v_min_u32 v62, 27, v{vLANE}")
                poll_issue(19, 60)
                poll_take(60)
            a(f"{lj}:")
        else:
            a(f"{l}:")
        stamp("g2_0 done" if layer == 0 else "end")
    if OPT["stamps"] and OPT["dbgwg"] < 0:
        l = label("ls")
        a(f"s_cmp_lg_u32 s{sWAVE}, 0\ns_cbranch_scc1 {l}\ns_waitcnt vmcnt(0)\ns_memrealtime {sp(sSTAMP)}\ns_waitcnt lgkmcnt(0)")
        a(f"s_lshl_b32 s3, s2, 8\ns_add_u32 s3, s3, {STAMPS + 248}\nv_mov_b32 v0, s101\nv_mov_b32 v1, s{sSTAMP}\ns_mov_b64 exec, 1")
        a(f"buffer_store_dwordx2 v[0:1], off, {srd(S_WS)}, s3")
        a(f"{l}:")
    if OPT["fixdur"]:
        a(f"s_waitcnt vmcnt(0) lgkmcnt(0)\nL_fix:\ns_memrealtime s[28:29]\ns_waitcnt lgkmcnt(0)\ns_sub_u32 s28, s28, s101\ns_cmp_lt_u32 s28, {OPT['fixdur']}\ns_cbranch_scc1 L_fix")
    a("s_endpgm")


def bf16_round_int(l):
    b = struct.unpack("<I", struct.pack("<f", float(l)))[0]
    b = (b + 0x7FFF + ((b >> 16) & 1)) & 0xFFFF0000
    return int(struct.unpack("<f", struct.pack("<I", b))[0])


def ktab():
    vals = []
    for c in range(2):
        for x in range(2048):
            lr = bf16_round_int(2047 - x)
            aa, rem = lr >> 7, lr & 127
            j, e = rem >> 3, rem & 7
            if aa < 2:
                rho = 8 * aa + e
            elif aa < 4:
                rho = 4 * aa + 8 + (e >> 1)
            elif aa < 8:
                rho = 16 + 2 * aa + (e >> 2)
            else:
                rho = 24 + aa
            vals.append((rho >> 2) * 256 + j * 16 + (rho & 3) * 4 + c * 2 * GST)
        vals += [3072 + c * 2 * GST] * 16
    lines = []
    for i in range(0, len(vals), 16):
        lines.append("    .short " + ", ".join(str(v) for v in vals[i:i + 16]))
    return "\n".join(lines)


DOC = """;
;   gemm1 : gelu(h^T W1 + b1), 64x64 tile per workgroup, K split over the waves, W1 tile resident in AGPRs
;   gemm2 : x + g W2 + b2, W2 tile resident in VGPRs + LDS; per-token sums for the next LayerNorm by float atomics
; Hand-offs between workgroups go through d_ws with write-through stores and L1-bypassing loads, valid for any placement:
; Every wait is bounded.  Generated by the author's own script (register allocation and schedule are explicit).
"""


def main(path):
    build()
    ins = a.finish()
    ref = open(f"cdna_kernels/{NAME}.s.ref").read().split("\n")
    head = [l for l in ref if l.startswith(";") and "@launch" not in l and not l.startswith("; Override") and not l.startswith("; grid=ceil")]
    k = NAME + "_kernel"
    s = "\n".join(head) + f"\n; @launch grid=(256,1,1) block=(256,1,1) lds={LDS_BYTES}\n"
    s += DOC
    s += f""".amdgcn_target "amdgcn-amd-amdhsa--gfx950"
.text
.globl {k}
.p2align 8
.type {k},@function
{k}:
L_entry:
"""
    s += Prog.render(ins)
    s += "".join((l if l.endswith(":") else "    " + l) + "\n" for l in STUBS)
    s += f""".p2align 6
.type ktab,@object
ktab:
{ktab()}
.size ktab, 8256
.section .rodata,"a"
.p2align 6
.amdhsa_kernel {k}
  .amdhsa_next_free_vgpr 512
  .amdhsa_next_free_sgpr 102
  .amdhsa_accum_offset 256
  .amdhsa_group_segment_fixed_size 0
  .amdhsa_kernarg_size 136
  .amdhsa_user_sgpr_count 2
  .amdhsa_user_sgpr_kernarg_segment_ptr 1
  .amdhsa_system_sgpr_workgroup_id_x 1
  .amdhsa_float_denorm_mode_32 3
.end_amdhsa_kernel
"""
    open(path, "w").write(s)
    n = sum(1 for i in ins if i.kind not in ("label", "comment"))
    open(path + ".names", "w").write("\n".join(STAMP_NAMES))
    print("instructions:", n, "nops:", sum(1 for i in ins if i.kind == "nop"), "waits:", sum(1 for i in ins if i.kind == "wait"))


if __name__ == "__main__":
    path = sys.argv[1]
    for kv in sys.argv[2:]:
        k, v = kv.split("=")
        OPT[k] = v if k in ('em', 'probe') else int(v)
    main(path)
```

```python
import sys, math, struct, re
from asmlib import *

NAME = "interleave_layers__ssm_conv_s4__mixer_token_mlp__prompt"
OPT = dict(stamps=False, stop=99, upfront=True, dump=0, dbgwg=-1, fixdur=0, em='SSSCDSS', warm=1, h_flag=2, h_w=2, h_poll=9, h_ln=2, h_cv=0, h_g1=0, h_g2=2, rot=1, wA=0, wK=8, wP=8, wL=24, wB=120, wT=1, lag=2, gap=3, st_conv=100, ev_conv=150, ev_g1=100000, fill0=14, ln1w=0, ln0w=1, chk=1, samp=8, map18=1, ofl=0, tailord=1, cv=1, clk=0, ev_kg=150, mixpro=1, now=0, probe='', kc_in=0, w2t=0, g7=0, rl=4, bfr=1, wg=4, slp=0, ev_pro=30, t2=0, bg0=0, tlb=0, rese=0, lnd=1, keepk=1, fake16=0, wnt=0, wnta=0, fnt=0, pnt=0, xnt=0, auxs=2, inb=6, x2l=2, res4=0, xe=0, cpipe=1, spl=1, h_load=99, x1s=1, aw=24)
DBG_SEL = ['start', 'kgen', 'conv0 go', 'ln0 go', 'g1_0 go', 'g1_0 loop', 'g2_0 go', 'g2_0 loop', 'conv1 poll', 'ln1 go', 'g1_1 go', 'g2_1 go', 'end']
STAMP_NAMES = []

EPOCH = 0
ST0 = 0x1000
ST1 = 0x8000
STAMPS = 0x20000
FL = 0x100000
BS = 448 * 64 + 128
CH = 0x20000
X1, H1, G1, X3, H3, G3, X2, X0 = (0x400000 + 0x200000 * i for i in range(8))
FILL1, FILL3 = 6, 36
WS_BYTES = 268435456
OOB = 0x40000000

KST = 4160
KSLOT = {0: [0, 5, 2, 3], 1: [1, 6, 7, 4]}
UB = 8 * KST
UPAD = 1024
UST = 4096 + UPAD
ZB = UB + 2 * UST
EX = 2 * KST
RB = 2 * KST
GST = 15616
GROW = 272
TOFF = 12288
LNP = 57856
PERM = 61440
W2L = 65536
LDS_BYTES = 163840

sWAVE, sX, sJ, sPAIR, sDT1, sNT, sDT2, sST, sLN = 4, 5, 6, 7, 8, 9, 10, 11, 12
sNONCE = 14
P_U, P_ARE, P_AIM, P_BRE, P_BIM, P_CRE, P_CIM, P_LDT = 16, 18, 20, 22, 24, 26, 28, 30
P_DSK, P_W1, P_B1, P_W2, P_B2, P_OUT, P_DBG, P_WS = 32, 36, 38, 40, 42, 44, 46, 48
S_WS, S_W1, S_W2, S_X0, S_OUT = 52, 56, 60, 64, 68
sD0, sD1 = 72, 74
sLDT = 76
sEP = 78
sWOFF, sT0, sT1, sT2, sT3, sCNT = 80, 81, 82, 83, 84, 85
sRC, sR1, sR2, sRL = 86, 87, 88, 89
sM1, sM2 = 90, 92
sSTAMP = 94
sTAB = 96
sLN0, sRL0 = 77, 73
sCA, sCB = 34, 100

vLANE, vL16, vT2a, vT2b, vT1a, vT1b, vD1, vD2 = 127, 126, 125, 124, 123, 122, 121, 120
vA0, vA1 = 123, 122


def srd(n):
    return f"s[{n}:{n + 3}]"


def sp(n):
    return f"s[{n}:{n + 1}]"


def vr(n, k):
    return f"v[{n}:{n + k - 1}]" if k > 1 else f"v{n}"


def f32(x):
    return "0x%08x" % struct.unpack("<I", struct.pack("<f", x))[0]


a = Prog()
_lab = [0]


def label(p):
    _lab[0] += 1
    return f"L_{p}_{_lab[0]}"


_stamp = [0]


def stamp(name, r=1):
    k = _stamp[0]
    _stamp[0] += 1
    STAMP_NAMES.append(name)
    a("; MARK after " + name)
    if OPT["probe"] == name.replace(" ", "_"):
        a(f"s_memrealtime {sp(sSTAMP)}\ns_waitcnt lgkmcnt(0)\ns_mov_b32 s101, s{sSTAMP}")
    if OPT["stamps"] != 1:
        return
    l = label("st")
    if OPT["dbgwg"] >= 0:
        if name not in DBG_SEL:
            return
        a(f"s_lshl_b32 s3, s{sWAVE}, 8\ns_add_u32 s3, s3, s2\ns_cmp_lg_u32 s3, {OPT['dbgwg']}\ns_cbranch_scc1 {l}")
        a(f"s_memrealtime {sp(sSTAMP)}")
        a("s_waitcnt lgkmcnt(0)")
        a(f"s_mov_b64 exec, 1\nv_mov_b32 v{r}, s{sSTAMP}\ns_mov_b32 s{sSTAMP}, s{P_DBG}\ns_mov_b32 s{sSTAMP + 1}, s{P_DBG + 1}\ns_mov_b32 s{sSTAMP + 2}, 256\ns_mov_b32 s{sSTAMP + 3}, 0x20000".replace(f"s{sSTAMP}, s{P_DBG}", f"s64, s{P_DBG}").replace(f"s{sSTAMP + 1}, s{P_DBG + 1}", f"s65, s{P_DBG + 1}").replace(f"s{sSTAMP + 2}, 256", "s66, 256").replace(f"s{sSTAMP + 3}, 0x20000", "s67, 0x20000"))
        a(f"buffer_store_dword v{r}, off, s[64:67], 0 offset:{12 + 4 * DBG_SEL.index(name)} sc1", optional=True)
        a("s_mov_b64 exec, -1")
        a(f"{l}:")
        return
    a(f"s_cmp_lg_u32 s{sWAVE}, 0")
    a(f"s_cbranch_scc1 {l}")
    a(f"{'s_memtime' if OPT['clk'] else 's_memrealtime'} {sp(sSTAMP)}")
    a("s_waitcnt lgkmcnt(0)")
    a(f"s_lshl_b32 s3, s2, 8")
    a(f"s_add_u32 s3, s3, {STAMPS + 4 * k}")
    a(f"v_mov_b32 v{r}, s{sSTAMP}")
    a("s_mov_b64 exec, 1")
    a(f"buffer_store_dword v{r}, off, {srd(S_WS)}, s3", optional=True)
    a("s_mov_b64 exec, -1")
    a(f"{l}:")


_cnt = [0]


def count_out(r):
    if OPT["stamps"] != 1:
        return
    k = _cnt[0]
    _cnt[0] += 1
    a(f"s_lshl_b32 s3, s2, 2\ns_add_u32 s3, s3, s{sWAVE}\ns_lshl_b32 s3, s3, 5\ns_add_u32 s3, s3, {STAMPS + 0x10000 + 4 * k}")
    a(f"v_mov_b32 v{r}, s{sCNT}\ns_mov_b64 exec, 1")
    a(f"buffer_store_dword v{r}, off, {srd(S_WS)}, s3")
    a("s_mov_b64 exec, -1")


DUMP = 0x2000000


def dump_lds(point, r=96):
    if OPT["dump"] != point:
        return
    a.barrier()
    a(f"s_lshl_b32 s3, s{sWAVE}, 10\nv_add_u32 v{r + 4}, s3, v{vL16}\ns_lshl_b32 s3, s2, 16\ns_add_u32 s3, s3, {DUMP}")
    for i in range(16):
        a(f"ds_read_b128 {vr(r, 4)}, v{r + 4} offset:{i * 4096}")
        a(f"buffer_store_dwordx4 {vr(r, 4)}, v{r + 4}, {srd(S_WS)}, s3 offen")
        a("s_add_u32 s3, s3, 4096")
        a.wait_vm0()
    a.barrier()


def cmul(d, x, y):
    return [f"v_pk_mul_f32 {vr(d, 2)}, {vr(x, 2)}, {vr(y, 2)} op_sel:[1,1] op_sel_hi:[1,0] neg_lo:[0,1]",
            f"v_pk_fma_f32 {vr(d, 2)}, {vr(x, 2)}, {vr(y, 2)}, {vr(d, 2)} op_sel_hi:[0,1,1]"]


def cmul2(p, q=None):
    x = cmul(*p)
    if q is None:
        a(x[0]); a(x[1])
        return
    y = cmul(*q)
    a(x[0]); a(y[0]); a(x[1]); a(y[1])


def unpack(dlo, dhi, s):
    a(f"v_lshlrev_b32 v{dlo}, 16, v{s}")
    a(f"v_and_b32 v{dhi}, s0, v{s}")


def prologue():
    a("s_cmp_lt_u32 s2, 256")
    a("s_cbranch_scc1 L_start")
    a("s_endpgm")
    a("L_start:")
    if OPT["fixdur"] or OPT["stamps"]:
        a("s_memrealtime s[50:51]")
    a("s_load_dwordx16 s[16:31], s[0:1], 0")
    a("s_load_dwordx16 s[32:47], s[0:1], 64")
    a("s_load_dwordx2 s[48:49], s[0:1], 128")
    a(f"v_lshrrev_b32 v1, 6, v0")
    a(f"v_and_b32 v{vLANE}, 63, v0")
    a(f"v_readfirstlane_b32 s{sWAVE}, v1")
    a(f"v_lshlrev_b32 v{vL16}, 4, v{vLANE}")
    a(f"""s_and_b32 s{sX}, s2, 7
s_lshr_b32 s{sJ}, s2, 3
s_add_u32 s{sJ}, s{sJ}, 28
s_and_b32 s{sJ}, s{sJ}, 31
""")
    a(f"""s_lshr_b32 s{sT0}, s{sX}, 2
s_mul_i32 s{sPAIR}, s{sX}, 28
s_sub_u32 s{sRC}, s{sJ}, s{sT0}
s_add_u32 s{sPAIR}, s{sPAIR}, s{sRC}
s_cmp_lt_u32 s{sRC}, 28
s_cselect_b32 s{sRC}, 1, 0
s_mul_i32 s{sT2}, s{sJ}, 37
s_lshr_b32 s{sT2}, s{sT2}, 8
s_mul_i32 s{sT3}, s{sT2}, 7
s_sub_u32 s{sDT1}, s{sJ}, s{sT3}
s_lshl_b32 s{sNT}, s{sT2}, 3
s_add_u32 s{sNT}, s{sNT}, s{sX}
s_sub_u32 s{sT1}, s{sJ}, 4
s_cselect_b32 s{sR2}, 0, 1
s_and_b32 s{sT1}, s{sT1}, 31
s_mul_i32 s{sT2}, s{sT1}, 37
s_lshr_b32 s{sT2}, s{sT2}, 8
s_mul_i32 s{sT3}, s{sT2}, 7
s_sub_u32 s{sDT2}, s{sT1}, s{sT3}
s_lshl_b32 s{sST}, s{sX}, 2
s_add_u32 s{sST}, s{sST}, s{sT2}
s_cmp_eq_u32 s{sJ}, 0
s_cselect_b32 s{sT1}, 32, s{sJ}
s_mul_i32 s{sT2}, s{sX}, 12
s_add_u32 s{sT2}, s{sT2}, s{sT1}
s_sub_u32 s{sT2}, s{sT2}, 53
s_lshl_b32 s{sT3}, s{sX}, 2
s_add_u32 s{sT3}, s{sT3}, s{sJ}
s_sub_u32 s{sT3}, s{sT3}, 28
s_cmp_lg_u32 s{sT0}, 0
s_cselect_b32 s{sT1}, s{sT1}, s{sJ}
s_cselect_b32 s{sLN0}, s{sT2}, s{sT3}
s_cselect_b32 s{sRL0}, 21, 28
s_cmp_ge_u32 s{sT1}, s{sRL0}
s_cselect_b32 s{sRL0}, 1, 0""" if OPT["map18"] == 1 else f"""s_and_b32 s{sT0}, s{sX}, 1
s_lshr_b32 s{sT1}, s{sX}, 1
s_mul_i32 s{sPAIR}, s{sX}, 28
s_sub_u32 s{sRC}, s{sJ}, s{sT0}
s_add_u32 s{sPAIR}, s{sPAIR}, s{sRC}
s_cmp_lt_u32 s{sRC}, 28
s_cselect_b32 s{sRC}, 1, 0
s_mul_i32 s{sT2}, s{sJ}, 37
s_lshr_b32 s{sT2}, s{sT2}, 8
s_mul_i32 s{sT3}, s{sT2}, 7
s_sub_u32 s{sT3}, s{sJ}, s{sT3}
s_mul_i32 s{sNT}, s{sT1}, 7
s_add_u32 s{sNT}, s{sNT}, s{sT3}
s_lshl_b32 s{sT3}, s{sT0}, 2
s_add_u32 s{sDT1}, s{sT2}, s{sT3}
s_lshl_b32 s{sST}, s{sT0}, 3
s_sub_u32 s{sST}, s{sJ}, s{sST}
s_cselect_b32 s{sR2}, 0, 1
s_lshr_b32 s{sDT2}, s{sST}, 3
s_and_b32 s{sDT2}, s{sDT2}, 3
s_add_u32 s{sDT2}, s{sDT2}, s{sT3}
s_and_b32 s{sST}, s{sST}, 7
s_lshl_b32 s{sLN0}, s{sT1}, 4
s_lshl_b32 s{sT1}, s{sT1}, 3
s_add_u32 s{sST}, s{sST}, s{sT1}
s_cmp_eq_u32 s{sJ}, 0
s_cselect_b32 s{sT1}, 32, s{sJ}
s_mul_i32 s{sT2}, s{sT0}, 11
s_add_u32 s{sT2}, s{sT2}, s{sT1}
s_cmp_lg_u32 s{sT0}, 0
s_cselect_b32 s{sT1}, s{sT1}, s{sJ}
s_cselect_b32 s{sT2}, s{sT2}, s{sJ}
s_cselect_b32 s{sRL0}, 21, 28
s_cmp_ge_u32 s{sT1}, s{sRL0}
s_cselect_b32 s{sRL0}, 1, 0
s_add_u32 s{sLN0}, s{sLN0}, s{sT2}
s_sub_u32 s{sLN0}, s{sLN0}, 28""")
    if OPT["map18"] == 2:
        a(f"""s_sub_u32 s{sT1}, s{sJ}, 4
s_cselect_b32 s{sR2}, 0, 1
s_and_b32 s{sT1}, s{sT1}, 31
s_mul_i32 s{sT2}, s{sT1}, 37
s_lshr_b32 s{sT2}, s{sT2}, 8
s_mul_i32 s{sT3}, s{sT2}, 7
s_sub_u32 s{sDT2}, s{sT1}, s{sT3}
s_lshl_b32 s{sST}, s{sX}, 2
s_add_u32 s{sST}, s{sST}, s{sT2}""")
    a(f"""s_lshl_b32 s{sLN}, s{sX}, 4
s_add_u32 s{sLN}, s{sLN}, s{sJ}
s_sub_u32 s{sLN}, s{sLN}, 8
s_mul_i32 s{sT2}, s{sT0}, 7
s_sub_u32 s{sT2}, 28, s{sT2}
s_cmp_lt_u32 s{sJ}, s{sT2}
s_cselect_b32 s{sR1}, 1, 0
s_sub_u32 s{sT2}, s{sJ}, 8
s_cmp_lt_u32 s{sT2}, 16
s_cselect_b32 s{sRL}, 1, 0
s_min_u32 s{sPAIR}, s{sPAIR}, 223
s_min_u32 s{sNT}, s{sNT}, 27
s_mov_b32 s{sM1}, 0xaaaaaaaa
s_mov_b32 s{sM1 + 1}, 0xaaaaaaaa
s_mov_b32 s{sM2}, 0xcccccccc
s_mov_b32 s{sM2 + 1}, 0xcccccccc""")
    a("s_waitcnt lgkmcnt(0)")
    if OPT["fixdur"] or OPT["stamps"]:
        a("s_mov_b32 s101, s50")
    a("s_mov_b32 s0, 0xffff0000\ns_mov_b32 s1, 0xffff")
    a(f"""s_lshl_b32 s{sT0}, s{sPAIR}, 2
s_load_dword s{sLDT}, {sp(P_LDT)}, s{sT0}
s_load_dword s{sD0}, {sp(P_DSK)}, s{sT0}""")
    kgen_loads()
    for n, p, size in ((S_X0, P_U, 1835008), (S_WS, P_WS, WS_BYTES), (S_OUT, P_OUT, 1835008)):
        a(f"s_mov_b32 s{n}, s{p}\ns_mov_b32 s{n + 1}, s{p + 1}\ns_mov_b32 s{n + 2}, {size}\ns_mov_b32 s{n + 3}, 0x20000")
    a(f"buffer_load_dwordx2 v[104:105], off, {srd(S_WS)}, 0 offset:{EPOCH} sc1")
    for n, p, role in ((S_W1, P_W1, sR1), (S_W2, P_W2, sR2)):
        a(f"s_mov_b32 s{n}, s{p}\ns_mov_b32 s{n + 1}, s{p + 1}\ns_cmp_lg_u32 s{role}, 0\ns_cselect_b32 s{n + 2}, {0 if OPT['now'] & (1 if n == S_W1 else 2) else 7340032}, 0\ns_mov_b32 s{n + 3}, 0x20000")


sAUX = 75


def code_warm(r):
    if not OPT["warm"]:
        return
    a(f"""s_lshl_b32 s{sT0}, s{sJ}, 2
s_add_u32 s{sT0}, s{sT0}, s{sWAVE}
s_mul_i32 s{sT0}, s{sT0}, 640
v_lshl_add_u32 v{r}, v{vLANE}, 7, s{sT0}
s_mov_b32 s{sT1}, ktab-L_entry+8192
v_min_u32 v{r}, s{sT1}, v{r}
s_sub_u32 s28, s{sTAB}, ktab-L_entry
s_subb_u32 s29, s{sTAB + 1}, 0
s_mov_b64 exec, 31
global_load_dword v{r}, v{r}, s[28:29]
s_mov_b64 exec, -1""")


def page_warm(r):
    if not OPT["tlb"]:
        return
    a(f"""v_lshlrev_b32 v{r}, 21, v{vLANE}
v_add_u32 v{r}, 0x1fff80, v{r}
s_mov_b64 exec, 0x3ff
buffer_load_dword v{r}, v{r}, {srd(S_WS)}, 0 offen
s_mov_b64 exec, 1
buffer_load_dword v{r + 1}, off, {srd(S_OUT)}, 0
global_load_dword v{r + 2}, v{vLANE}, {sp(P_B1)}
global_load_dword v{r + 3}, v{vLANE}, {sp(P_B2)}
s_mov_b64 exec, -1""")


def fill(base, n, r, sidx, stride, tag="st0"):
    a(f"""s_lshl_b32 s{sT0}, s{sidx}, 12
s_lshl_b32 s{sT1}, s{sWAVE}, 10
s_add_u32 s{sT0}, s{sT0}, s{sT1}
s_add_u32 s{sT0}, s{sT0}, {base}""")
    for k in range(4):
        a(f"v_mov_b32 v{r + k}, -1")
    for k in range(n):
        a(f"buffer_store_dwordx4 {vr(r, 4)}, v{vL16}, {srd(S_WS)}, s{sT0} offen sc1{' nt' if OPT['fnt'] else ''}", tag=tag)
        if k + 1 < n:
            a(f"s_add_u32 s{sT0}, s{sT0}, {stride}")


def aux_loads():
    a(f"""s_and_b32 s{sAUX}, s{sJ}, 3
s_lshl_b32 s{sAUX}, s{sAUX}, 3
s_add_u32 s{sAUX}, s{sAUX}, s{sX}
s_lshl_b32 s16, s{sAUX}, 2
s_add_u32 s16, s16, s{sWAVE}
s_mul_i32 s{sT1}, s16, {16 * 896}
s_mul_i32 s17, s{sWAVE}, {16 * 912}
s_mov_b32 m0, s17
s_mov_b32 exec_hi, 0xffffff""")
    for k in range(16):
        if k:
            a(f"s_add_u32 m0, m0, 912\ns_add_u32 s{sT1}, s{sT1}, 896")
        a(f"buffer_load_dwordx4 v{vL16}, {srd(S_X0)}, s{sT1} offen {'nt ' if OPT['xnt'] & 2 else ''}lds", res_w=[f"x0"])
    a("s_mov_b64 exec, -1")


def aux_work():
    XR = 8
    a(f"""v_mov_b32 v76, 0
v_mov_b32 v77, 0
v_mov_b32 v78, 0
v_mov_b32 v79, 0
s_lshl_b32 s{sT1}, s16, {8 if emode(4) == "C" else 7}
s_add_u32 s{sT1}, s{sT1}, {ST1}
s_lshl_b32 s18, s{sAUX}, 7
s_add_u32 s18, s18, {ST0}
s_mov_b64 exec, {"0xffff" if emode(4) == "C" else "0xff"}""")
    a(f"buffer_store_dwordx4 v[76:79], v{vL16}, {srd(S_WS)}, s{sT1} offen sc1", tag="st0")
    a(f"""s_mov_b64 exec, -1
v_and_b32 v2, 15, v{vLANE}
v_lshrrev_b32 v3, 4, v{vLANE}
v_mul_u32_u24 v4, 912, v2
v_lshl_add_u32 v4, v3, 4, v4
v_add_u32 v4, s17, v4
v_lshrrev_b32 v6, 2, v2
v_cmp_eq_u32 vcc, v6, v3
v_bfe_u32 v6, v2, 1, 2
v_lshlrev_b32 v6, 7, v6
v_lshrrev_b32 v7, 3, v2
v_lshl_add_u32 v6, v7, 4, v6
v_and_b32 v7, 1, v2
v_lshl_add_u32 v6, v7, 2, v6
s_lshl_b32 s{sT0}, s{sWAVE}, 5
s_add_u32 s{sT0}, s{sT0}, 60000
v_add_u32 v6, s{sT0}, v6
v_mov_b32 v7, 61024
v_cndmask_b32 v6, v7, v6, vcc
v_lshrrev_b32 v117, 3, v{vLANE}
v_cmp_eq_u32 vcc, s{sWAVE}, v117
v_lshlrev_b32 v117, 12, v117
v_and_b32 v7, 7, v{vLANE}
v_lshl_add_u32 v117, v7, 4, v117
v_mov_b32 v7, {OOB}
v_cndmask_b32 v117, v7, v117, vcc
v_mov_b32 v80, 0x3f803f80
v_mov_b32 v81, 0x3f803f80
v_mov_b32 v82, 0x3f803f80
v_mov_b32 v83, 0x3f803f80""")
    if OPT["stamps"] == 1:
        a.wait_vm0()
    stamp("aux data")
    for k in range(14):
        a(f"ds_read_b128 {vr(XR + 4 * k, 4)}, v4 offset:{64 * k}", res_r=["x0"])
    for k in range(14):
        x = vr(XR + 4 * k, 4)
        a(f"v_mfma_f32_16x16x32_bf16 v[64:67], v[80:83], {x}, {'v[64:67]' if k else 0}")
        a(f"v_mfma_f32_16x16x32_bf16 v[68:71], {x}, {x}, {'v[68:71]' if k else 0}")
    a(f"""v_cndmask_b32 v68, v68, v69, {sp(sM1)}
v_cndmask_b32 v70, v70, v71, {sp(sM1)}
v_cndmask_b32 v68, v68, v70, {sp(sM2)}""")
    a("ds_write2_b32 v6, v64, v68 offset0:0 offset1:2")
    a.barrier()
    a(f"ds_read_b128 v[64:67], v{vL16} offset:60000")
    a(f"buffer_store_dwordx4 v[64:67], v117, {srd(S_WS)}, s18 offen sc1", tag="st0")
    stamp("aux st")
    nonce_take()
    flag_put(0, f"s_add_u32 s{sT0}, s{sAUX}, 224\ns_lshl_b32 s{sT0}, s{sT0}, 6", 72, "st0")


def xt_loads():
    a(f"""s_lshl_b32 s{sT0}, s{sPAIR}, 1
s_lshr_b32 s{sT1}, s{sWAVE}, 1
s_add_u32 s{sT0}, s{sT0}, s{sT1}
s_mul_i32 s{sT1}, s{sT0}, 9363
s_lshr_b32 s{sT1}, s{sT1}, 16
s_mul_i32 s{sT2}, s{sT1}, 7
s_sub_u32 s{sT0}, s{sT0}, s{sT2}
s_lshl_b32 s{sT0}, s{sT0}, 1
s_and_b32 s{sT2}, s{sWAVE}, 1
s_add_u32 s{sT0}, s{sT0}, s{sT2}
s_mul_i32 s{sT2}, s{sT1}, {32 * 896}
s_lshl_b32 s{sT3}, s{sT0}, 6
s_add_u32 s{sT2}, s{sT2}, s{sT3}
v_lshrrev_b32 v2, 2, v{vLANE}
v_mul_u32_u24 v2, 896, v2
v_and_b32 v3, 3, v{vLANE}
v_lshl_add_u32 v2, v3, 4, v2
s_mul_i32 s22, s{sWAVE}, {GST}
s_mov_b32 m0, s22
s_mul_i32 s23, s{sT1}, {BS}""")
    a(f"buffer_load_dwordx4 v2, {srd(S_X0)}, s{sT2} offen {'nt ' if OPT['xnt'] & 1 else ''}lds", res_w=["x0"])
    a(f"s_add_u32 m0, m0, 1024\ns_add_u32 s{sT2}, s{sT2}, {16 * 896}")
    a(f"buffer_load_dwordx4 v2, {srd(S_X0)}, s{sT2} offen {'nt ' if OPT['xnt'] & 1 else ''}lds", res_w=["x0"])
    a(f"""s_lshl_b32 s{sT0}, s{sT0}, 11
s_add_u32 s23, s23, s{sT0}
s_add_u32 s23, s23, {X0}
v_lshrrev_b32 v2, 4, v{vLANE}
v_bfe_u32 v36, v{vLANE}, 2, 2
v_lshl_add_u32 v36, v2, 3, v36
v_lshlrev_b32 v36, 6, v36
v_lshl_add_u32 v36, v3, 3, v36
v_add_u32 v36, s22, v36
v_and_b32 v37, 15, v{vLANE}
v_lshlrev_b32 v37, 6, v37
v_lshl_add_u32 v37, v2, 4, v37""")


def xt_work():
    for u in range(2):
        for j in range(2):
            a(f"ds_read_b64_tr_b16 {vr(40 + 4 * u + 2 * j, 2)}, v36 offset:{j * 256 + u * 32}", res_r=["x0"])
    for u in range(2):
        a(f"buffer_store_dwordx4 {vr(40 + 4 * u, 4)}, v37, {srd(S_WS)}, s23 offen offset:{1024 * u} sc1", tag="st0")


def xt_poll_addr(ra, t):
    a(f"""s_lshl_b32 s{sT0}, s{sWAVE}, 4
v_and_b32 v{t}, 15, v{vLANE}
v_add_u32 v{t}, s{sT0}, v{t}
v_mul_u32_u24 v{t}, 7, v{t}
s_lshr_b32 s{sT0}, s{sPAIR}, 5
v_add_u32 v{t}, s{sT0}, v{t}
v_lshrrev_b32 v{t}, 1, v{t}
s_lshl_b32 s{sT0}, s{sWAVE}, 3
s_add_u32 s{sT0}, s{sT0}, 224
v_and_b32 v{ra}, 7, v{vLANE}
v_add_u32 v{ra}, s{sT0}, v{ra}
v_cmp_gt_u32 vcc, 16, v{vLANE}
v_cndmask_b32 v{ra}, v{ra}, v{t}, vcc""")


def e1_poll_addr(ra):
    a(f"s_lshl_b32 s{sT0}, s{sWAVE}, 6\nv_add_u32 v{ra}, s{sT0}, v{vLANE}")


def nonce_take():
    a(f"v_readfirstlane_b32 s{sNONCE}, v104\nv_readfirstlane_b32 s{sNONCE + 1}, v105")
    a(f"s_add_u32 s{sNONCE}, s{sNONCE}, 1")
    a(f"s_addc_u32 s{sNONCE + 1}, s{sNONCE + 1}, 0")


def nonce_retire():
    l = label("nr")
    a(f"s_or_b32 s{sT0}, s2, s{sWAVE}")
    a(f"s_cmp_lg_u32 s{sT0}, 32")
    a(f"s_cbranch_scc1 {l}")
    a(f"v_mov_b32 v110, s{sNONCE}\nv_mov_b32 v111, s{sNONCE + 1}\ns_mov_b64 exec, 1")
    a(f"buffer_store_dwordx2 v[110:111], off, {srd(S_WS)}, 0 offset:{EPOCH} sc1", optional=True)
    a("s_mov_b64 exec, -1")
    a(f"{l}:")


def flag_put(edge, sprod, r, tag):
    a(f"s_lshl_b32 s{sT0}, s{sprod}, 6" if isinstance(sprod, int) else sprod)
    a(f"""s_lshl_b32 s{sT1}, s{sWAVE}, 15
s_add_u32 s{sT0}, s{sT0}, s{sT1}
s_add_u32 s{sT0}, s{sT0}, {FL + edge * 0x20000}
v_lshlrev_b32 v{r + 4}, 12, v{vLANE}
v_and_b32 v{r + 4}, 0x4000, v{r + 4}
v_and_b32 v{r}, 3, v{vLANE}
v_lshl_add_u32 v{r + 4}, v{r}, 4, v{r + 4}
v_mov_b32 v{r}, s{sNONCE}
v_mov_b32 v{r + 1}, s{sNONCE + 1}
v_mov_b32 v{r + 2}, s{sNONCE}
v_mov_b32 v{r + 3}, s{sNONCE + 1}""")
    a.wait_tag(tag)
    a.barrier()
    a("s_mov_b64 exec, 0xff")
    a(f"buffer_store_dwordx4 {vr(r, 4)}, v{r + 4}, {srd(S_WS)}, s{sT0} offen sc1", tag="flag")
    a("s_mov_b64 exec, -1")


def emode(e):
    return OPT["em"][e - 1]


def hinted(e):
    return emode(e) in "HSMGC"


def sentinel(e):
    return emode(e) in "SDM"


def flagged(e):
    return emode(e) in "FHG"


def armed(layer):
    return any(sentinel(e + 4 * layer) for e in (1, 2, 3))


def wait_edge(e, r, ra_full, ra_samp):
    if hinted(e):
        poll_issue(e + 10, r, ra_samp)
        poll_take(r, ra_samp)
    elif emode(e) == "D":
        a.wait_tag("pub")
    else:
        a.wait_tag("flag")
    if flagged(e):
        poll_issue(e, r, ra_full)
        poll_take(r, ra_full)


def hint_prep(edge, sprod, r):
    a(f"s_lshl_b32 s{sT0}, s{sprod}, 6" if isinstance(sprod, int) else sprod)
    a(f"""s_lshl_b32 s{sT1}, s{sWAVE}, 15
s_add_u32 s{sT0}, s{sT0}, s{sT1}
s_add_u32 s{sT0}, s{sT0}, {FL + edge * 0x20000}
v_lshlrev_b32 v{r + 4}, 12, v{vLANE}
v_and_b32 v{r + 4}, 0x4000, v{r + 4}
v_and_b32 v{r}, 3, v{vLANE}
v_lshl_add_u32 v{r + 4}, v{r}, 4, v{r + 4}
v_add_u32 v{r + 4}, s{sT0}, v{r + 4}
v_mov_b32 v{r}, s{sNONCE}
v_mov_b32 v{r + 1}, s{sNONCE + 1}
v_mov_b32 v{r + 2}, s{sNONCE}
v_mov_b32 v{r + 3}, s{sNONCE + 1}""")


def hint_put(r):
    a("s_mov_b64 exec, 0xff")
    a(f"buffer_store_dwordx4 {vr(r, 4)}, v{r + 4}, {srd(S_WS)}, 0 offen sc1", tag="hint")
    a("s_mov_b64 exec, -1")


def poll_issue(edge, r, ra=None):
    ra = r + 2 if ra is None else ra
    a(f"""s_lshl_b32 s{sT3}, s{sX}, 14
s_add_u32 s{sT3}, s{sT3}, {FL + edge * 0x20000}
v_lshl_add_u32 v{ra}, v{ra}, 6, s{sT3}
buffer_load_dwordx2 {vr(r, 2)}, v{ra}, {srd(S_WS)}, 0 offen sc1""")


def poll_take(r, ra=None):
    ra = r + 2 if ra is None else ra
    ok, lp = label("pok"), label("plp")
    a(f"v_cmp_ne_u64 vcc, {sp(sNONCE)}, {vr(r, 2)}")
    a(f"s_cbranch_vccz {ok}")
    a(f"s_mov_b32 s{sCNT}, 0")
    a(f"{lp}:")
    if OPT["slp"]:
        a(f"s_sleep {OPT['slp']}")
    a(f"buffer_load_dwordx2 {vr(r, 2)}, v{ra}, {srd(S_WS)}, 0 offen sc1")
    a("s_waitcnt vmcnt(0)")
    a(f"v_cmp_ne_u64 vcc, {sp(sNONCE)}, {vr(r, 2)}")
    a(f"s_add_u32 s{sCNT}, s{sCNT}, 1")
    a(f"s_cbranch_vccz {ok}")
    a(f"s_cmp_lt_u32 s{sCNT}, 0x100000")
    a(f"s_cbranch_scc1 {lp}")
    a(f"{ok}:")


sW1O, sW2O = 98, 99
sROT1, sROT2 = 33, 35
sW1E, sW2E = 78, 79


def w_setup():
    a(f"""v_lshrrev_b32 v2, 3, v{vLANE}
v_and_b32 v3, 7, v{vLANE}
v_bfe_u32 v4, v{vLANE}, 4, 1
v_lshlrev_b32 v4, 2, v4
v_xor_b32 v3, v3, v4
v_lshlrev_b32 v3, 4, v3
v_mul_u32_u24 v{vD1}, 3584, v2
v_add_u32 v{vD1}, v{vD1}, v3
v_lshl_add_u32 v{vD2}, v2, 12, v3
v_bfe_u32 v2, v{vLANE}, 2, 2
v_lshrrev_b32 v3, 5, v{vLANE}
v_bfe_u32 v4, v{vLANE}, 4, 1
v_and_b32 v5, 3, v{vLANE}
v_lshlrev_b32 v5, 3, v5
v_lshl_add_u32 v5, v4, 5, v5
v_lshrrev_b32 v4, 1, v2
v_lshl_add_u32 v5, v4, 6, v5
s_lshr_b32 s{sT0}, s{sWAVE}, 1
s_lshl_b32 s{sT0}, s{sT0}, 6
v_xor_b32 v5, s{sT0}, v5
v_lshl_add_u32 v5, v2, 7, v5
s_mul_i32 s{sT1}, s{sWAVE}, 24576
s_add_u32 s{sT1}, s{sT1}, {W2L}
v_add_u32 v5, s{sT1}, v5
v_lshl_add_u32 v{vT1a}, v3, 10, v5
v_xor_b32 v{vT1b}, 64, v{vT1a}
v_lshl_add_u32 v{vT2a}, v3, 9, v5
v_xor_b32 v{vT2b}, 64, v{vT2a}
s_mul_i32 s{sW1O}, s{sWAVE}, {512 * 3584}
s_lshl_b32 s{sT0}, s{sNT}, 7
s_add_u32 s{sW1O}, s{sW1O}, s{sT0}
s_mul_i32 s{sW2O}, s{sWAVE}, {448 * 4096}
s_lshl_b32 s{sT0}, s{sST}, 7
s_add_u32 s{sW2O}, s{sW2O}, s{sT0}
s_mov_b32 s{sWOFF}, s{sT1}""")
    if OPT["rot"] and OPT["map18"] == 1:
        if OPT["rot"] == 2:
            a(f"""s_add_u32 s{sROT1}, s{sDT1}, s{sX}
s_and_b32 s{sROT1}, s{sROT1}, 7
s_add_u32 s{sROT2}, s{sDT2}, s{sX}
s_cmp_ge_u32 s{sROT2}, 7
s_cselect_b32 s{sT0}, 7, 0
s_sub_u32 s{sROT2}, s{sROT2}, s{sT0}""")
        else:
            a(f"s_mov_b32 s{sROT1}, s{sDT1}\ns_mov_b32 s{sROT2}, s{sDT2}")
    elif OPT["rot"] == 3:
        a(f"""s_and_b32 s{sT0}, s{sDT1}, 3
s_lshr_b32 s{sT1}, s{sDT1}, 2
s_add_u32 s{sT1}, s{sT1}, 2
s_mul_i32 s{sROT1}, s{sT0}, s{sT1}
s_min_u32 s{sROT1}, s{sROT1}, 7
s_and_b32 s{sT0}, s{sDT2}, 3
s_lshr_b32 s{sT1}, s{sDT2}, 2
s_add_u32 s{sT1}, s{sT1}, 2
s_mul_i32 s{sROT2}, s{sT0}, s{sT1}
s_min_u32 s{sROT2}, s{sROT2}, 5""")
    elif OPT["rot"]:
        a(f"""s_and_b32 s{sT0}, s{sDT1}, 3
s_lshl_b32 s{sT0}, s{sT0}, 1
s_lshr_b32 s{sT1}, s{sDT1}, 2
s_add_u32 s{sT0}, s{sT0}, s{sT1}
s_and_b32 s{sROT1}, s{sT0}, 7
s_and_b32 s{sT0}, s{sDT2}, 3
s_lshl_b32 s{sT0}, s{sT0}, 1
s_lshr_b32 s{sT1}, s{sDT2}, 2
s_add_u32 s{sT0}, s{sT0}, s{sT1}
s_min_u32 s{sROT2}, s{sT0}, 6""")
        if OPT["map18"] == 2:
            a(f"s_mov_b32 s{sROT2}, s{sDT2}")
    else:
        a(f"s_mov_b32 s{sROT1}, 0\ns_mov_b32 s{sROT2}, 0")
    a(f"""s_add_u32 s{sW1E}, s{sW1O}, {512 * 3584}
s_mul_i32 s{sT0}, s{sROT1}, {64 * 3584}
s_add_u32 s{sW1O}, s{sW1O}, s{sT0}
s_add_u32 s{sW2E}, s{sW2O}, {448 * 4096}
s_mul_i32 s{sT0}, s{sROT2}, {64 * 4096}
s_add_u32 s{sW2O}, s{sW2O}, s{sT0}""")


WORDER = list(range(0, 4)) + list(range(32, 36)) + list(range(4, 32)) + list(range(36, 60))


def w_dma(pos, half):
    return w_dma_n(WORDER[pos], pos % 12, half, pos)


def w_dma_n(n, slot, half, pos=99):
    pol = ("", "nt ", "sc1 ", "sc0 sc1 ", "sc0 sc1 nt ")[OPT["wnt"]] if (OPT["wnta"] or pos < 2 * OPT["wg"]) else ""
    g = [Ins(f"s_add_u32 m0, s{sWOFF}, {slot * 2048 + half * 1024}")]
    if n < 32:
        g.append(Ins(f"s_add_u32 s{sW1O}, s{sW1O}, {8 * 3584}") if (n or half) else Ins("s_nop 0"))
        if n and n % 4 == 0 and half == 0:
            g += [Ins(f"s_cmp_eq_u32 s{sW1O}, s{sW1E}"), Ins(f"s_cselect_b32 s3, {512 * 3584}, 0"), Ins(f"s_sub_u32 s{sW1O}, s{sW1O}, s3")]
        g.append(Ins(f"buffer_load_dwordx4 v{vD1}, {srd(S_W1)}, s{sW1O} offen {pol}lds", res_w=[f"slot{slot}"]))
    else:
        g.append(Ins(f"s_add_u32 s{sW2O}, s{sW2O}, {8 * 4096}") if (n > 32 or half) else Ins("s_nop 0"))
        if n > 32 and n % 4 == 0 and half == 0:
            g += [Ins(f"s_cmp_eq_u32 s{sW2O}, s{sW2E}"), Ins(f"s_cselect_b32 s3, {448 * 4096}, 0"), Ins(f"s_sub_u32 s{sW2O}, s{sW2O}, s3")]
        g.append(Ins(f"buffer_load_dwordx4 v{vD2}, {srd(S_W2)}, s{sW2O} offen {pol}lds", res_w=[f"slot{slot}"]))
    return g


def w_tr(pos):
    return w_tr_n(WORDER[pos], pos % 12)


def wone(n0, n1, nt):
    g = [w_dma_n(n, n % 12, h) for n in range(n0, n0 + 12) for h in range(2)]
    for n in range(n0, nt + 1):
        if n < nt:
            g.append(w_tr_n(n, n % 12))
        if n > n0 and n + 11 < n1:
            g += [w_dma_n(n + 11, (n + 11) % 12, h) for h in range(2)]
    return g


def w_tr_n(n, slot):
    g = []
    for nb in range(2):
        for j in range(2):
            if n < 32:
                r = (n * 2 + nb) * 4 + 2 * j
                g.append(Ins(f"ds_read_b64_tr_b16 a[{r}:{r + 1}], v{(vT1a, vT1b)[nb]} offset:{slot * 2048 + j * 512}", res_r=[f"slot{slot}"]))
            else:
                r = 128 + ((n - 32) * 2 + nb) * 4 + 2 * j
                g.append(Ins(f"ds_read_b64_tr_b16 v[{r}:{r + 1}], v{(vT2a, vT2b)[nb]} offset:{slot * 2048 + j * 1024}", res_r=[f"slot{slot}"]))
    return g


def w_all_upfront():
    for n in range(12):
        a.put(w_dma(n, 0)); a.put(w_dma(n, 1))
    for n in range(48):
        a.put(w_tr(n))
        if n >= 1:
            a.put(w_dma(n + 11, 0)); a.put(w_dma(n + 11, 1))
    a.put(w_dma(59, 0)); a.put(w_dma(59, 1))
    a.wait_vm0()
    a.wait_lgkm0()


GX = 80
CS = 64
PR = 56
TAB = 104


def kgen_loads():
    a(f"""s_lshl_b32 s{sT0}, s{sPAIR}, 10
s_lshl_b32 s{sT1}, s{sWAVE}, 8
s_add_u32 s{sT0}, s{sT0}, s{sT1}
v_lshl_add_u32 v3, v{vLANE}, 2, s{sT0}""")
    for k, p in enumerate((P_ARE, P_AIM, P_BRE, P_BIM, P_CRE, P_CIM)):
        a(f"global_load_dword v{PR + k}, v3, {sp(p)}{' nt' if OPT['pnt'] else ''}")


def kgen_table_addr():
    l = label("pc")
    a(f"s_getpc_b64 {sp(sTAB)}")
    a(f"{l}:")
    a(f"s_add_u32 s{sTAB}, s{sTAB}, ktab-{l}")
    a(f"s_addc_u32 s{sTAB + 1}, s{sTAB + 1}, 0")


def kgen_table_load():
    kgen_table_addr()
    a(f"s_lshr_b32 s{sT0}, s{sWAVE}, 1\ns_lshl_b32 s{sT0}, s{sT0}, 5\nv_lshl_add_u32 v75, v0, 5, s{sT0}")


KBG = []


def kgen(hooks):
    F = {e: 2 * e for e in range(1, 8)}
    Qr = {1: 16, 2: 18, 3: 20, 4: 22}
    QN = [24, 26]
    Z1, Z2, C0, C1 = 28, 30, 32, 34
    CN = [36, 38]
    T0, T1 = 62, 64
    CV = [66, 67, 68, 69]
    A2, B2, DT = 70, 71, 72
    ACC = 76
    QF = 88
    PF = 40
    vG, vF = 73, 74
    a(f"""s_mul_i32 s{sT0}, s{sWAVE}, {GST}
v_lshl_add_u32 v{vG}, v{vLANE}, 2, s{sT0}
v_and_b32 v2, 15, v{vLANE}
v_mul_u32_u24 v2, {GROW}, v2
v_lshrrev_b32 v3, 4, v{vLANE}
v_lshl_add_u32 v2, v3, 4, v2
v_add_u32 v{vF}, s{sT0}, v2""")
    a.begin()
    a(f"""s_lshr_b32 s{sT0}, s{sWAVE}, 1
s_lshl_b32 s{sT0}, s{sT0}, 4
s_lshr_b32 s{sT0}, s{sLDT}, s{sT0}
s_lshl_b32 s{sT0}, s{sT0}, 16
v_mov_b32 v2, {f32(math.log2(math.e))}
v_mul_f32 v2, s{sT0}, v2
v_exp_f32 v2, v2
v_cvt_pk_bf16_f32 v2, v2, v2
v_lshlrev_b32 v{DT}, 16, v2
s_and_b32 s{sD1}, s{sD0}, 0xffff0000
s_lshl_b32 s{sD0}, s{sD0}, 16""")
    cvi = [0]

    def hook(name):
        if name is not None and name not in hooks:
            return
        a_body = space_ds(a.end(), OPT["lag"], OPT["gap"])
        m, rest = merge(a_body, KBG[:], 20, OPT["ev_kg"])
        del KBG[:]
        a.put(m)
        put_all(rest)
        if name is not None:
            hooks[name]()
            a.begin()

    def row(r, src, neg=False):
        c = CV[cvi[0] % 4]
        cvi[0] += 1
        a(f"v_cvt_pk_bf16_f32 v{c}, v{src}, {'-' if neg else ''}v{src + 1}")
        a(f"ds_write_b32 v{vG}, v{c} offset:{r * GROW}")

    def reads(dst, tile):
        for ks in range(4):
            a(f"ds_read_b128 {vr(dst + 4 * ks, 4)}, v{vF} offset:{tile * 16 * GROW + ks * 64}")

    def mfmas(t, first):
        for ks in range(4):
            c = "0" if (first and ks == 0) else vr(ACC + 4 * t, 4)
            a(f"v_mfma_f32_16x16x32_bf16 {vr(ACC + 4 * t, 4)}, {vr(PF + 4 * ks, 4)}, {vr(QF + 4 * ks, 4)}, {c}")

    def direct(d, scale):
        if scale != 1:
            a(f"v_mul_f32 v{T0}, {f32(scale)}, v{A2}")
            a(f"v_mul_f32 v{T1}, {f32(scale)}, v{B2}")
            x, y = T0, T1
        else:
            x, y = A2, B2
        a(f"v_fract_f32 v{T1}, v{y}")
        a(f"v_exp_f32 v{T0}, v{x}")
        a(f"v_cos_f32 v{d}, v{T1}")
        a(f"v_sin_f32 v{d + 1}, v{T1}")
        a(f"v_pk_mul_f32 {vr(d, 2)}, {vr(d, 2)}, {vr(T0, 2)} op_sel_hi:[1,0]")

    for rd in range(2):
        def up(d, s):
            a(f"v_lshlrev_b32 v{d}, 16, v{s}" if rd == 0 else f"v_and_b32 v{d}, s0, v{s}")
        up(A2, PR); up(B2, PR + 1)
        up(QN[0], PR + 2); up(QN[0] + 1, PR + 3)
        up(QN[1], PR + 4); up(QN[1] + 1, PR + 5)
        a(f"v_mul_f32 v{A2}, v{DT}, v{A2}")
        a(f"v_mul_f32 v{B2}, v{DT}, v{B2}")
        a(f"v_pk_mul_f32 {vr(QN[0], 2)}, {vr(QN[0], 2)}, {vr(DT, 2)} op_sel_hi:[1,0]")
        a(f"v_mul_f32 v{A2}, {f32(math.log2(math.e))}, v{A2}")
        a(f"v_mul_f32 v{B2}, {f32(1 / (2 * math.pi))}, v{B2}")
        cmul2((C0, QN[1], QN[0]))
        direct(F[1], 1)
        if rd == 1:
            mfmas(2, True)
        direct(Z1, 128)
        hook(5 * rd)
        cmul2((F[2], F[1], F[1]), (Z2, Z1, Z1))
        cmul2((F[4], F[2], F[2]), (F[3], F[2], F[1]))
        cmul2((Qr[1], F[4], F[4]), (C1, C0, Z1))
        a(f"v_mov_b32 v{CV[3]}, 0x3f80")
        a(f"ds_write_b32 v{vG}, v{CV[3]}")
        cmul2((Qr[2], Qr[1], Qr[1]), (F[5], F[4], F[1]))
        row(1, Qr[1], True)
        cmul2((Qr[3], Qr[2], Qr[1]), (Qr[4], Qr[2], Qr[2]))
        row(2, Qr[2], True)
        cmul2((F[6], F[4], F[2]), (F[7], F[4], F[3]))
        row(3, Qr[3], True)
        row(4, Qr[4], True)
        cur = {1: Qr[1], 2: Qr[2], 3: Qr[3], 0: Qr[4]}
        free = list(QN) + [CN[0]]
        j = 5
        while j < 16:
            js = [j] + ([j + 1] if j + 1 < 16 else [])
            ps = []
            for jj in js:
                d = free.pop(0)
                ps.append((d, cur[jj % 4], Qr[4]))
            cmul2(*ps)
            for jj, p in zip(js, ps):
                if cur[jj % 4] != Qr[4]:
                    free.append(cur[jj % 4])
                cur[jj % 4] = p[0]
                row(jj, p[0], True)
            j += 2
        reads(QF, 0)
        hook(5 * rd + 1)
        TA, TB = QN
        row(16, C0); row(24, C1)
        for e in range(1, 8):
            cmul2((TA, C0, F[e]), (TB, C1, F[e]))
            row(16 + e, TA); row(24 + e, TB)
        reads(PF, 1)
        hook(5 * rd + 2)
        ca, cb = C0, C1
        na, nb_ = CN
        def adv():
            nonlocal ca, cb, na, nb_
            cmul2((na, ca, Z2), (nb_, cb, Z2))
            ca, cb, na, nb_ = na, nb_, ca, cb
        adv()
        row(32, ca); row(36, cb)
        for e in range(1, 4):
            cmul2((TA, ca, F[2 * e]), (TB, cb, F[2 * e]))
            row(32 + e, TA); row(36 + e, TB)
        mfmas(0, rd == 0)
        for k in range(2):
            adv()
            row(40 + 4 * k, ca); row(42 + 4 * k, cb)
            cmul2((TA, ca, F[4]), (TB, cb, F[4]))
            row(41 + 4 * k, TA); row(43 + 4 * k, TB)
        reads(PF, 2)
        hook(5 * rd + 3)
        for k in range(4):
            adv()
            row(48 + 2 * k, ca); row(49 + 2 * k, cb)
        cmul2((na, ca, Z2))
        row(56, na)
        mfmas(1, rd == 0)
        reads(PF, 3)
        hook(5 * rd + 4)
    hook(None)
    a(f"s_mul_i32 s{sT0}, s{sWAVE}, {GST}")
    a(f"v_add_u32 v{vF}, s{sT0}, v{vL16}")
    a(f"v_mov_b32 v{CV[0]}, 0")
    for k in range(8):
        a(f"v_and_b32 v{2 + 2 * k}, s1, v{TAB + k}")
        a(f"v_lshrrev_b32 v{3 + 2 * k}, 16, v{TAB + k}")
    for t in range(2):
        a(f"ds_write_b128 v{vF}, {vr(ACC + 4 * t, 4)} offset:{TOFF + t * 1024}")
    mfmas(2, False)
    a(f"ds_write_b32 v{vG}, v{CV[0]} offset:{TOFF + 3072}")
    a("v_and_b32 v18, 0xffff, v0\nv_lshrrev_b32 v19, 16, v0\nv_and_b32 v20, 0xffff, v1")
    a(f"ds_write_b128 v{vF}, {vr(ACC + 8, 4)} offset:{TOFF + 2048}")


def kzero(r):
    a(f"""v_mov_b32 v{r}, 0
v_mov_b32 v{r + 1}, 0
v_mov_b32 v{r + 2}, 0
v_mov_b32 v{r + 3}, 0
v_bfe_u32 v{r + 4}, v{vLANE}, 1, 3
v_mul_u32_u24 v{r + 4}, {KST}, v{r + 4}
v_and_b32 v{r + 5}, 1, v{vLANE}
v_lshl_add_u32 v{r + 4}, v{r + 5}, 4, v{r + 4}
s_and_b32 s{sT0}, s{sWAVE}, 1
s_mul_i32 s{sT0}, s{sT0}, {UST}
v_add_u32 v{r + 5}, s{sT0}, v{vL16}""")
    return [f"ds_write_b128 v{r + 4}, {vr(r, 4)} offset:4096", f"ds_write_b128 v{r + 5}, {vr(r, 4)} offset:{UB}"]


def kaddr(r):
    a(f"""s_lshr_b32 s{sT0}, s{sWAVE}, 1
s_and_b32 s{sT1}, s{sWAVE}, 1
s_lshl_b32 s{sT1}, s{sT1}, 11
v_lshl_add_u32 v{r + 3}, v{vLANE}, 5, s{sT1}""")
    for c in range(4):
        a(f"s_cmp_lg_u32 s{sT0}, 0")
        a(f"s_cselect_b32 s{sT2}, {KSLOT[1][c]}, {KSLOT[0][c]}")
        a(f"s_mul_i32 s{sT2}, s{sT2}, {KST}")
        a(f"v_add_u32 v{r + c}, s{sT2}, v{r + 3}")


def kexpand(mid):
    AD, VAL = 2, 22
    P0, P1, P2, P3 = 2, 12, 88, 96
    a.barrier()
    for k in range(19):
        a(f"ds_read2st64_b32 {vr(VAL + 2 * k, 2)}, v{AD + k} offset0:{TOFF // 256} offset1:{TOFF // 256 + GST // 256}")
    mid()
    kaddr(60)
    zw = kzero(104)
    if OPT["h_load"] < 10:
        for k in range(24):
            a(f"v_accvgpr_read_b32 v{CS + k}, a{k}")
    for k in range(19):
        a(f"v_add_f32 v{VAL + 2 * k}, v{VAL + 2 * k}, v{VAL + 2 * k + 1}")
        if k:
            a(f"v_cvt_pk_bf16_f32 v{(P0 if k & 1 else P1) + (k - 1) // 2}, v{VAL + 2 * k - 2}, v{VAL + 2 * k}")
    a.barrier()
    a.begin()
    for l in zw:
        a(l)
    for c, P in ((0, P0), (1, P1)):
        a(f"ds_write_b128 v{60 + c}, {vr(P, 4)}")
        a(f"ds_write_b128 v{60 + c}, {vr(P + 4, 4)} offset:16")
    for c, P, src in ((2, P2, P0), (3, P3, P1)):
        for i in range(4):
            a(f"v_pk_mov_b32 {vr(P + 2 * i, 2)}, {vr(src + 2 * i, 2)}, {vr(src + 2 * i + 2, 2)} op_sel:[1,0]")
        a(f"ds_write_b128 v{60 + c}, {vr(P, 4)}")
        a(f"ds_write_b128 v{60 + c}, {vr(P + 4, 4)} offset:16")
    return a.end()


def kcopies():
    R, E, M = 2, 12, 22
    kaddr(40)
    a(f"""ds_read_b128 {vr(R, 4)}, v40
ds_read_b128 {vr(R + 4, 4)}, v40 offset:16
ds_read_b64 {vr(R + 8, 2)}, v40 offset:32""")
    for l in kzero(32):
        a(l)
    for i in range(9):
        a(f"v_alignbit_b32 v{E + i}, v{R + i + 1}, v{R + i}, 16")
    a(f"ds_write_b128 v41, {vr(E, 4)}")
    a(f"ds_write_b128 v41, {vr(E + 4, 4)} offset:16")
    for i in range(4):
        a(f"v_pk_mov_b32 {vr(M + 2 * i, 2)}, {vr(R + 2 * i, 2)}, {vr(R + 2 * i + 2, 2)} op_sel:[1,0]")
    a(f"ds_write_b128 v42, {vr(M, 4)}")
    a(f"ds_write_b128 v42, {vr(M + 4, 4)} offset:16")
    for i in range(4):
        a(f"v_pk_mov_b32 {vr(R + 2 * i, 2)}, {vr(E + 2 * i, 2)}, {vr(E + 2 * i + 2, 2)} op_sel:[1,0]")
    a(f"ds_write_b128 v43, {vr(R, 4)}")
    a(f"ds_write_b128 v43, {vr(R + 4, 4)} offset:16")


cvA, cvB, cvZ, cvXW, cvXR, cvO, cvU, cvX, cvH, cvP = 112, 113, 114, 115, 116, 117, 118, 119, 100, 108
STUBS = []


def conv_poll1():
    r = cvP
    a(f"""v_lshrrev_b32 v{r}, 3, v{vLANE}
v_min_u32 v{r}, 6, v{r}
v_and_b32 v{r + 1}, 7, v{vLANE}
v_lshl_add_u32 v{r + 2}, v{r}, 5, v{r + 1}
s_lshl_b32 s{sT0}, s{sWAVE}, 3
v_add_u32 v{r + 2}, s{sT0}, v{r + 2}
v_and_b32 v{r + 1}, 7, v{vLANE}
v_min_u32 v{r}, 6, v{r + 1}
v_lshl_add_u32 v{r + 3}, v{r}, 5, v{r + 1}
v_add_u32 v{r + 3}, s{sT0}, v{r + 3}""")


def conv_loads():
    for p in range(4):
        a(f"buffer_load_dwordx4 {vr(CS + 4 * p, 4)}, v{vL16}, {srd(S_WS)}, s{16 + p} offen sc1")
    a(f"buffer_load_dwordx4 {vr(GX, 4)}, v{cvX}, {srd(S_WS)}, s20 offen sc1")
    a(f"buffer_load_dwordx4 {vr(GX + 4, 4)}, v{cvX}, {srd(S_WS)}, s20 offen offset:64 sc1")


CS1, GX1 = 64, 96


def conv_counted():
    XF, UF, AL, BE, UP = cXF, cUF, cAL, cBE, cUP
    again, back, stub = label("cca"), label("ccb"), label("ccs")
    xl = [f"buffer_load_dwordx4 {vr(GX1, 4)}, v{cvX}, {srd(S_WS)}, s20 offen sc1", f"buffer_load_dwordx4 {vr(GX1 + 4, 4)}, v{cvX}, {srd(S_WS)}, s20 offen offset:64 sc1"]
    a(f"s_mov_b32 s{sCNT}, 0")
    a(f"{again}:")
    for e in range(8):
        a(f"buffer_load_dwordx4 {vr(CS1 + 4 * e, 4)}, v{vL16}, {srd(S_WS)}, s{22 + e} offen sc1")
        if e == 1 and not OPT["xe"]:
            a(xl[0]); a(xl[1])

    def tok(e):
        S = CS1 + 4 * e
        a(f"v_pk_mul_f32 {vr(S, 2)}, {vr(S, 2)}, {sp(sCA)} op_sel_hi:[1,0]")
        a(f"v_fma_f32 v{S + 3}, -v{S}, v{S}, s{sCB}")
        a(f"v_add_f32 v{S + 1}, v{S + 1}, v{S + 3}")
        a(f"v_max_f32 v{S + 1}, s{sCB}, v{S + 1}")
        a(f"v_rsq_f32 v{AL + e}, v{S + 1}")
    c = [CS1 + 4 * e + 2 for e in range(8)]
    if OPT["cpipe"]:
        for p in range(4):
            tok(2 * p)
            tok(2 * p + 1)
            if p == 0:
                for k in range(8):
                    unpack(XF + 2 * k, XF + 2 * k + 1, GX1 + k)
                a(f"v_max_u32 v63, v{GX1 + 3}, v{GX1 + 7}")
                a(f"v_cmp_eq_u32 s[16:17], -1, v63")
                a(f"v_min_f32 v62, v{c[0]}, v{c[1]}")
            else:
                a(f"v_min3_f32 v62, v62, v{c[2 * p]}, v{c[2 * p + 1]}")
            if p == 3:
                a(f"v_cmp_neq_f32 vcc, {f32(14.0)}, v62")
            for e in (2 * p, 2 * p + 1):
                a(f"v_mul_f32 v{BE + e}, -v{CS1 + 4 * e}, v{AL + e}")
            for ch in range(2):
                a(f"v_pk_fma_f32 {vr(UF + 8 * ch + 2 * p, 2)}, {vr(XF + 8 * ch + 2 * p, 2)}, {vr(AL + 2 * p, 2)}, {vr(BE + 2 * p, 2)}")
            for ch in range(2):
                a(f"v_cvt_pk_bf16_f32 v{UP + 4 * ch + p}, v{UF + 8 * ch + 2 * p}, v{UF + 8 * ch + 2 * p + 1}")
    else:
        tok(0)
        tok(1)
        for k in range(8):
            unpack(XF + 2 * k, XF + 2 * k + 1, GX1 + k)
        a(f"v_max_u32 v63, v{GX1 + 3}, v{GX1 + 7}")
        a(f"v_cmp_eq_u32 s[16:17], -1, v63")
        for e in range(2, 8):
            tok(e)
        c = [CS1 + 4 * e + 2 for e in range(8)]
        a(f"v_min3_f32 v62, v{c[0]}, v{c[1]}, v{c[2]}\nv_min3_f32 v62, v62, v{c[3]}, v{c[4]}\nv_min3_f32 v62, v62, v{c[5]}, v{c[6]}\nv_min_f32 v62, v62, v{c[7]}")
        a(f"v_cmp_neq_f32 vcc, {f32(14.0)}, v62")
        for e in range(8):
            a(f"v_mul_f32 v{BE + e}, -v{CS1 + 4 * e}, v{AL + e}")
    a("s_or_b64 vcc, vcc, s[16:17]")
    a(f"s_cbranch_vccnz {stub}")
    a(f"{back}:")
    STUBS.extend([f"{stub}:", f"s_add_u32 s{sCNT}, s{sCNT}, 1", f"s_cmp_lt_u32 s{sCNT}, {RETRY}", f"s_cbranch_scc0 {back}"] + (xl + ["s_waitcnt vmcnt(0)"] if OPT["xe"] else []) + [f"s_branch {again}"])


def conv_xearly():
    if emode(4) == "C" and OPT["xe"]:
        a.wait_tag("pub")
        a(f"buffer_load_dwordx4 {vr(GX1, 4)}, v{cvX}, {srd(S_WS)}, s20 offen sc1")
        a(f"buffer_load_dwordx4 {vr(GX1 + 4, 4)}, v{cvX}, {srd(S_WS)}, s20 offen offset:64 sc1")


def conv_setup(layer):
    a(f"""s_mov_b32 s{sCA}, {f32(1.0 / 448)}
s_mov_b32 s{sCB}, {f32(1e-5)}
s_lshl_b32 s{sT0}, s{sWAVE}, 10
v_add_u32 v{cvU}, s{sT0}, v{vL16}
s_lshr_b32 s{sT0}, s{sWAVE}, 1
s_and_b32 s{sT1}, s{sWAVE}, 1
v_and_b32 v8, 15, v{vLANE}
v_lshrrev_b32 v9, 4, v{vLANE}
v_not_b32 v10, v8
v_and_b32 v10, 3, v10""")
    for s in range(4):
        a(f"s_cmp_lg_u32 s{sT0}, 0")
        a(f"s_cselect_b32 s{sT2}, {KSLOT[1][s]}, {KSLOT[0][s]}")
        a(f"s_mul_i32 s{sT2}, s{sT2}, {KST}")
        if s == 0:
            a(f"v_mov_b32 v11, s{sT2}")
        else:
            a(f"v_mov_b32 v12, s{sT2}\nv_cmp_eq_u32 vcc, {s}, v10\nv_cndmask_b32 v11, v11, v12, vcc")
    a(f"""v_add_u32 v10, v10, v8
v_lshlrev_b32 v12, 3, v9
v_sub_u32 v12, v12, v10
v_lshl_add_u32 v11, v12, 1, v11
""")
    a(f"""s_lshl_b32 s{sT3}, s{sT1}, 8
s_sub_u32 s{sT2}, {2 * 2031 - 64 * 59}, s{sT3}
v_add_u32 v{cvA}, s{sT2}, v11
s_mul_i32 s{sT2}, s{sT0}, {UST}
s_sub_u32 s{sT2}, s{sT2}, s{sT3}
s_add_u32 s{sT2}, s{sT2}, {UB + UPAD - 2 * 112}
v_lshlrev_b32 v12, 5, v8
v_lshl_add_u32 v13, v9, 4, v12
v_add_u32 v{cvB}, s{sT2}, v13
s_lshl_b32 s{sT2}, s{sWAVE}, 11
v_lshl_add_u32 v13, v9, 3, v12
v_add_u32 v{cvZ}, s{sT2}, v13
s_xor_b32 s{sT2}, s{sWAVE}, 1
s_lshl_b32 s{sT2}, s{sT2}, 12
v_add_u32 v{cvXW}, s{sT2}, v{vL16}
s_lshl_b32 s{sT2}, s{sWAVE}, 12
v_add_u32 v{cvXR}, s{sT2}, v{vL16}
v_and_b32 v10, 1, v9
v_lshlrev_b32 v10, 3, v10
v_lshrrev_b32 v11, 1, v8
v_add_u32 v10, v10, v11
v_mul_u32_u24 v10, {BS}, v10
v_and_b32 v11, 1, v8
v_lshl_add_u32 v10, v11, 5, v10
v_lshrrev_b32 v11, 1, v9
v_lshl_add_u32 v{cvO}, v11, 4, v10
s_mul_i32 s{sT1}, s{sT1}, {32 * BS}
s_lshl_b32 s{sT2}, s{sPAIR}, 1
s_add_u32 s{sT0}, s{sT0}, s{sT2}
s_lshl_b32 s{sT0}, s{sT0}, 6
s_add_u32 s{sT0}, s{sT0}, s{sT1}
s_add_u32 s13, s{sT0}, {X1 if layer == 0 else X3}
s_add_u32 s21, s13, {16 * BS}""" if OPT["cv"] else f"""v_add_u32 v{cvA}, {2 * 2031 - 64 * 63}, v11
s_mul_i32 s{sT2}, s{sT0}, {UST}
s_lshl_b32 s{sT3}, s{sT1}, 9
s_add_u32 s{sT2}, s{sT2}, s{sT3}
s_add_u32 s{sT2}, s{sT2}, {UB + UPAD - 2 * 496}
v_lshlrev_b32 v12, 5, v8
v_lshl_add_u32 v13, v9, 4, v12
v_add_u32 v{cvB}, s{sT2}, v13
s_lshl_b32 s{sT2}, s{sT0}, 12
s_add_u32 s{sT2}, s{sT2}, s{sT3}
v_lshl_add_u32 v13, v9, 3, v12
v_add_u32 v{cvZ}, s{sT2}, v13
v_and_b32 v10, 1, v9
v_lshlrev_b32 v10, 4, v10
v_lshrrev_b32 v11, 1, v8
v_add_u32 v10, v10, v11
v_mul_u32_u24 v10, {BS}, v10
v_and_b32 v11, 1, v8
v_lshl_add_u32 v10, v11, 5, v10
v_lshrrev_b32 v11, 1, v9
v_lshl_add_u32 v{cvO}, v11, 4, v10
s_mul_i32 s{sT1}, s{sT1}, {8 * BS}
s_lshl_b32 s{sT2}, s{sPAIR}, 1
s_add_u32 s{sT0}, s{sT0}, s{sT2}
s_lshl_b32 s{sT0}, s{sT0}, 6
s_add_u32 s{sT0}, s{sT0}, s{sT1}
s_add_u32 s13, s{sT0}, {X1 if layer == 0 else X3}
s_add_u32 s21, s13, {32 * BS}""")
    a(f"""s_lshl_b32 s16, s{sWAVE}, 10
s_add_u32 s16, s16, {ST0 if layer == 0 else ST1}
s_add_u32 s17, s16, 4096
s_add_u32 s18, s16, 8192
s_add_u32 s19, s16, 12288
s_mul_i32 s20, s{sWAVE}, {16 * BS}
s_lshl_b32 s{sT2}, s{sPAIR}, 7
s_add_u32 s20, s20, s{sT2}
s_add_u32 s20, s20, {X0 if layer == 0 else X2}
v_lshrrev_b32 v10, 2, v{vLANE}
v_mul_u32_u24 v10, {BS}, v10
v_and_b32 v11, 3, v{vLANE}
v_lshl_add_u32 v{cvX}, v11, 4, v10""")
    if layer == 1 and emode(4) == "C":
        for e in range(8):
            a(f"s_add_u32 s{22 + e}, s16, {4096 * e}")


cXF, cUF, cAL, cBE, cUP = 0, 16, 32, 40, 48


def conv_pro(layer):
    XF, UF, AL, BE, UP = cXF, cUF, cAL, cBE, cUP
    if layer == 1 and emode(4) == "C":
        conv_counted()
    else:
        conv_stats()
    conv_norm(layer == 1 and emode(4) == "C" and OPT["cpipe"])


def conv_stats():
    XF, UF, AL, BE, UP = cXF, cUF, cAL, cBE, cUP
    for p in range(4):
        S = CS + 4 * p
        a(f"v_pk_mul_f32 {vr(S, 2)}, {vr(S, 2)}, {sp(sCA)} op_sel_hi:[1,0]")
    for p in range(4):
        S = CS + 4 * p
        a(f"v_pk_fma_f32 {vr(BE + 2 * p, 2)}, {vr(S, 2)}, {vr(S, 2)}, {sp(sCB)} op_sel_hi:[1,1,0] neg_lo:[1,0,0] neg_hi:[1,0,0]")
    for p in range(4):
        Q = CS + 4 * p + 2
        a(f"v_pk_fma_f32 {vr(Q, 2)}, {vr(Q, 2)}, {sp(sCA)}, {vr(BE + 2 * p, 2)} op_sel_hi:[1,0,1]")
    for p in range(4):
        Q = CS + 4 * p + 2
        a(f"v_max_f32 v{Q}, s{sCB}, v{Q}\nv_max_f32 v{Q + 1}, s{sCB}, v{Q + 1}")
    for p in range(4):
        Q = CS + 4 * p + 2
        a(f"v_rsq_f32 v{AL + 2 * p}, v{Q}\nv_rsq_f32 v{AL + 2 * p + 1}, v{Q + 1}")
    for k in range(8):
        unpack(XF + 2 * k, XF + 2 * k + 1, GX + k)
    for p in range(4):
        S = CS + 4 * p
        a(f"v_pk_mul_f32 {vr(BE + 2 * p, 2)}, {vr(S, 2)}, {vr(AL + 2 * p, 2)} neg_lo:[1,0] neg_hi:[1,0]")


def conv_norm(done=False):
    XF, UF, AL, BE, UP = cXF, cUF, cAL, cBE, cUP
    for c in range(2):
        for p in range(0 if done else 4):
            a(f"v_pk_fma_f32 {vr(UF + 8 * c + 2 * p, 2)}, {vr(XF + 8 * c + 2 * p, 2)}, {vr(AL + 2 * p, 2)}, {vr(BE + 2 * p, 2)}")
        for p in range(0 if done else 4):
            a(f"v_cvt_pk_bf16_f32 v{UP + 4 * c + p}, v{UF + 8 * c + 2 * p}, v{UF + 8 * c + 2 * p + 1}")
        a(f"ds_write_b128 v{cvU}, {vr(UP + 4 * c, 4)} offset:{UB + c * UST + UPAD}")
    if OPT["cv"]:
        for i in a.capture(conv_z, 88):
            if i.kind != "dsw":
                a.put([i])


def conv_z(ZP=cXF):
    XF, UF = cXF, cUF
    for c in range(2):
        for p in range(4):
            a(f"v_pk_fma_f32 {vr(UF + 8 * c + 2 * p, 2)}, {vr(UF + 8 * c + 2 * p, 2)}, {sp((sD0, sD1)[c])}, {vr(XF + 8 * c + 2 * p, 2)} op_sel_hi:[1,0,1]")
        for p in range(4):
            a(f"v_cvt_pk_bf16_f32 v{ZP + 4 * c + p}, v{UF + 8 * c + 2 * p}, v{UF + 8 * c + 2 * p + 1}")
        a(f"ds_write_b128 v{cvU}, {vr(ZP + 4 * c, 4)} offset:{ZB + c * 4096}")


def conv_main(layer, bg=(), bg_start=0, bg_every=64):
    return (conv_main_r if OPT["cv"] else conv_main_t)(layer, bg, bg_start, bg_every)


def conv_main_r(layer, bg, bg_start, bg_every):
    ACC, BF, AR = 0, 32, 64
    NA = 6
    EX2 = ZB
    seq = [(r, q) for r in range(4) for q in range(7, -1, -1)]
    e = 1 + 4 * layer

    def rdA(i):
        r, q = seq[i]
        d = AR + 4 * (i % NA)
        off = 64 * (59 - (8 * q + r))
        return [Ins(f"ds_read_b64 {vr(d, 2)}, v{cvA} offset:{off}"), Ins(f"ds_read_b64 {vr(d + 2, 2)}, v{cvA} offset:{off + 8}")]

    def rdB(r, p):
        return [Ins(f"ds_read_b128 {vr(BF + 4 * p, 4)}, v{cvB} offset:{512 * p + 64 * (3 - r)}")]

    a.put(rdA(0)); a.put(rdB(0, 0)); a.put(rdA(1)); a.put(rdB(0, 1)); a.put(rdA(2)); a.put(rdB(0, 2)); a.put(rdA(3))
    a.put(rdB(0, 3)); a.put(rdA(4))
    for p in range(4, 8):
        a.put(rdB(0, p))
    ZR, ZF, RR = 88, 64, 32
    side = [[i] for i in a.capture(conv_z, 88) if i.kind == "dsw"]
    if hinted(e):
        side += [[i] for i in a.capture(hint_prep, e + 10, sPAIR, cvH)]
    late = [[Ins("s_barrier")]] + [[Ins(f"ds_read_b64 {vr(ZR + 2 * i, 2)}, v{cvZ} offset:{ZB + i * 512}")] for i in range(4)]
    late2 = [[Ins("s_barrier")]]
    a.begin()
    started = set()
    for i, (r, q) in enumerate(seq):
        if hinted(e) and OPT["h_cv"] < 0 and i == 32 + OPT["h_cv"]:
            hint_put(cvH)
        ps = list(range(8 - q))
        for p in ps:
            b = q + p
            c = vr(ACC + 4 * b, 4) if b in started else "0"
            started.add(b)
            a(f"v_mfma_f32_16x16x32_bf16 {vr(ACC + 4 * b, 4)}, {vr(AR + 4 * (i % NA), 4)}, {vr(BF + 4 * p, 4)}, {c}")
            if p == 0 and i + NA - 1 < len(seq):
                a.put(rdA(i + NA - 1))
            elif 1 <= q <= 4 and p >= 1:
                for lst, r0 in ((side, 0), (late, 2), (late2, 3)):
                    if lst and r >= r0:
                        a.put(lst.pop(0))
                        break
            if q == 0 and r < 3:
                a.put(rdB(r + 1, p))
    assert not side and not late and not late2
    m, rest = merge(a.end(), list(bg), bg_start, bg_every)
    a.put(m)
    stamp(f"conv{layer} loop", 111)
    if hinted(e) and OPT["h_cv"] == 0:
        hint_put(cvH)
    for k in range(8):
        unpack(ZF + 2 * k, ZF + 2 * k + 1, ZR + k)
    l1, l2 = label("cx"), label("cy")
    a(f"s_bitcmp1_b32 s{sWAVE}, 0")
    a(f"s_cbranch_scc1 {l1}")
    for h in range(2):
        for i in range(4):
            a(f"ds_write_b128 v{cvXW}, {vr(ACC + 16 * (1 - h) + 4 * i, 4)} offset:{EX2 + i * 1024}")
            for k in range(2):
                a(f"v_pk_add_f32 {vr(ZF + 4 * i + 2 * k, 2)}, {vr(ZF + 4 * i + 2 * k, 2)}, {vr(ACC + 16 * h + 4 * i + 2 * k, 2)}")
        if h == 0:
            a(f"s_branch {l2}")
            a(f"{l1}:")
    a(f"{l2}:")
    if (armed(1) if layer else (sentinel(1) and not OPT["x1s"])):
        poll_take(cvP)
    a.barrier()
    if hinted(e) and OPT["h_cv"] == 1:
        hint_put(cvH)
    for i in range(4):
        a(f"ds_read_b128 {vr(RR + 4 * i, 4)}, v{cvXR} offset:{EX2 + i * 1024}")
    PK = 56
    for i in range(4):
        for k in range(2):
            a(f"v_pk_add_f32 {vr(ZF + 4 * i + 2 * k, 2)}, {vr(ZF + 4 * i + 2 * k, 2)}, {vr(RR + 4 * i + 2 * k, 2)}")
        for k in range(2):
            a(f"v_cvt_pk_bf16_f32 v{PK + 2 * i + k}, v{ZF + 4 * i + 2 * k}, v{ZF + 4 * i + 2 * k + 1}")
        if i & 1:
            b = PK + 2 * (i - 1)
            a(f"v_permlane16_swap_b32 v{b}, v{b + 2}")
            a(f"v_permlane16_swap_b32 v{b + 1}, v{b + 3}")
            a(f"buffer_store_dwordx4 {vr(b, 4)}, v{cvO}, {srd(S_WS)}, s{21 if i == 3 else 13} offen sc1", tag="pub")
    if hinted(e) and OPT["h_cv"] == 2:
        hint_put(cvH)
    if not flagged(e):
        a.barrier()
    else:
        flag_put(1 + 4 * layer, sPAIR, 40, "pub")
    return rest


def conv_main_t(layer, bg, bg_start, bg_every):
    ACC, BF, AR = 84, 32, 64
    NA = 5
    QORD = (7, 5, 6, 3, 4, 2, 1, 0)
    seq = [(r, q) for r in range(8) for q in QORD]
    e = 1 + 4 * layer

    def rdA(i):
        r, q = seq[i]
        d = AR + 4 * (i % NA)
        off = 64 * (63 - (8 * q + r))
        return [Ins(f"ds_read_b64 {vr(d, 2)}, v{cvA} offset:{off}"), Ins(f"ds_read_b64 {vr(d + 2, 2)}, v{cvA} offset:{off + 8}")]

    def rdB(r, p):
        return [Ins(f"ds_read_b128 {vr(BF + 4 * (p + 1), 4)}, v{cvB} offset:{512 * (p + 1) + 64 * (7 - r)}")]

    a.put(rdA(0)); a.put(rdB(0, -1)); a.put(rdA(1)); a.put(rdB(0, 1)); a.put(rdA(2)); a.put(rdB(0, 0)); a.put(rdA(3))
    for p in (3, 2, 4, 5, 6):
        a.put(rdB(0, p))
    ZR, ZF = 16, 0
    side = [[i] for i in a.capture(conv_z)]
    if hinted(e):
        side += [[i] for i in a.capture(hint_prep, e + 10, sPAIR, cvH)]
    late = [[Ins("s_barrier")]] + [[Ins(f"ds_read_b64 {vr(ZR + 2 * i, 2)}, v{cvZ} offset:{ZB + i * 1024}")] for i in range(4)]
    late2 = [[i] for k in range(8) for i in a.capture(unpack, ZF + 2 * k, ZF + 2 * k + 1, ZR + k)]
    a.begin()
    started = set()
    n = 0
    for i, (r, q) in enumerate(seq):
        if hinted(e) and OPT["h_cv"] < 0 and i == 64 + OPT["h_cv"]:
            hint_put(cvH)
        first = True
        for t in range(q // 2, 4):
            p = 2 * t - q
            c = vr(ACC + 4 * t, 4) if t in started else "0"
            started.add(t)
            a(f"v_mfma_f32_16x16x32_bf16 {vr(ACC + 4 * t, 4)}, {vr(AR + 4 * (i % NA), 4)}, {vr(BF + 4 * (p + 1), 4)}, {c}")
            n += 1
            if first and i + 4 < len(seq):
                a.put(rdA(i + 4))
            elif q >= 2:
                for lst, r0 in ((side, 0), (late, 4), (late2, 5)):
                    if lst and r >= r0:
                        a.put(lst.pop(0))
                        if lst is side and lst:
                            a.put(lst.pop(0))
                        break
            first = False
            if q <= 1 and r < 7:
                a.put(rdB(r + 1, p))
    assert not side and not late and not late2
    m, rest = merge(a.end(), list(bg), bg_start, bg_every)
    a.put(m)
    stamp(f"conv{layer} loop", 111)
    if (armed(1) if layer else (sentinel(1) and not OPT["x1s"])):
        poll_take(cvP)
    if hinted(e) and OPT["h_cv"] == 0:
        hint_put(cvH)
    PK = 24
    for i in range(4):
        for k in range(2):
            a(f"v_pk_add_f32 {vr(ZF + 4 * i + 2 * k, 2)}, {vr(ZF + 4 * i + 2 * k, 2)}, {vr(ACC + 4 * i + 2 * k, 2)}")
        for k in range(2):
            a(f"v_cvt_pk_bf16_f32 v{PK + 2 * i + k}, v{ZF + 4 * i + 2 * k}, v{ZF + 4 * i + 2 * k + 1}")
        if i & 1:
            b = PK + 2 * (i - 1)
            a(f"v_permlane16_swap_b32 v{b}, v{b + 2}")
            a(f"v_permlane16_swap_b32 v{b + 1}, v{b + 3}")
            a(f"buffer_store_dwordx4 {vr(b, 4)}, v{cvO}, {srd(S_WS)}, s{21 if i == 3 else 13} offen sc1", tag="pub")
    if hinted(e) and OPT["h_cv"] > 0:
        hint_put(cvH)
    if not flagged(e):
        a.barrier()
    else:
        flag_put(1 + 4 * layer, sPAIR, 40, "pub")
    return rest


def reduce32(V, n, W):
    for i in range(n):
        a(f"v_permlane16_swap_b32 v{V[i]}, v{V[n + i]}")
    for i in range(n):
        a(f"v_add_f32 v{V[i]}, v{V[i]}, v{V[n + i]}")
    h = n // 2
    for i in range(h):
        a(f"v_add_f32_dpp v{W[i]}, v{V[i]}, v{V[i]} row_ror:8 row_mask:0xf bank_mask:0x3")
    for i in range(h):
        a(f"v_add_f32_dpp v{W[i]}, v{V[i + h]}, v{V[i + h]} row_ror:8 row_mask:0xf bank_mask:0xc")
    g = h // 2
    for i in range(g):
        a(f"v_add_f32_dpp v{V[i]}, v{W[i]}, v{W[i]} row_half_mirror row_mask:0xf bank_mask:0x5")
    for i in range(g):
        a(f"v_add_f32_dpp v{V[i]}, v{W[i + g]}, v{W[i + g]} row_half_mirror row_mask:0xf bank_mask:0xa")
    for m in ("[1,0,3,2]", "[2,3,0,1]"):
        for i in range(g):
            a(f"v_add_f32_dpp v{V[i]}, v{V[i]}, v{V[i]} quad_perm:{m} row_mask:0xf bank_mask:0xf")
    return V[:g]


def maxchain(t, regs):
    regs = list(regs)
    if OPT["chk"] == 1:
        regs = regs[3::4]
    if len(regs) == 2:
        return [f"v_max_u32 v{t}, v{regs[0]}, v{regs[1]}"]
    out = [f"v_max3_u32 v{t}, v{regs[0]}, v{regs[1]}, v{regs[2]}"]
    regs = regs[3:]
    while len(regs) >= 2:
        out.append(f"v_max3_u32 v{t}, v{t}, v{regs[0]}, v{regs[1]}")
        regs = regs[2:]
    if regs:
        out.append(f"v_max_u32 v{t}, v{t}, v{regs[0]}")
    return out


RETRY = 0x10000


def ln(layer, wide):
    X = X1 if layer == 0 else X3
    H = H1 if layer == 0 else H3
    nf = 7 if wide else 4
    sI = sLN0 if wide else sLN
    RAW, XF, S, Q, W = 0, 28, 84, 92, 100
    vO, vPW, vPR, vAW, vAR, r, hr = 109, 110, 111, 112, 117, 114, 104
    vX, vS = 64, 68
    a(f"""s_mul_i32 s{sT0}, s{sWAVE}, 56
v_min_u32 v{r + 2}, 55, v{vLANE}""")
    a(f"v_add_u32 v{r + 2}, s{sT0}, v{r + 2}")
    a(f"v_and_b32 v118, {OPT['samp'] - 1}, v{vLANE}\nv_mul_u32_u24 v118, {56 // OPT['samp']}, v118\nv_add_u32 v118, s{sT0}, v118")
    ein, eout = 1 + 4 * layer, 2 + 4 * layer
    if OPT["lnd"] and emode(ein) == "D":
        a.wait_tag("pub")
    if wide:
        a(f"""s_mul_i32 s16, s{sI}, {BS}
s_lshl_b32 s{sT2}, s{sI}, 12""")
    else:
        a(f"""s_lshr_b32 s16, s{sI}, 1
s_mul_i32 s16, s16, {BS}
s_and_b32 s{sT0}, s{sI}, 1
s_lshl_b32 s{sT0}, s{sT0}, 5
s_add_u32 s16, s16, s{sT0}
s_lshl_b32 s{sT2}, s{sI}, 11""")
    a(f"""s_mul_i32 s{sT0}, s{sWAVE}, 7168
s_add_u32 s16, s16, s{sT0}
s_add_u32 s16, s16, {X}
s_add_u32 s17, s16, 4096
s_add_u32 s{sT2}, s{sT2}, {H}
s_mul_i32 s30, s{sWAVE}, 7""")
    if wide:
        for i in range(nf):
            a(f"""s_add_u32 s{sT0}, s30, {i}
s_lshr_b32 s{sT1}, s{sT0}, 2
s_lshl_b32 s{sT1}, s{sT1}, 18
s_add_u32 s{23 + i}, s{sT1}, s{sT2}
s_and_b32 s{sT1}, s{sT0}, 2
s_lshl_b32 s{sT1}, s{sT1}, 9
s_add_u32 s{23 + i}, s{23 + i}, s{sT1}
s_and_b32 s{sT1}, s{sT0}, 1
s_lshl_b32 s{sT1}, s{sT1}, 8
s_add_u32 s{23 + i}, s{23 + i}, s{sT1}""")
        a(f"""v_lshrrev_b32 v1, 2, v{vLANE}
v_lshlrev_b32 v{vO}, 4, v1
v_and_b32 v2, 1, v{vLANE}
v_lshl_add_u32 v{vO}, v2, 9, v{vO}
v_bfe_u32 v2, v{vLANE}, 1, 1
v_lshl_add_u32 v{vO}, v2, 11, v{vO}
v_and_b32 v1, 7, v1
v_and_b32 v2, 3, v{vLANE}
v_lshl_add_u32 v1, v2, 3, v1""")
    else:
        a(f"""v_lshrrev_b32 v1, 1, v{vLANE}
v_and_b32 v2, 1, v{vLANE}
v_lshlrev_b32 v{vX}, 6, v1
v_lshl_add_u32 v{vX}, v2, 4, v{vX}
v_mov_b32 v3, {OOB}
v_cmp_gt_u32 vcc, 32, v{vLANE}
v_cndmask_b32 v{vX + 1}, v3, v{vX}, vcc
s_lshl_b32 s30, s30, 4
s_mov_b32 s23, s{sT2}""")
        for i in range(nf):
            a(f"""v_add_u32 v4, s30, v1
v_lshrrev_b32 v5, 6, v4
v_lshlrev_b32 v5, 18, v5
v_bfe_u32 v6, v4, 5, 1
v_lshl_add_u32 v5, v6, 10, v5
v_and_b32 v6, 31, v4
v_lshl_add_u32 v5, v6, 4, v5
v_lshl_add_u32 v{vS + i}, v2, 9, v5""")
            if i < 3:
                a("s_add_u32 s30, s30, 32")
        a(f"""v_cndmask_b32 v{vS + 3}, v3, v{vS + 3}, vcc
v_bfe_u32 v1, v{vLANE}, 2, 3
v_lshl_add_u32 v1, v2, 3, v1""")
    a(f"""v_lshrrev_b32 v3, 5, v{vLANE}
v_lshl_add_u32 v1, v3, 5, v1
s_lshl_b32 s{sT1}, s{sWAVE}, 8
s_add_u32 s{sT1}, s{sT1}, {LNP}
v_lshl_add_u32 v{vPW}, v1, 2, s{sT1}
v_and_b32 v1, 31, v{vLANE}
v_lshlrev_b32 v{vPR}, 2, v1
v_add_u32 v{vPR}, {LNP}, v{vPR}
s_add_u32 s{sT1}, s{sT1}, 1024
v_lshl_add_u32 v{vAW}, v{vLANE}, 2, s{sT1}
v_lshl_add_u32 v{vAR}, v2, 5, s{sT1}
s_mov_b32 s18, 0
s_mov_b32 s19, -1""")
    prod = f"s_lshl_b32 s{sT0}, s{sI}, 6"
    if hinted(eout):
        hint_prep(eout + 10, prod, hr)
    arm = layer == 0 and sentinel(2)
    if arm:
        a(f"v_min_u32 v102, 27, v{vLANE}")
        poll_issue(18, 100)
    own = layer == 0 and sentinel(1) and OPT["x1s"]
    if own:
        poll_issue(0, 98, r + 2)
    wait_edge(ein, r, r + 2, 118)
    if arm:
        poll_take(100)
    if own:
        poll_take(98, r + 2)
    stamp(f"ln{layer} go")

    def loads():
        if not wide:
            return [f"buffer_load_dwordx4 {vr(RAW + 4 * i, 4)}, v{vX + (i == 3)}, {srd(S_WS)}, s{16 + i // 2} offen offset:{2048 * (i % 2)} sc1" for i in range(nf)]
        return [f"buffer_load_dwordx4 {vr(RAW + 4 * i, 4)}, v{vL16}, {srd(S_WS)}, s{16 + i // 4} offen offset:{1024 * (i % 4)} sc1" for i in range(nf)]
    again, back, stub = label("lna"), label("lnb"), label("lns")
    if sentinel(ein):
        a(f"s_mov_b32 s{sCNT}, 0")
        a(f"{again}:")
    for l in loads():
        a(l)
    if hinted(eout) and OPT["h_ln"] == 0:
        a.wait_vm0()
        hint_put(hr)
    if OPT["stamps"] == 1:
        a.wait_vm0()
    count_out(113)
    stamp(f"ln{layer} data", 113)
    for i in range(nf):
        for k in range(4):
            unpack(XF + 8 * i + 2 * k, XF + 8 * i + 2 * k + 1, RAW + 4 * i + k)
        for k in range(4):
            x = vr(XF + 8 * i + 2 * k, 2)
            if i == 0:
                a(f"v_pk_mul_f32 {vr(Q + 2 * k, 2)}, {x}, {x}")
            else:
                a(f"v_pk_fma_f32 {vr(Q + 2 * k, 2)}, {x}, {x}, {vr(Q + 2 * k, 2)}")
                a(f"v_pk_add_f32 {vr(S + 2 * k, 2)}, {vr(XF + 2 * k, 2) if i == 1 else vr(S + 2 * k, 2)}, {x}")
    if sentinel(ein):
        for l in maxchain(113, range(RAW, RAW + 4 * nf)) + ["v_cmp_eq_u32 vcc, -1, v113"]:
            a(l)
        STUBS.extend([f"{stub}:", f"s_add_u32 s{sCNT}, s{sCNT}, 1", f"s_cmp_lt_u32 s{sCNT}, {RETRY}", f"s_cbranch_scc1 {again}", f"s_branch {back}"])
    if hinted(eout) and OPT["h_ln"] == 1:
        hint_put(hr)
    for i in range(8):
        a(f"v_permlane32_swap_b32 v{S + i}, v{Q + i}")
        if i == 1 and sentinel(ein):
            a(f"s_cbranch_vccnz {stub}")
            a(f"{back}:")
    for i in range(0, 8, 2):
        a(f"v_pk_add_f32 {vr(S + i, 2)}, {vr(S + i, 2)}, {vr(Q + i, 2)}")
    for i in range(4):
        a(f"v_permlane16_swap_b32 v{S + i}, v{S + 4 + i}")
    for i in range(0, 4, 2):
        a(f"v_pk_add_f32 {vr(S + i, 2)}, {vr(S + i, 2)}, {vr(S + 4 + i, 2)}")
    for i in range(2):
        a(f"v_add_f32_dpp v{W + i}, v{S + i}, v{S + i} row_ror:8 row_mask:0xf bank_mask:0x3")
    for i in range(2):
        a(f"v_add_f32_dpp v{W + i}, v{S + 2 + i}, v{S + 2 + i} row_ror:8 row_mask:0xf bank_mask:0xc")
    a(f"v_add_f32_dpp v{S}, v{W}, v{W} row_shl:4 row_mask:0xf bank_mask:0x5")
    a(f"v_add_f32_dpp v{S}, v{W + 1}, v{W + 1} row_shr:4 row_mask:0xf bank_mask:0xa")
    if not wide:
        a(f"v_add_f32_dpp v{S}, v{S}, v{S} quad_perm:[2,3,0,1] row_mask:0xf bank_mask:0xf")
    a(f"ds_write_b32 v{vPW}, v{S}")
    a.barrier()
    if hinted(eout) and OPT["h_ln"] == 2:
        hint_put(hr)
    stamp(f"ln{layer} bar", 113)
    T = 0
    for w in range(4):
        a(f"ds_read2_b32 {vr(T + 2 * w, 2)}, v{vPR} offset0:{w * 64} offset1:{w * 64 + 32}")
    a(f"""v_pk_add_f32 {vr(T, 2)}, {vr(T, 2)}, {vr(T + 2, 2)}
v_pk_add_f32 {vr(T + 4, 2)}, {vr(T + 4, 2)}, {vr(T + 6, 2)}
v_pk_add_f32 {vr(T, 2)}, {vr(T, 2)}, {vr(T + 4, 2)}
v_mul_f32 v{T}, {f32(1 / 448)}, v{T}
v_mul_f32 v{T + 1}, {f32(1 / 448)}, v{T + 1}
v_fma_f32 v{T + 1}, -v{T}, v{T}, v{T + 1}
v_max_f32 v{T + 1}, 0, v{T + 1}
v_add_f32 v{T + 2}, {f32(1e-5)}, v{T + 1}
v_fmamk_f32 v{T + 2}, v{T + 2}, {f32(1e-5)}, v{T + 1}
v_rsq_f32 v{T + 2}, v{T + 2}
v_mul_f32 v{T + 3}, -v{T}, v{T + 2}
v_cndmask_b32 v{T + 2}, v{T + 2}, v{T + 3}, s[18:19]
ds_write_b32 v{vAW}, v{T + 2}""")
    AL, BE = S, Q
    done_hint = []
    a(f"""ds_read_b128 {vr(AL, 4)}, v{vAR}
ds_read_b128 {vr(BE, 4)}, v{vAR} offset:128
ds_read_b128 {vr(AL + 4, 4)}, v{vAR} offset:16
ds_read_b128 {vr(BE + 4, 4)}, v{vAR} offset:144""")
    for i in range(nf):
        for k in range(4):
            x = vr(XF + 8 * i + 2 * k, 2)
            a(f"v_pk_fma_f32 {x}, {x}, {vr(AL + 2 * k, 2)}, {vr(BE + 2 * k, 2)}")
        for k in range(4):
            a(f"v_cvt_pk_bf16_f32 v{RAW + 4 * i + k}, v{XF + 8 * i + 2 * k}, v{XF + 8 * i + 2 * k + 1}")
        a(f"buffer_store_dwordx4 {vr(RAW + 4 * i, 4)}, v{vO if wide else vS + i}, {srd(S_WS)}, s{23 + i if wide else 23} offen sc1", tag="pub")
        if hinted(eout) and OPT["h_ln"] - 3 == min(i, 6) * (4 if nf == 7 else 4) // (nf + 1):
            if not done_hint:
                hint_put(hr)
                done_hint.append(1)
    stamp(f"ln{layer} st", 113)
    if flagged(eout):
        flag_put(eout, prod, 100, "pub")


def gemm_addr():
    a(f"""s_and_b32 s{sT0}, s{sWAVE}, 1
s_lshl_b32 s{sT0}, s{sT0}, 10
v_add_u32 v{vA0}, s{sT0}, v{vL16}
v_xor_b32 v{vA1}, 0x400, v{vA0}""")


vCHK = 121


def gemm_loop(nks, ring, nring, wreg, swap, sent, lds_from=99, at=None, bg=()):
    WF = 104
    nfr = 2 * nks

    def load(f):
        ks, db = f // 2, f % 2
        g = []
        if db == 0 and ks and ks % 2 == 0:
            g.append(Ins("s_add_u32 s13, s13, 4096"))
            if ks % 4 == 0:
                g += [Ins("s_cmp_eq_u32 s13, s28"), Ins("s_cmov_b32 s13, s27")]
        d = ring + 4 * (f % nring)
        g.append(Ins(f"buffer_load_dwordx4 {vr(d, 4)}, v{(vA0, vA1)[db]}, {srd(S_WS)}, s13 offen offset:{(ks % 2) * 2048} sc1"))
        return g

    def wread(ks):
        g = []
        slot = ks - lds_from
        for nb in range(2):
            for j in range(2):
                d = WF + 8 * (ks % 2) + 4 * nb + 2 * j
                g.append(Ins(f"ds_read_b64_tr_b16 {vr(d, 2)}, v{(vT2a, vT2b)[nb]} offset:{slot * 2048 + j * 1024}", res_r=[f"slot{slot}"]))
        return g

    def check(ks, upto):
        regs = [ring + 4 * ((2 * ks + db) % nring) + k for db in range(2) for k in range(4)]
        chk = maxchain(vCHK, regs) + [f"v_cmp_eq_u32 vcc, -1, v{vCHK}"]
        back, stub = label("gb"), label("gs")
        rl, cnt = [], 0
        for f in range(2 * ks, max(2 * ks + 2, min(upto, 2 * ks + 2 * OPT["rl"]))):
            k2, db = f // 2, f % 2
            if db == 0:
                rl += [f"s_add_u32 s3, s22, {k2 * 2048}", "s_cmp_ge_u32 s3, s28", f"s_cselect_b32 s18, {nks * 2048}, 0", "s_sub_u32 s3, s3, s18"]
            rl.append(f"buffer_load_dwordx4 {vr(ring + 4 * (f % nring), 4)}, v{(vA0, vA1)[db]}, {srd(S_WS)}, s3 offen sc1")
        STUBS.extend([f"{stub}:"] + rl + ["s_waitcnt vmcnt(0)"] + chk + [f"s_add_u32 s{sCNT}, s{sCNT}, 1", f"s_cbranch_vccz {back}",
                                                     f"s_cmp_lt_u32 s{sCNT}, {RETRY}", f"s_cbranch_scc1 {stub}", f"s_branch {back}"])
        return [Ins(x) for x in chk], [Ins(f"s_cbranch_vccnz {stub}"), Ins(f"{back}:")]

    if sent:
        a(f"s_mov_b32 s{sCNT}, 0")
    nxt = min(OPT["fill0"], nring)
    for f in range(nxt):
        a.put(load(f))
    if sent:
        c, b = check(0, nxt)
        a.put(c); a.put(b)
    extra = []
    bg = list(bg)
    for ks in range(nks):
        if at and ks in at:
            extra += a.capture(at[ks])
        pend = wread(ks + 1) if lds_from <= ks + 1 < nks else []
        c, b = check(ks + 1, min(nfr, nxt + 2, nring + 2 * ks + 2)) if (sent and ks + 1 < nks) else ([], [])
        order = [(0, 0), (0, 1), (1, 0), (1, 1)]
        if ks == nks - 1 and OPT["tailord"]:
            order = [(0, 1), (1, 0), (1, 1), (0, 0)]
        if True:
            for nb, db in order:
                acc = vr(16 * (2 * nb + db), 16)
                cc = acc if (ks or (nb | db) == 0) else "0"
                w = wreg(ks, nb) if ks < lds_from else vr(WF + 8 * (ks % 2) + 4 * nb, 4)
                x = vr(ring + 4 * ((2 * ks + db) % nring), 4)
                if OPT["fake16"] and 0 < ks < nks - 1:
                    b0 = 16 * (2 * nb + db) + 8 * (ks & 1)
                    for t in range(2):
                        a(f"v_mfma_f32_16x16x32_bf16 {vr(b0 + 4 * t, 4)}, {x if swap ^ t else w}, {w if swap ^ t else x}, {vr(b0 + 4 * t, 4)}")
                else:
                    a(f"v_mfma_f32_32x32x16_bf16 {acc}, {x if swap else w}, {w if swap else x}, {cc}")
                if pend:
                    a.put([pend.pop(0)])
                free = nring + 2 * ks + (db + 1 if nb == 1 else 0)
                if nxt < min(nfr, free) and (nb == 1 or db == 1):
                    a.put(load(nxt))
                    nxt += 1
                if bg and nb == 0 and ks >= OPT["bg0"]:
                    a.put(bg.pop(0))
                if extra and nb == 0:
                    k = 5
                    while k < len(extra) and ("exec" in extra[k - 1].defs and extra[k - 1].text != "s_mov_b64 exec, -1" or extra[k - 1].kind == "vstore"):
                        k += 1
                    a.put(extra[:k])
                    del extra[:k]
                if nb == 1 and db == 0:
                    a.put(c)
                if nb == 1 and db == 1:
                    a.put(b)
    a.put(extra)


def gemm_rot(nks, srot):
    a(f"s_mov_b32 s27, s13\ns_add_u32 s28, s13, {nks * 2048}\ns_lshl_b32 s{sT0}, s{srot}, 13\ns_add_u32 s13, s13, s{sT0}\ns_mov_b32 s22, s13")


def gemm_reduce_prep():
    slot = 6144 if OPT["bfr"] else 12288
    for rel in (1, 2, 3):
        a(f"s_xor_b32 s{23 + rel}, s{sWAVE}, {rel}\ns_mul_i32 s{23 + rel}, s{23 + rel}, {slot}")
    a(f"s_mul_i32 s23, s{sWAVE}, {slot}")


def gemm_reduce_addr():
    for rel in range(4):
        a(f"v_add_u32 v{64 + rel}, s{23 + rel}, v{vL16}")


def gemm_perm(P):
    if not OPT["bfr"]:
        return
    t, u = P + 8, P + 7
    a("s_mov_b32 s29, 0x3f80")
    a(f"""v_lshrrev_b32 v{u}, 5, v{vLANE}
v_and_b32 v{t}, 31, v{vLANE}
v_lshlrev_b32 v{u}, 2, v{u}
v_sub_u32 v{t}, v{t}, v{u}
v_and_b32 v{u}, 1, v{t}
v_lshlrev_b32 v{u}, 4, v{u}
v_lshlrev_b32 v{u}, v{u}, s29
v_ashrrev_i32 v{t}, 1, v{t}""")
    vals = (0, 1, 4, 5, 8, 9, 12, 13)
    pairs = ("s[16:17]", "s[30:31]", "s[50:51]")
    for d in range(10):
        if d < 8:
            a(f"v_cmp_eq_u32 {pairs[d % 3]}, {vals[d]}, v{t}")
        if d >= 2:
            a(f"v_cndmask_b32 v{P + d - 2}, 0, v{u}, {pairs[(d - 2) % 3]}")
    a(f"ds_write_b128 v{vL16}, {vr(P, 4)} offset:{PERM}")
    a(f"ds_write_b128 v{vL16}, {vr(P + 4, 4)} offset:{PERM + 1024}")


def gemm_perm_get(P):
    if OPT["bfr"]:
        a(f"ds_read_b128 {vr(P, 4)}, v{vL16} offset:{PERM}")
        a(f"ds_read_b128 {vr(P + 4, 4)}, v{vL16} offset:{PERM + 1024}")


def gemm_reduce_bf(P, pre, post, quarter):
    side = a.capture(pre) if pre else []
    a.put(side[:9])
    side = side[9:]
    T = [104, 108, 112, 116]
    n = 0
    for rel in (1, 2, 3):
        for j in range(2):
            t = T[n % 4]
            n += 1
            for k in range(4):
                r = 16 * rel + 8 * j + 2 * k
                a(f"v_cvt_pk_bf16_f32 v{t + k}, v{r}, v{r + 1}")
            a(f"ds_write_b128 v{64 + rel}, {vr(t, 4)} offset:{RB + (rel - 1) * 2048 + j * 1024}")
            a.put(side[:3])
            side = side[3:]
    a.put(side)
    a.barrier()
    for k in ((0, 2, 4, 1, 3, 5) if (quarter and OPT["spl"]) else range(6)):
        a(f"ds_read_b128 {vr(16 + 4 * k, 4)}, v64 offset:{RB + k * 1024}")
    if post:
        post()
    if quarter and OPT["spl"]:
        for k in (0, 2, 4):
            a(f"v_mfma_f32_32x32x16_bf16 v[0:15], {vr(P, 4)}, {vr(16 + 4 * k, 4)}, v[0:15]")
        ms = [[Ins(f"v_mfma_f32_32x32x16_bf16 v[48:63], {vr(P + 4, 4)}, {vr(16 + 4 * k, 4)}, {'v[48:63]' if k > 1 else 0}")] for k in (1, 3, 5)]
        a.put(ms[0])
        a.put(ms[1])
        m, rest = merge(a.capture(lambda: (quarter(0), quarter(1))), ms[2:], 10, 30)
        a.put(m)
        assert not rest
        for r in range(8, 16, 2):
            a(f"v_pk_add_f32 {vr(r, 2)}, {vr(r, 2)}, {vr(48 + r, 2)}")
        quarter(2)
        quarter(3)
        return
    for k in range(6):
        a(f"v_mfma_f32_32x32x16_bf16 v[0:15], {vr(P + 4 * (k % 2), 4)}, {vr(16 + 4 * k, 4)}, v[0:15]")
    if quarter:
        for q in range(4):
            quarter(q)


def gemm_reduce(pre=None, post=None, quarter=None, P=None):
    if OPT["bfr"]:
        return gemm_reduce_bf(P, pre, post, quarter)
    side = a.capture(pre) if pre else []
    wr = [[Ins(f"ds_write_b128 v{64 + rel}, {vr(16 * rel + 4 * q, 4)} offset:{RB + (rel - 1) * 4096 + q * 1024}")] for rel in (1, 2, 3) for q in range(4)]
    a.put(side[:9])
    put_all(wr[:3])
    m, rest = merge(side[9:], wr[3:], 0, 12)
    a.put(m)
    put_all(rest)
    a.barrier()
    for q in range(4):
        for k in range(3):
            a(f"ds_read_b128 {vr(16 + 16 * k + 4 * q, 4)}, v64 offset:{RB + k * 4096 + q * 1024}")
        if q == 1 and post:
            post()
    for q in range(4):
        for h in range(2):
            r = 4 * q + 2 * h
            a(f"v_pk_add_f32 {vr(16 + r, 2)}, {vr(16 + r, 2)}, {vr(32 + r, 2)}")
            a(f"v_pk_add_f32 {vr(r, 2)}, {vr(r, 2)}, {vr(48 + r, 2)}")
        for h in range(2):
            r = 4 * q + 2 * h
            a(f"v_pk_add_f32 {vr(r, 2)}, {vr(r, 2)}, {vr(16 + r, 2)}")
        if quarter:
            quarter(q)


def gemm1(layer, wide, pre=None, bg=(), part="all"):
    H = H1 if layer == 0 else H3
    G = G1 if layer == 0 else G3
    r = 32
    c0 = -2 * math.log2(math.e) * math.sqrt(2 / math.pi)
    ein, eout = 2 + 4 * layer, 3 + 4 * layer
    if part == "poll":
        assert emode(ein) == "S"
        for k in range(8):
            unpack(2 * k, 2 * k + 1, 20 + k)
        poll_issue(ein + 10, r, r + 3)
        return
    if part != "rest":
        gemm1_head(H, G, wide, r, c0)
    if part == "head":
        return
    gemm1_rest(layer, wide, pre, bg, part, r, c0, ein, eout)


def gemm1_head(H, G, wide, r, c0):
    gemm_addr()
    a(f"""s_lshr_b32 s{sT0}, s{sWAVE}, 1
s_lshl_b32 s{sT0}, s{sT0}, 6
s_lshl_b32 s{sT1}, s{sNT}, 7
s_add_u32 s{sT0}, s{sT0}, s{sT1}
v_lshrrev_b32 v16, 5, v{vLANE}
v_lshl_add_u32 v16, v16, 3, s{sT0}""")
    for q in range(4):
        a(f"global_load_dwordx2 {vr(20 + 2 * q, 2)}, v16, {sp(P_B1)} offset:{16 * q}")
    a(f"""s_lshl_b32 s{sT0}, s{sWAVE}, 5
v_and_b32 v{r + 2}, 31, v{vLANE}
v_add_u32 v{r + 2}, s{sT0}, v{r + 2}
v_and_b32 v{r + 3}, {31 & ~(32 // OPT['samp'] - 1)}, v{vLANE}
v_add_u32 v{r + 3}, s{sT0}, v{r + 3}
s_lshl_b32 s13, s{sDT1}, 7
s_add_u32 s13, s13, s{sT0}
s_lshl_b32 s13, s13, 11
s_add_u32 s13, s13, {H}""")
    if wide:
        a(f"v_lshrrev_b32 v{r + 2}, 1, v{r + 2}\nv_lshrrev_b32 v{r + 3}, 1, v{r + 3}")
    a(f"""s_mov_b32 s{sCA}, {f32(c0 * 0.044715)}
s_mul_i32 s21, s{sDT1}, 112
s_lshl_b32 s{sT0}, s{sNT}, 2
s_add_u32 s21, s21, s{sT0}
s_and_b32 s{sT0}, s{sWAVE}, 2
s_add_u32 s21, s21, s{sT0}
s_lshl_b32 s21, s21, 11
s_add_u32 s21, s21, {G}""")
    gemm_reduce_prep()
    gemm_rot(32, sROT1)


def gemm1_rest(layer, wide, pre, bg, part, r, c0, ein, eout):
    if pre:
        pre()
    if part != "rest":
        for k in range(8):
            unpack(2 * k, 2 * k + 1, 20 + k)
    if part == "rest":
        poll_take(r, r + 3)
    elif emode(ein) == "M":
        l1, l2 = label("m1"), label("m2")
        a(f"s_cmp_eq_u32 s{sRL0 if wide else sRL}, 0\ns_cbranch_scc1 {l1}")
        a.wait_tag("pub")
        a(f"s_branch {l2}")
        a(f"{l1}:")
        wait_edge(ein, r, r + 2, r + 3)
        a(f"{l2}:")
    else:
        wait_edge(ein, r, r + 2, r + 3)
    stamp(f"g1_{layer} go", 63)
    prod = f"s_mul_i32 s{sT0}, s{sDT1}, 28\ns_add_u32 s{sT0}, s{sT0}, s{sNT}\ns_lshl_b32 s{sT0}, s{sT0}, 6"
    early = hinted(eout) and OPT["h_g1"] < 0
    at = {30: gemm_reduce_addr, 28: lambda: gemm_perm_get(96)}
    if early:
        assert OPT["h_g1"] in (-1, -3, -4)
        at[32 + OPT["h_g1"]] = lambda: (hint_prep(eout + 10, prod, 104), hint_put(104))
    gemm_loop(32, 64, 14, lambda ks, nb: f"a[{(ks * 2 + nb) * 4}:{(ks * 2 + nb) * 4 + 3}]", False, sentinel(ein), at=at)
    count_out(120)
    stamp(f"g1_{layer} loop", 120)
    a.begin()
    late = hinted(eout) and not early

    def pre():
        a(f"v_mov_b32 v80, {f32(c0)}")
        if late:
            hint_prep(eout + 10, prod, 72)

    def gelu(q):
        if q % 2 == 0:
            return
        half = q // 2
        if late and OPT["h_g1"] == 1 and half == 0:
            hint_put(72)
        rs = range(8 * half, 8 * half + 8, 2)
        for r in rs:
            a(f"v_pk_mul_f32 {vr(16 + r, 2)}, {vr(r, 2)}, {vr(r, 2)}")
        for r in rs:
            a(f"v_pk_fma_f32 {vr(16 + r, 2)}, {vr(16 + r, 2)}, {sp(sCA)}, {vr(80, 2)} op_sel_hi:[1,0,0]")
        for r in rs:
            a(f"v_pk_mul_f32 {vr(16 + r, 2)}, {vr(16 + r, 2)}, {vr(r, 2)}")
        for r in rs:
            a(f"v_exp_f32 v{16 + r}, v{16 + r}\nv_exp_f32 v{17 + r}, v{17 + r}")
        for r in rs:
            a(f"v_pk_add_f32 {vr(16 + r, 2)}, {vr(16 + r, 2)}, 1.0 op_sel_hi:[1,0]")
        for r in rs:
            a(f"v_rcp_f32 v{16 + r}, v{16 + r}\nv_rcp_f32 v{17 + r}, v{17 + r}")
        for r in rs:
            a(f"v_pk_mul_f32 {vr(r, 2)}, {vr(r, 2)}, {vr(16 + r, 2)}")
        for r in rs:
            a(f"v_cvt_pk_bf16_f32 v{84 + r // 2}, v{r}, v{r + 1}")
        a(f"buffer_store_dwordx4 {vr(84 + 4 * half, 4)}, v{vA0}, {srd(S_WS)}, s21 offen offset:{2048 * half} sc1", tag="pub")
        if late and OPT["h_g1"] == 2 + half:
            hint_put(72)
    gemm_reduce(pre, (lambda: hint_put(72)) if (late and OPT["h_g1"] == 0) else None, gelu, 96)
    m, rest = merge(a.end(), list(bg), 0, OPT["ev_g1"])
    a.put(m)
    if not flagged(eout):
        a.barrier()
    else:
        flag_put(eout, prod, 40, "pub")
    for g in rest:
        a.put(g)


def gemm2(layer, bg=()):
    G = G1 if layer == 0 else G3
    gemm_addr()
    a(f"""s_lshr_b32 s{sT0}, s{sWAVE}, 1
s_lshl_b32 s{sT0}, s{sT0}, 5
s_lshl_b32 s{sT1}, s{sST}, 6
s_add_u32 s50, s{sT0}, s{sT1}
s_and_b32 s{sT1}, s{sWAVE}, 1
s_lshl_b32 s{sT1}, s{sT1}, 5
s_lshl_b32 s{sT2}, s{sDT2}, 6
s_add_u32 s51, s{sT1}, s{sT2}
s_lshr_b32 s{sT2}, s50, 5
s_mul_i32 s{sT2}, s{sT2}, {BS}
s_lshl_b32 s{sT1}, s51, 6
s_add_u32 s20, s{sT2}, s{sT1}
s_add_u32 s30, s20, {X1 if layer == 0 else X3}
v_and_b32 v16, 31, v{vLANE}
v_lshrrev_b32 v17, 5, v{vLANE}
s_lshl_b32 s{sT0}, s50, 1""")
    r = 42

    def residual_issue():
        if layer == 0:
            if OPT["res4"]:
                for k in range(2):
                    a(f"buffer_load_dwordx4 {vr(20 + 4 * k, 4)}, v18, {srd(S_WS)}, s30 offen offset:{32 * k} sc1")
            else:
                for q in range(4):
                    a(f"buffer_load_dwordx2 {vr(20 + 2 * q, 2)}, v18, {srd(S_WS)}, s30 offen offset:{16 * q} sc1")
        else:
            a(f"s_mov_b32 m0, s31")
            a(f"buffer_load_dwordx4 v{vL16}, {srd(S_WS)}, s30 offen sc1 lds", res_w=["x3"])
            a(f"buffer_load_dwordx4 v{vL16}, {srd(S_WS)}, s30 offen offset:1024 sc1 lds", res_w=["x3"])

    def residual_use():
        if layer == 0:
            if OPT["res4"]:
                for k in (20, 21, 24, 25):
                    a(f"v_permlane32_swap_b32 v{k}, v{k + 2}")
            for k in range(8):
                unpack(2 * k, 2 * k + 1, 20 + k)
            for k in range(8):
                unpack(40, 41, 28 + k)
                a(f"v_pk_add_f32 {vr(2 * k, 2)}, {vr(2 * k, 2)}, v[40:41]")
        else:
            for q in range(4):
                a(f"ds_read_b64_tr_b16 {vr(20 + 2 * q, 2)}, v31 offset:{512 * q}", res_r=["x3"])
            a("v_lshlrev_b32 v40, 16, v29")
            for k in range(8):
                unpack(2 * k, 2 * k + 1, 20 + k)
                a(f"v_pk_add_f32 {vr(2 * k, 2)}, {vr(2 * k, 2)}, v[40:41] op_sel_hi:[1,0]")

    if layer == 0:
        a(f"v_lshlrev_b32 v18, 6, v16\nv_lshl_add_u32 v18, v17, {4 if OPT['res4'] else 3}, v18\nv_lshl_add_u32 v19, v17, 3, s{sT0}")
        for q in range(4):
            a(f"global_load_dwordx2 {vr(28 + 2 * q, 2)}, v19, {sp(P_B2)} offset:{16 * q}")
    else:
        a(f"""v_and_b32 v19, 3, v{vLANE}
s_lshl_b32 s31, s{sWAVE}, 11
v_lshl_add_u32 v28, v16, 1, s{sT0}
global_load_ushort v29, v28, {sp(P_B2)}
v_bfe_u32 v31, v{vLANE}, 2, 2
v_lshl_add_u32 v31, v17, 2, v31
v_lshlrev_b32 v31, 6, v31
v_bfe_u32 v30, v{vLANE}, 4, 1
v_lshl_add_u32 v31, v30, 5, v31
v_lshl_add_u32 v31, v19, 3, v31
v_add_u32 v31, s31, v31""")
    a(f"""s_mul_i32 s{sT0}, s{sDT2}, 28
s_mul_i32 s{sT1}, s{sWAVE}, 7
s_add_u32 s{sT0}, s{sT0}, s{sT1}
v_min_u32 v{r + 2}, 6, v{vLANE}
v_add_u32 v{r + 2}, s{sT0}, v{r + 2}
v_mov_b32 v{r + 3}, v{r + 2}
s_lshl_b32 s13, s{sT0}, 13
s_add_u32 s13, s13, {G}""")
    if layer == 0:
        a(f"""s_add_u32 s21, s20, {X2}
s_lshl_b32 s19, s50, 1
s_add_u32 s19, s19, {ST1}""")
    else:
        a(f"s_mul_i32 s{sT0}, s50, 896\ns_lshl_b32 s{sT1}, s51, 1\ns_add_u32 s21, s{sT0}, s{sT1}")
    gemm_reduce_prep()
    gemm_rot(28, sROT2)
    if layer == 0 and emode(4) == "C" and OPT["x2l"] == 2:
        a(f"s_mul_i32 s{sT0}, s{sWAVE}, 7\nv_min_u32 v52, 6, v{vLANE}\nv_add_u32 v52, s{sT0}, v52")
        poll_issue(19, 50)
    lskip, ljoin = label("res"), label("resj")
    a(f"s_cmp_eq_u32 s{sR1}, 0")
    a(f"s_cbranch_scc1 {lskip}")
    residual_issue()
    residual_use()
    if emode(3 + 4 * layer) == "M":
        a.wait_tag("pub")
    else:
        wait_edge(3 + 4 * layer, r, r + 2, r + 3)
    a(f"s_branch {ljoin}")
    a(f"{lskip}:")
    eln = 2 + 4 * layer
    if OPT["rese"] and hinted(eln) and OPT["h_ln"] >= 2:
        wide = OPT["ln1w"] if layer else OPT["ln0w"]
        a(f"s_lshl_b32 s{sT0}, s{sST}, {1 if wide else 2}\nv_and_b32 v48, {1 if wide else 3}, v{vLANE}\nv_add_u32 v48, s{sT0}, v48")
        poll_issue(eln + 10, 46)
        poll_take(46)
        residual_issue()
        residual_use()
        wait_edge(3 + 4 * layer, r, r + 2, r + 3)
    else:
        wait_edge(3 + 4 * layer, r, r + 2, r + 3)
        residual_issue()
        residual_use()
    a(f"{ljoin}:")
    if layer == 0 and emode(4) == "C" and OPT["x2l"] == 2:
        poll_take(50)
    at = {26: gemm_reduce_addr, 25: lambda: gemm_perm_get(88)}
    late = layer == 0 and emode(4) == "C" and OPT["x2l"] == 1
    if late:
        at[25] = lambda: (gemm_perm_get(88), a(f"v_and_b32 v98, 31, v{vLANE}"), poll_issue(19, 96))
    stamp(f"g2_{layer} go", 63)
    gemm_loop(28, 64, 10, lambda ks, nb: vr(128 + (ks * 2 + nb) * 4, 4), layer == 1, sentinel(3 + 4 * layer), lds_from=16, at=at, bg=bg)
    count_out(120)
    stamp(f"g2_{layer} loop", 120)

    def addr():
        a(f"v_and_b32 v68, 31, v{vLANE}\nv_lshrrev_b32 v69, 5, v{vLANE}")
        if layer == 0:
            a(f"""v_and_b32 v70, 15, v{vLANE}
v_lshlrev_b32 v70, 6, v70
v_lshl_add_u32 v70, v69, 4, v70
v_bfe_u32 v71, v{vLANE}, 4, 1
v_lshl_add_u32 v70, v71, 5, v70
""")
            if emode(4) == "C":
                a(f"""v_lshl_add_u32 v71, v69, 2, v71
v_lshlrev_b32 v71, 12, v71
v_and_b32 v68, 15, v{vLANE}
v_lshl_add_u32 v71, v68, 2, v71
v_mov_b32 v68, 1.0
v_cndmask_b32 v68, v68, 0, {sp(sM1)}
s_add_u32 s18, s19, 8192""")
            else:
                a(f"""v_bfe_u32 v71, v{vLANE}, 2, 2
v_lshlrev_b32 v71, 4, v71
v_bfe_u32 v68, v{vLANE}, 4, 1
v_lshl_add_u32 v71, v68, 3, v71
v_and_b32 v68, 1, v{vLANE}
v_lshl_add_u32 v71, v68, 2, v71
v_bfe_u32 v68, v{vLANE}, 1, 1
v_lshl_add_u32 v68, v69, 1, v68
v_lshl_add_u32 v71, v68, 12, v71""")
        else:
            a(f"v_mul_u32_u24 v70, 896, v68\nv_lshl_add_u32 v70, v69, 4, v70")
    prod = f"s_lshl_b32 s{sT0}, s{sDT2}, 5\ns_add_u32 s{sT0}, s{sT0}, s{sST}\ns_lshl_b32 s{sT0}, s{sT0}, 6"
    hn = layer == 0 and hinted(4)

    def pre():
        addr()
        if hn:
            hint_prep(14, prod, 80)
    gemm_reduce(pre, (lambda: hint_put(80)) if (hn and OPT["h_g2"] == 0) else None, None, 88)
    if hn and OPT["h_g2"] == 1:
        hint_put(80)
    PK = 72
    if late:
        poll_take(96)
    stamp(f"g2_{layer} red", 120)
    for half in range(2):
        b = PK + 4 * half
        for k in range(4):
            a(f"v_cvt_pk_bf16_f32 v{b + k}, v{8 * half + 2 * k}, v{8 * half + 2 * k + 1}")
        a(f"v_permlane32_swap_b32 v{b}, v{b + 2}")
        a(f"v_permlane32_swap_b32 v{b + 1}, v{b + 3}")
        if layer == 1:
            a(f"buffer_store_dwordx4 {vr(b, 4)}, v70, {srd(S_OUT)}, s21 offen offset:{32 * half} {('', 'nt', 'sc1')[OPT['ofl']]}")
    if layer == 1:
        return
    def put_x():
        for k in range(4):
            a(f"v_permlane16_swap_b32 v{PK + k}, v{PK + 4 + k}")
        for half in range(2):
            a(f"buffer_store_dwordx4 {vr(PK + 4 * half, 4)}, v70, {srd(S_WS)}, s21 offen offset:{1024 * half} sc1", tag="pub")
    put_x()
    if hn and OPT["h_g2"] == 2:
        hint_put(80)
    for k in range(8):
        a(f"v_pk_mul_f32 {vr(20 + 2 * k, 2)}, {vr(2 * k, 2)}, {vr(2 * k, 2)}")
    res = reduce32(list(range(16)) + list(range(20, 36)), 16, list(range(40, 48)))
    assert res == [0, 1, 2, 3]
    if emode(4) == "C":
        a(f"""v_permlane16_swap_b32 v0, v1
v_permlane16_swap_b32 v2, v3
v_cndmask_b32 v0, v0, v1, {sp(sM1)}
v_cndmask_b32 v2, v2, v3, {sp(sM1)}
v_cndmask_b32 v0, v0, v68, {sp(sM2)}
v_cndmask_b32 v2, v2, v68, {sp(sM2)}""")
        a(f"buffer_atomic_add_f32 v0, v71, {srd(S_WS)}, s19 offen sc1", tag="pub")
        a(f"buffer_atomic_add_f32 v2, v71, {srd(S_WS)}, s18 offen sc1", tag="pub")
    else:
        a(f"""v_cndmask_b32 v0, v0, v1, {sp(sM1)}
v_cndmask_b32 v2, v2, v3, {sp(sM1)}
v_cndmask_b32 v0, v0, v2, {sp(sM2)}""")
        a(f"buffer_atomic_add_f32 v0, v71, {srd(S_WS)}, s19 offen sc1", tag="pub")
    if hn and OPT["h_g2"] == 3:
        hint_put(80)
    stamp("g2_0 atom", 120)
    if flagged(4):
        flag_put(4, prod, 40, "pub")
    else:
        a.barrier()
    stamp("g2_0 flag", 120)


def skip_unless(role):
    l = label("skip")
    a(f"s_cmp_eq_u32 s{role}, 0")
    a(f"s_cbranch_scc1 {l}")
    return l


def dmas(n0, n1):
    return [w_dma(n, h) for n in range(n0, n1) for h in range(2)]


def tr_dma(n0, n1):
    g = []
    for n in range(n0, n1):
        g.append(w_tr(n))
        if n > n0:
            g += dmas(n + 11, n + 12)
    g += dmas(n1 + 11, n1 + 12)
    return g


def wseq():
    nB = OPT["wB"] // 2
    assert 36 <= nB <= 60
    g = dmas(0, 12) + tr_dma(0, nB - 12)
    lastT = 48 if (nB >= 48 and OPT["wT"]) else 32 + OPT["wg"]
    g += [w_tr(n) for n in range(nB - 12, lastT)]
    g.append([])
    d = nB
    for n in range(max(lastT, nB - 12), 49):
        while d < min(n + 11, 60) or (n == 48 and d < 60):
            g += dmas(d, d + 1)
            d += 1
        if n < 48:
            g.append(w_tr(n))
    return g


def wcut(n_dma):
    k = 0
    for p, g in enumerate(wseq()):
        if k == n_dma:
            return p
        k += any(i.kind == "dma" for i in g)
    return len(wseq())


def put_all(gs):
    for g in gs:
        a.put(g)


def w2_touch(r):
    return [Ins(f"v_lshlrev_b32 v{r}, 12, v{vLANE}"), Ins(f"buffer_load_dword v{r}, v{r}, {srd(S_W2)}, s{sW2O} offen")]


def upad():
    a(f"""v_mov_b32 v32, 0
v_mov_b32 v33, 0
v_mov_b32 v34, 0
v_mov_b32 v35, 0
s_and_b32 s{sT0}, s{sWAVE}, 1
s_mul_i32 s{sT0}, s{sT0}, {UST}
v_add_u32 v36, s{sT0}, v{vL16}
ds_write_b128 v36, v[32:35] offset:{UB}""")


def build():
    global RB
    if OPT["bfr"] and OPT["keepk"]:
        RB = UB
    g = OPT["wg"]
    WORDER[:] = list(range(0, g)) + list(range(32, 32 + g)) + list(range(g, 32)) + list(range(32 + g, 60))
    if OPT["w2t"]:
        WORDER[:] = list(range(60))
    cA, cP, cL, cB = wcut(OPT["wA"]), wcut(OPT["wP"]), wcut(OPT["wL"]), wseq().index([])
    cK = wcut(OPT["wK"])
    prologue()
    laux, ljoin = label("aux"), label("join")
    a(f"s_cmp_eq_u32 s{sRC}, 0")
    a(f"s_cbranch_scc1 {laux}")
    stamp("args", 2)
    xt_loads()
    kgen_table_load()
    code_warm(1)
    page_warm(88)
    w_setup()
    put_all(wseq()[:cA])
    conv_setup(0)
    stamp("start", 2)

    xt_poll_addr(63, 2)
    if sentinel(1) and OPT["x1s"]:
        a(f"""v_lshrrev_b32 v2, 3, v{vLANE}
v_mul_u32_u24 v2, {BS}, v2
v_and_b32 v3, 7, v{vLANE}
v_lshl_add_u32 v2, v3, 4, v2
s_mul_i32 s{sT0}, s{sWAVE}, {16 * BS}
s_lshl_b32 s{sT1}, s{sPAIR}, 7
s_add_u32 s{sT0}, s{sT0}, s{sT1}
s_add_u32 s{sT0}, s{sT0}, {X1}
s_add_u32 s{sT1}, s{sT0}, {8 * BS}
v_mov_b32 v4, -1
v_mov_b32 v5, -1
v_mov_b32 v6, -1
v_mov_b32 v7, -1""")
        a(f"buffer_store_dwordx4 v[4:7], v2, {srd(S_WS)}, s{sT0} offen sc1", tag="st0")
        a(f"buffer_store_dwordx4 v[4:7], v2, {srd(S_WS)}, s{sT1} offen sc1", tag="st0")
    xt_work()
    stamp("xt", 2)

    def h_flag():
        nonce_take()
        flag_put(0, sPAIR, 104, "st0")
        stamp("flag", 0)
        a(f"global_load_dwordx4 {vr(TAB, 4)}, v75, {sp(sTAB)}")
        a(f"global_load_dwordx4 {vr(TAB + 4, 4)}, v75, {sp(sTAB)} offset:16")
        a(f"global_load_dwordx2 v[0:1], v75, {sp(sTAB)} offset:32")

    def h_load():
        poll_take(64, 63)
        stamp("e1 seen", 64)
        for i in a.capture(conv_loads):
            a(re.sub(r"v\[(\d+):(\d+)\]", lambda m: f"a[{int(m.group(1)) - CS}:{int(m.group(2)) - CS}]", i.text, count=1))

    hooks = {}
    dbg = tuple((p, (lambda p=p: stamp(f"hook{p}", 65))) for p in (0, 1, 2, 5)) if OPT["stamps"] == 1 else ()
    for pos, fn in dbg + ((OPT["h_flag"], h_flag), (OPT["h_w"], lambda: KBG.extend(wseq()[cA:cK] + ([w2_touch(75)] if OPT["w2t"] else []))), (OPT["h_poll"], lambda: poll_issue(0, 64, 63)), (OPT["h_load"], h_load)):
        hooks.setdefault(pos, []).append(fn)
    assert OPT["h_flag"] <= OPT["h_w"] and OPT["h_poll"] >= 6
    kgen({k: (lambda fs=fs: [f() for f in fs]) for k, fs in hooks.items()})
    dump_lds(1)
    stamp("kgen", 21)

    def mid():
        if OPT["h_load"] < 10:
            return
        poll_take(64, 63)
        stamp("e1 seen", 0)
        conv_loads()
    wr = kexpand(mid)
    if OPT["mixpro"]:
        mv = [i for i in wr if i.kind != "dsw"]
        st = [i for i in wr if i.kind == "dsw"]
        pro = a.capture(conv_pro, 0)
        k = next(n for n, i in enumerate(pro) if i.defs & {f"v{r}" for r in range(0, 22)})
        a.put(mv)
        a.put(st[2:4])
        head, rest = merge(pro[:k], [[i] for i in st[4:6] + st[:2] + st[6:]], 0, 14)
        a.put(head)
        early = [g for g in rest if g[0].uses & {f"v{r}" for r in range(0, 22)}]
        put_all(early)
        rest = [g for g in rest if g not in early]
        k2 = next(n for n, i in enumerate(pro) if i.kind == "dsw")
        mid2, rest = merge(pro[k:k2], rest, 0, 30)
        put_all(rest)
        m3, rest = merge(mid2 + pro[k2:], wseq()[cK:cP], 50, OPT["ev_pro"])
        a.put(m3)
        put_all(rest)
        stamp("expand", 111)
    else:
        a.put(wr)
        stamp("expand")
        conv_pro(0)
    if sentinel(1) and not OPT["x1s"]:
        a(f"v_min_u32 v{cvP + 2}, 27, v{vLANE}")
        poll_issue(8, cvP)
    a.barrier()
    dump_lds(2)
    stamp("conv0 go", 111)
    put_all(conv_main(0, wseq()[cP:cL], OPT["st_conv"], OPT["ev_conv"]))
    stamp("conv0 done")
    a(f"s_branch {ljoin}")
    a(f"{laux}:")
    aux_loads()
    kgen_table_addr()
    code_warm(1)
    page_warm(88)
    w_setup()
    aux_work()
    stamp("aux e1")
    if OPT["g7"] == 1:
        lg = label("g7")
        a(f"""s_cmp_lg_u32 s{sR1}, 0
s_cbranch_scc1 {lg}
s_lshr_b32 s{sT0}, s{sX}, 2
s_sub_u32 s{sT0}, s{sJ}, s{sT0}
s_sub_u32 s{sT0}, s{sT0}, 28
s_lshl_b32 s{sT0}, s{sT0}, 3
s_add_u32 s{sT0}, s{sT0}, s{sX}
s_lshl_b32 s{sT0}, s{sT0}, 7
s_mul_i32 s{sT1}, s{sWAVE}, {512 * 3584}
s_add_u32 s{sT0}, s{sT0}, s{sT1}
s_add_u32 s{sT0}, s{sT0}, {448 * 3584}
v_mul_u32_u24 v90, 3584, v{vLANE}
v_add_u32 v90, s{sT0}, v90""")
        a(f"global_load_dword v90, v90, {sp(P_W1)}")
        a(f"{lg}:")
    if armed(0):
        lnf = label("nf")
        a(f"s_cmp_lg_u32 s{sR1}, 0\ns_cbranch_scc1 {lnf}")
        if OPT["map18"] == 1:
            a(f"s_sub_u32 s16, s{sAUX}, 4\ns_cselect_b32 s16, s{sAUX}, s16")
        else:
            a(f"s_lshr_b32 s16, s{sAUX}, 1\ns_sub_u32 s17, s{sAUX}, 4\ns_cmp_lt_u32 s{sAUX}, 8\ns_cselect_b32 s16, s16, s17")
        if sentinel(1) and not OPT["x1s"]:
            fill(X1, 17, 80, 16, 28 * 4096, "fill")
            flag_put(8, 16, 72, "fill")
        if sentinel(2) or sentinel(3):
            if sentinel(2):
                fill(H1, 16, 80, 16, 28 * 4096, "fill")
            if sentinel(3):
                fill(G1, 14, 80, 16, 28 * 4096, "fill")
            if emode(4) == "C" and not OPT["x2l"]:
                assert sentinel(2) and sentinel(3)
                fill(X2, 17, 80, 16, 28 * 4096, "fill")
            flag_put(18, 16, 72, "fill")
        a(f"{lnf}:")
    stamp("aux fill")
    if OPT["g7"] == 2:
        lg = label("g7")
        a(f"""s_cmp_lg_u32 s{sR1}, 0
s_cbranch_scc1 {lg}
s_lshr_b32 s{sT0}, s{sX}, 2
s_sub_u32 s{sT0}, s{sJ}, s{sT0}
s_sub_u32 s{sT0}, s{sT0}, 28
s_lshl_b32 s{sT0}, s{sT0}, 3
s_add_u32 s{sT0}, s{sT0}, s{sX}
s_lshl_b32 s{sT0}, s{sT0}, 7
s_mul_i32 s{sT1}, s{sWAVE}, {512 * 3584}
s_add_u32 s{sT0}, s{sT0}, s{sT1}
s_add_u32 s{sT0}, s{sT0}, {448 * 3584}
v_mul_u32_u24 v90, 3584, v{vLANE}
v_add_u32 v90, s{sT0}, v90""")
        a(f"global_load_dword v90, v90, {sp(P_W1)}")
        a(f"{lg}:")
    cX = min(wcut(64 + 2 * OPT["wg"]), cB)
    if OPT["w2t"]:
        a.put(w2_touch(75))
    n1 = 32 + OPT["wg"]
    if OPT["auxs"] == 2:
        assert not OPT["t2"]
        lw, lx = label("aw"), label("ax")
        a(f"s_cmp_eq_u32 s{sR1}, 0\ns_cbranch_scc1 {lw}")
        put_all(wone(0, 32, 32))
        a(f"s_branch {lx}")
        a(f"{lw}:")
        put_all(wone(32, 60, 48)[:OPT["aw"]])
        a(f"{lx}:")
    elif OPT["auxs"]:
        put_all(dmas(0, 12) + tr_dma(0, n1 - 12) + [w_tr(n) for n in range(n1 - 12, n1)])
    else:
        put_all(wseq()[:cX])
    if sentinel(1) and not OPT["x1s"]:
        a(f"v_min_u32 v62, 27, v{vLANE}")
        poll_issue(8, 60)
        poll_take(60)
    a.wait_vm0()
    stamp("aux w")
    a(f"{ljoin}:")
    for layer in range(2):
        if layer == 1:
            l = skip_unless(sRC)
            conv_setup(1)
            conv_poll1()
            stamp("conv1 ready")
            if OPT["kc_in"] and not hinted(4):
                a.wait_tag("flag")
                poll_issue(4, cvP)
                kcopies()
                poll_take(cvP)
            else:
                upad() if RB == UB else kcopies()
                conv_xearly()
                if emode(4) == "G":
                    lg = label("gt")
                    a(f"s_cmp_lg_u32 s{sR2}, 0\ns_cbranch_scc1 {lg}")
                    poll_issue(14, cvP, cvP + 3)
                    poll_take(cvP, cvP + 3)
                    a(f"{lg}:")
                    a.wait_tag("flag")
                    poll_issue(4, cvP)
                    poll_take(cvP)
                else:
                    wait_edge(4, cvP, cvP + 2, cvP + 3)
            stamp("conv1 poll")
            if emode(4) != "C":
                conv_loads()
            conv_pro(1)
            count_out(111)
            if armed(1):
                a(f"v_and_b32 v{cvP + 2}, 31, v{vLANE}")
                poll_issue(9, cvP)
            a.barrier()
            dump_lds(3)
            stamp("conv1 go", 111)
            conv_main(1)
            stamp("conv1 done")
            if armed(1):
                lj = label("cvj")
                a(f"s_branch {lj}")
                a(f"{l}:")
                a(f"v_and_b32 v62, 31, v{vLANE}")
                poll_issue(9, 60)
                poll_take(60)
                a(f"{lj}:")
            else:
                a(f"{l}:")
        wide = OPT["ln1w"] if layer else OPT["ln0w"]
        l = skip_unless(sRL0 if wide else sRL)
        ln(layer, wide)
        stamp(f"ln{layer} done")
        a(f"{l}:")
        if layer == 0:
            gemm_perm(0)
            def arm_poll(part):
                k = max(0, len(part) - 12)
                put_all(part[:k])
                if sentinel(2) or sentinel(3):
                    a(f"v_min_u32 v62, 27, v{vLANE}")
                    poll_issue(18, 60)
                if inb:
                    gemm1(0, wide, part="head")
                k2 = max(k, len(part) - OPT["inb"])
                put_all(part[k:k2])
                if inb:
                    gemm1(0, wide, part="poll")
                put_all(part[k2:])
                if sentinel(2) or sentinel(3):
                    poll_take(60)
            inb = OPT["inb"] > 0 and emode(2) == "S"
            if OPT["auxs"]:
                assert OPT["wB"] == 120 or (OPT["t2"] and OPT["wB"] >= 96) or OPT["auxs"] == 2
                la, lb, lc = label("ba"), label("bb"), label("bc")
                a(f"s_cmp_eq_u32 s{sRC}, 0\ns_cbranch_scc1 {la}")
                arm_poll(wseq()[cL:cB])
                a(f"s_branch {lb}")
                a(f"{la}:")
                a(f"s_cmp_eq_u32 s{sR2}, 0\ns_cbranch_scc1 {lc}")
                nB = OPT["wB"] // 2
                put_all(wone(32, 60, 48)[OPT["aw"]:] if OPT["auxs"] == 2 else dmas(n1, n1 + 12) + (tr_dma(n1, nB - 12) if nB - 12 > n1 else []) + [w_tr(n) for n in range(max(n1, nB - 12), 48)])
                if emode(4) == "C" and OPT["x2l"] == 2:
                    a(f"s_sub_u32 s16, s{sAUX}, 4\ns_cselect_b32 s16, s{sAUX}, s16")
                    fill(X2, 17, 80, 16, 28 * 4096, "fill")
                    flag_put(19, 16, 72, "fill")
                a(f"{lc}:")
                if inb:
                    gemm1(0, wide, part="head")
                    gemm1(0, wide, part="poll")
                elif not sentinel(2):
                    arm_poll([])
                a(f"{lb}:")
            else:
                l = skip_unless(sRC)
                put_all(wseq()[cL:cX])
                a(f"{l}:")
                rest = wseq()[cX:cB]
                k = max(0, len(rest) - 12)
                put_all(rest[:k])
                if sentinel(2) or sentinel(3):
                    a(f"v_min_u32 v62, 27, v{vLANE}")
                    poll_issue(18, 60)
                put_all(rest[k:])
                if sentinel(2) or sentinel(3):
                    poll_take(60)
            stamp("w B", 63)
            tail = wseq()[cB:]
            assert not any(i.kind == "dsr" and "a[" in i.text for g in tail for i in g)
            lelse, lj = label("ng1"), label("g1j")
            a(f"s_cmp_eq_u32 s{sR1}, 0")
            a(f"s_cbranch_scc1 {lelse}")
            gemm1(0, wide, None, [] if OPT["t2"] else tail, "rest" if inb else "all")
            nonce_retire()
            stamp("g1_0 done")
            a(f"s_branch {lj}")
            a(f"{lelse}:")
            if OPT["auxs"] == 2 and OPT["wB"] < 120:
                a(f"s_cmp_eq_u32 s{sRC}, 0\ns_cbranch_scc1 {lj}")
            put_all([] if OPT["t2"] else wseq()[cB:])
            a(f"{lj}:")
        else:
            l = skip_unless(sR1)
            gemm1(1, wide)
            stamp("g1_1 done")
            a(f"{l}:")
        l = skip_unless(sR2)
        gemm2(layer, [g for g in wseq()[cB:] if g] if (layer == 0 and OPT["t2"]) else [])
        if layer == 0 and armed(1):
            lj = label("g2j")
            a(f"s_branch {lj}")
            a(f"{l}:")
            if OPT["map18"]:
                a(f"s_lshl_b32 s16, s{sX}, 2\ns_add_u32 s16, s16, s{sJ}")
            else:
                a(f"s_lshr_b32 s16, s{sX}, 1\ns_lshl_b32 s16, s16, 3\ns_add_u32 s16, s16, s{sJ}")
            late = emode(4) == "C" and OPT["x2l"]
            if late == 1:
                fill(X2, 15, 72, 16, CH)
                flag_put(19, 16, 8, "st0")
            for base, n, e in ((X3, 15, 5), (H3, 14, 6), (G3, 13, 7)):
                if sentinel(e):
                    fill(base, n, 72, 16, CH)
            flag_put(9, 16, 8, "st0")
            if late:
                a(f"v_and_b32 v62, 31, v{vLANE}" if late == 1 else f"v_min_u32 v62, 27, v{vLANE}")
                poll_issue(19, 60)
                poll_take(60)
            a(f"{lj}:")
        else:
            a(f"{l}:")
        stamp("g2_0 done" if layer == 0 else "end")
    if OPT["stamps"] and OPT["dbgwg"] < 0:
        l = label("ls")
        a(f"s_cmp_lg_u32 s{sWAVE}, 0\ns_cbranch_scc1 {l}\ns_waitcnt vmcnt(0)\ns_memrealtime {sp(sSTAMP)}\ns_waitcnt lgkmcnt(0)")
        a(f"s_lshl_b32 s3, s2, 8\ns_add_u32 s3, s3, {STAMPS + 248}\nv_mov_b32 v0, s101\nv_mov_b32 v1, s{sSTAMP}\ns_mov_b64 exec, 1")
        a(f"buffer_store_dwordx2 v[0:1], off, {srd(S_WS)}, s3")
        a(f"{l}:")
    if OPT["fixdur"]:
        a(f"s_waitcnt vmcnt(0) lgkmcnt(0)\nL_fix:\ns_memrealtime s[28:29]\ns_waitcnt lgkmcnt(0)\ns_sub_u32 s28, s28, s101\ns_cmp_lt_u32 s28, {OPT['fixdur']}\ns_cbranch_scc1 L_fix")
    a("s_endpgm")


def bf16_round_int(l):
    b = struct.unpack("<I", struct.pack("<f", float(l)))[0]
    b = (b + 0x7FFF + ((b >> 16) & 1)) & 0xFFFF0000
    return int(struct.unpack("<f", struct.pack("<I", b))[0])


def ktab():
    vals = []
    for c in range(2):
        for x in range(2048):
            lr = bf16_round_int(2047 - x)
            aa, rem = lr >> 7, lr & 127
            j, e = rem >> 3, rem & 7
            if aa < 2:
                rho = 8 * aa + e
            elif aa < 4:
                rho = 4 * aa + 8 + (e >> 1)
            elif aa < 8:
                rho = 16 + 2 * aa + (e >> 2)
            else:
                rho = 24 + aa
            vals.append((rho >> 2) * 256 + j * 16 + (rho & 3) * 4 + c * 2 * GST)
        vals += [3072 + c * 2 * GST] * 16
    lines = []
    for i in range(0, len(vals), 16):
        lines.append("    .short " + ", ".join(str(v) for v in vals[i:i + 16]))
    return "\n".join(lines)


DOC = """;
;   gemm1 : gelu(h^T W1 + b1), 64x64 tile per workgroup, K split over the waves, W1 tile resident in AGPRs
;   gemm2 : x + g W2 + b2, W2 tile resident in VGPRs + LDS; per-token sums for the next LayerNorm by float atomics
; Hand-offs between workgroups go through d_ws with write-through stores and L1-bypassing loads, valid for any placement:
; Every wait is bounded.  Generated by the author's own script (register allocation and schedule are explicit).
"""


def main(path):
    build()
    ins = a.finish()
    ref = open(f"cdna_kernels/{NAME}.s.ref").read().split("\n")
    head = [l for l in ref if l.startswith(";") and "@launch" not in l and not l.startswith("; Override") and not l.startswith("; grid=ceil")]
    k = NAME + "_kernel"
    s = "\n".join(head) + f"\n; @launch grid=(256,1,1) block=(256,1,1) lds={LDS_BYTES}\n"
    s += DOC
    s += f""".amdgcn_target "amdgcn-amd-amdhsa--gfx950"
.text
.globl {k}
.p2align 8
.type {k},@function
{k}:
L_entry:
"""
    s += Prog.render(ins)
    s += "".join((l if l.endswith(":") else "    " + l) + "\n" for l in STUBS)
    s += f""".p2align 6
.type ktab,@object
ktab:
{ktab()}
.size ktab, 8256
.section .rodata,"a"
.p2align 6
.amdhsa_kernel {k}
  .amdhsa_next_free_vgpr 512
  .amdhsa_next_free_sgpr 102
  .amdhsa_accum_offset 256
  .amdhsa_group_segment_fixed_size 0
  .amdhsa_kernarg_size 136
  .amdhsa_user_sgpr_count 2
  .amdhsa_user_sgpr_kernarg_segment_ptr 1
  .amdhsa_system_sgpr_workgroup_id_x 1
  .amdhsa_float_denorm_mode_32 3
.end_amdhsa_kernel
"""
    open(path, "w").write(s)
    n = sum(1 for i in ins if i.kind not in ("label", "comment"))
    open(path + ".names", "w").write("\n".join(STAMP_NAMES))
    print("instructions:", n, "nops:", sum(1 for i in ins if i.kind == "nop"), "waits:", sum(1 for i in ins if i.kind == "wait"))


if __name__ == "__main__":
    path = sys.argv[1]
    for kv in sys.argv[2:]:
        k, v = kv.split("=")
        OPT[k] = v if k in ('em', 'probe') else int(v)
    main(path)
```

```python
import sys, math, struct, re
from asmlib import *

NAME = "interleave_layers__ssm_conv_s4__mixer_token_mlp__prompt"
OPT = dict(stamps=False, stop=99, upfront=True, dump=0, dbgwg=-1, fixdur=0, em='SSSCDSS', warm=1, h_flag=2, h_w=2, h_poll=9, h_ln=2, h_cv=0, h_g1=0, h_g2=2, rot=1, wA=0, wK=8, wP=8, wL=24, wB=120, wT=1, lag=2, gap=3, st_conv=100, ev_conv=150, ev_g1=100000, fill0=14, ln1w=0, ln0w=1, chk=1, samp=8, map18=1, ofl=0, tailord=1, cv=1, clk=0, ev_kg=150, mixpro=1, now=0, probe='', kc_in=0, w2t=0, g7=0, rl=4, bfr=1, wg=4, slp=0, ev_pro=30, t2=0, bg0=0, tlb=0, rese=0, lnd=1, keepk=1, fake16=0, wnt=0, wnta=0, fnt=0, pnt=0, xnt=0, auxs=2, inb=6, x2l=2, res4=0, xe=0, cpipe=1, spl=1, h_load=99, x1s=1, aw=24, mr=1)
DBG_SEL = ['start', 'kgen', 'conv0 go', 'ln0 go', 'g1_0 go', 'g1_0 loop', 'g2_0 go', 'g2_0 loop', 'conv1 poll', 'ln1 go', 'g1_1 go', 'g2_1 go', 'end']
STAMP_NAMES = []

EPOCH = 0
ST0 = 0x1000
ST1 = 0x8000
STAMPS = 0x20000
FL = 0x100000
BS = 448 * 64 + 128
CH = 0x20000
X1, H1, G1, X3, H3, G3, X2, X0 = (0x400000 + 0x200000 * i for i in range(8))
FILL1, FILL3 = 6, 36
WS_BYTES = 268435456
OOB = 0x40000000

KST = 4160
KSLOT = {0: [0, 5, 2, 3], 1: [1, 6, 7, 4]}
UB = 8 * KST
UPAD = 1024
UST = 4096 + UPAD
ZB = UB + 2 * UST
EX = 2 * KST
RB = 2 * KST
GST = 15616
GROW = 272
TOFF = 12288
LNP = 57856
PERM = 61440
W2L = 65536
LDS_BYTES = 163840

sWAVE, sX, sJ, sPAIR, sDT1, sNT, sDT2, sST, sLN = 4, 5, 6, 7, 8, 9, 10, 11, 12
sNONCE = 14
P_U, P_ARE, P_AIM, P_BRE, P_BIM, P_CRE, P_CIM, P_LDT = 16, 18, 20, 22, 24, 26, 28, 30
P_DSK, P_W1, P_B1, P_W2, P_B2, P_OUT, P_DBG, P_WS = 32, 36, 38, 40, 42, 44, 46, 48
S_WS, S_W1, S_W2, S_X0, S_OUT = 52, 56, 60, 64, 68
sD0, sD1 = 72, 74
sLDT = 76
sEP = 78
sWOFF, sT0, sT1, sT2, sT3, sCNT = 80, 81, 82, 83, 84, 85
sRC, sR1, sR2, sRL = 86, 87, 88, 89
sM1, sM2 = 90, 92
sSTAMP = 94
sTAB = 96
sLN0, sRL0 = 77, 73
sCA, sCB = 34, 100

vLANE, vL16, vT2a, vT2b, vT1a, vT1b, vD1, vD2 = 127, 126, 125, 124, 123, 122, 121, 120
vA0, vA1 = 123, 122


def srd(n):
    return f"s[{n}:{n + 3}]"


def sp(n):
    return f"s[{n}:{n + 1}]"


def vr(n, k):
    return f"v[{n}:{n + k - 1}]" if k > 1 else f"v{n}"


def f32(x):
    return "0x%08x" % struct.unpack("<I", struct.pack("<f", x))[0]


a = Prog()
_lab = [0]


def label(p):
    _lab[0] += 1
    return f"L_{p}_{_lab[0]}"


_stamp = [0]


def stamp(name, r=1):
    k = _stamp[0]
    _stamp[0] += 1
    STAMP_NAMES.append(name)
    a("; MARK after " + name)
    if OPT["probe"] == name.replace(" ", "_"):
        a(f"s_memrealtime {sp(sSTAMP)}\ns_waitcnt lgkmcnt(0)\ns_mov_b32 s101, s{sSTAMP}")
    if OPT["stamps"] != 1:
        return
    l = label("st")
    if OPT["dbgwg"] >= 0:
        if name not in DBG_SEL:
            return
        a(f"s_lshl_b32 s3, s{sWAVE}, 8\ns_add_u32 s3, s3, s2\ns_cmp_lg_u32 s3, {OPT['dbgwg']}\ns_cbranch_scc1 {l}")
        a(f"s_memrealtime {sp(sSTAMP)}")
        a("s_waitcnt lgkmcnt(0)")
        a(f"s_mov_b64 exec, 1\nv_mov_b32 v{r}, s{sSTAMP}\ns_mov_b32 s{sSTAMP}, s{P_DBG}\ns_mov_b32 s{sSTAMP + 1}, s{P_DBG + 1}\ns_mov_b32 s{sSTAMP + 2}, 256\ns_mov_b32 s{sSTAMP + 3}, 0x20000".replace(f"s{sSTAMP}, s{P_DBG}", f"s64, s{P_DBG}").replace(f"s{sSTAMP + 1}, s{P_DBG + 1}", f"s65, s{P_DBG + 1}").replace(f"s{sSTAMP + 2}, 256", "s66, 256").replace(f"s{sSTAMP + 3}, 0x20000", "s67, 0x20000"))
        a(f"buffer_store_dword v{r}, off, s[64:67], 0 offset:{12 + 4 * DBG_SEL.index(name)} sc1", optional=True)
        a("s_mov_b64 exec, -1")
        a(f"{l}:")
        return
    a(f"s_cmp_lg_u32 s{sWAVE}, 0")
    a(f"s_cbranch_scc1 {l}")
    a(f"{'s_memtime' if OPT['clk'] else 's_memrealtime'} {sp(sSTAMP)}")
    a("s_waitcnt lgkmcnt(0)")
    a(f"s_lshl_b32 s3, s2, 8")
    a(f"s_add_u32 s3, s3, {STAMPS + 4 * k}")
    a(f"v_mov_b32 v{r}, s{sSTAMP}")
    a("s_mov_b64 exec, 1")
    a(f"buffer_store_dword v{r}, off, {srd(S_WS)}, s3", optional=True)
    a("s_mov_b64 exec, -1")
    a(f"{l}:")


_cnt = [0]


def count_out(r):
    if OPT["stamps"] != 1:
        return
    k = _cnt[0]
    _cnt[0] += 1
    a(f"s_lshl_b32 s3, s2, 2\ns_add_u32 s3, s3, s{sWAVE}\ns_lshl_b32 s3, s3, 5\ns_add_u32 s3, s3, {STAMPS + 0x10000 + 4 * k}")
    a(f"v_mov_b32 v{r}, s{sCNT}\ns_mov_b64 exec, 1")
    a(f"buffer_store_dword v{r}, off, {srd(S_WS)}, s3")
    a("s_mov_b64 exec, -1")


DUMP = 0x2000000


def dump_lds(point, r=96):
    if OPT["dump"] != point:
        return
    a.barrier()
    a(f"s_lshl_b32 s3, s{sWAVE}, 10\nv_add_u32 v{r + 4}, s3, v{vL16}\ns_lshl_b32 s3, s2, 16\ns_add_u32 s3, s3, {DUMP}")
    for i in range(16):
        a(f"ds_read_b128 {vr(r, 4)}, v{r + 4} offset:{i * 4096}")
        a(f"buffer_store_dwordx4 {vr(r, 4)}, v{r + 4}, {srd(S_WS)}, s3 offen")
        a("s_add_u32 s3, s3, 4096")
        a.wait_vm0()
    a.barrier()


def cmul(d, x, y):
    return [f"v_pk_mul_f32 {vr(d, 2)}, {vr(x, 2)}, {vr(y, 2)} op_sel:[1,1] op_sel_hi:[1,0] neg_lo:[0,1]",
            f"v_pk_fma_f32 {vr(d, 2)}, {vr(x, 2)}, {vr(y, 2)}, {vr(d, 2)} op_sel_hi:[0,1,1]"]


def cmul2(p, q=None):
    x = cmul(*p)
    if q is None:
        a(x[0]); a(x[1])
        return
    y = cmul(*q)
    a(x[0]); a(y[0]); a(x[1]); a(y[1])


def unpack(dlo, dhi, s):
    a(f"v_lshlrev_b32 v{dlo}, 16, v{s}")
    a(f"v_and_b32 v{dhi}, s0, v{s}")


def prologue():
    a("s_cmp_lt_u32 s2, 256")
    a("s_cbranch_scc1 L_start")
    a("s_endpgm")
    a("L_start:")
    if OPT["fixdur"] or OPT["stamps"]:
        a("s_memrealtime s[50:51]")
    a("s_load_dwordx16 s[16:31], s[0:1], 0")
    a("s_load_dwordx16 s[32:47], s[0:1], 64")
    a("s_load_dwordx2 s[48:49], s[0:1], 128")
    a(f"v_lshrrev_b32 v1, 6, v0")
    a(f"v_and_b32 v{vLANE}, 63, v0")
    a(f"v_readfirstlane_b32 s{sWAVE}, v1")
    a(f"v_lshlrev_b32 v{vL16}, 4, v{vLANE}")
    a(f"""s_and_b32 s{sX}, s2, 7
s_lshr_b32 s{sJ}, s2, 3
s_add_u32 s{sJ}, s{sJ}, 28
s_and_b32 s{sJ}, s{sJ}, 31
""")
    a(f"""s_lshr_b32 s{sT0}, s{sX}, 2
s_mul_i32 s{sPAIR}, s{sX}, 28
s_sub_u32 s{sRC}, s{sJ}, s{sT0}
s_add_u32 s{sPAIR}, s{sPAIR}, s{sRC}
s_cmp_lt_u32 s{sRC}, 28
s_cselect_b32 s{sRC}, 1, 0
s_mul_i32 s{sT2}, s{sJ}, 37
s_lshr_b32 s{sT2}, s{sT2}, 8
s_mul_i32 s{sT3}, s{sT2}, 7
s_sub_u32 s{sDT1}, s{sJ}, s{sT3}
s_lshl_b32 s{sNT}, s{sT2}, 3
s_add_u32 s{sNT}, s{sNT}, s{sX}
s_sub_u32 s{sT1}, s{sJ}, 4
s_cselect_b32 s{sR2}, 0, 1
s_and_b32 s{sT1}, s{sT1}, 31
s_mul_i32 s{sT2}, s{sT1}, 37
s_lshr_b32 s{sT2}, s{sT2}, 8
s_mul_i32 s{sT3}, s{sT2}, 7
s_sub_u32 s{sDT2}, s{sT1}, s{sT3}
s_lshl_b32 s{sST}, s{sX}, 2
s_add_u32 s{sST}, s{sST}, s{sT2}
s_cmp_eq_u32 s{sJ}, 0
s_cselect_b32 s{sT1}, 32, s{sJ}
s_mul_i32 s{sT2}, s{sX}, 12
s_add_u32 s{sT2}, s{sT2}, s{sT1}
s_sub_u32 s{sT2}, s{sT2}, 53
s_lshl_b32 s{sT3}, s{sX}, 2
s_add_u32 s{sT3}, s{sT3}, s{sJ}
s_sub_u32 s{sT3}, s{sT3}, 28
s_cmp_lg_u32 s{sT0}, 0
s_cselect_b32 s{sT1}, s{sT1}, s{sJ}
s_cselect_b32 s{sLN0}, s{sT2}, s{sT3}
s_cselect_b32 s{sRL0}, 21, 28
s_cmp_ge_u32 s{sT1}, s{sRL0}
s_cselect_b32 s{sRL0}, 1, 0""" if OPT["map18"] == 1 else f"""s_and_b32 s{sT0}, s{sX}, 1
s_lshr_b32 s{sT1}, s{sX}, 1
s_mul_i32 s{sPAIR}, s{sX}, 28
s_sub_u32 s{sRC}, s{sJ}, s{sT0}
s_add_u32 s{sPAIR}, s{sPAIR}, s{sRC}
s_cmp_lt_u32 s{sRC}, 28
s_cselect_b32 s{sRC}, 1, 0
s_mul_i32 s{sT2}, s{sJ}, 37
s_lshr_b32 s{sT2}, s{sT2}, 8
s_mul_i32 s{sT3}, s{sT2}, 7
s_sub_u32 s{sT3}, s{sJ}, s{sT3}
s_mul_i32 s{sNT}, s{sT1}, 7
s_add_u32 s{sNT}, s{sNT}, s{sT3}
s_lshl_b32 s{sT3}, s{sT0}, 2
s_add_u32 s{sDT1}, s{sT2}, s{sT3}
s_lshl_b32 s{sST}, s{sT0}, 3
s_sub_u32 s{sST}, s{sJ}, s{sST}
s_cselect_b32 s{sR2}, 0, 1
s_lshr_b32 s{sDT2}, s{sST}, 3
s_and_b32 s{sDT2}, s{sDT2}, 3
s_add_u32 s{sDT2}, s{sDT2}, s{sT3}
s_and_b32 s{sST}, s{sST}, 7
s_lshl_b32 s{sLN0}, s{sT1}, 4
s_lshl_b32 s{sT1}, s{sT1}, 3
s_add_u32 s{sST}, s{sST}, s{sT1}
s_cmp_eq_u32 s{sJ}, 0
s_cselect_b32 s{sT1}, 32, s{sJ}
s_mul_i32 s{sT2}, s{sT0}, 11
s_add_u32 s{sT2}, s{sT2}, s{sT1}
s_cmp_lg_u32 s{sT0}, 0
s_cselect_b32 s{sT1}, s{sT1}, s{sJ}
s_cselect_b32 s{sT2}, s{sT2}, s{sJ}
s_cselect_b32 s{sRL0}, 21, 28
s_cmp_ge_u32 s{sT1}, s{sRL0}
s_cselect_b32 s{sRL0}, 1, 0
s_add_u32 s{sLN0}, s{sLN0}, s{sT2}
s_sub_u32 s{sLN0}, s{sLN0}, 28""")
    if OPT["map18"] == 2:
        a(f"""s_sub_u32 s{sT1}, s{sJ}, 4
s_cselect_b32 s{sR2}, 0, 1
s_and_b32 s{sT1}, s{sT1}, 31
s_mul_i32 s{sT2}, s{sT1}, 37
s_lshr_b32 s{sT2}, s{sT2}, 8
s_mul_i32 s{sT3}, s{sT2}, 7
s_sub_u32 s{sDT2}, s{sT1}, s{sT3}
s_lshl_b32 s{sST}, s{sX}, 2
s_add_u32 s{sST}, s{sST}, s{sT2}""")
    a(f"""s_lshl_b32 s{sLN}, s{sX}, 4
s_add_u32 s{sLN}, s{sLN}, s{sJ}
s_sub_u32 s{sLN}, s{sLN}, 8
s_mul_i32 s{sT2}, s{sT0}, 7
s_sub_u32 s{sT2}, 28, s{sT2}
s_cmp_lt_u32 s{sJ}, s{sT2}
s_cselect_b32 s{sR1}, 1, 0
s_sub_u32 s{sT2}, s{sJ}, 8
s_cmp_lt_u32 s{sT2}, 16
s_cselect_b32 s{sRL}, 1, 0
s_min_u32 s{sPAIR}, s{sPAIR}, 223
s_min_u32 s{sNT}, s{sNT}, 27
s_mov_b32 s{sM1}, 0xaaaaaaaa
s_mov_b32 s{sM1 + 1}, 0xaaaaaaaa
s_mov_b32 s{sM2}, 0xcccccccc
s_mov_b32 s{sM2 + 1}, 0xcccccccc""")
    a("s_waitcnt lgkmcnt(0)")
    if OPT["fixdur"] or OPT["stamps"]:
        a("s_mov_b32 s101, s50")
    a("s_mov_b32 s0, 0xffff0000\ns_mov_b32 s1, 0xffff")
    a(f"""s_lshl_b32 s{sT0}, s{sPAIR}, 2
s_load_dword s{sLDT}, {sp(P_LDT)}, s{sT0}
s_load_dword s{sD0}, {sp(P_DSK)}, s{sT0}""")
    kgen_loads()
    for n, p, size in ((S_X0, P_U, 1835008), (S_WS, P_WS, WS_BYTES), (S_OUT, P_OUT, 1835008)):
        a(f"s_mov_b32 s{n}, s{p}\ns_mov_b32 s{n + 1}, s{p + 1}\ns_mov_b32 s{n + 2}, {size}\ns_mov_b32 s{n + 3}, 0x20000")
    a(f"buffer_load_dwordx2 v[104:105], off, {srd(S_WS)}, 0 offset:{EPOCH} sc1")
    for n, p, role in ((S_W1, P_W1, sR1), (S_W2, P_W2, sR2)):
        a(f"s_mov_b32 s{n}, s{p}\ns_mov_b32 s{n + 1}, s{p + 1}\ns_cmp_lg_u32 s{role}, 0\ns_cselect_b32 s{n + 2}, {0 if OPT['now'] & (1 if n == S_W1 else 2) else 7340032}, 0\ns_mov_b32 s{n + 3}, 0x20000")


sAUX = 75


def code_warm(r):
    if not OPT["warm"]:
        return
    a(f"""s_lshl_b32 s{sT0}, s{sJ}, 2
s_add_u32 s{sT0}, s{sT0}, s{sWAVE}
s_mul_i32 s{sT0}, s{sT0}, 640
v_lshl_add_u32 v{r}, v{vLANE}, 7, s{sT0}
s_mov_b32 s{sT1}, ktab-L_entry+8192
v_min_u32 v{r}, s{sT1}, v{r}
s_sub_u32 s28, s{sTAB}, ktab-L_entry
s_subb_u32 s29, s{sTAB + 1}, 0
s_mov_b64 exec, 31
global_load_dword v{r}, v{r}, s[28:29]
s_mov_b64 exec, -1""")


def page_warm(r):
    if not OPT["tlb"]:
        return
    a(f"""v_lshlrev_b32 v{r}, 21, v{vLANE}
v_add_u32 v{r}, 0x1fff80, v{r}
s_mov_b64 exec, 0x3ff
buffer_load_dword v{r}, v{r}, {srd(S_WS)}, 0 offen
s_mov_b64 exec, 1
buffer_load_dword v{r + 1}, off, {srd(S_OUT)}, 0
global_load_dword v{r + 2}, v{vLANE}, {sp(P_B1)}
global_load_dword v{r + 3}, v{vLANE}, {sp(P_B2)}
s_mov_b64 exec, -1""")


def fill(base, n, r, sidx, stride, tag="st0"):
    a(f"""s_lshl_b32 s{sT0}, s{sidx}, 12
s_lshl_b32 s{sT1}, s{sWAVE}, 10
s_add_u32 s{sT0}, s{sT0}, s{sT1}
s_add_u32 s{sT0}, s{sT0}, {base}""")
    for k in range(4):
        a(f"v_mov_b32 v{r + k}, -1")
    for k in range(n):
        a(f"buffer_store_dwordx4 {vr(r, 4)}, v{vL16}, {srd(S_WS)}, s{sT0} offen sc1{' nt' if OPT['fnt'] else ''}", tag=tag)
        if k + 1 < n:
            a(f"s_add_u32 s{sT0}, s{sT0}, {stride}")


def aux_loads():
    a(f"""s_and_b32 s{sAUX}, s{sJ}, 3
s_lshl_b32 s{sAUX}, s{sAUX}, 3
s_add_u32 s{sAUX}, s{sAUX}, s{sX}
s_lshl_b32 s16, s{sAUX}, 2
s_add_u32 s16, s16, s{sWAVE}
s_mul_i32 s{sT1}, s16, {16 * 896}
s_mul_i32 s17, s{sWAVE}, {16 * 912}
s_mov_b32 m0, s17
s_mov_b32 exec_hi, 0xffffff""")
    for k in range(16):
        if k:
            a(f"s_add_u32 m0, m0, 912\ns_add_u32 s{sT1}, s{sT1}, 896")
        a(f"buffer_load_dwordx4 v{vL16}, {srd(S_X0)}, s{sT1} offen {'nt ' if OPT['xnt'] & 2 else ''}lds", res_w=[f"x0"])
    a("s_mov_b64 exec, -1")


def aux_work():
    XR = 8
    a(f"""v_mov_b32 v76, 0
v_mov_b32 v77, 0
v_mov_b32 v78, 0
v_mov_b32 v79, 0
s_lshl_b32 s{sT1}, s16, {8 if emode(4) == "C" else 7}
s_add_u32 s{sT1}, s{sT1}, {ST1}
s_lshl_b32 s18, s{sAUX}, 7
s_add_u32 s18, s18, {ST0}
s_mov_b64 exec, {"0xffff" if emode(4) == "C" else "0xff"}""")
    a(f"buffer_store_dwordx4 v[76:79], v{vL16}, {srd(S_WS)}, s{sT1} offen sc1", tag="st0")
    a(f"""s_mov_b64 exec, -1
v_and_b32 v2, 15, v{vLANE}
v_lshrrev_b32 v3, 4, v{vLANE}
v_mul_u32_u24 v4, 912, v2
v_lshl_add_u32 v4, v3, 4, v4
v_add_u32 v4, s17, v4
v_lshrrev_b32 v6, 2, v2
v_cmp_eq_u32 vcc, v6, v3
v_bfe_u32 v6, v2, 1, 2
v_lshlrev_b32 v6, 7, v6
v_lshrrev_b32 v7, 3, v2
v_lshl_add_u32 v6, v7, 4, v6
v_and_b32 v7, 1, v2
v_lshl_add_u32 v6, v7, 2, v6
s_lshl_b32 s{sT0}, s{sWAVE}, 5
s_add_u32 s{sT0}, s{sT0}, 60000
v_add_u32 v6, s{sT0}, v6
v_mov_b32 v7, 61024
v_cndmask_b32 v6, v7, v6, vcc
v_lshrrev_b32 v117, 3, v{vLANE}
v_cmp_eq_u32 vcc, s{sWAVE}, v117
v_lshlrev_b32 v117, 12, v117
v_and_b32 v7, 7, v{vLANE}
v_lshl_add_u32 v117, v7, 4, v117
v_mov_b32 v7, {OOB}
v_cndmask_b32 v117, v7, v117, vcc
v_mov_b32 v80, 0x3f803f80
v_mov_b32 v81, 0x3f803f80
v_mov_b32 v82, 0x3f803f80
v_mov_b32 v83, 0x3f803f80""")
    if OPT["stamps"] == 1:
        a.wait_vm0()
    stamp("aux data")
    for k in range(14):
        a(f"ds_read_b128 {vr(XR + 4 * k, 4)}, v4 offset:{64 * k}", res_r=["x0"])
    for k in range(14):
        x = vr(XR + 4 * k, 4)
        a(f"v_mfma_f32_16x16x32_bf16 v[64:67], v[80:83], {x}, {'v[64:67]' if k else 0}")
        a(f"v_mfma_f32_16x16x32_bf16 v[68:71], {x}, {x}, {'v[68:71]' if k else 0}")
    a(f"""v_cndmask_b32 v68, v68, v69, {sp(sM1)}
v_cndmask_b32 v70, v70, v71, {sp(sM1)}
v_cndmask_b32 v68, v68, v70, {sp(sM2)}""")
    a("ds_write2_b32 v6, v64, v68 offset0:0 offset1:2")
    a.barrier()
    a(f"ds_read_b128 v[64:67], v{vL16} offset:60000")
    a(f"buffer_store_dwordx4 v[64:67], v117, {srd(S_WS)}, s18 offen sc1", tag="st0")
    stamp("aux st")
    nonce_take()
    flag_put(0, f"s_add_u32 s{sT0}, s{sAUX}, 224\ns_lshl_b32 s{sT0}, s{sT0}, 6", 72, "st0")


def xt_loads():
    a(f"""s_lshl_b32 s{sT0}, s{sPAIR}, 1
s_lshr_b32 s{sT1}, s{sWAVE}, 1
s_add_u32 s{sT0}, s{sT0}, s{sT1}
s_mul_i32 s{sT1}, s{sT0}, 9363
s_lshr_b32 s{sT1}, s{sT1}, 16
s_mul_i32 s{sT2}, s{sT1}, 7
s_sub_u32 s{sT0}, s{sT0}, s{sT2}
s_lshl_b32 s{sT0}, s{sT0}, 1
s_and_b32 s{sT2}, s{sWAVE}, 1
s_add_u32 s{sT0}, s{sT0}, s{sT2}
s_mul_i32 s{sT2}, s{sT1}, {32 * 896}
s_lshl_b32 s{sT3}, s{sT0}, 6
s_add_u32 s{sT2}, s{sT2}, s{sT3}
v_lshrrev_b32 v2, 2, v{vLANE}
v_mul_u32_u24 v2, 896, v2
v_and_b32 v3, 3, v{vLANE}
v_lshl_add_u32 v2, v3, 4, v2
s_mul_i32 s22, s{sWAVE}, {GST}
s_mov_b32 m0, s22
s_mul_i32 s23, s{sT1}, {BS}""")
    a(f"buffer_load_dwordx4 v2, {srd(S_X0)}, s{sT2} offen {'nt ' if OPT['xnt'] & 1 else ''}lds", res_w=["x0"])
    a(f"s_add_u32 m0, m0, 1024\ns_add_u32 s{sT2}, s{sT2}, {16 * 896}")
    a(f"buffer_load_dwordx4 v2, {srd(S_X0)}, s{sT2} offen {'nt ' if OPT['xnt'] & 1 else ''}lds", res_w=["x0"])
    a(f"""s_lshl_b32 s{sT0}, s{sT0}, 11
s_add_u32 s23, s23, s{sT0}
s_add_u32 s23, s23, {X0}
v_lshrrev_b32 v2, 4, v{vLANE}
v_bfe_u32 v36, v{vLANE}, 2, 2
v_lshl_add_u32 v36, v2, 3, v36
v_lshlrev_b32 v36, 6, v36
v_lshl_add_u32 v36, v3, 3, v36
v_add_u32 v36, s22, v36
v_and_b32 v37, 15, v{vLANE}
v_lshlrev_b32 v37, 6, v37
v_lshl_add_u32 v37, v2, 4, v37""")


def xt_work():
    for u in range(2):
        for j in range(2):
            a(f"ds_read_b64_tr_b16 {vr(40 + 4 * u + 2 * j, 2)}, v36 offset:{j * 256 + u * 32}", res_r=["x0"])
    for u in range(2):
        a(f"buffer_store_dwordx4 {vr(40 + 4 * u, 4)}, v37, {srd(S_WS)}, s23 offen offset:{1024 * u} sc1", tag="st0")


def xt_poll_addr(ra, t):
    a(f"""s_lshl_b32 s{sT0}, s{sWAVE}, 4
v_and_b32 v{t}, 15, v{vLANE}
v_add_u32 v{t}, s{sT0}, v{t}
v_mul_u32_u24 v{t}, 7, v{t}
s_lshr_b32 s{sT0}, s{sPAIR}, 5
v_add_u32 v{t}, s{sT0}, v{t}
v_lshrrev_b32 v{t}, 1, v{t}
s_lshl_b32 s{sT0}, s{sWAVE}, 3
s_add_u32 s{sT0}, s{sT0}, 224
v_and_b32 v{ra}, 7, v{vLANE}
v_add_u32 v{ra}, s{sT0}, v{ra}
v_cmp_gt_u32 vcc, 16, v{vLANE}
v_cndmask_b32 v{ra}, v{ra}, v{t}, vcc""")


def e1_poll_addr(ra):
    a(f"s_lshl_b32 s{sT0}, s{sWAVE}, 6\nv_add_u32 v{ra}, s{sT0}, v{vLANE}")


def nonce_take():
    a(f"v_readfirstlane_b32 s{sNONCE}, v104\nv_readfirstlane_b32 s{sNONCE + 1}, v105")
    a(f"s_add_u32 s{sNONCE}, s{sNONCE}, 1")
    a(f"s_addc_u32 s{sNONCE + 1}, s{sNONCE + 1}, 0")


def nonce_retire():
    l = label("nr")
    a(f"s_or_b32 s{sT0}, s2, s{sWAVE}")
    a(f"s_cmp_lg_u32 s{sT0}, 32")
    a(f"s_cbranch_scc1 {l}")
    a(f"v_mov_b32 v110, s{sNONCE}\nv_mov_b32 v111, s{sNONCE + 1}\ns_mov_b64 exec, 1")
    a(f"buffer_store_dwordx2 v[110:111], off, {srd(S_WS)}, 0 offset:{EPOCH} sc1", optional=True)
    a("s_mov_b64 exec, -1")
    a(f"{l}:")


def flag_put(edge, sprod, r, tag):
    a(f"s_lshl_b32 s{sT0}, s{sprod}, 6" if isinstance(sprod, int) else sprod)
    a(f"""s_lshl_b32 s{sT1}, s{sWAVE}, 15
s_add_u32 s{sT0}, s{sT0}, s{sT1}
s_add_u32 s{sT0}, s{sT0}, {FL + edge * 0x20000}
v_lshlrev_b32 v{r + 4}, 12, v{vLANE}
v_and_b32 v{r + 4}, 0x4000, v{r + 4}
v_and_b32 v{r}, 3, v{vLANE}
v_lshl_add_u32 v{r + 4}, v{r}, 4, v{r + 4}
v_mov_b32 v{r}, s{sNONCE}
v_mov_b32 v{r + 1}, s{sNONCE + 1}
v_mov_b32 v{r + 2}, s{sNONCE}
v_mov_b32 v{r + 3}, s{sNONCE + 1}""")
    a.wait_tag(tag)
    a.barrier()
    a("s_mov_b64 exec, 0xff")
    a(f"buffer_store_dwordx4 {vr(r, 4)}, v{r + 4}, {srd(S_WS)}, s{sT0} offen sc1", tag="flag")
    a("s_mov_b64 exec, -1")


def emode(e):
    return OPT["em"][e - 1]


def hinted(e):
    return emode(e) in "HSMGC"


def sentinel(e):
    return emode(e) in "SDM"


def flagged(e):
    return emode(e) in "FHG"


def armed(layer):
    return any(sentinel(e + 4 * layer) for e in (1, 2, 3))


def wait_edge(e, r, ra_full, ra_samp):
    if hinted(e):
        poll_issue(e + 10, r, ra_samp)
        poll_take(r, ra_samp)
    elif emode(e) == "D":
        a.wait_tag("pub")
    else:
        a.wait_tag("flag")
    if flagged(e):
        poll_issue(e, r, ra_full)
        poll_take(r, ra_full)


def hint_prep(edge, sprod, r):
    a(f"s_lshl_b32 s{sT0}, s{sprod}, 6" if isinstance(sprod, int) else sprod)
    a(f"""s_lshl_b32 s{sT1}, s{sWAVE}, 15
s_add_u32 s{sT0}, s{sT0}, s{sT1}
s_add_u32 s{sT0}, s{sT0}, {FL + edge * 0x20000}
v_lshlrev_b32 v{r + 4}, 12, v{vLANE}
v_and_b32 v{r + 4}, 0x4000, v{r + 4}
v_and_b32 v{r}, 3, v{vLANE}
v_lshl_add_u32 v{r + 4}, v{r}, 4, v{r + 4}
v_add_u32 v{r + 4}, s{sT0}, v{r + 4}
v_mov_b32 v{r}, s{sNONCE}
v_mov_b32 v{r + 1}, s{sNONCE + 1}
v_mov_b32 v{r + 2}, s{sNONCE}
v_mov_b32 v{r + 3}, s{sNONCE + 1}""")


def hint_put(r):
    a("s_mov_b64 exec, 0xff")
    a(f"buffer_store_dwordx4 {vr(r, 4)}, v{r + 4}, {srd(S_WS)}, 0 offen sc1", tag="hint")
    a("s_mov_b64 exec, -1")


def poll_issue(edge, r, ra=None):
    ra = r + 2 if ra is None else ra
    a(f"""s_lshl_b32 s{sT3}, s{sX}, 14
s_add_u32 s{sT3}, s{sT3}, {FL + edge * 0x20000}
v_lshl_add_u32 v{ra}, v{ra}, 6, s{sT3}
buffer_load_dwordx2 {vr(r, 2)}, v{ra}, {srd(S_WS)}, 0 offen sc1""")


def poll_take(r, ra=None):
    ra = r + 2 if ra is None else ra
    ok, lp = label("pok"), label("plp")
    a(f"v_cmp_ne_u64 vcc, {sp(sNONCE)}, {vr(r, 2)}")
    a(f"s_cbranch_vccz {ok}")
    a(f"s_mov_b32 s{sCNT}, 0")
    a(f"{lp}:")
    if OPT["slp"]:
        a(f"s_sleep {OPT['slp']}")
    a(f"buffer_load_dwordx2 {vr(r, 2)}, v{ra}, {srd(S_WS)}, 0 offen sc1")
    a("s_waitcnt vmcnt(0)")
    a(f"v_cmp_ne_u64 vcc, {sp(sNONCE)}, {vr(r, 2)}")
    a(f"s_add_u32 s{sCNT}, s{sCNT}, 1")
    a(f"s_cbranch_vccz {ok}")
    a(f"s_cmp_lt_u32 s{sCNT}, 0x100000")
    a(f"s_cbranch_scc1 {lp}")
    a(f"{ok}:")


sW1O, sW2O = 98, 99
sROT1, sROT2 = 33, 35
sW1E, sW2E = 78, 79


def w_setup():
    a(f"""v_lshrrev_b32 v2, 3, v{vLANE}
v_and_b32 v3, 7, v{vLANE}
v_bfe_u32 v4, v{vLANE}, 4, 1
v_lshlrev_b32 v4, 2, v4
v_xor_b32 v3, v3, v4
v_lshlrev_b32 v3, 4, v3
v_mul_u32_u24 v{vD1}, 3584, v2
v_add_u32 v{vD1}, v{vD1}, v3
v_lshl_add_u32 v{vD2}, v2, 12, v3
v_bfe_u32 v2, v{vLANE}, 2, 2
v_lshrrev_b32 v3, 5, v{vLANE}
v_bfe_u32 v4, v{vLANE}, 4, 1
v_and_b32 v5, 3, v{vLANE}
v_lshlrev_b32 v5, 3, v5
v_lshl_add_u32 v5, v4, 5, v5
v_lshrrev_b32 v4, 1, v2
v_lshl_add_u32 v5, v4, 6, v5
s_lshr_b32 s{sT0}, s{sWAVE}, 1
s_lshl_b32 s{sT0}, s{sT0}, 6
v_xor_b32 v5, s{sT0}, v5
v_lshl_add_u32 v5, v2, 7, v5
s_mul_i32 s{sT1}, s{sWAVE}, 24576
s_add_u32 s{sT1}, s{sT1}, {W2L}
v_add_u32 v5, s{sT1}, v5
v_lshl_add_u32 v{vT1a}, v3, 10, v5
v_xor_b32 v{vT1b}, 64, v{vT1a}
v_lshl_add_u32 v{vT2a}, v3, 9, v5
v_xor_b32 v{vT2b}, 64, v{vT2a}
s_mul_i32 s{sW1O}, s{sWAVE}, {512 * 3584}
s_lshl_b32 s{sT0}, s{sNT}, 7
s_add_u32 s{sW1O}, s{sW1O}, s{sT0}
s_mul_i32 s{sW2O}, s{sWAVE}, {448 * 4096}
s_lshl_b32 s{sT0}, s{sST}, 7
s_add_u32 s{sW2O}, s{sW2O}, s{sT0}
s_mov_b32 s{sWOFF}, s{sT1}""")
    if OPT["rot"] and OPT["map18"] == 1:
        if OPT["rot"] == 2:
            a(f"""s_add_u32 s{sROT1}, s{sDT1}, s{sX}
s_and_b32 s{sROT1}, s{sROT1}, 7
s_add_u32 s{sROT2}, s{sDT2}, s{sX}
s_cmp_ge_u32 s{sROT2}, 7
s_cselect_b32 s{sT0}, 7, 0
s_sub_u32 s{sROT2}, s{sROT2}, s{sT0}""")
        else:
            a(f"s_mov_b32 s{sROT1}, s{sDT1}\ns_mov_b32 s{sROT2}, s{sDT2}")
    elif OPT["rot"] == 3:
        a(f"""s_and_b32 s{sT0}, s{sDT1}, 3
s_lshr_b32 s{sT1}, s{sDT1}, 2
s_add_u32 s{sT1}, s{sT1}, 2
s_mul_i32 s{sROT1}, s{sT0}, s{sT1}
s_min_u32 s{sROT1}, s{sROT1}, 7
s_and_b32 s{sT0}, s{sDT2}, 3
s_lshr_b32 s{sT1}, s{sDT2}, 2
s_add_u32 s{sT1}, s{sT1}, 2
s_mul_i32 s{sROT2}, s{sT0}, s{sT1}
s_min_u32 s{sROT2}, s{sROT2}, 5""")
    elif OPT["rot"]:
        a(f"""s_and_b32 s{sT0}, s{sDT1}, 3
s_lshl_b32 s{sT0}, s{sT0}, 1
s_lshr_b32 s{sT1}, s{sDT1}, 2
s_add_u32 s{sT0}, s{sT0}, s{sT1}
s_and_b32 s{sROT1}, s{sT0}, 7
s_and_b32 s{sT0}, s{sDT2}, 3
s_lshl_b32 s{sT0}, s{sT0}, 1
s_lshr_b32 s{sT1}, s{sDT2}, 2
s_add_u32 s{sT0}, s{sT0}, s{sT1}
s_min_u32 s{sROT2}, s{sT0}, 6""")
        if OPT["map18"] == 2:
            a(f"s_mov_b32 s{sROT2}, s{sDT2}")
    else:
        a(f"s_mov_b32 s{sROT1}, 0\ns_mov_b32 s{sROT2}, 0")
    a(f"""s_add_u32 s{sW1E}, s{sW1O}, {512 * 3584}
s_mul_i32 s{sT0}, s{sROT1}, {64 * 3584}
s_add_u32 s{sW1O}, s{sW1O}, s{sT0}
s_add_u32 s{sW2E}, s{sW2O}, {448 * 4096}
s_mul_i32 s{sT0}, s{sROT2}, {64 * 4096}
s_add_u32 s{sW2O}, s{sW2O}, s{sT0}""")


WORDER = list(range(0, 4)) + list(range(32, 36)) + list(range(4, 32)) + list(range(36, 60))


def w_dma(pos, half):
    return w_dma_n(WORDER[pos], pos % 12, half, pos)


def w_dma_n(n, slot, half, pos=99):
    pol = ("", "nt ", "sc1 ", "sc0 sc1 ", "sc0 sc1 nt ")[OPT["wnt"]] if (OPT["wnta"] or pos < 2 * OPT["wg"]) else ""
    g = [Ins(f"s_add_u32 m0, s{sWOFF}, {slot * 2048 + half * 1024}")]
    if n < 32:
        g.append(Ins(f"s_add_u32 s{sW1O}, s{sW1O}, {8 * 3584}") if (n or half) else Ins("s_nop 0"))
        if n and n % 4 == 0 and half == 0:
            g += [Ins(f"s_cmp_eq_u32 s{sW1O}, s{sW1E}"), Ins(f"s_cselect_b32 s3, {512 * 3584}, 0"), Ins(f"s_sub_u32 s{sW1O}, s{sW1O}, s3")]
        g.append(Ins(f"buffer_load_dwordx4 v{vD1}, {srd(S_W1)}, s{sW1O} offen {pol}lds", res_w=[f"slot{slot}"]))
    else:
        g.append(Ins(f"s_add_u32 s{sW2O}, s{sW2O}, {8 * 4096}") if (n > 32 or half) else Ins("s_nop 0"))
        if n > 32 and n % 4 == 0 and half == 0:
            g += [Ins(f"s_cmp_eq_u32 s{sW2O}, s{sW2E}"), Ins(f"s_cselect_b32 s3, {448 * 4096}, 0"), Ins(f"s_sub_u32 s{sW2O}, s{sW2O}, s3")]
        g.append(Ins(f"buffer_load_dwordx4 v{vD2}, {srd(S_W2)}, s{sW2O} offen {pol}lds", res_w=[f"slot{slot}"]))
    return g


def w_tr(pos):
    return w_tr_n(WORDER[pos], pos % 12)


def wone(n0, n1, nt):
    g = [w_dma_n(n, n % 12, h) for n in range(n0, n0 + 12) for h in range(2)]
    for n in range(n0, nt + 1):
        if n < nt:
            g.append(w_tr_n(n, n % 12))
        if n > n0 and n + 11 < n1:
            g += [w_dma_n(n + 11, (n + 11) % 12, h) for h in range(2)]
    return g


def w_tr_n(n, slot):
    g = []
    for nb in range(2):
        for j in range(2):
            if n < 32:
                r = (n * 2 + nb) * 4 + 2 * j
                g.append(Ins(f"ds_read_b64_tr_b16 a[{r}:{r + 1}], v{(vT1a, vT1b)[nb]} offset:{slot * 2048 + j * 512}", res_r=[f"slot{slot}"]))
            else:
                r = 128 + ((n - 32) * 2 + nb) * 4 + 2 * j
                g.append(Ins(f"ds_read_b64_tr_b16 v[{r}:{r + 1}], v{(vT2a, vT2b)[nb]} offset:{slot * 2048 + j * 1024}", res_r=[f"slot{slot}"]))
    return g


def w_all_upfront():
    for n in range(12):
        a.put(w_dma(n, 0)); a.put(w_dma(n, 1))
    for n in range(48):
        a.put(w_tr(n))
        if n >= 1:
            a.put(w_dma(n + 11, 0)); a.put(w_dma(n + 11, 1))
    a.put(w_dma(59, 0)); a.put(w_dma(59, 1))
    a.wait_vm0()
    a.wait_lgkm0()


GX = 80
CS = 64
PR = 56
TAB = 104


def kgen_loads():
    a(f"""s_lshl_b32 s{sT0}, s{sPAIR}, 10
s_lshl_b32 s{sT1}, s{sWAVE}, 8
s_add_u32 s{sT0}, s{sT0}, s{sT1}
v_lshl_add_u32 v3, v{vLANE}, 2, s{sT0}""")
    for k, p in enumerate((P_ARE, P_AIM, P_BRE, P_BIM, P_CRE, P_CIM)):
        a(f"global_load_dword v{PR + k}, v3, {sp(p)}{' nt' if OPT['pnt'] else ''}")


def kgen_table_addr():
    l = label("pc")
    a(f"s_getpc_b64 {sp(sTAB)}")
    a(f"{l}:")
    a(f"s_add_u32 s{sTAB}, s{sTAB}, ktab-{l}")
    a(f"s_addc_u32 s{sTAB + 1}, s{sTAB + 1}, 0")


def kgen_table_load():
    kgen_table_addr()
    a(f"s_lshr_b32 s{sT0}, s{sWAVE}, 1\ns_lshl_b32 s{sT0}, s{sT0}, 5\nv_lshl_add_u32 v75, v0, 5, s{sT0}")


KBG = []


def kgen(hooks):
    F = {e: 2 * e for e in range(1, 8)}
    Qr = {1: 16, 2: 18, 3: 20, 4: 22}
    QN = [24, 26]
    Z1, Z2, C0, C1 = 28, 30, 32, 34
    CN = [36, 38]
    T0, T1 = 62, 64
    CV = [66, 67, 68, 69]
    A2, B2, DT = 70, 71, 72
    ACC = 76
    QF = 88
    PF = 40
    vG, vF = 73, 74
    a(f"""s_mul_i32 s{sT0}, s{sWAVE}, {GST}
v_lshl_add_u32 v{vG}, v{vLANE}, 2, s{sT0}
v_and_b32 v2, 15, v{vLANE}
v_mul_u32_u24 v2, {GROW}, v2
v_lshrrev_b32 v3, 4, v{vLANE}
v_lshl_add_u32 v2, v3, 4, v2
v_add_u32 v{vF}, s{sT0}, v2""")
    a.begin()
    a(f"""s_lshr_b32 s{sT0}, s{sWAVE}, 1
s_lshl_b32 s{sT0}, s{sT0}, 4
s_lshr_b32 s{sT0}, s{sLDT}, s{sT0}
s_lshl_b32 s{sT0}, s{sT0}, 16
v_mov_b32 v2, {f32(math.log2(math.e))}
v_mul_f32 v2, s{sT0}, v2
v_exp_f32 v2, v2
v_cvt_pk_bf16_f32 v2, v2, v2
v_lshlrev_b32 v{DT}, 16, v2
s_and_b32 s{sD1}, s{sD0}, 0xffff0000
s_lshl_b32 s{sD0}, s{sD0}, 16""")
    cvi = [0]

    def hook(name):
        if name is not None and name not in hooks:
            return
        a_body = space_ds(a.end(), OPT["lag"], OPT["gap"])
        m, rest = merge(a_body, KBG[:], 20, OPT["ev_kg"])
        del KBG[:]
        a.put(m)
        put_all(rest)
        if name is not None:
            hooks[name]()
            a.begin()

    def row(r, src, neg=False):
        c = CV[cvi[0] % 4]
        cvi[0] += 1
        a(f"v_cvt_pk_bf16_f32 v{c}, v{src}, {'-' if neg else ''}v{src + 1}")
        a(f"ds_write_b32 v{vG}, v{c} offset:{r * GROW}")

    def reads(dst, tile):
        for ks in range(4):
            a(f"ds_read_b128 {vr(dst + 4 * ks, 4)}, v{vF} offset:{tile * 16 * GROW + ks * 64}")

    def mfmas(t, first):
        for ks in range(4):
            c = "0" if (first and ks == 0) else vr(ACC + 4 * t, 4)
            a(f"v_mfma_f32_16x16x32_bf16 {vr(ACC + 4 * t, 4)}, {vr(PF + 4 * ks, 4)}, {vr(QF + 4 * ks, 4)}, {c}")

    def direct(d, scale):
        if scale != 1:
            a(f"v_mul_f32 v{T0}, {f32(scale)}, v{A2}")
            a(f"v_mul_f32 v{T1}, {f32(scale)}, v{B2}")
            x, y = T0, T1
        else:
            x, y = A2, B2
        a(f"v_fract_f32 v{T1}, v{y}")
        a(f"v_exp_f32 v{T0}, v{x}")
        a(f"v_cos_f32 v{d}, v{T1}")
        a(f"v_sin_f32 v{d + 1}, v{T1}")
        a(f"v_pk_mul_f32 {vr(d, 2)}, {vr(d, 2)}, {vr(T0, 2)} op_sel_hi:[1,0]")

    for rd in range(2):
        def up(d, s):
            a(f"v_lshlrev_b32 v{d}, 16, v{s}" if rd == 0 else f"v_and_b32 v{d}, s0, v{s}")
        up(A2, PR); up(B2, PR + 1)
        up(QN[0], PR + 2); up(QN[0] + 1, PR + 3)
        up(QN[1], PR + 4); up(QN[1] + 1, PR + 5)
        a(f"v_mul_f32 v{A2}, v{DT}, v{A2}")
        a(f"v_mul_f32 v{B2}, v{DT}, v{B2}")
        a(f"v_pk_mul_f32 {vr(QN[0], 2)}, {vr(QN[0], 2)}, {vr(DT, 2)} op_sel_hi:[1,0]")
        a(f"v_mul_f32 v{A2}, {f32(math.log2(math.e))}, v{A2}")
        a(f"v_mul_f32 v{B2}, {f32(1 / (2 * math.pi))}, v{B2}")
        cmul2((C0, QN[1], QN[0]))
        direct(F[1], 1)
        if rd == 1:
            mfmas(2, True)
        direct(Z1, 128)
        hook(5 * rd)
        cmul2((F[2], F[1], F[1]), (Z2, Z1, Z1))
        cmul2((F[4], F[2], F[2]), (F[3], F[2], F[1]))
        cmul2((Qr[1], F[4], F[4]), (C1, C0, Z1))
        a(f"v_mov_b32 v{CV[3]}, 0x3f80")
        a(f"ds_write_b32 v{vG}, v{CV[3]}")
        cmul2((Qr[2], Qr[1], Qr[1]), (F[5], F[4], F[1]))
        row(1, Qr[1], True)
        cmul2((Qr[3], Qr[2], Qr[1]), (Qr[4], Qr[2], Qr[2]))
        row(2, Qr[2], True)
        cmul2((F[6], F[4], F[2]), (F[7], F[4], F[3]))
        row(3, Qr[3], True)
        row(4, Qr[4], True)
        cur = {1: Qr[1], 2: Qr[2], 3: Qr[3], 0: Qr[4]}
        free = list(QN) + [CN[0]]
        j = 5
        while j < 16:
            js = [j] + ([j + 1] if j + 1 < 16 else [])
            ps = []
            for jj in js:
                d = free.pop(0)
                ps.append((d, cur[jj % 4], Qr[4]))
            cmul2(*ps)
            for jj, p in zip(js, ps):
                if cur[jj % 4] != Qr[4]:
                    free.append(cur[jj % 4])
                cur[jj % 4] = p[0]
                row(jj, p[0], True)
            j += 2
        reads(QF, 0)
        hook(5 * rd + 1)
        TA, TB = QN
        row(16, C0); row(24, C1)
        for e in range(1, 8):
            cmul2((TA, C0, F[e]), (TB, C1, F[e]))
            row(16 + e, TA); row(24 + e, TB)
        reads(PF, 1)
        hook(5 * rd + 2)
        ca, cb = C0, C1
        na, nb_ = CN
        def adv():
            nonlocal ca, cb, na, nb_
            cmul2((na, ca, Z2), (nb_, cb, Z2))
            ca, cb, na, nb_ = na, nb_, ca, cb
        adv()
        row(32, ca); row(36, cb)
        for e in range(1, 4):
            cmul2((TA, ca, F[2 * e]), (TB, cb, F[2 * e]))
            row(32 + e, TA); row(36 + e, TB)
        mfmas(0, rd == 0)
        for k in range(2):
            adv()
            row(40 + 4 * k, ca); row(42 + 4 * k, cb)
            cmul2((TA, ca, F[4]), (TB, cb, F[4]))
            row(41 + 4 * k, TA); row(43 + 4 * k, TB)
        reads(PF, 2)
        hook(5 * rd + 3)
        for k in range(4):
            adv()
            row(48 + 2 * k, ca); row(49 + 2 * k, cb)
        cmul2((na, ca, Z2))
        row(56, na)
        mfmas(1, rd == 0)
        reads(PF, 3)
        hook(5 * rd + 4)
    hook(None)
    a(f"s_mul_i32 s{sT0}, s{sWAVE}, {GST}")
    a(f"v_add_u32 v{vF}, s{sT0}, v{vL16}")
    a(f"v_mov_b32 v{CV[0]}, 0")
    for k in range(8):
        a(f"v_and_b32 v{2 + 2 * k}, s1, v{TAB + k}")
        a(f"v_lshrrev_b32 v{3 + 2 * k}, 16, v{TAB + k}")
    for t in range(2):
        a(f"ds_write_b128 v{vF}, {vr(ACC + 4 * t, 4)} offset:{TOFF + t * 1024}")
    mfmas(2, False)
    a(f"ds_write_b32 v{vG}, v{CV[0]} offset:{TOFF + 3072}")
    a("v_and_b32 v18, 0xffff, v0\nv_lshrrev_b32 v19, 16, v0\nv_and_b32 v20, 0xffff, v1")
    a(f"ds_write_b128 v{vF}, {vr(ACC + 8, 4)} offset:{TOFF + 2048}")


def kzero(r):
    a(f"""v_mov_b32 v{r}, 0
v_mov_b32 v{r + 1}, 0
v_mov_b32 v{r + 2}, 0
v_mov_b32 v{r + 3}, 0
v_bfe_u32 v{r + 4}, v{vLANE}, 1, 3
v_mul_u32_u24 v{r + 4}, {KST}, v{r + 4}
v_and_b32 v{r + 5}, 1, v{vLANE}
v_lshl_add_u32 v{r + 4}, v{r + 5}, 4, v{r + 4}
s_and_b32 s{sT0}, s{sWAVE}, 1
s_mul_i32 s{sT0}, s{sT0}, {UST}
v_add_u32 v{r + 5}, s{sT0}, v{vL16}""")
    return [f"ds_write_b128 v{r + 4}, {vr(r, 4)} offset:4096", f"ds_write_b128 v{r + 5}, {vr(r, 4)} offset:{UB}"]


def kaddr(r):
    a(f"""s_lshr_b32 s{sT0}, s{sWAVE}, 1
s_and_b32 s{sT1}, s{sWAVE}, 1
s_lshl_b32 s{sT1}, s{sT1}, 11
v_lshl_add_u32 v{r + 3}, v{vLANE}, 5, s{sT1}""")
    for c in range(4):
        a(f"s_cmp_lg_u32 s{sT0}, 0")
        a(f"s_cselect_b32 s{sT2}, {KSLOT[1][c]}, {KSLOT[0][c]}")
        a(f"s_mul_i32 s{sT2}, s{sT2}, {KST}")
        a(f"v_add_u32 v{r + c}, s{sT2}, v{r + 3}")


def kexpand(mid):
    AD, VAL = 2, 22
    P0, P1, P2, P3 = 2, 12, 88, 96
    a.barrier()
    for k in range(19):
        a(f"ds_read2st64_b32 {vr(VAL + 2 * k, 2)}, v{AD + k} offset0:{TOFF // 256} offset1:{TOFF // 256 + GST // 256}")
    mid()
    kaddr(60)
    zw = kzero(104)
    if OPT["h_load"] < 10:
        for k in range(24):
            a(f"v_accvgpr_read_b32 v{CS + k}, a{k}")
    for k in range(19):
        a(f"v_add_f32 v{VAL + 2 * k}, v{VAL + 2 * k}, v{VAL + 2 * k + 1}")
        if k:
            a(f"v_cvt_pk_bf16_f32 v{(P0 if k & 1 else P1) + (k - 1) // 2}, v{VAL + 2 * k - 2}, v{VAL + 2 * k}")
    a.barrier()
    a.begin()
    for l in zw:
        a(l)
    for c, P in ((0, P0), (1, P1)):
        a(f"ds_write_b128 v{60 + c}, {vr(P, 4)}")
        a(f"ds_write_b128 v{60 + c}, {vr(P + 4, 4)} offset:16")
    for c, P, src in ((2, P2, P0), (3, P3, P1)):
        for i in range(4):
            a(f"v_pk_mov_b32 {vr(P + 2 * i, 2)}, {vr(src + 2 * i, 2)}, {vr(src + 2 * i + 2, 2)} op_sel:[1,0]")
        a(f"ds_write_b128 v{60 + c}, {vr(P, 4)}")
        a(f"ds_write_b128 v{60 + c}, {vr(P + 4, 4)} offset:16")
    return a.end()


def kcopies():
    R, E, M = 2, 12, 22
    kaddr(40)
    a(f"""ds_read_b128 {vr(R, 4)}, v40
ds_read_b128 {vr(R + 4, 4)}, v40 offset:16
ds_read_b64 {vr(R + 8, 2)}, v40 offset:32""")
    for l in kzero(32):
        a(l)
    for i in range(9):
        a(f"v_alignbit_b32 v{E + i}, v{R + i + 1}, v{R + i}, 16")
    a(f"ds_write_b128 v41, {vr(E, 4)}")
    a(f"ds_write_b128 v41, {vr(E + 4, 4)} offset:16")
    for i in range(4):
        a(f"v_pk_mov_b32 {vr(M + 2 * i, 2)}, {vr(R + 2 * i, 2)}, {vr(R + 2 * i + 2, 2)} op_sel:[1,0]")
    a(f"ds_write_b128 v42, {vr(M, 4)}")
    a(f"ds_write_b128 v42, {vr(M + 4, 4)} offset:16")
    for i in range(4):
        a(f"v_pk_mov_b32 {vr(R + 2 * i, 2)}, {vr(E + 2 * i, 2)}, {vr(E + 2 * i + 2, 2)} op_sel:[1,0]")
    a(f"ds_write_b128 v43, {vr(R, 4)}")
    a(f"ds_write_b128 v43, {vr(R + 4, 4)} offset:16")


cvA, cvB, cvZ, cvXW, cvXR, cvO, cvU, cvX, cvH, cvP = 112, 113, 114, 115, 116, 117, 118, 119, 100, 108
STUBS = []


def conv_poll1():
    r = cvP
    a(f"""v_lshrrev_b32 v{r}, 3, v{vLANE}
v_min_u32 v{r}, 6, v{r}
v_and_b32 v{r + 1}, 7, v{vLANE}
v_lshl_add_u32 v{r + 2}, v{r}, 5, v{r + 1}
s_lshl_b32 s{sT0}, s{sWAVE}, 3
v_add_u32 v{r + 2}, s{sT0}, v{r + 2}
v_and_b32 v{r + 1}, 7, v{vLANE}
v_min_u32 v{r}, 6, v{r + 1}
v_lshl_add_u32 v{r + 3}, v{r}, 5, v{r + 1}
v_add_u32 v{r + 3}, s{sT0}, v{r + 3}""")


def conv_loads():
    for p in range(4):
        a(f"buffer_load_dwordx4 {vr(CS + 4 * p, 4)}, v{vL16}, {srd(S_WS)}, s{16 + p} offen sc1")
    a(f"buffer_load_dwordx4 {vr(GX, 4)}, v{cvX}, {srd(S_WS)}, s20 offen sc1")
    a(f"buffer_load_dwordx4 {vr(GX + 4, 4)}, v{cvX}, {srd(S_WS)}, s20 offen offset:64 sc1")


CS1, GX1 = 64, 96


def conv_counted():
    XF, UF, AL, BE, UP = cXF, cUF, cAL, cBE, cUP
    again, back, stub = label("cca"), label("ccb"), label("ccs")
    xl = [f"buffer_load_dwordx4 {vr(GX1, 4)}, v{cvX}, {srd(S_WS)}, s20 offen sc1", f"buffer_load_dwordx4 {vr(GX1 + 4, 4)}, v{cvX}, {srd(S_WS)}, s20 offen offset:64 sc1"]
    a(f"s_mov_b32 s{sCNT}, 0")
    a(f"{again}:")
    for e in range(8):
        a(f"buffer_load_dwordx4 {vr(CS1 + 4 * e, 4)}, v{vL16}, {srd(S_WS)}, s{22 + e} offen sc1")
        if e == 1 and not OPT["xe"]:
            a(xl[0]); a(xl[1])

    def tok(e):
        S = CS1 + 4 * e
        a(f"v_pk_mul_f32 {vr(S, 2)}, {vr(S, 2)}, {sp(sCA)} op_sel_hi:[1,0]")
        a(f"v_fma_f32 v{S + 3}, -v{S}, v{S}, s{sCB}")
        a(f"v_add_f32 v{S + 1}, v{S + 1}, v{S + 3}")
        a(f"v_max_f32 v{S + 1}, s{sCB}, v{S + 1}")
        a(f"v_rsq_f32 v{AL + e}, v{S + 1}")
    c = [CS1 + 4 * e + 2 for e in range(8)]
    if OPT["cpipe"]:
        for p in range(4):
            tok(2 * p)
            tok(2 * p + 1)
            if p == 0:
                for k in range(8):
                    unpack(XF + 2 * k, XF + 2 * k + 1, GX1 + k)
                a(f"v_max_u32 v63, v{GX1 + 3}, v{GX1 + 7}")
                a(f"v_cmp_eq_u32 s[16:17], -1, v63")
                a(f"v_min_f32 v62, v{c[0]}, v{c[1]}")
            else:
                a(f"v_min3_f32 v62, v62, v{c[2 * p]}, v{c[2 * p + 1]}")
            if p == 3:
                a(f"v_cmp_neq_f32 vcc, {f32(14.0)}, v62")
            if OPT["mr"]:
                m0, m1 = CS1 + 8 * p, CS1 + 8 * p + 4
                a(f"v_cvt_pk_bf16_f32 v{m1}, v{m0}, v{m1}")
                unpack(m0, m1, m1)
            for e in (2 * p, 2 * p + 1):
                a(f"v_mul_f32 v{BE + e}, -v{CS1 + 4 * e}, v{AL + e}")
            for ch in range(2):
                a(f"v_pk_fma_f32 {vr(UF + 8 * ch + 2 * p, 2)}, {vr(XF + 8 * ch + 2 * p, 2)}, {vr(AL + 2 * p, 2)}, {vr(BE + 2 * p, 2)}")
            for ch in range(2):
                a(f"v_cvt_pk_bf16_f32 v{UP + 4 * ch + p}, v{UF + 8 * ch + 2 * p}, v{UF + 8 * ch + 2 * p + 1}")
    else:
        tok(0)
        tok(1)
        for k in range(8):
            unpack(XF + 2 * k, XF + 2 * k + 1, GX1 + k)
        a(f"v_max_u32 v63, v{GX1 + 3}, v{GX1 + 7}")
        a(f"v_cmp_eq_u32 s[16:17], -1, v63")
        for e in range(2, 8):
            tok(e)
        c = [CS1 + 4 * e + 2 for e in range(8)]
        a(f"v_min3_f32 v62, v{c[0]}, v{c[1]}, v{c[2]}\nv_min3_f32 v62, v62, v{c[3]}, v{c[4]}\nv_min3_f32 v62, v62, v{c[5]}, v{c[6]}\nv_min_f32 v62, v62, v{c[7]}")
        a(f"v_cmp_neq_f32 vcc, {f32(14.0)}, v62")
        for e in range(8):
            a(f"v_mul_f32 v{BE + e}, -v{CS1 + 4 * e}, v{AL + e}")
    a("s_or_b64 vcc, vcc, s[16:17]")
    a(f"s_cbranch_vccnz {stub}")
    a(f"{back}:")
    STUBS.extend([f"{stub}:", f"s_add_u32 s{sCNT}, s{sCNT}, 1", f"s_cmp_lt_u32 s{sCNT}, {RETRY}", f"s_cbranch_scc0 {back}"] + (xl + ["s_waitcnt vmcnt(0)"] if OPT["xe"] else []) + [f"s_branch {again}"])


def conv_xearly():
    if emode(4) == "C" and OPT["xe"]:
        a.wait_tag("pub")
        a(f"buffer_load_dwordx4 {vr(GX1, 4)}, v{cvX}, {srd(S_WS)}, s20 offen sc1")
        a(f"buffer_load_dwordx4 {vr(GX1 + 4, 4)}, v{cvX}, {srd(S_WS)}, s20 offen offset:64 sc1")


def conv_setup(layer):
    a(f"""s_mov_b32 s{sCA}, {f32(1.0 / 448)}
s_mov_b32 s{sCB}, {f32(1e-5)}
s_lshl_b32 s{sT0}, s{sWAVE}, 10
v_add_u32 v{cvU}, s{sT0}, v{vL16}
s_lshr_b32 s{sT0}, s{sWAVE}, 1
s_and_b32 s{sT1}, s{sWAVE}, 1
v_and_b32 v8, 15, v{vLANE}
v_lshrrev_b32 v9, 4, v{vLANE}
v_not_b32 v10, v8
v_and_b32 v10, 3, v10""")
    for s in range(4):
        a(f"s_cmp_lg_u32 s{sT0}, 0")
        a(f"s_cselect_b32 s{sT2}, {KSLOT[1][s]}, {KSLOT[0][s]}")
        a(f"s_mul_i32 s{sT2}, s{sT2}, {KST}")
        if s == 0:
            a(f"v_mov_b32 v11, s{sT2}")
        else:
            a(f"v_mov_b32 v12, s{sT2}\nv_cmp_eq_u32 vcc, {s}, v10\nv_cndmask_b32 v11, v11, v12, vcc")
    a(f"""v_add_u32 v10, v10, v8
v_lshlrev_b32 v12, 3, v9
v_sub_u32 v12, v12, v10
v_lshl_add_u32 v11, v12, 1, v11
""")
    a(f"""s_lshl_b32 s{sT3}, s{sT1}, 8
s_sub_u32 s{sT2}, {2 * 2031 - 64 * 59}, s{sT3}
v_add_u32 v{cvA}, s{sT2}, v11
s_mul_i32 s{sT2}, s{sT0}, {UST}
s_sub_u32 s{sT2}, s{sT2}, s{sT3}
s_add_u32 s{sT2}, s{sT2}, {UB + UPAD - 2 * 112}
v_lshlrev_b32 v12, 5, v8
v_lshl_add_u32 v13, v9, 4, v12
v_add_u32 v{cvB}, s{sT2}, v13
s_lshl_b32 s{sT2}, s{sWAVE}, 11
v_lshl_add_u32 v13, v9, 3, v12
v_add_u32 v{cvZ}, s{sT2}, v13
s_xor_b32 s{sT2}, s{sWAVE}, 1
s_lshl_b32 s{sT2}, s{sT2}, 12
v_add_u32 v{cvXW}, s{sT2}, v{vL16}
s_lshl_b32 s{sT2}, s{sWAVE}, 12
v_add_u32 v{cvXR}, s{sT2}, v{vL16}
v_and_b32 v10, 1, v9
v_lshlrev_b32 v10, 3, v10
v_lshrrev_b32 v11, 1, v8
v_add_u32 v10, v10, v11
v_mul_u32_u24 v10, {BS}, v10
v_and_b32 v11, 1, v8
v_lshl_add_u32 v10, v11, 5, v10
v_lshrrev_b32 v11, 1, v9
v_lshl_add_u32 v{cvO}, v11, 4, v10
s_mul_i32 s{sT1}, s{sT1}, {32 * BS}
s_lshl_b32 s{sT2}, s{sPAIR}, 1
s_add_u32 s{sT0}, s{sT0}, s{sT2}
s_lshl_b32 s{sT0}, s{sT0}, 6
s_add_u32 s{sT0}, s{sT0}, s{sT1}
s_add_u32 s13, s{sT0}, {X1 if layer == 0 else X3}
s_add_u32 s21, s13, {16 * BS}""" if OPT["cv"] else f"""v_add_u32 v{cvA}, {2 * 2031 - 64 * 63}, v11
s_mul_i32 s{sT2}, s{sT0}, {UST}
s_lshl_b32 s{sT3}, s{sT1}, 9
s_add_u32 s{sT2}, s{sT2}, s{sT3}
s_add_u32 s{sT2}, s{sT2}, {UB + UPAD - 2 * 496}
v_lshlrev_b32 v12, 5, v8
v_lshl_add_u32 v13, v9, 4, v12
v_add_u32 v{cvB}, s{sT2}, v13
s_lshl_b32 s{sT2}, s{sT0}, 12
s_add_u32 s{sT2}, s{sT2}, s{sT3}
v_lshl_add_u32 v13, v9, 3, v12
v_add_u32 v{cvZ}, s{sT2}, v13
v_and_b32 v10, 1, v9
v_lshlrev_b32 v10, 4, v10
v_lshrrev_b32 v11, 1, v8
v_add_u32 v10, v10, v11
v_mul_u32_u24 v10, {BS}, v10
v_and_b32 v11, 1, v8
v_lshl_add_u32 v10, v11, 5, v10
v_lshrrev_b32 v11, 1, v9
v_lshl_add_u32 v{cvO}, v11, 4, v10
s_mul_i32 s{sT1}, s{sT1}, {8 * BS}
s_lshl_b32 s{sT2}, s{sPAIR}, 1
s_add_u32 s{sT0}, s{sT0}, s{sT2}
s_lshl_b32 s{sT0}, s{sT0}, 6
s_add_u32 s{sT0}, s{sT0}, s{sT1}
s_add_u32 s13, s{sT0}, {X1 if layer == 0 else X3}
s_add_u32 s21, s13, {32 * BS}""")
    a(f"""s_lshl_b32 s16, s{sWAVE}, 10
s_add_u32 s16, s16, {ST0 if layer == 0 else ST1}
s_add_u32 s17, s16, 4096
s_add_u32 s18, s16, 8192
s_add_u32 s19, s16, 12288
s_mul_i32 s20, s{sWAVE}, {16 * BS}
s_lshl_b32 s{sT2}, s{sPAIR}, 7
s_add_u32 s20, s20, s{sT2}
s_add_u32 s20, s20, {X0 if layer == 0 else X2}
v_lshrrev_b32 v10, 2, v{vLANE}
v_mul_u32_u24 v10, {BS}, v10
v_and_b32 v11, 3, v{vLANE}
v_lshl_add_u32 v{cvX}, v11, 4, v10""")
    if layer == 1 and emode(4) == "C":
        for e in range(8):
            a(f"s_add_u32 s{22 + e}, s16, {4096 * e}")


cXF, cUF, cAL, cBE, cUP = 0, 16, 32, 40, 48


def conv_pro(layer):
    XF, UF, AL, BE, UP = cXF, cUF, cAL, cBE, cUP
    if layer == 1 and emode(4) == "C":
        conv_counted()
    else:
        conv_stats()
    conv_norm(layer == 1 and emode(4) == "C" and OPT["cpipe"])


def conv_stats():
    XF, UF, AL, BE, UP = cXF, cUF, cAL, cBE, cUP
    for p in range(4):
        S = CS + 4 * p
        a(f"v_pk_mul_f32 {vr(S, 2)}, {vr(S, 2)}, {sp(sCA)} op_sel_hi:[1,0]")
    for p in range(4):
        S = CS + 4 * p
        a(f"v_pk_fma_f32 {vr(BE + 2 * p, 2)}, {vr(S, 2)}, {vr(S, 2)}, {sp(sCB)} op_sel_hi:[1,1,0] neg_lo:[1,0,0] neg_hi:[1,0,0]")
    for p in range(4):
        Q = CS + 4 * p + 2
        a(f"v_pk_fma_f32 {vr(Q, 2)}, {vr(Q, 2)}, {sp(sCA)}, {vr(BE + 2 * p, 2)} op_sel_hi:[1,0,1]")
    for p in range(4):
        Q = CS + 4 * p + 2
        a(f"v_max_f32 v{Q}, s{sCB}, v{Q}\nv_max_f32 v{Q + 1}, s{sCB}, v{Q + 1}")
    if OPT["mr"]:
        for p in range(4):
            S = CS + 4 * p
            a(f"v_cvt_pk_bf16_f32 v{S + 1}, v{S}, v{S + 1}")
        for p in range(4):
            S = CS + 4 * p
            unpack(S, S + 1, S + 1)
    for p in range(4):
        Q = CS + 4 * p + 2
        a(f"v_rsq_f32 v{AL + 2 * p}, v{Q}\nv_rsq_f32 v{AL + 2 * p + 1}, v{Q + 1}")
    for k in range(8):
        unpack(XF + 2 * k, XF + 2 * k + 1, GX + k)
    for p in range(4):
        S = CS + 4 * p
        a(f"v_pk_mul_f32 {vr(BE + 2 * p, 2)}, {vr(S, 2)}, {vr(AL + 2 * p, 2)} neg_lo:[1,0] neg_hi:[1,0]")


def conv_norm(done=False):
    XF, UF, AL, BE, UP = cXF, cUF, cAL, cBE, cUP
    for c in range(2):
        for p in range(0 if done else 4):
            a(f"v_pk_fma_f32 {vr(UF + 8 * c + 2 * p, 2)}, {vr(XF + 8 * c + 2 * p, 2)}, {vr(AL + 2 * p, 2)}, {vr(BE + 2 * p, 2)}")
        for p in range(0 if done else 4):
            a(f"v_cvt_pk_bf16_f32 v{UP + 4 * c + p}, v{UF + 8 * c + 2 * p}, v{UF + 8 * c + 2 * p + 1}")
        a(f"ds_write_b128 v{cvU}, {vr(UP + 4 * c, 4)} offset:{UB + c * UST + UPAD}")
    if OPT["cv"]:
        for i in a.capture(conv_z, 88):
            if i.kind != "dsw":
                a.put([i])


def conv_z(ZP=cXF):
    XF, UF = cXF, cUF
    for c in range(2):
        for p in range(4):
            a(f"v_pk_fma_f32 {vr(UF + 8 * c + 2 * p, 2)}, {vr(UF + 8 * c + 2 * p, 2)}, {sp((sD0, sD1)[c])}, {vr(XF + 8 * c + 2 * p, 2)} op_sel_hi:[1,0,1]")
        for p in range(4):
            a(f"v_cvt_pk_bf16_f32 v{ZP + 4 * c + p}, v{UF + 8 * c + 2 * p}, v{UF + 8 * c + 2 * p + 1}")
        a(f"ds_write_b128 v{cvU}, {vr(ZP + 4 * c, 4)} offset:{ZB + c * 4096}")


def conv_main(layer, bg=(), bg_start=0, bg_every=64):
    return (conv_main_r if OPT["cv"] else conv_main_t)(layer, bg, bg_start, bg_every)


def conv_main_r(layer, bg, bg_start, bg_every):
    ACC, BF, AR = 0, 32, 64
    NA = 6
    EX2 = ZB
    seq = [(r, q) for r in range(4) for q in range(7, -1, -1)]
    e = 1 + 4 * layer

    def rdA(i):
        r, q = seq[i]
        d = AR + 4 * (i % NA)
        off = 64 * (59 - (8 * q + r))
        return [Ins(f"ds_read_b64 {vr(d, 2)}, v{cvA} offset:{off}"), Ins(f"ds_read_b64 {vr(d + 2, 2)}, v{cvA} offset:{off + 8}")]

    def rdB(r, p):
        return [Ins(f"ds_read_b128 {vr(BF + 4 * p, 4)}, v{cvB} offset:{512 * p + 64 * (3 - r)}")]

    a.put(rdA(0)); a.put(rdB(0, 0)); a.put(rdA(1)); a.put(rdB(0, 1)); a.put(rdA(2)); a.put(rdB(0, 2)); a.put(rdA(3))
    a.put(rdB(0, 3)); a.put(rdA(4))
    for p in range(4, 8):
        a.put(rdB(0, p))
    ZR, ZF, RR = 88, 64, 32
    side = [[i] for i in a.capture(conv_z, 88) if i.kind == "dsw"]
    if hinted(e):
        side += [[i] for i in a.capture(hint_prep, e + 10, sPAIR, cvH)]
    late = [[Ins("s_barrier")]] + [[Ins(f"ds_read_b64 {vr(ZR + 2 * i, 2)}, v{cvZ} offset:{ZB + i * 512}")] for i in range(4)]
    late2 = [[Ins("s_barrier")]]
    a.begin()
    started = set()
    for i, (r, q) in enumerate(seq):
        if hinted(e) and OPT["h_cv"] < 0 and i == 32 + OPT["h_cv"]:
            hint_put(cvH)
        ps = list(range(8 - q))
        for p in ps:
            b = q + p
            c = vr(ACC + 4 * b, 4) if b in started else "0"
            started.add(b)
            a(f"v_mfma_f32_16x16x32_bf16 {vr(ACC + 4 * b, 4)}, {vr(AR + 4 * (i % NA), 4)}, {vr(BF + 4 * p, 4)}, {c}")
            if p == 0 and i + NA - 1 < len(seq):
                a.put(rdA(i + NA - 1))
            elif 1 <= q <= 4 and p >= 1:
                for lst, r0 in ((side, 0), (late, 2), (late2, 3)):
                    if lst and r >= r0:
                        a.put(lst.pop(0))
                        break
            if q == 0 and r < 3:
                a.put(rdB(r + 1, p))
    assert not side and not late and not late2
    m, rest = merge(a.end(), list(bg), bg_start, bg_every)
    a.put(m)
    stamp(f"conv{layer} loop", 111)
    if hinted(e) and OPT["h_cv"] == 0:
        hint_put(cvH)
    for k in range(8):
        unpack(ZF + 2 * k, ZF + 2 * k + 1, ZR + k)
    l1, l2 = label("cx"), label("cy")
    a(f"s_bitcmp1_b32 s{sWAVE}, 0")
    a(f"s_cbranch_scc1 {l1}")
    for h in range(2):
        for i in range(4):
            a(f"ds_write_b128 v{cvXW}, {vr(ACC + 16 * (1 - h) + 4 * i, 4)} offset:{EX2 + i * 1024}")
            for k in range(2):
                a(f"v_pk_add_f32 {vr(ZF + 4 * i + 2 * k, 2)}, {vr(ZF + 4 * i + 2 * k, 2)}, {vr(ACC + 16 * h + 4 * i + 2 * k, 2)}")
        if h == 0:
            a(f"s_branch {l2}")
            a(f"{l1}:")
    a(f"{l2}:")
    if (armed(1) if layer else (sentinel(1) and not OPT["x1s"])):
        poll_take(cvP)
    a.barrier()
    if hinted(e) and OPT["h_cv"] == 1:
        hint_put(cvH)
    for i in range(4):
        a(f"ds_read_b128 {vr(RR + 4 * i, 4)}, v{cvXR} offset:{EX2 + i * 1024}")
    PK = 56
    for i in range(4):
        for k in range(2):
            a(f"v_pk_add_f32 {vr(ZF + 4 * i + 2 * k, 2)}, {vr(ZF + 4 * i + 2 * k, 2)}, {vr(RR + 4 * i + 2 * k, 2)}")
        for k in range(2):
            a(f"v_cvt_pk_bf16_f32 v{PK + 2 * i + k}, v{ZF + 4 * i + 2 * k}, v{ZF + 4 * i + 2 * k + 1}")
        if i & 1:
            b = PK + 2 * (i - 1)
            a(f"v_permlane16_swap_b32 v{b}, v{b + 2}")
            a(f"v_permlane16_swap_b32 v{b + 1}, v{b + 3}")
            a(f"buffer_store_dwordx4 {vr(b, 4)}, v{cvO}, {srd(S_WS)}, s{21 if i == 3 else 13} offen sc1", tag="pub")
    if hinted(e) and OPT["h_cv"] == 2:
        hint_put(cvH)
    if not flagged(e):
        a.barrier()
    else:
        flag_put(1 + 4 * layer, sPAIR, 40, "pub")
    return rest


def conv_main_t(layer, bg, bg_start, bg_every):
    ACC, BF, AR = 84, 32, 64
    NA = 5
    QORD = (7, 5, 6, 3, 4, 2, 1, 0)
    seq = [(r, q) for r in range(8) for q in QORD]
    e = 1 + 4 * layer

    def rdA(i):
        r, q = seq[i]
        d = AR + 4 * (i % NA)
        off = 64 * (63 - (8 * q + r))
        return [Ins(f"ds_read_b64 {vr(d, 2)}, v{cvA} offset:{off}"), Ins(f"ds_read_b64 {vr(d + 2, 2)}, v{cvA} offset:{off + 8}")]

    def rdB(r, p):
        return [Ins(f"ds_read_b128 {vr(BF + 4 * (p + 1), 4)}, v{cvB} offset:{512 * (p + 1) + 64 * (7 - r)}")]

    a.put(rdA(0)); a.put(rdB(0, -1)); a.put(rdA(1)); a.put(rdB(0, 1)); a.put(rdA(2)); a.put(rdB(0, 0)); a.put(rdA(3))
    for p in (3, 2, 4, 5, 6):
        a.put(rdB(0, p))
    ZR, ZF = 16, 0
    side = [[i] for i in a.capture(conv_z)]
    if hinted(e):
        side += [[i] for i in a.capture(hint_prep, e + 10, sPAIR, cvH)]
    late = [[Ins("s_barrier")]] + [[Ins(f"ds_read_b64 {vr(ZR + 2 * i, 2)}, v{cvZ} offset:{ZB + i * 1024}")] for i in range(4)]
    late2 = [[i] for k in range(8) for i in a.capture(unpack, ZF + 2 * k, ZF + 2 * k + 1, ZR + k)]
    a.begin()
    started = set()
    n = 0
    for i, (r, q) in enumerate(seq):
        if hinted(e) and OPT["h_cv"] < 0 and i == 64 + OPT["h_cv"]:
            hint_put(cvH)
        first = True
        for t in range(q // 2, 4):
            p = 2 * t - q
            c = vr(ACC + 4 * t, 4) if t in started else "0"
            started.add(t)
            a(f"v_mfma_f32_16x16x32_bf16 {vr(ACC + 4 * t, 4)}, {vr(AR + 4 * (i % NA), 4)}, {vr(BF + 4 * (p + 1), 4)}, {c}")
            n += 1
            if first and i + 4 < len(seq):
                a.put(rdA(i + 4))
            elif q >= 2:
                for lst, r0 in ((side, 0), (late, 4), (late2, 5)):
                    if lst and r >= r0:
                        a.put(lst.pop(0))
                        if lst is side and lst:
                            a.put(lst.pop(0))
                        break
            first = False
            if q <= 1 and r < 7:
                a.put(rdB(r + 1, p))
    assert not side and not late and not late2
    m, rest = merge(a.end(), list(bg), bg_start, bg_every)
    a.put(m)
    stamp(f"conv{layer} loop", 111)
    if (armed(1) if layer else (sentinel(1) and not OPT["x1s"])):
        poll_take(cvP)
    if hinted(e) and OPT["h_cv"] == 0:
        hint_put(cvH)
    PK = 24
    for i in range(4):
        for k in range(2):
            a(f"v_pk_add_f32 {vr(ZF + 4 * i + 2 * k, 2)}, {vr(ZF + 4 * i + 2 * k, 2)}, {vr(ACC + 4 * i + 2 * k, 2)}")
        for k in range(2):
            a(f"v_cvt_pk_bf16_f32 v{PK + 2 * i + k}, v{ZF + 4 * i + 2 * k}, v{ZF + 4 * i + 2 * k + 1}")
        if i & 1:
            b = PK + 2 * (i - 1)
            a(f"v_permlane16_swap_b32 v{b}, v{b + 2}")
            a(f"v_permlane16_swap_b32 v{b + 1}, v{b + 3}")
            a(f"buffer_store_dwordx4 {vr(b, 4)}, v{cvO}, {srd(S_WS)}, s{21 if i == 3 else 13} offen sc1", tag="pub")
    if hinted(e) and OPT["h_cv"] > 0:
        hint_put(cvH)
    if not flagged(e):
        a.barrier()
    else:
        flag_put(1 + 4 * layer, sPAIR, 40, "pub")
    return rest


def reduce32(V, n, W):
    for i in range(n):
        a(f"v_permlane16_swap_b32 v{V[i]}, v{V[n + i]}")
    for i in range(n):
        a(f"v_add_f32 v{V[i]}, v{V[i]}, v{V[n + i]}")
    h = n // 2
    for i in range(h):
        a(f"v_add_f32_dpp v{W[i]}, v{V[i]}, v{V[i]} row_ror:8 row_mask:0xf bank_mask:0x3")
    for i in range(h):
        a(f"v_add_f32_dpp v{W[i]}, v{V[i + h]}, v{V[i + h]} row_ror:8 row_mask:0xf bank_mask:0xc")
    g = h // 2
    for i in range(g):
        a(f"v_add_f32_dpp v{V[i]}, v{W[i]}, v{W[i]} row_half_mirror row_mask:0xf bank_mask:0x5")
    for i in range(g):
        a(f"v_add_f32_dpp v{V[i]}, v{W[i + g]}, v{W[i + g]} row_half_mirror row_mask:0xf bank_mask:0xa")
    for m in ("[1,0,3,2]", "[2,3,0,1]"):
        for i in range(g):
            a(f"v_add_f32_dpp v{V[i]}, v{V[i]}, v{V[i]} quad_perm:{m} row_mask:0xf bank_mask:0xf")
    return V[:g]


def maxchain(t, regs):
    regs = list(regs)
    if OPT["chk"] == 1:
        regs = regs[3::4]
    if len(regs) == 2:
        return [f"v_max_u32 v{t}, v{regs[0]}, v{regs[1]}"]
    out = [f"v_max3_u32 v{t}, v{regs[0]}, v{regs[1]}, v{regs[2]}"]
    regs = regs[3:]
    while len(regs) >= 2:
        out.append(f"v_max3_u32 v{t}, v{t}, v{regs[0]}, v{regs[1]}")
        regs = regs[2:]
    if regs:
        out.append(f"v_max_u32 v{t}, v{t}, v{regs[0]}")
    return out


RETRY = 0x10000


def ln(layer, wide):
    X = X1 if layer == 0 else X3
    H = H1 if layer == 0 else H3
    nf = 7 if wide else 4
    sI = sLN0 if wide else sLN
    RAW, XF, S, Q, W = 0, 28, 84, 92, 100
    vO, vPW, vPR, vAW, vAR, r, hr = 109, 110, 111, 112, 117, 114, 104
    vX, vS = 64, 68
    a(f"""s_mul_i32 s{sT0}, s{sWAVE}, 56
v_min_u32 v{r + 2}, 55, v{vLANE}""")
    a(f"v_add_u32 v{r + 2}, s{sT0}, v{r + 2}")
    a(f"v_and_b32 v118, {OPT['samp'] - 1}, v{vLANE}\nv_mul_u32_u24 v118, {56 // OPT['samp']}, v118\nv_add_u32 v118, s{sT0}, v118")
    ein, eout = 1 + 4 * layer, 2 + 4 * layer
    if OPT["lnd"] and emode(ein) == "D":
        a.wait_tag("pub")
    if wide:
        a(f"""s_mul_i32 s16, s{sI}, {BS}
s_lshl_b32 s{sT2}, s{sI}, 12""")
    else:
        a(f"""s_lshr_b32 s16, s{sI}, 1
s_mul_i32 s16, s16, {BS}
s_and_b32 s{sT0}, s{sI}, 1
s_lshl_b32 s{sT0}, s{sT0}, 5
s_add_u32 s16, s16, s{sT0}
s_lshl_b32 s{sT2}, s{sI}, 11""")
    a(f"""s_mul_i32 s{sT0}, s{sWAVE}, 7168
s_add_u32 s16, s16, s{sT0}
s_add_u32 s16, s16, {X}
s_add_u32 s17, s16, 4096
s_add_u32 s{sT2}, s{sT2}, {H}
s_mul_i32 s30, s{sWAVE}, 7""")
    if wide:
        for i in range(nf):
            a(f"""s_add_u32 s{sT0}, s30, {i}
s_lshr_b32 s{sT1}, s{sT0}, 2
s_lshl_b32 s{sT1}, s{sT1}, 18
s_add_u32 s{23 + i}, s{sT1}, s{sT2}
s_and_b32 s{sT1}, s{sT0}, 2
s_lshl_b32 s{sT1}, s{sT1}, 9
s_add_u32 s{23 + i}, s{23 + i}, s{sT1}
s_and_b32 s{sT1}, s{sT0}, 1
s_lshl_b32 s{sT1}, s{sT1}, 8
s_add_u32 s{23 + i}, s{23 + i}, s{sT1}""")
        a(f"""v_lshrrev_b32 v1, 2, v{vLANE}
v_lshlrev_b32 v{vO}, 4, v1
v_and_b32 v2, 1, v{vLANE}
v_lshl_add_u32 v{vO}, v2, 9, v{vO}
v_bfe_u32 v2, v{vLANE}, 1, 1
v_lshl_add_u32 v{vO}, v2, 11, v{vO}
v_and_b32 v1, 7, v1
v_and_b32 v2, 3, v{vLANE}
v_lshl_add_u32 v1, v2, 3, v1""")
    else:
        a(f"""v_lshrrev_b32 v1, 1, v{vLANE}
v_and_b32 v2, 1, v{vLANE}
v_lshlrev_b32 v{vX}, 6, v1
v_lshl_add_u32 v{vX}, v2, 4, v{vX}
v_mov_b32 v3, {OOB}
v_cmp_gt_u32 vcc, 32, v{vLANE}
v_cndmask_b32 v{vX + 1}, v3, v{vX}, vcc
s_lshl_b32 s30, s30, 4
s_mov_b32 s23, s{sT2}""")
        for i in range(nf):
            a(f"""v_add_u32 v4, s30, v1
v_lshrrev_b32 v5, 6, v4
v_lshlrev_b32 v5, 18, v5
v_bfe_u32 v6, v4, 5, 1
v_lshl_add_u32 v5, v6, 10, v5
v_and_b32 v6, 31, v4
v_lshl_add_u32 v5, v6, 4, v5
v_lshl_add_u32 v{vS + i}, v2, 9, v5""")
            if i < 3:
                a("s_add_u32 s30, s30, 32")
        a(f"""v_cndmask_b32 v{vS + 3}, v3, v{vS + 3}, vcc
v_bfe_u32 v1, v{vLANE}, 2, 3
v_lshl_add_u32 v1, v2, 3, v1""")
    a(f"""v_lshrrev_b32 v3, 5, v{vLANE}
v_lshl_add_u32 v1, v3, 5, v1
s_lshl_b32 s{sT1}, s{sWAVE}, 8
s_add_u32 s{sT1}, s{sT1}, {LNP}
v_lshl_add_u32 v{vPW}, v1, 2, s{sT1}
v_and_b32 v1, 31, v{vLANE}
v_lshlrev_b32 v{vPR}, 2, v1
v_add_u32 v{vPR}, {LNP}, v{vPR}
s_add_u32 s{sT1}, s{sT1}, 1024
v_lshl_add_u32 v{vAW}, v{vLANE}, 2, s{sT1}
v_lshl_add_u32 v{vAR}, v2, 5, s{sT1}
s_mov_b32 s18, 0
s_mov_b32 s19, -1""")
    prod = f"s_lshl_b32 s{sT0}, s{sI}, 6"
    if hinted(eout):
        hint_prep(eout + 10, prod, hr)
    arm = layer == 0 and sentinel(2)
    if arm:
        a(f"v_min_u32 v102, 27, v{vLANE}")
        poll_issue(18, 100)
    own = layer == 0 and sentinel(1) and OPT["x1s"]
    if own:
        poll_issue(0, 98, r + 2)
    wait_edge(ein, r, r + 2, 118)
    if arm:
        poll_take(100)
    if own:
        poll_take(98, r + 2)
    stamp(f"ln{layer} go")

    def loads():
        if not wide:
            return [f"buffer_load_dwordx4 {vr(RAW + 4 * i, 4)}, v{vX + (i == 3)}, {srd(S_WS)}, s{16 + i // 2} offen offset:{2048 * (i % 2)} sc1" for i in range(nf)]
        return [f"buffer_load_dwordx4 {vr(RAW + 4 * i, 4)}, v{vL16}, {srd(S_WS)}, s{16 + i // 4} offen offset:{1024 * (i % 4)} sc1" for i in range(nf)]
    again, back, stub = label("lna"), label("lnb"), label("lns")
    if sentinel(ein):
        a(f"s_mov_b32 s{sCNT}, 0")
        a(f"{again}:")
    for l in loads():
        a(l)
    if hinted(eout) and OPT["h_ln"] == 0:
        a.wait_vm0()
        hint_put(hr)
    if OPT["stamps"] == 1:
        a.wait_vm0()
    count_out(113)
    stamp(f"ln{layer} data", 113)
    for i in range(nf):
        for k in range(4):
            unpack(XF + 8 * i + 2 * k, XF + 8 * i + 2 * k + 1, RAW + 4 * i + k)
        for k in range(4):
            x = vr(XF + 8 * i + 2 * k, 2)
            if i == 0:
                a(f"v_pk_mul_f32 {vr(Q + 2 * k, 2)}, {x}, {x}")
            else:
                a(f"v_pk_fma_f32 {vr(Q + 2 * k, 2)}, {x}, {x}, {vr(Q + 2 * k, 2)}")
                a(f"v_pk_add_f32 {vr(S + 2 * k, 2)}, {vr(XF + 2 * k, 2) if i == 1 else vr(S + 2 * k, 2)}, {x}")
    if sentinel(ein):
        for l in maxchain(113, range(RAW, RAW + 4 * nf)) + ["v_cmp_eq_u32 vcc, -1, v113"]:
            a(l)
        STUBS.extend([f"{stub}:", f"s_add_u32 s{sCNT}, s{sCNT}, 1", f"s_cmp_lt_u32 s{sCNT}, {RETRY}", f"s_cbranch_scc1 {again}", f"s_branch {back}"])
    if hinted(eout) and OPT["h_ln"] == 1:
        hint_put(hr)
    for i in range(8):
        a(f"v_permlane32_swap_b32 v{S + i}, v{Q + i}")
        if i == 1 and sentinel(ein):
            a(f"s_cbranch_vccnz {stub}")
            a(f"{back}:")
    for i in range(0, 8, 2):
        a(f"v_pk_add_f32 {vr(S + i, 2)}, {vr(S + i, 2)}, {vr(Q + i, 2)}")
    for i in range(4):
        a(f"v_permlane16_swap_b32 v{S + i}, v{S + 4 + i}")
    for i in range(0, 4, 2):
        a(f"v_pk_add_f32 {vr(S + i, 2)}, {vr(S + i, 2)}, {vr(S + 4 + i, 2)}")
    for i in range(2):
        a(f"v_add_f32_dpp v{W + i}, v{S + i}, v{S + i} row_ror:8 row_mask:0xf bank_mask:0x3")
    for i in range(2):
        a(f"v_add_f32_dpp v{W + i}, v{S + 2 + i}, v{S + 2 + i} row_ror:8 row_mask:0xf bank_mask:0xc")
    a(f"v_add_f32_dpp v{S}, v{W}, v{W} row_shl:4 row_mask:0xf bank_mask:0x5")
    a(f"v_add_f32_dpp v{S}, v{W + 1}, v{W + 1} row_shr:4 row_mask:0xf bank_mask:0xa")
    if not wide:
        a(f"v_add_f32_dpp v{S}, v{S}, v{S} quad_perm:[2,3,0,1] row_mask:0xf bank_mask:0xf")
    a(f"ds_write_b32 v{vPW}, v{S}")
    a.barrier()
    if hinted(eout) and OPT["h_ln"] == 2:
        hint_put(hr)
    stamp(f"ln{layer} bar", 113)
    T = 0
    for w in range(4):
        a(f"ds_read2_b32 {vr(T + 2 * w, 2)}, v{vPR} offset0:{w * 64} offset1:{w * 64 + 32}")
    a(f"""v_pk_add_f32 {vr(T, 2)}, {vr(T, 2)}, {vr(T + 2, 2)}
v_pk_add_f32 {vr(T + 4, 2)}, {vr(T + 4, 2)}, {vr(T + 6, 2)}
v_pk_add_f32 {vr(T, 2)}, {vr(T, 2)}, {vr(T + 4, 2)}
v_mul_f32 v{T}, {f32(1 / 448)}, v{T}
v_mul_f32 v{T + 1}, {f32(1 / 448)}, v{T + 1}
v_fma_f32 v{T + 1}, -v{T}, v{T}, v{T + 1}
v_max_f32 v{T + 1}, 0, v{T + 1}
v_add_f32 v{T + 2}, {f32(1e-5)}, v{T + 1}
v_fmamk_f32 v{T + 2}, v{T + 2}, {f32(1e-5)}, v{T + 1}
v_rsq_f32 v{T + 2}, v{T + 2}
v_mul_f32 v{T + 3}, -v{T}, v{T + 2}
v_cndmask_b32 v{T + 2}, v{T + 2}, v{T + 3}, s[18:19]
ds_write_b32 v{vAW}, v{T + 2}""")
    AL, BE = S, Q
    done_hint = []
    a(f"""ds_read_b128 {vr(AL, 4)}, v{vAR}
ds_read_b128 {vr(BE, 4)}, v{vAR} offset:128
ds_read_b128 {vr(AL + 4, 4)}, v{vAR} offset:16
ds_read_b128 {vr(BE + 4, 4)}, v{vAR} offset:144""")
    for i in range(nf):
        for k in range(4):
            x = vr(XF + 8 * i + 2 * k, 2)
            a(f"v_pk_fma_f32 {x}, {x}, {vr(AL + 2 * k, 2)}, {vr(BE + 2 * k, 2)}")
        for k in range(4):
            a(f"v_cvt_pk_bf16_f32 v{RAW + 4 * i + k}, v{XF + 8 * i + 2 * k}, v{XF + 8 * i + 2 * k + 1}")
        a(f"buffer_store_dwordx4 {vr(RAW + 4 * i, 4)}, v{vO if wide else vS + i}, {srd(S_WS)}, s{23 + i if wide else 23} offen sc1", tag="pub")
        if hinted(eout) and OPT["h_ln"] - 3 == min(i, 6) * (4 if nf == 7 else 4) // (nf + 1):
            if not done_hint:
                hint_put(hr)
                done_hint.append(1)
    stamp(f"ln{layer} st", 113)
    if flagged(eout):
        flag_put(eout, prod, 100, "pub")


def gemm_addr():
    a(f"""s_and_b32 s{sT0}, s{sWAVE}, 1
s_lshl_b32 s{sT0}, s{sT0}, 10
v_add_u32 v{vA0}, s{sT0}, v{vL16}
v_xor_b32 v{vA1}, 0x400, v{vA0}""")


vCHK = 121


def gemm_loop(nks, ring, nring, wreg, swap, sent, lds_from=99, at=None, bg=()):
    WF = 104
    nfr = 2 * nks

    def load(f):
        ks, db = f // 2, f % 2
        g = []
        if db == 0 and ks and ks % 2 == 0:
            g.append(Ins("s_add_u32 s13, s13, 4096"))
            if ks % 4 == 0:
                g += [Ins("s_cmp_eq_u32 s13, s28"), Ins("s_cmov_b32 s13, s27")]
        d = ring + 4 * (f % nring)
        g.append(Ins(f"buffer_load_dwordx4 {vr(d, 4)}, v{(vA0, vA1)[db]}, {srd(S_WS)}, s13 offen offset:{(ks % 2) * 2048} sc1"))
        return g

    def wread(ks):
        g = []
        slot = ks - lds_from
        for nb in range(2):
            for j in range(2):
                d = WF + 8 * (ks % 2) + 4 * nb + 2 * j
                g.append(Ins(f"ds_read_b64_tr_b16 {vr(d, 2)}, v{(vT2a, vT2b)[nb]} offset:{slot * 2048 + j * 1024}", res_r=[f"slot{slot}"]))
        return g

    def check(ks, upto):
        regs = [ring + 4 * ((2 * ks + db) % nring) + k for db in range(2) for k in range(4)]
        chk = maxchain(vCHK, regs) + [f"v_cmp_eq_u32 vcc, -1, v{vCHK}"]
        back, stub = label("gb"), label("gs")
        rl, cnt = [], 0
        for f in range(2 * ks, max(2 * ks + 2, min(upto, 2 * ks + 2 * OPT["rl"]))):
            k2, db = f // 2, f % 2
            if db == 0:
                rl += [f"s_add_u32 s3, s22, {k2 * 2048}", "s_cmp_ge_u32 s3, s28", f"s_cselect_b32 s18, {nks * 2048}, 0", "s_sub_u32 s3, s3, s18"]
            rl.append(f"buffer_load_dwordx4 {vr(ring + 4 * (f % nring), 4)}, v{(vA0, vA1)[db]}, {srd(S_WS)}, s3 offen sc1")
        STUBS.extend([f"{stub}:"] + rl + ["s_waitcnt vmcnt(0)"] + chk + [f"s_add_u32 s{sCNT}, s{sCNT}, 1", f"s_cbranch_vccz {back}",
                                                     f"s_cmp_lt_u32 s{sCNT}, {RETRY}", f"s_cbranch_scc1 {stub}", f"s_branch {back}"])
        return [Ins(x) for x in chk], [Ins(f"s_cbranch_vccnz {stub}"), Ins(f"{back}:")]

    if sent:
        a(f"s_mov_b32 s{sCNT}, 0")
    nxt = min(OPT["fill0"], nring)
    for f in range(nxt):
        a.put(load(f))
    if sent:
        c, b = check(0, nxt)
        a.put(c); a.put(b)
    extra = []
    bg = list(bg)
    for ks in range(nks):
        if at and ks in at:
            extra += a.capture(at[ks])
        pend = wread(ks + 1) if lds_from <= ks + 1 < nks else []
        c, b = check(ks + 1, min(nfr, nxt + 2, nring + 2 * ks + 2)) if (sent and ks + 1 < nks) else ([], [])
        order = [(0, 0), (0, 1), (1, 0), (1, 1)]
        if ks == nks - 1 and OPT["tailord"]:
            order = [(0, 1), (1, 0), (1, 1), (0, 0)]
        if True:
            for nb, db in order:
                acc = vr(16 * (2 * nb + db), 16)
                cc = acc if (ks or (nb | db) == 0) else "0"
                w = wreg(ks, nb) if ks < lds_from else vr(WF + 8 * (ks % 2) + 4 * nb, 4)
                x = vr(ring + 4 * ((2 * ks + db) % nring), 4)
                if OPT["fake16"] and 0 < ks < nks - 1:
                    b0 = 16 * (2 * nb + db) + 8 * (ks & 1)
                    for t in range(2):
                        a(f"v_mfma_f32_16x16x32_bf16 {vr(b0 + 4 * t, 4)}, {x if swap ^ t else w}, {w if swap ^ t else x}, {vr(b0 + 4 * t, 4)}")
                else:
                    a(f"v_mfma_f32_32x32x16_bf16 {acc}, {x if swap else w}, {w if swap else x}, {cc}")
                if pend:
                    a.put([pend.pop(0)])
                free = nring + 2 * ks + (db + 1 if nb == 1 else 0)
                if nxt < min(nfr, free) and (nb == 1 or db == 1):
                    a.put(load(nxt))
                    nxt += 1
                if bg and nb == 0 and ks >= OPT["bg0"]:
                    a.put(bg.pop(0))
                if extra and nb == 0:
                    k = 5
                    while k < len(extra) and ("exec" in extra[k - 1].defs and extra[k - 1].text != "s_mov_b64 exec, -1" or extra[k - 1].kind == "vstore"):
                        k += 1
                    a.put(extra[:k])
                    del extra[:k]
                if nb == 1 and db == 0:
                    a.put(c)
                if nb == 1 and db == 1:
                    a.put(b)
    a.put(extra)


def gemm_rot(nks, srot):
    a(f"s_mov_b32 s27, s13\ns_add_u32 s28, s13, {nks * 2048}\ns_lshl_b32 s{sT0}, s{srot}, 13\ns_add_u32 s13, s13, s{sT0}\ns_mov_b32 s22, s13")


def gemm_reduce_prep():
    slot = 6144 if OPT["bfr"] else 12288
    for rel in (1, 2, 3):
        a(f"s_xor_b32 s{23 + rel}, s{sWAVE}, {rel}\ns_mul_i32 s{23 + rel}, s{23 + rel}, {slot}")
    a(f"s_mul_i32 s23, s{sWAVE}, {slot}")


def gemm_reduce_addr():
    for rel in range(4):
        a(f"v_add_u32 v{64 + rel}, s{23 + rel}, v{vL16}")


def gemm_perm(P):
    if not OPT["bfr"]:
        return
    t, u = P + 8, P + 7
    a("s_mov_b32 s29, 0x3f80")
    a(f"""v_lshrrev_b32 v{u}, 5, v{vLANE}
v_and_b32 v{t}, 31, v{vLANE}
v_lshlrev_b32 v{u}, 2, v{u}
v_sub_u32 v{t}, v{t}, v{u}
v_and_b32 v{u}, 1, v{t}
v_lshlrev_b32 v{u}, 4, v{u}
v_lshlrev_b32 v{u}, v{u}, s29
v_ashrrev_i32 v{t}, 1, v{t}""")
    vals = (0, 1, 4, 5, 8, 9, 12, 13)
    pairs = ("s[16:17]", "s[30:31]", "s[50:51]")
    for d in range(10):
        if d < 8:
            a(f"v_cmp_eq_u32 {pairs[d % 3]}, {vals[d]}, v{t}")
        if d >= 2:
            a(f"v_cndmask_b32 v{P + d - 2}, 0, v{u}, {pairs[(d - 2) % 3]}")
    a(f"ds_write_b128 v{vL16}, {vr(P, 4)} offset:{PERM}")
    a(f"ds_write_b128 v{vL16}, {vr(P + 4, 4)} offset:{PERM + 1024}")


def gemm_perm_get(P):
    if OPT["bfr"]:
        a(f"ds_read_b128 {vr(P, 4)}, v{vL16} offset:{PERM}")
        a(f"ds_read_b128 {vr(P + 4, 4)}, v{vL16} offset:{PERM + 1024}")


def gemm_reduce_bf(P, pre, post, quarter):
    side = a.capture(pre) if pre else []
    a.put(side[:9])
    side = side[9:]
    T = [104, 108, 112, 116]
    n = 0
    for rel in (1, 2, 3):
        for j in range(2):
            t = T[n % 4]
            n += 1
            for k in range(4):
                r = 16 * rel + 8 * j + 2 * k
                a(f"v_cvt_pk_bf16_f32 v{t + k}, v{r}, v{r + 1}")
            a(f"ds_write_b128 v{64 + rel}, {vr(t, 4)} offset:{RB + (rel - 1) * 2048 + j * 1024}")
            a.put(side[:3])
            side = side[3:]
    a.put(side)
    a.barrier()
    for k in ((0, 2, 4, 1, 3, 5) if (quarter and OPT["spl"]) else range(6)):
        a(f"ds_read_b128 {vr(16 + 4 * k, 4)}, v64 offset:{RB + k * 1024}")
    if post:
        post()
    if quarter and OPT["spl"]:
        for k in (0, 2, 4):
            a(f"v_mfma_f32_32x32x16_bf16 v[0:15], {vr(P, 4)}, {vr(16 + 4 * k, 4)}, v[0:15]")
        ms = [[Ins(f"v_mfma_f32_32x32x16_bf16 v[48:63], {vr(P + 4, 4)}, {vr(16 + 4 * k, 4)}, {'v[48:63]' if k > 1 else 0}")] for k in (1, 3, 5)]
        a.put(ms[0])
        a.put(ms[1])
        m, rest = merge(a.capture(lambda: (quarter(0), quarter(1))), ms[2:], 10, 30)
        a.put(m)
        assert not rest
        for r in range(8, 16, 2):
            a(f"v_pk_add_f32 {vr(r, 2)}, {vr(r, 2)}, {vr(48 + r, 2)}")
        quarter(2)
        quarter(3)
        return
    for k in range(6):
        a(f"v_mfma_f32_32x32x16_bf16 v[0:15], {vr(P + 4 * (k % 2), 4)}, {vr(16 + 4 * k, 4)}, v[0:15]")
    if quarter:
        for q in range(4):
            quarter(q)


def gemm_reduce(pre=None, post=None, quarter=None, P=None):
    if OPT["bfr"]:
        return gemm_reduce_bf(P, pre, post, quarter)
    side = a.capture(pre) if pre else []
    wr = [[Ins(f"ds_write_b128 v{64 + rel}, {vr(16 * rel + 4 * q, 4)} offset:{RB + (rel - 1) * 4096 + q * 1024}")] for rel in (1, 2, 3) for q in range(4)]
    a.put(side[:9])
    put_all(wr[:3])
    m, rest = merge(side[9:], wr[3:], 0, 12)
    a.put(m)
    put_all(rest)
    a.barrier()
    for q in range(4):
        for k in range(3):
            a(f"ds_read_b128 {vr(16 + 16 * k + 4 * q, 4)}, v64 offset:{RB + k * 4096 + q * 1024}")
        if q == 1 and post:
            post()
    for q in range(4):
        for h in range(2):
            r = 4 * q + 2 * h
            a(f"v_pk_add_f32 {vr(16 + r, 2)}, {vr(16 + r, 2)}, {vr(32 + r, 2)}")
            a(f"v_pk_add_f32 {vr(r, 2)}, {vr(r, 2)}, {vr(48 + r, 2)}")
        for h in range(2):
            r = 4 * q + 2 * h
            a(f"v_pk_add_f32 {vr(r, 2)}, {vr(r, 2)}, {vr(16 + r, 2)}")
        if quarter:
            quarter(q)


def gemm1(layer, wide, pre=None, bg=(), part="all"):
    H = H1 if layer == 0 else H3
    G = G1 if layer == 0 else G3
    r = 32
    c0 = -2 * math.log2(math.e) * math.sqrt(2 / math.pi)
    ein, eout = 2 + 4 * layer, 3 + 4 * layer
    if part == "poll":
        assert emode(ein) == "S"
        for k in range(8):
            unpack(2 * k, 2 * k + 1, 20 + k)
        poll_issue(ein + 10, r, r + 3)
        return
    if part != "rest":
        gemm1_head(H, G, wide, r, c0)
    if part == "head":
        return
    gemm1_rest(layer, wide, pre, bg, part, r, c0, ein, eout)


def gemm1_head(H, G, wide, r, c0):
    gemm_addr()
    a(f"""s_lshr_b32 s{sT0}, s{sWAVE}, 1
s_lshl_b32 s{sT0}, s{sT0}, 6
s_lshl_b32 s{sT1}, s{sNT}, 7
s_add_u32 s{sT0}, s{sT0}, s{sT1}
v_lshrrev_b32 v16, 5, v{vLANE}
v_lshl_add_u32 v16, v16, 3, s{sT0}""")
    for q in range(4):
        a(f"global_load_dwordx2 {vr(20 + 2 * q, 2)}, v16, {sp(P_B1)} offset:{16 * q}")
    a(f"""s_lshl_b32 s{sT0}, s{sWAVE}, 5
v_and_b32 v{r + 2}, 31, v{vLANE}
v_add_u32 v{r + 2}, s{sT0}, v{r + 2}
v_and_b32 v{r + 3}, {31 & ~(32 // OPT['samp'] - 1)}, v{vLANE}
v_add_u32 v{r + 3}, s{sT0}, v{r + 3}
s_lshl_b32 s13, s{sDT1}, 7
s_add_u32 s13, s13, s{sT0}
s_lshl_b32 s13, s13, 11
s_add_u32 s13, s13, {H}""")
    if wide:
        a(f"v_lshrrev_b32 v{r + 2}, 1, v{r + 2}\nv_lshrrev_b32 v{r + 3}, 1, v{r + 3}")
    a(f"""s_mov_b32 s{sCA}, {f32(c0 * 0.044715)}
s_mul_i32 s21, s{sDT1}, 112
s_lshl_b32 s{sT0}, s{sNT}, 2
s_add_u32 s21, s21, s{sT0}
s_and_b32 s{sT0}, s{sWAVE}, 2
s_add_u32 s21, s21, s{sT0}
s_lshl_b32 s21, s21, 11
s_add_u32 s21, s21, {G}""")
    gemm_reduce_prep()
    gemm_rot(32, sROT1)


def gemm1_rest(layer, wide, pre, bg, part, r, c0, ein, eout):
    if pre:
        pre()
    if part != "rest":
        for k in range(8):
            unpack(2 * k, 2 * k + 1, 20 + k)
    if part == "rest":
        poll_take(r, r + 3)
    elif emode(ein) == "M":
        l1, l2 = label("m1"), label("m2")
        a(f"s_cmp_eq_u32 s{sRL0 if wide else sRL}, 0\ns_cbranch_scc1 {l1}")
        a.wait_tag("pub")
        a(f"s_branch {l2}")
        a(f"{l1}:")
        wait_edge(ein, r, r + 2, r + 3)
        a(f"{l2}:")
    else:
        wait_edge(ein, r, r + 2, r + 3)
    stamp(f"g1_{layer} go", 63)
    prod = f"s_mul_i32 s{sT0}, s{sDT1}, 28\ns_add_u32 s{sT0}, s{sT0}, s{sNT}\ns_lshl_b32 s{sT0}, s{sT0}, 6"
    early = hinted(eout) and OPT["h_g1"] < 0
    at = {30: gemm_reduce_addr, 28: lambda: gemm_perm_get(96)}
    if early:
        assert OPT["h_g1"] in (-1, -3, -4)
        at[32 + OPT["h_g1"]] = lambda: (hint_prep(eout + 10, prod, 104), hint_put(104))
    gemm_loop(32, 64, 14, lambda ks, nb: f"a[{(ks * 2 + nb) * 4}:{(ks * 2 + nb) * 4 + 3}]", False, sentinel(ein), at=at)
    count_out(120)
    stamp(f"g1_{layer} loop", 120)
    a.begin()
    late = hinted(eout) and not early

    def pre():
        a(f"v_mov_b32 v80, {f32(c0)}")
        if late:
            hint_prep(eout + 10, prod, 72)

    def gelu(q):
        if q % 2 == 0:
            return
        half = q // 2
        if late and OPT["h_g1"] == 1 and half == 0:
            hint_put(72)
        rs = range(8 * half, 8 * half + 8, 2)
        for r in rs:
            a(f"v_pk_mul_f32 {vr(16 + r, 2)}, {vr(r, 2)}, {vr(r, 2)}")
        for r in rs:
            a(f"v_pk_fma_f32 {vr(16 + r, 2)}, {vr(16 + r, 2)}, {sp(sCA)}, {vr(80, 2)} op_sel_hi:[1,0,0]")
        for r in rs:
            a(f"v_pk_mul_f32 {vr(16 + r, 2)}, {vr(16 + r, 2)}, {vr(r, 2)}")
        for r in rs:
            a(f"v_exp_f32 v{16 + r}, v{16 + r}\nv_exp_f32 v{17 + r}, v{17 + r}")
        for r in rs:
            a(f"v_pk_add_f32 {vr(16 + r, 2)}, {vr(16 + r, 2)}, 1.0 op_sel_hi:[1,0]")
        for r in rs:
            a(f"v_rcp_f32 v{16 + r}, v{16 + r}\nv_rcp_f32 v{17 + r}, v{17 + r}")
        for r in rs:
            a(f"v_pk_mul_f32 {vr(r, 2)}, {vr(r, 2)}, {vr(16 + r, 2)}")
        for r in rs:
            a(f"v_cvt_pk_bf16_f32 v{84 + r // 2}, v{r}, v{r + 1}")
        a(f"buffer_store_dwordx4 {vr(84 + 4 * half, 4)}, v{vA0}, {srd(S_WS)}, s21 offen offset:{2048 * half} sc1", tag="pub")
        if late and OPT["h_g1"] == 2 + half:
            hint_put(72)
    gemm_reduce(pre, (lambda: hint_put(72)) if (late and OPT["h_g1"] == 0) else None, gelu, 96)
    m, rest = merge(a.end(), list(bg), 0, OPT["ev_g1"])
    a.put(m)
    if not flagged(eout):
        a.barrier()
    else:
        flag_put(eout, prod, 40, "pub")
    for g in rest:
        a.put(g)


def gemm2(layer, bg=()):
    G = G1 if layer == 0 else G3
    gemm_addr()
    a(f"""s_lshr_b32 s{sT0}, s{sWAVE}, 1
s_lshl_b32 s{sT0}, s{sT0}, 5
s_lshl_b32 s{sT1}, s{sST}, 6
s_add_u32 s50, s{sT0}, s{sT1}
s_and_b32 s{sT1}, s{sWAVE}, 1
s_lshl_b32 s{sT1}, s{sT1}, 5
s_lshl_b32 s{sT2}, s{sDT2}, 6
s_add_u32 s51, s{sT1}, s{sT2}
s_lshr_b32 s{sT2}, s50, 5
s_mul_i32 s{sT2}, s{sT2}, {BS}
s_lshl_b32 s{sT1}, s51, 6
s_add_u32 s20, s{sT2}, s{sT1}
s_add_u32 s30, s20, {X1 if layer == 0 else X3}
v_and_b32 v16, 31, v{vLANE}
v_lshrrev_b32 v17, 5, v{vLANE}
s_lshl_b32 s{sT0}, s50, 1""")
    r = 42

    def residual_issue():
        if layer == 0:
            if OPT["res4"]:
                for k in range(2):
                    a(f"buffer_load_dwordx4 {vr(20 + 4 * k, 4)}, v18, {srd(S_WS)}, s30 offen offset:{32 * k} sc1")
            else:
                for q in range(4):
                    a(f"buffer_load_dwordx2 {vr(20 + 2 * q, 2)}, v18, {srd(S_WS)}, s30 offen offset:{16 * q} sc1")
        else:
            a(f"s_mov_b32 m0, s31")
            a(f"buffer_load_dwordx4 v{vL16}, {srd(S_WS)}, s30 offen sc1 lds", res_w=["x3"])
            a(f"buffer_load_dwordx4 v{vL16}, {srd(S_WS)}, s30 offen offset:1024 sc1 lds", res_w=["x3"])

    def residual_use():
        if layer == 0:
            if OPT["res4"]:
                for k in (20, 21, 24, 25):
                    a(f"v_permlane32_swap_b32 v{k}, v{k + 2}")
            for k in range(8):
                unpack(2 * k, 2 * k + 1, 20 + k)
            for k in range(8):
                unpack(40, 41, 28 + k)
                a(f"v_pk_add_f32 {vr(2 * k, 2)}, {vr(2 * k, 2)}, v[40:41]")
        else:
            for q in range(4):
                a(f"ds_read_b64_tr_b16 {vr(20 + 2 * q, 2)}, v31 offset:{512 * q}", res_r=["x3"])
            a("v_lshlrev_b32 v40, 16, v29")
            for k in range(8):
                unpack(2 * k, 2 * k + 1, 20 + k)
                a(f"v_pk_add_f32 {vr(2 * k, 2)}, {vr(2 * k, 2)}, v[40:41] op_sel_hi:[1,0]")

    if layer == 0:
        a(f"v_lshlrev_b32 v18, 6, v16\nv_lshl_add_u32 v18, v17, {4 if OPT['res4'] else 3}, v18\nv_lshl_add_u32 v19, v17, 3, s{sT0}")
        for q in range(4):
            a(f"global_load_dwordx2 {vr(28 + 2 * q, 2)}, v19, {sp(P_B2)} offset:{16 * q}")
    else:
        a(f"""v_and_b32 v19, 3, v{vLANE}
s_lshl_b32 s31, s{sWAVE}, 11
v_lshl_add_u32 v28, v16, 1, s{sT0}
global_load_ushort v29, v28, {sp(P_B2)}
v_bfe_u32 v31, v{vLANE}, 2, 2
v_lshl_add_u32 v31, v17, 2, v31
v_lshlrev_b32 v31, 6, v31
v_bfe_u32 v30, v{vLANE}, 4, 1
v_lshl_add_u32 v31, v30, 5, v31
v_lshl_add_u32 v31, v19, 3, v31
v_add_u32 v31, s31, v31""")
    a(f"""s_mul_i32 s{sT0}, s{sDT2}, 28
s_mul_i32 s{sT1}, s{sWAVE}, 7
s_add_u32 s{sT0}, s{sT0}, s{sT1}
v_min_u32 v{r + 2}, 6, v{vLANE}
v_add_u32 v{r + 2}, s{sT0}, v{r + 2}
v_mov_b32 v{r + 3}, v{r + 2}
s_lshl_b32 s13, s{sT0}, 13
s_add_u32 s13, s13, {G}""")
    if layer == 0:
        a(f"""s_add_u32 s21, s20, {X2}
s_lshl_b32 s19, s50, 1
s_add_u32 s19, s19, {ST1}""")
    else:
        a(f"s_mul_i32 s{sT0}, s50, 896\ns_lshl_b32 s{sT1}, s51, 1\ns_add_u32 s21, s{sT0}, s{sT1}")
    gemm_reduce_prep()
    gemm_rot(28, sROT2)
    if layer == 0 and emode(4) == "C" and OPT["x2l"] == 2:
        a(f"s_mul_i32 s{sT0}, s{sWAVE}, 7\nv_min_u32 v52, 6, v{vLANE}\nv_add_u32 v52, s{sT0}, v52")
        poll_issue(19, 50)
    lskip, ljoin = label("res"), label("resj")
    a(f"s_cmp_eq_u32 s{sR1}, 0")
    a(f"s_cbranch_scc1 {lskip}")
    residual_issue()
    residual_use()
    if emode(3 + 4 * layer) == "M":
        a.wait_tag("pub")
    else:
        wait_edge(3 + 4 * layer, r, r + 2, r + 3)
    a(f"s_branch {ljoin}")
    a(f"{lskip}:")
    eln = 2 + 4 * layer
    if OPT["rese"] and hinted(eln) and OPT["h_ln"] >= 2:
        wide = OPT["ln1w"] if layer else OPT["ln0w"]
        a(f"s_lshl_b32 s{sT0}, s{sST}, {1 if wide else 2}\nv_and_b32 v48, {1 if wide else 3}, v{vLANE}\nv_add_u32 v48, s{sT0}, v48")
        poll_issue(eln + 10, 46)
        poll_take(46)
        residual_issue()
        residual_use()
        wait_edge(3 + 4 * layer, r, r + 2, r + 3)
    else:
        wait_edge(3 + 4 * layer, r, r + 2, r + 3)
        residual_issue()
        residual_use()
    a(f"{ljoin}:")
    if layer == 0 and emode(4) == "C" and OPT["x2l"] == 2:
        poll_take(50)
    at = {26: gemm_reduce_addr, 25: lambda: gemm_perm_get(88)}
    late = layer == 0 and emode(4) == "C" and OPT["x2l"] == 1
    if late:
        at[25] = lambda: (gemm_perm_get(88), a(f"v_and_b32 v98, 31, v{vLANE}"), poll_issue(19, 96))
    stamp(f"g2_{layer} go", 63)
    gemm_loop(28, 64, 10, lambda ks, nb: vr(128 + (ks * 2 + nb) * 4, 4), layer == 1, sentinel(3 + 4 * layer), lds_from=16, at=at, bg=bg)
    count_out(120)
    stamp(f"g2_{layer} loop", 120)

    def addr():
        a(f"v_and_b32 v68, 31, v{vLANE}\nv_lshrrev_b32 v69, 5, v{vLANE}")
        if layer == 0:
            a(f"""v_and_b32 v70, 15, v{vLANE}
v_lshlrev_b32 v70, 6, v70
v_lshl_add_u32 v70, v69, 4, v70
v_bfe_u32 v71, v{vLANE}, 4, 1
v_lshl_add_u32 v70, v71, 5, v70
""")
            if emode(4) == "C":
                a(f"""v_lshl_add_u32 v71, v69, 2, v71
v_lshlrev_b32 v71, 12, v71
v_and_b32 v68, 15, v{vLANE}
v_lshl_add_u32 v71, v68, 2, v71
v_mov_b32 v68, 1.0
v_cndmask_b32 v68, v68, 0, {sp(sM1)}
s_add_u32 s18, s19, 8192""")
            else:
                a(f"""v_bfe_u32 v71, v{vLANE}, 2, 2
v_lshlrev_b32 v71, 4, v71
v_bfe_u32 v68, v{vLANE}, 4, 1
v_lshl_add_u32 v71, v68, 3, v71
v_and_b32 v68, 1, v{vLANE}
v_lshl_add_u32 v71, v68, 2, v71
v_bfe_u32 v68, v{vLANE}, 1, 1
v_lshl_add_u32 v68, v69, 1, v68
v_lshl_add_u32 v71, v68, 12, v71""")
        else:
            a(f"v_mul_u32_u24 v70, 896, v68\nv_lshl_add_u32 v70, v69, 4, v70")
    prod = f"s_lshl_b32 s{sT0}, s{sDT2}, 5\ns_add_u32 s{sT0}, s{sT0}, s{sST}\ns_lshl_b32 s{sT0}, s{sT0}, 6"
    hn = layer == 0 and hinted(4)

    def pre():
        addr()
        if hn:
            hint_prep(14, prod, 80)
    gemm_reduce(pre, (lambda: hint_put(80)) if (hn and OPT["h_g2"] == 0) else None, None, 88)
    if hn and OPT["h_g2"] == 1:
        hint_put(80)
    PK = 72
    if late:
        poll_take(96)
    stamp(f"g2_{layer} red", 120)
    for half in range(2):
        b = PK + 4 * half
        for k in range(4):
            a(f"v_cvt_pk_bf16_f32 v{b + k}, v{8 * half + 2 * k}, v{8 * half + 2 * k + 1}")
        a(f"v_permlane32_swap_b32 v{b}, v{b + 2}")
        a(f"v_permlane32_swap_b32 v{b + 1}, v{b + 3}")
        if layer == 1:
            a(f"buffer_store_dwordx4 {vr(b, 4)}, v70, {srd(S_OUT)}, s21 offen offset:{32 * half} {('', 'nt', 'sc1')[OPT['ofl']]}")
    if layer == 1:
        return
    def put_x():
        for k in range(4):
            a(f"v_permlane16_swap_b32 v{PK + k}, v{PK + 4 + k}")
        for half in range(2):
            a(f"buffer_store_dwordx4 {vr(PK + 4 * half, 4)}, v70, {srd(S_WS)}, s21 offen offset:{1024 * half} sc1", tag="pub")
    put_x()
    if hn and OPT["h_g2"] == 2:
        hint_put(80)
    for k in range(8):
        a(f"v_pk_mul_f32 {vr(20 + 2 * k, 2)}, {vr(2 * k, 2)}, {vr(2 * k, 2)}")
    res = reduce32(list(range(16)) + list(range(20, 36)), 16, list(range(40, 48)))
    assert res == [0, 1, 2, 3]
    if emode(4) == "C":
        a(f"""v_permlane16_swap_b32 v0, v1
v_permlane16_swap_b32 v2, v3
v_cndmask_b32 v0, v0, v1, {sp(sM1)}
v_cndmask_b32 v2, v2, v3, {sp(sM1)}
v_cndmask_b32 v0, v0, v68, {sp(sM2)}
v_cndmask_b32 v2, v2, v68, {sp(sM2)}""")
        a(f"buffer_atomic_add_f32 v0, v71, {srd(S_WS)}, s19 offen sc1", tag="pub")
        a(f"buffer_atomic_add_f32 v2, v71, {srd(S_WS)}, s18 offen sc1", tag="pub")
    else:
        a(f"""v_cndmask_b32 v0, v0, v1, {sp(sM1)}
v_cndmask_b32 v2, v2, v3, {sp(sM1)}
v_cndmask_b32 v0, v0, v2, {sp(sM2)}""")
        a(f"buffer_atomic_add_f32 v0, v71, {srd(S_WS)}, s19 offen sc1", tag="pub")
    if hn and OPT["h_g2"] == 3:
        hint_put(80)
    stamp("g2_0 atom", 120)
    if flagged(4):
        flag_put(4, prod, 40, "pub")
    else:
        a.barrier()
    stamp("g2_0 flag", 120)


def skip_unless(role):
    l = label("skip")
    a(f"s_cmp_eq_u32 s{role}, 0")
    a(f"s_cbranch_scc1 {l}")
    return l


def dmas(n0, n1):
    return [w_dma(n, h) for n in range(n0, n1) for h in range(2)]


def tr_dma(n0, n1):
    g = []
    for n in range(n0, n1):
        g.append(w_tr(n))
        if n > n0:
            g += dmas(n + 11, n + 12)
    g += dmas(n1 + 11, n1 + 12)
    return g


def wseq():
    nB = OPT["wB"] // 2
    assert 36 <= nB <= 60
    g = dmas(0, 12) + tr_dma(0, nB - 12)
    lastT = 48 if (nB >= 48 and OPT["wT"]) else 32 + OPT["wg"]
    g += [w_tr(n) for n in range(nB - 12, lastT)]
    g.append([])
    d = nB
    for n in range(max(lastT, nB - 12), 49):
        while d < min(n + 11, 60) or (n == 48 and d < 60):
            g += dmas(d, d + 1)
            d += 1
        if n < 48:
            g.append(w_tr(n))
    return g


def wcut(n_dma):
    k = 0
    for p, g in enumerate(wseq()):
        if k == n_dma:
            return p
        k += any(i.kind == "dma" for i in g)
    return len(wseq())


def put_all(gs):
    for g in gs:
        a.put(g)


def w2_touch(r):
    return [Ins(f"v_lshlrev_b32 v{r}, 12, v{vLANE}"), Ins(f"buffer_load_dword v{r}, v{r}, {srd(S_W2)}, s{sW2O} offen")]


def upad():
    a(f"""v_mov_b32 v32, 0
v_mov_b32 v33, 0
v_mov_b32 v34, 0
v_mov_b32 v35, 0
s_and_b32 s{sT0}, s{sWAVE}, 1
s_mul_i32 s{sT0}, s{sT0}, {UST}
v_add_u32 v36, s{sT0}, v{vL16}
ds_write_b128 v36, v[32:35] offset:{UB}""")


def build():
    global RB
    if OPT["bfr"] and OPT["keepk"]:
        RB = UB
    g = OPT["wg"]
    WORDER[:] = list(range(0, g)) + list(range(32, 32 + g)) + list(range(g, 32)) + list(range(32 + g, 60))
    if OPT["w2t"]:
        WORDER[:] = list(range(60))
    cA, cP, cL, cB = wcut(OPT["wA"]), wcut(OPT["wP"]), wcut(OPT["wL"]), wseq().index([])
    cK = wcut(OPT["wK"])
    prologue()
    laux, ljoin = label("aux"), label("join")
    a(f"s_cmp_eq_u32 s{sRC}, 0")
    a(f"s_cbranch_scc1 {laux}")
    stamp("args", 2)
    xt_loads()
    kgen_table_load()
    code_warm(1)
    page_warm(88)
    w_setup()
    put_all(wseq()[:cA])
    conv_setup(0)
    stamp("start", 2)

    xt_poll_addr(63, 2)
    if sentinel(1) and OPT["x1s"]:
        a(f"""v_lshrrev_b32 v2, 3, v{vLANE}
v_mul_u32_u24 v2, {BS}, v2
v_and_b32 v3, 7, v{vLANE}
v_lshl_add_u32 v2, v3, 4, v2
s_mul_i32 s{sT0}, s{sWAVE}, {16 * BS}
s_lshl_b32 s{sT1}, s{sPAIR}, 7
s_add_u32 s{sT0}, s{sT0}, s{sT1}
s_add_u32 s{sT0}, s{sT0}, {X1}
s_add_u32 s{sT1}, s{sT0}, {8 * BS}
v_mov_b32 v4, -1
v_mov_b32 v5, -1
v_mov_b32 v6, -1
v_mov_b32 v7, -1""")
        a(f"buffer_store_dwordx4 v[4:7], v2, {srd(S_WS)}, s{sT0} offen sc1", tag="st0")
        a(f"buffer_store_dwordx4 v[4:7], v2, {srd(S_WS)}, s{sT1} offen sc1", tag="st0")
    xt_work()
    stamp("xt", 2)

    def h_flag():
        nonce_take()
        flag_put(0, sPAIR, 104, "st0")
        stamp("flag", 0)
        a(f"global_load_dwordx4 {vr(TAB, 4)}, v75, {sp(sTAB)}")
        a(f"global_load_dwordx4 {vr(TAB + 4, 4)}, v75, {sp(sTAB)} offset:16")
        a(f"global_load_dwordx2 v[0:1], v75, {sp(sTAB)} offset:32")

    def h_load():
        poll_take(64, 63)
        stamp("e1 seen", 64)
        for i in a.capture(conv_loads):
            a(re.sub(r"v\[(\d+):(\d+)\]", lambda m: f"a[{int(m.group(1)) - CS}:{int(m.group(2)) - CS}]", i.text, count=1))

    hooks = {}
    dbg = tuple((p, (lambda p=p: stamp(f"hook{p}", 65))) for p in (0, 1, 2, 5)) if OPT["stamps"] == 1 else ()
    for pos, fn in dbg + ((OPT["h_flag"], h_flag), (OPT["h_w"], lambda: KBG.extend(wseq()[cA:cK] + ([w2_touch(75)] if OPT["w2t"] else []))), (OPT["h_poll"], lambda: poll_issue(0, 64, 63)), (OPT["h_load"], h_load)):
        hooks.setdefault(pos, []).append(fn)
    assert OPT["h_flag"] <= OPT["h_w"] and OPT["h_poll"] >= 6
    kgen({k: (lambda fs=fs: [f() for f in fs]) for k, fs in hooks.items()})
    dump_lds(1)
    stamp("kgen", 21)

    def mid():
        if OPT["h_load"] < 10:
            return
        poll_take(64, 63)
        stamp("e1 seen", 0)
        conv_loads()
    wr = kexpand(mid)
    if OPT["mixpro"]:
        mv = [i for i in wr if i.kind != "dsw"]
        st = [i for i in wr if i.kind == "dsw"]
        pro = a.capture(conv_pro, 0)
        k = next(n for n, i in enumerate(pro) if i.defs & {f"v{r}" for r in range(0, 22)})
        a.put(mv)
        a.put(st[2:4])
        head, rest = merge(pro[:k], [[i] for i in st[4:6] + st[:2] + st[6:]], 0, 14)
        a.put(head)
        early = [g for g in rest if g[0].uses & {f"v{r}" for r in range(0, 22)}]
        put_all(early)
        rest = [g for g in rest if g not in early]
        k2 = next(n for n, i in enumerate(pro) if i.kind == "dsw")
        mid2, rest = merge(pro[k:k2], rest, 0, 30)
        put_all(rest)
        m3, rest = merge(mid2 + pro[k2:], wseq()[cK:cP], 50, OPT["ev_pro"])
        a.put(m3)
        put_all(rest)
        stamp("expand", 111)
    else:
        a.put(wr)
        stamp("expand")
        conv_pro(0)
    if sentinel(1) and not OPT["x1s"]:
        a(f"v_min_u32 v{cvP + 2}, 27, v{vLANE}")
        poll_issue(8, cvP)
    a.barrier()
    dump_lds(2)
    stamp("conv0 go", 111)
    put_all(conv_main(0, wseq()[cP:cL], OPT["st_conv"], OPT["ev_conv"]))
    stamp("conv0 done")
    a(f"s_branch {ljoin}")
    a(f"{laux}:")
    aux_loads()
    kgen_table_addr()
    code_warm(1)
    page_warm(88)
    w_setup()
    aux_work()
    stamp("aux e1")
    if OPT["g7"] == 1:
        lg = label("g7")
        a(f"""s_cmp_lg_u32 s{sR1}, 0
s_cbranch_scc1 {lg}
s_lshr_b32 s{sT0}, s{sX}, 2
s_sub_u32 s{sT0}, s{sJ}, s{sT0}
s_sub_u32 s{sT0}, s{sT0}, 28
s_lshl_b32 s{sT0}, s{sT0}, 3
s_add_u32 s{sT0}, s{sT0}, s{sX}
s_lshl_b32 s{sT0}, s{sT0}, 7
s_mul_i32 s{sT1}, s{sWAVE}, {512 * 3584}
s_add_u32 s{sT0}, s{sT0}, s{sT1}
s_add_u32 s{sT0}, s{sT0}, {448 * 3584}
v_mul_u32_u24 v90, 3584, v{vLANE}
v_add_u32 v90, s{sT0}, v90""")
        a(f"global_load_dword v90, v90, {sp(P_W1)}")
        a(f"{lg}:")
    if armed(0):
        lnf = label("nf")
        a(f"s_cmp_lg_u32 s{sR1}, 0\ns_cbranch_scc1 {lnf}")
        if OPT["map18"] == 1:
            a(f"s_sub_u32 s16, s{sAUX}, 4\ns_cselect_b32 s16, s{sAUX}, s16")
        else:
            a(f"s_lshr_b32 s16, s{sAUX}, 1\ns_sub_u32 s17, s{sAUX}, 4\ns_cmp_lt_u32 s{sAUX}, 8\ns_cselect_b32 s16, s16, s17")
        if sentinel(1) and not OPT["x1s"]:
            fill(X1, 17, 80, 16, 28 * 4096, "fill")
            flag_put(8, 16, 72, "fill")
        if sentinel(2) or sentinel(3):
            if sentinel(2):
                fill(H1, 16, 80, 16, 28 * 4096, "fill")
            if sentinel(3):
                fill(G1, 14, 80, 16, 28 * 4096, "fill")
            if emode(4) == "C" and not OPT["x2l"]:
                assert sentinel(2) and sentinel(3)
                fill(X2, 17, 80, 16, 28 * 4096, "fill")
            flag_put(18, 16, 72, "fill")
        a(f"{lnf}:")
    stamp("aux fill")
    if OPT["g7"] == 2:
        lg = label("g7")
        a(f"""s_cmp_lg_u32 s{sR1}, 0
s_cbranch_scc1 {lg}
s_lshr_b32 s{sT0}, s{sX}, 2
s_sub_u32 s{sT0}, s{sJ}, s{sT0}
s_sub_u32 s{sT0}, s{sT0}, 28
s_lshl_b32 s{sT0}, s{sT0}, 3
s_add_u32 s{sT0}, s{sT0}, s{sX}
s_lshl_b32 s{sT0}, s{sT0}, 7
s_mul_i32 s{sT1}, s{sWAVE}, {512 * 3584}
s_add_u32 s{sT0}, s{sT0}, s{sT1}
s_add_u32 s{sT0}, s{sT0}, {448 * 3584}
v_mul_u32_u24 v90, 3584, v{vLANE}
v_add_u32 v90, s{sT0}, v90""")
        a(f"global_load_dword v90, v90, {sp(P_W1)}")
        a(f"{lg}:")
    cX = min(wcut(64 + 2 * OPT["wg"]), cB)
    if OPT["w2t"]:
        a.put(w2_touch(75))
    n1 = 32 + OPT["wg"]
    if OPT["auxs"] == 2:
        assert not OPT["t2"]
        lw, lx = label("aw"), label("ax")
        a(f"s_cmp_eq_u32 s{sR1}, 0\ns_cbranch_scc1 {lw}")
        put_all(wone(0, 32, 32))
        a(f"s_branch {lx}")
        a(f"{lw}:")
        put_all(wone(32, 60, 48)[:OPT["aw"]])
        a(f"{lx}:")
    elif OPT["auxs"]:
        put_all(dmas(0, 12) + tr_dma(0, n1 - 12) + [w_tr(n) for n in range(n1 - 12, n1)])
    else:
        put_all(wseq()[:cX])
    if sentinel(1) and not OPT["x1s"]:
        a(f"v_min_u32 v62, 27, v{vLANE}")
        poll_issue(8, 60)
        poll_take(60)
    a.wait_vm0()
    stamp("aux w")
    a(f"{ljoin}:")
    for layer in range(2):
        if layer == 1:
            l = skip_unless(sRC)
            conv_setup(1)
            conv_poll1()
            stamp("conv1 ready")
            if OPT["kc_in"] and not hinted(4):
                a.wait_tag("flag")
                poll_issue(4, cvP)
                kcopies()
                poll_take(cvP)
            else:
                upad() if RB == UB else kcopies()
                conv_xearly()
                if emode(4) == "G":
                    lg = label("gt")
                    a(f"s_cmp_lg_u32 s{sR2}, 0\ns_cbranch_scc1 {lg}")
                    poll_issue(14, cvP, cvP + 3)
                    poll_take(cvP, cvP + 3)
                    a(f"{lg}:")
                    a.wait_tag("flag")
                    poll_issue(4, cvP)
                    poll_take(cvP)
                else:
                    wait_edge(4, cvP, cvP + 2, cvP + 3)
            stamp("conv1 poll")
            if emode(4) != "C":
                conv_loads()
            conv_pro(1)
            count_out(111)
            if armed(1):
                a(f"v_and_b32 v{cvP + 2}, 31, v{vLANE}")
                poll_issue(9, cvP)
            a.barrier()
            dump_lds(3)
            stamp("conv1 go", 111)
            conv_main(1)
            stamp("conv1 done")
            if armed(1):
                lj = label("cvj")
                a(f"s_branch {lj}")
                a(f"{l}:")
                a(f"v_and_b32 v62, 31, v{vLANE}")
                poll_issue(9, 60)
                poll_take(60)
                a(f"{lj}:")
            else:
                a(f"{l}:")
        wide = OPT["ln1w"] if layer else OPT["ln0w"]
        l = skip_unless(sRL0 if wide else sRL)
        ln(layer, wide)
        stamp(f"ln{layer} done")
        a(f"{l}:")
        if layer == 0:
            gemm_perm(0)
            def arm_poll(part):
                k = max(0, len(part) - 12)
                put_all(part[:k])
                if sentinel(2) or sentinel(3):
                    a(f"v_min_u32 v62, 27, v{vLANE}")
                    poll_issue(18, 60)
                if inb:
                    gemm1(0, wide, part="head")
                k2 = max(k, len(part) - OPT["inb"])
                put_all(part[k:k2])
                if inb:
                    gemm1(0, wide, part="poll")
                put_all(part[k2:])
                if sentinel(2) or sentinel(3):
                    poll_take(60)
            inb = OPT["inb"] > 0 and emode(2) == "S"
            if OPT["auxs"]:
                assert OPT["wB"] == 120 or (OPT["t2"] and OPT["wB"] >= 96) or OPT["auxs"] == 2
                la, lb, lc = label("ba"), label("bb"), label("bc")
                a(f"s_cmp_eq_u32 s{sRC}, 0\ns_cbranch_scc1 {la}")
                arm_poll(wseq()[cL:cB])
                a(f"s_branch {lb}")
                a(f"{la}:")
                a(f"s_cmp_eq_u32 s{sR2}, 0\ns_cbranch_scc1 {lc}")
                nB = OPT["wB"] // 2
                put_all(wone(32, 60, 48)[OPT["aw"]:] if OPT["auxs"] == 2 else dmas(n1, n1 + 12) + (tr_dma(n1, nB - 12) if nB - 12 > n1 else []) + [w_tr(n) for n in range(max(n1, nB - 12), 48)])
                if emode(4) == "C" and OPT["x2l"] == 2:
                    a(f"s_sub_u32 s16, s{sAUX}, 4\ns_cselect_b32 s16, s{sAUX}, s16")
                    fill(X2, 17, 80, 16, 28 * 4096, "fill")
                    flag_put(19, 16, 72, "fill")
                a(f"{lc}:")
                if inb:
                    gemm1(0, wide, part="head")
                    gemm1(0, wide, part="poll")
                elif not sentinel(2):
                    arm_poll([])
                a(f"{lb}:")
            else:
                l = skip_unless(sRC)
                put_all(wseq()[cL:cX])
                a(f"{l}:")
                rest = wseq()[cX:cB]
                k = max(0, len(rest) - 12)
                put_all(rest[:k])
                if sentinel(2) or sentinel(3):
                    a(f"v_min_u32 v62, 27, v{vLANE}")
                    poll_issue(18, 60)
                put_all(rest[k:])
                if sentinel(2) or sentinel(3):
                    poll_take(60)
            stamp("w B", 63)
            tail = wseq()[cB:]
            assert not any(i.kind == "dsr" and "a[" in i.text for g in tail for i in g)
            lelse, lj = label("ng1"), label("g1j")
            a(f"s_cmp_eq_u32 s{sR1}, 0")
            a(f"s_cbranch_scc1 {lelse}")
            gemm1(0, wide, None, [] if OPT["t2"] else tail, "rest" if inb else "all")
            nonce_retire()
            stamp("g1_0 done")
            a(f"s_branch {lj}")
            a(f"{lelse}:")
            if OPT["auxs"] == 2 and OPT["wB"] < 120:
                a(f"s_cmp_eq_u32 s{sRC}, 0\ns_cbranch_scc1 {lj}")
            put_all([] if OPT["t2"] else wseq()[cB:])
            a(f"{lj}:")
        else:
            l = skip_unless(sR1)
            gemm1(1, wide)
            stamp("g1_1 done")
            a(f"{l}:")
        l = skip_unless(sR2)
        gemm2(layer, [g for g in wseq()[cB:] if g] if (layer == 0 and OPT["t2"]) else [])
        if layer == 0 and armed(1):
            lj = label("g2j")
            a(f"s_branch {lj}")
            a(f"{l}:")
            if OPT["map18"]:
                a(f"s_lshl_b32 s16, s{sX}, 2\ns_add_u32 s16, s16, s{sJ}")
            else:
                a(f"s_lshr_b32 s16, s{sX}, 1\ns_lshl_b32 s16, s16, 3\ns_add_u32 s16, s16, s{sJ}")
            late = emode(4) == "C" and OPT["x2l"]
            if late == 1:
                fill(X2, 15, 72, 16, CH)
                flag_put(19, 16, 8, "st0")
            for base, n, e in ((X3, 15, 5), (H3, 14, 6), (G3, 13, 7)):
                if sentinel(e):
                    fill(base, n, 72, 16, CH)
            flag_put(9, 16, 8, "st0")
            if late:
                a(f"v_and_b32 v62, 31, v{vLANE}" if late == 1 else f"v_min_u32 v62, 27, v{vLANE}")
                poll_issue(19, 60)
                poll_take(60)
            a(f"{lj}:")
        else:
            a(f"{l}:")
        stamp("g2_0 done" if layer == 0 else "end")
    if OPT["stamps"] and OPT["dbgwg"] < 0:
        l = label("ls")
        a(f"s_cmp_lg_u32 s{sWAVE}, 0\ns_cbranch_scc1 {l}\ns_waitcnt vmcnt(0)\ns_memrealtime {sp(sSTAMP)}\ns_waitcnt lgkmcnt(0)")
        a(f"s_lshl_b32 s3, s2, 8\ns_add_u32 s3, s3, {STAMPS + 248}\nv_mov_b32 v0, s101\nv_mov_b32 v1, s{sSTAMP}\ns_mov_b64 exec, 1")
        a(f"buffer_store_dwordx2 v[0:1], off, {srd(S_WS)}, s3")
        a(f"{l}:")
    if OPT["fixdur"]:
        a(f"s_waitcnt vmcnt(0) lgkmcnt(0)\nL_fix:\ns_memrealtime s[28:29]\ns_waitcnt lgkmcnt(0)\ns_sub_u32 s28, s28, s101\ns_cmp_lt_u32 s28, {OPT['fixdur']}\ns_cbranch_scc1 L_fix")
    a("s_endpgm")


def bf16_round_int(l):
    b = struct.unpack("<I", struct.pack("<f", float(l)))[0]
    b = (b + 0x7FFF + ((b >> 16) & 1)) & 0xFFFF0000
    return int(struct.unpack("<f", struct.pack("<I", b))[0])


def ktab():
    vals = []
    for c in range(2):
        for x in range(2048):
            lr = bf16_round_int(2047 - x)
            aa, rem = lr >> 7, lr & 127
            j, e = rem >> 3, rem & 7
            if aa < 2:
                rho = 8 * aa + e
            elif aa < 4:
                rho = 4 * aa + 8 + (e >> 1)
            elif aa < 8:
                rho = 16 + 2 * aa + (e >> 2)
            else:
                rho = 24 + aa
            vals.append((rho >> 2) * 256 + j * 16 + (rho & 3) * 4 + c * 2 * GST)
        vals += [3072 + c * 2 * GST] * 16
    lines = []
    for i in range(0, len(vals), 16):
        lines.append("    .short " + ", ".join(str(v) for v in vals[i:i + 16]))
    return "\n".join(lines)


DOC = """;
;   gemm1 : gelu(h^T W1 + b1), 64x64 tile per workgroup, K split over the waves, W1 tile resident in AGPRs
;   gemm2 : x + g W2 + b2, W2 tile resident in VGPRs + LDS; per-token sums for the next LayerNorm by float atomics
; Hand-offs between workgroups go through d_ws with write-through stores and L1-bypassing loads, valid for any placement:
; Every wait is bounded.  Generated by the author's own script (register allocation and schedule are explicit).
"""


def main(path):
    build()
    ins = a.finish()
    ref = open(f"cdna_kernels/{NAME}.s.ref").read().split("\n")
    head = [l for l in ref if l.startswith(";") and "@launch" not in l and not l.startswith("; Override") and not l.startswith("; grid=ceil")]
    k = NAME + "_kernel"
    s = "\n".join(head) + f"\n; @launch grid=(256,1,1) block=(256,1,1) lds={LDS_BYTES}\n"
    s += DOC
    s += f""".amdgcn_target "amdgcn-amd-amdhsa--gfx950"
.text
.globl {k}
.p2align 8
.type {k},@function
{k}:
L_entry:
"""
    s += Prog.render(ins)
    s += "".join((l if l.endswith(":") else "    " + l) + "\n" for l in STUBS)
    s += f""".p2align 6
.type ktab,@object
ktab:
{ktab()}
.size ktab, 8256
.section .rodata,"a"
.p2align 6
.amdhsa_kernel {k}
  .amdhsa_next_free_vgpr 512
  .amdhsa_next_free_sgpr 102
  .amdhsa_accum_offset 256
  .amdhsa_group_segment_fixed_size 0
  .amdhsa_kernarg_size 136
  .amdhsa_user_sgpr_count 2
  .amdhsa_user_sgpr_kernarg_segment_ptr 1
  .amdhsa_system_sgpr_workgroup_id_x 1
  .amdhsa_float_denorm_mode_32 3
.end_amdhsa_kernel
"""
    open(path, "w").write(s)
    n = sum(1 for i in ins if i.kind not in ("label", "comment"))
    open(path + ".names", "w").write("\n".join(STAMP_NAMES))
    print("instructions:", n, "nops:", sum(1 for i in ins if i.kind == "nop"), "waits:", sum(1 for i in ins if i.kind == "wait"))


if __name__ == "__main__":
    path = sys.argv[1]
    for kv in sys.argv[2:]:
        k, v = kv.split("=")
        OPT[k] = v if k in ('em', 'probe') else int(v)
    main(path)
```

```python
import sys, math, struct, re
from asmlib import *

NAME = "interleave_layers__ssm_conv_s4__mixer_token_mlp__prompt"
OPT = dict(stamps=False, stop=99, upfront=True, dump=0, dbgwg=-1, fixdur=0, em='SSSCDSS', warm=1, h_flag=2, h_w=2, h_poll=9, h_ln=2, h_cv=0, h_g1=0, h_g2=2, rot=1, wA=0, wK=8, wP=8, wL=24, wB=120, wT=1, lag=2, gap=3, st_conv=100, ev_conv=150, ev_g1=100000, fill0=14, ln1w=0, ln0w=1, chk=1, samp=8, map18=1, ofl=0, tailord=1, cv=1, clk=0, ev_kg=150, mixpro=1, now=0, probe='', kc_in=0, w2t=0, g7=0, rl=4, bfr=1, wg=4, slp=0, ev_pro=30, t2=0, bg0=0, tlb=0, rese=0, lnd=1, keepk=1, fake16=0, wnt=0, wnta=0, fnt=0, pnt=0, xnt=0, auxs=2, inb=6, x2l=2, res4=0, xe=0, cpipe=1, spl=1, h_load=99, x1s=1, aw=24, mr=1, al_w=3, al_n=999, atid=1)
DBG_SEL = ['start', 'kgen', 'conv0 go', 'ln0 go', 'g1_0 go', 'g1_0 loop', 'g2_0 go', 'g2_0 loop', 'conv1 poll', 'ln1 go', 'g1_1 go', 'g2_1 go', 'end']
STAMP_NAMES = []

EPOCH = 0
ST0 = 0x1000
ST1 = 0x8000
STAMPS = 0x20000
FL = 0x100000
BS = 448 * 64 + 128
CH = 0x20000
X1, H1, G1, X3, H3, G3, X2, X0 = (0x400000 + 0x200000 * i for i in range(8))
FILL1, FILL3 = 6, 36
WS_BYTES = 268435456
OOB = 0x40000000

KST = 4160
KSLOT = {0: [0, 5, 2, 3], 1: [1, 6, 7, 4]}
UB = 8 * KST
UPAD = 1024
UST = 4096 + UPAD
ZB = UB + 2 * UST
EX = 2 * KST
RB = 2 * KST
GST = 15616
GROW = 272
TOFF = 12288
LNP = 57856
PERM = 61440
W2L = 65536
LDS_BYTES = 163840

sWAVE, sX, sJ, sPAIR, sDT1, sNT, sDT2, sST, sLN = 4, 5, 6, 7, 8, 9, 10, 11, 12
sNONCE = 14
P_U, P_ARE, P_AIM, P_BRE, P_BIM, P_CRE, P_CIM, P_LDT = 16, 18, 20, 22, 24, 26, 28, 30
P_DSK, P_W1, P_B1, P_W2, P_B2, P_OUT, P_DBG, P_WS = 32, 36, 38, 40, 42, 44, 46, 48
S_WS, S_W1, S_W2, S_X0, S_OUT = 52, 56, 60, 64, 68
sD0, sD1 = 72, 74
sLDT = 76
sEP = 78
sWOFF, sT0, sT1, sT2, sT3, sCNT = 80, 81, 82, 83, 84, 85
sRC, sR1, sR2, sRL = 86, 87, 88, 89
sM1, sM2 = 90, 92
sSTAMP = 94
sTAB = 96
sLN0, sRL0 = 77, 73
sCA, sCB = 34, 100

vLANE, vL16, vT2a, vT2b, vT1a, vT1b, vD1, vD2 = 127, 126, 125, 124, 123, 122, 121, 120
vA0, vA1 = 123, 122


def srd(n):
    return f"s[{n}:{n + 3}]"


def sp(n):
    return f"s[{n}:{n + 1}]"


def vr(n, k):
    return f"v[{n}:{n + k - 1}]" if k > 1 else f"v{n}"


def f32(x):
    return "0x%08x" % struct.unpack("<I", struct.pack("<f", x))[0]


a = Prog()
_lab = [0]


def label(p):
    _lab[0] += 1
    return f"L_{p}_{_lab[0]}"


_stamp = [0]


def stamp(name, r=1):
    k = _stamp[0]
    _stamp[0] += 1
    STAMP_NAMES.append(name)
    a("; MARK after " + name)
    if OPT["probe"] == name.replace(" ", "_"):
        a(f"s_memrealtime {sp(sSTAMP)}\ns_waitcnt lgkmcnt(0)\ns_mov_b32 s101, s{sSTAMP}")
    if OPT["stamps"] != 1:
        return
    l = label("st")
    if OPT["dbgwg"] >= 0:
        if name not in DBG_SEL:
            return
        a(f"s_lshl_b32 s3, s{sWAVE}, 8\ns_add_u32 s3, s3, s2\ns_cmp_lg_u32 s3, {OPT['dbgwg']}\ns_cbranch_scc1 {l}")
        a(f"s_memrealtime {sp(sSTAMP)}")
        a("s_waitcnt lgkmcnt(0)")
        a(f"s_mov_b64 exec, 1\nv_mov_b32 v{r}, s{sSTAMP}\ns_mov_b32 s{sSTAMP}, s{P_DBG}\ns_mov_b32 s{sSTAMP + 1}, s{P_DBG + 1}\ns_mov_b32 s{sSTAMP + 2}, 256\ns_mov_b32 s{sSTAMP + 3}, 0x20000".replace(f"s{sSTAMP}, s{P_DBG}", f"s64, s{P_DBG}").replace(f"s{sSTAMP + 1}, s{P_DBG + 1}", f"s65, s{P_DBG + 1}").replace(f"s{sSTAMP + 2}, 256", "s66, 256").replace(f"s{sSTAMP + 3}, 0x20000", "s67, 0x20000"))
        a(f"buffer_store_dword v{r}, off, s[64:67], 0 offset:{12 + 4 * DBG_SEL.index(name)} sc1", optional=True)
        a("s_mov_b64 exec, -1")
        a(f"{l}:")
        return
    a(f"s_cmp_lg_u32 s{sWAVE}, 0")
    a(f"s_cbranch_scc1 {l}")
    a(f"{'s_memtime' if OPT['clk'] else 's_memrealtime'} {sp(sSTAMP)}")
    a("s_waitcnt lgkmcnt(0)")
    a(f"s_lshl_b32 s3, s2, 8")
    a(f"s_add_u32 s3, s3, {STAMPS + 4 * k}")
    a(f"v_mov_b32 v{r}, s{sSTAMP}")
    a("s_mov_b64 exec, 1")
    a(f"buffer_store_dword v{r}, off, {srd(S_WS)}, s3", optional=True)
    a("s_mov_b64 exec, -1")
    a(f"{l}:")


_cnt = [0]


def count_out(r):
    if OPT["stamps"] != 1:
        return
    k = _cnt[0]
    _cnt[0] += 1
    a(f"s_lshl_b32 s3, s2, 2\ns_add_u32 s3, s3, s{sWAVE}\ns_lshl_b32 s3, s3, 5\ns_add_u32 s3, s3, {STAMPS + 0x10000 + 4 * k}")
    a(f"v_mov_b32 v{r}, s{sCNT}\ns_mov_b64 exec, 1")
    a(f"buffer_store_dword v{r}, off, {srd(S_WS)}, s3")
    a("s_mov_b64 exec, -1")


DUMP = 0x2000000


def dump_lds(point, r=96):
    if OPT["dump"] != point:
        return
    a.barrier()
    a(f"s_lshl_b32 s3, s{sWAVE}, 10\nv_add_u32 v{r + 4}, s3, v{vL16}\ns_lshl_b32 s3, s2, 16\ns_add_u32 s3, s3, {DUMP}")
    for i in range(16):
        a(f"ds_read_b128 {vr(r, 4)}, v{r + 4} offset:{i * 4096}")
        a(f"buffer_store_dwordx4 {vr(r, 4)}, v{r + 4}, {srd(S_WS)}, s3 offen")
        a("s_add_u32 s3, s3, 4096")
        a.wait_vm0()
    a.barrier()


def cmul(d, x, y):
    return [f"v_pk_mul_f32 {vr(d, 2)}, {vr(x, 2)}, {vr(y, 2)} op_sel:[1,1] op_sel_hi:[1,0] neg_lo:[0,1]",
            f"v_pk_fma_f32 {vr(d, 2)}, {vr(x, 2)}, {vr(y, 2)}, {vr(d, 2)} op_sel_hi:[0,1,1]"]


def cmul2(p, q=None):
    x = cmul(*p)
    if q is None:
        a(x[0]); a(x[1])
        return
    y = cmul(*q)
    a(x[0]); a(y[0]); a(x[1]); a(y[1])


def unpack(dlo, dhi, s):
    a(f"v_lshlrev_b32 v{dlo}, 16, v{s}")
    a(f"v_and_b32 v{dhi}, s0, v{s}")


def prologue():
    a("s_cmp_lt_u32 s2, 256")
    a("s_cbranch_scc1 L_start")
    a("s_endpgm")
    a("L_start:")
    if OPT["fixdur"] or OPT["stamps"]:
        a("s_memrealtime s[50:51]")
    a("s_load_dwordx16 s[16:31], s[0:1], 0")
    a("s_load_dwordx16 s[32:47], s[0:1], 64")
    a("s_load_dwordx2 s[48:49], s[0:1], 128")
    a(f"v_lshrrev_b32 v1, 6, v0")
    a(f"v_and_b32 v{vLANE}, 63, v0")
    a(f"v_readfirstlane_b32 s{sWAVE}, v1")
    a(f"v_lshlrev_b32 v{vL16}, 4, v{vLANE}")
    a(f"""s_and_b32 s{sX}, s2, 7
s_lshr_b32 s{sJ}, s2, 3
s_add_u32 s{sJ}, s{sJ}, 28
s_and_b32 s{sJ}, s{sJ}, 31
""")
    a(f"""s_lshr_b32 s{sT0}, s{sX}, 2
s_mul_i32 s{sPAIR}, s{sX}, 28
s_sub_u32 s{sRC}, s{sJ}, s{sT0}
s_add_u32 s{sPAIR}, s{sPAIR}, s{sRC}
s_cmp_lt_u32 s{sRC}, 28
s_cselect_b32 s{sRC}, 1, 0
s_mul_i32 s{sT2}, s{sJ}, 37
s_lshr_b32 s{sT2}, s{sT2}, 8
s_mul_i32 s{sT3}, s{sT2}, 7
s_sub_u32 s{sDT1}, s{sJ}, s{sT3}
s_lshl_b32 s{sNT}, s{sT2}, 3
s_add_u32 s{sNT}, s{sNT}, s{sX}
s_sub_u32 s{sT1}, s{sJ}, 4
s_cselect_b32 s{sR2}, 0, 1
s_and_b32 s{sT1}, s{sT1}, 31
s_mul_i32 s{sT2}, s{sT1}, 37
s_lshr_b32 s{sT2}, s{sT2}, 8
s_mul_i32 s{sT3}, s{sT2}, 7
s_sub_u32 s{sDT2}, s{sT1}, s{sT3}
s_lshl_b32 s{sST}, s{sX}, 2
s_add_u32 s{sST}, s{sST}, s{sT2}
s_cmp_eq_u32 s{sJ}, 0
s_cselect_b32 s{sT1}, 32, s{sJ}
s_mul_i32 s{sT2}, s{sX}, 12
s_add_u32 s{sT2}, s{sT2}, s{sT1}
s_sub_u32 s{sT2}, s{sT2}, 53
s_lshl_b32 s{sT3}, s{sX}, 2
s_add_u32 s{sT3}, s{sT3}, s{sJ}
s_sub_u32 s{sT3}, s{sT3}, 28
s_cmp_lg_u32 s{sT0}, 0
s_cselect_b32 s{sT1}, s{sT1}, s{sJ}
s_cselect_b32 s{sLN0}, s{sT2}, s{sT3}
s_cselect_b32 s{sRL0}, 21, 28
s_cmp_ge_u32 s{sT1}, s{sRL0}
s_cselect_b32 s{sRL0}, 1, 0""" if OPT["map18"] == 1 else f"""s_and_b32 s{sT0}, s{sX}, 1
s_lshr_b32 s{sT1}, s{sX}, 1
s_mul_i32 s{sPAIR}, s{sX}, 28
s_sub_u32 s{sRC}, s{sJ}, s{sT0}
s_add_u32 s{sPAIR}, s{sPAIR}, s{sRC}
s_cmp_lt_u32 s{sRC}, 28
s_cselect_b32 s{sRC}, 1, 0
s_mul_i32 s{sT2}, s{sJ}, 37
s_lshr_b32 s{sT2}, s{sT2}, 8
s_mul_i32 s{sT3}, s{sT2}, 7
s_sub_u32 s{sT3}, s{sJ}, s{sT3}
s_mul_i32 s{sNT}, s{sT1}, 7
s_add_u32 s{sNT}, s{sNT}, s{sT3}
s_lshl_b32 s{sT3}, s{sT0}, 2
s_add_u32 s{sDT1}, s{sT2}, s{sT3}
s_lshl_b32 s{sST}, s{sT0}, 3
s_sub_u32 s{sST}, s{sJ}, s{sST}
s_cselect_b32 s{sR2}, 0, 1
s_lshr_b32 s{sDT2}, s{sST}, 3
s_and_b32 s{sDT2}, s{sDT2}, 3
s_add_u32 s{sDT2}, s{sDT2}, s{sT3}
s_and_b32 s{sST}, s{sST}, 7
s_lshl_b32 s{sLN0}, s{sT1}, 4
s_lshl_b32 s{sT1}, s{sT1}, 3
s_add_u32 s{sST}, s{sST}, s{sT1}
s_cmp_eq_u32 s{sJ}, 0
s_cselect_b32 s{sT1}, 32, s{sJ}
s_mul_i32 s{sT2}, s{sT0}, 11
s_add_u32 s{sT2}, s{sT2}, s{sT1}
s_cmp_lg_u32 s{sT0}, 0
s_cselect_b32 s{sT1}, s{sT1}, s{sJ}
s_cselect_b32 s{sT2}, s{sT2}, s{sJ}
s_cselect_b32 s{sRL0}, 21, 28
s_cmp_ge_u32 s{sT1}, s{sRL0}
s_cselect_b32 s{sRL0}, 1, 0
s_add_u32 s{sLN0}, s{sLN0}, s{sT2}
s_sub_u32 s{sLN0}, s{sLN0}, 28""")
    if OPT["map18"] == 2:
        a(f"""s_sub_u32 s{sT1}, s{sJ}, 4
s_cselect_b32 s{sR2}, 0, 1
s_and_b32 s{sT1}, s{sT1}, 31
s_mul_i32 s{sT2}, s{sT1}, 37
s_lshr_b32 s{sT2}, s{sT2}, 8
s_mul_i32 s{sT3}, s{sT2}, 7
s_sub_u32 s{sDT2}, s{sT1}, s{sT3}
s_lshl_b32 s{sST}, s{sX}, 2
s_add_u32 s{sST}, s{sST}, s{sT2}""")
    a(f"""s_lshl_b32 s{sLN}, s{sX}, 4
s_add_u32 s{sLN}, s{sLN}, s{sJ}
s_sub_u32 s{sLN}, s{sLN}, 8
s_mul_i32 s{sT2}, s{sT0}, 7
s_sub_u32 s{sT2}, 28, s{sT2}
s_cmp_lt_u32 s{sJ}, s{sT2}
s_cselect_b32 s{sR1}, 1, 0
s_sub_u32 s{sT2}, s{sJ}, 8
s_cmp_lt_u32 s{sT2}, 16
s_cselect_b32 s{sRL}, 1, 0
s_min_u32 s{sPAIR}, s{sPAIR}, 223
s_min_u32 s{sNT}, s{sNT}, 27
s_mov_b32 s{sM1}, 0xaaaaaaaa
s_mov_b32 s{sM1 + 1}, 0xaaaaaaaa
s_mov_b32 s{sM2}, 0xcccccccc
s_mov_b32 s{sM2 + 1}, 0xcccccccc""")
    a("s_waitcnt lgkmcnt(0)")
    if OPT["fixdur"] or OPT["stamps"]:
        a("s_mov_b32 s101, s50")
    a("s_mov_b32 s0, 0xffff0000\ns_mov_b32 s1, 0xffff")
    a(f"""s_lshl_b32 s{sT0}, s{sPAIR}, 2
s_load_dword s{sLDT}, {sp(P_LDT)}, s{sT0}
s_load_dword s{sD0}, {sp(P_DSK)}, s{sT0}""")
    kgen_loads()
    for n, p, size in ((S_X0, P_U, 1835008), (S_WS, P_WS, WS_BYTES), (S_OUT, P_OUT, 1835008)):
        a(f"s_mov_b32 s{n}, s{p}\ns_mov_b32 s{n + 1}, s{p + 1}\ns_mov_b32 s{n + 2}, {size}\ns_mov_b32 s{n + 3}, 0x20000")
    a(f"buffer_load_dwordx2 v[104:105], off, {srd(S_WS)}, 0 offset:{EPOCH} sc1")
    for n, p, role in ((S_W1, P_W1, sR1), (S_W2, P_W2, sR2)):
        a(f"s_mov_b32 s{n}, s{p}\ns_mov_b32 s{n + 1}, s{p + 1}\ns_cmp_lg_u32 s{role}, 0\ns_cselect_b32 s{n + 2}, {0 if OPT['now'] & (1 if n == S_W1 else 2) else 7340032}, 0\ns_mov_b32 s{n + 3}, 0x20000")


sAUX = 75


def code_warm(r):
    if not OPT["warm"]:
        return
    a(f"""s_lshl_b32 s{sT0}, s{sJ}, 2
s_add_u32 s{sT0}, s{sT0}, s{sWAVE}
s_mul_i32 s{sT0}, s{sT0}, 640
v_lshl_add_u32 v{r}, v{vLANE}, 7, s{sT0}
s_mov_b32 s{sT1}, ktab-L_entry+8192
v_min_u32 v{r}, s{sT1}, v{r}
s_sub_u32 s28, s{sTAB}, ktab-L_entry
s_subb_u32 s29, s{sTAB + 1}, 0
s_mov_b64 exec, 31
global_load_dword v{r}, v{r}, s[28:29]
s_mov_b64 exec, -1""")


def page_warm(r):
    if not OPT["tlb"]:
        return
    a(f"""v_lshlrev_b32 v{r}, 21, v{vLANE}
v_add_u32 v{r}, 0x1fff80, v{r}
s_mov_b64 exec, 0x3ff
buffer_load_dword v{r}, v{r}, {srd(S_WS)}, 0 offen
s_mov_b64 exec, 1
buffer_load_dword v{r + 1}, off, {srd(S_OUT)}, 0
global_load_dword v{r + 2}, v{vLANE}, {sp(P_B1)}
global_load_dword v{r + 3}, v{vLANE}, {sp(P_B2)}
s_mov_b64 exec, -1""")


def fill(base, n, r, sidx, stride, tag="st0"):
    a(f"""s_lshl_b32 s{sT0}, s{sidx}, 12
s_lshl_b32 s{sT1}, s{sWAVE}, 10
s_add_u32 s{sT0}, s{sT0}, s{sT1}
s_add_u32 s{sT0}, s{sT0}, {base}""")
    for k in range(4):
        a(f"v_mov_b32 v{r + k}, -1")
    for k in range(n):
        a(f"buffer_store_dwordx4 {vr(r, 4)}, v{vL16}, {srd(S_WS)}, s{sT0} offen sc1{' nt' if OPT['fnt'] else ''}", tag=tag)
        if k + 1 < n:
            a(f"s_add_u32 s{sT0}, s{sT0}, {stride}")


def aux_loads():
    a(f"""s_and_b32 s{sAUX}, s{sJ}, 3
s_lshl_b32 s{sAUX}, s{sAUX}, 3
s_add_u32 s{sAUX}, s{sAUX}, s{sX}
s_lshl_b32 s16, s{sAUX}, 2
s_add_u32 s16, s16, s{sWAVE}
s_mul_i32 s{sT1}, s16, {16 * 896}
s_mul_i32 s17, s{sWAVE}, {16 * 912}
s_mov_b32 m0, s17
s_mov_b32 exec_hi, 0xffffff""")
    for k in range(16):
        if k:
            a(f"s_add_u32 m0, m0, 912\ns_add_u32 s{sT1}, s{sT1}, 896")
        a(f"buffer_load_dwordx4 v{vL16}, {srd(S_X0)}, s{sT1} offen {'nt ' if OPT['xnt'] & 2 else ''}lds", res_w=[f"x0"])
    a("s_mov_b64 exec, -1")


def aux_work():
    XR = 8
    a(f"""v_mov_b32 v76, 0
v_mov_b32 v77, 0
v_mov_b32 v78, 0
v_mov_b32 v79, 0
s_lshl_b32 s{sT1}, s16, {8 if emode(4) == "C" else 7}
s_add_u32 s{sT1}, s{sT1}, {ST1}
s_lshl_b32 s18, s{sAUX}, 7
s_add_u32 s18, s18, {ST0}
s_mov_b64 exec, {"0xffff" if emode(4) == "C" else "0xff"}""")
    a(f"buffer_store_dwordx4 v[76:79], v{vL16}, {srd(S_WS)}, s{sT1} offen sc1", tag="st0")
    a(f"""s_mov_b64 exec, -1
v_and_b32 v2, 15, v{vLANE}
v_lshrrev_b32 v3, 4, v{vLANE}
v_mul_u32_u24 v4, 912, v2
v_lshl_add_u32 v4, v3, 4, v4
v_add_u32 v4, s17, v4
v_lshrrev_b32 v6, 2, v2
v_cmp_eq_u32 vcc, v6, v3
v_bfe_u32 v6, v2, 1, 2
v_lshlrev_b32 v6, 7, v6
v_lshrrev_b32 v7, 3, v2
v_lshl_add_u32 v6, v7, 4, v6
v_and_b32 v7, 1, v2
v_lshl_add_u32 v6, v7, 2, v6
s_lshl_b32 s{sT0}, s{sWAVE}, 5
s_add_u32 s{sT0}, s{sT0}, 60000
v_add_u32 v6, s{sT0}, v6
v_mov_b32 v7, 61024
v_cndmask_b32 v6, v7, v6, vcc
v_lshrrev_b32 v117, 3, v{vLANE}
v_cmp_eq_u32 vcc, s{sWAVE}, v117
v_lshlrev_b32 v117, 12, v117
v_and_b32 v7, 7, v{vLANE}
v_lshl_add_u32 v117, v7, 4, v117
v_mov_b32 v7, {OOB}
v_cndmask_b32 v117, v7, v117, vcc
v_mov_b32 v80, 0x3f803f80
v_mov_b32 v81, 0x3f803f80
v_mov_b32 v82, 0x3f803f80
v_mov_b32 v83, 0x3f803f80""")
    if OPT["stamps"] == 1:
        a.wait_vm0()
    stamp("aux data")
    for k in range(14):
        a(f"ds_read_b128 {vr(XR + 4 * k, 4)}, v4 offset:{64 * k}", res_r=["x0"])
    for k in range(14):
        x = vr(XR + 4 * k, 4)
        a(f"v_mfma_f32_16x16x32_bf16 v[64:67], v[80:83], {x}, {'v[64:67]' if k else 0}")
        a(f"v_mfma_f32_16x16x32_bf16 v[68:71], {x}, {x}, {'v[68:71]' if k else 0}")
    a(f"""v_cndmask_b32 v68, v68, v69, {sp(sM1)}
v_cndmask_b32 v70, v70, v71, {sp(sM1)}
v_cndmask_b32 v68, v68, v70, {sp(sM2)}""")
    a("ds_write2_b32 v6, v64, v68 offset0:0 offset1:2")
    a.barrier()
    a(f"ds_read_b128 v[64:67], v{vL16} offset:60000")
    a(f"buffer_store_dwordx4 v[64:67], v117, {srd(S_WS)}, s18 offen sc1", tag="st0")
    stamp("aux st")
    nonce_take()
    flag_put(0, f"s_add_u32 s{sT0}, s{sAUX}, 224\ns_lshl_b32 s{sT0}, s{sT0}, 6", 72, "st0")


def xt_loads():
    a(f"""s_lshl_b32 s{sT0}, s{sPAIR}, 1
s_lshr_b32 s{sT1}, s{sWAVE}, 1
s_add_u32 s{sT0}, s{sT0}, s{sT1}
s_mul_i32 s{sT1}, s{sT0}, 9363
s_lshr_b32 s{sT1}, s{sT1}, 16
s_mul_i32 s{sT2}, s{sT1}, 7
s_sub_u32 s{sT0}, s{sT0}, s{sT2}
s_lshl_b32 s{sT0}, s{sT0}, 1
s_and_b32 s{sT2}, s{sWAVE}, 1
s_add_u32 s{sT0}, s{sT0}, s{sT2}
s_mul_i32 s{sT2}, s{sT1}, {32 * 896}
s_lshl_b32 s{sT3}, s{sT0}, 6
s_add_u32 s{sT2}, s{sT2}, s{sT3}
v_lshrrev_b32 v2, 2, v{vLANE}
v_mul_u32_u24 v2, 896, v2
v_and_b32 v3, 3, v{vLANE}
v_lshl_add_u32 v2, v3, 4, v2
s_mul_i32 s22, s{sWAVE}, {GST}
s_mov_b32 m0, s22
s_mul_i32 s23, s{sT1}, {BS}""")
    a(f"buffer_load_dwordx4 v2, {srd(S_X0)}, s{sT2} offen {'nt ' if OPT['xnt'] & 1 else ''}lds", res_w=["x0"])
    a(f"s_add_u32 m0, m0, 1024\ns_add_u32 s{sT2}, s{sT2}, {16 * 896}")
    a(f"buffer_load_dwordx4 v2, {srd(S_X0)}, s{sT2} offen {'nt ' if OPT['xnt'] & 1 else ''}lds", res_w=["x0"])
    a(f"""s_lshl_b32 s{sT0}, s{sT0}, 11
s_add_u32 s23, s23, s{sT0}
s_add_u32 s23, s23, {X0}
v_lshrrev_b32 v2, 4, v{vLANE}
v_bfe_u32 v36, v{vLANE}, 2, 2
v_lshl_add_u32 v36, v2, 3, v36
v_lshlrev_b32 v36, 6, v36
v_lshl_add_u32 v36, v3, 3, v36
v_add_u32 v36, s22, v36
v_and_b32 v37, 15, v{vLANE}
v_lshlrev_b32 v37, 6, v37
v_lshl_add_u32 v37, v2, 4, v37""")


def xt_work():
    for u in range(2):
        for j in range(2):
            a(f"ds_read_b64_tr_b16 {vr(40 + 4 * u + 2 * j, 2)}, v36 offset:{j * 256 + u * 32}", res_r=["x0"])
    for u in range(2):
        a(f"buffer_store_dwordx4 {vr(40 + 4 * u, 4)}, v37, {srd(S_WS)}, s23 offen offset:{1024 * u} sc1", tag="st0")


def xt_poll_addr(ra, t):
    a(f"""s_lshl_b32 s{sT0}, s{sWAVE}, 4
v_and_b32 v{t}, 15, v{vLANE}
v_add_u32 v{t}, s{sT0}, v{t}
v_mul_u32_u24 v{t}, 7, v{t}
s_lshr_b32 s{sT0}, s{sPAIR}, 5
v_add_u32 v{t}, s{sT0}, v{t}
v_lshrrev_b32 v{t}, 1, v{t}
s_lshl_b32 s{sT0}, s{sWAVE}, 3
s_add_u32 s{sT0}, s{sT0}, 224
v_and_b32 v{ra}, 7, v{vLANE}
v_add_u32 v{ra}, s{sT0}, v{ra}
v_cmp_gt_u32 vcc, 16, v{vLANE}
v_cndmask_b32 v{ra}, v{ra}, v{t}, vcc""")


def e1_poll_addr(ra):
    a(f"s_lshl_b32 s{sT0}, s{sWAVE}, 6\nv_add_u32 v{ra}, s{sT0}, v{vLANE}")


def nonce_take():
    a(f"v_readfirstlane_b32 s{sNONCE}, v104\nv_readfirstlane_b32 s{sNONCE + 1}, v105")
    a(f"s_add_u32 s{sNONCE}, s{sNONCE}, 1")
    a(f"s_addc_u32 s{sNONCE + 1}, s{sNONCE + 1}, 0")


def nonce_retire():
    l = label("nr")
    a(f"s_or_b32 s{sT0}, s2, s{sWAVE}")
    a(f"s_cmp_lg_u32 s{sT0}, 32")
    a(f"s_cbranch_scc1 {l}")
    a(f"v_mov_b32 v110, s{sNONCE}\nv_mov_b32 v111, s{sNONCE + 1}\ns_mov_b64 exec, 1")
    a(f"buffer_store_dwordx2 v[110:111], off, {srd(S_WS)}, 0 offset:{EPOCH} sc1", optional=True)
    a("s_mov_b64 exec, -1")
    a(f"{l}:")


def flag_put(edge, sprod, r, tag):
    a(f"s_lshl_b32 s{sT0}, s{sprod}, 6" if isinstance(sprod, int) else sprod)
    a(f"""s_lshl_b32 s{sT1}, s{sWAVE}, 15
s_add_u32 s{sT0}, s{sT0}, s{sT1}
s_add_u32 s{sT0}, s{sT0}, {FL + edge * 0x20000}
v_lshlrev_b32 v{r + 4}, 12, v{vLANE}
v_and_b32 v{r + 4}, 0x4000, v{r + 4}
v_and_b32 v{r}, 3, v{vLANE}
v_lshl_add_u32 v{r + 4}, v{r}, 4, v{r + 4}
v_mov_b32 v{r}, s{sNONCE}
v_mov_b32 v{r + 1}, s{sNONCE + 1}
v_mov_b32 v{r + 2}, s{sNONCE}
v_mov_b32 v{r + 3}, s{sNONCE + 1}""")
    a.wait_tag(tag)
    a.barrier()
    a("s_mov_b64 exec, 0xff")
    a(f"buffer_store_dwordx4 {vr(r, 4)}, v{r + 4}, {srd(S_WS)}, s{sT0} offen sc1", tag="flag")
    a("s_mov_b64 exec, -1")


def emode(e):
    return OPT["em"][e - 1]


def hinted(e):
    return emode(e) in "HSMGC"


def sentinel(e):
    return emode(e) in "SDM"


def flagged(e):
    return emode(e) in "FHG"


def armed(layer):
    return any(sentinel(e + 4 * layer) for e in (1, 2, 3))


def wait_edge(e, r, ra_full, ra_samp):
    if hinted(e):
        poll_issue(e + 10, r, ra_samp)
        poll_take(r, ra_samp)
    elif emode(e) == "D":
        a.wait_tag("pub")
    else:
        a.wait_tag("flag")
    if flagged(e):
        poll_issue(e, r, ra_full)
        poll_take(r, ra_full)


def hint_prep(edge, sprod, r):
    a(f"s_lshl_b32 s{sT0}, s{sprod}, 6" if isinstance(sprod, int) else sprod)
    a(f"""s_lshl_b32 s{sT1}, s{sWAVE}, 15
s_add_u32 s{sT0}, s{sT0}, s{sT1}
s_add_u32 s{sT0}, s{sT0}, {FL + edge * 0x20000}
v_lshlrev_b32 v{r + 4}, 12, v{vLANE}
v_and_b32 v{r + 4}, 0x4000, v{r + 4}
v_and_b32 v{r}, 3, v{vLANE}
v_lshl_add_u32 v{r + 4}, v{r}, 4, v{r + 4}
v_add_u32 v{r + 4}, s{sT0}, v{r + 4}
v_mov_b32 v{r}, s{sNONCE}
v_mov_b32 v{r + 1}, s{sNONCE + 1}
v_mov_b32 v{r + 2}, s{sNONCE}
v_mov_b32 v{r + 3}, s{sNONCE + 1}""")


def hint_put(r):
    a("s_mov_b64 exec, 0xff")
    a(f"buffer_store_dwordx4 {vr(r, 4)}, v{r + 4}, {srd(S_WS)}, 0 offen sc1", tag="hint")
    a("s_mov_b64 exec, -1")


def poll_issue(edge, r, ra=None):
    ra = r + 2 if ra is None else ra
    a(f"""s_lshl_b32 s{sT3}, s{sX}, 14
s_add_u32 s{sT3}, s{sT3}, {FL + edge * 0x20000}
v_lshl_add_u32 v{ra}, v{ra}, 6, s{sT3}
buffer_load_dwordx2 {vr(r, 2)}, v{ra}, {srd(S_WS)}, 0 offen sc1""")


def poll_take(r, ra=None):
    ra = r + 2 if ra is None else ra
    ok, lp = label("pok"), label("plp")
    a(f"v_cmp_ne_u64 vcc, {sp(sNONCE)}, {vr(r, 2)}")
    a(f"s_cbranch_vccz {ok}")
    a(f"s_mov_b32 s{sCNT}, 0")
    a(f"{lp}:")
    if OPT["slp"]:
        a(f"s_sleep {OPT['slp']}")
    a(f"buffer_load_dwordx2 {vr(r, 2)}, v{ra}, {srd(S_WS)}, 0 offen sc1")
    a("s_waitcnt vmcnt(0)")
    a(f"v_cmp_ne_u64 vcc, {sp(sNONCE)}, {vr(r, 2)}")
    a(f"s_add_u32 s{sCNT}, s{sCNT}, 1")
    a(f"s_cbranch_vccz {ok}")
    a(f"s_cmp_lt_u32 s{sCNT}, 0x100000")
    a(f"s_cbranch_scc1 {lp}")
    a(f"{ok}:")


sW1O, sW2O = 98, 99
sROT1, sROT2 = 33, 35
sW1E, sW2E = 78, 79


def w_setup():
    a(f"""v_lshrrev_b32 v2, 3, v{vLANE}
v_and_b32 v3, 7, v{vLANE}
v_bfe_u32 v4, v{vLANE}, 4, 1
v_lshlrev_b32 v4, 2, v4
v_xor_b32 v3, v3, v4
v_lshlrev_b32 v3, 4, v3
v_mul_u32_u24 v{vD1}, 3584, v2
v_add_u32 v{vD1}, v{vD1}, v3
v_lshl_add_u32 v{vD2}, v2, 12, v3
v_bfe_u32 v2, v{vLANE}, 2, 2
v_lshrrev_b32 v3, 5, v{vLANE}
v_bfe_u32 v4, v{vLANE}, 4, 1
v_and_b32 v5, 3, v{vLANE}
v_lshlrev_b32 v5, 3, v5
v_lshl_add_u32 v5, v4, 5, v5
v_lshrrev_b32 v4, 1, v2
v_lshl_add_u32 v5, v4, 6, v5
s_lshr_b32 s{sT0}, s{sWAVE}, 1
s_lshl_b32 s{sT0}, s{sT0}, 6
v_xor_b32 v5, s{sT0}, v5
v_lshl_add_u32 v5, v2, 7, v5
s_mul_i32 s{sT1}, s{sWAVE}, 24576
s_add_u32 s{sT1}, s{sT1}, {W2L}
v_add_u32 v5, s{sT1}, v5
v_lshl_add_u32 v{vT1a}, v3, 10, v5
v_xor_b32 v{vT1b}, 64, v{vT1a}
v_lshl_add_u32 v{vT2a}, v3, 9, v5
v_xor_b32 v{vT2b}, 64, v{vT2a}
s_mul_i32 s{sW1O}, s{sWAVE}, {512 * 3584}
s_lshl_b32 s{sT0}, s{sNT}, 7
s_add_u32 s{sW1O}, s{sW1O}, s{sT0}
s_mul_i32 s{sW2O}, s{sWAVE}, {448 * 4096}
s_lshl_b32 s{sT0}, s{sST}, 7
s_add_u32 s{sW2O}, s{sW2O}, s{sT0}
s_mov_b32 s{sWOFF}, s{sT1}""")
    if OPT["rot"] and OPT["map18"] == 1:
        if OPT["rot"] == 2:
            a(f"""s_add_u32 s{sROT1}, s{sDT1}, s{sX}
s_and_b32 s{sROT1}, s{sROT1}, 7
s_add_u32 s{sROT2}, s{sDT2}, s{sX}
s_cmp_ge_u32 s{sROT2}, 7
s_cselect_b32 s{sT0}, 7, 0
s_sub_u32 s{sROT2}, s{sROT2}, s{sT0}""")
        else:
            a(f"s_mov_b32 s{sROT1}, s{sDT1}\ns_mov_b32 s{sROT2}, s{sDT2}")
    elif OPT["rot"] == 3:
        a(f"""s_and_b32 s{sT0}, s{sDT1}, 3
s_lshr_b32 s{sT1}, s{sDT1}, 2
s_add_u32 s{sT1}, s{sT1}, 2
s_mul_i32 s{sROT1}, s{sT0}, s{sT1}
s_min_u32 s{sROT1}, s{sROT1}, 7
s_and_b32 s{sT0}, s{sDT2}, 3
s_lshr_b32 s{sT1}, s{sDT2}, 2
s_add_u32 s{sT1}, s{sT1}, 2
s_mul_i32 s{sROT2}, s{sT0}, s{sT1}
s_min_u32 s{sROT2}, s{sROT2}, 5""")
    elif OPT["rot"]:
        a(f"""s_and_b32 s{sT0}, s{sDT1}, 3
s_lshl_b32 s{sT0}, s{sT0}, 1
s_lshr_b32 s{sT1}, s{sDT1}, 2
s_add_u32 s{sT0}, s{sT0}, s{sT1}
s_and_b32 s{sROT1}, s{sT0}, 7
s_and_b32 s{sT0}, s{sDT2}, 3
s_lshl_b32 s{sT0}, s{sT0}, 1
s_lshr_b32 s{sT1}, s{sDT2}, 2
s_add_u32 s{sT0}, s{sT0}, s{sT1}
s_min_u32 s{sROT2}, s{sT0}, 6""")
        if OPT["map18"] == 2:
            a(f"s_mov_b32 s{sROT2}, s{sDT2}")
    else:
        a(f"s_mov_b32 s{sROT1}, 0\ns_mov_b32 s{sROT2}, 0")
    a(f"""s_add_u32 s{sW1E}, s{sW1O}, {512 * 3584}
s_mul_i32 s{sT0}, s{sROT1}, {64 * 3584}
s_add_u32 s{sW1O}, s{sW1O}, s{sT0}
s_add_u32 s{sW2E}, s{sW2O}, {448 * 4096}
s_mul_i32 s{sT0}, s{sROT2}, {64 * 4096}
s_add_u32 s{sW2O}, s{sW2O}, s{sT0}""")


WORDER = list(range(0, 4)) + list(range(32, 36)) + list(range(4, 32)) + list(range(36, 60))


def w_dma(pos, half):
    return w_dma_n(WORDER[pos], pos % 12, half, pos)


def w_dma_n(n, slot, half, pos=99):
    pol = ("", "nt ", "sc1 ", "sc0 sc1 ", "sc0 sc1 nt ")[OPT["wnt"]] if (OPT["wnta"] or pos < 2 * OPT["wg"]) else ""
    g = [Ins(f"s_add_u32 m0, s{sWOFF}, {slot * 2048 + half * 1024}")]
    if n < 32:
        g.append(Ins(f"s_add_u32 s{sW1O}, s{sW1O}, {8 * 3584}") if (n or half) else Ins("s_nop 0"))
        if n and n % 4 == 0 and half == 0:
            g += [Ins(f"s_cmp_eq_u32 s{sW1O}, s{sW1E}"), Ins(f"s_cselect_b32 s3, {512 * 3584}, 0"), Ins(f"s_sub_u32 s{sW1O}, s{sW1O}, s3")]
        g.append(Ins(f"buffer_load_dwordx4 v{vD1}, {srd(S_W1)}, s{sW1O} offen {pol}lds", res_w=[f"slot{slot}"]))
    else:
        g.append(Ins(f"s_add_u32 s{sW2O}, s{sW2O}, {8 * 4096}") if (n > 32 or half) else Ins("s_nop 0"))
        if n > 32 and n % 4 == 0 and half == 0:
            g += [Ins(f"s_cmp_eq_u32 s{sW2O}, s{sW2E}"), Ins(f"s_cselect_b32 s3, {448 * 4096}, 0"), Ins(f"s_sub_u32 s{sW2O}, s{sW2O}, s3")]
        g.append(Ins(f"buffer_load_dwordx4 v{vD2}, {srd(S_W2)}, s{sW2O} offen {pol}lds", res_w=[f"slot{slot}"]))
    return g


def w_tr(pos):
    return w_tr_n(WORDER[pos], pos % 12)


def wone(n0, n1, nt):
    g = [w_dma_n(n, n % 12, h) for n in range(n0, n0 + 12) for h in range(2)]
    for n in range(n0, nt + 1):
        if n < nt:
            g.append(w_tr_n(n, n % 12))
        if n > n0 and n + 11 < n1:
            g += [w_dma_n(n + 11, (n + 11) % 12, h) for h in range(2)]
    return g


def w_tr_n(n, slot):
    g = []
    for nb in range(2):
        for j in range(2):
            if n < 32:
                r = (n * 2 + nb) * 4 + 2 * j
                g.append(Ins(f"ds_read_b64_tr_b16 a[{r}:{r + 1}], v{(vT1a, vT1b)[nb]} offset:{slot * 2048 + j * 512}", res_r=[f"slot{slot}"]))
            else:
                r = 128 + ((n - 32) * 2 + nb) * 4 + 2 * j
                g.append(Ins(f"ds_read_b64_tr_b16 v[{r}:{r + 1}], v{(vT2a, vT2b)[nb]} offset:{slot * 2048 + j * 1024}", res_r=[f"slot{slot}"]))
    return g


def w_all_upfront():
    for n in range(12):
        a.put(w_dma(n, 0)); a.put(w_dma(n, 1))
    for n in range(48):
        a.put(w_tr(n))
        if n >= 1:
            a.put(w_dma(n + 11, 0)); a.put(w_dma(n + 11, 1))
    a.put(w_dma(59, 0)); a.put(w_dma(59, 1))
    a.wait_vm0()
    a.wait_lgkm0()


GX = 80
CS = 64
PR = 56
TAB = 104


def kgen_loads():
    a(f"""s_lshl_b32 s{sT0}, s{sPAIR}, 10
s_lshl_b32 s{sT1}, s{sWAVE}, 8
s_add_u32 s{sT0}, s{sT0}, s{sT1}
v_lshl_add_u32 v3, v{vLANE}, 2, s{sT0}""")
    for k, p in enumerate((P_ARE, P_AIM, P_BRE, P_BIM, P_CRE, P_CIM)):
        a(f"global_load_dword v{PR + k}, v3, {sp(p)}{' nt' if OPT['pnt'] else ''}")


def kgen_table_addr():
    l = label("pc")
    a(f"s_getpc_b64 {sp(sTAB)}")
    a(f"{l}:")
    a(f"s_add_u32 s{sTAB}, s{sTAB}, ktab-{l}")
    a(f"s_addc_u32 s{sTAB + 1}, s{sTAB + 1}, 0")


def kgen_table_load():
    kgen_table_addr()
    a(f"s_lshr_b32 s{sT0}, s{sWAVE}, 1\ns_lshl_b32 s{sT0}, s{sT0}, 5\nv_lshl_add_u32 v75, v0, 5, s{sT0}")


KBG = []


def kgen(hooks):
    F = {e: 2 * e for e in range(1, 8)}
    Qr = {1: 16, 2: 18, 3: 20, 4: 22}
    QN = [24, 26]
    Z1, Z2, C0, C1 = 28, 30, 32, 34
    CN = [36, 38]
    T0, T1 = 62, 64
    CV = [66, 67, 68, 69]
    A2, B2, DT = 70, 71, 72
    ACC = 76
    QF = 88
    PF = 40
    vG, vF = 73, 74
    a(f"""s_mul_i32 s{sT0}, s{sWAVE}, {GST}
v_lshl_add_u32 v{vG}, v{vLANE}, 2, s{sT0}
v_and_b32 v2, 15, v{vLANE}
v_mul_u32_u24 v2, {GROW}, v2
v_lshrrev_b32 v3, 4, v{vLANE}
v_lshl_add_u32 v2, v3, 4, v2
v_add_u32 v{vF}, s{sT0}, v2""")
    if OPT["atid"]:
        a(f"s_mov_b32 m0, s22")
    a.begin()
    a(f"""s_lshr_b32 s{sT0}, s{sWAVE}, 1
s_lshl_b32 s{sT0}, s{sT0}, 4
s_lshr_b32 s{sT0}, s{sLDT}, s{sT0}
s_lshl_b32 s{sT0}, s{sT0}, 16
v_mov_b32 v2, {f32(math.log2(math.e))}
v_mul_f32 v2, s{sT0}, v2
v_exp_f32 v2, v2
v_cvt_pk_bf16_f32 v2, v2, v2
v_lshlrev_b32 v{DT}, 16, v2
s_and_b32 s{sD1}, s{sD0}, 0xffff0000
s_lshl_b32 s{sD0}, s{sD0}, 16""")
    cvi = [0]

    def hook(name):
        if name is not None and name not in hooks:
            return
        a_body = space_ds(a.end(), OPT["lag"], OPT["gap"])
        m, rest = merge(a_body, KBG[:], 20, OPT["ev_kg"])
        del KBG[:]
        a.put(m)
        put_all(rest)
        if name is not None:
            hooks[name]()
            a.begin()

    def row(r, src, neg=False):
        c = CV[cvi[0] % 4]
        cvi[0] += 1
        a(f"v_cvt_pk_bf16_f32 v{c}, v{src}, {'-' if neg else ''}v{src + 1}")
        a(f"ds_write_addtid_b32 v{c} offset:{r * GROW}" if OPT["atid"] else f"ds_write_b32 v{vG}, v{c} offset:{r * GROW}")

    def reads(dst, tile):
        for ks in range(4):
            a(f"ds_read_b128 {vr(dst + 4 * ks, 4)}, v{vF} offset:{tile * 16 * GROW + ks * 64}")

    def mfmas(t, first):
        for ks in range(4):
            c = "0" if (first and ks == 0) else vr(ACC + 4 * t, 4)
            a(f"v_mfma_f32_16x16x32_bf16 {vr(ACC + 4 * t, 4)}, {vr(PF + 4 * ks, 4)}, {vr(QF + 4 * ks, 4)}, {c}")

    def direct(d, scale):
        if scale != 1:
            a(f"v_mul_f32 v{T0}, {f32(scale)}, v{A2}")
            a(f"v_mul_f32 v{T1}, {f32(scale)}, v{B2}")
            x, y = T0, T1
        else:
            x, y = A2, B2
        a(f"v_fract_f32 v{T1}, v{y}")
        a(f"v_exp_f32 v{T0}, v{x}")
        a(f"v_cos_f32 v{d}, v{T1}")
        a(f"v_sin_f32 v{d + 1}, v{T1}")
        a(f"v_pk_mul_f32 {vr(d, 2)}, {vr(d, 2)}, {vr(T0, 2)} op_sel_hi:[1,0]")

    for rd in range(2):
        def up(d, s):
            a(f"v_lshlrev_b32 v{d}, 16, v{s}" if rd == 0 else f"v_and_b32 v{d}, s0, v{s}")
        up(A2, PR); up(B2, PR + 1)
        up(QN[0], PR + 2); up(QN[0] + 1, PR + 3)
        up(QN[1], PR + 4); up(QN[1] + 1, PR + 5)
        a(f"v_mul_f32 v{A2}, v{DT}, v{A2}")
        a(f"v_mul_f32 v{B2}, v{DT}, v{B2}")
        a(f"v_pk_mul_f32 {vr(QN[0], 2)}, {vr(QN[0], 2)}, {vr(DT, 2)} op_sel_hi:[1,0]")
        a(f"v_mul_f32 v{A2}, {f32(math.log2(math.e))}, v{A2}")
        a(f"v_mul_f32 v{B2}, {f32(1 / (2 * math.pi))}, v{B2}")
        cmul2((C0, QN[1], QN[0]))
        direct(F[1], 1)
        if rd == 1:
            mfmas(2, True)
        direct(Z1, 128)
        hook(5 * rd)
        cmul2((F[2], F[1], F[1]), (Z2, Z1, Z1))
        cmul2((F[4], F[2], F[2]), (F[3], F[2], F[1]))
        cmul2((Qr[1], F[4], F[4]), (C1, C0, Z1))
        a(f"v_mov_b32 v{CV[3]}, 0x3f80")
        a(f"ds_write_b32 v{vG}, v{CV[3]}")
        cmul2((Qr[2], Qr[1], Qr[1]), (F[5], F[4], F[1]))
        row(1, Qr[1], True)
        cmul2((Qr[3], Qr[2], Qr[1]), (Qr[4], Qr[2], Qr[2]))
        row(2, Qr[2], True)
        cmul2((F[6], F[4], F[2]), (F[7], F[4], F[3]))
        row(3, Qr[3], True)
        row(4, Qr[4], True)
        cur = {1: Qr[1], 2: Qr[2], 3: Qr[3], 0: Qr[4]}
        free = list(QN) + [CN[0]]
        j = 5
        while j < 16:
            js = [j] + ([j + 1] if j + 1 < 16 else [])
            ps = []
            for jj in js:
                d = free.pop(0)
                ps.append((d, cur[jj % 4], Qr[4]))
            cmul2(*ps)
            for jj, p in zip(js, ps):
                if cur[jj % 4] != Qr[4]:
                    free.append(cur[jj % 4])
                cur[jj % 4] = p[0]
                row(jj, p[0], True)
            j += 2
        reads(QF, 0)
        hook(5 * rd + 1)
        TA, TB = QN
        row(16, C0); row(24, C1)
        for e in range(1, 8):
            cmul2((TA, C0, F[e]), (TB, C1, F[e]))
            row(16 + e, TA); row(24 + e, TB)
        reads(PF, 1)
        hook(5 * rd + 2)
        ca, cb = C0, C1
        na, nb_ = CN
        def adv():
            nonlocal ca, cb, na, nb_
            cmul2((na, ca, Z2), (nb_, cb, Z2))
            ca, cb, na, nb_ = na, nb_, ca, cb
        adv()
        row(32, ca); row(36, cb)
        for e in range(1, 4):
            cmul2((TA, ca, F[2 * e]), (TB, cb, F[2 * e]))
            row(32 + e, TA); row(36 + e, TB)
        mfmas(0, rd == 0)
        for k in range(2):
            adv()
            row(40 + 4 * k, ca); row(42 + 4 * k, cb)
            cmul2((TA, ca, F[4]), (TB, cb, F[4]))
            row(41 + 4 * k, TA); row(43 + 4 * k, TB)
        reads(PF, 2)
        hook(5 * rd + 3)
        for k in range(4):
            adv()
            row(48 + 2 * k, ca); row(49 + 2 * k, cb)
        cmul2((na, ca, Z2))
        row(56, na)
        mfmas(1, rd == 0)
        reads(PF, 3)
        hook(5 * rd + 4)
    hook(None)
    a(f"s_mul_i32 s{sT0}, s{sWAVE}, {GST}")
    a(f"v_add_u32 v{vF}, s{sT0}, v{vL16}")
    a(f"v_mov_b32 v{CV[0]}, 0")
    for k in range(8):
        a(f"v_and_b32 v{2 + 2 * k}, s1, v{TAB + k}")
        a(f"v_lshrrev_b32 v{3 + 2 * k}, 16, v{TAB + k}")
    for t in range(2):
        a(f"ds_write_b128 v{vF}, {vr(ACC + 4 * t, 4)} offset:{TOFF + t * 1024}")
    mfmas(2, False)
    a(f"ds_write_b32 v{vG}, v{CV[0]} offset:{TOFF + 3072}")
    a("v_and_b32 v18, 0xffff, v0\nv_lshrrev_b32 v19, 16, v0\nv_and_b32 v20, 0xffff, v1")
    a(f"ds_write_b128 v{vF}, {vr(ACC + 8, 4)} offset:{TOFF + 2048}")


def kzero(r):
    a(f"""v_mov_b32 v{r}, 0
v_mov_b32 v{r + 1}, 0
v_mov_b32 v{r + 2}, 0
v_mov_b32 v{r + 3}, 0
v_bfe_u32 v{r + 4}, v{vLANE}, 1, 3
v_mul_u32_u24 v{r + 4}, {KST}, v{r + 4}
v_and_b32 v{r + 5}, 1, v{vLANE}
v_lshl_add_u32 v{r + 4}, v{r + 5}, 4, v{r + 4}
s_and_b32 s{sT0}, s{sWAVE}, 1
s_mul_i32 s{sT0}, s{sT0}, {UST}
v_add_u32 v{r + 5}, s{sT0}, v{vL16}""")
    return [f"ds_write_b128 v{r + 4}, {vr(r, 4)} offset:4096", f"ds_write_b128 v{r + 5}, {vr(r, 4)} offset:{UB}"]


def kaddr(r):
    a(f"""s_lshr_b32 s{sT0}, s{sWAVE}, 1
s_and_b32 s{sT1}, s{sWAVE}, 1
s_lshl_b32 s{sT1}, s{sT1}, 11
v_lshl_add_u32 v{r + 3}, v{vLANE}, 5, s{sT1}""")
    for c in range(4):
        a(f"s_cmp_lg_u32 s{sT0}, 0")
        a(f"s_cselect_b32 s{sT2}, {KSLOT[1][c]}, {KSLOT[0][c]}")
        a(f"s_mul_i32 s{sT2}, s{sT2}, {KST}")
        a(f"v_add_u32 v{r + c}, s{sT2}, v{r + 3}")


def kexpand(mid):
    AD, VAL = 2, 22
    P0, P1, P2, P3 = 2, 12, 88, 96
    a.barrier()
    for k in range(19):
        a(f"ds_read2st64_b32 {vr(VAL + 2 * k, 2)}, v{AD + k} offset0:{TOFF // 256} offset1:{TOFF // 256 + GST // 256}")
    mid()
    kaddr(60)
    zw = kzero(104)
    if OPT["h_load"] < 10:
        for k in range(24):
            a(f"v_accvgpr_read_b32 v{CS + k}, a{k}")
    for k in range(19):
        a(f"v_add_f32 v{VAL + 2 * k}, v{VAL + 2 * k}, v{VAL + 2 * k + 1}")
        if k:
            a(f"v_cvt_pk_bf16_f32 v{(P0 if k & 1 else P1) + (k - 1) // 2}, v{VAL + 2 * k - 2}, v{VAL + 2 * k}")
    a.barrier()
    a.begin()
    for l in zw:
        a(l)
    for c, P in ((0, P0), (1, P1)):
        a(f"ds_write_b128 v{60 + c}, {vr(P, 4)}")
        a(f"ds_write_b128 v{60 + c}, {vr(P + 4, 4)} offset:16")
    for c, P, src in ((2, P2, P0), (3, P3, P1)):
        for i in range(4):
            a(f"v_pk_mov_b32 {vr(P + 2 * i, 2)}, {vr(src + 2 * i, 2)}, {vr(src + 2 * i + 2, 2)} op_sel:[1,0]")
        a(f"ds_write_b128 v{60 + c}, {vr(P, 4)}")
        a(f"ds_write_b128 v{60 + c}, {vr(P + 4, 4)} offset:16")
    return a.end()


def kcopies():
    R, E, M = 2, 12, 22
    kaddr(40)
    a(f"""ds_read_b128 {vr(R, 4)}, v40
ds_read_b128 {vr(R + 4, 4)}, v40 offset:16
ds_read_b64 {vr(R + 8, 2)}, v40 offset:32""")
    for l in kzero(32):
        a(l)
    for i in range(9):
        a(f"v_alignbit_b32 v{E + i}, v{R + i + 1}, v{R + i}, 16")
    a(f"ds_write_b128 v41, {vr(E, 4)}")
    a(f"ds_write_b128 v41, {vr(E + 4, 4)} offset:16")
    for i in range(4):
        a(f"v_pk_mov_b32 {vr(M + 2 * i, 2)}, {vr(R + 2 * i, 2)}, {vr(R + 2 * i + 2, 2)} op_sel:[1,0]")
    a(f"ds_write_b128 v42, {vr(M, 4)}")
    a(f"ds_write_b128 v42, {vr(M + 4, 4)} offset:16")
    for i in range(4):
        a(f"v_pk_mov_b32 {vr(R + 2 * i, 2)}, {vr(E + 2 * i, 2)}, {vr(E + 2 * i + 2, 2)} op_sel:[1,0]")
    a(f"ds_write_b128 v43, {vr(R, 4)}")
    a(f"ds_write_b128 v43, {vr(R + 4, 4)} offset:16")


cvA, cvB, cvZ, cvXW, cvXR, cvO, cvU, cvX, cvH, cvP = 112, 113, 114, 115, 116, 117, 118, 119, 100, 108
STUBS = []


def conv_poll1():
    r = cvP
    a(f"""v_lshrrev_b32 v{r}, 3, v{vLANE}
v_min_u32 v{r}, 6, v{r}
v_and_b32 v{r + 1}, 7, v{vLANE}
v_lshl_add_u32 v{r + 2}, v{r}, 5, v{r + 1}
s_lshl_b32 s{sT0}, s{sWAVE}, 3
v_add_u32 v{r + 2}, s{sT0}, v{r + 2}
v_and_b32 v{r + 1}, 7, v{vLANE}
v_min_u32 v{r}, 6, v{r + 1}
v_lshl_add_u32 v{r + 3}, v{r}, 5, v{r + 1}
v_add_u32 v{r + 3}, s{sT0}, v{r + 3}""")


def conv_loads():
    for p in range(4):
        a(f"buffer_load_dwordx4 {vr(CS + 4 * p, 4)}, v{vL16}, {srd(S_WS)}, s{16 + p} offen sc1")
    a(f"buffer_load_dwordx4 {vr(GX, 4)}, v{cvX}, {srd(S_WS)}, s20 offen sc1")
    a(f"buffer_load_dwordx4 {vr(GX + 4, 4)}, v{cvX}, {srd(S_WS)}, s20 offen offset:64 sc1")


CS1, GX1 = 64, 96


def conv_counted():
    XF, UF, AL, BE, UP = cXF, cUF, cAL, cBE, cUP
    again, back, stub = label("cca"), label("ccb"), label("ccs")
    xl = [f"buffer_load_dwordx4 {vr(GX1, 4)}, v{cvX}, {srd(S_WS)}, s20 offen sc1", f"buffer_load_dwordx4 {vr(GX1 + 4, 4)}, v{cvX}, {srd(S_WS)}, s20 offen offset:64 sc1"]
    a(f"s_mov_b32 s{sCNT}, 0")
    a(f"{again}:")
    for e in range(8):
        a(f"buffer_load_dwordx4 {vr(CS1 + 4 * e, 4)}, v{vL16}, {srd(S_WS)}, s{22 + e} offen sc1")
        if e == 1 and not OPT["xe"]:
            a(xl[0]); a(xl[1])

    def tok(e):
        S = CS1 + 4 * e
        a(f"v_pk_mul_f32 {vr(S, 2)}, {vr(S, 2)}, {sp(sCA)} op_sel_hi:[1,0]")
        a(f"v_fma_f32 v{S + 3}, -v{S}, v{S}, s{sCB}")
        a(f"v_add_f32 v{S + 1}, v{S + 1}, v{S + 3}")
        a(f"v_max_f32 v{S + 1}, s{sCB}, v{S + 1}")
        a(f"v_rsq_f32 v{AL + e}, v{S + 1}")
    c = [CS1 + 4 * e + 2 for e in range(8)]
    if OPT["cpipe"]:
        for p in range(4):
            tok(2 * p)
            tok(2 * p + 1)
            if p == 0:
                for k in range(8):
                    unpack(XF + 2 * k, XF + 2 * k + 1, GX1 + k)
                a(f"v_max_u32 v63, v{GX1 + 3}, v{GX1 + 7}")
                a(f"v_cmp_eq_u32 s[16:17], -1, v63")
                a(f"v_min_f32 v62, v{c[0]}, v{c[1]}")
            else:
                a(f"v_min3_f32 v62, v62, v{c[2 * p]}, v{c[2 * p + 1]}")
            if p == 3:
                a(f"v_cmp_neq_f32 vcc, {f32(14.0)}, v62")
            if OPT["mr"]:
                m0, m1 = CS1 + 8 * p, CS1 + 8 * p + 4
                a(f"v_cvt_pk_bf16_f32 v{m1}, v{m0}, v{m1}")
                unpack(m0, m1, m1)
            for e in (2 * p, 2 * p + 1):
                a(f"v_mul_f32 v{BE + e}, -v{CS1 + 4 * e}, v{AL + e}")
            for ch in range(2):
                a(f"v_pk_fma_f32 {vr(UF + 8 * ch + 2 * p, 2)}, {vr(XF + 8 * ch + 2 * p, 2)}, {vr(AL + 2 * p, 2)}, {vr(BE + 2 * p, 2)}")
            for ch in range(2):
                a(f"v_cvt_pk_bf16_f32 v{UP + 4 * ch + p}, v{UF + 8 * ch + 2 * p}, v{UF + 8 * ch + 2 * p + 1}")
    else:
        tok(0)
        tok(1)
        for k in range(8):
            unpack(XF + 2 * k, XF + 2 * k + 1, GX1 + k)
        a(f"v_max_u32 v63, v{GX1 + 3}, v{GX1 + 7}")
        a(f"v_cmp_eq_u32 s[16:17], -1, v63")
        for e in range(2, 8):
            tok(e)
        c = [CS1 + 4 * e + 2 for e in range(8)]
        a(f"v_min3_f32 v62, v{c[0]}, v{c[1]}, v{c[2]}\nv_min3_f32 v62, v62, v{c[3]}, v{c[4]}\nv_min3_f32 v62, v62, v{c[5]}, v{c[6]}\nv_min_f32 v62, v62, v{c[7]}")
        a(f"v_cmp_neq_f32 vcc, {f32(14.0)}, v62")
        for e in range(8):
            a(f"v_mul_f32 v{BE + e}, -v{CS1 + 4 * e}, v{AL + e}")
    a("s_or_b64 vcc, vcc, s[16:17]")
    a(f"s_cbranch_vccnz {stub}")
    a(f"{back}:")
    STUBS.extend([f"{stub}:", f"s_add_u32 s{sCNT}, s{sCNT}, 1", f"s_cmp_lt_u32 s{sCNT}, {RETRY}", f"s_cbranch_scc0 {back}"] + (xl + ["s_waitcnt vmcnt(0)"] if OPT["xe"] else []) + [f"s_branch {again}"])


def conv_xearly():
    if emode(4) == "C" and OPT["xe"]:
        a.wait_tag("pub")
        a(f"buffer_load_dwordx4 {vr(GX1, 4)}, v{cvX}, {srd(S_WS)}, s20 offen sc1")
        a(f"buffer_load_dwordx4 {vr(GX1 + 4, 4)}, v{cvX}, {srd(S_WS)}, s20 offen offset:64 sc1")


def conv_setup(layer):
    a(f"""s_mov_b32 s{sCA}, {f32(1.0 / 448)}
s_mov_b32 s{sCB}, {f32(1e-5)}
s_lshl_b32 s{sT0}, s{sWAVE}, 10
v_add_u32 v{cvU}, s{sT0}, v{vL16}
s_lshr_b32 s{sT0}, s{sWAVE}, 1
s_and_b32 s{sT1}, s{sWAVE}, 1
v_and_b32 v8, 15, v{vLANE}
v_lshrrev_b32 v9, 4, v{vLANE}
v_not_b32 v10, v8
v_and_b32 v10, 3, v10""")
    for s in range(4):
        a(f"s_cmp_lg_u32 s{sT0}, 0")
        a(f"s_cselect_b32 s{sT2}, {KSLOT[1][s]}, {KSLOT[0][s]}")
        a(f"s_mul_i32 s{sT2}, s{sT2}, {KST}")
        if s == 0:
            a(f"v_mov_b32 v11, s{sT2}")
        else:
            a(f"v_mov_b32 v12, s{sT2}\nv_cmp_eq_u32 vcc, {s}, v10\nv_cndmask_b32 v11, v11, v12, vcc")
    a(f"""v_add_u32 v10, v10, v8
v_lshlrev_b32 v12, 3, v9
v_sub_u32 v12, v12, v10
v_lshl_add_u32 v11, v12, 1, v11
""")
    a(f"""s_lshl_b32 s{sT3}, s{sT1}, 8
s_sub_u32 s{sT2}, {2 * 2031 - 64 * 59}, s{sT3}
v_add_u32 v{cvA}, s{sT2}, v11
s_mul_i32 s{sT2}, s{sT0}, {UST}
s_sub_u32 s{sT2}, s{sT2}, s{sT3}
s_add_u32 s{sT2}, s{sT2}, {UB + UPAD - 2 * 112}
v_lshlrev_b32 v12, 5, v8
v_lshl_add_u32 v13, v9, 4, v12
v_add_u32 v{cvB}, s{sT2}, v13
s_lshl_b32 s{sT2}, s{sWAVE}, 11
v_lshl_add_u32 v13, v9, 3, v12
v_add_u32 v{cvZ}, s{sT2}, v13
s_xor_b32 s{sT2}, s{sWAVE}, 1
s_lshl_b32 s{sT2}, s{sT2}, 12
v_add_u32 v{cvXW}, s{sT2}, v{vL16}
s_lshl_b32 s{sT2}, s{sWAVE}, 12
v_add_u32 v{cvXR}, s{sT2}, v{vL16}
v_and_b32 v10, 1, v9
v_lshlrev_b32 v10, 3, v10
v_lshrrev_b32 v11, 1, v8
v_add_u32 v10, v10, v11
v_mul_u32_u24 v10, {BS}, v10
v_and_b32 v11, 1, v8
v_lshl_add_u32 v10, v11, 5, v10
v_lshrrev_b32 v11, 1, v9
v_lshl_add_u32 v{cvO}, v11, 4, v10
s_mul_i32 s{sT1}, s{sT1}, {32 * BS}
s_lshl_b32 s{sT2}, s{sPAIR}, 1
s_add_u32 s{sT0}, s{sT0}, s{sT2}
s_lshl_b32 s{sT0}, s{sT0}, 6
s_add_u32 s{sT0}, s{sT0}, s{sT1}
s_add_u32 s13, s{sT0}, {X1 if layer == 0 else X3}
s_add_u32 s21, s13, {16 * BS}""" if OPT["cv"] else f"""v_add_u32 v{cvA}, {2 * 2031 - 64 * 63}, v11
s_mul_i32 s{sT2}, s{sT0}, {UST}
s_lshl_b32 s{sT3}, s{sT1}, 9
s_add_u32 s{sT2}, s{sT2}, s{sT3}
s_add_u32 s{sT2}, s{sT2}, {UB + UPAD - 2 * 496}
v_lshlrev_b32 v12, 5, v8
v_lshl_add_u32 v13, v9, 4, v12
v_add_u32 v{cvB}, s{sT2}, v13
s_lshl_b32 s{sT2}, s{sT0}, 12
s_add_u32 s{sT2}, s{sT2}, s{sT3}
v_lshl_add_u32 v13, v9, 3, v12
v_add_u32 v{cvZ}, s{sT2}, v13
v_and_b32 v10, 1, v9
v_lshlrev_b32 v10, 4, v10
v_lshrrev_b32 v11, 1, v8
v_add_u32 v10, v10, v11
v_mul_u32_u24 v10, {BS}, v10
v_and_b32 v11, 1, v8
v_lshl_add_u32 v10, v11, 5, v10
v_lshrrev_b32 v11, 1, v9
v_lshl_add_u32 v{cvO}, v11, 4, v10
s_mul_i32 s{sT1}, s{sT1}, {8 * BS}
s_lshl_b32 s{sT2}, s{sPAIR}, 1
s_add_u32 s{sT0}, s{sT0}, s{sT2}
s_lshl_b32 s{sT0}, s{sT0}, 6
s_add_u32 s{sT0}, s{sT0}, s{sT1}
s_add_u32 s13, s{sT0}, {X1 if layer == 0 else X3}
s_add_u32 s21, s13, {32 * BS}""")
    a(f"""s_lshl_b32 s16, s{sWAVE}, 10
s_add_u32 s16, s16, {ST0 if layer == 0 else ST1}
s_add_u32 s17, s16, 4096
s_add_u32 s18, s16, 8192
s_add_u32 s19, s16, 12288
s_mul_i32 s20, s{sWAVE}, {16 * BS}
s_lshl_b32 s{sT2}, s{sPAIR}, 7
s_add_u32 s20, s20, s{sT2}
s_add_u32 s20, s20, {X0 if layer == 0 else X2}
v_lshrrev_b32 v10, 2, v{vLANE}
v_mul_u32_u24 v10, {BS}, v10
v_and_b32 v11, 3, v{vLANE}
v_lshl_add_u32 v{cvX}, v11, 4, v10""")
    if layer == 1 and emode(4) == "C":
        for e in range(8):
            a(f"s_add_u32 s{22 + e}, s16, {4096 * e}")


cXF, cUF, cAL, cBE, cUP = 0, 16, 32, 40, 48


def conv_pro(layer):
    XF, UF, AL, BE, UP = cXF, cUF, cAL, cBE, cUP
    if layer == 1 and emode(4) == "C":
        conv_counted()
    else:
        conv_stats()
    conv_norm(layer == 1 and emode(4) == "C" and OPT["cpipe"])


def conv_stats():
    XF, UF, AL, BE, UP = cXF, cUF, cAL, cBE, cUP
    for p in range(4):
        S = CS + 4 * p
        a(f"v_pk_mul_f32 {vr(S, 2)}, {vr(S, 2)}, {sp(sCA)} op_sel_hi:[1,0]")
    for p in range(4):
        S = CS + 4 * p
        a(f"v_pk_fma_f32 {vr(BE + 2 * p, 2)}, {vr(S, 2)}, {vr(S, 2)}, {sp(sCB)} op_sel_hi:[1,1,0] neg_lo:[1,0,0] neg_hi:[1,0,0]")
    for p in range(4):
        Q = CS + 4 * p + 2
        a(f"v_pk_fma_f32 {vr(Q, 2)}, {vr(Q, 2)}, {sp(sCA)}, {vr(BE + 2 * p, 2)} op_sel_hi:[1,0,1]")
    for p in range(4):
        Q = CS + 4 * p + 2
        a(f"v_max_f32 v{Q}, s{sCB}, v{Q}\nv_max_f32 v{Q + 1}, s{sCB}, v{Q + 1}")
    if OPT["mr"]:
        for p in range(4):
            S = CS + 4 * p
            a(f"v_cvt_pk_bf16_f32 v{S + 1}, v{S}, v{S + 1}")
        for p in range(4):
            S = CS + 4 * p
            unpack(S, S + 1, S + 1)
    for p in range(4):
        Q = CS + 4 * p + 2
        a(f"v_rsq_f32 v{AL + 2 * p}, v{Q}\nv_rsq_f32 v{AL + 2 * p + 1}, v{Q + 1}")
    for k in range(8):
        unpack(XF + 2 * k, XF + 2 * k + 1, GX + k)
    for p in range(4):
        S = CS + 4 * p
        a(f"v_pk_mul_f32 {vr(BE + 2 * p, 2)}, {vr(S, 2)}, {vr(AL + 2 * p, 2)} neg_lo:[1,0] neg_hi:[1,0]")


def conv_norm(done=False):
    XF, UF, AL, BE, UP = cXF, cUF, cAL, cBE, cUP
    for c in range(2):
        for p in range(0 if done else 4):
            a(f"v_pk_fma_f32 {vr(UF + 8 * c + 2 * p, 2)}, {vr(XF + 8 * c + 2 * p, 2)}, {vr(AL + 2 * p, 2)}, {vr(BE + 2 * p, 2)}")
        for p in range(0 if done else 4):
            a(f"v_cvt_pk_bf16_f32 v{UP + 4 * c + p}, v{UF + 8 * c + 2 * p}, v{UF + 8 * c + 2 * p + 1}")
        a(f"ds_write_b128 v{cvU}, {vr(UP + 4 * c, 4)} offset:{UB + c * UST + UPAD}")
    if OPT["cv"]:
        for i in a.capture(conv_z, 88):
            if i.kind != "dsw":
                a.put([i])


def conv_z(ZP=cXF):
    XF, UF = cXF, cUF
    for c in range(2):
        for p in range(4):
            a(f"v_pk_fma_f32 {vr(UF + 8 * c + 2 * p, 2)}, {vr(UF + 8 * c + 2 * p, 2)}, {sp((sD0, sD1)[c])}, {vr(XF + 8 * c + 2 * p, 2)} op_sel_hi:[1,0,1]")
        for p in range(4):
            a(f"v_cvt_pk_bf16_f32 v{ZP + 4 * c + p}, v{UF + 8 * c + 2 * p}, v{UF + 8 * c + 2 * p + 1}")
        a(f"ds_write_b128 v{cvU}, {vr(ZP + 4 * c, 4)} offset:{ZB + c * 4096}")


def conv_main(layer, bg=(), bg_start=0, bg_every=64):
    return (conv_main_r if OPT["cv"] else conv_main_t)(layer, bg, bg_start, bg_every)


def conv_main_r(layer, bg, bg_start, bg_every):
    ACC, BF, AR = 0, 32, 64
    NA = 6
    EX2 = ZB
    seq = [(r, q) for r in range(4) for q in range(7, -1, -1)]
    e = 1 + 4 * layer

    def rdA(i):
        r, q = seq[i]
        d = AR + 4 * (i % NA)
        off = 64 * (59 - (8 * q + r))
        return [Ins(f"ds_read_b64 {vr(d, 2)}, v{cvA} offset:{off}"), Ins(f"ds_read_b64 {vr(d + 2, 2)}, v{cvA} offset:{off + 8}")]

    def rdB(r, p):
        return [Ins(f"ds_read_b128 {vr(BF + 4 * p, 4)}, v{cvB} offset:{512 * p + 64 * (3 - r)}")]

    a.put(rdA(0)); a.put(rdB(0, 0)); a.put(rdA(1)); a.put(rdB(0, 1)); a.put(rdA(2)); a.put(rdB(0, 2)); a.put(rdA(3))
    a.put(rdB(0, 3)); a.put(rdA(4))
    for p in range(4, 8):
        a.put(rdB(0, p))
    ZR, ZF, RR = 88, 64, 32
    side = [[i] for i in a.capture(conv_z, 88) if i.kind == "dsw"]
    if hinted(e):
        side += [[i] for i in a.capture(hint_prep, e + 10, sPAIR, cvH)]
    late = [[Ins("s_barrier")]] + [[Ins(f"ds_read_b64 {vr(ZR + 2 * i, 2)}, v{cvZ} offset:{ZB + i * 512}")] for i in range(4)]
    late2 = [[Ins("s_barrier")]]
    a.begin()
    started = set()
    for i, (r, q) in enumerate(seq):
        if hinted(e) and OPT["h_cv"] < 0 and i == 32 + OPT["h_cv"]:
            hint_put(cvH)
        ps = list(range(8 - q))
        for p in ps:
            b = q + p
            c = vr(ACC + 4 * b, 4) if b in started else "0"
            started.add(b)
            a(f"v_mfma_f32_16x16x32_bf16 {vr(ACC + 4 * b, 4)}, {vr(AR + 4 * (i % NA), 4)}, {vr(BF + 4 * p, 4)}, {c}")
            if p == 0 and i + NA - 1 < len(seq):
                a.put(rdA(i + NA - 1))
            elif 1 <= q <= 4 and p >= 1:
                for lst, r0 in ((side, 0), (late, 2), (late2, 3)):
                    if lst and r >= r0:
                        a.put(lst.pop(0))
                        break
            if q == 0 and r < 3:
                a.put(rdB(r + 1, p))
    assert not side and not late and not late2
    m, rest = merge(a.end(), list(bg), bg_start, bg_every)
    a.put(m)
    stamp(f"conv{layer} loop", 111)
    if hinted(e) and OPT["h_cv"] == 0:
        hint_put(cvH)
    for k in range(8):
        unpack(ZF + 2 * k, ZF + 2 * k + 1, ZR + k)
    l1, l2 = label("cx"), label("cy")
    a(f"s_bitcmp1_b32 s{sWAVE}, 0")
    a(f"s_cbranch_scc1 {l1}")
    for h in range(2):
        for i in range(4):
            a(f"ds_write_b128 v{cvXW}, {vr(ACC + 16 * (1 - h) + 4 * i, 4)} offset:{EX2 + i * 1024}")
            for k in range(2):
                a(f"v_pk_add_f32 {vr(ZF + 4 * i + 2 * k, 2)}, {vr(ZF + 4 * i + 2 * k, 2)}, {vr(ACC + 16 * h + 4 * i + 2 * k, 2)}")
        if h == 0:
            a(f"s_branch {l2}")
            a(f"{l1}:")
    a(f"{l2}:")
    if (armed(1) if layer else (sentinel(1) and not OPT["x1s"])):
        poll_take(cvP)
    a.barrier()
    if hinted(e) and OPT["h_cv"] == 1:
        hint_put(cvH)
    for i in range(4):
        a(f"ds_read_b128 {vr(RR + 4 * i, 4)}, v{cvXR} offset:{EX2 + i * 1024}")
    PK = 56
    for i in range(4):
        for k in range(2):
            a(f"v_pk_add_f32 {vr(ZF + 4 * i + 2 * k, 2)}, {vr(ZF + 4 * i + 2 * k, 2)}, {vr(RR + 4 * i + 2 * k, 2)}")
        for k in range(2):
            a(f"v_cvt_pk_bf16_f32 v{PK + 2 * i + k}, v{ZF + 4 * i + 2 * k}, v{ZF + 4 * i + 2 * k + 1}")
        if i & 1:
            b = PK + 2 * (i - 1)
            a(f"v_permlane16_swap_b32 v{b}, v{b + 2}")
            a(f"v_permlane16_swap_b32 v{b + 1}, v{b + 3}")
            a(f"buffer_store_dwordx4 {vr(b, 4)}, v{cvO}, {srd(S_WS)}, s{21 if i == 3 else 13} offen sc1", tag="pub")
    if hinted(e) and OPT["h_cv"] == 2:
        hint_put(cvH)
    if not flagged(e):
        a.barrier()
    else:
        flag_put(1 + 4 * layer, sPAIR, 40, "pub")
    return rest


def conv_main_t(layer, bg, bg_start, bg_every):
    ACC, BF, AR = 84, 32, 64
    NA = 5
    QORD = (7, 5, 6, 3, 4, 2, 1, 0)
    seq = [(r, q) for r in range(8) for q in QORD]
    e = 1 + 4 * layer

    def rdA(i):
        r, q = seq[i]
        d = AR + 4 * (i % NA)
        off = 64 * (63 - (8 * q + r))
        return [Ins(f"ds_read_b64 {vr(d, 2)}, v{cvA} offset:{off}"), Ins(f"ds_read_b64 {vr(d + 2, 2)}, v{cvA} offset:{off + 8}")]

    def rdB(r, p):
        return [Ins(f"ds_read_b128 {vr(BF + 4 * (p + 1), 4)}, v{cvB} offset:{512 * (p + 1) + 64 * (7 - r)}")]

    a.put(rdA(0)); a.put(rdB(0, -1)); a.put(rdA(1)); a.put(rdB(0, 1)); a.put(rdA(2)); a.put(rdB(0, 0)); a.put(rdA(3))
    for p in (3, 2, 4, 5, 6):
        a.put(rdB(0, p))
    ZR, ZF = 16, 0
    side = [[i] for i in a.capture(conv_z)]
    if hinted(e):
        side += [[i] for i in a.capture(hint_prep, e + 10, sPAIR, cvH)]
    late = [[Ins("s_barrier")]] + [[Ins(f"ds_read_b64 {vr(ZR + 2 * i, 2)}, v{cvZ} offset:{ZB + i * 1024}")] for i in range(4)]
    late2 = [[i] for k in range(8) for i in a.capture(unpack, ZF + 2 * k, ZF + 2 * k + 1, ZR + k)]
    a.begin()
    started = set()
    n = 0
    for i, (r, q) in enumerate(seq):
        if hinted(e) and OPT["h_cv"] < 0 and i == 64 + OPT["h_cv"]:
            hint_put(cvH)
        first = True
        for t in range(q // 2, 4):
            p = 2 * t - q
            c = vr(ACC + 4 * t, 4) if t in started else "0"
            started.add(t)
            a(f"v_mfma_f32_16x16x32_bf16 {vr(ACC + 4 * t, 4)}, {vr(AR + 4 * (i % NA), 4)}, {vr(BF + 4 * (p + 1), 4)}, {c}")
            n += 1
            if first and i + 4 < len(seq):
                a.put(rdA(i + 4))
            elif q >= 2:
                for lst, r0 in ((side, 0), (late, 4), (late2, 5)):
                    if lst and r >= r0:
                        a.put(lst.pop(0))
                        if lst is side and lst:
                            a.put(lst.pop(0))
                        break
            first = False
            if q <= 1 and r < 7:
                a.put(rdB(r + 1, p))
    assert not side and not late and not late2
    m, rest = merge(a.end(), list(bg), bg_start, bg_every)
    a.put(m)
    stamp(f"conv{layer} loop", 111)
    if (armed(1) if layer else (sentinel(1) and not OPT["x1s"])):
        poll_take(cvP)
    if hinted(e) and OPT["h_cv"] == 0:
        hint_put(cvH)
    PK = 24
    for i in range(4):
        for k in range(2):
            a(f"v_pk_add_f32 {vr(ZF + 4 * i + 2 * k, 2)}, {vr(ZF + 4 * i + 2 * k, 2)}, {vr(ACC + 4 * i + 2 * k, 2)}")
        for k in range(2):
            a(f"v_cvt_pk_bf16_f32 v{PK + 2 * i + k}, v{ZF + 4 * i + 2 * k}, v{ZF + 4 * i + 2 * k + 1}")
        if i & 1:
            b = PK + 2 * (i - 1)
            a(f"v_permlane16_swap_b32 v{b}, v{b + 2}")
            a(f"v_permlane16_swap_b32 v{b + 1}, v{b + 3}")
            a(f"buffer_store_dwordx4 {vr(b, 4)}, v{cvO}, {srd(S_WS)}, s{21 if i == 3 else 13} offen sc1", tag="pub")
    if hinted(e) and OPT["h_cv"] > 0:
        hint_put(cvH)
    if not flagged(e):
        a.barrier()
    else:
        flag_put(1 + 4 * layer, sPAIR, 40, "pub")
    return rest


def reduce32(V, n, W):
    for i in range(n):
        a(f"v_permlane16_swap_b32 v{V[i]}, v{V[n + i]}")
    for i in range(n):
        a(f"v_add_f32 v{V[i]}, v{V[i]}, v{V[n + i]}")
    h = n // 2
    for i in range(h):
        a(f"v_add_f32_dpp v{W[i]}, v{V[i]}, v{V[i]} row_ror:8 row_mask:0xf bank_mask:0x3")
    for i in range(h):
        a(f"v_add_f32_dpp v{W[i]}, v{V[i + h]}, v{V[i + h]} row_ror:8 row_mask:0xf bank_mask:0xc")
    g = h // 2
    for i in range(g):
        a(f"v_add_f32_dpp v{V[i]}, v{W[i]}, v{W[i]} row_half_mirror row_mask:0xf bank_mask:0x5")
    for i in range(g):
        a(f"v_add_f32_dpp v{V[i]}, v{W[i + g]}, v{W[i + g]} row_half_mirror row_mask:0xf bank_mask:0xa")
    for m in ("[1,0,3,2]", "[2,3,0,1]"):
        for i in range(g):
            a(f"v_add_f32_dpp v{V[i]}, v{V[i]}, v{V[i]} quad_perm:{m} row_mask:0xf bank_mask:0xf")
    return V[:g]


def maxchain(t, regs):
    regs = list(regs)
    if OPT["chk"] == 1:
        regs = regs[3::4]
    if len(regs) == 2:
        return [f"v_max_u32 v{t}, v{regs[0]}, v{regs[1]}"]
    out = [f"v_max3_u32 v{t}, v{regs[0]}, v{regs[1]}, v{regs[2]}"]
    regs = regs[3:]
    while len(regs) >= 2:
        out.append(f"v_max3_u32 v{t}, v{t}, v{regs[0]}, v{regs[1]}")
        regs = regs[2:]
    if regs:
        out.append(f"v_max_u32 v{t}, v{t}, v{regs[0]}")
    return out


RETRY = 0x10000


def ln(layer, wide):
    X = X1 if layer == 0 else X3
    H = H1 if layer == 0 else H3
    nf = 7 if wide else 4
    sI = sLN0 if wide else sLN
    RAW, XF, S, Q, W = 0, 28, 84, 92, 100
    vO, vPW, vPR, vAW, vAR, r, hr = 109, 110, 111, 112, 117, 114, 104
    vX, vS = 64, 68
    a(f"""s_mul_i32 s{sT0}, s{sWAVE}, 56
v_min_u32 v{r + 2}, 55, v{vLANE}""")
    a(f"v_add_u32 v{r + 2}, s{sT0}, v{r + 2}")
    a(f"v_and_b32 v118, {OPT['samp'] - 1}, v{vLANE}\nv_mul_u32_u24 v118, {56 // OPT['samp']}, v118\nv_add_u32 v118, s{sT0}, v118")
    ein, eout = 1 + 4 * layer, 2 + 4 * layer
    if OPT["lnd"] and emode(ein) == "D":
        a.wait_tag("pub")
    if wide:
        a(f"""s_mul_i32 s16, s{sI}, {BS}
s_lshl_b32 s{sT2}, s{sI}, 12""")
    else:
        a(f"""s_lshr_b32 s16, s{sI}, 1
s_mul_i32 s16, s16, {BS}
s_and_b32 s{sT0}, s{sI}, 1
s_lshl_b32 s{sT0}, s{sT0}, 5
s_add_u32 s16, s16, s{sT0}
s_lshl_b32 s{sT2}, s{sI}, 11""")
    a(f"""s_mul_i32 s{sT0}, s{sWAVE}, 7168
s_add_u32 s16, s16, s{sT0}
s_add_u32 s16, s16, {X}
s_add_u32 s17, s16, 4096
s_add_u32 s{sT2}, s{sT2}, {H}
s_mul_i32 s30, s{sWAVE}, 7""")
    if wide:
        for i in range(nf):
            a(f"""s_add_u32 s{sT0}, s30, {i}
s_lshr_b32 s{sT1}, s{sT0}, 2
s_lshl_b32 s{sT1}, s{sT1}, 18
s_add_u32 s{23 + i}, s{sT1}, s{sT2}
s_and_b32 s{sT1}, s{sT0}, 2
s_lshl_b32 s{sT1}, s{sT1}, 9
s_add_u32 s{23 + i}, s{23 + i}, s{sT1}
s_and_b32 s{sT1}, s{sT0}, 1
s_lshl_b32 s{sT1}, s{sT1}, 8
s_add_u32 s{23 + i}, s{23 + i}, s{sT1}""")
        a(f"""v_lshrrev_b32 v1, 2, v{vLANE}
v_lshlrev_b32 v{vO}, 4, v1
v_and_b32 v2, 1, v{vLANE}
v_lshl_add_u32 v{vO}, v2, 9, v{vO}
v_bfe_u32 v2, v{vLANE}, 1, 1
v_lshl_add_u32 v{vO}, v2, 11, v{vO}
v_and_b32 v1, 7, v1
v_and_b32 v2, 3, v{vLANE}
v_lshl_add_u32 v1, v2, 3, v1""")
    else:
        a(f"""v_lshrrev_b32 v1, 1, v{vLANE}
v_and_b32 v2, 1, v{vLANE}
v_lshlrev_b32 v{vX}, 6, v1
v_lshl_add_u32 v{vX}, v2, 4, v{vX}
v_mov_b32 v3, {OOB}
v_cmp_gt_u32 vcc, 32, v{vLANE}
v_cndmask_b32 v{vX + 1}, v3, v{vX}, vcc
s_lshl_b32 s30, s30, 4
s_mov_b32 s23, s{sT2}""")
        for i in range(nf):
            a(f"""v_add_u32 v4, s30, v1
v_lshrrev_b32 v5, 6, v4
v_lshlrev_b32 v5, 18, v5
v_bfe_u32 v6, v4, 5, 1
v_lshl_add_u32 v5, v6, 10, v5
v_and_b32 v6, 31, v4
v_lshl_add_u32 v5, v6, 4, v5
v_lshl_add_u32 v{vS + i}, v2, 9, v5""")
            if i < 3:
                a("s_add_u32 s30, s30, 32")
        a(f"""v_cndmask_b32 v{vS + 3}, v3, v{vS + 3}, vcc
v_bfe_u32 v1, v{vLANE}, 2, 3
v_lshl_add_u32 v1, v2, 3, v1""")
    a(f"""v_lshrrev_b32 v3, 5, v{vLANE}
v_lshl_add_u32 v1, v3, 5, v1
s_lshl_b32 s{sT1}, s{sWAVE}, 8
s_add_u32 s{sT1}, s{sT1}, {LNP}
v_lshl_add_u32 v{vPW}, v1, 2, s{sT1}
v_and_b32 v1, 31, v{vLANE}
v_lshlrev_b32 v{vPR}, 2, v1
v_add_u32 v{vPR}, {LNP}, v{vPR}
s_add_u32 s{sT1}, s{sT1}, 1024
v_lshl_add_u32 v{vAW}, v{vLANE}, 2, s{sT1}
v_lshl_add_u32 v{vAR}, v2, 5, s{sT1}
s_mov_b32 s18, 0
s_mov_b32 s19, -1""")
    prod = f"s_lshl_b32 s{sT0}, s{sI}, 6"
    if hinted(eout):
        hint_prep(eout + 10, prod, hr)
    arm = layer == 0 and sentinel(2)
    if arm:
        a(f"v_min_u32 v102, 27, v{vLANE}")
        poll_issue(18, 100)
    own = layer == 0 and sentinel(1) and OPT["x1s"]
    if own:
        poll_issue(0, 98, r + 2)
    wait_edge(ein, r, r + 2, 118)
    if arm:
        poll_take(100)
    if own:
        poll_take(98, r + 2)
    stamp(f"ln{layer} go")

    def loads():
        if not wide:
            return [f"buffer_load_dwordx4 {vr(RAW + 4 * i, 4)}, v{vX + (i == 3)}, {srd(S_WS)}, s{16 + i // 2} offen offset:{2048 * (i % 2)} sc1" for i in range(nf)]
        return [f"buffer_load_dwordx4 {vr(RAW + 4 * i, 4)}, v{vL16}, {srd(S_WS)}, s{16 + i // 4} offen offset:{1024 * (i % 4)} sc1" for i in range(nf)]
    again, back, stub = label("lna"), label("lnb"), label("lns")
    if sentinel(ein):
        a(f"s_mov_b32 s{sCNT}, 0")
        a(f"{again}:")
    for l in loads():
        a(l)
    if hinted(eout) and OPT["h_ln"] == 0:
        a.wait_vm0()
        hint_put(hr)
    if OPT["stamps"] == 1:
        a.wait_vm0()
    count_out(113)
    stamp(f"ln{layer} data", 113)
    for i in range(nf):
        for k in range(4):
            unpack(XF + 8 * i + 2 * k, XF + 8 * i + 2 * k + 1, RAW + 4 * i + k)
        for k in range(4):
            x = vr(XF + 8 * i + 2 * k, 2)
            if i == 0:
                a(f"v_pk_mul_f32 {vr(Q + 2 * k, 2)}, {x}, {x}")
            else:
                a(f"v_pk_fma_f32 {vr(Q + 2 * k, 2)}, {x}, {x}, {vr(Q + 2 * k, 2)}")
                a(f"v_pk_add_f32 {vr(S + 2 * k, 2)}, {vr(XF + 2 * k, 2) if i == 1 else vr(S + 2 * k, 2)}, {x}")
    if sentinel(ein):
        for l in maxchain(113, range(RAW, RAW + 4 * nf)) + ["v_cmp_eq_u32 vcc, -1, v113"]:
            a(l)
        STUBS.extend([f"{stub}:", f"s_add_u32 s{sCNT}, s{sCNT}, 1", f"s_cmp_lt_u32 s{sCNT}, {RETRY}", f"s_cbranch_scc1 {again}", f"s_branch {back}"])
    if hinted(eout) and OPT["h_ln"] == 1:
        hint_put(hr)
    for i in range(8):
        a(f"v_permlane32_swap_b32 v{S + i}, v{Q + i}")
        if i == 1 and sentinel(ein):
            a(f"s_cbranch_vccnz {stub}")
            a(f"{back}:")
    for i in range(0, 8, 2):
        a(f"v_pk_add_f32 {vr(S + i, 2)}, {vr(S + i, 2)}, {vr(Q + i, 2)}")
    for i in range(4):
        a(f"v_permlane16_swap_b32 v{S + i}, v{S + 4 + i}")
    for i in range(0, 4, 2):
        a(f"v_pk_add_f32 {vr(S + i, 2)}, {vr(S + i, 2)}, {vr(S + 4 + i, 2)}")
    for i in range(2):
        a(f"v_add_f32_dpp v{W + i}, v{S + i}, v{S + i} row_ror:8 row_mask:0xf bank_mask:0x3")
    for i in range(2):
        a(f"v_add_f32_dpp v{W + i}, v{S + 2 + i}, v{S + 2 + i} row_ror:8 row_mask:0xf bank_mask:0xc")
    a(f"v_add_f32_dpp v{S}, v{W}, v{W} row_shl:4 row_mask:0xf bank_mask:0x5")
    a(f"v_add_f32_dpp v{S}, v{W + 1}, v{W + 1} row_shr:4 row_mask:0xf bank_mask:0xa")
    if not wide:
        a(f"v_add_f32_dpp v{S}, v{S}, v{S} quad_perm:[2,3,0,1] row_mask:0xf bank_mask:0xf")
    a(f"ds_write_b32 v{vPW}, v{S}")
    a.barrier()
    if hinted(eout) and OPT["h_ln"] == 2:
        hint_put(hr)
    stamp(f"ln{layer} bar", 113)
    T = 0
    for w in range(4):
        a(f"ds_read2_b32 {vr(T + 2 * w, 2)}, v{vPR} offset0:{w * 64} offset1:{w * 64 + 32}")
    a(f"""v_pk_add_f32 {vr(T, 2)}, {vr(T, 2)}, {vr(T + 2, 2)}
v_pk_add_f32 {vr(T + 4, 2)}, {vr(T + 4, 2)}, {vr(T + 6, 2)}
v_pk_add_f32 {vr(T, 2)}, {vr(T, 2)}, {vr(T + 4, 2)}
v_mul_f32 v{T}, {f32(1 / 448)}, v{T}
v_mul_f32 v{T + 1}, {f32(1 / 448)}, v{T + 1}
v_fma_f32 v{T + 1}, -v{T}, v{T}, v{T + 1}
v_max_f32 v{T + 1}, 0, v{T + 1}
v_add_f32 v{T + 2}, {f32(1e-5)}, v{T + 1}
v_fmamk_f32 v{T + 2}, v{T + 2}, {f32(1e-5)}, v{T + 1}
v_rsq_f32 v{T + 2}, v{T + 2}
v_mul_f32 v{T + 3}, -v{T}, v{T + 2}
v_cndmask_b32 v{T + 2}, v{T + 2}, v{T + 3}, s[18:19]
ds_write_b32 v{vAW}, v{T + 2}""")
    AL, BE = S, Q
    done_hint = []
    a(f"""ds_read_b128 {vr(AL, 4)}, v{vAR}
ds_read_b128 {vr(BE, 4)}, v{vAR} offset:128
ds_read_b128 {vr(AL + 4, 4)}, v{vAR} offset:16
ds_read_b128 {vr(BE + 4, 4)}, v{vAR} offset:144""")
    for i in range(nf):
        for k in range(4):
            x = vr(XF + 8 * i + 2 * k, 2)
            a(f"v_pk_fma_f32 {x}, {x}, {vr(AL + 2 * k, 2)}, {vr(BE + 2 * k, 2)}")
        for k in range(4):
            a(f"v_cvt_pk_bf16_f32 v{RAW + 4 * i + k}, v{XF + 8 * i + 2 * k}, v{XF + 8 * i + 2 * k + 1}")
        a(f"buffer_store_dwordx4 {vr(RAW + 4 * i, 4)}, v{vO if wide else vS + i}, {srd(S_WS)}, s{23 + i if wide else 23} offen sc1", tag="pub")
        if hinted(eout) and OPT["h_ln"] - 3 == min(i, 6) * (4 if nf == 7 else 4) // (nf + 1):
            if not done_hint:
                hint_put(hr)
                done_hint.append(1)
    stamp(f"ln{layer} st", 113)
    if flagged(eout):
        flag_put(eout, prod, 100, "pub")


def gemm_addr():
    a(f"""s_and_b32 s{sT0}, s{sWAVE}, 1
s_lshl_b32 s{sT0}, s{sT0}, 10
v_add_u32 v{vA0}, s{sT0}, v{vL16}
v_xor_b32 v{vA1}, 0x400, v{vA0}""")


vCHK = 121


def gemm_loop(nks, ring, nring, wreg, swap, sent, lds_from=99, at=None, bg=()):
    WF = 104
    nfr = 2 * nks

    def load(f):
        ks, db = f // 2, f % 2
        g = []
        if db == 0 and ks and ks % 2 == 0:
            g.append(Ins("s_add_u32 s13, s13, 4096"))
            if ks % 4 == 0:
                g += [Ins("s_cmp_eq_u32 s13, s28"), Ins("s_cmov_b32 s13, s27")]
        d = ring + 4 * (f % nring)
        g.append(Ins(f"buffer_load_dwordx4 {vr(d, 4)}, v{(vA0, vA1)[db]}, {srd(S_WS)}, s13 offen offset:{(ks % 2) * 2048} sc1"))
        return g

    def wread(ks):
        g = []
        slot = ks - lds_from
        for nb in range(2):
            for j in range(2):
                d = WF + 8 * (ks % 2) + 4 * nb + 2 * j
                g.append(Ins(f"ds_read_b64_tr_b16 {vr(d, 2)}, v{(vT2a, vT2b)[nb]} offset:{slot * 2048 + j * 1024}", res_r=[f"slot{slot}"]))
        return g

    def check(ks, upto):
        regs = [ring + 4 * ((2 * ks + db) % nring) + k for db in range(2) for k in range(4)]
        chk = maxchain(vCHK, regs) + [f"v_cmp_eq_u32 vcc, -1, v{vCHK}"]
        back, stub = label("gb"), label("gs")
        rl, cnt = [], 0
        for f in range(2 * ks, max(2 * ks + 2, min(upto, 2 * ks + 2 * OPT["rl"]))):
            k2, db = f // 2, f % 2
            if db == 0:
                rl += [f"s_add_u32 s3, s22, {k2 * 2048}", "s_cmp_ge_u32 s3, s28", f"s_cselect_b32 s18, {nks * 2048}, 0", "s_sub_u32 s3, s3, s18"]
            rl.append(f"buffer_load_dwordx4 {vr(ring + 4 * (f % nring), 4)}, v{(vA0, vA1)[db]}, {srd(S_WS)}, s3 offen sc1")
        STUBS.extend([f"{stub}:"] + rl + ["s_waitcnt vmcnt(0)"] + chk + [f"s_add_u32 s{sCNT}, s{sCNT}, 1", f"s_cbranch_vccz {back}",
                                                     f"s_cmp_lt_u32 s{sCNT}, {RETRY}", f"s_cbranch_scc1 {stub}", f"s_branch {back}"])
        return [Ins(x) for x in chk], [Ins(f"s_cbranch_vccnz {stub}"), Ins(f"{back}:")]

    if sent:
        a(f"s_mov_b32 s{sCNT}, 0")
    nxt = min(OPT["fill0"], nring)
    for f in range(nxt):
        a.put(load(f))
    if sent:
        c, b = check(0, nxt)
        a.put(c); a.put(b)
    extra = []
    bg = list(bg)
    for ks in range(nks):
        if at and ks in at:
            extra += a.capture(at[ks])
        pend = wread(ks + 1) if lds_from <= ks + 1 < nks else []
        c, b = check(ks + 1, min(nfr, nxt + 2, nring + 2 * ks + 2)) if (sent and ks + 1 < nks) else ([], [])
        order = [(0, 0), (0, 1), (1, 0), (1, 1)]
        if ks == nks - 1 and OPT["tailord"]:
            order = [(0, 1), (1, 0), (1, 1), (0, 0)]
        if True:
            for nb, db in order:
                acc = vr(16 * (2 * nb + db), 16)
                cc = acc if (ks or (nb | db) == 0) else "0"
                w = wreg(ks, nb) if ks < lds_from else vr(WF + 8 * (ks % 2) + 4 * nb, 4)
                x = vr(ring + 4 * ((2 * ks + db) % nring), 4)
                if OPT["fake16"] and 0 < ks < nks - 1:
                    b0 = 16 * (2 * nb + db) + 8 * (ks & 1)
                    for t in range(2):
                        a(f"v_mfma_f32_16x16x32_bf16 {vr(b0 + 4 * t, 4)}, {x if swap ^ t else w}, {w if swap ^ t else x}, {vr(b0 + 4 * t, 4)}")
                else:
                    a(f"v_mfma_f32_32x32x16_bf16 {acc}, {x if swap else w}, {w if swap else x}, {cc}")
                if pend:
                    a.put([pend.pop(0)])
                free = nring + 2 * ks + (db + 1 if nb == 1 else 0)
                if nxt < min(nfr, free) and (nb == 1 or db == 1):
                    a.put(load(nxt))
                    nxt += 1
                if bg and nb == 0 and ks >= OPT["bg0"]:
                    a.put(bg.pop(0))
                if extra and nb == 0:
                    k = 5
                    while k < len(extra) and ("exec" in extra[k - 1].defs and extra[k - 1].text != "s_mov_b64 exec, -1" or extra[k - 1].kind == "vstore"):
                        k += 1
                    a.put(extra[:k])
                    del extra[:k]
                if nb == 1 and db == 0:
                    a.put(c)
                if nb == 1 and db == 1:
                    a.put(b)
    a.put(extra)


def gemm_rot(nks, srot):
    a(f"s_mov_b32 s27, s13\ns_add_u32 s28, s13, {nks * 2048}\ns_lshl_b32 s{sT0}, s{srot}, 13\ns_add_u32 s13, s13, s{sT0}\ns_mov_b32 s22, s13")


def gemm_reduce_prep():
    slot = 6144 if OPT["bfr"] else 12288
    for rel in (1, 2, 3):
        a(f"s_xor_b32 s{23 + rel}, s{sWAVE}, {rel}\ns_mul_i32 s{23 + rel}, s{23 + rel}, {slot}")
    a(f"s_mul_i32 s23, s{sWAVE}, {slot}")


def gemm_reduce_addr():
    for rel in range(4):
        a(f"v_add_u32 v{64 + rel}, s{23 + rel}, v{vL16}")


def gemm_perm(P):
    if not OPT["bfr"]:
        return
    t, u = P + 8, P + 7
    a("s_mov_b32 s29, 0x3f80")
    a(f"""v_lshrrev_b32 v{u}, 5, v{vLANE}
v_and_b32 v{t}, 31, v{vLANE}
v_lshlrev_b32 v{u}, 2, v{u}
v_sub_u32 v{t}, v{t}, v{u}
v_and_b32 v{u}, 1, v{t}
v_lshlrev_b32 v{u}, 4, v{u}
v_lshlrev_b32 v{u}, v{u}, s29
v_ashrrev_i32 v{t}, 1, v{t}""")
    vals = (0, 1, 4, 5, 8, 9, 12, 13)
    pairs = ("s[16:17]", "s[30:31]", "s[50:51]")
    for d in range(10):
        if d < 8:
            a(f"v_cmp_eq_u32 {pairs[d % 3]}, {vals[d]}, v{t}")
        if d >= 2:
            a(f"v_cndmask_b32 v{P + d - 2}, 0, v{u}, {pairs[(d - 2) % 3]}")
    a(f"ds_write_b128 v{vL16}, {vr(P, 4)} offset:{PERM}")
    a(f"ds_write_b128 v{vL16}, {vr(P + 4, 4)} offset:{PERM + 1024}")


def gemm_perm_get(P):
    if OPT["bfr"]:
        a(f"ds_read_b128 {vr(P, 4)}, v{vL16} offset:{PERM}")
        a(f"ds_read_b128 {vr(P + 4, 4)}, v{vL16} offset:{PERM + 1024}")


def gemm_reduce_bf(P, pre, post, quarter):
    side = a.capture(pre) if pre else []
    a.put(side[:9])
    side = side[9:]
    T = [104, 108, 112, 116]
    n = 0
    for rel in (1, 2, 3):
        for j in range(2):
            t = T[n % 4]
            n += 1
            for k in range(4):
                r = 16 * rel + 8 * j + 2 * k
                a(f"v_cvt_pk_bf16_f32 v{t + k}, v{r}, v{r + 1}")
            a(f"ds_write_b128 v{64 + rel}, {vr(t, 4)} offset:{RB + (rel - 1) * 2048 + j * 1024}")
            a.put(side[:3])
            side = side[3:]
    a.put(side)
    a.barrier()
    for k in ((0, 2, 4, 1, 3, 5) if (quarter and OPT["spl"]) else range(6)):
        a(f"ds_read_b128 {vr(16 + 4 * k, 4)}, v64 offset:{RB + k * 1024}")
    if post:
        post()
    if quarter and OPT["spl"]:
        for k in (0, 2, 4):
            a(f"v_mfma_f32_32x32x16_bf16 v[0:15], {vr(P, 4)}, {vr(16 + 4 * k, 4)}, v[0:15]")
        ms = [[Ins(f"v_mfma_f32_32x32x16_bf16 v[48:63], {vr(P + 4, 4)}, {vr(16 + 4 * k, 4)}, {'v[48:63]' if k > 1 else 0}")] for k in (1, 3, 5)]
        a.put(ms[0])
        a.put(ms[1])
        m, rest = merge(a.capture(lambda: (quarter(0), quarter(1))), ms[2:], 10, 30)
        a.put(m)
        assert not rest
        for r in range(8, 16, 2):
            a(f"v_pk_add_f32 {vr(r, 2)}, {vr(r, 2)}, {vr(48 + r, 2)}")
        quarter(2)
        quarter(3)
        return
    for k in range(6):
        a(f"v_mfma_f32_32x32x16_bf16 v[0:15], {vr(P + 4 * (k % 2), 4)}, {vr(16 + 4 * k, 4)}, v[0:15]")
    if quarter:
        for q in range(4):
            quarter(q)


def gemm_reduce(pre=None, post=None, quarter=None, P=None):
    if OPT["bfr"]:
        return gemm_reduce_bf(P, pre, post, quarter)
    side = a.capture(pre) if pre else []
    wr = [[Ins(f"ds_write_b128 v{64 + rel}, {vr(16 * rel + 4 * q, 4)} offset:{RB + (rel - 1) * 4096 + q * 1024}")] for rel in (1, 2, 3) for q in range(4)]
    a.put(side[:9])
    put_all(wr[:3])
    m, rest = merge(side[9:], wr[3:], 0, 12)
    a.put(m)
    put_all(rest)
    a.barrier()
    for q in range(4):
        for k in range(3):
            a(f"ds_read_b128 {vr(16 + 16 * k + 4 * q, 4)}, v64 offset:{RB + k * 4096 + q * 1024}")
        if q == 1 and post:
            post()
    for q in range(4):
        for h in range(2):
            r = 4 * q + 2 * h
            a(f"v_pk_add_f32 {vr(16 + r, 2)}, {vr(16 + r, 2)}, {vr(32 + r, 2)}")
            a(f"v_pk_add_f32 {vr(r, 2)}, {vr(r, 2)}, {vr(48 + r, 2)}")
        for h in range(2):
            r = 4 * q + 2 * h
            a(f"v_pk_add_f32 {vr(r, 2)}, {vr(r, 2)}, {vr(16 + r, 2)}")
        if quarter:
            quarter(q)


def gemm1(layer, wide, pre=None, bg=(), part="all"):
    H = H1 if layer == 0 else H3
    G = G1 if layer == 0 else G3
    r = 32
    c0 = -2 * math.log2(math.e) * math.sqrt(2 / math.pi)
    ein, eout = 2 + 4 * layer, 3 + 4 * layer
    if part == "poll":
        assert emode(ein) == "S"
        for k in range(8):
            unpack(2 * k, 2 * k + 1, 20 + k)
        poll_issue(ein + 10, r, r + 3)
        return
    if part != "rest":
        gemm1_head(H, G, wide, r, c0)
    if part == "head":
        return
    gemm1_rest(layer, wide, pre, bg, part, r, c0, ein, eout)


def gemm1_head(H, G, wide, r, c0):
    gemm_addr()
    a(f"""s_lshr_b32 s{sT0}, s{sWAVE}, 1
s_lshl_b32 s{sT0}, s{sT0}, 6
s_lshl_b32 s{sT1}, s{sNT}, 7
s_add_u32 s{sT0}, s{sT0}, s{sT1}
v_lshrrev_b32 v16, 5, v{vLANE}
v_lshl_add_u32 v16, v16, 3, s{sT0}""")
    for q in range(4):
        a(f"global_load_dwordx2 {vr(20 + 2 * q, 2)}, v16, {sp(P_B1)} offset:{16 * q}")
    a(f"""s_lshl_b32 s{sT0}, s{sWAVE}, 5
v_and_b32 v{r + 2}, 31, v{vLANE}
v_add_u32 v{r + 2}, s{sT0}, v{r + 2}
v_and_b32 v{r + 3}, {31 & ~(32 // OPT['samp'] - 1)}, v{vLANE}
v_add_u32 v{r + 3}, s{sT0}, v{r + 3}
s_lshl_b32 s13, s{sDT1}, 7
s_add_u32 s13, s13, s{sT0}
s_lshl_b32 s13, s13, 11
s_add_u32 s13, s13, {H}""")
    if wide:
        a(f"v_lshrrev_b32 v{r + 2}, 1, v{r + 2}\nv_lshrrev_b32 v{r + 3}, 1, v{r + 3}")
    a(f"""s_mov_b32 s{sCA}, {f32(c0 * 0.044715)}
s_mul_i32 s21, s{sDT1}, 112
s_lshl_b32 s{sT0}, s{sNT}, 2
s_add_u32 s21, s21, s{sT0}
s_and_b32 s{sT0}, s{sWAVE}, 2
s_add_u32 s21, s21, s{sT0}
s_lshl_b32 s21, s21, 11
s_add_u32 s21, s21, {G}""")
    gemm_reduce_prep()
    gemm_rot(32, sROT1)


def gemm1_rest(layer, wide, pre, bg, part, r, c0, ein, eout):
    if pre:
        pre()
    if part != "rest":
        for k in range(8):
            unpack(2 * k, 2 * k + 1, 20 + k)
    if part == "rest":
        poll_take(r, r + 3)
    elif emode(ein) == "M":
        l1, l2 = label("m1"), label("m2")
        a(f"s_cmp_eq_u32 s{sRL0 if wide else sRL}, 0\ns_cbranch_scc1 {l1}")
        a.wait_tag("pub")
        a(f"s_branch {l2}")
        a(f"{l1}:")
        wait_edge(ein, r, r + 2, r + 3)
        a(f"{l2}:")
    else:
        wait_edge(ein, r, r + 2, r + 3)
    stamp(f"g1_{layer} go", 63)
    prod = f"s_mul_i32 s{sT0}, s{sDT1}, 28\ns_add_u32 s{sT0}, s{sT0}, s{sNT}\ns_lshl_b32 s{sT0}, s{sT0}, 6"
    early = hinted(eout) and OPT["h_g1"] < 0
    at = {30: gemm_reduce_addr, 28: lambda: gemm_perm_get(96)}
    if early:
        assert OPT["h_g1"] in (-1, -3, -4)
        at[32 + OPT["h_g1"]] = lambda: (hint_prep(eout + 10, prod, 104), hint_put(104))
    gemm_loop(32, 64, 14, lambda ks, nb: f"a[{(ks * 2 + nb) * 4}:{(ks * 2 + nb) * 4 + 3}]", False, sentinel(ein), at=at)
    count_out(120)
    stamp(f"g1_{layer} loop", 120)
    a.begin()
    late = hinted(eout) and not early

    def pre():
        a(f"v_mov_b32 v80, {f32(c0)}")
        if late:
            hint_prep(eout + 10, prod, 72)

    def gelu(q):
        if q % 2 == 0:
            return
        half = q // 2
        if late and OPT["h_g1"] == 1 and half == 0:
            hint_put(72)
        rs = range(8 * half, 8 * half + 8, 2)
        for r in rs:
            a(f"v_pk_mul_f32 {vr(16 + r, 2)}, {vr(r, 2)}, {vr(r, 2)}")
        for r in rs:
            a(f"v_pk_fma_f32 {vr(16 + r, 2)}, {vr(16 + r, 2)}, {sp(sCA)}, {vr(80, 2)} op_sel_hi:[1,0,0]")
        for r in rs:
            a(f"v_pk_mul_f32 {vr(16 + r, 2)}, {vr(16 + r, 2)}, {vr(r, 2)}")
        for r in rs:
            a(f"v_exp_f32 v{16 + r}, v{16 + r}\nv_exp_f32 v{17 + r}, v{17 + r}")
        for r in rs:
            a(f"v_pk_add_f32 {vr(16 + r, 2)}, {vr(16 + r, 2)}, 1.0 op_sel_hi:[1,0]")
        for r in rs:
            a(f"v_rcp_f32 v{16 + r}, v{16 + r}\nv_rcp_f32 v{17 + r}, v{17 + r}")
        for r in rs:
            a(f"v_pk_mul_f32 {vr(r, 2)}, {vr(r, 2)}, {vr(16 + r, 2)}")
        for r in rs:
            a(f"v_cvt_pk_bf16_f32 v{84 + r // 2}, v{r}, v{r + 1}")
        a(f"buffer_store_dwordx4 {vr(84 + 4 * half, 4)}, v{vA0}, {srd(S_WS)}, s21 offen offset:{2048 * half} sc1", tag="pub")
        if late and OPT["h_g1"] == 2 + half:
            hint_put(72)
    gemm_reduce(pre, (lambda: hint_put(72)) if (late and OPT["h_g1"] == 0) else None, gelu, 96)
    m, rest = merge(a.end(), list(bg), 0, OPT["ev_g1"])
    a.put(m)
    if not flagged(eout):
        a.barrier()
    else:
        flag_put(eout, prod, 40, "pub")
    for g in rest:
        a.put(g)


def gemm2(layer, bg=()):
    G = G1 if layer == 0 else G3
    gemm_addr()
    a(f"""s_lshr_b32 s{sT0}, s{sWAVE}, 1
s_lshl_b32 s{sT0}, s{sT0}, 5
s_lshl_b32 s{sT1}, s{sST}, 6
s_add_u32 s50, s{sT0}, s{sT1}
s_and_b32 s{sT1}, s{sWAVE}, 1
s_lshl_b32 s{sT1}, s{sT1}, 5
s_lshl_b32 s{sT2}, s{sDT2}, 6
s_add_u32 s51, s{sT1}, s{sT2}
s_lshr_b32 s{sT2}, s50, 5
s_mul_i32 s{sT2}, s{sT2}, {BS}
s_lshl_b32 s{sT1}, s51, 6
s_add_u32 s20, s{sT2}, s{sT1}
s_add_u32 s30, s20, {X1 if layer == 0 else X3}
v_and_b32 v16, 31, v{vLANE}
v_lshrrev_b32 v17, 5, v{vLANE}
s_lshl_b32 s{sT0}, s50, 1""")
    r = 42

    def residual_issue():
        if layer == 0:
            if OPT["res4"]:
                for k in range(2):
                    a(f"buffer_load_dwordx4 {vr(20 + 4 * k, 4)}, v18, {srd(S_WS)}, s30 offen offset:{32 * k} sc1")
            else:
                for q in range(4):
                    a(f"buffer_load_dwordx2 {vr(20 + 2 * q, 2)}, v18, {srd(S_WS)}, s30 offen offset:{16 * q} sc1")
        else:
            a(f"s_mov_b32 m0, s31")
            a(f"buffer_load_dwordx4 v{vL16}, {srd(S_WS)}, s30 offen sc1 lds", res_w=["x3"])
            a(f"buffer_load_dwordx4 v{vL16}, {srd(S_WS)}, s30 offen offset:1024 sc1 lds", res_w=["x3"])

    def residual_use():
        if layer == 0:
            if OPT["res4"]:
                for k in (20, 21, 24, 25):
                    a(f"v_permlane32_swap_b32 v{k}, v{k + 2}")
            for k in range(8):
                unpack(2 * k, 2 * k + 1, 20 + k)
            for k in range(8):
                unpack(40, 41, 28 + k)
                a(f"v_pk_add_f32 {vr(2 * k, 2)}, {vr(2 * k, 2)}, v[40:41]")
        else:
            for q in range(4):
                a(f"ds_read_b64_tr_b16 {vr(20 + 2 * q, 2)}, v31 offset:{512 * q}", res_r=["x3"])
            a("v_lshlrev_b32 v40, 16, v29")
            for k in range(8):
                unpack(2 * k, 2 * k + 1, 20 + k)
                a(f"v_pk_add_f32 {vr(2 * k, 2)}, {vr(2 * k, 2)}, v[40:41] op_sel_hi:[1,0]")

    if layer == 0:
        a(f"v_lshlrev_b32 v18, 6, v16\nv_lshl_add_u32 v18, v17, {4 if OPT['res4'] else 3}, v18\nv_lshl_add_u32 v19, v17, 3, s{sT0}")
        for q in range(4):
            a(f"global_load_dwordx2 {vr(28 + 2 * q, 2)}, v19, {sp(P_B2)} offset:{16 * q}")
    else:
        a(f"""v_and_b32 v19, 3, v{vLANE}
s_lshl_b32 s31, s{sWAVE}, 11
v_lshl_add_u32 v28, v16, 1, s{sT0}
global_load_ushort v29, v28, {sp(P_B2)}
v_bfe_u32 v31, v{vLANE}, 2, 2
v_lshl_add_u32 v31, v17, 2, v31
v_lshlrev_b32 v31, 6, v31
v_bfe_u32 v30, v{vLANE}, 4, 1
v_lshl_add_u32 v31, v30, 5, v31
v_lshl_add_u32 v31, v19, 3, v31
v_add_u32 v31, s31, v31""")
    a(f"""s_mul_i32 s{sT0}, s{sDT2}, 28
s_mul_i32 s{sT1}, s{sWAVE}, 7
s_add_u32 s{sT0}, s{sT0}, s{sT1}
v_min_u32 v{r + 2}, 6, v{vLANE}
v_add_u32 v{r + 2}, s{sT0}, v{r + 2}
v_mov_b32 v{r + 3}, v{r + 2}
s_lshl_b32 s13, s{sT0}, 13
s_add_u32 s13, s13, {G}""")
    if layer == 0:
        a(f"""s_add_u32 s21, s20, {X2}
s_lshl_b32 s19, s50, 1
s_add_u32 s19, s19, {ST1}""")
    else:
        a(f"s_mul_i32 s{sT0}, s50, 896\ns_lshl_b32 s{sT1}, s51, 1\ns_add_u32 s21, s{sT0}, s{sT1}")
    gemm_reduce_prep()
    gemm_rot(28, sROT2)
    if layer == 0 and emode(4) == "C" and OPT["x2l"] == 2:
        a(f"s_mul_i32 s{sT0}, s{sWAVE}, 7\nv_min_u32 v52, 6, v{vLANE}\nv_add_u32 v52, s{sT0}, v52")
        poll_issue(19, 50)
    lskip, ljoin = label("res"), label("resj")
    a(f"s_cmp_eq_u32 s{sR1}, 0")
    a(f"s_cbranch_scc1 {lskip}")
    residual_issue()
    residual_use()
    if emode(3 + 4 * layer) == "M":
        a.wait_tag("pub")
    else:
        wait_edge(3 + 4 * layer, r, r + 2, r + 3)
    a(f"s_branch {ljoin}")
    a(f"{lskip}:")
    eln = 2 + 4 * layer
    if OPT["rese"] and hinted(eln) and OPT["h_ln"] >= 2:
        wide = OPT["ln1w"] if layer else OPT["ln0w"]
        a(f"s_lshl_b32 s{sT0}, s{sST}, {1 if wide else 2}\nv_and_b32 v48, {1 if wide else 3}, v{vLANE}\nv_add_u32 v48, s{sT0}, v48")
        poll_issue(eln + 10, 46)
        poll_take(46)
        residual_issue()
        residual_use()
        wait_edge(3 + 4 * layer, r, r + 2, r + 3)
    else:
        wait_edge(3 + 4 * layer, r, r + 2, r + 3)
        residual_issue()
        residual_use()
    a(f"{ljoin}:")
    if layer == 0 and emode(4) == "C" and OPT["x2l"] == 2:
        poll_take(50)
    at = {26: gemm_reduce_addr, 25: lambda: gemm_perm_get(88)}
    late = layer == 0 and emode(4) == "C" and OPT["x2l"] == 1
    if late:
        at[25] = lambda: (gemm_perm_get(88), a(f"v_and_b32 v98, 31, v{vLANE}"), poll_issue(19, 96))
    stamp(f"g2_{layer} go", 63)
    gemm_loop(28, 64, 10, lambda ks, nb: vr(128 + (ks * 2 + nb) * 4, 4), layer == 1, sentinel(3 + 4 * layer), lds_from=16, at=at, bg=bg)
    count_out(120)
    stamp(f"g2_{layer} loop", 120)

    def addr():
        a(f"v_and_b32 v68, 31, v{vLANE}\nv_lshrrev_b32 v69, 5, v{vLANE}")
        if layer == 0:
            a(f"""v_and_b32 v70, 15, v{vLANE}
v_lshlrev_b32 v70, 6, v70
v_lshl_add_u32 v70, v69, 4, v70
v_bfe_u32 v71, v{vLANE}, 4, 1
v_lshl_add_u32 v70, v71, 5, v70
""")
            if emode(4) == "C":
                a(f"""v_lshl_add_u32 v71, v69, 2, v71
v_lshlrev_b32 v71, 12, v71
v_and_b32 v68, 15, v{vLANE}
v_lshl_add_u32 v71, v68, 2, v71
v_mov_b32 v68, 1.0
v_cndmask_b32 v68, v68, 0, {sp(sM1)}
s_add_u32 s18, s19, 8192""")
            else:
                a(f"""v_bfe_u32 v71, v{vLANE}, 2, 2
v_lshlrev_b32 v71, 4, v71
v_bfe_u32 v68, v{vLANE}, 4, 1
v_lshl_add_u32 v71, v68, 3, v71
v_and_b32 v68, 1, v{vLANE}
v_lshl_add_u32 v71, v68, 2, v71
v_bfe_u32 v68, v{vLANE}, 1, 1
v_lshl_add_u32 v68, v69, 1, v68
v_lshl_add_u32 v71, v68, 12, v71""")
        else:
            a(f"v_mul_u32_u24 v70, 896, v68\nv_lshl_add_u32 v70, v69, 4, v70")
    prod = f"s_lshl_b32 s{sT0}, s{sDT2}, 5\ns_add_u32 s{sT0}, s{sT0}, s{sST}\ns_lshl_b32 s{sT0}, s{sT0}, 6"
    hn = layer == 0 and hinted(4)

    def pre():
        addr()
        if hn:
            hint_prep(14, prod, 80)
    gemm_reduce(pre, (lambda: hint_put(80)) if (hn and OPT["h_g2"] == 0) else None, None, 88)
    if hn and OPT["h_g2"] == 1:
        hint_put(80)
    PK = 72
    if late:
        poll_take(96)
    stamp(f"g2_{layer} red", 120)
    for half in range(2):
        b = PK + 4 * half
        for k in range(4):
            a(f"v_cvt_pk_bf16_f32 v{b + k}, v{8 * half + 2 * k}, v{8 * half + 2 * k + 1}")
        a(f"v_permlane32_swap_b32 v{b}, v{b + 2}")
        a(f"v_permlane32_swap_b32 v{b + 1}, v{b + 3}")
        if layer == 1:
            a(f"buffer_store_dwordx4 {vr(b, 4)}, v70, {srd(S_OUT)}, s21 offen offset:{32 * half} {('', 'nt', 'sc1')[OPT['ofl']]}")
    if layer == 1:
        return
    def put_x():
        for k in range(4):
            a(f"v_permlane16_swap_b32 v{PK + k}, v{PK + 4 + k}")
        for half in range(2):
            a(f"buffer_store_dwordx4 {vr(PK + 4 * half, 4)}, v70, {srd(S_WS)}, s21 offen offset:{1024 * half} sc1", tag="pub")
    put_x()
    if hn and OPT["h_g2"] == 2:
        hint_put(80)
    for k in range(8):
        a(f"v_pk_mul_f32 {vr(20 + 2 * k, 2)}, {vr(2 * k, 2)}, {vr(2 * k, 2)}")
    res = reduce32(list(range(16)) + list(range(20, 36)), 16, list(range(40, 48)))
    assert res == [0, 1, 2, 3]
    if emode(4) == "C":
        a(f"""v_permlane16_swap_b32 v0, v1
v_permlane16_swap_b32 v2, v3
v_cndmask_b32 v0, v0, v1, {sp(sM1)}
v_cndmask_b32 v2, v2, v3, {sp(sM1)}
v_cndmask_b32 v0, v0, v68, {sp(sM2)}
v_cndmask_b32 v2, v2, v68, {sp(sM2)}""")
        a(f"buffer_atomic_add_f32 v0, v71, {srd(S_WS)}, s19 offen sc1", tag="pub")
        a(f"buffer_atomic_add_f32 v2, v71, {srd(S_WS)}, s18 offen sc1", tag="pub")
    else:
        a(f"""v_cndmask_b32 v0, v0, v1, {sp(sM1)}
v_cndmask_b32 v2, v2, v3, {sp(sM1)}
v_cndmask_b32 v0, v0, v2, {sp(sM2)}""")
        a(f"buffer_atomic_add_f32 v0, v71, {srd(S_WS)}, s19 offen sc1", tag="pub")
    if hn and OPT["h_g2"] == 3:
        hint_put(80)
    stamp("g2_0 atom", 120)
    if flagged(4):
        flag_put(4, prod, 40, "pub")
    else:
        a.barrier()
    stamp("g2_0 flag", 120)


def skip_unless(role):
    l = label("skip")
    a(f"s_cmp_eq_u32 s{role}, 0")
    a(f"s_cbranch_scc1 {l}")
    return l


def dmas(n0, n1):
    return [w_dma(n, h) for n in range(n0, n1) for h in range(2)]


def tr_dma(n0, n1):
    g = []
    for n in range(n0, n1):
        g.append(w_tr(n))
        if n > n0:
            g += dmas(n + 11, n + 12)
    g += dmas(n1 + 11, n1 + 12)
    return g


def wseq():
    nB = OPT["wB"] // 2
    assert 36 <= nB <= 60
    g = dmas(0, 12) + tr_dma(0, nB - 12)
    lastT = 48 if (nB >= 48 and OPT["wT"]) else 32 + OPT["wg"]
    g += [w_tr(n) for n in range(nB - 12, lastT)]
    g.append([])
    d = nB
    for n in range(max(lastT, nB - 12), 49):
        while d < min(n + 11, 60) or (n == 48 and d < 60):
            g += dmas(d, d + 1)
            d += 1
        if n < 48:
            g.append(w_tr(n))
    return g


def wcut(n_dma):
    k = 0
    for p, g in enumerate(wseq()):
        if k == n_dma:
            return p
        k += any(i.kind == "dma" for i in g)
    return len(wseq())


def put_all(gs):
    for g in gs:
        a.put(g)


def w2_touch(r):
    return [Ins(f"v_lshlrev_b32 v{r}, 12, v{vLANE}"), Ins(f"buffer_load_dword v{r}, v{r}, {srd(S_W2)}, s{sW2O} offen")]


def upad():
    a(f"""v_mov_b32 v32, 0
v_mov_b32 v33, 0
v_mov_b32 v34, 0
v_mov_b32 v35, 0
s_and_b32 s{sT0}, s{sWAVE}, 1
s_mul_i32 s{sT0}, s{sT0}, {UST}
v_add_u32 v36, s{sT0}, v{vL16}
ds_write_b128 v36, v[32:35] offset:{UB}""")


def build():
    global RB
    if OPT["bfr"] and OPT["keepk"]:
        RB = UB
    g = OPT["wg"]
    WORDER[:] = list(range(0, g)) + list(range(32, 32 + g)) + list(range(g, 32)) + list(range(32 + g, 60))
    if OPT["w2t"]:
        WORDER[:] = list(range(60))
    cA, cP, cL, cB = wcut(OPT["wA"]), wcut(OPT["wP"]), wcut(OPT["wL"]), wseq().index([])
    cK = wcut(OPT["wK"])
    prologue()
    laux, ljoin = label("aux"), label("join")
    a(f"s_cmp_eq_u32 s{sRC}, 0")
    a(f"s_cbranch_scc1 {laux}")
    stamp("args", 2)
    xt_loads()
    kgen_table_load()
    code_warm(1)
    page_warm(88)
    w_setup()
    put_all(wseq()[:cA])
    conv_setup(0)
    stamp("start", 2)

    xt_poll_addr(63, 2)
    if sentinel(1) and OPT["x1s"]:
        a(f"""v_lshrrev_b32 v2, 3, v{vLANE}
v_mul_u32_u24 v2, {BS}, v2
v_and_b32 v3, 7, v{vLANE}
v_lshl_add_u32 v2, v3, 4, v2
s_mul_i32 s{sT0}, s{sWAVE}, {16 * BS}
s_lshl_b32 s{sT1}, s{sPAIR}, 7
s_add_u32 s{sT0}, s{sT0}, s{sT1}
s_add_u32 s{sT0}, s{sT0}, {X1}
s_add_u32 s{sT1}, s{sT0}, {8 * BS}
v_mov_b32 v4, -1
v_mov_b32 v5, -1
v_mov_b32 v6, -1
v_mov_b32 v7, -1""")
        a(f"buffer_store_dwordx4 v[4:7], v2, {srd(S_WS)}, s{sT0} offen sc1", tag="st0")
        a(f"buffer_store_dwordx4 v[4:7], v2, {srd(S_WS)}, s{sT1} offen sc1", tag="st0")
    xt_work()
    stamp("xt", 2)

    def h_flag():
        nonce_take()
        flag_put(0, sPAIR, 104, "st0")
        stamp("flag", 0)
        a(f"global_load_dwordx4 {vr(TAB, 4)}, v75, {sp(sTAB)}")
        a(f"global_load_dwordx4 {vr(TAB + 4, 4)}, v75, {sp(sTAB)} offset:16")
        a(f"global_load_dwordx2 v[0:1], v75, {sp(sTAB)} offset:32")

    def h_load():
        poll_take(64, 63)
        stamp("e1 seen", 64)
        for i in a.capture(conv_loads):
            a(re.sub(r"v\[(\d+):(\d+)\]", lambda m: f"a[{int(m.group(1)) - CS}:{int(m.group(2)) - CS}]", i.text, count=1))

    hooks = {}
    dbg = tuple((p, (lambda p=p: stamp(f"hook{p}", 65))) for p in (0, 1, 2, 5)) if OPT["stamps"] == 1 else ()
    for pos, fn in dbg + ((OPT["h_flag"], h_flag), (OPT["h_w"], lambda: KBG.extend([g + ([Ins("s_mov_b32 m0, s22")] if OPT["atid"] else []) for g in wseq()[cA:cK]] + ([w2_touch(75)] if OPT["w2t"] else []))), (OPT["h_poll"], lambda: poll_issue(0, 64, 63)), (OPT["h_load"], h_load)):
        hooks.setdefault(pos, []).append(fn)
    assert OPT["h_flag"] <= OPT["h_w"] and OPT["h_poll"] >= 6
    kgen({k: (lambda fs=fs: [f() for f in fs]) for k, fs in hooks.items()})
    dump_lds(1)
    stamp("kgen", 21)

    def mid():
        if OPT["h_load"] < 10:
            return
        poll_take(64, 63)
        stamp("e1 seen", 0)
        conv_loads()
    wr = kexpand(mid)
    if OPT["mixpro"]:
        mv = [i for i in wr if i.kind != "dsw"]
        st = [i for i in wr if i.kind == "dsw"]
        pro = a.capture(conv_pro, 0)
        k = next(n for n, i in enumerate(pro) if i.defs & {f"v{r}" for r in range(0, 22)})
        a.put(mv)
        a.put(st[2:4])
        head, rest = merge(pro[:k], [[i] for i in st[4:6] + st[:2] + st[6:]], 0, 14)
        a.put(head)
        early = [g for g in rest if g[0].uses & {f"v{r}" for r in range(0, 22)}]
        put_all(early)
        rest = [g for g in rest if g not in early]
        k2 = next(n for n, i in enumerate(pro) if i.kind == "dsw")
        mid2, rest = merge(pro[k:k2], rest, 0, 30)
        put_all(rest)
        m3, rest = merge(mid2 + pro[k2:], wseq()[cK:cP], 50, OPT["ev_pro"])
        a.put(m3)
        put_all(rest)
        stamp("expand", 111)
    else:
        a.put(wr)
        stamp("expand")
        conv_pro(0)
    if sentinel(1) and not OPT["x1s"]:
        a(f"v_min_u32 v{cvP + 2}, 27, v{vLANE}")
        poll_issue(8, cvP)
    a.barrier()
    dump_lds(2)
    stamp("conv0 go", 111)
    put_all(conv_main(0, wseq()[cP:cL], OPT["st_conv"], OPT["ev_conv"]))
    stamp("conv0 done")
    a(f"s_branch {ljoin}")
    a(f"{laux}:")
    aux_loads()
    kgen_table_addr()
    code_warm(1)
    page_warm(88)
    w_setup()
    aux_work()
    stamp("aux e1")
    if OPT["g7"] == 1:
        lg = label("g7")
        a(f"""s_cmp_lg_u32 s{sR1}, 0
s_cbranch_scc1 {lg}
s_lshr_b32 s{sT0}, s{sX}, 2
s_sub_u32 s{sT0}, s{sJ}, s{sT0}
s_sub_u32 s{sT0}, s{sT0}, 28
s_lshl_b32 s{sT0}, s{sT0}, 3
s_add_u32 s{sT0}, s{sT0}, s{sX}
s_lshl_b32 s{sT0}, s{sT0}, 7
s_mul_i32 s{sT1}, s{sWAVE}, {512 * 3584}
s_add_u32 s{sT0}, s{sT0}, s{sT1}
s_add_u32 s{sT0}, s{sT0}, {448 * 3584}
v_mul_u32_u24 v90, 3584, v{vLANE}
v_add_u32 v90, s{sT0}, v90""")
        a(f"global_load_dword v90, v90, {sp(P_W1)}")
        a(f"{lg}:")
    if armed(0):
        lnf = label("nf")
        a(f"s_cmp_lg_u32 s{sR1}, 0\ns_cbranch_scc1 {lnf}")
        if OPT["map18"] == 1:
            a(f"s_sub_u32 s16, s{sAUX}, 4\ns_cselect_b32 s16, s{sAUX}, s16")
        else:
            a(f"s_lshr_b32 s16, s{sAUX}, 1\ns_sub_u32 s17, s{sAUX}, 4\ns_cmp_lt_u32 s{sAUX}, 8\ns_cselect_b32 s16, s16, s17")
        if sentinel(1) and not OPT["x1s"]:
            fill(X1, 17, 80, 16, 28 * 4096, "fill")
            flag_put(8, 16, 72, "fill")
        if sentinel(2) or sentinel(3):
            if sentinel(2):
                fill(H1, 16, 80, 16, 28 * 4096, "fill")
            if sentinel(3):
                fill(G1, 14, 80, 16, 28 * 4096, "fill")
            if emode(4) == "C" and not OPT["x2l"]:
                assert sentinel(2) and sentinel(3)
                fill(X2, 17, 80, 16, 28 * 4096, "fill")
            flag_put(18, 16, 72, "fill")
        a(f"{lnf}:")
    stamp("aux fill")
    if OPT["g7"] == 2:
        lg = label("g7")
        a(f"""s_cmp_lg_u32 s{sR1}, 0
s_cbranch_scc1 {lg}
s_lshr_b32 s{sT0}, s{sX}, 2
s_sub_u32 s{sT0}, s{sJ}, s{sT0}
s_sub_u32 s{sT0}, s{sT0}, 28
s_lshl_b32 s{sT0}, s{sT0}, 3
s_add_u32 s{sT0}, s{sT0}, s{sX}
s_lshl_b32 s{sT0}, s{sT0}, 7
s_mul_i32 s{sT1}, s{sWAVE}, {512 * 3584}
s_add_u32 s{sT0}, s{sT0}, s{sT1}
s_add_u32 s{sT0}, s{sT0}, {448 * 3584}
v_mul_u32_u24 v90, 3584, v{vLANE}
v_add_u32 v90, s{sT0}, v90""")
        a(f"global_load_dword v90, v90, {sp(P_W1)}")
        a(f"{lg}:")
    cX = min(wcut(64 + 2 * OPT["wg"]), cB)
    if OPT["w2t"]:
        a.put(w2_touch(75))
    n1 = 32 + OPT["wg"]
    if OPT["auxs"] == 2:
        assert not OPT["t2"]
        lw, lx = label("aw"), label("ax")
        a(f"s_cmp_eq_u32 s{sR1}, 0\ns_cbranch_scc1 {lw}")
        put_all(wone(0, 32, 32))
        a(f"s_branch {lx}")
        a(f"{lw}:")
        put_all(wone(32, 60, 48)[:OPT["aw"]])
        a(f"{lx}:")
    elif OPT["auxs"]:
        put_all(dmas(0, 12) + tr_dma(0, n1 - 12) + [w_tr(n) for n in range(n1 - 12, n1)])
    else:
        put_all(wseq()[:cX])
    if sentinel(1) and not OPT["x1s"]:
        a(f"v_min_u32 v62, 27, v{vLANE}")
        poll_issue(8, 60)
        poll_take(60)
    a.wait_vm0()
    stamp("aux w")
    a(f"{ljoin}:")
    for layer in range(2):
        if layer == 1:
            l = skip_unless(sRC)
            conv_setup(1)
            conv_poll1()
            stamp("conv1 ready")
            if OPT["kc_in"] and not hinted(4):
                a.wait_tag("flag")
                poll_issue(4, cvP)
                kcopies()
                poll_take(cvP)
            else:
                upad() if RB == UB else kcopies()
                conv_xearly()
                if emode(4) == "G":
                    lg = label("gt")
                    a(f"s_cmp_lg_u32 s{sR2}, 0\ns_cbranch_scc1 {lg}")
                    poll_issue(14, cvP, cvP + 3)
                    poll_take(cvP, cvP + 3)
                    a(f"{lg}:")
                    a.wait_tag("flag")
                    poll_issue(4, cvP)
                    poll_take(cvP)
                else:
                    wait_edge(4, cvP, cvP + 2, cvP + 3)
            stamp("conv1 poll")
            if emode(4) != "C":
                conv_loads()
            conv_pro(1)
            count_out(111)
            if armed(1):
                a(f"v_and_b32 v{cvP + 2}, 31, v{vLANE}")
                poll_issue(9, cvP)
            a.barrier()
            dump_lds(3)
            stamp("conv1 go", 111)
            conv_main(1)
            stamp("conv1 done")
            if armed(1):
                lj = label("cvj")
                a(f"s_branch {lj}")
                a(f"{l}:")
                a(f"v_and_b32 v62, 31, v{vLANE}")
                poll_issue(9, 60)
                poll_take(60)
                a(f"{lj}:")
            else:
                a(f"{l}:")
        wide = OPT["ln1w"] if layer else OPT["ln0w"]
        l = skip_unless(sRL0 if wide else sRL)
        ln(layer, wide)
        stamp(f"ln{layer} done")
        a(f"{l}:")
        if layer == 0:
            gemm_perm(0)
            def arm_poll(part):
                k = max(0, len(part) - 12)
                put_all(part[:k])
                if sentinel(2) or sentinel(3):
                    a(f"v_min_u32 v62, 27, v{vLANE}")
                    poll_issue(18, 60)
                if inb:
                    gemm1(0, wide, part="head")
                k2 = max(k, len(part) - OPT["inb"])
                put_all(part[k:k2])
                if inb:
                    gemm1(0, wide, part="poll")
                put_all(part[k2:])
                if sentinel(2) or sentinel(3):
                    poll_take(60)
            inb = OPT["inb"] > 0 and emode(2) == "S"
            if OPT["auxs"]:
                assert OPT["wB"] == 120 or (OPT["t2"] and OPT["wB"] >= 96) or OPT["auxs"] == 2
                la, lb, lc = label("ba"), label("bb"), label("bc")
                a(f"s_cmp_eq_u32 s{sRC}, 0\ns_cbranch_scc1 {la}")
                arm_poll(wseq()[cL:cB])
                a(f"s_branch {lb}")
                a(f"{la}:")
                a(f"s_cmp_eq_u32 s{sR2}, 0\ns_cbranch_scc1 {lc}")
                nB = OPT["wB"] // 2
                put_all(wone(32, 60, 48)[OPT["aw"]:] if OPT["auxs"] == 2 else dmas(n1, n1 + 12) + (tr_dma(n1, nB - 12) if nB - 12 > n1 else []) + [w_tr(n) for n in range(max(n1, nB - 12), 48)])
                if emode(4) == "C" and OPT["x2l"] == 2:
                    a(f"s_sub_u32 s16, s{sAUX}, 4\ns_cselect_b32 s16, s{sAUX}, s16")
                    fill(X2, 17, 80, 16, 28 * 4096, "fill")
                    flag_put(19, 16, 72, "fill")
                a(f"{lc}:")
                if inb:
                    gemm1(0, wide, part="head")
                    gemm1(0, wide, part="poll")
                elif not sentinel(2):
                    arm_poll([])
                a(f"{lb}:")
            else:
                l = skip_unless(sRC)
                put_all(wseq()[cL:cX])
                a(f"{l}:")
                rest = wseq()[cX:cB]
                k = max(0, len(rest) - 12)
                put_all(rest[:k])
                if sentinel(2) or sentinel(3):
                    a(f"v_min_u32 v62, 27, v{vLANE}")
                    poll_issue(18, 60)
                put_all(rest[k:])
                if sentinel(2) or sentinel(3):
                    poll_take(60)
            stamp("w B", 63)
            tail = wseq()[cB:]
            assert not any(i.kind == "dsr" and "a[" in i.text for g in tail for i in g)
            lelse, lj = label("ng1"), label("g1j")
            a(f"s_cmp_eq_u32 s{sR1}, 0")
            a(f"s_cbranch_scc1 {lelse}")
            gemm1(0, wide, None, [] if OPT["t2"] else tail, "rest" if inb else "all")
            nonce_retire()
            stamp("g1_0 done")
            a(f"s_branch {lj}")
            a(f"{lelse}:")
            if OPT["auxs"] == 2 and OPT["wB"] < 120:
                a(f"s_cmp_eq_u32 s{sRC}, 0\ns_cbranch_scc1 {lj}")
            put_all([] if OPT["t2"] else wseq()[cB:])
            a(f"{lj}:")
        else:
            l = skip_unless(sR1)
            gemm1(1, wide)
            stamp("g1_1 done")
            a(f"{l}:")
        l = skip_unless(sR2)
        gemm2(layer, [g for g in wseq()[cB:] if g] if (layer == 0 and OPT["t2"]) else [])
        if layer == 0 and armed(1):
            lj = label("g2j")
            a(f"s_branch {lj}")
            a(f"{l}:")
            if OPT["map18"]:
                a(f"s_lshl_b32 s16, s{sX}, 2\ns_add_u32 s16, s16, s{sJ}")
            else:
                a(f"s_lshr_b32 s16, s{sX}, 1\ns_lshl_b32 s16, s16, 3\ns_add_u32 s16, s16, s{sJ}")
            late = emode(4) == "C" and OPT["x2l"]
            if late == 1:
                fill(X2, 15, 72, 16, CH)
                flag_put(19, 16, 8, "st0")
            for base, n, e in ((X3, 15, 5), (H3, 14, 6), (G3, 13, 7)):
                if sentinel(e):
                    fill(base, n, 72, 16, CH)
            flag_put(9, 16, 8, "st0")
            if late:
                a(f"v_and_b32 v62, 31, v{vLANE}" if late == 1 else f"v_min_u32 v62, 27, v{vLANE}")
                poll_issue(19, 60)
                poll_take(60)
            a(f"{lj}:")
        else:
            a(f"{l}:")
        stamp("g2_0 done" if layer == 0 else "end")
    if OPT["stamps"] and OPT["dbgwg"] < 0:
        l = label("ls")
        a(f"s_cmp_lg_u32 s{sWAVE}, 0\ns_cbranch_scc1 {l}\ns_waitcnt vmcnt(0)\ns_memrealtime {sp(sSTAMP)}\ns_waitcnt lgkmcnt(0)")
        a(f"s_lshl_b32 s3, s2, 8\ns_add_u32 s3, s3, {STAMPS + 248}\nv_mov_b32 v0, s101\nv_mov_b32 v1, s{sSTAMP}\ns_mov_b64 exec, 1")
        a(f"buffer_store_dwordx2 v[0:1], off, {srd(S_WS)}, s3")
        a(f"{l}:")
    if OPT["fixdur"]:
        a(f"s_waitcnt vmcnt(0) lgkmcnt(0)\nL_fix:\ns_memrealtime s[28:29]\ns_waitcnt lgkmcnt(0)\ns_sub_u32 s28, s28, s101\ns_cmp_lt_u32 s28, {OPT['fixdur']}\ns_cbranch_scc1 L_fix")
    a("s_endpgm")


def bf16_round_int(l):
    b = struct.unpack("<I", struct.pack("<f", float(l)))[0]
    b = (b + 0x7FFF + ((b >> 16) & 1)) & 0xFFFF0000
    return int(struct.unpack("<f", struct.pack("<I", b))[0])


def ktab():
    vals = []
    for c in range(2):
        for x in range(2048):
            lr = bf16_round_int(2047 - x)
            aa, rem = lr >> 7, lr & 127
            j, e = rem >> 3, rem & 7
            if aa < 2:
                rho = 8 * aa + e
            elif aa < 4:
                rho = 4 * aa + 8 + (e >> 1)
            elif aa < 8:
                rho = 16 + 2 * aa + (e >> 2)
            else:
                rho = 24 + aa
            vals.append((rho >> 2) * 256 + j * 16 + (rho & 3) * 4 + c * 2 * GST)
        vals += [3072 + c * 2 * GST] * 16
    lines = []
    for i in range(0, len(vals), 16):
        lines.append("    .short " + ", ".join(str(v) for v in vals[i:i + 16]))
    return "\n".join(lines)


DOC = """;
;   gemm1 : gelu(h^T W1 + b1), 64x64 tile per workgroup, K split over the waves, W1 tile resident in AGPRs
;   gemm2 : x + g W2 + b2, W2 tile resident in VGPRs + LDS; per-token sums for the next LayerNorm by float atomics
; Hand-offs between workgroups go through d_ws with write-through stores and L1-bypassing loads, valid for any placement:
; Every wait is bounded.  Generated by the author's own script (register allocation and schedule are explicit).
"""


WIDEN = ("v_mov_b32", "v_add_f32", "v_mul_f32", "v_max_f32", "v_min_f32", "v_add_u32", "v_sub_u32", "v_lshlrev_b32", "v_lshrrev_b32", "v_and_b32",
         "v_xor_b32", "v_max_u32", "v_min_u32", "v_exp_f32", "v_rcp_f32", "v_rsq_f32", "v_sin_f32", "v_cos_f32", "v_fract_f32", "v_mul_u32_u24",
         "v_cmp_eq_u32", "v_cmp_gt_u32", "v_cmp_ne_u64", "v_cndmask_b32", "v_not_b32", "v_ashrrev_i32")


def sizes_of(ins):
    import subprocess, tempfile, os
    d = tempfile.mkdtemp()
    body = Prog.render(ins) + "".join((l if l.endswith(":") else "    " + l) + "\n" for l in STUBS)
    open(d + "/a.s", "w").write('.amdgcn_target "amdgcn-amd-amdhsa--gfx950"\n.text\nL_entry:\n' + body + "ktab:\n")
    subprocess.run(["clang", "-x", "assembler", "-target", "amdgcn-amd-amdhsa", "-mcpu=gfx950", "-c", d + "/a.s", "-o", d + "/a.o"], check=True)
    out = subprocess.run(["llvm-objdump", "-d", "--mcpu=gfx950", d + "/a.o"], capture_output=True, text=True, check=True).stdout
    return [4 * len(l.split("//")[1].split(":")[1].split()) for l in out.split("\n") if "//" in l]


def align8(ins):
    real = [i for i in ins if i.kind not in ("label", "comment")]
    sz = sizes_of(ins)[:len(real)]
    size = {id(i): n for i, n in zip(real, sz)}
    run = [0] * (len(real) + 1)
    mf = [0] * (len(real) + 1)
    for k in range(len(real) - 1, -1, -1):
        run[k] = run[k + 1] + 1 if sz[k] == 8 else 0
        mf[k] = (mf[k + 1] + (real[k].kind == "mfma")) if sz[k] == 8 else 0
    idx = {id(i): k for k, i in enumerate(real)}
    out, off, cand, nw, nn = [], 0, None, 0, 0
    for i in ins:
        if i.kind in ("label", "comment"):
            out.append(i)
            continue
        k = idx[id(i)]
        if sz[k] == 8 and (k == 0 or sz[k - 1] != 8) and off % 8 == 4 and run[k] >= OPT["al_w"]:
            if cand is not None:
                c = out[cand]
                op, rest = c.text.split(None, 1)
                out[cand] = Ins(op + "_e64 " + rest)
                off += 4
                nw += 1
            elif run[k] >= OPT["al_n"] and mf[k] * 4 < run[k]:
                out.append(Ins("s_nop 0"))
                off += 4
                nn += 1
        if sz[k] == 8:
            if run[k] >= OPT["al_w"] or (k and sz[k - 1] == 8):
                cand = None
        elif sz[k] == 4 and i.op in WIDEN:
            cand = len(out)
        out.append(i)
        off += sz[k]
    print("aligned runs: widened", nw, "padded", nn)
    return out


def main(path):
    build()
    ins = a.finish()
    if OPT["al_w"]:
        ins = align8(ins)
    ref = open(f"cdna_kernels/{NAME}.s.ref").read().split("\n")
    head = [l for l in ref if l.startswith(";") and "@launch" not in l and not l.startswith("; Override") and not l.startswith("; grid=ceil")]
    k = NAME + "_kernel"
    s = "\n".join(head) + f"\n; @launch grid=(256,1,1) block=(256,1,1) lds={LDS_BYTES}\n"
    s += DOC
    s += f""".amdgcn_target "amdgcn-amd-amdhsa--gfx950"
.text
.globl {k}
.p2align 8
.type {k},@function
{k}:
L_entry:
"""
    s += Prog.render(ins)
    s += "".join((l if l.endswith(":") else "    " + l) + "\n" for l in STUBS)
    s += f""".p2align 6
.type ktab,@object
ktab:
{ktab()}
.size ktab, 8256
.section .rodata,"a"
.p2align 6
.amdhsa_kernel {k}
  .amdhsa_next_free_vgpr 512
  .amdhsa_next_free_sgpr 102
  .amdhsa_accum_offset 256
  .amdhsa_group_segment_fixed_size 0
  .amdhsa_kernarg_size 136
  .amdhsa_user_sgpr_count 2
  .amdhsa_user_sgpr_kernarg_segment_ptr 1
  .amdhsa_system_sgpr_workgroup_id_x 1
  .amdhsa_float_denorm_mode_32 3
.end_amdhsa_kernel
"""
    open(path, "w").write(s)
    n = sum(1 for i in ins if i.kind not in ("label", "comment"))
    open(path + ".names", "w").write("\n".join(STAMP_NAMES))
    print("instructions:", n, "nops:", sum(1 for i in ins if i.kind == "nop"), "waits:", sum(1 for i in ins if i.kind == "wait"))


if __name__ == "__main__":
    path = sys.argv[1]
    for kv in sys.argv[2:]:
        k, v = kv.split("=")
        OPT[k] = v if k in ('em', 'probe') else int(v)
    main(path)
```

```python
import sys, math, struct, re
from asmlib import *

NAME = "interleave_layers__ssm_conv_s4__mixer_token_mlp__prompt"
OPT = dict(stamps=False, stop=99, upfront=True, dump=0, dbgwg=-1, fixdur=0, em='SSSCDSS', warm=1, h_flag=2, h_w=2, h_poll=9, h_ln=2, h_cv=0, h_g1=0, h_g2=2, rot=1, wA=0, wK=8, wP=8, wL=24, wB=120, wT=1, lag=2, gap=3, st_conv=100, ev_conv=150, ev_g1=100000, fill0=14, ln1w=0, ln0w=1, chk=1, samp=8, map18=2, ofl=0, tailord=1, cv=1, clk=0, ev_kg=150, mixpro=1, now=0, probe='', kc_in=0, w2t=0, g7=0, rl=4, bfr=1, wg=4, slp=0, ev_pro=30, t2=0, bg0=0, tlb=0, rese=0, lnd=1, keepk=1, fake16=0, wnt=0, wnta=0, fnt=0, pnt=0, xnt=0, auxs=2, inb=6, x2l=2, res4=0, xe=0, cpipe=1, spl=1, h_load=99, x1s=1, aw=24, mr=1, al_w=3, al_n=999, atid=1, lazy=0, o64=0, dst=0, wg1=0, rota=0, g2b=0)
DBG_SEL = ['start', 'kgen', 'conv0 go', 'ln0 go', 'g1_0 go', 'g1_0 loop', 'g2_0 go', 'g2_0 loop', 'conv1 poll', 'ln1 go', 'g1_1 go', 'g2_1 go', 'end']
STAMP_NAMES = []

EPOCH = 0
ST0 = 0x1000
ST1 = 0x8000
STAMPS = 0x20000
FL = 0x100000
BS = 448 * 64 + 128
CH = 0x20000
X1, H1, G1, X3, H3, G3, X2, X0 = (0x400000 + 0x200000 * i for i in range(8))
FILL1, FILL3 = 6, 36
WS_BYTES = 268435456
OOB = 0x40000000

KST = 4160
KSLOT = {0: [0, 5, 2, 3], 1: [1, 6, 7, 4]}
UB = 8 * KST
UPAD = 1024
UST = 4096 + UPAD
ZB = UB + 2 * UST
EX = 2 * KST
RB = 2 * KST
GST = 15616
GROW = 272
TOFF = 12288
LNP = 57856
PERM = 61440
W2L = 65536
LDS_BYTES = 163840

sWAVE, sX, sJ, sPAIR, sDT1, sNT, sDT2, sST, sLN = 4, 5, 6, 7, 8, 9, 10, 11, 12
sNONCE = 14
P_U, P_ARE, P_AIM, P_BRE, P_BIM, P_CRE, P_CIM, P_LDT = 16, 18, 20, 22, 24, 26, 28, 30
P_DSK, P_W1, P_B1, P_W2, P_B2, P_OUT, P_DBG, P_WS = 32, 36, 38, 40, 42, 44, 46, 48
S_WS, S_W1, S_W2, S_X0, S_OUT = 52, 56, 60, 64, 68
sD0, sD1 = 72, 74
sLDT = 76
sEP = 78
sWOFF, sT0, sT1, sT2, sT3, sCNT = 80, 81, 82, 83, 84, 85
sRC, sR1, sR2, sRL = 86, 87, 88, 89
sM1, sM2 = 90, 92
sSTAMP = 94
sTAB = 96
sLN0, sRL0 = 77, 73
sCA, sCB = 34, 100

vLANE, vL16, vT2a, vT2b, vT1a, vT1b, vD1, vD2 = 127, 126, 125, 124, 123, 122, 121, 120
vA0, vA1 = 123, 122


def srd(n):
    return f"s[{n}:{n + 3}]"


def sp(n):
    return f"s[{n}:{n + 1}]"


def vr(n, k):
    return f"v[{n}:{n + k - 1}]" if k > 1 else f"v{n}"


def f32(x):
    return "0x%08x" % struct.unpack("<I", struct.pack("<f", x))[0]


a = Prog()
_lab = [0]


def label(p):
    _lab[0] += 1
    return f"L_{p}_{_lab[0]}"


_stamp = [0]


def stamp(name, r=1):
    k = _stamp[0]
    _stamp[0] += 1
    STAMP_NAMES.append(name)
    a("; MARK after " + name)
    if OPT["probe"] == name.replace(" ", "_"):
        a(f"s_memrealtime {sp(sSTAMP)}\ns_waitcnt lgkmcnt(0)\ns_mov_b32 s101, s{sSTAMP}")
    if OPT["stamps"] != 1:
        return
    l = label("st")
    if OPT["dbgwg"] >= 0:
        if name not in DBG_SEL:
            return
        a(f"s_lshl_b32 s3, s{sWAVE}, 8\ns_add_u32 s3, s3, s2\ns_cmp_lg_u32 s3, {OPT['dbgwg']}\ns_cbranch_scc1 {l}")
        a(f"s_memrealtime {sp(sSTAMP)}")
        a("s_waitcnt lgkmcnt(0)")
        a(f"s_mov_b64 exec, 1\nv_mov_b32 v{r}, s{sSTAMP}\ns_mov_b32 s{sSTAMP}, s{P_DBG}\ns_mov_b32 s{sSTAMP + 1}, s{P_DBG + 1}\ns_mov_b32 s{sSTAMP + 2}, 256\ns_mov_b32 s{sSTAMP + 3}, 0x20000".replace(f"s{sSTAMP}, s{P_DBG}", f"s64, s{P_DBG}").replace(f"s{sSTAMP + 1}, s{P_DBG + 1}", f"s65, s{P_DBG + 1}").replace(f"s{sSTAMP + 2}, 256", "s66, 256").replace(f"s{sSTAMP + 3}, 0x20000", "s67, 0x20000"))
        a(f"buffer_store_dword v{r}, off, s[64:67], 0 offset:{12 + 4 * DBG_SEL.index(name)} sc1", optional=True)
        a("s_mov_b64 exec, -1")
        a(f"{l}:")
        return
    a(f"s_cmp_lg_u32 s{sWAVE}, 0")
    a(f"s_cbranch_scc1 {l}")
    a(f"{'s_memtime' if OPT['clk'] else 's_memrealtime'} {sp(sSTAMP)}")
    a("s_waitcnt lgkmcnt(0)")
    a(f"s_lshl_b32 s3, s2, 8")
    a(f"s_add_u32 s3, s3, {STAMPS + 4 * k}")
    a(f"v_mov_b32 v{r}, s{sSTAMP}")
    a("s_mov_b64 exec, 1")
    a(f"buffer_store_dword v{r}, off, {srd(S_WS)}, s3", optional=True)
    a("s_mov_b64 exec, -1")
    a(f"{l}:")


_cnt = [0]


def count_out(r):
    if OPT["stamps"] != 1:
        return
    k = _cnt[0]
    _cnt[0] += 1
    a(f"s_lshl_b32 s3, s2, 2\ns_add_u32 s3, s3, s{sWAVE}\ns_lshl_b32 s3, s3, 5\ns_add_u32 s3, s3, {STAMPS + 0x10000 + 4 * k}")
    a(f"v_mov_b32 v{r}, s{sCNT}\ns_mov_b64 exec, 1")
    a(f"buffer_store_dword v{r}, off, {srd(S_WS)}, s3")
    a("s_mov_b64 exec, -1")


DUMP = 0x2000000


def dump_lds(point, r=96):
    if OPT["dump"] != point:
        return
    a.barrier()
    a(f"s_lshl_b32 s3, s{sWAVE}, 10\nv_add_u32 v{r + 4}, s3, v{vL16}\ns_lshl_b32 s3, s2, 16\ns_add_u32 s3, s3, {DUMP}")
    for i in range(16):
        a(f"ds_read_b128 {vr(r, 4)}, v{r + 4} offset:{i * 4096}")
        a(f"buffer_store_dwordx4 {vr(r, 4)}, v{r + 4}, {srd(S_WS)}, s3 offen")
        a("s_add_u32 s3, s3, 4096")
        a.wait_vm0()
    a.barrier()


def cmul(d, x, y):
    return [f"v_pk_mul_f32 {vr(d, 2)}, {vr(x, 2)}, {vr(y, 2)} op_sel:[1,1] op_sel_hi:[1,0] neg_lo:[0,1]",
            f"v_pk_fma_f32 {vr(d, 2)}, {vr(x, 2)}, {vr(y, 2)}, {vr(d, 2)} op_sel_hi:[0,1,1]"]


def cmul2(p, q=None):
    x = cmul(*p)
    if q is None:
        a(x[0]); a(x[1])
        return
    y = cmul(*q)
    a(x[0]); a(y[0]); a(x[1]); a(y[1])


def unpack(dlo, dhi, s):
    a(f"v_lshlrev_b32 v{dlo}, 16, v{s}")
    a(f"v_and_b32 v{dhi}, s0, v{s}")


def prologue():
    a("s_cmp_lt_u32 s2, 256")
    a("s_cbranch_scc1 L_start")
    a("s_endpgm")
    a("L_start:")
    if OPT["fixdur"] or OPT["stamps"]:
        a("s_memrealtime s[50:51]")
    a("s_load_dwordx16 s[16:31], s[0:1], 0")
    a("s_load_dwordx16 s[32:47], s[0:1], 64")
    a("s_load_dwordx2 s[48:49], s[0:1], 128")
    a(f"v_lshrrev_b32 v1, 6, v0")
    a(f"v_and_b32 v{vLANE}, 63, v0")
    a(f"v_readfirstlane_b32 s{sWAVE}, v1")
    a(f"v_lshlrev_b32 v{vL16}, 4, v{vLANE}")
    a(f"""s_and_b32 s{sX}, s2, 7
s_lshr_b32 s{sJ}, s2, 3
s_add_u32 s{sJ}, s{sJ}, 28
s_and_b32 s{sJ}, s{sJ}, 31
""")
    a(f"""s_lshr_b32 s{sT0}, s{sX}, 2
s_mul_i32 s{sPAIR}, s{sX}, 28
s_sub_u32 s{sRC}, s{sJ}, s{sT0}
s_add_u32 s{sPAIR}, s{sPAIR}, s{sRC}
s_cmp_lt_u32 s{sRC}, 28
s_cselect_b32 s{sRC}, 1, 0
s_mul_i32 s{sT2}, s{sJ}, 37
s_lshr_b32 s{sT2}, s{sT2}, 8
s_mul_i32 s{sT3}, s{sT2}, 7
s_sub_u32 s{sDT1}, s{sJ}, s{sT3}
s_lshl_b32 s{sNT}, s{sT2}, 3
s_add_u32 s{sNT}, s{sNT}, s{sX}
s_sub_u32 s{sT1}, s{sJ}, 4
s_cselect_b32 s{sR2}, 0, 1
s_and_b32 s{sT1}, s{sT1}, 31
s_mul_i32 s{sT2}, s{sT1}, 37
s_lshr_b32 s{sT2}, s{sT2}, 8
s_mul_i32 s{sT3}, s{sT2}, 7
s_sub_u32 s{sDT2}, s{sT1}, s{sT3}
s_lshl_b32 s{sST}, s{sX}, 2
s_add_u32 s{sST}, s{sST}, s{sT2}
s_cmp_eq_u32 s{sJ}, 0
s_cselect_b32 s{sT1}, 32, s{sJ}
s_mul_i32 s{sT2}, s{sX}, 12
s_add_u32 s{sT2}, s{sT2}, s{sT1}
s_sub_u32 s{sT2}, s{sT2}, 53
s_lshl_b32 s{sT3}, s{sX}, 2
s_add_u32 s{sT3}, s{sT3}, s{sJ}
s_sub_u32 s{sT3}, s{sT3}, 28
s_cmp_lg_u32 s{sT0}, 0
s_cselect_b32 s{sT1}, s{sT1}, s{sJ}
s_cselect_b32 s{sLN0}, s{sT2}, s{sT3}
s_cselect_b32 s{sRL0}, 21, 28
s_cmp_ge_u32 s{sT1}, s{sRL0}
s_cselect_b32 s{sRL0}, 1, 0""" if OPT["map18"] == 1 else f"""s_and_b32 s{sT0}, s{sX}, 1
s_lshr_b32 s{sT1}, s{sX}, 1
s_mul_i32 s{sPAIR}, s{sX}, 28
s_sub_u32 s{sRC}, s{sJ}, s{sT0}
s_add_u32 s{sPAIR}, s{sPAIR}, s{sRC}
s_cmp_lt_u32 s{sRC}, 28
s_cselect_b32 s{sRC}, 1, 0
s_mul_i32 s{sT2}, s{sJ}, 37
s_lshr_b32 s{sT2}, s{sT2}, 8
s_mul_i32 s{sT3}, s{sT2}, 7
s_sub_u32 s{sT3}, s{sJ}, s{sT3}
s_mul_i32 s{sNT}, s{sT1}, 7
s_add_u32 s{sNT}, s{sNT}, s{sT3}
s_lshl_b32 s{sT3}, s{sT0}, 2
s_add_u32 s{sDT1}, s{sT2}, s{sT3}
s_lshl_b32 s{sST}, s{sT0}, 3
s_sub_u32 s{sST}, s{sJ}, s{sST}
s_cselect_b32 s{sR2}, 0, 1
s_lshr_b32 s{sDT2}, s{sST}, 3
s_and_b32 s{sDT2}, s{sDT2}, 3
s_add_u32 s{sDT2}, s{sDT2}, s{sT3}
s_and_b32 s{sST}, s{sST}, 7
s_lshl_b32 s{sLN0}, s{sT1}, 4
s_lshl_b32 s{sT1}, s{sT1}, 3
s_add_u32 s{sST}, s{sST}, s{sT1}
s_cmp_eq_u32 s{sJ}, 0
s_cselect_b32 s{sT1}, 32, s{sJ}
s_mul_i32 s{sT2}, s{sT0}, 11
s_add_u32 s{sT2}, s{sT2}, s{sT1}
s_cmp_lg_u32 s{sT0}, 0
s_cselect_b32 s{sT1}, s{sT1}, s{sJ}
s_cselect_b32 s{sT2}, s{sT2}, s{sJ}
s_cselect_b32 s{sRL0}, 21, 28
s_cmp_ge_u32 s{sT1}, s{sRL0}
s_cselect_b32 s{sRL0}, 1, 0
s_add_u32 s{sLN0}, s{sLN0}, s{sT2}
s_sub_u32 s{sLN0}, s{sLN0}, 28""")
    if OPT["map18"] == 2:
        a(f"""s_sub_u32 s{sT1}, s{sJ}, 4
s_cselect_b32 s{sR2}, 0, 1
s_and_b32 s{sT1}, s{sT1}, 31
s_mul_i32 s{sT2}, s{sT1}, 37
s_lshr_b32 s{sT2}, s{sT2}, 8
s_mul_i32 s{sT3}, s{sT2}, 7
s_sub_u32 s{sDT2}, s{sT1}, s{sT3}
s_lshl_b32 s{sST}, s{sX}, 2
s_add_u32 s{sST}, s{sST}, s{sT2}""")
    if OPT["g2b"]:
        a(f"""s_sub_u32 s{sT1}, s{sJ}, 4
s_and_b32 s{sT1}, s{sT1}, 31
s_and_b32 s{sT2}, s{sX}, 1
s_lshl_b32 s{sT2}, s{sT2}, 2
s_lshr_b32 s{sDT2}, s{sT1}, 3
s_add_u32 s{sDT2}, s{sDT2}, s{sT2}
s_and_b32 s{sST}, s{sT1}, 7
s_add_u32 s{sT2}, s{sT2}, s{sST}
s_cmp_ge_u32 s{sT1}, 24
s_cselect_b32 s{sDT2}, 3, s{sDT2}
s_cselect_b32 s{sST}, s{sT2}, s{sST}
s_and_b32 s{sST}, s{sST}, 7
s_lshr_b32 s{sT2}, s{sX}, 1
s_lshl_b32 s{sT2}, s{sT2}, 3
s_add_u32 s{sST}, s{sST}, s{sT2}""")
    a(f"""s_lshl_b32 s{sLN}, s{sX}, 4
s_add_u32 s{sLN}, s{sLN}, s{sJ}
s_sub_u32 s{sLN}, s{sLN}, 8
s_mul_i32 s{sT2}, s{sT0}, 7
s_sub_u32 s{sT2}, 28, s{sT2}
s_cmp_lt_u32 s{sJ}, s{sT2}
s_cselect_b32 s{sR1}, 1, 0
s_sub_u32 s{sT2}, s{sJ}, 8
s_cmp_lt_u32 s{sT2}, 16
s_cselect_b32 s{sRL}, 1, 0
s_min_u32 s{sPAIR}, s{sPAIR}, 223
s_min_u32 s{sNT}, s{sNT}, 27
s_mov_b32 s{sM1}, 0xaaaaaaaa
s_mov_b32 s{sM1 + 1}, 0xaaaaaaaa
s_mov_b32 s{sM2}, 0xcccccccc
s_mov_b32 s{sM2 + 1}, 0xcccccccc""")
    a("s_waitcnt lgkmcnt(0)")
    if OPT["fixdur"] or OPT["stamps"]:
        a("s_mov_b32 s101, s50")
    a("s_mov_b32 s0, 0xffff0000\ns_mov_b32 s1, 0xffff")
    a(f"""s_lshl_b32 s{sT0}, s{sPAIR}, 2
s_load_dword s{sLDT}, {sp(P_LDT)}, s{sT0}
s_load_dword s{sD0}, {sp(P_DSK)}, s{sT0}""")
    kgen_loads()
    for n, p, size in ((S_X0, P_U, 1835008), (S_WS, P_WS, WS_BYTES), (S_OUT, P_OUT, 1835008)):
        a(f"s_mov_b32 s{n}, s{p}\ns_mov_b32 s{n + 1}, s{p + 1}\ns_mov_b32 s{n + 2}, {size}\ns_mov_b32 s{n + 3}, 0x20000")
    a(f"buffer_load_dwordx2 v[104:105], off, {srd(S_WS)}, 0 offset:{EPOCH} sc1")
    for n, p, role in ((S_W1, P_W1, sR1), (S_W2, P_W2, sR2)):
        a(f"s_mov_b32 s{n}, s{p}\ns_mov_b32 s{n + 1}, s{p + 1}\ns_cmp_lg_u32 s{role}, 0\ns_cselect_b32 s{n + 2}, {0 if OPT['now'] & (1 if n == S_W1 else 2) else 7340032}, 0\ns_mov_b32 s{n + 3}, 0x20000")


sAUX = 75


def code_warm(r):
    if not OPT["warm"]:
        return
    a(f"""s_lshl_b32 s{sT0}, s{sJ}, 2
s_add_u32 s{sT0}, s{sT0}, s{sWAVE}
s_mul_i32 s{sT0}, s{sT0}, 640
v_lshl_add_u32 v{r}, v{vLANE}, 7, s{sT0}
s_mov_b32 s{sT1}, ktab-L_entry+8192
v_min_u32 v{r}, s{sT1}, v{r}
s_sub_u32 s28, s{sTAB}, ktab-L_entry
s_subb_u32 s29, s{sTAB + 1}, 0
s_mov_b64 exec, 31
global_load_dword v{r}, v{r}, s[28:29]
s_mov_b64 exec, -1""")


def page_warm(r):
    if not OPT["tlb"]:
        return
    a(f"""v_lshlrev_b32 v{r}, 21, v{vLANE}
v_add_u32 v{r}, 0x1fff80, v{r}
s_mov_b64 exec, 0x3ff
buffer_load_dword v{r}, v{r}, {srd(S_WS)}, 0 offen
s_mov_b64 exec, 1
buffer_load_dword v{r + 1}, off, {srd(S_OUT)}, 0
global_load_dword v{r + 2}, v{vLANE}, {sp(P_B1)}
global_load_dword v{r + 3}, v{vLANE}, {sp(P_B2)}
s_mov_b64 exec, -1""")


def fill(base, n, r, sidx, stride, tag="st0"):
    a(f"""s_lshl_b32 s{sT0}, s{sidx}, 12
s_lshl_b32 s{sT1}, s{sWAVE}, 10
s_add_u32 s{sT0}, s{sT0}, s{sT1}
s_add_u32 s{sT0}, s{sT0}, {base}""")
    for k in range(4):
        a(f"v_mov_b32 v{r + k}, -1")
    for k in range(n):
        a(f"buffer_store_dwordx4 {vr(r, 4)}, v{vL16}, {srd(S_WS)}, s{sT0} offen sc1{' nt' if OPT['fnt'] else ''}", tag=tag)
        if k + 1 < n:
            a(f"s_add_u32 s{sT0}, s{sT0}, {stride}")


def aux_loads():
    a(f"""s_and_b32 s{sAUX}, s{sJ}, 3
s_lshl_b32 s{sAUX}, s{sAUX}, 3
s_add_u32 s{sAUX}, s{sAUX}, s{sX}
s_lshl_b32 s16, s{sAUX}, 2
s_add_u32 s16, s16, s{sWAVE}
s_mul_i32 s{sT1}, s16, {16 * 896}
s_mul_i32 s17, s{sWAVE}, {16 * 912}
s_mov_b32 m0, s17
s_mov_b32 exec_hi, 0xffffff""")
    for k in range(16):
        if k:
            a(f"s_add_u32 m0, m0, 912\ns_add_u32 s{sT1}, s{sT1}, 896")
        a(f"buffer_load_dwordx4 v{vL16}, {srd(S_X0)}, s{sT1} offen {'nt ' if OPT['xnt'] & 2 else ''}lds", res_w=[f"x0"])
    a("s_mov_b64 exec, -1")


def aux_work():
    XR = 8
    a(f"""v_mov_b32 v76, 0
v_mov_b32 v77, 0
v_mov_b32 v78, 0
v_mov_b32 v79, 0
s_lshl_b32 s{sT1}, s16, {8 if emode(4) == "C" else 7}
s_add_u32 s{sT1}, s{sT1}, {ST1}
s_lshl_b32 s18, s{sAUX}, 7
s_add_u32 s18, s18, {ST0}
s_mov_b64 exec, {"0xffff" if emode(4) == "C" else "0xff"}""")
    a(f"buffer_store_dwordx4 v[76:79], v{vL16}, {srd(S_WS)}, s{sT1} offen sc1", tag="st0")
    a(f"""s_mov_b64 exec, -1
v_and_b32 v2, 15, v{vLANE}
v_lshrrev_b32 v3, 4, v{vLANE}
v_mul_u32_u24 v4, 912, v2
v_lshl_add_u32 v4, v3, 4, v4
v_add_u32 v4, s17, v4
v_lshrrev_b32 v6, 2, v2
v_cmp_eq_u32 vcc, v6, v3
v_bfe_u32 v6, v2, 1, 2
v_lshlrev_b32 v6, 7, v6
v_lshrrev_b32 v7, 3, v2
v_lshl_add_u32 v6, v7, 4, v6
v_and_b32 v7, 1, v2
v_lshl_add_u32 v6, v7, 2, v6
s_lshl_b32 s{sT0}, s{sWAVE}, 5
s_add_u32 s{sT0}, s{sT0}, 60000
v_add_u32 v6, s{sT0}, v6
v_mov_b32 v7, 61024
v_cndmask_b32 v6, v7, v6, vcc
v_lshrrev_b32 v117, 3, v{vLANE}
v_cmp_eq_u32 vcc, s{sWAVE}, v117
v_lshlrev_b32 v117, 12, v117
v_and_b32 v7, 7, v{vLANE}
v_lshl_add_u32 v117, v7, 4, v117
v_mov_b32 v7, {OOB}
v_cndmask_b32 v117, v7, v117, vcc
v_mov_b32 v80, 0x3f803f80
v_mov_b32 v81, 0x3f803f80
v_mov_b32 v82, 0x3f803f80
v_mov_b32 v83, 0x3f803f80""")
    if OPT["stamps"] == 1:
        a.wait_vm0()
    stamp("aux data")
    for k in range(14):
        a(f"ds_read_b128 {vr(XR + 4 * k, 4)}, v4 offset:{64 * k}", res_r=["x0"])
    for k in range(14):
        x = vr(XR + 4 * k, 4)
        a(f"v_mfma_f32_16x16x32_bf16 v[64:67], v[80:83], {x}, {'v[64:67]' if k else 0}")
        a(f"v_mfma_f32_16x16x32_bf16 v[68:71], {x}, {x}, {'v[68:71]' if k else 0}")
    a(f"""v_cndmask_b32 v68, v68, v69, {sp(sM1)}
v_cndmask_b32 v70, v70, v71, {sp(sM1)}
v_cndmask_b32 v68, v68, v70, {sp(sM2)}""")
    a("ds_write2_b32 v6, v64, v68 offset0:0 offset1:2")
    a.barrier()
    a(f"ds_read_b128 v[64:67], v{vL16} offset:60000")
    a(f"buffer_store_dwordx4 v[64:67], v117, {srd(S_WS)}, s18 offen sc1", tag="st0")
    stamp("aux st")
    nonce_take()
    flag_put(0, f"s_add_u32 s{sT0}, s{sAUX}, 224\ns_lshl_b32 s{sT0}, s{sT0}, 6", 72, "st0")


def xt_loads():
    a(f"""s_lshl_b32 s{sT0}, s{sPAIR}, 1
s_lshr_b32 s{sT1}, s{sWAVE}, 1
s_add_u32 s{sT0}, s{sT0}, s{sT1}
s_mul_i32 s{sT1}, s{sT0}, 9363
s_lshr_b32 s{sT1}, s{sT1}, 16
s_mul_i32 s{sT2}, s{sT1}, 7
s_sub_u32 s{sT0}, s{sT0}, s{sT2}
s_lshl_b32 s{sT0}, s{sT0}, 1
s_and_b32 s{sT2}, s{sWAVE}, 1
s_add_u32 s{sT0}, s{sT0}, s{sT2}
s_mul_i32 s{sT2}, s{sT1}, {32 * 896}
s_lshl_b32 s{sT3}, s{sT0}, 6
s_add_u32 s{sT2}, s{sT2}, s{sT3}
v_lshrrev_b32 v2, 2, v{vLANE}
v_mul_u32_u24 v2, 896, v2
v_and_b32 v3, 3, v{vLANE}
v_lshl_add_u32 v2, v3, 4, v2
s_mul_i32 s22, s{sWAVE}, {GST}
s_mov_b32 m0, s22
s_mul_i32 s23, s{sT1}, {BS}""")
    a(f"buffer_load_dwordx4 v2, {srd(S_X0)}, s{sT2} offen {'nt ' if OPT['xnt'] & 1 else ''}lds", res_w=["x0"])
    a(f"s_add_u32 m0, m0, 1024\ns_add_u32 s{sT2}, s{sT2}, {16 * 896}")
    a(f"buffer_load_dwordx4 v2, {srd(S_X0)}, s{sT2} offen {'nt ' if OPT['xnt'] & 1 else ''}lds", res_w=["x0"])
    a(f"""s_lshl_b32 s{sT0}, s{sT0}, 11
s_add_u32 s23, s23, s{sT0}
s_add_u32 s23, s23, {X0}
v_lshrrev_b32 v2, 4, v{vLANE}
v_bfe_u32 v36, v{vLANE}, 2, 2
v_lshl_add_u32 v36, v2, 3, v36
v_lshlrev_b32 v36, 6, v36
v_lshl_add_u32 v36, v3, 3, v36
v_add_u32 v36, s22, v36
v_and_b32 v37, 15, v{vLANE}
v_lshlrev_b32 v37, 6, v37
v_lshl_add_u32 v37, v2, 4, v37""")


def xt_work():
    for u in range(2):
        for j in range(2):
            a(f"ds_read_b64_tr_b16 {vr(40 + 4 * u + 2 * j, 2)}, v36 offset:{j * 256 + u * 32}", res_r=["x0"])
    for u in range(2):
        a(f"buffer_store_dwordx4 {vr(40 + 4 * u, 4)}, v37, {srd(S_WS)}, s23 offen offset:{1024 * u} sc1", tag="st0")


def xt_poll_addr(ra, t):
    a(f"""s_lshl_b32 s{sT0}, s{sWAVE}, 4
v_and_b32 v{t}, 15, v{vLANE}
v_add_u32 v{t}, s{sT0}, v{t}
v_mul_u32_u24 v{t}, 7, v{t}
s_lshr_b32 s{sT0}, s{sPAIR}, 5
v_add_u32 v{t}, s{sT0}, v{t}
v_lshrrev_b32 v{t}, 1, v{t}
s_lshl_b32 s{sT0}, s{sWAVE}, 3
s_add_u32 s{sT0}, s{sT0}, 224
v_and_b32 v{ra}, 7, v{vLANE}
v_add_u32 v{ra}, s{sT0}, v{ra}
v_cmp_gt_u32 vcc, 16, v{vLANE}
v_cndmask_b32 v{ra}, v{ra}, v{t}, vcc""")


def e1_poll_addr(ra):
    a(f"s_lshl_b32 s{sT0}, s{sWAVE}, 6\nv_add_u32 v{ra}, s{sT0}, v{vLANE}")


def nonce_take():
    a(f"v_readfirstlane_b32 s{sNONCE}, v104\nv_readfirstlane_b32 s{sNONCE + 1}, v105")
    a(f"s_add_u32 s{sNONCE}, s{sNONCE}, 1")
    a(f"s_addc_u32 s{sNONCE + 1}, s{sNONCE + 1}, 0")


def nonce_retire():
    l = label("nr")
    a(f"s_or_b32 s{sT0}, s2, s{sWAVE}")
    a(f"s_cmp_lg_u32 s{sT0}, 32")
    a(f"s_cbranch_scc1 {l}")
    a(f"v_mov_b32 v110, s{sNONCE}\nv_mov_b32 v111, s{sNONCE + 1}\ns_mov_b64 exec, 1")
    a(f"buffer_store_dwordx2 v[110:111], off, {srd(S_WS)}, 0 offset:{EPOCH} sc1", optional=True)
    a("s_mov_b64 exec, -1")
    a(f"{l}:")


def flag_put(edge, sprod, r, tag):
    a(f"s_lshl_b32 s{sT0}, s{sprod}, 6" if isinstance(sprod, int) else sprod)
    a(f"""s_lshl_b32 s{sT1}, s{sWAVE}, 15
s_add_u32 s{sT0}, s{sT0}, s{sT1}
s_add_u32 s{sT0}, s{sT0}, {FL + edge * 0x20000}
v_lshlrev_b32 v{r + 4}, 12, v{vLANE}
v_and_b32 v{r + 4}, 0x4000, v{r + 4}
v_and_b32 v{r}, 3, v{vLANE}
v_lshl_add_u32 v{r + 4}, v{r}, 4, v{r + 4}
v_mov_b32 v{r}, s{sNONCE}
v_mov_b32 v{r + 1}, s{sNONCE + 1}
v_mov_b32 v{r + 2}, s{sNONCE}
v_mov_b32 v{r + 3}, s{sNONCE + 1}""")
    a.wait_tag(tag)
    a.barrier()
    a("s_mov_b64 exec, 0xff")
    a(f"buffer_store_dwordx4 {vr(r, 4)}, v{r + 4}, {srd(S_WS)}, s{sT0} offen sc1", tag="flag")
    a("s_mov_b64 exec, -1")


def emode(e):
    return OPT["em"][e - 1]


def hinted(e):
    return emode(e) in "HSMGC"


def sentinel(e):
    return emode(e) in "SDM"


def flagged(e):
    return emode(e) in "FHG"


def armed(layer):
    return any(sentinel(e + 4 * layer) for e in (1, 2, 3))


def wait_edge(e, r, ra_full, ra_samp):
    if hinted(e):
        poll_issue(e + 10, r, ra_samp)
        poll_take(r, ra_samp)
    elif emode(e) == "D":
        a.wait_tag("pub")
    else:
        a.wait_tag("flag")
    if flagged(e):
        poll_issue(e, r, ra_full)
        poll_take(r, ra_full)


def hint_prep(edge, sprod, r):
    a(f"s_lshl_b32 s{sT0}, s{sprod}, 6" if isinstance(sprod, int) else sprod)
    a(f"""s_lshl_b32 s{sT1}, s{sWAVE}, 15
s_add_u32 s{sT0}, s{sT0}, s{sT1}
s_add_u32 s{sT0}, s{sT0}, {FL + edge * 0x20000}
v_lshlrev_b32 v{r + 4}, 12, v{vLANE}
v_and_b32 v{r + 4}, 0x4000, v{r + 4}
v_and_b32 v{r}, 3, v{vLANE}
v_lshl_add_u32 v{r + 4}, v{r}, 4, v{r + 4}
v_add_u32 v{r + 4}, s{sT0}, v{r + 4}
v_mov_b32 v{r}, s{sNONCE}
v_mov_b32 v{r + 1}, s{sNONCE + 1}
v_mov_b32 v{r + 2}, s{sNONCE}
v_mov_b32 v{r + 3}, s{sNONCE + 1}""")


def hint_put(r):
    a("s_mov_b64 exec, 0xff")
    a(f"buffer_store_dwordx4 {vr(r, 4)}, v{r + 4}, {srd(S_WS)}, 0 offen sc1", tag="hint")
    a("s_mov_b64 exec, -1")


def poll_issue(edge, r, ra=None):
    ra = r + 2 if ra is None else ra
    a(f"""s_lshl_b32 s{sT3}, s{sX}, 14
s_add_u32 s{sT3}, s{sT3}, {FL + edge * 0x20000}
v_lshl_add_u32 v{ra}, v{ra}, 6, s{sT3}
buffer_load_dwordx2 {vr(r, 2)}, v{ra}, {srd(S_WS)}, 0 offen sc1""")


def poll_take(r, ra=None):
    ra = r + 2 if ra is None else ra
    ok, lp = label("pok"), label("plp")
    a(f"v_cmp_ne_u64 vcc, {sp(sNONCE)}, {vr(r, 2)}")
    a(f"s_cbranch_vccz {ok}")
    a(f"s_mov_b32 s{sCNT}, 0")
    a(f"{lp}:")
    if OPT["slp"]:
        a(f"s_sleep {OPT['slp']}")
    a(f"buffer_load_dwordx2 {vr(r, 2)}, v{ra}, {srd(S_WS)}, 0 offen sc1")
    a("s_waitcnt vmcnt(0)")
    a(f"v_cmp_ne_u64 vcc, {sp(sNONCE)}, {vr(r, 2)}")
    a(f"s_add_u32 s{sCNT}, s{sCNT}, 1")
    a(f"s_cbranch_vccz {ok}")
    a(f"s_cmp_lt_u32 s{sCNT}, 0x100000")
    a(f"s_cbranch_scc1 {lp}")
    a(f"{ok}:")


sW1O, sW2O = 98, 99
sROT1, sROT2 = 33, 35
sW1E, sW2E = 78, 79


def w_setup():
    a(f"""v_lshrrev_b32 v2, 3, v{vLANE}
v_and_b32 v3, 7, v{vLANE}
v_bfe_u32 v4, v{vLANE}, 4, 1
v_lshlrev_b32 v4, 2, v4
v_xor_b32 v3, v3, v4
v_lshlrev_b32 v3, 4, v3
v_mul_u32_u24 v{vD1}, 3584, v2
v_add_u32 v{vD1}, v{vD1}, v3
v_lshl_add_u32 v{vD2}, v2, 12, v3
v_bfe_u32 v2, v{vLANE}, 2, 2
v_lshrrev_b32 v3, 5, v{vLANE}
v_bfe_u32 v4, v{vLANE}, 4, 1
v_and_b32 v5, 3, v{vLANE}
v_lshlrev_b32 v5, 3, v5
v_lshl_add_u32 v5, v4, 5, v5
v_lshrrev_b32 v4, 1, v2
v_lshl_add_u32 v5, v4, 6, v5
s_lshr_b32 s{sT0}, s{sWAVE}, 1
s_lshl_b32 s{sT0}, s{sT0}, 6
v_xor_b32 v5, s{sT0}, v5
v_lshl_add_u32 v5, v2, 7, v5
s_mul_i32 s{sT1}, s{sWAVE}, 24576
s_add_u32 s{sT1}, s{sT1}, {W2L}
v_add_u32 v5, s{sT1}, v5
v_lshl_add_u32 v{vT1a}, v3, 10, v5
v_xor_b32 v{vT1b}, 64, v{vT1a}
v_lshl_add_u32 v{vT2a}, v3, 9, v5
v_xor_b32 v{vT2b}, 64, v{vT2a}
s_mul_i32 s{sW1O}, s{sWAVE}, {512 * 3584}
s_lshl_b32 s{sT0}, s{sNT}, 7
s_add_u32 s{sW1O}, s{sW1O}, s{sT0}
s_mul_i32 s{sW2O}, s{sWAVE}, {448 * 4096}
s_lshl_b32 s{sT0}, s{sST}, 7
s_add_u32 s{sW2O}, s{sW2O}, s{sT0}
s_mov_b32 s{sWOFF}, s{sT1}""")
    if OPT["rot"] and OPT["map18"] == 1:
        if OPT["rot"] == 2:
            a(f"""s_add_u32 s{sROT1}, s{sDT1}, s{sX}
s_and_b32 s{sROT1}, s{sROT1}, 7
s_add_u32 s{sROT2}, s{sDT2}, s{sX}
s_cmp_ge_u32 s{sROT2}, 7
s_cselect_b32 s{sT0}, 7, 0
s_sub_u32 s{sROT2}, s{sROT2}, s{sT0}""")
        else:
            a(f"s_mov_b32 s{sROT1}, s{sDT1}\ns_mov_b32 s{sROT2}, s{sDT2}")
    elif OPT["rot"] == 3:
        a(f"""s_and_b32 s{sT0}, s{sDT1}, 3
s_lshr_b32 s{sT1}, s{sDT1}, 2
s_add_u32 s{sT1}, s{sT1}, 2
s_mul_i32 s{sROT1}, s{sT0}, s{sT1}
s_min_u32 s{sROT1}, s{sROT1}, 7
s_and_b32 s{sT0}, s{sDT2}, 3
s_lshr_b32 s{sT1}, s{sDT2}, 2
s_add_u32 s{sT1}, s{sT1}, 2
s_mul_i32 s{sROT2}, s{sT0}, s{sT1}
s_min_u32 s{sROT2}, s{sROT2}, 5""")
        if OPT["map18"] == 2:
            a(f"s_mov_b32 s{sROT2}, s{sDT2}")
    elif OPT["rot"]:
        a(f"""s_and_b32 s{sT0}, s{sDT1}, 3
s_lshl_b32 s{sT0}, s{sT0}, 1
s_lshr_b32 s{sT1}, s{sDT1}, 2
s_add_u32 s{sT0}, s{sT0}, s{sT1}
s_and_b32 s{sROT1}, s{sT0}, 7
s_and_b32 s{sT0}, s{sDT2}, 3
s_lshl_b32 s{sT0}, s{sT0}, 1
s_lshr_b32 s{sT1}, s{sDT2}, 2
s_add_u32 s{sT0}, s{sT0}, s{sT1}
s_min_u32 s{sROT2}, s{sT0}, 6""")
        if OPT["map18"] == 2:
            a(f"s_mov_b32 s{sROT2}, s{sDT2}")
    else:
        a(f"s_mov_b32 s{sROT1}, 0\ns_mov_b32 s{sROT2}, 0")
    if OPT["rota"] & 1:
        a(f"s_and_b32 s{sT0}, s{sNT}, 1\ns_lshl_b32 s{sT0}, s{sT0}, 2\ns_add_u32 s{sROT1}, s{sROT1}, s{sT0}\ns_and_b32 s{sROT1}, s{sROT1}, 7")
    if OPT["rota"] & 2:
        a(f"s_and_b32 s{sT0}, s{sST}, 1\ns_mul_i32 s{sT0}, s{sT0}, 3\ns_add_u32 s{sROT2}, s{sROT2}, s{sT0}\ns_cmp_ge_u32 s{sROT2}, 7\ns_cselect_b32 s{sT0}, 7, 0\ns_sub_u32 s{sROT2}, s{sROT2}, s{sT0}")
    a(f"""s_add_u32 s{sW1E}, s{sW1O}, {512 * 3584}
s_mul_i32 s{sT0}, s{sROT1}, {64 * 3584}
s_add_u32 s{sW1O}, s{sW1O}, s{sT0}
s_add_u32 s{sW2E}, s{sW2O}, {448 * 4096}
s_mul_i32 s{sT0}, s{sROT2}, {64 * 4096}
s_add_u32 s{sW2O}, s{sW2O}, s{sT0}""")


WORDER = list(range(0, 4)) + list(range(32, 36)) + list(range(4, 32)) + list(range(36, 60))


def w_dma(pos, half):
    return w_dma_n(WORDER[pos], pos % 12, half, pos)


def w_dma_n(n, slot, half, pos=99):
    pol = ("", "nt ", "sc1 ", "sc0 sc1 ", "sc0 sc1 nt ")[OPT["wnt"]] if (OPT["wnta"] or pos < 2 * OPT["wg"]) else ""
    g = [Ins(f"s_add_u32 m0, s{sWOFF}, {slot * 2048 + half * 1024}")]
    if n < 32:
        g.append(Ins(f"s_add_u32 s{sW1O}, s{sW1O}, {8 * 3584}") if (n or half) else Ins("s_nop 0"))
        if n and n % 4 == 0 and half == 0:
            g += [Ins(f"s_cmp_eq_u32 s{sW1O}, s{sW1E}"), Ins(f"s_cselect_b32 s3, {512 * 3584}, 0"), Ins(f"s_sub_u32 s{sW1O}, s{sW1O}, s3")]
        g.append(Ins(f"buffer_load_dwordx4 v{vD1}, {srd(S_W1)}, s{sW1O} offen {pol}lds", res_w=[f"slot{slot}"]))
    else:
        g.append(Ins(f"s_add_u32 s{sW2O}, s{sW2O}, {8 * 4096}") if (n > 32 or half) else Ins("s_nop 0"))
        if n > 32 and n % 4 == 0 and half == 0:
            g += [Ins(f"s_cmp_eq_u32 s{sW2O}, s{sW2E}"), Ins(f"s_cselect_b32 s3, {448 * 4096}, 0"), Ins(f"s_sub_u32 s{sW2O}, s{sW2O}, s3")]
        g.append(Ins(f"buffer_load_dwordx4 v{vD2}, {srd(S_W2)}, s{sW2O} offen {pol}lds", res_w=[f"slot{slot}"]))
    return g


def w_tr(pos):
    return w_tr_n(WORDER[pos], pos % 12)


def wone(n0, n1, nt):
    g = [w_dma_n(n, n % 12, h) for n in range(n0, n0 + 12) for h in range(2)]
    for n in range(n0, nt + 1):
        if n < nt:
            g.append(w_tr_n(n, n % 12))
        if n > n0 and n + 11 < n1:
            g += [w_dma_n(n + 11, (n + 11) % 12, h) for h in range(2)]
    return g


def w_tr_n(n, slot):
    g = []
    for nb in range(2):
        for j in range(2):
            if n < 32:
                r = (n * 2 + nb) * 4 + 2 * j
                g.append(Ins(f"ds_read_b64_tr_b16 a[{r}:{r + 1}], v{(vT1a, vT1b)[nb]} offset:{slot * 2048 + j * 512}", res_r=[f"slot{slot}"]))
            else:
                r = 128 + ((n - 32) * 2 + nb) * 4 + 2 * j
                g.append(Ins(f"ds_read_b64_tr_b16 v[{r}:{r + 1}], v{(vT2a, vT2b)[nb]} offset:{slot * 2048 + j * 1024}", res_r=[f"slot{slot}"]))
    return g


def w_all_upfront():
    for n in range(12):
        a.put(w_dma(n, 0)); a.put(w_dma(n, 1))
    for n in range(48):
        a.put(w_tr(n))
        if n >= 1:
            a.put(w_dma(n + 11, 0)); a.put(w_dma(n + 11, 1))
    a.put(w_dma(59, 0)); a.put(w_dma(59, 1))
    a.wait_vm0()
    a.wait_lgkm0()


GX = 80
CS = 64
PR = 56
TAB = 104


def kgen_loads():
    a(f"""s_lshl_b32 s{sT0}, s{sPAIR}, 10
s_lshl_b32 s{sT1}, s{sWAVE}, 8
s_add_u32 s{sT0}, s{sT0}, s{sT1}
v_lshl_add_u32 v3, v{vLANE}, 2, s{sT0}""")
    for k, p in enumerate((P_ARE, P_AIM, P_BRE, P_BIM, P_CRE, P_CIM)):
        a(f"global_load_dword v{PR + k}, v3, {sp(p)}{' nt' if OPT['pnt'] else ''}")


def kgen_table_addr():
    l = label("pc")
    a(f"s_getpc_b64 {sp(sTAB)}")
    a(f"{l}:")
    a(f"s_add_u32 s{sTAB}, s{sTAB}, ktab-{l}")
    a(f"s_addc_u32 s{sTAB + 1}, s{sTAB + 1}, 0")


def kgen_table_load():
    kgen_table_addr()
    a(f"s_lshr_b32 s{sT0}, s{sWAVE}, 1\ns_lshl_b32 s{sT0}, s{sT0}, 5\nv_lshl_add_u32 v75, v0, 5, s{sT0}")


KBG = []


def kgen(hooks):
    F = {e: 2 * e for e in range(1, 8)}
    Qr = {1: 16, 2: 18, 3: 20, 4: 22}
    QN = [24, 26]
    Z1, Z2, C0, C1 = 28, 30, 32, 34
    CN = [36, 38]
    T0, T1 = 62, 64
    CV = [66, 67, 68, 69]
    A2, B2, DT = 70, 71, 72
    ACC = 76
    QF = 88
    PF = 40
    vG, vF = 73, 74
    a(f"""s_mul_i32 s{sT0}, s{sWAVE}, {GST}
v_lshl_add_u32 v{vG}, v{vLANE}, 2, s{sT0}
v_and_b32 v2, 15, v{vLANE}
v_mul_u32_u24 v2, {GROW}, v2
v_lshrrev_b32 v3, 4, v{vLANE}
v_lshl_add_u32 v2, v3, 4, v2
v_add_u32 v{vF}, s{sT0}, v2""")
    if OPT["atid"]:
        a(f"s_mov_b32 m0, s22")
    a.begin()
    a(f"""s_lshr_b32 s{sT0}, s{sWAVE}, 1
s_lshl_b32 s{sT0}, s{sT0}, 4
s_lshr_b32 s{sT0}, s{sLDT}, s{sT0}
s_lshl_b32 s{sT0}, s{sT0}, 16
v_mov_b32 v2, {f32(math.log2(math.e))}
v_mul_f32 v2, s{sT0}, v2
v_exp_f32 v2, v2
v_cvt_pk_bf16_f32 v2, v2, v2
v_lshlrev_b32 v{DT}, 16, v2
s_and_b32 s{sD1}, s{sD0}, 0xffff0000
s_lshl_b32 s{sD0}, s{sD0}, 16""")
    cvi = [0]

    def hook(name):
        if name is not None and name not in hooks:
            return
        a_body = space_ds(a.end(), OPT["lag"], OPT["gap"])
        if OPT["lazy"]:
            a_body = unlazy(a_body, name is None)
        m, rest = merge(a_body, KBG[:], 20, OPT["ev_kg"])
        del KBG[:]
        a.put(m)
        put_all(rest)
        if name is not None:
            hooks[name]()
            a.begin()

    def row(r, src, neg=False):
        c = CV[cvi[0] % 4]
        cvi[0] += 1
        a(f"v_cvt_pk_bf16_f32 v{c}, v{src}, {'-' if neg else ''}v{src + 1}")
        a(f"ds_write_addtid_b32 v{c} offset:{r * GROW}" if OPT["atid"] else f"ds_write_b32 v{vG}, v{c} offset:{r * GROW}")

    def lazy(lines, now=False):
        if now or not OPT["lazy"]:
            for l in lines:
                a(l)
        else:
            a.pseudo("lazy", [Ins(l) for l in lines])

    def reads(dst, tile, now=False):
        lazy([f"ds_read_b128 {vr(dst + 4 * ks, 4)}, v{vF} offset:{tile * 16 * GROW + ks * 64}" for ks in range(4)], now)

    def mfmas(t, first, now=False):
        lazy([f"v_mfma_f32_16x16x32_bf16 {vr(ACC + 4 * t, 4)}, {vr(PF + 4 * ks, 4)}, {vr(QF + 4 * ks, 4)}, {'0' if (first and ks == 0) else vr(ACC + 4 * t, 4)}" for ks in range(4)], now)

    queue = []

    def unlazy(lst, last):
        out, k = [], 0
        for i in lst:
            if i.kind == "pseudo" and i.op == "lazy":
                queue.extend(i.tag)
                continue
            out.append(i)
            k += 1
            if queue and k % OPT["lazy"] == 0 and i.kind in ("valu", "trans", "dsw") and "exec" not in i.defs:
                out.append(queue.pop(0))
        if last:
            out += queue
            del queue[:]
        return out

    def direct(d, scale):
        if scale != 1:
            a(f"v_mul_f32 v{T0}, {f32(scale)}, v{A2}")
            a(f"v_mul_f32 v{T1}, {f32(scale)}, v{B2}")
            x, y = T0, T1
        else:
            x, y = A2, B2
        a(f"v_fract_f32 v{T1}, v{y}")
        a(f"v_exp_f32 v{T0}, v{x}")
        a(f"v_cos_f32 v{d}, v{T1}")
        a(f"v_sin_f32 v{d + 1}, v{T1}")
        a(f"v_pk_mul_f32 {vr(d, 2)}, {vr(d, 2)}, {vr(T0, 2)} op_sel_hi:[1,0]")

    for rd in range(2):
        def up(d, s):
            a(f"v_lshlrev_b32 v{d}, 16, v{s}" if rd == 0 else f"v_and_b32 v{d}, s0, v{s}")
        up(A2, PR); up(B2, PR + 1)
        up(QN[0], PR + 2); up(QN[0] + 1, PR + 3)
        up(QN[1], PR + 4); up(QN[1] + 1, PR + 5)
        a(f"v_mul_f32 v{A2}, v{DT}, v{A2}")
        a(f"v_mul_f32 v{B2}, v{DT}, v{B2}")
        a(f"v_pk_mul_f32 {vr(QN[0], 2)}, {vr(QN[0], 2)}, {vr(DT, 2)} op_sel_hi:[1,0]")
        a(f"v_mul_f32 v{A2}, {f32(math.log2(math.e))}, v{A2}")
        a(f"v_mul_f32 v{B2}, {f32(1 / (2 * math.pi))}, v{B2}")
        cmul2((C0, QN[1], QN[0]))
        direct(F[1], 1)
        if rd == 1:
            mfmas(2, True)
        direct(Z1, 128)
        hook(5 * rd)
        cmul2((F[2], F[1], F[1]), (Z2, Z1, Z1))
        cmul2((F[4], F[2], F[2]), (F[3], F[2], F[1]))
        cmul2((Qr[1], F[4], F[4]), (C1, C0, Z1))
        a(f"v_mov_b32 v{CV[3]}, 0x3f80")
        a(f"ds_write_b32 v{vG}, v{CV[3]}")
        cmul2((Qr[2], Qr[1], Qr[1]), (F[5], F[4], F[1]))
        row(1, Qr[1], True)
        cmul2((Qr[3], Qr[2], Qr[1]), (Qr[4], Qr[2], Qr[2]))
        row(2, Qr[2], True)
        cmul2((F[6], F[4], F[2]), (F[7], F[4], F[3]))
        row(3, Qr[3], True)
        row(4, Qr[4], True)
        cur = {1: Qr[1], 2: Qr[2], 3: Qr[3], 0: Qr[4]}
        free = list(QN) + [CN[0]]
        j = 5
        while j < 16:
            js = [j] + ([j + 1] if j + 1 < 16 else [])
            ps = []
            for jj in js:
                d = free.pop(0)
                ps.append((d, cur[jj % 4], Qr[4]))
            cmul2(*ps)
            for jj, p in zip(js, ps):
                if cur[jj % 4] != Qr[4]:
                    free.append(cur[jj % 4])
                cur[jj % 4] = p[0]
                row(jj, p[0], True)
            j += 2
        reads(QF, 0)
        hook(5 * rd + 1)
        TA, TB = QN
        row(16, C0); row(24, C1)
        for e in range(1, 8):
            cmul2((TA, C0, F[e]), (TB, C1, F[e]))
            row(16 + e, TA); row(24 + e, TB)
        reads(PF, 1)
        hook(5 * rd + 2)
        ca, cb = C0, C1
        na, nb_ = CN
        def adv():
            nonlocal ca, cb, na, nb_
            cmul2((na, ca, Z2), (nb_, cb, Z2))
            ca, cb, na, nb_ = na, nb_, ca, cb
        adv()
        row(32, ca); row(36, cb)
        for e in range(1, 4):
            cmul2((TA, ca, F[2 * e]), (TB, cb, F[2 * e]))
            row(32 + e, TA); row(36 + e, TB)
        mfmas(0, rd == 0)
        for k in range(2):
            adv()
            row(40 + 4 * k, ca); row(42 + 4 * k, cb)
            cmul2((TA, ca, F[4]), (TB, cb, F[4]))
            row(41 + 4 * k, TA); row(43 + 4 * k, TB)
        reads(PF, 2)
        hook(5 * rd + 3)
        for k in range(4):
            adv()
            row(48 + 2 * k, ca); row(49 + 2 * k, cb)
            if k == 2 and OPT["lazy"]:
                mfmas(1, rd == 0)
        cmul2((na, ca, Z2))
        row(56, na)
        if not OPT["lazy"]:
            mfmas(1, rd == 0)
        reads(PF, 3)
        hook(5 * rd + 4)
    hook(None)
    a(f"s_mul_i32 s{sT0}, s{sWAVE}, {GST}")
    a(f"v_add_u32 v{vF}, s{sT0}, v{vL16}")
    a(f"v_mov_b32 v{CV[0]}, 0")
    for k in range(8):
        a(f"v_and_b32 v{2 + 2 * k}, s1, v{TAB + k}")
        a(f"v_lshrrev_b32 v{3 + 2 * k}, 16, v{TAB + k}")
    for t in range(2):
        a(f"ds_write_b128 v{vF}, {vr(ACC + 4 * t, 4)} offset:{TOFF + t * 1024}")
    mfmas(2, False, True)
    a(f"ds_write_b32 v{vG}, v{CV[0]} offset:{TOFF + 3072}")
    a("v_and_b32 v18, 0xffff, v0\nv_lshrrev_b32 v19, 16, v0\nv_and_b32 v20, 0xffff, v1")
    a(f"ds_write_b128 v{vF}, {vr(ACC + 8, 4)} offset:{TOFF + 2048}")


def kzero(r):
    a(f"""v_mov_b32 v{r}, 0
v_mov_b32 v{r + 1}, 0
v_mov_b32 v{r + 2}, 0
v_mov_b32 v{r + 3}, 0
v_bfe_u32 v{r + 4}, v{vLANE}, 1, 3
v_mul_u32_u24 v{r + 4}, {KST}, v{r + 4}
v_and_b32 v{r + 5}, 1, v{vLANE}
v_lshl_add_u32 v{r + 4}, v{r + 5}, 4, v{r + 4}
s_and_b32 s{sT0}, s{sWAVE}, 1
s_mul_i32 s{sT0}, s{sT0}, {UST}
v_add_u32 v{r + 5}, s{sT0}, v{vL16}""")
    return [f"ds_write_b128 v{r + 4}, {vr(r, 4)} offset:4096", f"ds_write_b128 v{r + 5}, {vr(r, 4)} offset:{UB}"]


def kaddr(r):
    a(f"""s_lshr_b32 s{sT0}, s{sWAVE}, 1
s_and_b32 s{sT1}, s{sWAVE}, 1
s_lshl_b32 s{sT1}, s{sT1}, 11
v_lshl_add_u32 v{r + 3}, v{vLANE}, 5, s{sT1}""")
    for c in range(4):
        a(f"s_cmp_lg_u32 s{sT0}, 0")
        a(f"s_cselect_b32 s{sT2}, {KSLOT[1][c]}, {KSLOT[0][c]}")
        a(f"s_mul_i32 s{sT2}, s{sT2}, {KST}")
        a(f"v_add_u32 v{r + c}, s{sT2}, v{r + 3}")


def kexpand(mid):
    AD, VAL = 2, 22
    P0, P1, P2, P3 = 2, 12, 88, 96
    a.barrier()
    for k in range(19):
        a(f"ds_read2st64_b32 {vr(VAL + 2 * k, 2)}, v{AD + k} offset0:{TOFF // 256} offset1:{TOFF // 256 + GST // 256}")
    mid()
    kaddr(60)
    zw = kzero(104)
    if OPT["h_load"] < 10:
        for k in range(24):
            a(f"v_accvgpr_read_b32 v{CS + k}, a{k}")
    for k in range(19):
        a(f"v_add_f32 v{VAL + 2 * k}, v{VAL + 2 * k}, v{VAL + 2 * k + 1}")
        if k:
            a(f"v_cvt_pk_bf16_f32 v{(P0 if k & 1 else P1) + (k - 1) // 2}, v{VAL + 2 * k - 2}, v{VAL + 2 * k}")
    a.barrier()
    a.begin()
    for l in zw:
        a(l)
    for c, P in ((0, P0), (1, P1)):
        a(f"ds_write_b128 v{60 + c}, {vr(P, 4)}")
        a(f"ds_write_b128 v{60 + c}, {vr(P + 4, 4)} offset:16")
    for c, P, src in ((2, P2, P0), (3, P3, P1)):
        for i in range(4):
            a(f"v_pk_mov_b32 {vr(P + 2 * i, 2)}, {vr(src + 2 * i, 2)}, {vr(src + 2 * i + 2, 2)} op_sel:[1,0]")
        a(f"ds_write_b128 v{60 + c}, {vr(P, 4)}")
        a(f"ds_write_b128 v{60 + c}, {vr(P + 4, 4)} offset:16")
    return a.end()


def kcopies():
    R, E, M = 2, 12, 22
    kaddr(40)
    a(f"""ds_read_b128 {vr(R, 4)}, v40
ds_read_b128 {vr(R + 4, 4)}, v40 offset:16
ds_read_b64 {vr(R + 8, 2)}, v40 offset:32""")
    for l in kzero(32):
        a(l)
    for i in range(9):
        a(f"v_alignbit_b32 v{E + i}, v{R + i + 1}, v{R + i}, 16")
    a(f"ds_write_b128 v41, {vr(E, 4)}")
    a(f"ds_write_b128 v41, {vr(E + 4, 4)} offset:16")
    for i in range(4):
        a(f"v_pk_mov_b32 {vr(M + 2 * i, 2)}, {vr(R + 2 * i, 2)}, {vr(R + 2 * i + 2, 2)} op_sel:[1,0]")
    a(f"ds_write_b128 v42, {vr(M, 4)}")
    a(f"ds_write_b128 v42, {vr(M + 4, 4)} offset:16")
    for i in range(4):
        a(f"v_pk_mov_b32 {vr(R + 2 * i, 2)}, {vr(E + 2 * i, 2)}, {vr(E + 2 * i + 2, 2)} op_sel:[1,0]")
    a(f"ds_write_b128 v43, {vr(R, 4)}")
    a(f"ds_write_b128 v43, {vr(R + 4, 4)} offset:16")


cvA, cvB, cvZ, cvXW, cvXR, cvO, cvU, cvX, cvH, cvP = 112, 113, 114, 115, 116, 117, 118, 119, 100, 108
STUBS = []


def conv_poll1():
    r = cvP
    a(f"""v_lshrrev_b32 v{r}, 3, v{vLANE}
v_min_u32 v{r}, 6, v{r}
v_and_b32 v{r + 1}, 7, v{vLANE}
v_lshl_add_u32 v{r + 2}, v{r}, 5, v{r + 1}
s_lshl_b32 s{sT0}, s{sWAVE}, 3
v_add_u32 v{r + 2}, s{sT0}, v{r + 2}
v_and_b32 v{r + 1}, 7, v{vLANE}
v_min_u32 v{r}, 6, v{r + 1}
v_lshl_add_u32 v{r + 3}, v{r}, 5, v{r + 1}
v_add_u32 v{r + 3}, s{sT0}, v{r + 3}""")


def conv_loads():
    for p in range(4):
        a(f"buffer_load_dwordx4 {vr(CS + 4 * p, 4)}, v{vL16}, {srd(S_WS)}, s{16 + p} offen sc1")
    a(f"buffer_load_dwordx4 {vr(GX, 4)}, v{cvX}, {srd(S_WS)}, s20 offen sc1")
    a(f"buffer_load_dwordx4 {vr(GX + 4, 4)}, v{cvX}, {srd(S_WS)}, s20 offen offset:64 sc1")


CS1, GX1 = 64, 96


def conv_counted():
    XF, UF, AL, BE, UP = cXF, cUF, cAL, cBE, cUP
    again, back, stub = label("cca"), label("ccb"), label("ccs")
    xl = [f"buffer_load_dwordx4 {vr(GX1, 4)}, v{cvX}, {srd(S_WS)}, s20 offen sc1", f"buffer_load_dwordx4 {vr(GX1 + 4, 4)}, v{cvX}, {srd(S_WS)}, s20 offen offset:64 sc1"]
    a(f"s_mov_b32 s{sCNT}, 0")
    a(f"{again}:")
    for e in range(8):
        a(f"buffer_load_dwordx4 {vr(CS1 + 4 * e, 4)}, v{vL16}, {srd(S_WS)}, s{22 + e} offen sc1")
        if e == 1 and not OPT["xe"]:
            a(xl[0]); a(xl[1])

    def tok(e):
        S = CS1 + 4 * e
        a(f"v_pk_mul_f32 {vr(S, 2)}, {vr(S, 2)}, {sp(sCA)} op_sel_hi:[1,0]")
        a(f"v_fma_f32 v{S + 3}, -v{S}, v{S}, s{sCB}")
        a(f"v_add_f32 v{S + 1}, v{S + 1}, v{S + 3}")
        a(f"v_max_f32 v{S + 1}, s{sCB}, v{S + 1}")
        a(f"v_rsq_f32 v{AL + e}, v{S + 1}")
    c = [CS1 + 4 * e + 2 for e in range(8)]
    if OPT["cpipe"]:
        for p in range(4):
            tok(2 * p)
            tok(2 * p + 1)
            if p == 0:
                for k in range(8):
                    unpack(XF + 2 * k, XF + 2 * k + 1, GX1 + k)
                a(f"v_max_u32 v63, v{GX1 + 3}, v{GX1 + 7}")
                a(f"v_cmp_eq_u32 s[16:17], -1, v63")
                a(f"v_min_f32 v62, v{c[0]}, v{c[1]}")
            else:
                a(f"v_min3_f32 v62, v62, v{c[2 * p]}, v{c[2 * p + 1]}")
            if p == 3:
                a(f"v_cmp_neq_f32 vcc, {f32(14.0)}, v62")
            if OPT["mr"]:
                m0, m1 = CS1 + 8 * p, CS1 + 8 * p + 4
                a(f"v_cvt_pk_bf16_f32 v{m1}, v{m0}, v{m1}")
                unpack(m0, m1, m1)
            for e in (2 * p, 2 * p + 1):
                a(f"v_mul_f32 v{BE + e}, -v{CS1 + 4 * e}, v{AL + e}")
            for ch in range(2):
                a(f"v_pk_fma_f32 {vr(UF + 8 * ch + 2 * p, 2)}, {vr(XF + 8 * ch + 2 * p, 2)}, {vr(AL + 2 * p, 2)}, {vr(BE + 2 * p, 2)}")
            for ch in range(2):
                a(f"v_cvt_pk_bf16_f32 v{UP + 4 * ch + p}, v{UF + 8 * ch + 2 * p}, v{UF + 8 * ch + 2 * p + 1}")
    else:
        tok(0)
        tok(1)
        for k in range(8):
            unpack(XF + 2 * k, XF + 2 * k + 1, GX1 + k)
        a(f"v_max_u32 v63, v{GX1 + 3}, v{GX1 + 7}")
        a(f"v_cmp_eq_u32 s[16:17], -1, v63")
        for e in range(2, 8):
            tok(e)
        c = [CS1 + 4 * e + 2 for e in range(8)]
        a(f"v_min3_f32 v62, v{c[0]}, v{c[1]}, v{c[2]}\nv_min3_f32 v62, v62, v{c[3]}, v{c[4]}\nv_min3_f32 v62, v62, v{c[5]}, v{c[6]}\nv_min_f32 v62, v62, v{c[7]}")
        a(f"v_cmp_neq_f32 vcc, {f32(14.0)}, v62")
        for e in range(8):
            a(f"v_mul_f32 v{BE + e}, -v{CS1 + 4 * e}, v{AL + e}")
    a("s_or_b64 vcc, vcc, s[16:17]")
    a(f"s_cbranch_vccnz {stub}")
    a(f"{back}:")
    STUBS.extend([f"{stub}:", f"s_add_u32 s{sCNT}, s{sCNT}, 1", f"s_cmp_lt_u32 s{sCNT}, {RETRY}", f"s_cbranch_scc0 {back}"] + (xl + ["s_waitcnt vmcnt(0)"] if OPT["xe"] else []) + [f"s_branch {again}"])


def conv_xearly():
    if emode(4) == "C" and OPT["xe"]:
        a.wait_tag("pub")
        a(f"buffer_load_dwordx4 {vr(GX1, 4)}, v{cvX}, {srd(S_WS)}, s20 offen sc1")
        a(f"buffer_load_dwordx4 {vr(GX1 + 4, 4)}, v{cvX}, {srd(S_WS)}, s20 offen offset:64 sc1")


def conv_setup(layer):
    a(f"""s_mov_b32 s{sCA}, {f32(1.0 / 448)}
s_mov_b32 s{sCB}, {f32(1e-5)}
s_lshl_b32 s{sT0}, s{sWAVE}, 10
v_add_u32 v{cvU}, s{sT0}, v{vL16}
s_lshr_b32 s{sT0}, s{sWAVE}, 1
s_and_b32 s{sT1}, s{sWAVE}, 1
v_and_b32 v8, 15, v{vLANE}
v_lshrrev_b32 v9, 4, v{vLANE}
v_not_b32 v10, v8
v_and_b32 v10, 3, v10""")
    for s in range(4):
        a(f"s_cmp_lg_u32 s{sT0}, 0")
        a(f"s_cselect_b32 s{sT2}, {KSLOT[1][s]}, {KSLOT[0][s]}")
        a(f"s_mul_i32 s{sT2}, s{sT2}, {KST}")
        if s == 0:
            a(f"v_mov_b32 v11, s{sT2}")
        else:
            a(f"v_mov_b32 v12, s{sT2}\nv_cmp_eq_u32 vcc, {s}, v10\nv_cndmask_b32 v11, v11, v12, vcc")
    a(f"""v_add_u32 v10, v10, v8
v_lshlrev_b32 v12, 3, v9
v_sub_u32 v12, v12, v10
v_lshl_add_u32 v11, v12, 1, v11
""")
    a(f"""s_lshl_b32 s{sT3}, s{sT1}, 8
s_sub_u32 s{sT2}, {2 * 2031 - 64 * 59}, s{sT3}
v_add_u32 v{cvA}, s{sT2}, v11
s_mul_i32 s{sT2}, s{sT0}, {UST}
s_sub_u32 s{sT2}, s{sT2}, s{sT3}
s_add_u32 s{sT2}, s{sT2}, {UB + UPAD - 2 * 112}
v_lshlrev_b32 v12, 5, v8
v_lshl_add_u32 v13, v9, 4, v12
v_add_u32 v{cvB}, s{sT2}, v13
s_lshl_b32 s{sT2}, s{sWAVE}, 11
v_lshl_add_u32 v13, v9, 3, v12
v_add_u32 v{cvZ}, s{sT2}, v13
s_xor_b32 s{sT2}, s{sWAVE}, 1
s_lshl_b32 s{sT2}, s{sT2}, 12
v_add_u32 v{cvXW}, s{sT2}, v{vL16}
s_lshl_b32 s{sT2}, s{sWAVE}, 12
v_add_u32 v{cvXR}, s{sT2}, v{vL16}
v_and_b32 v10, 1, v9
v_lshlrev_b32 v10, 3, v10
v_lshrrev_b32 v11, 1, v8
v_add_u32 v10, v10, v11
v_mul_u32_u24 v10, {BS}, v10
v_and_b32 v11, 1, v8
v_lshl_add_u32 v10, v11, 5, v10
v_lshrrev_b32 v11, 1, v9
v_lshl_add_u32 v{cvO}, v11, 4, v10
s_mul_i32 s{sT1}, s{sT1}, {32 * BS}
s_lshl_b32 s{sT2}, s{sPAIR}, 1
s_add_u32 s{sT0}, s{sT0}, s{sT2}
s_lshl_b32 s{sT0}, s{sT0}, 6
s_add_u32 s{sT0}, s{sT0}, s{sT1}
s_add_u32 s13, s{sT0}, {X1 if layer == 0 else X3}
s_add_u32 s21, s13, {16 * BS}""" if OPT["cv"] else f"""v_add_u32 v{cvA}, {2 * 2031 - 64 * 63}, v11
s_mul_i32 s{sT2}, s{sT0}, {UST}
s_lshl_b32 s{sT3}, s{sT1}, 9
s_add_u32 s{sT2}, s{sT2}, s{sT3}
s_add_u32 s{sT2}, s{sT2}, {UB + UPAD - 2 * 496}
v_lshlrev_b32 v12, 5, v8
v_lshl_add_u32 v13, v9, 4, v12
v_add_u32 v{cvB}, s{sT2}, v13
s_lshl_b32 s{sT2}, s{sT0}, 12
s_add_u32 s{sT2}, s{sT2}, s{sT3}
v_lshl_add_u32 v13, v9, 3, v12
v_add_u32 v{cvZ}, s{sT2}, v13
v_and_b32 v10, 1, v9
v_lshlrev_b32 v10, 4, v10
v_lshrrev_b32 v11, 1, v8
v_add_u32 v10, v10, v11
v_mul_u32_u24 v10, {BS}, v10
v_and_b32 v11, 1, v8
v_lshl_add_u32 v10, v11, 5, v10
v_lshrrev_b32 v11, 1, v9
v_lshl_add_u32 v{cvO}, v11, 4, v10
s_mul_i32 s{sT1}, s{sT1}, {8 * BS}
s_lshl_b32 s{sT2}, s{sPAIR}, 1
s_add_u32 s{sT0}, s{sT0}, s{sT2}
s_lshl_b32 s{sT0}, s{sT0}, 6
s_add_u32 s{sT0}, s{sT0}, s{sT1}
s_add_u32 s13, s{sT0}, {X1 if layer == 0 else X3}
s_add_u32 s21, s13, {32 * BS}""")
    a(f"""s_lshl_b32 s16, s{sWAVE}, 10
s_add_u32 s16, s16, {ST0 if layer == 0 else ST1}
s_add_u32 s17, s16, 4096
s_add_u32 s18, s16, 8192
s_add_u32 s19, s16, 12288
s_mul_i32 s20, s{sWAVE}, {16 * BS}
s_lshl_b32 s{sT2}, s{sPAIR}, 7
s_add_u32 s20, s20, s{sT2}
s_add_u32 s20, s20, {X0 if layer == 0 else X2}
v_lshrrev_b32 v10, 2, v{vLANE}
v_mul_u32_u24 v10, {BS}, v10
v_and_b32 v11, 3, v{vLANE}
v_lshl_add_u32 v{cvX}, v11, 4, v10""")
    if layer == 1 and emode(4) == "C":
        for e in range(8):
            a(f"s_add_u32 s{22 + e}, s16, {4096 * e}")


cXF, cUF, cAL, cBE, cUP = 0, 16, 32, 40, 48


def conv_pro(layer):
    XF, UF, AL, BE, UP = cXF, cUF, cAL, cBE, cUP
    if layer == 1 and emode(4) == "C":
        conv_counted()
    else:
        conv_stats()
    conv_norm(layer == 1 and emode(4) == "C" and OPT["cpipe"])


def conv_stats():
    XF, UF, AL, BE, UP = cXF, cUF, cAL, cBE, cUP
    for p in range(4):
        S = CS + 4 * p
        a(f"v_pk_mul_f32 {vr(S, 2)}, {vr(S, 2)}, {sp(sCA)} op_sel_hi:[1,0]")
    for p in range(4):
        S = CS + 4 * p
        a(f"v_pk_fma_f32 {vr(BE + 2 * p, 2)}, {vr(S, 2)}, {vr(S, 2)}, {sp(sCB)} op_sel_hi:[1,1,0] neg_lo:[1,0,0] neg_hi:[1,0,0]")
    for p in range(4):
        Q = CS + 4 * p + 2
        a(f"v_pk_fma_f32 {vr(Q, 2)}, {vr(Q, 2)}, {sp(sCA)}, {vr(BE + 2 * p, 2)} op_sel_hi:[1,0,1]")
    for p in range(4):
        Q = CS + 4 * p + 2
        a(f"v_max_f32 v{Q}, s{sCB}, v{Q}\nv_max_f32 v{Q + 1}, s{sCB}, v{Q + 1}")
    if OPT["mr"]:
        for p in range(4):
            S = CS + 4 * p
            a(f"v_cvt_pk_bf16_f32 v{S + 1}, v{S}, v{S + 1}")
        for p in range(4):
            S = CS + 4 * p
            unpack(S, S + 1, S + 1)
    for p in range(4):
        Q = CS + 4 * p + 2
        a(f"v_rsq_f32 v{AL + 2 * p}, v{Q}\nv_rsq_f32 v{AL + 2 * p + 1}, v{Q + 1}")
    for k in range(8):
        unpack(XF + 2 * k, XF + 2 * k + 1, GX + k)
    for p in range(4):
        S = CS + 4 * p
        a(f"v_pk_mul_f32 {vr(BE + 2 * p, 2)}, {vr(S, 2)}, {vr(AL + 2 * p, 2)} neg_lo:[1,0] neg_hi:[1,0]")


def conv_norm(done=False):
    XF, UF, AL, BE, UP = cXF, cUF, cAL, cBE, cUP
    for c in range(2):
        for p in range(0 if done else 4):
            a(f"v_pk_fma_f32 {vr(UF + 8 * c + 2 * p, 2)}, {vr(XF + 8 * c + 2 * p, 2)}, {vr(AL + 2 * p, 2)}, {vr(BE + 2 * p, 2)}")
        for p in range(0 if done else 4):
            a(f"v_cvt_pk_bf16_f32 v{UP + 4 * c + p}, v{UF + 8 * c + 2 * p}, v{UF + 8 * c + 2 * p + 1}")
        a(f"ds_write_b128 v{cvU}, {vr(UP + 4 * c, 4)} offset:{UB + c * UST + UPAD}")
    if OPT["cv"]:
        for i in a.capture(conv_z, 88):
            if i.kind != "dsw":
                a.put([i])


def conv_z(ZP=cXF):
    XF, UF = cXF, cUF
    for c in range(2):
        for p in range(4):
            a(f"v_pk_fma_f32 {vr(UF + 8 * c + 2 * p, 2)}, {vr(UF + 8 * c + 2 * p, 2)}, {sp((sD0, sD1)[c])}, {vr(XF + 8 * c + 2 * p, 2)} op_sel_hi:[1,0,1]")
        for p in range(4):
            a(f"v_cvt_pk_bf16_f32 v{ZP + 4 * c + p}, v{UF + 8 * c + 2 * p}, v{UF + 8 * c + 2 * p + 1}")
        a(f"ds_write_b128 v{cvU}, {vr(ZP + 4 * c, 4)} offset:{ZB + c * 4096}")


def conv_main(layer, bg=(), bg_start=0, bg_every=64):
    return (conv_main_r if OPT["cv"] else conv_main_t)(layer, bg, bg_start, bg_every)


def conv_main_r(layer, bg, bg_start, bg_every):
    ACC, BF, AR = 0, 32, 64
    NA = 6
    EX2 = ZB
    seq = [(r, q) for r in range(4) for q in range(7, -1, -1)]
    e = 1 + 4 * layer

    def rdA(i):
        r, q = seq[i]
        d = AR + 4 * (i % NA)
        off = 64 * (59 - (8 * q + r))
        return [Ins(f"ds_read_b64 {vr(d, 2)}, v{cvA} offset:{off}"), Ins(f"ds_read_b64 {vr(d + 2, 2)}, v{cvA} offset:{off + 8}")]

    def rdB(r, p):
        return [Ins(f"ds_read_b128 {vr(BF + 4 * p, 4)}, v{cvB} offset:{512 * p + 64 * (3 - r)}")]

    a.put(rdA(0)); a.put(rdB(0, 0)); a.put(rdA(1)); a.put(rdB(0, 1)); a.put(rdA(2)); a.put(rdB(0, 2)); a.put(rdA(3))
    a.put(rdB(0, 3)); a.put(rdA(4))
    for p in range(4, 8):
        a.put(rdB(0, p))
    ZR, ZF, RR = 88, 64, 32
    side = [[i] for i in a.capture(conv_z, 88) if i.kind == "dsw"]
    if hinted(e):
        side += [[i] for i in a.capture(hint_prep, e + 10, sPAIR, cvH)]
    late = [[Ins("s_barrier")]] + [[Ins(f"ds_read_b64 {vr(ZR + 2 * i, 2)}, v{cvZ} offset:{ZB + i * 512}")] for i in range(4)]
    late2 = [[Ins("s_barrier")]]
    a.begin()
    started = set()
    for i, (r, q) in enumerate(seq):
        if hinted(e) and OPT["h_cv"] < 0 and i == 32 + OPT["h_cv"]:
            hint_put(cvH)
        ps = list(range(8 - q))
        for p in ps:
            b = q + p
            c = vr(ACC + 4 * b, 4) if b in started else "0"
            started.add(b)
            a(f"v_mfma_f32_16x16x32_bf16 {vr(ACC + 4 * b, 4)}, {vr(AR + 4 * (i % NA), 4)}, {vr(BF + 4 * p, 4)}, {c}")
            if p == 0 and i + NA - 1 < len(seq):
                a.put(rdA(i + NA - 1))
            elif 1 <= q <= 4 and p >= 1:
                for lst, r0 in ((side, 0), (late, 2), (late2, 3)):
                    if lst and r >= r0:
                        a.put(lst.pop(0))
                        break
            if q == 0 and r < 3:
                a.put(rdB(r + 1, p))
    assert not side and not late and not late2
    m, rest = merge(a.end(), list(bg), bg_start, bg_every)
    a.put(m)
    stamp(f"conv{layer} loop", 111)
    if hinted(e) and OPT["h_cv"] == 0:
        hint_put(cvH)
    for k in range(8):
        unpack(ZF + 2 * k, ZF + 2 * k + 1, ZR + k)
    l1, l2 = label("cx"), label("cy")
    a(f"s_bitcmp1_b32 s{sWAVE}, 0")
    a(f"s_cbranch_scc1 {l1}")
    for h in range(2):
        for i in range(4):
            a(f"ds_write_b128 v{cvXW}, {vr(ACC + 16 * (1 - h) + 4 * i, 4)} offset:{EX2 + i * 1024}")
            for k in range(2):
                a(f"v_pk_add_f32 {vr(ZF + 4 * i + 2 * k, 2)}, {vr(ZF + 4 * i + 2 * k, 2)}, {vr(ACC + 16 * h + 4 * i + 2 * k, 2)}")
        if h == 0:
            a(f"s_branch {l2}")
            a(f"{l1}:")
    a(f"{l2}:")
    if (armed(1) if layer else (sentinel(1) and not OPT["x1s"])):
        poll_take(cvP)
    a.barrier()
    if hinted(e) and OPT["h_cv"] == 1:
        hint_put(cvH)
    for i in range(4):
        a(f"ds_read_b128 {vr(RR + 4 * i, 4)}, v{cvXR} offset:{EX2 + i * 1024}")
    PK = 56
    for i in range(4):
        for k in range(2):
            a(f"v_pk_add_f32 {vr(ZF + 4 * i + 2 * k, 2)}, {vr(ZF + 4 * i + 2 * k, 2)}, {vr(RR + 4 * i + 2 * k, 2)}")
        for k in range(2):
            a(f"v_cvt_pk_bf16_f32 v{PK + 2 * i + k}, v{ZF + 4 * i + 2 * k}, v{ZF + 4 * i + 2 * k + 1}")
        if i & 1:
            b = PK + 2 * (i - 1)
            a(f"v_permlane16_swap_b32 v{b}, v{b + 2}")
            a(f"v_permlane16_swap_b32 v{b + 1}, v{b + 3}")
            a(f"buffer_store_dwordx4 {vr(b, 4)}, v{cvO}, {srd(S_WS)}, s{21 if i == 3 else 13} offen sc1", tag="pub")
    if hinted(e) and OPT["h_cv"] == 2:
        hint_put(cvH)
    if not flagged(e):
        a.barrier()
    else:
        flag_put(1 + 4 * layer, sPAIR, 40, "pub")
    return rest


def conv_main_t(layer, bg, bg_start, bg_every):
    ACC, BF, AR = 84, 32, 64
    NA = 5
    QORD = (7, 5, 6, 3, 4, 2, 1, 0)
    seq = [(r, q) for r in range(8) for q in QORD]
    e = 1 + 4 * layer

    def rdA(i):
        r, q = seq[i]
        d = AR + 4 * (i % NA)
        off = 64 * (63 - (8 * q + r))
        return [Ins(f"ds_read_b64 {vr(d, 2)}, v{cvA} offset:{off}"), Ins(f"ds_read_b64 {vr(d + 2, 2)}, v{cvA} offset:{off + 8}")]

    def rdB(r, p):
        return [Ins(f"ds_read_b128 {vr(BF + 4 * (p + 1), 4)}, v{cvB} offset:{512 * (p + 1) + 64 * (7 - r)}")]

    a.put(rdA(0)); a.put(rdB(0, -1)); a.put(rdA(1)); a.put(rdB(0, 1)); a.put(rdA(2)); a.put(rdB(0, 0)); a.put(rdA(3))
    for p in (3, 2, 4, 5, 6):
        a.put(rdB(0, p))
    ZR, ZF = 16, 0
    side = [[i] for i in a.capture(conv_z)]
    if hinted(e):
        side += [[i] for i in a.capture(hint_prep, e + 10, sPAIR, cvH)]
    late = [[Ins("s_barrier")]] + [[Ins(f"ds_read_b64 {vr(ZR + 2 * i, 2)}, v{cvZ} offset:{ZB + i * 1024}")] for i in range(4)]
    late2 = [[i] for k in range(8) for i in a.capture(unpack, ZF + 2 * k, ZF + 2 * k + 1, ZR + k)]
    a.begin()
    started = set()
    n = 0
    for i, (r, q) in enumerate(seq):
        if hinted(e) and OPT["h_cv"] < 0 and i == 64 + OPT["h_cv"]:
            hint_put(cvH)
        first = True
        for t in range(q // 2, 4):
            p = 2 * t - q
            c = vr(ACC + 4 * t, 4) if t in started else "0"
            started.add(t)
            a(f"v_mfma_f32_16x16x32_bf16 {vr(ACC + 4 * t, 4)}, {vr(AR + 4 * (i % NA), 4)}, {vr(BF + 4 * (p + 1), 4)}, {c}")
            n += 1
            if first and i + 4 < len(seq):
                a.put(rdA(i + 4))
            elif q >= 2:
                for lst, r0 in ((side, 0), (late, 4), (late2, 5)):
                    if lst and r >= r0:
                        a.put(lst.pop(0))
                        if lst is side and lst:
                            a.put(lst.pop(0))
                        break
            first = False
            if q <= 1 and r < 7:
                a.put(rdB(r + 1, p))
    assert not side and not late and not late2
    m, rest = merge(a.end(), list(bg), bg_start, bg_every)
    a.put(m)
    stamp(f"conv{layer} loop", 111)
    if (armed(1) if layer else (sentinel(1) and not OPT["x1s"])):
        poll_take(cvP)
    if hinted(e) and OPT["h_cv"] == 0:
        hint_put(cvH)
    PK = 24
    for i in range(4):
        for k in range(2):
            a(f"v_pk_add_f32 {vr(ZF + 4 * i + 2 * k, 2)}, {vr(ZF + 4 * i + 2 * k, 2)}, {vr(ACC + 4 * i + 2 * k, 2)}")
        for k in range(2):
            a(f"v_cvt_pk_bf16_f32 v{PK + 2 * i + k}, v{ZF + 4 * i + 2 * k}, v{ZF + 4 * i + 2 * k + 1}")
        if i & 1:
            b = PK + 2 * (i - 1)
            a(f"v_permlane16_swap_b32 v{b}, v{b + 2}")
            a(f"v_permlane16_swap_b32 v{b + 1}, v{b + 3}")
            a(f"buffer_store_dwordx4 {vr(b, 4)}, v{cvO}, {srd(S_WS)}, s{21 if i == 3 else 13} offen sc1", tag="pub")
    if hinted(e) and OPT["h_cv"] > 0:
        hint_put(cvH)
    if not flagged(e):
        a.barrier()
    else:
        flag_put(1 + 4 * layer, sPAIR, 40, "pub")
    return rest


def reduce32(V, n, W):
    for i in range(n):
        a(f"v_permlane16_swap_b32 v{V[i]}, v{V[n + i]}")
    for i in range(n):
        a(f"v_add_f32 v{V[i]}, v{V[i]}, v{V[n + i]}")
    h = n // 2
    for i in range(h):
        a(f"v_add_f32_dpp v{W[i]}, v{V[i]}, v{V[i]} row_ror:8 row_mask:0xf bank_mask:0x3")
    for i in range(h):
        a(f"v_add_f32_dpp v{W[i]}, v{V[i + h]}, v{V[i + h]} row_ror:8 row_mask:0xf bank_mask:0xc")
    g = h // 2
    for i in range(g):
        a(f"v_add_f32_dpp v{V[i]}, v{W[i]}, v{W[i]} row_half_mirror row_mask:0xf bank_mask:0x5")
    for i in range(g):
        a(f"v_add_f32_dpp v{V[i]}, v{W[i + g]}, v{W[i + g]} row_half_mirror row_mask:0xf bank_mask:0xa")
    for m in ("[1,0,3,2]", "[2,3,0,1]"):
        for i in range(g):
            a(f"v_add_f32_dpp v{V[i]}, v{V[i]}, v{V[i]} quad_perm:{m} row_mask:0xf bank_mask:0xf")
    return V[:g]


def maxchain(t, regs):
    regs = list(regs)
    if OPT["chk"] == 1:
        regs = regs[3::4]
    if len(regs) == 2:
        return [f"v_max_u32 v{t}, v{regs[0]}, v{regs[1]}"]
    out = [f"v_max3_u32 v{t}, v{regs[0]}, v{regs[1]}, v{regs[2]}"]
    regs = regs[3:]
    while len(regs) >= 2:
        out.append(f"v_max3_u32 v{t}, v{t}, v{regs[0]}, v{regs[1]}")
        regs = regs[2:]
    if regs:
        out.append(f"v_max_u32 v{t}, v{t}, v{regs[0]}")
    return out


RETRY = 0x10000


def ln(layer, wide):
    X = X1 if layer == 0 else X3
    H = H1 if layer == 0 else H3
    nf = 7 if wide else 4
    sI = sLN0 if wide else sLN
    RAW, XF, S, Q, W = 0, 28, 84, 92, 100
    vO, vPW, vPR, vAW, vAR, r, hr = 109, 110, 111, 112, 117, 114, 104
    vX, vS = 64, 68
    a(f"""s_mul_i32 s{sT0}, s{sWAVE}, 56
v_min_u32 v{r + 2}, 55, v{vLANE}""")
    a(f"v_add_u32 v{r + 2}, s{sT0}, v{r + 2}")
    a(f"v_and_b32 v118, {OPT['samp'] - 1}, v{vLANE}\nv_mul_u32_u24 v118, {56 // OPT['samp']}, v118\nv_add_u32 v118, s{sT0}, v118")
    ein, eout = 1 + 4 * layer, 2 + 4 * layer
    if OPT["lnd"] and emode(ein) == "D":
        a.wait_tag("pub")
    if wide:
        a(f"""s_mul_i32 s16, s{sI}, {BS}
s_lshl_b32 s{sT2}, s{sI}, 12""")
    else:
        a(f"""s_lshr_b32 s16, s{sI}, 1
s_mul_i32 s16, s16, {BS}
s_and_b32 s{sT0}, s{sI}, 1
s_lshl_b32 s{sT0}, s{sT0}, 5
s_add_u32 s16, s16, s{sT0}
s_lshl_b32 s{sT2}, s{sI}, 11""")
    a(f"""s_mul_i32 s{sT0}, s{sWAVE}, 7168
s_add_u32 s16, s16, s{sT0}
s_add_u32 s16, s16, {X}
s_add_u32 s17, s16, 4096
s_add_u32 s{sT2}, s{sT2}, {H}
s_mul_i32 s30, s{sWAVE}, 7""")
    if wide:
        for i in range(nf):
            a(f"""s_add_u32 s{sT0}, s30, {i}
s_lshr_b32 s{sT1}, s{sT0}, 2
s_lshl_b32 s{sT1}, s{sT1}, 18
s_add_u32 s{23 + i}, s{sT1}, s{sT2}
s_and_b32 s{sT1}, s{sT0}, 2
s_lshl_b32 s{sT1}, s{sT1}, 9
s_add_u32 s{23 + i}, s{23 + i}, s{sT1}
s_and_b32 s{sT1}, s{sT0}, 1
s_lshl_b32 s{sT1}, s{sT1}, 8
s_add_u32 s{23 + i}, s{23 + i}, s{sT1}""")
        a(f"""v_lshrrev_b32 v1, 2, v{vLANE}
v_lshlrev_b32 v{vO}, 4, v1
v_and_b32 v2, 1, v{vLANE}
v_lshl_add_u32 v{vO}, v2, 9, v{vO}
v_bfe_u32 v2, v{vLANE}, 1, 1
v_lshl_add_u32 v{vO}, v2, 11, v{vO}
v_and_b32 v1, 7, v1
v_and_b32 v2, 3, v{vLANE}
v_lshl_add_u32 v1, v2, 3, v1""")
    else:
        a(f"""v_lshrrev_b32 v1, 1, v{vLANE}
v_and_b32 v2, 1, v{vLANE}
v_lshlrev_b32 v{vX}, 6, v1
v_lshl_add_u32 v{vX}, v2, 4, v{vX}
v_mov_b32 v3, {OOB}
v_cmp_gt_u32 vcc, 32, v{vLANE}
v_cndmask_b32 v{vX + 1}, v3, v{vX}, vcc
s_lshl_b32 s30, s30, 4
s_mov_b32 s23, s{sT2}""")
        for i in range(nf):
            a(f"""v_add_u32 v4, s30, v1
v_lshrrev_b32 v5, 6, v4
v_lshlrev_b32 v5, 18, v5
v_bfe_u32 v6, v4, 5, 1
v_lshl_add_u32 v5, v6, 10, v5
v_and_b32 v6, 31, v4
v_lshl_add_u32 v5, v6, 4, v5
v_lshl_add_u32 v{vS + i}, v2, 9, v5""")
            if i < 3:
                a("s_add_u32 s30, s30, 32")
        a(f"""v_cndmask_b32 v{vS + 3}, v3, v{vS + 3}, vcc
v_bfe_u32 v1, v{vLANE}, 2, 3
v_lshl_add_u32 v1, v2, 3, v1""")
    a(f"""v_lshrrev_b32 v3, 5, v{vLANE}
v_lshl_add_u32 v1, v3, 5, v1
s_lshl_b32 s{sT1}, s{sWAVE}, 8
s_add_u32 s{sT1}, s{sT1}, {LNP}
v_lshl_add_u32 v{vPW}, v1, 2, s{sT1}
v_and_b32 v1, 31, v{vLANE}
v_lshlrev_b32 v{vPR}, 2, v1
v_add_u32 v{vPR}, {LNP}, v{vPR}
s_add_u32 s{sT1}, s{sT1}, 1024
v_lshl_add_u32 v{vAW}, v{vLANE}, 2, s{sT1}
v_lshl_add_u32 v{vAR}, v2, 5, s{sT1}
s_mov_b32 s18, 0
s_mov_b32 s19, -1""")
    prod = f"s_lshl_b32 s{sT0}, s{sI}, 6"
    if hinted(eout):
        hint_prep(eout + 10, prod, hr)
    arm = layer == 0 and sentinel(2)
    if arm:
        a(f"v_min_u32 v102, 27, v{vLANE}")
        poll_issue(18, 100)
    own = layer == 0 and sentinel(1) and OPT["x1s"]
    if own:
        poll_issue(0, 98, r + 2)
    wait_edge(ein, r, r + 2, 118)
    if arm:
        poll_take(100)
    if own:
        poll_take(98, r + 2)
    stamp(f"ln{layer} go")

    def loads():
        if not wide:
            return [f"buffer_load_dwordx4 {vr(RAW + 4 * i, 4)}, v{vX + (i == 3)}, {srd(S_WS)}, s{16 + i // 2} offen offset:{2048 * (i % 2)} sc1" for i in range(nf)]
        return [f"buffer_load_dwordx4 {vr(RAW + 4 * i, 4)}, v{vL16}, {srd(S_WS)}, s{16 + i // 4} offen offset:{1024 * (i % 4)} sc1" for i in range(nf)]
    again, back, stub = label("lna"), label("lnb"), label("lns")
    if sentinel(ein):
        a(f"s_mov_b32 s{sCNT}, 0")
        a(f"{again}:")
    for l in loads():
        a(l)
    if hinted(eout) and OPT["h_ln"] == 0:
        a.wait_vm0()
        hint_put(hr)
    if OPT["stamps"] == 1:
        a.wait_vm0()
    count_out(113)
    stamp(f"ln{layer} data", 113)
    for i in range(nf):
        for k in range(4):
            unpack(XF + 8 * i + 2 * k, XF + 8 * i + 2 * k + 1, RAW + 4 * i + k)
        for k in range(4):
            x = vr(XF + 8 * i + 2 * k, 2)
            if i == 0:
                a(f"v_pk_mul_f32 {vr(Q + 2 * k, 2)}, {x}, {x}")
            else:
                a(f"v_pk_fma_f32 {vr(Q + 2 * k, 2)}, {x}, {x}, {vr(Q + 2 * k, 2)}")
                a(f"v_pk_add_f32 {vr(S + 2 * k, 2)}, {vr(XF + 2 * k, 2) if i == 1 else vr(S + 2 * k, 2)}, {x}")
    if sentinel(ein):
        for l in maxchain(113, range(RAW, RAW + 4 * nf)) + ["v_cmp_eq_u32 vcc, -1, v113"]:
            a(l)
        STUBS.extend([f"{stub}:", f"s_add_u32 s{sCNT}, s{sCNT}, 1", f"s_cmp_lt_u32 s{sCNT}, {RETRY}", f"s_cbranch_scc1 {again}", f"s_branch {back}"])
    if hinted(eout) and OPT["h_ln"] == 1:
        hint_put(hr)
    for i in range(8):
        a(f"v_permlane32_swap_b32 v{S + i}, v{Q + i}")
        if i == 1 and sentinel(ein):
            a(f"s_cbranch_vccnz {stub}")
            a(f"{back}:")
    for i in range(0, 8, 2):
        a(f"v_pk_add_f32 {vr(S + i, 2)}, {vr(S + i, 2)}, {vr(Q + i, 2)}")
    for i in range(4):
        a(f"v_permlane16_swap_b32 v{S + i}, v{S + 4 + i}")
    for i in range(0, 4, 2):
        a(f"v_pk_add_f32 {vr(S + i, 2)}, {vr(S + i, 2)}, {vr(S + 4 + i, 2)}")
    for i in range(2):
        a(f"v_add_f32_dpp v{W + i}, v{S + i}, v{S + i} row_ror:8 row_mask:0xf bank_mask:0x3")
    for i in range(2):
        a(f"v_add_f32_dpp v{W + i}, v{S + 2 + i}, v{S + 2 + i} row_ror:8 row_mask:0xf bank_mask:0xc")
    a(f"v_add_f32_dpp v{S}, v{W}, v{W} row_shl:4 row_mask:0xf bank_mask:0x5")
    a(f"v_add_f32_dpp v{S}, v{W + 1}, v{W + 1} row_shr:4 row_mask:0xf bank_mask:0xa")
    if not wide:
        a(f"v_add_f32_dpp v{S}, v{S}, v{S} quad_perm:[2,3,0,1] row_mask:0xf bank_mask:0xf")
    a(f"ds_write_b32 v{vPW}, v{S}")
    a.barrier()
    if hinted(eout) and OPT["h_ln"] == 2:
        hint_put(hr)
    stamp(f"ln{layer} bar", 113)
    T = 0
    for w in range(4):
        a(f"ds_read2_b32 {vr(T + 2 * w, 2)}, v{vPR} offset0:{w * 64} offset1:{w * 64 + 32}")
    a(f"""v_pk_add_f32 {vr(T, 2)}, {vr(T, 2)}, {vr(T + 2, 2)}
v_pk_add_f32 {vr(T + 4, 2)}, {vr(T + 4, 2)}, {vr(T + 6, 2)}
v_pk_add_f32 {vr(T, 2)}, {vr(T, 2)}, {vr(T + 4, 2)}
v_mul_f32 v{T}, {f32(1 / 448)}, v{T}
v_mul_f32 v{T + 1}, {f32(1 / 448)}, v{T + 1}
v_fma_f32 v{T + 1}, -v{T}, v{T}, v{T + 1}
v_max_f32 v{T + 1}, 0, v{T + 1}
v_add_f32 v{T + 2}, {f32(1e-5)}, v{T + 1}
v_fmamk_f32 v{T + 2}, v{T + 2}, {f32(1e-5)}, v{T + 1}
v_rsq_f32 v{T + 2}, v{T + 2}
v_mul_f32 v{T + 3}, -v{T}, v{T + 2}
v_cndmask_b32 v{T + 2}, v{T + 2}, v{T + 3}, s[18:19]
ds_write_b32 v{vAW}, v{T + 2}""")
    AL, BE = S, Q
    done_hint = []
    a(f"""ds_read_b128 {vr(AL, 4)}, v{vAR}
ds_read_b128 {vr(BE, 4)}, v{vAR} offset:128
ds_read_b128 {vr(AL + 4, 4)}, v{vAR} offset:16
ds_read_b128 {vr(BE + 4, 4)}, v{vAR} offset:144""")
    for i in range(nf):
        for k in range(4):
            x = vr(XF + 8 * i + 2 * k, 2)
            a(f"v_pk_fma_f32 {x}, {x}, {vr(AL + 2 * k, 2)}, {vr(BE + 2 * k, 2)}")
        for k in range(4):
            a(f"v_cvt_pk_bf16_f32 v{RAW + 4 * i + k}, v{XF + 8 * i + 2 * k}, v{XF + 8 * i + 2 * k + 1}")
        a(f"buffer_store_dwordx4 {vr(RAW + 4 * i, 4)}, v{vO if wide else vS + i}, {srd(S_WS)}, s{23 + i if wide else 23} offen sc1", tag="pub")
        if hinted(eout) and OPT["h_ln"] - 3 == min(i, 6) * (4 if nf == 7 else 4) // (nf + 1):
            if not done_hint:
                hint_put(hr)
                done_hint.append(1)
    if OPT["dst"] & 2:
        for i in range(nf):
            a(f"buffer_store_dwordx4 {vr(RAW + 4 * i, 4)}, v{vO if wide else vS + i}, {srd(S_WS)}, s{23 + i if wide else 23} offen{' sc0' if OPT['dst'] & 4 else ''}")
    stamp(f"ln{layer} st", 113)
    if flagged(eout):
        flag_put(eout, prod, 100, "pub")


def gemm_addr():
    a(f"""s_and_b32 s{sT0}, s{sWAVE}, 1
s_lshl_b32 s{sT0}, s{sT0}, 10
v_add_u32 v{vA0}, s{sT0}, v{vL16}
v_xor_b32 v{vA1}, 0x400, v{vA0}""")


vCHK = 121


def gemm_loop(nks, ring, nring, wreg, swap, sent, lds_from=99, at=None, bg=()):
    WF = 104
    nfr = 2 * nks

    def load(f):
        ks, db = f // 2, f % 2
        g = []
        if db == 0 and ks and ks % 2 == 0:
            g.append(Ins("s_add_u32 s13, s13, 4096"))
            if ks % 4 == 0:
                g += [Ins("s_cmp_eq_u32 s13, s28"), Ins("s_cmov_b32 s13, s27")]
        d = ring + 4 * (f % nring)
        g.append(Ins(f"buffer_load_dwordx4 {vr(d, 4)}, v{(vA0, vA1)[db]}, {srd(S_WS)}, s13 offen offset:{(ks % 2) * 2048} sc1"))
        return g

    def wread(ks):
        g = []
        slot = ks - lds_from
        for nb in range(2):
            for j in range(2):
                d = WF + 8 * (ks % 2) + 4 * nb + 2 * j
                g.append(Ins(f"ds_read_b64_tr_b16 {vr(d, 2)}, v{(vT2a, vT2b)[nb]} offset:{slot * 2048 + j * 1024}", res_r=[f"slot{slot}"]))
        return g

    def check(ks, upto):
        regs = [ring + 4 * ((2 * ks + db) % nring) + k for db in range(2) for k in range(4)]
        chk = maxchain(vCHK, regs) + [f"v_cmp_eq_u32 vcc, -1, v{vCHK}"]
        back, stub = label("gb"), label("gs")
        rl, cnt = [], 0
        for f in range(2 * ks, max(2 * ks + 2, min(upto, 2 * ks + 2 * OPT["rl"]))):
            k2, db = f // 2, f % 2
            if db == 0:
                rl += [f"s_add_u32 s3, s22, {k2 * 2048}", "s_cmp_ge_u32 s3, s28", f"s_cselect_b32 s18, {nks * 2048}, 0", "s_sub_u32 s3, s3, s18"]
            rl.append(f"buffer_load_dwordx4 {vr(ring + 4 * (f % nring), 4)}, v{(vA0, vA1)[db]}, {srd(S_WS)}, s3 offen sc1")
        STUBS.extend([f"{stub}:"] + rl + ["s_waitcnt vmcnt(0)"] + chk + [f"s_add_u32 s{sCNT}, s{sCNT}, 1", f"s_cbranch_vccz {back}",
                                                     f"s_cmp_lt_u32 s{sCNT}, {RETRY}", f"s_cbranch_scc1 {stub}", f"s_branch {back}"])
        return [Ins(x) for x in chk], [Ins(f"s_cbranch_vccnz {stub}"), Ins(f"{back}:")]

    if sent:
        a(f"s_mov_b32 s{sCNT}, 0")
    nxt = min(OPT["fill0"], nring)
    for f in range(nxt):
        a.put(load(f))
    if sent:
        c, b = check(0, nxt)
        a.put(c); a.put(b)
    extra = []
    bg = list(bg)
    for ks in range(nks):
        if at and ks in at:
            extra += a.capture(at[ks])
        pend = wread(ks + 1) if lds_from <= ks + 1 < nks else []
        c, b = check(ks + 1, min(nfr, nxt + 2, nring + 2 * ks + 2)) if (sent and ks + 1 < nks) else ([], [])
        order = [(0, 0), (0, 1), (1, 0), (1, 1)]
        if ks == nks - 1 and OPT["tailord"]:
            order = [(0, 1), (1, 0), (1, 1), (0, 0)]
        if True:
            for nb, db in order:
                acc = vr(16 * (2 * nb + db), 16)
                cc = acc if (ks or (nb | db) == 0) else "0"
                w = wreg(ks, nb) if ks < lds_from else vr(WF + 8 * (ks % 2) + 4 * nb, 4)
                x = vr(ring + 4 * ((2 * ks + db) % nring), 4)
                if OPT["fake16"] and 0 < ks < nks - 1:
                    b0 = 16 * (2 * nb + db) + 8 * (ks & 1)
                    for t in range(2):
                        a(f"v_mfma_f32_16x16x32_bf16 {vr(b0 + 4 * t, 4)}, {x if swap ^ t else w}, {w if swap ^ t else x}, {vr(b0 + 4 * t, 4)}")
                else:
                    a(f"v_mfma_f32_32x32x16_bf16 {acc}, {x if swap else w}, {w if swap else x}, {cc}")
                if pend:
                    a.put([pend.pop(0)])
                free = nring + 2 * ks + (db + 1 if nb == 1 else 0)
                if nxt < min(nfr, free) and (nb == 1 or db == 1):
                    a.put(load(nxt))
                    nxt += 1
                if bg and nb == 0 and ks >= OPT["bg0"]:
                    a.put(bg.pop(0))
                if extra and nb == 0:
                    k = 5
                    while k < len(extra) and ("exec" in extra[k - 1].defs and extra[k - 1].text != "s_mov_b64 exec, -1" or extra[k - 1].kind == "vstore"):
                        k += 1
                    a.put(extra[:k])
                    del extra[:k]
                if nb == 1 and db == 0:
                    a.put(c)
                if nb == 1 and db == 1:
                    a.put(b)
    a.put(extra)


def gemm_rot(nks, srot):
    a(f"s_mov_b32 s27, s13\ns_add_u32 s28, s13, {nks * 2048}\ns_lshl_b32 s{sT0}, s{srot}, 13\ns_add_u32 s13, s13, s{sT0}\ns_mov_b32 s22, s13")


def gemm_reduce_prep():
    slot = 6144 if OPT["bfr"] else 12288
    for rel in (1, 2, 3):
        a(f"s_xor_b32 s{23 + rel}, s{sWAVE}, {rel}\ns_mul_i32 s{23 + rel}, s{23 + rel}, {slot}")
    a(f"s_mul_i32 s23, s{sWAVE}, {slot}")


def gemm_reduce_addr():
    for rel in range(4):
        a(f"v_add_u32 v{64 + rel}, s{23 + rel}, v{vL16}")


def gemm_perm(P):
    if not OPT["bfr"]:
        return
    t, u = P + 8, P + 7
    a("s_mov_b32 s29, 0x3f80")
    a(f"""v_lshrrev_b32 v{u}, 5, v{vLANE}
v_and_b32 v{t}, 31, v{vLANE}
v_lshlrev_b32 v{u}, 2, v{u}
v_sub_u32 v{t}, v{t}, v{u}
v_and_b32 v{u}, 1, v{t}
v_lshlrev_b32 v{u}, 4, v{u}
v_lshlrev_b32 v{u}, v{u}, s29
v_ashrrev_i32 v{t}, 1, v{t}""")
    vals = (0, 1, 4, 5, 8, 9, 12, 13)
    pairs = ("s[16:17]", "s[30:31]", "s[50:51]")
    for d in range(10):
        if d < 8:
            a(f"v_cmp_eq_u32 {pairs[d % 3]}, {vals[d]}, v{t}")
        if d >= 2:
            a(f"v_cndmask_b32 v{P + d - 2}, 0, v{u}, {pairs[(d - 2) % 3]}")
    a(f"ds_write_b128 v{vL16}, {vr(P, 4)} offset:{PERM}")
    a(f"ds_write_b128 v{vL16}, {vr(P + 4, 4)} offset:{PERM + 1024}")


def gemm_perm_get(P):
    if OPT["bfr"]:
        a(f"ds_read_b128 {vr(P, 4)}, v{vL16} offset:{PERM}")
        a(f"ds_read_b128 {vr(P + 4, 4)}, v{vL16} offset:{PERM + 1024}")


def gemm_reduce_bf(P, pre, post, quarter):
    side = a.capture(pre) if pre else []
    a.put(side[:9])
    side = side[9:]
    T = [104, 108, 112, 116]
    n = 0
    for rel in (1, 2, 3):
        for j in range(2):
            t = T[n % 4]
            n += 1
            for k in range(4):
                r = 16 * rel + 8 * j + 2 * k
                a(f"v_cvt_pk_bf16_f32 v{t + k}, v{r}, v{r + 1}")
            a(f"ds_write_b128 v{64 + rel}, {vr(t, 4)} offset:{RB + (rel - 1) * 2048 + j * 1024}")
            a.put(side[:3])
            side = side[3:]
    a.put(side)
    a.barrier()
    for k in ((0, 2, 4, 1, 3, 5) if (quarter and OPT["spl"]) else range(6)):
        a(f"ds_read_b128 {vr(16 + 4 * k, 4)}, v64 offset:{RB + k * 1024}")
    if post:
        post()
    if quarter and OPT["spl"]:
        for k in (0, 2, 4):
            a(f"v_mfma_f32_32x32x16_bf16 v[0:15], {vr(P, 4)}, {vr(16 + 4 * k, 4)}, v[0:15]")
        ms = [[Ins(f"v_mfma_f32_32x32x16_bf16 v[48:63], {vr(P + 4, 4)}, {vr(16 + 4 * k, 4)}, {'v[48:63]' if k > 1 else 0}")] for k in (1, 3, 5)]
        a.put(ms[0])
        a.put(ms[1])
        m, rest = merge(a.capture(lambda: (quarter(0), quarter(1))), ms[2:], 10, 30)
        a.put(m)
        assert not rest
        for r in range(8, 16, 2):
            a(f"v_pk_add_f32 {vr(r, 2)}, {vr(r, 2)}, {vr(48 + r, 2)}")
        quarter(2)
        quarter(3)
        return
    for k in range(6):
        a(f"v_mfma_f32_32x32x16_bf16 v[0:15], {vr(P + 4 * (k % 2), 4)}, {vr(16 + 4 * k, 4)}, v[0:15]")
    if quarter:
        for q in range(4):
            quarter(q)


def gemm_reduce(pre=None, post=None, quarter=None, P=None):
    if OPT["bfr"]:
        return gemm_reduce_bf(P, pre, post, quarter)
    side = a.capture(pre) if pre else []
    wr = [[Ins(f"ds_write_b128 v{64 + rel}, {vr(16 * rel + 4 * q, 4)} offset:{RB + (rel - 1) * 4096 + q * 1024}")] for rel in (1, 2, 3) for q in range(4)]
    a.put(side[:9])
    put_all(wr[:3])
    m, rest = merge(side[9:], wr[3:], 0, 12)
    a.put(m)
    put_all(rest)
    a.barrier()
    for q in range(4):
        for k in range(3):
            a(f"ds_read_b128 {vr(16 + 16 * k + 4 * q, 4)}, v64 offset:{RB + k * 4096 + q * 1024}")
        if q == 1 and post:
            post()
    for q in range(4):
        for h in range(2):
            r = 4 * q + 2 * h
            a(f"v_pk_add_f32 {vr(16 + r, 2)}, {vr(16 + r, 2)}, {vr(32 + r, 2)}")
            a(f"v_pk_add_f32 {vr(r, 2)}, {vr(r, 2)}, {vr(48 + r, 2)}")
        for h in range(2):
            r = 4 * q + 2 * h
            a(f"v_pk_add_f32 {vr(r, 2)}, {vr(r, 2)}, {vr(16 + r, 2)}")
        if quarter:
            quarter(q)


def gemm1(layer, wide, pre=None, bg=(), part="all"):
    H = H1 if layer == 0 else H3
    G = G1 if layer == 0 else G3
    r = 32
    c0 = -2 * math.log2(math.e) * math.sqrt(2 / math.pi)
    ein, eout = 2 + 4 * layer, 3 + 4 * layer
    if part == "poll":
        assert emode(ein) == "S"
        for k in range(8):
            unpack(2 * k, 2 * k + 1, 20 + k)
        poll_issue(ein + 10, r, r + 3)
        return
    if part != "rest":
        gemm1_head(H, G, wide, r, c0)
    if part == "head":
        return
    gemm1_rest(layer, wide, pre, bg, part, r, c0, ein, eout)


def gemm1_head(H, G, wide, r, c0):
    gemm_addr()
    a(f"""s_lshr_b32 s{sT0}, s{sWAVE}, 1
s_lshl_b32 s{sT0}, s{sT0}, 6
s_lshl_b32 s{sT1}, s{sNT}, 7
s_add_u32 s{sT0}, s{sT0}, s{sT1}
v_lshrrev_b32 v16, 5, v{vLANE}
v_lshl_add_u32 v16, v16, 3, s{sT0}""")
    for q in range(4):
        a(f"global_load_dwordx2 {vr(20 + 2 * q, 2)}, v16, {sp(P_B1)} offset:{16 * q}")
    a(f"""s_lshl_b32 s{sT0}, s{sWAVE}, 5
v_and_b32 v{r + 2}, 31, v{vLANE}
v_add_u32 v{r + 2}, s{sT0}, v{r + 2}
v_and_b32 v{r + 3}, {31 & ~(32 // OPT['samp'] - 1)}, v{vLANE}
v_add_u32 v{r + 3}, s{sT0}, v{r + 3}
s_lshl_b32 s13, s{sDT1}, 7
s_add_u32 s13, s13, s{sT0}
s_lshl_b32 s13, s13, 11
s_add_u32 s13, s13, {H}""")
    if wide:
        a(f"v_lshrrev_b32 v{r + 2}, 1, v{r + 2}\nv_lshrrev_b32 v{r + 3}, 1, v{r + 3}")
    a(f"""s_mov_b32 s{sCA}, {f32(c0 * 0.044715)}
s_mul_i32 s21, s{sDT1}, 112
s_lshl_b32 s{sT0}, s{sNT}, 2
s_add_u32 s21, s21, s{sT0}
s_and_b32 s{sT0}, s{sWAVE}, 2
s_add_u32 s21, s21, s{sT0}
s_lshl_b32 s21, s21, 11
s_add_u32 s21, s21, {G}""")
    gemm_reduce_prep()
    gemm_rot(32, sROT1)


def gemm1_rest(layer, wide, pre, bg, part, r, c0, ein, eout):
    if pre:
        pre()
    if part != "rest":
        for k in range(8):
            unpack(2 * k, 2 * k + 1, 20 + k)
    if part == "rest":
        poll_take(r, r + 3)
    elif emode(ein) == "M":
        l1, l2 = label("m1"), label("m2")
        a(f"s_cmp_eq_u32 s{sRL0 if wide else sRL}, 0\ns_cbranch_scc1 {l1}")
        a.wait_tag("pub")
        a(f"s_branch {l2}")
        a(f"{l1}:")
        wait_edge(ein, r, r + 2, r + 3)
        a(f"{l2}:")
    else:
        wait_edge(ein, r, r + 2, r + 3)
    stamp(f"g1_{layer} go", 63)
    prod = f"s_mul_i32 s{sT0}, s{sDT1}, 28\ns_add_u32 s{sT0}, s{sT0}, s{sNT}\ns_lshl_b32 s{sT0}, s{sT0}, 6"
    early = hinted(eout) and OPT["h_g1"] < 0
    at = {30: gemm_reduce_addr, 28: lambda: gemm_perm_get(96)}
    if early:
        assert OPT["h_g1"] in (-1, -3, -4)
        at[32 + OPT["h_g1"]] = lambda: (hint_prep(eout + 10, prod, 104), hint_put(104))
    gemm_loop(32, 64, 14, lambda ks, nb: f"a[{(ks * 2 + nb) * 4}:{(ks * 2 + nb) * 4 + 3}]", False, sentinel(ein), at=at)
    count_out(120)
    stamp(f"g1_{layer} loop", 120)
    a.begin()
    late = hinted(eout) and not early

    def pre():
        a(f"v_mov_b32 v80, {f32(c0)}")
        if late:
            hint_prep(eout + 10, prod, 72)

    def gelu(q):
        if q % 2 == 0:
            return
        half = q // 2
        if late and OPT["h_g1"] == 1 and half == 0:
            hint_put(72)
        rs = range(8 * half, 8 * half + 8, 2)
        for r in rs:
            a(f"v_pk_mul_f32 {vr(16 + r, 2)}, {vr(r, 2)}, {vr(r, 2)}")
        for r in rs:
            a(f"v_pk_fma_f32 {vr(16 + r, 2)}, {vr(16 + r, 2)}, {sp(sCA)}, {vr(80, 2)} op_sel_hi:[1,0,0]")
        for r in rs:
            a(f"v_pk_mul_f32 {vr(16 + r, 2)}, {vr(16 + r, 2)}, {vr(r, 2)}")
        for r in rs:
            a(f"v_exp_f32 v{16 + r}, v{16 + r}\nv_exp_f32 v{17 + r}, v{17 + r}")
        for r in rs:
            a(f"v_pk_add_f32 {vr(16 + r, 2)}, {vr(16 + r, 2)}, 1.0 op_sel_hi:[1,0]")
        for r in rs:
            a(f"v_rcp_f32 v{16 + r}, v{16 + r}\nv_rcp_f32 v{17 + r}, v{17 + r}")
        for r in rs:
            a(f"v_pk_mul_f32 {vr(r, 2)}, {vr(r, 2)}, {vr(16 + r, 2)}")
        for r in rs:
            a(f"v_cvt_pk_bf16_f32 v{84 + r // 2}, v{r}, v{r + 1}")
        a(f"buffer_store_dwordx4 {vr(84 + 4 * half, 4)}, v{vA0}, {srd(S_WS)}, s21 offen offset:{2048 * half} sc1", tag="pub")
        if late and OPT["h_g1"] == 2 + half:
            hint_put(72)
    gemm_reduce(pre, (lambda: hint_put(72)) if (late and OPT["h_g1"] == 0) else None, gelu, 96)
    if OPT["dst"] & 1:
        for half in range(2):
            a(f"buffer_store_dwordx4 {vr(84 + 4 * half, 4)}, v{vA0}, {srd(S_WS)}, s21 offen offset:{2048 * half}{' sc0' if OPT['dst'] & 4 else ''}")
    m, rest = merge(a.end(), list(bg), 0, OPT["ev_g1"])
    a.put(m)
    if not flagged(eout):
        a.barrier()
    else:
        flag_put(eout, prod, 40, "pub")
    for g in rest:
        a.put(g)


def gemm2(layer, bg=()):
    G = G1 if layer == 0 else G3
    gemm_addr()
    a(f"""s_lshr_b32 s{sT0}, s{sWAVE}, 1
s_lshl_b32 s{sT0}, s{sT0}, 5
s_lshl_b32 s{sT1}, s{sST}, 6
s_add_u32 s50, s{sT0}, s{sT1}
s_and_b32 s{sT1}, s{sWAVE}, 1
s_lshl_b32 s{sT1}, s{sT1}, 5
s_lshl_b32 s{sT2}, s{sDT2}, 6
s_add_u32 s51, s{sT1}, s{sT2}
s_lshr_b32 s{sT2}, s50, 5
s_mul_i32 s{sT2}, s{sT2}, {BS}
s_lshl_b32 s{sT1}, s51, 6
s_add_u32 s20, s{sT2}, s{sT1}
s_add_u32 s30, s20, {X1 if layer == 0 else X3}
v_and_b32 v16, 31, v{vLANE}
v_lshrrev_b32 v17, 5, v{vLANE}
s_lshl_b32 s{sT0}, s50, 1""")
    r = 42

    def residual_issue():
        if layer == 0:
            if OPT["res4"]:
                for k in range(2):
                    a(f"buffer_load_dwordx4 {vr(20 + 4 * k, 4)}, v18, {srd(S_WS)}, s30 offen offset:{32 * k} sc1")
            else:
                for q in range(4):
                    a(f"buffer_load_dwordx2 {vr(20 + 2 * q, 2)}, v18, {srd(S_WS)}, s30 offen offset:{16 * q} sc1")
        else:
            a(f"s_mov_b32 m0, s31")
            a(f"buffer_load_dwordx4 v{vL16}, {srd(S_WS)}, s30 offen sc1 lds", res_w=["x3"])
            a(f"buffer_load_dwordx4 v{vL16}, {srd(S_WS)}, s30 offen offset:1024 sc1 lds", res_w=["x3"])

    def residual_use():
        if layer == 0:
            if OPT["res4"]:
                for k in (20, 21, 24, 25):
                    a(f"v_permlane32_swap_b32 v{k}, v{k + 2}")
            for k in range(8):
                unpack(2 * k, 2 * k + 1, 20 + k)
            for k in range(8):
                unpack(40, 41, 28 + k)
                a(f"v_pk_add_f32 {vr(2 * k, 2)}, {vr(2 * k, 2)}, v[40:41]")
        else:
            for q in range(4):
                a(f"ds_read_b64_tr_b16 {vr(20 + 2 * q, 2)}, v31 offset:{512 * q}", res_r=["x3"])
            a("v_lshlrev_b32 v40, 16, v29")
            for k in range(8):
                unpack(2 * k, 2 * k + 1, 20 + k)
                a(f"v_pk_add_f32 {vr(2 * k, 2)}, {vr(2 * k, 2)}, v[40:41] op_sel_hi:[1,0]")

    if layer == 0:
        a(f"v_lshlrev_b32 v18, 6, v16\nv_lshl_add_u32 v18, v17, {4 if OPT['res4'] else 3}, v18\nv_lshl_add_u32 v19, v17, 3, s{sT0}")
        for q in range(4):
            a(f"global_load_dwordx2 {vr(28 + 2 * q, 2)}, v19, {sp(P_B2)} offset:{16 * q}")
    else:
        a(f"""v_and_b32 v19, 3, v{vLANE}
s_lshl_b32 s31, s{sWAVE}, 11
v_lshl_add_u32 v28, v16, 1, s{sT0}
global_load_ushort v29, v28, {sp(P_B2)}
v_bfe_u32 v31, v{vLANE}, 2, 2
v_lshl_add_u32 v31, v17, 2, v31
v_lshlrev_b32 v31, 6, v31
v_bfe_u32 v30, v{vLANE}, 4, 1
v_lshl_add_u32 v31, v30, 5, v31
v_lshl_add_u32 v31, v19, 3, v31
v_add_u32 v31, s31, v31""")
    a(f"""s_mul_i32 s{sT0}, s{sDT2}, 28
s_mul_i32 s{sT1}, s{sWAVE}, 7
s_add_u32 s{sT0}, s{sT0}, s{sT1}
v_min_u32 v{r + 2}, 6, v{vLANE}
v_add_u32 v{r + 2}, s{sT0}, v{r + 2}
v_mov_b32 v{r + 3}, v{r + 2}
s_lshl_b32 s13, s{sT0}, 13
s_add_u32 s13, s13, {G}""")
    if layer == 0:
        a(f"""s_add_u32 s21, s20, {X2}
s_lshl_b32 s19, s50, 1
s_add_u32 s19, s19, {ST1}""")
    else:
        a(f"s_mul_i32 s{sT0}, s50, 896\ns_lshl_b32 s{sT1}, s51, 1\ns_add_u32 s21, s{sT0}, s{sT1}")
    gemm_reduce_prep()
    gemm_rot(28, sROT2)
    if layer == 0 and emode(4) == "C" and OPT["x2l"] == 2:
        a(f"s_mul_i32 s{sT0}, s{sWAVE}, 7\nv_min_u32 v52, 6, v{vLANE}\nv_add_u32 v52, s{sT0}, v52")
        poll_issue(19, 50)
    lskip, ljoin = label("res"), label("resj")
    a(f"s_cmp_eq_u32 s{sR1}, 0")
    a(f"s_cbranch_scc1 {lskip}")
    residual_issue()
    residual_use()
    if emode(3 + 4 * layer) == "M":
        a.wait_tag("pub")
    else:
        wait_edge(3 + 4 * layer, r, r + 2, r + 3)
    a(f"s_branch {ljoin}")
    a(f"{lskip}:")
    eln = 2 + 4 * layer
    if OPT["rese"] and hinted(eln) and OPT["h_ln"] >= 2:
        wide = OPT["ln1w"] if layer else OPT["ln0w"]
        a(f"s_lshl_b32 s{sT0}, s{sST}, {1 if wide else 2}\nv_and_b32 v48, {1 if wide else 3}, v{vLANE}\nv_add_u32 v48, s{sT0}, v48")
        poll_issue(eln + 10, 46)
        poll_take(46)
        residual_issue()
        residual_use()
        wait_edge(3 + 4 * layer, r, r + 2, r + 3)
    else:
        wait_edge(3 + 4 * layer, r, r + 2, r + 3)
        residual_issue()
        residual_use()
    a(f"{ljoin}:")
    if layer == 0 and emode(4) == "C" and OPT["x2l"] == 2:
        poll_take(50)
    at = {26: gemm_reduce_addr, 25: lambda: gemm_perm_get(88)}
    late = layer == 0 and emode(4) == "C" and OPT["x2l"] == 1
    if late:
        at[25] = lambda: (gemm_perm_get(88), a(f"v_and_b32 v98, 31, v{vLANE}"), poll_issue(19, 96))
    stamp(f"g2_{layer} go", 63)
    gemm_loop(28, 64, 10, lambda ks, nb: vr(128 + (ks * 2 + nb) * 4, 4), layer == 1, sentinel(3 + 4 * layer), lds_from=16, at=at, bg=bg)
    count_out(120)
    stamp(f"g2_{layer} loop", 120)

    def addr():
        a(f"v_and_b32 v68, 31, v{vLANE}\nv_lshrrev_b32 v69, 5, v{vLANE}")
        if layer == 0:
            a(f"""v_and_b32 v70, 15, v{vLANE}
v_lshlrev_b32 v70, 6, v70
v_lshl_add_u32 v70, v69, 4, v70
v_bfe_u32 v71, v{vLANE}, 4, 1
v_lshl_add_u32 v70, v71, 5, v70
""")
            if emode(4) == "C":
                a(f"""v_lshl_add_u32 v71, v69, 2, v71
v_lshlrev_b32 v71, 12, v71
v_and_b32 v68, 15, v{vLANE}
v_lshl_add_u32 v71, v68, 2, v71
v_mov_b32 v68, 1.0
v_cndmask_b32 v68, v68, 0, {sp(sM1)}
s_add_u32 s18, s19, 8192""")
            else:
                a(f"""v_bfe_u32 v71, v{vLANE}, 2, 2
v_lshlrev_b32 v71, 4, v71
v_bfe_u32 v68, v{vLANE}, 4, 1
v_lshl_add_u32 v71, v68, 3, v71
v_and_b32 v68, 1, v{vLANE}
v_lshl_add_u32 v71, v68, 2, v71
v_bfe_u32 v68, v{vLANE}, 1, 1
v_lshl_add_u32 v68, v69, 1, v68
v_lshl_add_u32 v71, v68, 12, v71""")
        elif OPT["o64"]:
            a(f"v_and_b32 v68, 15, v{vLANE}\nv_mul_u32_u24 v70, 896, v68\nv_lshl_add_u32 v70, v69, 4, v70\nv_bfe_u32 v68, v{vLANE}, 4, 1\nv_lshl_add_u32 v70, v68, 5, v70\ns_add_u32 s20, s21, {16 * 896}")
        else:
            a(f"v_mul_u32_u24 v70, 896, v68\nv_lshl_add_u32 v70, v69, 4, v70")
    prod = f"s_lshl_b32 s{sT0}, s{sDT2}, 5\ns_add_u32 s{sT0}, s{sT0}, s{sST}\ns_lshl_b32 s{sT0}, s{sT0}, 6"
    hn = layer == 0 and hinted(4)

    def pre():
        addr()
        if hn:
            hint_prep(14, prod, 80)
    gemm_reduce(pre, (lambda: hint_put(80)) if (hn and OPT["h_g2"] == 0) else None, None, 88)
    if hn and OPT["h_g2"] == 1:
        hint_put(80)
    PK = 72
    if late:
        poll_take(96)
    stamp(f"g2_{layer} red", 120)
    for half in range(2):
        b = PK + 4 * half
        for k in range(4):
            a(f"v_cvt_pk_bf16_f32 v{b + k}, v{8 * half + 2 * k}, v{8 * half + 2 * k + 1}")
        a(f"v_permlane32_swap_b32 v{b}, v{b + 2}")
        a(f"v_permlane32_swap_b32 v{b + 1}, v{b + 3}")
        if layer == 1 and not OPT["o64"]:
            a(f"buffer_store_dwordx4 {vr(b, 4)}, v70, {srd(S_OUT)}, s21 offen offset:{32 * half} {('', 'nt', 'sc1')[OPT['ofl']]}")
    if layer == 1:
        if OPT["o64"]:
            for k in range(4):
                a(f"v_permlane16_swap_b32 v{PK + k}, v{PK + 4 + k}")
            for half in range(2):
                a(f"buffer_store_dwordx4 {vr(PK + 4 * half, 4)}, v70, {srd(S_OUT)}, s{21 - half} offen {('', 'nt', 'sc1')[OPT['ofl']]}")
        return
    def put_x():
        for k in range(4):
            a(f"v_permlane16_swap_b32 v{PK + k}, v{PK + 4 + k}")
        for half in range(2):
            a(f"buffer_store_dwordx4 {vr(PK + 4 * half, 4)}, v70, {srd(S_WS)}, s21 offen offset:{1024 * half} sc1", tag="pub")
    put_x()
    if hn and OPT["h_g2"] == 2:
        hint_put(80)
    for k in range(8):
        a(f"v_pk_mul_f32 {vr(20 + 2 * k, 2)}, {vr(2 * k, 2)}, {vr(2 * k, 2)}")
    res = reduce32(list(range(16)) + list(range(20, 36)), 16, list(range(40, 48)))
    assert res == [0, 1, 2, 3]
    if emode(4) == "C":
        a(f"""v_permlane16_swap_b32 v0, v1
v_permlane16_swap_b32 v2, v3
v_cndmask_b32 v0, v0, v1, {sp(sM1)}
v_cndmask_b32 v2, v2, v3, {sp(sM1)}
v_cndmask_b32 v0, v0, v68, {sp(sM2)}
v_cndmask_b32 v2, v2, v68, {sp(sM2)}""")
        a(f"buffer_atomic_add_f32 v0, v71, {srd(S_WS)}, s19 offen sc1", tag="pub")
        a(f"buffer_atomic_add_f32 v2, v71, {srd(S_WS)}, s18 offen sc1", tag="pub")
    else:
        a(f"""v_cndmask_b32 v0, v0, v1, {sp(sM1)}
v_cndmask_b32 v2, v2, v3, {sp(sM1)}
v_cndmask_b32 v0, v0, v2, {sp(sM2)}""")
        a(f"buffer_atomic_add_f32 v0, v71, {srd(S_WS)}, s19 offen sc1", tag="pub")
    if hn and OPT["h_g2"] == 3:
        hint_put(80)
    stamp("g2_0 atom", 120)
    if flagged(4):
        flag_put(4, prod, 40, "pub")
    else:
        a.barrier()
    stamp("g2_0 flag", 120)


def skip_unless(role):
    l = label("skip")
    a(f"s_cmp_eq_u32 s{role}, 0")
    a(f"s_cbranch_scc1 {l}")
    return l


def dmas(n0, n1):
    return [w_dma(n, h) for n in range(n0, n1) for h in range(2)]


def tr_dma(n0, n1):
    g = []
    for n in range(n0, n1):
        g.append(w_tr(n))
        if n > n0:
            g += dmas(n + 11, n + 12)
    g += dmas(n1 + 11, n1 + 12)
    return g


def wseq():
    nB = OPT["wB"] // 2
    assert 36 <= nB <= 60
    g = dmas(0, 12) + tr_dma(0, nB - 12)
    lastT = 48 if (nB >= 48 and OPT["wT"]) else 32 + OPT["wg"]
    g += [w_tr(n) for n in range(nB - 12, lastT)]
    g.append([])
    d = nB
    for n in range(max(lastT, nB - 12), 49):
        while d < min(n + 11, 60) or (n == 48 and d < 60):
            g += dmas(d, d + 1)
            d += 1
        if n < 48:
            g.append(w_tr(n))
    return g


def wcut(n_dma):
    k = 0
    for p, g in enumerate(wseq()):
        if k == n_dma:
            return p
        k += any(i.kind == "dma" for i in g)
    return len(wseq())


def put_all(gs):
    for g in gs:
        a.put(g)


def w2_touch(r):
    return [Ins(f"v_lshlrev_b32 v{r}, 12, v{vLANE}"), Ins(f"buffer_load_dword v{r}, v{r}, {srd(S_W2)}, s{sW2O} offen")]


def upad():
    a(f"""v_mov_b32 v32, 0
v_mov_b32 v33, 0
v_mov_b32 v34, 0
v_mov_b32 v35, 0
s_and_b32 s{sT0}, s{sWAVE}, 1
s_mul_i32 s{sT0}, s{sT0}, {UST}
v_add_u32 v36, s{sT0}, v{vL16}
ds_write_b128 v36, v[32:35] offset:{UB}""")


def build():
    global RB
    if OPT["bfr"] and OPT["keepk"]:
        RB = UB
    g = OPT["wg"]
    g1 = OPT["wg1"] or g
    WORDER[:] = list(range(0, g1)) + list(range(32, 32 + g)) + list(range(g1, 32)) + list(range(32 + g, 60))
    if OPT["w2t"]:
        WORDER[:] = list(range(60))
    cA, cP, cL, cB = wcut(OPT["wA"]), wcut(OPT["wP"]), wcut(OPT["wL"]), wseq().index([])
    cK = wcut(OPT["wK"])
    prologue()
    laux, ljoin = label("aux"), label("join")
    a(f"s_cmp_eq_u32 s{sRC}, 0")
    a(f"s_cbranch_scc1 {laux}")
    stamp("args", 2)
    xt_loads()
    kgen_table_load()
    code_warm(1)
    page_warm(88)
    w_setup()
    put_all(wseq()[:cA])
    conv_setup(0)
    stamp("start", 2)

    xt_poll_addr(63, 2)
    if sentinel(1) and OPT["x1s"]:
        a(f"""v_lshrrev_b32 v2, 3, v{vLANE}
v_mul_u32_u24 v2, {BS}, v2
v_and_b32 v3, 7, v{vLANE}
v_lshl_add_u32 v2, v3, 4, v2
s_mul_i32 s{sT0}, s{sWAVE}, {16 * BS}
s_lshl_b32 s{sT1}, s{sPAIR}, 7
s_add_u32 s{sT0}, s{sT0}, s{sT1}
s_add_u32 s{sT0}, s{sT0}, {X1}
s_add_u32 s{sT1}, s{sT0}, {8 * BS}
v_mov_b32 v4, -1
v_mov_b32 v5, -1
v_mov_b32 v6, -1
v_mov_b32 v7, -1""")
        a(f"buffer_store_dwordx4 v[4:7], v2, {srd(S_WS)}, s{sT0} offen sc1", tag="st0")
        a(f"buffer_store_dwordx4 v[4:7], v2, {srd(S_WS)}, s{sT1} offen sc1", tag="st0")
    xt_work()
    stamp("xt", 2)

    def h_flag():
        nonce_take()
        flag_put(0, sPAIR, 104, "st0")
        stamp("flag", 0)
        a(f"global_load_dwordx4 {vr(TAB, 4)}, v75, {sp(sTAB)}")
        a(f"global_load_dwordx4 {vr(TAB + 4, 4)}, v75, {sp(sTAB)} offset:16")
        a(f"global_load_dwordx2 v[0:1], v75, {sp(sTAB)} offset:32")

    def h_load():
        poll_take(64, 63)
        stamp("e1 seen", 64)
        for i in a.capture(conv_loads):
            a(re.sub(r"v\[(\d+):(\d+)\]", lambda m: f"a[{int(m.group(1)) - CS}:{int(m.group(2)) - CS}]", i.text, count=1))

    hooks = {}
    dbg = tuple((p, (lambda p=p: stamp(f"hook{p}", 65))) for p in (0, 1, 2, 5)) if OPT["stamps"] == 1 else ()
    for pos, fn in dbg + ((OPT["h_flag"], h_flag), (OPT["h_w"], lambda: KBG.extend([g + ([Ins("s_mov_b32 m0, s22")] if OPT["atid"] else []) for g in wseq()[cA:cK]] + ([w2_touch(75)] if OPT["w2t"] else []))), (OPT["h_poll"], lambda: poll_issue(0, 64, 63)), (OPT["h_load"], h_load)):
        hooks.setdefault(pos, []).append(fn)
    assert OPT["h_flag"] <= OPT["h_w"] and OPT["h_poll"] >= 6
    kgen({k: (lambda fs=fs: [f() for f in fs]) for k, fs in hooks.items()})
    dump_lds(1)
    stamp("kgen", 21)

    def mid():
        if OPT["h_load"] < 10:
            return
        poll_take(64, 63)
        stamp("e1 seen", 0)
        conv_loads()
    wr = kexpand(mid)
    if OPT["mixpro"]:
        mv = [i for i in wr if i.kind != "dsw"]
        st = [i for i in wr if i.kind == "dsw"]
        pro = a.capture(conv_pro, 0)
        k = next(n for n, i in enumerate(pro) if i.defs & {f"v{r}" for r in range(0, 22)})
        a.put(mv)
        a.put(st[2:4])
        head, rest = merge(pro[:k], [[i] for i in st[4:6] + st[:2] + st[6:]], 0, 14)
        a.put(head)
        early = [g for g in rest if g[0].uses & {f"v{r}" for r in range(0, 22)}]
        put_all(early)
        rest = [g for g in rest if g not in early]
        k2 = next(n for n, i in enumerate(pro) if i.kind == "dsw")
        mid2, rest = merge(pro[k:k2], rest, 0, 30)
        put_all(rest)
        m3, rest = merge(mid2 + pro[k2:], wseq()[cK:cP], 50, OPT["ev_pro"])
        a.put(m3)
        put_all(rest)
        stamp("expand", 111)
    else:
        a.put(wr)
        stamp("expand")
        conv_pro(0)
    if sentinel(1) and not OPT["x1s"]:
        a(f"v_min_u32 v{cvP + 2}, 27, v{vLANE}")
        poll_issue(8, cvP)
    a.barrier()
    dump_lds(2)
    stamp("conv0 go", 111)
    put_all(conv_main(0, wseq()[cP:cL], OPT["st_conv"], OPT["ev_conv"]))
    stamp("conv0 done")
    a(f"s_branch {ljoin}")
    a(f"{laux}:")
    aux_loads()
    kgen_table_addr()
    code_warm(1)
    page_warm(88)
    w_setup()
    aux_work()
    stamp("aux e1")
    if OPT["g7"] == 1:
        lg = label("g7")
        a(f"""s_cmp_lg_u32 s{sR1}, 0
s_cbranch_scc1 {lg}
s_lshr_b32 s{sT0}, s{sX}, 2
s_sub_u32 s{sT0}, s{sJ}, s{sT0}
s_sub_u32 s{sT0}, s{sT0}, 28
s_lshl_b32 s{sT0}, s{sT0}, 3
s_add_u32 s{sT0}, s{sT0}, s{sX}
s_lshl_b32 s{sT0}, s{sT0}, 7
s_mul_i32 s{sT1}, s{sWAVE}, {512 * 3584}
s_add_u32 s{sT0}, s{sT0}, s{sT1}
s_add_u32 s{sT0}, s{sT0}, {448 * 3584}
v_mul_u32_u24 v90, 3584, v{vLANE}
v_add_u32 v90, s{sT0}, v90""")
        a(f"global_load_dword v90, v90, {sp(P_W1)}")
        a(f"{lg}:")
    if armed(0):
        lnf = label("nf")
        a(f"s_cmp_lg_u32 s{sR1}, 0\ns_cbranch_scc1 {lnf}")
        if OPT["map18"] == 1:
            a(f"s_sub_u32 s16, s{sAUX}, 4\ns_cselect_b32 s16, s{sAUX}, s16")
        else:
            a(f"s_lshr_b32 s16, s{sAUX}, 1\ns_sub_u32 s17, s{sAUX}, 4\ns_cmp_lt_u32 s{sAUX}, 8\ns_cselect_b32 s16, s16, s17")
        if sentinel(1) and not OPT["x1s"]:
            fill(X1, 17, 80, 16, 28 * 4096, "fill")
            flag_put(8, 16, 72, "fill")
        if sentinel(2) or sentinel(3):
            if sentinel(2):
                fill(H1, 16, 80, 16, 28 * 4096, "fill")
            if sentinel(3):
                fill(G1, 14, 80, 16, 28 * 4096, "fill")
            if emode(4) == "C" and not OPT["x2l"]:
                assert sentinel(2) and sentinel(3)
                fill(X2, 17, 80, 16, 28 * 4096, "fill")
            flag_put(18, 16, 72, "fill")
        a(f"{lnf}:")
    stamp("aux fill")
    if OPT["g7"] == 2:
        lg = label("g7")
        a(f"""s_cmp_lg_u32 s{sR1}, 0
s_cbranch_scc1 {lg}
s_lshr_b32 s{sT0}, s{sX}, 2
s_sub_u32 s{sT0}, s{sJ}, s{sT0}
s_sub_u32 s{sT0}, s{sT0}, 28
s_lshl_b32 s{sT0}, s{sT0}, 3
s_add_u32 s{sT0}, s{sT0}, s{sX}
s_lshl_b32 s{sT0}, s{sT0}, 7
s_mul_i32 s{sT1}, s{sWAVE}, {512 * 3584}
s_add_u32 s{sT0}, s{sT0}, s{sT1}
s_add_u32 s{sT0}, s{sT0}, {448 * 3584}
v_mul_u32_u24 v90, 3584, v{vLANE}
v_add_u32 v90, s{sT0}, v90""")
        a(f"global_load_dword v90, v90, {sp(P_W1)}")
        a(f"{lg}:")
    cX = min(wcut(64 + 2 * OPT["wg"]), cB)
    if OPT["w2t"]:
        a.put(w2_touch(75))
    n1 = 32 + OPT["wg"]
    if OPT["auxs"] == 2:
        assert not OPT["t2"]
        lw, lx = label("aw"), label("ax")
        a(f"s_cmp_eq_u32 s{sR1}, 0\ns_cbranch_scc1 {lw}")
        put_all(wone(0, 32, 32))
        a(f"s_branch {lx}")
        a(f"{lw}:")
        put_all(wone(32, 60, 48)[:OPT["aw"]])
        a(f"{lx}:")
    elif OPT["auxs"]:
        put_all(dmas(0, 12) + tr_dma(0, n1 - 12) + [w_tr(n) for n in range(n1 - 12, n1)])
    else:
        put_all(wseq()[:cX])
    if sentinel(1) and not OPT["x1s"]:
        a(f"v_min_u32 v62, 27, v{vLANE}")
        poll_issue(8, 60)
        poll_take(60)
    a.wait_vm0()
    stamp("aux w")
    a(f"{ljoin}:")
    for layer in range(2):
        if layer == 1:
            l = skip_unless(sRC)
            conv_setup(1)
            conv_poll1()
            stamp("conv1 ready")
            if OPT["kc_in"] and not hinted(4):
                a.wait_tag("flag")
                poll_issue(4, cvP)
                kcopies()
                poll_take(cvP)
            else:
                upad() if RB == UB else kcopies()
                conv_xearly()
                if emode(4) == "G":
                    lg = label("gt")
                    a(f"s_cmp_lg_u32 s{sR2}, 0\ns_cbranch_scc1 {lg}")
                    poll_issue(14, cvP, cvP + 3)
                    poll_take(cvP, cvP + 3)
                    a(f"{lg}:")
                    a.wait_tag("flag")
                    poll_issue(4, cvP)
                    poll_take(cvP)
                else:
                    wait_edge(4, cvP, cvP + 2, cvP + 3)
            stamp("conv1 poll")
            if emode(4) != "C":
                conv_loads()
            conv_pro(1)
            count_out(111)
            if armed(1):
                a(f"v_and_b32 v{cvP + 2}, 31, v{vLANE}")
                poll_issue(9, cvP)
            a.barrier()
            dump_lds(3)
            stamp("conv1 go", 111)
            conv_main(1)
            stamp("conv1 done")
            if armed(1):
                lj = label("cvj")
                a(f"s_branch {lj}")
                a(f"{l}:")
                a(f"v_and_b32 v62, 31, v{vLANE}")
                poll_issue(9, 60)
                poll_take(60)
                a(f"{lj}:")
            else:
                a(f"{l}:")
        wide = OPT["ln1w"] if layer else OPT["ln0w"]
        l = skip_unless(sRL0 if wide else sRL)
        ln(layer, wide)
        stamp(f"ln{layer} done")
        a(f"{l}:")
        if layer == 0:
            gemm_perm(0)
            def arm_poll(part):
                k = max(0, len(part) - 12)
                put_all(part[:k])
                if sentinel(2) or sentinel(3):
                    a(f"v_min_u32 v62, 27, v{vLANE}")
                    poll_issue(18, 60)
                if inb:
                    gemm1(0, wide, part="head")
                k2 = max(k, len(part) - OPT["inb"])
                put_all(part[k:k2])
                if inb:
                    gemm1(0, wide, part="poll")
                put_all(part[k2:])
                if sentinel(2) or sentinel(3):
                    poll_take(60)
            inb = OPT["inb"] > 0 and emode(2) == "S"
            if OPT["auxs"]:
                assert OPT["wB"] == 120 or (OPT["t2"] and OPT["wB"] >= 96) or OPT["auxs"] == 2
                la, lb, lc = label("ba"), label("bb"), label("bc")
                a(f"s_cmp_eq_u32 s{sRC}, 0\ns_cbranch_scc1 {la}")
                arm_poll(wseq()[cL:cB])
                a(f"s_branch {lb}")
                a(f"{la}:")
                a(f"s_cmp_eq_u32 s{sR2}, 0\ns_cbranch_scc1 {lc}")
                nB = OPT["wB"] // 2
                put_all(wone(32, 60, 48)[OPT["aw"]:] if OPT["auxs"] == 2 else dmas(n1, n1 + 12) + (tr_dma(n1, nB - 12) if nB - 12 > n1 else []) + [w_tr(n) for n in range(max(n1, nB - 12), 48)])
                if emode(4) == "C" and OPT["x2l"] == 2:
                    if OPT["map18"] == 1:
                        a(f"s_sub_u32 s16, s{sAUX}, 4\ns_cselect_b32 s16, s{sAUX}, s16")
                    else:
                        a(f"s_lshr_b32 s16, s{sAUX}, 1\ns_sub_u32 s17, s{sAUX}, 4\ns_cmp_lt_u32 s{sAUX}, 8\ns_cselect_b32 s16, s16, s17")
                    fill(X2, 17, 80, 16, 28 * 4096, "fill")
                    flag_put(19, 16, 72, "fill")
                a(f"{lc}:")
                if inb:
                    gemm1(0, wide, part="head")
                    gemm1(0, wide, part="poll")
                elif not sentinel(2):
                    arm_poll([])
                a(f"{lb}:")
            else:
                l = skip_unless(sRC)
                put_all(wseq()[cL:cX])
                a(f"{l}:")
                rest = wseq()[cX:cB]
                k = max(0, len(rest) - 12)
                put_all(rest[:k])
                if sentinel(2) or sentinel(3):
                    a(f"v_min_u32 v62, 27, v{vLANE}")
                    poll_issue(18, 60)
                put_all(rest[k:])
                if sentinel(2) or sentinel(3):
                    poll_take(60)
            stamp("w B", 63)
            tail = wseq()[cB:]
            assert not any(i.kind == "dsr" and "a[" in i.text for g in tail for i in g)
            lelse, lj = label("ng1"), label("g1j")
            a(f"s_cmp_eq_u32 s{sR1}, 0")
            a(f"s_cbranch_scc1 {lelse}")
            gemm1(0, wide, None, [] if OPT["t2"] else tail, "rest" if inb else "all")
            nonce_retire()
            stamp("g1_0 done")
            a(f"s_branch {lj}")
            a(f"{lelse}:")
            if OPT["auxs"] == 2 and OPT["wB"] < 120:
                a(f"s_cmp_eq_u32 s{sRC}, 0\ns_cbranch_scc1 {lj}")
            put_all([] if OPT["t2"] else wseq()[cB:])
            a(f"{lj}:")
        else:
            l = skip_unless(sR1)
            gemm1(1, wide)
            stamp("g1_1 done")
            a(f"{l}:")
        l = skip_unless(sR2)
        gemm2(layer, [g for g in wseq()[cB:] if g] if (layer == 0 and OPT["t2"]) else [])
        if layer == 0 and armed(1):
            lj = label("g2j")
            a(f"s_branch {lj}")
            a(f"{l}:")
            if OPT["map18"]:
                a(f"s_lshl_b32 s16, s{sX}, 2\ns_add_u32 s16, s16, s{sJ}")
            else:
                a(f"s_lshr_b32 s16, s{sX}, 1\ns_lshl_b32 s16, s16, 3\ns_add_u32 s16, s16, s{sJ}")
            late = emode(4) == "C" and OPT["x2l"]
            if late == 1:
                fill(X2, 15, 72, 16, CH)
                flag_put(19, 16, 8, "st0")
            for base, n, e in ((X3, 15, 5), (H3, 14, 6), (G3, 13, 7)):
                if sentinel(e):
                    fill(base, n, 72, 16, CH)
            flag_put(9, 16, 8, "st0")
            if late:
                a(f"v_and_b32 v62, 31, v{vLANE}" if late == 1 else f"v_min_u32 v62, 27, v{vLANE}")
                poll_issue(19, 60)
                poll_take(60)
            a(f"{lj}:")
        else:
            a(f"{l}:")
        stamp("g2_0 done" if layer == 0 else "end")
    if OPT["stamps"] and OPT["dbgwg"] < 0:
        l = label("ls")
        a(f"s_cmp_lg_u32 s{sWAVE}, 0\ns_cbranch_scc1 {l}\ns_memrealtime {sp(sSTAMP)}\ns_waitcnt lgkmcnt(0)")
        a(f"s_lshl_b32 s3, s2, 8\ns_add_u32 s3, s3, {STAMPS + 248}\nv_mov_b32 v0, s101\nv_mov_b32 v1, s{sSTAMP}\ns_mov_b64 exec, 1")
        a(f"buffer_store_dwordx2 v[0:1], off, {srd(S_WS)}, s3")
        a(f"{l}:")
    if OPT["fixdur"]:
        a(f"s_waitcnt vmcnt(0) lgkmcnt(0)\nL_fix:\ns_memrealtime s[28:29]\ns_waitcnt lgkmcnt(0)\ns_sub_u32 s28, s28, s101\ns_cmp_lt_u32 s28, {OPT['fixdur']}\ns_cbranch_scc1 L_fix")
    a("s_endpgm")


def bf16_round_int(l):
    b = struct.unpack("<I", struct.pack("<f", float(l)))[0]
    b = (b + 0x7FFF + ((b >> 16) & 1)) & 0xFFFF0000
    return int(struct.unpack("<f", struct.pack("<I", b))[0])


def ktab():
    vals = []
    for c in range(2):
        for x in range(2048):
            lr = bf16_round_int(2047 - x)
            aa, rem = lr >> 7, lr & 127
            j, e = rem >> 3, rem & 7
            if aa < 2:
                rho = 8 * aa + e
            elif aa < 4:
                rho = 4 * aa + 8 + (e >> 1)
            elif aa < 8:
                rho = 16 + 2 * aa + (e >> 2)
            else:
                rho = 24 + aa
            vals.append((rho >> 2) * 256 + j * 16 + (rho & 3) * 4 + c * 2 * GST)
        vals += [3072 + c * 2 * GST] * 16
    lines = []
    for i in range(0, len(vals), 16):
        lines.append("    .short " + ", ".join(str(v) for v in vals[i:i + 16]))
    return "\n".join(lines)


DOC = """;
;           K[l] = Re sum_n c_n z_n^bf16(l), evaluated as an MFMA product of z^(coarse) rows and z^(8j) columns)
;   gemm1 : gelu(h^T W1 + b1), 64x64 tile per workgroup, K split over the waves, W1 tile resident in AGPRs
;   gemm2 : x + g W2 + b2, W2 tile resident in VGPRs + LDS; per-token sums for the next LayerNorm by float atomics
; Hand-offs between workgroups go through d_ws with write-through stores and L1-bypassing loads, valid for any placement:
;   - flags stored after the data is acknowledged, tagged with a value one above the tag word found on entry;
; Every wait is bounded.  Generated by the author's own script (register allocation and schedule are explicit).
"""


WIDEN = ("v_mov_b32", "v_add_f32", "v_mul_f32", "v_max_f32", "v_min_f32", "v_add_u32", "v_sub_u32", "v_lshlrev_b32", "v_lshrrev_b32", "v_and_b32",
         "v_xor_b32", "v_max_u32", "v_min_u32", "v_exp_f32", "v_rcp_f32", "v_rsq_f32", "v_sin_f32", "v_cos_f32", "v_fract_f32", "v_mul_u32_u24",
         "v_cmp_eq_u32", "v_cmp_gt_u32", "v_cmp_ne_u64", "v_cndmask_b32", "v_not_b32", "v_ashrrev_i32")


def sizes_of(ins):
    import subprocess, tempfile, os
    d = tempfile.mkdtemp()
    body = Prog.render(ins) + "".join((l if l.endswith(":") else "    " + l) + "\n" for l in STUBS)
    open(d + "/a.s", "w").write('.amdgcn_target "amdgcn-amd-amdhsa--gfx950"\n.text\nL_entry:\n' + body + "ktab:\n")
    subprocess.run(["clang", "-x", "assembler", "-target", "amdgcn-amd-amdhsa", "-mcpu=gfx950", "-c", d + "/a.s", "-o", d + "/a.o"], check=True)
    out = subprocess.run(["llvm-objdump", "-d", "--mcpu=gfx950", d + "/a.o"], capture_output=True, text=True, check=True).stdout
    return [4 * len(l.split("//")[1].split(":")[1].split()) for l in out.split("\n") if "//" in l]


def align8(ins):
    real = [i for i in ins if i.kind not in ("label", "comment")]
    sz = sizes_of(ins)[:len(real)]
    size = {id(i): n for i, n in zip(real, sz)}
    run = [0] * (len(real) + 1)
    mf = [0] * (len(real) + 1)
    for k in range(len(real) - 1, -1, -1):
        run[k] = run[k + 1] + 1 if sz[k] == 8 else 0
        mf[k] = (mf[k + 1] + (real[k].kind == "mfma")) if sz[k] == 8 else 0
    idx = {id(i): k for k, i in enumerate(real)}
    out, off, cand, nw, nn = [], 0, None, 0, 0
    for i in ins:
        if i.kind in ("label", "comment"):
            out.append(i)
            continue
        k = idx[id(i)]
        if sz[k] == 8 and (k == 0 or sz[k - 1] != 8) and off % 8 == 4 and run[k] >= OPT["al_w"]:
            if cand is not None:
                c = out[cand]
                op, rest = c.text.split(None, 1)
                out[cand] = Ins(op + "_e64 " + rest)
                off += 4
                nw += 1
            elif run[k] >= OPT["al_n"] and mf[k] * 4 < run[k]:
                out.append(Ins("s_nop 0"))
                off += 4
                nn += 1
        if sz[k] == 8:
            if run[k] >= OPT["al_w"] or (k and sz[k - 1] == 8):
                cand = None
        elif sz[k] == 4 and i.op in WIDEN:
            cand = len(out)
        out.append(i)
        off += sz[k]
    print("aligned runs: widened", nw, "padded", nn)
    return out


def main(path):
    build()
    ins = a.finish()
    if OPT["al_w"]:
        ins = align8(ins)
    ref = open(f"cdna_kernels/{NAME}.s.ref").read().split("\n")
    head = [l for l in ref if l.startswith(";") and "@launch" not in l and not l.startswith("; Override") and not l.startswith("; grid=ceil")]
    k = NAME + "_kernel"
    s = "\n".join(head) + f"\n; @launch grid=(256,1,1) block=(256,1,1) lds={LDS_BYTES}\n"
    s += DOC
    s += f""".amdgcn_target "amdgcn-amd-amdhsa--gfx950"
.text
.globl {k}
.p2align 8
.type {k},@function
{k}:
L_entry:
"""
    s += Prog.render(ins)
    s += "".join((l if l.endswith(":") else "    " + l) + "\n" for l in STUBS)
    s += f""".p2align 6
.type ktab,@object
ktab:
{ktab()}
.size ktab, 8256
.section .rodata,"a"
.p2align 6
.amdhsa_kernel {k}
  .amdhsa_next_free_vgpr 512
  .amdhsa_next_free_sgpr 102
  .amdhsa_accum_offset 256
  .amdhsa_group_segment_fixed_size 0
  .amdhsa_kernarg_size 136
  .amdhsa_user_sgpr_count 2
  .amdhsa_user_sgpr_kernarg_segment_ptr 1
  .amdhsa_system_sgpr_workgroup_id_x 1
  .amdhsa_float_denorm_mode_32 3
.end_amdhsa_kernel
"""
    open(path, "w").write(s)
    n = sum(1 for i in ins if i.kind not in ("label", "comment"))
    open(path + ".names", "w").write("\n".join(STAMP_NAMES))
    print("instructions:", n, "nops:", sum(1 for i in ins if i.kind == "nop"), "waits:", sum(1 for i in ins if i.kind == "wait"))


if __name__ == "__main__":
    path = sys.argv[1]
    for kv in sys.argv[2:]:
        k, v = kv.split("=")
        OPT[k] = v if k in ('em', 'probe') else int(v)
    main(path)
```
